```python
import torch

def _softmax(x, axis=-1):
    return torch.softmax(x, dim=axis)
def _gelu(x):
    return torch.nn.functional.gelu(x, approximate="tanh")
def _silu(x):
    return torch.nn.functional.silu(x)
def _sigmoid(x):
    return torch.sigmoid(x)
def _layernorm(x, axis=-1, eps=1e-5):
    m = x.mean(dim=axis, keepdim=True)
    v = x.var(dim=axis, keepdim=True, unbiased=False)
    return (x - m) / torch.sqrt(v + eps)
def _scatter_add(tgt, idx, src, axis=0):
    return tgt.clone().index_add_(axis, idx, src)
def _segment_sum(src, seg, n):
    out = torch.zeros((n,) + src.shape[1:], dtype=src.dtype)
    return out.index_add_(0, seg, src)
def _pad(x, pw):
    flat = tuple(v for pair in reversed(pw) for v in pair)
    return torch.nn.functional.pad(x, flat)

kernel_name = 'sequential_preLN__ssm_conv_h3__dense_activation_squared_relu__prompt'

def setup_inputs():

    _w = (lambda a: (lambda t: t.to(torch.bfloat16) if t.is_floating_point() else t)(torch.as_tensor(a)))
    def _A_setup():
        B, S, D = 1, 2048, 1024
        ks = 4
        return {
            "q": _w((lambda *s: torch.randn(*s, dtype=torch.bfloat16) * 0.05)(B, S, D)),
            "k": _w((lambda *s: torch.randn(*s, dtype=torch.bfloat16) * 0.4)(B, S, D)),
            "v": _w((lambda *s: torch.randn(*s, dtype=torch.bfloat16) * 0.4)(B, S, D)),
            "shift_k": _w((lambda *s: torch.randn(*s, dtype=torch.bfloat16) * 0.4)(D, ks) * 0.5),
            "ssm_k": _w((lambda *s: torch.randn(*s, dtype=torch.bfloat16) * 0.4)(D, S) * (1.0 / S ** 0.5)),
            "ssm_D": _w((lambda *s: torch.randn(*s, dtype=torch.bfloat16) * 0.4)(D)),
        }
    _A_in = _A_setup()

    def _B_setup():
        B, S, D, F = 1, 2048, 1024, 3584
        return {
            "x": _w((lambda *s: torch.randn(*s, dtype=torch.bfloat16) * 0.05)(B, S, D)),
            "w1": _w((lambda *s: torch.randn(*s, dtype=torch.bfloat16) * 0.05)(D, F)),
            "b1": _w((lambda *s: torch.randn(*s, dtype=torch.bfloat16) * 0.4)(F)),
            "w2": _w((lambda *s: torch.randn(*s, dtype=torch.bfloat16) * 0.05)(F, D)),
            "b2": _w((lambda *s: torch.randn(*s, dtype=torch.bfloat16) * 3.2)(D)),
        }
    _B_in = _B_setup()

    return {
        "A_q": _A_in["q"],
        "A_k": _A_in["k"],
        "A_v": _A_in["v"],
        "A_shift_k": _A_in["shift_k"],
        "A_ssm_k": _A_in["ssm_k"],
        "A_ssm_D": _A_in["ssm_D"],
        "B_x": _B_in["x"],
        "B_w1": _B_in["w1"],
        "B_b1": _B_in["b1"],
        "B_w2": _B_in["w2"],
        "B_b2": _B_in["b2"],
    }

def reference(A_q, A_k, A_v, A_shift_k, A_ssm_k, A_ssm_D, B_x, B_w1, B_b1, B_w2, B_b2):
    def _A_ref(q, k, v, shift_k, ssm_k, ssm_D):
        B, S, D = q.shape
        ks = shift_k.shape[-1]
        k_pad = _pad(k, ((0, 0), (ks - 1, 0), (0, 0)))
        k_shift = torch.zeros_like(k)
        for t in range(ks):
            k_shift = k_shift + k_pad[:, t:t + S, :] * shift_k[:, ks - 1 - t][None, None, :]
        kv = k_shift * v
        L = 2 * S
        kv_pad = _pad(kv, ((0, 0), (0, S), (0, 0)))
        kf_pad = _pad(ssm_k, ((0, 0), (0, S)))
        kv_f = (lambda x, axes=(-2,-1): torch.fft.rfft2(x.float(), dim=axes))(kv_pad[:, None, :, :], axes=(1, 2))
        kf_f = (lambda x, axes=(-2,-1): torch.fft.rfft2(x.float(), dim=axes))(kf_pad[:, None, :], axes=(1, 2))
        kf_f = (lambda x, *d: x.permute(*d))(kf_f, 1, 2, 0)
        y_f = kv_f * kf_f[None, :, :, :]
        y = (lambda x, s, axes=(-2,-1): torch.fft.irfft2(x, s=s, dim=axes).to(torch.bfloat16))(y_f, (1, L), axes=(1, 2))[:, 0, :S, :]
        y = y + kv * ssm_D[None, None, :]
        return q * y

    def _B_ref(x, w1, b1, w2, b2):
        h = torch.einsum("bsd,df->bsf", x, w1) + b1
        zero = torch.zeros_like(h)
        r = torch.where(h > zero, h, zero)
        h = r * r
        out = torch.einsum("bsf,fd->bsd", h, w2) + b2
        return out

    x = A_q
    h = x + _A_ref(_layernorm(x, axis=-1), A_k, A_v, A_shift_k, A_ssm_k, A_ssm_D)
    h2 = h + _B_ref(_layernorm(h, axis=-1), B_w1, B_b1, B_w2, B_b2)
    return h2
```

```python
KN = "sequential_preLN__ssm_conv_h3__dense_activation_squared_relu__prompt"
ARG = dict(q=0, k=8, v=16, shift=24, ssmk=32, ssmD=40, x=48, w1=56, b1=64, w2=72, b2=80, out=88, dbg=96, ws=104)

class Asm:
    def __init__(self):
        self.lines = []
    def __call__(self, s):
        for l in s.strip("\n").split("\n"):
            self.lines.append(l)
    def text(self):
        return "\n".join(self.lines) + "\n"

WS = dict(base=0, regs=())
def srd(a, d, base, nbytes, off=None):
    if base in WS["regs"]: off = (off or 0) + WS["base"]
    if off:
        a(f"    s_add_u32 s{d}, s{base}, {off:#x}")
        a(f"    s_addc_u32 s{d+1}, s{base+1}, 0")
    else:
        a(f"    s_mov_b32 s{d}, s{base}")
        a(f"    s_mov_b32 s{d+1}, s{base+1}")
    a(f"    s_mov_b32 s{d+2}, {nbytes:#x}")
    a(f"    s_mov_b32 s{d+3}, 0x00020000")

def kernel_head(a, name):
    a(f".text\n.globl {name}\n.p2align 8\n.type {name},@function\n{name}:")

def kernel_desc(a, name, vgpr, sgpr=96, accum=None):
    if accum is None:
        accum = (vgpr + 3) // 4 * 4
    a(f""".section .rodata,"a"
.p2align 6
.amdhsa_kernel {name}
  .amdhsa_next_free_vgpr {vgpr}
  .amdhsa_next_free_sgpr {sgpr}
  .amdhsa_accum_offset {accum}
  .amdhsa_group_segment_fixed_size 0
  .amdhsa_kernarg_size 112
  .amdhsa_user_sgpr_count 2
  .amdhsa_user_sgpr_kernarg_segment_ptr 1
  .amdhsa_system_sgpr_workgroup_id_x 1
.end_amdhsa_kernel""")

def file_head(launches):
    s = ""
    for (k, g, b, lds) in launches:
        s += f"; @launch kernel={k} grid=({g},1,1) block=({b},1,1) lds={lds}\n"
    s += '.amdgcn_target "amdgcn-amd-amdhsa--gfx950"\n'
    return s
```

```python
import sys
from asmlib import *

KVR_OFF = 0x0000000
Y2_OFF  = 0x0400000
H_OFF   = 0x0800000
HN_OFF  = 0x0C00000
H1_OFF  = 0x1000000
H1_SZ   = 16 * 56 * 16384
XCH_OFF = 0x2000000
FLG_OFF = 0x2800000
STP_OFF = 0x3000000
MB4 = 4 << 20

class Opt:
    stamps = False
opt = Opt()

def stamp(a, idx, vreg=250):
    if not opt.stamps: return
    a(f"    s_memtime s[84:85]\n    s_waitcnt lgkmcnt(0)\n    s_sub_u32 s84, s84, s80\n    v_writelane_b32 v{vreg}, s84, {idx}")

def stamp_begin(a, vreg=250):
    if not opt.stamps: return
    a(f"    s_memtime s[80:81]\n    s_memrealtime s[82:83]\n    s_waitcnt lgkmcnt(0)\n    v_writelane_b32 v{vreg}, s82, 62")

def stamp_end(a, kidx, wsbase, wavereg, vreg=250):
    if not opt.stamps: return
    a(f"""    s_memrealtime s[82:83]
    s_waitcnt lgkmcnt(0)
    v_writelane_b32 v{vreg}, s82, 63
    s_add_u32 s84, s{wsbase}, {STP_OFF + kidx * 0x80000:#x}
    s_addc_u32 s85, s{wsbase+1}, 0
    s_mov_b32 s86, 0x80000
    s_mov_b32 s87, 0x00020000
    s_lshl_b32 s88, s2, 3
    s_add_u32 s88, s88, s{wavereg}
    s_lshl_b32 s88, s88, 8
    v_mbcnt_lo_u32_b32 v{vreg+1}, -1, 0
    v_mbcnt_hi_u32_b32 v{vreg+1}, -1, v{vreg+1}
    v_lshlrev_b32 v{vreg+1}, 2, v{vreg+1}
    buffer_store_dword v{vreg}, v{vreg+1}, s[84:87], s88 offen""")

def vr(b, n):
    return f"v[{b}:{b+n-1}]" if n > 1 else f"v{b}"

def gemm_consumer_loop(a, L, MI, NI, nk, acc, F0, F1, vA, vB, a_imm, b_imm_kh, b_imm_t, s_slot, s_delta, s_k, stage, ns):
    def reads(F, kh):
        r = []
        for mi in range(MI):
            reg, imm = vA(mi, kh)
            r.append(f"    ds_read_b128 {vr(F + 4*mi, 4)}, v{reg} offset:{imm}")
        for ni in range(NI):
            for t in range(2):
                r.append(f"    ds_read_b64_tr_b16 {vr(F + 4*MI + 4*ni + 2*t, 2)}, v{vB + ni} offset:{kh*b_imm_kh + t*b_imm_t}")
        return r
    def mfmas(F):
        r = []
        for ni in range(NI):
            for mi in range(MI):
                c = acc + 4 * (mi * NI + ni)
                r.append(f"    v_mfma_f32_16x16x32_bf16 {vr(c,4)}, {vr(F + 4*MI + 4*ni, 4)}, {vr(F + 4*mi, 4)}, {vr(c,4)}")
        return r
    def weave(mf, fill):
        i = 0
        for j, m in enumerate(mf):
            a(m)
            if i < len(fill):
                a(fill[i]); i += 1
        while i < len(fill):
            a(fill[i]); i += 1
    addr_regs = sorted(set(vA(mi, kh)[0] for mi in range(MI) for kh in range(2))) + [vB + i for i in range(NI)]
    for l in reads(F0, 0): a(l)
    a(f"    s_mov_b32 s{s_k}, 0\n    s_mov_b32 s{s_slot}, 0\n    s_mov_b32 s47, {stage}")
    a(f"{L}_loop:")
    a(f"    s_add_u32 s{s_slot}, s{s_slot}, 1\n    s_cmp_eq_u32 s{s_slot}, {ns}\n    s_cselect_b32 s{s_delta}, {(-(ns-1)*stage) & 0xffffffff:#x}, s47\n    s_cselect_b32 s{s_slot}, 0, s{s_slot}")
    a("    s_waitcnt lgkmcnt(0)")
    upd = [f"    v_add_u32 v{r}, s{s_delta}, v{r}" for r in addr_regs]
    weave(mfmas(F0), reads(F1, 1) + upd)
    a("    s_waitcnt lgkmcnt(0)\n    s_barrier")
    weave(mfmas(F1), reads(F0, 0))
    a(f"    s_add_u32 s{s_k}, s{s_k}, 1\n    s_cmp_lt_u32 s{s_k}, {nk}\n    s_cbranch_scc1 {L}_loop")
    a("    s_waitcnt lgkmcnt(0)")

def gemm_loader_loop(a, L, nk, ns, per, issue, s_k):
    for s in range(ns): issue()
    a(f"    s_waitcnt vmcnt({(ns-1)*per})\n    s_barrier")
    a(f"    s_mov_b32 s{s_k}, 0\n{L}_lloop:")
    a(f"    s_waitcnt vmcnt({(ns-2)*per})\n    s_barrier")
    issue()
    a(f"    s_add_u32 s{s_k}, s{s_k}, 1\n    s_cmp_lt_u32 s{s_k}, {nk-ns}\n    s_cbranch_scc1 {L}_lloop")
    for k in range(nk - ns, nk):
        left = max(0, nk - 1 - (k + 1))
        if k + 1 < nk: a(f"    s_waitcnt vmcnt({left*per})")
        a("    s_barrier")

def gen_g1(a, kidx):
    name = "g1_kernel"; L = "G1"
    STAGE = 49152; NS = 3; NK = 16
    kernel_head(a, name)
    a(f"""    s_cmp_ge_u32 s2, 256
    s_cbranch_scc1 {L}_end
    s_load_dwordx2 s[4:5], s[0:1], {ARG['ws']}
    s_load_dwordx2 s[6:7], s[0:1], {ARG['w1']}
    s_load_dwordx2 s[8:9], s[0:1], {ARG['b1']}""")
    stamp_begin(a)
    a(f"""    v_lshrrev_b32 v1, 6, v0
    v_and_b32 v2, 63, v0
    s_and_b32 s24, s2, 7
    v_readfirstlane_b32 s33, v1
    s_lshr_b32 s25, s2, 3
    s_lshr_b32 s26, s24, 1
    s_lshl_b32 s26, s26, 2
    s_and_b32 s27, s25, 3
    s_add_u32 s26, s26, s27          ; mt
    s_and_b32 s27, s24, 1
    s_lshl_b32 s27, s27, 3
    s_lshr_b32 s28, s25, 2
    s_add_u32 s27, s27, s28          ; nt
    s_and_b32 s29, s27, 1
    s_cmp_lt_u32 s33, 4
    s_cbranch_scc1 {L}_cons""")
    a(f"""    s_sub_u32 s34, s33, 4            ; lw
    s_lshl_b32 s35, s34, 12          ; lw*4096
    v_lshl_add_u32 v10, v2, 4, s35   ; A voffset
    s_lshl_b32 s30, s26, 18
    s_mul_i32 s31, s27, 448
    s_and_b32 s31, s31, 0xffffff80   ; B soffset
    s_mov_b32 s38, s35
    s_add_u32 s39, s35, {NS*STAGE}
    s_add_u32 s37, s35, 16384
    v_lshrrev_b32 v3, 5, v2          ; hi
    s_lshl_b32 s36, s34, 4
    v_add_u32 v4, s36, v3            ; 16lw+hi
    s_movk_i32 s36, 7168
    v_mul_lo_u32 v4, v4, s36
    v_and_b32 v5, 1, v2
    v_lshl_add_u32 v4, v5, 4, v4     ; t0
    v_bfe_u32 v5, v2, 1, 4
    v_xor_b32 v5, v5, v3             ; x0
    s_waitcnt lgkmcnt(0)""")
    srd(a, 12, 4, MB4, off=HN_OFF); srd(a, 16, 6, 1024 * 7168)
    for ci, c in enumerate((0, 2, 4, 6)):
        a(f"    v_xor_b32 v6, {c}, v5\n    v_lshl_add_u32 v6, v6, 5, v4")
        for i in range(8):
            if 2 * (i & 1) + 4 * (i >> 2) == c:
                a(f"    v_add_u32 v{12+i}, {2*i*7168 - (i&3)*1024}, v6")
    def issue():
        a("    s_mov_b32 m0, s38\n    s_add_u32 s36, s38, s37")
        for i in range(4): a(f"    buffer_load_dwordx4 v10, s[12:15], s30 offen offset:{i*1024} lds")
        a("    s_mov_b32 m0, s36\n    s_add_u32 s30, s30, 16384")
        for i in range(4): a(f"    buffer_load_dwordx4 v{12+i}, s[16:19], s31 offen offset:{i*1024} lds")
        a(f"    s_add_u32 m0, s36, 4096\n    s_add_u32 s38, s38, {STAGE}")
        for i in range(4, 8): a(f"    buffer_load_dwordx4 v{12+i}, s[16:19], s31 offen offset:{(i&3)*1024} lds")
        a(f"    s_add_u32 s31, s31, {64*7168}\n    s_cmp_ge_u32 s38, s39\n    s_cselect_b32 s38, s35, s38")
    stamp(a, 0)
    gemm_loader_loop(a, L, NK, NS, 12, issue, 40)
    stamp(a, 1)
    a(f"    s_branch {L}_epi2")
    ACC = 0; F0 = 112; F1 = 156; VA = 200; VB = 202; VBI = 210
    a(f"""{L}_cons:
    v_mov_b32 v240, v2               ; lane
    s_and_b32 s34, s33, 1            ; wm
    s_lshr_b32 s35, s33, 1           ; wn
    v_and_b32 v241, 15, v240         ; r
    v_lshrrev_b32 v242, 4, v240      ; kg
    s_mul_i32 s36, s27, 224
    s_mul_i32 s37, s35, 112
    s_add_u32 s36, s36, s37
    s_lshl_b32 s36, s36, 1
    v_lshlrev_b32 v243, 3, v242
    s_waitcnt lgkmcnt(0)""")
    srd(a, 16, 8, 7168)
    for ni in range(7):
        a(f"    buffer_load_dwordx2 {vr(VBI + 2*ni, 2)}, v243, s[16:19], s36 offen offset:{32*ni}")
    a(f"""    s_lshl_b32 s36, s34, 13          ; wm*64*128
    v_lshl_add_u32 v244, v241, 7, s36
    v_and_b32 v245, 7, v241          ; r7
    v_xor_b32 v246, v242, v245
    v_lshl_add_u32 v{VA}, v246, 4, v244
    v_xor_b32 v246, 4, v246
    v_lshl_add_u32 v{VA+1}, v246, 4, v244
    v_bfe_u32 v246, v240, 2, 2       ; rr
    v_lshl_add_u32 v247, v242, 3, v246   ; 8kg+rr
    v_lshlrev_b32 v247, 9, v247
    v_and_b32 v248, 3, v240          ; cc
    v_lshl_add_u32 v247, v248, 3, v247
    v_add_u32 v247, 16384, v247
    v_and_b32 v248, 1, v242
    v_lshl_or_b32 v246, v248, 2, v246    ; g
    s_mul_i32 s37, s35, 7
    s_lshl_b32 s38, s29, 1
    s_add_u32 s37, s37, s38          ; f0 = 2p + 7wn""")
    for ni in range(7):
        a(f"    s_add_u32 s38, s37, {ni}\n    v_xor_b32 v248, s38, v246\n    v_lshl_add_u32 v{VB+ni}, v248, 5, v247")
    a("    s_waitcnt vmcnt(0)")
    for ni in range(7):
        for d in range(2):
            c = ACC + 4 * ni + 2 * d
            a(f"    v_lshlrev_b32 v{c}, 16, v{VBI+2*ni+d}\n    v_and_b32 v{c+1}, 0xffff0000, v{VBI+2*ni+d}")
    for mi in range(1, 4):
        for ni in range(7):
            for d in range(2):
                c = ACC + 4 * (mi * 7 + ni) + 2 * d
                a(f"    v_mov_b64 {vr(c,2)}, {vr(ACC + 4*ni + 2*d, 2)}")
    stamp(a, 0)
    a("    s_barrier")
    stamp(a, 1)
    gemm_consumer_loop(a, L, 4, 7, NK, ACC, F0, F1, lambda mi, kh: (VA + kh, mi * 2048), VB, None, 16384, 2048, 41, 42, 40, STAGE, NS)
    stamp(a, 2)
    a(f"""    v_lshrrev_b32 v246, 1, v242      ; kg>>1
    v_xor_b32 v246, v246, v245       ; (kg>>1)^r7
    v_and_b32 v247, 1, v242
    v_lshl_add_u32 v247, v247, 3, v244   ; m*128 + half*8""")
    for ni in range(7):
        a(f"""    s_add_u32 s38, s37, {ni}
    s_lshr_b32 s39, s38, 2
    s_lshl_b32 s39, s39, 14
    s_and_b32 s38, s38, 3
    s_lshl_b32 s38, s38, 1
    v_xor_b32 v248, s38, v246
    v_lshl_add_u32 v248, v248, 4, v247
    v_add_u32 v{VB+ni}, s39, v248""")
    for ni in range(7):
        for mi in range(4):
            c = ACC + 4 * (mi * 7 + ni)
            t = F0 + 2 * ((ni * 4 + mi) % 8)
            for r in range(4): a(f"    v_max_f32 v{c+r}, 0, v{c+r}")
            a(f"    v_pk_mul_f32 {vr(c,2)}, {vr(c,2)}, {vr(c,2)}\n    v_pk_mul_f32 {vr(c+2,2)}, {vr(c+2,2)}, {vr(c+2,2)}")
            a(f"    v_cvt_pk_bf16_f32 v{c}, v{c}, v{c+1}\n    v_cvt_pk_bf16_f32 v{c+1}, v{c+2}, v{c+3}")
            a(f"    ds_write_b64 v{VB+ni}, {vr(c,2)} offset:{mi*2048}")
    a("    s_waitcnt lgkmcnt(0)")
    stamp(a, 3)
    a(f"""{L}_epi2:
    s_barrier
    v_mbcnt_lo_u32_b32 v2, -1, 0
    v_mbcnt_hi_u32_b32 v2, -1, v2
    s_lshl_b32 s36, s33, 10
    v_lshl_add_u32 v3, v2, 4, s36
    v_lshrrev_b32 v4, 3, v2
    v_xor_b32 v4, v4, v2
    v_bfe_u32 v4, v4, 2, 1               ; c bit2
    v_cmp_eq_u32 vcc, 1, v4
    s_mul_i32 s36, s27, 7
    s_lshr_b32 s36, s36, 1               ; ks0
    s_mul_i32 s37, s26, 56
    s_add_u32 s36, s36, s37
    s_lshl_b32 s36, s36, 14
    v_mov_b32 v5, 0x80000000
    v_cndmask_b32 v6, v5, v3, vcc
    v_cndmask_b32 v7, v3, v5, vcc
    s_cmp_eq_u32 s29, 1
    s_cselect_b64 vcc, -1, 0""")
    srd(a, 12, 4, H1_SZ, off=H1_OFF)
    a("""    v_cndmask_b32 v6, v3, v6, vcc
    v_cndmask_b32 v7, v7, v3, vcc""")
    for j in range(8): a(f"    ds_read_b128 {vr(16+4*j,4)}, v3 offset:{8192*j}")
    for j in range(8):
        vo = 6 if j < 2 else (7 if j >= 6 else 3)
        a(f"    s_waitcnt lgkmcnt({7-j})\n    buffer_store_dwordx4 {vr(16+4*j,4)}, v{vo}, s[12:15], s36 offen\n    s_add_u32 s36, s36, 8192")
    stamp(a, 4)
    if opt.stamps: a("    s_waitcnt vmcnt(0)")
    stamp(a, 5)
    stamp_end(a, kidx, 4, 33)
    a(f"{L}_end:\n    s_endpgm")
    return (name, 256, 512, NS * STAGE), (name, 256, 96)

def gen_g2(a, kidx):
    name = "g2_kernel"; L = "G2"
    STAGE = 32768; NS = 4; NK = 28
    kernel_head(a, name)
    a(f"""    s_cmp_ge_u32 s2, 256
    s_cbranch_scc1 {L}_end
    s_load_dwordx2 s[4:5], s[0:1], {ARG['ws']}
    s_load_dwordx2 s[6:7], s[0:1], {ARG['w2']}
    s_load_dwordx2 s[8:9], s[0:1], {ARG['b2']}
    s_load_dwordx2 s[10:11], s[0:1], {ARG['out']}""")
    stamp_begin(a)
    a(f"""    v_lshrrev_b32 v1, 6, v0
    v_and_b32 v2, 63, v0
    s_and_b32 s24, s2, 7
    v_readfirstlane_b32 s33, v1
    s_lshr_b32 s25, s2, 3
    s_and_b32 s29, s24, 1            ; kh
    s_lshr_b32 s26, s24, 1
    s_lshl_b32 s26, s26, 2
    s_and_b32 s27, s25, 3
    s_add_u32 s26, s26, s27          ; mt
    s_lshr_b32 s27, s25, 2           ; nt
    s_lshl_b32 s43, s26, 7
    s_lshl_b32 s44, s29, 5
    s_add_u32 s43, s43, s44
    s_lshl_b32 s44, s33, 2
    s_add_u32 s43, s43, s44
    s_lshl_b32 s43, s43, 11          ; row*2048
    s_lshl_b32 s44, s27, 8
    s_add_u32 s43, s43, s44
    v_lshrrev_b32 v230, 4, v2
    v_lshlrev_b32 v230, 11, v230
    v_and_b32 v231, 15, v2
    v_lshl_add_u32 v230, v231, 4, v230
    s_add_u32 s44, s43, {64*2048}
    s_waitcnt lgkmcnt(0)""")
    srd(a, 20, 4, MB4, off=H_OFF)
    a("""    buffer_load_dwordx4 v[232:235], v230, s[20:23], s43 offen
    buffer_load_dwordx4 v[236:239], v230, s[20:23], s44 offen""")
    a(f"""    s_cmp_lt_u32 s33, 4
    s_cbranch_scc1 {L}_cons""")
    a(f"""    s_sub_u32 s34, s33, 4            ; lw
    s_lshl_b32 s35, s34, 12          ; lw*4096
    v_lshl_add_u32 v10, v2, 4, s35   ; A voffset
    s_mul_i32 s30, s26, 56
    s_mul_i32 s36, s29, 28
    s_add_u32 s30, s30, s36
    s_lshl_b32 s30, s30, 14          ; A soffset
    s_mul_i32 s31, s29, {1792*2048}
    s_lshl_b32 s36, s27, 8
    s_add_u32 s31, s31, s36          ; B soffset
    s_mov_b32 s38, s35
    s_add_u32 s39, s35, {NS*STAGE}
    v_lshrrev_b32 v3, 4, v2          ; q4
    s_lshl_b32 s36, s34, 4
    v_add_u32 v4, s36, v3
    v_lshlrev_b32 v4, 11, v4
    v_and_b32 v5, 1, v2
    v_lshl_add_u32 v4, v5, 4, v4     ; t0
    v_bfe_u32 v5, v2, 1, 3
    v_xor_b32 v5, v5, v3             ; x0""")
    srd(a, 12, 4, H1_SZ, off=H1_OFF); srd(a, 16, 6, 3584 * 2048)
    for c in (0, 4):
        a(f"    v_xor_b32 v6, {c}, v5\n    v_lshl_add_u32 v6, v6, 5, v4")
        for i in range(4):
            if 4 * (i >> 1) == c:
                a(f"    v_add_u32 v{12+i}, {4*i*2048 - i*1024}, v6")
    def issue():
        a("    s_mov_b32 m0, s38\n    s_add_u32 s36, s38, 16384")
        for i in range(4): a(f"    buffer_load_dwordx4 v10, s[12:15], s30 offen offset:{i*1024} lds")
        a(f"    s_mov_b32 m0, s36\n    s_add_u32 s30, s30, 16384\n    s_add_u32 s38, s38, {STAGE}")
        for i in range(4): a(f"    buffer_load_dwordx4 v{12+i}, s[16:19], s31 offen offset:{i*1024} lds")
        a(f"    s_add_u32 s31, s31, {64*2048}\n    s_cmp_ge_u32 s38, s39\n    s_cselect_b32 s38, s35, s38")
    stamp(a, 0)
    gemm_loader_loop(a, L, NK, NS, 8, issue, 40)
    stamp(a, 1)
    a(f"""    s_barrier
    s_barrier
    s_branch {L}_epi2""")
    ACC = 0; F0 = 64; F1 = 96; VA = 128; VB = 132; VBI = 136
    a(f"""{L}_cons:
    v_mov_b32 v200, v2               ; lane
    s_and_b32 s34, s33, 1            ; wm
    s_lshr_b32 s35, s33, 1           ; wn
    v_and_b32 v201, 15, v200         ; r
    v_lshrrev_b32 v202, 4, v200      ; kg
    s_lshl_b32 s36, s27, 8
    s_lshl_b32 s37, s35, 7
    s_add_u32 s36, s36, s37
    v_lshlrev_b32 v203, 3, v202""")
    srd(a, 16, 8, 2048)
    for ni in range(4):
        a(f"    buffer_load_dwordx2 {vr(VBI + 2*ni, 2)}, v203, s[16:19], s36 offen offset:{32*ni}")
    a(f"""    s_lshl_b32 s36, s34, 13
    s_lshl_b32 s37, s29, 12
    s_add_u32 s36, s36, s37
    v_lshl_add_u32 v204, v201, 7, s36
    v_and_b32 v205, 7, v201              ; r7
    v_xor_b32 v206, v202, v205
    v_lshl_add_u32 v{VA}, v206, 4, v204
    v_xor_b32 v{VA+1}, 64, v{VA}
    v_xor_b32 v{VA+2}, 4096, v{VA}
    v_xor_b32 v{VA+3}, 4096, v{VA+1}
    v_bfe_u32 v206, v200, 2, 2           ; rr
    v_lshl_add_u32 v207, v202, 3, v206
    v_lshlrev_b32 v207, 8, v207
    v_and_b32 v208, 3, v200
    v_lshl_add_u32 v207, v208, 3, v207
    v_add_u32 v207, 16384, v207
    v_and_b32 v208, 1, v202
    v_lshl_or_b32 v206, v208, 2, v206    ; g
    s_lshl_b32 s37, s35, 2""")
    for ni in range(4):
        a(f"    s_add_u32 s38, s37, {ni}\n    v_xor_b32 v208, s38, v206\n    v_lshl_add_u32 v{VB+ni}, v208, 5, v207")
    for i in range(32, 64, 2): a(f"    v_mov_b64 {vr(ACC+i,2)}, 0")
    a("    s_waitcnt vmcnt(0)")
    for ni in range(4):
        for d in range(2):
            c = ACC + 4 * ni + 2 * d
            a(f"    v_lshlrev_b32 v{c}, 16, v{VBI+2*ni+d}\n    v_and_b32 v{c+1}, 0xffff0000, v{VBI+2*ni+d}")
            a(f"    v_mov_b64 {vr(c+16,2)}, {vr(c,2)}")
    stamp(a, 0)
    a("    s_barrier")
    stamp(a, 1)
    gemm_consumer_loop(a, L, 4, 4, NK, ACC, F0, F1, lambda mi, kh: (VA + 2 * (mi >> 1) + kh, (mi & 1) * 2048), VB, None, 8192, 1024, 41, 42, 40, STAGE, NS)
    stamp(a, 2)
    srd(a, 12, 4, 256 * 32768, off=XCH_OFF); srd(a, 16, 4, 256 * 128, off=FLG_OFF)
    a(f"""    v_lshlrev_b32 v203, 4, v200
    s_lshl_b32 s36, s2, 15
    s_lshl_b32 s37, s33, 13
    s_add_u32 s36, s36, s37
    s_add_u32 s38, s36, 4096
    s_xor_b32 s45, s36, 0x8000
    s_add_u32 s46, s45, 4096""")
    for j in range(8):
        a(f"    buffer_store_dwordx4 {vr(ACC+32+4*j,4)}, v203, s[12:15], s{36 if j < 4 else 38} offen offset:{(j&3)*1024} sc1")
    a(f"""    s_waitcnt vmcnt(0)""")
    stamp(a, 3)
    a(f"""    s_barrier                            ; X1
    s_cmp_lg_u32 s33, 0
    s_cbranch_scc1 {L}_nopoll
    s_lshl_b32 s36, s2, 7
    s_xor_b32 s37, s36, 0x80
    v_mov_b32 v209, 1
    v_mov_b32 v210, 0
    s_mov_b64 exec, 1
    buffer_store_dword v209, v210, s[16:19], s36 offen sc1
{L}_poll:
    buffer_load_dword v211, v210, s[16:19], s37 offen sc1
    s_waitcnt vmcnt(0)
    v_readfirstlane_b32 s38, v211
    s_cmp_eq_u32 s38, 1
    s_cbranch_scc1 {L}_polled
    s_sleep 1
    s_branch {L}_poll
{L}_polled:
    s_mov_b64 exec, -1
{L}_nopoll:
    s_barrier                            ; X2""")
    stamp(a, 4)
    for j in range(8):
        a(f"    buffer_load_dwordx4 {vr(F0+4*j,4)}, v203, s[12:15], s{45 if j < 4 else 46} offen offset:{(j&3)*1024} sc1")
    a(f"""    v_lshrrev_b32 v206, 1, v202
    v_xor_b32 v206, v206, v201           ; (kg>>1) ^ r
    s_lshl_b32 s36, s34, 13              ; 32wm*256
    v_lshl_add_u32 v207, v201, 8, s36
    v_and_b32 v208, 1, v202
    v_lshl_add_u32 v207, v208, 3, v207
    s_lshl_b32 s37, s35, 3""")
    for ni in range(4):
        a(f"    s_add_u32 s38, s37, {2*ni}\n    v_xor_b32 v208, s38, v206\n    v_lshl_add_u32 v{VB+ni}, v208, 4, v207")
    for j in range(8):
        mi, ni = j >> 2, j & 3
        c = ACC + 4 * j
        a(f"    s_waitcnt vmcnt({7-j})")
        a(f"    v_pk_add_f32 {vr(c,2)}, {vr(c,2)}, {vr(F0+4*j,2)}\n    v_pk_add_f32 {vr(c+2,2)}, {vr(c+2,2)}, {vr(F0+4*j+2,2)}")
        a(f"    v_cvt_pk_bf16_f32 v{c}, v{c}, v{c+1}\n    v_cvt_pk_bf16_f32 v{c+1}, v{c+2}, v{c+3}")
        a(f"    ds_write_b64 v{VB+ni}, {vr(c,2)} offset:{mi*4096}")
    a("    s_waitcnt lgkmcnt(0)")
    stamp(a, 5)
    a(f"""{L}_epi2:
    s_barrier                            ; X3
    v_mbcnt_lo_u32_b32 v2, -1, 0
    v_mbcnt_hi_u32_b32 v2, -1, v2
    v_lshrrev_b32 v3, 4, v2
    s_lshl_b32 s36, s33, 2
    v_add_u32 v3, s36, v3                ; lr (j=0)
    v_xor_b32 v4, v3, v2
    v_and_b32 v4, 15, v4
    v_lshlrev_b32 v4, 4, v4
    v_lshl_add_u32 v3, v3, 8, v4
    ds_read_b128 v[16:19], v3
    ds_read_b128 v[20:23], v3 offset:8192""")
    srd(a, 12, 10, MB4)
    a("    s_waitcnt vmcnt(0)")
    for j in range(2):
        a(f"    s_waitcnt lgkmcnt({1-j})")
        for d in range(4):
            o = 16 + 4 * j + d; h = 232 + 4 * j + d
            a(f"""    v_lshlrev_b32 v8, 16, v{o}
    v_and_b32 v9, 0xffff0000, v{o}
    v_lshlrev_b32 v10, 16, v{h}
    v_and_b32 v11, 0xffff0000, v{h}
    v_pk_add_f32 v[8:9], v[8:9], v[10:11]
    v_cvt_pk_bf16_f32 v{o}, v8, v9""")
        a(f"    buffer_store_dwordx4 {vr(16+4*j,4)}, v230, s[12:15], s{43+j} offen")
    stamp(a, 6)
    if opt.stamps: a("    s_waitcnt vmcnt(0)")
    stamp(a, 7)
    stamp_end(a, kidx, 4, 33)
    a(f"{L}_end:\n    s_endpgm")
    return (name, 256, 512, NS * STAGE), (name, 256, 96)


def add_imm(a, dst, src, imm):
    a(f"    v_add_u32 v{dst}, {imm:#x}, v{src}")

def touch(a, srdreg, vtmp, vlane, soff_shift_mul, ninstr, dst):
    pass

def gen_p(a, kidx):
    name = "p_kernel"; L = "P"
    kernel_head(a, name)
    a(f"""    s_cmp_ge_u32 s2, 256
    s_cbranch_scc1 {L}_end
    s_load_dwordx4 s[4:7], s[0:1], {ARG['k']}      ; k, v
    s_load_dwordx4 s[8:11], s[0:1], {ARG['shift']}
    s_load_dwordx2 s[40:41], s[0:1], {ARG['ws']}""")
    stamp_begin(a)
    a(f"""    v_lshrrev_b32 v1, 6, v0
    v_and_b32 v2, 63, v0
    s_and_b32 s24, s2, 7             ; cb
    v_readfirstlane_b32 s33, v1
    s_lshr_b32 s25, s2, 3            ; rb
    v_and_b32 v3, 7, v2              ; cg
    v_lshrrev_b32 v4, 3, v2          ; rg
    s_lshl_b32 s26, s25, 17
    s_lshl_b32 s27, s24, 8
    s_add_u32 s26, s26, s27
    s_lshl_b32 s27, s33, 6
    s_add_u32 s26, s26, s27
    v_lshlrev_b32 v5, 14, v4
    v_lshl_add_u32 v5, v3, 3, v5
    v_add_u32 v5, s26, v5            ; vbase
    v_subrev_u32 v6, 6144, v5
    v_subrev_u32 v7, 2048, v5
    s_movk_i32 s44, 4096
    s_movk_i32 s45, 8192
    s_movk_i32 s46, 12288
    s_lshl_b32 s27, s24, 10
    s_lshl_b32 s28, s33, 8
    s_add_u32 s27, s27, s28
    v_lshlrev_b32 v8, 5, v3
    s_waitcnt lgkmcnt(0)""")
    srd(a, 12, 4, MB4); srd(a, 16, 6, MB4); srd(a, 20, 8, 8192)
    KR = 16; VR = 38; WR = 54
    so = ["0", "s44", "s45", "s46"]
    a(f"    buffer_load_dwordx4 {vr(WR,4)}, v8, s[20:23], s27 offen\n    buffer_load_dwordx4 {vr(WR+4,4)}, v8, s[20:23], s27 offen offset:16")
    a(f"    buffer_load_dwordx2 {vr(KR,2)}, v6, s[12:15], 0 offen\n    buffer_load_dwordx2 {vr(KR+2,2)}, v6, s[12:15], 0 offen offset:2048\n    buffer_load_dwordx2 {vr(KR+4,2)}, v7, s[12:15], 0 offen")
    for j in range(8):
        a(f"    buffer_load_dwordx2 {vr(KR+6+2*j,2)}, v5, s[12:15], {so[j>>1]} offen offset:{(j&1)*2048}")
        a(f"    buffer_load_dwordx2 {vr(VR+2*j,2)}, v5, s[16:19], {so[j>>1]} offen offset:{(j&1)*2048}")
    srd(a, 28, 10, MB4); srd(a, 36, 40, 64 << 20)
    a(f"""    s_lshl_b32 s47, s2, 14
    v_lshlrev_b32 v9, 6, v0
    buffer_load_dword v10, v9, s[28:31], s47 offen
    s_lshl_b32 s47, s2, 7
    s_add_u32 s47, s47, {FLG_OFF:#x}
    v_and_b32 v11, 31, v0
    v_lshlrev_b32 v11, 2, v11
    v_mov_b32 v12, 0
    buffer_store_dword v12, v11, s[36:39], s47 offen""")
    a(f"""    v_xor_b32 v13, 7, v4
    v_xor_b32 v13, v13, v3
    v_lshlrev_b32 v13, 4, v13
    v_lshl_add_u32 v13, v3, 9, v13
    s_lshl_b32 s47, s33, 12
    v_add_u32 v13, s47, v13
    v_lshl_add_u32 v14, v2, 4, s47
    v_lshrrev_b32 v15, 5, v2
    v_xor_b32 v15, v15, v3               ; x0 = (l&7)^(l>>5)
    v_lshlrev_b32 v9, 12, v4             ; (l>>3)*4096""")
    WF = 64; KF = 80; VF = 124; OF = 156; PK = 190
    stamp(a, 0)
    a("    s_waitcnt vmcnt(21)")
    for c in range(4):
        for j in range(4):
            src = WR + 2 * c + (j >> 1); d = WF + (c >> 1) * 8 + j * 2 + (c & 1)
            a(f"    v_lshlrev_b32 v{d}, 16, v{src}" if j % 2 == 0 else f"    v_and_b32 v{d}, 0xffff0000, v{src}")
    def unpack(dst, src):
        for p in range(2):
            a(f"    v_lshlrev_b32 v{dst+2*p}, 16, v{src+p}\n    v_and_b32 v{dst+2*p+1}, 0xffff0000, v{src+p}")
    a("    s_waitcnt vmcnt(18)")
    for r in range(3): unpack(KF + 4 * r, KR + 2 * r)
    for j in range(8):
        a(f"    s_waitcnt vmcnt({16 - 2*j})")
        unpack(KF + 4 * (3 + j), KR + 6 + 2 * j); unpack(VF + 4 * j, VR + 2 * j)
        for p in range(2):
            o = OF + 4 * j + 2 * p
            k = lambda r: vr(KF + 4 * r + 2 * p, 2)
            w = lambda t: vr(WF + p * 8 + 2 * t, 2)
            a(f"    v_pk_mul_f32 {vr(o,2)}, {k(j)}, {w(3)}")
            a(f"    v_pk_fma_f32 {vr(o,2)}, {k(j+1)}, {w(2)}, {vr(o,2)}")
            a(f"    v_pk_fma_f32 {vr(o,2)}, {k(j+2)}, {w(1)}, {vr(o,2)}")
            a(f"    v_pk_fma_f32 {vr(o,2)}, {k(j+3)}, {w(0)}, {vr(o,2)}")
            a(f"    v_pk_mul_f32 {vr(o,2)}, {vr(o,2)}, {vr(VF + 4*j + 2*p, 2)}")
    stamp(a, 1)
    for c in range(4):
        for d in range(4):
            a(f"    v_cvt_pk_bf16_f32 v{PK+4*c+d}, v{OF + 4*(7-2*d) + c}, v{OF + 4*(6-2*d) + c}")
        a(f"    ds_write_b128 v13, {vr(PK+4*c,4)} offset:{128*c}")
    a(f"""    s_lshl_b32 s47, s24, 19
    s_lshl_b32 s48, s33, 17
    s_add_u32 s47, s47, s48              ; (cb*128+w*32)*4096
    s_lshl_b32 s48, s25, 7
    s_sub_u32 s48, {3968 + KVR_OFF}, s48
    s_add_u32 s47, s47, s48
    s_waitcnt lgkmcnt(0)""")
    for i in range(4): a(f"    ds_read_b128 {vr(16+4*i,4)}, v14 offset:{1024*i}")
    for i in range(4):
        a(f"    v_xor_b32 v8, {2*i}, v15\n    v_lshl_add_u32 v{32+i}, v8, 4, v9")
    for i in range(4):
        a(f"    s_waitcnt lgkmcnt({3-i})\n    buffer_store_dwordx4 {vr(16+4*i,4)}, v{32+i}, s[36:39], s47 offen\n    s_add_u32 s47, s47, 32768")
    stamp(a, 2)
    if opt.stamps: a("    s_waitcnt vmcnt(0)")
    stamp(a, 3)
    stamp_end(a, kidx, 40, 33)
    a(f"{L}_end:\n    s_endpgm")
    return (name, 256, 256, 16384), (name, 256 if opt.stamps else 208, 96)

def gen_c(a, kidx):
    name = "c_kernel"; L = "C"
    CS = 4160; RO = 4 * CS; WSZ = 21248; STG = 4 * WSZ; SST = 4096 + 32
    kernel_head(a, name)
    a(f"""    s_cmp_ge_u32 s2, 256
    s_cbranch_scc1 {L}_end
    s_load_dwordx4 s[4:7], s[0:1], {ARG['ssmk']}
    s_load_dwordx2 s[40:41], s[0:1], {ARG['ws']}
    s_load_dwordx2 s[8:9], s[0:1], {ARG['q']}
    s_load_dwordx2 s[10:11], s[0:1], {ARG['w1']}
    s_load_dwordx2 s[42:43], s[0:1], {ARG['w2']}""")
    stamp_begin(a)
    a(f"""    v_lshrrev_b32 v1, 6, v0
    v_and_b32 v2, 63, v0
    s_and_b32 s24, s2, 7
    v_readfirstlane_b32 s33, v1
    s_lshl_b32 s24, s24, 5
    s_lshr_b32 s25, s2, 3
    s_add_u32 s24, s24, s25          ; cg
    s_lshl_b32 s25, s24, 2
    s_add_u32 s25, s25, s33          ; ch
    s_lshl_b32 s26, s25, 12          ; ch*4096
    s_mul_i32 s27, s33, {WSZ}        ; WB
    v_lshlrev_b32 v3, 4, v2          ; lane*16
    s_add_u32 m0, s27, {RO}
    s_lshr_b32 s28, s25, 1
    s_lshl_b32 s28, s28, 2
    s_waitcnt lgkmcnt(0)""")
    srd(a, 12, 4, MB4); srd(a, 16, 40, 64 << 20)
    FD = 16; FE = 32; FX = 48; TO = 52
    for i in range(4):
        a(f"    buffer_load_dwordx4 {vr(FD+4*i,4)}, v3, s[12:15], s26 offen offset:{1024*i}")
        a(f"    buffer_load_dwordx4 {vr(FE+4*i,4)}, v3, s[12:15], s26 offen offset:{1024*i+4}")
        a(f"    buffer_load_dword v{FX+i}, v3, s[12:15], s26 offen offset:{1024*i+20}")
    for i in range(4):
        a(f"    buffer_load_dwordx4 v3, s[16:19], s26 offen offset:{1024*i} lds")
    a(f"""    s_load_dword s29, s[6:7], s28
    v_add_u32 v4, s27, v3
    v_mov_b32 v60, 0
    v_mov_b32 v61, 0
    v_mov_b32 v62, 0
    v_mov_b32 v63, 0
    s_mov_b64 exec, 0x3fffffff
    ds_write_b128 v4, v[60:63] offset:{RO + 4096}
    s_mov_b64 exec, -1
    v_and_b32 v5, 15, v2             ; b / a
    v_lshrrev_b32 v6, 4, v2          ; kg
    v_add_u32 v7, 1, v5
    v_and_b32 v8, 3, v7
    v_mul_u32_u24 v8, {CS}, v8
    v_and_b32 v7, 28, v7
    v_lshl_add_u32 v8, v7, 1, v8
    v_lshl_add_u32 v8, v6, 4, v8
    v_add_u32 v8, s27, v8            ; vAT
    v_lshlrev_b32 v9, 5, v5
    v_sub_u32 v9, {RO + 480}, v9
    v_lshl_add_u32 v9, v6, 4, v9
    v_add_u32 v9, s27, v9            ; vBT""")
    stamp(a, 0)
    for i in range(4):
        D = FD + 4 * i; E = FE + 4 * i
        a(f"    s_waitcnt vmcnt({4 + 9 - 3*i})")
        a(f"    ds_write_b128 v4, {vr(D,4)} offset:{32 + 1024*i}")
        a(f"    ds_write_b128 v4, {vr(E,4)} offset:{2*CS + 32 + 1024*i}")
        t = TO + 8 * (i & 1)
        for k in range(4): a(f"    v_alignbit_b32 v{t+k}, v{E+k}, v{D+k}, 16")
        a(f"    ds_write_b128 v4, {vr(t,4)} offset:{CS + 32 + 1024*i}")
        for k in range(4): a(f"    v_alignbit_b32 v{t+4+k}, v{E+k+1 if k < 3 else FX+i}, v{E+k}, 16")
        a(f"    ds_write_b128 v4, {vr(t+4,4)} offset:{3*CS + 32 + 1024*i}")
        if i == 0:
            a(f"""    v_mov_b32 v68, 0
    v_mov_b32 v69, 0
    v_mov_b32 v70, 0
    v_lshlrev_b32 v71, 16, v{D}
    v_mov_b32 v72, 0
    v_mov_b32 v73, 0
    v_mov_b32 v74, 0
    v_mov_b32 v75, v{D}
    v_mov_b32 v76, 0
    v_mov_b32 v77, 0
    v_mov_b32 v78, v71
    v_mov_b32 v79, v{t}
    s_mov_b64 exec, 1
    ds_write_b128 v4, v[60:63]
    ds_write_b128 v4, v[60:63] offset:16
    ds_write_b128 v4, v[60:63] offset:{CS}
    ds_write_b128 v4, v[68:71] offset:{CS+16}
    ds_write_b128 v4, v[60:63] offset:{2*CS}
    ds_write_b128 v4, v[72:75] offset:{2*CS+16}
    ds_write_b128 v4, v[60:63] offset:{3*CS}
    ds_write_b128 v4, v[76:79] offset:{3*CS+16}
    s_mov_b64 exec, -1""")
    ACC = 80; F0 = 112; F1 = 176
    for i in range(0, 32, 2): a(f"    v_mov_b64 {vr(ACC+i,2)}, 0")
    a("    s_waitcnt vmcnt(0) lgkmcnt(0)")
    stamp(a, 1)
    srd(a, 20, 8, MB4); srd(a, 44, 10, 1024 * 7168); srd(a, 48, 42, 3584 * 2048)
    a(f"""    v_lshlrev_b32 v10, 7, v0
    s_lshl_b32 s34, s2, 14
    v_lshlrev_b32 v11, 6, v0
    buffer_load_dword v12, v11, s[20:23], s34 offen
    s_mul_i32 s34, s2, 28672
    v_cmp_gt_u32 vcc, 224, v0
    v_mov_b32 v11, 0x80000000
    s_nop 0
    v_cndmask_b32 v10, v11, v10, vcc
    buffer_load_dword v13, v10, s[44:47], s34 offen
    buffer_load_dword v14, v10, s[48:51], s34 offen""")
    def reads(F, woff):
        r = []
        for u in range(8):
            r.append(f"    ds_read_b128 {vr(F+32+4*u,4)}, v9 offset:{3584 - 512*u + woff}")
            r.append(f"    ds_read_b64 {vr(F+4*u,2)}, v8 offset:{512*u + woff}")
            r.append(f"    ds_read_b64 {vr(F+4*u+2,2)}, v8 offset:{512*u + 8 + woff}")
        return r
    def mf(F):
        return [f"    v_mfma_f32_16x16x32_bf16 {vr(ACC+4*(u+v),4)}, {vr(F+4*u,4)}, {vr(F+32+4*v,4)}, {vr(ACC+4*(u+v),4)}" for u in range(8) for v in range(8 - u)]
    def weave(m, f):
        i = 0
        for x in m:
            a(x)
            if i < len(f): a(f[i]); i += 1
    for l in reads(F0, 0): a(l)
    a(f"    s_mov_b32 s35, 0\n{L}_loop:\n    s_waitcnt lgkmcnt(0)")
    weave(mf(F0), reads(F1, 64) + ["    v_add_u32 v8, 128, v8", "    v_add_u32 v9, 128, v9"])
    a("    s_waitcnt lgkmcnt(0)")
    weave(mf(F1), reads(F0, 0))
    a(f"    s_add_u32 s35, s35, 1\n    s_cmp_lt_u32 s35, 4\n    s_cbranch_scc1 {L}_loop\n    s_waitcnt lgkmcnt(0)")
    stamp(a, 2)
    a(f"""    v_lshlrev_b32 v16, 5, v5
    v_lshl_add_u32 v16, v6, 3, v16       ; 32a + 8g
    v_sub_u32 v17, {RO + 504}, v16
    v_add_u32 v17, s27, v17
    s_mul_i32 s34, s33, {SST}
    s_add_u32 s34, s34, {STG}
    v_add_u32 v18, s34, v16
    s_lshl_b32 s35, s29, 16
    s_and_b32 s36, s29, 0xffff0000
    s_bitcmp1_b32 s25, 0
    s_cselect_b32 s35, s36, s35          ; D as f32""")
    for n in range(8): a(f"    ds_read_b64 {vr(F0+2*n,2)}, v17 offset:{512*(7-n)}")
    for n in range(8):
        c = ACC + 4 * n; k = F0 + 2 * n
        a(f"""    s_waitcnt lgkmcnt({7-n})
    v_and_b32 v20, 0xffff0000, v{k+1}
    v_lshlrev_b32 v21, 16, v{k+1}
    v_and_b32 v22, 0xffff0000, v{k}
    v_lshlrev_b32 v23, 16, v{k}
    v_fmac_f32 v{c}, s35, v20
    v_fmac_f32 v{c+1}, s35, v21
    v_fmac_f32 v{c+2}, s35, v22
    v_fmac_f32 v{c+3}, s35, v23
    v_cvt_pk_bf16_f32 v{c}, v{c}, v{c+1}
    v_cvt_pk_bf16_f32 v{c+1}, v{c+2}, v{c+3}""")
    for n in range(8): a(f"    ds_write_b64 v18, {vr(ACC+4*n,2)} offset:{512*n}")
    a(f"""    v_bfe_u32 v19, v2, 2, 2              ; r
    v_mul_u32_u24 v19, {SST}, v19
    v_lshl_add_u32 v19, v6, 5, v19
    v_and_b32 v20, 3, v2
    v_lshl_add_u32 v19, v20, 3, v19
    s_lshl_b32 s34, s33, 10
    s_add_u32 s34, s34, {STG}
    v_add_u32 v19, s34, v19
    s_bfe_u32 s34, s24, 0x30002          ; key
    s_and_b32 s35, s24, 1
    s_lshl_b32 s35, s35, 2
    s_xor_b32 s34, s34, s35              ; kk
    v_bfe_u32 v20, v2, 1, 2
    v_xor_b32 v20, s34, v20
    v_lshlrev_b32 v20, 4, v20
    v_and_b32 v21, 1, v2
    v_lshl_add_u32 v20, v21, 3, v20
    v_lshrrev_b32 v21, 3, v2
    v_lshl_add_u32 v20, v21, 14, v20     ; voffset
    s_lshl_b32 s34, s33, 20              ; 64w*16384
    s_lshr_b32 s35, s24, 1
    s_lshl_b32 s35, s35, 7
    s_add_u32 s34, s34, s35
    s_add_u32 s34, s34, {Y2_OFF:#x}
    s_waitcnt lgkmcnt(0)
    s_barrier""")
    stamp(a, 3)
    for j in range(8): a(f"    ds_read_b64_tr_b16 {vr(F0+2*j,2)}, v19 offset:{128*j}")
    for j in range(8):
        a(f"    s_waitcnt lgkmcnt({7-j})\n    buffer_store_dwordx2 {vr(F0+2*j,2)}, v20, s[16:19], s34 offen\n    s_add_u32 s34, s34, 0x20000")
    stamp(a, 4)
    if opt.stamps: a("    s_waitcnt vmcnt(0)")
    stamp(a, 5)
    stamp_end(a, kidx, 40, 33)
    a(f"{L}_end:\n    s_endpgm")
    return (name, 256, 256, STG + 4 * SST), (name, 256 if opt.stamps else 240, 96)

def wave_sum(a, regs, tmps):
    nop = "    s_nop 0" if len(regs) == 2 else ""
    a("    s_nop 0")
    for ctl in ("quad_perm:[1,0,3,2]", "quad_perm:[2,3,0,1]", "row_half_mirror", "row_mirror"):
        for r in regs: a(f"    v_add_f32_dpp v{r}, v{r}, v{r} {ctl} row_mask:0xf bank_mask:0xf")
        a(nop)
    for sw in ("v_permlane16_swap_b32", "v_permlane32_swap_b32"):
        for r, t in zip(regs, tmps): a(f"    v_mov_b32 v{t}, v{r}")
        a(nop)
        for r, t in zip(regs, tmps): a(f"    {sw} v{t}, v{r}")
        for r, t in zip(regs, tmps): a(f"    v_add_f32 v{r}, v{r}, v{t}")

def gen_r(a, kidx):
    name = "r_kernel"; L = "R"
    kernel_head(a, name)
    a(f"""    s_cmp_ge_u32 s2, 256
    s_cbranch_scc1 {L}_end
    s_load_dwordx2 s[4:5], s[0:1], {ARG['q']}
    s_load_dwordx2 s[40:41], s[0:1], {ARG['ws']}""")
    stamp_begin(a)
    a(f"""    v_lshrrev_b32 v1, 6, v0
    v_and_b32 v2, 63, v0
    s_and_b32 s24, s2, 7
    v_readfirstlane_b32 s33, v1
    s_lshl_b32 s24, s24, 5
    s_lshr_b32 s25, s2, 3
    s_add_u32 s24, s24, s25          ; sb
    v_lshlrev_b32 v3, 4, v2
    s_lshl_b32 s26, s24, 14
    s_lshl_b32 s27, s33, 12
    s_add_u32 s26, s26, s27
    s_mov_b32 m0, s27
    s_add_u32 s28, s26, {Y2_OFF:#x}
    s_waitcnt lgkmcnt(0)""")
    srd(a, 12, 4, MB4); srd(a, 16, 40, 64 << 20)
    XR = 16; YR = 32; XF = 48; XC = 80; YF = 112; HP = 144
    for i in range(4): a(f"    buffer_load_dwordx4 v3, s[16:19], s28 offen offset:{1024*i} lds")
    for i in range(4): a(f"    buffer_load_dwordx4 {vr(XR+4*i,4)}, v3, s[12:15], s26 offen offset:{1024*i}")
    a(f"""    v_bfe_u32 v4, v2, 1, 3
    v_xor_b32 v4, s33, v4
    v_lshlrev_b32 v4, 4, v4
    v_lshl_add_u32 v4, v2, 7, v4
    v_xor_b32 v5, 64, v4                 ; e=1
    s_lshl_b32 s29, s33, 1               ; 2w
    v_and_b32 v6, 7, v2
    v_xor_b32 v6, s29, v6
    v_lshrrev_b32 v7, 3, v2
    v_lshlrev_b32 v7, 14, v7
    v_lshl_add_u32 v6, v6, 4, v7         ; rho=0
    v_xor_b32 v7, 16, v6
    v_add_u32 v7, 128, v7
    s_lshr_b32 s30, s24, 4               ; mt
    s_lshl_b32 s30, s30, 18
    s_and_b32 s31, s24, 15
    s_lshl_b32 s31, s31, 10
    s_add_u32 s30, s30, s31
    s_lshl_b32 s31, s33, 8
    s_add_u32 s30, s30, s31
    s_add_u32 s30, s30, {HN_OFF:#x}
    s_add_u32 s31, s30, {8*16384}        ; p=1
    s_add_u32 s34, s26, {H_OFF:#x}       ; h soffset
    s_mov_b32 s35, 0x3a800000            ; 1/1024
    s_mov_b32 s36, 0x3727c5ac            ; 1e-5
    s_waitcnt vmcnt(4)
    s_barrier""")
    for p in range(2):
        for e in range(2): a(f"    ds_read_b128 {vr(YR + 8*p + 4*e, 4)}, v{4+e} offset:{8192*p}")
    stamp(a, 0)
    def unpack(dst, src): a(f"    v_lshlrev_b32 v{dst}, 16, v{src}\n    v_and_b32 v{dst+1}, 0xffff0000, v{src}")
    def rnd(r): a(f"    v_cvt_pk_bf16_f32 v{r}, v{r}, v{r}\n    v_and_b32 v{r}, 0xffff0000, v{r}")
    S = [8, 9]; T = [10, 11]; M = [12, 14]; DM = [200, 202]; RI = [204, 206]; PS = [208, 210]
    def stats(src):
        for rho in range(2):
            a(f"    v_pk_add_f32 {vr(PS[rho],2)}, {vr(src(rho,0),2)}, {vr(src(rho,1),2)}")
        for i in range(2, 8):
            for rho in range(2): a(f"    v_pk_add_f32 {vr(PS[rho],2)}, {vr(PS[rho],2)}, {vr(src(rho,i),2)}")
        for rho in range(2): a(f"    v_add_f32 v{S[rho]}, v{PS[rho]}, v{PS[rho]+1}")
        wave_sum(a, S, T)
        for rho in range(2): a(f"    v_mul_f32 v{M[rho]}, s35, v{S[rho]}")
        for i in range(8):
            for rho in range(2):
                a(f"    v_pk_add_f32 {vr(XC + 16*rho + 2*i,2)}, {vr(src(rho,i),2)}, {vr(M[rho],2)} op_sel_hi:[1,0] neg_lo:[0,1] neg_hi:[0,1]")
        for rho in range(2): a(f"    v_pk_mul_f32 {vr(PS[rho],2)}, {vr(XC+16*rho,2)}, {vr(XC+16*rho,2)}")
        for i in range(1, 8):
            for rho in range(2): a(f"    v_pk_fma_f32 {vr(PS[rho],2)}, {vr(XC+16*rho+2*i,2)}, {vr(XC+16*rho+2*i,2)}, {vr(PS[rho],2)}")
        for rho in range(2): a(f"    v_add_f32 v{S[rho]}, v{PS[rho]}, v{PS[rho]+1}")
        wave_sum(a, S, T)
        for rho in range(2):
            a(f"    v_mov_b32 v{DM[rho]}, v{M[rho]}"); rnd(DM[rho]); a(f"    v_sub_f32 v{DM[rho]}, v{M[rho]}, v{DM[rho]}")
            a(f"    v_mul_f32 v{RI[rho]}, s35, v{S[rho]}"); rnd(RI[rho]); a(f"    v_add_f32 v{RI[rho]}, s36, v{RI[rho]}"); rnd(RI[rho])
        for rho in range(2): a(f"    v_sqrt_f32 v{RI[rho]}, v{RI[rho]}")
        a("    s_nop 0")
        for rho in range(2): rnd(RI[rho])
        for rho in range(2): a(f"    v_rcp_f32 v{RI[rho]}, v{RI[rho]}")
        for i in range(8):
            for rho in range(2):
                a(f"    v_pk_add_f32 {vr(XC + 16*rho + 2*i,2)}, {vr(XC + 16*rho + 2*i,2)}, {vr(DM[rho],2)} op_sel_hi:[1,0]")
    for rho in range(2):
        a(f"    s_waitcnt vmcnt({2 - 2*rho})")
        for i in range(8): unpack(XF + 16 * rho + 2 * i, XR + 8 * rho + i)
    stamp(a, 1)
    stats(lambda rho, i: XF + 16 * rho + 2 * i)
    a("    s_waitcnt lgkmcnt(0)")
    for rho in range(2):
        for i in range(8):
            p, d = i >> 2, i & 3
            unpack(YF + 16 * rho + 2 * i, YR + 8 * p + 4 * (d >> 1) + 2 * rho + (d & 1))
    for i in range(8):
        for rho in range(2):
            o = 16 * rho + 2 * i
            a(f"    v_pk_mul_f32 {vr(XC+o,2)}, {vr(XC+o,2)}, {vr(YF+o,2)}")
            a(f"    v_pk_fma_f32 {vr(XF+o,2)}, {vr(XC+o,2)}, {vr(RI[rho],2)}, {vr(XF+o,2)} op_sel_hi:[1,0,1]")
            a(f"    v_cvt_pk_bf16_f32 v{HP + 8*rho + i}, v{XF+o}, v{XF+o+1}")
    for q in range(4): a(f"    buffer_store_dwordx4 {vr(HP+4*q,4)}, v3, s[16:19], s34 offen offset:{1024*q}")
    for rho in range(2):
        for i in range(8): unpack(XF + 16 * rho + 2 * i, HP + 8 * rho + i)
    stamp(a, 2)
    stats(lambda rho, i: XF + 16 * rho + 2 * i)
    for rho in range(2):
        for i in range(8):
            o = 16 * rho + 2 * i
            a(f"    v_pk_mul_f32 {vr(XC+o,2)}, {vr(XC+o,2)}, {vr(RI[rho],2)} op_sel_hi:[1,0]")
            a(f"    v_cvt_pk_bf16_f32 v{XR + 8*rho + i}, v{XC+o}, v{XC+o+1}")
        for p in range(2): a(f"    buffer_store_dwordx4 {vr(XR + 8*rho + 4*p,4)}, v{6+rho}, s[16:19], s{30+p} offen")
    stamp(a, 3)
    if opt.stamps: a("    s_waitcnt vmcnt(0)")
    stamp(a, 4)
    stamp_end(a, kidx, 40, 33)
    a(f"{L}_end:\n    s_endpgm")
    return (name, 256, 256, 16384), (name, 256 if opt.stamps else 216, 96)

KGEN = {"p": gen_p, "c": gen_c, "r": gen_r, "g1": gen_g1, "g2": gen_g2}

def build(kernels, extra=None):
    body = Asm(); launches = []; descs = []
    for i, k in enumerate(kernels):
        l, d = KGEN[k](body, i)
        launches.append(l); descs.append(d)
    for d in descs: kernel_desc(body, *d)
    return file_head(launches) + body.text()

if __name__ == "__main__":
    opt.stamps = "--stamps" in sys.argv
    ks = [x for x in sys.argv[2:] if not x.startswith("--")]
    open(sys.argv[1], "w").write(build(ks))
```

```python
import sys
from asmlib import *

KVR_OFF = 0x0000000
Y2_OFF  = 0x0400000
H_OFF   = 0x0800000
HN_OFF  = 0x0C00000
H1_OFF  = 0x1000000
H1_SZ   = 16 * 56 * 16384
XCH_OFF = 0x2000000
FLG_OFF = 0x2800000
STP_OFF = 0x3000000
MB4 = 4 << 20

class Opt:
    stamps = False
    noload = False
    w2pf = True
    rtstamp = False
    c_pf1 = True
    c_pf2 = False
    rd_per_gap = 2
    g1_bar = 24
    g2_bar = 18
opt = Opt()

def stamp(a, idx, vreg=250):
    if not opt.stamps: return
    a(f"    s_memtime s[84:85]\n    s_memrealtime s[86:87]\n    s_waitcnt lgkmcnt(0)\n    s_sub_u32 s84, s84, s80\n    v_writelane_b32 v{vreg}, s84, {idx}\n    v_writelane_b32 v{vreg}, s86, {32 + idx}")

def stamp_begin(a, vreg=250):
    if not opt.stamps: return
    a(f"    s_memtime s[80:81]\n    s_memrealtime s[82:83]\n    s_waitcnt lgkmcnt(0)\n    v_writelane_b32 v{vreg}, s82, 62")

def stamp_end(a, kidx, wsbase, wavereg, vreg=250):
    if not opt.stamps: return
    a(f"""    s_memrealtime s[82:83]
    s_waitcnt lgkmcnt(0)
    v_writelane_b32 v{vreg}, s82, 63
    s_add_u32 s84, s{wsbase}, {STP_OFF + kidx * 0x80000:#x}
    s_addc_u32 s85, s{wsbase+1}, 0
    s_mov_b32 s86, 0x80000
    s_mov_b32 s87, 0x00020000
    s_lshl_b32 s88, s2, 3
    s_add_u32 s88, s88, s{wavereg}
    s_lshl_b32 s88, s88, 8
    v_mbcnt_lo_u32_b32 v{vreg+1}, -1, 0
    v_mbcnt_hi_u32_b32 v{vreg+1}, -1, v{vreg+1}
    v_lshlrev_b32 v{vreg+1}, 2, v{vreg+1}
    buffer_store_dword v{vreg}, v{vreg+1}, s[84:87], s88 offen""")

def vr(b, n):
    return f"v[{b}:{b+n-1}]" if n > 1 else f"v{b}"

def gemm_consumer_loop(a, L, MI, NI, nk, acc, F0, F1, vA, vB, a_imm, b_imm_kh, b_imm_t, s_slot, s_delta, s_k, stage, ns, tail=None, bar_gap=None, loop_extra=None):
    def reads(F, kh):
        r = []
        for mi in range(MI):
            reg, imm = vA(mi, kh)
            r.append(f"    ds_read_b128 {vr(F + 4*mi, 4)}, v{reg} offset:{imm}")
        for ni in range(NI):
            for t in range(2):
                r.append(f"    ds_read_b64_tr_b16 {vr(F + 4*MI + 4*ni + 2*t, 2)}, v{vB + ni} offset:{kh*b_imm_kh + t*b_imm_t}")
        return r
    def mfmas(F):
        r = []
        for ni in range(NI):
            for mi in range(MI):
                c = acc + 4 * (mi * NI + ni)
                r.append(f"    v_mfma_f32_16x16x32_bf16 {vr(c,4)}, {vr(F + 4*MI + 4*ni, 4)}, {vr(F + 4*mi, 4)}, {vr(c,4)}")
        return r
    def weave(mf, fill):
        i = 0
        for j, m in enumerate(mf):
            a(m)
            if i < len(fill):
                a(fill[i]); i += 1
        while i < len(fill):
            a(fill[i]); i += 1
    addr_regs = sorted(set(vA(mi, kh)[0] for mi in range(MI) for kh in range(2))) + [vB + i for i in range(NI)]
    def place(mf, items, per_gap, start=0, extra=None):
        gaps = [[] for _ in mf]
        g = start
        for j, it in enumerate(items):
            gaps[start + j // per_gap].append(it)
        for k, v in (extra or {}).items(): gaps[k] += v
        for m, gl in zip(mf, gaps):
            a(m)
            for x in gl: a(x)
    n = MI * NI
    nrd = MI + 2 * NI
    upd = [f"    v_add_u32 v{r}, s{s_delta}, v{r}" for r in addr_regs]
    late = bar_gap >= n
    wrapc = f"{(-(ns-1)*stage) & 0xffffffff:#x}"
    for l in reads(F0, 0): a(l)
    a(f"    s_mov_b32 s{s_k}, 0\n    s_mov_b32 s{s_slot}, 1\n    s_mov_b32 s47, {stage}\n    s_mov_b32 s{s_delta}, {stage}")
    a(f"{L}_loop:")
    ex = {}
    upg = 1 if nrd + len(upd) <= n - 1 else 2
    for j, u in enumerate(upd): ex.setdefault(nrd + j // upg, []).append(u)
    if not late:
        a("    s_waitcnt lgkmcnt(0)")
        ex.setdefault(bar_gap - 1, []).append(f"    s_add_u32 s{s_k}, s{s_k}, 1")
        ex.setdefault(bar_gap, []).append("    s_waitcnt lgkmcnt(0)\n    s_barrier")
        ex.setdefault(n - 1, []).append(f"    s_cmp_eq_u32 s{s_k}, {nk}\n    s_cbranch_scc1 {L}_tail")
        place(mfmas(F0), reads(F1, 1), 1, 0, ex)
        ex = {nrd: [f"    s_add_u32 s{s_slot}, s{s_slot}, 1\n    s_cmp_eq_u32 s{s_slot}, {ns}"],
              nrd + 1: [f"    s_cselect_b32 s{s_delta}, {wrapc}, s47\n    s_cselect_b32 s{s_slot}, 0, s{s_slot}"],
              n - 1: [f"    s_branch {L}_loop"]}
        for k, v in (loop_extra or {}).items(): ex.setdefault(k, []).append(v)
        place(mfmas(F1), reads(F0, 0), 1, 0, ex)
        a(f"{L}_tail:")
    else:
        bg = bar_gap - n
        a(f"    s_waitcnt lgkmcnt({2*(NI-1)})")
        for ni in range(1, NI):
            ex.setdefault(MI * ni - 1, []).append(f"    s_waitcnt lgkmcnt({2*(NI-1-ni) + min(nrd, MI*ni)})")
        ex.setdefault(n - 2, []).append(f"    s_add_u32 s{s_k}, s{s_k}, 1")
        ex.setdefault(n - 1, []).append(f"    s_cmp_eq_u32 s{s_k}, {nk}\n    s_cbranch_scc1 {L}_tail\n    s_waitcnt lgkmcnt({2*(NI-1)})")
        place(mfmas(F0), reads(F1, 1), 1, 0, ex)
        assert bg < MI and bg + 1 + nrd <= n
        ex = {0: [f"    s_add_u32 s{s_slot}, s{s_slot}, 1\n    s_cmp_eq_u32 s{s_slot}, {ns}"],
              1: [f"    s_cselect_b32 s{s_delta}, {wrapc}, s47\n    s_cselect_b32 s{s_slot}, 0, s{s_slot}"],
              n - 1: [f"    s_branch {L}_loop"]}
        ex.setdefault(bg, []).append("    s_waitcnt lgkmcnt(0)\n    s_barrier")
        place(mfmas(F1), reads(F0, 0), 1, bg + 1, ex)
        a(f"{L}_tail:\n    s_waitcnt lgkmcnt(0)\n    s_barrier")
    tail(mfmas(F1))

def gemm_loader_loop(a, L, nk, ns, per, issue, s_k):
    issue(); issue()
    a(f"    s_waitcnt vmcnt({per})\n    s_barrier")
    for s in range(ns - 2): issue()
    a(f"    s_mov_b32 s{s_k}, 0\n{L}_lloop:")
    a(f"    s_waitcnt vmcnt({(ns-2)*per})\n    s_barrier")
    if not opt.noload: issue()
    a(f"    s_add_u32 s{s_k}, s{s_k}, 1\n    s_cmp_lt_u32 s{s_k}, {nk-ns}\n    s_cbranch_scc1 {L}_lloop")
    for k in range(nk - ns, nk):
        left = max(0, nk - 1 - (k + 1))
        if k + 1 < nk: a(f"    s_waitcnt vmcnt({left*per})")
        a("    s_barrier")

def gen_g1(a, kidx):
    name = "g1_kernel"; L = "G1"
    STAGE = 49152; NS = 3; NK = 16
    kernel_head(a, name)
    a(f"""    s_cmp_ge_u32 s2, 256
    s_cbranch_scc1 {L}_end
    s_load_dwordx2 s[4:5], s[0:1], {ARG['ws']}
    s_load_dwordx2 s[6:7], s[0:1], {ARG['w1']}
    s_load_dwordx2 s[8:9], s[0:1], {ARG['b1']}
    s_load_dwordx2 s[10:11], s[0:1], {ARG['w2']}""")
    stamp_begin(a)
    a(f"""    v_lshrrev_b32 v1, 6, v0
    v_and_b32 v2, 63, v0
    s_and_b32 s24, s2, 7
    v_readfirstlane_b32 s33, v1
    s_lshr_b32 s25, s2, 3
    s_lshr_b32 s26, s24, 1
    s_lshl_b32 s26, s26, 2
    s_and_b32 s27, s25, 3
    s_add_u32 s26, s26, s27          ; mt
    s_and_b32 s27, s24, 1
    s_lshl_b32 s27, s27, 3
    s_lshr_b32 s28, s25, 2
    s_add_u32 s27, s27, s28          ; nt
    s_and_b32 s29, s27, 1
    s_cmp_lt_u32 s33, 4
    s_cbranch_scc1 {L}_cons""")
    a(f"""    s_sub_u32 s34, s33, 4            ; lw
    s_lshl_b32 s35, s34, 12          ; lw*4096
    v_lshl_add_u32 v10, v2, 4, s35   ; A voffset
    s_lshl_b32 s30, s26, 18
    s_mul_i32 s31, s27, 448
    s_and_b32 s31, s31, 0xffffff80   ; B soffset
    s_mov_b32 s38, s35
    s_add_u32 s39, s35, {NS*STAGE}
    s_add_u32 s37, s35, 16384
    v_lshrrev_b32 v3, 5, v2          ; hi
    s_lshl_b32 s36, s34, 4
    v_add_u32 v4, s36, v3            ; 16lw+hi
    s_movk_i32 s36, 7168
    v_mul_lo_u32 v4, v4, s36
    v_and_b32 v5, 1, v2
    v_lshl_add_u32 v4, v5, 4, v4     ; t0
    v_bfe_u32 v5, v2, 1, 4
    v_xor_b32 v5, v5, v3             ; x0
    s_waitcnt lgkmcnt(0)""")
    srd(a, 12, 4, MB4, off=HN_OFF); srd(a, 16, 6, 1024 * 7168)
    for ci, c in enumerate((0, 2, 4, 6)):
        a(f"    v_xor_b32 v6, {c}, v5\n    v_lshl_add_u32 v6, v6, 5, v4")
        for i in range(8):
            if 2 * (i & 1) + 4 * (i >> 2) == c:
                a(f"    v_add_u32 v{12+i}, {2*i*7168 - (i&3)*1024}, v6")
    def issue():
        a("    s_mov_b32 m0, s38\n    s_add_u32 s36, s38, s37")
        for i in range(4): a(f"    buffer_load_dwordx4 v10, s[12:15], s30 offen offset:{i*1024} lds")
        a("    s_mov_b32 m0, s36\n    s_add_u32 s30, s30, 16384")
        for i in range(4): a(f"    buffer_load_dwordx4 v{12+i}, s[16:19], s31 offen offset:{i*1024} lds")
        a(f"    s_add_u32 m0, s36, 4096\n    s_add_u32 s38, s38, {STAGE}")
        for i in range(4, 8): a(f"    buffer_load_dwordx4 v{12+i}, s[16:19], s31 offen offset:{(i&3)*1024} lds")
        a(f"    s_add_u32 s31, s31, {64*7168}\n    s_cmp_ge_u32 s38, s39\n    s_cselect_b32 s38, s35, s38")
    stamp(a, 0)
    gemm_loader_loop(a, L, NK, NS, 12, issue, 40)
    stamp(a, 1)
    a(f"    s_branch {L}_epi2")
    ACC = 0; F0 = 112; F1 = 156; VA = 200; VB = 202; VBI = 210
    a(f"""{L}_cons:
    v_mov_b32 v240, v2               ; lane
    s_and_b32 s34, s33, 1            ; wm
    s_lshr_b32 s35, s33, 1           ; wn
    v_and_b32 v241, 15, v240         ; r
    v_lshrrev_b32 v242, 4, v240      ; kg
    s_mul_i32 s36, s27, 224
    s_mul_i32 s37, s35, 112
    s_add_u32 s36, s36, s37
    s_lshl_b32 s36, s36, 1
    v_lshlrev_b32 v243, 3, v242
    s_waitcnt lgkmcnt(0)""")
    srd(a, 16, 8, 7168)
    for ni in range(7):
        a(f"    buffer_load_dwordx2 {vr(VBI + 2*ni, 2)}, v243, s[16:19], s36 offen offset:{32*ni}")
    a(f"""    s_lshl_b32 s36, s34, 13          ; wm*64*128
    v_lshl_add_u32 v244, v241, 7, s36
    v_and_b32 v245, 7, v241          ; r7
    v_xor_b32 v246, v242, v245
    v_lshl_add_u32 v{VA}, v246, 4, v244
    v_xor_b32 v246, 4, v246
    v_lshl_add_u32 v{VA+1}, v246, 4, v244
    v_bfe_u32 v246, v240, 2, 2       ; rr
    v_lshl_add_u32 v247, v242, 3, v246   ; 8kg+rr
    v_lshlrev_b32 v247, 9, v247
    v_and_b32 v248, 3, v240          ; cc
    v_lshl_add_u32 v247, v248, 3, v247
    v_add_u32 v247, 16384, v247
    v_and_b32 v248, 1, v242
    v_lshl_or_b32 v246, v248, 2, v246    ; g
    s_mul_i32 s37, s35, 7
    s_lshl_b32 s38, s29, 1
    s_add_u32 s37, s37, s38          ; f0 = 2p + 7wn""")
    for ni in range(7):
        a(f"    s_add_u32 s38, s37, {ni}\n    v_xor_b32 v248, s38, v246\n    v_lshl_add_u32 v{VB+ni}, v248, 5, v247")
    a("    s_waitcnt vmcnt(0)")
    for ni in range(7):
        for d in range(2):
            c = ACC + 4 * ni + 2 * d
            a(f"    v_lshlrev_b32 v{c}, 16, v{VBI+2*ni+d}\n    v_and_b32 v{c+1}, 0xffff0000, v{VBI+2*ni+d}")
    for mi in range(1, 4):
        for ni in range(7):
            for d in range(2):
                c = ACC + 4 * (mi * 7 + ni) + 2 * d
                a(f"    v_mov_b64 {vr(c,2)}, {vr(ACC + 4*ni + 2*d, 2)}")
    srd(a, 20, 10, 3584 * 2048)
    a(f"""    s_mul_i32 s38, s2, 28672
    s_mul_i32 s39, s33, 7168
    s_add_u32 s38, s38, s39
    v_lshlrev_b32 v248, 7, v240
    {"buffer_load_dword v249, v248, s[20:23], s38 offen" if opt.w2pf else ""}""")
    stamp(a, 0)
    a("    s_barrier")
    stamp(a, 1)
    def g1_tail(mf):
        pre = [f"""    v_lshrrev_b32 v246, 1, v242      ; kg>>1
    v_xor_b32 v246, v246, v245       ; (kg>>1)^r7
    v_and_b32 v247, 1, v242
    v_lshl_add_u32 v247, v247, 3, v244   ; m*128 + half*8"""]
        def addr(ni):
            return f"""    s_add_u32 s38, s37, {ni}
    s_lshr_b32 s39, s38, 2
    s_lshl_b32 s39, s39, 14
    s_and_b32 s38, s38, 3
    s_lshl_b32 s38, s38, 1
    v_xor_b32 v248, s38, v246
    v_lshl_add_u32 v248, v248, 4, v247
    v_add_u32 v{VB+ni}, s39, v248"""
        def act(ni, mi):
            c = ACC + 4 * (mi * 7 + ni)
            r = [f"    v_max_f32 v{c+x}, 0, v{c+x}" for x in range(4)]
            r += [f"    v_pk_mul_f32 {vr(c,2)}, {vr(c,2)}, {vr(c,2)}", f"    v_pk_mul_f32 {vr(c+2,2)}, {vr(c+2,2)}, {vr(c+2,2)}",
                  f"    v_cvt_pk_bf16_f32 v{c}, v{c}, v{c+1}", f"    v_cvt_pk_bf16_f32 v{c+1}, v{c+2}, v{c+3}",
                  f"    ds_write_b64 v{VB+ni}, {vr(c,2)} offset:{mi*2048}"]
            return "\n".join(r)
        a(mf[0]); a(pre[0])
        for j in range(1, 8):
            a(mf[j]); a(addr(j - 1))
        for ni in range(7):
            for mi in range(4):
                j = 4 * (ni + 2) + mi
                if j < 28: a(mf[j])
                a(act(ni, mi))
    gemm_consumer_loop(a, L, 4, 7, NK, ACC, F0, F1, lambda mi, kh: (VA + kh, mi * 2048), VB, None, 16384, 2048, 41, 42, 40, STAGE, NS, tail=g1_tail, bar_gap=opt.g1_bar)
    a("    s_waitcnt lgkmcnt(0)")
    stamp(a, 3)
    a(f"""{L}_epi2:
    s_barrier
    v_mbcnt_lo_u32_b32 v2, -1, 0
    v_mbcnt_hi_u32_b32 v2, -1, v2
    s_lshl_b32 s36, s33, 10
    v_lshl_add_u32 v3, v2, 4, s36
    v_lshrrev_b32 v4, 3, v2
    v_xor_b32 v4, v4, v2
    v_bfe_u32 v4, v4, 2, 1               ; c bit2
    v_cmp_eq_u32 vcc, 1, v4
    s_mul_i32 s36, s27, 7
    s_lshr_b32 s36, s36, 1               ; ks0
    s_mul_i32 s37, s26, 56
    s_add_u32 s36, s36, s37
    s_lshl_b32 s36, s36, 14
    v_mov_b32 v5, 0x80000000
    v_cndmask_b32 v6, v5, v3, vcc
    v_cndmask_b32 v7, v3, v5, vcc
    s_cmp_eq_u32 s29, 1
    s_cselect_b64 vcc, -1, 0""")
    srd(a, 12, 4, H1_SZ, off=H1_OFF)
    a("""    v_cndmask_b32 v6, v3, v6, vcc
    v_cndmask_b32 v7, v7, v3, vcc""")
    for j in range(8): a(f"    ds_read_b128 {vr(16+4*j,4)}, v3 offset:{8192*j}")
    for j in range(8):
        vo = 6 if j < 2 else (7 if j >= 6 else 3)
        a(f"    s_waitcnt lgkmcnt({7-j})\n    buffer_store_dwordx4 {vr(16+4*j,4)}, v{vo}, s[12:15], s36 offen\n    s_add_u32 s36, s36, 8192")
    stamp(a, 4)
    if opt.stamps: a("    s_waitcnt vmcnt(0)")
    stamp(a, 5)
    stamp_end(a, kidx, 4, 33)
    a(f"{L}_end:\n    s_endpgm")
    return (name, 256, 512, NS * STAGE), (name, 256, 96)

def gen_g2(a, kidx):
    name = "g2_kernel"; L = "G2"
    STAGE = 32768; NS = 4; NK = 28
    kernel_head(a, name)
    a(f"""    s_cmp_ge_u32 s2, 256
    s_cbranch_scc1 {L}_end
    s_load_dwordx2 s[4:5], s[0:1], {ARG['ws']}
    s_load_dwordx2 s[6:7], s[0:1], {ARG['w2']}
    s_load_dwordx2 s[8:9], s[0:1], {ARG['b2']}
    s_load_dwordx2 s[10:11], s[0:1], {ARG['out']}""")
    stamp_begin(a)
    a(f"""    v_lshrrev_b32 v1, 6, v0
    v_and_b32 v2, 63, v0
    s_and_b32 s24, s2, 7
    v_readfirstlane_b32 s33, v1
    s_lshr_b32 s25, s2, 3
    s_and_b32 s29, s24, 1            ; kh
    s_lshr_b32 s26, s24, 1
    s_lshl_b32 s26, s26, 2
    s_and_b32 s27, s25, 3
    s_add_u32 s26, s26, s27          ; mt
    s_lshr_b32 s27, s25, 2           ; nt
    s_lshl_b32 s43, s26, 7
    s_lshl_b32 s44, s29, 5
    s_add_u32 s43, s43, s44
    s_lshl_b32 s44, s33, 2
    s_add_u32 s43, s43, s44
    s_lshl_b32 s43, s43, 11          ; row*2048
    s_lshl_b32 s44, s27, 8
    s_add_u32 s43, s43, s44
    v_lshrrev_b32 v230, 4, v2
    v_lshlrev_b32 v230, 11, v230
    v_and_b32 v231, 15, v2
    v_lshl_add_u32 v230, v231, 4, v230
    s_add_u32 s44, s43, {64*2048}
    s_waitcnt lgkmcnt(0)""")
    srd(a, 20, 4, MB4, off=H_OFF)
    a("""    buffer_load_dwordx4 v[232:235], v230, s[20:23], s43 offen
    buffer_load_dwordx4 v[236:239], v230, s[20:23], s44 offen""")
    a(f"""    s_cmp_lt_u32 s33, 4
    s_cbranch_scc1 {L}_cons""")
    a(f"""    s_sub_u32 s34, s33, 4            ; lw
    s_lshl_b32 s35, s34, 12          ; lw*4096
    v_lshl_add_u32 v10, v2, 4, s35   ; A voffset
    s_mul_i32 s30, s26, 56
    s_mul_i32 s36, s29, 28
    s_add_u32 s30, s30, s36
    s_lshl_b32 s30, s30, 14          ; A soffset
    s_mul_i32 s31, s29, {1792*2048}
    s_lshl_b32 s36, s27, 8
    s_add_u32 s31, s31, s36          ; B soffset
    s_mov_b32 s38, s35
    s_add_u32 s39, s35, {NS*STAGE}
    v_lshrrev_b32 v3, 4, v2          ; q4
    s_lshl_b32 s36, s34, 4
    v_add_u32 v4, s36, v3
    v_lshlrev_b32 v4, 11, v4
    v_and_b32 v5, 1, v2
    v_lshl_add_u32 v4, v5, 4, v4     ; t0
    v_bfe_u32 v5, v2, 1, 3
    v_xor_b32 v5, v5, v3             ; x0""")
    srd(a, 12, 4, H1_SZ, off=H1_OFF); srd(a, 16, 6, 3584 * 2048)
    for c in (0, 4):
        a(f"    v_xor_b32 v6, {c}, v5\n    v_lshl_add_u32 v6, v6, 5, v4")
        for i in range(4):
            if 4 * (i >> 1) == c:
                a(f"    v_add_u32 v{12+i}, {4*i*2048 - i*1024}, v6")
    def issue():
        a("    s_mov_b32 m0, s38\n    s_add_u32 s36, s38, 16384")
        for i in range(4): a(f"    buffer_load_dwordx4 v10, s[12:15], s30 offen offset:{i*1024} lds")
        a(f"    s_mov_b32 m0, s36\n    s_add_u32 s30, s30, 16384\n    s_add_u32 s38, s38, {STAGE}")
        for i in range(4): a(f"    buffer_load_dwordx4 v{12+i}, s[16:19], s31 offen offset:{i*1024} lds")
        a(f"    s_add_u32 s31, s31, {64*2048}\n    s_cmp_ge_u32 s38, s39\n    s_cselect_b32 s38, s35, s38")
    stamp(a, 0)
    gemm_loader_loop(a, L, NK, NS, 8, issue, 40)
    stamp(a, 1)
    a(f"    s_branch {L}_epi2")
    ACC = 0; F0 = 64; F1 = 96; VA = 128; VB = 132; VBI = 136
    a(f"""{L}_cons:
    v_mov_b32 v200, v2               ; lane
    s_and_b32 s34, s33, 1            ; wm
    s_lshr_b32 s35, s33, 1           ; wn
    v_and_b32 v201, 15, v200         ; r
    v_lshrrev_b32 v202, 4, v200      ; kg
    s_lshl_b32 s36, s27, 8
    s_lshl_b32 s37, s35, 7
    s_add_u32 s36, s36, s37
    v_lshlrev_b32 v203, 3, v202""")
    srd(a, 16, 8, 2048)
    for ni in range(4):
        a(f"    buffer_load_dwordx2 {vr(VBI + 2*ni, 2)}, v203, s[16:19], s36 offen offset:{32*ni}")
    a(f"""    s_lshl_b32 s36, s34, 13
    s_lshl_b32 s37, s29, 12
    s_add_u32 s36, s36, s37
    v_lshl_add_u32 v204, v201, 7, s36
    v_and_b32 v205, 7, v201              ; r7
    v_xor_b32 v206, v202, v205
    v_lshl_add_u32 v{VA}, v206, 4, v204
    v_xor_b32 v{VA+1}, 64, v{VA}
    v_xor_b32 v{VA+2}, 4096, v{VA}
    v_xor_b32 v{VA+3}, 4096, v{VA+1}
    v_bfe_u32 v206, v200, 2, 2           ; rr
    v_lshl_add_u32 v207, v202, 3, v206
    v_lshlrev_b32 v207, 8, v207
    v_and_b32 v208, 3, v200
    v_lshl_add_u32 v207, v208, 3, v207
    v_add_u32 v207, 16384, v207
    v_and_b32 v208, 1, v202
    v_lshl_or_b32 v206, v208, 2, v206    ; g
    s_lshl_b32 s37, s35, 2""")
    for ni in range(4):
        a(f"    s_add_u32 s38, s37, {ni}\n    v_xor_b32 v208, s38, v206\n    v_lshl_add_u32 v{VB+ni}, v208, 5, v207")
    for i in range(32, 64, 2): a(f"    v_mov_b64 {vr(ACC+i,2)}, 0")
    a("    s_waitcnt vmcnt(0)")
    for ni in range(4):
        for d in range(2):
            c = ACC + 4 * ni + 2 * d
            a(f"    v_lshlrev_b32 v{c}, 16, v{VBI+2*ni+d}\n    v_and_b32 v{c+1}, 0xffff0000, v{VBI+2*ni+d}")
            a(f"    v_mov_b64 {vr(c+16,2)}, {vr(c,2)}")
    stamp(a, 0)
    a("    s_barrier")
    stamp(a, 1)
    def g2_tail(mf):
        send = [m for j, m in enumerate(mf) if (j & 3) >= 2]; keep = [m for j, m in enumerate(mf) if (j & 3) < 2]
        for m in send: a(m)
        srd(a, 12, 4, 256 * 16384, off=XCH_OFF); srd(a, 16, 4, 256 * 512, off=FLG_OFF)
        a(keep[0])
        a(f"""    v_lshlrev_b32 v203, 4, v200
    s_lshl_b32 s36, s2, 14
    s_lshl_b32 s37, s33, 12
    s_add_u32 s36, s36, s37
    s_xor_b32 s45, s36, 0x4000""")
        a(keep[1])
        for q in range(4):
            for h in range(2):
                c = ACC + 32 + 8 * q + 4 * h
                a(f"    v_cvt_pk_bf16_f32 v{F0 + 4*q + 2*h}, v{c}, v{c+1}\n    v_cvt_pk_bf16_f32 v{F0 + 4*q + 2*h + 1}, v{c+2}, v{c+3}")
            a(f"    buffer_store_dwordx4 {vr(F0+4*q,4)}, v203, s[12:15], s36 offen offset:{q*1024} sc1")
            for m in keep[2 + 2*q: 4 + 2*q]: a(m)
    gemm_consumer_loop(a, L, 4, 4, NK, ACC, F0, F1, lambda mi, kh: (VA + 2 * (mi >> 1) + kh, (mi & 1) * 2048), VB, None, 8192, 1024, 41, 42, 40, STAGE, NS, tail=g2_tail, bar_gap=opt.g2_bar)
    stamp(a, 2)
    a(f"""    s_lshl_b32 s36, s2, 9
    s_lshl_b32 s37, s33, 7
    s_add_u32 s36, s36, s37
    s_xor_b32 s37, s36, 0x200
    v_mov_b32 v209, 1
    v_mov_b32 v210, 0
    v_lshrrev_b32 v206, 1, v202
    v_xor_b32 v206, v206, v201           ; (kg>>1) ^ r
    s_lshl_b32 s38, s34, 13              ; 32wm*256
    v_lshl_add_u32 v207, v201, 8, s38
    v_and_b32 v208, 1, v202
    v_lshl_add_u32 v207, v208, 3, v207
    s_lshl_b32 s39, s35, 3""")
    for ni in range(4):
        a(f"    s_add_u32 s38, s39, {2*ni}\n    v_xor_b32 v208, s38, v206\n    v_lshl_add_u32 v{VB+ni}, v208, 4, v207")
    a(f"""    s_mov_b64 exec, 1
    s_waitcnt vmcnt(0)
    buffer_store_dword v209, v210, s[16:19], s36 offen sc1""")
    stamp(a, 3)
    a(f"""{L}_poll:
    buffer_load_dword v211, v210, s[16:19], s37 offen sc1
    s_waitcnt vmcnt(0)
    v_readfirstlane_b32 s38, v211
    s_cmp_eq_u32 s38, 1
    s_cbranch_scc0 {L}_poll
    s_mov_b64 exec, -1""")
    stamp(a, 4)
    for q in range(4):
        a(f"    buffer_load_dwordx4 {vr(F1+4*q,4)}, v203, s[12:15], s45 offen offset:{q*1024} sc1")
    for j in range(8):
        mi, ni = j >> 2, j & 3
        c = ACC + 4 * j; p = F1 + 2 * j
        if j % 2 == 0: a(f"    s_waitcnt vmcnt({3 - j//2})")
        a(f"""    v_lshlrev_b32 v212, 16, v{p}
    v_and_b32 v213, 0xffff0000, v{p}
    v_lshlrev_b32 v214, 16, v{p+1}
    v_and_b32 v215, 0xffff0000, v{p+1}
    v_pk_add_f32 {vr(c,2)}, {vr(c,2)}, v[212:213]
    v_pk_add_f32 {vr(c+2,2)}, {vr(c+2,2)}, v[214:215]
    v_cvt_pk_bf16_f32 v{c}, v{c}, v{c+1}
    v_cvt_pk_bf16_f32 v{c+1}, v{c+2}, v{c+3}
    ds_write_b64 v{VB+ni}, {vr(c,2)} offset:{mi*4096}""")
    a("    s_waitcnt lgkmcnt(0)")
    stamp(a, 5)
    a(f"""{L}_epi2:
    s_barrier                            ; X3
    v_mbcnt_lo_u32_b32 v2, -1, 0
    v_mbcnt_hi_u32_b32 v2, -1, v2
    v_lshrrev_b32 v3, 4, v2
    s_lshl_b32 s36, s33, 2
    v_add_u32 v3, s36, v3                ; lr (j=0)
    v_xor_b32 v4, v3, v2
    v_and_b32 v4, 15, v4
    v_lshlrev_b32 v4, 4, v4
    v_lshl_add_u32 v3, v3, 8, v4
    ds_read_b128 v[16:19], v3
    ds_read_b128 v[20:23], v3 offset:8192""")
    srd(a, 12, 10, MB4)
    a("    s_waitcnt vmcnt(0)")
    for j in range(2):
        a(f"    s_waitcnt lgkmcnt({1-j})")
        for d in range(4):
            o = 16 + 4 * j + d; h = 232 + 4 * j + d
            a(f"""    v_lshlrev_b32 v8, 16, v{o}
    v_and_b32 v9, 0xffff0000, v{o}
    v_lshlrev_b32 v10, 16, v{h}
    v_and_b32 v11, 0xffff0000, v{h}
    v_pk_add_f32 v[8:9], v[8:9], v[10:11]
    v_cvt_pk_bf16_f32 v{o}, v8, v9""")
        a(f"    buffer_store_dwordx4 {vr(16+4*j,4)}, v230, s[12:15], s{43+j} offen")
    stamp(a, 6)
    if opt.stamps: a("    s_waitcnt vmcnt(0)")
    stamp(a, 7)
    stamp_end(a, kidx, 4, 33)
    a(f"{L}_end:\n    s_endpgm")
    return (name, 256, 512, NS * STAGE), (name, 256, 96)


def add_imm(a, dst, src, imm):
    a(f"    v_add_u32 v{dst}, {imm:#x}, v{src}")

def touch(a, srdreg, vtmp, vlane, soff_shift_mul, ninstr, dst):
    pass

def gen_p(a, kidx):
    name = "p_kernel"; L = "P"
    kernel_head(a, name)
    a(f"""    s_cmp_ge_u32 s2, 256
    s_cbranch_scc1 {L}_end
    s_load_dwordx4 s[4:7], s[0:1], {ARG['k']}      ; k, v
    s_load_dwordx4 s[8:11], s[0:1], {ARG['shift']}
    s_load_dwordx2 s[40:41], s[0:1], {ARG['ws']}""")
    stamp_begin(a)
    a(f"""    v_lshrrev_b32 v1, 6, v0
    v_and_b32 v2, 63, v0
    s_and_b32 s24, s2, 7             ; cb
    v_readfirstlane_b32 s33, v1
    s_lshr_b32 s25, s2, 3            ; rb
    v_and_b32 v3, 7, v2              ; cg
    v_lshrrev_b32 v4, 3, v2          ; rg
    s_lshl_b32 s26, s25, 17
    s_lshl_b32 s27, s24, 8
    s_add_u32 s26, s26, s27
    s_lshl_b32 s27, s33, 6
    s_add_u32 s26, s26, s27
    v_lshlrev_b32 v5, 14, v4
    v_lshl_add_u32 v5, v3, 3, v5
    v_add_u32 v5, s26, v5            ; vbase
    v_subrev_u32 v6, 6144, v5
    v_subrev_u32 v7, 2048, v5
    s_movk_i32 s44, 4096
    s_movk_i32 s45, 8192
    s_movk_i32 s46, 12288
    s_lshl_b32 s27, s24, 10
    s_lshl_b32 s28, s33, 8
    s_add_u32 s27, s27, s28
    v_lshlrev_b32 v8, 5, v3
    s_waitcnt lgkmcnt(0)""")
    srd(a, 12, 4, MB4); srd(a, 16, 6, MB4); srd(a, 20, 8, 8192)
    KR = 16; VR = 38; WR = 54
    so = ["0", "s44", "s45", "s46"]
    a(f"    buffer_load_dwordx4 {vr(WR,4)}, v8, s[20:23], s27 offen\n    buffer_load_dwordx4 {vr(WR+4,4)}, v8, s[20:23], s27 offen offset:16")
    a(f"    buffer_load_dwordx2 {vr(KR,2)}, v6, s[12:15], 0 offen nt\n    buffer_load_dwordx2 {vr(KR+2,2)}, v6, s[12:15], 0 offen offset:2048 nt\n    buffer_load_dwordx2 {vr(KR+4,2)}, v7, s[12:15], 0 offen nt")
    for j in range(8):
        a(f"    buffer_load_dwordx2 {vr(KR+6+2*j,2)}, v5, s[12:15], {so[j>>1]} offen offset:{(j&1)*2048} nt")
        a(f"    buffer_load_dwordx2 {vr(VR+2*j,2)}, v5, s[16:19], {so[j>>1]} offen offset:{(j&1)*2048} nt")
    srd(a, 28, 10, MB4); srd(a, 36, 40, 64 << 20)
    a(f"""    s_lshl_b32 s47, s2, 14
    v_lshlrev_b32 v9, 6, v0
    buffer_load_dword v10, v9, s[28:31], s47 offen
    s_mul_i32 s47, s2, 544
    s_add_u32 s47, s47, {FLG_OFF:#x}
    v_min_u32 v11, 135, v0
    v_lshlrev_b32 v11, 2, v11
    v_mov_b32 v12, 0
    buffer_store_dword v12, v11, s[36:39], s47 offen""")
    a(f"""    v_xor_b32 v13, 7, v4
    v_xor_b32 v13, v13, v3
    v_lshlrev_b32 v13, 4, v13
    v_lshl_add_u32 v13, v3, 9, v13
    s_lshl_b32 s47, s33, 12
    v_add_u32 v13, s47, v13
    v_lshl_add_u32 v14, v2, 4, s47
    v_lshrrev_b32 v15, 5, v2
    v_xor_b32 v15, v15, v3               ; x0 = (l&7)^(l>>5)
    v_lshlrev_b32 v9, 12, v4             ; (l>>3)*4096""")
    WF = 64; KF = 80; VF = 124; OF = 156; PK = 190
    stamp(a, 0)
    a("    s_waitcnt vmcnt(21)")
    for c in range(4):
        for j in range(4):
            src = WR + 2 * c + (j >> 1); d = WF + (c >> 1) * 8 + j * 2 + (c & 1)
            a(f"    v_lshlrev_b32 v{d}, 16, v{src}" if j % 2 == 0 else f"    v_and_b32 v{d}, 0xffff0000, v{src}")
    def unpack(dst, src):
        for p in range(2):
            a(f"    v_lshlrev_b32 v{dst+2*p}, 16, v{src+p}\n    v_and_b32 v{dst+2*p+1}, 0xffff0000, v{src+p}")
    a("    s_waitcnt vmcnt(18)")
    for r in range(3): unpack(KF + 4 * r, KR + 2 * r)
    for j in range(8):
        a(f"    s_waitcnt vmcnt({16 - 2*j})")
        unpack(KF + 4 * (3 + j), KR + 6 + 2 * j); unpack(VF + 4 * j, VR + 2 * j)
        for p in range(2):
            o = OF + 4 * j + 2 * p
            k = lambda r: vr(KF + 4 * r + 2 * p, 2)
            w = lambda t: vr(WF + p * 8 + 2 * t, 2)
            a(f"    v_pk_mul_f32 {vr(o,2)}, {k(j)}, {w(3)}")
            a(f"    v_pk_fma_f32 {vr(o,2)}, {k(j+1)}, {w(2)}, {vr(o,2)}")
            a(f"    v_pk_fma_f32 {vr(o,2)}, {k(j+2)}, {w(1)}, {vr(o,2)}")
            a(f"    v_pk_fma_f32 {vr(o,2)}, {k(j+3)}, {w(0)}, {vr(o,2)}")
            a(f"    v_pk_mul_f32 {vr(o,2)}, {vr(o,2)}, {vr(VF + 4*j + 2*p, 2)}")
    stamp(a, 1)
    for c in range(4):
        for d in range(4):
            a(f"    v_cvt_pk_bf16_f32 v{PK+4*c+d}, v{OF + 4*(7-2*d) + c}, v{OF + 4*(6-2*d) + c}")
        a(f"    ds_write_b128 v13, {vr(PK+4*c,4)} offset:{128*c}")
    a(f"""    s_lshl_b32 s47, s24, 19
    s_lshl_b32 s48, s33, 17
    s_add_u32 s47, s47, s48              ; (cb*128+w*32)*4096
    s_lshl_b32 s48, s25, 7
    s_sub_u32 s48, {3968 + KVR_OFF}, s48
    s_add_u32 s47, s47, s48
    s_waitcnt lgkmcnt(0)""")
    for i in range(4): a(f"    ds_read_b128 {vr(16+4*i,4)}, v14 offset:{1024*i}")
    for i in range(4):
        a(f"    v_xor_b32 v8, {2*i}, v15\n    v_lshl_add_u32 v{32+i}, v8, 4, v9")
    for i in range(4):
        a(f"    s_waitcnt lgkmcnt({3-i})\n    buffer_store_dwordx4 {vr(16+4*i,4)}, v{32+i}, s[36:39], s47 offen\n    s_add_u32 s47, s47, 32768")
    stamp(a, 2)
    if opt.stamps: a("    s_waitcnt vmcnt(0)")
    stamp(a, 3)
    stamp_end(a, kidx, 40, 33)
    a(f"{L}_end:\n    s_endpgm")
    return (name, 256, 256, 16384), (name, 256 if opt.stamps else 208, 96)

def gen_c(a, kidx):
    name = "c_kernel"; L = "C"
    CS = 4160; RO = 4 * CS; WSZ = 21248; STG = 4 * WSZ; SST = 4096 + 32
    kernel_head(a, name)
    a(f"""    s_cmp_ge_u32 s2, 256
    s_cbranch_scc1 {L}_end
    s_load_dwordx4 s[4:7], s[0:1], {ARG['ssmk']}
    s_load_dwordx2 s[40:41], s[0:1], {ARG['ws']}
    s_load_dwordx2 s[8:9], s[0:1], {ARG['q']}
    s_load_dwordx2 s[10:11], s[0:1], {ARG['w1']}
    s_load_dwordx2 s[42:43], s[0:1], {ARG['w2']}""")
    stamp_begin(a)
    a(f"""    v_lshrrev_b32 v1, 6, v0
    v_and_b32 v2, 63, v0
    s_and_b32 s24, s2, 7
    v_readfirstlane_b32 s33, v1
    s_lshl_b32 s24, s24, 5
    s_lshr_b32 s25, s2, 3
    s_add_u32 s24, s24, s25          ; cg
    s_lshl_b32 s25, s24, 2
    s_add_u32 s25, s25, s33          ; ch
    s_lshl_b32 s26, s25, 12          ; ch*4096
    s_mul_i32 s27, s33, {WSZ}        ; WB
    v_lshlrev_b32 v3, 4, v2          ; lane*16
    s_add_u32 m0, s27, {RO}
    s_lshr_b32 s28, s25, 1
    s_lshl_b32 s28, s28, 2
    s_waitcnt lgkmcnt(0)""")
    srd(a, 12, 4, MB4); srd(a, 16, 40, 64 << 20)
    FD = 16; FE = 32; FX = 48; TO = 52
    for i in range(4):
        a(f"    buffer_load_dwordx4 {vr(FD+4*i,4)}, v3, s[12:15], s26 offen offset:{1024*i}")
        a(f"    buffer_load_dwordx4 {vr(FE+4*i,4)}, v3, s[12:15], s26 offen offset:{1024*i+4}")
        a(f"    buffer_load_dword v{FX+i}, v3, s[12:15], s26 offen offset:{1024*i+20}")
    for i in range(4):
        a(f"    buffer_load_dwordx4 v3, s[16:19], s26 offen offset:{1024*i} lds")
    a(f"""    s_load_dword s29, s[6:7], s28
    v_add_u32 v4, s27, v3
    v_mov_b32 v60, 0
    v_mov_b32 v61, 0
    v_mov_b32 v62, 0
    v_mov_b32 v63, 0
    s_mov_b64 exec, 0x3fffffff
    ds_write_b128 v4, v[60:63] offset:{RO + 4096}
    s_mov_b64 exec, -1
    v_and_b32 v5, 15, v2             ; b / a
    v_lshrrev_b32 v6, 4, v2          ; kg
    v_add_u32 v7, 1, v5
    v_and_b32 v8, 3, v7
    v_mul_u32_u24 v8, {CS}, v8
    v_and_b32 v7, 28, v7
    v_lshl_add_u32 v8, v7, 1, v8
    v_lshl_add_u32 v8, v6, 4, v8
    v_add_u32 v8, s27, v8            ; vAT
    v_lshlrev_b32 v9, 5, v5
    v_sub_u32 v9, {RO + 480}, v9
    v_lshl_add_u32 v9, v6, 4, v9
    v_add_u32 v9, s27, v9            ; vBT""")
    stamp(a, 0)
    for i in range(4):
        D = FD + 4 * i; E = FE + 4 * i
        a(f"    s_waitcnt vmcnt({4 + 9 - 3*i})")
        a(f"    ds_write_b128 v4, {vr(D,4)} offset:{32 + 1024*i}")
        a(f"    ds_write_b128 v4, {vr(E,4)} offset:{2*CS + 32 + 1024*i}")
        t = TO + 8 * (i & 1)
        for k in range(4): a(f"    v_alignbit_b32 v{t+k}, v{E+k}, v{D+k}, 16")
        a(f"    ds_write_b128 v4, {vr(t,4)} offset:{CS + 32 + 1024*i}")
        for k in range(4): a(f"    v_alignbit_b32 v{t+4+k}, v{E+k+1 if k < 3 else FX+i}, v{E+k}, 16")
        a(f"    ds_write_b128 v4, {vr(t+4,4)} offset:{3*CS + 32 + 1024*i}")
        if i == 0:
            a(f"""    v_mov_b32 v68, 0
    v_mov_b32 v69, 0
    v_mov_b32 v70, 0
    v_lshlrev_b32 v71, 16, v{D}
    v_mov_b32 v72, 0
    v_mov_b32 v73, 0
    v_mov_b32 v74, 0
    v_mov_b32 v75, v{D}
    v_mov_b32 v76, 0
    v_mov_b32 v77, 0
    v_mov_b32 v78, v71
    v_mov_b32 v79, v{t}
    s_mov_b64 exec, 1
    ds_write_b128 v4, v[60:63]
    ds_write_b128 v4, v[60:63] offset:16
    ds_write_b128 v4, v[60:63] offset:{CS}
    ds_write_b128 v4, v[68:71] offset:{CS+16}
    ds_write_b128 v4, v[60:63] offset:{2*CS}
    ds_write_b128 v4, v[72:75] offset:{2*CS+16}
    ds_write_b128 v4, v[60:63] offset:{3*CS}
    ds_write_b128 v4, v[76:79] offset:{3*CS+16}
    s_mov_b64 exec, -1""")
    ACC = 80; F0 = 112; F1 = 176
    for i in range(0, 32, 2): a(f"    v_mov_b64 {vr(ACC+i,2)}, 0")
    a("    s_waitcnt vmcnt(0) lgkmcnt(0)")
    stamp(a, 1)
    srd(a, 20, 8, MB4); srd(a, 44, 10, 1024 * 7168); srd(a, 48, 42, 3584 * 2048)
    a(f"""    v_lshlrev_b32 v10, 7, v0
    s_lshl_b32 s34, s2, 14
    v_lshlrev_b32 v11, 6, v0
    buffer_load_dword v12, v11, s[20:23], s34 offen
    s_mul_i32 s34, s2, 28672
    v_cmp_gt_u32 vcc, 224, v0
    v_mov_b32 v11, 0x80000000
    s_nop 0
    v_cndmask_b32 v10, v11, v10, vcc
    {"buffer_load_dword v13, v10, s[44:47], s34 offen" if opt.c_pf1 else ""}
    {"buffer_load_dword v14, v10, s[48:51], s34 offen" if opt.c_pf2 else ""}
""")
    def reads(F, woff):
        r = []
        for u in range(8):
            r.append(f"    ds_read_b128 {vr(F+32+4*u,4)}, v9 offset:{3584 - 512*u + woff}")
            r.append(f"    ds_read_b64 {vr(F+4*u,2)}, v8 offset:{512*u + woff}")
            r.append(f"    ds_read_b64 {vr(F+4*u+2,2)}, v8 offset:{512*u + 8 + woff}")
        return r
    def mf(F):
        return [f"    v_mfma_f32_16x16x32_bf16 {vr(ACC+4*(u+v),4)}, {vr(F+4*u,4)}, {vr(F+32+4*v,4)}, {vr(ACC+4*(u+v),4)}" for u in range(8) for v in range(8 - u)]
    def weave(m, f):
        i = 0
        for x in m:
            a(x)
            if i < len(f): a(f[i]); i += 1
    for l in reads(F0, 0): a(l)
    a(f"    s_mov_b32 s35, 0\n{L}_loop:\n    s_waitcnt lgkmcnt(0)")
    weave(mf(F0), reads(F1, 64) + ["    v_add_u32 v8, 128, v8", "    v_add_u32 v9, 128, v9"])
    a("    s_waitcnt lgkmcnt(0)")
    weave(mf(F1), reads(F0, 0))
    a(f"    s_add_u32 s35, s35, 1\n    s_cmp_lt_u32 s35, 4\n    s_cbranch_scc1 {L}_loop\n    s_waitcnt lgkmcnt(0)")
    stamp(a, 2)
    a(f"""    v_lshlrev_b32 v16, 5, v5
    v_lshl_add_u32 v16, v6, 3, v16       ; 32a + 8g
    v_sub_u32 v17, {RO + 504}, v16
    v_add_u32 v17, s27, v17
    s_mul_i32 s34, s33, {SST}
    s_add_u32 s34, s34, {STG}
    v_add_u32 v18, s34, v16
    s_lshl_b32 s35, s29, 16
    s_and_b32 s36, s29, 0xffff0000
    s_bitcmp1_b32 s25, 0
    s_cselect_b32 s35, s36, s35          ; D as f32""")
    for n in range(8): a(f"    ds_read_b64 {vr(F0+2*n,2)}, v17 offset:{512*(7-n)}")
    for n in range(8):
        c = ACC + 4 * n; k = F0 + 2 * n
        a(f"""    s_waitcnt lgkmcnt({7-n})
    v_and_b32 v20, 0xffff0000, v{k+1}
    v_lshlrev_b32 v21, 16, v{k+1}
    v_and_b32 v22, 0xffff0000, v{k}
    v_lshlrev_b32 v23, 16, v{k}
    v_fmac_f32 v{c}, s35, v20
    v_fmac_f32 v{c+1}, s35, v21
    v_fmac_f32 v{c+2}, s35, v22
    v_fmac_f32 v{c+3}, s35, v23
    v_cvt_pk_bf16_f32 v{c}, v{c}, v{c+1}
    v_cvt_pk_bf16_f32 v{c+1}, v{c+2}, v{c+3}""")
    for n in range(8): a(f"    ds_write_b64 v18, {vr(ACC+4*n,2)} offset:{512*n}")
    a(f"""    v_bfe_u32 v19, v2, 2, 2              ; r
    v_mul_u32_u24 v19, {SST}, v19
    v_lshl_add_u32 v19, v6, 5, v19
    v_and_b32 v20, 3, v2
    v_lshl_add_u32 v19, v20, 3, v19
    s_lshl_b32 s34, s33, 10
    s_add_u32 s34, s34, {STG}
    v_add_u32 v19, s34, v19
    s_bfe_u32 s34, s24, 0x30002          ; key
    s_and_b32 s35, s24, 1
    s_lshl_b32 s35, s35, 2
    s_xor_b32 s34, s34, s35              ; kk
    v_bfe_u32 v20, v2, 1, 2
    v_xor_b32 v20, s34, v20
    v_lshlrev_b32 v20, 4, v20
    v_and_b32 v21, 1, v2
    v_lshl_add_u32 v20, v21, 3, v20
    v_lshrrev_b32 v21, 3, v2
    v_lshl_add_u32 v20, v21, 14, v20     ; voffset
    s_lshl_b32 s34, s33, 20              ; 64w*16384
    s_lshr_b32 s35, s24, 1
    s_lshl_b32 s35, s35, 7
    s_add_u32 s34, s34, s35
    s_add_u32 s34, s34, {Y2_OFF:#x}
    s_waitcnt lgkmcnt(0)
    s_barrier""")
    stamp(a, 3)
    for j in range(8): a(f"    ds_read_b64_tr_b16 {vr(F0+2*j,2)}, v19 offset:{128*j}")
    for j in range(8):
        a(f"    s_waitcnt lgkmcnt({7-j})\n    buffer_store_dwordx2 {vr(F0+2*j,2)}, v20, s[16:19], s34 offen\n    s_add_u32 s34, s34, 0x20000")
    stamp(a, 4)
    if opt.stamps: a("    s_waitcnt vmcnt(0)")
    stamp(a, 5)
    stamp_end(a, kidx, 40, 33)
    a(f"{L}_end:\n    s_endpgm")
    return (name, 256, 256, STG + 4 * SST), (name, 256 if opt.stamps else 240, 96)

def wave_sum(a, regs, tmps):
    nop = "    s_nop 0" if len(regs) == 2 else ""
    a("    s_nop 0")
    for ctl in ("quad_perm:[1,0,3,2]", "quad_perm:[2,3,0,1]", "row_half_mirror", "row_mirror"):
        for r in regs: a(f"    v_add_f32_dpp v{r}, v{r}, v{r} {ctl} row_mask:0xf bank_mask:0xf")
        a(nop)
    for sw in ("v_permlane16_swap_b32", "v_permlane32_swap_b32"):
        for r, t in zip(regs, tmps): a(f"    v_mov_b32 v{t}, v{r}")
        a(nop)
        for r, t in zip(regs, tmps): a(f"    {sw} v{t}, v{r}")
        for r, t in zip(regs, tmps): a(f"    v_add_f32 v{r}, v{r}, v{t}")

def gen_r(a, kidx):
    name = "r_kernel"; L = "R"
    kernel_head(a, name)
    a(f"""    s_cmp_ge_u32 s2, 256
    s_cbranch_scc1 {L}_end
    s_load_dwordx2 s[4:5], s[0:1], {ARG['q']}
    s_load_dwordx2 s[40:41], s[0:1], {ARG['ws']}""")
    stamp_begin(a)
    a(f"""    v_lshrrev_b32 v1, 6, v0
    v_and_b32 v2, 63, v0
    s_and_b32 s24, s2, 7
    v_readfirstlane_b32 s33, v1
    s_lshl_b32 s24, s24, 5
    s_lshr_b32 s25, s2, 3
    s_add_u32 s24, s24, s25          ; sb
    v_lshlrev_b32 v3, 4, v2
    s_lshl_b32 s26, s24, 14
    s_lshl_b32 s27, s33, 12
    s_add_u32 s26, s26, s27
    s_mov_b32 m0, s27
    s_add_u32 s28, s26, {Y2_OFF:#x}
    s_waitcnt lgkmcnt(0)""")
    srd(a, 12, 4, MB4); srd(a, 16, 40, 64 << 20)
    XR = 16; YR = 32; XF = 48; XC = 80; YF = 112; HP = 144
    for i in range(4): a(f"    buffer_load_dwordx4 v3, s[16:19], s28 offen offset:{1024*i} lds")
    for i in range(4): a(f"    buffer_load_dwordx4 {vr(XR+4*i,4)}, v3, s[12:15], s26 offen offset:{1024*i}")
    a(f"""    v_bfe_u32 v4, v2, 1, 3
    v_xor_b32 v4, s33, v4
    v_lshlrev_b32 v4, 4, v4
    v_lshl_add_u32 v4, v2, 7, v4
    v_xor_b32 v5, 64, v4                 ; e=1
    s_lshl_b32 s29, s33, 1               ; 2w
    v_and_b32 v6, 7, v2
    v_xor_b32 v6, s29, v6
    v_lshrrev_b32 v7, 3, v2
    v_lshlrev_b32 v7, 14, v7
    v_lshl_add_u32 v6, v6, 4, v7         ; rho=0
    v_xor_b32 v7, 16, v6
    v_add_u32 v7, 128, v7
    s_lshr_b32 s30, s24, 4               ; mt
    s_lshl_b32 s30, s30, 18
    s_and_b32 s31, s24, 15
    s_lshl_b32 s31, s31, 10
    s_add_u32 s30, s30, s31
    s_lshl_b32 s31, s33, 8
    s_add_u32 s30, s30, s31
    s_add_u32 s30, s30, {HN_OFF:#x}
    s_add_u32 s31, s30, {8*16384}        ; p=1
    s_add_u32 s34, s26, {H_OFF:#x}       ; h soffset
    s_mov_b32 s35, 0x3a800000            ; 1/1024
    s_mov_b32 s36, 0x3727c5ac            ; 1e-5
    s_waitcnt vmcnt(4)
    s_barrier""")
    for p in range(2):
        for e in range(2): a(f"    ds_read_b128 {vr(YR + 8*p + 4*e, 4)}, v{4+e} offset:{8192*p}")
    stamp(a, 0)
    def unpack(dst, src): a(f"    v_lshlrev_b32 v{dst}, 16, v{src}\n    v_and_b32 v{dst+1}, 0xffff0000, v{src}")
    def rnd(r): a(f"    v_cvt_pk_bf16_f32 v{r}, v{r}, v{r}\n    v_and_b32 v{r}, 0xffff0000, v{r}")
    S = [8, 9]; T = [10, 11]; M = [12, 14]; DM = [200, 202]; RI = [204, 206]; PS = [208, 210]
    def stats(src):
        for rho in range(2):
            a(f"    v_pk_add_f32 {vr(PS[rho],2)}, {vr(src(rho,0),2)}, {vr(src(rho,1),2)}")
        for i in range(2, 8):
            for rho in range(2): a(f"    v_pk_add_f32 {vr(PS[rho],2)}, {vr(PS[rho],2)}, {vr(src(rho,i),2)}")
        for rho in range(2): a(f"    v_add_f32 v{S[rho]}, v{PS[rho]}, v{PS[rho]+1}")
        wave_sum(a, S, T)
        for rho in range(2): a(f"    v_mul_f32 v{M[rho]}, s35, v{S[rho]}")
        for i in range(8):
            for rho in range(2):
                a(f"    v_pk_add_f32 {vr(XC + 16*rho + 2*i,2)}, {vr(src(rho,i),2)}, {vr(M[rho],2)} op_sel_hi:[1,0] neg_lo:[0,1] neg_hi:[0,1]")
        for rho in range(2): a(f"    v_pk_mul_f32 {vr(PS[rho],2)}, {vr(XC+16*rho,2)}, {vr(XC+16*rho,2)}")
        for i in range(1, 8):
            for rho in range(2): a(f"    v_pk_fma_f32 {vr(PS[rho],2)}, {vr(XC+16*rho+2*i,2)}, {vr(XC+16*rho+2*i,2)}, {vr(PS[rho],2)}")
        for rho in range(2): a(f"    v_add_f32 v{S[rho]}, v{PS[rho]}, v{PS[rho]+1}")
        wave_sum(a, S, T)
        for rho in range(2):
            a(f"    v_mov_b32 v{DM[rho]}, v{M[rho]}"); rnd(DM[rho]); a(f"    v_sub_f32 v{DM[rho]}, v{M[rho]}, v{DM[rho]}")
            a(f"    v_mul_f32 v{RI[rho]}, s35, v{S[rho]}"); rnd(RI[rho]); a(f"    v_add_f32 v{RI[rho]}, s36, v{RI[rho]}"); rnd(RI[rho])
        for rho in range(2): a(f"    v_sqrt_f32 v{RI[rho]}, v{RI[rho]}")
        a("    s_nop 0")
        for rho in range(2): rnd(RI[rho])
        for rho in range(2): a(f"    v_rcp_f32 v{RI[rho]}, v{RI[rho]}")
        for i in range(8):
            for rho in range(2):
                a(f"    v_pk_add_f32 {vr(XC + 16*rho + 2*i,2)}, {vr(XC + 16*rho + 2*i,2)}, {vr(DM[rho],2)} op_sel_hi:[1,0]")
    for rho in range(2):
        a(f"    s_waitcnt vmcnt({2 - 2*rho})")
        for i in range(8): unpack(XF + 16 * rho + 2 * i, XR + 8 * rho + i)
    stamp(a, 1)
    stats(lambda rho, i: XF + 16 * rho + 2 * i)
    a("    s_waitcnt lgkmcnt(0)")
    for rho in range(2):
        for i in range(8):
            p, d = i >> 2, i & 3
            unpack(YF + 16 * rho + 2 * i, YR + 8 * p + 4 * (d >> 1) + 2 * rho + (d & 1))
    for i in range(8):
        for rho in range(2):
            o = 16 * rho + 2 * i
            a(f"    v_pk_mul_f32 {vr(XC+o,2)}, {vr(XC+o,2)}, {vr(YF+o,2)}")
            a(f"    v_pk_fma_f32 {vr(XF+o,2)}, {vr(XC+o,2)}, {vr(RI[rho],2)}, {vr(XF+o,2)} op_sel_hi:[1,0,1]")
            a(f"    v_cvt_pk_bf16_f32 v{HP + 8*rho + i}, v{XF+o}, v{XF+o+1}")
    for q in range(4): a(f"    buffer_store_dwordx4 {vr(HP+4*q,4)}, v3, s[16:19], s34 offen offset:{1024*q}")
    for rho in range(2):
        for i in range(8): unpack(XF + 16 * rho + 2 * i, HP + 8 * rho + i)
    stamp(a, 2)
    stats(lambda rho, i: XF + 16 * rho + 2 * i)
    for rho in range(2):
        for i in range(8):
            o = 16 * rho + 2 * i
            a(f"    v_pk_mul_f32 {vr(XC+o,2)}, {vr(XC+o,2)}, {vr(RI[rho],2)} op_sel_hi:[1,0]")
            a(f"    v_cvt_pk_bf16_f32 v{XR + 8*rho + i}, v{XC+o}, v{XC+o+1}")
        for p in range(2): a(f"    buffer_store_dwordx4 {vr(XR + 8*rho + 4*p,4)}, v{6+rho}, s[16:19], s{30+p} offen")
    stamp(a, 3)
    if opt.stamps: a("    s_waitcnt vmcnt(0)")
    stamp(a, 4)
    stamp_end(a, kidx, 40, 33)
    a(f"{L}_end:\n    s_endpgm")
    return (name, 256, 256, 16384), (name, 256 if opt.stamps else 216, 96)

KGEN = {"p": gen_p, "c": gen_c, "r": gen_r, "g1": gen_g1, "g2": gen_g2}

def build(kernels, extra=None):
    body = Asm(); launches = []; descs = []
    for i, k in enumerate(kernels):
        l, d = KGEN[k](body, i)
        launches.append(l); descs.append(d)
    for d in descs: kernel_desc(body, *d)
    return file_head(launches) + body.text()

if __name__ == "__main__":
    opt.stamps = "--stamps" in sys.argv
    ks = [x for x in sys.argv[2:] if not x.startswith("--")]
    open(sys.argv[1], "w").write(build(ks))
```

```python
import sys
from asmlib import *
import gen
from gen import opt, stamp, stamp_begin, stamp_end, vr, gemm_consumer_loop, MB4, HN_OFF, H1_OFF, H1_SZ, H_OFF, XCH_OFF, FLG_OFF

GRP_XCC = 0x20000
GRP_RDY = 0x21000
FLG_SZ = 0x22000
opt.wb_bg = False

def gen_g12(a, kidx):
    name = "g12_kernel"; L = "G"
    ST1 = 49152; NS1 = 3; NK1 = 16
    NS2 = 4; NK2 = 28; B2 = 98304
    kernel_head(a, name)
    a(f"""    s_cmp_ge_u32 s2, 256
    s_cbranch_scc1 {L}_end
    s_load_dwordx2 s[4:5], s[0:1], {ARG['ws']}
    s_load_dwordx4 s[8:11], s[0:1], {ARG['w1']}    ; w1, b1
    s_load_dwordx4 s[48:51], s[0:1], {ARG['w2']}   ; w2, b2
    s_load_dwordx2 s[52:53], s[0:1], {ARG['out']}""")
    stamp_begin(a)
    a(f"""    v_lshrrev_b32 v1, 6, v0
    v_and_b32 v2, 63, v0
    s_and_b32 s24, s2, 7
    v_readfirstlane_b32 s33, v1
    s_lshr_b32 s25, s2, 3
    s_lshr_b32 s26, s24, 1
    s_lshl_b32 s26, s26, 2
    s_and_b32 s27, s25, 3
    s_add_u32 s26, s26, s27          ; mt
    s_and_b32 s54, s24, 1
    s_lshr_b32 s55, s25, 2
    s_lshl_b32 s56, s24, 2
    s_add_u32 s56, s56, s27
    s_lshl_b32 s56, s56, 7           ; group*128
    s_lshl_b32 s27, s54, 3
    s_add_u32 s27, s27, s55          ; nt
    s_and_b32 s29, s27, 1
    v_lshrrev_b32 v242, 4, v2        ; kg
    v_lshlrev_b32 v243, 3, v242
    s_cmp_lt_u32 s33, 4
    s_cbranch_scc1 {L}_cons""")
    a(f"""    s_sub_u32 s34, s33, 4            ; lw
    s_lshl_b32 s35, s34, 12          ; lw*4096
    v_lshl_add_u32 v10, v2, 4, s35   ; A voffset
    s_lshl_b32 s30, s26, 18
    s_mul_i32 s31, s27, 448
    s_and_b32 s31, s31, 0xffffff80   ; B soffset
    s_mov_b32 s38, s35
    s_add_u32 s39, s35, {NS1*ST1}
    s_add_u32 s37, s35, 16384
    s_mov_b32 m0, s35
    v_lshrrev_b32 v3, 5, v2          ; hi
    s_lshl_b32 s36, s34, 4
    v_add_u32 v4, s36, v3            ; 16lw+hi
    s_movk_i32 s36, 7168
    v_mul_lo_u32 v4, v4, s36
    v_and_b32 v5, 1, v2
    v_lshl_add_u32 v4, v5, 4, v4     ; t0
    v_bfe_u32 v5, v2, 1, 4
    v_xor_b32 v5, v5, v3             ; x0
    s_waitcnt lgkmcnt(0)""")
    srd(a, 12, 4, MB4, off=HN_OFF)
    for i in range(4): a(f"    buffer_load_dwordx4 v10, s[12:15], s30 offen offset:{i*1024} lds")
    srd(a, 16, 8, 1024 * 7168)
    for ci, c in enumerate((0, 2, 4, 6)):
        a(f"    v_xor_b32 v6, {c}, v5\n    v_lshl_add_u32 v6, v6, 5, v4")
        for i in range(8):
            if 2 * (i & 1) + 4 * (i >> 2) == c:
                a(f"    v_add_u32 v{12+i}, {2*i*7168 - (i&3)*1024}, v6")
    def issue1(skipA=False):
        a("    s_mov_b32 m0, s38\n    s_add_u32 s36, s38, s37")
        if not skipA:
            for i in range(4): a(f"    buffer_load_dwordx4 v10, s[12:15], s30 offen offset:{i*1024} lds")
        a("    s_mov_b32 m0, s36\n    s_add_u32 s30, s30, 16384")
        for i in range(4): a(f"    buffer_load_dwordx4 v{12+i}, s[16:19], s31 offen offset:{i*1024} lds")
        a(f"    s_add_u32 m0, s36, 4096\n    s_add_u32 s38, s38, {ST1}")
        for i in range(4, 8): a(f"    buffer_load_dwordx4 v{12+i}, s[16:19], s31 offen offset:{(i&3)*1024} lds")
        a(f"    s_add_u32 s31, s31, {64*7168}\n    s_cmp_ge_u32 s38, s39\n    s_cselect_b32 s38, s35, s38")
    stamp(a, 0)
    issue1(skipA=True); issue1()
    a("    s_waitcnt vmcnt(12)\n    s_barrier")
    issue1()
    a(f"""    v_lshrrev_b32 v3, 4, v2          ; q4
    s_lshl_b32 s36, s34, 4
    v_add_u32 v4, s36, v3
    v_lshlrev_b32 v4, 11, v4
    v_and_b32 v5, 1, v2
    v_lshl_add_u32 v4, v5, 4, v4     ; t0
    v_bfe_u32 v5, v2, 1, 3
    v_xor_b32 v5, v5, v3             ; x0""")
    for c in (0, 4):
        a(f"    v_xor_b32 v6, {c}, v5\n    v_lshl_add_u32 v6, v6, 5, v4")
        for i in range(4):
            if 4 * (i >> 1) == c: a(f"    v_add_u32 v{20+i}, {4*i*2048 - i*1024}, v6")
    def spf():
        if opt.w2pf != "s": return
        for i in range(4): a(f"    s_load_dword s70, s[66:67], {128*i}")
        a("    s_add_u32 s66, s66, 512\n    s_addc_u32 s67, s67, 0")
    a(f"""    s_mul_i32 s58, s2, 28672
    s_mul_i32 s36, s34, 7168
    s_add_u32 s58, s58, s36
    s_add_u32 s66, s48, s58
    s_addc_u32 s67, s49, 0""")
    spf()
    a(f"    s_mov_b32 s40, 0\n{L}_l1:\n    s_waitcnt vmcnt(12)\n    s_barrier")
    issue1()
    spf()
    a(f"    s_add_u32 s40, s40, 1\n    s_cmp_lt_u32 s40, {NK1-NS1}\n    s_cbranch_scc1 {L}_l1")
    a("    s_waitcnt vmcnt(12)\n    s_barrier          ; b13")
    srd(a, 16, 48, 3584 * 2048)
    a(f"""    s_mul_i32 s31, s54, {1792*2048}
    s_lshl_b32 s36, s55, 8
    s_add_u32 s31, s31, s36          ; G2 B soffset
    s_mul_i32 s30, s26, 56
    s_mul_i32 s36, s54, 28
    s_add_u32 s30, s30, s36
    s_lshl_b32 s30, s30, 14          ; G2 A soffset
    s_add_u32 s38, s35, {B2}
    s_waitcnt vmcnt(0)
    s_barrier          ; b14""")
    for st in range(4):
        a(f"    s_add_u32 m0, s38, {st*16384}")
        if st: a(f"    s_add_u32 s31, s31, {64*2048}")
        else: a("    s_nop 0")
        for i in range(4): a(f"    buffer_load_dwordx4 v{20+i}, s[16:19], s31 offen offset:{i*1024} lds")
    a(f"    s_add_u32 s31, s31, {64*2048}\n    s_waitcnt lgkmcnt(0)\n    s_barrier          ; b15")
    stamp(a, 1)
    a(f"    s_branch {L}_epi1")
    ACC = 0; F0 = 112; F1 = 156; VA = 200; VB = 202; VBI = 210
    a(f"""{L}_cons:
    v_mov_b32 v240, v2               ; lane
    s_and_b32 s34, s33, 1            ; wm
    s_lshr_b32 s35, s33, 1           ; wn
    v_and_b32 v241, 15, v240         ; r
    s_mul_i32 s36, s27, 224
    s_mul_i32 s37, s35, 112
    s_add_u32 s36, s36, s37
    s_lshl_b32 s36, s36, 1
    s_getreg_b32 s57, hwreg(HW_REG_XCC_ID)
    s_waitcnt lgkmcnt(0)""")
    srd(a, 16, 10, 7168)
    for ni in range(7):
        a(f"    buffer_load_dwordx2 {vr(VBI + 2*ni, 2)}, v243, s[16:19], s36 offen offset:{32*ni}")
    srd(a, 60, 4, FLG_SZ, off=FLG_OFF)
    a(f"""    s_and_b32 s57, s57, 15
    s_or_b32 s57, s57, 0x100
    v_mov_b32 v246, s57
    s_lshl_b32 s38, s55, 2
    s_add_u32 s38, s38, s56
    s_add_u32 s38, s38, {GRP_XCC:#x}
    v_mov_b32 v247, 0
    buffer_store_dword v246, v247, s[60:63], s38 offen sc1
    s_lshl_b32 s36, s34, 13          ; wm*64*128
    v_lshl_add_u32 v244, v241, 7, s36
    v_and_b32 v245, 7, v241          ; r7
    v_xor_b32 v246, v242, v245
    v_lshl_add_u32 v{VA}, v246, 4, v244
    v_xor_b32 v246, 4, v246
    v_lshl_add_u32 v{VA+1}, v246, 4, v244
    v_bfe_u32 v246, v240, 2, 2       ; rr
    v_lshl_add_u32 v247, v242, 3, v246   ; 8kg+rr
    v_lshlrev_b32 v247, 9, v247
    v_and_b32 v248, 3, v240          ; cc
    v_lshl_add_u32 v247, v248, 3, v247
    v_add_u32 v247, 16384, v247
    v_and_b32 v248, 1, v242
    v_lshl_or_b32 v246, v248, 2, v246    ; g
    s_mul_i32 s37, s35, 7
    s_lshl_b32 s38, s29, 1
    s_add_u32 s37, s37, s38          ; f0 = 2p + 7wn""")
    for ni in range(7):
        a(f"    s_add_u32 s38, s37, {ni}\n    v_xor_b32 v248, s38, v246\n    v_lshl_add_u32 v{VB+ni}, v248, 5, v247")
    srd(a, 20, 48, 3584 * 2048)
    a(f"""    s_mul_i32 s58, s2, 28672
    s_mul_i32 s39, s33, 7168
    s_add_u32 s58, s58, s39
    v_lshlrev_b32 v224, 7, v240
    v_mov_b32 v225, 0x80000000
    v_cmp_gt_u32 vcc, 4, v240
    s_waitcnt vmcnt(1)
    v_cndmask_b32 v224, v225, v224, vcc""")
    for ni in range(7):
        for d in range(2):
            c = ACC + 4 * ni + 2 * d
            a(f"    v_lshlrev_b32 v{c}, 16, v{VBI+2*ni+d}\n    v_and_b32 v{c+1}, 0xffff0000, v{VBI+2*ni+d}")
    for mi in range(1, 4):
        for ni in range(7):
            for d in range(2):
                c = ACC + 4 * (mi * 7 + ni) + 2 * d
                a(f"    v_mov_b64 {vr(c,2)}, {vr(ACC + 4*ni + 2*d, 2)}")
    stamp(a, 0)
    a("    s_barrier")
    stamp(a, 1)
    def g1_tail(mf):
        for m in mf[:4]: a(m)
        a(f"""    v_lshrrev_b32 v246, 1, v242      ; kg>>1
    v_xor_b32 v246, v246, v245       ; (kg>>1)^r7
    v_and_b32 v247, 1, v242
    v_lshl_add_u32 v247, v247, 3, v244   ; m*128 + half*8""")
        for ni in range(7):
            for m in mf[4 + 3*ni: 7 + 3*ni]: a(m)
            a(f"""    s_add_u32 s38, s37, {ni}
    s_lshr_b32 s39, s38, 2
    s_lshl_b32 s39, s39, 14
    s_and_b32 s38, s38, 3
    s_lshl_b32 s38, s38, 1
    v_xor_b32 v248, s38, v246
    v_lshl_add_u32 v248, v248, 4, v247
    v_add_u32 v{VB+ni}, s39, v248""")
        for m in mf[25:]: a(m)
        for ni in range(7):
            for mi in range(4):
                c = ACC + 4 * (mi * 7 + ni)
                for x in range(4): a(f"    v_max_f32 v{c+x}, 0, v{c+x}")
                a(f"    v_pk_mul_f32 {vr(c,2)}, {vr(c,2)}, {vr(c,2)}\n    v_pk_mul_f32 {vr(c+2,2)}, {vr(c+2,2)}, {vr(c+2,2)}")
                a(f"    v_cvt_pk_bf16_f32 v{c}, v{c}, v{c+1}\n    v_cvt_pk_bf16_f32 v{c+1}, v{c+2}, v{c+3}")
                a(f"    ds_write_b64 v{VB+ni}, {vr(c,2)} offset:{mi*2048}")
    pf = {22: "    buffer_load_dword v226, v224, s[20:23], s58 offen\n    s_add_u32 s58, s58, 512"} if opt.w2pf is True else None
    gemm_consumer_loop(a, L + "1", 4, 7, NK1, ACC, F0, F1, lambda mi, kh: (VA + kh, mi * 2048), VB, None, 16384, 2048, 41, 42, 40, ST1, NS1, tail=g1_tail, bar_gap=opt.g1_bar, loop_extra=pf)
    a("    s_waitcnt lgkmcnt(0)")
    stamp(a, 2)
    a(f"""{L}_epi1:
    s_barrier                            ; E1
    v_mbcnt_lo_u32_b32 v2, -1, 0
    v_mbcnt_hi_u32_b32 v2, -1, v2
    s_lshl_b32 s36, s33, 10
    v_lshl_add_u32 v3, v2, 4, s36""")
    for j in range(8): a(f"    ds_read_b128 {vr(32+4*j,4)}, v3 offset:{8192*j}")
    a(f"""    v_lshrrev_b32 v4, 3, v2
    v_xor_b32 v4, v4, v2
    v_bfe_u32 v4, v4, 2, 1               ; c bit2
    v_cmp_eq_u32 vcc, 1, v4
    s_mul_i32 s36, s27, 7
    s_lshr_b32 s36, s36, 1               ; ks0
    s_mul_i32 s37, s26, 56
    s_add_u32 s36, s36, s37
    s_lshl_b32 s36, s36, 14
    v_mov_b32 v5, 0x80000000
    v_cndmask_b32 v6, v5, v3, vcc
    v_cndmask_b32 v7, v3, v5, vcc
    s_cmp_eq_u32 s29, 1
    s_cselect_b64 vcc, -1, 0""")
    srd(a, 12, 4, H1_SZ, off=H1_OFF)
    a("""    v_cndmask_b32 v6, v3, v6, vcc
    v_cndmask_b32 v7, v7, v3, vcc""")
    for j in range(8):
        vo = 6 if j < 2 else (7 if j >= 6 else 3)
        a(f"    s_waitcnt lgkmcnt({7-j})\n    buffer_store_dwordx4 {vr(32+4*j,4)}, v{vo}, s[12:15], s36 offen\n    s_add_u32 s36, s36, 8192")
    srd(a, 60, 4, FLG_SZ, off=FLG_OFF)
    a(f"""    v_and_b32 v8, 7, v2
    v_lshlrev_b32 v8, 2, v8
    s_add_u32 s37, s56, {GRP_XCC:#x}
    buffer_load_dword v9, v8, s[60:63], s37 offen sc1
    s_lshl_b32 s43, s26, 7
    s_lshl_b32 s44, s54, 5
    s_add_u32 s43, s43, s44
    s_lshl_b32 s44, s33, 2
    s_add_u32 s43, s43, s44
    s_lshl_b32 s43, s43, 11          ; row*2048
    s_lshl_b32 s44, s55, 8
    s_add_u32 s43, s43, s44
    v_lshrrev_b32 v230, 4, v2
    v_lshlrev_b32 v230, 11, v230
    v_and_b32 v231, 15, v2
    v_lshl_add_u32 v230, v231, 4, v230
    s_add_u32 s44, s43, {64*2048}""")
    srd(a, 20, 4, MB4, off=H_OFF)
    stamp(a, 3)
    a(f"""    s_waitcnt vmcnt(0)
    s_barrier
    buffer_load_dwordx4 v[232:235], v230, s[20:23], s43 offen
    buffer_load_dwordx4 v[236:239], v230, s[20:23], s44 offen
    s_cmp_lt_u32 s33, 4
    s_cbranch_scc1 {L}_cons2""")
    stamp(a, 4)
    a(f"""    v_readfirstlane_b32 s36, v9
    s_add_u32 s46, s56, {GRP_RDY:#x}
    s_nop 0
    v_cmp_eq_u32 vcc, s36, v9
    s_lshl_b32 s37, s55, 2
    s_add_u32 s37, s37, s46
    s_bitcmp1_b32 s36, 8
    s_cselect_b64 s[64:65], vcc, 0
    s_cmp_eq_u64 s[64:65], -1
    s_cselect_b32 s59, 1, 0
    s_cmp_lg_u32 s33, 4
    s_cbranch_scc1 {L}_poll2
    v_mov_b32 v11, 1
    v_mov_b32 v24, 0
    s_cmp_eq_u32 s59, 1
    s_cbranch_scc1 {L}_sig_local
    buffer_wbl2 sc1
    s_waitcnt vmcnt(0)
    buffer_store_dword v11, v24, s[60:63], s37 offen sc1
    s_branch {L}_poll2
{L}_sig_local:
    buffer_store_dword v11, v24, s[60:63], s37 offen
{L}_poll2:
    buffer_load_dword v9, v8, s[60:63], s46 offen sc1
    s_waitcnt vmcnt(0)
    v_cmp_eq_u32 vcc, 1, v9
    s_cmp_eq_u64 vcc, -1
    s_cbranch_scc0 {L}_poll2
    s_cmp_eq_u32 s59, 1
    s_cbranch_scc1 {L}_go2
    buffer_inv sc1
    s_waitcnt vmcnt(0)
{L}_go2:""")
    stamp(a, 5)
    def issueA(st=None):
        for i in range(4): a(f"    buffer_load_dwordx4 v10, s[12:15], s30 offen offset:{i*1024} sc1 lds")
    for st in range(4):
        a(f"    s_add_u32 m0, s35, {st*16384}")
        a("    s_nop 0" if st == 0 else "    s_add_u32 s30, s30, 16384")
        issueA()
    a("    s_add_u32 s30, s30, 16384\n    s_mov_b32 s38, s35\n    s_add_u32 s39, s35, 65536")
    def issue2():
        a(f"    s_mov_b32 m0, s38\n    s_add_u32 s36, s38, {B2}")
        issueA()
        a("    s_mov_b32 m0, s36\n    s_add_u32 s30, s30, 16384\n    s_add_u32 s38, s38, 16384")
        for i in range(4): a(f"    buffer_load_dwordx4 v{20+i}, s[16:19], s31 offen offset:{i*1024} lds")
        a(f"    s_add_u32 s31, s31, {64*2048}\n    s_cmp_ge_u32 s38, s39\n    s_cselect_b32 s38, s35, s38")
    a("    s_waitcnt vmcnt(12)\n    s_barrier          ; c-1")
    a("    s_waitcnt vmcnt(8)\n    s_barrier          ; c0"); issue2()
    a("    s_waitcnt vmcnt(12)\n    s_barrier          ; c1"); issue2()
    a(f"    s_mov_b32 s40, 2\n{L}_l2:\n    s_waitcnt vmcnt(16)\n    s_barrier")
    issue2()
    a(f"    s_add_u32 s40, s40, 1\n    s_cmp_lt_u32 s40, {NK2-NS2}\n    s_cbranch_scc1 {L}_l2")
    for k in range(NK2 - NS2, NK2):
        left = max(0, NK2 - 1 - (k + 1))
        if k + 1 < NK2: a(f"    s_waitcnt vmcnt({left*8})")
        a("    s_barrier")
        if opt.wb_bg and k == NK2 - NS2:
            pass
    stamp(a, 6)
    a(f"    s_branch {L}_epi2")
    ACC = 0; F0 = 64; F1 = 96; VA = 128; VB = 132; VBI = 136
    a(f"""{L}_cons2:
    s_lshl_b32 s36, s55, 8
    s_lshl_b32 s37, s35, 7
    s_add_u32 s36, s36, s37""")
    srd(a, 16, 50, 2048)
    for ni in range(4):
        a(f"    buffer_load_dwordx2 {vr(VBI + 2*ni, 2)}, v243, s[16:19], s36 offen offset:{32*ni}")
    a(f"""    s_lshl_b32 s36, s34, 13
    s_lshl_b32 s37, s54, 12
    s_add_u32 s36, s36, s37
    v_lshl_add_u32 v204, v241, 7, s36
    v_xor_b32 v206, v242, v245
    v_lshl_add_u32 v{VA}, v206, 4, v204
    v_xor_b32 v{VA+1}, 64, v{VA}
    v_xor_b32 v{VA+2}, 4096, v{VA}
    v_xor_b32 v{VA+3}, 4096, v{VA+1}
    v_bfe_u32 v206, v240, 2, 2           ; rr
    v_lshl_add_u32 v207, v242, 3, v206
    v_lshlrev_b32 v207, 8, v207
    v_and_b32 v208, 3, v240
    v_lshl_add_u32 v207, v208, 3, v207
    v_add_u32 v207, {B2}, v207
    v_and_b32 v208, 1, v242
    v_lshl_or_b32 v206, v208, 2, v206    ; g
    s_lshl_b32 s37, s35, 2""")
    for ni in range(4):
        a(f"    s_add_u32 s38, s37, {ni}\n    v_xor_b32 v208, s38, v206\n    v_lshl_add_u32 v{VB+ni}, v208, 5, v207")
    for i in range(32, 64, 2): a(f"    v_mov_b64 {vr(ACC+i,2)}, 0")
    a("    s_waitcnt vmcnt(0)")
    for ni in range(4):
        for d in range(2):
            c = ACC + 4 * ni + 2 * d
            a(f"    v_lshlrev_b32 v{c}, 16, v{VBI+2*ni+d}\n    v_and_b32 v{c+1}, 0xffff0000, v{VBI+2*ni+d}")
            a(f"    v_mov_b64 {vr(c+16,2)}, {vr(c,2)}")
    stamp(a, 4)
    a("    s_barrier          ; c-1")
    stamp(a, 5)
    def g2_tail(mf):
        send = [m for j, m in enumerate(mf) if (j & 3) >= 2]; keep = [m for j, m in enumerate(mf) if (j & 3) < 2]
        for m in send: a(m)
        srd(a, 12, 4, 256 * 16384, off=XCH_OFF)
        a(keep[0])
        a(f"""    v_lshlrev_b32 v203, 4, v240
    s_lshl_b32 s36, s2, 14
    s_lshl_b32 s37, s33, 12
    s_add_u32 s36, s36, s37
    s_xor_b32 s45, s36, 0x4000""")
        a(keep[1])
        for q in range(4):
            for h in range(2):
                c = ACC + 32 + 8 * q + 4 * h
                a(f"    v_cvt_pk_bf16_f32 v{F0 + 4*q + 2*h}, v{c}, v{c+1}\n    v_cvt_pk_bf16_f32 v{F0 + 4*q + 2*h + 1}, v{c+2}, v{c+3}")
            a(f"    buffer_store_dwordx4 {vr(F0+4*q,4)}, v203, s[12:15], s36 offen offset:{q*1024} sc1")
            for m in keep[2 + 2*q: 4 + 2*q]: a(m)
    gemm_consumer_loop(a, L + "2", 4, 4, NK2, ACC, F0, F1, lambda mi, kh: (VA + 2 * (mi >> 1) + kh, (mi & 1) * 2048), VB, None, 8192, 1024, 41, 42, 40, 16384, NS2, tail=g2_tail, bar_gap=opt.g2_bar)
    stamp(a, 6)
    a(f"""    s_lshl_b32 s36, s2, 9
    s_lshl_b32 s37, s33, 7
    s_add_u32 s36, s36, s37
    s_xor_b32 s37, s36, 0x200
    v_mov_b32 v209, 1
    v_mov_b32 v210, 0
    v_lshrrev_b32 v206, 1, v242
    v_xor_b32 v206, v206, v241           ; (kg>>1) ^ r
    s_lshl_b32 s38, s34, 13              ; 32wm*256
    v_lshl_add_u32 v207, v241, 8, s38
    v_and_b32 v208, 1, v242
    v_lshl_add_u32 v207, v208, 3, v207
    s_lshl_b32 s39, s35, 3""")
    for ni in range(4):
        a(f"    s_add_u32 s38, s39, {2*ni}\n    v_xor_b32 v208, s38, v206\n    v_lshl_add_u32 v{VB+ni}, v208, 4, v207")
    a(f"""    s_mov_b64 exec, 1
    s_waitcnt vmcnt(0)
    buffer_store_dword v209, v210, s[60:63], s36 offen sc1
{L}_poll:
    buffer_load_dword v211, v210, s[60:63], s37 offen sc1
    s_waitcnt vmcnt(0)
    v_readfirstlane_b32 s38, v211
    s_cmp_eq_u32 s38, 1
    s_cbranch_scc0 {L}_poll
    s_mov_b64 exec, -1""")
    stamp(a, 7)
    for q in range(4):
        a(f"    buffer_load_dwordx4 {vr(F1+4*q,4)}, v203, s[12:15], s45 offen offset:{q*1024} sc1")
    for j in range(8):
        mi, ni = j >> 2, j & 3
        c = ACC + 4 * j; p = F1 + 2 * j
        if j % 2 == 0: a(f"    s_waitcnt vmcnt({3 - j//2})")
        a(f"""    v_lshlrev_b32 v212, 16, v{p}
    v_and_b32 v213, 0xffff0000, v{p}
    v_lshlrev_b32 v214, 16, v{p+1}
    v_and_b32 v215, 0xffff0000, v{p+1}
    v_pk_add_f32 {vr(c,2)}, {vr(c,2)}, v[212:213]
    v_pk_add_f32 {vr(c+2,2)}, {vr(c+2,2)}, v[214:215]
    v_cvt_pk_bf16_f32 v{c}, v{c}, v{c+1}
    v_cvt_pk_bf16_f32 v{c+1}, v{c+2}, v{c+3}
    ds_write_b64 v{VB+ni}, {vr(c,2)} offset:{mi*4096}""")
    a("    s_waitcnt lgkmcnt(0)")
    stamp(a, 8)
    a(f"""{L}_epi2:
    s_barrier                            ; X3
    v_lshrrev_b32 v3, 4, v230
    v_and_b32 v2, 15, v3
    v_lshrrev_b32 v3, 11, v230           ; lane>>4
    s_lshl_b32 s36, s33, 2
    v_add_u32 v3, s36, v3                ; lr (j=0)
    v_xor_b32 v4, v3, v2
    v_and_b32 v4, 15, v4
    v_lshlrev_b32 v4, 4, v4
    v_lshl_add_u32 v3, v3, 8, v4
    ds_read_b128 v[16:19], v3
    ds_read_b128 v[20:23], v3 offset:8192""")
    srd(a, 12, 52, MB4)
    a("    s_waitcnt vmcnt(0)")
    for j in range(2):
        a(f"    s_waitcnt lgkmcnt({1-j})")
        for d in range(4):
            o = 16 + 4 * j + d; h = 232 + 4 * j + d
            a(f"""    v_lshlrev_b32 v8, 16, v{o}
    v_and_b32 v9, 0xffff0000, v{o}
    v_lshlrev_b32 v10, 16, v{h}
    v_and_b32 v11, 0xffff0000, v{h}
    v_pk_add_f32 v[8:9], v[8:9], v[10:11]
    v_cvt_pk_bf16_f32 v{o}, v8, v9""")
        a(f"    buffer_store_dwordx4 {vr(16+4*j,4)}, v230, s[12:15], s{43+j} offen")
    stamp(a, 9)
    if opt.stamps: a("    s_waitcnt vmcnt(0)")
    stamp(a, 10)
    stamp_end(a, kidx, 4, 33)
    a(f"{L}_end:\n    s_endpgm")
    return (name, 256, 512, 163840), (name, 256, 96)

gen.KGEN["g12"] = gen_g12
if __name__ == "__main__":
    opt.stamps = "--stamps" in sys.argv
    ks = [x for x in sys.argv[2:] if not x.startswith("--")]
    open(sys.argv[1], "w").write(gen.build(ks))
```

```python
import sys
from asmlib import *

KVR_OFF = 0x0000000
Y2_OFF  = 0x0400000
H_OFF   = 0x0800000
HN_OFF  = 0x0C00000
H1_OFF  = 0x1000000
H1_SZ   = 16 * 56 * 16384
XCH_OFF = 0x2000000
FLG_OFF = 0x2800000
STP_OFF = 0x3800000
HN2_OFF = 0x2C00000
MB4 = 4 << 20

class Opt:
    stamps = False
    noload = False
    w2pf = True
    rtstamp = False
    ws_base = 0
    c_pf1 = True
    c_pf2 = False
    rd_per_gap = 2
    g1_bar = 24
    g2_bar = 18
opt = Opt()

def stamp(a, idx, vreg=250):
    if not opt.stamps: return
    a(f"    s_memtime s[84:85]\n    s_memrealtime s[86:87]\n    s_waitcnt lgkmcnt(0)\n    s_sub_u32 s84, s84, s80\n    v_writelane_b32 v{vreg}, s84, {idx}\n    v_writelane_b32 v{vreg}, s86, {32 + idx}")

def stamp_begin(a, vreg=250):
    if not opt.stamps: return
    a(f"    s_memtime s[80:81]\n    s_memrealtime s[82:83]\n    s_waitcnt lgkmcnt(0)\n    v_writelane_b32 v{vreg}, s82, 62")

def stamp_end(a, kidx, wsbase, wavereg, vreg=250):
    if not opt.stamps: return
    a(f"""    s_memrealtime s[82:83]
    s_waitcnt lgkmcnt(0)
    v_writelane_b32 v{vreg}, s82, 63
    s_add_u32 s84, s{wsbase}, {STP_OFF + kidx * 0x80000:#x}
    s_addc_u32 s85, s{wsbase+1}, 0
    s_mov_b32 s86, 0x80000
    s_mov_b32 s87, 0x00020000
    s_lshl_b32 s88, s2, 3
    s_add_u32 s88, s88, s{wavereg}
    s_lshl_b32 s88, s88, 8
    v_mbcnt_lo_u32_b32 v{vreg+1}, -1, 0
    v_mbcnt_hi_u32_b32 v{vreg+1}, -1, v{vreg+1}
    v_lshlrev_b32 v{vreg+1}, 2, v{vreg+1}
    buffer_store_dword v{vreg}, v{vreg+1}, s[84:87], s88 offen""")

def vr(b, n):
    return f"v[{b}:{b+n-1}]" if n > 1 else f"v{b}"

def gemm_consumer_loop(a, L, MI, NI, nk, acc, F0, F1, vA, vB, a_imm, b_imm_kh, b_imm_t, s_slot, s_delta, s_k, stage, ns, tail=None, bar_gap=None, loop_extra=None):
    def reads(F, kh):
        r = []
        for mi in range(MI):
            reg, imm = vA(mi, kh)
            r.append(f"    ds_read_b128 {vr(F + 4*mi, 4)}, v{reg} offset:{imm}")
        for ni in range(NI):
            for t in range(2):
                r.append(f"    ds_read_b64_tr_b16 {vr(F + 4*MI + 4*ni + 2*t, 2)}, v{vB + ni} offset:{kh*b_imm_kh + t*b_imm_t}")
        return r
    def mfmas(F):
        r = []
        for ni in range(NI):
            for mi in range(MI):
                c = acc + 4 * (mi * NI + ni)
                r.append(f"    v_mfma_f32_16x16x32_bf16 {vr(c,4)}, {vr(F + 4*MI + 4*ni, 4)}, {vr(F + 4*mi, 4)}, {vr(c,4)}")
        return r
    def weave(mf, fill):
        i = 0
        for j, m in enumerate(mf):
            a(m)
            if i < len(fill):
                a(fill[i]); i += 1
        while i < len(fill):
            a(fill[i]); i += 1
    addr_regs = sorted(set(vA(mi, kh)[0] for mi in range(MI) for kh in range(2))) + [vB + i for i in range(NI)]
    def place(mf, items, per_gap, start=0, extra=None):
        gaps = [[] for _ in mf]
        g = start
        for j, it in enumerate(items):
            gaps[start + j // per_gap].append(it)
        for k, v in (extra or {}).items(): gaps[k] += v
        for m, gl in zip(mf, gaps):
            a(m)
            for x in gl: a(x)
    n = MI * NI
    nrd = MI + 2 * NI
    upd = [f"    v_add_u32 v{r}, s{s_delta}, v{r}" for r in addr_regs]
    late = bar_gap >= n
    wrapc = f"{(-(ns-1)*stage) & 0xffffffff:#x}"
    for l in reads(F0, 0): a(l)
    a(f"    s_mov_b32 s{s_k}, 0\n    s_mov_b32 s{s_slot}, 1\n    s_mov_b32 s47, {stage}\n    s_mov_b32 s{s_delta}, {stage}")
    a(f"{L}_loop:")
    ex = {}
    upg = 1 if nrd + len(upd) <= n - 1 else 2
    for j, u in enumerate(upd): ex.setdefault(nrd + j // upg, []).append(u)
    if not late:
        a("    s_waitcnt lgkmcnt(0)")
        ex.setdefault(bar_gap - 1, []).append(f"    s_add_u32 s{s_k}, s{s_k}, 1")
        ex.setdefault(bar_gap, []).append("    s_waitcnt lgkmcnt(0)\n    s_barrier")
        ex.setdefault(n - 1, []).append(f"    s_cmp_eq_u32 s{s_k}, {nk}\n    s_cbranch_scc1 {L}_tail")
        place(mfmas(F0), reads(F1, 1), 1, 0, ex)
        ex = {nrd: [f"    s_add_u32 s{s_slot}, s{s_slot}, 1\n    s_cmp_eq_u32 s{s_slot}, {ns}"],
              nrd + 1: [f"    s_cselect_b32 s{s_delta}, {wrapc}, s47\n    s_cselect_b32 s{s_slot}, 0, s{s_slot}"],
              n - 1: [f"    s_branch {L}_loop"]}
        for k, v in (loop_extra or {}).items(): ex.setdefault(k, []).append(v)
        place(mfmas(F1), reads(F0, 0), 1, 0, ex)
        a(f"{L}_tail:")
    else:
        bg = bar_gap - n
        a(f"    s_waitcnt lgkmcnt({2*(NI-1)})")
        for ni in range(1, NI):
            ex.setdefault(MI * ni - 1, []).append(f"    s_waitcnt lgkmcnt({2*(NI-1-ni) + min(nrd, MI*ni)})")
        ex.setdefault(n - 2, []).append(f"    s_add_u32 s{s_k}, s{s_k}, 1")
        ex.setdefault(n - 1, []).append(f"    s_cmp_eq_u32 s{s_k}, {nk}\n    s_cbranch_scc1 {L}_tail\n    s_waitcnt lgkmcnt({2*(NI-1)})")
        place(mfmas(F0), reads(F1, 1), 1, 0, ex)
        assert bg < MI and bg + 1 + nrd <= n
        ex = {0: [f"    s_add_u32 s{s_slot}, s{s_slot}, 1\n    s_cmp_eq_u32 s{s_slot}, {ns}"],
              1: [f"    s_cselect_b32 s{s_delta}, {wrapc}, s47\n    s_cselect_b32 s{s_slot}, 0, s{s_slot}"],
              n - 1: [f"    s_branch {L}_loop"]}
        ex.setdefault(bg, []).append("    s_waitcnt lgkmcnt(0)\n    s_barrier")
        place(mfmas(F1), reads(F0, 0), 1, bg + 1, ex)
        a(f"{L}_tail:\n    s_waitcnt lgkmcnt(0)\n    s_barrier")
    tail(mfmas(F1))

def gemm_loader_loop(a, L, nk, ns, per, issue, s_k):
    issue(); issue()
    a(f"    s_waitcnt vmcnt({per})\n    s_barrier")
    for s in range(ns - 2): issue()
    a(f"    s_mov_b32 s{s_k}, 0\n{L}_lloop:")
    a(f"    s_waitcnt vmcnt({(ns-2)*per})\n    s_barrier")
    if not opt.noload: issue()
    a(f"    s_add_u32 s{s_k}, s{s_k}, 1\n    s_cmp_lt_u32 s{s_k}, {nk-ns}\n    s_cbranch_scc1 {L}_lloop")
    for k in range(nk - ns, nk):
        left = max(0, nk - 1 - (k + 1))
        if k + 1 < nk: a(f"    s_waitcnt vmcnt({left*per})")
        a("    s_barrier")

def gen_g1(a, kidx):
    name = "g1_kernel"; L = "G1"
    STAGE = 49152; NS = 3; NK = 16
    kernel_head(a, name)
    a(f"""    s_cmp_ge_u32 s2, 256
    s_cbranch_scc1 {L}_end
    s_load_dwordx2 s[4:5], s[0:1], {ARG['ws']}
    s_load_dwordx2 s[6:7], s[0:1], {ARG['w1']}
    s_load_dwordx2 s[8:9], s[0:1], {ARG['b1']}
    s_load_dwordx2 s[10:11], s[0:1], {ARG['w2']}""")
    stamp_begin(a)
    a(f"""    v_lshrrev_b32 v1, 6, v0
    v_and_b32 v2, 63, v0
    s_and_b32 s24, s2, 7
    v_readfirstlane_b32 s33, v1
    s_lshr_b32 s25, s2, 3
    s_lshr_b32 s26, s24, 1
    s_lshl_b32 s26, s26, 2
    s_and_b32 s27, s25, 3
    s_add_u32 s26, s26, s27          ; mt
    s_and_b32 s27, s24, 1
    s_lshl_b32 s27, s27, 3
    s_lshr_b32 s28, s25, 2
    s_add_u32 s27, s27, s28          ; nt
    s_and_b32 s29, s27, 1
    s_cmp_lt_u32 s33, 4
    s_cbranch_scc1 {L}_cons""")
    a(f"""    s_sub_u32 s34, s33, 4            ; lw
    s_lshl_b32 s35, s34, 12          ; lw*4096
    v_lshl_add_u32 v10, v2, 4, s35   ; A voffset
    s_lshl_b32 s30, s26, 18
    s_mul_i32 s31, s27, 448
    s_and_b32 s31, s31, 0xffffff80   ; B soffset
    s_mov_b32 s38, s35
    s_add_u32 s39, s35, {NS*STAGE}
    s_add_u32 s37, s35, 16384
    v_lshrrev_b32 v3, 5, v2          ; hi
    s_lshl_b32 s36, s34, 4
    v_add_u32 v4, s36, v3            ; 16lw+hi
    s_movk_i32 s36, 7168
    v_mul_lo_u32 v4, v4, s36
    v_and_b32 v5, 1, v2
    v_lshl_add_u32 v4, v5, 4, v4     ; t0
    v_bfe_u32 v5, v2, 1, 4
    v_xor_b32 v5, v5, v3             ; x0
    s_waitcnt lgkmcnt(0)""")
    srd(a, 12, 4, MB4, off=HN_OFF); srd(a, 16, 6, 1024 * 7168)
    for ci, c in enumerate((0, 2, 4, 6)):
        a(f"    v_xor_b32 v6, {c}, v5\n    v_lshl_add_u32 v6, v6, 5, v4")
        for i in range(8):
            if 2 * (i & 1) + 4 * (i >> 2) == c:
                a(f"    v_add_u32 v{12+i}, {2*i*7168 - (i&3)*1024}, v6")
    def issue():
        a("    s_mov_b32 m0, s38\n    s_add_u32 s36, s38, s37")
        for i in range(4): a(f"    buffer_load_dwordx4 v10, s[12:15], s30 offen offset:{i*1024} lds")
        a("    s_mov_b32 m0, s36\n    s_add_u32 s30, s30, 16384")
        for i in range(4): a(f"    buffer_load_dwordx4 v{12+i}, s[16:19], s31 offen offset:{i*1024} lds")
        a(f"    s_add_u32 m0, s36, 4096\n    s_add_u32 s38, s38, {STAGE}")
        for i in range(4, 8): a(f"    buffer_load_dwordx4 v{12+i}, s[16:19], s31 offen offset:{(i&3)*1024} lds")
        a(f"    s_add_u32 s31, s31, {64*7168}\n    s_cmp_ge_u32 s38, s39\n    s_cselect_b32 s38, s35, s38")
    stamp(a, 0)
    gemm_loader_loop(a, L, NK, NS, 12, issue, 40)
    stamp(a, 1)
    a(f"    s_branch {L}_epi2")
    ACC = 0; F0 = 112; F1 = 156; VA = 200; VB = 202; VBI = 210
    a(f"""{L}_cons:
    v_mov_b32 v240, v2               ; lane
    s_and_b32 s34, s33, 1            ; wm
    s_lshr_b32 s35, s33, 1           ; wn
    v_and_b32 v241, 15, v240         ; r
    v_lshrrev_b32 v242, 4, v240      ; kg
    s_mul_i32 s36, s27, 224
    s_mul_i32 s37, s35, 112
    s_add_u32 s36, s36, s37
    s_lshl_b32 s36, s36, 1
    v_lshlrev_b32 v243, 3, v242
    s_waitcnt lgkmcnt(0)""")
    srd(a, 16, 8, 7168)
    for ni in range(7):
        a(f"    buffer_load_dwordx2 {vr(VBI + 2*ni, 2)}, v243, s[16:19], s36 offen offset:{32*ni}")
    a(f"""    s_lshl_b32 s36, s34, 13          ; wm*64*128
    v_lshl_add_u32 v244, v241, 7, s36
    v_and_b32 v245, 7, v241          ; r7
    v_xor_b32 v246, v242, v245
    v_lshl_add_u32 v{VA}, v246, 4, v244
    v_xor_b32 v246, 4, v246
    v_lshl_add_u32 v{VA+1}, v246, 4, v244
    v_bfe_u32 v246, v240, 2, 2       ; rr
    v_lshl_add_u32 v247, v242, 3, v246   ; 8kg+rr
    v_lshlrev_b32 v247, 9, v247
    v_and_b32 v248, 3, v240          ; cc
    v_lshl_add_u32 v247, v248, 3, v247
    v_add_u32 v247, 16384, v247
    v_and_b32 v248, 1, v242
    v_lshl_or_b32 v246, v248, 2, v246    ; g
    s_mul_i32 s37, s35, 7
    s_lshl_b32 s38, s29, 1
    s_add_u32 s37, s37, s38          ; f0 = 2p + 7wn""")
    for ni in range(7):
        a(f"    s_add_u32 s38, s37, {ni}\n    v_xor_b32 v248, s38, v246\n    v_lshl_add_u32 v{VB+ni}, v248, 5, v247")
    a("    s_waitcnt vmcnt(0)")
    for ni in range(7):
        for d in range(2):
            c = ACC + 4 * ni + 2 * d
            a(f"    v_lshlrev_b32 v{c}, 16, v{VBI+2*ni+d}\n    v_and_b32 v{c+1}, 0xffff0000, v{VBI+2*ni+d}")
    for mi in range(1, 4):
        for ni in range(7):
            for d in range(2):
                c = ACC + 4 * (mi * 7 + ni) + 2 * d
                a(f"    v_mov_b64 {vr(c,2)}, {vr(ACC + 4*ni + 2*d, 2)}")
    srd(a, 20, 10, 3584 * 2048)
    a(f"""    s_mul_i32 s38, s2, 28672
    s_mul_i32 s39, s33, 7168
    s_add_u32 s38, s38, s39
    v_lshlrev_b32 v248, 7, v240
    {"buffer_load_dword v249, v248, s[20:23], s38 offen" if opt.w2pf else ""}""")
    stamp(a, 0)
    a("    s_barrier")
    stamp(a, 1)
    def g1_tail(mf):
        pre = [f"""    v_lshrrev_b32 v246, 1, v242      ; kg>>1
    v_xor_b32 v246, v246, v245       ; (kg>>1)^r7
    v_and_b32 v247, 1, v242
    v_lshl_add_u32 v247, v247, 3, v244   ; m*128 + half*8"""]
        def addr(ni):
            return f"""    s_add_u32 s38, s37, {ni}
    s_lshr_b32 s39, s38, 2
    s_lshl_b32 s39, s39, 14
    s_and_b32 s38, s38, 3
    s_lshl_b32 s38, s38, 1
    v_xor_b32 v248, s38, v246
    v_lshl_add_u32 v248, v248, 4, v247
    v_add_u32 v{VB+ni}, s39, v248"""
        def act(ni, mi):
            c = ACC + 4 * (mi * 7 + ni)
            r = [f"    v_max_f32 v{c+x}, 0, v{c+x}" for x in range(4)]
            r += [f"    v_pk_mul_f32 {vr(c,2)}, {vr(c,2)}, {vr(c,2)}", f"    v_pk_mul_f32 {vr(c+2,2)}, {vr(c+2,2)}, {vr(c+2,2)}",
                  f"    v_cvt_pk_bf16_f32 v{c}, v{c}, v{c+1}", f"    v_cvt_pk_bf16_f32 v{c+1}, v{c+2}, v{c+3}",
                  f"    ds_write_b64 v{VB+ni}, {vr(c,2)} offset:{mi*2048}"]
            return "\n".join(r)
        a(mf[0]); a(pre[0])
        for j in range(1, 8):
            a(mf[j]); a(addr(j - 1))
        for ni in range(7):
            for mi in range(4):
                j = 4 * (ni + 2) + mi
                if j < 28: a(mf[j])
                a(act(ni, mi))
    gemm_consumer_loop(a, L, 4, 7, NK, ACC, F0, F1, lambda mi, kh: (VA + kh, mi * 2048), VB, None, 16384, 2048, 41, 42, 40, STAGE, NS, tail=g1_tail, bar_gap=opt.g1_bar)
    a("    s_waitcnt lgkmcnt(0)")
    stamp(a, 3)
    a(f"""{L}_epi2:
    s_barrier
    v_mbcnt_lo_u32_b32 v2, -1, 0
    v_mbcnt_hi_u32_b32 v2, -1, v2
    s_lshl_b32 s36, s33, 10
    v_lshl_add_u32 v3, v2, 4, s36
    v_lshrrev_b32 v4, 3, v2
    v_xor_b32 v4, v4, v2
    v_bfe_u32 v4, v4, 2, 1               ; c bit2
    v_cmp_eq_u32 vcc, 1, v4
    s_mul_i32 s36, s27, 7
    s_lshr_b32 s36, s36, 1               ; ks0
    s_mul_i32 s37, s26, 56
    s_add_u32 s36, s36, s37
    s_lshl_b32 s36, s36, 14
    v_mov_b32 v5, 0x80000000
    v_cndmask_b32 v6, v5, v3, vcc
    v_cndmask_b32 v7, v3, v5, vcc
    s_cmp_eq_u32 s29, 1
    s_cselect_b64 vcc, -1, 0""")
    srd(a, 12, 4, H1_SZ, off=H1_OFF)
    a("""    v_cndmask_b32 v6, v3, v6, vcc
    v_cndmask_b32 v7, v7, v3, vcc""")
    for j in range(8): a(f"    ds_read_b128 {vr(16+4*j,4)}, v3 offset:{8192*j}")
    for j in range(8):
        vo = 6 if j < 2 else (7 if j >= 6 else 3)
        a(f"    s_waitcnt lgkmcnt({7-j})\n    buffer_store_dwordx4 {vr(16+4*j,4)}, v{vo}, s[12:15], s36 offen\n    s_add_u32 s36, s36, 8192")
    stamp(a, 4)
    if opt.stamps: a("    s_waitcnt vmcnt(0)")
    stamp(a, 5)
    stamp_end(a, kidx, 4, 33)
    a(f"{L}_end:\n    s_endpgm")
    return (name, 256, 512, NS * STAGE), (name, 256, 96)

def gen_g2(a, kidx):
    name = "g2_kernel"; L = "G2"
    STAGE = 32768; NS = 4; NK = 28
    kernel_head(a, name)
    a(f"""    s_cmp_ge_u32 s2, 256
    s_cbranch_scc1 {L}_end
    s_load_dwordx2 s[4:5], s[0:1], {ARG['ws']}
    s_load_dwordx2 s[6:7], s[0:1], {ARG['w2']}
    s_load_dwordx2 s[8:9], s[0:1], {ARG['b2']}
    s_load_dwordx2 s[10:11], s[0:1], {ARG['out']}""")
    stamp_begin(a)
    a(f"""    v_lshrrev_b32 v1, 6, v0
    v_and_b32 v2, 63, v0
    s_and_b32 s24, s2, 7
    v_readfirstlane_b32 s33, v1
    s_lshr_b32 s25, s2, 3
    s_and_b32 s29, s24, 1            ; kh
    s_lshr_b32 s26, s24, 1
    s_lshl_b32 s26, s26, 2
    s_and_b32 s27, s25, 3
    s_add_u32 s26, s26, s27          ; mt
    s_lshr_b32 s27, s25, 2           ; nt
    s_lshl_b32 s43, s26, 7
    s_lshl_b32 s44, s29, 5
    s_add_u32 s43, s43, s44
    s_lshl_b32 s44, s33, 2
    s_add_u32 s43, s43, s44
    s_lshl_b32 s43, s43, 11          ; row*2048
    s_lshl_b32 s44, s27, 8
    s_add_u32 s43, s43, s44
    v_lshrrev_b32 v230, 4, v2
    v_lshlrev_b32 v230, 11, v230
    v_and_b32 v231, 15, v2
    v_lshl_add_u32 v230, v231, 4, v230
    s_add_u32 s44, s43, {64*2048}
    s_waitcnt lgkmcnt(0)""")
    srd(a, 20, 4, MB4, off=H_OFF)
    a("""    buffer_load_dwordx4 v[232:235], v230, s[20:23], s43 offen
    buffer_load_dwordx4 v[236:239], v230, s[20:23], s44 offen""")
    a(f"""    s_cmp_lt_u32 s33, 4
    s_cbranch_scc1 {L}_cons""")
    a(f"""    s_sub_u32 s34, s33, 4            ; lw
    s_lshl_b32 s35, s34, 12          ; lw*4096
    v_lshl_add_u32 v10, v2, 4, s35   ; A voffset
    s_mul_i32 s30, s26, 56
    s_mul_i32 s36, s29, 28
    s_add_u32 s30, s30, s36
    s_lshl_b32 s30, s30, 14          ; A soffset
    s_mul_i32 s31, s29, {1792*2048}
    s_lshl_b32 s36, s27, 8
    s_add_u32 s31, s31, s36          ; B soffset
    s_mov_b32 s38, s35
    s_add_u32 s39, s35, {NS*STAGE}
    v_lshrrev_b32 v3, 4, v2          ; q4
    s_lshl_b32 s36, s34, 4
    v_add_u32 v4, s36, v3
    v_lshlrev_b32 v4, 11, v4
    v_and_b32 v5, 1, v2
    v_lshl_add_u32 v4, v5, 4, v4     ; t0
    v_bfe_u32 v5, v2, 1, 3
    v_xor_b32 v5, v5, v3             ; x0""")
    srd(a, 12, 4, H1_SZ, off=H1_OFF); srd(a, 16, 6, 3584 * 2048)
    for c in (0, 4):
        a(f"    v_xor_b32 v6, {c}, v5\n    v_lshl_add_u32 v6, v6, 5, v4")
        for i in range(4):
            if 4 * (i >> 1) == c:
                a(f"    v_add_u32 v{12+i}, {4*i*2048 - i*1024}, v6")
    def issue():
        a("    s_mov_b32 m0, s38\n    s_add_u32 s36, s38, 16384")
        for i in range(4): a(f"    buffer_load_dwordx4 v10, s[12:15], s30 offen offset:{i*1024} lds")
        a(f"    s_mov_b32 m0, s36\n    s_add_u32 s30, s30, 16384\n    s_add_u32 s38, s38, {STAGE}")
        for i in range(4): a(f"    buffer_load_dwordx4 v{12+i}, s[16:19], s31 offen offset:{i*1024} lds")
        a(f"    s_add_u32 s31, s31, {64*2048}\n    s_cmp_ge_u32 s38, s39\n    s_cselect_b32 s38, s35, s38")
    stamp(a, 0)
    gemm_loader_loop(a, L, NK, NS, 8, issue, 40)
    stamp(a, 1)
    a(f"    s_branch {L}_epi2")
    ACC = 0; F0 = 64; F1 = 96; VA = 128; VB = 132; VBI = 136
    a(f"""{L}_cons:
    v_mov_b32 v200, v2               ; lane
    s_and_b32 s34, s33, 1            ; wm
    s_lshr_b32 s35, s33, 1           ; wn
    v_and_b32 v201, 15, v200         ; r
    v_lshrrev_b32 v202, 4, v200      ; kg
    s_lshl_b32 s36, s27, 8
    s_lshl_b32 s37, s35, 7
    s_add_u32 s36, s36, s37
    v_lshlrev_b32 v203, 3, v202""")
    srd(a, 16, 8, 2048)
    for ni in range(4):
        a(f"    buffer_load_dwordx2 {vr(VBI + 2*ni, 2)}, v203, s[16:19], s36 offen offset:{32*ni}")
    a(f"""    s_lshl_b32 s36, s34, 13
    s_lshl_b32 s37, s29, 12
    s_add_u32 s36, s36, s37
    v_lshl_add_u32 v204, v201, 7, s36
    v_and_b32 v205, 7, v201              ; r7
    v_xor_b32 v206, v202, v205
    v_lshl_add_u32 v{VA}, v206, 4, v204
    v_xor_b32 v{VA+1}, 64, v{VA}
    v_xor_b32 v{VA+2}, 4096, v{VA}
    v_xor_b32 v{VA+3}, 4096, v{VA+1}
    v_bfe_u32 v206, v200, 2, 2           ; rr
    v_lshl_add_u32 v207, v202, 3, v206
    v_lshlrev_b32 v207, 8, v207
    v_and_b32 v208, 3, v200
    v_lshl_add_u32 v207, v208, 3, v207
    v_add_u32 v207, 16384, v207
    v_and_b32 v208, 1, v202
    v_lshl_or_b32 v206, v208, 2, v206    ; g
    s_lshl_b32 s37, s35, 2""")
    for ni in range(4):
        a(f"    s_add_u32 s38, s37, {ni}\n    v_xor_b32 v208, s38, v206\n    v_lshl_add_u32 v{VB+ni}, v208, 5, v207")
    for i in range(32, 64, 2): a(f"    v_mov_b64 {vr(ACC+i,2)}, 0")
    a("    s_waitcnt vmcnt(0)")
    for ni in range(4):
        for d in range(2):
            c = ACC + 4 * ni + 2 * d
            a(f"    v_lshlrev_b32 v{c}, 16, v{VBI+2*ni+d}\n    v_and_b32 v{c+1}, 0xffff0000, v{VBI+2*ni+d}")
            a(f"    v_mov_b64 {vr(c+16,2)}, {vr(c,2)}")
    stamp(a, 0)
    a("    s_barrier")
    stamp(a, 1)
    def g2_tail(mf):
        send = [m for j, m in enumerate(mf) if (j & 3) >= 2]; keep = [m for j, m in enumerate(mf) if (j & 3) < 2]
        for m in send: a(m)
        srd(a, 12, 4, 256 * 16384, off=XCH_OFF); srd(a, 16, 4, 256 * 512, off=FLG_OFF)
        a(keep[0])
        a(f"""    v_lshlrev_b32 v203, 4, v200
    s_lshl_b32 s36, s2, 14
    s_lshl_b32 s37, s33, 12
    s_add_u32 s36, s36, s37
    s_xor_b32 s45, s36, 0x4000""")
        a(keep[1])
        for q in range(4):
            for h in range(2):
                c = ACC + 32 + 8 * q + 4 * h
                a(f"    v_cvt_pk_bf16_f32 v{F0 + 4*q + 2*h}, v{c}, v{c+1}\n    v_cvt_pk_bf16_f32 v{F0 + 4*q + 2*h + 1}, v{c+2}, v{c+3}")
            a(f"    buffer_store_dwordx4 {vr(F0+4*q,4)}, v203, s[12:15], s36 offen offset:{q*1024} sc1")
            for m in keep[2 + 2*q: 4 + 2*q]: a(m)
    gemm_consumer_loop(a, L, 4, 4, NK, ACC, F0, F1, lambda mi, kh: (VA + 2 * (mi >> 1) + kh, (mi & 1) * 2048), VB, None, 8192, 1024, 41, 42, 40, STAGE, NS, tail=g2_tail, bar_gap=opt.g2_bar)
    stamp(a, 2)
    a(f"""    s_lshl_b32 s36, s2, 9
    s_lshl_b32 s37, s33, 7
    s_add_u32 s36, s36, s37
    s_xor_b32 s37, s36, 0x200
    v_mov_b32 v209, 1
    v_mov_b32 v210, 0
    v_lshrrev_b32 v206, 1, v202
    v_xor_b32 v206, v206, v201           ; (kg>>1) ^ r
    s_lshl_b32 s38, s34, 13              ; 32wm*256
    v_lshl_add_u32 v207, v201, 8, s38
    v_and_b32 v208, 1, v202
    v_lshl_add_u32 v207, v208, 3, v207
    s_lshl_b32 s39, s35, 3""")
    for ni in range(4):
        a(f"    s_add_u32 s38, s39, {2*ni}\n    v_xor_b32 v208, s38, v206\n    v_lshl_add_u32 v{VB+ni}, v208, 4, v207")
    a(f"""    s_mov_b64 exec, 1
    s_waitcnt vmcnt(0)
    buffer_store_dword v209, v210, s[16:19], s36 offen sc1""")
    stamp(a, 3)
    a(f"""{L}_poll:
    buffer_load_dword v211, v210, s[16:19], s37 offen sc1
    s_waitcnt vmcnt(0)
    v_readfirstlane_b32 s38, v211
    s_cmp_eq_u32 s38, 1
    s_cbranch_scc0 {L}_poll
    s_mov_b64 exec, -1""")
    stamp(a, 4)
    for q in range(4):
        a(f"    buffer_load_dwordx4 {vr(F1+4*q,4)}, v203, s[12:15], s45 offen offset:{q*1024} sc1")
    for j in range(8):
        mi, ni = j >> 2, j & 3
        c = ACC + 4 * j; p = F1 + 2 * j
        if j % 2 == 0: a(f"    s_waitcnt vmcnt({3 - j//2})")
        a(f"""    v_lshlrev_b32 v212, 16, v{p}
    v_and_b32 v213, 0xffff0000, v{p}
    v_lshlrev_b32 v214, 16, v{p+1}
    v_and_b32 v215, 0xffff0000, v{p+1}
    v_pk_add_f32 {vr(c,2)}, {vr(c,2)}, v[212:213]
    v_pk_add_f32 {vr(c+2,2)}, {vr(c+2,2)}, v[214:215]
    v_cvt_pk_bf16_f32 v{c}, v{c}, v{c+1}
    v_cvt_pk_bf16_f32 v{c+1}, v{c+2}, v{c+3}
    ds_write_b64 v{VB+ni}, {vr(c,2)} offset:{mi*4096}""")
    a("    s_waitcnt lgkmcnt(0)")
    stamp(a, 5)
    a(f"""{L}_epi2:
    s_barrier                            ; X3
    v_mbcnt_lo_u32_b32 v2, -1, 0
    v_mbcnt_hi_u32_b32 v2, -1, v2
    v_lshrrev_b32 v3, 4, v2
    s_lshl_b32 s36, s33, 2
    v_add_u32 v3, s36, v3                ; lr (j=0)
    v_xor_b32 v4, v3, v2
    v_and_b32 v4, 15, v4
    v_lshlrev_b32 v4, 4, v4
    v_lshl_add_u32 v3, v3, 8, v4
    ds_read_b128 v[16:19], v3
    ds_read_b128 v[20:23], v3 offset:8192""")
    srd(a, 12, 10, MB4)
    a("    s_waitcnt vmcnt(0)")
    for j in range(2):
        a(f"    s_waitcnt lgkmcnt({1-j})")
        for d in range(4):
            o = 16 + 4 * j + d; h = 232 + 4 * j + d
            a(f"""    v_lshlrev_b32 v8, 16, v{o}
    v_and_b32 v9, 0xffff0000, v{o}
    v_lshlrev_b32 v10, 16, v{h}
    v_and_b32 v11, 0xffff0000, v{h}
    v_pk_add_f32 v[8:9], v[8:9], v[10:11]
    v_cvt_pk_bf16_f32 v{o}, v8, v9""")
        a(f"    buffer_store_dwordx4 {vr(16+4*j,4)}, v230, s[12:15], s{43+j} offen")
    stamp(a, 6)
    if opt.stamps: a("    s_waitcnt vmcnt(0)")
    stamp(a, 7)
    stamp_end(a, kidx, 4, 33)
    a(f"{L}_end:\n    s_endpgm")
    return (name, 256, 512, NS * STAGE), (name, 256, 96)


def add_imm(a, dst, src, imm):
    a(f"    v_add_u32 v{dst}, {imm:#x}, v{src}")

def touch(a, srdreg, vtmp, vlane, soff_shift_mul, ninstr, dst):
    pass

def gen_p(a, kidx):
    name = "p_kernel"; L = "P"
    kernel_head(a, name)
    a(f"""    s_cmp_ge_u32 s2, 256
    s_cbranch_scc1 {L}_end
    s_load_dwordx4 s[4:7], s[0:1], {ARG['k']}      ; k, v
    s_load_dwordx4 s[8:11], s[0:1], {ARG['shift']}
    s_load_dwordx2 s[40:41], s[0:1], {ARG['ws']}""")
    stamp_begin(a)
    a(f"""    v_lshrrev_b32 v1, 6, v0
    v_and_b32 v2, 63, v0
    s_and_b32 s24, s2, 7             ; cb
    v_readfirstlane_b32 s33, v1
    s_lshr_b32 s25, s2, 3            ; rb
    v_and_b32 v3, 7, v2              ; cg
    v_lshrrev_b32 v4, 3, v2          ; rg
    s_lshl_b32 s26, s25, 17
    s_lshl_b32 s27, s24, 8
    s_add_u32 s26, s26, s27
    s_lshl_b32 s27, s33, 6
    s_add_u32 s26, s26, s27
    v_lshlrev_b32 v5, 14, v4
    v_lshl_add_u32 v5, v3, 3, v5
    v_add_u32 v5, s26, v5            ; vbase
    v_subrev_u32 v6, 6144, v5
    v_subrev_u32 v7, 2048, v5
    s_movk_i32 s44, 4096
    s_movk_i32 s45, 8192
    s_movk_i32 s46, 12288
    s_lshl_b32 s27, s24, 10
    s_lshl_b32 s28, s33, 8
    s_add_u32 s27, s27, s28
    v_lshlrev_b32 v8, 5, v3
    s_waitcnt lgkmcnt(0)""")
    srd(a, 12, 4, MB4); srd(a, 16, 6, MB4); srd(a, 20, 8, 8192)
    KR = 16; VR = 38; WR = 54
    so = ["0", "s44", "s45", "s46"]
    a(f"    buffer_load_dwordx4 {vr(WR,4)}, v8, s[20:23], s27 offen\n    buffer_load_dwordx4 {vr(WR+4,4)}, v8, s[20:23], s27 offen offset:16")
    a(f"    buffer_load_dwordx2 {vr(KR,2)}, v6, s[12:15], 0 offen nt\n    buffer_load_dwordx2 {vr(KR+2,2)}, v6, s[12:15], 0 offen offset:2048 nt\n    buffer_load_dwordx2 {vr(KR+4,2)}, v7, s[12:15], 0 offen nt")
    for j in range(8):
        a(f"    buffer_load_dwordx2 {vr(KR+6+2*j,2)}, v5, s[12:15], {so[j>>1]} offen offset:{(j&1)*2048} nt")
        a(f"    buffer_load_dwordx2 {vr(VR+2*j,2)}, v5, s[16:19], {so[j>>1]} offen offset:{(j&1)*2048} nt")
    srd(a, 28, 10, MB4); srd(a, 36, 40, 64 << 20)
    a(f"""    s_lshl_b32 s47, s2, 14
    v_lshlrev_b32 v9, 6, v0
    buffer_load_dword v10, v9, s[28:31], s47 offen
    s_mul_i32 s47, s2, 560
    s_add_u32 s47, s47, {FLG_OFF:#x}
    v_min_u32 v11, 139, v0
    v_lshlrev_b32 v11, 2, v11
    v_mov_b32 v12, 0
    buffer_store_dword v12, v11, s[36:39], s47 offen""")
    a(f"""    v_xor_b32 v13, 7, v4
    v_xor_b32 v13, v13, v3
    v_lshlrev_b32 v13, 4, v13
    v_lshl_add_u32 v13, v3, 9, v13
    s_lshl_b32 s47, s33, 12
    v_add_u32 v13, s47, v13
    v_lshl_add_u32 v14, v2, 4, s47
    v_lshrrev_b32 v15, 5, v2
    v_xor_b32 v15, v15, v3               ; x0 = (l&7)^(l>>5)
    v_lshlrev_b32 v9, 12, v4             ; (l>>3)*4096""")
    WF = 64; KF = 80; VF = 124; OF = 156; PK = 190
    stamp(a, 0)
    a("    s_waitcnt vmcnt(21)")
    for c in range(4):
        for j in range(4):
            src = WR + 2 * c + (j >> 1); d = WF + (c >> 1) * 8 + j * 2 + (c & 1)
            a(f"    v_lshlrev_b32 v{d}, 16, v{src}" if j % 2 == 0 else f"    v_and_b32 v{d}, 0xffff0000, v{src}")
    def unpack(dst, src):
        for p in range(2):
            a(f"    v_lshlrev_b32 v{dst+2*p}, 16, v{src+p}\n    v_and_b32 v{dst+2*p+1}, 0xffff0000, v{src+p}")
    a("    s_waitcnt vmcnt(18)")
    for r in range(3): unpack(KF + 4 * r, KR + 2 * r)
    for j in range(8):
        a(f"    s_waitcnt vmcnt({16 - 2*j})")
        unpack(KF + 4 * (3 + j), KR + 6 + 2 * j); unpack(VF + 4 * j, VR + 2 * j)
        for p in range(2):
            o = OF + 4 * j + 2 * p
            k = lambda r: vr(KF + 4 * r + 2 * p, 2)
            w = lambda t: vr(WF + p * 8 + 2 * t, 2)
            a(f"    v_pk_mul_f32 {vr(o,2)}, {k(j)}, {w(3)}")
            a(f"    v_pk_fma_f32 {vr(o,2)}, {k(j+1)}, {w(2)}, {vr(o,2)}")
            a(f"    v_pk_fma_f32 {vr(o,2)}, {k(j+2)}, {w(1)}, {vr(o,2)}")
            a(f"    v_pk_fma_f32 {vr(o,2)}, {k(j+3)}, {w(0)}, {vr(o,2)}")
            a(f"    v_pk_mul_f32 {vr(o,2)}, {vr(o,2)}, {vr(VF + 4*j + 2*p, 2)}")
    stamp(a, 1)
    for c in range(4):
        for d in range(4):
            a(f"    v_cvt_pk_bf16_f32 v{PK+4*c+d}, v{OF + 4*(7-2*d) + c}, v{OF + 4*(6-2*d) + c}")
        a(f"    ds_write_b128 v13, {vr(PK+4*c,4)} offset:{128*c}")
    a(f"""    s_lshl_b32 s47, s24, 19
    s_lshl_b32 s48, s33, 17
    s_add_u32 s47, s47, s48              ; (cb*128+w*32)*4096
    s_lshl_b32 s48, s25, 7
    s_sub_u32 s48, {3968 + KVR_OFF}, s48
    s_add_u32 s47, s47, s48
    s_waitcnt lgkmcnt(0)""")
    for i in range(4): a(f"    ds_read_b128 {vr(16+4*i,4)}, v14 offset:{1024*i}")
    for i in range(4):
        a(f"    v_xor_b32 v8, {2*i}, v15\n    v_lshl_add_u32 v{32+i}, v8, 4, v9")
    for i in range(4):
        a(f"    s_waitcnt lgkmcnt({3-i})\n    buffer_store_dwordx4 {vr(16+4*i,4)}, v{32+i}, s[36:39], s47 offen\n    s_add_u32 s47, s47, 32768")
    stamp(a, 2)
    if opt.stamps: a("    s_waitcnt vmcnt(0)")
    stamp(a, 3)
    stamp_end(a, kidx, 40, 33)
    a(f"{L}_end:\n    s_endpgm")
    return (name, 256, 256, 16384), (name, 256 if opt.stamps else 208, 96)

def gen_c(a, kidx):
    name = "c_kernel"; L = "C"
    CS = 4160; RO = 4 * CS; WSZ = 21248; STG = 4 * WSZ; SST = 4096 + 32
    kernel_head(a, name)
    a(f"""    s_cmp_ge_u32 s2, 256
    s_cbranch_scc1 {L}_end
    s_load_dwordx4 s[4:7], s[0:1], {ARG['ssmk']}
    s_load_dwordx2 s[40:41], s[0:1], {ARG['ws']}
    s_load_dwordx2 s[8:9], s[0:1], {ARG['q']}
    s_load_dwordx2 s[10:11], s[0:1], {ARG['w1']}
    s_load_dwordx2 s[42:43], s[0:1], {ARG['w2']}""")
    stamp_begin(a)
    a(f"""    v_lshrrev_b32 v1, 6, v0
    v_and_b32 v2, 63, v0
    s_and_b32 s24, s2, 7
    v_readfirstlane_b32 s33, v1
    s_lshl_b32 s24, s24, 5
    s_lshr_b32 s25, s2, 3
    s_add_u32 s24, s24, s25          ; cg
    s_lshl_b32 s25, s24, 2
    s_add_u32 s25, s25, s33          ; ch
    s_lshl_b32 s26, s25, 12          ; ch*4096
    s_mul_i32 s27, s33, {WSZ}        ; WB
    v_lshlrev_b32 v3, 4, v2          ; lane*16
    s_add_u32 m0, s27, {RO}
    s_lshr_b32 s28, s25, 1
    s_lshl_b32 s28, s28, 2
    s_waitcnt lgkmcnt(0)""")
    srd(a, 12, 4, MB4); srd(a, 16, 40, 64 << 20)
    FD = 16; FE = 32; FX = 48; TO = 52
    for i in range(4):
        a(f"    buffer_load_dwordx4 {vr(FD+4*i,4)}, v3, s[12:15], s26 offen offset:{1024*i}")
        a(f"    buffer_load_dwordx4 {vr(FE+4*i,4)}, v3, s[12:15], s26 offen offset:{1024*i+4}")
        a(f"    buffer_load_dword v{FX+i}, v3, s[12:15], s26 offen offset:{1024*i+20}")
    for i in range(4):
        a(f"    buffer_load_dwordx4 v3, s[16:19], s26 offen offset:{1024*i} lds")
    a(f"""    s_load_dword s29, s[6:7], s28
    v_add_u32 v4, s27, v3
    v_mov_b32 v60, 0
    v_mov_b32 v61, 0
    v_mov_b32 v62, 0
    v_mov_b32 v63, 0
    s_mov_b64 exec, 0x3fffffff
    ds_write_b128 v4, v[60:63] offset:{RO + 4096}
    s_mov_b64 exec, -1
    v_and_b32 v5, 15, v2             ; b / a
    v_lshrrev_b32 v6, 4, v2          ; kg
    v_add_u32 v7, 1, v5
    v_and_b32 v8, 3, v7
    v_mul_u32_u24 v8, {CS}, v8
    v_and_b32 v7, 28, v7
    v_lshl_add_u32 v8, v7, 1, v8
    v_lshl_add_u32 v8, v6, 4, v8
    v_add_u32 v8, s27, v8            ; vAT
    v_lshlrev_b32 v9, 5, v5
    v_sub_u32 v9, {RO + 480}, v9
    v_lshl_add_u32 v9, v6, 4, v9
    v_add_u32 v9, s27, v9            ; vBT""")
    stamp(a, 0)
    for i in range(4):
        D = FD + 4 * i; E = FE + 4 * i
        a(f"    s_waitcnt vmcnt({4 + 9 - 3*i})")
        a(f"    ds_write_b128 v4, {vr(D,4)} offset:{32 + 1024*i}")
        a(f"    ds_write_b128 v4, {vr(E,4)} offset:{2*CS + 32 + 1024*i}")
        t = TO + 8 * (i & 1)
        for k in range(4): a(f"    v_alignbit_b32 v{t+k}, v{E+k}, v{D+k}, 16")
        a(f"    ds_write_b128 v4, {vr(t,4)} offset:{CS + 32 + 1024*i}")
        for k in range(4): a(f"    v_alignbit_b32 v{t+4+k}, v{E+k+1 if k < 3 else FX+i}, v{E+k}, 16")
        a(f"    ds_write_b128 v4, {vr(t+4,4)} offset:{3*CS + 32 + 1024*i}")
        if i == 0:
            a(f"""    v_mov_b32 v68, 0
    v_mov_b32 v69, 0
    v_mov_b32 v70, 0
    v_lshlrev_b32 v71, 16, v{D}
    v_mov_b32 v72, 0
    v_mov_b32 v73, 0
    v_mov_b32 v74, 0
    v_mov_b32 v75, v{D}
    v_mov_b32 v76, 0
    v_mov_b32 v77, 0
    v_mov_b32 v78, v71
    v_mov_b32 v79, v{t}
    s_mov_b64 exec, 1
    ds_write_b128 v4, v[60:63]
    ds_write_b128 v4, v[60:63] offset:16
    ds_write_b128 v4, v[60:63] offset:{CS}
    ds_write_b128 v4, v[68:71] offset:{CS+16}
    ds_write_b128 v4, v[60:63] offset:{2*CS}
    ds_write_b128 v4, v[72:75] offset:{2*CS+16}
    ds_write_b128 v4, v[60:63] offset:{3*CS}
    ds_write_b128 v4, v[76:79] offset:{3*CS+16}
    s_mov_b64 exec, -1""")
    ACC = 80; F0 = 112; F1 = 176
    for i in range(0, 32, 2): a(f"    v_mov_b64 {vr(ACC+i,2)}, 0")
    a("    s_waitcnt vmcnt(0) lgkmcnt(0)")
    stamp(a, 1)
    srd(a, 20, 8, MB4); srd(a, 44, 10, 1024 * 7168); srd(a, 48, 42, 3584 * 2048)
    a(f"""    v_lshlrev_b32 v10, 7, v0
    s_lshl_b32 s34, s2, 14
    v_lshlrev_b32 v11, 6, v0
    buffer_load_dword v12, v11, s[20:23], s34 offen
    s_mul_i32 s34, s2, 28672
    v_cmp_gt_u32 vcc, 224, v0
    v_mov_b32 v11, 0x80000000
    s_nop 0
    v_cndmask_b32 v10, v11, v10, vcc
    {"buffer_load_dword v13, v10, s[44:47], s34 offen" if opt.c_pf1 else ""}
    {"buffer_load_dword v14, v10, s[48:51], s34 offen" if opt.c_pf2 else ""}
""")
    def reads(F, woff):
        r = []
        for u in range(8):
            r.append(f"    ds_read_b128 {vr(F+32+4*u,4)}, v9 offset:{3584 - 512*u + woff}")
            r.append(f"    ds_read_b64 {vr(F+4*u,2)}, v8 offset:{512*u + woff}")
            r.append(f"    ds_read_b64 {vr(F+4*u+2,2)}, v8 offset:{512*u + 8 + woff}")
        return r
    def mf(F):
        return [f"    v_mfma_f32_16x16x32_bf16 {vr(ACC+4*(u+v),4)}, {vr(F+4*u,4)}, {vr(F+32+4*v,4)}, {vr(ACC+4*(u+v),4)}" for u in range(8) for v in range(8 - u)]
    def weave(m, f):
        i = 0
        for x in m:
            a(x)
            if i < len(f): a(f[i]); i += 1
    for l in reads(F0, 0): a(l)
    a(f"    s_mov_b32 s35, 0\n{L}_loop:\n    s_waitcnt lgkmcnt(0)")
    weave(mf(F0), reads(F1, 64) + ["    v_add_u32 v8, 128, v8", "    v_add_u32 v9, 128, v9"])
    a("    s_waitcnt lgkmcnt(0)")
    weave(mf(F1), reads(F0, 0))
    a(f"    s_add_u32 s35, s35, 1\n    s_cmp_lt_u32 s35, 4\n    s_cbranch_scc1 {L}_loop\n    s_waitcnt lgkmcnt(0)")
    stamp(a, 2)
    a(f"""    v_lshlrev_b32 v16, 5, v5
    v_lshl_add_u32 v16, v6, 3, v16       ; 32a + 8g
    v_sub_u32 v17, {RO + 504}, v16
    v_add_u32 v17, s27, v17
    s_mul_i32 s34, s33, {SST}
    s_add_u32 s34, s34, {STG}
    v_add_u32 v18, s34, v16
    s_lshl_b32 s35, s29, 16
    s_and_b32 s36, s29, 0xffff0000
    s_bitcmp1_b32 s25, 0
    s_cselect_b32 s35, s36, s35          ; D as f32""")
    for n in range(8): a(f"    ds_read_b64 {vr(F0+2*n,2)}, v17 offset:{512*(7-n)}")
    for n in range(8):
        c = ACC + 4 * n; k = F0 + 2 * n
        a(f"""    s_waitcnt lgkmcnt({7-n})
    v_and_b32 v20, 0xffff0000, v{k+1}
    v_lshlrev_b32 v21, 16, v{k+1}
    v_and_b32 v22, 0xffff0000, v{k}
    v_lshlrev_b32 v23, 16, v{k}
    v_fmac_f32 v{c}, s35, v20
    v_fmac_f32 v{c+1}, s35, v21
    v_fmac_f32 v{c+2}, s35, v22
    v_fmac_f32 v{c+3}, s35, v23
    v_cvt_pk_bf16_f32 v{c}, v{c}, v{c+1}
    v_cvt_pk_bf16_f32 v{c+1}, v{c+2}, v{c+3}""")
    for n in range(8): a(f"    ds_write_b64 v18, {vr(ACC+4*n,2)} offset:{512*n}")
    a(f"""    v_bfe_u32 v19, v2, 2, 2              ; r
    v_mul_u32_u24 v19, {SST}, v19
    v_lshl_add_u32 v19, v6, 5, v19
    v_and_b32 v20, 3, v2
    v_lshl_add_u32 v19, v20, 3, v19
    s_lshl_b32 s34, s33, 10
    s_add_u32 s34, s34, {STG}
    v_add_u32 v19, s34, v19
    s_bfe_u32 s34, s24, 0x30002          ; key
    s_and_b32 s35, s24, 1
    s_lshl_b32 s35, s35, 2
    s_xor_b32 s34, s34, s35              ; kk
    v_bfe_u32 v20, v2, 1, 2
    v_xor_b32 v20, s34, v20
    v_lshlrev_b32 v20, 4, v20
    v_and_b32 v21, 1, v2
    v_lshl_add_u32 v20, v21, 3, v20
    v_lshrrev_b32 v21, 3, v2
    v_lshl_add_u32 v20, v21, 14, v20     ; voffset
    s_lshl_b32 s34, s33, 20              ; 64w*16384
    s_lshr_b32 s35, s24, 1
    s_lshl_b32 s35, s35, 7
    s_add_u32 s34, s34, s35
    s_add_u32 s34, s34, {Y2_OFF:#x}
    s_waitcnt lgkmcnt(0)
    s_barrier""")
    stamp(a, 3)
    for j in range(8): a(f"    ds_read_b64_tr_b16 {vr(F0+2*j,2)}, v19 offset:{128*j}")
    for j in range(8):
        a(f"    s_waitcnt lgkmcnt({7-j})\n    buffer_store_dwordx2 {vr(F0+2*j,2)}, v20, s[16:19], s34 offen\n    s_add_u32 s34, s34, 0x20000")
    stamp(a, 4)
    if opt.stamps: a("    s_waitcnt vmcnt(0)")
    stamp(a, 5)
    stamp_end(a, kidx, 40, 33)
    a(f"{L}_end:\n    s_endpgm")
    return (name, 256, 256, STG + 4 * SST), (name, 256 if opt.stamps else 240, 96)

def wave_sum(a, regs, tmps):
    nop = "    s_nop 0" if len(regs) == 2 else ""
    a("    s_nop 0")
    for ctl in ("quad_perm:[1,0,3,2]", "quad_perm:[2,3,0,1]", "row_half_mirror", "row_mirror"):
        for r in regs: a(f"    v_add_f32_dpp v{r}, v{r}, v{r} {ctl} row_mask:0xf bank_mask:0xf")
        a(nop)
    for sw in ("v_permlane16_swap_b32", "v_permlane32_swap_b32"):
        for r, t in zip(regs, tmps): a(f"    v_mov_b32 v{t}, v{r}")
        a(nop)
        for r, t in zip(regs, tmps): a(f"    {sw} v{t}, v{r}")
        for r, t in zip(regs, tmps): a(f"    v_add_f32 v{r}, v{r}, v{t}")

def r_body(a, XR, YR, XF, XC, YF, HP, xwait, ypre, hstore, hnstore, sInv=35, sEps=36, st0=1, xpost=None):
    def unpack(dst, src): a(f"    v_lshlrev_b32 v{dst}, 16, v{src}\n    v_and_b32 v{dst+1}, 0xffff0000, v{src}")
    def rnd(r): a(f"    v_cvt_pk_bf16_f32 v{r}, v{r}, v{r}\n    v_and_b32 v{r}, 0xffff0000, v{r}")
    S = [8, 9]; T = [10, 11]; M = [12, 14]; DM = [200, 202]; RI = [204, 206]; PS = [208, 210]
    def stats(src):
        for rho in range(2):
            a(f"    v_pk_add_f32 {vr(PS[rho],2)}, {vr(src(rho,0),2)}, {vr(src(rho,1),2)}")
        for i in range(2, 8):
            for rho in range(2): a(f"    v_pk_add_f32 {vr(PS[rho],2)}, {vr(PS[rho],2)}, {vr(src(rho,i),2)}")
        for rho in range(2): a(f"    v_add_f32 v{S[rho]}, v{PS[rho]}, v{PS[rho]+1}")
        wave_sum(a, S, T)
        for rho in range(2): a(f"    v_mul_f32 v{M[rho]}, s{sInv}, v{S[rho]}")
        for i in range(8):
            for rho in range(2):
                a(f"    v_pk_add_f32 {vr(XC + 16*rho + 2*i,2)}, {vr(src(rho,i),2)}, {vr(M[rho],2)} op_sel_hi:[1,0] neg_lo:[0,1] neg_hi:[0,1]")
        for rho in range(2): a(f"    v_pk_mul_f32 {vr(PS[rho],2)}, {vr(XC+16*rho,2)}, {vr(XC+16*rho,2)}")
        for i in range(1, 8):
            for rho in range(2): a(f"    v_pk_fma_f32 {vr(PS[rho],2)}, {vr(XC+16*rho+2*i,2)}, {vr(XC+16*rho+2*i,2)}, {vr(PS[rho],2)}")
        for rho in range(2): a(f"    v_add_f32 v{S[rho]}, v{PS[rho]}, v{PS[rho]+1}")
        wave_sum(a, S, T)
        for rho in range(2):
            a(f"    v_mov_b32 v{DM[rho]}, v{M[rho]}"); rnd(DM[rho]); a(f"    v_sub_f32 v{DM[rho]}, v{M[rho]}, v{DM[rho]}")
            a(f"    v_mul_f32 v{RI[rho]}, s{sInv}, v{S[rho]}"); rnd(RI[rho]); a(f"    v_add_f32 v{RI[rho]}, s{sEps}, v{RI[rho]}"); rnd(RI[rho])
        for rho in range(2): a(f"    v_sqrt_f32 v{RI[rho]}, v{RI[rho]}")
        a("    s_nop 0")
        for rho in range(2): rnd(RI[rho])
        for rho in range(2): a(f"    v_rcp_f32 v{RI[rho]}, v{RI[rho]}")
        for i in range(8):
            for rho in range(2):
                a(f"    v_pk_add_f32 {vr(XC + 16*rho + 2*i,2)}, {vr(XC + 16*rho + 2*i,2)}, {vr(DM[rho],2)} op_sel_hi:[1,0]")
    for rho in range(2):
        a(f"    s_waitcnt vmcnt({xwait(rho)})")
        if rho == 1 and xpost: xpost()
        for i in range(8): unpack(XF + 16 * rho + 2 * i, XR + 8 * rho + i)
    stamp(a, st0)
    stats(lambda rho, i: XF + 16 * rho + 2 * i)
    if ypre: ypre()
    a("    s_waitcnt lgkmcnt(0)")
    for rho in range(2):
        for i in range(8):
            p, d = i >> 2, i & 3
            unpack(YF + 16 * rho + 2 * i, YR + 8 * p + 4 * (d >> 1) + 2 * rho + (d & 1))
    for i in range(8):
        for rho in range(2):
            o = 16 * rho + 2 * i
            a(f"    v_pk_mul_f32 {vr(XC+o,2)}, {vr(XC+o,2)}, {vr(YF+o,2)}")
            a(f"    v_pk_fma_f32 {vr(XF+o,2)}, {vr(XC+o,2)}, {vr(RI[rho],2)}, {vr(XF+o,2)} op_sel_hi:[1,0,1]")
            a(f"    v_cvt_pk_bf16_f32 v{HP + 8*rho + i}, v{XF+o}, v{XF+o+1}")
    for q in range(4): hstore(q)
    for rho in range(2):
        for i in range(8): unpack(XF + 16 * rho + 2 * i, HP + 8 * rho + i)
    stamp(a, st0 + 1)
    stats(lambda rho, i: XF + 16 * rho + 2 * i)
    for rho in range(2):
        for i in range(8):
            o = 16 * rho + 2 * i
            a(f"    v_pk_mul_f32 {vr(XC+o,2)}, {vr(XC+o,2)}, {vr(RI[rho],2)} op_sel_hi:[1,0]")
            a(f"    v_cvt_pk_bf16_f32 v{XR + 8*rho + i}, v{XC+o}, v{XC+o+1}")
        for p in range(2): hnstore(rho, p)

def gen_r(a, kidx):
    name = "r_kernel"; L = "R"
    kernel_head(a, name)
    a(f"""    s_cmp_ge_u32 s2, 256
    s_cbranch_scc1 {L}_end
    s_load_dwordx2 s[4:5], s[0:1], {ARG['q']}
    s_load_dwordx2 s[40:41], s[0:1], {ARG['ws']}""")
    stamp_begin(a)
    a(f"""    v_lshrrev_b32 v1, 6, v0
    v_and_b32 v2, 63, v0
    s_and_b32 s24, s2, 7
    v_readfirstlane_b32 s33, v1
    s_lshl_b32 s24, s24, 5
    s_lshr_b32 s25, s2, 3
    s_add_u32 s24, s24, s25          ; sb
    v_lshlrev_b32 v3, 4, v2
    s_lshl_b32 s26, s24, 14
    s_lshl_b32 s27, s33, 12
    s_add_u32 s26, s26, s27
    s_mov_b32 m0, s27
    s_add_u32 s28, s26, {Y2_OFF:#x}
    s_waitcnt lgkmcnt(0)""")
    srd(a, 12, 4, MB4); srd(a, 16, 40, 64 << 20)
    XR = 16; YR = 32; XF = 48; XC = 80; YF = 112; HP = 144
    for i in range(4): a(f"    buffer_load_dwordx4 v3, s[16:19], s28 offen offset:{1024*i} lds")
    for i in range(4): a(f"    buffer_load_dwordx4 {vr(XR+4*i,4)}, v3, s[12:15], s26 offen offset:{1024*i}")
    a(f"""    v_bfe_u32 v4, v2, 1, 3
    v_xor_b32 v4, s33, v4
    v_lshlrev_b32 v4, 4, v4
    v_lshl_add_u32 v4, v2, 7, v4
    v_xor_b32 v5, 64, v4                 ; e=1
    s_lshl_b32 s29, s33, 1               ; 2w
    v_and_b32 v6, 7, v2
    v_xor_b32 v6, s29, v6
    v_lshrrev_b32 v7, 3, v2
    v_lshlrev_b32 v7, 14, v7
    v_lshl_add_u32 v6, v6, 4, v7         ; rho=0
    v_xor_b32 v7, 16, v6
    v_add_u32 v7, 128, v7
    s_lshr_b32 s30, s24, 4               ; mt
    s_lshl_b32 s30, s30, 18
    s_and_b32 s31, s24, 15
    s_lshl_b32 s31, s31, 10
    s_add_u32 s30, s30, s31
    s_lshl_b32 s31, s33, 8
    s_add_u32 s30, s30, s31
    s_add_u32 s30, s30, {HN_OFF:#x}
    s_add_u32 s31, s30, {8*16384}        ; p=1
    s_add_u32 s34, s26, {H_OFF:#x}       ; h soffset
    s_mov_b32 s35, 0x3a800000            ; 1/1024
    s_mov_b32 s36, 0x3727c5ac            ; 1e-5
    s_waitcnt vmcnt(4)
    s_barrier""")
    for p in range(2):
        for e in range(2): a(f"    ds_read_b128 {vr(YR + 8*p + 4*e, 4)}, v{4+e} offset:{8192*p}")
    stamp(a, 0)
    r_body(a, XR, YR, XF, XC, YF, HP, xwait=lambda rho: 2 - 2 * rho, ypre=None, hstore=lambda q: a(f"    buffer_store_dwordx4 {vr(HP+4*q,4)}, v3, s[16:19], s34 offen offset:{1024*q}"), hnstore=lambda rho, p: a(f"    buffer_store_dwordx4 {vr(XR + 8*rho + 4*p,4)}, v{6+rho}, s[16:19], s{30+p} offen"))
    stamp(a, 3)
    if opt.stamps: a("    s_waitcnt vmcnt(0)")
    stamp(a, 4)
    stamp_end(a, kidx, 40, 33)
    a(f"{L}_end:\n    s_endpgm")
    return (name, 256, 256, 16384), (name, 256 if opt.stamps else 216, 96)

KGEN = {"p": gen_p, "c": gen_c, "r": gen_r, "g1": gen_g1, "g2": gen_g2}

def build(kernels, extra=None):
    body = Asm(); launches = []; descs = []
    for i, k in enumerate(kernels):
        WS["base"] = opt.ws_base; WS["regs"] = (40,) if k in ("p", "c", "r", "pc") else (4,)
        l, d = KGEN[k](body, i)
        launches.append(l); descs.append(d)
    for d in descs: kernel_desc(body, *d)
    return file_head(launches) + body.text()

if __name__ == "__main__":
    opt.stamps = "--stamps" in sys.argv
    ks = [x for x in sys.argv[2:] if not x.startswith("--")]
    open(sys.argv[1], "w").write(build(ks))
```

```python
import sys
from asmlib import *
import gen
from gen import r_body, Y2_OFF, HN2_OFF, opt, stamp, stamp_begin, stamp_end, vr, gemm_consumer_loop, MB4, HN_OFF, H1_OFF, H1_SZ, H_OFF, XCH_OFF, FLG_OFF

GRP_XCC = 0x20000
GRP_RDY = 0x21000
GRP_RD0 = 0x22000
FLG_SZ = 0x23000
opt.wb_bg = 0

def gen_g12(a, kidx, eta=False):
    name = "rg_kernel" if eta else "g12_kernel"; L = "G"
    LA = 224; LB = 216; LB2 = 212
    ST1 = 49152; NS1 = 3; NK1 = 16
    NS2 = 4; NK2 = 28; B2 = 98304
    kernel_head(a, name)
    a(f"""    s_cmp_ge_u32 s2, 256
    s_cbranch_scc1 {L}_end
    s_load_dwordx2 s[4:5], s[0:1], {ARG['ws']}
    s_load_dwordx4 s[8:11], s[0:1], {ARG['w1']}    ; w1, b1
    s_load_dwordx4 s[48:51], s[0:1], {ARG['w2']}   ; w2, b2
    s_load_dwordx2 s[52:53], s[0:1], {ARG['out']}
    s_load_dwordx2 s[6:7], s[0:1], {ARG['q']}""")
    stamp_begin(a)
    a(f"""    v_lshrrev_b32 v1, 6, v0
    v_and_b32 v2, 63, v0
    s_and_b32 s24, s2, 7
    v_readfirstlane_b32 s33, v1
    s_lshr_b32 s25, s2, 3
    s_lshr_b32 s26, s24, 1
    s_lshl_b32 s26, s26, 2
    s_and_b32 s27, s25, 3
    s_add_u32 s26, s26, s27          ; mt
    s_and_b32 s54, s24, 1
    s_lshr_b32 s55, s25, 2
    s_lshl_b32 s56, s24, 2
    s_add_u32 s56, s56, s27
    s_lshl_b32 s56, s56, 7           ; group*128
    s_lshl_b32 s27, s54, 3
    s_add_u32 s27, s27, s55          ; nt
    s_and_b32 s29, s27, 1
    v_mov_b32 v240, v2               ; lane
    v_and_b32 v241, 15, v2           ; r
    v_lshrrev_b32 v242, 4, v2        ; kg
    v_lshlrev_b32 v243, 3, v242""")
    def loader_setup(first_loads):
        a(f"""    s_and_b32 s34, s33, 3            ; lw
    s_lshl_b32 s35, s34, 12          ; lw*4096
    v_lshl_add_u32 v{LA}, v2, 4, s35 ; A voffset
    s_lshl_b32 s30, s26, 18
    s_mul_i32 s31, s27, 448
    s_and_b32 s31, s31, 0xffffff80   ; B soffset
    s_mov_b32 s38, s35
    s_add_u32 s39, s35, {NS1*ST1}
    s_add_u32 s37, s35, 16384""")
        first_loads()
        a(f"""    v_lshrrev_b32 v8, 5, v2          ; hi
    s_lshl_b32 s36, s34, 4
    v_add_u32 v9, s36, v8            ; 16lw+hi
    s_movk_i32 s36, 7168
    v_mul_lo_u32 v9, v9, s36
    v_and_b32 v10, 1, v2
    v_lshl_add_u32 v9, v10, 4, v9    ; t0
    v_bfe_u32 v10, v2, 1, 4
    v_xor_b32 v10, v10, v8           ; x0""")
        srd(a, 16, 8, 1024 * 7168)
        for ci, c in enumerate((0, 2, 4, 6)):
            a(f"    v_xor_b32 v11, {c}, v10\n    v_lshl_add_u32 v11, v11, 5, v9")
            for i in range(8):
                if 2 * (i & 1) + 4 * (i >> 2) == c:
                    a(f"    v_add_u32 v{LB+i}, {2*i*7168 - (i&3)*1024}, v11")
    def xcc_publish():
        a(f"""    s_getreg_b32 s57, hwreg(HW_REG_XCC_ID)
    s_lshl_b32 s36, s55, 2
    s_and_b32 s57, s57, 15
    s_or_b32 s57, s57, 0x100
    v_mov_b32 v8, s57
    s_add_u32 s36, s36, s56
    s_add_u32 s36, s36, {GRP_XCC:#x}
    v_mov_b32 v9, 0
    buffer_store_dword v8, v9, s[60:63], s36 offen sc1""")
    def handoff(tag, rdy, vline, voff):
        a(f"""    v_readfirstlane_b32 s36, v{vline}
    s_add_u32 s46, s56, {rdy:#x}
    s_lshl_b32 s45, s55, 2
    v_cmp_eq_u32 vcc, s36, v{vline}
    s_add_u32 s45, s45, s46
    s_bitcmp1_b32 s36, 8
    s_cselect_b64 s[64:65], vcc, 0
    s_cmp_eq_u64 s[64:65], -1
    s_cselect_b32 s59, 1, 0
    s_cmp_lg_u32 s33, 4
    s_cbranch_scc1 {L}_poll{tag}
    v_mov_b32 v11, 1
    v_mov_b32 v24, 0
    s_cmp_eq_u32 s59, 1
    s_cbranch_scc1 {L}_sig{tag}
    buffer_wbl2 sc1
    s_waitcnt vmcnt(0)
    buffer_store_dword v11, v24, s[60:63], s45 offen sc1
    s_branch {L}_poll{tag}
{L}_sig{tag}:
    buffer_store_dword v11, v24, s[60:63], s45 offen
{L}_poll{tag}:
    buffer_load_dword v{vline}, v{voff}, s[60:63], s46 offen sc1
    s_waitcnt vmcnt(0)
    v_cmp_eq_u32 vcc, 1, v{vline}
    s_cmp_eq_u64 vcc, -1
    s_cbranch_scc0 {L}_poll{tag}
    s_cmp_eq_u32 s59, 1
    s_cbranch_scc1 {L}_go{tag}
    buffer_inv sc1
    s_waitcnt vmcnt(0)
{L}_go{tag}:""")
    def bg_wb(tag):
        if not opt.wb_bg: return
        if opt.wb_bg == 1:
            a(f"    s_or_b32 s36, s33, s55\n    s_cmp_lg_u32 s36, 0\n    s_cbranch_scc1 {L}_nowb{tag}")
        else:
            a(f"    s_cmp_lg_u32 s33, 0\n    s_cbranch_scc1 {L}_nowb{tag}")
        a(f"    buffer_wbl2 sc1\n{L}_nowb{tag}:")
    A1F = " sc1" if eta else ""
    if not eta:
        a(f"    s_cmp_lt_u32 s33, 4\n    s_cbranch_scc1 {L}_cons")
        def fl():
            a("    s_mov_b32 m0, s35\n    s_waitcnt lgkmcnt(0)")
            srd(a, 12, 4, MB4, off=HN_OFF)
            for i in range(4): a(f"    buffer_load_dwordx4 v{LA}, s[12:15], s30 offen offset:{i*1024} lds")
        loader_setup(fl)
    else:
        RST = 98304
        XR = 16; YR = 32; XF = 48; XC = 80; YF = 112; HP = 144
        def fl():
            a(f"""    s_lshr_b32 s68, s33, 2           ; half
    s_lshl_b32 s69, s55, 1
    s_add_u32 s69, s69, s68          ; sb & 15
    s_lshl_b32 s70, s26, 4
    s_add_u32 s70, s70, s69          ; sb
    s_lshl_b32 s70, s70, 14
    s_add_u32 s70, s70, s35          ; row0*2048
    v_lshlrev_b32 v3, 4, v2
    s_lshl_b32 s71, s68, 14
    s_add_u32 s71, s71, {RST}
    s_add_u32 m0, s71, s35
    s_add_u32 s36, s70, {Y2_OFF:#x}
    s_waitcnt lgkmcnt(0)""")
            srd(a, 72, 6, MB4); srd(a, 76, 4, 64 << 20)
            for i in range(4): a(f"    buffer_load_dwordx4 {vr(XR+4*i,4)}, v3, s[72:75], s70 offen offset:{1024*i}")
            for i in range(4): a(f"    buffer_load_dwordx4 v3, s[76:79], s36 offen offset:{1024*i} lds")
        loader_setup(fl)
        def b_half(st, tag):
            a(f"""    s_lshl_b32 s36, s35, 1
    s_lshl_b32 s45, s68, 12
    s_add_u32 s36, s36, s45
    s_add_u32 m0, s36, {st*ST1 + 16384}
    s_cmp_eq_u32 s68, 1
    s_cbranch_scc1 {L}_bh{tag}""")
            for i in range(4): a(f"    buffer_load_dwordx4 v{LB+i}, s[16:19], s31 offen offset:{i*1024} lds")
            a(f"    s_branch {L}_bj{tag}\n{L}_bh{tag}:")
            for i in range(4, 8): a(f"    buffer_load_dwordx4 v{LB+i}, s[16:19], s31 offen offset:{(i&3)*1024} lds")
            a(f"{L}_bj{tag}:\n    s_add_u32 s31, s31, {64*7168}")
        srd(a, 60, 4, FLG_SZ, off=FLG_OFF)
        a(f"""    v_bfe_u32 v4, v2, 1, 3
    v_xor_b32 v4, s34, v4
    v_lshlrev_b32 v4, 4, v4
    v_lshl_add_u32 v4, v2, 7, v4
    v_add_u32 v4, s71, v4
    v_xor_b32 v5, 64, v4                 ; e=1
    s_lshl_b32 s36, s34, 1               ; 2w
    v_and_b32 v6, 7, v2
    v_xor_b32 v6, s36, v6
    v_lshrrev_b32 v7, 3, v2
    v_lshlrev_b32 v7, 14, v7
    v_lshl_add_u32 v6, v6, 4, v7         ; rho=0
    v_xor_b32 v7, 16, v6
    v_add_u32 v7, 128, v7
    s_lshl_b32 s36, s54, 22
    s_add_u32 s30, s30, s36
    s_lshl_b32 s40, s69, 10
    s_lshl_b32 s41, s34, 8
    s_add_u32 s40, s40, s41
    s_add_u32 s40, s40, s30
    s_add_u32 s40, s40, {HN2_OFF:#x}
    s_add_u32 s41, s40, {8*16384}        ; p=1
    s_bfe_u32 s36, s55, 0x10001
    s_add_u32 s42, s70, {H_OFF:#x}
    s_cmp_eq_u32 s36, s54
    s_cselect_b32 s42, s42, 0x80000000
    s_mov_b32 s43, 0x3a800000            ; 1/1024
    s_mov_b32 s44, 0x3727c5ac            ; 1e-5""")
        def xpost():
            b_half(0, 0)
            a(f"    s_cmp_lg_u32 s33, 7\n    s_cbranch_scc1 {L}_noxcc")
            xcc_publish()
            a(f"{L}_noxcc:")
        def ypre():
            a("    s_waitcnt vmcnt(4)\n    s_barrier")
            for p in range(2):
                for e in range(2): a(f"    ds_read_b128 {vr(YR + 8*p + 4*e, 4)}, v{4+e} offset:{8192*p}")
            b_half(1, 1)
            if opt.w2pf == "r":
                srd(a, 20, 48, 3584 * 2048)
                a(f"""    s_mul_i32 s36, s2, 28672
    s_mul_i32 s45, s33, 3584
    s_add_u32 s36, s36, s45
    v_min_u32 v4, 27, v2
    v_lshlrev_b32 v4, 7, v4
    buffer_load_dword v229, v4, s[20:23], s36 offen""")
        r_body(a, XR, YR, XF, XC, YF, HP, xwait=lambda rho: 6 - 2 * rho, ypre=ypre, xpost=xpost,
               hstore=lambda q: a(f"    buffer_store_dwordx4 {vr(HP+4*q,4)}, v3, s[76:79], s42 offen offset:{1024*q}"),
               hnstore=lambda rho, p: a(f"    buffer_store_dwordx4 {vr(XR + 8*rho + 4*p,4)}, v{6+rho}, s[76:79], s{40+p} offen"),
               sInv=43, sEps=44, st0=17)
        a(f"""    v_and_b32 v4, 7, v2
    v_lshlrev_b32 v4, 2, v4
    s_add_u32 s36, s56, {GRP_XCC:#x}
    buffer_load_dword v5, v4, s[60:63], s36 offen sc1""")
        stamp(a, 19)
        a(f"""    s_waitcnt vmcnt(0)
    s_barrier
    s_cmp_lt_u32 s33, 4
    s_cbranch_scc1 {L}_cons""")
        srd(a, 12, 4, 2 * MB4, off=HN2_OFF)
        stamp(a, 20)
        handoff("0", GRP_RD0, 5, 4)
    def issue1(skipA=False):
        a("    s_mov_b32 m0, s38\n    s_add_u32 s36, s38, s37")
        if not skipA:
            for i in range(4): a(f"    buffer_load_dwordx4 v{LA}, s[12:15], s30 offen offset:{i*1024}{A1F} lds")
        a("    s_mov_b32 m0, s36\n    s_add_u32 s30, s30, 16384")
        for i in range(4): a(f"    buffer_load_dwordx4 v{LB+i}, s[16:19], s31 offen offset:{i*1024} lds")
        a(f"    s_add_u32 m0, s36, 4096\n    s_add_u32 s38, s38, {ST1}")
        for i in range(4, 8): a(f"    buffer_load_dwordx4 v{LB+i}, s[16:19], s31 offen offset:{(i&3)*1024} lds")
        a(f"    s_add_u32 s31, s31, {64*7168}\n    s_cmp_ge_u32 s38, s39\n    s_cselect_b32 s38, s35, s38")
    stamp(a, 0)
    if not eta:
        issue1(skipA=True)
        a(f"    s_mov_b32 m0, s38\n    s_nop 0")
        for i in range(4): a(f"    buffer_load_dwordx4 v{LA}, s[12:15], s30 offen offset:{i*1024} lds")
        a("    s_waitcnt vmcnt(4)\n    s_barrier")
        issue1(skipA=True); issue1()
    else:
        for st in range(2):
            a(f"    s_add_u32 m0, s35, {st*ST1}\n    s_nop 0")
            for i in range(4): a(f"    buffer_load_dwordx4 v{LA}, s[12:15], s30 offen offset:{i*1024} sc1 lds")
            a("    s_add_u32 s30, s30, 16384")
        a(f"    s_add_u32 s38, s35, {2*ST1}\n    s_waitcnt vmcnt(4)\n    s_barrier")
        issue1()
    stamp(a, 12)
    a(f"""    v_lshrrev_b32 v3, 4, v2          ; q4
    s_lshl_b32 s36, s34, 4
    v_add_u32 v4, s36, v3
    v_lshlrev_b32 v4, 11, v4
    v_and_b32 v5, 1, v2
    v_lshl_add_u32 v4, v5, 4, v4     ; t0
    v_bfe_u32 v5, v2, 1, 3
    v_xor_b32 v5, v5, v3             ; x0""")
    for c in (0, 4):
        a(f"    v_xor_b32 v6, {c}, v5\n    v_lshl_add_u32 v6, v6, 5, v4")
        for i in range(4):
            if 4 * (i >> 1) == c: a(f"    v_add_u32 v{LB2+i}, {4*i*2048 - i*1024}, v6")
    def spf():
        if opt.w2pf != "s": return
        for i in range(4): a(f"    s_load_dword s70, s[66:67], {128*i}")
        a("    s_add_u32 s66, s66, 512\n    s_addc_u32 s67, s67, 0")
    a(f"""    s_mul_i32 s58, s2, 28672
    s_mul_i32 s36, s34, 7168
    s_add_u32 s58, s58, s36
    s_add_u32 s66, s48, s58
    s_addc_u32 s67, s49, 0""")
    spf()
    a(f"    s_mov_b32 s40, 0\n{L}_l1:\n    s_waitcnt vmcnt(12)\n    s_barrier")
    issue1()
    spf()
    a(f"    s_add_u32 s40, s40, 1\n    s_cmp_lt_u32 s40, {NK1-NS1}\n    s_cbranch_scc1 {L}_l1")
    a("    s_waitcnt vmcnt(12)\n    s_barrier          ; b13")
    srd(a, 16, 48, 3584 * 2048)
    a(f"""    s_mul_i32 s31, s54, {1792*2048}
    s_lshl_b32 s36, s55, 8
    s_add_u32 s31, s31, s36          ; G2 B soffset
    s_mul_i32 s30, s26, 56
    s_mul_i32 s36, s54, 28
    s_add_u32 s30, s30, s36
    s_lshl_b32 s30, s30, 14          ; G2 A soffset
    s_add_u32 s38, s35, {B2}
    s_waitcnt vmcnt(0)
    s_barrier          ; b14""")
    for st in range(4):
        a(f"    s_add_u32 m0, s38, {st*16384}")
        if st: a(f"    s_add_u32 s31, s31, {64*2048}")
        else: a("    s_nop 0")
        for i in range(4): a(f"    buffer_load_dwordx4 v{LB2+i}, s[16:19], s31 offen offset:{i*1024} lds")
    a(f"    s_add_u32 s31, s31, {64*2048}\n    s_waitcnt lgkmcnt(0)\n    s_barrier          ; b15")
    stamp(a, 1)
    a(f"    s_branch {L}_epi1")
    ACC = 0; F0 = 112; F1 = 156; VA = 200; VB = 202; VBI = 210
    a(f"""{L}_cons:
    s_and_b32 s34, s33, 1            ; wm
    s_lshr_b32 s35, s33, 1           ; wn
    s_mul_i32 s36, s27, 224
    s_mul_i32 s37, s35, 112
    s_add_u32 s36, s36, s37
    s_lshl_b32 s36, s36, 1
    s_waitcnt lgkmcnt(0)""")
    srd(a, 16, 10, 7168)
    for ni in range(7):
        a(f"    buffer_load_dwordx2 {vr(VBI + 2*ni, 2)}, v243, s[16:19], s36 offen offset:{32*ni}")
    if not eta:
        srd(a, 60, 4, FLG_SZ, off=FLG_OFF)
    a(f"""    s_lshl_b32 s36, s34, 13          ; wm*64*128
    v_lshl_add_u32 v244, v241, 7, s36
    v_and_b32 v245, 7, v241          ; r7
    v_xor_b32 v246, v242, v245
    v_lshl_add_u32 v{VA}, v246, 4, v244
    v_xor_b32 v246, 4, v246
    v_lshl_add_u32 v{VA+1}, v246, 4, v244
    v_bfe_u32 v246, v240, 2, 2       ; rr
    v_lshl_add_u32 v247, v242, 3, v246   ; 8kg+rr
    v_lshlrev_b32 v247, 9, v247
    v_and_b32 v248, 3, v240          ; cc
    v_lshl_add_u32 v247, v248, 3, v247
    v_add_u32 v247, 16384, v247
    v_and_b32 v248, 1, v242
    v_lshl_or_b32 v246, v248, 2, v246    ; g
    s_mul_i32 s37, s35, 7
    s_lshl_b32 s38, s29, 1
    s_add_u32 s37, s37, s38          ; f0 = 2p + 7wn""")
    for ni in range(7):
        a(f"    s_add_u32 s38, s37, {ni}\n    v_xor_b32 v248, s38, v246\n    v_lshl_add_u32 v{VB+ni}, v248, 5, v247")
    srd(a, 20, 48, 3584 * 2048)
    a(f"""    s_mul_i32 s58, s2, 28672
    s_mul_i32 s39, s33, 7168
    s_add_u32 s58, s58, s39
    v_lshlrev_b32 v224, 7, v240
    v_mov_b32 v225, 0x80000000
    v_cmp_gt_u32 vcc, 4, v240
    s_waitcnt vmcnt(0)
    v_cndmask_b32 v224, v225, v224, vcc""")
    if not eta:
        a(f"    s_cmp_lg_u32 s33, 0\n    s_cbranch_scc1 {L}_noxcc")
        xcc_publish()
        a(f"{L}_noxcc:")
    for ni in range(7):
        for d in range(2):
            c = ACC + 4 * ni + 2 * d
            a(f"    v_lshlrev_b32 v{c}, 16, v{VBI+2*ni+d}\n    v_and_b32 v{c+1}, 0xffff0000, v{VBI+2*ni+d}")
    for mi in range(1, 4):
        for ni in range(7):
            for d in range(2):
                c = ACC + 4 * (mi * 7 + ni) + 2 * d
                a(f"    v_mov_b64 {vr(c,2)}, {vr(ACC + 4*ni + 2*d, 2)}")
    stamp(a, 0)
    a("    s_barrier")
    if eta: bg_wb(1)
    stamp(a, 1)
    def g1_tail(mf):
        for m in mf[:4]: a(m)
        a(f"""    v_lshrrev_b32 v246, 1, v242      ; kg>>1
    v_xor_b32 v246, v246, v245       ; (kg>>1)^r7
    v_and_b32 v247, 1, v242
    v_lshl_add_u32 v247, v247, 3, v244   ; m*128 + half*8""")
        for ni in range(7):
            for m in mf[4 + 3*ni: 7 + 3*ni]: a(m)
            a(f"""    s_add_u32 s38, s37, {ni}
    s_lshr_b32 s39, s38, 2
    s_lshl_b32 s39, s39, 14
    s_and_b32 s38, s38, 3
    s_lshl_b32 s38, s38, 1
    v_xor_b32 v248, s38, v246
    v_lshl_add_u32 v248, v248, 4, v247
    v_add_u32 v{VB+ni}, s39, v248""")
        for m in mf[25:]: a(m)
        for ni in range(7):
            for mi in range(4):
                c = ACC + 4 * (mi * 7 + ni)
                for x in range(4): a(f"    v_max_f32 v{c+x}, 0, v{c+x}")
                a(f"    v_pk_mul_f32 {vr(c,2)}, {vr(c,2)}, {vr(c,2)}\n    v_pk_mul_f32 {vr(c+2,2)}, {vr(c+2,2)}, {vr(c+2,2)}")
                a(f"    v_cvt_pk_bf16_f32 v{c}, v{c}, v{c+1}\n    v_cvt_pk_bf16_f32 v{c+1}, v{c+2}, v{c+3}")
                a(f"    ds_write_b64 v{VB+ni}, {vr(c,2)} offset:{mi*2048}")
    pf = {22: "    buffer_load_dword v226, v224, s[20:23], s58 offen\n    s_add_u32 s58, s58, 512"} if opt.w2pf is True else None
    gemm_consumer_loop(a, L + "1", 4, 7, NK1, ACC, F0, F1, lambda mi, kh: (VA + kh, mi * 2048), VB, None, 16384, 2048, 41, 42, 40, ST1, NS1, tail=g1_tail, bar_gap=opt.g1_bar, loop_extra=pf)
    a("    s_waitcnt lgkmcnt(0)")
    stamp(a, 2)
    a(f"""{L}_epi1:
    s_barrier                            ; E1
    v_mbcnt_lo_u32_b32 v2, -1, 0
    v_mbcnt_hi_u32_b32 v2, -1, v2
    s_lshl_b32 s36, s33, 10
    v_lshl_add_u32 v3, v2, 4, s36""")
    for j in range(8): a(f"    ds_read_b128 {vr(32+4*j,4)}, v3 offset:{8192*j}")
    a(f"""    v_lshrrev_b32 v4, 3, v2
    v_xor_b32 v4, v4, v2
    v_bfe_u32 v4, v4, 2, 1               ; c bit2
    v_cmp_eq_u32 vcc, 1, v4
    s_mul_i32 s36, s27, 7
    s_lshr_b32 s36, s36, 1               ; ks0
    s_mul_i32 s37, s26, 56
    s_add_u32 s36, s36, s37
    s_lshl_b32 s36, s36, 14
    v_mov_b32 v5, 0x80000000
    v_cndmask_b32 v6, v5, v3, vcc
    v_cndmask_b32 v7, v3, v5, vcc
    s_cmp_eq_u32 s29, 1
    s_cselect_b64 vcc, -1, 0""")
    srd(a, 12, 4, H1_SZ, off=H1_OFF)
    a("""    v_cndmask_b32 v6, v3, v6, vcc
    v_cndmask_b32 v7, v7, v3, vcc""")
    for j in range(8):
        vo = 6 if j < 2 else (7 if j >= 6 else 3)
        a(f"    s_waitcnt lgkmcnt({7-j})\n    buffer_store_dwordx4 {vr(32+4*j,4)}, v{vo}, s[12:15], s36 offen\n    s_add_u32 s36, s36, 8192")
    srd(a, 60, 4, FLG_SZ, off=FLG_OFF)
    a(f"""    v_and_b32 v8, 7, v2
    v_lshlrev_b32 v8, 2, v8
    s_add_u32 s37, s56, {GRP_XCC:#x}
    buffer_load_dword v9, v8, s[60:63], s37 offen sc1
    s_lshl_b32 s43, s26, 7
    s_lshl_b32 s44, s54, 5
    s_add_u32 s43, s43, s44
    s_lshl_b32 s44, s33, 2
    s_add_u32 s43, s43, s44
    s_lshl_b32 s43, s43, 11          ; row*2048
    s_lshl_b32 s44, s55, 8
    s_add_u32 s43, s43, s44
    v_lshrrev_b32 v230, 4, v2
    v_lshlrev_b32 v230, 11, v230
    v_and_b32 v231, 15, v2
    v_lshl_add_u32 v230, v231, 4, v230
    s_add_u32 s44, s43, {64*2048}""")
    srd(a, 20, 4, MB4, off=H_OFF)
    stamp(a, 3)
    a(f"""    s_waitcnt vmcnt(0)
    s_barrier
    buffer_load_dwordx4 v[232:235], v230, s[20:23], s43 offen
    buffer_load_dwordx4 v[236:239], v230, s[20:23], s44 offen
    s_cmp_lt_u32 s33, 4
    s_cbranch_scc1 {L}_cons2""")
    stamp(a, 4)
    handoff("2", GRP_RDY, 9, 8)
    stamp(a, 5)
    def issueA(st=None):
        for i in range(4): a(f"    buffer_load_dwordx4 v{LA}, s[12:15], s30 offen offset:{i*1024} sc1 lds")
    for st in range(4):
        a(f"    s_add_u32 m0, s35, {st*16384}")
        a("    s_nop 0" if st == 0 else "    s_add_u32 s30, s30, 16384")
        issueA()
        if st == 1: a("    s_waitcnt vmcnt(4)\n    s_barrier          ; c-1")
    a("    s_add_u32 s30, s30, 16384\n    s_mov_b32 s38, s35\n    s_add_u32 s39, s35, 65536")
    def issue2():
        a(f"    s_mov_b32 m0, s38\n    s_add_u32 s36, s38, {B2}")
        issueA()
        a("    s_mov_b32 m0, s36\n    s_add_u32 s30, s30, 16384\n    s_add_u32 s38, s38, 16384")
        for i in range(4): a(f"    buffer_load_dwordx4 v{LB2+i}, s[16:19], s31 offen offset:{i*1024} lds")
        a(f"    s_add_u32 s31, s31, {64*2048}\n    s_cmp_ge_u32 s38, s39\n    s_cselect_b32 s38, s35, s38")
    a("    s_waitcnt vmcnt(8)\n    s_barrier          ; c0"); issue2()
    a("    s_waitcnt vmcnt(12)\n    s_barrier          ; c1"); issue2()
    a(f"    s_mov_b32 s40, 2\n{L}_l2:\n    s_waitcnt vmcnt(16)\n    s_barrier")
    issue2()
    a(f"    s_add_u32 s40, s40, 1\n    s_cmp_lt_u32 s40, {NK2-NS2}\n    s_cbranch_scc1 {L}_l2")
    for k in range(NK2 - NS2, NK2):
        left = max(0, NK2 - 1 - (k + 1))
        if k + 1 < NK2: a(f"    s_waitcnt vmcnt({left*8})")
        a("    s_barrier")
        if opt.wb_bg and k == NK2 - NS2:
            pass
    stamp(a, 6)
    a(f"    s_branch {L}_epi2")
    ACC = 0; F0 = 64; F1 = 96; VA = 128; VB = 132; VBI = 136
    a(f"""{L}_cons2:
    s_lshl_b32 s36, s55, 8
    s_lshl_b32 s37, s35, 7
    s_add_u32 s36, s36, s37""")
    srd(a, 16, 50, 2048)
    for ni in range(4):
        a(f"    buffer_load_dwordx2 {vr(VBI + 2*ni, 2)}, v243, s[16:19], s36 offen offset:{32*ni}")
    a(f"""    s_lshl_b32 s36, s34, 13
    s_lshl_b32 s37, s54, 12
    s_add_u32 s36, s36, s37
    v_lshl_add_u32 v204, v241, 7, s36
    v_xor_b32 v206, v242, v245
    v_lshl_add_u32 v{VA}, v206, 4, v204
    v_xor_b32 v{VA+1}, 64, v{VA}
    v_xor_b32 v{VA+2}, 4096, v{VA}
    v_xor_b32 v{VA+3}, 4096, v{VA+1}
    v_bfe_u32 v206, v240, 2, 2           ; rr
    v_lshl_add_u32 v207, v242, 3, v206
    v_lshlrev_b32 v207, 8, v207
    v_and_b32 v208, 3, v240
    v_lshl_add_u32 v207, v208, 3, v207
    v_add_u32 v207, {B2}, v207
    v_and_b32 v208, 1, v242
    v_lshl_or_b32 v206, v208, 2, v206    ; g
    s_lshl_b32 s37, s35, 2""")
    for ni in range(4):
        a(f"    s_add_u32 s38, s37, {ni}\n    v_xor_b32 v208, s38, v206\n    v_lshl_add_u32 v{VB+ni}, v208, 5, v207")
    for i in range(32, 64, 2): a(f"    v_mov_b64 {vr(ACC+i,2)}, 0")
    a("    s_waitcnt vmcnt(0)")
    for ni in range(4):
        for d in range(2):
            c = ACC + 4 * ni + 2 * d
            a(f"    v_lshlrev_b32 v{c}, 16, v{VBI+2*ni+d}\n    v_and_b32 v{c+1}, 0xffff0000, v{VBI+2*ni+d}")
            a(f"    v_mov_b64 {vr(c+16,2)}, {vr(c,2)}")
    stamp(a, 4)
    a("    s_barrier          ; c-1")
    bg_wb(2)
    stamp(a, 5)
    def g2_tail(mf):
        send = [m for j, m in enumerate(mf) if (j & 3) >= 2]; keep = [m for j, m in enumerate(mf) if (j & 3) < 2]
        for m in send: a(m)
        srd(a, 12, 4, 256 * 16384, off=XCH_OFF)
        a(keep[0])
        a(f"""    v_lshlrev_b32 v203, 4, v240
    s_lshl_b32 s36, s2, 14
    s_lshl_b32 s37, s33, 12
    s_add_u32 s36, s36, s37
    s_xor_b32 s45, s36, 0x4000""")
        a(keep[1])
        for q in range(4):
            for h in range(2):
                c = ACC + 32 + 8 * q + 4 * h
                a(f"    v_cvt_pk_bf16_f32 v{F0 + 4*q + 2*h}, v{c}, v{c+1}\n    v_cvt_pk_bf16_f32 v{F0 + 4*q + 2*h + 1}, v{c+2}, v{c+3}")
            a(f"    buffer_store_dwordx4 {vr(F0+4*q,4)}, v203, s[12:15], s36 offen offset:{q*1024} sc1")
            for m in keep[2 + 2*q: 4 + 2*q]: a(m)
    gemm_consumer_loop(a, L + "2", 4, 4, NK2, ACC, F0, F1, lambda mi, kh: (VA + 2 * (mi >> 1) + kh, (mi & 1) * 2048), VB, None, 8192, 1024, 41, 42, 40, 16384, NS2, tail=g2_tail, bar_gap=opt.g2_bar)
    stamp(a, 6)
    a(f"""    s_lshl_b32 s36, s2, 9
    s_lshl_b32 s37, s33, 7
    s_add_u32 s36, s36, s37
    s_xor_b32 s37, s36, 0x200
    v_mov_b32 v209, 1
    v_mov_b32 v210, 0
    v_lshrrev_b32 v206, 1, v242
    v_xor_b32 v206, v206, v241           ; (kg>>1) ^ r
    s_lshl_b32 s38, s34, 13              ; 32wm*256
    v_lshl_add_u32 v207, v241, 8, s38
    v_and_b32 v208, 1, v242
    v_lshl_add_u32 v207, v208, 3, v207
    s_lshl_b32 s39, s35, 3""")
    for ni in range(4):
        a(f"    s_add_u32 s38, s39, {2*ni}\n    v_xor_b32 v208, s38, v206\n    v_lshl_add_u32 v{VB+ni}, v208, 4, v207")
    a(f"""    s_mov_b64 exec, 1
    s_waitcnt vmcnt(0)
    buffer_store_dword v209, v210, s[60:63], s36 offen sc1
{L}_poll:
    buffer_load_dword v211, v210, s[60:63], s37 offen sc1
    s_waitcnt vmcnt(0)
    v_readfirstlane_b32 s38, v211
    s_cmp_eq_u32 s38, 1
    s_cbranch_scc0 {L}_poll
    s_mov_b64 exec, -1""")
    stamp(a, 7)
    for q in range(4):
        a(f"    buffer_load_dwordx4 {vr(F1+4*q,4)}, v203, s[12:15], s45 offen offset:{q*1024} sc1")
    for j in range(8):
        mi, ni = j >> 2, j & 3
        c = ACC + 4 * j; p = F1 + 2 * j
        if j % 2 == 0: a(f"    s_waitcnt vmcnt({3 - j//2})")
        a(f"""    v_lshlrev_b32 v212, 16, v{p}
    v_and_b32 v213, 0xffff0000, v{p}
    v_lshlrev_b32 v214, 16, v{p+1}
    v_and_b32 v215, 0xffff0000, v{p+1}
    v_pk_add_f32 {vr(c,2)}, {vr(c,2)}, v[212:213]
    v_pk_add_f32 {vr(c+2,2)}, {vr(c+2,2)}, v[214:215]
    v_cvt_pk_bf16_f32 v{c}, v{c}, v{c+1}
    v_cvt_pk_bf16_f32 v{c+1}, v{c+2}, v{c+3}
    ds_write_b64 v{VB+ni}, {vr(c,2)} offset:{mi*4096}""")
    a("    s_waitcnt lgkmcnt(0)")
    stamp(a, 8)
    a(f"""{L}_epi2:
    s_barrier                            ; X3
    v_lshrrev_b32 v3, 4, v230
    v_and_b32 v2, 15, v3
    v_lshrrev_b32 v3, 11, v230           ; lane>>4
    s_lshl_b32 s36, s33, 2
    v_add_u32 v3, s36, v3                ; lr (j=0)
    v_xor_b32 v4, v3, v2
    v_and_b32 v4, 15, v4
    v_lshlrev_b32 v4, 4, v4
    v_lshl_add_u32 v3, v3, 8, v4
    ds_read_b128 v[16:19], v3
    ds_read_b128 v[20:23], v3 offset:8192""")
    srd(a, 12, 52, MB4)
    a("    s_waitcnt vmcnt(0)")
    for j in range(2):
        a(f"    s_waitcnt lgkmcnt({1-j})")
        for d in range(4):
            o = 16 + 4 * j + d; h = 232 + 4 * j + d
            a(f"""    v_lshlrev_b32 v8, 16, v{o}
    v_and_b32 v9, 0xffff0000, v{o}
    v_lshlrev_b32 v10, 16, v{h}
    v_and_b32 v11, 0xffff0000, v{h}
    v_pk_add_f32 v[8:9], v[8:9], v[10:11]
    v_cvt_pk_bf16_f32 v{o}, v8, v9""")
        a(f"    buffer_store_dwordx4 {vr(16+4*j,4)}, v230, s[12:15], s{43+j} offen")
    stamp(a, 9)
    if opt.stamps: a("    s_waitcnt vmcnt(0)")
    stamp(a, 10)
    if opt.stamps:
        a("    s_getreg_b32 s84, hwreg(HW_REG_XCC_ID)\n    v_writelane_b32 v250, s84, 60\n    v_writelane_b32 v250, s59, 61")
    stamp_end(a, kidx, 4, 33)
    a(f"{L}_end:\n    s_endpgm")
    return (name, 256, 512, 163840), (name, 256, 96)

gen.KGEN["g12"] = gen_g12
gen.KGEN["rg"] = lambda a, k: gen_g12(a, k, eta=True)
if __name__ == "__main__":
    opt.stamps = "--stamps" in sys.argv
    ks = [x for x in sys.argv[2:] if not x.startswith("--")]
    open(sys.argv[1], "w").write(gen.build(ks))
```

```python
import sys
from asmlib import *

KVR_OFF = 0x0000000
Y2_OFF  = 0x0400000
H_OFF   = 0x0800000
HN_OFF  = 0x0C00000
H1_OFF  = 0x1000000
H1_SZ   = 16 * 56 * 16384
XCH_OFF = 0x2000000
FLG_OFF = 0x2800000
STP_OFF = 0x3800000
HN2_OFF = 0x2C00000
MB4 = 4 << 20

class Opt:
    stamps = False
    noload = False
    w2pf = True
    rtstamp = False
    dbg = None
    kidx = 0
    ws_base = 0
    c_pf1 = True
    c_pf2 = False
    rd_per_gap = 2
    g1_bar = 24
    g2_bar = 18
opt = Opt()

def stamp(a, idx, vreg=250):
    if opt.dbg is not None:
        slot = opt.dbg.get((opt.kidx, idx))
        if slot is not None: dbg_write(a, slot)
        return
    if not opt.stamps: return
    a(f"    s_memtime s[84:85]\n    s_memrealtime s[86:87]\n    s_waitcnt lgkmcnt(0)\n    s_sub_u32 s84, s84, s80\n    v_writelane_b32 v{vreg}, s84, {idx}\n    v_writelane_b32 v{vreg}, s86, {32 + idx}")

_dbgn = [0]
def dbg_write(a, slot):
    _dbgn[0] += 1
    n = _dbgn[0]
    a(f"""    s_cmp_lg_u32 s2, 8
    s_cbranch_scc1 DBG_{n}
    s_cmp_lg_u32 s33, 0
    s_cbranch_scc1 DBG_{n}
    s_memrealtime s[84:85]
    s_waitcnt lgkmcnt(0)
    v_mov_b32 v250, s84
    v_mov_b32 v251, {slot*4}
    buffer_store_dword v250, v251, s[88:91], 0 offen
DBG_{n}:""")

def stamp_begin(a, vreg=250):
    if opt.dbg is not None:
        a(f"""    s_load_dwordx2 s[86:87], s[0:1], {ARG['dbg']}
    s_memrealtime s[82:83]
    s_waitcnt lgkmcnt(0)
    s_add_u32 s88, s86, {512*(opt.nk - 1 - opt.kidx)}
    s_addc_u32 s89, s87, 0
    s_mov_b32 s90, 256
    s_mov_b32 s91, 0x00020000
    v_mov_b32 v250, s82
    v_mov_b32 v251, {opt.dbg[(opt.kidx, 'b')]*4}
    s_cmp_lg_u32 s2, 8
    s_cbranch_scc1 DBGB_{opt.kidx}
    buffer_store_dword v250, v251, s[88:91], 0 offen
DBGB_{opt.kidx}:""")
        return
    if not opt.stamps: return
    a(f"    s_memtime s[80:81]\n    s_memrealtime s[82:83]\n    s_waitcnt lgkmcnt(0)\n    v_writelane_b32 v{vreg}, s82, 62")

def stamp_end(a, kidx, wsbase, wavereg, vreg=250):
    if opt.dbg is not None:
        a("    s_waitcnt vmcnt(0)")
        dbg_write(a, opt.dbg[(opt.kidx, 'e')])
        return
    if not opt.stamps: return
    a(f"""    s_memrealtime s[82:83]
    s_waitcnt lgkmcnt(0)
    v_writelane_b32 v{vreg}, s82, 63
    s_add_u32 s84, s{wsbase}, {STP_OFF + kidx * 0x80000:#x}
    s_addc_u32 s85, s{wsbase+1}, 0
    s_mov_b32 s86, 0x80000
    s_mov_b32 s87, 0x00020000
    s_lshl_b32 s88, s2, 3
    s_add_u32 s88, s88, s{wavereg}
    s_lshl_b32 s88, s88, 8
    v_mbcnt_lo_u32_b32 v{vreg+1}, -1, 0
    v_mbcnt_hi_u32_b32 v{vreg+1}, -1, v{vreg+1}
    v_lshlrev_b32 v{vreg+1}, 2, v{vreg+1}
    buffer_store_dword v{vreg}, v{vreg+1}, s[84:87], s88 offen""")

def vr(b, n):
    return f"v[{b}:{b+n-1}]" if n > 1 else f"v{b}"

def gemm_consumer_loop(a, L, MI, NI, nk, acc, F0, F1, vA, vB, a_imm, b_imm_kh, b_imm_t, s_slot, s_delta, s_k, stage, ns, tail=None, bar_gap=None, loop_extra=None, slot0=None):
    def reads(F, kh):
        r = []
        for mi in range(MI):
            reg, imm = vA(mi, kh)
            r.append(f"    ds_read_b128 {vr(F + 4*mi, 4)}, v{reg} offset:{imm}")
        for ni in range(NI):
            for t in range(2):
                r.append(f"    ds_read_b64_tr_b16 {vr(F + 4*MI + 4*ni + 2*t, 2)}, v{vB + ni} offset:{kh*b_imm_kh + t*b_imm_t}")
        return r
    def mfmas(F):
        r = []
        for ni in range(NI):
            for mi in range(MI):
                c = acc + 4 * (mi * NI + ni)
                r.append(f"    v_mfma_f32_16x16x32_bf16 {vr(c,4)}, {vr(F + 4*MI + 4*ni, 4)}, {vr(F + 4*mi, 4)}, {vr(c,4)}")
        return r
    def weave(mf, fill):
        i = 0
        for j, m in enumerate(mf):
            a(m)
            if i < len(fill):
                a(fill[i]); i += 1
        while i < len(fill):
            a(fill[i]); i += 1
    addr_regs = sorted(set(vA(mi, kh)[0] for mi in range(MI) for kh in range(2))) + [vB + i for i in range(NI)]
    def place(mf, items, per_gap, start=0, extra=None):
        gaps = [[] for _ in mf]
        g = start
        for j, it in enumerate(items):
            gaps[start + j // per_gap].append(it)
        for k, v in (extra or {}).items(): gaps[k] += v
        for m, gl in zip(mf, gaps):
            a(m)
            for x in gl: a(x)
    n = MI * NI
    nrd = MI + 2 * NI
    upd = [f"    v_add_u32 v{r}, s{s_delta}, v{r}" for r in addr_regs]
    late = bar_gap >= n
    wrapc = f"{(-(ns-1)*stage) & 0xffffffff:#x}"
    for l in reads(F0, 0): a(l)
    a(f"    s_add_u32 s{s_slot}, {slot0 or 0}, 1")
    a(f"    s_mov_b32 s{s_k}, 0\n    s_mov_b32 s47, {stage}\n    s_mov_b32 s{s_delta}, {stage}")
    a(f"{L}_loop:")
    ex = {}
    upg = 1 if nrd + len(upd) <= n - 1 else 2
    for j, u in enumerate(upd): ex.setdefault(nrd + j // upg, []).append(u)
    if not late:
        a("    s_waitcnt lgkmcnt(0)")
        ex.setdefault(bar_gap - 1, []).append(f"    s_add_u32 s{s_k}, s{s_k}, 1")
        ex.setdefault(bar_gap, []).append("    s_waitcnt lgkmcnt(0)\n    s_barrier")
        ex.setdefault(n - 1, []).append(f"    s_cmp_eq_u32 s{s_k}, {nk}\n    s_cbranch_scc1 {L}_tail")
        place(mfmas(F0), reads(F1, 1), 1, 0, ex)
        ex = {nrd: [f"    s_add_u32 s{s_slot}, s{s_slot}, 1\n    s_cmp_eq_u32 s{s_slot}, {ns}"],
              nrd + 1: [f"    s_cselect_b32 s{s_delta}, {wrapc}, s47\n    s_cselect_b32 s{s_slot}, 0, s{s_slot}"],
              n - 1: [f"    s_branch {L}_loop"]}
        for k, v in (loop_extra or {}).items(): ex.setdefault(k, []).append(v)
        place(mfmas(F1), reads(F0, 0), 1, 0, ex)
        a(f"{L}_tail:")
    else:
        bg = bar_gap - n
        a(f"    s_waitcnt lgkmcnt({2*(NI-1)})")
        for ni in range(1, NI):
            ex.setdefault(MI * ni - 1, []).append(f"    s_waitcnt lgkmcnt({2*(NI-1-ni) + min(nrd, MI*ni)})")
        ex.setdefault(n - 2, []).append(f"    s_add_u32 s{s_k}, s{s_k}, 1")
        ex.setdefault(n - 1, []).append(f"    s_cmp_eq_u32 s{s_k}, {nk}\n    s_cbranch_scc1 {L}_tail\n    s_waitcnt lgkmcnt({2*(NI-1)})")
        place(mfmas(F0), reads(F1, 1), 1, 0, ex)
        assert bg < MI and bg + 1 + nrd <= n
        ex = {0: [f"    s_add_u32 s{s_slot}, s{s_slot}, 1\n    s_cmp_eq_u32 s{s_slot}, {ns}"],
              1: [f"    s_cselect_b32 s{s_delta}, {wrapc}, s47\n    s_cselect_b32 s{s_slot}, 0, s{s_slot}"],
              n - 1: [f"    s_branch {L}_loop"]}
        ex.setdefault(bg, []).append("    s_waitcnt lgkmcnt(0)\n    s_barrier")
        place(mfmas(F1), reads(F0, 0), 1, bg + 1, ex)
        a(f"{L}_tail:\n    s_waitcnt lgkmcnt(0)\n    s_barrier")
    tail(mfmas(F1))

def gemm_loader_loop(a, L, nk, ns, per, issue, s_k):
    issue(); issue()
    a(f"    s_waitcnt vmcnt({per})\n    s_barrier")
    for s in range(ns - 2): issue()
    a(f"    s_mov_b32 s{s_k}, 0\n{L}_lloop:")
    a(f"    s_waitcnt vmcnt({(ns-2)*per})\n    s_barrier")
    if not opt.noload: issue()
    a(f"    s_add_u32 s{s_k}, s{s_k}, 1\n    s_cmp_lt_u32 s{s_k}, {nk-ns}\n    s_cbranch_scc1 {L}_lloop")
    for k in range(nk - ns, nk):
        left = max(0, nk - 1 - (k + 1))
        if k + 1 < nk: a(f"    s_waitcnt vmcnt({left*per})")
        a("    s_barrier")

def gen_g1(a, kidx):
    name = "g1_kernel"; L = "G1"
    STAGE = 49152; NS = 3; NK = 16
    kernel_head(a, name)
    a(f"""    s_cmp_ge_u32 s2, 256
    s_cbranch_scc1 {L}_end
    s_load_dwordx2 s[4:5], s[0:1], {ARG['ws']}
    s_load_dwordx2 s[6:7], s[0:1], {ARG['w1']}
    s_load_dwordx2 s[8:9], s[0:1], {ARG['b1']}
    s_load_dwordx2 s[10:11], s[0:1], {ARG['w2']}""")
    stamp_begin(a)
    a(f"""    v_lshrrev_b32 v1, 6, v0
    v_and_b32 v2, 63, v0
    s_and_b32 s24, s2, 7
    v_readfirstlane_b32 s33, v1
    s_lshr_b32 s25, s2, 3
    s_lshr_b32 s26, s24, 1
    s_lshl_b32 s26, s26, 2
    s_and_b32 s27, s25, 3
    s_add_u32 s26, s26, s27          ; mt
    s_and_b32 s27, s24, 1
    s_lshl_b32 s27, s27, 3
    s_lshr_b32 s28, s25, 2
    s_add_u32 s27, s27, s28          ; nt
    s_and_b32 s29, s27, 1
    s_cmp_lt_u32 s33, 4
    s_cbranch_scc1 {L}_cons""")
    a(f"""    s_sub_u32 s34, s33, 4            ; lw
    s_lshl_b32 s35, s34, 12          ; lw*4096
    v_lshl_add_u32 v10, v2, 4, s35   ; A voffset
    s_lshl_b32 s30, s26, 18
    s_mul_i32 s31, s27, 448
    s_and_b32 s31, s31, 0xffffff80   ; B soffset
    s_mov_b32 s38, s35
    s_add_u32 s39, s35, {NS*STAGE}
    s_add_u32 s37, s35, 16384
    v_lshrrev_b32 v3, 5, v2          ; hi
    s_lshl_b32 s36, s34, 4
    v_add_u32 v4, s36, v3            ; 16lw+hi
    s_movk_i32 s36, 7168
    v_mul_lo_u32 v4, v4, s36
    v_and_b32 v5, 1, v2
    v_lshl_add_u32 v4, v5, 4, v4     ; t0
    v_bfe_u32 v5, v2, 1, 4
    v_xor_b32 v5, v5, v3             ; x0
    s_waitcnt lgkmcnt(0)""")
    srd(a, 12, 4, MB4, off=HN_OFF); srd(a, 16, 6, 1024 * 7168)
    for ci, c in enumerate((0, 2, 4, 6)):
        a(f"    v_xor_b32 v6, {c}, v5\n    v_lshl_add_u32 v6, v6, 5, v4")
        for i in range(8):
            if 2 * (i & 1) + 4 * (i >> 2) == c:
                a(f"    v_add_u32 v{12+i}, {2*i*7168 - (i&3)*1024}, v6")
    def issue():
        a("    s_mov_b32 m0, s38\n    s_add_u32 s36, s38, s37")
        for i in range(4): a(f"    buffer_load_dwordx4 v10, s[12:15], s30 offen offset:{i*1024} lds")
        a("    s_mov_b32 m0, s36\n    s_add_u32 s30, s30, 16384")
        for i in range(4): a(f"    buffer_load_dwordx4 v{12+i}, s[16:19], s31 offen offset:{i*1024} lds")
        a(f"    s_add_u32 m0, s36, 4096\n    s_add_u32 s38, s38, {STAGE}")
        for i in range(4, 8): a(f"    buffer_load_dwordx4 v{12+i}, s[16:19], s31 offen offset:{(i&3)*1024} lds")
        a(f"    s_add_u32 s31, s31, {64*7168}\n    s_cmp_ge_u32 s38, s39\n    s_cselect_b32 s38, s35, s38")
    stamp(a, 0)
    gemm_loader_loop(a, L, NK, NS, 12, issue, 40)
    stamp(a, 1)
    a(f"    s_branch {L}_epi2")
    ACC = 0; F0 = 112; F1 = 156; VA = 200; VB = 202; VBI = 210
    a(f"""{L}_cons:
    v_mov_b32 v240, v2               ; lane
    s_and_b32 s34, s33, 1            ; wm
    s_lshr_b32 s35, s33, 1           ; wn
    v_and_b32 v241, 15, v240         ; r
    v_lshrrev_b32 v242, 4, v240      ; kg
    s_mul_i32 s36, s27, 224
    s_mul_i32 s37, s35, 112
    s_add_u32 s36, s36, s37
    s_lshl_b32 s36, s36, 1
    v_lshlrev_b32 v243, 3, v242
    s_waitcnt lgkmcnt(0)""")
    srd(a, 16, 8, 7168)
    for ni in range(7):
        a(f"    buffer_load_dwordx2 {vr(VBI + 2*ni, 2)}, v243, s[16:19], s36 offen offset:{32*ni}")
    a(f"""    s_lshl_b32 s36, s34, 13          ; wm*64*128
    v_lshl_add_u32 v244, v241, 7, s36
    v_and_b32 v245, 7, v241          ; r7
    v_xor_b32 v246, v242, v245
    v_lshl_add_u32 v{VA}, v246, 4, v244
    v_xor_b32 v246, 4, v246
    v_lshl_add_u32 v{VA+1}, v246, 4, v244
    v_bfe_u32 v246, v240, 2, 2       ; rr
    v_lshl_add_u32 v247, v242, 3, v246   ; 8kg+rr
    v_lshlrev_b32 v247, 9, v247
    v_and_b32 v248, 3, v240          ; cc
    v_lshl_add_u32 v247, v248, 3, v247
    v_add_u32 v247, 16384, v247
    v_and_b32 v248, 1, v242
    v_lshl_or_b32 v246, v248, 2, v246    ; g
    s_mul_i32 s37, s35, 7
    s_lshl_b32 s38, s29, 1
    s_add_u32 s37, s37, s38          ; f0 = 2p + 7wn""")
    for ni in range(7):
        a(f"    s_add_u32 s38, s37, {ni}\n    v_xor_b32 v248, s38, v246\n    v_lshl_add_u32 v{VB+ni}, v248, 5, v247")
    a("    s_waitcnt vmcnt(0)")
    for ni in range(7):
        for d in range(2):
            c = ACC + 4 * ni + 2 * d
            a(f"    v_lshlrev_b32 v{c}, 16, v{VBI+2*ni+d}\n    v_and_b32 v{c+1}, 0xffff0000, v{VBI+2*ni+d}")
    for mi in range(1, 4):
        for ni in range(7):
            for d in range(2):
                c = ACC + 4 * (mi * 7 + ni) + 2 * d
                a(f"    v_mov_b64 {vr(c,2)}, {vr(ACC + 4*ni + 2*d, 2)}")
    srd(a, 20, 10, 3584 * 2048)
    a(f"""    s_mul_i32 s38, s2, 28672
    s_mul_i32 s39, s33, 7168
    s_add_u32 s38, s38, s39
    v_lshlrev_b32 v248, 7, v240
    {"buffer_load_dword v249, v248, s[20:23], s38 offen" if opt.w2pf else ""}""")
    stamp(a, 0)
    a("    s_barrier")
    stamp(a, 1)
    def g1_tail(mf):
        pre = [f"""    v_lshrrev_b32 v246, 1, v242      ; kg>>1
    v_xor_b32 v246, v246, v245       ; (kg>>1)^r7
    v_and_b32 v247, 1, v242
    v_lshl_add_u32 v247, v247, 3, v244   ; m*128 + half*8"""]
        def addr(ni):
            return f"""    s_add_u32 s38, s37, {ni}
    s_lshr_b32 s39, s38, 2
    s_lshl_b32 s39, s39, 14
    s_and_b32 s38, s38, 3
    s_lshl_b32 s38, s38, 1
    v_xor_b32 v248, s38, v246
    v_lshl_add_u32 v248, v248, 4, v247
    v_add_u32 v{VB+ni}, s39, v248"""
        def act(ni, mi):
            c = ACC + 4 * (mi * 7 + ni)
            r = [f"    v_max_f32 v{c+x}, 0, v{c+x}" for x in range(4)]
            r += [f"    v_pk_mul_f32 {vr(c,2)}, {vr(c,2)}, {vr(c,2)}", f"    v_pk_mul_f32 {vr(c+2,2)}, {vr(c+2,2)}, {vr(c+2,2)}",
                  f"    v_cvt_pk_bf16_f32 v{c}, v{c}, v{c+1}", f"    v_cvt_pk_bf16_f32 v{c+1}, v{c+2}, v{c+3}",
                  f"    ds_write_b64 v{VB+ni}, {vr(c,2)} offset:{mi*2048}"]
            return "\n".join(r)
        a(mf[0]); a(pre[0])
        for j in range(1, 8):
            a(mf[j]); a(addr(j - 1))
        for ni in range(7):
            for mi in range(4):
                j = 4 * (ni + 2) + mi
                if j < 28: a(mf[j])
                a(act(ni, mi))
    gemm_consumer_loop(a, L, 4, 7, NK, ACC, F0, F1, lambda mi, kh: (VA + kh, mi * 2048), VB, None, 16384, 2048, 41, 42, 40, STAGE, NS, tail=g1_tail, bar_gap=opt.g1_bar)
    a("    s_waitcnt lgkmcnt(0)")
    stamp(a, 3)
    a(f"""{L}_epi2:
    s_barrier
    v_mbcnt_lo_u32_b32 v2, -1, 0
    v_mbcnt_hi_u32_b32 v2, -1, v2
    s_lshl_b32 s36, s33, 10
    v_lshl_add_u32 v3, v2, 4, s36
    v_lshrrev_b32 v4, 3, v2
    v_xor_b32 v4, v4, v2
    v_bfe_u32 v4, v4, 2, 1               ; c bit2
    v_cmp_eq_u32 vcc, 1, v4
    s_mul_i32 s36, s27, 7
    s_lshr_b32 s36, s36, 1               ; ks0
    s_mul_i32 s37, s26, 56
    s_add_u32 s36, s36, s37
    s_lshl_b32 s36, s36, 14
    v_mov_b32 v5, 0x80000000
    v_cndmask_b32 v6, v5, v3, vcc
    v_cndmask_b32 v7, v3, v5, vcc
    s_cmp_eq_u32 s29, 1
    s_cselect_b64 vcc, -1, 0""")
    srd(a, 12, 4, H1_SZ, off=H1_OFF)
    a("""    v_cndmask_b32 v6, v3, v6, vcc
    v_cndmask_b32 v7, v7, v3, vcc""")
    for j in range(8): a(f"    ds_read_b128 {vr(16+4*j,4)}, v3 offset:{8192*j}")
    for j in range(8):
        vo = 6 if j < 2 else (7 if j >= 6 else 3)
        a(f"    s_waitcnt lgkmcnt({7-j})\n    buffer_store_dwordx4 {vr(16+4*j,4)}, v{vo}, s[12:15], s36 offen\n    s_add_u32 s36, s36, 8192")
    stamp(a, 4)
    if opt.stamps: a("    s_waitcnt vmcnt(0)")
    stamp(a, 5)
    stamp_end(a, kidx, 4, 33)
    a(f"{L}_end:\n    s_endpgm")
    return (name, 256, 512, NS * STAGE), (name, 256, 96)

def gen_g2(a, kidx):
    name = "g2_kernel"; L = "G2"
    STAGE = 32768; NS = 4; NK = 28
    kernel_head(a, name)
    a(f"""    s_cmp_ge_u32 s2, 256
    s_cbranch_scc1 {L}_end
    s_load_dwordx2 s[4:5], s[0:1], {ARG['ws']}
    s_load_dwordx2 s[6:7], s[0:1], {ARG['w2']}
    s_load_dwordx2 s[8:9], s[0:1], {ARG['b2']}
    s_load_dwordx2 s[10:11], s[0:1], {ARG['out']}""")
    stamp_begin(a)
    a(f"""    v_lshrrev_b32 v1, 6, v0
    v_and_b32 v2, 63, v0
    s_and_b32 s24, s2, 7
    v_readfirstlane_b32 s33, v1
    s_lshr_b32 s25, s2, 3
    s_and_b32 s29, s24, 1            ; kh
    s_lshr_b32 s26, s24, 1
    s_lshl_b32 s26, s26, 2
    s_and_b32 s27, s25, 3
    s_add_u32 s26, s26, s27          ; mt
    s_lshr_b32 s27, s25, 2           ; nt
    s_lshl_b32 s43, s26, 7
    s_lshl_b32 s44, s29, 5
    s_add_u32 s43, s43, s44
    s_lshl_b32 s44, s33, 2
    s_add_u32 s43, s43, s44
    s_lshl_b32 s43, s43, 11          ; row*2048
    s_lshl_b32 s44, s27, 8
    s_add_u32 s43, s43, s44
    v_lshrrev_b32 v230, 4, v2
    v_lshlrev_b32 v230, 11, v230
    v_and_b32 v231, 15, v2
    v_lshl_add_u32 v230, v231, 4, v230
    s_add_u32 s44, s43, {64*2048}
    s_waitcnt lgkmcnt(0)""")
    srd(a, 20, 4, MB4, off=H_OFF)
    a("""    buffer_load_dwordx4 v[232:235], v230, s[20:23], s43 offen
    buffer_load_dwordx4 v[236:239], v230, s[20:23], s44 offen""")
    a(f"""    s_cmp_lt_u32 s33, 4
    s_cbranch_scc1 {L}_cons""")
    a(f"""    s_sub_u32 s34, s33, 4            ; lw
    s_lshl_b32 s35, s34, 12          ; lw*4096
    v_lshl_add_u32 v10, v2, 4, s35   ; A voffset
    s_mul_i32 s30, s26, 56
    s_mul_i32 s36, s29, 28
    s_add_u32 s30, s30, s36
    s_lshl_b32 s30, s30, 14          ; A soffset
    s_mul_i32 s31, s29, {1792*2048}
    s_lshl_b32 s36, s27, 8
    s_add_u32 s31, s31, s36          ; B soffset
    s_mov_b32 s38, s35
    s_add_u32 s39, s35, {NS*STAGE}
    v_lshrrev_b32 v3, 4, v2          ; q4
    s_lshl_b32 s36, s34, 4
    v_add_u32 v4, s36, v3
    v_lshlrev_b32 v4, 11, v4
    v_and_b32 v5, 1, v2
    v_lshl_add_u32 v4, v5, 4, v4     ; t0
    v_bfe_u32 v5, v2, 1, 3
    v_xor_b32 v5, v5, v3             ; x0""")
    srd(a, 12, 4, H1_SZ, off=H1_OFF); srd(a, 16, 6, 3584 * 2048)
    for c in (0, 4):
        a(f"    v_xor_b32 v6, {c}, v5\n    v_lshl_add_u32 v6, v6, 5, v4")
        for i in range(4):
            if 4 * (i >> 1) == c:
                a(f"    v_add_u32 v{12+i}, {4*i*2048 - i*1024}, v6")
    def issue():
        a("    s_mov_b32 m0, s38\n    s_add_u32 s36, s38, 16384")
        for i in range(4): a(f"    buffer_load_dwordx4 v10, s[12:15], s30 offen offset:{i*1024} lds")
        a(f"    s_mov_b32 m0, s36\n    s_add_u32 s30, s30, 16384\n    s_add_u32 s38, s38, {STAGE}")
        for i in range(4): a(f"    buffer_load_dwordx4 v{12+i}, s[16:19], s31 offen offset:{i*1024} lds")
        a(f"    s_add_u32 s31, s31, {64*2048}\n    s_cmp_ge_u32 s38, s39\n    s_cselect_b32 s38, s35, s38")
    stamp(a, 0)
    gemm_loader_loop(a, L, NK, NS, 8, issue, 40)
    stamp(a, 1)
    a(f"    s_branch {L}_epi2")
    ACC = 0; F0 = 64; F1 = 96; VA = 128; VB = 132; VBI = 136
    a(f"""{L}_cons:
    v_mov_b32 v200, v2               ; lane
    s_and_b32 s34, s33, 1            ; wm
    s_lshr_b32 s35, s33, 1           ; wn
    v_and_b32 v201, 15, v200         ; r
    v_lshrrev_b32 v202, 4, v200      ; kg
    s_lshl_b32 s36, s27, 8
    s_lshl_b32 s37, s35, 7
    s_add_u32 s36, s36, s37
    v_lshlrev_b32 v203, 3, v202""")
    srd(a, 16, 8, 2048)
    for ni in range(4):
        a(f"    buffer_load_dwordx2 {vr(VBI + 2*ni, 2)}, v203, s[16:19], s36 offen offset:{32*ni}")
    a(f"""    s_lshl_b32 s36, s34, 13
    s_lshl_b32 s37, s29, 12
    s_add_u32 s36, s36, s37
    v_lshl_add_u32 v204, v201, 7, s36
    v_and_b32 v205, 7, v201              ; r7
    v_xor_b32 v206, v202, v205
    v_lshl_add_u32 v{VA}, v206, 4, v204
    v_xor_b32 v{VA+1}, 64, v{VA}
    v_xor_b32 v{VA+2}, 4096, v{VA}
    v_xor_b32 v{VA+3}, 4096, v{VA+1}
    v_bfe_u32 v206, v200, 2, 2           ; rr
    v_lshl_add_u32 v207, v202, 3, v206
    v_lshlrev_b32 v207, 8, v207
    v_and_b32 v208, 3, v200
    v_lshl_add_u32 v207, v208, 3, v207
    v_add_u32 v207, 16384, v207
    v_and_b32 v208, 1, v202
    v_lshl_or_b32 v206, v208, 2, v206    ; g
    s_lshl_b32 s37, s35, 2""")
    for ni in range(4):
        a(f"    s_add_u32 s38, s37, {ni}\n    v_xor_b32 v208, s38, v206\n    v_lshl_add_u32 v{VB+ni}, v208, 5, v207")
    for i in range(32, 64, 2): a(f"    v_mov_b64 {vr(ACC+i,2)}, 0")
    a("    s_waitcnt vmcnt(0)")
    for ni in range(4):
        for d in range(2):
            c = ACC + 4 * ni + 2 * d
            a(f"    v_lshlrev_b32 v{c}, 16, v{VBI+2*ni+d}\n    v_and_b32 v{c+1}, 0xffff0000, v{VBI+2*ni+d}")
            a(f"    v_mov_b64 {vr(c+16,2)}, {vr(c,2)}")
    stamp(a, 0)
    a("    s_barrier")
    stamp(a, 1)
    def g2_tail(mf):
        send = [m for j, m in enumerate(mf) if (j & 3) >= 2]; keep = [m for j, m in enumerate(mf) if (j & 3) < 2]
        for m in send: a(m)
        srd(a, 12, 4, 256 * 16384, off=XCH_OFF); srd(a, 16, 4, 256 * 512, off=FLG_OFF)
        a(keep[0])
        a(f"""    v_lshlrev_b32 v203, 4, v200
    s_lshl_b32 s36, s2, 14
    s_lshl_b32 s37, s33, 12
    s_add_u32 s36, s36, s37
    s_xor_b32 s45, s36, 0x4000""")
        a(keep[1])
        for q in range(4):
            for h in range(2):
                c = ACC + 32 + 8 * q + 4 * h
                a(f"    v_cvt_pk_bf16_f32 v{F0 + 4*q + 2*h}, v{c}, v{c+1}\n    v_cvt_pk_bf16_f32 v{F0 + 4*q + 2*h + 1}, v{c+2}, v{c+3}")
            a(f"    buffer_store_dwordx4 {vr(F0+4*q,4)}, v203, s[12:15], s36 offen offset:{q*1024} sc1")
            for m in keep[2 + 2*q: 4 + 2*q]: a(m)
    gemm_consumer_loop(a, L, 4, 4, NK, ACC, F0, F1, lambda mi, kh: (VA + 2 * (mi >> 1) + kh, (mi & 1) * 2048), VB, None, 8192, 1024, 41, 42, 40, STAGE, NS, tail=g2_tail, bar_gap=opt.g2_bar)
    stamp(a, 2)
    a(f"""    s_lshl_b32 s36, s2, 9
    s_lshl_b32 s37, s33, 7
    s_add_u32 s36, s36, s37
    s_xor_b32 s37, s36, 0x200
    v_mov_b32 v209, 1
    v_mov_b32 v210, 0
    v_lshrrev_b32 v206, 1, v202
    v_xor_b32 v206, v206, v201           ; (kg>>1) ^ r
    s_lshl_b32 s38, s34, 13              ; 32wm*256
    v_lshl_add_u32 v207, v201, 8, s38
    v_and_b32 v208, 1, v202
    v_lshl_add_u32 v207, v208, 3, v207
    s_lshl_b32 s39, s35, 3""")
    for ni in range(4):
        a(f"    s_add_u32 s38, s39, {2*ni}\n    v_xor_b32 v208, s38, v206\n    v_lshl_add_u32 v{VB+ni}, v208, 4, v207")
    a(f"""    s_mov_b64 exec, 1
    s_waitcnt vmcnt(0)
    buffer_store_dword v209, v210, s[16:19], s36 offen sc1""")
    stamp(a, 3)
    a(f"""{L}_poll:
    buffer_load_dword v211, v210, s[16:19], s37 offen sc1
    s_waitcnt vmcnt(0)
    v_readfirstlane_b32 s38, v211
    s_cmp_eq_u32 s38, 1
    s_cbranch_scc0 {L}_poll
    s_mov_b64 exec, -1""")
    stamp(a, 4)
    for q in range(4):
        a(f"    buffer_load_dwordx4 {vr(F1+4*q,4)}, v203, s[12:15], s45 offen offset:{q*1024} sc1")
    for j in range(8):
        mi, ni = j >> 2, j & 3
        c = ACC + 4 * j; p = F1 + 2 * j
        if j % 2 == 0: a(f"    s_waitcnt vmcnt({3 - j//2})")
        a(f"""    v_lshlrev_b32 v212, 16, v{p}
    v_and_b32 v213, 0xffff0000, v{p}
    v_lshlrev_b32 v214, 16, v{p+1}
    v_and_b32 v215, 0xffff0000, v{p+1}
    v_pk_add_f32 {vr(c,2)}, {vr(c,2)}, v[212:213]
    v_pk_add_f32 {vr(c+2,2)}, {vr(c+2,2)}, v[214:215]
    v_cvt_pk_bf16_f32 v{c}, v{c}, v{c+1}
    v_cvt_pk_bf16_f32 v{c+1}, v{c+2}, v{c+3}
    ds_write_b64 v{VB+ni}, {vr(c,2)} offset:{mi*4096}""")
    a("    s_waitcnt lgkmcnt(0)")
    stamp(a, 5)
    a(f"""{L}_epi2:
    s_barrier                            ; X3
    v_mbcnt_lo_u32_b32 v2, -1, 0
    v_mbcnt_hi_u32_b32 v2, -1, v2
    v_lshrrev_b32 v3, 4, v2
    s_lshl_b32 s36, s33, 2
    v_add_u32 v3, s36, v3                ; lr (j=0)
    v_xor_b32 v4, v3, v2
    v_and_b32 v4, 15, v4
    v_lshlrev_b32 v4, 4, v4
    v_lshl_add_u32 v3, v3, 8, v4
    ds_read_b128 v[16:19], v3
    ds_read_b128 v[20:23], v3 offset:8192""")
    srd(a, 12, 10, MB4)
    a("    s_waitcnt vmcnt(0)")
    for j in range(2):
        a(f"    s_waitcnt lgkmcnt({1-j})")
        for d in range(4):
            o = 16 + 4 * j + d; h = 232 + 4 * j + d
            a(f"""    v_lshlrev_b32 v8, 16, v{o}
    v_and_b32 v9, 0xffff0000, v{o}
    v_lshlrev_b32 v10, 16, v{h}
    v_and_b32 v11, 0xffff0000, v{h}
    v_pk_add_f32 v[8:9], v[8:9], v[10:11]
    v_cvt_pk_bf16_f32 v{o}, v8, v9""")
        a(f"    buffer_store_dwordx4 {vr(16+4*j,4)}, v230, s[12:15], s{43+j} offen")
    stamp(a, 6)
    if opt.stamps: a("    s_waitcnt vmcnt(0)")
    stamp(a, 7)
    stamp_end(a, kidx, 4, 33)
    a(f"{L}_end:\n    s_endpgm")
    return (name, 256, 512, NS * STAGE), (name, 256, 96)


def add_imm(a, dst, src, imm):
    a(f"    v_add_u32 v{dst}, {imm:#x}, v{src}")

def touch(a, srdreg, vtmp, vlane, soff_shift_mul, ninstr, dst):
    pass

def gen_p(a, kidx):
    name = "p_kernel"; L = "P"
    kernel_head(a, name)
    a(f"""    s_cmp_ge_u32 s2, 256
    s_cbranch_scc1 {L}_end
    s_load_dwordx4 s[4:7], s[0:1], {ARG['k']}      ; k, v
    s_load_dwordx4 s[8:11], s[0:1], {ARG['shift']}
    s_load_dwordx2 s[40:41], s[0:1], {ARG['ws']}""")
    stamp_begin(a)
    a(f"""    v_lshrrev_b32 v1, 6, v0
    v_and_b32 v2, 63, v0
    s_and_b32 s24, s2, 7             ; cb
    v_readfirstlane_b32 s33, v1
    s_lshr_b32 s25, s2, 3            ; rb
    v_and_b32 v3, 7, v2              ; cg
    v_lshrrev_b32 v4, 3, v2          ; rg
    s_lshl_b32 s26, s25, 17
    s_lshl_b32 s27, s24, 8
    s_add_u32 s26, s26, s27
    s_lshl_b32 s27, s33, 6
    s_add_u32 s26, s26, s27
    v_lshlrev_b32 v5, 14, v4
    v_lshl_add_u32 v5, v3, 3, v5
    v_add_u32 v5, s26, v5            ; vbase
    v_subrev_u32 v6, 6144, v5
    v_subrev_u32 v7, 2048, v5
    s_movk_i32 s44, 4096
    s_movk_i32 s45, 8192
    s_movk_i32 s46, 12288
    s_lshl_b32 s27, s24, 10
    s_lshl_b32 s28, s33, 8
    s_add_u32 s27, s27, s28
    v_lshlrev_b32 v8, 5, v3
    s_waitcnt lgkmcnt(0)""")
    srd(a, 12, 4, MB4); srd(a, 16, 6, MB4); srd(a, 20, 8, 8192)
    KR = 16; VR = 38; WR = 54
    so = ["0", "s44", "s45", "s46"]
    a(f"    buffer_load_dwordx4 {vr(WR,4)}, v8, s[20:23], s27 offen\n    buffer_load_dwordx4 {vr(WR+4,4)}, v8, s[20:23], s27 offen offset:16")
    a(f"    buffer_load_dwordx2 {vr(KR,2)}, v6, s[12:15], 0 offen nt\n    buffer_load_dwordx2 {vr(KR+2,2)}, v6, s[12:15], 0 offen offset:2048 nt\n    buffer_load_dwordx2 {vr(KR+4,2)}, v7, s[12:15], 0 offen nt")
    for j in range(8):
        a(f"    buffer_load_dwordx2 {vr(KR+6+2*j,2)}, v5, s[12:15], {so[j>>1]} offen offset:{(j&1)*2048} nt")
        a(f"    buffer_load_dwordx2 {vr(VR+2*j,2)}, v5, s[16:19], {so[j>>1]} offen offset:{(j&1)*2048} nt")
    srd(a, 28, 10, MB4); srd(a, 36, 40, 64 << 20)
    a(f"""    s_lshl_b32 s47, s2, 14
    v_lshlrev_b32 v9, 6, v0
    buffer_load_dword v10, v9, s[28:31], s47 offen
    s_mul_i32 s47, s2, 560
    s_add_u32 s47, s47, {FLG_OFF:#x}
    v_min_u32 v11, 139, v0
    v_lshlrev_b32 v11, 2, v11
    v_mov_b32 v12, 0
    buffer_store_dword v12, v11, s[36:39], s47 offen""")
    a(f"""    v_xor_b32 v13, 7, v4
    v_xor_b32 v13, v13, v3
    v_lshlrev_b32 v13, 4, v13
    v_lshl_add_u32 v13, v3, 9, v13
    s_lshl_b32 s47, s33, 12
    v_add_u32 v13, s47, v13
    v_lshl_add_u32 v14, v2, 4, s47
    v_lshrrev_b32 v15, 5, v2
    v_xor_b32 v15, v15, v3               ; x0 = (l&7)^(l>>5)
    v_lshlrev_b32 v9, 12, v4             ; (l>>3)*4096""")
    WF = 64; KF = 80; VF = 124; OF = 156; PK = 190
    stamp(a, 0)
    a("    s_waitcnt vmcnt(21)")
    for c in range(4):
        for j in range(4):
            src = WR + 2 * c + (j >> 1); d = WF + (c >> 1) * 8 + j * 2 + (c & 1)
            a(f"    v_lshlrev_b32 v{d}, 16, v{src}" if j % 2 == 0 else f"    v_and_b32 v{d}, 0xffff0000, v{src}")
    def unpack(dst, src):
        for p in range(2):
            a(f"    v_lshlrev_b32 v{dst+2*p}, 16, v{src+p}\n    v_and_b32 v{dst+2*p+1}, 0xffff0000, v{src+p}")
    a("    s_waitcnt vmcnt(18)")
    for r in range(3): unpack(KF + 4 * r, KR + 2 * r)
    for j in range(8):
        a(f"    s_waitcnt vmcnt({16 - 2*j})")
        unpack(KF + 4 * (3 + j), KR + 6 + 2 * j); unpack(VF + 4 * j, VR + 2 * j)
        for p in range(2):
            o = OF + 4 * j + 2 * p
            k = lambda r: vr(KF + 4 * r + 2 * p, 2)
            w = lambda t: vr(WF + p * 8 + 2 * t, 2)
            a(f"    v_pk_mul_f32 {vr(o,2)}, {k(j)}, {w(3)}")
            a(f"    v_pk_fma_f32 {vr(o,2)}, {k(j+1)}, {w(2)}, {vr(o,2)}")
            a(f"    v_pk_fma_f32 {vr(o,2)}, {k(j+2)}, {w(1)}, {vr(o,2)}")
            a(f"    v_pk_fma_f32 {vr(o,2)}, {k(j+3)}, {w(0)}, {vr(o,2)}")
            a(f"    v_pk_mul_f32 {vr(o,2)}, {vr(o,2)}, {vr(VF + 4*j + 2*p, 2)}")
    stamp(a, 1)
    for c in range(4):
        for d in range(4):
            a(f"    v_cvt_pk_bf16_f32 v{PK+4*c+d}, v{OF + 4*(7-2*d) + c}, v{OF + 4*(6-2*d) + c}")
        a(f"    ds_write_b128 v13, {vr(PK+4*c,4)} offset:{128*c}")
    a(f"""    s_lshl_b32 s47, s24, 19
    s_lshl_b32 s48, s33, 17
    s_add_u32 s47, s47, s48              ; (cb*128+w*32)*4096
    s_lshl_b32 s48, s25, 7
    s_sub_u32 s48, {3968 + KVR_OFF}, s48
    s_add_u32 s47, s47, s48
    s_waitcnt lgkmcnt(0)""")
    for i in range(4): a(f"    ds_read_b128 {vr(16+4*i,4)}, v14 offset:{1024*i}")
    for i in range(4):
        a(f"    v_xor_b32 v8, {2*i}, v15\n    v_lshl_add_u32 v{32+i}, v8, 4, v9")
    for i in range(4):
        a(f"    s_waitcnt lgkmcnt({3-i})\n    buffer_store_dwordx4 {vr(16+4*i,4)}, v{32+i}, s[36:39], s47 offen\n    s_add_u32 s47, s47, 32768")
    stamp(a, 2)
    if opt.stamps: a("    s_waitcnt vmcnt(0)")
    stamp(a, 3)
    stamp_end(a, kidx, 40, 33)
    a(f"{L}_end:\n    s_endpgm")
    return (name, 256, 256, 16384), (name, 256 if opt.stamps else 208, 96)

def gen_c(a, kidx):
    name = "c_kernel"; L = "C"
    CS = 4160; RO = 4 * CS; WSZ = 21248; STG = 4 * WSZ; SST = 4096 + 32
    kernel_head(a, name)
    a(f"""    s_cmp_ge_u32 s2, 256
    s_cbranch_scc1 {L}_end
    s_load_dwordx4 s[4:7], s[0:1], {ARG['ssmk']}
    s_load_dwordx2 s[40:41], s[0:1], {ARG['ws']}
    s_load_dwordx2 s[8:9], s[0:1], {ARG['q']}
    s_load_dwordx2 s[10:11], s[0:1], {ARG['w1']}
    s_load_dwordx2 s[42:43], s[0:1], {ARG['w2']}""")
    stamp_begin(a)
    a(f"""    v_lshrrev_b32 v1, 6, v0
    v_and_b32 v2, 63, v0
    s_and_b32 s24, s2, 7
    v_readfirstlane_b32 s33, v1
    s_lshl_b32 s24, s24, 5
    s_lshr_b32 s25, s2, 3
    s_add_u32 s24, s24, s25          ; cg
    s_lshl_b32 s25, s24, 2
    s_add_u32 s25, s25, s33          ; ch
    s_lshl_b32 s26, s25, 12          ; ch*4096
    s_mul_i32 s27, s33, {WSZ}        ; WB
    v_lshlrev_b32 v3, 4, v2          ; lane*16
    s_add_u32 m0, s27, {RO}
    s_lshr_b32 s28, s25, 1
    s_lshl_b32 s28, s28, 2
    s_waitcnt lgkmcnt(0)""")
    srd(a, 12, 4, MB4); srd(a, 16, 40, 64 << 20)
    FD = 16; FE = 32; FX = 48; TO = 52
    for i in range(4):
        a(f"    buffer_load_dwordx4 {vr(FD+4*i,4)}, v3, s[12:15], s26 offen offset:{1024*i}")
        a(f"    buffer_load_dwordx4 {vr(FE+4*i,4)}, v3, s[12:15], s26 offen offset:{1024*i+4}")
        a(f"    buffer_load_dword v{FX+i}, v3, s[12:15], s26 offen offset:{1024*i+20}")
    for i in range(4):
        a(f"    buffer_load_dwordx4 v3, s[16:19], s26 offen offset:{1024*i} lds")
    a(f"""    s_load_dword s29, s[6:7], s28
    v_add_u32 v4, s27, v3
    v_mov_b32 v60, 0
    v_mov_b32 v61, 0
    v_mov_b32 v62, 0
    v_mov_b32 v63, 0
    s_mov_b64 exec, 0x3fffffff
    ds_write_b128 v4, v[60:63] offset:{RO + 4096}
    s_mov_b64 exec, -1
    v_and_b32 v5, 15, v2             ; b / a
    v_lshrrev_b32 v6, 4, v2          ; kg
    v_add_u32 v7, 1, v5
    v_and_b32 v8, 3, v7
    v_mul_u32_u24 v8, {CS}, v8
    v_and_b32 v7, 28, v7
    v_lshl_add_u32 v8, v7, 1, v8
    v_lshl_add_u32 v8, v6, 4, v8
    v_add_u32 v8, s27, v8            ; vAT
    v_lshlrev_b32 v9, 5, v5
    v_sub_u32 v9, {RO + 480}, v9
    v_lshl_add_u32 v9, v6, 4, v9
    v_add_u32 v9, s27, v9            ; vBT""")
    stamp(a, 0)
    for i in range(4):
        D = FD + 4 * i; E = FE + 4 * i
        a(f"    s_waitcnt vmcnt({4 + 9 - 3*i})")
        a(f"    ds_write_b128 v4, {vr(D,4)} offset:{32 + 1024*i}")
        a(f"    ds_write_b128 v4, {vr(E,4)} offset:{2*CS + 32 + 1024*i}")
        t = TO + 8 * (i & 1)
        for k in range(4): a(f"    v_alignbit_b32 v{t+k}, v{E+k}, v{D+k}, 16")
        a(f"    ds_write_b128 v4, {vr(t,4)} offset:{CS + 32 + 1024*i}")
        for k in range(4): a(f"    v_alignbit_b32 v{t+4+k}, v{E+k+1 if k < 3 else FX+i}, v{E+k}, 16")
        a(f"    ds_write_b128 v4, {vr(t+4,4)} offset:{3*CS + 32 + 1024*i}")
        if i == 0:
            a(f"""    v_mov_b32 v68, 0
    v_mov_b32 v69, 0
    v_mov_b32 v70, 0
    v_lshlrev_b32 v71, 16, v{D}
    v_mov_b32 v72, 0
    v_mov_b32 v73, 0
    v_mov_b32 v74, 0
    v_mov_b32 v75, v{D}
    v_mov_b32 v76, 0
    v_mov_b32 v77, 0
    v_mov_b32 v78, v71
    v_mov_b32 v79, v{t}
    s_mov_b64 exec, 1
    ds_write_b128 v4, v[60:63]
    ds_write_b128 v4, v[60:63] offset:16
    ds_write_b128 v4, v[60:63] offset:{CS}
    ds_write_b128 v4, v[68:71] offset:{CS+16}
    ds_write_b128 v4, v[60:63] offset:{2*CS}
    ds_write_b128 v4, v[72:75] offset:{2*CS+16}
    ds_write_b128 v4, v[60:63] offset:{3*CS}
    ds_write_b128 v4, v[76:79] offset:{3*CS+16}
    s_mov_b64 exec, -1""")
    ACC = 80; F0 = 112; F1 = 176
    for i in range(0, 32, 2): a(f"    v_mov_b64 {vr(ACC+i,2)}, 0")
    a("    s_waitcnt vmcnt(0) lgkmcnt(0)")
    stamp(a, 1)
    srd(a, 20, 8, MB4); srd(a, 44, 10, 1024 * 7168); srd(a, 48, 42, 3584 * 2048)
    a(f"""    v_lshlrev_b32 v10, 7, v0
    s_lshl_b32 s34, s2, 14
    v_lshlrev_b32 v11, 6, v0
    buffer_load_dword v12, v11, s[20:23], s34 offen
    s_mul_i32 s34, s2, 28672
    v_cmp_gt_u32 vcc, 224, v0
    v_mov_b32 v11, 0x80000000
    s_nop 0
    v_cndmask_b32 v10, v11, v10, vcc
    {"buffer_load_dword v13, v10, s[44:47], s34 offen" if opt.c_pf1 else ""}
    {"buffer_load_dword v14, v10, s[48:51], s34 offen" if opt.c_pf2 else ""}
""")
    def reads(F, woff):
        r = []
        for u in range(8):
            r.append(f"    ds_read_b128 {vr(F+32+4*u,4)}, v9 offset:{3584 - 512*u + woff}")
            r.append(f"    ds_read_b64 {vr(F+4*u,2)}, v8 offset:{512*u + woff}")
            r.append(f"    ds_read_b64 {vr(F+4*u+2,2)}, v8 offset:{512*u + 8 + woff}")
        return r
    def mf(F):
        return [f"    v_mfma_f32_16x16x32_bf16 {vr(ACC+4*(u+v),4)}, {vr(F+4*u,4)}, {vr(F+32+4*v,4)}, {vr(ACC+4*(u+v),4)}" for u in range(8) for v in range(8 - u)]
    def weave(m, f):
        i = 0
        for x in m:
            a(x)
            if i < len(f): a(f[i]); i += 1
    for l in reads(F0, 0): a(l)
    a(f"    s_mov_b32 s35, 0\n{L}_loop:\n    s_waitcnt lgkmcnt(0)")
    weave(mf(F0), reads(F1, 64) + ["    v_add_u32 v8, 128, v8", "    v_add_u32 v9, 128, v9"])
    a("    s_waitcnt lgkmcnt(0)")
    weave(mf(F1), reads(F0, 0))
    a(f"    s_add_u32 s35, s35, 1\n    s_cmp_lt_u32 s35, 4\n    s_cbranch_scc1 {L}_loop\n    s_waitcnt lgkmcnt(0)")
    stamp(a, 2)
    a(f"""    v_lshlrev_b32 v16, 5, v5
    v_lshl_add_u32 v16, v6, 3, v16       ; 32a + 8g
    v_sub_u32 v17, {RO + 504}, v16
    v_add_u32 v17, s27, v17
    s_mul_i32 s34, s33, {SST}
    s_add_u32 s34, s34, {STG}
    v_add_u32 v18, s34, v16
    s_lshl_b32 s35, s29, 16
    s_and_b32 s36, s29, 0xffff0000
    s_bitcmp1_b32 s25, 0
    s_cselect_b32 s35, s36, s35          ; D as f32""")
    for n in range(8): a(f"    ds_read_b64 {vr(F0+2*n,2)}, v17 offset:{512*(7-n)}")
    for n in range(8):
        c = ACC + 4 * n; k = F0 + 2 * n
        a(f"""    s_waitcnt lgkmcnt({7-n})
    v_and_b32 v20, 0xffff0000, v{k+1}
    v_lshlrev_b32 v21, 16, v{k+1}
    v_and_b32 v22, 0xffff0000, v{k}
    v_lshlrev_b32 v23, 16, v{k}
    v_fmac_f32 v{c}, s35, v20
    v_fmac_f32 v{c+1}, s35, v21
    v_fmac_f32 v{c+2}, s35, v22
    v_fmac_f32 v{c+3}, s35, v23
    v_cvt_pk_bf16_f32 v{c}, v{c}, v{c+1}
    v_cvt_pk_bf16_f32 v{c+1}, v{c+2}, v{c+3}""")
    for n in range(8): a(f"    ds_write_b64 v18, {vr(ACC+4*n,2)} offset:{512*n}")
    a(f"""    v_bfe_u32 v19, v2, 2, 2              ; r
    v_mul_u32_u24 v19, {SST}, v19
    v_lshl_add_u32 v19, v6, 5, v19
    v_and_b32 v20, 3, v2
    v_lshl_add_u32 v19, v20, 3, v19
    s_lshl_b32 s34, s33, 10
    s_add_u32 s34, s34, {STG}
    v_add_u32 v19, s34, v19
    s_bfe_u32 s34, s24, 0x30002          ; key
    s_and_b32 s35, s24, 1
    s_lshl_b32 s35, s35, 2
    s_xor_b32 s34, s34, s35              ; kk
    v_bfe_u32 v20, v2, 1, 2
    v_xor_b32 v20, s34, v20
    v_lshlrev_b32 v20, 4, v20
    v_and_b32 v21, 1, v2
    v_lshl_add_u32 v20, v21, 3, v20
    v_lshrrev_b32 v21, 3, v2
    v_lshl_add_u32 v20, v21, 14, v20     ; voffset
    s_lshl_b32 s34, s33, 20              ; 64w*16384
    s_lshr_b32 s35, s24, 1
    s_lshl_b32 s35, s35, 7
    s_add_u32 s34, s34, s35
    s_add_u32 s34, s34, {Y2_OFF:#x}
    s_waitcnt lgkmcnt(0)
    s_barrier""")
    stamp(a, 3)
    for j in range(8): a(f"    ds_read_b64_tr_b16 {vr(F0+2*j,2)}, v19 offset:{128*j}")
    for j in range(8):
        a(f"    s_waitcnt lgkmcnt({7-j})\n    buffer_store_dwordx2 {vr(F0+2*j,2)}, v20, s[16:19], s34 offen\n    s_add_u32 s34, s34, 0x20000")
    stamp(a, 4)
    if opt.stamps: a("    s_waitcnt vmcnt(0)")
    stamp(a, 5)
    stamp_end(a, kidx, 40, 33)
    a(f"{L}_end:\n    s_endpgm")
    return (name, 256, 256, STG + 4 * SST), (name, 256 if opt.stamps else 240, 96)

def wave_sum(a, regs, tmps):
    nop = "    s_nop 0" if len(regs) == 2 else ""
    a("    s_nop 0")
    for ctl in ("quad_perm:[1,0,3,2]", "quad_perm:[2,3,0,1]", "row_half_mirror", "row_mirror"):
        for r in regs: a(f"    v_add_f32_dpp v{r}, v{r}, v{r} {ctl} row_mask:0xf bank_mask:0xf")
        a(nop)
    for sw in ("v_permlane16_swap_b32", "v_permlane32_swap_b32"):
        for r, t in zip(regs, tmps): a(f"    v_mov_b32 v{t}, v{r}")
        a(nop)
        for r, t in zip(regs, tmps): a(f"    {sw} v{t}, v{r}")
        for r, t in zip(regs, tmps): a(f"    v_add_f32 v{r}, v{r}, v{t}")

def r_body(a, XR, YR, XF, XC, YF, HP, xwait, ypre, hstore, hnstore, sInv=35, sEps=36, st0=1, xpost=None):
    def unpack(dst, src): a(f"    v_lshlrev_b32 v{dst}, 16, v{src}\n    v_and_b32 v{dst+1}, 0xffff0000, v{src}")
    def rnd(r): a(f"    v_cvt_pk_bf16_f32 v{r}, v{r}, v{r}\n    v_and_b32 v{r}, 0xffff0000, v{r}")
    S = [8, 9]; T = [10, 11]; M = [12, 14]; DM = [200, 202]; RI = [204, 206]; PS = [208, 210]
    def stats(src):
        for rho in range(2):
            a(f"    v_pk_add_f32 {vr(PS[rho],2)}, {vr(src(rho,0),2)}, {vr(src(rho,1),2)}")
        for i in range(2, 8):
            for rho in range(2): a(f"    v_pk_add_f32 {vr(PS[rho],2)}, {vr(PS[rho],2)}, {vr(src(rho,i),2)}")
        for rho in range(2): a(f"    v_add_f32 v{S[rho]}, v{PS[rho]}, v{PS[rho]+1}")
        wave_sum(a, S, T)
        for rho in range(2): a(f"    v_mul_f32 v{M[rho]}, s{sInv}, v{S[rho]}")
        for i in range(8):
            for rho in range(2):
                a(f"    v_pk_add_f32 {vr(XC + 16*rho + 2*i,2)}, {vr(src(rho,i),2)}, {vr(M[rho],2)} op_sel_hi:[1,0] neg_lo:[0,1] neg_hi:[0,1]")
        for rho in range(2): a(f"    v_pk_mul_f32 {vr(PS[rho],2)}, {vr(XC+16*rho,2)}, {vr(XC+16*rho,2)}")
        for i in range(1, 8):
            for rho in range(2): a(f"    v_pk_fma_f32 {vr(PS[rho],2)}, {vr(XC+16*rho+2*i,2)}, {vr(XC+16*rho+2*i,2)}, {vr(PS[rho],2)}")
        for rho in range(2): a(f"    v_add_f32 v{S[rho]}, v{PS[rho]}, v{PS[rho]+1}")
        wave_sum(a, S, T)
        for rho in range(2):
            a(f"    v_mov_b32 v{DM[rho]}, v{M[rho]}"); rnd(DM[rho]); a(f"    v_sub_f32 v{DM[rho]}, v{M[rho]}, v{DM[rho]}")
            a(f"    v_mul_f32 v{RI[rho]}, s{sInv}, v{S[rho]}"); rnd(RI[rho]); a(f"    v_add_f32 v{RI[rho]}, s{sEps}, v{RI[rho]}"); rnd(RI[rho])
        for rho in range(2): a(f"    v_sqrt_f32 v{RI[rho]}, v{RI[rho]}")
        a("    s_nop 0")
        for rho in range(2): rnd(RI[rho])
        for rho in range(2): a(f"    v_rcp_f32 v{RI[rho]}, v{RI[rho]}")
        for i in range(8):
            for rho in range(2):
                a(f"    v_pk_add_f32 {vr(XC + 16*rho + 2*i,2)}, {vr(XC + 16*rho + 2*i,2)}, {vr(DM[rho],2)} op_sel_hi:[1,0]")
    for rho in range(2):
        a(f"    s_waitcnt vmcnt({xwait(rho)})")
        if rho == 1 and xpost: xpost()
        for i in range(8): unpack(XF + 16 * rho + 2 * i, XR + 8 * rho + i)
    stamp(a, st0)
    stats(lambda rho, i: XF + 16 * rho + 2 * i)
    if ypre: ypre()
    a("    s_waitcnt lgkmcnt(0)")
    for rho in range(2):
        for i in range(8):
            p, d = i >> 2, i & 3
            unpack(YF + 16 * rho + 2 * i, YR + 8 * p + 4 * (d >> 1) + 2 * rho + (d & 1))
    for i in range(8):
        for rho in range(2):
            o = 16 * rho + 2 * i
            a(f"    v_pk_mul_f32 {vr(XC+o,2)}, {vr(XC+o,2)}, {vr(YF+o,2)}")
            a(f"    v_pk_fma_f32 {vr(XF+o,2)}, {vr(XC+o,2)}, {vr(RI[rho],2)}, {vr(XF+o,2)} op_sel_hi:[1,0,1]")
            a(f"    v_cvt_pk_bf16_f32 v{HP + 8*rho + i}, v{XF+o}, v{XF+o+1}")
    for q in range(4): hstore(q)
    for rho in range(2):
        for i in range(8): unpack(XF + 16 * rho + 2 * i, HP + 8 * rho + i)
    stamp(a, st0 + 1)
    stats(lambda rho, i: XF + 16 * rho + 2 * i)
    for rho in range(2):
        for i in range(8):
            o = 16 * rho + 2 * i
            a(f"    v_pk_mul_f32 {vr(XC+o,2)}, {vr(XC+o,2)}, {vr(RI[rho],2)} op_sel_hi:[1,0]")
            a(f"    v_cvt_pk_bf16_f32 v{XR + 8*rho + i}, v{XC+o}, v{XC+o+1}")
        for p in range(2): hnstore(rho, p)

def gen_r(a, kidx):
    name = "r_kernel"; L = "R"
    kernel_head(a, name)
    a(f"""    s_cmp_ge_u32 s2, 256
    s_cbranch_scc1 {L}_end
    s_load_dwordx2 s[4:5], s[0:1], {ARG['q']}
    s_load_dwordx2 s[40:41], s[0:1], {ARG['ws']}""")
    stamp_begin(a)
    a(f"""    v_lshrrev_b32 v1, 6, v0
    v_and_b32 v2, 63, v0
    s_and_b32 s24, s2, 7
    v_readfirstlane_b32 s33, v1
    s_lshl_b32 s24, s24, 5
    s_lshr_b32 s25, s2, 3
    s_add_u32 s24, s24, s25          ; sb
    v_lshlrev_b32 v3, 4, v2
    s_lshl_b32 s26, s24, 14
    s_lshl_b32 s27, s33, 12
    s_add_u32 s26, s26, s27
    s_mov_b32 m0, s27
    s_add_u32 s28, s26, {Y2_OFF:#x}
    s_waitcnt lgkmcnt(0)""")
    srd(a, 12, 4, MB4); srd(a, 16, 40, 64 << 20)
    XR = 16; YR = 32; XF = 48; XC = 80; YF = 112; HP = 144
    for i in range(4): a(f"    buffer_load_dwordx4 v3, s[16:19], s28 offen offset:{1024*i} lds")
    for i in range(4): a(f"    buffer_load_dwordx4 {vr(XR+4*i,4)}, v3, s[12:15], s26 offen offset:{1024*i}")
    a(f"""    v_bfe_u32 v4, v2, 1, 3
    v_xor_b32 v4, s33, v4
    v_lshlrev_b32 v4, 4, v4
    v_lshl_add_u32 v4, v2, 7, v4
    v_xor_b32 v5, 64, v4                 ; e=1
    s_lshl_b32 s29, s33, 1               ; 2w
    v_and_b32 v6, 7, v2
    v_xor_b32 v6, s29, v6
    v_lshrrev_b32 v7, 3, v2
    v_lshlrev_b32 v7, 14, v7
    v_lshl_add_u32 v6, v6, 4, v7         ; rho=0
    v_xor_b32 v7, 16, v6
    v_add_u32 v7, 128, v7
    s_lshr_b32 s30, s24, 4               ; mt
    s_lshl_b32 s30, s30, 18
    s_and_b32 s31, s24, 15
    s_lshl_b32 s31, s31, 10
    s_add_u32 s30, s30, s31
    s_lshl_b32 s31, s33, 8
    s_add_u32 s30, s30, s31
    s_add_u32 s30, s30, {HN_OFF:#x}
    s_add_u32 s31, s30, {8*16384}        ; p=1
    s_add_u32 s34, s26, {H_OFF:#x}       ; h soffset
    s_mov_b32 s35, 0x3a800000            ; 1/1024
    s_mov_b32 s36, 0x3727c5ac            ; 1e-5
    s_waitcnt vmcnt(4)
    s_barrier""")
    for p in range(2):
        for e in range(2): a(f"    ds_read_b128 {vr(YR + 8*p + 4*e, 4)}, v{4+e} offset:{8192*p}")
    stamp(a, 0)
    r_body(a, XR, YR, XF, XC, YF, HP, xwait=lambda rho: 2 - 2 * rho, ypre=None, hstore=lambda q: a(f"    buffer_store_dwordx4 {vr(HP+4*q,4)}, v3, s[16:19], s34 offen offset:{1024*q}"), hnstore=lambda rho, p: a(f"    buffer_store_dwordx4 {vr(XR + 8*rho + 4*p,4)}, v{6+rho}, s[16:19], s{30+p} offen"))
    stamp(a, 3)
    if opt.stamps: a("    s_waitcnt vmcnt(0)")
    stamp(a, 4)
    stamp_end(a, kidx, 40, 33)
    a(f"{L}_end:\n    s_endpgm")
    return (name, 256, 256, 16384), (name, 256 if opt.stamps else 216, 96)

KGEN = {"p": gen_p, "c": gen_c, "r": gen_r, "g1": gen_g1, "g2": gen_g2}

def build(kernels, extra=None):
    body = Asm(); launches = []; descs = []
    for i, k in enumerate(kernels):
        WS["base"] = opt.ws_base; WS["regs"] = (40,) if k in ("p", "c", "r", "pc") else (4,)
        opt.kidx = i; opt.nk = len(kernels)
        l, d = KGEN[k](body, i)
        if opt.dbg is not None: d = (d[0], 256, 96)
        launches.append(l); descs.append(d)
    for d in descs: kernel_desc(body, *d)
    return file_head(launches) + body.text()

if __name__ == "__main__":
    opt.stamps = "--stamps" in sys.argv
    ks = [x for x in sys.argv[2:] if not x.startswith("--")]
    open(sys.argv[1], "w").write(build(ks))
```

```python
import sys
from asmlib import *
import gen
from gen import r_body, Y2_OFF, HN2_OFF, opt, stamp, stamp_begin, stamp_end, vr, gemm_consumer_loop, MB4, HN_OFF, H1_OFF, H1_SZ, H_OFF, XCH_OFF, FLG_OFF

GRP_XCC = 0x20000
GRP_RDY = 0x21000
GRP_RD0 = 0x22000
FLG_SZ = 0x23000
opt.psleep = 2
opt.wb_bg = 0
opt.h1f = ''
opt.b2f = ''
opt.b1f = ''
opt.hnf = ''

def gen_g12(a, kidx, eta=False):
    name = "rg_kernel" if eta else "g12_kernel"; L = "G"
    LA = 224; LB = 216; LB2 = 212
    ST1 = 49152; NS1 = 3; NK1 = 16
    NS2 = 4; NK2 = 28; B2 = 98304
    kernel_head(a, name)
    a(f"""    s_cmp_ge_u32 s2, 256
    s_cbranch_scc1 {L}_end
    s_load_dwordx2 s[4:5], s[0:1], {ARG['ws']}
    s_load_dwordx4 s[8:11], s[0:1], {ARG['w1']}    ; w1, b1
    s_load_dwordx4 s[48:51], s[0:1], {ARG['w2']}   ; w2, b2
    s_load_dwordx2 s[52:53], s[0:1], {ARG['out']}
    s_load_dwordx2 s[6:7], s[0:1], {ARG['q']}""")
    stamp_begin(a)
    a(f"""    v_lshrrev_b32 v1, 6, v0
    v_and_b32 v2, 63, v0
    s_and_b32 s24, s2, 7
    v_readfirstlane_b32 s33, v1
    s_lshr_b32 s25, s2, 3
    s_lshr_b32 s26, s24, 1
    s_lshl_b32 s26, s26, 2
    s_and_b32 s27, s25, 3
    s_add_u32 s26, s26, s27          ; mt
    s_and_b32 s54, s24, 1
    s_lshr_b32 s55, s25, 2
    s_lshl_b32 s56, s24, 2
    s_add_u32 s56, s56, s27
    s_lshl_b32 s56, s56, 7           ; group*128
    s_lshl_b32 s27, s54, 3
    s_add_u32 s27, s27, s55          ; nt
    s_and_b32 s29, s27, 1
    v_mov_b32 v240, v2               ; lane
    v_and_b32 v241, 15, v2           ; r
    v_lshrrev_b32 v242, 4, v2        ; kg
    v_lshlrev_b32 v243, 3, v242""")
    def loader_setup(first_loads):
        a(f"""    s_and_b32 s34, s33, 3            ; lw
    s_lshl_b32 s35, s34, 12          ; lw*4096
    v_lshl_add_u32 v{LA}, v2, 4, s35 ; A voffset
    s_lshl_b32 s30, s26, 18
    s_mul_i32 s31, s27, 448
    s_and_b32 s31, s31, 0xffffff80   ; B soffset
    s_mov_b32 s38, s35
    s_add_u32 s39, s35, {NS1*ST1}
    s_add_u32 s37, s35, 16384""")
        first_loads()
        a(f"""    v_lshrrev_b32 v8, 5, v2          ; hi
    s_lshl_b32 s36, s34, 4
    v_add_u32 v9, s36, v8            ; 16lw+hi
    s_movk_i32 s36, 7168
    v_mul_lo_u32 v9, v9, s36
    v_and_b32 v10, 1, v2
    v_lshl_add_u32 v9, v10, 4, v9    ; t0
    v_bfe_u32 v10, v2, 1, 4
    v_xor_b32 v10, v10, v8           ; x0""")
        srd(a, 16, 8, 1024 * 7168)
        for ci, c in enumerate((0, 2, 4, 6)):
            a(f"    v_xor_b32 v11, {c}, v10\n    v_lshl_add_u32 v11, v11, 5, v9")
            for i in range(8):
                if 2 * (i & 1) + 4 * (i >> 2) == c:
                    a(f"    v_add_u32 v{LB+i}, {2*i*7168 - (i&3)*1024}, v11")
    def xcc_publish():
        a(f"""    s_getreg_b32 s57, hwreg(HW_REG_XCC_ID)
    s_lshl_b32 s36, s55, 2
    s_and_b32 s57, s57, 15
    s_or_b32 s57, s57, 0x100
    v_mov_b32 v8, s57
    s_add_u32 s36, s36, s56
    s_add_u32 s36, s36, {GRP_XCC:#x}
    v_mov_b32 v9, 0
    buffer_store_dword v8, v9, s[60:63], s36 offen sc1""")
    def handoff(tag, rdy, vline, voff):
        a(f"""    v_readfirstlane_b32 s36, v{vline}
    s_add_u32 s46, s56, {rdy:#x}
    s_lshl_b32 s45, s55, 2
    v_cmp_eq_u32 vcc, s36, v{vline}
    s_add_u32 s45, s45, s46
    s_bitcmp1_b32 s36, 8
    s_cselect_b64 s[64:65], vcc, 0
    s_cmp_eq_u64 s[64:65], -1
    s_cselect_b32 s59, 1, 0
    s_cmp_lg_u32 s33, 4
    s_cbranch_scc1 {L}_poll{tag}
    v_mov_b32 v11, 1
    v_mov_b32 v24, 0
    s_cmp_eq_u32 s59, 1
    s_cbranch_scc1 {L}_sig{tag}
    buffer_wbl2 sc1
    s_waitcnt vmcnt(0)
    buffer_store_dword v11, v24, s[60:63], s45 offen sc1
    s_branch {L}_poll{tag}
{L}_sig{tag}:
    buffer_store_dword v11, v24, s[60:63], s45 offen
{L}_poll{tag}:
    buffer_load_dword v{vline}, v{voff}, s[60:63], s46 offen sc1
    s_waitcnt vmcnt(0)
    v_cmp_eq_u32 vcc, 1, v{vline}
    s_cmp_eq_u64 vcc, -1
    s_cbranch_scc0 {L}_poll{tag}
    s_cmp_eq_u32 s59, 1
    s_cbranch_scc1 {L}_go{tag}
    buffer_inv sc1
    s_waitcnt vmcnt(0)
{L}_go{tag}:""")
    def bg_wb(tag):
        if not opt.wb_bg: return
        if opt.wb_bg == 1:
            a(f"    s_or_b32 s36, s33, s55\n    s_cmp_lg_u32 s36, 0\n    s_cbranch_scc1 {L}_nowb{tag}")
        else:
            a(f"    s_cmp_lg_u32 s33, 0\n    s_cbranch_scc1 {L}_nowb{tag}")
        a(f"    buffer_wbl2 sc1\n{L}_nowb{tag}:")
    def final_addr():
        a(f"""    s_lshl_b32 s43, s26, 7
    s_lshl_b32 s44, s54, 5
    s_add_u32 s43, s43, s44
    s_lshl_b32 s44, s33, 2
    s_add_u32 s43, s43, s44
    s_lshl_b32 s43, s43, 11          ; row*2048
    s_lshl_b32 s44, s55, 8
    s_add_u32 s43, s43, s44
    v_lshlrev_b32 v230, 11, v242
    v_lshl_add_u32 v230, v241, 4, v230
    s_add_u32 s44, s43, {64*2048}""")
        srd(a, 20, 4, MB4, off=H_OFF)
    A1F = " sc1" if eta else ""
    if not eta:
        a(f"    s_cmp_lt_u32 s33, 4\n    s_cbranch_scc1 {L}_cons")
        def fl():
            a("    s_mov_b32 m0, s35\n    s_waitcnt lgkmcnt(0)")
            srd(a, 12, 4, MB4, off=HN_OFF)
            for i in range(4): a(f"    buffer_load_dwordx4 v{LA}, s[12:15], s30 offen offset:{i*1024} lds")
        loader_setup(fl)
    else:
        RST = 98304
        XR = 16; YR = 32; XF = 48; XC = 80; YF = 112; HP = 144
        def fl():
            a(f"""    s_lshr_b32 s68, s33, 2           ; half
    s_lshl_b32 s69, s55, 1
    s_add_u32 s69, s69, s68          ; sb & 15
    s_lshl_b32 s70, s26, 4
    s_add_u32 s70, s70, s69          ; sb
    s_lshl_b32 s70, s70, 14
    s_add_u32 s70, s70, s35          ; row0*2048
    v_lshlrev_b32 v3, 4, v2
    s_lshl_b32 s71, s68, 14
    s_add_u32 s71, s71, {RST}
    s_add_u32 m0, s71, s35
    s_add_u32 s36, s70, {Y2_OFF:#x}
    s_waitcnt lgkmcnt(0)""")
            srd(a, 72, 6, MB4); srd(a, 76, 4, 64 << 20)
            for i in range(4): a(f"    buffer_load_dwordx4 {vr(XR+4*i,4)}, v3, s[72:75], s70 offen offset:{1024*i}")
            for i in range(4): a(f"    buffer_load_dwordx4 v3, s[76:79], s36 offen offset:{1024*i} lds")
        loader_setup(fl)
        def b_half(st, tag):
            a(f"""    s_lshl_b32 s36, s35, 1
    s_lshl_b32 s45, s68, 12
    s_add_u32 s36, s36, s45
    s_add_u32 m0, s36, {st*ST1 + 16384}
    s_cmp_eq_u32 s68, 1
    s_cbranch_scc1 {L}_bh{tag}""")
            for i in range(4): a(f"    buffer_load_dwordx4 v{LB+i}, s[16:19], s31 offen offset:{i*1024} {opt.b1f} lds")
            a(f"    s_branch {L}_bj{tag}\n{L}_bh{tag}:")
            for i in range(4, 8): a(f"    buffer_load_dwordx4 v{LB+i}, s[16:19], s31 offen offset:{(i&3)*1024} {opt.b1f} lds")
            a(f"{L}_bj{tag}:\n    s_add_u32 s31, s31, {64*7168}")
        srd(a, 60, 4, FLG_SZ, off=FLG_OFF)
        a(f"""    v_bfe_u32 v4, v2, 1, 3
    v_xor_b32 v4, s34, v4
    v_lshlrev_b32 v4, 4, v4
    v_lshl_add_u32 v4, v2, 7, v4
    v_add_u32 v4, s71, v4
    v_xor_b32 v5, 64, v4                 ; e=1
    s_lshl_b32 s36, s34, 1               ; 2w
    v_and_b32 v6, 7, v2
    v_xor_b32 v6, s36, v6
    v_lshrrev_b32 v7, 3, v2
    v_lshlrev_b32 v7, 14, v7
    v_lshl_add_u32 v6, v6, 4, v7         ; rho=0
    v_xor_b32 v7, 16, v6
    v_add_u32 v7, 128, v7
    s_lshl_b32 s36, s54, 22
    s_add_u32 s30, s30, s36
    s_lshl_b32 s40, s69, 10
    s_lshl_b32 s41, s34, 8
    s_add_u32 s40, s40, s41
    s_add_u32 s40, s40, s30
    s_add_u32 s40, s40, {HN2_OFF:#x}
    s_add_u32 s41, s40, {8*16384}        ; p=1
    s_bfe_u32 s36, s55, 0x10001
    s_add_u32 s42, s70, {H_OFF:#x}
    s_cmp_eq_u32 s36, s54
    s_cselect_b32 s42, s42, 0x80000000
    s_mov_b32 s43, 0x3a800000            ; 1/1024
    s_mov_b32 s44, 0x3727c5ac            ; 1e-5""")
        def xpost():
            b_half(0, 0)
            a(f"    s_cmp_lg_u32 s33, 7\n    s_cbranch_scc1 {L}_noxcc")
            xcc_publish()
            a(f"{L}_noxcc:")
        def ypre():
            a("    s_waitcnt vmcnt(4)\n    s_barrier")
            for p in range(2):
                for e in range(2): a(f"    ds_read_b128 {vr(YR + 8*p + 4*e, 4)}, v{4+e} offset:{8192*p}")
            b_half(1, 1)
            if opt.w2pf == "r":
                srd(a, 20, 48, 3584 * 2048)
                a(f"""    s_mul_i32 s36, s2, 28672
    s_mul_i32 s45, s33, 3584
    s_add_u32 s36, s36, s45
    v_min_u32 v4, 27, v2
    v_lshlrev_b32 v4, 7, v4
    buffer_load_dword v229, v4, s[20:23], s36 offen""")
        r_body(a, XR, YR, XF, XC, YF, HP, xwait=lambda rho: 6 - 2 * rho, ypre=ypre, xpost=xpost,
               hstore=lambda q: a(f"    buffer_store_dwordx4 {vr(HP+4*q,4)}, v3, s[76:79], s42 offen offset:{1024*q} {opt.hnf}"),
               hnstore=lambda rho, p: a(f"    buffer_store_dwordx4 {vr(XR + 8*rho + 4*p,4)}, v{6+rho}, s[76:79], s{40+p} offen {opt.hnf}"),
               sInv=43, sEps=44, st0=17)
        a(f"""    v_and_b32 v4, 7, v2
    v_lshlrev_b32 v4, 2, v4
    s_add_u32 s36, s56, {GRP_XCC:#x}
    buffer_load_dword v5, v4, s[60:63], s36 offen sc1""")
        stamp(a, 19)
        a(f"""    s_waitcnt vmcnt(0)
    s_barrier
    s_cmp_lt_u32 s33, 4
    s_cbranch_scc1 {L}_cons""")
        srd(a, 12, 4, 2 * MB4, off=HN2_OFF)
        stamp(a, 20)
        handoff("0", GRP_RD0, 5, 4)
    def issue1(skipA=False):
        a("    s_mov_b32 m0, s38\n    s_add_u32 s36, s38, s37")
        if not skipA:
            for i in range(4): a(f"    buffer_load_dwordx4 v{LA}, s[12:15], s30 offen offset:{i*1024}{A1F} lds")
        a("    s_mov_b32 m0, s36\n    s_add_u32 s30, s30, 16384")
        for i in range(4): a(f"    buffer_load_dwordx4 v{LB+i}, s[16:19], s31 offen offset:{i*1024} {opt.b1f} lds")
        a(f"    s_add_u32 m0, s36, 4096\n    s_add_u32 s38, s38, {ST1}")
        for i in range(4, 8): a(f"    buffer_load_dwordx4 v{LB+i}, s[16:19], s31 offen offset:{(i&3)*1024} {opt.b1f} lds")
        a(f"    s_add_u32 s31, s31, {64*7168}\n    s_cmp_ge_u32 s38, s39\n    s_cselect_b32 s38, s35, s38")
    stamp(a, 0)
    if not eta:
        issue1(skipA=True)
        a(f"    s_mov_b32 m0, s38\n    s_nop 0")
        for i in range(4): a(f"    buffer_load_dwordx4 v{LA}, s[12:15], s30 offen offset:{i*1024} lds")
        a("    s_waitcnt vmcnt(4)\n    s_barrier")
        issue1(skipA=True); issue1()
    else:
        for st in range(2):
            a(f"    s_add_u32 m0, s35, {st*ST1}\n    s_nop 0")
            for i in range(4): a(f"    buffer_load_dwordx4 v{LA}, s[12:15], s30 offen offset:{i*1024} sc1 lds")
            a("    s_add_u32 s30, s30, 16384")
        a(f"    s_add_u32 s38, s35, {2*ST1}\n    s_waitcnt vmcnt(4)\n    s_barrier")
        issue1()
    stamp(a, 12)
    a(f"""    v_lshrrev_b32 v3, 4, v2          ; q4
    s_lshl_b32 s36, s34, 4
    v_add_u32 v4, s36, v3
    v_lshlrev_b32 v4, 11, v4
    v_and_b32 v5, 1, v2
    v_lshl_add_u32 v4, v5, 4, v4     ; t0
    v_bfe_u32 v5, v2, 1, 3
    v_xor_b32 v5, v5, v3             ; x0""")
    for c in (0, 4):
        a(f"    v_xor_b32 v6, {c}, v5\n    v_lshl_add_u32 v6, v6, 5, v4")
        for i in range(4):
            if 4 * (i >> 1) == c: a(f"    v_add_u32 v{LB2+i}, {4*i*2048 - i*1024}, v6")
    def spf():
        if opt.w2pf != "s": return
        for i in range(4): a(f"    s_load_dword s70, s[66:67], {128*i}")
        a("    s_add_u32 s66, s66, 512\n    s_addc_u32 s67, s67, 0")
    a(f"""    s_mul_i32 s58, s2, 28672
    s_mul_i32 s36, s34, 7168
    s_add_u32 s58, s58, s36
    s_add_u32 s66, s48, s58
    s_addc_u32 s67, s49, 0""")
    spf()
    a(f"    s_mov_b32 s40, 0\n{L}_l1:\n    s_waitcnt vmcnt(12)\n    s_barrier")
    issue1()
    spf()
    a(f"    s_add_u32 s40, s40, 1\n    s_cmp_lt_u32 s40, {NK1-NS1}\n    s_cbranch_scc1 {L}_l1")
    a("    s_waitcnt vmcnt(12)\n    s_barrier          ; b13")
    srd(a, 16, 48, 3584 * 2048)
    final_addr()
    a(f"""    s_mul_i32 s58, s55, 7
    s_add_u32 s58, s58, 1
    s_lshr_b32 s58, s58, 1
    s_mul_i32 s66, s54, {1792*2048}
    s_lshl_b32 s36, s55, 8
    s_add_u32 s66, s66, s36
    s_lshl_b32 s31, s58, 17
    s_add_u32 s31, s31, s66          ; G2 B soffset
    s_add_u32 s67, s66, {28 << 17}
    s_lshl_b32 s38, s29, 14
    s_add_u32 s38, s38, s35
    s_add_u32 s39, s35, 65536
    s_waitcnt vmcnt(0)
    s_barrier          ; b14""")
    def issueB2():
        a(f"    s_add_u32 m0, s38, {B2}\n    s_add_u32 s38, s38, 16384")
        for i in range(4): a(f"    buffer_load_dwordx4 v{LB2+i}, s[16:19], s31 offen offset:{i*1024} {opt.b2f} lds")
        a(f"""    s_add_u32 s31, s31, {64*2048}
    s_cmp_ge_u32 s38, s39
    s_cselect_b32 s38, s35, s38
    s_cmp_ge_u32 s31, s67
    s_cselect_b32 s31, s66, s31""")
    for st in range(4): issueB2()
    a("""    buffer_load_dwordx4 v[232:235], v230, s[20:23], s43 offen
    buffer_load_dwordx4 v[236:239], v230, s[20:23], s44 offen
    v_mov_b32 v12, 65536
    v_mov_b32 v10, 0
    v_mov_b32 v11, 0
    ds_write_b64 v12, v[10:11]
    s_waitcnt lgkmcnt(0)
    s_barrier          ; b15""")
    stamp(a, 1)
    srd(a, 12, 4, H1_SZ, off=H1_OFF); srd(a, 60, 4, FLG_SZ, off=FLG_OFF)
    a(f"""    s_lshr_b32 s36, s34, 1
    s_lshl_b32 s36, s36, 13
    s_and_b32 s37, s34, 1
    s_lshl_b32 s37, s37, 11              ; + 16*(lw&1)
    s_add_u32 s37, s37, s36
    v_lshl_add_u32 v7, v2, 4, s37
    s_lshl_b32 s36, s29, 14
    v_add_u32 v3, s36, v7
    s_cmp_eq_u32 s29, 1
    s_cselect_b32 s36, 0, 49152
    v_add_u32 v4, s36, v7
    v_lshrrev_b32 v5, 3, v2
    v_xor_b32 v5, v5, v2
    v_bfe_u32 v5, v5, 2, 1               ; c bit2
    v_cmp_eq_u32 vcc, s29, v5
    v_mov_b32 v6, 0x80000000
    s_mul_i32 s36, s27, 7
    s_lshr_b32 s36, s36, 1               ; ks0
    v_cndmask_b32 v5, v6, v4, vcc
    s_mul_i32 s37, s26, 56
    s_add_u32 s36, s36, s37
    s_lshl_b32 s40, s36, 14
    s_add_u32 s41, s40, 16384
    s_add_u32 s42, s40, 32768
    s_mul_i32 s68, s54, 28
    s_add_u32 s68, s68, s37
    s_lshl_b32 s68, s68, 14
    s_add_u32 s69, s68, {28 << 14}
    s_add_u32 s30, s58, 3
    s_lshl_b32 s30, s30, 14
    s_add_u32 s30, s30, s68
    s_cmp_ge_u32 s30, s69
    s_cselect_b32 s30, s68, s30
    s_add_u32 s70, s29, 3
    s_and_b32 s70, s70, 3
    s_lshl_b32 s70, s70, 14
    s_add_u32 s70, s70, s35
    s_lshl_b32 s45, s55, 2
    s_add_u32 s46, s56, {GRP_RDY:#x}
    s_add_u32 s45, s45, s46
    v_and_b32 v8, 7, v2
    v_lshlrev_b32 v8, 2, v8
    v_mov_b32 v10, 1
    v_mov_b32 v11, 0
    s_waitcnt vmcnt(0)""")
    for half in range(2):
        a(f"    s_barrier")
        ho = 4096 * half
        items = [(3, 3, 40, 0, 0), (3, 3, 40, 0, 1), (4, 5, 40, 0, 0), (4, 5, 40, 0, 1), (3, 3, 41, 16384, 0), (3, 3, 41, 16384, 1), (3, 3, 42, 32768, 0), (3, 3, 42, 32768, 1)]
        for i, (vr_, vs_, so, lo, q) in enumerate(items):
            a(f"    ds_read_b128 {vr(32+32*half+4*i,4)}, v{vr_} offset:{lo + ho + 1024*q}")
        if half == 1: a("    s_add_u32 s40, s40, 4096\n    s_add_u32 s41, s41, 4096\n    s_add_u32 s42, s42, 4096")
        for i, (vr_, vs_, so, lo, q) in enumerate(items):
            a(f"    s_waitcnt lgkmcnt({7-i})\n    buffer_store_dwordx4 {vr(32+32*half+4*i,4)}, v{vs_}, s[12:15], s{so} offen offset:{1024*q} sc1")
    stamp(a, 3)
    a("    s_barrier          ; c0\n    s_barrier          ; c1\n    s_waitcnt vmcnt(0)")
    stamp(a, 4)
    a(f"""    s_mov_b64 exec, 1
    ds_add_rtn_u32 v13, v12, v10
    s_mov_b64 exec, -1
    s_waitcnt lgkmcnt(0)
    v_readfirstlane_b32 s36, v13
    s_cmp_eq_u32 s36, 3
    s_cbranch_scc0 {L}_wait2
    s_mov_b64 exec, 1
    buffer_store_dword v10, v11, s[60:63], s45 offen sc1
    s_mov_b64 exec, 0xff
{L}_poll2:
    buffer_load_dword v9, v8, s[60:63], s46 offen sc1
    s_waitcnt vmcnt(0)
    v_cmp_eq_u32 vcc, 1, v9
    s_cmp_eq_u64 vcc, exec
    s_cbranch_scc1 {L}_seen2
    s_sleep {opt.psleep}
    s_branch {L}_poll2
{L}_seen2:
    ds_write_b32 v12, v10 offset:4
    s_mov_b64 exec, -1""")
    issueB2(); issueB2()
    a(f"    s_branch {L}_go2\n{L}_wait2:")
    issueB2(); issueB2()
    a(f"""{L}_spin2:
    s_sleep 1
    ds_read_b32 v13, v12 offset:4
    s_waitcnt lgkmcnt(0)
    v_readfirstlane_b32 s36, v13
    s_cmp_eq_u32 s36, 1
    s_cbranch_scc0 {L}_spin2
{L}_go2:""")
    stamp(a, 5)
    def issueA2():
        a("    s_mov_b32 m0, s70\n    s_add_u32 s70, s70, 16384")
        for i in range(4): a(f"    buffer_load_dwordx4 v{LA}, s[12:15], s30 offen offset:{i*1024} sc1 lds")
        a("""    s_add_u32 s30, s30, 16384
    s_cmp_ge_u32 s70, s39
    s_cselect_b32 s70, s35, s70
    s_cmp_ge_u32 s30, s69
    s_cselect_b32 s30, s68, s30""")
    issueA2(); issueA2()
    a("    s_waitcnt vmcnt(4)\n    s_barrier          ; c2")
    issueA2(); issueA2(); issueB2()
    a("    s_waitcnt vmcnt(12)\n    s_barrier          ; c3")
    issueA2(); issueB2()
    a(f"    s_mov_b32 s40, 4\n{L}_l2:\n    s_waitcnt vmcnt(16)\n    s_barrier")
    issueA2(); issueB2()
    a(f"    s_add_u32 s40, s40, 1\n    s_cmp_lt_u32 s40, {NK2-NS2}\n    s_cbranch_scc1 {L}_l2")
    for k in range(NK2 - NS2, NK2):
        left = max(0, NK2 - 1 - (k + 1))
        if k + 1 < NK2: a(f"    s_waitcnt vmcnt({left*8})")
        a("    s_barrier")
    stamp(a, 6)
    a(f"    s_branch {L}_epi2")
    ACC = 0; F0 = 112; F1 = 156; VA = 200; VB = 202; VBI = 210
    a(f"""{L}_cons:
    s_and_b32 s34, s33, 1            ; wm
    s_lshr_b32 s35, s33, 1           ; wn
    s_mul_i32 s36, s27, 224
    s_mul_i32 s37, s35, 112
    s_add_u32 s36, s36, s37
    s_lshl_b32 s36, s36, 1
    s_waitcnt lgkmcnt(0)""")
    srd(a, 16, 10, 7168)
    for ni in range(7):
        a(f"    buffer_load_dwordx2 {vr(VBI + 2*ni, 2)}, v243, s[16:19], s36 offen offset:{32*ni}")
    a(f"""    s_lshl_b32 s36, s34, 13          ; wm*64*128
    v_lshl_add_u32 v244, v241, 7, s36
    v_and_b32 v245, 7, v241          ; r7
    v_xor_b32 v246, v242, v245
    v_lshl_add_u32 v{VA}, v246, 4, v244
    v_xor_b32 v246, 4, v246
    v_lshl_add_u32 v{VA+1}, v246, 4, v244
    v_bfe_u32 v246, v240, 2, 2       ; rr
    v_lshl_add_u32 v247, v242, 3, v246   ; 8kg+rr
    v_lshlrev_b32 v247, 9, v247
    v_and_b32 v248, 3, v240          ; cc
    v_lshl_add_u32 v247, v248, 3, v247
    v_add_u32 v247, 16384, v247
    v_and_b32 v248, 1, v242
    v_lshl_or_b32 v246, v248, 2, v246    ; g
    s_mul_i32 s37, s35, 7
    s_lshl_b32 s38, s29, 1
    s_add_u32 s37, s37, s38          ; f0 = 2p + 7wn""")
    for ni in range(7):
        a(f"    s_add_u32 s38, s37, {ni}\n    v_xor_b32 v248, s38, v246\n    v_lshl_add_u32 v{VB+ni}, v248, 5, v247")
    srd(a, 20, 48, 3584 * 2048)
    a(f"""    s_mul_i32 s58, s2, 28672
    s_mul_i32 s39, s33, 7168
    s_add_u32 s58, s58, s39
    v_lshlrev_b32 v224, 7, v240
    v_mov_b32 v225, 0x80000000
    v_cmp_gt_u32 vcc, 4, v240
    s_waitcnt vmcnt(0)
    v_cndmask_b32 v224, v225, v224, vcc""")

    for ni in range(7):
        for d in range(2):
            c = ACC + 4 * ni + 2 * d
            a(f"    v_lshlrev_b32 v{c}, 16, v{VBI+2*ni+d}\n    v_and_b32 v{c+1}, 0xffff0000, v{VBI+2*ni+d}")
    for mi in range(1, 4):
        for ni in range(7):
            for d in range(2):
                c = ACC + 4 * (mi * 7 + ni) + 2 * d
                a(f"    v_mov_b64 {vr(c,2)}, {vr(ACC + 4*ni + 2*d, 2)}")
    stamp(a, 0)
    a("    s_barrier")
    if eta: bg_wb(1)
    stamp(a, 1)
    def g1_tail(mf):
        mf = [m for j, m in enumerate(mf) if (j & 3) < 2] + [m for j, m in enumerate(mf) if (j & 3) >= 2]
        a(mf[0])
        a(f"""    s_lshl_b32 s36, s55, 8
    s_lshl_b32 s38, s35, 7
    s_add_u32 s36, s36, s38""")
        srd(a, 16, 50, 2048)
        a(mf[1])
        for ni in range(4):
            a(f"    buffer_load_dwordx2 {vr(112 + 2*ni, 2)}, v243, s[16:19], s36 offen offset:{32*ni}")
        a(mf[2])
        final_addr()
        a(mf[3])
        a("""    buffer_load_dwordx4 v[232:235], v230, s[20:23], s43 offen
    buffer_load_dwordx4 v[236:239], v230, s[20:23], s44 offen""")
        a(f"""    v_lshrrev_b32 v246, 1, v242      ; kg>>1
    v_xor_b32 v246, v246, v245       ; (kg>>1)^r7
    v_and_b32 v247, 1, v242
    v_lshl_add_u32 v247, v247, 3, v244   ; m*128 + half*8""")
        rest = mf[4:]
        def act(ni, mi):
            c = ACC + 4 * (mi * 7 + ni)
            for x in range(4): a(f"    v_max_f32 v{c+x}, 0, v{c+x}")
            a(f"    v_pk_mul_f32 {vr(c,2)}, {vr(c,2)}, {vr(c,2)}\n    v_pk_mul_f32 {vr(c+2,2)}, {vr(c+2,2)}, {vr(c+2,2)}")
            a(f"    v_cvt_pk_bf16_f32 v{c}, v{c}, v{c+1}\n    v_cvt_pk_bf16_f32 v{c+1}, v{c+2}, v{c+3}")
            a(f"    ds_write_b64 v{VB+ni}, {vr(c,2)} offset:{mi*2048}")
        for ni in range(7):
            for m in rest[3*ni: 3*ni + 3]: a(m)
            a(f"""    s_add_u32 s38, s37, {ni}
    s_lshr_b32 s39, s38, 2
    s_lshl_b32 s39, s39, 14
    s_and_b32 s38, s38, 3
    s_lshl_b32 s38, s38, 1
    v_xor_b32 v248, s38, v246
    v_lshl_add_u32 v248, v248, 4, v247
    v_add_u32 v{VB+ni}, s39, v248""")
        for m in rest[21:]: a(m)
        for ni in range(7):
            for mi in range(2): act(ni, mi)
        a("    s_waitcnt lgkmcnt(0)\n    s_barrier                            ; E0")
        for ni in range(7):
            for mi in range(2, 4): act(ni, mi)
    pf = {22: "    buffer_load_dword v226, v224, s[20:23], s58 offen\n    s_add_u32 s58, s58, 512"} if opt.w2pf is True else None
    gemm_consumer_loop(a, L + "1", 4, 7, NK1, ACC, F0, F1, lambda mi, kh: (VA + kh, mi * 2048), VB, None, 16384, 2048, 41, 42, 40, ST1, NS1, tail=g1_tail, bar_gap=opt.g1_bar, loop_extra=pf)
    a("    s_waitcnt lgkmcnt(0)")
    stamp(a, 2)
    a("    s_barrier                            ; E1")
    ACC = 0; F0 = 64; F1 = 96; VA = 128; VB = 132; VBI = 112
    a(f"""    s_lshl_b32 s36, s34, 13
    s_lshl_b32 s37, s54, 12
    s_add_u32 s36, s36, s37
    s_lshl_b32 s39, s29, 14
    s_add_u32 s36, s36, s39
    v_lshl_add_u32 v204, v241, 7, s36
    v_xor_b32 v206, v242, v245
    v_lshl_add_u32 v{VA}, v206, 4, v204
    v_xor_b32 v{VA+1}, 64, v{VA}
    v_xor_b32 v{VA+2}, 4096, v{VA}
    v_xor_b32 v{VA+3}, 4096, v{VA+1}
    v_bfe_u32 v206, v240, 2, 2           ; rr
    v_lshl_add_u32 v207, v242, 3, v206
    v_lshlrev_b32 v207, 8, v207
    v_and_b32 v208, 3, v240
    v_lshl_add_u32 v207, v208, 3, v207
    s_add_u32 s39, s39, {B2}
    v_add_u32 v207, s39, v207
    v_and_b32 v208, 1, v242
    v_lshl_or_b32 v206, v208, 2, v206    ; g
    s_lshl_b32 s37, s35, 2""")
    for ni in range(4):
        a(f"    s_add_u32 s38, s37, {ni}\n    v_xor_b32 v208, s38, v206\n    v_lshl_add_u32 v{VB+ni}, v208, 5, v207")
    for i in range(32, 64, 2): a(f"    v_mov_b64 {vr(ACC+i,2)}, 0")
    a("    s_waitcnt vmcnt(2)")
    for ni in range(4):
        for d in range(2):
            c = ACC + 4 * ni + 2 * d
            a(f"    v_lshlrev_b32 v{c}, 16, v{VBI+2*ni+d}\n    v_and_b32 v{c+1}, 0xffff0000, v{VBI+2*ni+d}")
            a(f"    v_mov_b64 {vr(c+16,2)}, {vr(c,2)}")
    srd(a, 60, 4, FLG_SZ, off=FLG_OFF)
    stamp(a, 5)
    def g2_tail(mf):
        send = [m for j, m in enumerate(mf) if (j & 3) >= 2]; keep = [m for j, m in enumerate(mf) if (j & 3) < 2]
        for m in send: a(m)
        srd(a, 12, 4, 256 * 16384, off=XCH_OFF)
        a(keep[0])
        a(f"""    v_lshlrev_b32 v203, 4, v240
    s_lshl_b32 s36, s2, 14
    s_lshl_b32 s37, s33, 12
    s_add_u32 s36, s36, s37
    s_xor_b32 s45, s36, 0x4000""")
        a(keep[1])
        for q in range(4):
            for h in range(2):
                c = ACC + 32 + 8 * q + 4 * h
                a(f"    v_cvt_pk_bf16_f32 v{F0 + 4*q + 2*h}, v{c}, v{c+1}\n    v_cvt_pk_bf16_f32 v{F0 + 4*q + 2*h + 1}, v{c+2}, v{c+3}")
            a(f"    buffer_store_dwordx4 {vr(F0+4*q,4)}, v203, s[12:15], s36 offen offset:{q*1024} sc1")
            for m in keep[2 + 2*q: 4 + 2*q]: a(m)
    gemm_consumer_loop(a, L + "2", 4, 4, NK2, ACC, F0, F1, lambda mi, kh: (VA + 2 * (mi >> 1) + kh, (mi & 1) * 2048), VB, None, 8192, 1024, 41, 42, 40, 16384, NS2, tail=g2_tail, bar_gap=opt.g2_bar, slot0="s29")
    stamp(a, 6)
    a(f"""    s_lshl_b32 s36, s2, 9
    s_lshl_b32 s37, s33, 7
    s_add_u32 s36, s36, s37
    s_xor_b32 s37, s36, 0x200
    v_mov_b32 v209, 1
    v_mov_b32 v210, 0
    v_lshrrev_b32 v206, 1, v242
    v_xor_b32 v206, v206, v241           ; (kg>>1) ^ r
    s_lshl_b32 s38, s34, 13              ; 32wm*256
    v_lshl_add_u32 v207, v241, 8, s38
    v_and_b32 v208, 1, v242
    v_lshl_add_u32 v207, v208, 3, v207
    s_lshl_b32 s39, s35, 3""")
    for ni in range(4):
        a(f"    s_add_u32 s38, s39, {2*ni}\n    v_xor_b32 v208, s38, v206\n    v_lshl_add_u32 v{VB+ni}, v208, 4, v207")
    a(f"""    s_mov_b64 exec, 1
    s_waitcnt vmcnt(0)
    buffer_store_dword v209, v210, s[60:63], s36 offen sc1
{L}_poll:
    buffer_load_dword v211, v210, s[60:63], s37 offen sc1
    s_waitcnt vmcnt(0)
    v_readfirstlane_b32 s38, v211
    s_cmp_eq_u32 s38, 1
    s_cbranch_scc0 {L}_poll
    s_mov_b64 exec, -1""")
    stamp(a, 7)
    for q in range(4):
        a(f"    buffer_load_dwordx4 {vr(F1+4*q,4)}, v203, s[12:15], s45 offen offset:{q*1024} sc1")
    for j in range(8):
        mi, ni = j >> 2, j & 3
        c = ACC + 4 * j; p = F1 + 2 * j
        if j % 2 == 0: a(f"    s_waitcnt vmcnt({3 - j//2})")
        a(f"""    v_lshlrev_b32 v212, 16, v{p}
    v_and_b32 v213, 0xffff0000, v{p}
    v_lshlrev_b32 v214, 16, v{p+1}
    v_and_b32 v215, 0xffff0000, v{p+1}
    v_pk_add_f32 {vr(c,2)}, {vr(c,2)}, v[212:213]
    v_pk_add_f32 {vr(c+2,2)}, {vr(c+2,2)}, v[214:215]
    v_cvt_pk_bf16_f32 v{c}, v{c}, v{c+1}
    v_cvt_pk_bf16_f32 v{c+1}, v{c+2}, v{c+3}
    ds_write_b64 v{VB+ni}, {vr(c,2)} offset:{mi*4096}""")
    a("    s_waitcnt lgkmcnt(0)")
    stamp(a, 8)
    a(f"""{L}_epi2:
    s_barrier                            ; X3
    v_lshrrev_b32 v3, 4, v230
    v_and_b32 v2, 15, v3
    v_lshrrev_b32 v3, 11, v230           ; lane>>4
    s_lshl_b32 s36, s33, 2
    v_add_u32 v3, s36, v3                ; lr (j=0)
    v_xor_b32 v4, v3, v2
    v_and_b32 v4, 15, v4
    v_lshlrev_b32 v4, 4, v4
    v_lshl_add_u32 v3, v3, 8, v4
    ds_read_b128 v[16:19], v3
    ds_read_b128 v[20:23], v3 offset:8192""")
    srd(a, 12, 52, MB4)
    a("    s_waitcnt vmcnt(0)")
    for j in range(2):
        a(f"    s_waitcnt lgkmcnt({1-j})")
        for d in range(4):
            o = 16 + 4 * j + d; h = 232 + 4 * j + d
            a(f"""    v_lshlrev_b32 v8, 16, v{o}
    v_and_b32 v9, 0xffff0000, v{o}
    v_lshlrev_b32 v10, 16, v{h}
    v_and_b32 v11, 0xffff0000, v{h}
    v_pk_add_f32 v[8:9], v[8:9], v[10:11]
    v_cvt_pk_bf16_f32 v{o}, v8, v9""")
        a(f"    buffer_store_dwordx4 {vr(16+4*j,4)}, v230, s[12:15], s{43+j} offen")
    stamp(a, 9)
    if opt.stamps: a("    s_waitcnt vmcnt(0)")
    stamp(a, 10)
    if opt.stamps:
        a("    s_getreg_b32 s84, hwreg(HW_REG_XCC_ID)\n    v_writelane_b32 v250, s84, 60\n    v_writelane_b32 v250, s59, 61")
    stamp_end(a, kidx, 4, 33)
    a(f"{L}_end:\n    s_endpgm")
    return (name, 256, 512, 163840), (name, 256, 96)

gen.KGEN["g12"] = gen_g12
gen.KGEN["rg"] = lambda a, k: gen_g12(a, k, eta=True)
if __name__ == "__main__":
    opt.stamps = "--stamps" in sys.argv
    ks = [x for x in sys.argv[2:] if not x.startswith("--")]
    open(sys.argv[1], "w").write(gen.build(ks))
```

```python
import sys
from asmlib import *

KVR_OFF = 0x0000000
Y2_OFF  = 0x0400000
H_OFF   = 0x0800000
HN_OFF  = 0x0C00000
H1_OFF  = 0x1000000
H1_SZ   = 16 * 56 * 16384
XCH_OFF = 0x2000000
FLG_OFF = 0x2800000
STP_OFF = 0x3800000
HN2_OFF = 0x2C00000
MB4 = 4 << 20

class Opt:
    stamps = False
    noload = False
    w2pf = True
    rtstamp = False
    codepf = False
    dbg = None
    kidx = 0
    ws_base = 0
    c_pf1 = True
    c_pf2 = False
    rd_per_gap = 2
    g1_bar = 24
    g2_bar = 18
opt = Opt()

def stamp(a, idx, vreg=250):
    if opt.dbg is not None:
        slot = opt.dbg.get((opt.kidx, idx))
        if slot is not None: dbg_write(a, slot)
        return
    if not opt.stamps: return
    a(f"    s_memtime s[84:85]\n    s_memrealtime s[86:87]\n    s_waitcnt lgkmcnt(0)\n    s_sub_u32 s84, s84, s80\n    v_writelane_b32 v{vreg}, s84, {idx}\n    v_writelane_b32 v{vreg}, s86, {32 + idx}")

_dbgn = [0]
def dbg_write(a, slot):
    _dbgn[0] += 1
    n = _dbgn[0]
    a(f"""    s_cmp_lg_u32 s2, 8
    s_cbranch_scc1 DBG_{n}
    s_cmp_lg_u32 s33, 0
    s_cbranch_scc1 DBG_{n}
    s_memrealtime s[84:85]
    s_waitcnt lgkmcnt(0)
    v_mov_b32 v250, s84
    v_mov_b32 v251, {slot*4}
    buffer_store_dword v250, v251, s[88:91], 0 offen
DBG_{n}:""")

def stamp_begin(a, vreg=250):
    if opt.dbg is not None:
        a(f"""    s_load_dwordx2 s[86:87], s[0:1], {ARG['dbg']}
    s_memrealtime s[82:83]
    s_waitcnt lgkmcnt(0)
    s_add_u32 s88, s86, {512*(opt.nk - 1 - opt.kidx)}
    s_addc_u32 s89, s87, 0
    s_mov_b32 s90, 256
    s_mov_b32 s91, 0x00020000
    v_mov_b32 v250, s82
    v_mov_b32 v251, {opt.dbg[(opt.kidx, 'b')]*4}
    s_cmp_lg_u32 s2, 8
    s_cbranch_scc1 DBGB_{opt.kidx}
    buffer_store_dword v250, v251, s[88:91], 0 offen
DBGB_{opt.kidx}:""")
        return
    if not opt.stamps: return
    a(f"    s_memtime s[80:81]\n    s_memrealtime s[82:83]\n    s_waitcnt lgkmcnt(0)\n    v_writelane_b32 v{vreg}, s82, 62")

def stamp_end(a, kidx, wsbase, wavereg, vreg=250):
    if opt.dbg is not None:
        a("    s_waitcnt vmcnt(0)")
        dbg_write(a, opt.dbg[(opt.kidx, 'e')])
        return
    if not opt.stamps: return
    a(f"""    s_memrealtime s[82:83]
    s_waitcnt lgkmcnt(0)
    v_writelane_b32 v{vreg}, s82, 63
    s_add_u32 s84, s{wsbase}, {STP_OFF + kidx * 0x80000:#x}
    s_addc_u32 s85, s{wsbase+1}, 0
    s_mov_b32 s86, 0x80000
    s_mov_b32 s87, 0x00020000
    s_lshl_b32 s88, s2, 3
    s_add_u32 s88, s88, s{wavereg}
    s_lshl_b32 s88, s88, 8
    v_mbcnt_lo_u32_b32 v{vreg+1}, -1, 0
    v_mbcnt_hi_u32_b32 v{vreg+1}, -1, v{vreg+1}
    v_lshlrev_b32 v{vreg+1}, 2, v{vreg+1}
    buffer_store_dword v{vreg}, v{vreg+1}, s[84:87], s88 offen""")

def vr(b, n):
    return f"v[{b}:{b+n-1}]" if n > 1 else f"v{b}"

def gemm_consumer_loop(a, L, MI, NI, nk, acc, F0, F1, vA, vB, a_imm, b_imm_kh, b_imm_t, s_slot, s_delta, s_k, stage, ns, tail=None, bar_gap=None, loop_extra=None, slot0=None):
    def reads(F, kh):
        r = []
        for mi in range(MI):
            reg, imm = vA(mi, kh)
            r.append(f"    ds_read_b128 {vr(F + 4*mi, 4)}, v{reg} offset:{imm}")
        for ni in range(NI):
            for t in range(2):
                r.append(f"    ds_read_b64_tr_b16 {vr(F + 4*MI + 4*ni + 2*t, 2)}, v{vB + ni} offset:{kh*b_imm_kh + t*b_imm_t}")
        return r
    def mfmas(F):
        r = []
        for ni in range(NI):
            for mi in range(MI):
                c = acc + 4 * (mi * NI + ni)
                r.append(f"    v_mfma_f32_16x16x32_bf16 {vr(c,4)}, {vr(F + 4*MI + 4*ni, 4)}, {vr(F + 4*mi, 4)}, {vr(c,4)}")
        return r
    def weave(mf, fill):
        i = 0
        for j, m in enumerate(mf):
            a(m)
            if i < len(fill):
                a(fill[i]); i += 1
        while i < len(fill):
            a(fill[i]); i += 1
    addr_regs = sorted(set(vA(mi, kh)[0] for mi in range(MI) for kh in range(2))) + [vB + i for i in range(NI)]
    def place(mf, items, per_gap, start=0, extra=None):
        gaps = [[] for _ in mf]
        g = start
        for j, it in enumerate(items):
            gaps[start + j // per_gap].append(it)
        for k, v in (extra or {}).items(): gaps[k] += v
        for m, gl in zip(mf, gaps):
            a(m)
            for x in gl: a(x)
    n = MI * NI
    nrd = MI + 2 * NI
    upd = [f"    v_add_u32 v{r}, s{s_delta}, v{r}" for r in addr_regs]
    late = bar_gap >= n
    wrapc = f"{(-(ns-1)*stage) & 0xffffffff:#x}"
    for l in reads(F0, 0): a(l)
    a(f"    s_add_u32 s{s_slot}, {slot0 or 0}, 1")
    a(f"    s_mov_b32 s{s_k}, 0\n    s_mov_b32 s47, {stage}\n    s_mov_b32 s{s_delta}, {stage}")
    a(f"{L}_loop:")
    ex = {}
    upg = 1 if nrd + len(upd) <= n - 1 else 2
    for j, u in enumerate(upd): ex.setdefault(nrd + j // upg, []).append(u)
    if not late:
        a("    s_waitcnt lgkmcnt(0)")
        ex.setdefault(bar_gap - 1, []).append(f"    s_add_u32 s{s_k}, s{s_k}, 1")
        ex.setdefault(bar_gap, []).append("    s_waitcnt lgkmcnt(0)\n    s_barrier")
        ex.setdefault(n - 1, []).append(f"    s_cmp_eq_u32 s{s_k}, {nk}\n    s_cbranch_scc1 {L}_tail")
        place(mfmas(F0), reads(F1, 1), 1, 0, ex)
        ex = {nrd: [f"    s_add_u32 s{s_slot}, s{s_slot}, 1\n    s_cmp_eq_u32 s{s_slot}, {ns}"],
              nrd + 1: [f"    s_cselect_b32 s{s_delta}, {wrapc}, s47\n    s_cselect_b32 s{s_slot}, 0, s{s_slot}"],
              n - 1: [f"    s_branch {L}_loop"]}
        for k, v in (loop_extra or {}).items(): ex.setdefault(k, []).append(v)
        place(mfmas(F1), reads(F0, 0), 1, 0, ex)
        a(f"{L}_tail:")
    else:
        bg = bar_gap - n
        a(f"    s_waitcnt lgkmcnt({2*(NI-1)})")
        for ni in range(1, NI):
            ex.setdefault(MI * ni - 1, []).append(f"    s_waitcnt lgkmcnt({2*(NI-1-ni) + min(nrd, MI*ni)})")
        ex.setdefault(n - 2, []).append(f"    s_add_u32 s{s_k}, s{s_k}, 1")
        ex.setdefault(n - 1, []).append(f"    s_cmp_eq_u32 s{s_k}, {nk}\n    s_cbranch_scc1 {L}_tail\n    s_waitcnt lgkmcnt({2*(NI-1)})")
        place(mfmas(F0), reads(F1, 1), 1, 0, ex)
        assert bg < MI and bg + 1 + nrd <= n
        ex = {0: [f"    s_add_u32 s{s_slot}, s{s_slot}, 1\n    s_cmp_eq_u32 s{s_slot}, {ns}"],
              1: [f"    s_cselect_b32 s{s_delta}, {wrapc}, s47\n    s_cselect_b32 s{s_slot}, 0, s{s_slot}"],
              n - 1: [f"    s_branch {L}_loop"]}
        ex.setdefault(bg, []).append("    s_waitcnt lgkmcnt(0)\n    s_barrier")
        place(mfmas(F1), reads(F0, 0), 1, bg + 1, ex)
        a(f"{L}_tail:\n    s_waitcnt lgkmcnt(0)\n    s_barrier")
    tail(mfmas(F1))

def gemm_loader_loop(a, L, nk, ns, per, issue, s_k):
    issue(); issue()
    a(f"    s_waitcnt vmcnt({per})\n    s_barrier")
    for s in range(ns - 2): issue()
    a(f"    s_mov_b32 s{s_k}, 0\n{L}_lloop:")
    a(f"    s_waitcnt vmcnt({(ns-2)*per})\n    s_barrier")
    if not opt.noload: issue()
    a(f"    s_add_u32 s{s_k}, s{s_k}, 1\n    s_cmp_lt_u32 s{s_k}, {nk-ns}\n    s_cbranch_scc1 {L}_lloop")
    for k in range(nk - ns, nk):
        left = max(0, nk - 1 - (k + 1))
        if k + 1 < nk: a(f"    s_waitcnt vmcnt({left*per})")
        a("    s_barrier")

def gen_g1(a, kidx):
    name = "g1_kernel"; L = "G1"
    STAGE = 49152; NS = 3; NK = 16
    kernel_head(a, name)
    a(f"""    s_cmp_ge_u32 s2, 256
    s_cbranch_scc1 {L}_end
    s_load_dwordx2 s[4:5], s[0:1], {ARG['ws']}
    s_load_dwordx2 s[6:7], s[0:1], {ARG['w1']}
    s_load_dwordx2 s[8:9], s[0:1], {ARG['b1']}
    s_load_dwordx2 s[10:11], s[0:1], {ARG['w2']}""")
    stamp_begin(a)
    a(f"""    v_lshrrev_b32 v1, 6, v0
    v_and_b32 v2, 63, v0
    s_and_b32 s24, s2, 7
    v_readfirstlane_b32 s33, v1
    s_lshr_b32 s25, s2, 3
    s_lshr_b32 s26, s24, 1
    s_lshl_b32 s26, s26, 2
    s_and_b32 s27, s25, 3
    s_add_u32 s26, s26, s27          ; mt
    s_and_b32 s27, s24, 1
    s_lshl_b32 s27, s27, 3
    s_lshr_b32 s28, s25, 2
    s_add_u32 s27, s27, s28          ; nt
    s_and_b32 s29, s27, 1
    s_cmp_lt_u32 s33, 4
    s_cbranch_scc1 {L}_cons""")
    a(f"""    s_sub_u32 s34, s33, 4            ; lw
    s_lshl_b32 s35, s34, 12          ; lw*4096
    v_lshl_add_u32 v10, v2, 4, s35   ; A voffset
    s_lshl_b32 s30, s26, 18
    s_mul_i32 s31, s27, 448
    s_and_b32 s31, s31, 0xffffff80   ; B soffset
    s_mov_b32 s38, s35
    s_add_u32 s39, s35, {NS*STAGE}
    s_add_u32 s37, s35, 16384
    v_lshrrev_b32 v3, 5, v2          ; hi
    s_lshl_b32 s36, s34, 4
    v_add_u32 v4, s36, v3            ; 16lw+hi
    s_movk_i32 s36, 7168
    v_mul_lo_u32 v4, v4, s36
    v_and_b32 v5, 1, v2
    v_lshl_add_u32 v4, v5, 4, v4     ; t0
    v_bfe_u32 v5, v2, 1, 4
    v_xor_b32 v5, v5, v3             ; x0
    s_waitcnt lgkmcnt(0)""")
    srd(a, 12, 4, MB4, off=HN_OFF); srd(a, 16, 6, 1024 * 7168)
    for ci, c in enumerate((0, 2, 4, 6)):
        a(f"    v_xor_b32 v6, {c}, v5\n    v_lshl_add_u32 v6, v6, 5, v4")
        for i in range(8):
            if 2 * (i & 1) + 4 * (i >> 2) == c:
                a(f"    v_add_u32 v{12+i}, {2*i*7168 - (i&3)*1024}, v6")
    def issue():
        a("    s_mov_b32 m0, s38\n    s_add_u32 s36, s38, s37")
        for i in range(4): a(f"    buffer_load_dwordx4 v10, s[12:15], s30 offen offset:{i*1024} lds")
        a("    s_mov_b32 m0, s36\n    s_add_u32 s30, s30, 16384")
        for i in range(4): a(f"    buffer_load_dwordx4 v{12+i}, s[16:19], s31 offen offset:{i*1024} lds")
        a(f"    s_add_u32 m0, s36, 4096\n    s_add_u32 s38, s38, {STAGE}")
        for i in range(4, 8): a(f"    buffer_load_dwordx4 v{12+i}, s[16:19], s31 offen offset:{(i&3)*1024} lds")
        a(f"    s_add_u32 s31, s31, {64*7168}\n    s_cmp_ge_u32 s38, s39\n    s_cselect_b32 s38, s35, s38")
    stamp(a, 0)
    gemm_loader_loop(a, L, NK, NS, 12, issue, 40)
    stamp(a, 1)
    a(f"    s_branch {L}_epi2")
    ACC = 0; F0 = 112; F1 = 156; VA = 200; VB = 202; VBI = 210
    a(f"""{L}_cons:
    v_mov_b32 v240, v2               ; lane
    s_and_b32 s34, s33, 1            ; wm
    s_lshr_b32 s35, s33, 1           ; wn
    v_and_b32 v241, 15, v240         ; r
    v_lshrrev_b32 v242, 4, v240      ; kg
    s_mul_i32 s36, s27, 224
    s_mul_i32 s37, s35, 112
    s_add_u32 s36, s36, s37
    s_lshl_b32 s36, s36, 1
    v_lshlrev_b32 v243, 3, v242
    s_waitcnt lgkmcnt(0)""")
    srd(a, 16, 8, 7168)
    for ni in range(7):
        a(f"    buffer_load_dwordx2 {vr(VBI + 2*ni, 2)}, v243, s[16:19], s36 offen offset:{32*ni}")
    a(f"""    s_lshl_b32 s36, s34, 13          ; wm*64*128
    v_lshl_add_u32 v244, v241, 7, s36
    v_and_b32 v245, 7, v241          ; r7
    v_xor_b32 v246, v242, v245
    v_lshl_add_u32 v{VA}, v246, 4, v244
    v_xor_b32 v246, 4, v246
    v_lshl_add_u32 v{VA+1}, v246, 4, v244
    v_bfe_u32 v246, v240, 2, 2       ; rr
    v_lshl_add_u32 v247, v242, 3, v246   ; 8kg+rr
    v_lshlrev_b32 v247, 9, v247
    v_and_b32 v248, 3, v240          ; cc
    v_lshl_add_u32 v247, v248, 3, v247
    v_add_u32 v247, 16384, v247
    v_and_b32 v248, 1, v242
    v_lshl_or_b32 v246, v248, 2, v246    ; g
    s_mul_i32 s37, s35, 7
    s_lshl_b32 s38, s29, 1
    s_add_u32 s37, s37, s38          ; f0 = 2p + 7wn""")
    for ni in range(7):
        a(f"    s_add_u32 s38, s37, {ni}\n    v_xor_b32 v248, s38, v246\n    v_lshl_add_u32 v{VB+ni}, v248, 5, v247")
    a("    s_waitcnt vmcnt(0)")
    for ni in range(7):
        for d in range(2):
            c = ACC + 4 * ni + 2 * d
            a(f"    v_lshlrev_b32 v{c}, 16, v{VBI+2*ni+d}\n    v_and_b32 v{c+1}, 0xffff0000, v{VBI+2*ni+d}")
    for mi in range(1, 4):
        for ni in range(7):
            for d in range(2):
                c = ACC + 4 * (mi * 7 + ni) + 2 * d
                a(f"    v_mov_b64 {vr(c,2)}, {vr(ACC + 4*ni + 2*d, 2)}")
    srd(a, 20, 10, 3584 * 2048)
    a(f"""    s_mul_i32 s38, s2, 28672
    s_mul_i32 s39, s33, 7168
    s_add_u32 s38, s38, s39
    v_lshlrev_b32 v248, 7, v240
    {"buffer_load_dword v249, v248, s[20:23], s38 offen" if opt.w2pf else ""}""")
    stamp(a, 0)
    a("    s_barrier")
    stamp(a, 1)
    def g1_tail(mf):
        pre = [f"""    v_lshrrev_b32 v246, 1, v242      ; kg>>1
    v_xor_b32 v246, v246, v245       ; (kg>>1)^r7
    v_and_b32 v247, 1, v242
    v_lshl_add_u32 v247, v247, 3, v244   ; m*128 + half*8"""]
        def addr(ni):
            return f"""    s_add_u32 s38, s37, {ni}
    s_lshr_b32 s39, s38, 2
    s_lshl_b32 s39, s39, 14
    s_and_b32 s38, s38, 3
    s_lshl_b32 s38, s38, 1
    v_xor_b32 v248, s38, v246
    v_lshl_add_u32 v248, v248, 4, v247
    v_add_u32 v{VB+ni}, s39, v248"""
        def act(ni, mi):
            c = ACC + 4 * (mi * 7 + ni)
            r = [f"    v_max_f32 v{c+x}, 0, v{c+x}" for x in range(4)]
            r += [f"    v_pk_mul_f32 {vr(c,2)}, {vr(c,2)}, {vr(c,2)}", f"    v_pk_mul_f32 {vr(c+2,2)}, {vr(c+2,2)}, {vr(c+2,2)}",
                  f"    v_cvt_pk_bf16_f32 v{c}, v{c}, v{c+1}", f"    v_cvt_pk_bf16_f32 v{c+1}, v{c+2}, v{c+3}",
                  f"    ds_write_b64 v{VB+ni}, {vr(c,2)} offset:{mi*2048}"]
            return "\n".join(r)
        a(mf[0]); a(pre[0])
        for j in range(1, 8):
            a(mf[j]); a(addr(j - 1))
        for ni in range(7):
            for mi in range(4):
                j = 4 * (ni + 2) + mi
                if j < 28: a(mf[j])
                a(act(ni, mi))
    gemm_consumer_loop(a, L, 4, 7, NK, ACC, F0, F1, lambda mi, kh: (VA + kh, mi * 2048), VB, None, 16384, 2048, 41, 42, 40, STAGE, NS, tail=g1_tail, bar_gap=opt.g1_bar)
    a("    s_waitcnt lgkmcnt(0)")
    stamp(a, 3)
    a(f"""{L}_epi2:
    s_barrier
    v_mbcnt_lo_u32_b32 v2, -1, 0
    v_mbcnt_hi_u32_b32 v2, -1, v2
    s_lshl_b32 s36, s33, 10
    v_lshl_add_u32 v3, v2, 4, s36
    v_lshrrev_b32 v4, 3, v2
    v_xor_b32 v4, v4, v2
    v_bfe_u32 v4, v4, 2, 1               ; c bit2
    v_cmp_eq_u32 vcc, 1, v4
    s_mul_i32 s36, s27, 7
    s_lshr_b32 s36, s36, 1               ; ks0
    s_mul_i32 s37, s26, 56
    s_add_u32 s36, s36, s37
    s_lshl_b32 s36, s36, 14
    v_mov_b32 v5, 0x80000000
    v_cndmask_b32 v6, v5, v3, vcc
    v_cndmask_b32 v7, v3, v5, vcc
    s_cmp_eq_u32 s29, 1
    s_cselect_b64 vcc, -1, 0""")
    srd(a, 12, 4, H1_SZ, off=H1_OFF)
    a("""    v_cndmask_b32 v6, v3, v6, vcc
    v_cndmask_b32 v7, v7, v3, vcc""")
    for j in range(8): a(f"    ds_read_b128 {vr(16+4*j,4)}, v3 offset:{8192*j}")
    for j in range(8):
        vo = 6 if j < 2 else (7 if j >= 6 else 3)
        a(f"    s_waitcnt lgkmcnt({7-j})\n    buffer_store_dwordx4 {vr(16+4*j,4)}, v{vo}, s[12:15], s36 offen\n    s_add_u32 s36, s36, 8192")
    stamp(a, 4)
    if opt.stamps: a("    s_waitcnt vmcnt(0)")
    stamp(a, 5)
    stamp_end(a, kidx, 4, 33)
    a(f"{L}_end:\n    s_endpgm")
    return (name, 256, 512, NS * STAGE), (name, 256, 96)

def gen_g2(a, kidx):
    name = "g2_kernel"; L = "G2"
    STAGE = 32768; NS = 4; NK = 28
    kernel_head(a, name)
    a(f"""    s_cmp_ge_u32 s2, 256
    s_cbranch_scc1 {L}_end
    s_load_dwordx2 s[4:5], s[0:1], {ARG['ws']}
    s_load_dwordx2 s[6:7], s[0:1], {ARG['w2']}
    s_load_dwordx2 s[8:9], s[0:1], {ARG['b2']}
    s_load_dwordx2 s[10:11], s[0:1], {ARG['out']}""")
    stamp_begin(a)
    a(f"""    v_lshrrev_b32 v1, 6, v0
    v_and_b32 v2, 63, v0
    s_and_b32 s24, s2, 7
    v_readfirstlane_b32 s33, v1
    s_lshr_b32 s25, s2, 3
    s_and_b32 s29, s24, 1            ; kh
    s_lshr_b32 s26, s24, 1
    s_lshl_b32 s26, s26, 2
    s_and_b32 s27, s25, 3
    s_add_u32 s26, s26, s27          ; mt
    s_lshr_b32 s27, s25, 2           ; nt
    s_lshl_b32 s43, s26, 7
    s_lshl_b32 s44, s29, 5
    s_add_u32 s43, s43, s44
    s_lshl_b32 s44, s33, 2
    s_add_u32 s43, s43, s44
    s_lshl_b32 s43, s43, 11          ; row*2048
    s_lshl_b32 s44, s27, 8
    s_add_u32 s43, s43, s44
    v_lshrrev_b32 v230, 4, v2
    v_lshlrev_b32 v230, 11, v230
    v_and_b32 v231, 15, v2
    v_lshl_add_u32 v230, v231, 4, v230
    s_add_u32 s44, s43, {64*2048}
    s_waitcnt lgkmcnt(0)""")
    srd(a, 20, 4, MB4, off=H_OFF)
    a("""    buffer_load_dwordx4 v[232:235], v230, s[20:23], s43 offen
    buffer_load_dwordx4 v[236:239], v230, s[20:23], s44 offen""")
    a(f"""    s_cmp_lt_u32 s33, 4
    s_cbranch_scc1 {L}_cons""")
    a(f"""    s_sub_u32 s34, s33, 4            ; lw
    s_lshl_b32 s35, s34, 12          ; lw*4096
    v_lshl_add_u32 v10, v2, 4, s35   ; A voffset
    s_mul_i32 s30, s26, 56
    s_mul_i32 s36, s29, 28
    s_add_u32 s30, s30, s36
    s_lshl_b32 s30, s30, 14          ; A soffset
    s_mul_i32 s31, s29, {1792*2048}
    s_lshl_b32 s36, s27, 8
    s_add_u32 s31, s31, s36          ; B soffset
    s_mov_b32 s38, s35
    s_add_u32 s39, s35, {NS*STAGE}
    v_lshrrev_b32 v3, 4, v2          ; q4
    s_lshl_b32 s36, s34, 4
    v_add_u32 v4, s36, v3
    v_lshlrev_b32 v4, 11, v4
    v_and_b32 v5, 1, v2
    v_lshl_add_u32 v4, v5, 4, v4     ; t0
    v_bfe_u32 v5, v2, 1, 3
    v_xor_b32 v5, v5, v3             ; x0""")
    srd(a, 12, 4, H1_SZ, off=H1_OFF); srd(a, 16, 6, 3584 * 2048)
    for c in (0, 4):
        a(f"    v_xor_b32 v6, {c}, v5\n    v_lshl_add_u32 v6, v6, 5, v4")
        for i in range(4):
            if 4 * (i >> 1) == c:
                a(f"    v_add_u32 v{12+i}, {4*i*2048 - i*1024}, v6")
    def issue():
        a("    s_mov_b32 m0, s38\n    s_add_u32 s36, s38, 16384")
        for i in range(4): a(f"    buffer_load_dwordx4 v10, s[12:15], s30 offen offset:{i*1024} lds")
        a(f"    s_mov_b32 m0, s36\n    s_add_u32 s30, s30, 16384\n    s_add_u32 s38, s38, {STAGE}")
        for i in range(4): a(f"    buffer_load_dwordx4 v{12+i}, s[16:19], s31 offen offset:{i*1024} lds")
        a(f"    s_add_u32 s31, s31, {64*2048}\n    s_cmp_ge_u32 s38, s39\n    s_cselect_b32 s38, s35, s38")
    stamp(a, 0)
    gemm_loader_loop(a, L, NK, NS, 8, issue, 40)
    stamp(a, 1)
    a(f"    s_branch {L}_epi2")
    ACC = 0; F0 = 64; F1 = 96; VA = 128; VB = 132; VBI = 136
    a(f"""{L}_cons:
    v_mov_b32 v200, v2               ; lane
    s_and_b32 s34, s33, 1            ; wm
    s_lshr_b32 s35, s33, 1           ; wn
    v_and_b32 v201, 15, v200         ; r
    v_lshrrev_b32 v202, 4, v200      ; kg
    s_lshl_b32 s36, s27, 8
    s_lshl_b32 s37, s35, 7
    s_add_u32 s36, s36, s37
    v_lshlrev_b32 v203, 3, v202""")
    srd(a, 16, 8, 2048)
    for ni in range(4):
        a(f"    buffer_load_dwordx2 {vr(VBI + 2*ni, 2)}, v203, s[16:19], s36 offen offset:{32*ni}")
    a(f"""    s_lshl_b32 s36, s34, 13
    s_lshl_b32 s37, s29, 12
    s_add_u32 s36, s36, s37
    v_lshl_add_u32 v204, v201, 7, s36
    v_and_b32 v205, 7, v201              ; r7
    v_xor_b32 v206, v202, v205
    v_lshl_add_u32 v{VA}, v206, 4, v204
    v_xor_b32 v{VA+1}, 64, v{VA}
    v_xor_b32 v{VA+2}, 4096, v{VA}
    v_xor_b32 v{VA+3}, 4096, v{VA+1}
    v_bfe_u32 v206, v200, 2, 2           ; rr
    v_lshl_add_u32 v207, v202, 3, v206
    v_lshlrev_b32 v207, 8, v207
    v_and_b32 v208, 3, v200
    v_lshl_add_u32 v207, v208, 3, v207
    v_add_u32 v207, 16384, v207
    v_and_b32 v208, 1, v202
    v_lshl_or_b32 v206, v208, 2, v206    ; g
    s_lshl_b32 s37, s35, 2""")
    for ni in range(4):
        a(f"    s_add_u32 s38, s37, {ni}\n    v_xor_b32 v208, s38, v206\n    v_lshl_add_u32 v{VB+ni}, v208, 5, v207")
    for i in range(32, 64, 2): a(f"    v_mov_b64 {vr(ACC+i,2)}, 0")
    a("    s_waitcnt vmcnt(0)")
    for ni in range(4):
        for d in range(2):
            c = ACC + 4 * ni + 2 * d
            a(f"    v_lshlrev_b32 v{c}, 16, v{VBI+2*ni+d}\n    v_and_b32 v{c+1}, 0xffff0000, v{VBI+2*ni+d}")
            a(f"    v_mov_b64 {vr(c+16,2)}, {vr(c,2)}")
    stamp(a, 0)
    a("    s_barrier")
    stamp(a, 1)
    def g2_tail(mf):
        send = [m for j, m in enumerate(mf) if (j & 3) >= 2]; keep = [m for j, m in enumerate(mf) if (j & 3) < 2]
        for m in send: a(m)
        srd(a, 12, 4, 256 * 16384, off=XCH_OFF); srd(a, 16, 4, 256 * 512, off=FLG_OFF)
        a(keep[0])
        a(f"""    v_lshlrev_b32 v203, 4, v200
    s_lshl_b32 s36, s2, 14
    s_lshl_b32 s37, s33, 12
    s_add_u32 s36, s36, s37
    s_xor_b32 s45, s36, 0x4000""")
        a(keep[1])
        for q in range(4):
            for h in range(2):
                c = ACC + 32 + 8 * q + 4 * h
                a(f"    v_cvt_pk_bf16_f32 v{F0 + 4*q + 2*h}, v{c}, v{c+1}\n    v_cvt_pk_bf16_f32 v{F0 + 4*q + 2*h + 1}, v{c+2}, v{c+3}")
            a(f"    buffer_store_dwordx4 {vr(F0+4*q,4)}, v203, s[12:15], s36 offen offset:{q*1024} sc1")
            for m in keep[2 + 2*q: 4 + 2*q]: a(m)
    gemm_consumer_loop(a, L, 4, 4, NK, ACC, F0, F1, lambda mi, kh: (VA + 2 * (mi >> 1) + kh, (mi & 1) * 2048), VB, None, 8192, 1024, 41, 42, 40, STAGE, NS, tail=g2_tail, bar_gap=opt.g2_bar)
    stamp(a, 2)
    a(f"""    s_lshl_b32 s36, s2, 9
    s_lshl_b32 s37, s33, 7
    s_add_u32 s36, s36, s37
    s_xor_b32 s37, s36, 0x200
    v_mov_b32 v209, 1
    v_mov_b32 v210, 0
    v_lshrrev_b32 v206, 1, v202
    v_xor_b32 v206, v206, v201           ; (kg>>1) ^ r
    s_lshl_b32 s38, s34, 13              ; 32wm*256
    v_lshl_add_u32 v207, v201, 8, s38
    v_and_b32 v208, 1, v202
    v_lshl_add_u32 v207, v208, 3, v207
    s_lshl_b32 s39, s35, 3""")
    for ni in range(4):
        a(f"    s_add_u32 s38, s39, {2*ni}\n    v_xor_b32 v208, s38, v206\n    v_lshl_add_u32 v{VB+ni}, v208, 4, v207")
    a(f"""    s_mov_b64 exec, 1
    s_waitcnt vmcnt(0)
    buffer_store_dword v209, v210, s[16:19], s36 offen sc1""")
    stamp(a, 3)
    a(f"""{L}_poll:
    buffer_load_dword v211, v210, s[16:19], s37 offen sc1
    s_waitcnt vmcnt(0)
    v_readfirstlane_b32 s38, v211
    s_cmp_eq_u32 s38, 1
    s_cbranch_scc0 {L}_poll
    s_mov_b64 exec, -1""")
    stamp(a, 4)
    for q in range(4):
        a(f"    buffer_load_dwordx4 {vr(F1+4*q,4)}, v203, s[12:15], s45 offen offset:{q*1024} sc1")
    for j in range(8):
        mi, ni = j >> 2, j & 3
        c = ACC + 4 * j; p = F1 + 2 * j
        if j % 2 == 0: a(f"    s_waitcnt vmcnt({3 - j//2})")
        a(f"""    v_lshlrev_b32 v212, 16, v{p}
    v_and_b32 v213, 0xffff0000, v{p}
    v_lshlrev_b32 v214, 16, v{p+1}
    v_and_b32 v215, 0xffff0000, v{p+1}
    v_pk_add_f32 {vr(c,2)}, {vr(c,2)}, v[212:213]
    v_pk_add_f32 {vr(c+2,2)}, {vr(c+2,2)}, v[214:215]
    v_cvt_pk_bf16_f32 v{c}, v{c}, v{c+1}
    v_cvt_pk_bf16_f32 v{c+1}, v{c+2}, v{c+3}
    ds_write_b64 v{VB+ni}, {vr(c,2)} offset:{mi*4096}""")
    a("    s_waitcnt lgkmcnt(0)")
    stamp(a, 5)
    a(f"""{L}_epi2:
    s_barrier                            ; X3
    v_mbcnt_lo_u32_b32 v2, -1, 0
    v_mbcnt_hi_u32_b32 v2, -1, v2
    v_lshrrev_b32 v3, 4, v2
    s_lshl_b32 s36, s33, 2
    v_add_u32 v3, s36, v3                ; lr (j=0)
    v_xor_b32 v4, v3, v2
    v_and_b32 v4, 15, v4
    v_lshlrev_b32 v4, 4, v4
    v_lshl_add_u32 v3, v3, 8, v4
    ds_read_b128 v[16:19], v3
    ds_read_b128 v[20:23], v3 offset:8192""")
    srd(a, 12, 10, MB4)
    a("    s_waitcnt vmcnt(0)")
    for j in range(2):
        a(f"    s_waitcnt lgkmcnt({1-j})")
        for d in range(4):
            o = 16 + 4 * j + d; h = 232 + 4 * j + d
            a(f"""    v_lshlrev_b32 v8, 16, v{o}
    v_and_b32 v9, 0xffff0000, v{o}
    v_lshlrev_b32 v10, 16, v{h}
    v_and_b32 v11, 0xffff0000, v{h}
    v_pk_add_f32 v[8:9], v[8:9], v[10:11]
    v_cvt_pk_bf16_f32 v{o}, v8, v9""")
        a(f"    buffer_store_dwordx4 {vr(16+4*j,4)}, v230, s[12:15], s{43+j} offen")
    stamp(a, 6)
    if opt.stamps: a("    s_waitcnt vmcnt(0)")
    stamp(a, 7)
    stamp_end(a, kidx, 4, 33)
    a(f"{L}_end:\n    s_endpgm")
    return (name, 256, 512, NS * STAGE), (name, 256, 96)


def add_imm(a, dst, src, imm):
    a(f"    v_add_u32 v{dst}, {imm:#x}, v{src}")

def touch(a, srdreg, vtmp, vlane, soff_shift_mul, ninstr, dst):
    pass

def gen_p(a, kidx):
    name = "p_kernel"; L = "P"
    kernel_head(a, name)
    a(f"""    s_cmp_ge_u32 s2, 256
    s_cbranch_scc1 {L}_end
    s_load_dwordx4 s[4:7], s[0:1], {ARG['k']}      ; k, v
    s_load_dwordx4 s[8:11], s[0:1], {ARG['shift']}
    s_load_dwordx2 s[40:41], s[0:1], {ARG['ws']}""")
    stamp_begin(a)
    a(f"""    v_lshrrev_b32 v1, 6, v0
    v_and_b32 v2, 63, v0
    s_and_b32 s24, s2, 7             ; cb
    v_readfirstlane_b32 s33, v1
    s_lshr_b32 s25, s2, 3            ; rb
    v_and_b32 v3, 7, v2              ; cg
    v_lshrrev_b32 v4, 3, v2          ; rg
    s_lshl_b32 s26, s25, 17
    s_lshl_b32 s27, s24, 8
    s_add_u32 s26, s26, s27
    s_lshl_b32 s27, s33, 6
    s_add_u32 s26, s26, s27
    v_lshlrev_b32 v5, 14, v4
    v_lshl_add_u32 v5, v3, 3, v5
    v_add_u32 v5, s26, v5            ; vbase
    v_subrev_u32 v6, 6144, v5
    v_subrev_u32 v7, 2048, v5
    s_movk_i32 s44, 4096
    s_movk_i32 s45, 8192
    s_movk_i32 s46, 12288
    s_lshl_b32 s27, s24, 10
    s_lshl_b32 s28, s33, 8
    s_add_u32 s27, s27, s28
    v_lshlrev_b32 v8, 5, v3
    s_waitcnt lgkmcnt(0)""")
    srd(a, 12, 4, MB4); srd(a, 16, 6, MB4); srd(a, 20, 8, 8192)
    KR = 16; VR = 38; WR = 54
    so = ["0", "s44", "s45", "s46"]
    a(f"    buffer_load_dwordx4 {vr(WR,4)}, v8, s[20:23], s27 offen\n    buffer_load_dwordx4 {vr(WR+4,4)}, v8, s[20:23], s27 offen offset:16")
    a(f"    buffer_load_dwordx2 {vr(KR,2)}, v6, s[12:15], 0 offen nt\n    buffer_load_dwordx2 {vr(KR+2,2)}, v6, s[12:15], 0 offen offset:2048 nt\n    buffer_load_dwordx2 {vr(KR+4,2)}, v7, s[12:15], 0 offen nt")
    for j in range(8):
        a(f"    buffer_load_dwordx2 {vr(KR+6+2*j,2)}, v5, s[12:15], {so[j>>1]} offen offset:{(j&1)*2048} nt")
        a(f"    buffer_load_dwordx2 {vr(VR+2*j,2)}, v5, s[16:19], {so[j>>1]} offen offset:{(j&1)*2048} nt")
    srd(a, 28, 10, MB4); srd(a, 36, 40, 64 << 20)
    a(f"""    s_lshl_b32 s47, s2, 14
    v_lshlrev_b32 v9, 6, v0
    buffer_load_dword v10, v9, s[28:31], s47 offen
    s_mul_i32 s47, s2, 560
    s_add_u32 s47, s47, {FLG_OFF:#x}
    v_min_u32 v11, 139, v0
    v_lshlrev_b32 v11, 2, v11
    v_mov_b32 v12, 0
    buffer_store_dword v12, v11, s[36:39], s47 offen""")
    if opt.codepf:
        a(f"""    s_cmp_ge_u32 s2, 8
    s_cbranch_scc1 {L}_nocode
    s_getpc_b64 s[50:51]
{L}_pc:
    v_lshlrev_b32 v13, 7, v0
    v_min_u32 v13, TEXT_END - {L}_pc - 4, v13
    global_load_dword v62, v13, s[50:51]
{L}_nocode:""")
    a(f"""    v_xor_b32 v13, 7, v4
    v_xor_b32 v13, v13, v3
    v_lshlrev_b32 v13, 4, v13
    v_lshl_add_u32 v13, v3, 9, v13
    s_lshl_b32 s47, s33, 12
    v_add_u32 v13, s47, v13
    v_lshl_add_u32 v14, v2, 4, s47
    v_lshrrev_b32 v15, 5, v2
    v_xor_b32 v15, v15, v3               ; x0 = (l&7)^(l>>5)
    v_lshlrev_b32 v9, 12, v4             ; (l>>3)*4096""")
    WF = 64; KF = 80; VF = 124; OF = 156; PK = 190
    stamp(a, 0)
    a("    s_waitcnt vmcnt(21)")
    for c in range(4):
        for j in range(4):
            src = WR + 2 * c + (j >> 1); d = WF + (c >> 1) * 8 + j * 2 + (c & 1)
            a(f"    v_lshlrev_b32 v{d}, 16, v{src}" if j % 2 == 0 else f"    v_and_b32 v{d}, 0xffff0000, v{src}")
    def unpack(dst, src):
        for p in range(2):
            a(f"    v_lshlrev_b32 v{dst+2*p}, 16, v{src+p}\n    v_and_b32 v{dst+2*p+1}, 0xffff0000, v{src+p}")
    a("    s_waitcnt vmcnt(18)")
    for r in range(3): unpack(KF + 4 * r, KR + 2 * r)
    for j in range(8):
        a(f"    s_waitcnt vmcnt({16 - 2*j})")
        unpack(KF + 4 * (3 + j), KR + 6 + 2 * j); unpack(VF + 4 * j, VR + 2 * j)
        for p in range(2):
            o = OF + 4 * j + 2 * p
            k = lambda r: vr(KF + 4 * r + 2 * p, 2)
            w = lambda t: vr(WF + p * 8 + 2 * t, 2)
            a(f"    v_pk_mul_f32 {vr(o,2)}, {k(j)}, {w(3)}")
            a(f"    v_pk_fma_f32 {vr(o,2)}, {k(j+1)}, {w(2)}, {vr(o,2)}")
            a(f"    v_pk_fma_f32 {vr(o,2)}, {k(j+2)}, {w(1)}, {vr(o,2)}")
            a(f"    v_pk_fma_f32 {vr(o,2)}, {k(j+3)}, {w(0)}, {vr(o,2)}")
            a(f"    v_pk_mul_f32 {vr(o,2)}, {vr(o,2)}, {vr(VF + 4*j + 2*p, 2)}")
    stamp(a, 1)
    for c in range(4):
        for d in range(4):
            a(f"    v_cvt_pk_bf16_f32 v{PK+4*c+d}, v{OF + 4*(7-2*d) + c}, v{OF + 4*(6-2*d) + c}")
        a(f"    ds_write_b128 v13, {vr(PK+4*c,4)} offset:{128*c}")
    a(f"""    s_lshl_b32 s47, s24, 19
    s_lshl_b32 s48, s33, 17
    s_add_u32 s47, s47, s48              ; (cb*128+w*32)*4096
    s_lshl_b32 s48, s25, 7
    s_sub_u32 s48, {3968 + KVR_OFF}, s48
    s_add_u32 s47, s47, s48
    s_waitcnt lgkmcnt(0)""")
    for i in range(4): a(f"    ds_read_b128 {vr(16+4*i,4)}, v14 offset:{1024*i}")
    for i in range(4):
        a(f"    v_xor_b32 v8, {2*i}, v15\n    v_lshl_add_u32 v{32+i}, v8, 4, v9")
    for i in range(4):
        a(f"    s_waitcnt lgkmcnt({3-i})\n    buffer_store_dwordx4 {vr(16+4*i,4)}, v{32+i}, s[36:39], s47 offen\n    s_add_u32 s47, s47, 32768")
    stamp(a, 2)
    if opt.stamps: a("    s_waitcnt vmcnt(0)")
    stamp(a, 3)
    stamp_end(a, kidx, 40, 33)
    a(f"{L}_end:\n    s_endpgm")
    return (name, 256, 256, 16384), (name, 256 if opt.stamps else 208, 96)

def gen_c(a, kidx):
    name = "c_kernel"; L = "C"
    CS = 4160; RO = 4 * CS; WSZ = 21248; STG = 4 * WSZ; SST = 4096 + 32
    kernel_head(a, name)
    a(f"""    s_cmp_ge_u32 s2, 256
    s_cbranch_scc1 {L}_end
    s_load_dwordx4 s[4:7], s[0:1], {ARG['ssmk']}
    s_load_dwordx2 s[40:41], s[0:1], {ARG['ws']}
    s_load_dwordx2 s[8:9], s[0:1], {ARG['q']}
    s_load_dwordx2 s[10:11], s[0:1], {ARG['w1']}
    s_load_dwordx2 s[42:43], s[0:1], {ARG['w2']}""")
    stamp_begin(a)
    a(f"""    v_lshrrev_b32 v1, 6, v0
    v_and_b32 v2, 63, v0
    s_and_b32 s24, s2, 7
    v_readfirstlane_b32 s33, v1
    s_lshl_b32 s24, s24, 5
    s_lshr_b32 s25, s2, 3
    s_add_u32 s24, s24, s25          ; cg
    s_lshl_b32 s25, s24, 2
    s_add_u32 s25, s25, s33          ; ch
    s_lshl_b32 s26, s25, 12          ; ch*4096
    s_mul_i32 s27, s33, {WSZ}        ; WB
    v_lshlrev_b32 v3, 4, v2          ; lane*16
    s_add_u32 m0, s27, {RO}
    s_lshr_b32 s28, s25, 1
    s_lshl_b32 s28, s28, 2
    s_waitcnt lgkmcnt(0)""")
    srd(a, 12, 4, MB4); srd(a, 16, 40, 64 << 20)
    FD = 16; FE = 32; FX = 48; TO = 52
    for i in range(4):
        a(f"    buffer_load_dwordx4 {vr(FD+4*i,4)}, v3, s[12:15], s26 offen offset:{1024*i}")
        a(f"    buffer_load_dwordx4 {vr(FE+4*i,4)}, v3, s[12:15], s26 offen offset:{1024*i+4}")
        a(f"    buffer_load_dword v{FX+i}, v3, s[12:15], s26 offen offset:{1024*i+20}")
    for i in range(4):
        a(f"    buffer_load_dwordx4 v3, s[16:19], s26 offen offset:{1024*i} lds")
    a(f"""    s_load_dword s29, s[6:7], s28
    v_add_u32 v4, s27, v3
    v_mov_b32 v60, 0
    v_mov_b32 v61, 0
    v_mov_b32 v62, 0
    v_mov_b32 v63, 0
    s_mov_b64 exec, 0x3fffffff
    ds_write_b128 v4, v[60:63] offset:{RO + 4096}
    s_mov_b64 exec, -1
    v_and_b32 v5, 15, v2             ; b / a
    v_lshrrev_b32 v6, 4, v2          ; kg
    v_add_u32 v7, 1, v5
    v_and_b32 v8, 3, v7
    v_mul_u32_u24 v8, {CS}, v8
    v_and_b32 v7, 28, v7
    v_lshl_add_u32 v8, v7, 1, v8
    v_lshl_add_u32 v8, v6, 4, v8
    v_add_u32 v8, s27, v8            ; vAT
    v_lshlrev_b32 v9, 5, v5
    v_sub_u32 v9, {RO + 480}, v9
    v_lshl_add_u32 v9, v6, 4, v9
    v_add_u32 v9, s27, v9            ; vBT""")
    stamp(a, 0)
    for i in range(4):
        D = FD + 4 * i; E = FE + 4 * i
        a(f"    s_waitcnt vmcnt({4 + 9 - 3*i})")
        a(f"    ds_write_b128 v4, {vr(D,4)} offset:{32 + 1024*i}")
        a(f"    ds_write_b128 v4, {vr(E,4)} offset:{2*CS + 32 + 1024*i}")
        t = TO + 8 * (i & 1)
        for k in range(4): a(f"    v_alignbit_b32 v{t+k}, v{E+k}, v{D+k}, 16")
        a(f"    ds_write_b128 v4, {vr(t,4)} offset:{CS + 32 + 1024*i}")
        for k in range(4): a(f"    v_alignbit_b32 v{t+4+k}, v{E+k+1 if k < 3 else FX+i}, v{E+k}, 16")
        a(f"    ds_write_b128 v4, {vr(t+4,4)} offset:{3*CS + 32 + 1024*i}")
        if i == 0:
            a(f"""    v_mov_b32 v68, 0
    v_mov_b32 v69, 0
    v_mov_b32 v70, 0
    v_lshlrev_b32 v71, 16, v{D}
    v_mov_b32 v72, 0
    v_mov_b32 v73, 0
    v_mov_b32 v74, 0
    v_mov_b32 v75, v{D}
    v_mov_b32 v76, 0
    v_mov_b32 v77, 0
    v_mov_b32 v78, v71
    v_mov_b32 v79, v{t}
    s_mov_b64 exec, 1
    ds_write_b128 v4, v[60:63]
    ds_write_b128 v4, v[60:63] offset:16
    ds_write_b128 v4, v[60:63] offset:{CS}
    ds_write_b128 v4, v[68:71] offset:{CS+16}
    ds_write_b128 v4, v[60:63] offset:{2*CS}
    ds_write_b128 v4, v[72:75] offset:{2*CS+16}
    ds_write_b128 v4, v[60:63] offset:{3*CS}
    ds_write_b128 v4, v[76:79] offset:{3*CS+16}
    s_mov_b64 exec, -1""")
    ACC = 80; F0 = 112; F1 = 176
    for i in range(0, 32, 2): a(f"    v_mov_b64 {vr(ACC+i,2)}, 0")
    a("    s_waitcnt vmcnt(0) lgkmcnt(0)")
    stamp(a, 1)
    srd(a, 20, 8, MB4); srd(a, 44, 10, 1024 * 7168); srd(a, 48, 42, 3584 * 2048)
    a(f"""    v_lshlrev_b32 v10, 7, v0
    s_lshl_b32 s34, s2, 14
    v_lshlrev_b32 v11, 6, v0
    buffer_load_dword v12, v11, s[20:23], s34 offen
    s_mul_i32 s34, s2, 28672
    v_cmp_gt_u32 vcc, 224, v0
    v_mov_b32 v11, 0x80000000
    s_nop 0
    v_cndmask_b32 v10, v11, v10, vcc
    {"buffer_load_dword v13, v10, s[44:47], s34 offen" if opt.c_pf1 else ""}
    {"buffer_load_dword v14, v10, s[48:51], s34 offen" if opt.c_pf2 else ""}
""")
    def reads(F, woff):
        r = []
        for u in range(8):
            r.append(f"    ds_read_b128 {vr(F+32+4*u,4)}, v9 offset:{3584 - 512*u + woff}")
            r.append(f"    ds_read_b64 {vr(F+4*u,2)}, v8 offset:{512*u + woff}")
            r.append(f"    ds_read_b64 {vr(F+4*u+2,2)}, v8 offset:{512*u + 8 + woff}")
        return r
    def mf(F):
        return [f"    v_mfma_f32_16x16x32_bf16 {vr(ACC+4*(u+v),4)}, {vr(F+4*u,4)}, {vr(F+32+4*v,4)}, {vr(ACC+4*(u+v),4)}" for u in range(8) for v in range(8 - u)]
    def weave(m, f):
        i = 0
        for x in m:
            a(x)
            if i < len(f): a(f[i]); i += 1
    for l in reads(F0, 0): a(l)
    a(f"    s_mov_b32 s35, 0\n{L}_loop:\n    s_waitcnt lgkmcnt(0)")
    weave(mf(F0), reads(F1, 64) + ["    v_add_u32 v8, 128, v8", "    v_add_u32 v9, 128, v9"])
    a("    s_waitcnt lgkmcnt(0)")
    weave(mf(F1), reads(F0, 0))
    a(f"    s_add_u32 s35, s35, 1\n    s_cmp_lt_u32 s35, 4\n    s_cbranch_scc1 {L}_loop\n    s_waitcnt lgkmcnt(0)")
    stamp(a, 2)
    a(f"""    v_lshlrev_b32 v16, 5, v5
    v_lshl_add_u32 v16, v6, 3, v16       ; 32a + 8g
    v_sub_u32 v17, {RO + 504}, v16
    v_add_u32 v17, s27, v17
    s_mul_i32 s34, s33, {SST}
    s_add_u32 s34, s34, {STG}
    v_add_u32 v18, s34, v16
    s_lshl_b32 s35, s29, 16
    s_and_b32 s36, s29, 0xffff0000
    s_bitcmp1_b32 s25, 0
    s_cselect_b32 s35, s36, s35          ; D as f32""")
    for n in range(8): a(f"    ds_read_b64 {vr(F0+2*n,2)}, v17 offset:{512*(7-n)}")
    for n in range(8):
        c = ACC + 4 * n; k = F0 + 2 * n
        a(f"""    s_waitcnt lgkmcnt({7-n})
    v_and_b32 v20, 0xffff0000, v{k+1}
    v_lshlrev_b32 v21, 16, v{k+1}
    v_and_b32 v22, 0xffff0000, v{k}
    v_lshlrev_b32 v23, 16, v{k}
    v_fmac_f32 v{c}, s35, v20
    v_fmac_f32 v{c+1}, s35, v21
    v_fmac_f32 v{c+2}, s35, v22
    v_fmac_f32 v{c+3}, s35, v23
    v_cvt_pk_bf16_f32 v{c}, v{c}, v{c+1}
    v_cvt_pk_bf16_f32 v{c+1}, v{c+2}, v{c+3}""")
    for n in range(8): a(f"    ds_write_b64 v18, {vr(ACC+4*n,2)} offset:{512*n}")
    a(f"""    v_bfe_u32 v19, v2, 2, 2              ; r
    v_mul_u32_u24 v19, {SST}, v19
    v_lshl_add_u32 v19, v6, 5, v19
    v_and_b32 v20, 3, v2
    v_lshl_add_u32 v19, v20, 3, v19
    s_lshl_b32 s34, s33, 10
    s_add_u32 s34, s34, {STG}
    v_add_u32 v19, s34, v19
    s_bfe_u32 s34, s24, 0x30002          ; key
    s_and_b32 s35, s24, 1
    s_lshl_b32 s35, s35, 2
    s_xor_b32 s34, s34, s35              ; kk
    v_bfe_u32 v20, v2, 1, 2
    v_xor_b32 v20, s34, v20
    v_lshlrev_b32 v20, 4, v20
    v_and_b32 v21, 1, v2
    v_lshl_add_u32 v20, v21, 3, v20
    v_lshrrev_b32 v21, 3, v2
    v_lshl_add_u32 v20, v21, 14, v20     ; voffset
    s_lshl_b32 s34, s33, 20              ; 64w*16384
    s_lshr_b32 s35, s24, 1
    s_lshl_b32 s35, s35, 7
    s_add_u32 s34, s34, s35
    s_add_u32 s34, s34, {Y2_OFF:#x}
    s_waitcnt lgkmcnt(0)
    s_barrier""")
    stamp(a, 3)
    for j in range(8): a(f"    ds_read_b64_tr_b16 {vr(F0+2*j,2)}, v19 offset:{128*j}")
    for j in range(8):
        a(f"    s_waitcnt lgkmcnt({7-j})\n    buffer_store_dwordx2 {vr(F0+2*j,2)}, v20, s[16:19], s34 offen\n    s_add_u32 s34, s34, 0x20000")
    stamp(a, 4)
    if opt.stamps: a("    s_waitcnt vmcnt(0)")
    stamp(a, 5)
    stamp_end(a, kidx, 40, 33)
    a(f"{L}_end:\n    s_endpgm")
    return (name, 256, 256, STG + 4 * SST), (name, 256 if opt.stamps else 240, 96)

def wave_sum(a, regs, tmps):
    nop = "    s_nop 0" if len(regs) == 2 else ""
    a("    s_nop 0")
    for ctl in ("quad_perm:[1,0,3,2]", "quad_perm:[2,3,0,1]", "row_half_mirror", "row_mirror"):
        for r in regs: a(f"    v_add_f32_dpp v{r}, v{r}, v{r} {ctl} row_mask:0xf bank_mask:0xf")
        a(nop)
    for sw in ("v_permlane16_swap_b32", "v_permlane32_swap_b32"):
        for r, t in zip(regs, tmps): a(f"    v_mov_b32 v{t}, v{r}")
        a(nop)
        for r, t in zip(regs, tmps): a(f"    {sw} v{t}, v{r}")
        for r, t in zip(regs, tmps): a(f"    v_add_f32 v{r}, v{r}, v{t}")

def r_body(a, XR, YR, XF, XC, YF, HP, xwait, ypre, hstore, hnstore, sInv=35, sEps=36, st0=1, xpost=None):
    def unpack(dst, src): a(f"    v_lshlrev_b32 v{dst}, 16, v{src}\n    v_and_b32 v{dst+1}, 0xffff0000, v{src}")
    def rnd(r): a(f"    v_cvt_pk_bf16_f32 v{r}, v{r}, v{r}\n    v_and_b32 v{r}, 0xffff0000, v{r}")
    S = [8, 9]; T = [10, 11]; M = [12, 14]; DM = [200, 202]; RI = [204, 206]; PS = [208, 210]
    def stats(src):
        for rho in range(2):
            a(f"    v_pk_add_f32 {vr(PS[rho],2)}, {vr(src(rho,0),2)}, {vr(src(rho,1),2)}")
        for i in range(2, 8):
            for rho in range(2): a(f"    v_pk_add_f32 {vr(PS[rho],2)}, {vr(PS[rho],2)}, {vr(src(rho,i),2)}")
        for rho in range(2): a(f"    v_add_f32 v{S[rho]}, v{PS[rho]}, v{PS[rho]+1}")
        wave_sum(a, S, T)
        for rho in range(2): a(f"    v_mul_f32 v{M[rho]}, s{sInv}, v{S[rho]}")
        for i in range(8):
            for rho in range(2):
                a(f"    v_pk_add_f32 {vr(XC + 16*rho + 2*i,2)}, {vr(src(rho,i),2)}, {vr(M[rho],2)} op_sel_hi:[1,0] neg_lo:[0,1] neg_hi:[0,1]")
        for rho in range(2): a(f"    v_pk_mul_f32 {vr(PS[rho],2)}, {vr(XC+16*rho,2)}, {vr(XC+16*rho,2)}")
        for i in range(1, 8):
            for rho in range(2): a(f"    v_pk_fma_f32 {vr(PS[rho],2)}, {vr(XC+16*rho+2*i,2)}, {vr(XC+16*rho+2*i,2)}, {vr(PS[rho],2)}")
        for rho in range(2): a(f"    v_add_f32 v{S[rho]}, v{PS[rho]}, v{PS[rho]+1}")
        wave_sum(a, S, T)
        for rho in range(2):
            a(f"    v_mov_b32 v{DM[rho]}, v{M[rho]}"); rnd(DM[rho]); a(f"    v_sub_f32 v{DM[rho]}, v{M[rho]}, v{DM[rho]}")
            a(f"    v_mul_f32 v{RI[rho]}, s{sInv}, v{S[rho]}"); rnd(RI[rho]); a(f"    v_add_f32 v{RI[rho]}, s{sEps}, v{RI[rho]}"); rnd(RI[rho])
        for rho in range(2): a(f"    v_sqrt_f32 v{RI[rho]}, v{RI[rho]}")
        a("    s_nop 0")
        for rho in range(2): rnd(RI[rho])
        for rho in range(2): a(f"    v_rcp_f32 v{RI[rho]}, v{RI[rho]}")
        for i in range(8):
            for rho in range(2):
                a(f"    v_pk_add_f32 {vr(XC + 16*rho + 2*i,2)}, {vr(XC + 16*rho + 2*i,2)}, {vr(DM[rho],2)} op_sel_hi:[1,0]")
    for rho in range(2):
        a(f"    s_waitcnt vmcnt({xwait(rho)})")
        if rho == 1 and xpost: xpost()
        for i in range(8): unpack(XF + 16 * rho + 2 * i, XR + 8 * rho + i)
    stamp(a, st0)
    stats(lambda rho, i: XF + 16 * rho + 2 * i)
    if ypre: ypre()
    a("    s_waitcnt lgkmcnt(0)")
    for rho in range(2):
        for i in range(8):
            p, d = i >> 2, i & 3
            unpack(YF + 16 * rho + 2 * i, YR + 8 * p + 4 * (d >> 1) + 2 * rho + (d & 1))
    for i in range(8):
        for rho in range(2):
            o = 16 * rho + 2 * i
            a(f"    v_pk_mul_f32 {vr(XC+o,2)}, {vr(XC+o,2)}, {vr(YF+o,2)}")
            a(f"    v_pk_fma_f32 {vr(XF+o,2)}, {vr(XC+o,2)}, {vr(RI[rho],2)}, {vr(XF+o,2)} op_sel_hi:[1,0,1]")
            a(f"    v_cvt_pk_bf16_f32 v{HP + 8*rho + i}, v{XF+o}, v{XF+o+1}")
    for q in range(4): hstore(q)
    for rho in range(2):
        for i in range(8): unpack(XF + 16 * rho + 2 * i, HP + 8 * rho + i)
    stamp(a, st0 + 1)
    stats(lambda rho, i: XF + 16 * rho + 2 * i)
    for rho in range(2):
        for i in range(8):
            o = 16 * rho + 2 * i
            a(f"    v_pk_mul_f32 {vr(XC+o,2)}, {vr(XC+o,2)}, {vr(RI[rho],2)} op_sel_hi:[1,0]")
            a(f"    v_cvt_pk_bf16_f32 v{XR + 8*rho + i}, v{XC+o}, v{XC+o+1}")
        for p in range(2): hnstore(rho, p)

def gen_r(a, kidx):
    name = "r_kernel"; L = "R"
    kernel_head(a, name)
    a(f"""    s_cmp_ge_u32 s2, 256
    s_cbranch_scc1 {L}_end
    s_load_dwordx2 s[4:5], s[0:1], {ARG['q']}
    s_load_dwordx2 s[40:41], s[0:1], {ARG['ws']}""")
    stamp_begin(a)
    a(f"""    v_lshrrev_b32 v1, 6, v0
    v_and_b32 v2, 63, v0
    s_and_b32 s24, s2, 7
    v_readfirstlane_b32 s33, v1
    s_lshl_b32 s24, s24, 5
    s_lshr_b32 s25, s2, 3
    s_add_u32 s24, s24, s25          ; sb
    v_lshlrev_b32 v3, 4, v2
    s_lshl_b32 s26, s24, 14
    s_lshl_b32 s27, s33, 12
    s_add_u32 s26, s26, s27
    s_mov_b32 m0, s27
    s_add_u32 s28, s26, {Y2_OFF:#x}
    s_waitcnt lgkmcnt(0)""")
    srd(a, 12, 4, MB4); srd(a, 16, 40, 64 << 20)
    XR = 16; YR = 32; XF = 48; XC = 80; YF = 112; HP = 144
    for i in range(4): a(f"    buffer_load_dwordx4 v3, s[16:19], s28 offen offset:{1024*i} lds")
    for i in range(4): a(f"    buffer_load_dwordx4 {vr(XR+4*i,4)}, v3, s[12:15], s26 offen offset:{1024*i}")
    a(f"""    v_bfe_u32 v4, v2, 1, 3
    v_xor_b32 v4, s33, v4
    v_lshlrev_b32 v4, 4, v4
    v_lshl_add_u32 v4, v2, 7, v4
    v_xor_b32 v5, 64, v4                 ; e=1
    s_lshl_b32 s29, s33, 1               ; 2w
    v_and_b32 v6, 7, v2
    v_xor_b32 v6, s29, v6
    v_lshrrev_b32 v7, 3, v2
    v_lshlrev_b32 v7, 14, v7
    v_lshl_add_u32 v6, v6, 4, v7         ; rho=0
    v_xor_b32 v7, 16, v6
    v_add_u32 v7, 128, v7
    s_lshr_b32 s30, s24, 4               ; mt
    s_lshl_b32 s30, s30, 18
    s_and_b32 s31, s24, 15
    s_lshl_b32 s31, s31, 10
    s_add_u32 s30, s30, s31
    s_lshl_b32 s31, s33, 8
    s_add_u32 s30, s30, s31
    s_add_u32 s30, s30, {HN_OFF:#x}
    s_add_u32 s31, s30, {8*16384}        ; p=1
    s_add_u32 s34, s26, {H_OFF:#x}       ; h soffset
    s_mov_b32 s35, 0x3a800000            ; 1/1024
    s_mov_b32 s36, 0x3727c5ac            ; 1e-5
    s_waitcnt vmcnt(4)
    s_barrier""")
    for p in range(2):
        for e in range(2): a(f"    ds_read_b128 {vr(YR + 8*p + 4*e, 4)}, v{4+e} offset:{8192*p}")
    stamp(a, 0)
    r_body(a, XR, YR, XF, XC, YF, HP, xwait=lambda rho: 2 - 2 * rho, ypre=None, hstore=lambda q: a(f"    buffer_store_dwordx4 {vr(HP+4*q,4)}, v3, s[16:19], s34 offen offset:{1024*q}"), hnstore=lambda rho, p: a(f"    buffer_store_dwordx4 {vr(XR + 8*rho + 4*p,4)}, v{6+rho}, s[16:19], s{30+p} offen"))
    stamp(a, 3)
    if opt.stamps: a("    s_waitcnt vmcnt(0)")
    stamp(a, 4)
    stamp_end(a, kidx, 40, 33)
    a(f"{L}_end:\n    s_endpgm")
    return (name, 256, 256, 16384), (name, 256 if opt.stamps else 216, 96)

KGEN = {"p": gen_p, "c": gen_c, "r": gen_r, "g1": gen_g1, "g2": gen_g2}

def build(kernels, extra=None):
    body = Asm(); launches = []; descs = []
    for i, k in enumerate(kernels):
        WS["base"] = opt.ws_base; WS["regs"] = (40,) if k in ("p", "c", "r", "pc") else (4,)
        opt.kidx = i; opt.nk = len(kernels)
        l, d = KGEN[k](body, i)
        if opt.dbg is not None: d = (d[0], 256, 96)
        launches.append(l); descs.append(d)
    body("TEXT_END:\n    s_endpgm")
    for d in descs: kernel_desc(body, *d)
    return file_head(launches) + body.text()

if __name__ == "__main__":
    opt.stamps = "--stamps" in sys.argv
    ks = [x for x in sys.argv[2:] if not x.startswith("--")]
    open(sys.argv[1], "w").write(build(ks))
```

```python
import sys
from asmlib import *

KVR_OFF = 0x0000000
Y2_OFF  = 0x0400000
H_OFF   = 0x0800000
HN_OFF  = 0x0C00000
H1_OFF  = 0x1000000
H1_SZ   = 16 * 56 * 16384
XCH_OFF = 0x2000000
FLG_OFF = 0x2800000
STP_OFF = 0x3800000
HN2_OFF = 0x2C00000
MB4 = 4 << 20

class Opt:
    stamps = False
    noload = False
    w2pf = True
    rtstamp = False
    loopst = False
    codepf = False
    dbg = None
    kidx = 0
    ws_base = 0
    c_pf1 = True
    c_pf2 = False
    rd_per_gap = 2
    g1_bar = 24
    g2_bar = 18
opt = Opt()

def stamp(a, idx, vreg=250):
    if opt.dbg is not None:
        slot = opt.dbg.get((opt.kidx, idx))
        if slot is not None: dbg_write(a, slot)
        return
    if not opt.stamps: return
    a(f"    s_memtime s[84:85]\n    s_memrealtime s[86:87]\n    s_waitcnt lgkmcnt(0)\n    s_sub_u32 s84, s84, s80\n    v_writelane_b32 v{vreg}, s84, {idx}" + ("" if opt.loopst else f"\n    v_writelane_b32 v{vreg}, s86, {32 + idx}"))

_dbgn = [0]
def dbg_write(a, slot):
    _dbgn[0] += 1
    n = _dbgn[0]
    a(f"""    s_cmp_lg_u32 s2, 8
    s_cbranch_scc1 DBG_{n}
    s_cmp_lg_u32 s33, 0
    s_cbranch_scc1 DBG_{n}
    s_memrealtime s[84:85]
    s_waitcnt lgkmcnt(0)
    v_mov_b32 v250, s84
    v_mov_b32 v251, {slot*4}
    buffer_store_dword v250, v251, s[88:91], 0 offen
DBG_{n}:""")

def stamp_loop(a, sreg, base, vreg=250):
    if not (opt.stamps and opt.loopst): return
    a(f"    s_memtime s[84:85]\n    s_add_u32 m0, s{sreg}, {base}\n    s_waitcnt lgkmcnt(0)\n    s_sub_u32 s84, s84, s80\n    v_writelane_b32 v{vreg}, s84, m0")

def stamp_begin(a, vreg=250):
    if opt.dbg is not None:
        a(f"""    s_load_dwordx2 s[86:87], s[0:1], {ARG['dbg']}
    s_memrealtime s[82:83]
    s_waitcnt lgkmcnt(0)
    s_add_u32 s88, s86, {512*(opt.nk - 1 - opt.kidx)}
    s_addc_u32 s89, s87, 0
    s_mov_b32 s90, 256
    s_mov_b32 s91, 0x00020000
    v_mov_b32 v250, s82
    v_mov_b32 v251, {opt.dbg[(opt.kidx, 'b')]*4}
    s_cmp_lg_u32 s2, 8
    s_cbranch_scc1 DBGB_{opt.kidx}
    buffer_store_dword v250, v251, s[88:91], 0 offen
DBGB_{opt.kidx}:""")
        return
    if not opt.stamps: return
    a(f"    s_memtime s[80:81]\n    s_memrealtime s[82:83]\n    s_waitcnt lgkmcnt(0)\n    v_writelane_b32 v{vreg}, s82, 62")

def stamp_end(a, kidx, wsbase, wavereg, vreg=250):
    if opt.dbg is not None:
        a("    s_waitcnt vmcnt(0)")
        dbg_write(a, opt.dbg[(opt.kidx, 'e')])
        return
    if not opt.stamps: return
    a(f"""    s_memrealtime s[82:83]
    s_waitcnt lgkmcnt(0)
    v_writelane_b32 v{vreg}, s82, 63
    s_add_u32 s84, s{wsbase}, {STP_OFF + kidx * 0x80000:#x}
    s_addc_u32 s85, s{wsbase+1}, 0
    s_mov_b32 s86, 0x80000
    s_mov_b32 s87, 0x00020000
    s_lshl_b32 s88, s2, 3
    s_add_u32 s88, s88, s{wavereg}
    s_lshl_b32 s88, s88, 8
    v_mbcnt_lo_u32_b32 v{vreg+1}, -1, 0
    v_mbcnt_hi_u32_b32 v{vreg+1}, -1, v{vreg+1}
    v_lshlrev_b32 v{vreg+1}, 2, v{vreg+1}
    buffer_store_dword v{vreg}, v{vreg+1}, s[84:87], s88 offen""")

def vr(b, n):
    return f"v[{b}:{b+n-1}]" if n > 1 else f"v{b}"

def gemm_consumer_loop(a, L, MI, NI, nk, acc, F0, F1, vA, vB, a_imm, b_imm_kh, b_imm_t, s_slot, s_delta, s_k, stage, ns, tail=None, bar_gap=None, loop_extra=None, slot0=None, a_tr=None, hookA=None, hookB=None):
    def reads(F, kh):
        r = []
        for mi in range(MI):
            reg, imm = vA(mi, kh)
            if a_tr is None:
                r.append(f"    ds_read_b128 {vr(F + 4*mi, 4)}, v{reg} offset:{imm}")
            else:
                for t in range(2): r.append(f"    ds_read_b64_tr_b16 {vr(F + 4*mi + 2*t, 2)}, v{reg} offset:{imm + t*a_tr}")
        for ni in range(NI):
            for t in range(2):
                r.append(f"    ds_read_b64_tr_b16 {vr(F + 4*MI + 4*ni + 2*t, 2)}, v{vB + ni} offset:{kh*b_imm_kh + t*b_imm_t}")
        return r
    def mfmas(F):
        r = []
        for ni in range(NI):
            for mi in range(MI):
                c = acc + 4 * (mi * NI + ni)
                r.append(f"    v_mfma_f32_16x16x32_bf16 {vr(c,4)}, {vr(F + 4*MI + 4*ni, 4)}, {vr(F + 4*mi, 4)}, {vr(c,4)}")
        return r
    def weave(mf, fill):
        i = 0
        for j, m in enumerate(mf):
            a(m)
            if i < len(fill):
                a(fill[i]); i += 1
        while i < len(fill):
            a(fill[i]); i += 1
    addr_regs = sorted(set(vA(mi, kh)[0] for mi in range(MI) for kh in range(2))) + [vB + i for i in range(NI)]
    def place(mf, items, per_gap, start=0, extra=None):
        gaps = [[] for _ in mf]
        g = start
        for j, it in enumerate(items):
            gaps[start + j // per_gap].append(it)
        for k, v in (extra or {}).items(): gaps[k] += v
        for m, gl in zip(mf, gaps):
            a(m)
            for x in gl: a(x)
    n = MI * NI
    nrd = (MI if a_tr is None else 2 * MI) + 2 * NI
    upd = [f"    v_add_u32 v{r}, s{s_delta}, v{r}" for r in addr_regs]
    late = bar_gap >= n
    wrapc = f"{(-(ns-1)*stage) & 0xffffffff:#x}"
    for l in reads(F0, 0): a(l)
    a(f"    s_add_u32 s{s_slot}, {slot0 or 0}, 1")
    a(f"    s_mov_b32 s{s_k}, 0\n    s_mov_b32 s47, {stage}\n    s_mov_b32 s{s_delta}, {stage}")
    a(f"{L}_loop:")
    ex = {}
    upg = 1 if nrd + len(upd) <= n - 1 else 2
    for j, u in enumerate(upd): ex.setdefault(nrd + j // upg, []).append(u)
    if not late:
        a("    s_waitcnt lgkmcnt(0)")
        ex.setdefault(bar_gap - 1, []).append(f"    s_add_u32 s{s_k}, s{s_k}, 1")
        ex.setdefault(bar_gap, []).append("    s_waitcnt lgkmcnt(0)\n    s_barrier")
        ex.setdefault(n - 1, []).append(f"    s_cmp_eq_u32 s{s_k}, {nk}\n    s_cbranch_scc1 {L}_tail")
        if hookA: ex[n - 1].append(hookA)
        place(mfmas(F0), reads(F1, 1), 1, 0, ex)
        ex = {nrd: [f"    s_add_u32 s{s_slot}, s{s_slot}, 1\n    s_cmp_eq_u32 s{s_slot}, {ns}"],
              nrd + 1: [f"    s_cselect_b32 s{s_delta}, {wrapc}, s47\n    s_cselect_b32 s{s_slot}, 0, s{s_slot}"],
              n - 1: [hookB or f"    s_branch {L}_loop"]}
        for k, v in (loop_extra or {}).items(): ex.setdefault(k, []).append(v)
        place(mfmas(F1), reads(F0, 0), 1, 0, ex)
        a(f"{L}_tail:")
    else:
        bg = bar_gap - n
        a(f"    s_waitcnt lgkmcnt({2*(NI-1)})")
        for ni in range(1, NI):
            ex.setdefault(MI * ni - 1, []).append(f"    s_waitcnt lgkmcnt({2*(NI-1-ni) + min(nrd, MI*ni)})")
        ex.setdefault(n - 2, []).append(f"    s_add_u32 s{s_k}, s{s_k}, 1")
        ex.setdefault(n - 1, []).append(f"    s_cmp_eq_u32 s{s_k}, {nk}\n    s_cbranch_scc1 {L}_tail\n    s_waitcnt lgkmcnt({2*(NI-1)})")
        place(mfmas(F0), reads(F1, 1), 1, 0, ex)
        assert bg < MI and bg + 1 + nrd <= n
        ex = {0: [f"    s_add_u32 s{s_slot}, s{s_slot}, 1\n    s_cmp_eq_u32 s{s_slot}, {ns}"],
              1: [f"    s_cselect_b32 s{s_delta}, {wrapc}, s47\n    s_cselect_b32 s{s_slot}, 0, s{s_slot}"],
              n - 1: [f"    s_branch {L}_loop"]}
        ex.setdefault(bg, []).append("    s_waitcnt lgkmcnt(0)\n    s_barrier")
        place(mfmas(F1), reads(F0, 0), 1, bg + 1, ex)
        a(f"{L}_tail:\n    s_waitcnt lgkmcnt(0)\n    s_barrier")
    tail(mfmas(F1))

def gemm_loader_loop(a, L, nk, ns, per, issue, s_k):
    issue(); issue()
    a(f"    s_waitcnt vmcnt({per})\n    s_barrier")
    for s in range(ns - 2): issue()
    a(f"    s_mov_b32 s{s_k}, 0\n{L}_lloop:")
    a(f"    s_waitcnt vmcnt({(ns-2)*per})\n    s_barrier")
    if not opt.noload: issue()
    a(f"    s_add_u32 s{s_k}, s{s_k}, 1\n    s_cmp_lt_u32 s{s_k}, {nk-ns}\n    s_cbranch_scc1 {L}_lloop")
    for k in range(nk - ns, nk):
        left = max(0, nk - 1 - (k + 1))
        if k + 1 < nk: a(f"    s_waitcnt vmcnt({left*per})")
        a("    s_barrier")

def gen_g1(a, kidx):
    name = "g1_kernel"; L = "G1"
    STAGE = 49152; NS = 3; NK = 16
    kernel_head(a, name)
    a(f"""    s_cmp_ge_u32 s2, 256
    s_cbranch_scc1 {L}_end
    s_load_dwordx2 s[4:5], s[0:1], {ARG['ws']}
    s_load_dwordx2 s[6:7], s[0:1], {ARG['w1']}
    s_load_dwordx2 s[8:9], s[0:1], {ARG['b1']}
    s_load_dwordx2 s[10:11], s[0:1], {ARG['w2']}""")
    stamp_begin(a)
    a(f"""    v_lshrrev_b32 v1, 6, v0
    v_and_b32 v2, 63, v0
    s_and_b32 s24, s2, 7
    v_readfirstlane_b32 s33, v1
    s_lshr_b32 s25, s2, 3
    s_lshr_b32 s26, s24, 1
    s_lshl_b32 s26, s26, 2
    s_and_b32 s27, s25, 3
    s_add_u32 s26, s26, s27          ; mt
    s_and_b32 s27, s24, 1
    s_lshl_b32 s27, s27, 3
    s_lshr_b32 s28, s25, 2
    s_add_u32 s27, s27, s28          ; nt
    s_and_b32 s29, s27, 1
    s_cmp_lt_u32 s33, 4
    s_cbranch_scc1 {L}_cons""")
    a(f"""    s_sub_u32 s34, s33, 4            ; lw
    s_lshl_b32 s35, s34, 12          ; lw*4096
    v_lshl_add_u32 v10, v2, 4, s35   ; A voffset
    s_lshl_b32 s30, s26, 18
    s_mul_i32 s31, s27, 448
    s_and_b32 s31, s31, 0xffffff80   ; B soffset
    s_mov_b32 s38, s35
    s_add_u32 s39, s35, {NS*STAGE}
    s_add_u32 s37, s35, 16384
    v_lshrrev_b32 v3, 5, v2          ; hi
    s_lshl_b32 s36, s34, 4
    v_add_u32 v4, s36, v3            ; 16lw+hi
    s_movk_i32 s36, 7168
    v_mul_lo_u32 v4, v4, s36
    v_and_b32 v5, 1, v2
    v_lshl_add_u32 v4, v5, 4, v4     ; t0
    v_bfe_u32 v5, v2, 1, 4
    v_xor_b32 v5, v5, v3             ; x0
    s_waitcnt lgkmcnt(0)""")
    srd(a, 12, 4, MB4, off=HN_OFF); srd(a, 16, 6, 1024 * 7168)
    for ci, c in enumerate((0, 2, 4, 6)):
        a(f"    v_xor_b32 v6, {c}, v5\n    v_lshl_add_u32 v6, v6, 5, v4")
        for i in range(8):
            if 2 * (i & 1) + 4 * (i >> 2) == c:
                a(f"    v_add_u32 v{12+i}, {2*i*7168 - (i&3)*1024}, v6")
    def issue():
        a("    s_mov_b32 m0, s38\n    s_add_u32 s36, s38, s37")
        for i in range(4): a(f"    buffer_load_dwordx4 v10, s[12:15], s30 offen offset:{i*1024} lds")
        a("    s_mov_b32 m0, s36\n    s_add_u32 s30, s30, 16384")
        for i in range(4): a(f"    buffer_load_dwordx4 v{12+i}, s[16:19], s31 offen offset:{i*1024} lds")
        a(f"    s_add_u32 m0, s36, 4096\n    s_add_u32 s38, s38, {STAGE}")
        for i in range(4, 8): a(f"    buffer_load_dwordx4 v{12+i}, s[16:19], s31 offen offset:{(i&3)*1024} lds")
        a(f"    s_add_u32 s31, s31, {64*7168}\n    s_cmp_ge_u32 s38, s39\n    s_cselect_b32 s38, s35, s38")
    stamp(a, 0)
    gemm_loader_loop(a, L, NK, NS, 12, issue, 40)
    stamp(a, 1)
    a(f"    s_branch {L}_epi2")
    ACC = 0; F0 = 112; F1 = 156; VA = 200; VB = 202; VBI = 210
    a(f"""{L}_cons:
    v_mov_b32 v240, v2               ; lane
    s_and_b32 s34, s33, 1            ; wm
    s_lshr_b32 s35, s33, 1           ; wn
    v_and_b32 v241, 15, v240         ; r
    v_lshrrev_b32 v242, 4, v240      ; kg
    s_mul_i32 s36, s27, 224
    s_mul_i32 s37, s35, 112
    s_add_u32 s36, s36, s37
    s_lshl_b32 s36, s36, 1
    v_lshlrev_b32 v243, 3, v242
    s_waitcnt lgkmcnt(0)""")
    srd(a, 16, 8, 7168)
    for ni in range(7):
        a(f"    buffer_load_dwordx2 {vr(VBI + 2*ni, 2)}, v243, s[16:19], s36 offen offset:{32*ni}")
    a(f"""    s_lshl_b32 s36, s34, 13          ; wm*64*128
    v_lshl_add_u32 v244, v241, 7, s36
    v_and_b32 v245, 7, v241          ; r7
    v_xor_b32 v246, v242, v245
    v_lshl_add_u32 v{VA}, v246, 4, v244
    v_xor_b32 v246, 4, v246
    v_lshl_add_u32 v{VA+1}, v246, 4, v244
    v_bfe_u32 v246, v240, 2, 2       ; rr
    v_lshl_add_u32 v247, v242, 3, v246   ; 8kg+rr
    v_lshlrev_b32 v247, 9, v247
    v_and_b32 v248, 3, v240          ; cc
    v_lshl_add_u32 v247, v248, 3, v247
    v_add_u32 v247, 16384, v247
    v_and_b32 v248, 1, v242
    v_lshl_or_b32 v246, v248, 2, v246    ; g
    s_mul_i32 s37, s35, 7
    s_lshl_b32 s38, s29, 1
    s_add_u32 s37, s37, s38          ; f0 = 2p + 7wn""")
    for ni in range(7):
        a(f"    s_add_u32 s38, s37, {ni}\n    v_xor_b32 v248, s38, v246\n    v_lshl_add_u32 v{VB+ni}, v248, 5, v247")
    a("    s_waitcnt vmcnt(0)")
    for ni in range(7):
        for d in range(2):
            c = ACC + 4 * ni + 2 * d
            a(f"    v_lshlrev_b32 v{c}, 16, v{VBI+2*ni+d}\n    v_and_b32 v{c+1}, 0xffff0000, v{VBI+2*ni+d}")
    for mi in range(1, 4):
        for ni in range(7):
            for d in range(2):
                c = ACC + 4 * (mi * 7 + ni) + 2 * d
                a(f"    v_mov_b64 {vr(c,2)}, {vr(ACC + 4*ni + 2*d, 2)}")
    srd(a, 20, 10, 3584 * 2048)
    a(f"""    s_mul_i32 s38, s2, 28672
    s_mul_i32 s39, s33, 7168
    s_add_u32 s38, s38, s39
    v_lshlrev_b32 v248, 7, v240
    {"buffer_load_dword v249, v248, s[20:23], s38 offen" if opt.w2pf else ""}""")
    stamp(a, 0)
    a("    s_barrier")
    stamp(a, 1)
    def g1_tail(mf):
        pre = [f"""    v_lshrrev_b32 v246, 1, v242      ; kg>>1
    v_xor_b32 v246, v246, v245       ; (kg>>1)^r7
    v_and_b32 v247, 1, v242
    v_lshl_add_u32 v247, v247, 3, v244   ; m*128 + half*8"""]
        def addr(ni):
            return f"""    s_add_u32 s38, s37, {ni}
    s_lshr_b32 s39, s38, 2
    s_lshl_b32 s39, s39, 14
    s_and_b32 s38, s38, 3
    s_lshl_b32 s38, s38, 1
    v_xor_b32 v248, s38, v246
    v_lshl_add_u32 v248, v248, 4, v247
    v_add_u32 v{VB+ni}, s39, v248"""
        def act(ni, mi):
            c = ACC + 4 * (mi * 7 + ni)
            r = [f"    v_max_f32 v{c+x}, 0, v{c+x}" for x in range(4)]
            r += [f"    v_pk_mul_f32 {vr(c,2)}, {vr(c,2)}, {vr(c,2)}", f"    v_pk_mul_f32 {vr(c+2,2)}, {vr(c+2,2)}, {vr(c+2,2)}",
                  f"    v_cvt_pk_bf16_f32 v{c}, v{c}, v{c+1}", f"    v_cvt_pk_bf16_f32 v{c+1}, v{c+2}, v{c+3}",
                  f"    ds_write_b64 v{VB+ni}, {vr(c,2)} offset:{mi*2048}"]
            return "\n".join(r)
        a(mf[0]); a(pre[0])
        for j in range(1, 8):
            a(mf[j]); a(addr(j - 1))
        for ni in range(7):
            for mi in range(4):
                j = 4 * (ni + 2) + mi
                if j < 28: a(mf[j])
                a(act(ni, mi))
    gemm_consumer_loop(a, L, 4, 7, NK, ACC, F0, F1, lambda mi, kh: (VA + kh, mi * 2048), VB, None, 16384, 2048, 41, 42, 40, STAGE, NS, tail=g1_tail, bar_gap=opt.g1_bar)
    a("    s_waitcnt lgkmcnt(0)")
    stamp(a, 3)
    a(f"""{L}_epi2:
    s_barrier
    v_mbcnt_lo_u32_b32 v2, -1, 0
    v_mbcnt_hi_u32_b32 v2, -1, v2
    s_lshl_b32 s36, s33, 10
    v_lshl_add_u32 v3, v2, 4, s36
    v_lshrrev_b32 v4, 3, v2
    v_xor_b32 v4, v4, v2
    v_bfe_u32 v4, v4, 2, 1               ; c bit2
    v_cmp_eq_u32 vcc, 1, v4
    s_mul_i32 s36, s27, 7
    s_lshr_b32 s36, s36, 1               ; ks0
    s_mul_i32 s37, s26, 56
    s_add_u32 s36, s36, s37
    s_lshl_b32 s36, s36, 14
    v_mov_b32 v5, 0x80000000
    v_cndmask_b32 v6, v5, v3, vcc
    v_cndmask_b32 v7, v3, v5, vcc
    s_cmp_eq_u32 s29, 1
    s_cselect_b64 vcc, -1, 0""")
    srd(a, 12, 4, H1_SZ, off=H1_OFF)
    a("""    v_cndmask_b32 v6, v3, v6, vcc
    v_cndmask_b32 v7, v7, v3, vcc""")
    for j in range(8): a(f"    ds_read_b128 {vr(16+4*j,4)}, v3 offset:{8192*j}")
    for j in range(8):
        vo = 6 if j < 2 else (7 if j >= 6 else 3)
        a(f"    s_waitcnt lgkmcnt({7-j})\n    buffer_store_dwordx4 {vr(16+4*j,4)}, v{vo}, s[12:15], s36 offen\n    s_add_u32 s36, s36, 8192")
    stamp(a, 4)
    if opt.stamps: a("    s_waitcnt vmcnt(0)")
    stamp(a, 5)
    stamp_end(a, kidx, 4, 33)
    a(f"{L}_end:\n    s_endpgm")
    return (name, 256, 512, NS * STAGE), (name, 256, 96)

def gen_g2(a, kidx):
    name = "g2_kernel"; L = "G2"
    STAGE = 32768; NS = 4; NK = 28
    kernel_head(a, name)
    a(f"""    s_cmp_ge_u32 s2, 256
    s_cbranch_scc1 {L}_end
    s_load_dwordx2 s[4:5], s[0:1], {ARG['ws']}
    s_load_dwordx2 s[6:7], s[0:1], {ARG['w2']}
    s_load_dwordx2 s[8:9], s[0:1], {ARG['b2']}
    s_load_dwordx2 s[10:11], s[0:1], {ARG['out']}""")
    stamp_begin(a)
    a(f"""    v_lshrrev_b32 v1, 6, v0
    v_and_b32 v2, 63, v0
    s_and_b32 s24, s2, 7
    v_readfirstlane_b32 s33, v1
    s_lshr_b32 s25, s2, 3
    s_and_b32 s29, s24, 1            ; kh
    s_lshr_b32 s26, s24, 1
    s_lshl_b32 s26, s26, 2
    s_and_b32 s27, s25, 3
    s_add_u32 s26, s26, s27          ; mt
    s_lshr_b32 s27, s25, 2           ; nt
    s_lshl_b32 s43, s26, 7
    s_lshl_b32 s44, s29, 5
    s_add_u32 s43, s43, s44
    s_lshl_b32 s44, s33, 2
    s_add_u32 s43, s43, s44
    s_lshl_b32 s43, s43, 11          ; row*2048
    s_lshl_b32 s44, s27, 8
    s_add_u32 s43, s43, s44
    v_lshrrev_b32 v230, 4, v2
    v_lshlrev_b32 v230, 11, v230
    v_and_b32 v231, 15, v2
    v_lshl_add_u32 v230, v231, 4, v230
    s_add_u32 s44, s43, {64*2048}
    s_waitcnt lgkmcnt(0)""")
    srd(a, 20, 4, MB4, off=H_OFF)
    a("""    buffer_load_dwordx4 v[232:235], v230, s[20:23], s43 offen
    buffer_load_dwordx4 v[236:239], v230, s[20:23], s44 offen""")
    a(f"""    s_cmp_lt_u32 s33, 4
    s_cbranch_scc1 {L}_cons""")
    a(f"""    s_sub_u32 s34, s33, 4            ; lw
    s_lshl_b32 s35, s34, 12          ; lw*4096
    v_lshl_add_u32 v10, v2, 4, s35   ; A voffset
    s_mul_i32 s30, s26, 56
    s_mul_i32 s36, s29, 28
    s_add_u32 s30, s30, s36
    s_lshl_b32 s30, s30, 14          ; A soffset
    s_mul_i32 s31, s29, {1792*2048}
    s_lshl_b32 s36, s27, 8
    s_add_u32 s31, s31, s36          ; B soffset
    s_mov_b32 s38, s35
    s_add_u32 s39, s35, {NS*STAGE}
    v_lshrrev_b32 v3, 4, v2          ; q4
    s_lshl_b32 s36, s34, 4
    v_add_u32 v4, s36, v3
    v_lshlrev_b32 v4, 11, v4
    v_and_b32 v5, 1, v2
    v_lshl_add_u32 v4, v5, 4, v4     ; t0
    v_bfe_u32 v5, v2, 1, 3
    v_xor_b32 v5, v5, v3             ; x0""")
    srd(a, 12, 4, H1_SZ, off=H1_OFF); srd(a, 16, 6, 3584 * 2048)
    for c in (0, 4):
        a(f"    v_xor_b32 v6, {c}, v5\n    v_lshl_add_u32 v6, v6, 5, v4")
        for i in range(4):
            if 4 * (i >> 1) == c:
                a(f"    v_add_u32 v{12+i}, {4*i*2048 - i*1024}, v6")
    def issue():
        a("    s_mov_b32 m0, s38\n    s_add_u32 s36, s38, 16384")
        for i in range(4): a(f"    buffer_load_dwordx4 v10, s[12:15], s30 offen offset:{i*1024} lds")
        a(f"    s_mov_b32 m0, s36\n    s_add_u32 s30, s30, 16384\n    s_add_u32 s38, s38, {STAGE}")
        for i in range(4): a(f"    buffer_load_dwordx4 v{12+i}, s[16:19], s31 offen offset:{i*1024} lds")
        a(f"    s_add_u32 s31, s31, {64*2048}\n    s_cmp_ge_u32 s38, s39\n    s_cselect_b32 s38, s35, s38")
    stamp(a, 0)
    gemm_loader_loop(a, L, NK, NS, 8, issue, 40)
    stamp(a, 1)
    a(f"    s_branch {L}_epi2")
    ACC = 0; F0 = 64; F1 = 96; VA = 128; VB = 132; VBI = 136
    a(f"""{L}_cons:
    v_mov_b32 v200, v2               ; lane
    s_and_b32 s34, s33, 1            ; wm
    s_lshr_b32 s35, s33, 1           ; wn
    v_and_b32 v201, 15, v200         ; r
    v_lshrrev_b32 v202, 4, v200      ; kg
    s_lshl_b32 s36, s27, 8
    s_lshl_b32 s37, s35, 7
    s_add_u32 s36, s36, s37
    v_lshlrev_b32 v203, 3, v202""")
    srd(a, 16, 8, 2048)
    for ni in range(4):
        a(f"    buffer_load_dwordx2 {vr(VBI + 2*ni, 2)}, v203, s[16:19], s36 offen offset:{32*ni}")
    a(f"""    s_lshl_b32 s36, s34, 13
    s_lshl_b32 s37, s29, 12
    s_add_u32 s36, s36, s37
    v_lshl_add_u32 v204, v201, 7, s36
    v_and_b32 v205, 7, v201              ; r7
    v_xor_b32 v206, v202, v205
    v_lshl_add_u32 v{VA}, v206, 4, v204
    v_xor_b32 v{VA+1}, 64, v{VA}
    v_xor_b32 v{VA+2}, 4096, v{VA}
    v_xor_b32 v{VA+3}, 4096, v{VA+1}
    v_bfe_u32 v206, v200, 2, 2           ; rr
    v_lshl_add_u32 v207, v202, 3, v206
    v_lshlrev_b32 v207, 8, v207
    v_and_b32 v208, 3, v200
    v_lshl_add_u32 v207, v208, 3, v207
    v_add_u32 v207, 16384, v207
    v_and_b32 v208, 1, v202
    v_lshl_or_b32 v206, v208, 2, v206    ; g
    s_lshl_b32 s37, s35, 2""")
    for ni in range(4):
        a(f"    s_add_u32 s38, s37, {ni}\n    v_xor_b32 v208, s38, v206\n    v_lshl_add_u32 v{VB+ni}, v208, 5, v207")
    for i in range(32, 64, 2): a(f"    v_mov_b64 {vr(ACC+i,2)}, 0")
    a("    s_waitcnt vmcnt(0)")
    for ni in range(4):
        for d in range(2):
            c = ACC + 4 * ni + 2 * d
            a(f"    v_lshlrev_b32 v{c}, 16, v{VBI+2*ni+d}\n    v_and_b32 v{c+1}, 0xffff0000, v{VBI+2*ni+d}")
            a(f"    v_mov_b64 {vr(c+16,2)}, {vr(c,2)}")
    stamp(a, 0)
    a("    s_barrier")
    stamp(a, 1)
    def g2_tail(mf):
        send = [m for j, m in enumerate(mf) if (j & 3) >= 2]; keep = [m for j, m in enumerate(mf) if (j & 3) < 2]
        for m in send: a(m)
        srd(a, 12, 4, 256 * 16384, off=XCH_OFF); srd(a, 16, 4, 256 * 512, off=FLG_OFF)
        a(keep[0])
        a(f"""    v_lshlrev_b32 v203, 4, v200
    s_lshl_b32 s36, s2, 14
    s_lshl_b32 s37, s33, 12
    s_add_u32 s36, s36, s37
    s_xor_b32 s45, s36, 0x4000""")
        a(keep[1])
        for q in range(4):
            for h in range(2):
                c = ACC + 32 + 8 * q + 4 * h
                a(f"    v_cvt_pk_bf16_f32 v{F0 + 4*q + 2*h}, v{c}, v{c+1}\n    v_cvt_pk_bf16_f32 v{F0 + 4*q + 2*h + 1}, v{c+2}, v{c+3}")
            a(f"    buffer_store_dwordx4 {vr(F0+4*q,4)}, v203, s[12:15], s36 offen offset:{q*1024} sc1")
            for m in keep[2 + 2*q: 4 + 2*q]: a(m)
    gemm_consumer_loop(a, L, 4, 4, NK, ACC, F0, F1, lambda mi, kh: (VA + 2 * (mi >> 1) + kh, (mi & 1) * 2048), VB, None, 8192, 1024, 41, 42, 40, STAGE, NS, tail=g2_tail, bar_gap=opt.g2_bar)
    stamp(a, 2)
    a(f"""    s_lshl_b32 s36, s2, 9
    s_lshl_b32 s37, s33, 7
    s_add_u32 s36, s36, s37
    s_xor_b32 s37, s36, 0x200
    v_mov_b32 v209, 1
    v_mov_b32 v210, 0
    v_lshrrev_b32 v206, 1, v202
    v_xor_b32 v206, v206, v201           ; (kg>>1) ^ r
    s_lshl_b32 s38, s34, 13              ; 32wm*256
    v_lshl_add_u32 v207, v201, 8, s38
    v_and_b32 v208, 1, v202
    v_lshl_add_u32 v207, v208, 3, v207
    s_lshl_b32 s39, s35, 3""")
    for ni in range(4):
        a(f"    s_add_u32 s38, s39, {2*ni}\n    v_xor_b32 v208, s38, v206\n    v_lshl_add_u32 v{VB+ni}, v208, 4, v207")
    a(f"""    s_mov_b64 exec, 1
    s_waitcnt vmcnt(0)
    buffer_store_dword v209, v210, s[16:19], s36 offen sc1""")
    stamp(a, 3)
    a(f"""{L}_poll:
    buffer_load_dword v211, v210, s[16:19], s37 offen sc1
    s_waitcnt vmcnt(0)
    v_readfirstlane_b32 s38, v211
    s_cmp_eq_u32 s38, 1
    s_cbranch_scc0 {L}_poll
    s_mov_b64 exec, -1""")
    stamp(a, 4)
    for q in range(4):
        a(f"    buffer_load_dwordx4 {vr(F1+4*q,4)}, v203, s[12:15], s45 offen offset:{q*1024} sc1")
    for j in range(8):
        mi, ni = j >> 2, j & 3
        c = ACC + 4 * j; p = F1 + 2 * j
        if j % 2 == 0: a(f"    s_waitcnt vmcnt({3 - j//2})")
        a(f"""    v_lshlrev_b32 v212, 16, v{p}
    v_and_b32 v213, 0xffff0000, v{p}
    v_lshlrev_b32 v214, 16, v{p+1}
    v_and_b32 v215, 0xffff0000, v{p+1}
    v_pk_add_f32 {vr(c,2)}, {vr(c,2)}, v[212:213]
    v_pk_add_f32 {vr(c+2,2)}, {vr(c+2,2)}, v[214:215]
    v_cvt_pk_bf16_f32 v{c}, v{c}, v{c+1}
    v_cvt_pk_bf16_f32 v{c+1}, v{c+2}, v{c+3}
    ds_write_b64 v{VB+ni}, {vr(c,2)} offset:{mi*4096}""")
    a("    s_waitcnt lgkmcnt(0)")
    stamp(a, 5)
    a(f"""{L}_epi2:
    s_barrier                            ; X3
    v_mbcnt_lo_u32_b32 v2, -1, 0
    v_mbcnt_hi_u32_b32 v2, -1, v2
    v_lshrrev_b32 v3, 4, v2
    s_lshl_b32 s36, s33, 2
    v_add_u32 v3, s36, v3                ; lr (j=0)
    v_xor_b32 v4, v3, v2
    v_and_b32 v4, 15, v4
    v_lshlrev_b32 v4, 4, v4
    v_lshl_add_u32 v3, v3, 8, v4
    ds_read_b128 v[16:19], v3
    ds_read_b128 v[20:23], v3 offset:8192""")
    srd(a, 12, 10, MB4)
    a("    s_waitcnt vmcnt(0)")
    for j in range(2):
        a(f"    s_waitcnt lgkmcnt({1-j})")
        for d in range(4):
            o = 16 + 4 * j + d; h = 232 + 4 * j + d
            a(f"""    v_lshlrev_b32 v8, 16, v{o}
    v_and_b32 v9, 0xffff0000, v{o}
    v_lshlrev_b32 v10, 16, v{h}
    v_and_b32 v11, 0xffff0000, v{h}
    v_pk_add_f32 v[8:9], v[8:9], v[10:11]
    v_cvt_pk_bf16_f32 v{o}, v8, v9""")
        a(f"    buffer_store_dwordx4 {vr(16+4*j,4)}, v230, s[12:15], s{43+j} offen")
    stamp(a, 6)
    if opt.stamps: a("    s_waitcnt vmcnt(0)")
    stamp(a, 7)
    stamp_end(a, kidx, 4, 33)
    a(f"{L}_end:\n    s_endpgm")
    return (name, 256, 512, NS * STAGE), (name, 256, 96)


def add_imm(a, dst, src, imm):
    a(f"    v_add_u32 v{dst}, {imm:#x}, v{src}")

def touch(a, srdreg, vtmp, vlane, soff_shift_mul, ninstr, dst):
    pass

def gen_p(a, kidx):
    name = "p_kernel"; L = "P"
    kernel_head(a, name)
    a(f"""    s_cmp_ge_u32 s2, 256
    s_cbranch_scc1 {L}_end
    s_load_dwordx4 s[4:7], s[0:1], {ARG['k']}      ; k, v
    s_load_dwordx4 s[8:11], s[0:1], {ARG['shift']}
    s_load_dwordx2 s[40:41], s[0:1], {ARG['ws']}""")
    stamp_begin(a)
    a(f"""    v_lshrrev_b32 v1, 6, v0
    v_and_b32 v2, 63, v0
    s_and_b32 s24, s2, 7             ; cb
    v_readfirstlane_b32 s33, v1
    s_lshr_b32 s25, s2, 3            ; rb
    v_and_b32 v3, 7, v2              ; cg
    v_lshrrev_b32 v4, 3, v2          ; rg
    s_lshl_b32 s26, s25, 17
    s_lshl_b32 s27, s24, 8
    s_add_u32 s26, s26, s27
    s_lshl_b32 s27, s33, 6
    s_add_u32 s26, s26, s27
    v_lshlrev_b32 v5, 14, v4
    v_lshl_add_u32 v5, v3, 3, v5
    v_add_u32 v5, s26, v5            ; vbase
    v_subrev_u32 v6, 6144, v5
    v_subrev_u32 v7, 2048, v5
    s_movk_i32 s44, 4096
    s_movk_i32 s45, 8192
    s_movk_i32 s46, 12288
    s_lshl_b32 s27, s24, 10
    s_lshl_b32 s28, s33, 8
    s_add_u32 s27, s27, s28
    v_lshlrev_b32 v8, 5, v3
    s_waitcnt lgkmcnt(0)""")
    srd(a, 12, 4, MB4); srd(a, 16, 6, MB4); srd(a, 20, 8, 8192)
    KR = 16; VR = 38; WR = 54
    so = ["0", "s44", "s45", "s46"]
    a(f"    buffer_load_dwordx4 {vr(WR,4)}, v8, s[20:23], s27 offen\n    buffer_load_dwordx4 {vr(WR+4,4)}, v8, s[20:23], s27 offen offset:16")
    a(f"    buffer_load_dwordx2 {vr(KR,2)}, v6, s[12:15], 0 offen nt\n    buffer_load_dwordx2 {vr(KR+2,2)}, v6, s[12:15], 0 offen offset:2048 nt\n    buffer_load_dwordx2 {vr(KR+4,2)}, v7, s[12:15], 0 offen nt")
    for j in range(8):
        a(f"    buffer_load_dwordx2 {vr(KR+6+2*j,2)}, v5, s[12:15], {so[j>>1]} offen offset:{(j&1)*2048} nt")
        a(f"    buffer_load_dwordx2 {vr(VR+2*j,2)}, v5, s[16:19], {so[j>>1]} offen offset:{(j&1)*2048} nt")
    srd(a, 28, 10, MB4); srd(a, 36, 40, 64 << 20)
    a(f"""    s_lshl_b32 s47, s2, 14
    v_lshlrev_b32 v9, 6, v0
    buffer_load_dword v10, v9, s[28:31], s47 offen
    s_mul_i32 s47, s2, 560
    s_add_u32 s47, s47, {FLG_OFF:#x}
    v_min_u32 v11, 139, v0
    v_lshlrev_b32 v11, 2, v11
    v_mov_b32 v12, 0
    buffer_store_dword v12, v11, s[36:39], s47 offen""")
    if opt.codepf:
        a(f"""    s_cmp_ge_u32 s2, 8
    s_cbranch_scc1 {L}_nocode
    s_getpc_b64 s[50:51]
{L}_pc:
    v_lshlrev_b32 v13, 7, v0
    v_min_u32 v13, TEXT_END - {L}_pc - 4, v13
    global_load_dword v62, v13, s[50:51]
{L}_nocode:""")
    a(f"""    v_xor_b32 v13, 7, v4
    v_xor_b32 v13, v13, v3
    v_lshlrev_b32 v13, 4, v13
    v_lshl_add_u32 v13, v3, 9, v13
    s_lshl_b32 s47, s33, 12
    v_add_u32 v13, s47, v13
    v_lshl_add_u32 v14, v2, 4, s47
    v_lshrrev_b32 v15, 5, v2
    v_xor_b32 v15, v15, v3               ; x0 = (l&7)^(l>>5)
    v_lshlrev_b32 v9, 12, v4             ; (l>>3)*4096""")
    WF = 64; KF = 80; VF = 124; OF = 156; PK = 190
    stamp(a, 0)
    a("    s_waitcnt vmcnt(21)")
    for c in range(4):
        for j in range(4):
            src = WR + 2 * c + (j >> 1); d = WF + (c >> 1) * 8 + j * 2 + (c & 1)
            a(f"    v_lshlrev_b32 v{d}, 16, v{src}" if j % 2 == 0 else f"    v_and_b32 v{d}, 0xffff0000, v{src}")
    def unpack(dst, src):
        for p in range(2):
            a(f"    v_lshlrev_b32 v{dst+2*p}, 16, v{src+p}\n    v_and_b32 v{dst+2*p+1}, 0xffff0000, v{src+p}")
    a("    s_waitcnt vmcnt(18)")
    for r in range(3): unpack(KF + 4 * r, KR + 2 * r)
    for j in range(8):
        a(f"    s_waitcnt vmcnt({16 - 2*j})")
        unpack(KF + 4 * (3 + j), KR + 6 + 2 * j); unpack(VF + 4 * j, VR + 2 * j)
        for p in range(2):
            o = OF + 4 * j + 2 * p
            k = lambda r: vr(KF + 4 * r + 2 * p, 2)
            w = lambda t: vr(WF + p * 8 + 2 * t, 2)
            a(f"    v_pk_mul_f32 {vr(o,2)}, {k(j)}, {w(3)}")
            a(f"    v_pk_fma_f32 {vr(o,2)}, {k(j+1)}, {w(2)}, {vr(o,2)}")
            a(f"    v_pk_fma_f32 {vr(o,2)}, {k(j+2)}, {w(1)}, {vr(o,2)}")
            a(f"    v_pk_fma_f32 {vr(o,2)}, {k(j+3)}, {w(0)}, {vr(o,2)}")
            a(f"    v_pk_mul_f32 {vr(o,2)}, {vr(o,2)}, {vr(VF + 4*j + 2*p, 2)}")
    stamp(a, 1)
    for c in range(4):
        for d in range(4):
            a(f"    v_cvt_pk_bf16_f32 v{PK+4*c+d}, v{OF + 4*(7-2*d) + c}, v{OF + 4*(6-2*d) + c}")
        a(f"    ds_write_b128 v13, {vr(PK+4*c,4)} offset:{128*c}")
    a(f"""    s_lshl_b32 s47, s24, 19
    s_lshl_b32 s48, s33, 17
    s_add_u32 s47, s47, s48              ; (cb*128+w*32)*4096
    s_lshl_b32 s48, s25, 7
    s_sub_u32 s48, {3968 + KVR_OFF}, s48
    s_add_u32 s47, s47, s48
    s_waitcnt lgkmcnt(0)""")
    for i in range(4): a(f"    ds_read_b128 {vr(16+4*i,4)}, v14 offset:{1024*i}")
    for i in range(4):
        a(f"    v_xor_b32 v8, {2*i}, v15\n    v_lshl_add_u32 v{32+i}, v8, 4, v9")
    for i in range(4):
        a(f"    s_waitcnt lgkmcnt({3-i})\n    buffer_store_dwordx4 {vr(16+4*i,4)}, v{32+i}, s[36:39], s47 offen\n    s_add_u32 s47, s47, 32768")
    stamp(a, 2)
    if opt.stamps: a("    s_waitcnt vmcnt(0)")
    stamp(a, 3)
    stamp_end(a, kidx, 40, 33)
    a(f"{L}_end:\n    s_endpgm")
    return (name, 256, 256, 16384), (name, 256 if opt.stamps else 208, 96)

def gen_c(a, kidx):
    name = "c_kernel"; L = "C"
    CS = 4160; RO = 4 * CS; WSZ = 21248; STG = 4 * WSZ; SST = 4096 + 32
    kernel_head(a, name)
    a(f"""    s_cmp_ge_u32 s2, 256
    s_cbranch_scc1 {L}_end
    s_load_dwordx4 s[4:7], s[0:1], {ARG['ssmk']}
    s_load_dwordx2 s[40:41], s[0:1], {ARG['ws']}
    s_load_dwordx2 s[8:9], s[0:1], {ARG['q']}
    s_load_dwordx2 s[10:11], s[0:1], {ARG['w1']}
    s_load_dwordx2 s[42:43], s[0:1], {ARG['w2']}""")
    stamp_begin(a)
    a(f"""    v_lshrrev_b32 v1, 6, v0
    v_and_b32 v2, 63, v0
    s_and_b32 s24, s2, 7
    v_readfirstlane_b32 s33, v1
    s_lshl_b32 s24, s24, 5
    s_lshr_b32 s25, s2, 3
    s_add_u32 s24, s24, s25          ; cg
    s_lshl_b32 s25, s24, 2
    s_add_u32 s25, s25, s33          ; ch
    s_lshl_b32 s26, s25, 12          ; ch*4096
    s_mul_i32 s27, s33, {WSZ}        ; WB
    v_lshlrev_b32 v3, 4, v2          ; lane*16
    s_add_u32 m0, s27, {RO}
    s_lshr_b32 s28, s25, 1
    s_lshl_b32 s28, s28, 2
    s_waitcnt lgkmcnt(0)""")
    srd(a, 12, 4, MB4); srd(a, 16, 40, 64 << 20)
    FD = 16; FE = 32; FX = 48; TO = 52
    for i in range(4):
        a(f"    buffer_load_dwordx4 {vr(FD+4*i,4)}, v3, s[12:15], s26 offen offset:{1024*i}")
        a(f"    buffer_load_dwordx4 {vr(FE+4*i,4)}, v3, s[12:15], s26 offen offset:{1024*i+4}")
        a(f"    buffer_load_dword v{FX+i}, v3, s[12:15], s26 offen offset:{1024*i+20}")
    for i in range(4):
        a(f"    buffer_load_dwordx4 v3, s[16:19], s26 offen offset:{1024*i} lds")
    a(f"""    s_load_dword s29, s[6:7], s28
    v_add_u32 v4, s27, v3
    v_mov_b32 v60, 0
    v_mov_b32 v61, 0
    v_mov_b32 v62, 0
    v_mov_b32 v63, 0
    s_mov_b64 exec, 0x3fffffff
    ds_write_b128 v4, v[60:63] offset:{RO + 4096}
    s_mov_b64 exec, -1
    v_and_b32 v5, 15, v2             ; b / a
    v_lshrrev_b32 v6, 4, v2          ; kg
    v_add_u32 v7, 1, v5
    v_and_b32 v8, 3, v7
    v_mul_u32_u24 v8, {CS}, v8
    v_and_b32 v7, 28, v7
    v_lshl_add_u32 v8, v7, 1, v8
    v_lshl_add_u32 v8, v6, 4, v8
    v_add_u32 v8, s27, v8            ; vAT
    v_lshlrev_b32 v9, 5, v5
    v_sub_u32 v9, {RO + 480}, v9
    v_lshl_add_u32 v9, v6, 4, v9
    v_add_u32 v9, s27, v9            ; vBT""")
    stamp(a, 0)
    for i in range(4):
        D = FD + 4 * i; E = FE + 4 * i
        a(f"    s_waitcnt vmcnt({4 + 9 - 3*i})")
        a(f"    ds_write_b128 v4, {vr(D,4)} offset:{32 + 1024*i}")
        a(f"    ds_write_b128 v4, {vr(E,4)} offset:{2*CS + 32 + 1024*i}")
        t = TO + 8 * (i & 1)
        for k in range(4): a(f"    v_alignbit_b32 v{t+k}, v{E+k}, v{D+k}, 16")
        a(f"    ds_write_b128 v4, {vr(t,4)} offset:{CS + 32 + 1024*i}")
        for k in range(4): a(f"    v_alignbit_b32 v{t+4+k}, v{E+k+1 if k < 3 else FX+i}, v{E+k}, 16")
        a(f"    ds_write_b128 v4, {vr(t+4,4)} offset:{3*CS + 32 + 1024*i}")
        if i == 0:
            a(f"""    v_mov_b32 v68, 0
    v_mov_b32 v69, 0
    v_mov_b32 v70, 0
    v_lshlrev_b32 v71, 16, v{D}
    v_mov_b32 v72, 0
    v_mov_b32 v73, 0
    v_mov_b32 v74, 0
    v_mov_b32 v75, v{D}
    v_mov_b32 v76, 0
    v_mov_b32 v77, 0
    v_mov_b32 v78, v71
    v_mov_b32 v79, v{t}
    s_mov_b64 exec, 1
    ds_write_b128 v4, v[60:63]
    ds_write_b128 v4, v[60:63] offset:16
    ds_write_b128 v4, v[60:63] offset:{CS}
    ds_write_b128 v4, v[68:71] offset:{CS+16}
    ds_write_b128 v4, v[60:63] offset:{2*CS}
    ds_write_b128 v4, v[72:75] offset:{2*CS+16}
    ds_write_b128 v4, v[60:63] offset:{3*CS}
    ds_write_b128 v4, v[76:79] offset:{3*CS+16}
    s_mov_b64 exec, -1""")
    ACC = 80; F0 = 112; F1 = 176
    for i in range(0, 32, 2): a(f"    v_mov_b64 {vr(ACC+i,2)}, 0")
    a("    s_waitcnt vmcnt(0) lgkmcnt(0)")
    stamp(a, 1)
    srd(a, 20, 8, MB4); srd(a, 44, 10, 1024 * 7168); srd(a, 48, 42, 3584 * 2048)
    a(f"""    v_lshlrev_b32 v10, 7, v0
    s_lshl_b32 s34, s2, 14
    v_lshlrev_b32 v11, 6, v0
    buffer_load_dword v12, v11, s[20:23], s34 offen
    s_mul_i32 s34, s2, 28672
    v_cmp_gt_u32 vcc, 224, v0
    v_mov_b32 v11, 0x80000000
    s_nop 0
    v_cndmask_b32 v10, v11, v10, vcc
    {"buffer_load_dword v13, v10, s[44:47], s34 offen" if opt.c_pf1 else ""}
    {"buffer_load_dword v14, v10, s[48:51], s34 offen" if opt.c_pf2 else ""}
""")
    def reads(F, woff):
        r = []
        for u in range(8):
            r.append(f"    ds_read_b128 {vr(F+32+4*u,4)}, v9 offset:{3584 - 512*u + woff}")
            r.append(f"    ds_read_b64 {vr(F+4*u,2)}, v8 offset:{512*u + woff}")
            r.append(f"    ds_read_b64 {vr(F+4*u+2,2)}, v8 offset:{512*u + 8 + woff}")
        return r
    def mf(F):
        return [f"    v_mfma_f32_16x16x32_bf16 {vr(ACC+4*(u+v),4)}, {vr(F+4*u,4)}, {vr(F+32+4*v,4)}, {vr(ACC+4*(u+v),4)}" for u in range(8) for v in range(8 - u)]
    def weave(m, f):
        i = 0
        for x in m:
            a(x)
            if i < len(f): a(f[i]); i += 1
    for l in reads(F0, 0): a(l)
    a(f"    s_mov_b32 s35, 0\n{L}_loop:\n    s_waitcnt lgkmcnt(0)")
    weave(mf(F0), reads(F1, 64) + ["    v_add_u32 v8, 128, v8", "    v_add_u32 v9, 128, v9"])
    a("    s_waitcnt lgkmcnt(0)")
    weave(mf(F1), reads(F0, 0))
    a(f"    s_add_u32 s35, s35, 1\n    s_cmp_lt_u32 s35, 4\n    s_cbranch_scc1 {L}_loop\n    s_waitcnt lgkmcnt(0)")
    stamp(a, 2)
    a(f"""    v_lshlrev_b32 v16, 5, v5
    v_lshl_add_u32 v16, v6, 3, v16       ; 32a + 8g
    v_sub_u32 v17, {RO + 504}, v16
    v_add_u32 v17, s27, v17
    s_mul_i32 s34, s33, {SST}
    s_add_u32 s34, s34, {STG}
    v_add_u32 v18, s34, v16
    s_lshl_b32 s35, s29, 16
    s_and_b32 s36, s29, 0xffff0000
    s_bitcmp1_b32 s25, 0
    s_cselect_b32 s35, s36, s35          ; D as f32""")
    for n in range(8): a(f"    ds_read_b64 {vr(F0+2*n,2)}, v17 offset:{512*(7-n)}")
    for n in range(8):
        c = ACC + 4 * n; k = F0 + 2 * n
        a(f"""    s_waitcnt lgkmcnt({7-n})
    v_and_b32 v20, 0xffff0000, v{k+1}
    v_lshlrev_b32 v21, 16, v{k+1}
    v_and_b32 v22, 0xffff0000, v{k}
    v_lshlrev_b32 v23, 16, v{k}
    v_fmac_f32 v{c}, s35, v20
    v_fmac_f32 v{c+1}, s35, v21
    v_fmac_f32 v{c+2}, s35, v22
    v_fmac_f32 v{c+3}, s35, v23
    v_cvt_pk_bf16_f32 v{c}, v{c}, v{c+1}
    v_cvt_pk_bf16_f32 v{c+1}, v{c+2}, v{c+3}""")
    for n in range(8): a(f"    ds_write_b64 v18, {vr(ACC+4*n,2)} offset:{512*n}")
    a(f"""    v_bfe_u32 v19, v2, 2, 2              ; r
    v_mul_u32_u24 v19, {SST}, v19
    v_lshl_add_u32 v19, v6, 5, v19
    v_and_b32 v20, 3, v2
    v_lshl_add_u32 v19, v20, 3, v19
    s_lshl_b32 s34, s33, 10
    s_add_u32 s34, s34, {STG}
    v_add_u32 v19, s34, v19
    s_bfe_u32 s34, s24, 0x30002          ; key
    s_and_b32 s35, s24, 1
    s_lshl_b32 s35, s35, 2
    s_xor_b32 s34, s34, s35              ; kk
    v_bfe_u32 v20, v2, 1, 2
    v_xor_b32 v20, s34, v20
    v_lshlrev_b32 v20, 4, v20
    v_and_b32 v21, 1, v2
    v_lshl_add_u32 v20, v21, 3, v20
    v_lshrrev_b32 v21, 3, v2
    v_lshl_add_u32 v20, v21, 14, v20     ; voffset
    s_lshl_b32 s34, s33, 20              ; 64w*16384
    s_lshr_b32 s35, s24, 1
    s_lshl_b32 s35, s35, 7
    s_add_u32 s34, s34, s35
    s_add_u32 s34, s34, {Y2_OFF:#x}
    s_waitcnt lgkmcnt(0)
    s_barrier""")
    stamp(a, 3)
    for j in range(8): a(f"    ds_read_b64_tr_b16 {vr(F0+2*j,2)}, v19 offset:{128*j}")
    for j in range(8):
        a(f"    s_waitcnt lgkmcnt({7-j})\n    buffer_store_dwordx2 {vr(F0+2*j,2)}, v20, s[16:19], s34 offen\n    s_add_u32 s34, s34, 0x20000")
    stamp(a, 4)
    if opt.stamps: a("    s_waitcnt vmcnt(0)")
    stamp(a, 5)
    stamp_end(a, kidx, 40, 33)
    a(f"{L}_end:\n    s_endpgm")
    return (name, 256, 256, STG + 4 * SST), (name, 256 if opt.stamps else 240, 96)

def wave_sum(a, regs, tmps):
    nop = "    s_nop 0" if len(regs) == 2 else ""
    a("    s_nop 0")
    for ctl in ("quad_perm:[1,0,3,2]", "quad_perm:[2,3,0,1]", "row_half_mirror", "row_mirror"):
        for r in regs: a(f"    v_add_f32_dpp v{r}, v{r}, v{r} {ctl} row_mask:0xf bank_mask:0xf")
        a(nop)
    for sw in ("v_permlane16_swap_b32", "v_permlane32_swap_b32"):
        for r, t in zip(regs, tmps): a(f"    v_mov_b32 v{t}, v{r}")
        a(nop)
        for r, t in zip(regs, tmps): a(f"    {sw} v{t}, v{r}")
        for r, t in zip(regs, tmps): a(f"    v_add_f32 v{r}, v{r}, v{t}")

def r_body(a, XR, YR, XF, XC, YF, HP, xwait, ypre, hstore, hnstore, sInv=35, sEps=36, st0=1, xpost=None):
    def unpack(dst, src): a(f"    v_lshlrev_b32 v{dst}, 16, v{src}\n    v_and_b32 v{dst+1}, 0xffff0000, v{src}")
    def rnd(r): a(f"    v_cvt_pk_bf16_f32 v{r}, v{r}, v{r}\n    v_and_b32 v{r}, 0xffff0000, v{r}")
    S = [8, 9]; T = [10, 11]; M = [12, 14]; DM = [200, 202]; RI = [204, 206]; PS = [208, 210]
    def stats(src):
        for rho in range(2):
            a(f"    v_pk_add_f32 {vr(PS[rho],2)}, {vr(src(rho,0),2)}, {vr(src(rho,1),2)}")
        for i in range(2, 8):
            for rho in range(2): a(f"    v_pk_add_f32 {vr(PS[rho],2)}, {vr(PS[rho],2)}, {vr(src(rho,i),2)}")
        for rho in range(2): a(f"    v_add_f32 v{S[rho]}, v{PS[rho]}, v{PS[rho]+1}")
        wave_sum(a, S, T)
        for rho in range(2): a(f"    v_mul_f32 v{M[rho]}, s{sInv}, v{S[rho]}")
        for i in range(8):
            for rho in range(2):
                a(f"    v_pk_add_f32 {vr(XC + 16*rho + 2*i,2)}, {vr(src(rho,i),2)}, {vr(M[rho],2)} op_sel_hi:[1,0] neg_lo:[0,1] neg_hi:[0,1]")
        for rho in range(2): a(f"    v_pk_mul_f32 {vr(PS[rho],2)}, {vr(XC+16*rho,2)}, {vr(XC+16*rho,2)}")
        for i in range(1, 8):
            for rho in range(2): a(f"    v_pk_fma_f32 {vr(PS[rho],2)}, {vr(XC+16*rho+2*i,2)}, {vr(XC+16*rho+2*i,2)}, {vr(PS[rho],2)}")
        for rho in range(2): a(f"    v_add_f32 v{S[rho]}, v{PS[rho]}, v{PS[rho]+1}")
        wave_sum(a, S, T)
        for rho in range(2):
            a(f"    v_mov_b32 v{DM[rho]}, v{M[rho]}"); rnd(DM[rho]); a(f"    v_sub_f32 v{DM[rho]}, v{M[rho]}, v{DM[rho]}")
            a(f"    v_mul_f32 v{RI[rho]}, s{sInv}, v{S[rho]}"); rnd(RI[rho]); a(f"    v_add_f32 v{RI[rho]}, s{sEps}, v{RI[rho]}"); rnd(RI[rho])
        for rho in range(2): a(f"    v_sqrt_f32 v{RI[rho]}, v{RI[rho]}")
        a("    s_nop 0")
        for rho in range(2): rnd(RI[rho])
        for rho in range(2): a(f"    v_rcp_f32 v{RI[rho]}, v{RI[rho]}")
        for i in range(8):
            for rho in range(2):
                a(f"    v_pk_add_f32 {vr(XC + 16*rho + 2*i,2)}, {vr(XC + 16*rho + 2*i,2)}, {vr(DM[rho],2)} op_sel_hi:[1,0]")
    for rho in range(2):
        a(f"    s_waitcnt vmcnt({xwait(rho)})")
        if rho == 1 and xpost: xpost()
        for i in range(8): unpack(XF + 16 * rho + 2 * i, XR + 8 * rho + i)
    stamp(a, st0)
    stats(lambda rho, i: XF + 16 * rho + 2 * i)
    if ypre: ypre()
    a("    s_waitcnt lgkmcnt(0)")
    for rho in range(2):
        for i in range(8):
            p, d = i >> 2, i & 3
            unpack(YF + 16 * rho + 2 * i, YR + 8 * p + 4 * (d >> 1) + 2 * rho + (d & 1))
    for i in range(8):
        for rho in range(2):
            o = 16 * rho + 2 * i
            a(f"    v_pk_mul_f32 {vr(XC+o,2)}, {vr(XC+o,2)}, {vr(YF+o,2)}")
            a(f"    v_pk_fma_f32 {vr(XF+o,2)}, {vr(XC+o,2)}, {vr(RI[rho],2)}, {vr(XF+o,2)} op_sel_hi:[1,0,1]")
            a(f"    v_cvt_pk_bf16_f32 v{HP + 8*rho + i}, v{XF+o}, v{XF+o+1}")
    for q in range(4): hstore(q)
    for rho in range(2):
        for i in range(8): unpack(XF + 16 * rho + 2 * i, HP + 8 * rho + i)
    stamp(a, st0 + 1)
    stats(lambda rho, i: XF + 16 * rho + 2 * i)
    for rho in range(2):
        for i in range(8):
            o = 16 * rho + 2 * i
            a(f"    v_pk_mul_f32 {vr(XC+o,2)}, {vr(XC+o,2)}, {vr(RI[rho],2)} op_sel_hi:[1,0]")
            a(f"    v_cvt_pk_bf16_f32 v{XR + 8*rho + i}, v{XC+o}, v{XC+o+1}")
        for p in range(2): hnstore(rho, p)

def gen_r(a, kidx):
    name = "r_kernel"; L = "R"
    kernel_head(a, name)
    a(f"""    s_cmp_ge_u32 s2, 256
    s_cbranch_scc1 {L}_end
    s_load_dwordx2 s[4:5], s[0:1], {ARG['q']}
    s_load_dwordx2 s[40:41], s[0:1], {ARG['ws']}""")
    stamp_begin(a)
    a(f"""    v_lshrrev_b32 v1, 6, v0
    v_and_b32 v2, 63, v0
    s_and_b32 s24, s2, 7
    v_readfirstlane_b32 s33, v1
    s_lshl_b32 s24, s24, 5
    s_lshr_b32 s25, s2, 3
    s_add_u32 s24, s24, s25          ; sb
    v_lshlrev_b32 v3, 4, v2
    s_lshl_b32 s26, s24, 14
    s_lshl_b32 s27, s33, 12
    s_add_u32 s26, s26, s27
    s_mov_b32 m0, s27
    s_add_u32 s28, s26, {Y2_OFF:#x}
    s_waitcnt lgkmcnt(0)""")
    srd(a, 12, 4, MB4); srd(a, 16, 40, 64 << 20)
    XR = 16; YR = 32; XF = 48; XC = 80; YF = 112; HP = 144
    for i in range(4): a(f"    buffer_load_dwordx4 v3, s[16:19], s28 offen offset:{1024*i} lds")
    for i in range(4): a(f"    buffer_load_dwordx4 {vr(XR+4*i,4)}, v3, s[12:15], s26 offen offset:{1024*i}")
    a(f"""    v_bfe_u32 v4, v2, 1, 3
    v_xor_b32 v4, s33, v4
    v_lshlrev_b32 v4, 4, v4
    v_lshl_add_u32 v4, v2, 7, v4
    v_xor_b32 v5, 64, v4                 ; e=1
    s_lshl_b32 s29, s33, 1               ; 2w
    v_and_b32 v6, 7, v2
    v_xor_b32 v6, s29, v6
    v_lshrrev_b32 v7, 3, v2
    v_lshlrev_b32 v7, 14, v7
    v_lshl_add_u32 v6, v6, 4, v7         ; rho=0
    v_xor_b32 v7, 16, v6
    v_add_u32 v7, 128, v7
    s_lshr_b32 s30, s24, 4               ; mt
    s_lshl_b32 s30, s30, 18
    s_and_b32 s31, s24, 15
    s_lshl_b32 s31, s31, 10
    s_add_u32 s30, s30, s31
    s_lshl_b32 s31, s33, 8
    s_add_u32 s30, s30, s31
    s_add_u32 s30, s30, {HN_OFF:#x}
    s_add_u32 s31, s30, {8*16384}        ; p=1
    s_add_u32 s34, s26, {H_OFF:#x}       ; h soffset
    s_mov_b32 s35, 0x3a800000            ; 1/1024
    s_mov_b32 s36, 0x3727c5ac            ; 1e-5
    s_waitcnt vmcnt(4)
    s_barrier""")
    for p in range(2):
        for e in range(2): a(f"    ds_read_b128 {vr(YR + 8*p + 4*e, 4)}, v{4+e} offset:{8192*p}")
    stamp(a, 0)
    r_body(a, XR, YR, XF, XC, YF, HP, xwait=lambda rho: 2 - 2 * rho, ypre=None, hstore=lambda q: a(f"    buffer_store_dwordx4 {vr(HP+4*q,4)}, v3, s[16:19], s34 offen offset:{1024*q}"), hnstore=lambda rho, p: a(f"    buffer_store_dwordx4 {vr(XR + 8*rho + 4*p,4)}, v{6+rho}, s[16:19], s{30+p} offen"))
    stamp(a, 3)
    if opt.stamps: a("    s_waitcnt vmcnt(0)")
    stamp(a, 4)
    stamp_end(a, kidx, 40, 33)
    a(f"{L}_end:\n    s_endpgm")
    return (name, 256, 256, 16384), (name, 256 if opt.stamps else 216, 96)

KGEN = {"p": gen_p, "c": gen_c, "r": gen_r, "g1": gen_g1, "g2": gen_g2}

def build(kernels, extra=None):
    body = Asm(); launches = []; descs = []
    for i, k in enumerate(kernels):
        WS["base"] = opt.ws_base; WS["regs"] = (40,) if k in ("p", "c", "r", "pc", "p2", "c2") else (4,)
        opt.kidx = i; opt.nk = len(kernels)
        l, d = KGEN[k](body, i)
        if opt.dbg is not None: d = (d[0], 256, 96)
        launches.append(l); descs.append(d)
    body("TEXT_END:\n    s_endpgm")
    for d in descs: kernel_desc(body, *d)
    return file_head(launches) + body.text()

if __name__ == "__main__":
    opt.stamps = "--stamps" in sys.argv
    ks = [x for x in sys.argv[2:] if not x.startswith("--")]
    open(sys.argv[1], "w").write(build(ks))
```

```python
import sys
from asmlib import *
import gen, gen2
from gen import stamp_loop, opt, stamp, stamp_begin, stamp_end, vr, gemm_consumer_loop, wave_sum, MB4, KVR_OFF, H1_OFF, H1_SZ, XCH_OFF, FLG_OFF
from gen2 import GRP_RDY, FLG_SZ

opt.tlbpf = False
opt.lagthr = 7
opt.norot = False
opt.ga_bar = 27
XT_OFF = 0x0400000
HT_OFF = 0x0800000
ST1_OFF = 0x0C00000
CS_OFF = 0x0C10000
PST_OFF = 0x0C80000

def unpack(a, dst, src): a(f"    v_lshlrev_b32 v{dst}, 16, v{src}\n    v_and_b32 v{dst+1}, 0xffff0000, v{src}")
def rnd(a, r): a(f"    v_cvt_pk_bf16_f32 v{r}, v{r}, v{r}\n    v_and_b32 v{r}, 0xffff0000, v{r}")

def gen_p2(a, kidx):
    name = "p_kernel"; L = "P"
    IS = 1056; VT = 17 * IS; XTL = 33 * IS; OST = 51840
    kernel_head(a, name)
    a(f"""    s_cmp_ge_u32 s2, 256
    s_cbranch_scc1 {L}_end
    s_load_dwordx4 s[4:7], s[0:1], {ARG['k']}      ; k, v
    s_load_dwordx4 s[8:11], s[0:1], {ARG['shift']}
    s_load_dwordx2 s[40:41], s[0:1], {ARG['ws']}
    s_load_dwordx2 s[42:43], s[0:1], {ARG['q']}""")
    stamp_begin(a)
    a(f"""    v_lshrrev_b32 v1, 6, v0
    v_and_b32 v2, 63, v0
    s_and_b32 s24, s2, 7             ; cb
    v_readfirstlane_b32 s33, v1
    s_lshr_b32 s25, s2, 3            ; rb
    v_and_b32 v3, 7, v2              ; cg
    v_lshrrev_b32 v4, 3, v2          ; rg
    s_and_b32 s34, s33, 3            ; w
    s_lshl_b32 s26, s25, 17
    s_lshl_b32 s27, s24, 8
    s_add_u32 s26, s26, s27
    v_lshrrev_b32 v5, 4, v2
    v_lshlrev_b32 v5, 11, v5
    v_and_b32 v6, 15, v2
    v_lshl_add_u32 v5, v6, 4, v5
    v_add_u32 v5, s26, v5
    v_subrev_u32 v6, 8192, v5
    s_lshl_b32 s27, s34, 15
    v_add_u32 v5, s27, v5
    s_movk_i32 s44, 8192
    s_movk_i32 s45, 16384
    s_movk_i32 s46, 24576
    s_mul_i32 s35, s34, {4*IS}
    v_mul_u32_u24 v7, {2*IS}, v4
    v_lshl_add_u32 v7, v3, 3, v7
    s_lshl_b32 s27, s34, 6
    v_add_u32 v7, s27, v7
    s_cmp_ge_u32 s33, 4
    s_cbranch_scc1 {L}_x""")
    so = ["0", "s44", "s45", "s46"]
    def tail_addr(rev, ldsbase, off):
        a(f"""    {"v_xor_b32 v13, 7, v4" if rev else "v_mov_b32 v13, v4"}
    v_xor_b32 v13, v13, v3
    v_lshlrev_b32 v13, 4, v13
    v_lshl_add_u32 v13, v3, 9, v13
    s_lshl_b32 s47, s33, 12
    s_add_u32 s47, s47, {OST}
    v_add_u32 v13, s47, v13
    v_lshl_add_u32 v14, v2, 4, s47
    v_lshrrev_b32 v15, 5, v2
    v_xor_b32 v15, v15, v3               ; x0 = (l&7)^(l>>5)
    v_lshlrev_b32 v9, 12, v4             ; (l>>3)*4096
    s_lshl_b32 s47, s24, 19
    s_lshl_b32 s48, s34, 17
    s_add_u32 s47, s47, s48              ; (cb*128+w*32)*4096
    s_lshl_b32 s48, s25, 7""")
        if rev: a(f"    s_sub_u32 s48, {3968 + off}, s48")
        else: a(f"    s_add_u32 s48, s48, {off:#x}")
        a("    s_add_u32 s47, s47, s48")
    def tail_out():
        a("    s_waitcnt lgkmcnt(0)")
        for i in range(4): a(f"    ds_read_b128 {vr(16+4*i,4)}, v14 offset:{1024*i}")
        for i in range(4): a(f"    v_xor_b32 v8, {2*i}, v15\n    v_lshl_add_u32 v{32+i}, v8, 4, v9")
        for i in range(4):
            a(f"    s_waitcnt lgkmcnt({3-i})\n    buffer_store_dwordx4 {vr(16+4*i,4)}, v{32+i}, s[36:39], s47 offen\n    s_add_u32 s47, s47, 32768")
    a(f"""    s_lshl_b32 s27, s24, 10
    s_lshl_b32 s28, s34, 8
    s_add_u32 s27, s27, s28
    v_lshlrev_b32 v8, 5, v3
    s_add_u32 m0, s35, {IS}
    s_waitcnt lgkmcnt(0)""")
    srd(a, 12, 4, MB4); srd(a, 16, 6, MB4); srd(a, 20, 8, 8192)
    KR = 16; VR = 38; WR = 54
    for j in range(4):
        a(f"    buffer_load_dwordx4 v5, s[12:15], {so[j]} offen nt lds\n    s_add_u32 m0, s35, {VT + j*IS}")
        a(f"    s_nop 0\n    buffer_load_dwordx4 v5, s[16:19], {so[j]} offen nt lds\n    s_add_u32 m0, s35, {(j+2)*IS}\n    s_nop 0" if j < 3 else f"    s_nop 0\n    buffer_load_dwordx4 v5, s[16:19], {so[j]} offen nt lds\n    s_mov_b32 m0, 0\n    s_nop 0")
    a("    buffer_load_dwordx4 v6, s[12:15], 0 offen nt lds")
    a(f"    buffer_load_dwordx4 {vr(WR,4)}, v8, s[20:23], s27 offen\n    buffer_load_dwordx4 {vr(WR+4,4)}, v8, s[20:23], s27 offen offset:16")
    srd(a, 28, 10, MB4); srd(a, 36, 40, 64 << 20)
    a(f"""    s_lshl_b32 s47, s2, 14
    v_lshlrev_b32 v9, 6, v0
    buffer_load_dword v10, v9, s[28:31], s47 offen
    s_mul_i32 s47, s2, 560
    s_add_u32 s47, s47, {FLG_OFF:#x}
    v_min_u32 v11, 139, v0
    v_lshlrev_b32 v11, 2, v11
    v_mov_b32 v12, 0
    buffer_store_dword v12, v11, s[36:39], s47 offen""")
    if opt.codepf:
        a(f"""    s_cmp_ge_u32 s2, 8
    s_cbranch_scc1 {L}_nocode
    s_getpc_b64 s[50:51]
{L}_pc:
    v_lshlrev_b32 v13, 7, v0
    v_min_u32 v13, TEXT_END - {L}_pc - 4, v13
    global_load_dword v62, v13, s[50:51]
{L}_nocode:""")
    tail_addr(True, 0, KVR_OFF)
    WF = 64; KF = 80; VF = 124; OF = 156; PK = 190
    stamp(a, 0)
    a("    s_waitcnt vmcnt(2)\n    s_barrier")
    stamp(a, 4)
    kro = lambda jj: ((1 + jj) >> 2) * IS + ((1 + jj) & 3) * 256
    order = [("k", 0), ("k", 1), ("k", 2)] + [x for j in range(8) for x in (("k", 3 + j), ("v", j))]
    def rd(x):
        if x[0] == "k": a(f"    ds_read_b64 {vr(KR + 2*x[1], 2)}, v7 offset:{kro(x[1])}")
        else: a(f"    ds_read_b64 {vr(VR + 2*x[1], 2)}, v7 offset:{VT + (x[1] >> 2)*IS + (x[1] & 3)*256}")
    for x in order[:13]: rd(x)
    for c in range(4):
        for j in range(4):
            src = WR + 2 * c + (j >> 1); d = WF + (c >> 1) * 8 + j * 2 + (c & 1)
            a(f"    v_lshlrev_b32 v{d}, 16, v{src}" if j % 2 == 0 else f"    v_and_b32 v{d}, 0xffff0000, v{src}")
    def unp2(dst, src):
        for p in range(2): unpack(a, dst + 2 * p, src + p)
    a("    s_waitcnt lgkmcnt(8)")
    for x in order[13:]: rd(x)
    for r in range(3): unp2(KF + 4 * r, KR + 2 * r)
    for j in range(8):
        if j: a(f"    s_waitcnt lgkmcnt({14 - 2*j})")
        unp2(KF + 4 * (3 + j), KR + 6 + 2 * j); unp2(VF + 4 * j, VR + 2 * j)
        for p in range(2):
            o = OF + 4 * j + 2 * p
            k = lambda r: vr(KF + 4 * r + 2 * p, 2)
            w = lambda t: vr(WF + p * 8 + 2 * t, 2)
            a(f"    v_pk_mul_f32 {vr(o,2)}, {k(j)}, {w(3)}")
            a(f"    v_pk_fma_f32 {vr(o,2)}, {k(j+1)}, {w(2)}, {vr(o,2)}")
            a(f"    v_pk_fma_f32 {vr(o,2)}, {k(j+2)}, {w(1)}, {vr(o,2)}")
            a(f"    v_pk_fma_f32 {vr(o,2)}, {k(j+3)}, {w(0)}, {vr(o,2)}")
            a(f"    v_pk_mul_f32 {vr(o,2)}, {vr(o,2)}, {vr(VF + 4*j + 2*p, 2)}")
    stamp(a, 1)
    for c in range(4):
        for d in range(4):
            a(f"    v_cvt_pk_bf16_f32 v{PK+4*c+d}, v{OF + 4*(7-2*d) + c}, v{OF + 4*(6-2*d) + c}")
        a(f"    ds_write_b128 v13, {vr(PK+4*c,4)} offset:{128*c}")
    a(f"    s_branch {L}_out")
    XT_ = 40; XR = 56; XF = 80; XC = 112; PKX = 144
    a(f"""{L}_x:
    s_lshl_b32 s27, s25, 6
    s_lshl_b32 s28, s24, 3
    s_add_u32 s27, s27, s28
    s_lshl_b32 s28, s34, 1
    s_add_u32 s27, s27, s28
    s_lshl_b32 s28, s27, 11
    v_lshlrev_b32 v6, 4, v2
    s_waitcnt lgkmcnt(0)""")
    srd(a, 12, 42, MB4)
    for j in range(4): a(f"    s_add_u32 m0, s35, {XTL + j*IS}\n    s_nop 0\n    buffer_load_dwordx4 v5, s[12:15], {so[j]} offen lds")
    for i in range(4): a(f"    buffer_load_dwordx4 {vr(XR+4*i,4)}, v6, s[12:15], s28 offen offset:{1024*i}")
    srd(a, 36, 40, 64 << 20)
    a(f"""    s_lshl_b32 s47, s2, 10
    s_lshl_b32 s48, s34, 8
    s_add_u32 s47, s47, s48
    s_add_u32 s47, s47, {PST_OFF:#x}
    v_lshlrev_b32 v11, 2, v2
    v_mov_b32 v12, -1
    buffer_store_dword v12, v11, s[36:39], s47 offen
    s_mov_b32 s49, 0x05040100
    s_mov_b32 s50, 0x07060302
    s_mov_b32 s51, 0x3a800000
    s_mov_b32 s52, 0x3727c5ac
    s_lshl_b32 s27, s27, 2
    s_add_u32 s27, s27, {ST1_OFF:#x}
    s_add_u32 s28, s27, 8192""")
    tail_addr(False, 0, XT_OFF)
    stamp(a, 0)
    a("    s_waitcnt vmcnt(5)\n    s_barrier")
    stamp(a, 4)
    for j in range(8): a(f"    ds_read_b64 {vr(XT_+2*j,2)}, v7 offset:{XTL + (j >> 2)*IS + (j & 3)*256}")
    a("    s_waitcnt lgkmcnt(0)")
    for c in range(4):
        for d in range(4):
            a(f"    v_perm_b32 v{PKX+4*c+d}, v{XT_ + 2*(2*d+1) + (c>>1)}, v{XT_ + 2*(2*d) + (c>>1)}, s{49 + (c&1)}")
        a(f"    ds_write_b128 v13, {vr(PKX+4*c,4)} offset:{128*c}")
    tail_out()
    S = [8, 9]; T = [10, 11]; M = [12, 14]; PS = [72, 74]
    a("    s_waitcnt vmcnt(5)")
    for rho in range(2):
        for i in range(8): unpack(a, XF + 16 * rho + 2 * i, XR + 8 * rho + i)
    src = lambda rho, i: XF + 16 * rho + 2 * i
    for rho in range(2): a(f"    v_pk_add_f32 {vr(PS[rho],2)}, {vr(src(rho,0),2)}, {vr(src(rho,1),2)}")
    for i in range(2, 8):
        for rho in range(2): a(f"    v_pk_add_f32 {vr(PS[rho],2)}, {vr(PS[rho],2)}, {vr(src(rho,i),2)}")
    for rho in range(2): a(f"    v_add_f32 v{S[rho]}, v{PS[rho]}, v{PS[rho]+1}")
    wave_sum(a, S, T)
    for rho in range(2): a(f"    v_mul_f32 v{M[rho]}, s51, v{S[rho]}")
    for i in range(8):
        for rho in range(2):
            a(f"    v_pk_add_f32 {vr(src(rho,i),2)}, {vr(src(rho,i),2)}, {vr(M[rho],2)} op_sel_hi:[1,0] neg_lo:[0,1] neg_hi:[0,1]")
    for rho in range(2): a(f"    v_pk_mul_f32 {vr(PS[rho],2)}, {vr(src(rho,0),2)}, {vr(src(rho,0),2)}")
    for i in range(1, 8):
        for rho in range(2): a(f"    v_pk_fma_f32 {vr(PS[rho],2)}, {vr(src(rho,i),2)}, {vr(src(rho,i),2)}, {vr(PS[rho],2)}")
    for rho in range(2): a(f"    v_add_f32 v{S[rho]}, v{PS[rho]}, v{PS[rho]+1}")
    wave_sum(a, S, T)
    for rho in range(2):
        a(f"    v_mov_b32 v{76+rho}, v{M[rho]}"); rnd(a, 76 + rho)
        a(f"    v_mul_f32 v{78+rho}, s51, v{S[rho]}"); rnd(a, 78 + rho); a(f"    v_add_f32 v{78+rho}, s52, v{78+rho}"); rnd(a, 78 + rho)
    a("    v_sqrt_f32 v78, v78\n    v_sqrt_f32 v79, v79\n    s_nop 0")
    for rho in range(2): rnd(a, 78 + rho)
    a("""    v_rcp_f32 v78, v78
    v_rcp_f32 v79, v79
    v_mov_b32 v6, 0
    s_mov_b64 exec, 1
    buffer_store_dwordx2 v[76:77], v6, s[36:39], s27 offen
    buffer_store_dwordx2 v[78:79], v6, s[36:39], s28 offen
    s_mov_b64 exec, -1""")
    stamp(a, 1)
    a(f"    s_branch {L}_done\n{L}_out:")
    tail_out()
    a(f"{L}_done:")
    stamp(a, 2)
    if opt.stamps: a("    s_waitcnt vmcnt(0)")
    stamp(a, 3)
    stamp_end(a, kidx, 40, 33)
    a(f"{L}_end:\n    s_endpgm")
    return (name, 256, 512, OST + 32768), (name, 256 if opt.stamps else 208, 96)

def gen_c2(a, kidx):
    name = "c_kernel"; L = "C"
    CS = 4160; RO = 4 * CS; WSZ = 21248; STG = 4 * WSZ
    kernel_head(a, name)
    a(f"""    s_cmp_ge_u32 s2, 256
    s_cbranch_scc1 {L}_end
    s_load_dwordx4 s[4:7], s[0:1], {ARG['ssmk']}
    s_load_dwordx2 s[40:41], s[0:1], {ARG['ws']}
    s_load_dwordx2 s[10:11], s[0:1], {ARG['w1']}
    s_load_dwordx2 s[42:43], s[0:1], {ARG['w2']}""")
    stamp_begin(a)
    a(f"""    v_lshrrev_b32 v1, 6, v0
    v_and_b32 v2, 63, v0
    s_and_b32 s24, s2, 7
    v_readfirstlane_b32 s33, v1
    s_lshl_b32 s24, s24, 5
    s_lshr_b32 s25, s2, 3
    s_add_u32 s24, s24, s25          ; cg
    s_cmp_ge_u32 s33, 4
    s_cbranch_scc1 {L}_help
    s_lshl_b32 s25, s24, 2
    s_add_u32 s25, s25, s33          ; ch
    s_lshl_b32 s26, s25, 12          ; ch*4096
    s_mul_i32 s27, s33, {WSZ}        ; WB
    v_lshlrev_b32 v3, 4, v2          ; lane*16
    s_add_u32 m0, s27, {RO}
    s_lshr_b32 s28, s25, 1
    s_lshl_b32 s28, s28, 2
    s_waitcnt lgkmcnt(0)""")
    srd(a, 12, 4, MB4); srd(a, 16, 40, 64 << 20)
    FD = 16; FE = 32; FX = 48; TO = 52
    for i in range(4):
        a(f"    buffer_load_dwordx4 {vr(FD+4*i,4)}, v3, s[12:15], s26 offen offset:{1024*i}")
        a(f"    buffer_load_dwordx4 {vr(FE+4*i,4)}, v3, s[12:15], s26 offen offset:{1024*i+4}")
        a(f"    buffer_load_dword v{FX+i}, v3, s[12:15], s26 offen offset:{1024*i+20}")
    for i in range(4): a(f"    buffer_load_dwordx4 v3, s[16:19], s26 offen offset:{1024*i} lds")
    a(f"""    s_load_dword s29, s[6:7], s28
    v_add_u32 v4, s27, v3
    v_mov_b32 v60, 0
    v_mov_b32 v61, 0
    v_mov_b32 v62, 0
    v_mov_b32 v63, 0
    s_mov_b64 exec, 0x3fffffff
    ds_write_b128 v4, v[60:63] offset:{RO + 4096}
    s_mov_b64 exec, -1
    v_and_b32 v5, 15, v2             ; b / a
    v_lshrrev_b32 v6, 4, v2          ; kg
    v_add_u32 v7, 1, v5
    v_and_b32 v8, 3, v7
    v_mul_u32_u24 v8, {CS}, v8
    v_and_b32 v7, 28, v7
    v_lshl_add_u32 v8, v7, 1, v8
    v_lshl_add_u32 v8, v6, 4, v8
    v_add_u32 v8, s27, v8            ; vAT
    v_lshlrev_b32 v9, 5, v5
    v_lshl_add_u32 v10, v6, 3, v9    ; 32a + 8g
    v_sub_u32 v9, {RO + 480}, v9
    v_lshl_add_u32 v9, v6, 4, v9
    v_add_u32 v9, s27, v9            ; vBT
    s_add_u32 s34, s26, {XT_OFF:#x}""")
    stamp(a, 0)
    for i in range(4):
        D = FD + 4 * i; E = FE + 4 * i
        a(f"    s_waitcnt vmcnt({4 + 9 - 3*i})")
        a(f"    ds_write_b128 v4, {vr(D,4)} offset:{32 + 1024*i}")
        a(f"    ds_write_b128 v4, {vr(E,4)} offset:{2*CS + 32 + 1024*i}")
        t = TO + 8 * (i & 1)
        for k in range(4): a(f"    v_alignbit_b32 v{t+k}, v{E+k}, v{D+k}, 16")
        a(f"    ds_write_b128 v4, {vr(t,4)} offset:{CS + 32 + 1024*i}")
        for k in range(4): a(f"    v_alignbit_b32 v{t+4+k}, v{E+k+1 if k < 3 else FX+i}, v{E+k}, 16")
        a(f"    ds_write_b128 v4, {vr(t+4,4)} offset:{3*CS + 32 + 1024*i}")
        if i == 0:
            a(f"""    v_mov_b32 v68, 0
    v_mov_b32 v69, 0
    v_mov_b32 v70, 0
    v_lshlrev_b32 v71, 16, v{D}
    v_mov_b32 v72, 0
    v_mov_b32 v73, 0
    v_mov_b32 v74, 0
    v_mov_b32 v75, v{D}
    v_mov_b32 v76, 0
    v_mov_b32 v77, 0
    v_mov_b32 v78, v71
    v_mov_b32 v79, v{t}
    s_mov_b64 exec, 1
    ds_write_b128 v4, v[60:63]
    ds_write_b128 v4, v[60:63] offset:16
    ds_write_b128 v4, v[60:63] offset:{CS}
    ds_write_b128 v4, v[68:71] offset:{CS+16}
    ds_write_b128 v4, v[60:63] offset:{2*CS}
    ds_write_b128 v4, v[72:75] offset:{2*CS+16}
    ds_write_b128 v4, v[60:63] offset:{3*CS}
    ds_write_b128 v4, v[76:79] offset:{3*CS+16}
    s_mov_b64 exec, -1""")
    ACC = 80; F0 = 112; F1 = 176
    for i in range(0, 32, 2): a(f"    v_mov_b64 {vr(ACC+i,2)}, 0")
    a(f"""    v_mov_b32 v34, {STG + 16384}
    v_mov_b32 v35, 0
    ds_write_b32 v34, v35
    s_waitcnt vmcnt(0) lgkmcnt(0)""")
    for n in range(8): a(f"    buffer_load_dwordx2 {vr(FD + 2*n, 2)}, v10, s[16:19], s34 offen offset:{512*n}")
    a("    s_barrier")
    stamp(a, 1)
    def reads(F, woff):
        r = []
        for u in range(8):
            r.append(f"    ds_read_b128 {vr(F+32+4*u,4)}, v9 offset:{3584 - 512*u + woff}")
            r.append(f"    ds_read_b64 {vr(F+4*u,2)}, v8 offset:{512*u + woff}")
            r.append(f"    ds_read_b64 {vr(F+4*u+2,2)}, v8 offset:{512*u + 8 + woff}")
        return r
    def mf(F):
        return [f"    v_mfma_f32_16x16x32_bf16 {vr(ACC+4*(u+v),4)}, {vr(F+4*u,4)}, {vr(F+32+4*v,4)}, {vr(ACC+4*(u+v),4)}" for u in range(8) for v in range(8 - u)]
    def weave(m, f):
        i = 0
        for x in m:
            a(x)
            if i < len(f): a(f[i]); i += 1
    for l in reads(F0, 0): a(l)
    a(f"    s_mov_b32 s35, 0\n{L}_loop:\n    s_waitcnt lgkmcnt(0)")
    weave(mf(F0), reads(F1, 64) + ["    ds_read_b32 v35, v34", "    v_add_u32 v8, 128, v8", "    v_add_u32 v9, 128, v9", "    s_add_u32 s35, s35, 1", "    s_cmp_eq_u32 s35, 4"])
    a(f"    s_waitcnt lgkmcnt(0)\n    s_cbranch_scc1 {L}_last")
    weave(mf(F1), reads(F0, 0))
    a(f"""    s_branch {L}_loop
{L}_again:
    s_sleep 1
    ds_read_b32 v35, v34
    s_waitcnt lgkmcnt(0)
{L}_last:
    v_readfirstlane_b32 s36, v35
    s_cmp_eq_u32 s36, 4
    s_cbranch_scc0 {L}_again""")
    KV = F0; MT = F0 + 16
    pre = [f"""    v_sub_u32 v32, {RO + 504}, v10
    v_add_u32 v32, s27, v32""",
           f"""    v_lshlrev_b32 v33, 1, v10
    v_add_u32 v33, {STG}, v33"""]
    pre += [f"    ds_read_b64 {vr(KV+2*n,2)}, v32 offset:{512*(7-n)}" for n in range(8)]
    pre += [f"    ds_read_b128 {vr(MT+4*n,4)}, v33 offset:{1024*n}" for n in range(8)]
    RTB = 36
    pre += [f"    ds_read_b128 {vr(RTB+4*n,4)}, v33 offset:{8192 + 1024*n}" for n in range(8)]
    pre += [f"""    s_lshl_b32 s35, s29, 16
    s_and_b32 s36, s29, 0xffff0000""", f"""    s_bitcmp1_b32 s25, 0
    s_cselect_b32 s35, s36, s35          ; D as f32""",
            f"""    s_and_b32 s36, s25, 3
    s_bfe_u32 s37, s25, 0x10003""", f"""    s_lshl_b32 s37, s37, 2
    s_or_b32 s36, s36, s37               ; g(d)""",
            f"""    v_and_b32 v11, 7, v5
    v_xor_b32 v11, s36, v11""", f"""    v_lshlrev_b32 v11, 5, v11
    v_lshrrev_b32 v12, 3, v5""", f"""    v_lshl_add_u32 v11, v12, 18, v11
    v_and_b32 v12, 1, v6""", f"""    v_lshl_add_u32 v11, v12, 19, v11
    v_lshrrev_b32 v12, 1, v6""", f"""    v_lshl_add_u32 v11, v12, 4, v11
    s_lshl_b32 s34, s25, 8""", f"""    s_add_u32 s34, s34, {HT_OFF:#x}"""]
    weave(mf(F1), pre)
    stamp(a, 2)
    a("    s_waitcnt vmcnt(0) lgkmcnt(0)")
    OUT = 224
    order = [0, 1, 2, 3, 4, 5, 6, 7]
    for n in order:
        c = ACC + 4 * n; k = KV + 2 * n; x = FD + 2 * n; o = OUT + 2 * n
        a(f"""    v_and_b32 v12, 0xffff0000, v{k+1}
    v_lshlrev_b32 v13, 16, v{k+1}
    v_and_b32 v14, 0xffff0000, v{k}
    v_lshlrev_b32 v15, 16, v{k}
    v_fmac_f32 v{c}, s35, v12
    v_fmac_f32 v{c+1}, s35, v13
    v_fmac_f32 v{c+2}, s35, v14
    v_fmac_f32 v{c+3}, s35, v15
    v_lshlrev_b32 v12, 16, v{x}
    v_and_b32 v13, 0xffff0000, v{x}
    v_lshlrev_b32 v14, 16, v{x+1}
    v_and_b32 v15, 0xffff0000, v{x+1}
    v_pk_mul_f32 {vr(c,2)}, {vr(c,2)}, {vr(RTB+4*n,2)}
    v_pk_mul_f32 {vr(c+2,2)}, {vr(c+2,2)}, {vr(RTB+4*n+2,2)}
    v_pk_add_f32 {vr(MT+4*n,2)}, v[12:13], {vr(MT+4*n,2)} neg_lo:[0,1] neg_hi:[0,1]
    v_pk_add_f32 {vr(MT+4*n+2,2)}, v[14:15], {vr(MT+4*n+2,2)} neg_lo:[0,1] neg_hi:[0,1]
    v_pk_fma_f32 v[12:13], {vr(MT+4*n,2)}, {vr(c,2)}, v[12:13]
    v_pk_fma_f32 v[14:15], {vr(MT+4*n+2,2)}, {vr(c+2,2)}, v[14:15]
    v_cvt_pk_bf16_f32 v{o}, v12, v13
    v_cvt_pk_bf16_f32 v{o+1}, v14, v15""")
        if n & 1:
            a(f"""    s_nop 0
    v_permlane16_swap_b32 v{o-2}, v{o}
    v_permlane16_swap_b32 v{o-1}, v{o+1}
    buffer_store_dwordx4 {vr(o-2,4)}, v11, s[16:19], s34 offen
    s_add_u32 s34, s34, 0x100000""")
    stamp(a, 3)
    a(f"    s_branch {L}_done")
    W = 16; WF = 48
    a(f"""{L}_help:
    s_and_b32 s34, s33, 3
    s_and_b32 s25, s2, 15            ; k slice
    s_lshr_b32 s26, s2, 4
    s_mul_i32 s27, s25, {64*7168}
    s_lshl_b32 s28, s26, 9
    s_lshl_b32 s29, s34, 7
    s_add_u32 s28, s28, s29
    s_add_u32 s27, s27, s28
    v_lshrrev_b32 v3, 3, v2
    v_mul_u32_u24 v3, 7168, v3
    v_and_b32 v4, 7, v2
    v_lshl_add_u32 v3, v4, 4, v3
    s_waitcnt lgkmcnt(0)""")
    srd(a, 12, 10, 1024 * 7168); srd(a, 16, 40, 64 << 20)
    a(f"""    s_lshl_b32 s30, s34, 12
    s_add_u32 m0, s30, {STG}
    s_add_u32 s30, s30, {ST1_OFF:#x}
    v_lshlrev_b32 v5, 4, v2
    v_mov_b32 v8, {STG + 16384}
    v_mov_b32 v9, 1
    s_barrier""")
    for i in range(4): a(f"    buffer_load_dwordx4 v5, s[16:19], s30 offen offset:{1024*i} lds")
    a("""    s_waitcnt vmcnt(0)
    s_mov_b64 exec, 1
    ds_add_u32 v8, v9
    s_mov_b64 exec, -1""")
    if opt.tlbpf:
        srd(a, 20, 42, 3584 * 2048)
        a(f"""    s_lshr_b32 s30, s2, 3
    s_mul_i32 s30, s30, {56*4096}
    v_lshlrev_b32 v5, 12, v2
    s_cmp_eq_u32 s34, 1
    s_cbranch_scc1 {L}_t1
    s_cmp_eq_u32 s34, 0
    s_cbranch_scc0 {L}_t2
    buffer_load_dword v7, v5, s[12:15], s30 offen
    s_branch {L}_t3
{L}_t1:
    buffer_load_dword v7, v5, s[20:23], s30 offen
    s_branch {L}_t3
{L}_t2:
    s_lshl_b32 s30, s30, 1
    s_and_b32 s31, s34, 1
    s_mul_i32 s31, s31, {56*4096}
    s_add_u32 s30, s30, s31
    s_add_u32 s30, s30, {H1_OFF:#x}
    buffer_load_dword v7, v5, s[16:19], s30 offen
{L}_t3:""")
    a(f"""    s_cmp_ge_u32 s2, 224
    s_cbranch_scc1 {L}_done""")
    for i in range(8):
        a(f"    buffer_load_dwordx4 {vr(W+4*i,4)}, v3, s[12:15], s27 offen\n    s_add_u32 s27, s27, {8*7168}")
    if opt.c_pf2:
        srd(a, 20, 42, 3584 * 2048)
        a(f"""    s_mul_i32 s30, s2, 32768
    s_lshl_b32 s31, s34, 13
    s_add_u32 s30, s30, s31
    v_lshlrev_b32 v5, 7, v2
    buffer_load_dword v6, v5, s[20:23], s30 offen""")
    ex = 1 if opt.c_pf2 else 0
    for i in range(8):
        a(f"    s_waitcnt vmcnt({7 - i + ex})")
        if i == 0:
            for d in range(4): unpack(a, WF + 2 * d, W + d)
        else:
            for d in range(4):
                unpack(a, WF + 8 + 2 * (d & 1), W + 4 * i + d)
                a(f"    v_pk_add_f32 {vr(WF+2*d,2)}, {vr(WF+2*d,2)}, {vr(WF + 8 + 2*(d&1),2)}")
    for d in range(8): a(f"    v_add_f32_dpp v{WF+d}, v{WF+d}, v{WF+d} row_ror:8 row_mask:0xf bank_mask:0xf")
    for sw in ("v_permlane16_swap_b32", "v_permlane32_swap_b32"):
        for d in range(8): a(f"    v_mov_b32 v{WF+8+d}, v{WF+d}")
        for d in range(8): a(f"    {sw} v{WF+8+d}, v{WF+d}")
        for d in range(8): a(f"    v_add_f32 v{WF+d}, v{WF+d}, v{WF+8+d}")
    a(f"""    s_mul_i32 s27, s25, {3584*4}
    s_lshl_b32 s28, s28, 1
    s_add_u32 s27, s27, s28
    s_add_u32 s27, s27, {CS_OFF:#x}
    v_lshlrev_b32 v4, 5, v4
    s_mov_b64 exec, 0xff
    buffer_store_dwordx4 {vr(WF,4)}, v4, s[16:19], s27 offen
    buffer_store_dwordx4 {vr(WF+4,4)}, v4, s[16:19], s27 offen offset:16
    s_mov_b64 exec, -1
{L}_done:""")
    stamp(a, 4)
    if opt.stamps: a("    s_waitcnt vmcnt(0)")
    stamp(a, 5)
    stamp_end(a, kidx, 40, 33)
    a(f"{L}_end:\n    s_endpgm")
    return (name, 256, 512, STG + 16384 + 64), (name, 256 if opt.stamps else 240, 96)


def loop_unrolled(a, L, MI, NI, nk, ns, acc, F0, F1, rdA, rdB, s_k, bar, tail, hookA=None, hookB=None, entry=None):
    n = MI * NI
    def reads(F, slot, kh):
        r = rdA(F, slot, kh)
        for ni in range(NI): r += rdB(F, slot, kh, ni)
        return r
    def mfmas(F):
        return [f"    v_mfma_f32_16x16x32_bf16 {vr(acc + 4*(mi*NI+ni),4)}, {vr(F + 4*MI + 4*ni, 4)}, {vr(F + 4*mi, 4)}, {vr(acc + 4*(mi*NI+ni),4)}" for ni in range(NI) for mi in range(MI)]
    def place(mf, items, start, extra):
        gaps = [[] for _ in mf]
        for j, it in enumerate(items): gaps[start + j].append(it)
        for k, v in extra.items(): gaps[k] += v
        for m, gl in zip(mf, gaps):
            a(m)
            for x in gl: a(x)
    nrd = len(reads(F0, 0, 0))
    late = bar >= n
    st = bar - n + 1 if late else 0
    lagB = st + nrd > n - opt.lagthr
    a(f"    s_mov_b32 s{s_k}, 0")
    if entry is None:
        for l in reads(F0, 0, 0): a(l)
    else:
        a(f"    s_cmp_eq_u32 {entry}, 0\n    s_cbranch_scc1 {L}_e0")
        for l in reads(F0, 1, 0): a(l)
        a(f"    s_branch {L}_s1\n{L}_e0:")
        for l in reads(F0, 0, 0): a(l)
    for u in range(ns):
        a(f"{L}_s{u}:")
        ex = {}
        if lagB:
            a(f"    s_waitcnt lgkmcnt({2*(NI-1)})")
            for ni in range(1, NI):
                ex.setdefault(MI * ni - 1, []).append(f"    s_waitcnt lgkmcnt({min(15, 2*(NI-1-ni) + min(nrd, MI*ni))})")
        else:
            a("    s_waitcnt lgkmcnt(0)")
        ex.setdefault(n - 3, []).append(f"    s_add_u32 s{s_k}, s{s_k}, 1")
        ex.setdefault(n - 2, []).append(f"    s_cmp_eq_u32 s{s_k}, {nk}")
        if not late: ex.setdefault(bar, []).append("    s_waitcnt lgkmcnt(0)\n    s_barrier")
        ex.setdefault(n - 1, []).append(f"    s_cbranch_scc1 {L}_tail")
        if late: ex[n - 1].append(f"    s_waitcnt lgkmcnt({2*(NI-1)})")
        if hookA: ex[n - 1].append(hookA(u))
        place(mfmas(F0), reads(F1, u, 1), 0, ex)
        ex = {}
        if late: ex[bar - n] = ["    s_waitcnt lgkmcnt(0)\n    s_barrier"]
        if hookB: ex.setdefault(n - 1, []).append(hookB(u))
        if u == ns - 1: ex.setdefault(n - 1, []).append(f"    s_branch {L}_s0")
        place(mfmas(F1), reads(F0, (u + 1) % ns, 0), st, ex)
    a(f"{L}_tail:")
    if late: a("    s_waitcnt lgkmcnt(0)\n    s_barrier")
    tail(mfmas(F1))

def gen_ga(a, kidx):
    name = "g_kernel"; L = "G"
    LA = 224; LB = 216; LB2 = 212
    ST1 = 49152; NS1 = 3; NK1 = 16
    NS2 = 4; NK2 = 28; B2 = 81920
    BR1 = 49152; CNT = 147456; TST = CNT + 256; TRM = TST + 512; TCB = TRM + 1024 + 64; RES = 65536
    kernel_head(a, name)
    a(f"""    s_cmp_ge_u32 s2, 256
    s_cbranch_scc1 {L}_end
    s_load_dwordx2 s[4:5], s[0:1], {ARG['ws']}
    s_load_dwordx4 s[8:11], s[0:1], {ARG['w1']}    ; w1, b1
    s_load_dwordx4 s[48:51], s[0:1], {ARG['w2']}   ; w2, b2
    s_load_dwordx2 s[52:53], s[0:1], {ARG['out']}""")
    stamp_begin(a)
    a(f"""    v_lshrrev_b32 v1, 6, v0
    v_and_b32 v2, 63, v0
    s_and_b32 s24, s2, 7
    v_readfirstlane_b32 s33, v1
    s_lshr_b32 s25, s2, 3
    s_lshr_b32 s26, s24, 1
    s_lshl_b32 s26, s26, 2
    s_and_b32 s27, s25, 3
    s_add_u32 s26, s26, s27          ; mt
    s_and_b32 s54, s24, 1
    s_lshr_b32 s55, s25, 2
    s_lshl_b32 s56, s24, 2
    s_add_u32 s56, s56, s27
    s_lshl_b32 s56, s56, 7           ; group*128
    s_lshl_b32 s27, s54, 3
    s_add_u32 s27, s27, s55          ; nt
    s_and_b32 s29, s27, 1
    s_cmp_lt_u32 s33, 4
    s_cbranch_scc1 {L}_cons""")
    def final_addr():
        a(f"""    s_lshl_b32 s43, s26, 7
    s_lshl_b32 s44, s54, 5
    s_add_u32 s43, s43, s44
    s_lshl_b32 s44, s33, 2
    s_add_u32 s43, s43, s44
    s_lshl_b32 s43, s43, 11          ; row*2048
    s_lshl_b32 s44, s55, 8
    s_add_u32 s43, s43, s44
    s_add_u32 s44, s43, {64*2048}""")
    a(f"""    s_and_b32 s34, s33, 3            ; lw
    s_lshl_b32 s35, s34, 12          ; lw*4096
    v_lshl_add_u32 v{LA}, v2, 4, s35 ; A voffset
    s_lshl_b32 s68, s26, 18
    s_add_u32 s69, s68, {16 << 14}
    s_and_b32 s36, s27, {0 if opt.norot else 12}
    s_lshl_b32 s30, s36, 14
    s_add_u32 s30, s30, s68
    s_mul_i32 s66, s27, 448
    s_and_b32 s66, s66, 0xffffff80
    s_add_u32 s67, s66, {1024*7168}
    s_mul_i32 s31, s36, {64*7168}
    s_add_u32 s31, s31, s66
    s_mov_b32 s70, s35
    s_add_u32 s39, s35, {NS1*16384}
    s_add_u32 s38, s35, s35
    s_add_u32 s38, s38, {BR1}
    s_mov_b32 s71, s38
    s_add_u32 s37, s38, {NS1*32768}
    s_waitcnt lgkmcnt(0)""")
    srd(a, 12, 4, MB4, off=HT_OFF)
    def issueA1():
        a(f"    s_mov_b32 m0, s70\n    s_add_u32 s70, s70, 16384")
        for i in range(4): a(f"    buffer_load_dwordx4 v{LA}, s[12:15], s30 offen offset:{i*1024} lds")
        a("""    s_add_u32 s30, s30, 16384
    s_cmp_ge_u32 s70, s39
    s_cselect_b32 s70, s35, s70
    s_cmp_ge_u32 s30, s69
    s_cselect_b32 s30, s68, s30""")
    def issueB1():
        a("    s_mov_b32 m0, s38\n    s_nop 0")
        for i in range(4): a(f"    buffer_load_dwordx4 v{LB+i}, s[16:19], s31 offen offset:{i*1024} lds")
        a(f"    s_add_u32 m0, s38, 4096\n    s_add_u32 s38, s38, 32768")
        for i in range(4, 8): a(f"    buffer_load_dwordx4 v{LB+i}, s[16:19], s31 offen offset:{(i&3)*1024} lds")
        a(f"""    s_add_u32 s31, s31, {64*7168}
    s_cmp_ge_u32 s38, s37
    s_cselect_b32 s38, s71, s38
    s_cmp_ge_u32 s31, s67
    s_cselect_b32 s31, s66, s31""")
    issueA1()
    a(f"""    v_lshrrev_b32 v8, 5, v2          ; hi
    s_lshl_b32 s36, s34, 4
    v_add_u32 v9, s36, v8            ; 16lw+hi
    v_mul_u32_u24 v9, 7168, v9
    v_and_b32 v10, 1, v2
    v_lshl_add_u32 v9, v10, 4, v9    ; t0
    v_bfe_u32 v10, v2, 1, 4
    v_xor_b32 v10, v10, v8           ; x0""")
    srd(a, 16, 8, 1024 * 7168)
    for ci, c in enumerate((0, 2, 4, 6)):
        a(f"    v_xor_b32 v11, {c}, v10\n    v_lshl_add_u32 v11, v11, 5, v9")
        for i in range(8):
            if 2 * (i & 1) + 4 * (i >> 2) == c: a(f"    v_add_u32 v{LB+i}, {2*i*7168 - (i&3)*1024}, v11")
    stamp(a, 0)
    issueB1(); issueA1()
    a("    s_waitcnt vmcnt(4)\n    s_barrier")
    issueB1(); issueA1(); issueB1()
    stamp(a, 12)
    a(f"""    v_lshrrev_b32 v3, 4, v2          ; q4
    s_lshl_b32 s36, s34, 4
    v_add_u32 v4, s36, v3
    v_lshlrev_b32 v4, 11, v4
    v_and_b32 v5, 1, v2
    v_lshl_add_u32 v4, v5, 4, v4     ; t0
    v_bfe_u32 v5, v2, 1, 3
    v_xor_b32 v5, v5, v3             ; x0""")
    for c in (0, 4):
        a(f"    v_xor_b32 v6, {c}, v5\n    v_lshl_add_u32 v6, v6, 5, v4")
        for i in range(4):
            if 4 * (i >> 1) == c: a(f"    v_add_u32 v{LB2+i}, {4*i*2048 - i*1024}, v6")
    a(f"""    v_lshrrev_b32 v3, 3, v2          ; d&7
    v_bfe_u32 v4, v2, 1, 2
    v_lshrrev_b32 v5, 1, v3
    v_xor_b32 v4, v4, v5             ; gs
    v_and_b32 v5, 1, v4
    v_lshrrev_b32 v4, 1, v4
    v_lshl_or_b32 v4, v4, 2, v5
    s_lshl_b32 s36, s54, 1
    v_or_b32 v4, s36, v4             ; cp
    v_and_b32 v5, 3, v3
    v_xor_b32 v4, v4, v5             ; cp ^ (d&3)
    v_lshlrev_b32 v4, 5, v4
    v_and_b32 v5, 1, v2
    v_lshl_add_u32 v4, v5, 4, v4
    v_lshl_add_u32 v208, v3, 8, v4
    v_xor_b32 v209, 128, v208
    v_add_u32 v209, 1024, v209
    v_add_u32 v210, 2048, v208
    v_add_u32 v211, 2048, v209
    v_and_b32 v3, 31, v2
    v_lshrrev_b32 v4, 5, v2
    v_lshlrev_b32 v4, 13, v4
    v_lshl_add_u32 v206, v3, 2, v4
    v_and_b32 v3, 15, v2
    v_min_u32 v3, 13, v3
    v_lshrrev_b32 v4, 4, v2
    v_mul_u32_u24 v207, {3584*4}, v4
    v_lshl_add_u32 v207, v3, 4, v207
    v_lshlrev_b32 v205, 3, v3""")
    srd(a, 20, 4, 64 << 20); srd(a, 72, 10, 7168)
    PSR = 32; CSR = 48; BR = 64
    a(f"""    s_lshl_b32 s41, s26, 14
    s_lshl_b32 s36, s34, 7
    s_add_u32 s41, s41, s36
    s_add_u32 s41, s41, {PST_OFF:#x}
    s_add_u32 s47, s41, 4096
    s_mul_i32 s42, s27, 896
    s_mul_i32 s36, s34, 224
    s_add_u32 s42, s42, s36
    s_lshr_b32 s43, s42, 1
    s_add_u32 s42, s42, {CS_OFF:#x}""")
    KP = 6
    a(f"    s_mov_b32 s40, 0\n{L}_l1:")
    stamp_loop(a, 40, 32)
    a("    s_waitcnt vmcnt(12)")
    stamp_loop(a, 40, 42)
    a("    s_barrier")
    stamp_loop(a, 40, 52)
    if not opt.noload:
        issueA1(); issueB1()
    a(f"    s_add_u32 s40, s40, 1\n    s_cmp_lt_u32 s40, {KP + 1}\n    s_cbranch_scc1 {L}_l1")
    stamp(a, 20)
    def gather_ps():
        for i in range(16): a(f"    buffer_load_dword v{PSR+i}, v206, s[20:23], s{41 if i < 8 else 47} offen offset:{512*(i&7)} sc1")
    gather_ps()
    for i in range(4): a(f"    buffer_load_dwordx4 {vr(CSR+4*i,4)}, v207, s[20:23], s42 offen\n    s_add_u32 s42, s42, {4*3584*4}")
    a(f"    buffer_load_dwordx2 {vr(BR,2)}, v205, s[72:75], s43 offen")
    for k in (KP + 1, KP + 2):
        stamp(a, 21 + 2 * (k - KP - 1))
        a(f"    s_waitcnt vmcnt(33)\n    s_barrier          ; b{k}")
        stamp(a, 22 + 2 * (k - KP - 1))
        issueA1(); issueB1()
    t = Asm()
    for i in range(1, 8): t(f"    v_pk_add_f32 {vr(PSR,2)}, {vr(PSR,2)}, {vr(PSR+2*i,2)}")
    for i in range(1, 4):
        t(f"    v_pk_add_f32 {vr(CSR,2)}, {vr(CSR,2)}, {vr(CSR+4*i,2)}\n    v_pk_add_f32 {vr(CSR+2,2)}, {vr(CSR+2,2)}, {vr(CSR+4*i+2,2)}")
    t(f"""    v_add_f32 v3, v{PSR}, v{PSR+1}
    s_mov_b32 s76, 0x3a800000
    v_mov_b32 v4, v3""")
    for sw in ("v_permlane16_swap_b32", "v_permlane32_swap_b32"):
        for d in range(4): t(f"    v_mov_b32 v{CSR+4+d}, v{CSR+d}")
        for d in range(4): t(f"    {sw} v{CSR+4+d}, v{CSR+d}")
        for d in range(4): t(f"    v_add_f32 v{CSR+d}, v{CSR+d}, v{CSR+4+d}")
    t(f"""    v_permlane32_swap_b32 v4, v3
    v_mul_f32 v6, s76, v4                ; mean
    v_mul_f32 v7, s76, v3
    v_fma_f32 v7, -v6, v6, v7
    v_max_f32 v7, 0, v7                  ; variance""")
    rnd(t, 6); rnd(t, 7)
    t("    v_add_f32 v7, 0x3727c5ac, v7"); rnd(t, 7)
    t("    v_sqrt_f32 v7, v7")
    for d in range(4): t(f"    v_cvt_pk_bf16_f32 v{CSR+4+d}, v{CSR+d}, v{CSR+d}")
    rnd(t, 7)
    for d in range(4): t(f"    v_and_b32 v{CSR+4+d}, 0xffff0000, v{CSR+4+d}\n    v_sub_f32 v{CSR+d}, v{CSR+d}, v{CSR+4+d}")
    t("    v_rcp_f32 v9, v7")
    for d in range(4):
        t(f"    v_cvt_pk_bf16_f32 v{CSR+8+2*d}, v{CSR+4+d}, v{CSR+d}")
        t(f"    v_and_b32 v{CSR+9+2*d}, 0xffff, v{BR + (d>>1)}" if d % 2 == 0 else f"    v_lshrrev_b32 v{CSR+9+2*d}, 16, v{BR + (d>>1)}")
    t(f"""    v_mul_f32 v9, v9, v9                 ; r^2
    v_xor_b32 v6, 0x80000000, v6
    v_lshrrev_b32 v4, 16, v6
    v_or_b32 v6, v6, v4                  ; (-m,-m)
    v_lshrrev_b32 v7, 16, v7             ; (den,0)
    v_and_b32 v3, 31, v2
    s_lshl_b32 s77, s34, 7
    s_add_u32 s77, s77, {TST}
    v_lshl_add_u32 v4, v3, 2, s77
    ds_write_b32 v4, v9
    s_lshl_b32 s77, s34, 8
    s_add_u32 s77, s77, {TRM}
    v_lshl_add_u32 v4, v3, 3, s77
    ds_write_b64 v4, v[6:7]
    s_mul_i32 s77, s34, 448
    s_add_u32 s77, s77, {TCB}
    v_lshl_add_u32 v3, v205, 2, s77
    ds_write_b128 v3, {vr(CSR+8,4)}
    ds_write_b128 v3, {vr(CSR+12,4)} offset:16
    v_mov_b32 v10, 0
    v_mov_b32 v11, 0
    v_mov_b32 v12, {TRM + 1024}
    ds_write_b64 v12, v[10:11]
    v_mov_b32 v12, {CNT}
    ds_write_b64 v12, v[10:11]""")
    per = (len(t.lines) - 10 + 3) // 4
    chunks = [t.lines[10 + i*per: 10 + (i+1)*per] for i in range(4)]
    for k in range(KP + 3, NK1 - NS1):
        a(f"    s_waitcnt vmcnt(12)\n    s_barrier          ; b{k}")
        issueA1(); issueB1()
        if k == KP + 3:
            a(f"{L}_chk:\n    v_max_u32 v3, v{PSR}, v{PSR+1}")
            for i in range(2, 16, 2): a(f"    v_max3_u32 v3, v3, v{PSR+i}, v{PSR+i+1}")
            a(f"""    v_cmp_eq_u32 vcc, -1, v3
    s_cmp_lg_u64 vcc, 0
    s_cbranch_scc1 {L}_retry""")
            for x in t.lines[:10]: a(x)
        else:
            for x in chunks.pop(0): a(x)
    srd(a, 16, 48, 3584 * 2048)
    PFX = 1 if opt.w2pf == "l" else 0
    if PFX:
        a(f"""    s_mul_i32 s36, s2, 28672
    s_mul_i32 s37, s34, 7168
    s_add_u32 s36, s36, s37
    v_lshlrev_b32 v70, 7, v2
    buffer_load_dword v71, v70, s[16:19], s36 offen""")
    final_addr()
    a(f"""    s_mul_i32 s58, s55, 7
    s_add_u32 s58, s58, 1
    s_lshr_b32 s58, s58, 1
    s_mul_i32 s66, s54, {1792*2048}
    s_lshl_b32 s36, s55, 8
    s_add_u32 s66, s66, s36
    s_lshl_b32 s31, s58, 17
    s_add_u32 s31, s31, s66          ; G2 B soffset
    s_add_u32 s67, s66, {28 << 17}
    s_lshl_b32 s38, s29, 14
    s_add_u32 s38, s38, s35
    s_add_u32 s39, s35, 65536
    s_lshl_b32 s36, s55, 15
    s_lshl_b32 s37, s34, 13
    s_add_u32 s36, s36, s37
    s_add_u32 s42, s36, s68
    s_waitcnt vmcnt({12 + PFX})
    s_barrier          ; b13""")
    stamp(a, 13)
    def issueB2():
        a(f"    s_add_u32 m0, s38, {B2}\n    s_add_u32 s38, s38, 16384")
        for i in range(4): a(f"    buffer_load_dwordx4 v{LB2+i}, s[16:19], s31 offen offset:{i*1024} lds")
        a(f"""    s_add_u32 s31, s31, {64*2048}
    s_cmp_ge_u32 s38, s39
    s_cselect_b32 s38, s35, s38
    s_cmp_ge_u32 s31, s67
    s_cselect_b32 s31, s66, s31""")
    issueB2()
    for x in chunks.pop(0): a(x)
    stamp(a, 15)
    a(f"    s_waitcnt vmcnt({4 + PFX})\n    s_barrier          ; b14")
    stamp(a, 14)
    assert not chunks
    issueB2()
    a("    s_waitcnt lgkmcnt(0)\n    s_barrier          ; b15")
    issueB2(); issueB2()
    stamp(a, 1)
    a(f"    s_add_u32 m0, s35, {RES}\n    s_nop 0")
    for i in range(4): a(f"    buffer_load_dwordx4 v{208+i}, s[12:15], s42 offen offset:{i*1024} lds")
    srd(a, 12, 4, H1_SZ, off=H1_OFF); srd(a, 60, 4, FLG_SZ, off=FLG_OFF)
    a(f"""    s_lshr_b32 s36, s34, 1
    s_lshl_b32 s36, s36, 13
    s_and_b32 s37, s34, 1
    s_lshl_b32 s37, s37, 11              ; + 16*(lw&1)
    s_add_u32 s37, s37, s36
    v_lshl_add_u32 v7, v2, 4, s37
    s_lshl_b32 s36, s29, 14
    v_add_u32 v3, s36, v7
    s_cmp_eq_u32 s29, 1
    s_cselect_b32 s36, 0, 49152
    v_add_u32 v4, s36, v7
    v_lshrrev_b32 v5, 3, v2
    v_xor_b32 v5, v5, v2
    v_bfe_u32 v5, v5, 2, 1               ; c bit2
    v_cmp_eq_u32 vcc, s29, v5
    v_mov_b32 v6, 0x80000000
    s_mul_i32 s36, s27, 7
    s_lshr_b32 s36, s36, 1               ; ks0
    v_cndmask_b32 v5, v6, v4, vcc
    s_mul_i32 s37, s26, 56
    s_add_u32 s36, s36, s37
    s_lshl_b32 s40, s36, 14
    s_add_u32 s41, s40, 16384
    s_add_u32 s42, s40, 32768
    s_mul_i32 s68, s54, 28
    s_add_u32 s68, s68, s37
    s_lshl_b32 s68, s68, 14
    s_add_u32 s69, s68, {28 << 14}
    s_add_u32 s30, s58, 3
    s_lshl_b32 s30, s30, 14
    s_add_u32 s30, s30, s68
    s_cmp_ge_u32 s30, s69
    s_cselect_b32 s30, s68, s30
    s_add_u32 s70, s29, 3
    s_and_b32 s70, s70, 3
    s_lshl_b32 s70, s70, 14
    s_add_u32 s70, s70, s35
    s_lshl_b32 s45, s55, 2
    s_add_u32 s46, s56, {GRP_RDY:#x}
    s_add_u32 s45, s45, s46
    v_and_b32 v8, 7, v2
    v_lshlrev_b32 v8, 2, v8
    v_mov_b32 v10, 1""")
    for half in range(2):
        stamp(a, 16 + 2 * half)
        if half == 1: a("    s_waitcnt vmcnt(8)")
        a(f"    s_barrier                            ; E{half}")
        stamp(a, 17 + 2 * half)
        ho = 4096 * half
        items = [(3, 3, 40, 0, 0), (3, 3, 40, 0, 1), (4, 5, 40, 0, 0), (4, 5, 40, 0, 1), (3, 3, 41, 16384, 0), (3, 3, 41, 16384, 1), (3, 3, 42, 32768, 0), (3, 3, 42, 32768, 1)]
        for i, (vr_, vs_, so, lo, q) in enumerate(items):
            a(f"    ds_read_b128 {vr(32+32*half+4*i,4)}, v{vr_} offset:{lo + ho + 1024*q}")
        if half == 1: a("    s_add_u32 s40, s40, 4096\n    s_add_u32 s41, s41, 4096\n    s_add_u32 s42, s42, 4096")
        for i, (vr_, vs_, so, lo, q) in enumerate(items):
            a(f"    s_waitcnt lgkmcnt({7-i})\n    buffer_store_dwordx4 {vr(32+32*half+4*i,4)}, v{vs_}, s[12:15], s{so} offen offset:{1024*q} sc1")
    stamp(a, 3)
    a("    s_barrier          ; c0\n    s_barrier          ; c1\n    s_waitcnt vmcnt(0)")
    stamp(a, 4)
    a(f"""    s_mov_b64 exec, 1
    ds_add_rtn_u32 v13, v12, v10
    s_mov_b64 exec, -1
    s_waitcnt lgkmcnt(0)
    v_readfirstlane_b32 s36, v13
    s_cmp_eq_u32 s36, 3
    s_cbranch_scc0 {L}_wait2
    s_mov_b64 exec, 1
    buffer_store_dword v10, v11, s[60:63], s45 offen sc1
    s_mov_b64 exec, 0xff
{L}_poll2:
    buffer_load_dword v9, v8, s[60:63], s46 offen sc1
    s_waitcnt vmcnt(0)
    v_cmp_eq_u32 vcc, 1, v9
    s_cmp_eq_u64 vcc, exec
    s_cbranch_scc1 {L}_seen2
    s_sleep {opt.psleep}
    s_branch {L}_poll2
{L}_seen2:
    ds_write_b32 v12, v10 offset:4
    s_mov_b64 exec, -1""")
    issueB2(); issueB2()
    a(f"    s_branch {L}_go2\n{L}_wait2:")
    issueB2(); issueB2()
    a(f"""{L}_spin2:
    s_sleep 1
    ds_read_b32 v13, v12 offset:4
    s_waitcnt lgkmcnt(0)
    v_readfirstlane_b32 s36, v13
    s_cmp_eq_u32 s36, 1
    s_cbranch_scc0 {L}_spin2
{L}_go2:""")
    stamp(a, 5)
    def issueA2():
        a("    s_mov_b32 m0, s70\n    s_add_u32 s70, s70, 16384")
        for i in range(4): a(f"    buffer_load_dwordx4 v{LA}, s[12:15], s30 offen offset:{i*1024} sc1 lds")
        a("""    s_add_u32 s30, s30, 16384
    s_cmp_ge_u32 s70, s39
    s_cselect_b32 s70, s35, s70
    s_cmp_ge_u32 s30, s69
    s_cselect_b32 s30, s68, s30""")
    issueA2(); issueA2()
    a("    s_waitcnt vmcnt(4)\n    s_barrier          ; c2")
    issueA2(); issueA2(); issueB2()
    a("    s_waitcnt vmcnt(12)\n    s_barrier          ; c3")
    issueA2(); issueB2()
    a(f"    s_mov_b32 s40, 4\n{L}_l2:\n    s_waitcnt vmcnt(16)\n    s_barrier")
    issueA2(); issueB2()
    a(f"    s_add_u32 s40, s40, 1\n    s_cmp_lt_u32 s40, {NK2-NS2}\n    s_cbranch_scc1 {L}_l2")
    for k in range(NK2 - NS2, NK2):
        left = max(0, NK2 - 1 - (k + 1))
        if k + 1 < NK2: a(f"    s_waitcnt vmcnt({left*8})")
        a("    s_barrier")
    stamp(a, 6)
    a(f"    s_branch {L}_epi2")
    ACC = 0; F0 = 112; F1 = 156; VA = 200; VB = 204; VBH = 235; SA = 212; ONE = 228
    wad = lambda ni: [213, 214, 215, 217, 218, 219, 221][ni]
    vbh = lambda ni: [235, 236, 237, 238, 239, 211, 232][ni]
    a(f"""{L}_cons:
    v_mov_b32 v240, v2               ; lane
    v_and_b32 v241, 15, v2           ; r
    v_lshrrev_b32 v242, 4, v2        ; kg
    v_lshlrev_b32 v243, 3, v242
    s_and_b32 s34, s33, 1            ; wm
    s_lshr_b32 s35, s33, 1           ; wn
    s_lshl_b32 s36, s34, 13          ; wm*64*128
    v_lshl_add_u32 v244, v241, 7, s36
    v_and_b32 v245, 7, v241          ; r7
    v_bfe_u32 v246, v240, 2, 2       ; rr
    v_lshl_add_u32 v247, v242, 3, v246   ; 8kg+rr
    v_and_b32 v248, 3, v240          ; cc
    v_lshlrev_b32 v248, 3, v248
    v_lshl_add_u32 v249, v247, 8, v248
    v_lshl_add_u32 v247, v247, 9, v248
    v_add_u32 v247, {BR1}, v247
    v_and_b32 v248, 1, v242
    v_lshl_or_b32 v246, v248, 2, v246    ; g
    s_lshl_b32 s37, s34, 2""")
    for mi in range(4):
        a(f"    s_add_u32 s38, s37, {mi}\n    v_xor_b32 v248, s38, v246\n    v_lshl_add_u32 v{VA+mi}, v248, 5, v249")
    a(f"""    s_mul_i32 s37, s35, 7
    s_lshl_b32 s38, s29, 1
    s_add_u32 s37, s37, s38          ; f0 = 2p + 7wn""")
    for ni in range(7):
        a(f"    s_add_u32 s38, s37, {ni}\n    v_xor_b32 v248, s38, v246\n    v_lshl_add_u32 v{VB+ni}, v248, 5, v247")
        a(f"    v_add_u32 v{vbh(ni)}, 0x10000, v{VB+ni}")
    for i in range(0, 112, 2): a(f"    v_mov_b64 {vr(ACC+i,2)}, 0")
    for i in range(4): a(f"    v_mov_b32 v{ONE+i}, 0x3f803f80")
    a(f"""    v_lshrrev_b32 v248, 2, v241
    v_and_b32 v249, 3, v240
    v_cmp_eq_u32 s[70:71], v248, v242
    v_cmp_eq_u32 s[64:65], 1, v249
    v_cmp_eq_u32 s[66:67], 2, v249
    v_cmp_eq_u32 s[68:69], 3, v249
    s_and_b32 s41, s27, 3
    s_add_u32 s41, s41, 1
    s_lshl_b32 s59, s26, 14
    s_xor_b32 s36, s35, 1
    s_lshl_b32 s36, s36, 13
    s_add_u32 s59, s59, s36
    s_lshl_b32 s36, s27, 9
    s_add_u32 s59, s59, s36
    s_lshl_b32 s36, s34, 8
    s_add_u32 s59, s59, s36
    s_mul_i32 s36, s35, 896
    s_add_u32 s36, s36, {TCB}
    v_lshl_add_u32 v233, v241, 3, s36
    s_lshl_b32 s36, s34, 9
    s_add_u32 s36, s36, {TRM}
    v_lshl_add_u32 v247, v241, 3, s36
    v_cmp_eq_u32 vcc, 0, v242
    v_mov_b32 v248, {TRM + 1024}
    v_mov_b32 v249, 128
    v_cndmask_b32 v252, v248, v247, vcc
    v_cndmask_b32 v249, 0, v249, vcc
    v_add_u32 v253, v252, v249
    v_add_u32 v254, v253, v249
    v_add_u32 v255, v254, v249
    v_lshrrev_b32 v246, 1, v242
    v_xor_b32 v246, v246, v245
    v_lshlrev_b32 v246, 4, v246          ; ((kg>>1)^r7)<<4
    v_and_b32 v247, 1, v242
    v_lshl_add_u32 v247, v247, 3, v244   ; m*128 + half*8""")
    for ni in range(7):
        a(f"""    s_add_u32 s38, s37, {ni}
    s_lshr_b32 s39, s38, 2
    s_lshl_b32 s39, s39, 14
    s_and_b32 s38, s38, 3
    s_lshl_b32 s38, s38, 5
    s_or_b32 s{76+ni if ni < 4 else 60+ni-4}, s38, s39""")
    a("    s_waitcnt lgkmcnt(0)")
    srd(a, 72, 4, 256 * 1024, off=PST_OFF)
    stamp(a, 0)
    a("    s_barrier")
    stamp(a, 1)
    CT = F0; MTR = F0 + 16
    def g1_tail(mf):
        stamp(a, 13)
        mf = [m for j, m in enumerate(mf) if (j & 3) < 2] + [m for j, m in enumerate(mf) if (j & 3) >= 2]
        fill = [f"    ds_read_b64 {vr(MTR+2*mi,2)}, v{252+mi}" for mi in range(4)]
        fill += [f"    ds_read_b64 {vr(CT+2*ni,2)}, v233 offset:{128*ni}" for ni in range(7)]
        fill += ["\n".join(f"    v_xad_u32 v{wad(ni)}, v246, s{76+ni if ni < 4 else 60+ni-4}, v247" for ni in q) for q in ((0, 1), (2, 3), (4, 5), (6,))]
        fill += [f"""    s_lshl_b32 s36, s55, 8
    s_lshl_b32 s38, s35, 7""", """    s_add_u32 s36, s36, s38
    s_mov_b32 s16, s50""", """    s_mov_b32 s17, s51
    s_mov_b32 s18, 2048""", "    s_mov_b32 s19, 0x00020000"]
        fill += [f"    buffer_load_dwordx2 {vr(232 + 2*ni, 2)}, v243, s[16:19], s36 offen offset:{32*ni}" for ni in range(4)]
        for j, m in enumerate(mf):
            a(m)
            if j < len(fill): a(fill[j])
        def corr(ni, mi):
            c = ACC + 4 * (mi * 7 + ni)
            a(f"    v_mfma_f32_16x16x16_bf16 {vr(c,4)}, {vr(CT+2*ni,2)}, {vr(MTR+2*mi,2)}, {vr(c,4)}")
        def act(ni, mi):
            c = ACC + 4 * (mi * 7 + ni)
            for x in range(4): a(f"    v_max_f32 v{c+x}, 0, v{c+x}")
            a(f"    v_pk_mul_f32 {vr(c,2)}, {vr(c,2)}, {vr(c,2)}\n    v_pk_mul_f32 {vr(c+2,2)}, {vr(c+2,2)}, {vr(c+2,2)}")
            a(f"    v_cvt_pk_bf16_f32 v{c}, v{c}, v{c+1}\n    v_cvt_pk_bf16_f32 v{c+1}, v{c+2}, v{c+3}")
            a(f"    ds_write_b64 v{wad(ni)}, {vr(c,2)} offset:{mi*2048}")
        a("    s_waitcnt lgkmcnt(0)")
        first = [(ni, mi) for ni in range(7) for mi in range(2)]; second = [(ni, mi) for ni in range(7) for mi in range(2, 4)]
        for x in first[:6]: corr(*x)
        a("    s_nop 1")
        rest = first[6:] + second
        for j, x in enumerate(first):
            for y in rest[2*j: 2*j + 2]: corr(*y)
            act(*x)
        stamp(a, 14)
        a("    s_waitcnt lgkmcnt(0)\n    s_barrier                            ; E0")
        stamp(a, 15)
        for x in second: act(*x)
    def rdA1(F, slot, kh):
        return [f"    ds_read_b64_tr_b16 {vr(F + 4*mi + 2*t, 2)}, v{VA+mi} offset:{slot*16384 + kh*8192 + t*1024}" for mi in range(4) for t in range(2)]
    def rdB1(F, slot, kh, ni):
        reg = VB + ni if slot < 2 else vbh(ni)
        return [f"    ds_read_b64_tr_b16 {vr(F + 16 + 4*ni + 2*t, 2)}, v{reg} offset:{(slot&1)*32768 + kh*16384 + t*2048}" for t in range(2)]
    loop_unrolled(a, L + "1", 4, 7, NK1, NS1, ACC, F0, F1, rdA1, rdB1, 40, opt.ga_bar, g1_tail,
                  hookA=lambda u: f"    s_cmp_eq_u32 s40, s41\n    s_cbranch_scc1 {L}_xa{u}\n{L}_xar{u}:",
                  hookB=lambda u: f"    s_cmp_eq_u32 s40, s41\n    s_cbranch_scc1 {L}_xb")
    a("    s_waitcnt lgkmcnt(0)")
    stamp(a, 2)
    a("    s_barrier                            ; E1")
    ACC = 0; G0 = 64; G1_ = 96; VA2 = 128; VB2 = 132; VBI = 232; RSD = 140
    a(f"""    s_lshl_b32 s36, s34, 13
    s_lshl_b32 s37, s54, 12
    s_add_u32 s36, s36, s37
    v_lshl_add_u32 v204, v241, 7, s36
    v_xor_b32 v206, v242, v245
    v_lshl_add_u32 v{VA2}, v206, 4, v204
    v_xor_b32 v{VA2+1}, 64, v{VA2}
    v_xor_b32 v{VA2+2}, 4096, v{VA2}
    v_xor_b32 v{VA2+3}, 4096, v{VA2+1}
    v_bfe_u32 v206, v240, 2, 2           ; rr
    v_lshl_add_u32 v207, v242, 3, v206
    v_lshlrev_b32 v207, 8, v207
    v_and_b32 v208, 3, v240
    v_lshl_add_u32 v207, v208, 3, v207
    v_add_u32 v207, {B2}, v207
    v_and_b32 v208, 1, v242
    v_lshl_or_b32 v206, v208, 2, v206    ; g
    s_lshl_b32 s37, s35, 2""")
    for ni in range(4):
        a(f"    s_add_u32 s38, s37, {ni}\n    v_xor_b32 v208, s38, v206\n    v_lshl_add_u32 v{VB2+ni}, v208, 5, v207")
    for i in range(0, 64, 2): a(f"    v_mov_b64 {vr(ACC+i,2)}, 0")
    stamp(a, 5)
    def g2_tail(mf):
        send = [m for j, m in enumerate(mf) if (j & 3) >= 2]; keep = [m for j, m in enumerate(mf) if (j & 3) < 2]
        for m in send: a(m)
        srd(a, 12, 4, 256 * 16384, off=XCH_OFF)
        a(keep[0])
        a(f"""    v_lshlrev_b32 v203, 4, v240
    s_lshl_b32 s36, s2, 14
    s_lshl_b32 s37, s33, 12
    s_add_u32 s36, s36, s37
    s_xor_b32 s45, s36, 0x4000""")
        a(keep[1])
        for q in range(4):
            for h in range(2):
                c = ACC + 32 + 8 * q + 4 * h
                a(f"    v_cvt_pk_bf16_f32 v{G0 + 4*q + 2*h}, v{c}, v{c+1}\n    v_cvt_pk_bf16_f32 v{G0 + 4*q + 2*h + 1}, v{c+2}, v{c+3}")
            a(f"    buffer_store_dwordx4 {vr(G0+4*q,4)}, v203, s[12:15], s36 offen offset:{q*1024} sc1")
            for m in keep[2 + 2*q: 4 + 2*q]: a(m)
    def rdA2(F, slot, kh):
        return [f"    ds_read_b128 {vr(F + 4*mi, 4)}, v{VA2 + 2*(mi>>1) + kh} offset:{slot*16384 + (mi&1)*2048}" for mi in range(4)]
    def rdB2(F, slot, kh, ni):
        return [f"    ds_read_b64_tr_b16 {vr(F + 16 + 4*ni + 2*t, 2)}, v{VB2+ni} offset:{slot*16384 + kh*8192 + t*1024}" for t in range(2)]
    loop_unrolled(a, L + "2", 4, 4, NK2, NS2, ACC, G0, G1_, rdA2, rdB2, 40, opt.g2_bar, g2_tail, entry="s29")
    stamp(a, 6)
    srd(a, 60, 4, FLG_SZ, off=FLG_OFF)
    final_addr()
    a(f"""    v_bfe_u32 v206, v240, 2, 2           ; rr
    v_lshl_add_u32 v206, v242, 2, v206
    v_bfe_u32 v207, v206, 1, 2
    s_lshl_b32 s38, s34, 1
    v_xor_b32 v207, s38, v207
    v_lshlrev_b32 v207, 5, v207
    v_lshl_add_u32 v207, v206, 7, v207
    v_and_b32 v208, 3, v240
    v_lshl_add_u32 v207, v208, 3, v207
    s_lshl_b32 s38, s35, 13
    s_add_u32 s38, s38, {RES}
    v_add_u32 v207, s38, v207
    v_xor_b32 v208, 32, v207""")
    for j in range(8): a(f"    ds_read_b64_tr_b16 {vr(RSD+2*j,2)}, v{207 + (j>>2)} offset:{2048*(j&3)}")
    a(f"""    s_lshl_b32 s38, s34, 8
    s_lshl_b32 s39, s54, 7
    s_add_u32 s38, s38, s39
    s_add_u32 s38, s38, {TST}
    v_lshl_add_u32 v206, v241, 2, s38
    ds_read_b32 v192, v206
    ds_read_b32 v194, v206 offset:64""")
    a(f"""    s_lshl_b32 s36, s2, 9
    s_lshl_b32 s37, s33, 7
    s_add_u32 s36, s36, s37
    s_xor_b32 s37, s36, 0x200
    v_mov_b32 v209, 1
    v_mov_b32 v210, 0
    v_lshrrev_b32 v206, 1, v242
    v_xor_b32 v206, v206, v241           ; (kg>>1) ^ r
    s_lshl_b32 s38, s34, 13              ; 32wm*256
    v_lshl_add_u32 v207, v241, 8, s38
    v_and_b32 v208, 1, v242
    v_lshl_add_u32 v207, v208, 3, v207
    s_lshl_b32 s39, s35, 3""")
    for ni in range(4):
        a(f"    s_add_u32 s38, s39, {2*ni}\n    v_xor_b32 v208, s38, v206\n    v_lshl_add_u32 v{VB2+ni}, v208, 4, v207")
    a(f"""    s_mov_b64 exec, 1
    s_waitcnt vmcnt(0)
    buffer_store_dword v209, v210, s[60:63], s36 offen sc1
    buffer_load_dword v211, v210, s[60:63], s37 offen sc1
    s_mov_b64 exec, -1
    s_waitcnt lgkmcnt(0)""")
    for ni in range(4):
        unpack(a, 216 + 4 * ni, VBI + 2 * ni); unpack(a, 218 + 4 * ni, VBI + 2 * ni + 1)
    for j in range(8):
        c = 160 + 4 * j; b = 216 + 4 * (j & 3)
        unpack(a, c, RSD + 2 * j); unpack(a, c + 2, RSD + 2 * j + 1)
        a(f"    v_pk_add_f32 {vr(c,2)}, {vr(c,2)}, {vr(b,2)}\n    v_pk_add_f32 {vr(c+2,2)}, {vr(c+2,2)}, {vr(b+2,2)}")
    a(f"""    s_mov_b64 exec, 1
{L}_poll:
    s_waitcnt vmcnt(0)
    v_readfirstlane_b32 s38, v211
    s_cmp_eq_u32 s38, 1
    s_cbranch_scc1 {L}_seen
    buffer_load_dword v211, v210, s[60:63], s37 offen sc1
    s_branch {L}_poll
{L}_seen:
    s_mov_b64 exec, -1""")
    stamp(a, 7)
    for q in range(4):
        a(f"    buffer_load_dwordx4 {vr(G1_+4*q,4)}, v203, s[12:15], s45 offen offset:{q*1024} sc1")
    for j in range(8):
        mi, ni = j >> 2, j & 3
        c = ACC + 4 * j; p = G1_ + 2 * j
        if j % 2 == 0: a(f"    s_waitcnt vmcnt({3 - j//2})")
        unpack(a, 212, p); unpack(a, 214, p + 1)
        a(f"""    v_pk_add_f32 {vr(c,2)}, {vr(c,2)}, v[212:213]
    v_pk_add_f32 {vr(c+2,2)}, {vr(c+2,2)}, v[214:215]
    v_pk_fma_f32 {vr(c,2)}, {vr(c,2)}, {vr(192+2*mi,2)}, {vr(160+4*j,2)} op_sel_hi:[1,0,1]
    v_pk_fma_f32 {vr(c+2,2)}, {vr(c+2,2)}, {vr(192+2*mi,2)}, {vr(162+4*j,2)} op_sel_hi:[1,0,1]
    v_cvt_pk_bf16_f32 v{c}, v{c}, v{c+1}
    v_cvt_pk_bf16_f32 v{c+1}, v{c+2}, v{c+3}
    ds_write_b64 v{VB2+ni}, {vr(c,2)} offset:{mi*4096}""")
    a("    s_waitcnt lgkmcnt(0)")
    stamp(a, 8)
    a(f"""{L}_epi2:
    v_mbcnt_lo_u32_b32 v2, -1, 0
    v_mbcnt_hi_u32_b32 v2, -1, v2
    v_lshrrev_b32 v3, 4, v2
    v_and_b32 v5, 15, v2
    v_lshlrev_b32 v6, 11, v3
    v_lshl_add_u32 v6, v5, 4, v6
    s_lshl_b32 s36, s33, 2
    v_add_u32 v3, s36, v3                ; lr (j=0)
    v_xor_b32 v4, v3, v2
    v_and_b32 v4, 15, v4
    v_lshlrev_b32 v4, 4, v4
    v_lshl_add_u32 v3, v3, 8, v4""")
    srd(a, 12, 52, MB4)
    a("""    s_barrier                            ; X3
    ds_read_b128 v[16:19], v3
    ds_read_b128 v[20:23], v3 offset:8192
    s_waitcnt lgkmcnt(1)
    buffer_store_dwordx4 v[16:19], v6, s[12:15], s43 offen
    s_waitcnt lgkmcnt(0)
    buffer_store_dwordx4 v[20:23], v6, s[12:15], s44 offen""")
    stamp(a, 9)
    if opt.stamps: a("    s_waitcnt vmcnt(0)")
    stamp(a, 10)
    stamp_end(a, kidx, 4, 33)
    a(f"{L}_end:\n    s_endpgm")
    F0 = 112; F1 = 156
    def extra(F, first, tag):
        a(f"    s_cmp_eq_u32 s35, 0\n    s_cbranch_scc0 {L}_x1{tag}")
        for mi in range(4): a(f"    v_mfma_f32_16x16x32_bf16 {vr(SA+4*mi,4)}, {vr(F+4*mi,4)}, {vr(F+4*mi,4)}, {'0' if first else vr(SA+4*mi,4)}")
        a(f"    s_branch {L}_x2{tag}\n{L}_x1{tag}:")
        for mi in range(4): a(f"    v_mfma_f32_16x16x32_bf16 {vr(SA+4*mi,4)}, {vr(ONE,4)}, {vr(F+4*mi,4)}, {'0' if first else vr(SA+4*mi,4)}")
        a(f"{L}_x2{tag}:")
    for u in range(3):
        a(f"{L}_xa{u}:"); extra(F0, True, f"a{u}"); a(f"    s_branch {L}_xar{u}")
    a(f"{L}_xb:"); extra(F1, False, "b")
    a("    s_nop 7")
    for mi in range(4):
        c = SA + 4 * mi
        a(f"""    v_cndmask_b32 v{c}, v{c}, v{c+1}, s[64:65]
    v_cndmask_b32 v{c}, v{c}, v{c+2}, s[66:67]
    v_cndmask_b32 v{c}, v{c}, v{c+3}, s[68:69]
    v_cndmask_b32 v{c}, 0, v{c}, s[70:71]""")
    for sw in ("v_permlane16_swap_b32", "v_permlane32_swap_b32"):
        for mi in range(4): a(f"    v_mov_b32 v{SA+4*mi+1}, v{SA+4*mi}")
        for mi in range(4): a(f"    {sw} v{SA+4*mi+1}, v{SA+4*mi}")
        for mi in range(4): a(f"    v_add_f32 v{SA+4*mi}, v{SA+4*mi}, v{SA+4*mi+1}")
    a(f"""    v_cmp_eq_u32 vcc, 1, v242
    v_cmp_eq_u32 s[64:65], 2, v242
    v_cmp_eq_u32 s[66:67], 3, v242
    v_cndmask_b32 v{SA}, v{SA}, v{SA+4}, vcc
    v_cndmask_b32 v{SA}, v{SA}, v{SA+8}, s[64:65]
    v_cndmask_b32 v{SA}, v{SA}, v{SA+12}, s[66:67]
    v_lshlrev_b32 v{SA+1}, 2, v240
    buffer_store_dword v{SA}, v{SA+1}, s[72:75], s59 offen sc1
    s_cmp_eq_u32 s40, 2
    s_cbranch_scc1 {L}1_s2
    s_cmp_eq_u32 s40, 3
    s_cbranch_scc1 {L}1_s0
    s_branch {L}1_s1
{L}_retry:
    s_sleep 2""")
    gather_ps()
    a(f"    s_waitcnt vmcnt(0)\n    s_branch {L}_chk")
    return (name, 256, 512, 163840), (name, 256, 96)

gen.KGEN["ga"] = gen_ga
gen.KGEN["p2"] = gen_p2
gen.KGEN["c2"] = gen_c2
```

```python
import sys
from asmlib import *
import gen, gen2, gen3
from gen import opt, stamp, stamp_begin, stamp_end, vr, wave_sum, MB4, KVR_OFF, FLG_OFF
from gen3 import XT_OFF, HT_OFF, ST1_OFF, CS_OFF, PST_OFF, unpack, rnd

KVF_OFF = 0x0CC0000
XF_OFF = KVF_OFF + 4
SF_OFF = KVF_OFF + 8
GF_OFF = KVF_OFF + 0x8000
opt.ldf = 'sc1'
opt.early2 = 1
opt.gate = 4
opt.xsleep = 4
opt.w1th = 4

def gen_pc(a, kidx):
    name = "f_kernel"; L = "F"
    CS = 4160; RO = 4 * CS; WSZ = 21248
    IS = 1056; KT = 4 * WSZ; VT = KT + 17 * IS; XS = KT + 33 * IS + 96; STG = XS + 16384; WRD = STG + 16 * IS
    assert XS % 16 == 0
    kernel_head(a, name)
    a(f"""    s_cmp_ge_u32 s2, 256
    s_cbranch_scc1 {L}_end
    s_load_dwordx4 s[4:7], s[0:1], {ARG['k']}      ; k, v
    s_load_dwordx4 s[8:11], s[0:1], {ARG['shift']}
    s_load_dwordx4 s[56:59], s[0:1], {ARG['dbg']}
    s_load_dwordx2 s[42:43], s[0:1], {ARG['q']}
    s_load_dwordx2 s[60:61], s[0:1], {ARG['ssmD']}""")
    stamp_begin(a)
    a(f"""    v_lshrrev_b32 v1, 6, v0
    v_and_b32 v2, 63, v0
    s_and_b32 s24, s2, 7
    v_readfirstlane_b32 s33, v1
    s_lshr_b32 s25, s2, 3
    v_and_b32 v3, 7, v2              ; cg
    v_lshrrev_b32 v4, 3, v2          ; rg
    s_and_b32 s34, s33, 3            ; w
    s_lshl_b32 s26, s25, 17
    s_lshl_b32 s27, s24, 8
    s_add_u32 s26, s26, s27
    s_lshl_b32 s62, s24, 7
    s_lshl_b32 s27, s25, 2
    s_add_u32 s62, s62, s27
    s_add_u32 s63, s62, s34
    s_mul_i32 s64, s34, {WSZ}        ; WB
    s_cmp_ge_u32 s33, 4
    s_cbranch_scc1 {L}_help
    s_cmp_lg_u32 s33, 0
    s_cbranch_scc1 {L}_nocl
    v_lshlrev_b32 v16, 4, v2
    v_mov_b32 v12, 0
    v_mov_b32 v13, 0
    v_mov_b32 v14, 0
    v_mov_b32 v15, 0
    s_lshl_b32 s30, s62, 5
    s_lshl_b32 s31, s24, 7
    s_add_u32 s31, s31, 0x8000
    s_cmp_eq_u32 s25, 0
    s_cselect_b32 s31, s31, 0x80000000
    s_mov_b64 exec, 0xff
    s_waitcnt lgkmcnt(0)""")
    srd(a, 36, 58, 0x8400, off=KVF_OFF)
    a(f"""    buffer_store_dwordx4 v[12:15], v16, s[36:39], s30 offen sc1
    buffer_store_dwordx4 v[12:15], v16, s[36:39], s31 offen sc1
    s_mov_b64 exec, -1
{L}_nocl:""")
    so = ["0", "s44", "s45", "s46"]
    def tail_addr(rev, off, ldsb):
        a(f"""    {"v_xor_b32 v13, 7, v4" if rev else "v_mov_b32 v13, v4"}
    v_xor_b32 v13, v13, v3
    v_lshlrev_b32 v13, 4, v13
    v_lshl_add_u32 v13, v3, 9, v13
    v_add_u32 v13, {ldsb}, v13
    v_lshl_add_u32 v14, v2, 4, {ldsb}
    v_lshrrev_b32 v15, 5, v2
    v_xor_b32 v15, v15, v3               ; x0 = (l&7)^(l>>5)
    v_lshlrev_b32 v9, 12, v4             ; (l>>3)*4096
    s_lshl_b32 s47, s24, 19
    s_lshl_b32 s48, s34, 17
    s_add_u32 s47, s47, s48              ; (cb*128+w*32)*4096
    s_lshl_b32 s48, s25, 7""")
        if rev: a(f"    s_sub_u32 s48, {3968 + off}, s48")
        else: a(f"    s_add_u32 s48, s48, {off:#x}")
        a("    s_add_u32 s47, s47, s48")
    def tail_out(R):
        a("    s_waitcnt lgkmcnt(0)")
        for i in range(4): a(f"    ds_read_b128 {vr(R+4*i,4)}, v14 offset:{1024*i}")
        for i in range(4): a(f"    v_xor_b32 v8, {2*i}, v15\n    v_lshl_add_u32 v{R+16+i}, v8, 4, v9")
        for i in range(4):
            a(f"    s_waitcnt lgkmcnt({3-i})\n    buffer_store_dwordx4 {vr(R+4*i,4)}, v{R+16+i}, s[36:39], s47 offen\n    s_add_u32 s47, s47, 32768")
    def count_in(word, tag):
        a(f"""    v_mov_b32 v10, {WRD}
    v_mov_b32 v11, 1
    v_mov_b32 v12, 0
    s_mov_b64 exec, 1
    ds_add_rtn_u32 v13, v10, v11 offset:{word}
    s_mov_b64 exec, -1
    s_waitcnt lgkmcnt(0)
    v_readfirstlane_b32 s35, v13
    s_cmp_eq_u32 s35, 3""")
    def spin(word, val, tag, r=13):
        a(f"""{L}_sp{tag}:
    ds_read_b32 v{r}, v10 offset:{word}
    s_waitcnt lgkmcnt(0)
    v_readfirstlane_b32 s35, v{r}
    s_cmp_eq_u32 s35, {val}
    s_cbranch_scc1 {L}_sq{tag}
    s_sleep 1
    s_branch {L}_sp{tag}
{L}_sq{tag}:""")
    def reg_issue():
        a("    buffer_load_dwordx2 v[36:37], v39, s[52:55], 0 offen sc1")
    def reg_check(tag):
        a(f"""    s_getreg_b32 s65, hwreg(HW_REG_XCC_ID)
    s_and_b32 s65, s65, 7
    s_lshl_b32 s65, s65, 3
    s_lshl_b64 s[66:67], 32, s65
{L}_rg{tag}:
    v_sad_u8 v38, v36, 0, 0
    v_sad_u8 v38, v37, 0, v38
    v_cmp_eq_u32 vcc, 32, v38
    s_cmp_eq_u64 vcc, -1
    s_cbranch_scc1 {L}_rk{tag}
    s_sleep 24
    buffer_load_dwordx2 v[36:37], v39, s[52:55], 0 offen sc1
    s_waitcnt vmcnt(0)
    s_branch {L}_rg{tag}
{L}_rk{tag}:
    v_readlane_b32 s68, v36, s24
    v_readlane_b32 s69, v37, s24
    s_cmp_eq_u64 s[68:69], s[66:67]
    s_cselect_b32 s65, 1, 0""")
    def signal_poll(off, tag, poll=True):
        a(f"""{L}_md{tag}:
    ds_read_b32 v13, v10 offset:28
    s_waitcnt lgkmcnt(0)
    v_readfirstlane_b32 s65, v13
    s_cmp_eq_u32 s65, 0
    s_cbranch_scc1 {L}_md{tag}
    s_sub_u32 s65, s65, 1""")
        a(f"""    s_lshl_b32 s27, s62, 5
    s_and_b32 s28, s27, 0xfffff000
    s_add_u32 s27, s27, {off:#x}
    s_add_u32 s28, s28, {off:#x}
    v_and_b32 v14, 31, v2
    v_lshlrev_b32 v14, 7, v14
    s_mov_b64 exec, 1
    s_cmp_eq_u32 s65, 1
    s_cbranch_scc1 {L}_sl{tag}
    buffer_wbl2 sc1
    s_waitcnt vmcnt(0)
    buffer_store_dword v11, v12, s[36:39], s27 offen sc1
    s_branch {L}_pp{tag}
{L}_sl{tag}:
    buffer_store_dword v11, v12, s[36:39], s27 offen
{L}_pp{tag}:
    s_mov_b64 exec, -1""")
        if not poll: a(f"    s_cmp_lg_u32 s25, 0\n    s_cbranch_scc1 {L}_np{tag}")
        a(f"""{L}_pl{tag}:
    buffer_load_dword v15, v14, s[36:39], s28 offen sc1
    s_waitcnt vmcnt(0)
    v_cmp_eq_u32 vcc, 1, v15
    s_cmp_eq_u64 vcc, -1
    s_cbranch_scc0 {L}_pl{tag}""")
    a(f"""    v_lshrrev_b32 v5, 4, v2
    v_lshlrev_b32 v5, 11, v5
    v_and_b32 v6, 15, v2
    v_lshl_add_u32 v5, v6, 4, v5
    v_add_u32 v5, s26, v5
    v_subrev_u32 v6, 8192, v5
    s_lshl_b32 s27, s34, 15
    v_add_u32 v5, s27, v5
    s_movk_i32 s44, 8192
    s_movk_i32 s45, 16384
    s_movk_i32 s46, 24576
    s_mul_i32 s35, s34, {4*IS}
    s_add_u32 m0, s35, {KT + IS}
    s_waitcnt lgkmcnt(0)""")
    srd(a, 12, 4, MB4); srd(a, 16, 6, MB4)
    for j in range(4):
        a(f"    buffer_load_dwordx4 v5, s[12:15], {so[j]} offen nt lds\n    s_add_u32 m0, s35, {VT + j*IS}\n    s_nop 0")
        a(f"    buffer_load_dwordx4 v5, s[16:19], {so[j]} offen nt lds")
        a(f"    s_add_u32 m0, s35, {KT + (j+2)*IS}\n    s_nop 0" if j < 3 else f"    s_mov_b32 m0, {KT}\n    s_nop 0")
    a("    buffer_load_dwordx4 v6, s[12:15], 0 offen nt lds")
    KR = 208; VR = 40; WR = 56
    srd(a, 20, 8, 8192)
    a(f"""    s_lshl_b32 s27, s24, 10
    s_lshl_b32 s28, s34, 8
    s_add_u32 s27, s27, s28
    v_lshlrev_b32 v8, 5, v3
    buffer_load_dwordx4 {vr(WR,4)}, v8, s[20:23], s27 offen
    buffer_load_dwordx4 {vr(WR+4,4)}, v8, s[20:23], s27 offen offset:16
    s_lshr_b32 s28, s63, 1
    s_lshl_b32 s28, s28, 2
    s_load_dword s29, s[60:61], s28
    v_mul_u32_u24 v7, {2*IS}, v4
    v_lshl_add_u32 v7, v3, 3, v7
    s_lshl_b32 s27, s34, 6
    s_add_u32 s27, s27, {KT}
    v_add_u32 v7, s27, v7
    v_mov_b32 v10, {WRD}
    v_mov_b32 v16, 0
    v_mov_b32 v17, 0
    v_mov_b32 v18, 0
    v_mov_b32 v19, 0
    ds_write_b128 v10, v[16:19]
    ds_write_b128 v10, v[16:19] offset:16
    ds_write_b128 v10, v[16:19] offset:32
    s_add_u32 s49, s64, {RO}""")
    srd(a, 36, 58, 64 << 20); srd(a, 52, 56, 256)
    a("    v_lshlrev_b32 v39, 5, v3")
    tail_addr(True, KVR_OFF, "s49")
    WF = 64; KF = 80; VF = 124; OF = 156; PK = 190
    stamp(a, 0)
    a(f"""    s_waitcnt lgkmcnt(0)
    s_barrier
    s_cmp_lg_u32 s33, 0
    s_cbranch_scc1 {L}_noreg
    s_getreg_b32 s65, hwreg(HW_REG_XCC_ID)
    s_and_b32 s65, s65, 7
    s_lshl_b32 s65, s65, 3
    s_lshl_b64 s[66:67], 1, s65
    v_mov_b32 v16, s66
    v_mov_b32 v17, s67
    v_mov_b32 v12, 0
    s_lshl_b32 s30, s24, 5
    s_mov_b64 exec, 1
    s_waitcnt vmcnt(11)""")
    stamp(a, 9)
    a(f"""    buffer_atomic_add_x2 v[16:17], v12, s[52:55], s30 offen sc1
    s_mov_b64 exec, -1
    s_waitcnt vmcnt(1)
    s_branch {L}_kvl
{L}_noreg:
    s_waitcnt vmcnt(0)
{L}_kvl:""")
    a("""    s_nop 0
    v_mov_b32 v11, 1
    s_mov_b64 exec, 1
    ds_add_u32 v10, v11 offset:32
    s_mov_b64 exec, -1""")
    spin(32, 4, "k", 12)
    stamp(a, 1)
    kro = lambda jj: ((1 + jj) >> 2) * IS + ((1 + jj) & 3) * 256
    order = [("k", 0), ("k", 1), ("k", 2)] + [x for j in range(8) for x in (("k", 3 + j), ("v", j))]
    def rd(x):
        if x[0] == "k": a(f"    ds_read_b64 {vr(KR + 2*x[1], 2)}, v7 offset:{kro(x[1])}")
        else: a(f"    ds_read_b64 {vr(VR + 2*x[1], 2)}, v7 offset:{17*IS + (x[1] >> 2)*IS + (x[1] & 3)*256}")
    for x in order[:13]: rd(x)
    for c in range(4):
        for j in range(4):
            src = WR + 2 * c + (j >> 1); d = WF + (c >> 1) * 8 + j * 2 + (c & 1)
            a(f"    v_lshlrev_b32 v{d}, 16, v{src}" if j % 2 == 0 else f"    v_and_b32 v{d}, 0xffff0000, v{src}")
    def unp2(dst, src):
        for p in range(2): unpack(a, dst + 2 * p, src + p)
    a("    s_waitcnt lgkmcnt(8)")
    for x in order[13:]: rd(x)
    for r in range(3): unp2(KF + 4 * r, KR + 2 * r)
    for j in range(8):
        if j: a(f"    s_waitcnt lgkmcnt({14 - 2*j})")
        unp2(KF + 4 * (3 + j), KR + 6 + 2 * j); unp2(VF + 4 * j, VR + 2 * j)
        for p in range(2):
            o = OF + 4 * j + 2 * p
            k = lambda r: vr(KF + 4 * r + 2 * p, 2)
            w = lambda t: vr(WF + p * 8 + 2 * t, 2)
            a(f"    v_pk_mul_f32 {vr(o,2)}, {k(j)}, {w(3)}")
            a(f"    v_pk_fma_f32 {vr(o,2)}, {k(j+1)}, {w(2)}, {vr(o,2)}")
            a(f"    v_pk_fma_f32 {vr(o,2)}, {k(j+2)}, {w(1)}, {vr(o,2)}")
            a(f"    v_pk_fma_f32 {vr(o,2)}, {k(j+3)}, {w(0)}, {vr(o,2)}")
            a(f"    v_pk_mul_f32 {vr(o,2)}, {vr(o,2)}, {vr(VF + 4*j + 2*p, 2)}")
    for c in range(4):
        for d in range(4):
            a(f"    v_cvt_pk_bf16_f32 v{PK+4*c+d}, v{OF + 4*(7-2*d) + c}, v{OF + 4*(6-2*d) + c}")
        a(f"    ds_write_b128 v13, {vr(PK+4*c,4)} offset:{128*c}")
    tail_out(16)
    a(f"    s_cmp_lg_u32 s33, 0\n    s_cbranch_scc1 {L}_nr1")
    reg_issue()
    a(f"{L}_nr1:")
    stamp(a, 2)
    ACC = 80; F0 = 112; F1 = 176
    a(f"""    v_lshlrev_b32 v40, 4, v2         ; lane*16
    v_add_u32 v4, s64, v40
    v_mov_b32 v60, 0
    v_mov_b32 v61, 0
    v_mov_b32 v62, 0
    v_mov_b32 v63, 0
    s_mov_b64 exec, 0x3fffffff
    ds_write_b128 v4, v[60:63] offset:{RO + 4096}
    s_mov_b64 exec, -1
    v_and_b32 v5, 15, v2             ; b / a
    v_lshrrev_b32 v6, 4, v2          ; kg
    v_add_u32 v7, 1, v5
    v_and_b32 v8, 3, v7
    v_mul_u32_u24 v8, {CS}, v8
    v_and_b32 v7, 28, v7
    v_lshl_add_u32 v8, v7, 1, v8
    v_lshl_add_u32 v8, v6, 4, v8
    v_add_u32 v8, s64, v8            ; vAT
    v_lshlrev_b32 v9, 5, v5
    v_lshl_add_u32 v41, v6, 3, v9    ; 32a + 8g
    v_sub_u32 v9, {RO + 480}, v9
    v_lshl_add_u32 v9, v6, 4, v9
    v_add_u32 v9, s64, v9            ; vBT
    s_lshl_b32 s26, s63, 12
    s_add_u32 m0, s64, {RO}""")
    for i in range(0, 32, 2): a(f"    v_mov_b64 {vr(ACC+i,2)}, 0")
    a(f"    s_waitcnt vmcnt(0)\n    s_cmp_lg_u32 s33, 0\n    s_cbranch_scc1 {L}_nr2")
    reg_check("a")
    a(f"""    s_add_u32 s65, s65, 1
    v_mov_b32 v38, s65
    ds_write_b32 v10, v38 offset:28
{L}_nr2:""")
    stamp(a, 3)
    count_in(0, "a")
    a(f"    s_cbranch_scc0 {L}_w1")
    signal_poll(KVF_OFF, "a")
    a(f"""    ds_write_b32 v10, v11 offset:4
    s_branch {L}_g1
{L}_w1:""")
    spin(4, 1, "a")
    a(f"{L}_g1:")
    stamp(a, 4)
    for i in range(4): a(f"    buffer_load_dwordx4 v40, s[36:39], s26 offen offset:{1024*i} {opt.ldf} lds")
    spin(8, 4, "b")
    a("    s_waitcnt vmcnt(0)")
    stamp(a, 5)
    def reads(F, woff):
        r = []
        for u in range(8):
            r.append(f"    ds_read_b128 {vr(F+32+4*u,4)}, v9 offset:{3584 - 512*u + woff}")
            r.append(f"    ds_read_b64 {vr(F+4*u,2)}, v8 offset:{512*u + woff}")
            r.append(f"    ds_read_b64 {vr(F+4*u+2,2)}, v8 offset:{512*u + 8 + woff}")
        return r
    def mf(F):
        return [f"    v_mfma_f32_16x16x32_bf16 {vr(ACC+4*(u+v),4)}, {vr(F+4*u,4)}, {vr(F+32+4*v,4)}, {vr(ACC+4*(u+v),4)}" for u in range(8) for v in range(8 - u)]
    def weave(m, f):
        i = 0
        for x in m:
            a(x)
            if i < len(f): a(f[i]); i += 1
        assert i == len(f)
    for l in reads(F0, 0): a(l)
    a(f"    s_mov_b32 s35, 0\n{L}_loop:\n    s_waitcnt lgkmcnt(0)")
    weave(mf(F0), reads(F1, 64) + ["    ds_read_b32 v35, v10 offset:20", "    v_add_u32 v8, 128, v8", "    v_add_u32 v9, 128, v9", "    s_add_u32 s35, s35, 1", "    s_cmp_eq_u32 s35, 4"])
    a(f"    s_waitcnt lgkmcnt(0)\n    s_cbranch_scc1 {L}_last")
    weave(mf(F1), reads(F0, 0))
    a(f"""    s_branch {L}_loop
{L}_again:
    s_sleep 1
    ds_read_b32 v35, v10 offset:20
    s_waitcnt lgkmcnt(0)
{L}_last:
    v_readfirstlane_b32 s35, v35
    s_cmp_eq_u32 s35, 4
    s_cbranch_scc0 {L}_again""")
    KV = F0; MT = F0 + 16; RTB = 44; XR_ = 16
    pre = [f"""    v_sub_u32 v32, {RO + 504}, v41
    v_add_u32 v32, s64, v32""",
           f"""    v_lshlrev_b32 v33, 1, v41
    v_add_u32 v33, {STG}, v33""",
           f"""    s_lshl_b32 s35, s34, 12
    s_add_u32 s35, s35, {XS}""", "    v_add_u32 v34, s35, v41"]
    for n in range(8):
        pre += [f"    ds_read_b64 {vr(KV+2*n,2)}, v32 offset:{512*(7-n)}", f"    ds_read_b64 {vr(XR_+2*n,2)}, v34 offset:{512*n}",
                f"    ds_read_b128 {vr(MT+4*n,4)}, v33 offset:{1024*n}", f"    ds_read_b128 {vr(RTB+4*n,4)}, v33 offset:{8192 + 1024*n}"]
    weave(mf(F1), pre)
    a(f"""    s_lshl_b32 s35, s29, 16
    s_and_b32 s27, s29, 0xffff0000
    s_bitcmp1_b32 s63, 0
    s_cselect_b32 s35, s27, s35          ; D as f32
    s_and_b32 s27, s63, 3
    s_bfe_u32 s28, s63, 0x10003
    s_lshl_b32 s28, s28, 2
    s_or_b32 s27, s27, s28               ; g(d)
    v_and_b32 v11, 7, v5
    v_xor_b32 v11, s27, v11
    v_lshlrev_b32 v11, 5, v11
    v_lshrrev_b32 v12, 3, v5
    v_lshl_add_u32 v11, v12, 18, v11
    v_and_b32 v12, 1, v6
    v_lshl_add_u32 v11, v12, 19, v11
    v_lshrrev_b32 v12, 1, v6
    v_lshl_add_u32 v11, v12, 4, v11
    s_lshl_b32 s34, s63, 8
    s_add_u32 s34, s34, {HT_OFF:#x}""")
    stamp(a, 6)
    OUT = 224
    for n in range(8):
        c = ACC + 4 * n; k = KV + 2 * n; x = XR_ + 2 * n; o = OUT + 2 * n
        lg = 4 * (7 - n)
        if lg <= 12: a(f"    s_waitcnt lgkmcnt({lg})")
        elif n == 0: a("    s_waitcnt lgkmcnt(15)")
        a(f"""    v_and_b32 v12, 0xffff0000, v{k+1}
    v_lshlrev_b32 v13, 16, v{k+1}
    v_and_b32 v14, 0xffff0000, v{k}
    v_lshlrev_b32 v15, 16, v{k}
    v_fmac_f32 v{c}, s35, v12
    v_fmac_f32 v{c+1}, s35, v13
    v_fmac_f32 v{c+2}, s35, v14
    v_fmac_f32 v{c+3}, s35, v15
    v_lshlrev_b32 v12, 16, v{x}
    v_and_b32 v13, 0xffff0000, v{x}
    v_lshlrev_b32 v14, 16, v{x+1}
    v_and_b32 v15, 0xffff0000, v{x+1}
    v_pk_mul_f32 {vr(c,2)}, {vr(c,2)}, {vr(RTB+4*n,2)}
    v_pk_mul_f32 {vr(c+2,2)}, {vr(c+2,2)}, {vr(RTB+4*n+2,2)}
    v_pk_add_f32 {vr(MT+4*n,2)}, v[12:13], {vr(MT+4*n,2)} neg_lo:[0,1] neg_hi:[0,1]
    v_pk_add_f32 {vr(MT+4*n+2,2)}, v[14:15], {vr(MT+4*n+2,2)} neg_lo:[0,1] neg_hi:[0,1]
    v_pk_fma_f32 v[12:13], {vr(MT+4*n,2)}, {vr(c,2)}, v[12:13]
    v_pk_fma_f32 v[14:15], {vr(MT+4*n+2,2)}, {vr(c+2,2)}, v[14:15]
    v_cvt_pk_bf16_f32 v{o}, v12, v13
    v_cvt_pk_bf16_f32 v{o+1}, v14, v15""")
        if n & 1:
            a(f"""    s_nop 0
    v_permlane16_swap_b32 v{o-2}, v{o}
    v_permlane16_swap_b32 v{o-1}, v{o+1}
    buffer_store_dwordx4 {vr(o-2,4)}, v11, s[36:39], s34 offen {opt.htf}
    s_add_u32 s34, s34, 0x100000""")
    stamp(a, 7)
    a(f"    s_branch {L}_done")
    FD = 16; TO = 52; XT_ = 80; XR = 96; XF = 112; PKX = 144
    a(f"""{L}_help:
    v_lshlrev_b32 v6, 4, v2          ; lane*16
    s_lshl_b32 s27, s25, 6
    s_lshl_b32 s28, s24, 3
    s_add_u32 s27, s27, s28
    s_lshl_b32 s28, s34, 1
    s_add_u32 s27, s27, s28
    s_lshl_b32 s28, s27, 11
    s_waitcnt lgkmcnt(0)""")
    srd(a, 16, 42, MB4); srd(a, 36, 58, 64 << 20)
    for i in range(4): a(f"    buffer_load_dwordx4 {vr(XR+4*i,4)}, v6, s[16:19], s28 offen offset:{1024*i}")
    srd(a, 12, 10, MB4)
    a(f"""    v_lshrrev_b32 v5, 4, v2
    v_lshlrev_b32 v5, 11, v5
    v_and_b32 v7, 15, v2
    v_lshl_add_u32 v5, v7, 4, v5
    s_lshl_b32 s30, s34, 15
    s_add_u32 s26, s26, s30
    v_add_u32 v5, s26, v5
    s_movk_i32 s44, 8192
    s_movk_i32 s45, 16384
    s_movk_i32 s46, 24576
    s_lshl_b32 s26, s63, 12
    s_load_dwordx2 s[10:11], s[0:1], {ARG['w1']}
    s_lshl_b32 s49, s34, 12
    s_add_u32 s49, s49, {XS}
    s_mov_b32 s70, 0x05040100
    s_mov_b32 s71, 0x07060302
    s_mov_b32 s51, 0x3a800000
    s_mov_b32 s50, 0x3727c5ac
    s_lshl_b32 s27, s27, 2
    s_add_u32 s72, s27, {ST1_OFF:#x}
    s_add_u32 s73, s72, 8192
    v_add_u32 v7, s64, v6
    v_mov_b32 v60, 0
    v_mov_b32 v61, 0
    v_mov_b32 v62, 0
    v_mov_b32 v63, 0
    v_mul_u32_u24 v39, {2*IS}, v4
    v_lshl_add_u32 v39, v3, 3, v39
    s_lshl_b32 s27, s34, 6
    s_add_u32 s27, s27, {STG}
    v_add_u32 v39, s27, v39""")
    a("    s_waitcnt lgkmcnt(0)\n    s_barrier")
    stamp(a, 0)
    S = [180, 181]; T = [182, 183]; M = [184, 186]; PS = [188, 190]
    def batch2():
        a("    s_add_u32 m0, s64, 32\n    s_nop 0")
        for i in range(4): a(f"    buffer_load_dwordx4 v6, s[12:15], s26 offen offset:{1024*i} nt lds")
        a(f"    s_mul_i32 s35, s34, {4*IS}")
        for j in range(4): a(f"    s_add_u32 m0, s35, {STG + j*IS}\n    s_nop 0\n    buffer_load_dwordx4 v5, s[16:19], {so[j]} offen lds")
    if opt.early2:
        a(f"    s_waitcnt vmcnt({opt.early2 - 1})")
        batch2()
        a("    s_waitcnt vmcnt(8)")
    else:
        a("    s_waitcnt vmcnt(0)")
    stamp(a, 1)
    for rho in range(2):
        for i in range(8): unpack(a, XF + 16 * rho + 2 * i, XR + 8 * rho + i)
    src = lambda rho, i: XF + 16 * rho + 2 * i
    for rho in range(2): a(f"    v_pk_add_f32 {vr(PS[rho],2)}, {vr(src(rho,0),2)}, {vr(src(rho,1),2)}")
    for i in range(2, 8):
        for rho in range(2): a(f"    v_pk_add_f32 {vr(PS[rho],2)}, {vr(PS[rho],2)}, {vr(src(rho,i),2)}")
    for rho in range(2): a(f"    v_add_f32 v{S[rho]}, v{PS[rho]}, v{PS[rho]+1}")
    wave_sum(a, S, T)
    for rho in range(2): a(f"    v_mul_f32 v{M[rho]}, s51, v{S[rho]}")
    for i in range(8):
        for rho in range(2):
            a(f"    v_pk_add_f32 {vr(src(rho,i),2)}, {vr(src(rho,i),2)}, {vr(M[rho],2)} op_sel_hi:[1,0] neg_lo:[0,1] neg_hi:[0,1]")
    for rho in range(2): a(f"    v_pk_mul_f32 {vr(PS[rho],2)}, {vr(src(rho,0),2)}, {vr(src(rho,0),2)}")
    for i in range(1, 8):
        for rho in range(2): a(f"    v_pk_fma_f32 {vr(PS[rho],2)}, {vr(src(rho,i),2)}, {vr(src(rho,i),2)}, {vr(PS[rho],2)}")
    for rho in range(2): a(f"    v_add_f32 v{S[rho]}, v{PS[rho]}, v{PS[rho]+1}")
    wave_sum(a, S, T)
    for rho in range(2):
        a(f"    v_mov_b32 v{192+rho}, v{M[rho]}"); rnd(a, 192 + rho)
        a(f"    v_mul_f32 v{194+rho}, s51, v{S[rho]}"); rnd(a, 194 + rho); a(f"    v_add_f32 v{194+rho}, s50, v{194+rho}"); rnd(a, 194 + rho)
    a("    v_sqrt_f32 v194, v194\n    v_sqrt_f32 v195, v195\n    s_nop 0")
    for rho in range(2): rnd(a, 194 + rho)
    a(f"""    v_rcp_f32 v194, v194
    v_rcp_f32 v195, v195
    v_mov_b32 v12, 0
    s_mov_b64 exec, 1
    buffer_store_dwordx2 v[192:193], v12, s[36:39], s72 offen sc1
    buffer_store_dwordx2 v[194:195], v12, s[36:39], s73 offen sc1
    s_mov_b64 exec, -1""")
    if not opt.early2: batch2()
    stamp(a, 2)
    def stat_signal(cnt):
        a(f"    s_waitcnt vmcnt({cnt})")
        count_in(36, "s")
        a(f"    s_cbranch_scc0 {L}_nps")
        signal_poll(SF_OFF, "s", poll=False)
        a(f"""    s_lshl_b32 s27, s24, 7
        s_add_u32 s27, s27, {GF_OFF:#x}
        s_mov_b64 exec, 1
        buffer_store_dword v11, v12, s[36:39], s27 offen sc1
        s_mov_b64 exec, -1
    {L}_nps:""")
        stamp(a, 3)
    if not opt.early2: stat_signal(8)
    else: a(f"    v_mov_b32 v10, {WRD}\n    v_mov_b32 v11, 1")
    a(f"    s_waitcnt vmcnt({6 if opt.early2 else 4})")
    for i in range(4):
        a(f"    ds_read_b128 {vr(FD+8*i,4)}, v7 offset:{32 + 1024*i}\n    ds_read_b64 {vr(FD+8*i+4,2)}, v7 offset:{48 + 1024*i}")
    for i in range(4):
        D = FD + 8 * i; t = 64 + 12 * (i & 1) + 132
        a(f"    s_waitcnt lgkmcnt({6 - 2*i})" if i == 0 else f"    s_waitcnt lgkmcnt({min(15, 6 - 2*i + 3*i + (8 if i else 0))})")
        for k in range(4): a(f"    v_alignbit_b32 v{t+k}, v{D+k+1}, v{D+k}, 16")
        a(f"    ds_write_b128 v7, {vr(t,4)} offset:{CS + 32 + 1024*i}")
        for k in range(4): a(f"    v_mov_b32 v{t+4+k}, v{D+k+1}")
        a(f"    ds_write_b128 v7, {vr(t+4,4)} offset:{2*CS + 32 + 1024*i}")
        for k in range(4): a(f"    v_alignbit_b32 v{t+8+k}, v{D+k+2}, v{D+k+1}, 16")
        a(f"    ds_write_b128 v7, {vr(t+8,4)} offset:{3*CS + 32 + 1024*i}")
        if i == 0:
            a(f"""    v_mov_b32 v68, 0
    v_mov_b32 v69, 0
    v_mov_b32 v70, 0
    v_lshlrev_b32 v71, 16, v{D}
    v_mov_b32 v72, 0
    v_mov_b32 v73, 0
    v_mov_b32 v74, 0
    v_mov_b32 v75, v{D}
    v_mov_b32 v76, 0
    v_mov_b32 v77, 0
    v_mov_b32 v78, v71
    v_mov_b32 v79, v{t}
    s_mov_b64 exec, 1
    ds_write_b128 v7, v[60:63]
    ds_write_b128 v7, v[60:63] offset:16
    ds_write_b128 v7, v[60:63] offset:{CS}
    ds_write_b128 v7, v[68:71] offset:{CS+16}
    ds_write_b128 v7, v[60:63] offset:{2*CS}
    ds_write_b128 v7, v[72:75] offset:{2*CS+16}
    ds_write_b128 v7, v[60:63] offset:{3*CS}
    ds_write_b128 v7, v[76:79] offset:{3*CS+16}
    s_mov_b64 exec, -1""")
    a(f"""    s_waitcnt vmcnt(0) lgkmcnt(0)
    s_mov_b64 exec, 1
    ds_add_u32 v10, v11 offset:8
    ds_add_u32 v10, v11 offset:40
    s_mov_b64 exec, -1""")
    stamp(a, 7)
    spin(40, 4, "t", 12)
    for j in range(8): a(f"    ds_read_b64 {vr(XT_+2*j,2)}, v39 offset:{(j >> 2)*IS + (j & 3)*256}")
    tail_addr(False, XT_OFF, "s49")
    a("    s_waitcnt lgkmcnt(0)")
    for c in range(4):
        for d in range(4):
            a(f"    v_perm_b32 v{PKX+4*c+d}, v{XT_ + 2*(2*d+1) + (c>>1)}, v{XT_ + 2*(2*d) + (c>>1)}, s{70 + (c&1)}")
        a(f"    ds_write_b128 v13, {vr(PKX+4*c,4)} offset:{128*c}")
    tail_out(160)
    stamp(a, 9)
    a("    s_waitcnt vmcnt(0)")
    stamp(a, 10)
    count_in(12, "x")
    a(f"    s_cbranch_scc0 {L}_w2")
    signal_poll(XF_OFF, "x")
    if opt.stamps: a("    s_memtime s[74:75]\n    s_waitcnt lgkmcnt(0)\n    s_sub_u32 s74, s74, s80\n    v_mov_b32 v20, s74\n    ds_write_b32 v10, v20 offset:44")
    a(f"""    s_cmp_lg_u32 s25, 0
    s_cbranch_scc1 {L}_nagg
    s_lshl_b32 s27, s24, 7
    s_add_u32 s27, s27, {GF_OFF:#x}
    s_mov_b64 exec, 1
    buffer_store_dword v11, v12, s[36:39], s27 offen sc1
    s_mov_b64 exec, -1
{L}_nagg:
    ds_write_b32 v10, v11 offset:16
    s_mov_b32 m0, s49
    s_add_u32 s26, s26, {XT_OFF:#x}""")
    for i in range(4): a(f"    buffer_load_dwordx4 v6, s[36:39], s26 offen offset:{1024*i} {opt.ldf} lds")
    a(f"""    v_lshlrev_b32 v14, 7, v3
    s_mov_b32 s28, {GF_OFF:#x}
{L}_p3:
    buffer_load_dword v15, v14, s[36:39], s28 offen sc1
    s_waitcnt vmcnt(0)
    v_cmp_eq_u32 vcc, 1, v15
    s_cmp_eq_u64 vcc, -1
    s_cbranch_scc1 {L}_p3e
    s_sleep {opt.xsleep}
    s_branch {L}_p3
{L}_p3e:
    ds_write_b32 v10, v11 offset:24
    s_branch {L}_g2
{L}_w2:""")
    spin(16, 1, "x")
    a(f"    s_mov_b32 m0, s49\n    s_add_u32 s26, s26, {XT_OFF:#x}")
    for i in range(4): a(f"    buffer_load_dwordx4 v6, s[36:39], s26 offen offset:{1024*i} {opt.ldf} lds")
    spin(24, 1, "y")
    a(f"{L}_g2:")
    stamp(a, 4)
    if opt.stamps: a("    ds_read_b32 v20, v10 offset:44\n    s_waitcnt lgkmcnt(0)\n    v_readfirstlane_b32 s74, v20\n    s_nop 1\n    v_writelane_b32 v250, s74, 11")
    a(f"""    s_lshl_b32 s30, s34, 12
    s_add_u32 m0, s30, {STG}
    s_add_u32 s30, s30, {ST1_OFF:#x}""")
    for i in range(4): a(f"    buffer_load_dwordx4 v6, s[36:39], s30 offen offset:{1024*i} sc1 lds")
    a(f"""    s_lshl_b32 s47, s2, 10
    s_lshl_b32 s48, s34, 8
    s_add_u32 s47, s47, s48
    s_add_u32 s47, s47, {PST_OFF:#x}
    v_lshlrev_b32 v14, 2, v2
    v_mov_b32 v15, -1
    buffer_store_dword v15, v14, s[36:39], s47 offen
    s_mul_i32 s47, s2, 560
    s_mul_i32 s48, s34, 140
    s_add_u32 s47, s47, s48
    s_add_u32 s47, s47, {FLG_OFF:#x}
    v_min_u32 v14, 34, v2
    v_lshlrev_b32 v14, 2, v14
    buffer_store_dword v12, v14, s[36:39], s47 offen
    s_and_b32 s25, s2, 15            ; k slice
    s_lshr_b32 s26, s2, 4
    s_mul_i32 s27, s25, {64*7168}
    s_lshl_b32 s28, s26, 9
    s_lshl_b32 s29, s34, 7
    s_add_u32 s28, s28, s29
    s_add_u32 s27, s27, s28
    v_mul_u32_u24 v5, 7168, v4
    v_lshl_add_u32 v5, v3, 4, v5
    s_cmp_ge_u32 s2, 224
    s_cselect_b32 s27, 0x80000000, s27
    s_waitcnt lgkmcnt(0)""")
    srd(a, 12, 10, 1024 * 7168)
    W = 16; WF = 48
    ld = lambda i: a(f"    buffer_load_dwordx4 {vr(W+4*i,4)}, v5, s[12:15], s27 offen\n    s_add_u32 s27, s27, {8*7168}")
    TH = opt.w1th
    for i in range(TH): ld(i)
    a(f"""    s_waitcnt vmcnt({2 + TH})
    s_mov_b64 exec, 1
    ds_add_u32 v10, v11 offset:20
    s_mov_b64 exec, -1""")
    stamp(a, 5)
    a(f"    s_cmp_ge_u32 s2, 224\n    s_cbranch_scc1 {L}_code")
    for i in range(8):
        a(f"    s_waitcnt vmcnt({min(TH, 8 - i) - 1})")
        if i + TH < 8: ld(i + TH)
        if i == 0:
            for d in range(4): unpack(a, WF + 2 * d, W + d)
        else:
            for d in range(4):
                unpack(a, WF + 8 + 2 * (d & 1), W + 4 * i + d)
                a(f"    v_pk_add_f32 {vr(WF+2*d,2)}, {vr(WF+2*d,2)}, {vr(WF + 8 + 2*(d&1),2)}")
    if opt.c_pf2:
        a(f"    s_load_dwordx2 s[42:43], s[0:1], {ARG['w2']}\n    s_mul_i32 s30, s2, 32768\n    s_lshl_b32 s31, s34, 13\n    s_add_u32 s30, s30, s31\n    v_lshlrev_b32 v7, 7, v2\n    s_waitcnt lgkmcnt(0)")
        srd(a, 20, 42, 3584 * 2048)
        a("    buffer_load_dword v8, v7, s[20:23], s30 offen")
    for d in range(8): a(f"    v_add_f32_dpp v{WF+d}, v{WF+d}, v{WF+d} row_ror:8 row_mask:0xf bank_mask:0xf")
    for sw in ("v_permlane16_swap_b32", "v_permlane32_swap_b32"):
        for d in range(8): a(f"    v_mov_b32 v{WF+8+d}, v{WF+d}")
        for d in range(8): a(f"    {sw} v{WF+8+d}, v{WF+d}")
        for d in range(8): a(f"    v_add_f32 v{WF+d}, v{WF+d}, v{WF+8+d}")
    a(f"""    s_mul_i32 s27, s25, {3584*4}
    s_lshl_b32 s28, s28, 1
    s_add_u32 s27, s27, s28
    s_add_u32 s27, s27, {CS_OFF:#x}
    v_lshlrev_b32 v4, 5, v3
    s_mov_b64 exec, 0xff
    buffer_store_dwordx4 {vr(WF,4)}, v4, s[36:39], s27 offen
    buffer_store_dwordx4 {vr(WF+4,4)}, v4, s[36:39], s27 offen offset:16
    s_mov_b64 exec, -1
    s_branch {L}_done
{L}_code:""")
    if opt.codepf:
        a(f"""    s_cmp_ge_u32 s2, 232
    s_cbranch_scc1 {L}_done
    s_getpc_b64 s[66:67]
{L}_pc:
    v_and_b32 v13, 255, v0
    v_lshlrev_b32 v13, 7, v13
    v_min_u32 v13, TEXT_END - {L}_pc - 4, v13
    global_load_dword v62, v13, s[66:67]""")
    a(f"{L}_done:")
    if opt.stamps: a("    s_waitcnt vmcnt(0)")
    stamp(a, 8)
    stamp_end(a, kidx, 58, 33)
    a(f"{L}_end:\n    s_endpgm")
    return (name, 256, 512, WRD + 64), (name, 256 if opt.stamps else 240, 96)

opt.htf = ""
gen.KGEN["pc"] = gen_pc
```

```python
import sys
from asmlib import *
import gen, gen2
from gen import stamp_loop, opt, stamp, stamp_begin, stamp_end, vr, gemm_consumer_loop, wave_sum, MB4, KVR_OFF, H1_OFF, H1_SZ, XCH_OFF, FLG_OFF
from gen2 import GRP_RDY, FLG_SZ

opt.tagx = False
opt.g2sync = True
opt.a2f = 'sc1'
opt.tlbpf = False
opt.lagthr = 7
opt.norot = False
opt.ga_bar = 27
XT_OFF = 0x0400000
HT_OFF = 0x0800000
ST1_OFF = 0x0C00000
CS_OFF = 0x0C10000
PST_OFF = 0x0C80000

def unpack(a, dst, src): a(f"    v_lshlrev_b32 v{dst}, 16, v{src}\n    v_and_b32 v{dst+1}, 0xffff0000, v{src}")
def rnd(a, r): a(f"    v_cvt_pk_bf16_f32 v{r}, v{r}, v{r}\n    v_and_b32 v{r}, 0xffff0000, v{r}")

def gen_p2(a, kidx):
    name = "p_kernel"; L = "P"
    IS = 1056; VT = 17 * IS; XTL = 33 * IS; OST = 51840
    kernel_head(a, name)
    a(f"""    s_cmp_ge_u32 s2, 256
    s_cbranch_scc1 {L}_end
    s_load_dwordx4 s[4:7], s[0:1], {ARG['k']}      ; k, v
    s_load_dwordx4 s[8:11], s[0:1], {ARG['shift']}
    s_load_dwordx2 s[40:41], s[0:1], {ARG['ws']}
    s_load_dwordx2 s[42:43], s[0:1], {ARG['q']}""")
    stamp_begin(a)
    a(f"""    v_lshrrev_b32 v1, 6, v0
    v_and_b32 v2, 63, v0
    s_and_b32 s24, s2, 7             ; cb
    v_readfirstlane_b32 s33, v1
    s_lshr_b32 s25, s2, 3            ; rb
    v_and_b32 v3, 7, v2              ; cg
    v_lshrrev_b32 v4, 3, v2          ; rg
    s_and_b32 s34, s33, 3            ; w
    s_lshl_b32 s26, s25, 17
    s_lshl_b32 s27, s24, 8
    s_add_u32 s26, s26, s27
    v_lshrrev_b32 v5, 4, v2
    v_lshlrev_b32 v5, 11, v5
    v_and_b32 v6, 15, v2
    v_lshl_add_u32 v5, v6, 4, v5
    v_add_u32 v5, s26, v5
    v_subrev_u32 v6, 8192, v5
    s_lshl_b32 s27, s34, 15
    v_add_u32 v5, s27, v5
    s_movk_i32 s44, 8192
    s_movk_i32 s45, 16384
    s_movk_i32 s46, 24576
    s_mul_i32 s35, s34, {4*IS}
    v_mul_u32_u24 v7, {2*IS}, v4
    v_lshl_add_u32 v7, v3, 3, v7
    s_lshl_b32 s27, s34, 6
    v_add_u32 v7, s27, v7
    s_cmp_ge_u32 s33, 4
    s_cbranch_scc1 {L}_x""")
    so = ["0", "s44", "s45", "s46"]
    def tail_addr(rev, ldsbase, off):
        a(f"""    {"v_xor_b32 v13, 7, v4" if rev else "v_mov_b32 v13, v4"}
    v_xor_b32 v13, v13, v3
    v_lshlrev_b32 v13, 4, v13
    v_lshl_add_u32 v13, v3, 9, v13
    s_lshl_b32 s47, s33, 12
    s_add_u32 s47, s47, {OST}
    v_add_u32 v13, s47, v13
    v_lshl_add_u32 v14, v2, 4, s47
    v_lshrrev_b32 v15, 5, v2
    v_xor_b32 v15, v15, v3               ; x0 = (l&7)^(l>>5)
    v_lshlrev_b32 v9, 12, v4             ; (l>>3)*4096
    s_lshl_b32 s47, s24, 19
    s_lshl_b32 s48, s34, 17
    s_add_u32 s47, s47, s48              ; (cb*128+w*32)*4096
    s_lshl_b32 s48, s25, 7""")
        if rev: a(f"    s_sub_u32 s48, {3968 + off}, s48")
        else: a(f"    s_add_u32 s48, s48, {off:#x}")
        a("    s_add_u32 s47, s47, s48")
    def tail_out():
        a("    s_waitcnt lgkmcnt(0)")
        for i in range(4): a(f"    ds_read_b128 {vr(16+4*i,4)}, v14 offset:{1024*i}")
        for i in range(4): a(f"    v_xor_b32 v8, {2*i}, v15\n    v_lshl_add_u32 v{32+i}, v8, 4, v9")
        for i in range(4):
            a(f"    s_waitcnt lgkmcnt({3-i})\n    buffer_store_dwordx4 {vr(16+4*i,4)}, v{32+i}, s[36:39], s47 offen\n    s_add_u32 s47, s47, 32768")
    a(f"""    s_lshl_b32 s27, s24, 10
    s_lshl_b32 s28, s34, 8
    s_add_u32 s27, s27, s28
    v_lshlrev_b32 v8, 5, v3
    s_add_u32 m0, s35, {IS}
    s_waitcnt lgkmcnt(0)""")
    srd(a, 12, 4, MB4); srd(a, 16, 6, MB4); srd(a, 20, 8, 8192)
    KR = 16; VR = 38; WR = 54
    for j in range(4):
        a(f"    buffer_load_dwordx4 v5, s[12:15], {so[j]} offen nt lds\n    s_add_u32 m0, s35, {VT + j*IS}")
        a(f"    s_nop 0\n    buffer_load_dwordx4 v5, s[16:19], {so[j]} offen nt lds\n    s_add_u32 m0, s35, {(j+2)*IS}\n    s_nop 0" if j < 3 else f"    s_nop 0\n    buffer_load_dwordx4 v5, s[16:19], {so[j]} offen nt lds\n    s_mov_b32 m0, 0\n    s_nop 0")
    a("    buffer_load_dwordx4 v6, s[12:15], 0 offen nt lds")
    a(f"    buffer_load_dwordx4 {vr(WR,4)}, v8, s[20:23], s27 offen\n    buffer_load_dwordx4 {vr(WR+4,4)}, v8, s[20:23], s27 offen offset:16")
    srd(a, 28, 10, MB4); srd(a, 36, 40, 64 << 20)
    a(f"""    s_lshl_b32 s47, s2, 14
    v_lshlrev_b32 v9, 6, v0
    buffer_load_dword v10, v9, s[28:31], s47 offen
    s_mul_i32 s47, s2, 560
    s_add_u32 s47, s47, {FLG_OFF:#x}
    v_min_u32 v11, 139, v0
    v_lshlrev_b32 v11, 2, v11
    v_mov_b32 v12, 0
    buffer_store_dword v12, v11, s[36:39], s47 offen""")
    if opt.codepf:
        a(f"""    s_cmp_ge_u32 s2, 8
    s_cbranch_scc1 {L}_nocode
    s_getpc_b64 s[50:51]
{L}_pc:
    v_lshlrev_b32 v13, 7, v0
    v_min_u32 v13, TEXT_END - {L}_pc - 4, v13
    global_load_dword v62, v13, s[50:51]
{L}_nocode:""")
    tail_addr(True, 0, KVR_OFF)
    WF = 64; KF = 80; VF = 124; OF = 156; PK = 190
    stamp(a, 0)
    a("    s_waitcnt vmcnt(2)\n    s_barrier")
    stamp(a, 4)
    kro = lambda jj: ((1 + jj) >> 2) * IS + ((1 + jj) & 3) * 256
    order = [("k", 0), ("k", 1), ("k", 2)] + [x for j in range(8) for x in (("k", 3 + j), ("v", j))]
    def rd(x):
        if x[0] == "k": a(f"    ds_read_b64 {vr(KR + 2*x[1], 2)}, v7 offset:{kro(x[1])}")
        else: a(f"    ds_read_b64 {vr(VR + 2*x[1], 2)}, v7 offset:{VT + (x[1] >> 2)*IS + (x[1] & 3)*256}")
    for x in order[:13]: rd(x)
    for c in range(4):
        for j in range(4):
            src = WR + 2 * c + (j >> 1); d = WF + (c >> 1) * 8 + j * 2 + (c & 1)
            a(f"    v_lshlrev_b32 v{d}, 16, v{src}" if j % 2 == 0 else f"    v_and_b32 v{d}, 0xffff0000, v{src}")
    def unp2(dst, src):
        for p in range(2): unpack(a, dst + 2 * p, src + p)
    a("    s_waitcnt lgkmcnt(8)")
    for x in order[13:]: rd(x)
    for r in range(3): unp2(KF + 4 * r, KR + 2 * r)
    for j in range(8):
        if j: a(f"    s_waitcnt lgkmcnt({14 - 2*j})")
        unp2(KF + 4 * (3 + j), KR + 6 + 2 * j); unp2(VF + 4 * j, VR + 2 * j)
        for p in range(2):
            o = OF + 4 * j + 2 * p
            k = lambda r: vr(KF + 4 * r + 2 * p, 2)
            w = lambda t: vr(WF + p * 8 + 2 * t, 2)
            a(f"    v_pk_mul_f32 {vr(o,2)}, {k(j)}, {w(3)}")
            a(f"    v_pk_fma_f32 {vr(o,2)}, {k(j+1)}, {w(2)}, {vr(o,2)}")
            a(f"    v_pk_fma_f32 {vr(o,2)}, {k(j+2)}, {w(1)}, {vr(o,2)}")
            a(f"    v_pk_fma_f32 {vr(o,2)}, {k(j+3)}, {w(0)}, {vr(o,2)}")
            a(f"    v_pk_mul_f32 {vr(o,2)}, {vr(o,2)}, {vr(VF + 4*j + 2*p, 2)}")
    stamp(a, 1)
    for c in range(4):
        for d in range(4):
            a(f"    v_cvt_pk_bf16_f32 v{PK+4*c+d}, v{OF + 4*(7-2*d) + c}, v{OF + 4*(6-2*d) + c}")
        a(f"    ds_write_b128 v13, {vr(PK+4*c,4)} offset:{128*c}")
    a(f"    s_branch {L}_out")
    XT_ = 40; XR = 56; XF = 80; XC = 112; PKX = 144
    a(f"""{L}_x:
    s_lshl_b32 s27, s25, 6
    s_lshl_b32 s28, s24, 3
    s_add_u32 s27, s27, s28
    s_lshl_b32 s28, s34, 1
    s_add_u32 s27, s27, s28
    s_lshl_b32 s28, s27, 11
    v_lshlrev_b32 v6, 4, v2
    s_waitcnt lgkmcnt(0)""")
    srd(a, 12, 42, MB4)
    for j in range(4): a(f"    s_add_u32 m0, s35, {XTL + j*IS}\n    s_nop 0\n    buffer_load_dwordx4 v5, s[12:15], {so[j]} offen lds")
    for i in range(4): a(f"    buffer_load_dwordx4 {vr(XR+4*i,4)}, v6, s[12:15], s28 offen offset:{1024*i}")
    srd(a, 36, 40, 64 << 20)
    a(f"""    s_lshl_b32 s47, s2, 10
    s_lshl_b32 s48, s34, 8
    s_add_u32 s47, s47, s48
    s_add_u32 s47, s47, {PST_OFF:#x}
    v_lshlrev_b32 v11, 2, v2
    v_mov_b32 v12, -1
    buffer_store_dword v12, v11, s[36:39], s47 offen
    s_mov_b32 s49, 0x05040100
    s_mov_b32 s50, 0x07060302
    s_mov_b32 s51, 0x3a800000
    s_mov_b32 s52, 0x3727c5ac
    s_lshl_b32 s27, s27, 2
    s_add_u32 s27, s27, {ST1_OFF:#x}
    s_add_u32 s28, s27, 8192""")
    tail_addr(False, 0, XT_OFF)
    stamp(a, 0)
    a("    s_waitcnt vmcnt(5)\n    s_barrier")
    stamp(a, 4)
    for j in range(8): a(f"    ds_read_b64 {vr(XT_+2*j,2)}, v7 offset:{XTL + (j >> 2)*IS + (j & 3)*256}")
    a("    s_waitcnt lgkmcnt(0)")
    for c in range(4):
        for d in range(4):
            a(f"    v_perm_b32 v{PKX+4*c+d}, v{XT_ + 2*(2*d+1) + (c>>1)}, v{XT_ + 2*(2*d) + (c>>1)}, s{49 + (c&1)}")
        a(f"    ds_write_b128 v13, {vr(PKX+4*c,4)} offset:{128*c}")
    tail_out()
    S = [8, 9]; T = [10, 11]; M = [12, 14]; PS = [72, 74]
    a("    s_waitcnt vmcnt(5)")
    for rho in range(2):
        for i in range(8): unpack(a, XF + 16 * rho + 2 * i, XR + 8 * rho + i)
    src = lambda rho, i: XF + 16 * rho + 2 * i
    for rho in range(2): a(f"    v_pk_add_f32 {vr(PS[rho],2)}, {vr(src(rho,0),2)}, {vr(src(rho,1),2)}")
    for i in range(2, 8):
        for rho in range(2): a(f"    v_pk_add_f32 {vr(PS[rho],2)}, {vr(PS[rho],2)}, {vr(src(rho,i),2)}")
    for rho in range(2): a(f"    v_add_f32 v{S[rho]}, v{PS[rho]}, v{PS[rho]+1}")
    wave_sum(a, S, T)
    for rho in range(2): a(f"    v_mul_f32 v{M[rho]}, s51, v{S[rho]}")
    for i in range(8):
        for rho in range(2):
            a(f"    v_pk_add_f32 {vr(src(rho,i),2)}, {vr(src(rho,i),2)}, {vr(M[rho],2)} op_sel_hi:[1,0] neg_lo:[0,1] neg_hi:[0,1]")
    for rho in range(2): a(f"    v_pk_mul_f32 {vr(PS[rho],2)}, {vr(src(rho,0),2)}, {vr(src(rho,0),2)}")
    for i in range(1, 8):
        for rho in range(2): a(f"    v_pk_fma_f32 {vr(PS[rho],2)}, {vr(src(rho,i),2)}, {vr(src(rho,i),2)}, {vr(PS[rho],2)}")
    for rho in range(2): a(f"    v_add_f32 v{S[rho]}, v{PS[rho]}, v{PS[rho]+1}")
    wave_sum(a, S, T)
    for rho in range(2):
        a(f"    v_mov_b32 v{76+rho}, v{M[rho]}"); rnd(a, 76 + rho)
        a(f"    v_mul_f32 v{78+rho}, s51, v{S[rho]}"); rnd(a, 78 + rho); a(f"    v_add_f32 v{78+rho}, s52, v{78+rho}"); rnd(a, 78 + rho)
    a("    v_sqrt_f32 v78, v78\n    v_sqrt_f32 v79, v79\n    s_nop 0")
    for rho in range(2): rnd(a, 78 + rho)
    a("""    v_rcp_f32 v78, v78
    v_rcp_f32 v79, v79
    v_mov_b32 v6, 0
    s_mov_b64 exec, 1
    buffer_store_dwordx2 v[76:77], v6, s[36:39], s27 offen
    buffer_store_dwordx2 v[78:79], v6, s[36:39], s28 offen
    s_mov_b64 exec, -1""")
    stamp(a, 1)
    a(f"    s_branch {L}_done\n{L}_out:")
    tail_out()
    a(f"{L}_done:")
    stamp(a, 2)
    if opt.stamps: a("    s_waitcnt vmcnt(0)")
    stamp(a, 3)
    stamp_end(a, kidx, 40, 33)
    a(f"{L}_end:\n    s_endpgm")
    return (name, 256, 512, OST + 32768), (name, 256 if opt.stamps else 208, 96)

def gen_c2(a, kidx):
    name = "c_kernel"; L = "C"
    CS = 4160; RO = 4 * CS; WSZ = 21248; STG = 4 * WSZ
    kernel_head(a, name)
    a(f"""    s_cmp_ge_u32 s2, 256
    s_cbranch_scc1 {L}_end
    s_load_dwordx4 s[4:7], s[0:1], {ARG['ssmk']}
    s_load_dwordx2 s[40:41], s[0:1], {ARG['ws']}
    s_load_dwordx2 s[10:11], s[0:1], {ARG['w1']}
    s_load_dwordx2 s[42:43], s[0:1], {ARG['w2']}""")
    stamp_begin(a)
    a(f"""    v_lshrrev_b32 v1, 6, v0
    v_and_b32 v2, 63, v0
    s_and_b32 s24, s2, 7
    v_readfirstlane_b32 s33, v1
    s_lshl_b32 s24, s24, 5
    s_lshr_b32 s25, s2, 3
    s_add_u32 s24, s24, s25          ; cg
    s_cmp_ge_u32 s33, 4
    s_cbranch_scc1 {L}_help
    s_lshl_b32 s25, s24, 2
    s_add_u32 s25, s25, s33          ; ch
    s_lshl_b32 s26, s25, 12          ; ch*4096
    s_mul_i32 s27, s33, {WSZ}        ; WB
    v_lshlrev_b32 v3, 4, v2          ; lane*16
    s_add_u32 m0, s27, {RO}
    s_lshr_b32 s28, s25, 1
    s_lshl_b32 s28, s28, 2
    s_waitcnt lgkmcnt(0)""")
    srd(a, 12, 4, MB4); srd(a, 16, 40, 64 << 20)
    FD = 16; FE = 32; FX = 48; TO = 52
    for i in range(4):
        a(f"    buffer_load_dwordx4 {vr(FD+4*i,4)}, v3, s[12:15], s26 offen offset:{1024*i}")
        a(f"    buffer_load_dwordx4 {vr(FE+4*i,4)}, v3, s[12:15], s26 offen offset:{1024*i+4}")
        a(f"    buffer_load_dword v{FX+i}, v3, s[12:15], s26 offen offset:{1024*i+20}")
    for i in range(4): a(f"    buffer_load_dwordx4 v3, s[16:19], s26 offen offset:{1024*i} lds")
    a(f"""    s_load_dword s29, s[6:7], s28
    v_add_u32 v4, s27, v3
    v_mov_b32 v60, 0
    v_mov_b32 v61, 0
    v_mov_b32 v62, 0
    v_mov_b32 v63, 0
    s_mov_b64 exec, 0x3fffffff
    ds_write_b128 v4, v[60:63] offset:{RO + 4096}
    s_mov_b64 exec, -1
    v_and_b32 v5, 15, v2             ; b / a
    v_lshrrev_b32 v6, 4, v2          ; kg
    v_add_u32 v7, 1, v5
    v_and_b32 v8, 3, v7
    v_mul_u32_u24 v8, {CS}, v8
    v_and_b32 v7, 28, v7
    v_lshl_add_u32 v8, v7, 1, v8
    v_lshl_add_u32 v8, v6, 4, v8
    v_add_u32 v8, s27, v8            ; vAT
    v_lshlrev_b32 v9, 5, v5
    v_lshl_add_u32 v10, v6, 3, v9    ; 32a + 8g
    v_sub_u32 v9, {RO + 480}, v9
    v_lshl_add_u32 v9, v6, 4, v9
    v_add_u32 v9, s27, v9            ; vBT
    s_add_u32 s34, s26, {XT_OFF:#x}""")
    stamp(a, 0)
    for i in range(4):
        D = FD + 4 * i; E = FE + 4 * i
        a(f"    s_waitcnt vmcnt({4 + 9 - 3*i})")
        a(f"    ds_write_b128 v4, {vr(D,4)} offset:{32 + 1024*i}")
        a(f"    ds_write_b128 v4, {vr(E,4)} offset:{2*CS + 32 + 1024*i}")
        t = TO + 8 * (i & 1)
        for k in range(4): a(f"    v_alignbit_b32 v{t+k}, v{E+k}, v{D+k}, 16")
        a(f"    ds_write_b128 v4, {vr(t,4)} offset:{CS + 32 + 1024*i}")
        for k in range(4): a(f"    v_alignbit_b32 v{t+4+k}, v{E+k+1 if k < 3 else FX+i}, v{E+k}, 16")
        a(f"    ds_write_b128 v4, {vr(t+4,4)} offset:{3*CS + 32 + 1024*i}")
        if i == 0:
            a(f"""    v_mov_b32 v68, 0
    v_mov_b32 v69, 0
    v_mov_b32 v70, 0
    v_lshlrev_b32 v71, 16, v{D}
    v_mov_b32 v72, 0
    v_mov_b32 v73, 0
    v_mov_b32 v74, 0
    v_mov_b32 v75, v{D}
    v_mov_b32 v76, 0
    v_mov_b32 v77, 0
    v_mov_b32 v78, v71
    v_mov_b32 v79, v{t}
    s_mov_b64 exec, 1
    ds_write_b128 v4, v[60:63]
    ds_write_b128 v4, v[60:63] offset:16
    ds_write_b128 v4, v[60:63] offset:{CS}
    ds_write_b128 v4, v[68:71] offset:{CS+16}
    ds_write_b128 v4, v[60:63] offset:{2*CS}
    ds_write_b128 v4, v[72:75] offset:{2*CS+16}
    ds_write_b128 v4, v[60:63] offset:{3*CS}
    ds_write_b128 v4, v[76:79] offset:{3*CS+16}
    s_mov_b64 exec, -1""")
    ACC = 80; F0 = 112; F1 = 176
    for i in range(0, 32, 2): a(f"    v_mov_b64 {vr(ACC+i,2)}, 0")
    a(f"""    v_mov_b32 v34, {STG + 16384}
    v_mov_b32 v35, 0
    ds_write_b32 v34, v35
    s_waitcnt vmcnt(0) lgkmcnt(0)""")
    for n in range(8): a(f"    buffer_load_dwordx2 {vr(FD + 2*n, 2)}, v10, s[16:19], s34 offen offset:{512*n}")
    a("    s_barrier")
    stamp(a, 1)
    def reads(F, woff):
        r = []
        for u in range(8):
            r.append(f"    ds_read_b128 {vr(F+32+4*u,4)}, v9 offset:{3584 - 512*u + woff}")
            r.append(f"    ds_read_b64 {vr(F+4*u,2)}, v8 offset:{512*u + woff}")
            r.append(f"    ds_read_b64 {vr(F+4*u+2,2)}, v8 offset:{512*u + 8 + woff}")
        return r
    def mf(F):
        return [f"    v_mfma_f32_16x16x32_bf16 {vr(ACC+4*(u+v),4)}, {vr(F+4*u,4)}, {vr(F+32+4*v,4)}, {vr(ACC+4*(u+v),4)}" for u in range(8) for v in range(8 - u)]
    def weave(m, f):
        i = 0
        for x in m:
            a(x)
            if i < len(f): a(f[i]); i += 1
    for l in reads(F0, 0): a(l)
    a(f"    s_mov_b32 s35, 0\n{L}_loop:\n    s_waitcnt lgkmcnt(0)")
    weave(mf(F0), reads(F1, 64) + ["    ds_read_b32 v35, v34", "    v_add_u32 v8, 128, v8", "    v_add_u32 v9, 128, v9", "    s_add_u32 s35, s35, 1", "    s_cmp_eq_u32 s35, 4"])
    a(f"    s_waitcnt lgkmcnt(0)\n    s_cbranch_scc1 {L}_last")
    weave(mf(F1), reads(F0, 0))
    a(f"""    s_branch {L}_loop
{L}_again:
    s_sleep 1
    ds_read_b32 v35, v34
    s_waitcnt lgkmcnt(0)
{L}_last:
    v_readfirstlane_b32 s36, v35
    s_cmp_eq_u32 s36, 4
    s_cbranch_scc0 {L}_again""")
    KV = F0; MT = F0 + 16
    pre = [f"""    v_sub_u32 v32, {RO + 504}, v10
    v_add_u32 v32, s27, v32""",
           f"""    v_lshlrev_b32 v33, 1, v10
    v_add_u32 v33, {STG}, v33"""]
    pre += [f"    ds_read_b64 {vr(KV+2*n,2)}, v32 offset:{512*(7-n)}" for n in range(8)]
    pre += [f"    ds_read_b128 {vr(MT+4*n,4)}, v33 offset:{1024*n}" for n in range(8)]
    RTB = 36
    pre += [f"    ds_read_b128 {vr(RTB+4*n,4)}, v33 offset:{8192 + 1024*n}" for n in range(8)]
    pre += [f"""    s_lshl_b32 s35, s29, 16
    s_and_b32 s36, s29, 0xffff0000""", f"""    s_bitcmp1_b32 s25, 0
    s_cselect_b32 s35, s36, s35          ; D as f32""",
            f"""    s_and_b32 s36, s25, 3
    s_bfe_u32 s37, s25, 0x10003""", f"""    s_lshl_b32 s37, s37, 2
    s_or_b32 s36, s36, s37               ; g(d)""",
            f"""    v_and_b32 v11, 7, v5
    v_xor_b32 v11, s36, v11""", f"""    v_lshlrev_b32 v11, 5, v11
    v_lshrrev_b32 v12, 3, v5""", f"""    v_lshl_add_u32 v11, v12, 18, v11
    v_and_b32 v12, 1, v6""", f"""    v_lshl_add_u32 v11, v12, 19, v11
    v_lshrrev_b32 v12, 1, v6""", f"""    v_lshl_add_u32 v11, v12, 4, v11
    s_lshl_b32 s34, s25, 8""", f"""    s_add_u32 s34, s34, {HT_OFF:#x}"""]
    weave(mf(F1), pre)
    stamp(a, 2)
    a("    s_waitcnt vmcnt(0) lgkmcnt(0)")
    OUT = 224
    order = [0, 1, 2, 3, 4, 5, 6, 7]
    for n in order:
        c = ACC + 4 * n; k = KV + 2 * n; x = FD + 2 * n; o = OUT + 2 * n
        a(f"""    v_and_b32 v12, 0xffff0000, v{k+1}
    v_lshlrev_b32 v13, 16, v{k+1}
    v_and_b32 v14, 0xffff0000, v{k}
    v_lshlrev_b32 v15, 16, v{k}
    v_fmac_f32 v{c}, s35, v12
    v_fmac_f32 v{c+1}, s35, v13
    v_fmac_f32 v{c+2}, s35, v14
    v_fmac_f32 v{c+3}, s35, v15
    v_lshlrev_b32 v12, 16, v{x}
    v_and_b32 v13, 0xffff0000, v{x}
    v_lshlrev_b32 v14, 16, v{x+1}
    v_and_b32 v15, 0xffff0000, v{x+1}
    v_pk_mul_f32 {vr(c,2)}, {vr(c,2)}, {vr(RTB+4*n,2)}
    v_pk_mul_f32 {vr(c+2,2)}, {vr(c+2,2)}, {vr(RTB+4*n+2,2)}
    v_pk_add_f32 {vr(MT+4*n,2)}, v[12:13], {vr(MT+4*n,2)} neg_lo:[0,1] neg_hi:[0,1]
    v_pk_add_f32 {vr(MT+4*n+2,2)}, v[14:15], {vr(MT+4*n+2,2)} neg_lo:[0,1] neg_hi:[0,1]
    v_pk_fma_f32 v[12:13], {vr(MT+4*n,2)}, {vr(c,2)}, v[12:13]
    v_pk_fma_f32 v[14:15], {vr(MT+4*n+2,2)}, {vr(c+2,2)}, v[14:15]
    v_cvt_pk_bf16_f32 v{o}, v12, v13
    v_cvt_pk_bf16_f32 v{o+1}, v14, v15""")
        if n & 1:
            a(f"""    s_nop 0
    v_permlane16_swap_b32 v{o-2}, v{o}
    v_permlane16_swap_b32 v{o-1}, v{o+1}
    buffer_store_dwordx4 {vr(o-2,4)}, v11, s[16:19], s34 offen
    s_add_u32 s34, s34, 0x100000""")
    stamp(a, 3)
    a(f"    s_branch {L}_done")
    W = 16; WF = 48
    a(f"""{L}_help:
    s_and_b32 s34, s33, 3
    s_and_b32 s25, s2, 15            ; k slice
    s_lshr_b32 s26, s2, 4
    s_mul_i32 s27, s25, {64*7168}
    s_lshl_b32 s28, s26, 9
    s_lshl_b32 s29, s34, 7
    s_add_u32 s28, s28, s29
    s_add_u32 s27, s27, s28
    v_lshrrev_b32 v3, 3, v2
    v_mul_u32_u24 v3, 7168, v3
    v_and_b32 v4, 7, v2
    v_lshl_add_u32 v3, v4, 4, v3
    s_waitcnt lgkmcnt(0)""")
    srd(a, 12, 10, 1024 * 7168); srd(a, 16, 40, 64 << 20)
    a(f"""    s_lshl_b32 s30, s34, 12
    s_add_u32 m0, s30, {STG}
    s_add_u32 s30, s30, {ST1_OFF:#x}
    v_lshlrev_b32 v5, 4, v2
    v_mov_b32 v8, {STG + 16384}
    v_mov_b32 v9, 1
    s_barrier""")
    for i in range(4): a(f"    buffer_load_dwordx4 v5, s[16:19], s30 offen offset:{1024*i} lds")
    a("""    s_waitcnt vmcnt(0)
    s_mov_b64 exec, 1
    ds_add_u32 v8, v9
    s_mov_b64 exec, -1""")
    if opt.tlbpf:
        srd(a, 20, 42, 3584 * 2048)
        a(f"""    s_lshr_b32 s30, s2, 3
    s_mul_i32 s30, s30, {56*4096}
    v_lshlrev_b32 v5, 12, v2
    s_cmp_eq_u32 s34, 1
    s_cbranch_scc1 {L}_t1
    s_cmp_eq_u32 s34, 0
    s_cbranch_scc0 {L}_t2
    buffer_load_dword v7, v5, s[12:15], s30 offen
    s_branch {L}_t3
{L}_t1:
    buffer_load_dword v7, v5, s[20:23], s30 offen
    s_branch {L}_t3
{L}_t2:
    s_lshl_b32 s30, s30, 1
    s_and_b32 s31, s34, 1
    s_mul_i32 s31, s31, {56*4096}
    s_add_u32 s30, s30, s31
    s_add_u32 s30, s30, {H1_OFF:#x}
    buffer_load_dword v7, v5, s[16:19], s30 offen
{L}_t3:""")
    a(f"""    s_cmp_ge_u32 s2, 224
    s_cbranch_scc1 {L}_done""")
    for i in range(8):
        a(f"    buffer_load_dwordx4 {vr(W+4*i,4)}, v3, s[12:15], s27 offen\n    s_add_u32 s27, s27, {8*7168}")
    if opt.c_pf2:
        srd(a, 20, 42, 3584 * 2048)
        a(f"""    s_mul_i32 s30, s2, 32768
    s_lshl_b32 s31, s34, 13
    s_add_u32 s30, s30, s31
    v_lshlrev_b32 v5, 7, v2
    buffer_load_dword v6, v5, s[20:23], s30 offen""")
    ex = 1 if opt.c_pf2 else 0
    for i in range(8):
        a(f"    s_waitcnt vmcnt({7 - i + ex})")
        if i == 0:
            for d in range(4): unpack(a, WF + 2 * d, W + d)
        else:
            for d in range(4):
                unpack(a, WF + 8 + 2 * (d & 1), W + 4 * i + d)
                a(f"    v_pk_add_f32 {vr(WF+2*d,2)}, {vr(WF+2*d,2)}, {vr(WF + 8 + 2*(d&1),2)}")
    for d in range(8): a(f"    v_add_f32_dpp v{WF+d}, v{WF+d}, v{WF+d} row_ror:8 row_mask:0xf bank_mask:0xf")
    for sw in ("v_permlane16_swap_b32", "v_permlane32_swap_b32"):
        for d in range(8): a(f"    v_mov_b32 v{WF+8+d}, v{WF+d}")
        for d in range(8): a(f"    {sw} v{WF+8+d}, v{WF+d}")
        for d in range(8): a(f"    v_add_f32 v{WF+d}, v{WF+d}, v{WF+8+d}")
    a(f"""    s_mul_i32 s27, s25, {3584*4}
    s_lshl_b32 s28, s28, 1
    s_add_u32 s27, s27, s28
    s_add_u32 s27, s27, {CS_OFF:#x}
    v_lshlrev_b32 v4, 5, v4
    s_mov_b64 exec, 0xff
    buffer_store_dwordx4 {vr(WF,4)}, v4, s[16:19], s27 offen
    buffer_store_dwordx4 {vr(WF+4,4)}, v4, s[16:19], s27 offen offset:16
    s_mov_b64 exec, -1
{L}_done:""")
    stamp(a, 4)
    if opt.stamps: a("    s_waitcnt vmcnt(0)")
    stamp(a, 5)
    stamp_end(a, kidx, 40, 33)
    a(f"{L}_end:\n    s_endpgm")
    return (name, 256, 512, STG + 16384 + 64), (name, 256 if opt.stamps else 240, 96)


def loop_unrolled(a, L, MI, NI, nk, ns, acc, F0, F1, rdA, rdB, s_k, bar, tail, hookA=None, hookB=None, entry=None):
    n = MI * NI
    def reads(F, slot, kh):
        r = rdA(F, slot, kh)
        for ni in range(NI): r += rdB(F, slot, kh, ni)
        return r
    def mfmas(F):
        return [f"    v_mfma_f32_16x16x32_bf16 {vr(acc + 4*(mi*NI+ni),4)}, {vr(F + 4*MI + 4*ni, 4)}, {vr(F + 4*mi, 4)}, {vr(acc + 4*(mi*NI+ni),4)}" for ni in range(NI) for mi in range(MI)]
    def place(mf, items, start, extra):
        gaps = [[] for _ in mf]
        for j, it in enumerate(items): gaps[start + j].append(it)
        for k, v in extra.items(): gaps[k] += v
        for m, gl in zip(mf, gaps):
            a(m)
            for x in gl: a(x)
    nrd = len(reads(F0, 0, 0))
    late = bar >= n
    st = bar - n + 1 if late else 0
    lagB = st + nrd > n - opt.lagthr
    a(f"    s_mov_b32 s{s_k}, 0")
    if entry is None:
        for l in reads(F0, 0, 0): a(l)
    else:
        a(f"    s_cmp_eq_u32 {entry}, 0\n    s_cbranch_scc1 {L}_e0")
        for l in reads(F0, 1, 0): a(l)
        a(f"    s_branch {L}_s1\n{L}_e0:")
        for l in reads(F0, 0, 0): a(l)
    for u in range(ns):
        a(f"{L}_s{u}:")
        ex = {}
        if lagB:
            a(f"    s_waitcnt lgkmcnt({2*(NI-1)})")
            for ni in range(1, NI):
                ex.setdefault(MI * ni - 1, []).append(f"    s_waitcnt lgkmcnt({min(15, 2*(NI-1-ni) + min(nrd, MI*ni))})")
        else:
            a("    s_waitcnt lgkmcnt(0)")
        ex.setdefault(n - 3, []).append(f"    s_add_u32 s{s_k}, s{s_k}, 1")
        ex.setdefault(n - 2, []).append(f"    s_cmp_eq_u32 s{s_k}, {nk}")
        if not late: ex.setdefault(bar, []).append("    s_waitcnt lgkmcnt(0)\n    s_barrier")
        ex.setdefault(n - 1, []).append(f"    s_cbranch_scc1 {L}_tail")
        if late: ex[n - 1].append(f"    s_waitcnt lgkmcnt({2*(NI-1)})")
        if hookA: ex[n - 1].append(hookA(u))
        place(mfmas(F0), reads(F1, u, 1), 0, ex)
        ex = {}
        if late: ex[bar - n] = ["    s_waitcnt lgkmcnt(0)\n    s_barrier"]
        if hookB: ex.setdefault(n - 1, []).append(hookB(u))
        if u == ns - 1: ex.setdefault(n - 1, []).append(f"    s_branch {L}_s0")
        place(mfmas(F1), reads(F0, (u + 1) % ns, 0), st, ex)
    a(f"{L}_tail:")
    if late: a("    s_waitcnt lgkmcnt(0)\n    s_barrier")
    tail(mfmas(F1))

def gen_ga(a, kidx):
    name = "g_kernel"; L = "G"
    LA = 224; LB = 216; LB2 = 212
    ST1 = 49152; NS1 = 3; NK1 = 16
    NS2 = 4; NK2 = 28; B2 = 81920
    BR1 = 49152; CNT = 147456; TST = CNT + 256; TRM = TST + 512; TCB = TRM + 1024 + 64; RES = 65536
    kernel_head(a, name)
    a(f"""    s_cmp_ge_u32 s2, 256
    s_cbranch_scc1 {L}_end
    s_load_dwordx2 s[4:5], s[0:1], {ARG['ws']}
    s_load_dwordx4 s[8:11], s[0:1], {ARG['w1']}    ; w1, b1
    s_load_dwordx4 s[48:51], s[0:1], {ARG['w2']}   ; w2, b2
    s_load_dwordx2 s[52:53], s[0:1], {ARG['out']}""")
    stamp_begin(a)
    a(f"""    v_lshrrev_b32 v1, 6, v0
    v_and_b32 v2, 63, v0
    s_and_b32 s24, s2, 7
    v_readfirstlane_b32 s33, v1
    s_lshr_b32 s25, s2, 3
    s_lshr_b32 s26, s24, 1
    s_lshl_b32 s26, s26, 2
    s_and_b32 s27, s25, 3
    s_add_u32 s26, s26, s27          ; mt
    s_and_b32 s54, s24, 1
    s_lshr_b32 s55, s25, 2
    s_lshl_b32 s56, s24, 2
    s_add_u32 s56, s56, s27
    s_lshl_b32 s56, s56, 7           ; group*128
    s_lshl_b32 s27, s54, 3
    s_add_u32 s27, s27, s55          ; nt
    s_and_b32 s29, s27, 1
    s_cmp_lt_u32 s33, 4
    s_cbranch_scc1 {L}_cons""")
    def final_addr():
        a(f"""    s_lshl_b32 s43, s26, 7
    s_lshl_b32 s44, s54, 5
    s_add_u32 s43, s43, s44
    s_lshl_b32 s44, s33, 2
    s_add_u32 s43, s43, s44
    s_lshl_b32 s43, s43, 11          ; row*2048
    s_lshl_b32 s44, s55, 8
    s_add_u32 s43, s43, s44
    s_add_u32 s44, s43, {64*2048}""")
    a(f"""    s_and_b32 s34, s33, 3            ; lw
    s_lshl_b32 s35, s34, 12          ; lw*4096
    v_lshl_add_u32 v{LA}, v2, 4, s35 ; A voffset
    s_lshl_b32 s68, s26, 18
    s_add_u32 s69, s68, {16 << 14}
    s_and_b32 s36, s27, {0 if opt.norot else 12}
    s_lshl_b32 s30, s36, 14
    s_add_u32 s30, s30, s68
    s_mul_i32 s66, s27, 448
    s_and_b32 s66, s66, 0xffffff80
    s_add_u32 s67, s66, {1024*7168}
    s_mul_i32 s31, s36, {64*7168}
    s_add_u32 s31, s31, s66
    s_mov_b32 s70, s35
    s_add_u32 s39, s35, {NS1*16384}
    s_add_u32 s38, s35, s35
    s_add_u32 s38, s38, {BR1}
    s_mov_b32 s71, s38
    s_add_u32 s37, s38, {NS1*32768}
    s_waitcnt lgkmcnt(0)""")
    srd(a, 12, 4, MB4, off=HT_OFF)
    def issueA1():
        a(f"    s_mov_b32 m0, s70\n    s_add_u32 s70, s70, 16384")
        for i in range(4): a(f"    buffer_load_dwordx4 v{LA}, s[12:15], s30 offen offset:{i*1024} lds")
        a("""    s_add_u32 s30, s30, 16384
    s_cmp_ge_u32 s70, s39
    s_cselect_b32 s70, s35, s70
    s_cmp_ge_u32 s30, s69
    s_cselect_b32 s30, s68, s30""")
    def issueB1():
        a("    s_mov_b32 m0, s38\n    s_nop 0")
        for i in range(4): a(f"    buffer_load_dwordx4 v{LB+i}, s[16:19], s31 offen offset:{i*1024} lds")
        a(f"    s_add_u32 m0, s38, 4096\n    s_add_u32 s38, s38, 32768")
        for i in range(4, 8): a(f"    buffer_load_dwordx4 v{LB+i}, s[16:19], s31 offen offset:{(i&3)*1024} lds")
        a(f"""    s_add_u32 s31, s31, {64*7168}
    s_cmp_ge_u32 s38, s37
    s_cselect_b32 s38, s71, s38
    s_cmp_ge_u32 s31, s67
    s_cselect_b32 s31, s66, s31""")
    issueA1()
    a(f"""    v_lshrrev_b32 v8, 5, v2          ; hi
    s_lshl_b32 s36, s34, 4
    v_add_u32 v9, s36, v8            ; 16lw+hi
    v_mul_u32_u24 v9, 7168, v9
    v_and_b32 v10, 1, v2
    v_lshl_add_u32 v9, v10, 4, v9    ; t0
    v_bfe_u32 v10, v2, 1, 4
    v_xor_b32 v10, v10, v8           ; x0""")
    srd(a, 16, 8, 1024 * 7168)
    for ci, c in enumerate((0, 2, 4, 6)):
        a(f"    v_xor_b32 v11, {c}, v10\n    v_lshl_add_u32 v11, v11, 5, v9")
        for i in range(8):
            if 2 * (i & 1) + 4 * (i >> 2) == c: a(f"    v_add_u32 v{LB+i}, {2*i*7168 - (i&3)*1024}, v11")
    stamp(a, 0)
    issueB1(); issueA1()
    a("    s_waitcnt vmcnt(4)\n    s_barrier")
    issueB1(); issueA1(); issueB1()
    stamp(a, 12)
    a(f"""    v_lshrrev_b32 v3, 4, v2          ; q4
    s_lshl_b32 s36, s34, 4
    v_add_u32 v4, s36, v3
    v_lshlrev_b32 v4, 11, v4
    v_and_b32 v5, 1, v2
    v_lshl_add_u32 v4, v5, 4, v4     ; t0
    v_bfe_u32 v5, v2, 1, 3
    v_xor_b32 v5, v5, v3             ; x0""")
    for c in (0, 4):
        a(f"    v_xor_b32 v6, {c}, v5\n    v_lshl_add_u32 v6, v6, 5, v4")
        for i in range(4):
            if 4 * (i >> 1) == c: a(f"    v_add_u32 v{LB2+i}, {4*i*2048 - i*1024}, v6")
    a(f"""    v_lshrrev_b32 v3, 3, v2          ; d&7
    v_bfe_u32 v4, v2, 1, 2
    v_lshrrev_b32 v5, 1, v3
    v_xor_b32 v4, v4, v5             ; gs
    v_and_b32 v5, 1, v4
    v_lshrrev_b32 v4, 1, v4
    v_lshl_or_b32 v4, v4, 2, v5
    s_lshl_b32 s36, s54, 1
    v_or_b32 v4, s36, v4             ; cp
    v_and_b32 v5, 3, v3
    v_xor_b32 v4, v4, v5             ; cp ^ (d&3)
    v_lshlrev_b32 v4, 5, v4
    v_and_b32 v5, 1, v2
    v_lshl_add_u32 v4, v5, 4, v4
    v_lshl_add_u32 v208, v3, 8, v4
    v_xor_b32 v209, 128, v208
    v_add_u32 v209, 1024, v209
    v_add_u32 v210, 2048, v208
    v_add_u32 v211, 2048, v209
    v_and_b32 v3, 31, v2
    v_lshrrev_b32 v4, 5, v2
    v_lshlrev_b32 v4, 13, v4
    v_lshl_add_u32 v206, v3, 2, v4
    v_and_b32 v3, 15, v2
    v_min_u32 v3, 13, v3
    v_lshrrev_b32 v4, 4, v2
    v_mul_u32_u24 v207, {3584*4}, v4
    v_lshl_add_u32 v207, v3, 4, v207
    v_lshlrev_b32 v205, 3, v3""")
    srd(a, 20, 4, 64 << 20); srd(a, 72, 10, 7168)
    PSR = 32; CSR = 48; BR = 64
    a(f"""    s_lshl_b32 s41, s26, 14
    s_lshl_b32 s36, s34, 7
    s_add_u32 s41, s41, s36
    s_add_u32 s41, s41, {PST_OFF:#x}
    s_add_u32 s47, s41, 4096
    s_mul_i32 s42, s27, 896
    s_mul_i32 s36, s34, 224
    s_add_u32 s42, s42, s36
    s_lshr_b32 s43, s42, 1
    s_add_u32 s42, s42, {CS_OFF:#x}""")
    KP = 6
    a(f"    s_mov_b32 s40, 0\n{L}_l1:")
    stamp_loop(a, 40, 32)
    a("    s_waitcnt vmcnt(12)")
    stamp_loop(a, 40, 42)
    a("    s_barrier")
    stamp_loop(a, 40, 52)
    if not opt.noload:
        issueA1(); issueB1()
    a(f"    s_add_u32 s40, s40, 1\n    s_cmp_lt_u32 s40, {KP + 1}\n    s_cbranch_scc1 {L}_l1")
    stamp(a, 20)
    def gather_ps():
        for i in range(16): a(f"    buffer_load_dword v{PSR+i}, v206, s[20:23], s{41 if i < 8 else 47} offen offset:{512*(i&7)} sc1")
    gather_ps()
    for i in range(4): a(f"    buffer_load_dwordx4 {vr(CSR+4*i,4)}, v207, s[20:23], s42 offen\n    s_add_u32 s42, s42, {4*3584*4}")
    a(f"    buffer_load_dwordx2 {vr(BR,2)}, v205, s[72:75], s43 offen")
    for k in (KP + 1, KP + 2):
        stamp(a, 21 + 2 * (k - KP - 1))
        a(f"    s_waitcnt vmcnt(33)\n    s_barrier          ; b{k}")
        stamp(a, 22 + 2 * (k - KP - 1))
        issueA1(); issueB1()
    t = Asm()
    for i in range(1, 8): t(f"    v_pk_add_f32 {vr(PSR,2)}, {vr(PSR,2)}, {vr(PSR+2*i,2)}")
    for i in range(1, 4):
        t(f"    v_pk_add_f32 {vr(CSR,2)}, {vr(CSR,2)}, {vr(CSR+4*i,2)}\n    v_pk_add_f32 {vr(CSR+2,2)}, {vr(CSR+2,2)}, {vr(CSR+4*i+2,2)}")
    t(f"""    v_add_f32 v3, v{PSR}, v{PSR+1}
    s_mov_b32 s76, 0x3a800000
    v_mov_b32 v4, v3""")
    for sw in ("v_permlane16_swap_b32", "v_permlane32_swap_b32"):
        for d in range(4): t(f"    v_mov_b32 v{CSR+4+d}, v{CSR+d}")
        for d in range(4): t(f"    {sw} v{CSR+4+d}, v{CSR+d}")
        for d in range(4): t(f"    v_add_f32 v{CSR+d}, v{CSR+d}, v{CSR+4+d}")
    t(f"""    v_permlane32_swap_b32 v4, v3
    v_mul_f32 v6, s76, v4                ; mean
    v_mul_f32 v7, s76, v3
    v_fma_f32 v7, -v6, v6, v7
    v_max_f32 v7, 0, v7                  ; variance""")
    rnd(t, 6); rnd(t, 7)
    t("    v_add_f32 v7, 0x3727c5ac, v7"); rnd(t, 7)
    t("    v_sqrt_f32 v7, v7")
    for d in range(4): t(f"    v_cvt_pk_bf16_f32 v{CSR+4+d}, v{CSR+d}, v{CSR+d}")
    rnd(t, 7)
    for d in range(4): t(f"    v_and_b32 v{CSR+4+d}, 0xffff0000, v{CSR+4+d}\n    v_sub_f32 v{CSR+d}, v{CSR+d}, v{CSR+4+d}")
    t("    v_rcp_f32 v9, v7")
    for d in range(4):
        t(f"    v_cvt_pk_bf16_f32 v{CSR+8+2*d}, v{CSR+4+d}, v{CSR+d}")
        t(f"    v_and_b32 v{CSR+9+2*d}, 0xffff, v{BR + (d>>1)}" if d % 2 == 0 else f"    v_lshrrev_b32 v{CSR+9+2*d}, 16, v{BR + (d>>1)}")
    t(f"""    v_mul_f32 v9, v9, v9                 ; r^2
    v_xor_b32 v6, 0x80000000, v6
    v_lshrrev_b32 v4, 16, v6
    v_or_b32 v6, v6, v4                  ; (-m,-m)
    v_lshrrev_b32 v7, 16, v7             ; (den,0)
    v_and_b32 v3, 31, v2
    s_lshl_b32 s77, s34, 7
    s_add_u32 s77, s77, {TST}
    v_lshl_add_u32 v4, v3, 2, s77
    ds_write_b32 v4, v9
    s_lshl_b32 s77, s34, 8
    s_add_u32 s77, s77, {TRM}
    v_lshl_add_u32 v4, v3, 3, s77
    ds_write_b64 v4, v[6:7]
    s_mul_i32 s77, s34, 448
    s_add_u32 s77, s77, {TCB}
    v_lshl_add_u32 v3, v205, 2, s77
    ds_write_b128 v3, {vr(CSR+8,4)}
    ds_write_b128 v3, {vr(CSR+12,4)} offset:16
    v_mov_b32 v10, 0
    v_mov_b32 v11, 0
    v_mov_b32 v12, {TRM + 1024}
    ds_write_b64 v12, v[10:11]
    v_mov_b32 v12, {CNT}
    ds_write_b64 v12, v[10:11]""")
    per = (len(t.lines) - 10 + 3) // 4
    chunks = [t.lines[10 + i*per: 10 + (i+1)*per] for i in range(4)]
    for k in range(KP + 3, NK1 - NS1):
        a(f"    s_waitcnt vmcnt(12)\n    s_barrier          ; b{k}")
        issueA1(); issueB1()
        if k == KP + 3:
            a(f"{L}_chk:\n    v_max_u32 v3, v{PSR}, v{PSR+1}")
            for i in range(2, 16, 2): a(f"    v_max3_u32 v3, v3, v{PSR+i}, v{PSR+i+1}")
            a(f"""    v_cmp_eq_u32 vcc, -1, v3
    s_cmp_lg_u64 vcc, 0
    s_cbranch_scc1 {L}_retry""")
            for x in t.lines[:10]: a(x)
        else:
            for x in chunks.pop(0): a(x)
    srd(a, 16, 48, 3584 * 2048)
    PFX = 1 if opt.w2pf == "l" else 0
    if PFX:
        a(f"""    s_mul_i32 s36, s2, 28672
    s_mul_i32 s37, s34, 7168
    s_add_u32 s36, s36, s37
    v_lshlrev_b32 v70, 7, v2
    buffer_load_dword v71, v70, s[16:19], s36 offen""")
    final_addr()
    a(f"""    s_mul_i32 s58, s55, 7
    s_add_u32 s58, s58, 1
    s_lshr_b32 s58, s58, 1
    s_mul_i32 s66, s54, {1792*2048}
    s_lshl_b32 s36, s55, 8
    s_add_u32 s66, s66, s36
    s_lshl_b32 s31, s58, 17
    s_add_u32 s31, s31, s66          ; G2 B soffset
    s_add_u32 s67, s66, {28 << 17}
    s_mov_b32 s78, s31
    s_add_u32 s79, s31, {3 << 17}
    s_lshl_b32 s38, s29, 14
    s_add_u32 s38, s38, s35
    s_add_u32 s39, s35, 65536
    s_lshl_b32 s36, s55, 15
    s_lshl_b32 s37, s34, 13
    s_add_u32 s36, s36, s37
    s_add_u32 s42, s36, s68
    s_waitcnt vmcnt({12 + PFX})
    s_barrier          ; b13""")
    stamp(a, 13)
    def issueB2(restart=False):
        a(f"    s_add_u32 m0, s38, {B2}\n    s_add_u32 s38, s38, 16384")
        for i in range(4): a(f"    buffer_load_dwordx4 v{LB2+i}, s[16:19], s31 offen offset:{i*1024} lds")
        a(f"""    s_add_u32 s31, s31, {64*2048}
    s_cmp_ge_u32 s38, s39
    s_cselect_b32 s38, s35, s38""")
        if not opt.g2sync: a("    s_cmp_ge_u32 s31, s67\n    s_cselect_b32 s31, s66, s31")
        elif restart: a("    s_cmp_eq_u32 s66, s78\n    s_cselect_b32 s31, s31, s66")
        else: a("    s_cmp_eq_u32 s31, s78\n    s_cselect_b32 s31, s79, s31")
    issueB2()
    for x in chunks.pop(0): a(x)
    stamp(a, 15)
    a(f"    s_waitcnt vmcnt({4 + PFX})\n    s_barrier          ; b14")
    stamp(a, 14)
    assert not chunks
    issueB2()
    a("    s_waitcnt lgkmcnt(0)\n    s_barrier          ; b15")
    issueB2(restart=True); issueB2()
    stamp(a, 1)
    a(f"    s_add_u32 m0, s35, {RES}\n    s_nop 0")
    for i in range(4): a(f"    buffer_load_dwordx4 v{208+i}, s[12:15], s42 offen offset:{i*1024} lds")
    srd(a, 12, 4, H1_SZ, off=H1_OFF); srd(a, 60, 4, FLG_SZ, off=FLG_OFF)
    a(f"""    s_lshr_b32 s36, s34, 1
    s_lshl_b32 s36, s36, 13
    s_and_b32 s37, s34, 1
    s_lshl_b32 s37, s37, 11              ; + 16*(lw&1)
    s_add_u32 s37, s37, s36
    v_lshl_add_u32 v7, v2, 4, s37
    s_lshl_b32 s36, s29, 14
    v_add_u32 v3, s36, v7
    s_cmp_eq_u32 s29, 1
    s_cselect_b32 s36, 0, 49152
    v_add_u32 v4, s36, v7
    v_lshrrev_b32 v5, 3, v2
    v_xor_b32 v5, v5, v2
    v_bfe_u32 v5, v5, 2, 1               ; c bit2
    v_cmp_eq_u32 vcc, s29, v5
    v_mov_b32 v6, 0x80000000
    s_mul_i32 s36, s27, 7
    s_lshr_b32 s36, s36, 1               ; ks0
    v_cndmask_b32 v5, v6, v4, vcc
    s_mul_i32 s37, s26, 56
    s_add_u32 s36, s36, s37
    s_lshl_b32 s40, s36, 14
    s_add_u32 s41, s40, 16384
    s_add_u32 s42, s40, 32768
    s_mul_i32 s68, s54, 28
    s_add_u32 s68, s68, s37
    s_lshl_b32 s68, s68, 14
    s_add_u32 s69, s68, {28 << 14}
    s_add_u32 s30, s58, 3
    s_lshl_b32 s30, s30, 14
    s_add_u32 s30, s30, s68
    s_mov_b32 s77, s30
    s_sub_u32 s76, s30, {3 << 14}
    {"s_cmp_eq_u32 s68, s76" if opt.g2sync else "s_cmp_ge_u32 s30, s69"}
    {"s_cselect_b32 s30, s30, s68" if opt.g2sync else "s_cselect_b32 s30, s68, s30"}
    s_add_u32 s70, s29, 3
    s_and_b32 s70, s70, 3
    s_lshl_b32 s70, s70, 14
    s_add_u32 s70, s70, s35
    s_lshl_b32 s45, s55, 2
    s_add_u32 s46, s56, {GRP_RDY:#x}
    s_add_u32 s45, s45, s46
    v_and_b32 v8, 7, v2
    v_lshlrev_b32 v8, 2, v8
    v_mov_b32 v10, 1""")
    for half in range(2):
        stamp(a, 16 + 2 * half)
        if half == 1: a("    s_waitcnt vmcnt(8)")
        a(f"    s_barrier                            ; E{half}")
        stamp(a, 17 + 2 * half)
        ho = 4096 * half
        items = [(3, 3, 40, 0, 0), (3, 3, 40, 0, 1), (4, 5, 40, 0, 0), (4, 5, 40, 0, 1), (3, 3, 41, 16384, 0), (3, 3, 41, 16384, 1), (3, 3, 42, 32768, 0), (3, 3, 42, 32768, 1)]
        for i, (vr_, vs_, so, lo, q) in enumerate(items):
            a(f"    ds_read_b128 {vr(32+32*half+4*i,4)}, v{vr_} offset:{lo + ho + 1024*q}")
        if half == 1: a("    s_add_u32 s40, s40, 4096\n    s_add_u32 s41, s41, 4096\n    s_add_u32 s42, s42, 4096")
        for i, (vr_, vs_, so, lo, q) in enumerate(items):
            a(f"    s_waitcnt lgkmcnt({7-i})\n    buffer_store_dwordx4 {vr(32+32*half+4*i,4)}, v{vs_}, s[12:15], s{so} offen offset:{1024*q} sc1")
    stamp(a, 3)
    a("    s_barrier          ; c0\n    s_barrier          ; c1\n    s_waitcnt vmcnt(0)")
    stamp(a, 4)
    a(f"""    s_mov_b64 exec, 1
    ds_add_rtn_u32 v13, v12, v10
    s_mov_b64 exec, -1
    s_waitcnt lgkmcnt(0)
    v_readfirstlane_b32 s36, v13
    s_cmp_eq_u32 s36, 3
    s_cbranch_scc0 {L}_wait2
    s_mov_b64 exec, 1
    buffer_store_dword v10, v11, s[60:63], s45 offen sc1
    s_mov_b64 exec, 0xff
{L}_poll2:
    buffer_load_dword v9, v8, s[60:63], s46 offen sc1
    s_waitcnt vmcnt(0)
    v_cmp_eq_u32 vcc, 1, v9
    s_cmp_eq_u64 vcc, exec
    s_cbranch_scc1 {L}_seen2
    s_sleep {opt.psleep}
    s_branch {L}_poll2
{L}_seen2:
    ds_write_b32 v12, v10 offset:4
    s_mov_b64 exec, -1""")
    issueB2(); issueB2()
    a(f"    s_branch {L}_go2\n{L}_wait2:")
    issueB2(); issueB2()
    a(f"""{L}_spin2:
    s_sleep 1
    ds_read_b32 v13, v12 offset:4
    s_waitcnt lgkmcnt(0)
    v_readfirstlane_b32 s36, v13
    s_cmp_eq_u32 s36, 1
    s_cbranch_scc0 {L}_spin2
{L}_go2:""")
    stamp(a, 5)
    def issueA2():
        a("    s_mov_b32 m0, s70\n    s_add_u32 s70, s70, 16384")
        for i in range(4): a(f"    buffer_load_dwordx4 v{LA}, s[12:15], s30 offen offset:{i*1024} {opt.a2f} lds")
        a("""    s_add_u32 s30, s30, 16384
    s_cmp_ge_u32 s70, s39
    s_cselect_b32 s70, s35, s70""")
        if not opt.g2sync: a("    s_cmp_ge_u32 s30, s69\n    s_cselect_b32 s30, s68, s30")
        else: a("    s_cmp_eq_u32 s30, s76\n    s_cselect_b32 s30, s77, s30")
    issueA2(); issueA2()
    a("    s_waitcnt vmcnt(4)\n    s_barrier          ; c2")
    issueA2(); issueA2(); issueB2()
    a("    s_waitcnt vmcnt(12)\n    s_barrier          ; c3")
    issueA2(); issueB2()
    a(f"    s_mov_b32 s40, 4\n{L}_l2:\n    s_waitcnt vmcnt(16)\n    s_barrier")
    issueA2(); issueB2()
    a(f"    s_add_u32 s40, s40, 1\n    s_cmp_lt_u32 s40, {NK2-NS2}\n    s_cbranch_scc1 {L}_l2")
    for k in range(NK2 - NS2, NK2):
        left = max(0, NK2 - 1 - (k + 1))
        if k + 1 < NK2: a(f"    s_waitcnt vmcnt({left*8})")
        a("    s_barrier")
    stamp(a, 6)
    a(f"    s_branch {L}_epi2")
    ACC = 0; F0 = 112; F1 = 156; VA = 200; VB = 204; VBH = 235; SA = 212; ONE = 228
    wad = lambda ni: [213, 214, 215, 217, 218, 219, 221][ni]
    vbh = lambda ni: [235, 236, 237, 238, 239, 211, 232][ni]
    a(f"""{L}_cons:
    v_mov_b32 v240, v2               ; lane
    v_and_b32 v241, 15, v2           ; r
    v_lshrrev_b32 v242, 4, v2        ; kg
    v_lshlrev_b32 v243, 3, v242
    s_and_b32 s34, s33, 1            ; wm
    s_lshr_b32 s35, s33, 1           ; wn
    s_lshl_b32 s36, s34, 13          ; wm*64*128
    v_lshl_add_u32 v244, v241, 7, s36
    v_and_b32 v245, 7, v241          ; r7
    v_bfe_u32 v246, v240, 2, 2       ; rr
    v_lshl_add_u32 v247, v242, 3, v246   ; 8kg+rr
    v_and_b32 v248, 3, v240          ; cc
    v_lshlrev_b32 v248, 3, v248
    v_lshl_add_u32 v249, v247, 8, v248
    v_lshl_add_u32 v247, v247, 9, v248
    v_add_u32 v247, {BR1}, v247
    v_and_b32 v248, 1, v242
    v_lshl_or_b32 v246, v248, 2, v246    ; g
    s_lshl_b32 s37, s34, 2""")
    for mi in range(4):
        a(f"    s_add_u32 s38, s37, {mi}\n    v_xor_b32 v248, s38, v246\n    v_lshl_add_u32 v{VA+mi}, v248, 5, v249")
    a(f"""    s_mul_i32 s37, s35, 7
    s_lshl_b32 s38, s29, 1
    s_add_u32 s37, s37, s38          ; f0 = 2p + 7wn""")
    for ni in range(7):
        a(f"    s_add_u32 s38, s37, {ni}\n    v_xor_b32 v248, s38, v246\n    v_lshl_add_u32 v{VB+ni}, v248, 5, v247")
        a(f"    v_add_u32 v{vbh(ni)}, 0x10000, v{VB+ni}")
    for i in range(0, 112, 2): a(f"    v_mov_b64 {vr(ACC+i,2)}, 0")
    for i in range(4): a(f"    v_mov_b32 v{ONE+i}, 0x3f803f80")
    a(f"""    v_lshrrev_b32 v248, 2, v241
    v_and_b32 v249, 3, v240
    v_cmp_eq_u32 s[70:71], v248, v242
    v_cmp_eq_u32 s[64:65], 1, v249
    v_cmp_eq_u32 s[66:67], 2, v249
    v_cmp_eq_u32 s[68:69], 3, v249
    s_and_b32 s41, s27, 3
    s_add_u32 s41, s41, 1
    s_lshl_b32 s59, s26, 14
    s_xor_b32 s36, s35, 1
    s_lshl_b32 s36, s36, 13
    s_add_u32 s59, s59, s36
    s_lshl_b32 s36, s27, 9
    s_add_u32 s59, s59, s36
    s_lshl_b32 s36, s34, 8
    s_add_u32 s59, s59, s36
    s_mul_i32 s36, s35, 896
    s_add_u32 s36, s36, {TCB}
    v_lshl_add_u32 v233, v241, 3, s36
    s_lshl_b32 s36, s34, 9
    s_add_u32 s36, s36, {TRM}
    v_lshl_add_u32 v247, v241, 3, s36
    v_cmp_eq_u32 vcc, 0, v242
    v_mov_b32 v248, {TRM + 1024}
    v_mov_b32 v249, 128
    v_cndmask_b32 v252, v248, v247, vcc
    v_cndmask_b32 v249, 0, v249, vcc
    v_add_u32 v253, v252, v249
    v_add_u32 v254, v253, v249
    v_add_u32 v255, v254, v249
    v_lshrrev_b32 v246, 1, v242
    v_xor_b32 v246, v246, v245
    v_lshlrev_b32 v246, 4, v246          ; ((kg>>1)^r7)<<4
    v_and_b32 v247, 1, v242
    v_lshl_add_u32 v247, v247, 3, v244   ; m*128 + half*8""")
    for ni in range(7):
        a(f"""    s_add_u32 s38, s37, {ni}
    s_lshr_b32 s39, s38, 2
    s_lshl_b32 s39, s39, 14
    s_and_b32 s38, s38, 3
    s_lshl_b32 s38, s38, 5
    s_or_b32 s{76+ni if ni < 4 else 60+ni-4}, s38, s39""")
    a("    s_waitcnt lgkmcnt(0)")
    srd(a, 72, 4, 256 * 1024, off=PST_OFF)
    if opt.tagx:
        srd(a, 12, 4, 256 * 16384, off=XCH_OFF)
        a(f"""    v_lshlrev_b32 v248, 4, v240
    s_lshl_b32 s46, s2, 14
    s_lshl_b32 s36, s33, 12
    s_add_u32 s46, s46, s36
    s_xor_b32 s45, s46, 0x4000""")
        for i in range(4): a(f"    v_mov_b32 v{F1+i}, -1")
        if opt.tagx == 2:
            for q in range(4): a(f"    buffer_store_dwordx4 {vr(F1,4)}, v248, s[12:15], s46 offen offset:{q*1024} sc1")
    stamp(a, 0)
    a("    s_barrier")
    if opt.tagx == 1:
        for q in range(4): a(f"    buffer_store_dwordx4 {vr(F1,4)}, v248, s[12:15], s46 offen offset:{q*1024} sc1")
    stamp(a, 1)
    CT = F0; MTR = F0 + 16
    def g1_tail(mf):
        stamp(a, 13)
        mf = [m for j, m in enumerate(mf) if (j & 3) < 2] + [m for j, m in enumerate(mf) if (j & 3) >= 2]
        fill = [f"    ds_read_b64 {vr(MTR+2*mi,2)}, v{252+mi}" for mi in range(4)]
        fill += [f"    ds_read_b64 {vr(CT+2*ni,2)}, v233 offset:{128*ni}" for ni in range(7)]
        fill += ["\n".join(f"    v_xad_u32 v{wad(ni)}, v246, s{76+ni if ni < 4 else 60+ni-4}, v247" for ni in q) for q in ((0, 1), (2, 3), (4, 5), (6,))]
        fill += [f"""    s_lshl_b32 s36, s55, 8
    s_lshl_b32 s38, s35, 7""", """    s_add_u32 s36, s36, s38
    s_mov_b32 s16, s50""", """    s_mov_b32 s17, s51
    s_mov_b32 s18, 2048""", "    s_mov_b32 s19, 0x00020000"]
        fill += [f"    buffer_load_dwordx2 {vr(232 + 2*ni, 2)}, v243, s[16:19], s36 offen offset:{32*ni}" for ni in range(4)]
        for j, m in enumerate(mf):
            a(m)
            if j < len(fill): a(fill[j])
        def corr(ni, mi):
            c = ACC + 4 * (mi * 7 + ni)
            a(f"    v_mfma_f32_16x16x16_bf16 {vr(c,4)}, {vr(CT+2*ni,2)}, {vr(MTR+2*mi,2)}, {vr(c,4)}")
        def act(ni, mi):
            c = ACC + 4 * (mi * 7 + ni)
            for x in range(4): a(f"    v_max_f32 v{c+x}, 0, v{c+x}")
            a(f"    v_pk_mul_f32 {vr(c,2)}, {vr(c,2)}, {vr(c,2)}\n    v_pk_mul_f32 {vr(c+2,2)}, {vr(c+2,2)}, {vr(c+2,2)}")
            a(f"    v_cvt_pk_bf16_f32 v{c}, v{c}, v{c+1}\n    v_cvt_pk_bf16_f32 v{c+1}, v{c+2}, v{c+3}")
            a(f"    ds_write_b64 v{wad(ni)}, {vr(c,2)} offset:{mi*2048}")
        a("    s_waitcnt lgkmcnt(0)")
        first = [(ni, mi) for ni in range(7) for mi in range(2)]; second = [(ni, mi) for ni in range(7) for mi in range(2, 4)]
        for x in first[:6]: corr(*x)
        a("    s_nop 1")
        rest = first[6:] + second
        for j, x in enumerate(first):
            for y in rest[2*j: 2*j + 2]: corr(*y)
            act(*x)
        stamp(a, 14)
        a("    s_waitcnt lgkmcnt(0)\n    s_barrier                            ; E0")
        stamp(a, 15)
        for x in second: act(*x)
    def rdA1(F, slot, kh):
        return [f"    ds_read_b64_tr_b16 {vr(F + 4*mi + 2*t, 2)}, v{VA+mi} offset:{slot*16384 + kh*8192 + t*1024}" for mi in range(4) for t in range(2)]
    def rdB1(F, slot, kh, ni):
        reg = VB + ni if slot < 2 else vbh(ni)
        return [f"    ds_read_b64_tr_b16 {vr(F + 16 + 4*ni + 2*t, 2)}, v{reg} offset:{(slot&1)*32768 + kh*16384 + t*2048}" for t in range(2)]
    loop_unrolled(a, L + "1", 4, 7, NK1, NS1, ACC, F0, F1, rdA1, rdB1, 40, opt.ga_bar, g1_tail,
                  hookA=lambda u: f"    s_cmp_eq_u32 s40, s41\n    s_cbranch_scc1 {L}_xa{u}\n{L}_xar{u}:",
                  hookB=lambda u: f"    s_cmp_eq_u32 s40, s41\n    s_cbranch_scc1 {L}_xb")
    a("    s_waitcnt lgkmcnt(0)")
    stamp(a, 2)
    a("    s_barrier                            ; E1")
    ACC = 0; G0 = 64; G1_ = 96; VA2 = 128; VB2 = 132; VBI = 232; RSD = 140
    a(f"""    s_lshl_b32 s36, s34, 13
    s_lshl_b32 s37, s54, 12
    s_add_u32 s36, s36, s37
    v_lshl_add_u32 v204, v241, 7, s36
    v_xor_b32 v206, v242, v245
    v_lshl_add_u32 v{VA2}, v206, 4, v204
    v_xor_b32 v{VA2+1}, 64, v{VA2}
    v_xor_b32 v{VA2+2}, 4096, v{VA2}
    v_xor_b32 v{VA2+3}, 4096, v{VA2+1}
    v_bfe_u32 v206, v240, 2, 2           ; rr
    v_lshl_add_u32 v207, v242, 3, v206
    v_lshlrev_b32 v207, 8, v207
    v_and_b32 v208, 3, v240
    v_lshl_add_u32 v207, v208, 3, v207
    v_add_u32 v207, {B2}, v207
    v_and_b32 v208, 1, v242
    v_lshl_or_b32 v206, v208, 2, v206    ; g
    s_lshl_b32 s37, s35, 2""")
    for ni in range(4):
        a(f"    s_add_u32 s38, s37, {ni}\n    v_xor_b32 v208, s38, v206\n    v_lshl_add_u32 v{VB2+ni}, v208, 5, v207")
    for i in range(0, 64, 2): a(f"    v_mov_b64 {vr(ACC+i,2)}, 0")
    stamp(a, 5)
    def g2_tail(mf):
        send = [m for j, m in enumerate(mf) if (j & 3) >= 2]; keep = [m for j, m in enumerate(mf) if (j & 3) < 2]
        for m in send: a(m)
        if opt.tagx:
            a(keep[0]); a("    v_lshlrev_b32 v203, 4, v240\n    s_mov_b32 s36, s46"); a(keep[1]); a("    s_nop 3")
        else:
            srd(a, 12, 4, 256 * 16384, off=XCH_OFF)
            a(keep[0])
            a(f"""    v_lshlrev_b32 v203, 4, v240
    s_lshl_b32 s36, s2, 14
    s_lshl_b32 s37, s33, 12
    s_add_u32 s36, s36, s37
    s_xor_b32 s45, s36, 0x4000""")
            a(keep[1])
        for q in range(4):
            for h in range(2):
                c = ACC + 32 + 8 * q + 4 * h
                a(f"    v_cvt_pk_bf16_f32 v{G0 + 4*q + 2*h}, v{c}, v{c+1}\n    v_cvt_pk_bf16_f32 v{G0 + 4*q + 2*h + 1}, v{c+2}, v{c+3}")
            if opt.tagx:
                for d in range(4): a(f"    v_min_u32 v{G0+4*q+d}, -2, v{G0+4*q+d}")
            a(f"    buffer_store_dwordx4 {vr(G0+4*q,4)}, v203, s[12:15], s36 offen offset:{q*1024} sc1")
            for m in keep[2 + 2*q: 4 + 2*q]: a(m)
    def rdA2(F, slot, kh):
        return [f"    ds_read_b128 {vr(F + 4*mi, 4)}, v{VA2 + 2*(mi>>1) + kh} offset:{slot*16384 + (mi&1)*2048}" for mi in range(4)]
    def rdB2(F, slot, kh, ni):
        return [f"    ds_read_b64_tr_b16 {vr(F + 16 + 4*ni + 2*t, 2)}, v{VB2+ni} offset:{slot*16384 + kh*8192 + t*1024}" for t in range(2)]
    loop_unrolled(a, L + "2", 4, 4, NK2, NS2, ACC, G0, G1_, rdA2, rdB2, 40, opt.g2_bar, g2_tail, entry="s29")
    stamp(a, 6)
    srd(a, 60, 4, FLG_SZ, off=FLG_OFF)
    final_addr()
    a(f"""    v_bfe_u32 v206, v240, 2, 2           ; rr
    v_lshl_add_u32 v206, v242, 2, v206
    v_bfe_u32 v207, v206, 1, 2
    s_lshl_b32 s38, s34, 1
    v_xor_b32 v207, s38, v207
    v_lshlrev_b32 v207, 5, v207
    v_lshl_add_u32 v207, v206, 7, v207
    v_and_b32 v208, 3, v240
    v_lshl_add_u32 v207, v208, 3, v207
    s_lshl_b32 s38, s35, 13
    s_add_u32 s38, s38, {RES}
    v_add_u32 v207, s38, v207
    v_xor_b32 v208, 32, v207""")
    for j in range(8): a(f"    ds_read_b64_tr_b16 {vr(RSD+2*j,2)}, v{207 + (j>>2)} offset:{2048*(j&3)}")
    a(f"""    s_lshl_b32 s38, s34, 8
    s_lshl_b32 s39, s54, 7
    s_add_u32 s38, s38, s39
    s_add_u32 s38, s38, {TST}
    v_lshl_add_u32 v206, v241, 2, s38
    ds_read_b32 v192, v206
    ds_read_b32 v194, v206 offset:64""")
    a(f"""    s_lshl_b32 s36, s2, 9
    s_lshl_b32 s37, s33, 7
    s_add_u32 s36, s36, s37
    s_xor_b32 s37, s36, 0x200
    v_mov_b32 v209, 1
    v_mov_b32 v210, 0
    v_lshrrev_b32 v206, 1, v242
    v_xor_b32 v206, v206, v241           ; (kg>>1) ^ r
    s_lshl_b32 s38, s34, 13              ; 32wm*256
    v_lshl_add_u32 v207, v241, 8, s38
    v_and_b32 v208, 1, v242
    v_lshl_add_u32 v207, v208, 3, v207
    s_lshl_b32 s39, s35, 3""")
    for ni in range(4):
        a(f"    s_add_u32 s38, s39, {2*ni}\n    v_xor_b32 v208, s38, v206\n    v_lshl_add_u32 v{VB2+ni}, v208, 4, v207")
    if opt.tagx:
        a("    s_waitcnt vmcnt(4) lgkmcnt(0)")
    else:
        a(f"""    s_mov_b64 exec, 1
    s_waitcnt vmcnt(0)
    buffer_store_dword v209, v210, s[60:63], s36 offen sc1
    buffer_load_dword v211, v210, s[60:63], s37 offen sc1
    s_mov_b64 exec, -1
    s_waitcnt lgkmcnt(0)""")
    for ni in range(4):
        unpack(a, 216 + 4 * ni, VBI + 2 * ni); unpack(a, 218 + 4 * ni, VBI + 2 * ni + 1)
    for j in range(8):
        c = 160 + 4 * j; b = 216 + 4 * (j & 3)
        unpack(a, c, RSD + 2 * j); unpack(a, c + 2, RSD + 2 * j + 1)
        a(f"    v_pk_add_f32 {vr(c,2)}, {vr(c,2)}, {vr(b,2)}\n    v_pk_add_f32 {vr(c+2,2)}, {vr(c+2,2)}, {vr(b+2,2)}")
    if opt.tagx:
        a(f"{L}_poll:")
        for q in range(4): a(f"    buffer_load_dwordx4 {vr(G1_+4*q,4)}, v203, s[12:15], s45 offen offset:{q*1024} sc1")
        a(f"    s_waitcnt vmcnt(0)\n    v_max_u32 v212, v{G1_}, v{G1_+1}")
        for i in range(2, 16, 2): a(f"    v_max3_u32 v212, v212, v{G1_+i}, v{G1_+i+1}")
        a(f"    v_cmp_eq_u32 vcc, -1, v212\n    s_cmp_lg_u64 vcc, 0\n    s_cbranch_scc1 {L}_poll")
        stamp(a, 7)
    else:
        a(f"""    s_mov_b64 exec, 1
{L}_poll:
    s_waitcnt vmcnt(0)
    v_readfirstlane_b32 s38, v211
    s_cmp_eq_u32 s38, 1
    s_cbranch_scc1 {L}_seen
    buffer_load_dword v211, v210, s[60:63], s37 offen sc1
    s_branch {L}_poll
{L}_seen:
    s_mov_b64 exec, -1""")
        stamp(a, 7)
        for q in range(4):
            a(f"    buffer_load_dwordx4 {vr(G1_+4*q,4)}, v203, s[12:15], s45 offen offset:{q*1024} sc1")
    for j in range(8):
        mi, ni = j >> 2, j & 3
        c = ACC + 4 * j; p = G1_ + 2 * j
        if j % 2 == 0 and not opt.tagx: a(f"    s_waitcnt vmcnt({3 - j//2})")
        unpack(a, 212, p); unpack(a, 214, p + 1)
        a(f"""    v_pk_add_f32 {vr(c,2)}, {vr(c,2)}, v[212:213]
    v_pk_add_f32 {vr(c+2,2)}, {vr(c+2,2)}, v[214:215]
    v_pk_fma_f32 {vr(c,2)}, {vr(c,2)}, {vr(192+2*mi,2)}, {vr(160+4*j,2)} op_sel_hi:[1,0,1]
    v_pk_fma_f32 {vr(c+2,2)}, {vr(c+2,2)}, {vr(192+2*mi,2)}, {vr(162+4*j,2)} op_sel_hi:[1,0,1]
    v_cvt_pk_bf16_f32 v{c}, v{c}, v{c+1}
    v_cvt_pk_bf16_f32 v{c+1}, v{c+2}, v{c+3}
    ds_write_b64 v{VB2+ni}, {vr(c,2)} offset:{mi*4096}""")
    a("    s_waitcnt lgkmcnt(0)")
    stamp(a, 8)
    a(f"""{L}_epi2:
    v_mbcnt_lo_u32_b32 v2, -1, 0
    v_mbcnt_hi_u32_b32 v2, -1, v2
    v_lshrrev_b32 v3, 4, v2
    v_and_b32 v5, 15, v2
    v_lshlrev_b32 v6, 11, v3
    v_lshl_add_u32 v6, v5, 4, v6
    s_lshl_b32 s36, s33, 2
    v_add_u32 v3, s36, v3                ; lr (j=0)
    v_xor_b32 v4, v3, v2
    v_and_b32 v4, 15, v4
    v_lshlrev_b32 v4, 4, v4
    v_lshl_add_u32 v3, v3, 8, v4""")
    srd(a, 12, 52, MB4)
    a("""    s_barrier                            ; X3
    ds_read_b128 v[16:19], v3
    ds_read_b128 v[20:23], v3 offset:8192
    s_waitcnt lgkmcnt(1)
    buffer_store_dwordx4 v[16:19], v6, s[12:15], s43 offen
    s_waitcnt lgkmcnt(0)
    buffer_store_dwordx4 v[20:23], v6, s[12:15], s44 offen""")
    stamp(a, 9)
    if opt.stamps: a("    s_waitcnt vmcnt(0)")
    stamp(a, 10)
    stamp_end(a, kidx, 4, 33)
    a(f"{L}_end:\n    s_endpgm")
    F0 = 112; F1 = 156
    def extra(F, first, tag):
        a(f"    s_cmp_eq_u32 s35, 0\n    s_cbranch_scc0 {L}_x1{tag}")
        for mi in range(4): a(f"    v_mfma_f32_16x16x32_bf16 {vr(SA+4*mi,4)}, {vr(F+4*mi,4)}, {vr(F+4*mi,4)}, {'0' if first else vr(SA+4*mi,4)}")
        a(f"    s_branch {L}_x2{tag}\n{L}_x1{tag}:")
        for mi in range(4): a(f"    v_mfma_f32_16x16x32_bf16 {vr(SA+4*mi,4)}, {vr(ONE,4)}, {vr(F+4*mi,4)}, {'0' if first else vr(SA+4*mi,4)}")
        a(f"{L}_x2{tag}:")
    for u in range(3):
        a(f"{L}_xa{u}:"); extra(F0, True, f"a{u}"); a(f"    s_branch {L}_xar{u}")
    a(f"{L}_xb:"); extra(F1, False, "b")
    a("    s_nop 7")
    for mi in range(4):
        c = SA + 4 * mi
        a(f"""    v_cndmask_b32 v{c}, v{c}, v{c+1}, s[64:65]
    v_cndmask_b32 v{c}, v{c}, v{c+2}, s[66:67]
    v_cndmask_b32 v{c}, v{c}, v{c+3}, s[68:69]
    v_cndmask_b32 v{c}, 0, v{c}, s[70:71]""")
    for sw in ("v_permlane16_swap_b32", "v_permlane32_swap_b32"):
        for mi in range(4): a(f"    v_mov_b32 v{SA+4*mi+1}, v{SA+4*mi}")
        for mi in range(4): a(f"    {sw} v{SA+4*mi+1}, v{SA+4*mi}")
        for mi in range(4): a(f"    v_add_f32 v{SA+4*mi}, v{SA+4*mi}, v{SA+4*mi+1}")
    a(f"""    v_cmp_eq_u32 vcc, 1, v242
    v_cmp_eq_u32 s[64:65], 2, v242
    v_cmp_eq_u32 s[66:67], 3, v242
    v_cndmask_b32 v{SA}, v{SA}, v{SA+4}, vcc
    v_cndmask_b32 v{SA}, v{SA}, v{SA+8}, s[64:65]
    v_cndmask_b32 v{SA}, v{SA}, v{SA+12}, s[66:67]
    v_lshlrev_b32 v{SA+1}, 2, v240
    v_min_u32 v{SA}, -2, v{SA}
    {"s_waitcnt vmcnt(0)" if opt.tagx else ""}
    buffer_store_dword v{SA}, v{SA+1}, s[72:75], s59 offen sc1
    s_cmp_eq_u32 s40, 2
    s_cbranch_scc1 {L}1_s2
    s_cmp_eq_u32 s40, 3
    s_cbranch_scc1 {L}1_s0
    s_branch {L}1_s1
{L}_retry:
    s_sleep 2""")
    gather_ps()
    a(f"    s_waitcnt vmcnt(0)\n    s_branch {L}_chk")
    return (name, 256, 512, 163840), (name, 256, 96)

gen.KGEN["ga"] = gen_ga
gen.KGEN["p2"] = gen_p2
gen.KGEN["c2"] = gen_c2
```

```python
import sys
from asmlib import *
import gen, gen2, gen3
from gen import opt, stamp, stamp_begin, stamp_end, vr, wave_sum, MB4, KVR_OFF, FLG_OFF
from gen3 import XT_OFF, HT_OFF, ST1_OFF, CS_OFF, PST_OFF, unpack, rnd

KVF_OFF = 0x0CC0000
XF_OFF = KVF_OFF + 4
SF_OFF = KVF_OFF + 0x9000
GF_OFF = KVF_OFF + 0x8000
opt.kvprio = 0
opt.xearly = False
opt.flagl = True
opt.kvf = 'sc1'
opt.ldf = 'sc1'
opt.early2 = 1
opt.gate = 4
opt.xsleep = 4
opt.w1th = 4

def gen_pc(a, kidx):
    name = "f_kernel"; L = "F"
    CS = 4160; RO = 4 * CS; WSZ = 21248
    IS = 1056; KT = 4 * WSZ; VT = KT + 17 * IS; XS = KT + 33 * IS + 96; STG = XS + 16384; WRD = STG + 16 * IS
    assert XS % 16 == 0
    kernel_head(a, name)
    a(f"""    s_cmp_ge_u32 s2, 256
    s_cbranch_scc1 {L}_end
    s_load_dwordx4 s[4:7], s[0:1], {ARG['k']}      ; k, v
    s_load_dwordx4 s[8:11], s[0:1], {ARG['shift']}
    s_load_dwordx4 s[56:59], s[0:1], {ARG['dbg']}
    s_load_dwordx2 s[42:43], s[0:1], {ARG['q']}
    s_load_dwordx2 s[60:61], s[0:1], {ARG['ssmD']}""")
    stamp_begin(a)
    a(f"""    v_lshrrev_b32 v1, 6, v0
    v_and_b32 v2, 63, v0
    s_and_b32 s24, s2, 7
    v_readfirstlane_b32 s33, v1
    s_lshr_b32 s25, s2, 3
    v_and_b32 v3, 7, v2              ; cg
    v_lshrrev_b32 v4, 3, v2          ; rg
    s_and_b32 s34, s33, 3            ; w
    s_lshl_b32 s26, s25, 17
    s_lshl_b32 s27, s24, 8
    s_add_u32 s26, s26, s27
    s_lshl_b32 s62, s24, 7
    s_lshl_b32 s27, s25, 2
    s_add_u32 s62, s62, s27
    s_add_u32 s63, s62, s34
    s_mul_i32 s64, s34, {WSZ}        ; WB
    s_cmp_ge_u32 s33, 4
    s_cbranch_scc1 {L}_help
    s_cmp_lg_u32 s33, 0
    s_cbranch_scc1 {L}_nocl
    v_lshlrev_b32 v16, 4, v2
    v_mov_b32 v12, 0
    v_mov_b32 v13, 0
    v_mov_b32 v14, 0
    v_mov_b32 v15, 0
    s_lshl_b32 s30, s62, 5
    s_lshl_b32 s31, s24, 7
    s_add_u32 s31, s31, 0x8000
    s_cmp_eq_u32 s25, 0
    s_cselect_b32 s31, s31, 0x80000000
    s_mov_b64 exec, 0xff
    s_waitcnt lgkmcnt(0)""")
    srd(a, 36, 58, 0x11000, off=KVF_OFF)
    a(f"""    buffer_store_dwordx4 v[12:15], v16, s[36:39], s30 offen sc1
    s_add_u32 s30, s30, 0x9000
    buffer_store_dwordx4 v[12:15], v16, s[36:39], s31 offen sc1
    buffer_store_dwordx4 v[12:15], v16, s[36:39], s30 offen sc1
    s_mov_b64 exec, -1
{L}_nocl:""")
    so = ["0", "s44", "s45", "s46"]
    def tail_addr(rev, off, ldsb):
        a(f"""    {"v_xor_b32 v13, 7, v4" if rev else "v_mov_b32 v13, v4"}
    v_xor_b32 v13, v13, v3
    v_lshlrev_b32 v13, 4, v13
    v_lshl_add_u32 v13, v3, 9, v13
    v_add_u32 v13, {ldsb}, v13
    v_lshl_add_u32 v14, v2, 4, {ldsb}
    v_lshrrev_b32 v15, 5, v2
    v_xor_b32 v15, v15, v3               ; x0 = (l&7)^(l>>5)
    v_lshlrev_b32 v9, 12, v4             ; (l>>3)*4096
    s_lshl_b32 s47, s24, 19
    s_lshl_b32 s48, s34, 17
    s_add_u32 s47, s47, s48              ; (cb*128+w*32)*4096
    s_lshl_b32 s48, s25, 7""")
        if rev: a(f"    s_sub_u32 s48, {3968 + off}, s48")
        else: a(f"    s_add_u32 s48, s48, {off:#x}")
        a("    s_add_u32 s47, s47, s48")
    def tail_out(R):
        a("    s_waitcnt lgkmcnt(0)")
        for i in range(4): a(f"    ds_read_b128 {vr(R+4*i,4)}, v14 offset:{1024*i}")
        for i in range(4): a(f"    v_xor_b32 v8, {2*i}, v15\n    v_lshl_add_u32 v{R+16+i}, v8, 4, v9")
        for i in range(4):
            a(f"    s_waitcnt lgkmcnt({3-i})\n    buffer_store_dwordx4 {vr(R+4*i,4)}, v{R+16+i}, s[36:39], s47 offen {opt.kvf}\n    s_add_u32 s47, s47, 32768")
    def count_in(word, tag):
        a(f"""    v_mov_b32 v10, {WRD}
    v_mov_b32 v11, 1
    v_mov_b32 v12, 0
    s_mov_b64 exec, 1
    ds_add_rtn_u32 v13, v10, v11 offset:{word}
    s_mov_b64 exec, -1
    s_waitcnt lgkmcnt(0)
    v_readfirstlane_b32 s35, v13
    s_cmp_eq_u32 s35, 3""")
    def spin(word, val, tag, r=13):
        a(f"""{L}_sp{tag}:
    ds_read_b32 v{r}, v10 offset:{word}
    s_waitcnt lgkmcnt(0)
    v_readfirstlane_b32 s35, v{r}
    s_cmp_eq_u32 s35, {val}
    s_cbranch_scc1 {L}_sq{tag}
    s_sleep 1
    s_branch {L}_sp{tag}
{L}_sq{tag}:""")
    def reg_issue():
        a("    buffer_load_dwordx2 v[36:37], v39, s[52:55], 0 offen sc1")
    def reg_check(tag):
        a(f"""    s_getreg_b32 s65, hwreg(HW_REG_XCC_ID)
    s_and_b32 s65, s65, 7
    s_lshl_b32 s65, s65, 3
    s_lshl_b64 s[66:67], 32, s65
{L}_rg{tag}:
    v_sad_u8 v38, v36, 0, 0
    v_sad_u8 v38, v37, 0, v38
    v_cmp_eq_u32 vcc, 32, v38
    s_cmp_eq_u64 vcc, -1
    s_cbranch_scc1 {L}_rk{tag}
    s_sleep 24
    buffer_load_dwordx2 v[36:37], v39, s[52:55], 0 offen sc1
    s_waitcnt vmcnt(0)
    s_branch {L}_rg{tag}
{L}_rk{tag}:
    v_readlane_b32 s68, v36, s24
    v_readlane_b32 s69, v37, s24
    s_cmp_eq_u64 s[68:69], s[66:67]
    s_cselect_b32 s65, 1, 0""")
    def signal_poll(off, tag, poll=True):
        a(f"""{L}_md{tag}:
    ds_read_b32 v13, v10 offset:28
    s_waitcnt lgkmcnt(0)
    v_readfirstlane_b32 s65, v13
    s_cmp_eq_u32 s65, 0
    s_cbranch_scc1 {L}_md{tag}
    s_sub_u32 s65, s65, 1""")
        a(f"""    s_lshl_b32 s27, s62, 5
    s_and_b32 s28, s27, 0xfffff000
    s_add_u32 s27, s27, {off:#x}
    s_add_u32 s28, s28, {off:#x}
    v_and_b32 v14, 31, v2
    v_lshlrev_b32 v14, 7, v14
    s_mov_b64 exec, 1
    s_cmp_eq_u32 s65, {1 if opt.flagl else 7}
    s_cbranch_scc1 {L}_sl{tag}
    {"" if opt.kvf == "sc1" else "buffer_wbl2 sc1"}
    {"" if opt.kvf == "sc1" else "s_waitcnt vmcnt(0)"}
    buffer_store_dword v11, v12, s[36:39], s27 offen sc1
    s_branch {L}_pp{tag}
{L}_sl{tag}:
    buffer_store_dword v11, v12, s[36:39], s27 offen
{L}_pp{tag}:
    s_mov_b64 exec, -1""")
        if not poll:
            a(f"""    s_cmp_lg_u32 s25, 0
    s_cbranch_scc1 {L}_pl{tag}
    s_add_u32 s27, s28, {SF_OFF - XF_OFF:#x}
{L}_sfp:
    buffer_load_dword v15, v14, s[36:39], s27 offen sc1
    s_waitcnt vmcnt(0)
    v_cmp_eq_u32 vcc, 1, v15
    s_cmp_eq_u64 vcc, -1
    s_cbranch_scc0 {L}_sfp
    s_lshl_b32 s27, s24, 7
    s_add_u32 s27, s27, {GF_OFF:#x}
    s_mov_b64 exec, 1
    buffer_store_dword v11, v12, s[36:39], s27 offen sc1
    s_mov_b64 exec, -1""")
        a(f"""{L}_pl{tag}:
    buffer_load_dword v15, v14, s[36:39], s28 offen sc1
    s_waitcnt vmcnt(0)
    v_cmp_eq_u32 vcc, 1, v15
    s_cmp_eq_u64 vcc, -1
    s_cbranch_scc0 {L}_pl{tag}""")
    a(f"""    v_lshrrev_b32 v5, 4, v2
    v_lshlrev_b32 v5, 11, v5
    v_and_b32 v6, 15, v2
    v_lshl_add_u32 v5, v6, 4, v5
    v_add_u32 v5, s26, v5
    v_subrev_u32 v6, 8192, v5
    s_lshl_b32 s27, s34, 15
    v_add_u32 v5, s27, v5
    s_movk_i32 s44, 8192
    s_movk_i32 s45, 16384
    s_movk_i32 s46, 24576
    s_mul_i32 s35, s34, {4*IS}
    s_add_u32 m0, s35, {KT + IS}
    s_waitcnt lgkmcnt(0)""")
    srd(a, 12, 4, MB4); srd(a, 16, 6, MB4)
    for j in range(4):
        a(f"    buffer_load_dwordx4 v5, s[12:15], {so[j]} offen nt lds\n    s_add_u32 m0, s35, {VT + j*IS}\n    s_nop 0")
        a(f"    buffer_load_dwordx4 v5, s[16:19], {so[j]} offen nt lds")
        a(f"    s_add_u32 m0, s35, {KT + (j+2)*IS}\n    s_nop 0" if j < 3 else f"    s_mov_b32 m0, {KT}\n    s_nop 0")
    a("    buffer_load_dwordx4 v6, s[12:15], 0 offen nt lds")
    KR = 208; VR = 40; WR = 56
    srd(a, 20, 8, 8192)
    a(f"""    s_lshl_b32 s27, s24, 10
    s_lshl_b32 s28, s34, 8
    s_add_u32 s27, s27, s28
    v_lshlrev_b32 v8, 5, v3
    buffer_load_dwordx4 {vr(WR,4)}, v8, s[20:23], s27 offen
    buffer_load_dwordx4 {vr(WR+4,4)}, v8, s[20:23], s27 offen offset:16
    s_lshr_b32 s28, s63, 1
    s_lshl_b32 s28, s28, 2
    s_load_dword s29, s[60:61], s28
    v_mul_u32_u24 v7, {2*IS}, v4
    v_lshl_add_u32 v7, v3, 3, v7
    s_lshl_b32 s27, s34, 6
    s_add_u32 s27, s27, {KT}
    v_add_u32 v7, s27, v7
    v_mov_b32 v10, {WRD}
    v_mov_b32 v16, 0
    v_mov_b32 v17, 0
    v_mov_b32 v18, 0
    v_mov_b32 v19, 0
    ds_write_b128 v10, v[16:19]
    ds_write_b128 v10, v[16:19] offset:16
    ds_write_b128 v10, v[16:19] offset:32
    s_add_u32 s49, s64, {RO}""")
    srd(a, 36, 58, 64 << 20); srd(a, 52, 56, 256)
    a("    v_lshlrev_b32 v39, 5, v3")
    tail_addr(True, KVR_OFF, "s49")
    WF = 64; KF = 80; VF = 124; OF = 156; PK = 190
    stamp(a, 0)
    a(f"""    s_waitcnt lgkmcnt(0)
    s_barrier
    s_cmp_lg_u32 s33, 0
    s_cbranch_scc1 {L}_noreg
    s_getreg_b32 s65, hwreg(HW_REG_XCC_ID)
    s_and_b32 s65, s65, 7
    s_lshl_b32 s65, s65, 3
    s_lshl_b64 s[66:67], 1, s65
    v_mov_b32 v16, s66
    v_mov_b32 v17, s67
    v_mov_b32 v12, 0
    s_lshl_b32 s30, s24, 5
    s_mov_b64 exec, 1
    s_waitcnt vmcnt(11)""")
    stamp(a, 9)
    a(f"""    buffer_atomic_add_x2 v[16:17], v12, s[52:55], s30 offen sc1
    v_mov_b32 v11, 1
    ds_write_b32 v10, v11 offset:44
    s_mov_b64 exec, -1
    s_waitcnt vmcnt(1)
    s_branch {L}_kvl
{L}_noreg:
    s_waitcnt vmcnt(0)
{L}_kvl:""")
    a("""    s_nop 0
    v_mov_b32 v11, 1
    s_mov_b64 exec, 1
    ds_add_u32 v10, v11 offset:32
    s_mov_b64 exec, -1""")
    spin(32, 4, "k", 12)
    if opt.kvprio: a(f"    s_setprio {opt.kvprio}")
    stamp(a, 1)
    kro = lambda jj: ((1 + jj) >> 2) * IS + ((1 + jj) & 3) * 256
    order = [("k", 0), ("k", 1), ("k", 2)] + [x for j in range(8) for x in (("k", 3 + j), ("v", j))]
    def rd(x):
        if x[0] == "k": a(f"    ds_read_b64 {vr(KR + 2*x[1], 2)}, v7 offset:{kro(x[1])}")
        else: a(f"    ds_read_b64 {vr(VR + 2*x[1], 2)}, v7 offset:{17*IS + (x[1] >> 2)*IS + (x[1] & 3)*256}")
    for x in order[:13]: rd(x)
    for c in range(4):
        for j in range(4):
            src = WR + 2 * c + (j >> 1); d = WF + (c >> 1) * 8 + j * 2 + (c & 1)
            a(f"    v_lshlrev_b32 v{d}, 16, v{src}" if j % 2 == 0 else f"    v_and_b32 v{d}, 0xffff0000, v{src}")
    def unp2(dst, src):
        for p in range(2): unpack(a, dst + 2 * p, src + p)
    a("    s_waitcnt lgkmcnt(8)")
    for x in order[13:]: rd(x)
    for r in range(3): unp2(KF + 4 * r, KR + 2 * r)
    for j in range(8):
        if j: a(f"    s_waitcnt lgkmcnt({14 - 2*j})")
        unp2(KF + 4 * (3 + j), KR + 6 + 2 * j); unp2(VF + 4 * j, VR + 2 * j)
        for p in range(2):
            o = OF + 4 * j + 2 * p
            k = lambda r: vr(KF + 4 * r + 2 * p, 2)
            w = lambda t: vr(WF + p * 8 + 2 * t, 2)
            a(f"    v_pk_mul_f32 {vr(o,2)}, {k(j)}, {w(3)}")
            a(f"    v_pk_fma_f32 {vr(o,2)}, {k(j+1)}, {w(2)}, {vr(o,2)}")
            a(f"    v_pk_fma_f32 {vr(o,2)}, {k(j+2)}, {w(1)}, {vr(o,2)}")
            a(f"    v_pk_fma_f32 {vr(o,2)}, {k(j+3)}, {w(0)}, {vr(o,2)}")
            a(f"    v_pk_mul_f32 {vr(o,2)}, {vr(o,2)}, {vr(VF + 4*j + 2*p, 2)}")
    for c in range(4):
        for d in range(4):
            a(f"    v_cvt_pk_bf16_f32 v{PK+4*c+d}, v{OF + 4*(7-2*d) + c}, v{OF + 4*(6-2*d) + c}")
        a(f"    ds_write_b128 v13, {vr(PK+4*c,4)} offset:{128*c}")
    tail_out(16)
    a(f"    s_cmp_lg_u32 s33, 0\n    s_cbranch_scc1 {L}_nr1")
    reg_issue()
    a(f"{L}_nr1:")
    stamp(a, 2)
    ACC = 80; F0 = 112; F1 = 176
    a(f"""    v_lshlrev_b32 v40, 4, v2         ; lane*16
    v_add_u32 v4, s64, v40
    v_mov_b32 v60, 0
    v_mov_b32 v61, 0
    v_mov_b32 v62, 0
    v_mov_b32 v63, 0
    s_mov_b64 exec, 0x3fffffff
    ds_write_b128 v4, v[60:63] offset:{RO + 4096}
    s_mov_b64 exec, -1
    v_and_b32 v5, 15, v2             ; b / a
    v_lshrrev_b32 v6, 4, v2          ; kg
    v_add_u32 v7, 1, v5
    v_and_b32 v8, 3, v7
    v_mul_u32_u24 v8, {CS}, v8
    v_and_b32 v7, 28, v7
    v_lshl_add_u32 v8, v7, 1, v8
    v_lshl_add_u32 v8, v6, 4, v8
    v_add_u32 v8, s64, v8            ; vAT
    v_lshlrev_b32 v9, 5, v5
    v_lshl_add_u32 v41, v6, 3, v9    ; 32a + 8g
    v_sub_u32 v9, {RO + 480}, v9
    v_lshl_add_u32 v9, v6, 4, v9
    v_add_u32 v9, s64, v9            ; vBT
    s_lshl_b32 s26, s63, 12
    s_add_u32 m0, s64, {RO}""")
    for i in range(0, 32, 2): a(f"    v_mov_b64 {vr(ACC+i,2)}, 0")
    a(f"    s_waitcnt vmcnt(0)\n    s_cmp_lg_u32 s33, 0\n    s_cbranch_scc1 {L}_nr2")
    reg_check("a")
    a(f"""    s_add_u32 s65, s65, 1
    v_mov_b32 v38, s65
    ds_write_b32 v10, v38 offset:28
{L}_nr2:""")
    stamp(a, 3)
    count_in(0, "a")
    a(f"    s_cbranch_scc0 {L}_w1")
    signal_poll(KVF_OFF, "a")
    a(f"""    ds_write_b32 v10, v11 offset:4
    s_branch {L}_g1
{L}_w1:""")
    spin(4, 1, "a")
    a(f"{L}_g1:")
    stamp(a, 4)
    for i in range(4): a(f"    buffer_load_dwordx4 v40, s[36:39], s26 offen offset:{1024*i} {opt.ldf} lds")
    spin(8, 4, "b")
    a("    s_waitcnt vmcnt(0)")
    stamp(a, 5)
    def reads(F, woff):
        r = []
        for u in range(8):
            r.append(f"    ds_read_b128 {vr(F+32+4*u,4)}, v9 offset:{3584 - 512*u + woff}")
            r.append(f"    ds_read_b64 {vr(F+4*u,2)}, v8 offset:{512*u + woff}")
            r.append(f"    ds_read_b64 {vr(F+4*u+2,2)}, v8 offset:{512*u + 8 + woff}")
        return r
    def mf(F):
        return [f"    v_mfma_f32_16x16x32_bf16 {vr(ACC+4*(u+v),4)}, {vr(F+4*u,4)}, {vr(F+32+4*v,4)}, {vr(ACC+4*(u+v),4)}" for u in range(8) for v in range(8 - u)]
    def weave(m, f):
        i = 0
        for x in m:
            a(x)
            if i < len(f): a(f[i]); i += 1
        assert i == len(f)
    for l in reads(F0, 0): a(l)
    a(f"    s_mov_b32 s35, 0\n{L}_loop:\n    s_waitcnt lgkmcnt(0)")
    weave(mf(F0), reads(F1, 64) + ["    ds_read_b32 v35, v10 offset:20", "    v_add_u32 v8, 128, v8", "    v_add_u32 v9, 128, v9", "    s_add_u32 s35, s35, 1", "    s_cmp_eq_u32 s35, 4"])
    a(f"    s_waitcnt lgkmcnt(0)\n    s_cbranch_scc1 {L}_last")
    weave(mf(F1), reads(F0, 0))
    a(f"""    s_branch {L}_loop
{L}_again:
    s_sleep 1
    ds_read_b32 v35, v10 offset:20
    s_waitcnt lgkmcnt(0)
{L}_last:
    v_readfirstlane_b32 s35, v35
    s_cmp_eq_u32 s35, 4
    s_cbranch_scc0 {L}_again""")
    KV = F0; MT = F0 + 16; RTB = 44; XR_ = 16
    pre = [f"""    v_sub_u32 v32, {RO + 504}, v41
    v_add_u32 v32, s64, v32""",
           f"""    v_lshlrev_b32 v33, 1, v41
    v_add_u32 v33, {STG}, v33""",
           f"""    s_lshl_b32 s35, s34, 12
    s_add_u32 s35, s35, {XS}""", "    v_add_u32 v34, s35, v41"]
    for n in range(8):
        pre += [f"    ds_read_b64 {vr(KV+2*n,2)}, v32 offset:{512*(7-n)}", f"    ds_read_b64 {vr(XR_+2*n,2)}, v34 offset:{512*n}",
                f"    ds_read_b128 {vr(MT+4*n,4)}, v33 offset:{1024*n}", f"    ds_read_b128 {vr(RTB+4*n,4)}, v33 offset:{8192 + 1024*n}"]
    weave(mf(F1), pre)
    a(f"""    s_lshl_b32 s35, s29, 16
    s_and_b32 s27, s29, 0xffff0000
    s_bitcmp1_b32 s63, 0
    s_cselect_b32 s35, s27, s35          ; D as f32
    s_and_b32 s27, s63, 3
    s_bfe_u32 s28, s63, 0x10003
    s_lshl_b32 s28, s28, 2
    s_or_b32 s27, s27, s28               ; g(d)
    v_and_b32 v11, 7, v5
    v_xor_b32 v11, s27, v11
    v_lshlrev_b32 v11, 5, v11
    v_lshrrev_b32 v12, 3, v5
    v_lshl_add_u32 v11, v12, 18, v11
    v_and_b32 v12, 1, v6
    v_lshl_add_u32 v11, v12, 19, v11
    v_lshrrev_b32 v12, 1, v6
    v_lshl_add_u32 v11, v12, 4, v11
    s_lshl_b32 s34, s63, 8
    s_add_u32 s34, s34, {HT_OFF:#x}""")
    stamp(a, 6)
    OUT = 224
    for n in range(8):
        c = ACC + 4 * n; k = KV + 2 * n; x = XR_ + 2 * n; o = OUT + 2 * n
        lg = 4 * (7 - n)
        if lg <= 12: a(f"    s_waitcnt lgkmcnt({lg})")
        elif n == 0: a("    s_waitcnt lgkmcnt(15)")
        a(f"""    v_and_b32 v12, 0xffff0000, v{k+1}
    v_lshlrev_b32 v13, 16, v{k+1}
    v_and_b32 v14, 0xffff0000, v{k}
    v_lshlrev_b32 v15, 16, v{k}
    v_fmac_f32 v{c}, s35, v12
    v_fmac_f32 v{c+1}, s35, v13
    v_fmac_f32 v{c+2}, s35, v14
    v_fmac_f32 v{c+3}, s35, v15
    v_lshlrev_b32 v12, 16, v{x}
    v_and_b32 v13, 0xffff0000, v{x}
    v_lshlrev_b32 v14, 16, v{x+1}
    v_and_b32 v15, 0xffff0000, v{x+1}
    v_pk_mul_f32 {vr(c,2)}, {vr(c,2)}, {vr(RTB+4*n,2)}
    v_pk_mul_f32 {vr(c+2,2)}, {vr(c+2,2)}, {vr(RTB+4*n+2,2)}
    v_pk_add_f32 {vr(MT+4*n,2)}, v[12:13], {vr(MT+4*n,2)} neg_lo:[0,1] neg_hi:[0,1]
    v_pk_add_f32 {vr(MT+4*n+2,2)}, v[14:15], {vr(MT+4*n+2,2)} neg_lo:[0,1] neg_hi:[0,1]
    v_pk_fma_f32 v[12:13], {vr(MT+4*n,2)}, {vr(c,2)}, v[12:13]
    v_pk_fma_f32 v[14:15], {vr(MT+4*n+2,2)}, {vr(c+2,2)}, v[14:15]
    v_cvt_pk_bf16_f32 v{o}, v12, v13
    v_cvt_pk_bf16_f32 v{o+1}, v14, v15""")
        if n & 1:
            a(f"""    s_nop 0
    v_permlane16_swap_b32 v{o-2}, v{o}
    v_permlane16_swap_b32 v{o-1}, v{o+1}
    buffer_store_dwordx4 {vr(o-2,4)}, v11, s[36:39], s34 offen {opt.htf}
    s_add_u32 s34, s34, 0x100000""")
    stamp(a, 7)
    a(f"    s_branch {L}_done")
    FD = 16; TO = 52; XT_ = 80; XR = 96; XF = 112; PKX = 144
    a(f"""{L}_help:
    v_lshlrev_b32 v6, 4, v2          ; lane*16
    s_lshl_b32 s27, s25, 6
    s_lshl_b32 s28, s24, 3
    s_add_u32 s27, s27, s28
    s_lshl_b32 s28, s34, 1
    s_add_u32 s27, s27, s28
    s_lshl_b32 s28, s27, 11
    s_waitcnt lgkmcnt(0)""")
    srd(a, 16, 42, MB4); srd(a, 36, 58, 64 << 20)
    for i in range(4): a(f"    buffer_load_dwordx4 {vr(XR+4*i,4)}, v6, s[16:19], s28 offen offset:{1024*i}")
    srd(a, 12, 10, MB4)
    a(f"""    v_lshrrev_b32 v5, 4, v2
    v_lshlrev_b32 v5, 11, v5
    v_and_b32 v7, 15, v2
    v_lshl_add_u32 v5, v7, 4, v5
    s_lshl_b32 s30, s34, 15
    s_add_u32 s26, s26, s30
    v_add_u32 v5, s26, v5
    s_movk_i32 s44, 8192
    s_movk_i32 s45, 16384
    s_movk_i32 s46, 24576
    s_lshl_b32 s26, s63, 12
    s_load_dwordx2 s[10:11], s[0:1], {ARG['w1']}
    s_lshl_b32 s49, s34, 12
    s_add_u32 s49, s49, {XS}
    s_mov_b32 s70, 0x05040100
    s_mov_b32 s71, 0x07060302
    s_mov_b32 s51, 0x3a800000
    s_mov_b32 s50, 0x3727c5ac
    s_lshl_b32 s27, s27, 2
    s_add_u32 s72, s27, {ST1_OFF:#x}
    s_add_u32 s73, s72, 8192
    v_add_u32 v7, s64, v6
    v_mov_b32 v60, 0
    v_mov_b32 v61, 0
    v_mov_b32 v62, 0
    v_mov_b32 v63, 0
    v_mul_u32_u24 v39, {2*IS}, v4
    v_lshl_add_u32 v39, v3, 3, v39
    s_lshl_b32 s27, s34, 6
    s_add_u32 s27, s27, {STG}
    v_add_u32 v39, s27, v39""")
    a("    s_waitcnt lgkmcnt(0)\n    s_barrier")
    stamp(a, 0)
    S = [180, 181]; T = [182, 183]; M = [184, 186]; PS = [188, 190]
    a(f"    s_waitcnt vmcnt({opt.early2 - 1})\n    s_add_u32 m0, s64, 32\n    s_nop 0")
    for i in range(4): a(f"    buffer_load_dwordx4 v6, s[12:15], s26 offen offset:{1024*i} nt lds")
    def xtile():
        a(f"    s_mul_i32 s35, s34, {4*IS}")
        for j in range(4): a(f"    s_add_u32 m0, s35, {STG + j*IS}\n    s_nop 0\n    buffer_load_dwordx4 v5, s[16:19], {so[j]} offen lds")
    if opt.xearly: xtile()
    a(f"    s_waitcnt vmcnt({8 if opt.xearly else 4})")
    stamp(a, 1)
    for rho in range(2):
        for i in range(8): unpack(a, XF + 16 * rho + 2 * i, XR + 8 * rho + i)
    src = lambda rho, i: XF + 16 * rho + 2 * i
    for rho in range(2): a(f"    v_pk_add_f32 {vr(PS[rho],2)}, {vr(src(rho,0),2)}, {vr(src(rho,1),2)}")
    for i in range(2, 8):
        for rho in range(2): a(f"    v_pk_add_f32 {vr(PS[rho],2)}, {vr(PS[rho],2)}, {vr(src(rho,i),2)}")
    for rho in range(2): a(f"    v_add_f32 v{S[rho]}, v{PS[rho]}, v{PS[rho]+1}")
    wave_sum(a, S, T)
    for rho in range(2): a(f"    v_mul_f32 v{M[rho]}, s51, v{S[rho]}")
    for i in range(8):
        for rho in range(2):
            a(f"    v_pk_add_f32 {vr(src(rho,i),2)}, {vr(src(rho,i),2)}, {vr(M[rho],2)} op_sel_hi:[1,0] neg_lo:[0,1] neg_hi:[0,1]")
    for rho in range(2): a(f"    v_pk_mul_f32 {vr(PS[rho],2)}, {vr(src(rho,0),2)}, {vr(src(rho,0),2)}")
    for i in range(1, 8):
        for rho in range(2): a(f"    v_pk_fma_f32 {vr(PS[rho],2)}, {vr(src(rho,i),2)}, {vr(src(rho,i),2)}, {vr(PS[rho],2)}")
    for rho in range(2): a(f"    v_add_f32 v{S[rho]}, v{PS[rho]}, v{PS[rho]+1}")
    wave_sum(a, S, T)
    for rho in range(2):
        a(f"    v_mov_b32 v{192+rho}, v{M[rho]}"); rnd(a, 192 + rho)
        a(f"    v_mul_f32 v{194+rho}, s51, v{S[rho]}"); rnd(a, 194 + rho); a(f"    v_add_f32 v{194+rho}, s50, v{194+rho}"); rnd(a, 194 + rho)
    a("    v_sqrt_f32 v194, v194\n    v_sqrt_f32 v195, v195\n    s_nop 0")
    for rho in range(2): rnd(a, 194 + rho)
    a(f"""    v_rcp_f32 v194, v194
    v_rcp_f32 v195, v195
    v_mov_b32 v12, 0
    s_mov_b64 exec, 1
    buffer_store_dwordx2 v[192:193], v12, s[36:39], s72 offen sc1
    buffer_store_dwordx2 v[194:195], v12, s[36:39], s73 offen sc1
    s_mov_b64 exec, -1""")
    if not opt.xearly: xtile()
    stamp(a, 2)
    a(f"    v_mov_b32 v10, {WRD}\n    v_mov_b32 v11, 1\n    s_waitcnt vmcnt({6})")
    for i in range(4):
        a(f"    ds_read_b128 {vr(FD+8*i,4)}, v7 offset:{32 + 1024*i}\n    ds_read_b64 {vr(FD+8*i+4,2)}, v7 offset:{48 + 1024*i}")
    for i in range(4):
        D = FD + 8 * i; t = 64 + 12 * (i & 1) + 132
        a(f"    s_waitcnt lgkmcnt({6 - 2*i})" if i == 0 else f"    s_waitcnt lgkmcnt({min(15, 6 - 2*i + 3*i + (8 if i else 0))})")
        for k in range(4): a(f"    v_alignbit_b32 v{t+k}, v{D+k+1}, v{D+k}, 16")
        a(f"    ds_write_b128 v7, {vr(t,4)} offset:{CS + 32 + 1024*i}")
        for k in range(4): a(f"    v_mov_b32 v{t+4+k}, v{D+k+1}")
        a(f"    ds_write_b128 v7, {vr(t+4,4)} offset:{2*CS + 32 + 1024*i}")
        for k in range(4): a(f"    v_alignbit_b32 v{t+8+k}, v{D+k+2}, v{D+k+1}, 16")
        a(f"    ds_write_b128 v7, {vr(t+8,4)} offset:{3*CS + 32 + 1024*i}")
        if i == 0:
            a(f"""    v_mov_b32 v68, 0
    v_mov_b32 v69, 0
    v_mov_b32 v70, 0
    v_lshlrev_b32 v71, 16, v{D}
    v_mov_b32 v72, 0
    v_mov_b32 v73, 0
    v_mov_b32 v74, 0
    v_mov_b32 v75, v{D}
    v_mov_b32 v76, 0
    v_mov_b32 v77, 0
    v_mov_b32 v78, v71
    v_mov_b32 v79, v{t}
    s_mov_b64 exec, 1
    ds_write_b128 v7, v[60:63]
    ds_write_b128 v7, v[60:63] offset:16
    ds_write_b128 v7, v[60:63] offset:{CS}
    ds_write_b128 v7, v[68:71] offset:{CS+16}
    ds_write_b128 v7, v[60:63] offset:{2*CS}
    ds_write_b128 v7, v[72:75] offset:{2*CS+16}
    ds_write_b128 v7, v[60:63] offset:{3*CS}
    ds_write_b128 v7, v[76:79] offset:{3*CS+16}
    s_mov_b64 exec, -1""")
    a(f"""    s_waitcnt lgkmcnt(0)
    s_mov_b64 exec, 1
    ds_add_u32 v10, v11 offset:8
    s_mov_b64 exec, -1
    s_waitcnt vmcnt({0 if opt.xearly else 4})""")
    count_in(36, "s")
    a(f"    s_cbranch_scc0 {L}_nsf")
    spin(44, 1, "c")
    a(f"""    s_lshl_b32 s27, s62, 5
    s_add_u32 s27, s27, {SF_OFF:#x}
    s_mov_b64 exec, 1
    buffer_store_dword v11, v12, s[36:39], s27 offen sc1
    s_mov_b64 exec, -1
    s_waitcnt vmcnt(1)
    s_branch {L}_nsg
{L}_nsf:
    s_waitcnt vmcnt(0)
{L}_nsg:
    s_mov_b64 exec, 1
    ds_add_u32 v10, v11 offset:40
    s_mov_b64 exec, -1""")
    stamp(a, 7)
    spin(40, 4, "t", 12)
    for j in range(8): a(f"    ds_read_b64 {vr(XT_+2*j,2)}, v39 offset:{(j >> 2)*IS + (j & 3)*256}")
    tail_addr(False, XT_OFF, "s49")
    a("    s_waitcnt lgkmcnt(0)")
    for c in range(4):
        for d in range(4):
            a(f"    v_perm_b32 v{PKX+4*c+d}, v{XT_ + 2*(2*d+1) + (c>>1)}, v{XT_ + 2*(2*d) + (c>>1)}, s{70 + (c&1)}")
        a(f"    ds_write_b128 v13, {vr(PKX+4*c,4)} offset:{128*c}")
    tail_out(160)
    stamp(a, 9)
    a("    s_waitcnt vmcnt(0)")
    stamp(a, 10)
    count_in(12, "x")
    a(f"    s_cbranch_scc0 {L}_w2")
    signal_poll(XF_OFF, "x", poll=False)
    if opt.stamps: a("    s_memtime s[74:75]\n    s_waitcnt lgkmcnt(0)\n    s_sub_u32 s74, s74, s80\n    v_mov_b32 v20, s74\n    ds_write_b32 v10, v20 offset:48")
    a(f"""    ds_write_b32 v10, v11 offset:16
    s_mov_b32 m0, s49
    s_add_u32 s26, s26, {XT_OFF:#x}""")
    for i in range(4): a(f"    buffer_load_dwordx4 v6, s[36:39], s26 offen offset:{1024*i} {opt.ldf} lds")
    a(f"""    v_lshlrev_b32 v14, 7, v3
    s_mov_b32 s28, {GF_OFF:#x}
{L}_p3:
    buffer_load_dword v15, v14, s[36:39], s28 offen sc1
    s_waitcnt vmcnt(0)
    v_cmp_eq_u32 vcc, 1, v15
    s_cmp_eq_u64 vcc, -1
    s_cbranch_scc1 {L}_p3e
    s_sleep {opt.xsleep}
    s_branch {L}_p3
{L}_p3e:
    ds_write_b32 v10, v11 offset:24
    s_branch {L}_g2
{L}_w2:""")
    spin(16, 1, "x")
    a(f"    s_mov_b32 m0, s49\n    s_add_u32 s26, s26, {XT_OFF:#x}")
    for i in range(4): a(f"    buffer_load_dwordx4 v6, s[36:39], s26 offen offset:{1024*i} {opt.ldf} lds")
    spin(24, 1, "y")
    a(f"{L}_g2:")
    stamp(a, 4)
    if opt.stamps: a("    ds_read_b32 v20, v10 offset:48\n    s_waitcnt lgkmcnt(0)\n    v_readfirstlane_b32 s74, v20\n    s_nop 1\n    v_writelane_b32 v250, s74, 11")
    a(f"""    s_lshl_b32 s30, s34, 12
    s_add_u32 m0, s30, {STG}
    s_add_u32 s30, s30, {ST1_OFF:#x}""")
    for i in range(4): a(f"    buffer_load_dwordx4 v6, s[36:39], s30 offen offset:{1024*i} sc1 lds")
    a(f"""    s_lshl_b32 s47, s2, 10
    s_lshl_b32 s48, s34, 8
    s_add_u32 s47, s47, s48
    s_add_u32 s47, s47, {PST_OFF:#x}
    v_lshlrev_b32 v14, 2, v2
    v_mov_b32 v15, -1
    buffer_store_dword v15, v14, s[36:39], s47 offen
    s_mul_i32 s47, s2, 560
    s_mul_i32 s48, s34, 140
    s_add_u32 s47, s47, s48
    s_add_u32 s47, s47, {FLG_OFF:#x}
    v_min_u32 v14, 34, v2
    v_lshlrev_b32 v14, 2, v14
    buffer_store_dword v12, v14, s[36:39], s47 offen
    s_and_b32 s25, s2, 15            ; k slice
    s_lshr_b32 s26, s2, 4
    s_mul_i32 s27, s25, {64*7168}
    s_lshl_b32 s28, s26, 9
    s_lshl_b32 s29, s34, 7
    s_add_u32 s28, s28, s29
    s_add_u32 s27, s27, s28
    v_mul_u32_u24 v5, 7168, v4
    v_lshl_add_u32 v5, v3, 4, v5
    s_cmp_ge_u32 s2, 224
    s_cselect_b32 s27, 0x80000000, s27
    s_waitcnt lgkmcnt(0)""")
    srd(a, 12, 10, 1024 * 7168)
    W = 16; WF = 48
    ld = lambda i: a(f"    buffer_load_dwordx4 {vr(W+4*i,4)}, v5, s[12:15], s27 offen\n    s_add_u32 s27, s27, {8*7168}")
    TH = opt.w1th
    for i in range(TH): ld(i)
    a(f"""    s_waitcnt vmcnt({2 + TH})
    s_mov_b64 exec, 1
    ds_add_u32 v10, v11 offset:20
    s_mov_b64 exec, -1""")
    stamp(a, 5)
    a(f"    s_cmp_ge_u32 s2, 224\n    s_cbranch_scc1 {L}_code")
    for i in range(8):
        a(f"    s_waitcnt vmcnt({min(TH, 8 - i) - 1})")
        if i + TH < 8: ld(i + TH)
        if i == 0:
            for d in range(4): unpack(a, WF + 2 * d, W + d)
        else:
            for d in range(4):
                unpack(a, WF + 8 + 2 * (d & 1), W + 4 * i + d)
                a(f"    v_pk_add_f32 {vr(WF+2*d,2)}, {vr(WF+2*d,2)}, {vr(WF + 8 + 2*(d&1),2)}")
    if opt.c_pf2:
        a(f"    s_load_dwordx2 s[42:43], s[0:1], {ARG['w2']}\n    s_mul_i32 s30, s2, 32768\n    s_lshl_b32 s31, s34, 13\n    s_add_u32 s30, s30, s31\n    v_lshlrev_b32 v7, 7, v2\n    s_waitcnt lgkmcnt(0)")
        srd(a, 20, 42, 3584 * 2048)
        a("    buffer_load_dword v8, v7, s[20:23], s30 offen")
    for d in range(8): a(f"    v_add_f32_dpp v{WF+d}, v{WF+d}, v{WF+d} row_ror:8 row_mask:0xf bank_mask:0xf")
    for sw in ("v_permlane16_swap_b32", "v_permlane32_swap_b32"):
        for d in range(8): a(f"    v_mov_b32 v{WF+8+d}, v{WF+d}")
        for d in range(8): a(f"    {sw} v{WF+8+d}, v{WF+d}")
        for d in range(8): a(f"    v_add_f32 v{WF+d}, v{WF+d}, v{WF+8+d}")
    a(f"""    s_mul_i32 s27, s25, {3584*4}
    s_lshl_b32 s28, s28, 1
    s_add_u32 s27, s27, s28
    s_add_u32 s27, s27, {CS_OFF:#x}
    v_lshlrev_b32 v4, 5, v3
    s_mov_b64 exec, 0xff
    buffer_store_dwordx4 {vr(WF,4)}, v4, s[36:39], s27 offen
    buffer_store_dwordx4 {vr(WF+4,4)}, v4, s[36:39], s27 offen offset:16
    s_mov_b64 exec, -1
    s_branch {L}_done
{L}_code:""")
    if opt.codepf:
        a(f"""    s_cmp_ge_u32 s2, 232
    s_cbranch_scc1 {L}_done
    s_getpc_b64 s[66:67]
{L}_pc:
    v_and_b32 v13, 255, v0
    v_lshlrev_b32 v13, 7, v13
    v_min_u32 v13, TEXT_END - {L}_pc - 4, v13
    global_load_dword v62, v13, s[66:67]""")
    a(f"{L}_done:")
    if opt.stamps: a("    s_waitcnt vmcnt(0)")
    stamp(a, 8)
    stamp_end(a, kidx, 58, 33)
    a(f"{L}_end:\n    s_endpgm")
    return (name, 256, 512, WRD + 64), (name, 256 if opt.stamps else 240, 96)

opt.htf = ""
gen.KGEN["pc"] = gen_pc
```

```python
import sys
from asmlib import *
import gen, gen2, gen3
from gen import opt, stamp, stamp_begin, stamp_end, vr, wave_sum, MB4, KVR_OFF, FLG_OFF
from gen3 import XT_OFF, HT_OFF, ST1_OFF, CS_OFF, PST_OFF, unpack, rnd

KVF_OFF = 0x0CC0000
XF_OFF = KVF_OFF + 4
SF_OFF = KVF_OFF + 0x9000
GF_OFF = KVF_OFF + 0x8000
opt.kvprio = 0
opt.xearly = False
opt.tlb2 = 0
opt.flagl = True
opt.kvf = 'sc1'
opt.ldf = 'sc1'
opt.early2 = 1
opt.gate = 4
opt.xsleep = 4
opt.w1th = 4

def gen_pc(a, kidx):
    name = "f_kernel"; L = "F"
    CS = 4160; RO = 4 * CS; WSZ = 21248
    IS = 1056; KT = 4 * WSZ; VT = KT + 17 * IS; XS = KT + 33 * IS + 96; STG = XS + 16384; WRD = STG + 16 * IS
    assert XS % 16 == 0
    kernel_head(a, name)
    a(f"""    s_cmp_ge_u32 s2, 256
    s_cbranch_scc1 {L}_end
    s_load_dwordx4 s[4:7], s[0:1], {ARG['k']}      ; k, v
    s_load_dwordx4 s[8:11], s[0:1], {ARG['shift']}
    s_load_dwordx4 s[56:59], s[0:1], {ARG['dbg']}
    s_load_dwordx2 s[42:43], s[0:1], {ARG['q']}
    s_load_dwordx2 s[60:61], s[0:1], {ARG['ssmD']}""")
    stamp_begin(a)
    a(f"""    v_lshrrev_b32 v1, 6, v0
    v_and_b32 v2, 63, v0
    s_and_b32 s24, s2, 7
    v_readfirstlane_b32 s33, v1
    s_lshr_b32 s25, s2, 3
    v_and_b32 v3, 7, v2              ; cg
    v_lshrrev_b32 v4, 3, v2          ; rg
    s_and_b32 s34, s33, 3            ; w
    s_lshl_b32 s26, s25, 17
    s_lshl_b32 s27, s24, 8
    s_add_u32 s26, s26, s27
    s_lshl_b32 s62, s24, 7
    s_lshl_b32 s27, s25, 2
    s_add_u32 s62, s62, s27
    s_add_u32 s63, s62, s34
    s_mul_i32 s64, s34, {WSZ}        ; WB
    s_cmp_ge_u32 s33, 4
    s_cbranch_scc1 {L}_help
    s_cmp_lg_u32 s33, 0
    s_cbranch_scc1 {L}_nocl
    v_lshlrev_b32 v16, 4, v2
    v_mov_b32 v12, 0
    v_mov_b32 v13, 0
    v_mov_b32 v14, 0
    v_mov_b32 v15, 0
    s_lshl_b32 s30, s62, 5
    s_lshl_b32 s31, s24, 7
    s_add_u32 s31, s31, 0x8000
    s_cmp_eq_u32 s25, 0
    s_cselect_b32 s31, s31, 0x80000000
    s_mov_b64 exec, 0xff
    s_waitcnt lgkmcnt(0)""")
    srd(a, 36, 58, 0x11000, off=KVF_OFF)
    a(f"""    buffer_store_dwordx4 v[12:15], v16, s[36:39], s30 offen sc1
    s_add_u32 s30, s30, 0x9000
    buffer_store_dwordx4 v[12:15], v16, s[36:39], s31 offen sc1
    buffer_store_dwordx4 v[12:15], v16, s[36:39], s30 offen sc1
    s_mov_b64 exec, -1
{L}_nocl:""")
    so = ["0", "s44", "s45", "s46"]
    def tail_addr(rev, off, ldsb):
        a(f"""    {"v_xor_b32 v13, 7, v4" if rev else "v_mov_b32 v13, v4"}
    v_xor_b32 v13, v13, v3
    v_lshlrev_b32 v13, 4, v13
    v_lshl_add_u32 v13, v3, 9, v13
    v_add_u32 v13, {ldsb}, v13
    v_lshl_add_u32 v14, v2, 4, {ldsb}
    v_lshrrev_b32 v15, 5, v2
    v_xor_b32 v15, v15, v3               ; x0 = (l&7)^(l>>5)
    v_lshlrev_b32 v9, 12, v4             ; (l>>3)*4096
    s_lshl_b32 s47, s24, 19
    s_lshl_b32 s48, s34, 17
    s_add_u32 s47, s47, s48              ; (cb*128+w*32)*4096
    s_lshl_b32 s48, s25, 7""")
        if rev: a(f"    s_sub_u32 s48, {3968 + off}, s48")
        else: a(f"    s_add_u32 s48, s48, {off:#x}")
        a("    s_add_u32 s47, s47, s48")
    def tail_out(R):
        a("    s_waitcnt lgkmcnt(0)")
        for i in range(4): a(f"    ds_read_b128 {vr(R+4*i,4)}, v14 offset:{1024*i}")
        for i in range(4): a(f"    v_xor_b32 v8, {2*i}, v15\n    v_lshl_add_u32 v{R+16+i}, v8, 4, v9")
        for i in range(4):
            a(f"    s_waitcnt lgkmcnt({3-i})\n    buffer_store_dwordx4 {vr(R+4*i,4)}, v{R+16+i}, s[36:39], s47 offen {opt.kvf}\n    s_add_u32 s47, s47, 32768")
    def count_in(word, tag):
        a(f"""    v_mov_b32 v10, {WRD}
    v_mov_b32 v11, 1
    v_mov_b32 v12, 0
    s_mov_b64 exec, 1
    ds_add_rtn_u32 v13, v10, v11 offset:{word}
    s_mov_b64 exec, -1
    s_waitcnt lgkmcnt(0)
    v_readfirstlane_b32 s35, v13
    s_cmp_eq_u32 s35, 3""")
    def spin(word, val, tag, r=13):
        a(f"""{L}_sp{tag}:
    ds_read_b32 v{r}, v10 offset:{word}
    s_waitcnt lgkmcnt(0)
    v_readfirstlane_b32 s35, v{r}
    s_cmp_eq_u32 s35, {val}
    s_cbranch_scc1 {L}_sq{tag}
    s_sleep 1
    s_branch {L}_sp{tag}
{L}_sq{tag}:""")
    def reg_issue():
        a("    buffer_load_dwordx2 v[36:37], v39, s[52:55], 0 offen sc1")
    def reg_check(tag):
        a(f"""    s_getreg_b32 s65, hwreg(HW_REG_XCC_ID)
    s_and_b32 s65, s65, 7
    s_lshl_b32 s65, s65, 3
    s_lshl_b64 s[66:67], 32, s65
{L}_rg{tag}:
    v_sad_u8 v38, v36, 0, 0
    v_sad_u8 v38, v37, 0, v38
    v_cmp_eq_u32 vcc, 32, v38
    s_cmp_eq_u64 vcc, -1
    s_cbranch_scc1 {L}_rk{tag}
    s_sleep 24
    buffer_load_dwordx2 v[36:37], v39, s[52:55], 0 offen sc1
    s_waitcnt vmcnt(0)
    s_branch {L}_rg{tag}
{L}_rk{tag}:
    v_readlane_b32 s68, v36, s24
    v_readlane_b32 s69, v37, s24
    s_cmp_eq_u64 s[68:69], s[66:67]
    s_cselect_b32 s65, 1, 0""")
    def signal_poll(off, tag, poll=True):
        a(f"""{L}_md{tag}:
    ds_read_b32 v13, v10 offset:28
    s_waitcnt lgkmcnt(0)
    v_readfirstlane_b32 s65, v13
    s_cmp_eq_u32 s65, 0
    s_cbranch_scc1 {L}_md{tag}
    s_sub_u32 s65, s65, 1""")
        a(f"""    s_lshl_b32 s27, s62, 5
    s_and_b32 s28, s27, 0xfffff000
    s_add_u32 s27, s27, {off:#x}
    s_add_u32 s28, s28, {off:#x}
    v_and_b32 v14, 31, v2
    v_lshlrev_b32 v14, 7, v14
    s_mov_b64 exec, 1
    s_cmp_eq_u32 s65, {1 if opt.flagl else 7}
    s_cbranch_scc1 {L}_sl{tag}
    {"" if opt.kvf == "sc1" else "buffer_wbl2 sc1"}
    {"" if opt.kvf == "sc1" else "s_waitcnt vmcnt(0)"}
    buffer_store_dword v11, v12, s[36:39], s27 offen sc1
    s_branch {L}_pp{tag}
{L}_sl{tag}:
    buffer_store_dword v11, v12, s[36:39], s27 offen
{L}_pp{tag}:
    s_mov_b64 exec, -1""")
        if not poll:
            a(f"""    s_cmp_lg_u32 s25, 0
    s_cbranch_scc1 {L}_pl{tag}
    s_add_u32 s27, s28, {SF_OFF - XF_OFF:#x}
{L}_sfp:
    buffer_load_dword v15, v14, s[36:39], s27 offen sc1
    s_waitcnt vmcnt(0)
    v_cmp_eq_u32 vcc, 1, v15
    s_cmp_eq_u64 vcc, -1
    s_cbranch_scc0 {L}_sfp
    s_lshl_b32 s27, s24, 7
    s_add_u32 s27, s27, {GF_OFF:#x}
    s_mov_b64 exec, 1
    buffer_store_dword v11, v12, s[36:39], s27 offen sc1
    s_mov_b64 exec, -1""")
        a(f"""{L}_pl{tag}:
    buffer_load_dword v15, v14, s[36:39], s28 offen sc1
    s_waitcnt vmcnt(0)
    v_cmp_eq_u32 vcc, 1, v15
    s_cmp_eq_u64 vcc, -1
    s_cbranch_scc0 {L}_pl{tag}""")
    a(f"""    v_lshrrev_b32 v5, 4, v2
    v_lshlrev_b32 v5, 11, v5
    v_and_b32 v6, 15, v2
    v_lshl_add_u32 v5, v6, 4, v5
    v_add_u32 v5, s26, v5
    v_subrev_u32 v6, 8192, v5
    s_lshl_b32 s27, s34, 15
    v_add_u32 v5, s27, v5
    s_movk_i32 s44, 8192
    s_movk_i32 s45, 16384
    s_movk_i32 s46, 24576
    s_mul_i32 s35, s34, {4*IS}
    s_add_u32 m0, s35, {KT + IS}
    s_waitcnt lgkmcnt(0)""")
    srd(a, 12, 4, MB4); srd(a, 16, 6, MB4)
    for j in range(4):
        a(f"    buffer_load_dwordx4 v5, s[12:15], {so[j]} offen nt lds\n    s_add_u32 m0, s35, {VT + j*IS}\n    s_nop 0")
        a(f"    buffer_load_dwordx4 v5, s[16:19], {so[j]} offen nt lds")
        a(f"    s_add_u32 m0, s35, {KT + (j+2)*IS}\n    s_nop 0" if j < 3 else f"    s_mov_b32 m0, {KT}\n    s_nop 0")
    a("    buffer_load_dwordx4 v6, s[12:15], 0 offen nt lds")
    KR = 208; VR = 40; WR = 56
    srd(a, 20, 8, 8192)
    a(f"""    s_lshl_b32 s27, s24, 10
    s_lshl_b32 s28, s34, 8
    s_add_u32 s27, s27, s28
    v_lshlrev_b32 v8, 5, v3
    buffer_load_dwordx4 {vr(WR,4)}, v8, s[20:23], s27 offen
    buffer_load_dwordx4 {vr(WR+4,4)}, v8, s[20:23], s27 offen offset:16
    s_lshr_b32 s28, s63, 1
    s_lshl_b32 s28, s28, 2
    s_load_dword s29, s[60:61], s28
    v_mul_u32_u24 v7, {2*IS}, v4
    v_lshl_add_u32 v7, v3, 3, v7
    s_lshl_b32 s27, s34, 6
    s_add_u32 s27, s27, {KT}
    v_add_u32 v7, s27, v7
    v_mov_b32 v10, {WRD}
    v_mov_b32 v16, 0
    v_mov_b32 v17, 0
    v_mov_b32 v18, 0
    v_mov_b32 v19, 0
    ds_write_b128 v10, v[16:19]
    ds_write_b128 v10, v[16:19] offset:16
    ds_write_b128 v10, v[16:19] offset:32
    s_add_u32 s49, s64, {RO}""")
    srd(a, 36, 58, 64 << 20); srd(a, 52, 56, 256)
    a("    v_lshlrev_b32 v39, 5, v3")
    tail_addr(True, KVR_OFF, "s49")
    WF = 64; KF = 80; VF = 124; OF = 156; PK = 190
    stamp(a, 0)
    a(f"""    s_waitcnt lgkmcnt(0)
    s_barrier
    s_cmp_lg_u32 s33, 0
    s_cbranch_scc1 {L}_noreg
    s_getreg_b32 s65, hwreg(HW_REG_XCC_ID)
    s_and_b32 s65, s65, 7
    s_lshl_b32 s65, s65, 3
    s_lshl_b64 s[66:67], 1, s65
    v_mov_b32 v16, s66
    v_mov_b32 v17, s67
    v_mov_b32 v12, 0
    s_lshl_b32 s30, s24, 5
    s_mov_b64 exec, 1
    s_waitcnt vmcnt(11)""")
    stamp(a, 9)
    a(f"""    buffer_atomic_add_x2 v[16:17], v12, s[52:55], s30 offen sc1
    v_mov_b32 v11, 1
    ds_write_b32 v10, v11 offset:44
    s_mov_b64 exec, -1
    s_waitcnt vmcnt(1)
    s_branch {L}_kvl
{L}_noreg:
    s_waitcnt vmcnt(0)
{L}_kvl:""")
    a("""    s_nop 0
    v_mov_b32 v11, 1
    s_mov_b64 exec, 1
    ds_add_u32 v10, v11 offset:32
    s_mov_b64 exec, -1""")
    spin(32, 4, "k", 12)
    if opt.kvprio: a(f"    s_setprio {opt.kvprio}")
    stamp(a, 1)
    kro = lambda jj: ((1 + jj) >> 2) * IS + ((1 + jj) & 3) * 256
    order = [("k", 0), ("k", 1), ("k", 2)] + [x for j in range(8) for x in (("k", 3 + j), ("v", j))]
    def rd(x):
        if x[0] == "k": a(f"    ds_read_b64 {vr(KR + 2*x[1], 2)}, v7 offset:{kro(x[1])}")
        else: a(f"    ds_read_b64 {vr(VR + 2*x[1], 2)}, v7 offset:{17*IS + (x[1] >> 2)*IS + (x[1] & 3)*256}")
    for x in order[:13]: rd(x)
    for c in range(4):
        for j in range(4):
            src = WR + 2 * c + (j >> 1); d = WF + (c >> 1) * 8 + j * 2 + (c & 1)
            a(f"    v_lshlrev_b32 v{d}, 16, v{src}" if j % 2 == 0 else f"    v_and_b32 v{d}, 0xffff0000, v{src}")
    def unp2(dst, src):
        for p in range(2): unpack(a, dst + 2 * p, src + p)
    a("    s_waitcnt lgkmcnt(8)")
    for x in order[13:]: rd(x)
    for r in range(3): unp2(KF + 4 * r, KR + 2 * r)
    for j in range(8):
        if j: a(f"    s_waitcnt lgkmcnt({14 - 2*j})")
        unp2(KF + 4 * (3 + j), KR + 6 + 2 * j); unp2(VF + 4 * j, VR + 2 * j)
        for p in range(2):
            o = OF + 4 * j + 2 * p
            k = lambda r: vr(KF + 4 * r + 2 * p, 2)
            w = lambda t: vr(WF + p * 8 + 2 * t, 2)
            a(f"    v_pk_mul_f32 {vr(o,2)}, {k(j)}, {w(3)}")
            a(f"    v_pk_fma_f32 {vr(o,2)}, {k(j+1)}, {w(2)}, {vr(o,2)}")
            a(f"    v_pk_fma_f32 {vr(o,2)}, {k(j+2)}, {w(1)}, {vr(o,2)}")
            a(f"    v_pk_fma_f32 {vr(o,2)}, {k(j+3)}, {w(0)}, {vr(o,2)}")
            a(f"    v_pk_mul_f32 {vr(o,2)}, {vr(o,2)}, {vr(VF + 4*j + 2*p, 2)}")
    for c in range(4):
        for d in range(4):
            a(f"    v_cvt_pk_bf16_f32 v{PK+4*c+d}, v{OF + 4*(7-2*d) + c}, v{OF + 4*(6-2*d) + c}")
        a(f"    ds_write_b128 v13, {vr(PK+4*c,4)} offset:{128*c}")
    tail_out(16)
    a(f"    s_cmp_lg_u32 s33, 0\n    s_cbranch_scc1 {L}_nr1")
    reg_issue()
    a(f"{L}_nr1:")
    stamp(a, 2)
    ACC = 80; F0 = 112; F1 = 176
    a(f"""    v_lshlrev_b32 v40, 4, v2         ; lane*16
    v_add_u32 v4, s64, v40
    v_mov_b32 v60, 0
    v_mov_b32 v61, 0
    v_mov_b32 v62, 0
    v_mov_b32 v63, 0
    s_mov_b64 exec, 0x3fffffff
    ds_write_b128 v4, v[60:63] offset:{RO + 4096}
    s_mov_b64 exec, -1
    v_and_b32 v5, 15, v2             ; b / a
    v_lshrrev_b32 v6, 4, v2          ; kg
    v_add_u32 v7, 1, v5
    v_and_b32 v8, 3, v7
    v_mul_u32_u24 v8, {CS}, v8
    v_and_b32 v7, 28, v7
    v_lshl_add_u32 v8, v7, 1, v8
    v_lshl_add_u32 v8, v6, 4, v8
    v_add_u32 v8, s64, v8            ; vAT
    v_lshlrev_b32 v9, 5, v5
    v_lshl_add_u32 v41, v6, 3, v9    ; 32a + 8g
    v_sub_u32 v9, {RO + 480}, v9
    v_lshl_add_u32 v9, v6, 4, v9
    v_add_u32 v9, s64, v9            ; vBT
    s_lshl_b32 s26, s63, 12
    s_add_u32 m0, s64, {RO}""")
    for i in range(0, 32, 2): a(f"    v_mov_b64 {vr(ACC+i,2)}, 0")
    a(f"    s_waitcnt vmcnt(0)\n    s_cmp_lg_u32 s33, 0\n    s_cbranch_scc1 {L}_nr2")
    reg_check("a")
    a(f"""    s_add_u32 s65, s65, 1
    v_mov_b32 v38, s65
    ds_write_b32 v10, v38 offset:28
{L}_nr2:""")
    stamp(a, 3)
    count_in(0, "a")
    a(f"    s_cbranch_scc0 {L}_w1")
    signal_poll(KVF_OFF, "a")
    a(f"""    ds_write_b32 v10, v11 offset:4
    s_branch {L}_g1
{L}_w1:""")
    spin(4, 1, "a")
    a(f"{L}_g1:")
    stamp(a, 4)
    for i in range(4): a(f"    buffer_load_dwordx4 v40, s[36:39], s26 offen offset:{1024*i} {opt.ldf} lds")
    spin(8, 4, "b")
    a("    s_waitcnt vmcnt(0)")
    stamp(a, 5)
    def reads(F, woff):
        r = []
        for u in range(8):
            r.append(f"    ds_read_b128 {vr(F+32+4*u,4)}, v9 offset:{3584 - 512*u + woff}")
            r.append(f"    ds_read_b64 {vr(F+4*u,2)}, v8 offset:{512*u + woff}")
            r.append(f"    ds_read_b64 {vr(F+4*u+2,2)}, v8 offset:{512*u + 8 + woff}")
        return r
    def mf(F):
        return [f"    v_mfma_f32_16x16x32_bf16 {vr(ACC+4*(u+v),4)}, {vr(F+4*u,4)}, {vr(F+32+4*v,4)}, {vr(ACC+4*(u+v),4)}" for u in range(8) for v in range(8 - u)]
    def weave(m, f):
        i = 0
        for x in m:
            a(x)
            if i < len(f): a(f[i]); i += 1
        assert i == len(f)
    for l in reads(F0, 0): a(l)
    a(f"    s_mov_b32 s35, 0\n{L}_loop:\n    s_waitcnt lgkmcnt(0)")
    weave(mf(F0), reads(F1, 64) + ["    ds_read_b32 v35, v10 offset:20", "    v_add_u32 v8, 128, v8", "    v_add_u32 v9, 128, v9", "    s_add_u32 s35, s35, 1", "    s_cmp_eq_u32 s35, 4"])
    a(f"    s_waitcnt lgkmcnt(0)\n    s_cbranch_scc1 {L}_last")
    weave(mf(F1), reads(F0, 0))
    a(f"""    s_branch {L}_loop
{L}_again:
    s_sleep 1
    ds_read_b32 v35, v10 offset:20
    s_waitcnt lgkmcnt(0)
{L}_last:
    v_readfirstlane_b32 s35, v35
    s_cmp_eq_u32 s35, 4
    s_cbranch_scc0 {L}_again""")
    KV = F0; MT = F0 + 16; RTB = 44; XR_ = 16
    pre = [f"""    v_sub_u32 v32, {RO + 504}, v41
    v_add_u32 v32, s64, v32""",
           f"""    v_lshlrev_b32 v33, 1, v41
    v_add_u32 v33, {STG}, v33""",
           f"""    s_lshl_b32 s35, s34, 12
    s_add_u32 s35, s35, {XS}""", "    v_add_u32 v34, s35, v41"]
    for n in range(8):
        pre += [f"    ds_read_b64 {vr(KV+2*n,2)}, v32 offset:{512*(7-n)}", f"    ds_read_b64 {vr(XR_+2*n,2)}, v34 offset:{512*n}",
                f"    ds_read_b128 {vr(MT+4*n,4)}, v33 offset:{1024*n}", f"    ds_read_b128 {vr(RTB+4*n,4)}, v33 offset:{8192 + 1024*n}"]
    weave(mf(F1), pre)
    a(f"""    s_lshl_b32 s35, s29, 16
    s_and_b32 s27, s29, 0xffff0000
    s_bitcmp1_b32 s63, 0
    s_cselect_b32 s35, s27, s35          ; D as f32
    s_and_b32 s27, s63, 3
    s_bfe_u32 s28, s63, 0x10003
    s_lshl_b32 s28, s28, 2
    s_or_b32 s27, s27, s28               ; g(d)
    v_and_b32 v11, 7, v5
    v_xor_b32 v11, s27, v11
    v_lshlrev_b32 v11, 5, v11
    v_lshrrev_b32 v12, 3, v5
    v_lshl_add_u32 v11, v12, 18, v11
    v_and_b32 v12, 1, v6
    v_lshl_add_u32 v11, v12, 19, v11
    v_lshrrev_b32 v12, 1, v6
    v_lshl_add_u32 v11, v12, 4, v11
    s_lshl_b32 s34, s63, 8
    s_add_u32 s34, s34, {HT_OFF:#x}""")
    stamp(a, 6)
    OUT = 224
    for n in range(8):
        c = ACC + 4 * n; k = KV + 2 * n; x = XR_ + 2 * n; o = OUT + 2 * n
        lg = 4 * (7 - n)
        if lg <= 12: a(f"    s_waitcnt lgkmcnt({lg})")
        elif n == 0: a("    s_waitcnt lgkmcnt(15)")
        a(f"""    v_and_b32 v12, 0xffff0000, v{k+1}
    v_lshlrev_b32 v13, 16, v{k+1}
    v_and_b32 v14, 0xffff0000, v{k}
    v_lshlrev_b32 v15, 16, v{k}
    v_fmac_f32 v{c}, s35, v12
    v_fmac_f32 v{c+1}, s35, v13
    v_fmac_f32 v{c+2}, s35, v14
    v_fmac_f32 v{c+3}, s35, v15
    v_lshlrev_b32 v12, 16, v{x}
    v_and_b32 v13, 0xffff0000, v{x}
    v_lshlrev_b32 v14, 16, v{x+1}
    v_and_b32 v15, 0xffff0000, v{x+1}
    v_pk_mul_f32 {vr(c,2)}, {vr(c,2)}, {vr(RTB+4*n,2)}
    v_pk_mul_f32 {vr(c+2,2)}, {vr(c+2,2)}, {vr(RTB+4*n+2,2)}
    v_pk_add_f32 {vr(MT+4*n,2)}, v[12:13], {vr(MT+4*n,2)} neg_lo:[0,1] neg_hi:[0,1]
    v_pk_add_f32 {vr(MT+4*n+2,2)}, v[14:15], {vr(MT+4*n+2,2)} neg_lo:[0,1] neg_hi:[0,1]
    v_pk_fma_f32 v[12:13], {vr(MT+4*n,2)}, {vr(c,2)}, v[12:13]
    v_pk_fma_f32 v[14:15], {vr(MT+4*n+2,2)}, {vr(c+2,2)}, v[14:15]
    v_cvt_pk_bf16_f32 v{o}, v12, v13
    v_cvt_pk_bf16_f32 v{o+1}, v14, v15""")
        if n & 1:
            a(f"""    s_nop 0
    v_permlane16_swap_b32 v{o-2}, v{o}
    v_permlane16_swap_b32 v{o-1}, v{o+1}
    buffer_store_dwordx4 {vr(o-2,4)}, v11, s[36:39], s34 offen {opt.htf}
    s_add_u32 s34, s34, 0x100000""")
    stamp(a, 7)
    a(f"    s_branch {L}_done")
    FD = 16; TO = 52; XT_ = 80; XR = 96; XF = 112; PKX = 144
    a(f"""{L}_help:
    v_lshlrev_b32 v6, 4, v2          ; lane*16
    s_lshl_b32 s27, s25, 6
    s_lshl_b32 s28, s24, 3
    s_add_u32 s27, s27, s28
    s_lshl_b32 s28, s34, 1
    s_add_u32 s27, s27, s28
    s_lshl_b32 s28, s27, 11
    s_waitcnt lgkmcnt(0)""")
    srd(a, 16, 42, MB4); srd(a, 36, 58, 64 << 20)
    for i in range(4): a(f"    buffer_load_dwordx4 {vr(XR+4*i,4)}, v6, s[16:19], s28 offen offset:{1024*i}")
    srd(a, 12, 10, MB4)
    a(f"""    v_lshrrev_b32 v5, 4, v2
    v_lshlrev_b32 v5, 11, v5
    v_and_b32 v7, 15, v2
    v_lshl_add_u32 v5, v7, 4, v5
    s_lshl_b32 s30, s34, 15
    s_add_u32 s26, s26, s30
    v_add_u32 v5, s26, v5
    s_movk_i32 s44, 8192
    s_movk_i32 s45, 16384
    s_movk_i32 s46, 24576
    s_lshl_b32 s26, s63, 12
    s_load_dwordx2 s[10:11], s[0:1], {ARG['w1']}
    s_lshl_b32 s49, s34, 12
    s_add_u32 s49, s49, {XS}
    s_mov_b32 s70, 0x05040100
    s_mov_b32 s71, 0x07060302
    s_mov_b32 s51, 0x3a800000
    s_mov_b32 s50, 0x3727c5ac
    s_lshl_b32 s27, s27, 2
    s_add_u32 s72, s27, {ST1_OFF:#x}
    s_add_u32 s73, s72, 8192
    v_add_u32 v7, s64, v6
    v_mov_b32 v60, 0
    v_mov_b32 v61, 0
    v_mov_b32 v62, 0
    v_mov_b32 v63, 0
    v_mul_u32_u24 v39, {2*IS}, v4
    v_lshl_add_u32 v39, v3, 3, v39
    s_lshl_b32 s27, s34, 6
    s_add_u32 s27, s27, {STG}
    v_add_u32 v39, s27, v39""")
    a("    s_waitcnt lgkmcnt(0)\n    s_barrier")
    stamp(a, 0)
    if opt.tlb2:
        G = opt.tlb2
        a(f"""    s_cmp_lg_u32 s25, 1
    s_cbranch_scc1 {L}_notlb
    s_load_dwordx2 s[74:75], s[0:1], {ARG['w2']}
    s_load_dwordx2 s[76:77], s[0:1], {ARG['out']}
    s_waitcnt lgkmcnt(0)""")
        regs = [("s[10:11]", 1024 * 7168), ("s[74:75]", 3584 * 2048), ("s[76:77]", MB4), ("s[58:59]", 0x2900000)]
        lst = [(r, o) for r, n in regs for o in range(0, n, G)]
        for w in range(4):
            a(f"    s_cmp_lg_u32 s34, {w}\n    s_cbranch_scc1 {L}_tl{w}")
            for j, (r, o) in enumerate(lst[w::4]):
                a(f"    s_mov_b32 s78, {o:#x}\n    s_load_dword s79, {r}, s78")
                if j % 14 == 13: a("    s_waitcnt lgkmcnt(0)")
            a(f"{L}_tl{w}:")
        a(f"{L}_notlb:")
    S = [180, 181]; T = [182, 183]; M = [184, 186]; PS = [188, 190]
    a(f"    s_waitcnt vmcnt({opt.early2 - 1})\n    s_add_u32 m0, s64, 32\n    s_nop 0")
    for i in range(4): a(f"    buffer_load_dwordx4 v6, s[12:15], s26 offen offset:{1024*i} nt lds")
    def xtile():
        a(f"    s_mul_i32 s35, s34, {4*IS}")
        for j in range(4): a(f"    s_add_u32 m0, s35, {STG + j*IS}\n    s_nop 0\n    buffer_load_dwordx4 v5, s[16:19], {so[j]} offen lds")
    if opt.xearly: xtile()
    a(f"    s_waitcnt vmcnt({8 if opt.xearly else 4})")
    stamp(a, 1)
    for rho in range(2):
        for i in range(8): unpack(a, XF + 16 * rho + 2 * i, XR + 8 * rho + i)
    src = lambda rho, i: XF + 16 * rho + 2 * i
    for rho in range(2): a(f"    v_pk_add_f32 {vr(PS[rho],2)}, {vr(src(rho,0),2)}, {vr(src(rho,1),2)}")
    for i in range(2, 8):
        for rho in range(2): a(f"    v_pk_add_f32 {vr(PS[rho],2)}, {vr(PS[rho],2)}, {vr(src(rho,i),2)}")
    for rho in range(2): a(f"    v_add_f32 v{S[rho]}, v{PS[rho]}, v{PS[rho]+1}")
    wave_sum(a, S, T)
    for rho in range(2): a(f"    v_mul_f32 v{M[rho]}, s51, v{S[rho]}")
    for i in range(8):
        for rho in range(2):
            a(f"    v_pk_add_f32 {vr(src(rho,i),2)}, {vr(src(rho,i),2)}, {vr(M[rho],2)} op_sel_hi:[1,0] neg_lo:[0,1] neg_hi:[0,1]")
    for rho in range(2): a(f"    v_pk_mul_f32 {vr(PS[rho],2)}, {vr(src(rho,0),2)}, {vr(src(rho,0),2)}")
    for i in range(1, 8):
        for rho in range(2): a(f"    v_pk_fma_f32 {vr(PS[rho],2)}, {vr(src(rho,i),2)}, {vr(src(rho,i),2)}, {vr(PS[rho],2)}")
    for rho in range(2): a(f"    v_add_f32 v{S[rho]}, v{PS[rho]}, v{PS[rho]+1}")
    wave_sum(a, S, T)
    for rho in range(2):
        a(f"    v_mov_b32 v{192+rho}, v{M[rho]}"); rnd(a, 192 + rho)
        a(f"    v_mul_f32 v{194+rho}, s51, v{S[rho]}"); rnd(a, 194 + rho); a(f"    v_add_f32 v{194+rho}, s50, v{194+rho}"); rnd(a, 194 + rho)
    a("    v_sqrt_f32 v194, v194\n    v_sqrt_f32 v195, v195\n    s_nop 0")
    for rho in range(2): rnd(a, 194 + rho)
    a(f"""    v_rcp_f32 v194, v194
    v_rcp_f32 v195, v195
    v_mov_b32 v12, 0
    s_mov_b64 exec, 1
    buffer_store_dwordx2 v[192:193], v12, s[36:39], s72 offen sc1
    buffer_store_dwordx2 v[194:195], v12, s[36:39], s73 offen sc1
    s_mov_b64 exec, -1""")
    if not opt.xearly: xtile()
    stamp(a, 2)
    a(f"    v_mov_b32 v10, {WRD}\n    v_mov_b32 v11, 1\n    s_waitcnt vmcnt({6})")
    for i in range(4):
        a(f"    ds_read_b128 {vr(FD+8*i,4)}, v7 offset:{32 + 1024*i}\n    ds_read_b64 {vr(FD+8*i+4,2)}, v7 offset:{48 + 1024*i}")
    for i in range(4):
        D = FD + 8 * i; t = 64 + 12 * (i & 1) + 132
        a(f"    s_waitcnt lgkmcnt({6 - 2*i})" if i == 0 else f"    s_waitcnt lgkmcnt({min(15, 6 - 2*i + 3*i + (8 if i else 0))})")
        for k in range(4): a(f"    v_alignbit_b32 v{t+k}, v{D+k+1}, v{D+k}, 16")
        a(f"    ds_write_b128 v7, {vr(t,4)} offset:{CS + 32 + 1024*i}")
        for k in range(4): a(f"    v_mov_b32 v{t+4+k}, v{D+k+1}")
        a(f"    ds_write_b128 v7, {vr(t+4,4)} offset:{2*CS + 32 + 1024*i}")
        for k in range(4): a(f"    v_alignbit_b32 v{t+8+k}, v{D+k+2}, v{D+k+1}, 16")
        a(f"    ds_write_b128 v7, {vr(t+8,4)} offset:{3*CS + 32 + 1024*i}")
        if i == 0:
            a(f"""    v_mov_b32 v68, 0
    v_mov_b32 v69, 0
    v_mov_b32 v70, 0
    v_lshlrev_b32 v71, 16, v{D}
    v_mov_b32 v72, 0
    v_mov_b32 v73, 0
    v_mov_b32 v74, 0
    v_mov_b32 v75, v{D}
    v_mov_b32 v76, 0
    v_mov_b32 v77, 0
    v_mov_b32 v78, v71
    v_mov_b32 v79, v{t}
    s_mov_b64 exec, 1
    ds_write_b128 v7, v[60:63]
    ds_write_b128 v7, v[60:63] offset:16
    ds_write_b128 v7, v[60:63] offset:{CS}
    ds_write_b128 v7, v[68:71] offset:{CS+16}
    ds_write_b128 v7, v[60:63] offset:{2*CS}
    ds_write_b128 v7, v[72:75] offset:{2*CS+16}
    ds_write_b128 v7, v[60:63] offset:{3*CS}
    ds_write_b128 v7, v[76:79] offset:{3*CS+16}
    s_mov_b64 exec, -1""")
    a(f"""    s_waitcnt lgkmcnt(0)
    s_mov_b64 exec, 1
    ds_add_u32 v10, v11 offset:8
    s_mov_b64 exec, -1
    s_waitcnt vmcnt({0 if opt.xearly else 4})""")
    count_in(36, "s")
    a(f"    s_cbranch_scc0 {L}_nsf")
    spin(44, 1, "c")
    a(f"""    s_lshl_b32 s27, s62, 5
    s_add_u32 s27, s27, {SF_OFF:#x}
    s_mov_b64 exec, 1
    buffer_store_dword v11, v12, s[36:39], s27 offen sc1
    s_mov_b64 exec, -1
    s_waitcnt vmcnt(1)
    s_branch {L}_nsg
{L}_nsf:
    s_waitcnt vmcnt(0)
{L}_nsg:
    s_mov_b64 exec, 1
    ds_add_u32 v10, v11 offset:40
    s_mov_b64 exec, -1""")
    stamp(a, 7)
    spin(40, 4, "t", 12)
    for j in range(8): a(f"    ds_read_b64 {vr(XT_+2*j,2)}, v39 offset:{(j >> 2)*IS + (j & 3)*256}")
    tail_addr(False, XT_OFF, "s49")
    a("    s_waitcnt lgkmcnt(0)")
    for c in range(4):
        for d in range(4):
            a(f"    v_perm_b32 v{PKX+4*c+d}, v{XT_ + 2*(2*d+1) + (c>>1)}, v{XT_ + 2*(2*d) + (c>>1)}, s{70 + (c&1)}")
        a(f"    ds_write_b128 v13, {vr(PKX+4*c,4)} offset:{128*c}")
    tail_out(160)
    stamp(a, 9)
    a("    s_waitcnt vmcnt(0)")
    stamp(a, 10)
    count_in(12, "x")
    a(f"    s_cbranch_scc0 {L}_w2")
    signal_poll(XF_OFF, "x", poll=False)
    if opt.stamps: a("    s_memtime s[74:75]\n    s_waitcnt lgkmcnt(0)\n    s_sub_u32 s74, s74, s80\n    v_mov_b32 v20, s74\n    ds_write_b32 v10, v20 offset:48")
    a(f"""    ds_write_b32 v10, v11 offset:16
    s_mov_b32 m0, s49
    s_add_u32 s26, s26, {XT_OFF:#x}""")
    for i in range(4): a(f"    buffer_load_dwordx4 v6, s[36:39], s26 offen offset:{1024*i} {opt.ldf} lds")
    a(f"""    v_lshlrev_b32 v14, 7, v3
    s_mov_b32 s28, {GF_OFF:#x}
{L}_p3:
    buffer_load_dword v15, v14, s[36:39], s28 offen sc1
    s_waitcnt vmcnt(0)
    v_cmp_eq_u32 vcc, 1, v15
    s_cmp_eq_u64 vcc, -1
    s_cbranch_scc1 {L}_p3e
    s_sleep {opt.xsleep}
    s_branch {L}_p3
{L}_p3e:
    ds_write_b32 v10, v11 offset:24
    s_branch {L}_g2
{L}_w2:""")
    spin(16, 1, "x")
    a(f"    s_mov_b32 m0, s49\n    s_add_u32 s26, s26, {XT_OFF:#x}")
    for i in range(4): a(f"    buffer_load_dwordx4 v6, s[36:39], s26 offen offset:{1024*i} {opt.ldf} lds")
    spin(24, 1, "y")
    a(f"{L}_g2:")
    stamp(a, 4)
    if opt.stamps: a("    ds_read_b32 v20, v10 offset:48\n    s_waitcnt lgkmcnt(0)\n    v_readfirstlane_b32 s74, v20\n    s_nop 1\n    v_writelane_b32 v250, s74, 11")
    a(f"""    s_lshl_b32 s30, s34, 12
    s_add_u32 m0, s30, {STG}
    s_add_u32 s30, s30, {ST1_OFF:#x}""")
    for i in range(4): a(f"    buffer_load_dwordx4 v6, s[36:39], s30 offen offset:{1024*i} sc1 lds")
    a(f"""    s_lshl_b32 s47, s2, 10
    s_lshl_b32 s48, s34, 8
    s_add_u32 s47, s47, s48
    s_add_u32 s47, s47, {PST_OFF:#x}
    v_lshlrev_b32 v14, 2, v2
    v_mov_b32 v15, -1
    buffer_store_dword v15, v14, s[36:39], s47 offen
    s_mul_i32 s47, s2, 560
    s_mul_i32 s48, s34, 140
    s_add_u32 s47, s47, s48
    s_add_u32 s47, s47, {FLG_OFF:#x}
    v_min_u32 v14, 34, v2
    v_lshlrev_b32 v14, 2, v14
    buffer_store_dword v12, v14, s[36:39], s47 offen
    s_and_b32 s25, s2, 15            ; k slice
    s_lshr_b32 s26, s2, 4
    s_mul_i32 s27, s25, {64*7168}
    s_lshl_b32 s28, s26, 9
    s_lshl_b32 s29, s34, 7
    s_add_u32 s28, s28, s29
    s_add_u32 s27, s27, s28
    v_mul_u32_u24 v5, 7168, v4
    v_lshl_add_u32 v5, v3, 4, v5
    s_cmp_ge_u32 s2, 224
    s_cselect_b32 s27, 0x80000000, s27
    s_waitcnt lgkmcnt(0)""")
    srd(a, 12, 10, 1024 * 7168)
    W = 16; WF = 48
    ld = lambda i: a(f"    buffer_load_dwordx4 {vr(W+4*i,4)}, v5, s[12:15], s27 offen\n    s_add_u32 s27, s27, {8*7168}")
    TH = opt.w1th
    for i in range(TH): ld(i)
    a(f"""    s_waitcnt vmcnt({2 + TH})
    s_mov_b64 exec, 1
    ds_add_u32 v10, v11 offset:20
    s_mov_b64 exec, -1""")
    stamp(a, 5)
    a(f"    s_cmp_ge_u32 s2, 224\n    s_cbranch_scc1 {L}_code")
    for i in range(8):
        a(f"    s_waitcnt vmcnt({min(TH, 8 - i) - 1})")
        if i + TH < 8: ld(i + TH)
        if i == 0:
            for d in range(4): unpack(a, WF + 2 * d, W + d)
        else:
            for d in range(4):
                unpack(a, WF + 8 + 2 * (d & 1), W + 4 * i + d)
                a(f"    v_pk_add_f32 {vr(WF+2*d,2)}, {vr(WF+2*d,2)}, {vr(WF + 8 + 2*(d&1),2)}")
    if opt.c_pf2:
        a(f"    s_load_dwordx2 s[42:43], s[0:1], {ARG['w2']}\n    s_mul_i32 s30, s2, 32768\n    s_lshl_b32 s31, s34, 13\n    s_add_u32 s30, s30, s31\n    v_lshlrev_b32 v7, 7, v2\n    s_waitcnt lgkmcnt(0)")
        srd(a, 20, 42, 3584 * 2048)
        a("    buffer_load_dword v8, v7, s[20:23], s30 offen")
    for d in range(8): a(f"    v_add_f32_dpp v{WF+d}, v{WF+d}, v{WF+d} row_ror:8 row_mask:0xf bank_mask:0xf")
    for sw in ("v_permlane16_swap_b32", "v_permlane32_swap_b32"):
        for d in range(8): a(f"    v_mov_b32 v{WF+8+d}, v{WF+d}")
        for d in range(8): a(f"    {sw} v{WF+8+d}, v{WF+d}")
        for d in range(8): a(f"    v_add_f32 v{WF+d}, v{WF+d}, v{WF+8+d}")
    a(f"""    s_mul_i32 s27, s25, {3584*4}
    s_lshl_b32 s28, s28, 1
    s_add_u32 s27, s27, s28
    s_add_u32 s27, s27, {CS_OFF:#x}
    v_lshlrev_b32 v4, 5, v3
    s_mov_b64 exec, 0xff
    buffer_store_dwordx4 {vr(WF,4)}, v4, s[36:39], s27 offen
    buffer_store_dwordx4 {vr(WF+4,4)}, v4, s[36:39], s27 offen offset:16
    s_mov_b64 exec, -1
    s_branch {L}_done
{L}_code:""")
    if opt.codepf:
        a(f"""    s_cmp_ge_u32 s2, 232
    s_cbranch_scc1 {L}_done
    s_getpc_b64 s[66:67]
{L}_pc:
    v_and_b32 v13, 255, v0
    v_lshlrev_b32 v13, 7, v13
    v_min_u32 v13, TEXT_END - {L}_pc - 4, v13
    global_load_dword v62, v13, s[66:67]""")
    a(f"{L}_done:")
    if opt.stamps: a("    s_waitcnt vmcnt(0)")
    stamp(a, 8)
    stamp_end(a, kidx, 58, 33)
    a(f"{L}_end:\n    s_endpgm")
    return (name, 256, 512, WRD + 64), (name, 256 if opt.stamps else 240, 96)

opt.htf = ""
gen.KGEN["pc"] = gen_pc
```

```python
import sys
from asmlib import *
import gen, gen2, gen3
from gen import opt, stamp, stamp_begin, stamp_end, vr, wave_sum, MB4, KVR_OFF, FLG_OFF
from gen3 import XT_OFF, HT_OFF, ST1_OFF, CS_OFF, PST_OFF, unpack, rnd

KVF_OFF = 0x0CC0000
XF_OFF = KVF_OFF + 4
SF_OFF = KVF_OFF + 0x9000
GF_OFF = KVF_OFF + 0x8000
opt.kvprio = 0
opt.xearly = False
opt.tlb3 = 0
opt.tlb2 = 0
opt.flagl = True
opt.kvf = 'sc1'
opt.ldf = 'sc1'
opt.early2 = 1
opt.gate = 4
opt.xsleep = 4
opt.w1th = 4

def gen_pc(a, kidx):
    name = "f_kernel"; L = "F"
    CS = 4160; RO = 4 * CS; WSZ = 21248
    IS = 1056; KT = 4 * WSZ; VT = KT + 17 * IS; XS = KT + 33 * IS + 96; STG = XS + 16384; WRD = STG + 16 * IS
    assert XS % 16 == 0
    kernel_head(a, name)
    a(f"""    s_cmp_ge_u32 s2, 256
    s_cbranch_scc1 {L}_end
    s_load_dwordx4 s[4:7], s[0:1], {ARG['k']}      ; k, v
    s_load_dwordx4 s[8:11], s[0:1], {ARG['shift']}
    s_load_dwordx4 s[56:59], s[0:1], {ARG['dbg']}
    s_load_dwordx2 s[42:43], s[0:1], {ARG['q']}
    s_load_dwordx2 s[60:61], s[0:1], {ARG['ssmD']}""")
    stamp_begin(a)
    a(f"""    v_lshrrev_b32 v1, 6, v0
    v_and_b32 v2, 63, v0
    s_and_b32 s24, s2, 7
    v_readfirstlane_b32 s33, v1
    s_lshr_b32 s25, s2, 3
    v_and_b32 v3, 7, v2              ; cg
    v_lshrrev_b32 v4, 3, v2          ; rg
    s_and_b32 s34, s33, 3            ; w
    s_lshl_b32 s26, s25, 17
    s_lshl_b32 s27, s24, 8
    s_add_u32 s26, s26, s27
    s_lshl_b32 s62, s24, 7
    s_lshl_b32 s27, s25, 2
    s_add_u32 s62, s62, s27
    s_add_u32 s63, s62, s34
    s_mul_i32 s64, s34, {WSZ}        ; WB
    s_cmp_ge_u32 s33, 4
    s_cbranch_scc1 {L}_help
    s_cmp_lg_u32 s33, 0
    s_cbranch_scc1 {L}_nocl
    v_lshlrev_b32 v16, 4, v2
    v_mov_b32 v12, 0
    v_mov_b32 v13, 0
    v_mov_b32 v14, 0
    v_mov_b32 v15, 0
    s_lshl_b32 s30, s62, 5
    s_lshl_b32 s31, s24, 7
    s_add_u32 s31, s31, 0x8000
    s_cmp_eq_u32 s25, 0
    s_cselect_b32 s31, s31, 0x80000000
    s_mov_b64 exec, 0xff
    s_waitcnt lgkmcnt(0)""")
    srd(a, 36, 58, 0x11000, off=KVF_OFF)
    a(f"""    buffer_store_dwordx4 v[12:15], v16, s[36:39], s30 offen sc1
    s_add_u32 s30, s30, 0x9000
    buffer_store_dwordx4 v[12:15], v16, s[36:39], s31 offen sc1
    buffer_store_dwordx4 v[12:15], v16, s[36:39], s30 offen sc1
    s_mov_b64 exec, -1
{L}_nocl:""")
    so = ["0", "s44", "s45", "s46"]
    def tail_addr(rev, off, ldsb):
        a(f"""    {"v_xor_b32 v13, 7, v4" if rev else "v_mov_b32 v13, v4"}
    v_xor_b32 v13, v13, v3
    v_lshlrev_b32 v13, 4, v13
    v_lshl_add_u32 v13, v3, 9, v13
    v_add_u32 v13, {ldsb}, v13
    v_lshl_add_u32 v14, v2, 4, {ldsb}
    v_lshrrev_b32 v15, 5, v2
    v_xor_b32 v15, v15, v3               ; x0 = (l&7)^(l>>5)
    v_lshlrev_b32 v9, 12, v4             ; (l>>3)*4096
    s_lshl_b32 s47, s24, 19
    s_lshl_b32 s48, s34, 17
    s_add_u32 s47, s47, s48              ; (cb*128+w*32)*4096
    s_lshl_b32 s48, s25, 7""")
        if rev: a(f"    s_sub_u32 s48, {3968 + off}, s48")
        else: a(f"    s_add_u32 s48, s48, {off:#x}")
        a("    s_add_u32 s47, s47, s48")
    def tail_out(R):
        a("    s_waitcnt lgkmcnt(0)")
        for i in range(4): a(f"    ds_read_b128 {vr(R+4*i,4)}, v14 offset:{1024*i}")
        for i in range(4): a(f"    v_xor_b32 v8, {2*i}, v15\n    v_lshl_add_u32 v{R+16+i}, v8, 4, v9")
        for i in range(4):
            a(f"    s_waitcnt lgkmcnt({3-i})\n    buffer_store_dwordx4 {vr(R+4*i,4)}, v{R+16+i}, s[36:39], s47 offen {opt.kvf}\n    s_add_u32 s47, s47, 32768")
    def count_in(word, tag):
        a(f"""    v_mov_b32 v10, {WRD}
    v_mov_b32 v11, 1
    v_mov_b32 v12, 0
    s_mov_b64 exec, 1
    ds_add_rtn_u32 v13, v10, v11 offset:{word}
    s_mov_b64 exec, -1
    s_waitcnt lgkmcnt(0)
    v_readfirstlane_b32 s35, v13
    s_cmp_eq_u32 s35, 3""")
    def spin(word, val, tag, r=13):
        a(f"""{L}_sp{tag}:
    ds_read_b32 v{r}, v10 offset:{word}
    s_waitcnt lgkmcnt(0)
    v_readfirstlane_b32 s35, v{r}
    s_cmp_eq_u32 s35, {val}
    s_cbranch_scc1 {L}_sq{tag}
    s_sleep 1
    s_branch {L}_sp{tag}
{L}_sq{tag}:""")
    def reg_issue():
        a("    buffer_load_dwordx2 v[36:37], v39, s[52:55], 0 offen sc1")
    def reg_check(tag):
        a(f"""    s_getreg_b32 s65, hwreg(HW_REG_XCC_ID)
    s_and_b32 s65, s65, 7
    s_lshl_b32 s65, s65, 3
    s_lshl_b64 s[66:67], 32, s65
{L}_rg{tag}:
    v_sad_u8 v38, v36, 0, 0
    v_sad_u8 v38, v37, 0, v38
    v_cmp_eq_u32 vcc, 32, v38
    s_cmp_eq_u64 vcc, -1
    s_cbranch_scc1 {L}_rk{tag}
    s_sleep 24
    buffer_load_dwordx2 v[36:37], v39, s[52:55], 0 offen sc1
    s_waitcnt vmcnt(0)
    s_branch {L}_rg{tag}
{L}_rk{tag}:
    v_readlane_b32 s68, v36, s24
    v_readlane_b32 s69, v37, s24
    s_cmp_eq_u64 s[68:69], s[66:67]
    s_cselect_b32 s65, 1, 0""")
    def signal_poll(off, tag, poll=True):
        a(f"""{L}_md{tag}:
    ds_read_b32 v13, v10 offset:28
    s_waitcnt lgkmcnt(0)
    v_readfirstlane_b32 s65, v13
    s_cmp_eq_u32 s65, 0
    s_cbranch_scc1 {L}_md{tag}
    s_sub_u32 s65, s65, 1""")
        a(f"""    s_lshl_b32 s27, s62, 5
    s_and_b32 s28, s27, 0xfffff000
    s_add_u32 s27, s27, {off:#x}
    s_add_u32 s28, s28, {off:#x}
    v_and_b32 v14, 31, v2
    v_lshlrev_b32 v14, 7, v14
    s_mov_b64 exec, 1
    s_cmp_eq_u32 s65, {1 if opt.flagl else 7}
    s_cbranch_scc1 {L}_sl{tag}
    {"" if opt.kvf == "sc1" else "buffer_wbl2 sc1"}
    {"" if opt.kvf == "sc1" else "s_waitcnt vmcnt(0)"}
    buffer_store_dword v11, v12, s[36:39], s27 offen sc1
    s_branch {L}_pp{tag}
{L}_sl{tag}:
    buffer_store_dword v11, v12, s[36:39], s27 offen
{L}_pp{tag}:
    s_mov_b64 exec, -1""")
        if not poll:
            a(f"""    s_cmp_lg_u32 s25, 0
    s_cbranch_scc1 {L}_pl{tag}
    s_add_u32 s27, s28, {SF_OFF - XF_OFF:#x}
{L}_sfp:
    buffer_load_dword v15, v14, s[36:39], s27 offen sc1
    s_waitcnt vmcnt(0)
    v_cmp_eq_u32 vcc, 1, v15
    s_cmp_eq_u64 vcc, -1
    s_cbranch_scc0 {L}_sfp
    s_lshl_b32 s27, s24, 7
    s_add_u32 s27, s27, {GF_OFF:#x}
    s_mov_b64 exec, 1
    buffer_store_dword v11, v12, s[36:39], s27 offen sc1
    s_mov_b64 exec, -1""")
        a(f"""{L}_pl{tag}:
    buffer_load_dword v15, v14, s[36:39], s28 offen sc1
    s_waitcnt vmcnt(0)
    v_cmp_eq_u32 vcc, 1, v15
    s_cmp_eq_u64 vcc, -1
    s_cbranch_scc0 {L}_pl{tag}""")
    a(f"""    v_lshrrev_b32 v5, 4, v2
    v_lshlrev_b32 v5, 11, v5
    v_and_b32 v6, 15, v2
    v_lshl_add_u32 v5, v6, 4, v5
    v_add_u32 v5, s26, v5
    v_subrev_u32 v6, 8192, v5
    s_lshl_b32 s27, s34, 15
    v_add_u32 v5, s27, v5
    s_movk_i32 s44, 8192
    s_movk_i32 s45, 16384
    s_movk_i32 s46, 24576
    s_mul_i32 s35, s34, {4*IS}
    s_add_u32 m0, s35, {KT + IS}
    s_waitcnt lgkmcnt(0)""")
    srd(a, 12, 4, MB4); srd(a, 16, 6, MB4)
    for j in range(4):
        a(f"    buffer_load_dwordx4 v5, s[12:15], {so[j]} offen nt lds\n    s_add_u32 m0, s35, {VT + j*IS}\n    s_nop 0")
        a(f"    buffer_load_dwordx4 v5, s[16:19], {so[j]} offen nt lds")
        a(f"    s_add_u32 m0, s35, {KT + (j+2)*IS}\n    s_nop 0" if j < 3 else f"    s_mov_b32 m0, {KT}\n    s_nop 0")
    a("    buffer_load_dwordx4 v6, s[12:15], 0 offen nt lds")
    KR = 208; VR = 40; WR = 56
    srd(a, 20, 8, 8192)
    a(f"""    s_lshl_b32 s27, s24, 10
    s_lshl_b32 s28, s34, 8
    s_add_u32 s27, s27, s28
    v_lshlrev_b32 v8, 5, v3
    buffer_load_dwordx4 {vr(WR,4)}, v8, s[20:23], s27 offen
    buffer_load_dwordx4 {vr(WR+4,4)}, v8, s[20:23], s27 offen offset:16
    s_lshr_b32 s28, s63, 1
    s_lshl_b32 s28, s28, 2
    s_load_dword s29, s[60:61], s28
    v_mul_u32_u24 v7, {2*IS}, v4
    v_lshl_add_u32 v7, v3, 3, v7
    s_lshl_b32 s27, s34, 6
    s_add_u32 s27, s27, {KT}
    v_add_u32 v7, s27, v7
    v_mov_b32 v10, {WRD}
    v_mov_b32 v16, 0
    v_mov_b32 v17, 0
    v_mov_b32 v18, 0
    v_mov_b32 v19, 0
    ds_write_b128 v10, v[16:19]
    ds_write_b128 v10, v[16:19] offset:16
    ds_write_b128 v10, v[16:19] offset:32
    s_add_u32 s49, s64, {RO}""")
    srd(a, 36, 58, 64 << 20); srd(a, 52, 56, 256)
    a("    v_lshlrev_b32 v39, 5, v3")
    tail_addr(True, KVR_OFF, "s49")
    WF = 64; KF = 80; VF = 124; OF = 156; PK = 190
    stamp(a, 0)
    a(f"""    s_waitcnt lgkmcnt(0)
    s_barrier
    s_cmp_lg_u32 s33, 0
    s_cbranch_scc1 {L}_noreg
    s_getreg_b32 s65, hwreg(HW_REG_XCC_ID)
    s_and_b32 s65, s65, 7
    s_lshl_b32 s65, s65, 3
    s_lshl_b64 s[66:67], 1, s65
    v_mov_b32 v16, s66
    v_mov_b32 v17, s67
    v_mov_b32 v12, 0
    s_lshl_b32 s30, s24, 5
    s_mov_b64 exec, 1
    s_waitcnt vmcnt(11)""")
    stamp(a, 9)
    a(f"""    buffer_atomic_add_x2 v[16:17], v12, s[52:55], s30 offen sc1
    v_mov_b32 v11, 1
    ds_write_b32 v10, v11 offset:44
    s_mov_b64 exec, -1
    s_waitcnt vmcnt(1)
    s_branch {L}_kvl
{L}_noreg:
    s_waitcnt vmcnt(0)
{L}_kvl:""")
    a("""    s_nop 0
    v_mov_b32 v11, 1
    s_mov_b64 exec, 1
    ds_add_u32 v10, v11 offset:32
    s_mov_b64 exec, -1""")
    spin(32, 4, "k", 12)
    if opt.kvprio: a(f"    s_setprio {opt.kvprio}")
    stamp(a, 1)
    kro = lambda jj: ((1 + jj) >> 2) * IS + ((1 + jj) & 3) * 256
    order = [("k", 0), ("k", 1), ("k", 2)] + [x for j in range(8) for x in (("k", 3 + j), ("v", j))]
    def rd(x):
        if x[0] == "k": a(f"    ds_read_b64 {vr(KR + 2*x[1], 2)}, v7 offset:{kro(x[1])}")
        else: a(f"    ds_read_b64 {vr(VR + 2*x[1], 2)}, v7 offset:{17*IS + (x[1] >> 2)*IS + (x[1] & 3)*256}")
    for x in order[:13]: rd(x)
    for c in range(4):
        for j in range(4):
            src = WR + 2 * c + (j >> 1); d = WF + (c >> 1) * 8 + j * 2 + (c & 1)
            a(f"    v_lshlrev_b32 v{d}, 16, v{src}" if j % 2 == 0 else f"    v_and_b32 v{d}, 0xffff0000, v{src}")
    def unp2(dst, src):
        for p in range(2): unpack(a, dst + 2 * p, src + p)
    a("    s_waitcnt lgkmcnt(8)")
    for x in order[13:]: rd(x)
    for r in range(3): unp2(KF + 4 * r, KR + 2 * r)
    for j in range(8):
        if j: a(f"    s_waitcnt lgkmcnt({14 - 2*j})")
        unp2(KF + 4 * (3 + j), KR + 6 + 2 * j); unp2(VF + 4 * j, VR + 2 * j)
        for p in range(2):
            o = OF + 4 * j + 2 * p
            k = lambda r: vr(KF + 4 * r + 2 * p, 2)
            w = lambda t: vr(WF + p * 8 + 2 * t, 2)
            a(f"    v_pk_mul_f32 {vr(o,2)}, {k(j)}, {w(3)}")
            a(f"    v_pk_fma_f32 {vr(o,2)}, {k(j+1)}, {w(2)}, {vr(o,2)}")
            a(f"    v_pk_fma_f32 {vr(o,2)}, {k(j+2)}, {w(1)}, {vr(o,2)}")
            a(f"    v_pk_fma_f32 {vr(o,2)}, {k(j+3)}, {w(0)}, {vr(o,2)}")
            a(f"    v_pk_mul_f32 {vr(o,2)}, {vr(o,2)}, {vr(VF + 4*j + 2*p, 2)}")
    for c in range(4):
        for d in range(4):
            a(f"    v_cvt_pk_bf16_f32 v{PK+4*c+d}, v{OF + 4*(7-2*d) + c}, v{OF + 4*(6-2*d) + c}")
        a(f"    ds_write_b128 v13, {vr(PK+4*c,4)} offset:{128*c}")
    tail_out(16)
    a(f"    s_cmp_lg_u32 s33, 0\n    s_cbranch_scc1 {L}_nr1")
    reg_issue()
    a(f"{L}_nr1:")
    stamp(a, 2)
    ACC = 80; F0 = 112; F1 = 176
    a(f"""    v_lshlrev_b32 v40, 4, v2         ; lane*16
    v_add_u32 v4, s64, v40
    v_mov_b32 v60, 0
    v_mov_b32 v61, 0
    v_mov_b32 v62, 0
    v_mov_b32 v63, 0
    s_mov_b64 exec, 0x3fffffff
    ds_write_b128 v4, v[60:63] offset:{RO + 4096}
    s_mov_b64 exec, -1
    v_and_b32 v5, 15, v2             ; b / a
    v_lshrrev_b32 v6, 4, v2          ; kg
    v_add_u32 v7, 1, v5
    v_and_b32 v8, 3, v7
    v_mul_u32_u24 v8, {CS}, v8
    v_and_b32 v7, 28, v7
    v_lshl_add_u32 v8, v7, 1, v8
    v_lshl_add_u32 v8, v6, 4, v8
    v_add_u32 v8, s64, v8            ; vAT
    v_lshlrev_b32 v9, 5, v5
    v_lshl_add_u32 v41, v6, 3, v9    ; 32a + 8g
    v_sub_u32 v9, {RO + 480}, v9
    v_lshl_add_u32 v9, v6, 4, v9
    v_add_u32 v9, s64, v9            ; vBT
    s_lshl_b32 s26, s63, 12
    s_add_u32 m0, s64, {RO}""")
    for i in range(0, 32, 2): a(f"    v_mov_b64 {vr(ACC+i,2)}, 0")
    a(f"    s_waitcnt vmcnt(0)\n    s_cmp_lg_u32 s33, 0\n    s_cbranch_scc1 {L}_nr2")
    reg_check("a")
    a(f"""    s_add_u32 s65, s65, 1
    v_mov_b32 v38, s65
    ds_write_b32 v10, v38 offset:28
{L}_nr2:""")
    stamp(a, 3)
    count_in(0, "a")
    a(f"    s_cbranch_scc0 {L}_w1")
    signal_poll(KVF_OFF, "a")
    a(f"""    ds_write_b32 v10, v11 offset:4
    s_branch {L}_g1
{L}_w1:""")
    spin(4, 1, "a")
    a(f"{L}_g1:")
    stamp(a, 4)
    for i in range(4): a(f"    buffer_load_dwordx4 v40, s[36:39], s26 offen offset:{1024*i} {opt.ldf} lds")
    spin(8, 4, "b")
    a("    s_waitcnt vmcnt(0)")
    stamp(a, 5)
    def reads(F, woff):
        r = []
        for u in range(8):
            r.append(f"    ds_read_b128 {vr(F+32+4*u,4)}, v9 offset:{3584 - 512*u + woff}")
            r.append(f"    ds_read_b64 {vr(F+4*u,2)}, v8 offset:{512*u + woff}")
            r.append(f"    ds_read_b64 {vr(F+4*u+2,2)}, v8 offset:{512*u + 8 + woff}")
        return r
    def mf(F):
        return [f"    v_mfma_f32_16x16x32_bf16 {vr(ACC+4*(u+v),4)}, {vr(F+4*u,4)}, {vr(F+32+4*v,4)}, {vr(ACC+4*(u+v),4)}" for u in range(8) for v in range(8 - u)]
    def weave(m, f):
        i = 0
        for x in m:
            a(x)
            if i < len(f): a(f[i]); i += 1
        assert i == len(f)
    for l in reads(F0, 0): a(l)
    a(f"    s_mov_b32 s35, 0\n{L}_loop:\n    s_waitcnt lgkmcnt(0)")
    weave(mf(F0), reads(F1, 64) + ["    ds_read_b32 v35, v10 offset:20", "    v_add_u32 v8, 128, v8", "    v_add_u32 v9, 128, v9", "    s_add_u32 s35, s35, 1", "    s_cmp_eq_u32 s35, 4"])
    a(f"    s_waitcnt lgkmcnt(0)\n    s_cbranch_scc1 {L}_last")
    weave(mf(F1), reads(F0, 0))
    a(f"""    s_branch {L}_loop
{L}_again:
    s_sleep 1
    ds_read_b32 v35, v10 offset:20
    s_waitcnt lgkmcnt(0)
{L}_last:
    v_readfirstlane_b32 s35, v35
    s_cmp_eq_u32 s35, 4
    s_cbranch_scc0 {L}_again""")
    KV = F0; MT = F0 + 16; RTB = 44; XR_ = 16
    pre = [f"""    v_sub_u32 v32, {RO + 504}, v41
    v_add_u32 v32, s64, v32""",
           f"""    v_lshlrev_b32 v33, 1, v41
    v_add_u32 v33, {STG}, v33""",
           f"""    s_lshl_b32 s35, s34, 12
    s_add_u32 s35, s35, {XS}""", "    v_add_u32 v34, s35, v41"]
    for n in range(8):
        pre += [f"    ds_read_b64 {vr(KV+2*n,2)}, v32 offset:{512*(7-n)}", f"    ds_read_b64 {vr(XR_+2*n,2)}, v34 offset:{512*n}",
                f"    ds_read_b128 {vr(MT+4*n,4)}, v33 offset:{1024*n}", f"    ds_read_b128 {vr(RTB+4*n,4)}, v33 offset:{8192 + 1024*n}"]
    weave(mf(F1), pre)
    a(f"""    s_lshl_b32 s35, s29, 16
    s_and_b32 s27, s29, 0xffff0000
    s_bitcmp1_b32 s63, 0
    s_cselect_b32 s35, s27, s35          ; D as f32
    s_and_b32 s27, s63, 3
    s_bfe_u32 s28, s63, 0x10003
    s_lshl_b32 s28, s28, 2
    s_or_b32 s27, s27, s28               ; g(d)
    v_and_b32 v11, 7, v5
    v_xor_b32 v11, s27, v11
    v_lshlrev_b32 v11, 5, v11
    v_lshrrev_b32 v12, 3, v5
    v_lshl_add_u32 v11, v12, 18, v11
    v_and_b32 v12, 1, v6
    v_lshl_add_u32 v11, v12, 19, v11
    v_lshrrev_b32 v12, 1, v6
    v_lshl_add_u32 v11, v12, 4, v11
    s_lshl_b32 s34, s63, 8
    s_add_u32 s34, s34, {HT_OFF:#x}""")
    stamp(a, 6)
    OUT = 224
    for n in range(8):
        c = ACC + 4 * n; k = KV + 2 * n; x = XR_ + 2 * n; o = OUT + 2 * n
        lg = 4 * (7 - n)
        if lg <= 12: a(f"    s_waitcnt lgkmcnt({lg})")
        elif n == 0: a("    s_waitcnt lgkmcnt(15)")
        a(f"""    v_and_b32 v12, 0xffff0000, v{k+1}
    v_lshlrev_b32 v13, 16, v{k+1}
    v_and_b32 v14, 0xffff0000, v{k}
    v_lshlrev_b32 v15, 16, v{k}
    v_fmac_f32 v{c}, s35, v12
    v_fmac_f32 v{c+1}, s35, v13
    v_fmac_f32 v{c+2}, s35, v14
    v_fmac_f32 v{c+3}, s35, v15
    v_lshlrev_b32 v12, 16, v{x}
    v_and_b32 v13, 0xffff0000, v{x}
    v_lshlrev_b32 v14, 16, v{x+1}
    v_and_b32 v15, 0xffff0000, v{x+1}
    v_pk_mul_f32 {vr(c,2)}, {vr(c,2)}, {vr(RTB+4*n,2)}
    v_pk_mul_f32 {vr(c+2,2)}, {vr(c+2,2)}, {vr(RTB+4*n+2,2)}
    v_pk_add_f32 {vr(MT+4*n,2)}, v[12:13], {vr(MT+4*n,2)} neg_lo:[0,1] neg_hi:[0,1]
    v_pk_add_f32 {vr(MT+4*n+2,2)}, v[14:15], {vr(MT+4*n+2,2)} neg_lo:[0,1] neg_hi:[0,1]
    v_pk_fma_f32 v[12:13], {vr(MT+4*n,2)}, {vr(c,2)}, v[12:13]
    v_pk_fma_f32 v[14:15], {vr(MT+4*n+2,2)}, {vr(c+2,2)}, v[14:15]
    v_cvt_pk_bf16_f32 v{o}, v12, v13
    v_cvt_pk_bf16_f32 v{o+1}, v14, v15""")
        if n & 1:
            a(f"""    s_nop 0
    v_permlane16_swap_b32 v{o-2}, v{o}
    v_permlane16_swap_b32 v{o-1}, v{o+1}
    buffer_store_dwordx4 {vr(o-2,4)}, v11, s[36:39], s34 offen {opt.htf}
    s_add_u32 s34, s34, 0x100000""")
    stamp(a, 7)
    a(f"    s_branch {L}_done")
    FD = 16; TO = 52; XT_ = 80; XR = 96; XF = 112; PKX = 144
    a(f"""{L}_help:
    v_lshlrev_b32 v6, 4, v2          ; lane*16
    s_lshl_b32 s27, s25, 6
    s_lshl_b32 s28, s24, 3
    s_add_u32 s27, s27, s28
    s_lshl_b32 s28, s34, 1
    s_add_u32 s27, s27, s28
    s_lshl_b32 s28, s27, 11
    s_waitcnt lgkmcnt(0)""")
    srd(a, 16, 42, MB4); srd(a, 36, 58, 64 << 20)
    for i in range(4): a(f"    buffer_load_dwordx4 {vr(XR+4*i,4)}, v6, s[16:19], s28 offen offset:{1024*i}")
    srd(a, 12, 10, MB4)
    a(f"""    v_lshrrev_b32 v5, 4, v2
    v_lshlrev_b32 v5, 11, v5
    v_and_b32 v7, 15, v2
    v_lshl_add_u32 v5, v7, 4, v5
    s_lshl_b32 s30, s34, 15
    s_add_u32 s26, s26, s30
    v_add_u32 v5, s26, v5
    s_movk_i32 s44, 8192
    s_movk_i32 s45, 16384
    s_movk_i32 s46, 24576
    s_lshl_b32 s26, s63, 12
    s_load_dwordx2 s[10:11], s[0:1], {ARG['w1']}
    s_lshl_b32 s49, s34, 12
    s_add_u32 s49, s49, {XS}
    s_mov_b32 s70, 0x05040100
    s_mov_b32 s71, 0x07060302
    s_mov_b32 s51, 0x3a800000
    s_mov_b32 s50, 0x3727c5ac
    s_lshl_b32 s27, s27, 2
    s_add_u32 s72, s27, {ST1_OFF:#x}
    s_add_u32 s73, s72, 8192
    v_add_u32 v7, s64, v6
    v_mov_b32 v60, 0
    v_mov_b32 v61, 0
    v_mov_b32 v62, 0
    v_mov_b32 v63, 0
    v_mul_u32_u24 v39, {2*IS}, v4
    v_lshl_add_u32 v39, v3, 3, v39
    s_lshl_b32 s27, s34, 6
    s_add_u32 s27, s27, {STG}
    v_add_u32 v39, s27, v39""")
    a("    s_waitcnt lgkmcnt(0)\n    s_barrier")
    stamp(a, 0)
    if opt.tlb3:
        sh = opt.tlb3
        a(f"""    s_load_dwordx2 s[74:75], s[0:1], {ARG['w2']}
    s_load_dwordx2 s[76:77], s[0:1], {ARG['out']}
    s_lshl_b32 s78, s25, 2
    s_add_u32 s78, s78, s34
    s_lshl_b32 s78, s78, {sh}
    s_waitcnt lgkmcnt(0)""")
        for r, n in (("s[10:11]", 1024 * 7168), ("s[74:75]", 3584 * 2048), ("s[76:77]", MB4), ("s[58:59]", 0x2900000)):
            for j in range((n + (128 << sh) - 1) // (128 << sh)):
                a(f"    s_add_u32 s30, s78, {j * (128 << sh):#x}\n    s_min_u32 s30, s30, {n - 4:#x}\n    s_load_dword s79, {r}, s30")
    if opt.tlb2:
        G = opt.tlb2
        a(f"""    s_cmp_lg_u32 s25, 1
    s_cbranch_scc1 {L}_notlb
    s_load_dwordx2 s[74:75], s[0:1], {ARG['w2']}
    s_load_dwordx2 s[76:77], s[0:1], {ARG['out']}
    s_waitcnt lgkmcnt(0)""")
        regs = [("s[10:11]", 1024 * 7168), ("s[74:75]", 3584 * 2048), ("s[76:77]", MB4), ("s[58:59]", 0x2900000)]
        lst = [(r, o) for r, n in regs for o in range(0, n, G)]
        for w in range(4):
            a(f"    s_cmp_lg_u32 s34, {w}\n    s_cbranch_scc1 {L}_tl{w}")
            for j, (r, o) in enumerate(lst[w::4]):
                a(f"    s_mov_b32 s78, {o:#x}\n    s_load_dword s79, {r}, s78")
                if j % 14 == 13: a("    s_waitcnt lgkmcnt(0)")
            a(f"{L}_tl{w}:")
        a(f"{L}_notlb:")
    S = [180, 181]; T = [182, 183]; M = [184, 186]; PS = [188, 190]
    a(f"    s_waitcnt vmcnt({opt.early2 - 1})\n    s_add_u32 m0, s64, 32\n    s_nop 0")
    for i in range(4): a(f"    buffer_load_dwordx4 v6, s[12:15], s26 offen offset:{1024*i} nt lds")
    def xtile():
        a(f"    s_mul_i32 s35, s34, {4*IS}")
        for j in range(4): a(f"    s_add_u32 m0, s35, {STG + j*IS}\n    s_nop 0\n    buffer_load_dwordx4 v5, s[16:19], {so[j]} offen lds")
    if opt.xearly: xtile()
    a(f"    s_waitcnt vmcnt({8 if opt.xearly else 4})")
    stamp(a, 1)
    for rho in range(2):
        for i in range(8): unpack(a, XF + 16 * rho + 2 * i, XR + 8 * rho + i)
    src = lambda rho, i: XF + 16 * rho + 2 * i
    for rho in range(2): a(f"    v_pk_add_f32 {vr(PS[rho],2)}, {vr(src(rho,0),2)}, {vr(src(rho,1),2)}")
    for i in range(2, 8):
        for rho in range(2): a(f"    v_pk_add_f32 {vr(PS[rho],2)}, {vr(PS[rho],2)}, {vr(src(rho,i),2)}")
    for rho in range(2): a(f"    v_add_f32 v{S[rho]}, v{PS[rho]}, v{PS[rho]+1}")
    wave_sum(a, S, T)
    for rho in range(2): a(f"    v_mul_f32 v{M[rho]}, s51, v{S[rho]}")
    for i in range(8):
        for rho in range(2):
            a(f"    v_pk_add_f32 {vr(src(rho,i),2)}, {vr(src(rho,i),2)}, {vr(M[rho],2)} op_sel_hi:[1,0] neg_lo:[0,1] neg_hi:[0,1]")
    for rho in range(2): a(f"    v_pk_mul_f32 {vr(PS[rho],2)}, {vr(src(rho,0),2)}, {vr(src(rho,0),2)}")
    for i in range(1, 8):
        for rho in range(2): a(f"    v_pk_fma_f32 {vr(PS[rho],2)}, {vr(src(rho,i),2)}, {vr(src(rho,i),2)}, {vr(PS[rho],2)}")
    for rho in range(2): a(f"    v_add_f32 v{S[rho]}, v{PS[rho]}, v{PS[rho]+1}")
    wave_sum(a, S, T)
    for rho in range(2):
        a(f"    v_mov_b32 v{192+rho}, v{M[rho]}"); rnd(a, 192 + rho)
        a(f"    v_mul_f32 v{194+rho}, s51, v{S[rho]}"); rnd(a, 194 + rho); a(f"    v_add_f32 v{194+rho}, s50, v{194+rho}"); rnd(a, 194 + rho)
    a("    v_sqrt_f32 v194, v194\n    v_sqrt_f32 v195, v195\n    s_nop 0")
    for rho in range(2): rnd(a, 194 + rho)
    a(f"""    v_rcp_f32 v194, v194
    v_rcp_f32 v195, v195
    v_mov_b32 v12, 0
    s_mov_b64 exec, 1
    buffer_store_dwordx2 v[192:193], v12, s[36:39], s72 offen sc1
    buffer_store_dwordx2 v[194:195], v12, s[36:39], s73 offen sc1
    s_mov_b64 exec, -1""")
    if not opt.xearly: xtile()
    stamp(a, 2)
    a(f"    v_mov_b32 v10, {WRD}\n    v_mov_b32 v11, 1\n    s_waitcnt vmcnt({6})")
    for i in range(4):
        a(f"    ds_read_b128 {vr(FD+8*i,4)}, v7 offset:{32 + 1024*i}\n    ds_read_b64 {vr(FD+8*i+4,2)}, v7 offset:{48 + 1024*i}")
    for i in range(4):
        D = FD + 8 * i; t = 64 + 12 * (i & 1) + 132
        a(f"    s_waitcnt lgkmcnt({6 - 2*i})" if i == 0 else f"    s_waitcnt lgkmcnt({min(15, 6 - 2*i + 3*i + (8 if i else 0))})")
        for k in range(4): a(f"    v_alignbit_b32 v{t+k}, v{D+k+1}, v{D+k}, 16")
        a(f"    ds_write_b128 v7, {vr(t,4)} offset:{CS + 32 + 1024*i}")
        for k in range(4): a(f"    v_mov_b32 v{t+4+k}, v{D+k+1}")
        a(f"    ds_write_b128 v7, {vr(t+4,4)} offset:{2*CS + 32 + 1024*i}")
        for k in range(4): a(f"    v_alignbit_b32 v{t+8+k}, v{D+k+2}, v{D+k+1}, 16")
        a(f"    ds_write_b128 v7, {vr(t+8,4)} offset:{3*CS + 32 + 1024*i}")
        if i == 0:
            a(f"""    v_mov_b32 v68, 0
    v_mov_b32 v69, 0
    v_mov_b32 v70, 0
    v_lshlrev_b32 v71, 16, v{D}
    v_mov_b32 v72, 0
    v_mov_b32 v73, 0
    v_mov_b32 v74, 0
    v_mov_b32 v75, v{D}
    v_mov_b32 v76, 0
    v_mov_b32 v77, 0
    v_mov_b32 v78, v71
    v_mov_b32 v79, v{t}
    s_mov_b64 exec, 1
    ds_write_b128 v7, v[60:63]
    ds_write_b128 v7, v[60:63] offset:16
    ds_write_b128 v7, v[60:63] offset:{CS}
    ds_write_b128 v7, v[68:71] offset:{CS+16}
    ds_write_b128 v7, v[60:63] offset:{2*CS}
    ds_write_b128 v7, v[72:75] offset:{2*CS+16}
    ds_write_b128 v7, v[60:63] offset:{3*CS}
    ds_write_b128 v7, v[76:79] offset:{3*CS+16}
    s_mov_b64 exec, -1""")
    a(f"""    s_waitcnt lgkmcnt(0)
    s_mov_b64 exec, 1
    ds_add_u32 v10, v11 offset:8
    s_mov_b64 exec, -1
    s_waitcnt vmcnt({0 if opt.xearly else 4})""")
    count_in(36, "s")
    a(f"    s_cbranch_scc0 {L}_nsf")
    spin(44, 1, "c")
    a(f"""    s_lshl_b32 s27, s62, 5
    s_add_u32 s27, s27, {SF_OFF:#x}
    s_mov_b64 exec, 1
    buffer_store_dword v11, v12, s[36:39], s27 offen sc1
    s_mov_b64 exec, -1
    s_waitcnt vmcnt(1)
    s_branch {L}_nsg
{L}_nsf:
    s_waitcnt vmcnt(0)
{L}_nsg:
    s_mov_b64 exec, 1
    ds_add_u32 v10, v11 offset:40
    s_mov_b64 exec, -1""")
    stamp(a, 7)
    spin(40, 4, "t", 12)
    for j in range(8): a(f"    ds_read_b64 {vr(XT_+2*j,2)}, v39 offset:{(j >> 2)*IS + (j & 3)*256}")
    tail_addr(False, XT_OFF, "s49")
    a("    s_waitcnt lgkmcnt(0)")
    for c in range(4):
        for d in range(4):
            a(f"    v_perm_b32 v{PKX+4*c+d}, v{XT_ + 2*(2*d+1) + (c>>1)}, v{XT_ + 2*(2*d) + (c>>1)}, s{70 + (c&1)}")
        a(f"    ds_write_b128 v13, {vr(PKX+4*c,4)} offset:{128*c}")
    tail_out(160)
    stamp(a, 9)
    a("    s_waitcnt vmcnt(0)")
    stamp(a, 10)
    count_in(12, "x")
    a(f"    s_cbranch_scc0 {L}_w2")
    signal_poll(XF_OFF, "x", poll=False)
    if opt.stamps: a("    s_memtime s[74:75]\n    s_waitcnt lgkmcnt(0)\n    s_sub_u32 s74, s74, s80\n    v_mov_b32 v20, s74\n    ds_write_b32 v10, v20 offset:48")
    a(f"""    ds_write_b32 v10, v11 offset:16
    s_mov_b32 m0, s49
    s_add_u32 s26, s26, {XT_OFF:#x}""")
    for i in range(4): a(f"    buffer_load_dwordx4 v6, s[36:39], s26 offen offset:{1024*i} {opt.ldf} lds")
    a(f"""    v_lshlrev_b32 v14, 7, v3
    s_mov_b32 s28, {GF_OFF:#x}
{L}_p3:
    buffer_load_dword v15, v14, s[36:39], s28 offen sc1
    s_waitcnt vmcnt(0)
    v_cmp_eq_u32 vcc, 1, v15
    s_cmp_eq_u64 vcc, -1
    s_cbranch_scc1 {L}_p3e
    s_sleep {opt.xsleep}
    s_branch {L}_p3
{L}_p3e:
    ds_write_b32 v10, v11 offset:24
    s_branch {L}_g2
{L}_w2:""")
    spin(16, 1, "x")
    a(f"    s_mov_b32 m0, s49\n    s_add_u32 s26, s26, {XT_OFF:#x}")
    for i in range(4): a(f"    buffer_load_dwordx4 v6, s[36:39], s26 offen offset:{1024*i} {opt.ldf} lds")
    spin(24, 1, "y")
    a(f"{L}_g2:")
    stamp(a, 4)
    if opt.stamps: a("    ds_read_b32 v20, v10 offset:48\n    s_waitcnt lgkmcnt(0)\n    v_readfirstlane_b32 s74, v20\n    s_nop 1\n    v_writelane_b32 v250, s74, 11")
    a(f"""    s_lshl_b32 s30, s34, 12
    s_add_u32 m0, s30, {STG}
    s_add_u32 s30, s30, {ST1_OFF:#x}""")
    for i in range(4): a(f"    buffer_load_dwordx4 v6, s[36:39], s30 offen offset:{1024*i} sc1 lds")
    a(f"""    s_lshl_b32 s47, s2, 10
    s_lshl_b32 s48, s34, 8
    s_add_u32 s47, s47, s48
    s_add_u32 s47, s47, {PST_OFF:#x}
    v_lshlrev_b32 v14, 2, v2
    v_mov_b32 v15, -1
    buffer_store_dword v15, v14, s[36:39], s47 offen
    s_mul_i32 s47, s2, 560
    s_mul_i32 s48, s34, 140
    s_add_u32 s47, s47, s48
    s_add_u32 s47, s47, {FLG_OFF:#x}
    v_min_u32 v14, 34, v2
    v_lshlrev_b32 v14, 2, v14
    buffer_store_dword v12, v14, s[36:39], s47 offen
    s_and_b32 s25, s2, 15            ; k slice
    s_lshr_b32 s26, s2, 4
    s_mul_i32 s27, s25, {64*7168}
    s_lshl_b32 s28, s26, 9
    s_lshl_b32 s29, s34, 7
    s_add_u32 s28, s28, s29
    s_add_u32 s27, s27, s28
    v_mul_u32_u24 v5, 7168, v4
    v_lshl_add_u32 v5, v3, 4, v5
    s_cmp_ge_u32 s2, 224
    s_cselect_b32 s27, 0x80000000, s27
    s_waitcnt lgkmcnt(0)""")
    srd(a, 12, 10, 1024 * 7168)
    W = 16; WF = 48
    ld = lambda i: a(f"    buffer_load_dwordx4 {vr(W+4*i,4)}, v5, s[12:15], s27 offen\n    s_add_u32 s27, s27, {8*7168}")
    TH = opt.w1th
    for i in range(TH): ld(i)
    a(f"""    s_waitcnt vmcnt({2 + TH})
    s_mov_b64 exec, 1
    ds_add_u32 v10, v11 offset:20
    s_mov_b64 exec, -1""")
    stamp(a, 5)
    a(f"    s_cmp_ge_u32 s2, 224\n    s_cbranch_scc1 {L}_code")
    for i in range(8):
        a(f"    s_waitcnt vmcnt({min(TH, 8 - i) - 1})")
        if i + TH < 8: ld(i + TH)
        if i == 0:
            for d in range(4): unpack(a, WF + 2 * d, W + d)
        else:
            for d in range(4):
                unpack(a, WF + 8 + 2 * (d & 1), W + 4 * i + d)
                a(f"    v_pk_add_f32 {vr(WF+2*d,2)}, {vr(WF+2*d,2)}, {vr(WF + 8 + 2*(d&1),2)}")
    if opt.c_pf2:
        a(f"    s_load_dwordx2 s[42:43], s[0:1], {ARG['w2']}\n    s_mul_i32 s30, s2, 32768\n    s_lshl_b32 s31, s34, 13\n    s_add_u32 s30, s30, s31\n    v_lshlrev_b32 v7, 7, v2\n    s_waitcnt lgkmcnt(0)")
        srd(a, 20, 42, 3584 * 2048)
        a("    buffer_load_dword v8, v7, s[20:23], s30 offen")
    for d in range(8): a(f"    v_add_f32_dpp v{WF+d}, v{WF+d}, v{WF+d} row_ror:8 row_mask:0xf bank_mask:0xf")
    for sw in ("v_permlane16_swap_b32", "v_permlane32_swap_b32"):
        for d in range(8): a(f"    v_mov_b32 v{WF+8+d}, v{WF+d}")
        for d in range(8): a(f"    {sw} v{WF+8+d}, v{WF+d}")
        for d in range(8): a(f"    v_add_f32 v{WF+d}, v{WF+d}, v{WF+8+d}")
    a(f"""    s_mul_i32 s27, s25, {3584*4}
    s_lshl_b32 s28, s28, 1
    s_add_u32 s27, s27, s28
    s_add_u32 s27, s27, {CS_OFF:#x}
    v_lshlrev_b32 v4, 5, v3
    s_mov_b64 exec, 0xff
    buffer_store_dwordx4 {vr(WF,4)}, v4, s[36:39], s27 offen
    buffer_store_dwordx4 {vr(WF+4,4)}, v4, s[36:39], s27 offen offset:16
    s_mov_b64 exec, -1
    s_branch {L}_done
{L}_code:""")
    if opt.codepf:
        a(f"""    s_cmp_ge_u32 s2, 232
    s_cbranch_scc1 {L}_done
    s_getpc_b64 s[66:67]
{L}_pc:
    v_and_b32 v13, 255, v0
    v_lshlrev_b32 v13, 7, v13
    v_min_u32 v13, TEXT_END - {L}_pc - 4, v13
    global_load_dword v62, v13, s[66:67]""")
    a(f"{L}_done:")
    if opt.stamps: a("    s_waitcnt vmcnt(0)")
    stamp(a, 8)
    stamp_end(a, kidx, 58, 33)
    a(f"{L}_end:\n    s_endpgm")
    return (name, 256, 512, WRD + 64), (name, 256 if opt.stamps else 240, 96)

opt.htf = ""
gen.KGEN["pc"] = gen_pc
```

```python
import sys
from asmlib import *
import gen, gen2
from gen import stamp_loop, opt, stamp, stamp_begin, stamp_end, vr, gemm_consumer_loop, wave_sum, MB4, KVR_OFF, H1_OFF, H1_SZ, XCH_OFF, FLG_OFF
from gen2 import GRP_RDY, FLG_SZ

opt.pfk = {12: (0, 56)}
opt.cprio = 0
opt.lprio = 0
opt.xy = False
opt.map84 = True
opt.tagx = False
opt.g2sync = True
opt.a2f = 'sc1'
opt.tlbpf = False
opt.lagthr = 7
opt.norot = False
opt.ga_bar = 27
XT_OFF = 0x0400000
HT_OFF = 0x0800000
ST1_OFF = 0x0C00000
CS_OFF = 0x0C10000
PST_OFF = 0x0C80000

def unpack(a, dst, src): a(f"    v_lshlrev_b32 v{dst}, 16, v{src}\n    v_and_b32 v{dst+1}, 0xffff0000, v{src}")
def rnd(a, r): a(f"    v_cvt_pk_bf16_f32 v{r}, v{r}, v{r}\n    v_and_b32 v{r}, 0xffff0000, v{r}")

def gen_p2(a, kidx):
    name = "p_kernel"; L = "P"
    IS = 1056; VT = 17 * IS; XTL = 33 * IS; OST = 51840
    kernel_head(a, name)
    a(f"""    s_cmp_ge_u32 s2, 256
    s_cbranch_scc1 {L}_end
    s_load_dwordx4 s[4:7], s[0:1], {ARG['k']}      ; k, v
    s_load_dwordx4 s[8:11], s[0:1], {ARG['shift']}
    s_load_dwordx2 s[40:41], s[0:1], {ARG['ws']}
    s_load_dwordx2 s[42:43], s[0:1], {ARG['q']}""")
    stamp_begin(a)
    a(f"""    v_lshrrev_b32 v1, 6, v0
    v_and_b32 v2, 63, v0
    s_and_b32 s24, s2, 7             ; cb
    v_readfirstlane_b32 s33, v1
    s_lshr_b32 s25, s2, 3            ; rb
    v_and_b32 v3, 7, v2              ; cg
    v_lshrrev_b32 v4, 3, v2          ; rg
    s_and_b32 s34, s33, 3            ; w
    s_lshl_b32 s26, s25, 17
    s_lshl_b32 s27, s24, 8
    s_add_u32 s26, s26, s27
    v_lshrrev_b32 v5, 4, v2
    v_lshlrev_b32 v5, 11, v5
    v_and_b32 v6, 15, v2
    v_lshl_add_u32 v5, v6, 4, v5
    v_add_u32 v5, s26, v5
    v_subrev_u32 v6, 8192, v5
    s_lshl_b32 s27, s34, 15
    v_add_u32 v5, s27, v5
    s_movk_i32 s44, 8192
    s_movk_i32 s45, 16384
    s_movk_i32 s46, 24576
    s_mul_i32 s35, s34, {4*IS}
    v_mul_u32_u24 v7, {2*IS}, v4
    v_lshl_add_u32 v7, v3, 3, v7
    s_lshl_b32 s27, s34, 6
    v_add_u32 v7, s27, v7
    s_cmp_ge_u32 s33, 4
    s_cbranch_scc1 {L}_x""")
    so = ["0", "s44", "s45", "s46"]
    def tail_addr(rev, ldsbase, off):
        a(f"""    {"v_xor_b32 v13, 7, v4" if rev else "v_mov_b32 v13, v4"}
    v_xor_b32 v13, v13, v3
    v_lshlrev_b32 v13, 4, v13
    v_lshl_add_u32 v13, v3, 9, v13
    s_lshl_b32 s47, s33, 12
    s_add_u32 s47, s47, {OST}
    v_add_u32 v13, s47, v13
    v_lshl_add_u32 v14, v2, 4, s47
    v_lshrrev_b32 v15, 5, v2
    v_xor_b32 v15, v15, v3               ; x0 = (l&7)^(l>>5)
    v_lshlrev_b32 v9, 12, v4             ; (l>>3)*4096
    s_lshl_b32 s47, s24, 19
    s_lshl_b32 s48, s34, 17
    s_add_u32 s47, s47, s48              ; (cb*128+w*32)*4096
    s_lshl_b32 s48, s25, 7""")
        if rev: a(f"    s_sub_u32 s48, {3968 + off}, s48")
        else: a(f"    s_add_u32 s48, s48, {off:#x}")
        a("    s_add_u32 s47, s47, s48")
    def tail_out():
        a("    s_waitcnt lgkmcnt(0)")
        for i in range(4): a(f"    ds_read_b128 {vr(16+4*i,4)}, v14 offset:{1024*i}")
        for i in range(4): a(f"    v_xor_b32 v8, {2*i}, v15\n    v_lshl_add_u32 v{32+i}, v8, 4, v9")
        for i in range(4):
            a(f"    s_waitcnt lgkmcnt({3-i})\n    buffer_store_dwordx4 {vr(16+4*i,4)}, v{32+i}, s[36:39], s47 offen\n    s_add_u32 s47, s47, 32768")
    a(f"""    s_lshl_b32 s27, s24, 10
    s_lshl_b32 s28, s34, 8
    s_add_u32 s27, s27, s28
    v_lshlrev_b32 v8, 5, v3
    s_add_u32 m0, s35, {IS}
    s_waitcnt lgkmcnt(0)""")
    srd(a, 12, 4, MB4); srd(a, 16, 6, MB4); srd(a, 20, 8, 8192)
    KR = 16; VR = 38; WR = 54
    for j in range(4):
        a(f"    buffer_load_dwordx4 v5, s[12:15], {so[j]} offen nt lds\n    s_add_u32 m0, s35, {VT + j*IS}")
        a(f"    s_nop 0\n    buffer_load_dwordx4 v5, s[16:19], {so[j]} offen nt lds\n    s_add_u32 m0, s35, {(j+2)*IS}\n    s_nop 0" if j < 3 else f"    s_nop 0\n    buffer_load_dwordx4 v5, s[16:19], {so[j]} offen nt lds\n    s_mov_b32 m0, 0\n    s_nop 0")
    a("    buffer_load_dwordx4 v6, s[12:15], 0 offen nt lds")
    a(f"    buffer_load_dwordx4 {vr(WR,4)}, v8, s[20:23], s27 offen\n    buffer_load_dwordx4 {vr(WR+4,4)}, v8, s[20:23], s27 offen offset:16")
    srd(a, 28, 10, MB4); srd(a, 36, 40, 64 << 20)
    a(f"""    s_lshl_b32 s47, s2, 14
    v_lshlrev_b32 v9, 6, v0
    buffer_load_dword v10, v9, s[28:31], s47 offen
    s_mul_i32 s47, s2, 560
    s_add_u32 s47, s47, {FLG_OFF:#x}
    v_min_u32 v11, 139, v0
    v_lshlrev_b32 v11, 2, v11
    v_mov_b32 v12, 0
    buffer_store_dword v12, v11, s[36:39], s47 offen""")
    if opt.codepf:
        a(f"""    s_cmp_ge_u32 s2, 8
    s_cbranch_scc1 {L}_nocode
    s_getpc_b64 s[50:51]
{L}_pc:
    v_lshlrev_b32 v13, 7, v0
    v_min_u32 v13, TEXT_END - {L}_pc - 4, v13
    global_load_dword v62, v13, s[50:51]
{L}_nocode:""")
    tail_addr(True, 0, KVR_OFF)
    WF = 64; KF = 80; VF = 124; OF = 156; PK = 190
    stamp(a, 0)
    a("    s_waitcnt vmcnt(2)\n    s_barrier")
    stamp(a, 4)
    kro = lambda jj: ((1 + jj) >> 2) * IS + ((1 + jj) & 3) * 256
    order = [("k", 0), ("k", 1), ("k", 2)] + [x for j in range(8) for x in (("k", 3 + j), ("v", j))]
    def rd(x):
        if x[0] == "k": a(f"    ds_read_b64 {vr(KR + 2*x[1], 2)}, v7 offset:{kro(x[1])}")
        else: a(f"    ds_read_b64 {vr(VR + 2*x[1], 2)}, v7 offset:{VT + (x[1] >> 2)*IS + (x[1] & 3)*256}")
    for x in order[:13]: rd(x)
    for c in range(4):
        for j in range(4):
            src = WR + 2 * c + (j >> 1); d = WF + (c >> 1) * 8 + j * 2 + (c & 1)
            a(f"    v_lshlrev_b32 v{d}, 16, v{src}" if j % 2 == 0 else f"    v_and_b32 v{d}, 0xffff0000, v{src}")
    def unp2(dst, src):
        for p in range(2): unpack(a, dst + 2 * p, src + p)
    a("    s_waitcnt lgkmcnt(8)")
    for x in order[13:]: rd(x)
    for r in range(3): unp2(KF + 4 * r, KR + 2 * r)
    for j in range(8):
        if j: a(f"    s_waitcnt lgkmcnt({14 - 2*j})")
        unp2(KF + 4 * (3 + j), KR + 6 + 2 * j); unp2(VF + 4 * j, VR + 2 * j)
        for p in range(2):
            o = OF + 4 * j + 2 * p
            k = lambda r: vr(KF + 4 * r + 2 * p, 2)
            w = lambda t: vr(WF + p * 8 + 2 * t, 2)
            a(f"    v_pk_mul_f32 {vr(o,2)}, {k(j)}, {w(3)}")
            a(f"    v_pk_fma_f32 {vr(o,2)}, {k(j+1)}, {w(2)}, {vr(o,2)}")
            a(f"    v_pk_fma_f32 {vr(o,2)}, {k(j+2)}, {w(1)}, {vr(o,2)}")
            a(f"    v_pk_fma_f32 {vr(o,2)}, {k(j+3)}, {w(0)}, {vr(o,2)}")
            a(f"    v_pk_mul_f32 {vr(o,2)}, {vr(o,2)}, {vr(VF + 4*j + 2*p, 2)}")
    stamp(a, 1)
    for c in range(4):
        for d in range(4):
            a(f"    v_cvt_pk_bf16_f32 v{PK+4*c+d}, v{OF + 4*(7-2*d) + c}, v{OF + 4*(6-2*d) + c}")
        a(f"    ds_write_b128 v13, {vr(PK+4*c,4)} offset:{128*c}")
    a(f"    s_branch {L}_out")
    XT_ = 40; XR = 56; XF = 80; XC = 112; PKX = 144
    a(f"""{L}_x:
    s_lshl_b32 s27, s25, 6
    s_lshl_b32 s28, s24, 3
    s_add_u32 s27, s27, s28
    s_lshl_b32 s28, s34, 1
    s_add_u32 s27, s27, s28
    s_lshl_b32 s28, s27, 11
    v_lshlrev_b32 v6, 4, v2
    s_waitcnt lgkmcnt(0)""")
    srd(a, 12, 42, MB4)
    for j in range(4): a(f"    s_add_u32 m0, s35, {XTL + j*IS}\n    s_nop 0\n    buffer_load_dwordx4 v5, s[12:15], {so[j]} offen lds")
    for i in range(4): a(f"    buffer_load_dwordx4 {vr(XR+4*i,4)}, v6, s[12:15], s28 offen offset:{1024*i}")
    srd(a, 36, 40, 64 << 20)
    a(f"""    s_lshl_b32 s47, s2, 10
    s_lshl_b32 s48, s34, 8
    s_add_u32 s47, s47, s48
    s_add_u32 s47, s47, {PST_OFF:#x}
    v_lshlrev_b32 v11, 2, v2
    v_mov_b32 v12, -1
    buffer_store_dword v12, v11, s[36:39], s47 offen
    s_mov_b32 s49, 0x05040100
    s_mov_b32 s50, 0x07060302
    s_mov_b32 s51, 0x3a800000
    s_mov_b32 s52, 0x3727c5ac
    s_lshl_b32 s27, s27, 2
    s_add_u32 s27, s27, {ST1_OFF:#x}
    s_add_u32 s28, s27, 8192""")
    tail_addr(False, 0, XT_OFF)
    stamp(a, 0)
    a("    s_waitcnt vmcnt(5)\n    s_barrier")
    stamp(a, 4)
    for j in range(8): a(f"    ds_read_b64 {vr(XT_+2*j,2)}, v7 offset:{XTL + (j >> 2)*IS + (j & 3)*256}")
    a("    s_waitcnt lgkmcnt(0)")
    for c in range(4):
        for d in range(4):
            a(f"    v_perm_b32 v{PKX+4*c+d}, v{XT_ + 2*(2*d+1) + (c>>1)}, v{XT_ + 2*(2*d) + (c>>1)}, s{49 + (c&1)}")
        a(f"    ds_write_b128 v13, {vr(PKX+4*c,4)} offset:{128*c}")
    tail_out()
    S = [8, 9]; T = [10, 11]; M = [12, 14]; PS = [72, 74]
    a("    s_waitcnt vmcnt(5)")
    for rho in range(2):
        for i in range(8): unpack(a, XF + 16 * rho + 2 * i, XR + 8 * rho + i)
    src = lambda rho, i: XF + 16 * rho + 2 * i
    for rho in range(2): a(f"    v_pk_add_f32 {vr(PS[rho],2)}, {vr(src(rho,0),2)}, {vr(src(rho,1),2)}")
    for i in range(2, 8):
        for rho in range(2): a(f"    v_pk_add_f32 {vr(PS[rho],2)}, {vr(PS[rho],2)}, {vr(src(rho,i),2)}")
    for rho in range(2): a(f"    v_add_f32 v{S[rho]}, v{PS[rho]}, v{PS[rho]+1}")
    wave_sum(a, S, T)
    for rho in range(2): a(f"    v_mul_f32 v{M[rho]}, s51, v{S[rho]}")
    for i in range(8):
        for rho in range(2):
            a(f"    v_pk_add_f32 {vr(src(rho,i),2)}, {vr(src(rho,i),2)}, {vr(M[rho],2)} op_sel_hi:[1,0] neg_lo:[0,1] neg_hi:[0,1]")
    for rho in range(2): a(f"    v_pk_mul_f32 {vr(PS[rho],2)}, {vr(src(rho,0),2)}, {vr(src(rho,0),2)}")
    for i in range(1, 8):
        for rho in range(2): a(f"    v_pk_fma_f32 {vr(PS[rho],2)}, {vr(src(rho,i),2)}, {vr(src(rho,i),2)}, {vr(PS[rho],2)}")
    for rho in range(2): a(f"    v_add_f32 v{S[rho]}, v{PS[rho]}, v{PS[rho]+1}")
    wave_sum(a, S, T)
    for rho in range(2):
        a(f"    v_mov_b32 v{76+rho}, v{M[rho]}"); rnd(a, 76 + rho)
        a(f"    v_mul_f32 v{78+rho}, s51, v{S[rho]}"); rnd(a, 78 + rho); a(f"    v_add_f32 v{78+rho}, s52, v{78+rho}"); rnd(a, 78 + rho)
    a("    v_sqrt_f32 v78, v78\n    v_sqrt_f32 v79, v79\n    s_nop 0")
    for rho in range(2): rnd(a, 78 + rho)
    a("""    v_rcp_f32 v78, v78
    v_rcp_f32 v79, v79
    v_mov_b32 v6, 0
    s_mov_b64 exec, 1
    buffer_store_dwordx2 v[76:77], v6, s[36:39], s27 offen
    buffer_store_dwordx2 v[78:79], v6, s[36:39], s28 offen
    s_mov_b64 exec, -1""")
    stamp(a, 1)
    a(f"    s_branch {L}_done\n{L}_out:")
    tail_out()
    a(f"{L}_done:")
    stamp(a, 2)
    if opt.stamps: a("    s_waitcnt vmcnt(0)")
    stamp(a, 3)
    stamp_end(a, kidx, 40, 33)
    a(f"{L}_end:\n    s_endpgm")
    return (name, 256, 512, OST + 32768), (name, 256 if opt.stamps else 208, 96)

def gen_c2(a, kidx):
    name = "c_kernel"; L = "C"
    CS = 4160; RO = 4 * CS; WSZ = 21248; STG = 4 * WSZ
    kernel_head(a, name)
    a(f"""    s_cmp_ge_u32 s2, 256
    s_cbranch_scc1 {L}_end
    s_load_dwordx4 s[4:7], s[0:1], {ARG['ssmk']}
    s_load_dwordx2 s[40:41], s[0:1], {ARG['ws']}
    s_load_dwordx2 s[10:11], s[0:1], {ARG['w1']}
    s_load_dwordx2 s[42:43], s[0:1], {ARG['w2']}""")
    stamp_begin(a)
    a(f"""    v_lshrrev_b32 v1, 6, v0
    v_and_b32 v2, 63, v0
    s_and_b32 s24, s2, 7
    v_readfirstlane_b32 s33, v1
    s_lshl_b32 s24, s24, 5
    s_lshr_b32 s25, s2, 3
    s_add_u32 s24, s24, s25          ; cg
    s_cmp_ge_u32 s33, 4
    s_cbranch_scc1 {L}_help
    s_lshl_b32 s25, s24, 2
    s_add_u32 s25, s25, s33          ; ch
    s_lshl_b32 s26, s25, 12          ; ch*4096
    s_mul_i32 s27, s33, {WSZ}        ; WB
    v_lshlrev_b32 v3, 4, v2          ; lane*16
    s_add_u32 m0, s27, {RO}
    s_lshr_b32 s28, s25, 1
    s_lshl_b32 s28, s28, 2
    s_waitcnt lgkmcnt(0)""")
    srd(a, 12, 4, MB4); srd(a, 16, 40, 64 << 20)
    FD = 16; FE = 32; FX = 48; TO = 52
    for i in range(4):
        a(f"    buffer_load_dwordx4 {vr(FD+4*i,4)}, v3, s[12:15], s26 offen offset:{1024*i}")
        a(f"    buffer_load_dwordx4 {vr(FE+4*i,4)}, v3, s[12:15], s26 offen offset:{1024*i+4}")
        a(f"    buffer_load_dword v{FX+i}, v3, s[12:15], s26 offen offset:{1024*i+20}")
    for i in range(4): a(f"    buffer_load_dwordx4 v3, s[16:19], s26 offen offset:{1024*i} lds")
    a(f"""    s_load_dword s29, s[6:7], s28
    v_add_u32 v4, s27, v3
    v_mov_b32 v60, 0
    v_mov_b32 v61, 0
    v_mov_b32 v62, 0
    v_mov_b32 v63, 0
    s_mov_b64 exec, 0x3fffffff
    ds_write_b128 v4, v[60:63] offset:{RO + 4096}
    s_mov_b64 exec, -1
    v_and_b32 v5, 15, v2             ; b / a
    v_lshrrev_b32 v6, 4, v2          ; kg
    v_add_u32 v7, 1, v5
    v_and_b32 v8, 3, v7
    v_mul_u32_u24 v8, {CS}, v8
    v_and_b32 v7, 28, v7
    v_lshl_add_u32 v8, v7, 1, v8
    v_lshl_add_u32 v8, v6, 4, v8
    v_add_u32 v8, s27, v8            ; vAT
    v_lshlrev_b32 v9, 5, v5
    v_lshl_add_u32 v10, v6, 3, v9    ; 32a + 8g
    v_sub_u32 v9, {RO + 480}, v9
    v_lshl_add_u32 v9, v6, 4, v9
    v_add_u32 v9, s27, v9            ; vBT
    s_add_u32 s34, s26, {XT_OFF:#x}""")
    stamp(a, 0)
    for i in range(4):
        D = FD + 4 * i; E = FE + 4 * i
        a(f"    s_waitcnt vmcnt({4 + 9 - 3*i})")
        a(f"    ds_write_b128 v4, {vr(D,4)} offset:{32 + 1024*i}")
        a(f"    ds_write_b128 v4, {vr(E,4)} offset:{2*CS + 32 + 1024*i}")
        t = TO + 8 * (i & 1)
        for k in range(4): a(f"    v_alignbit_b32 v{t+k}, v{E+k}, v{D+k}, 16")
        a(f"    ds_write_b128 v4, {vr(t,4)} offset:{CS + 32 + 1024*i}")
        for k in range(4): a(f"    v_alignbit_b32 v{t+4+k}, v{E+k+1 if k < 3 else FX+i}, v{E+k}, 16")
        a(f"    ds_write_b128 v4, {vr(t+4,4)} offset:{3*CS + 32 + 1024*i}")
        if i == 0:
            a(f"""    v_mov_b32 v68, 0
    v_mov_b32 v69, 0
    v_mov_b32 v70, 0
    v_lshlrev_b32 v71, 16, v{D}
    v_mov_b32 v72, 0
    v_mov_b32 v73, 0
    v_mov_b32 v74, 0
    v_mov_b32 v75, v{D}
    v_mov_b32 v76, 0
    v_mov_b32 v77, 0
    v_mov_b32 v78, v71
    v_mov_b32 v79, v{t}
    s_mov_b64 exec, 1
    ds_write_b128 v4, v[60:63]
    ds_write_b128 v4, v[60:63] offset:16
    ds_write_b128 v4, v[60:63] offset:{CS}
    ds_write_b128 v4, v[68:71] offset:{CS+16}
    ds_write_b128 v4, v[60:63] offset:{2*CS}
    ds_write_b128 v4, v[72:75] offset:{2*CS+16}
    ds_write_b128 v4, v[60:63] offset:{3*CS}
    ds_write_b128 v4, v[76:79] offset:{3*CS+16}
    s_mov_b64 exec, -1""")
    ACC = 80; F0 = 112; F1 = 176
    for i in range(0, 32, 2): a(f"    v_mov_b64 {vr(ACC+i,2)}, 0")
    a(f"""    v_mov_b32 v34, {STG + 16384}
    v_mov_b32 v35, 0
    ds_write_b32 v34, v35
    s_waitcnt vmcnt(0) lgkmcnt(0)""")
    for n in range(8): a(f"    buffer_load_dwordx2 {vr(FD + 2*n, 2)}, v10, s[16:19], s34 offen offset:{512*n}")
    a("    s_barrier")
    stamp(a, 1)
    def reads(F, woff):
        r = []
        for u in range(8):
            r.append(f"    ds_read_b128 {vr(F+32+4*u,4)}, v9 offset:{3584 - 512*u + woff}")
            r.append(f"    ds_read_b64 {vr(F+4*u,2)}, v8 offset:{512*u + woff}")
            r.append(f"    ds_read_b64 {vr(F+4*u+2,2)}, v8 offset:{512*u + 8 + woff}")
        return r
    def mf(F):
        return [f"    v_mfma_f32_16x16x32_bf16 {vr(ACC+4*(u+v),4)}, {vr(F+4*u,4)}, {vr(F+32+4*v,4)}, {vr(ACC+4*(u+v),4)}" for u in range(8) for v in range(8 - u)]
    def weave(m, f):
        i = 0
        for x in m:
            a(x)
            if i < len(f): a(f[i]); i += 1
    for l in reads(F0, 0): a(l)
    a(f"    s_mov_b32 s35, 0\n{L}_loop:\n    s_waitcnt lgkmcnt(0)")
    weave(mf(F0), reads(F1, 64) + ["    ds_read_b32 v35, v34", "    v_add_u32 v8, 128, v8", "    v_add_u32 v9, 128, v9", "    s_add_u32 s35, s35, 1", "    s_cmp_eq_u32 s35, 4"])
    a(f"    s_waitcnt lgkmcnt(0)\n    s_cbranch_scc1 {L}_last")
    weave(mf(F1), reads(F0, 0))
    a(f"""    s_branch {L}_loop
{L}_again:
    s_sleep 1
    ds_read_b32 v35, v34
    s_waitcnt lgkmcnt(0)
{L}_last:
    v_readfirstlane_b32 s36, v35
    s_cmp_eq_u32 s36, 4
    s_cbranch_scc0 {L}_again""")
    KV = F0; MT = F0 + 16
    pre = [f"""    v_sub_u32 v32, {RO + 504}, v10
    v_add_u32 v32, s27, v32""",
           f"""    v_lshlrev_b32 v33, 1, v10
    v_add_u32 v33, {STG}, v33"""]
    pre += [f"    ds_read_b64 {vr(KV+2*n,2)}, v32 offset:{512*(7-n)}" for n in range(8)]
    pre += [f"    ds_read_b128 {vr(MT+4*n,4)}, v33 offset:{1024*n}" for n in range(8)]
    RTB = 36
    pre += [f"    ds_read_b128 {vr(RTB+4*n,4)}, v33 offset:{8192 + 1024*n}" for n in range(8)]
    pre += [f"""    s_lshl_b32 s35, s29, 16
    s_and_b32 s36, s29, 0xffff0000""", f"""    s_bitcmp1_b32 s25, 0
    s_cselect_b32 s35, s36, s35          ; D as f32""",
            f"""    s_and_b32 s36, s25, 3
    s_bfe_u32 s37, s25, 0x10003""", f"""    s_lshl_b32 s37, s37, 2
    s_or_b32 s36, s36, s37               ; g(d)""",
            f"""    v_and_b32 v11, 7, v5
    v_xor_b32 v11, s36, v11""", f"""    v_lshlrev_b32 v11, 5, v11
    v_lshrrev_b32 v12, 3, v5""", f"""    v_lshl_add_u32 v11, v12, 18, v11
    v_and_b32 v12, 1, v6""", f"""    v_lshl_add_u32 v11, v12, 19, v11
    v_lshrrev_b32 v12, 1, v6""", f"""    v_lshl_add_u32 v11, v12, 4, v11
    s_lshl_b32 s34, s25, 8""", f"""    s_add_u32 s34, s34, {HT_OFF:#x}"""]
    weave(mf(F1), pre)
    stamp(a, 2)
    a("    s_waitcnt vmcnt(0) lgkmcnt(0)")
    OUT = 224
    order = [0, 1, 2, 3, 4, 5, 6, 7]
    for n in order:
        c = ACC + 4 * n; k = KV + 2 * n; x = FD + 2 * n; o = OUT + 2 * n
        a(f"""    v_and_b32 v12, 0xffff0000, v{k+1}
    v_lshlrev_b32 v13, 16, v{k+1}
    v_and_b32 v14, 0xffff0000, v{k}
    v_lshlrev_b32 v15, 16, v{k}
    v_fmac_f32 v{c}, s35, v12
    v_fmac_f32 v{c+1}, s35, v13
    v_fmac_f32 v{c+2}, s35, v14
    v_fmac_f32 v{c+3}, s35, v15
    v_lshlrev_b32 v12, 16, v{x}
    v_and_b32 v13, 0xffff0000, v{x}
    v_lshlrev_b32 v14, 16, v{x+1}
    v_and_b32 v15, 0xffff0000, v{x+1}
    v_pk_mul_f32 {vr(c,2)}, {vr(c,2)}, {vr(RTB+4*n,2)}
    v_pk_mul_f32 {vr(c+2,2)}, {vr(c+2,2)}, {vr(RTB+4*n+2,2)}
    v_pk_add_f32 {vr(MT+4*n,2)}, v[12:13], {vr(MT+4*n,2)} neg_lo:[0,1] neg_hi:[0,1]
    v_pk_add_f32 {vr(MT+4*n+2,2)}, v[14:15], {vr(MT+4*n+2,2)} neg_lo:[0,1] neg_hi:[0,1]
    v_pk_fma_f32 v[12:13], {vr(MT+4*n,2)}, {vr(c,2)}, v[12:13]
    v_pk_fma_f32 v[14:15], {vr(MT+4*n+2,2)}, {vr(c+2,2)}, v[14:15]
    v_cvt_pk_bf16_f32 v{o}, v12, v13
    v_cvt_pk_bf16_f32 v{o+1}, v14, v15""")
        if n & 1:
            a(f"""    s_nop 0
    v_permlane16_swap_b32 v{o-2}, v{o}
    v_permlane16_swap_b32 v{o-1}, v{o+1}
    buffer_store_dwordx4 {vr(o-2,4)}, v11, s[16:19], s34 offen
    s_add_u32 s34, s34, 0x100000""")
    stamp(a, 3)
    a(f"    s_branch {L}_done")
    W = 16; WF = 48
    a(f"""{L}_help:
    s_and_b32 s34, s33, 3
    s_and_b32 s25, s2, 15            ; k slice
    s_lshr_b32 s26, s2, 4
    s_mul_i32 s27, s25, {64*7168}
    s_lshl_b32 s28, s26, 9
    s_lshl_b32 s29, s34, 7
    s_add_u32 s28, s28, s29
    s_add_u32 s27, s27, s28
    v_lshrrev_b32 v3, 3, v2
    v_mul_u32_u24 v3, 7168, v3
    v_and_b32 v4, 7, v2
    v_lshl_add_u32 v3, v4, 4, v3
    s_waitcnt lgkmcnt(0)""")
    srd(a, 12, 10, 1024 * 7168); srd(a, 16, 40, 64 << 20)
    a(f"""    s_lshl_b32 s30, s34, 12
    s_add_u32 m0, s30, {STG}
    s_add_u32 s30, s30, {ST1_OFF:#x}
    v_lshlrev_b32 v5, 4, v2
    v_mov_b32 v8, {STG + 16384}
    v_mov_b32 v9, 1
    s_barrier""")
    for i in range(4): a(f"    buffer_load_dwordx4 v5, s[16:19], s30 offen offset:{1024*i} lds")
    a("""    s_waitcnt vmcnt(0)
    s_mov_b64 exec, 1
    ds_add_u32 v8, v9
    s_mov_b64 exec, -1""")
    if opt.tlbpf:
        srd(a, 20, 42, 3584 * 2048)
        a(f"""    s_lshr_b32 s30, s2, 3
    s_mul_i32 s30, s30, {56*4096}
    v_lshlrev_b32 v5, 12, v2
    s_cmp_eq_u32 s34, 1
    s_cbranch_scc1 {L}_t1
    s_cmp_eq_u32 s34, 0
    s_cbranch_scc0 {L}_t2
    buffer_load_dword v7, v5, s[12:15], s30 offen
    s_branch {L}_t3
{L}_t1:
    buffer_load_dword v7, v5, s[20:23], s30 offen
    s_branch {L}_t3
{L}_t2:
    s_lshl_b32 s30, s30, 1
    s_and_b32 s31, s34, 1
    s_mul_i32 s31, s31, {56*4096}
    s_add_u32 s30, s30, s31
    s_add_u32 s30, s30, {H1_OFF:#x}
    buffer_load_dword v7, v5, s[16:19], s30 offen
{L}_t3:""")
    a(f"""    s_cmp_ge_u32 s2, 224
    s_cbranch_scc1 {L}_done""")
    for i in range(8):
        a(f"    buffer_load_dwordx4 {vr(W+4*i,4)}, v3, s[12:15], s27 offen\n    s_add_u32 s27, s27, {8*7168}")
    if opt.c_pf2:
        srd(a, 20, 42, 3584 * 2048)
        a(f"""    s_mul_i32 s30, s2, 32768
    s_lshl_b32 s31, s34, 13
    s_add_u32 s30, s30, s31
    v_lshlrev_b32 v5, 7, v2
    buffer_load_dword v6, v5, s[20:23], s30 offen""")
    ex = 1 if opt.c_pf2 else 0
    for i in range(8):
        a(f"    s_waitcnt vmcnt({7 - i + ex})")
        if i == 0:
            for d in range(4): unpack(a, WF + 2 * d, W + d)
        else:
            for d in range(4):
                unpack(a, WF + 8 + 2 * (d & 1), W + 4 * i + d)
                a(f"    v_pk_add_f32 {vr(WF+2*d,2)}, {vr(WF+2*d,2)}, {vr(WF + 8 + 2*(d&1),2)}")
    for d in range(8): a(f"    v_add_f32_dpp v{WF+d}, v{WF+d}, v{WF+d} row_ror:8 row_mask:0xf bank_mask:0xf")
    for sw in ("v_permlane16_swap_b32", "v_permlane32_swap_b32"):
        for d in range(8): a(f"    v_mov_b32 v{WF+8+d}, v{WF+d}")
        for d in range(8): a(f"    {sw} v{WF+8+d}, v{WF+d}")
        for d in range(8): a(f"    v_add_f32 v{WF+d}, v{WF+d}, v{WF+8+d}")
    a(f"""    s_mul_i32 s27, s25, {3584*4}
    s_lshl_b32 s28, s28, 1
    s_add_u32 s27, s27, s28
    s_add_u32 s27, s27, {CS_OFF:#x}
    v_lshlrev_b32 v4, 5, v4
    s_mov_b64 exec, 0xff
    buffer_store_dwordx4 {vr(WF,4)}, v4, s[16:19], s27 offen
    buffer_store_dwordx4 {vr(WF+4,4)}, v4, s[16:19], s27 offen offset:16
    s_mov_b64 exec, -1
{L}_done:""")
    stamp(a, 4)
    if opt.stamps: a("    s_waitcnt vmcnt(0)")
    stamp(a, 5)
    stamp_end(a, kidx, 40, 33)
    a(f"{L}_end:\n    s_endpgm")
    return (name, 256, 512, STG + 16384 + 64), (name, 256 if opt.stamps else 240, 96)


def loop_unrolled(a, L, MI, NI, nk, ns, acc, F0, F1, rdA, rdB, s_k, bar, tail, hookA=None, hookB=None, entry=None):
    n = MI * NI
    def reads(F, slot, kh):
        r = rdA(F, slot, kh)
        for ni in range(NI): r += rdB(F, slot, kh, ni)
        return r
    def mfmas(F):
        return [f"    v_mfma_f32_16x16x32_bf16 {vr(acc + 4*(mi*NI+ni),4)}, {vr(F + 4*MI + 4*ni, 4)}, {vr(F + 4*mi, 4)}, {vr(acc + 4*(mi*NI+ni),4)}" for ni in range(NI) for mi in range(MI)]
    def place(mf, items, start, extra):
        gaps = [[] for _ in mf]
        for j, it in enumerate(items): gaps[start + j].append(it)
        for k, v in extra.items(): gaps[k] += v
        for m, gl in zip(mf, gaps):
            a(m)
            for x in gl: a(x)
    nrd = len(reads(F0, 0, 0))
    late = bar >= n
    st = bar - n + 1 if late else 0
    lagB = st + nrd > n - opt.lagthr
    a(f"    s_mov_b32 s{s_k}, 0")
    if entry is None:
        for l in reads(F0, 0, 0): a(l)
    else:
        a(f"    s_cmp_eq_u32 {entry}, 0\n    s_cbranch_scc1 {L}_e0")
        for l in reads(F0, 1, 0): a(l)
        a(f"    s_branch {L}_s1\n{L}_e0:")
        for l in reads(F0, 0, 0): a(l)
    for u in range(ns):
        a(f"{L}_s{u}:")
        ex = {}
        if lagB:
            a(f"    s_waitcnt lgkmcnt({2*(NI-1)})")
            for ni in range(1, NI):
                ex.setdefault(MI * ni - 1, []).append(f"    s_waitcnt lgkmcnt({min(15, 2*(NI-1-ni) + min(nrd, MI*ni))})")
        else:
            a("    s_waitcnt lgkmcnt(0)")
        ex.setdefault(n - 3, []).append(f"    s_add_u32 s{s_k}, s{s_k}, 1")
        ex.setdefault(n - 2, []).append(f"    s_cmp_eq_u32 s{s_k}, {nk}")
        if not late: ex.setdefault(bar, []).append("    s_waitcnt lgkmcnt(0)\n    s_barrier")
        ex.setdefault(n - 1, []).append(f"    s_cbranch_scc1 {L}_tail")
        if late: ex[n - 1].append(f"    s_waitcnt lgkmcnt({2*(NI-1)})")
        if hookA: ex[n - 1].append(hookA(u))
        place(mfmas(F0), reads(F1, u, 1), 0, ex)
        ex = {}
        if late: ex[bar - n] = ["    s_waitcnt lgkmcnt(0)\n    s_barrier"]
        if hookB: ex.setdefault(n - 1, []).append(hookB(u))
        if u == ns - 1: ex.setdefault(n - 1, []).append(f"    s_branch {L}_s0")
        place(mfmas(F1), reads(F0, (u + 1) % ns, 0), st, ex)
    a(f"{L}_tail:")
    if late: a("    s_waitcnt lgkmcnt(0)\n    s_barrier")
    tail(mfmas(F1))

def gen_ga(a, kidx):
    name = "g_kernel"; L = "G"
    PX = 4 if opt.map84 else 1
    MAP = """    s_lshr_b32 s26, s24, 1
    s_lshl_b32 s26, s26, 2
    s_and_b32 s27, s25, 3
    s_add_u32 s26, s26, s27          ; mt
    s_and_b32 s54, s24, 1
    s_lshr_b32 s55, s25, 2
    s_lshl_b32 s56, s24, 2
    s_add_u32 s56, s56, s27
    s_lshl_b32 s56, s56, 7           ; group*128
    s_lshl_b32 s27, s54, 3
    s_add_u32 s27, s27, s55          ; nt
""" if not opt.map84 else """    s_and_b32 s26, s24, 1
    s_lshl_b32 s26, s26, 3
    s_and_b32 s27, s25, 7
    s_add_u32 s26, s26, s27          ; mt
    s_lshr_b32 s27, s24, 1
    s_lshl_b32 s27, s27, 2
    s_lshr_b32 s55, s25, 3
    s_add_u32 s27, s27, s55          ; nt
    s_lshr_b32 s54, s27, 3           ; kh
    s_and_b32 s55, s27, 7
    s_lshl_b32 s56, s26, 1
    s_add_u32 s56, s56, s54
    s_lshl_b32 s56, s56, 7           ; group*128
"""
    LA = 224; LB = 216; LB2 = 212
    ST1 = 49152; NS1 = 3; NK1 = 16
    NS2 = 4; NK2 = 28; B2 = 81920
    BR1 = 49152; CNT = 147456; TST = CNT + 256; TRM = TST + 512; TCB = TRM + 1024 + 64; RES = 65536
    kernel_head(a, name)
    a(f"""    s_cmp_ge_u32 s2, 256
    s_cbranch_scc1 {L}_end
    s_load_dwordx2 s[4:5], s[0:1], {ARG['ws']}
    s_load_dwordx4 s[8:11], s[0:1], {ARG['w1']}    ; w1, b1
    s_load_dwordx4 s[48:51], s[0:1], {ARG['w2']}   ; w2, b2
    s_load_dwordx2 s[52:53], s[0:1], {ARG['out']}""")
    stamp_begin(a)
    a(f"""    v_lshrrev_b32 v1, 6, v0
    v_and_b32 v2, 63, v0
    s_and_b32 s24, s2, 7
    v_readfirstlane_b32 s33, v1
    s_lshr_b32 s25, s2, 3
{MAP}    s_and_b32 s29, s27, 1            ; p = nt odd
    s_cmp_lt_u32 s33, 4
    s_cbranch_scc1 {L}_cons""")
    def final_addr():
        a(f"""    s_lshl_b32 s43, s26, 7
    s_lshl_b32 s44, s54, 5
    s_add_u32 s43, s43, s44
    s_lshl_b32 s44, s33, 2
    s_add_u32 s43, s43, s44
    s_lshl_b32 s43, s43, 11          ; row*2048
    s_lshl_b32 s44, s55, 8
    s_add_u32 s43, s43, s44
    s_add_u32 s44, s43, {64*2048}""")
    if opt.lprio: a(f"    s_setprio {opt.lprio}")
    a(f"""    s_and_b32 s34, s33, 3            ; lw
    s_lshl_b32 s35, s34, 12          ; lw*4096
    v_lshl_add_u32 v{LA}, v2, 4, s35 ; A voffset
    s_lshl_b32 s68, s26, 18
    s_add_u32 s69, s68, {16 << 14}
    s_and_b32 s36, s27, {0 if opt.norot else 12}
    s_lshl_b32 s30, s36, 14
    s_add_u32 s30, s30, s68
    s_mul_i32 s66, s27, 448
    s_and_b32 s66, s66, 0xffffff80
    s_add_u32 s67, s66, {1024*7168}
    s_mul_i32 s31, s36, {64*7168}
    s_add_u32 s31, s31, s66
    s_mov_b32 s70, s35
    s_add_u32 s39, s35, {NS1*16384}
    s_add_u32 s38, s35, s35
    s_add_u32 s38, s38, {BR1}
    s_mov_b32 s71, s38
    s_add_u32 s37, s38, {NS1*32768}
    s_waitcnt lgkmcnt(0)""")
    srd(a, 12, 4, MB4, off=HT_OFF)
    def issueA1():
        a(f"    s_mov_b32 m0, s70\n    s_add_u32 s70, s70, 16384")
        for i in range(4): a(f"    buffer_load_dwordx4 v{LA}, s[12:15], s30 offen offset:{i*1024} lds")
        a("""    s_add_u32 s30, s30, 16384
    s_cmp_ge_u32 s70, s39
    s_cselect_b32 s70, s35, s70
    s_cmp_ge_u32 s30, s69
    s_cselect_b32 s30, s68, s30""")
    def issueB1():
        a("    s_mov_b32 m0, s38\n    s_nop 0")
        for i in range(4): a(f"    buffer_load_dwordx4 v{LB+i}, s[16:19], s31 offen offset:{i*1024} lds")
        a(f"    s_add_u32 m0, s38, 4096\n    s_add_u32 s38, s38, 32768")
        for i in range(4, 8): a(f"    buffer_load_dwordx4 v{LB+i}, s[16:19], s31 offen offset:{(i&3)*1024} lds")
        a(f"""    s_add_u32 s31, s31, {64*7168}
    s_cmp_ge_u32 s38, s37
    s_cselect_b32 s38, s71, s38
    s_cmp_ge_u32 s31, s67
    s_cselect_b32 s31, s66, s31""")
    issueA1()
    a(f"""    v_lshrrev_b32 v8, 5, v2          ; hi
    s_lshl_b32 s36, s34, 4
    v_add_u32 v9, s36, v8            ; 16lw+hi
    v_mul_u32_u24 v9, 7168, v9
    v_and_b32 v10, 1, v2
    v_lshl_add_u32 v9, v10, 4, v9    ; t0
    v_bfe_u32 v10, v2, 1, 4
    v_xor_b32 v10, v10, v8           ; x0""")
    srd(a, 16, 8, 1024 * 7168)
    for ci, c in enumerate((0, 2, 4, 6)):
        a(f"    v_xor_b32 v11, {c}, v10\n    v_lshl_add_u32 v11, v11, 5, v9")
        for i in range(8):
            if 2 * (i & 1) + 4 * (i >> 2) == c: a(f"    v_add_u32 v{LB+i}, {2*i*7168 - (i&3)*1024}, v11")
    stamp(a, 0)
    issueB1(); issueA1()
    a("    s_waitcnt vmcnt(4)\n    s_barrier")
    issueB1(); issueA1(); issueB1()
    stamp(a, 12)
    a(f"""    v_lshrrev_b32 v3, 4, v2          ; q4
    s_lshl_b32 s36, s34, 4
    v_add_u32 v4, s36, v3
    v_lshlrev_b32 v4, 11, v4
    v_and_b32 v5, 1, v2
    v_lshl_add_u32 v4, v5, 4, v4     ; t0
    v_bfe_u32 v5, v2, 1, 3
    v_xor_b32 v5, v5, v3             ; x0""")
    for c in (0, 4):
        a(f"    v_xor_b32 v6, {c}, v5\n    v_lshl_add_u32 v6, v6, 5, v4")
        for i in range(4):
            if 4 * (i >> 1) == c: a(f"    v_add_u32 v{LB2+i}, {4*i*2048 - i*1024}, v6")
    a(f"""    v_lshrrev_b32 v3, 3, v2          ; d&7
    v_bfe_u32 v4, v2, 1, 2
    v_lshrrev_b32 v5, 1, v3
    v_xor_b32 v4, v4, v5             ; gs
    v_and_b32 v5, 1, v4
    v_lshrrev_b32 v4, 1, v4
    v_lshl_or_b32 v4, v4, 2, v5
    s_lshl_b32 s36, s54, 1
    v_or_b32 v4, s36, v4             ; cp
    v_and_b32 v5, 3, v3
    v_xor_b32 v4, v4, v5             ; cp ^ (d&3)
    v_lshlrev_b32 v4, 5, v4
    v_and_b32 v5, 1, v2
    v_lshl_add_u32 v4, v5, 4, v4
    v_lshl_add_u32 v208, v3, 8, v4
    v_xor_b32 v209, 128, v208
    v_add_u32 v209, 1024, v209
    v_add_u32 v210, 2048, v208
    v_add_u32 v211, 2048, v209
    v_and_b32 v3, 31, v2
    v_lshrrev_b32 v4, 5, v2
    v_lshlrev_b32 v4, 13, v4
    v_lshl_add_u32 v206, v3, 2, v4
    v_and_b32 v3, 15, v2
    v_min_u32 v3, 13, v3
    v_lshrrev_b32 v4, 4, v2
    v_mul_u32_u24 v207, {3584*4}, v4
    v_lshl_add_u32 v207, v3, 4, v207
    v_lshlrev_b32 v205, 3, v3""")
    if opt.xy:
        a(f"""    s_lshr_b32 s36, s55, 1
    s_mul_i32 s36, s36, 3
    s_lshl_b32 s41, s29, 1
    s_add_u32 s36, s36, s41
    v_subrev_u32 v3, 3, v2               ; q
    v_cmp_le_u32 vcc, s36, v3
    s_lshl_b32 s41, s55, 1
    v_subrev_u32 v5, 14, v2              ; z
    v_addc_co_u32 v3, vcc, 0, v3, vcc    ; c
    v_cmp_le_u32 vcc, s41, v5
    v_mul_u32_u24 v4, 43, v3
    v_lshrrev_b32 v4, 7, v4              ; c/3
    v_cndmask_b32 v6, 0, 2, vcc
    v_add_u32 v5, v5, v6
    v_mul_u32_u24 v6, 3, v4
    v_sub_u32 v3, v3, v6                 ; c%3
    v_min_u32 v6, 1, v3
    v_lshl_add_u32 v3, v6, 1, v3         ; 0,3,4
    v_mad_u32_u24 v3, v4, 7, v3
    v_lshrrev_b32 v4, 2, v5
    v_and_b32 v6, 1, v5
    v_bfe_u32 v5, v5, 1, 1
    v_lshl_add_u32 v5, v5, 2, v6
    v_mad_u32_u24 v5, v4, 7, v5
    v_add_u32 v5, 1, v5
    v_cmp_gt_u32 vcc, 14, v2
    s_mul_i32 s36, s55, 7
    s_add_u32 s36, s36, 1
    v_cndmask_b32 v3, v5, v3, vcc
    s_lshr_b32 s36, s36, 1
    v_cmp_gt_u32 vcc, 3, v2
    v_add_u32 v5, s36, v2
    s_nop 0
    v_cndmask_b32 v72, v3, v5, vcc""")
    srd(a, 20, 4, 64 << 20); srd(a, 72, 10, 7168)
    PSR = 32; CSR = 48; BR = 64
    a(f"""    s_lshl_b32 s41, s26, 14
    s_lshl_b32 s36, s34, 7
    s_add_u32 s41, s41, s36
    s_add_u32 s41, s41, {PST_OFF:#x}
    s_add_u32 s47, s41, 4096
    s_mul_i32 s42, s27, 896
    s_mul_i32 s36, s34, 224
    s_add_u32 s42, s42, s36
    s_lshr_b32 s43, s42, 1
    s_add_u32 s42, s42, {CS_OFF:#x}""")
    KP = 6
    pfk = dict(opt.pfk) if opt.w2pf == "l" else {}
    if pfk:
        srd(a, 60, 48, 3584 * 2048)
        a(f"""    s_mul_i32 s59, s2, 28672
    s_mul_i32 s36, s34, 7168
    s_add_u32 s59, s59, s36
    v_lshlrev_b32 v70, 7, v2""")
    def pf(k):
        if k in pfk:
            lo, hi = pfk[k]
            m = ((1 << hi) - 1) ^ ((1 << lo) - 1)
            a(f"    s_mov_b32 exec_lo, {m & 0xffffffff:#x}\n    s_mov_b32 exec_hi, {m >> 32:#x}\n    buffer_load_dword v71, v70, s[60:63], s59 offen\n    s_mov_b64 exec, -1")
    extra = lambda k: (1 if (k - 1) in pfk else 0) + (1 if (k - 2) in pfk else 0)
    a(f"    s_mov_b32 s40, 0\n{L}_l1:")
    stamp_loop(a, 40, 32)
    a("    s_waitcnt vmcnt(12)")
    stamp_loop(a, 40, 42)
    a("    s_barrier")
    stamp_loop(a, 40, 52)
    if not opt.noload:
        issueA1(); issueB1()
    a(f"    s_add_u32 s40, s40, 1\n    s_cmp_lt_u32 s40, {KP + 1}\n    s_cbranch_scc1 {L}_l1")
    stamp(a, 20)
    def gather_ps():
        for i in range(16): a(f"    buffer_load_dword v{PSR+i}, v206, s[20:23], s{41 if i < 8 else 47} offen offset:{512*(i&7)} sc1")
    gather_ps()
    for i in range(4): a(f"    buffer_load_dwordx4 {vr(CSR+4*i,4)}, v207, s[20:23], s42 offen\n    s_add_u32 s42, s42, {4*3584*4}")
    a(f"    buffer_load_dwordx2 {vr(BR,2)}, v205, s[72:75], s43 offen")
    for k in (KP + 1, KP + 2):
        stamp(a, 21 + 2 * (k - KP - 1))
        a(f"    s_waitcnt vmcnt({33 + extra(k)})\n    s_barrier          ; b{k}")
        stamp(a, 22 + 2 * (k - KP - 1))
        issueA1(); issueB1(); pf(k)
    t = Asm()
    for i in range(1, 8): t(f"    v_pk_add_f32 {vr(PSR,2)}, {vr(PSR,2)}, {vr(PSR+2*i,2)}")
    for i in range(1, 4):
        t(f"    v_pk_add_f32 {vr(CSR,2)}, {vr(CSR,2)}, {vr(CSR+4*i,2)}\n    v_pk_add_f32 {vr(CSR+2,2)}, {vr(CSR+2,2)}, {vr(CSR+4*i+2,2)}")
    t(f"""    v_add_f32 v3, v{PSR}, v{PSR+1}
    s_mov_b32 s76, 0x3a800000
    v_mov_b32 v4, v3""")
    for sw in ("v_permlane16_swap_b32", "v_permlane32_swap_b32"):
        for d in range(4): t(f"    v_mov_b32 v{CSR+4+d}, v{CSR+d}")
        for d in range(4): t(f"    {sw} v{CSR+4+d}, v{CSR+d}")
        for d in range(4): t(f"    v_add_f32 v{CSR+d}, v{CSR+d}, v{CSR+4+d}")
    t(f"""    v_permlane32_swap_b32 v4, v3
    v_mul_f32 v6, s76, v4                ; mean
    v_mul_f32 v7, s76, v3
    v_fma_f32 v7, -v6, v6, v7
    v_max_f32 v7, 0, v7                  ; variance""")
    rnd(t, 6); rnd(t, 7)
    t("    v_add_f32 v7, 0x3727c5ac, v7"); rnd(t, 7)
    t("    v_sqrt_f32 v7, v7")
    for d in range(4): t(f"    v_cvt_pk_bf16_f32 v{CSR+4+d}, v{CSR+d}, v{CSR+d}")
    rnd(t, 7)
    for d in range(4): t(f"    v_and_b32 v{CSR+4+d}, 0xffff0000, v{CSR+4+d}\n    v_sub_f32 v{CSR+d}, v{CSR+d}, v{CSR+4+d}")
    t("    v_rcp_f32 v9, v7")
    for d in range(4):
        t(f"    v_cvt_pk_bf16_f32 v{CSR+8+2*d}, v{CSR+4+d}, v{CSR+d}")
        t(f"    v_and_b32 v{CSR+9+2*d}, 0xffff, v{BR + (d>>1)}" if d % 2 == 0 else f"    v_lshrrev_b32 v{CSR+9+2*d}, 16, v{BR + (d>>1)}")
    t(f"""    v_mul_f32 v9, v9, v9                 ; r^2
    v_xor_b32 v6, 0x80000000, v6
    v_lshrrev_b32 v4, 16, v6
    v_or_b32 v6, v6, v4                  ; (-m,-m)
    v_lshrrev_b32 v7, 16, v7             ; (den,0)
    v_and_b32 v3, 31, v2
    s_lshl_b32 s77, s34, 7
    s_add_u32 s77, s77, {TST}
    v_lshl_add_u32 v4, v3, 2, s77
    ds_write_b32 v4, v9
    s_lshl_b32 s77, s34, 8
    s_add_u32 s77, s77, {TRM}
    v_lshl_add_u32 v4, v3, 3, s77
    ds_write_b64 v4, v[6:7]
    s_mul_i32 s77, s34, 448
    s_add_u32 s77, s77, {TCB}
    v_lshl_add_u32 v3, v205, 2, s77
    ds_write_b128 v3, {vr(CSR+8,4)}
    ds_write_b128 v3, {vr(CSR+12,4)} offset:16
    v_mov_b32 v10, 0
    v_mov_b32 v11, 0
    v_mov_b32 v12, {TRM + 1024}
    ds_write_b64 v12, v[10:11]
    v_mov_b32 v12, {CNT}
    ds_write_b64 v12, v[10:11]""")
    per = (len(t.lines) - 10 + 3) // 4
    chunks = [t.lines[10 + i*per: 10 + (i+1)*per] for i in range(4)]
    for k in range(KP + 3, NK1 - NS1):
        a(f"    s_waitcnt vmcnt({12 + extra(k)})\n    s_barrier          ; b{k}")
        issueA1(); issueB1(); pf(k)
        if k == KP + 3:
            a(f"{L}_chk:\n    v_max_u32 v3, v{PSR}, v{PSR+1}")
            for i in range(2, 16, 2): a(f"    v_max3_u32 v3, v3, v{PSR+i}, v{PSR+i+1}")
            a(f"""    v_cmp_eq_u32 vcc, -1, v3
    s_cmp_lg_u64 vcc, 0
    s_cbranch_scc1 {L}_retry""")
            for x in t.lines[:10]: a(x)
        else:
            for x in chunks.pop(0): a(x)
    srd(a, 16, 48, 3584 * 2048)
    final_addr()
    a(f"""    s_mul_i32 s58, s55, 7
    s_add_u32 s58, s58, 1
    s_lshr_b32 s58, s58, 1
    s_mul_i32 s66, s54, {1792*2048}
    s_lshl_b32 s36, s55, 8
    s_add_u32 s66, s66, s36
    s_lshl_b32 s31, s58, 17
    s_add_u32 s31, s31, s66          ; G2 B soffset
    s_add_u32 s67, s66, {28 << 17}
    s_mov_b32 s78, {1 if opt.xy else 's31'}
    s_add_u32 s79, s31, {3 << 17}
    s_lshl_b32 s38, s29, 14
    s_add_u32 s38, s38, s35
    s_add_u32 s39, s35, 65536
    s_lshl_b32 s36, s55, 15
    s_lshl_b32 s37, s34, 13
    s_add_u32 s36, s36, s37
    s_add_u32 s42, s36, s68
    s_waitcnt vmcnt({12 + extra(13)})
    s_barrier          ; b13""")
    stamp(a, 13)
    def issueB2(restart=False):
        a(f"    s_add_u32 m0, s38, {B2}\n    s_add_u32 s38, s38, 16384")
        for i in range(4): a(f"    buffer_load_dwordx4 v{LB2+i}, s[16:19], s31 offen offset:{i*1024} lds")
        a(f"""    s_add_u32 s31, s31, {64*2048}
    s_cmp_ge_u32 s38, s39
    s_cselect_b32 s38, s35, s38""")
        if opt.xy: a("    v_readlane_b32 s36, v72, s78\n    s_add_u32 s78, s78, 1\n    s_lshl_b32 s36, s36, 17\n    s_add_u32 s31, s36, s66")
        elif not opt.g2sync: a("    s_cmp_ge_u32 s31, s67\n    s_cselect_b32 s31, s66, s31")
        elif restart: a("    s_cmp_eq_u32 s66, s78\n    s_cselect_b32 s31, s31, s66")
        else: a("    s_cmp_eq_u32 s31, s78\n    s_cselect_b32 s31, s79, s31")
    issueB2()
    for x in chunks.pop(0): a(x)
    stamp(a, 15)
    a(f"    s_waitcnt vmcnt({4 + (1 if 12 in pfk else 0)})\n    s_barrier          ; b14")
    stamp(a, 14)
    assert not chunks
    issueB2()
    a("    s_waitcnt lgkmcnt(0)\n    s_barrier          ; b15")
    issueB2(restart=True); issueB2()
    stamp(a, 1)
    a(f"    s_add_u32 m0, s35, {RES}\n    s_nop 0")
    for i in range(4): a(f"    buffer_load_dwordx4 v{208+i}, s[12:15], s42 offen offset:{i*1024} lds")
    srd(a, 12, 4, H1_SZ, off=H1_OFF); srd(a, 60, 4, FLG_SZ, off=FLG_OFF)
    a(f"""    s_lshr_b32 s36, s34, 1
    s_lshl_b32 s36, s36, 13
    s_and_b32 s37, s34, 1
    s_lshl_b32 s37, s37, 11              ; + 16*(lw&1)
    s_add_u32 s37, s37, s36
    v_lshl_add_u32 v7, v2, 4, s37
    s_lshl_b32 s36, s29, 14
    v_add_u32 v3, s36, v7
    s_cmp_eq_u32 s29, 1
    s_cselect_b32 s36, 0, 49152
    v_add_u32 v4, s36, v7
    v_lshrrev_b32 v5, 3, v2
    v_xor_b32 v5, v5, v2
    v_bfe_u32 v5, v5, 2, 1               ; c bit2
    v_cmp_eq_u32 vcc, s29, v5
    v_mov_b32 v6, 0x80000000
    s_mul_i32 s36, s27, 7
    s_lshr_b32 s36, s36, 1               ; ks0
    v_cndmask_b32 v5, v6, v4, vcc
    s_mul_i32 s37, s26, 56
    s_add_u32 s36, s36, s37
    s_lshl_b32 s40, s36, 14
    s_add_u32 s41, s40, 16384
    s_add_u32 s42, s40, 32768
    s_mul_i32 s68, s54, 28
    s_add_u32 s68, s68, s37
    s_lshl_b32 s68, s68, 14
    s_add_u32 s69, s68, {28 << 14}
    s_add_u32 s30, s58, 3
    s_lshl_b32 s30, s30, 14
    s_add_u32 s30, s30, s68
    s_mov_b32 s77, s30
    s_sub_u32 s76, s30, {3 << 14}
    {"s_cmp_eq_u32 s68, s76" if opt.g2sync else "s_cmp_ge_u32 s30, s69"}
    {"s_cselect_b32 s30, s30, s68" if opt.g2sync else "s_cselect_b32 s30, s68, s30"}
    s_add_u32 s70, s29, 3
    s_and_b32 s70, s70, 3
    s_lshl_b32 s70, s70, 14
    s_add_u32 s70, s70, s35
    s_lshl_b32 s45, s55, 2
    s_add_u32 s46, s56, {GRP_RDY:#x}
    s_add_u32 s45, s45, s46
    v_and_b32 v8, 7, v2
    v_lshlrev_b32 v8, 2, v8
    v_mov_b32 v10, 1""")
    if opt.xy: a("    v_readlane_b32 s36, v72, 3\n    s_mov_b32 s76, 4\n    s_lshl_b32 s36, s36, 14\n    s_add_u32 s30, s36, s68")
    zst = []
    for half in range(2):
        stamp(a, 16 + 2 * half)
        if half == 1: a(f"    s_waitcnt vmcnt({4 if opt.xy else 8})")
        a(f"    s_barrier                            ; E{half}")
        stamp(a, 17 + 2 * half)
        ho = 4096 * half
        items = [(3, 3, 40, 0, 0), (3, 3, 40, 0, 1), (4, 5, 40, 0, 0), (4, 5, 40, 0, 1), (3, 3, 41, 16384, 0), (3, 3, 41, 16384, 1), (3, 3, 42, 32768, 0), (3, 3, 42, 32768, 1)]
        for i, (vr_, vs_, so, lo, q) in enumerate(items):
            a(f"    ds_read_b128 {vr((80 if opt.xy else 32)+32*half+4*i,4)}, v{vr_} offset:{lo + ho + 1024*q}")
        RB = 80 if opt.xy else 32
        if half == 1 and not opt.xy: a("    s_add_u32 s40, s40, 4096\n    s_add_u32 s41, s41, 4096\n    s_add_u32 s42, s42, 4096")
        if half == 1 and opt.xy: a("    s_add_u32 s40, s40, 4096\n    s_add_u32 s47, s41, 4096\n    s_add_u32 s59, s42, 4096")
        for i, (vr_, vs_, so, lo, q) in enumerate(items):
            if opt.xy and i >= 4:
                if half == 1: so = {41: 47, 42: 59}[so]
                zst.append(f"    buffer_store_dwordx4 {vr(RB+32*half+4*i,4)}, v{vs_}, s[12:15], s{so} offen offset:{1024*q} sc1")
                continue
            a(f"    s_waitcnt lgkmcnt({7-i})\n    buffer_store_dwordx4 {vr(RB+32*half+4*i,4)}, v{vs_}, s[12:15], s{so} offen offset:{1024*q} sc1")
        if opt.xy and half == 1: a("    s_waitcnt lgkmcnt(0)")
    stamp(a, 3)
    a("    s_barrier          ; c0\n    s_barrier          ; c1\n    s_waitcnt vmcnt(0)")
    stamp(a, 4)
    a(f"""    s_mov_b64 exec, 1
    ds_add_rtn_u32 v13, v12, v10
    s_mov_b64 exec, -1
    s_waitcnt lgkmcnt(0)
    v_readfirstlane_b32 s36, v13
    s_cmp_eq_u32 s36, 3
    s_cbranch_scc0 {L}_wait2
    s_mov_b64 exec, 1
    buffer_store_dword v10, v11, s[60:63], s45 offen sc1
    s_mov_b64 exec, 0xff
{L}_poll2:
    buffer_load_dword v9, v8, s[60:63], s46 offen sc1
    s_waitcnt vmcnt(0)
    v_cmp_eq_u32 vcc, 1, v9
    s_cmp_eq_u64 vcc, exec
    s_cbranch_scc1 {L}_seen2
    s_sleep {opt.psleep}
    s_branch {L}_poll2
{L}_seen2:
    ds_write_b32 v12, v10 offset:4
    s_mov_b64 exec, -1""")
    issueB2(); issueB2()
    a(f"    s_branch {L}_go2\n{L}_wait2:")
    issueB2(); issueB2()
    a(f"""{L}_spin2:
    s_sleep 1
    ds_read_b32 v13, v12 offset:4
    s_waitcnt lgkmcnt(0)
    v_readfirstlane_b32 s36, v13
    s_cmp_eq_u32 s36, 1
    s_cbranch_scc0 {L}_spin2
{L}_go2:""")
    stamp(a, 5)
    def issueA2():
        a("    s_mov_b32 m0, s70\n    s_add_u32 s70, s70, 16384")
        for i in range(4): a(f"    buffer_load_dwordx4 v{LA}, s[12:15], s30 offen offset:{i*1024} {opt.a2f} lds")
        a("""    s_add_u32 s30, s30, 16384
    s_cmp_ge_u32 s70, s39
    s_cselect_b32 s70, s35, s70""")
        if opt.xy: a("    v_readlane_b32 s36, v72, s76\n    s_add_u32 s76, s76, 1\n    s_lshl_b32 s36, s36, 14\n    s_add_u32 s30, s36, s68")
        elif not opt.g2sync: a("    s_cmp_ge_u32 s30, s69\n    s_cselect_b32 s30, s68, s30")
        else: a("    s_cmp_eq_u32 s30, s76\n    s_cselect_b32 s30, s77, s30")
    issueA2(); issueA2()
    a("    s_waitcnt vmcnt(4)\n    s_barrier          ; c2")
    issueA2(); issueA2(); issueB2()
    if not opt.xy:
        a("    s_waitcnt vmcnt(12)\n    s_barrier          ; c3")
        issueA2(); issueB2()
        a(f"    s_branch {L}_nochk2\n{L}_chk2:\n{L}_nochk2:")
        k0 = 4
    else:
        for x in zst[:4]: a(x)
        a("    s_waitcnt vmcnt(16)\n    s_barrier          ; c3")
        for x in zst[4:]: a(x)
        issueA2(); issueB2()
        for k, cnt in ((4, 24), (5, 24), (6, 16), (7, 17), (8, 17), (9, 16)):
            a(f"    s_waitcnt vmcnt({cnt})\n    s_barrier          ; c{k}")
            if k == 6: a("    s_mov_b64 exec, 1\n    buffer_store_dword v10, v11, s[60:63], s45 offen offset:32 sc1\n    s_mov_b64 exec, -1")
            if k == 9: a("    buffer_load_dword v9, v8, s[60:63], s46 offen offset:32 sc1")
            issueA2(); issueB2()
        a(f"""    s_waitcnt vmcnt(8)
{L}_chk2:
    v_cmp_eq_u32 vcc, 1, v9
    s_cmp_eq_u64 vcc, -1
    s_cbranch_scc0 {L}_retry2
    s_barrier          ; c10""")
        issueA2(); issueB2()
        k0 = 11
    a(f"    s_mov_b32 s40, {k0}\n{L}_l2:\n    s_waitcnt vmcnt(16)\n    s_barrier")
    issueA2(); issueB2()
    a(f"    s_add_u32 s40, s40, 1\n    s_cmp_lt_u32 s40, {NK2-NS2}\n    s_cbranch_scc1 {L}_l2")
    for k in range(NK2 - NS2, NK2):
        left = max(0, NK2 - 1 - (k + 1))
        if k + 1 < NK2: a(f"    s_waitcnt vmcnt({left*8})")
        a("    s_barrier")
    stamp(a, 6)
    a(f"    s_branch {L}_epi2")
    ACC = 0; F0 = 112; F1 = 156; VA = 200; VB = 204; VBH = 235; SA = 212; ONE = 228
    wad = lambda ni: [213, 214, 215, 217, 218, 219, 221][ni]
    vbh = lambda ni: [235, 236, 237, 238, 239, 211, 232][ni]
    a(f"""{L}_cons:
    {f"s_setprio {opt.cprio}" if opt.cprio else ""}
    v_mov_b32 v240, v2               ; lane
    v_and_b32 v241, 15, v2           ; r
    v_lshrrev_b32 v242, 4, v2        ; kg
    v_lshlrev_b32 v243, 3, v242
    s_and_b32 s34, s33, 1            ; wm
    s_lshr_b32 s35, s33, 1           ; wn
    s_lshl_b32 s36, s34, 13          ; wm*64*128
    v_lshl_add_u32 v244, v241, 7, s36
    v_and_b32 v245, 7, v241          ; r7
    v_bfe_u32 v246, v240, 2, 2       ; rr
    v_lshl_add_u32 v247, v242, 3, v246   ; 8kg+rr
    v_and_b32 v248, 3, v240          ; cc
    v_lshlrev_b32 v248, 3, v248
    v_lshl_add_u32 v249, v247, 8, v248
    v_lshl_add_u32 v247, v247, 9, v248
    v_add_u32 v247, {BR1}, v247
    v_and_b32 v248, 1, v242
    v_lshl_or_b32 v246, v248, 2, v246    ; g
    s_lshl_b32 s37, s34, 2""")
    for mi in range(4):
        a(f"    s_add_u32 s38, s37, {mi}\n    v_xor_b32 v248, s38, v246\n    v_lshl_add_u32 v{VA+mi}, v248, 5, v249")
    a(f"""    s_mul_i32 s37, s35, 7
    s_lshl_b32 s38, s29, 1
    s_add_u32 s37, s37, s38          ; f0 = 2p + 7wn""")
    for ni in range(7):
        a(f"    s_add_u32 s38, s37, {ni}\n    v_xor_b32 v248, s38, v246\n    v_lshl_add_u32 v{VB+ni}, v248, 5, v247")
        a(f"    v_add_u32 v{vbh(ni)}, 0x10000, v{VB+ni}")
    for i in range(0, 112, 2): a(f"    v_mov_b64 {vr(ACC+i,2)}, 0")
    for i in range(4): a(f"    v_mov_b32 v{ONE+i}, 0x3f803f80")
    a(f"""    v_lshrrev_b32 v248, 2, v241
    v_and_b32 v249, 3, v240
    v_cmp_eq_u32 s[70:71], v248, v242
    v_cmp_eq_u32 s[64:65], 1, v249
    v_cmp_eq_u32 s[66:67], 2, v249
    v_cmp_eq_u32 s[68:69], 3, v249
    s_and_b32 s41, s27, 3
    s_add_u32 s41, s41, 1
    s_lshl_b32 s59, s26, 14
    s_xor_b32 s36, s35, 1
    s_lshl_b32 s36, s36, 13
    s_add_u32 s59, s59, s36
    s_lshl_b32 s36, s27, 9
    s_add_u32 s59, s59, s36
    s_lshl_b32 s36, s34, 8
    s_add_u32 s59, s59, s36
    s_mul_i32 s36, s35, 896
    s_add_u32 s36, s36, {TCB}
    v_lshl_add_u32 v233, v241, 3, s36
    s_lshl_b32 s36, s34, 9
    s_add_u32 s36, s36, {TRM}
    v_lshl_add_u32 v247, v241, 3, s36
    v_cmp_eq_u32 vcc, 0, v242
    v_mov_b32 v248, {TRM + 1024}
    v_mov_b32 v249, 128
    v_cndmask_b32 v252, v248, v247, vcc
    v_cndmask_b32 v249, 0, v249, vcc
    v_add_u32 v253, v252, v249
    v_add_u32 v254, v253, v249
    v_add_u32 v255, v254, v249
    v_lshrrev_b32 v246, 1, v242
    v_xor_b32 v246, v246, v245
    v_lshlrev_b32 v246, 4, v246          ; ((kg>>1)^r7)<<4
    v_and_b32 v247, 1, v242
    v_lshl_add_u32 v247, v247, 3, v244   ; m*128 + half*8""")
    for ni in range(7):
        a(f"""    s_add_u32 s38, s37, {ni}
    s_lshr_b32 s39, s38, 2
    s_lshl_b32 s39, s39, 14
    s_and_b32 s38, s38, 3
    s_lshl_b32 s38, s38, 5
    s_or_b32 s{76+ni if ni < 4 else 60+ni-4}, s38, s39""")
    a("    s_waitcnt lgkmcnt(0)")
    srd(a, 72, 4, 256 * 1024, off=PST_OFF)
    if opt.tagx:
        srd(a, 12, 4, 256 * 16384, off=XCH_OFF)
        a(f"""    v_lshlrev_b32 v248, 4, v240
    s_lshl_b32 s46, s2, 14
    s_lshl_b32 s36, s33, 12
    s_add_u32 s46, s46, s36
    s_xor_b32 s45, s46, {PX << 14:#x}""")
        for i in range(4): a(f"    v_mov_b32 v{F1+i}, -1")
        if opt.tagx == 2:
            for q in range(4): a(f"    buffer_store_dwordx4 {vr(F1,4)}, v248, s[12:15], s46 offen offset:{q*1024} sc1")
    stamp(a, 0)
    a("    s_barrier")
    if opt.tagx == 1:
        for q in range(4): a(f"    buffer_store_dwordx4 {vr(F1,4)}, v248, s[12:15], s46 offen offset:{q*1024} sc1")
    stamp(a, 1)
    CT = F0; MTR = F0 + 16
    def g1_tail(mf):
        stamp(a, 13)
        mf = [m for j, m in enumerate(mf) if (j & 3) < 2] + [m for j, m in enumerate(mf) if (j & 3) >= 2]
        fill = [f"    ds_read_b64 {vr(MTR+2*mi,2)}, v{252+mi}" for mi in range(4)]
        fill += [f"    ds_read_b64 {vr(CT+2*ni,2)}, v233 offset:{128*ni}" for ni in range(7)]
        fill += ["\n".join(f"    v_xad_u32 v{wad(ni)}, v246, s{76+ni if ni < 4 else 60+ni-4}, v247" for ni in q) for q in ((0, 1), (2, 3), (4, 5), (6,))]
        fill += [f"""    s_lshl_b32 s36, s55, 8
    s_lshl_b32 s38, s35, 7""", """    s_add_u32 s36, s36, s38
    s_mov_b32 s16, s50""", """    s_mov_b32 s17, s51
    s_mov_b32 s18, 2048""", "    s_mov_b32 s19, 0x00020000"]
        fill += [f"    buffer_load_dwordx2 {vr(232 + 2*ni, 2)}, v243, s[16:19], s36 offen offset:{32*ni}" for ni in range(4)]
        for j, m in enumerate(mf):
            a(m)
            if j < len(fill): a(fill[j])
        def corr(ni, mi):
            c = ACC + 4 * (mi * 7 + ni)
            a(f"    v_mfma_f32_16x16x16_bf16 {vr(c,4)}, {vr(CT+2*ni,2)}, {vr(MTR+2*mi,2)}, {vr(c,4)}")
        def act(ni, mi):
            c = ACC + 4 * (mi * 7 + ni)
            for x in range(4): a(f"    v_max_f32 v{c+x}, 0, v{c+x}")
            a(f"    v_pk_mul_f32 {vr(c,2)}, {vr(c,2)}, {vr(c,2)}\n    v_pk_mul_f32 {vr(c+2,2)}, {vr(c+2,2)}, {vr(c+2,2)}")
            a(f"    v_cvt_pk_bf16_f32 v{c}, v{c}, v{c+1}\n    v_cvt_pk_bf16_f32 v{c+1}, v{c+2}, v{c+3}")
            a(f"    ds_write_b64 v{wad(ni)}, {vr(c,2)} offset:{mi*2048}")
        a("    s_waitcnt lgkmcnt(0)")
        first = [(ni, mi) for ni in range(7) for mi in range(2)]; second = [(ni, mi) for ni in range(7) for mi in range(2, 4)]
        for x in first[:6]: corr(*x)
        a("    s_nop 1")
        rest = first[6:] + second
        for j, x in enumerate(first):
            for y in rest[2*j: 2*j + 2]: corr(*y)
            act(*x)
        stamp(a, 14)
        a("    s_waitcnt lgkmcnt(0)\n    s_barrier                            ; E0")
        stamp(a, 15)
        for x in second: act(*x)
    def rdA1(F, slot, kh):
        return [f"    ds_read_b64_tr_b16 {vr(F + 4*mi + 2*t, 2)}, v{VA+mi} offset:{slot*16384 + kh*8192 + t*1024}" for mi in range(4) for t in range(2)]
    def rdB1(F, slot, kh, ni):
        reg = VB + ni if slot < 2 else vbh(ni)
        return [f"    ds_read_b64_tr_b16 {vr(F + 16 + 4*ni + 2*t, 2)}, v{reg} offset:{(slot&1)*32768 + kh*16384 + t*2048}" for t in range(2)]
    loop_unrolled(a, L + "1", 4, 7, NK1, NS1, ACC, F0, F1, rdA1, rdB1, 40, opt.ga_bar, g1_tail,
                  hookA=lambda u: f"    s_cmp_eq_u32 s40, s41\n    s_cbranch_scc1 {L}_xa{u}\n{L}_xar{u}:",
                  hookB=lambda u: f"    s_cmp_eq_u32 s40, s41\n    s_cbranch_scc1 {L}_xb")
    a("    s_waitcnt lgkmcnt(0)")
    stamp(a, 2)
    a("    s_barrier                            ; E1")
    ACC = 0; G0 = 64; G1_ = 96; VA2 = 128; VB2 = 132; VBI = 232; RSD = 140
    a(f"""    s_lshl_b32 s36, s34, 13
    s_lshl_b32 s37, s54, 12
    s_add_u32 s36, s36, s37
    v_lshl_add_u32 v204, v241, 7, s36
    v_xor_b32 v206, v242, v245
    v_lshl_add_u32 v{VA2}, v206, 4, v204
    v_xor_b32 v{VA2+1}, 64, v{VA2}
    v_xor_b32 v{VA2+2}, 4096, v{VA2}
    v_xor_b32 v{VA2+3}, 4096, v{VA2+1}
    v_bfe_u32 v206, v240, 2, 2           ; rr
    v_lshl_add_u32 v207, v242, 3, v206
    v_lshlrev_b32 v207, 8, v207
    v_and_b32 v208, 3, v240
    v_lshl_add_u32 v207, v208, 3, v207
    v_add_u32 v207, {B2}, v207
    v_and_b32 v208, 1, v242
    v_lshl_or_b32 v206, v208, 2, v206    ; g
    s_lshl_b32 s37, s35, 2""")
    for ni in range(4):
        a(f"    s_add_u32 s38, s37, {ni}\n    v_xor_b32 v208, s38, v206\n    v_lshl_add_u32 v{VB2+ni}, v208, 5, v207")
    for i in range(0, 64, 2): a(f"    v_mov_b64 {vr(ACC+i,2)}, 0")
    stamp(a, 5)
    def g2_tail(mf):
        send = [m for j, m in enumerate(mf) if (j & 3) >= 2]; keep = [m for j, m in enumerate(mf) if (j & 3) < 2]
        for m in send: a(m)
        if opt.tagx:
            a(keep[0]); a("    v_lshlrev_b32 v203, 4, v240\n    s_mov_b32 s36, s46"); a(keep[1]); a("    s_nop 3")
        else:
            srd(a, 12, 4, 256 * 16384, off=XCH_OFF)
            a(keep[0])
            a(f"""    v_lshlrev_b32 v203, 4, v240
    s_lshl_b32 s36, s2, 14
    s_lshl_b32 s37, s33, 12
    s_add_u32 s36, s36, s37
    s_xor_b32 s45, s36, {PX << 14:#x}""")
            a(keep[1])
        for q in range(4):
            for h in range(2):
                c = ACC + 32 + 8 * q + 4 * h
                a(f"    v_cvt_pk_bf16_f32 v{G0 + 4*q + 2*h}, v{c}, v{c+1}\n    v_cvt_pk_bf16_f32 v{G0 + 4*q + 2*h + 1}, v{c+2}, v{c+3}")
            if opt.tagx:
                for d in range(4): a(f"    v_min_u32 v{G0+4*q+d}, -2, v{G0+4*q+d}")
            a(f"    buffer_store_dwordx4 {vr(G0+4*q,4)}, v203, s[12:15], s36 offen offset:{q*1024} sc1")
            for m in keep[2 + 2*q: 4 + 2*q]: a(m)
    def rdA2(F, slot, kh):
        return [f"    ds_read_b128 {vr(F + 4*mi, 4)}, v{VA2 + 2*(mi>>1) + kh} offset:{slot*16384 + (mi&1)*2048}" for mi in range(4)]
    def rdB2(F, slot, kh, ni):
        return [f"    ds_read_b64_tr_b16 {vr(F + 16 + 4*ni + 2*t, 2)}, v{VB2+ni} offset:{slot*16384 + kh*8192 + t*1024}" for t in range(2)]
    loop_unrolled(a, L + "2", 4, 4, NK2, NS2, ACC, G0, G1_, rdA2, rdB2, 40, opt.g2_bar, g2_tail, entry="s29")
    stamp(a, 6)
    srd(a, 60, 4, FLG_SZ, off=FLG_OFF)
    final_addr()
    a(f"""    v_bfe_u32 v206, v240, 2, 2           ; rr
    v_lshl_add_u32 v206, v242, 2, v206
    v_bfe_u32 v207, v206, 1, 2
    s_lshl_b32 s38, s34, 1
    v_xor_b32 v207, s38, v207
    v_lshlrev_b32 v207, 5, v207
    v_lshl_add_u32 v207, v206, 7, v207
    v_and_b32 v208, 3, v240
    v_lshl_add_u32 v207, v208, 3, v207
    s_lshl_b32 s38, s35, 13
    s_add_u32 s38, s38, {RES}
    v_add_u32 v207, s38, v207
    v_xor_b32 v208, 32, v207""")
    for j in range(8): a(f"    ds_read_b64_tr_b16 {vr(RSD+2*j,2)}, v{207 + (j>>2)} offset:{2048*(j&3)}")
    a(f"""    s_lshl_b32 s38, s34, 8
    s_lshl_b32 s39, s54, 7
    s_add_u32 s38, s38, s39
    s_add_u32 s38, s38, {TST}
    v_lshl_add_u32 v206, v241, 2, s38
    ds_read_b32 v192, v206
    ds_read_b32 v194, v206 offset:64""")
    a(f"""    s_lshl_b32 s36, s2, 9
    s_lshl_b32 s37, s33, 7
    s_add_u32 s36, s36, s37
    s_xor_b32 s37, s36, {PX << 9:#x}
    v_mov_b32 v209, 1
    v_mov_b32 v210, 0
    v_lshrrev_b32 v206, 1, v242
    v_xor_b32 v206, v206, v241           ; (kg>>1) ^ r
    s_lshl_b32 s38, s34, 13              ; 32wm*256
    v_lshl_add_u32 v207, v241, 8, s38
    v_and_b32 v208, 1, v242
    v_lshl_add_u32 v207, v208, 3, v207
    s_lshl_b32 s39, s35, 3""")
    for ni in range(4):
        a(f"    s_add_u32 s38, s39, {2*ni}\n    v_xor_b32 v208, s38, v206\n    v_lshl_add_u32 v{VB2+ni}, v208, 4, v207")
    if opt.tagx:
        a("    s_waitcnt vmcnt(4) lgkmcnt(0)")
    else:
        a(f"""    s_mov_b64 exec, 1
    s_waitcnt vmcnt(0)
    buffer_store_dword v209, v210, s[60:63], s36 offen sc1
    buffer_load_dword v211, v210, s[60:63], s37 offen sc1
    s_mov_b64 exec, -1
    s_waitcnt lgkmcnt(0)""")
    for ni in range(4):
        unpack(a, 216 + 4 * ni, VBI + 2 * ni); unpack(a, 218 + 4 * ni, VBI + 2 * ni + 1)
    for j in range(8):
        c = 160 + 4 * j; b = 216 + 4 * (j & 3)
        unpack(a, c, RSD + 2 * j); unpack(a, c + 2, RSD + 2 * j + 1)
        a(f"    v_pk_add_f32 {vr(c,2)}, {vr(c,2)}, {vr(b,2)}\n    v_pk_add_f32 {vr(c+2,2)}, {vr(c+2,2)}, {vr(b+2,2)}")
    if opt.tagx:
        a(f"{L}_poll:")
        for q in range(4): a(f"    buffer_load_dwordx4 {vr(G1_+4*q,4)}, v203, s[12:15], s45 offen offset:{q*1024} sc1")
        a(f"    s_waitcnt vmcnt(0)\n    v_max_u32 v212, v{G1_}, v{G1_+1}")
        for i in range(2, 16, 2): a(f"    v_max3_u32 v212, v212, v{G1_+i}, v{G1_+i+1}")
        a(f"    v_cmp_eq_u32 vcc, -1, v212\n    s_cmp_lg_u64 vcc, 0\n    s_cbranch_scc1 {L}_poll")
        stamp(a, 7)
    else:
        a(f"""    s_mov_b64 exec, 1
{L}_poll:
    s_waitcnt vmcnt(0)
    v_readfirstlane_b32 s38, v211
    s_cmp_eq_u32 s38, 1
    s_cbranch_scc1 {L}_seen
    buffer_load_dword v211, v210, s[60:63], s37 offen sc1
    s_branch {L}_poll
{L}_seen:
    s_mov_b64 exec, -1""")
        stamp(a, 7)
        for q in range(4):
            a(f"    buffer_load_dwordx4 {vr(G1_+4*q,4)}, v203, s[12:15], s45 offen offset:{q*1024} sc1")
    for j in range(8):
        mi, ni = j >> 2, j & 3
        c = ACC + 4 * j; p = G1_ + 2 * j
        if j % 2 == 0 and not opt.tagx: a(f"    s_waitcnt vmcnt({3 - j//2})")
        unpack(a, 212, p); unpack(a, 214, p + 1)
        a(f"""    v_pk_add_f32 {vr(c,2)}, {vr(c,2)}, v[212:213]
    v_pk_add_f32 {vr(c+2,2)}, {vr(c+2,2)}, v[214:215]
    v_pk_fma_f32 {vr(c,2)}, {vr(c,2)}, {vr(192+2*mi,2)}, {vr(160+4*j,2)} op_sel_hi:[1,0,1]
    v_pk_fma_f32 {vr(c+2,2)}, {vr(c+2,2)}, {vr(192+2*mi,2)}, {vr(162+4*j,2)} op_sel_hi:[1,0,1]
    v_cvt_pk_bf16_f32 v{c}, v{c}, v{c+1}
    v_cvt_pk_bf16_f32 v{c+1}, v{c+2}, v{c+3}
    ds_write_b64 v{VB2+ni}, {vr(c,2)} offset:{mi*4096}""")
    a("    s_waitcnt lgkmcnt(0)")
    stamp(a, 8)
    a(f"""{L}_epi2:
    v_mbcnt_lo_u32_b32 v2, -1, 0
    v_mbcnt_hi_u32_b32 v2, -1, v2
    v_lshrrev_b32 v3, 4, v2
    v_and_b32 v5, 15, v2
    v_lshlrev_b32 v6, 11, v3
    v_lshl_add_u32 v6, v5, 4, v6
    s_lshl_b32 s36, s33, 2
    v_add_u32 v3, s36, v3                ; lr (j=0)
    v_xor_b32 v4, v3, v2
    v_and_b32 v4, 15, v4
    v_lshlrev_b32 v4, 4, v4
    v_lshl_add_u32 v3, v3, 8, v4""")
    srd(a, 12, 52, MB4)
    a("""    s_barrier                            ; X3
    ds_read_b128 v[16:19], v3
    ds_read_b128 v[20:23], v3 offset:8192
    s_waitcnt lgkmcnt(1)
    buffer_store_dwordx4 v[16:19], v6, s[12:15], s43 offen
    s_waitcnt lgkmcnt(0)
    buffer_store_dwordx4 v[20:23], v6, s[12:15], s44 offen""")
    stamp(a, 9)
    if opt.stamps: a("    s_waitcnt vmcnt(0)")
    stamp(a, 10)
    stamp_end(a, kidx, 4, 33)
    a(f"{L}_end:\n    s_endpgm")
    F0 = 112; F1 = 156
    def extra(F, first, tag):
        a(f"    s_cmp_eq_u32 s35, 0\n    s_cbranch_scc0 {L}_x1{tag}")
        for mi in range(4): a(f"    v_mfma_f32_16x16x32_bf16 {vr(SA+4*mi,4)}, {vr(F+4*mi,4)}, {vr(F+4*mi,4)}, {'0' if first else vr(SA+4*mi,4)}")
        a(f"    s_branch {L}_x2{tag}\n{L}_x1{tag}:")
        for mi in range(4): a(f"    v_mfma_f32_16x16x32_bf16 {vr(SA+4*mi,4)}, {vr(ONE,4)}, {vr(F+4*mi,4)}, {'0' if first else vr(SA+4*mi,4)}")
        a(f"{L}_x2{tag}:")
    for u in range(3):
        a(f"{L}_xa{u}:"); extra(F0, True, f"a{u}"); a(f"    s_branch {L}_xar{u}")
    a(f"{L}_xb:"); extra(F1, False, "b")
    a("    s_nop 7")
    for mi in range(4):
        c = SA + 4 * mi
        a(f"""    v_cndmask_b32 v{c}, v{c}, v{c+1}, s[64:65]
    v_cndmask_b32 v{c}, v{c}, v{c+2}, s[66:67]
    v_cndmask_b32 v{c}, v{c}, v{c+3}, s[68:69]
    v_cndmask_b32 v{c}, 0, v{c}, s[70:71]""")
    for sw in ("v_permlane16_swap_b32", "v_permlane32_swap_b32"):
        for mi in range(4): a(f"    v_mov_b32 v{SA+4*mi+1}, v{SA+4*mi}")
        for mi in range(4): a(f"    {sw} v{SA+4*mi+1}, v{SA+4*mi}")
        for mi in range(4): a(f"    v_add_f32 v{SA+4*mi}, v{SA+4*mi}, v{SA+4*mi+1}")
    a(f"""    v_cmp_eq_u32 vcc, 1, v242
    v_cmp_eq_u32 s[64:65], 2, v242
    v_cmp_eq_u32 s[66:67], 3, v242
    v_cndmask_b32 v{SA}, v{SA}, v{SA+4}, vcc
    v_cndmask_b32 v{SA}, v{SA}, v{SA+8}, s[64:65]
    v_cndmask_b32 v{SA}, v{SA}, v{SA+12}, s[66:67]
    v_lshlrev_b32 v{SA+1}, 2, v240
    v_min_u32 v{SA}, -2, v{SA}
    {"s_waitcnt vmcnt(0)" if opt.tagx else ""}
    buffer_store_dword v{SA}, v{SA+1}, s[72:75], s59 offen sc1
    s_cmp_eq_u32 s40, 2
    s_cbranch_scc1 {L}1_s2
    s_cmp_eq_u32 s40, 3
    s_cbranch_scc1 {L}1_s0
    s_branch {L}1_s1
{L}_retry2:
    buffer_load_dword v9, v8, s[60:63], s46 offen offset:32 sc1
    s_waitcnt vmcnt(0)
    s_branch {L}_chk2
{L}_retry:
    s_sleep 2""")
    gather_ps()
    a(f"    s_waitcnt vmcnt(0)\n    s_branch {L}_chk")
    return (name, 256, 512, 163840), (name, 256, 96)

gen.KGEN["ga"] = gen_ga
gen.KGEN["p2"] = gen_p2
gen.KGEN["c2"] = gen_c2
```

```python
import sys
from asmlib import *
import gen, gen2, gen3
from gen import opt, stamp, stamp_begin, stamp_end, vr, wave_sum, MB4, KVR_OFF, FLG_OFF
from gen3 import XT_OFF, HT_OFF, ST1_OFF, CS_OFF, PST_OFF, unpack, rnd

KVF_OFF = 0x0CC0000
XF_OFF = KVF_OFF + 4
SF_OFF = KVF_OFF + 0x8000
GF_OFF = KVF_OFF + 0x10000
opt.kvprio = 0
opt.xearly = False
opt.tlb3 = 0
opt.tlb2 = 0
opt.flagl = True
opt.kvf = 'sc1'
opt.ldf = 'sc1'
opt.early2 = 1
opt.gate = 4
opt.xsleep = 4
opt.w1th = 4

def gen_pc(a, kidx):
    name = "f_kernel"; L = "F"
    CS = 4160; RO = 4 * CS; WSZ = 21248
    IS = 1056; KT = 4 * WSZ; VT = KT + 17 * IS; XS = KT + 33 * IS + 96; STG = XS + 16384; WRD = STG + 16 * IS
    assert XS % 16 == 0
    kernel_head(a, name)
    a(f"""    s_load_dwordx4 s[4:7], s[0:1], {ARG['k']}      ; k, v
    s_load_dwordx4 s[56:59], s[0:1], {ARG['dbg']}
    s_load_dwordx2 s[42:43], s[0:1], {ARG['q']}
    s_cmp_ge_u32 s2, 256
    s_cbranch_scc1 {L}_end""")
    stamp_begin(a)
    a(f"""    v_readfirstlane_b32 s33, v0
    s_and_b32 s24, s2, 7
    s_lshr_b32 s25, s2, 3
    v_bfe_u32 v5, v0, 4, 4
    v_and_b32 v6, 15, v0
    v_lshlrev_b32 v5, 11, v5
    v_lshl_add_u32 v5, v6, 4, v5
    s_lshl_b32 s62, s24, 5
    s_add_u32 s62, s62, s25
    v_lshrrev_b32 v4, 3, v0
    v_and_b32 v3, 7, v0              ; cg
    v_lshlrev_b32 v16, 15, v4
    v_lshl_add_u32 v16, v3, 4, v16
    s_lshl_b32 s27, s62, 7
    s_add_u32 s27, s27, {KVF_OFF:#x}
    v_add_u32 v16, s27, v16
    v_mov_b64 v[12:13], 0
    v_mov_b64 v[14:15], 0
    s_lshr_b32 s33, s33, 6           ; wave
    s_and_b32 s34, s33, 3            ; w
    s_lshl_b32 s26, s25, 17
    s_lshl_b32 s27, s24, 8
    s_add_u32 s26, s26, s27
    s_mul_i32 s35, s34, {IS}
    s_mov_b32 s14, 0x400000
    s_mov_b32 s15, 0x00020000
    s_mov_b32 s44, 0x8000
    v_cmp_gt_u32 vcc, 24, v0
    s_cmp_ge_u32 s33, 4
    s_cselect_b32 s27, {VT}, s44
    s_cselect_b32 s28, 0, {KT + IS - 0x8000}
    s_add_u32 s27, s27, s28
    s_add_u32 m0, s35, s27
    s_cmp_ge_u32 s33, 4
    s_waitcnt lgkmcnt(0)
    s_cselect_b64 s[12:13], s[6:7], s[4:5]
    s_and_saveexec_b64 s[30:31], vcc
    s_cbranch_execz {L}_nocl
    global_store_dwordx4 v16, v[12:15], s[58:59] sc1
{L}_nocl:
    s_mov_b64 exec, s[30:31]
    s_mov_b32 s27, s26""")
    for j in range(4):
        a("    buffer_load_dwordx4 v5, s[12:15], s27 offen nt lds")
        if j < 3: a(f"    s_add_u32 m0, m0, {4*IS}\n    s_add_u32 s27, s27, s44")
    a(f"""    s_load_dwordx4 s[8:11], s[0:1], {ARG['shift']}
    s_load_dwordx2 s[60:61], s[0:1], {ARG['ssmD']}
    v_and_b32 v2, 63, v0
    v_and_b32 v4, 7, v4              ; rg
    s_lshl_b32 s62, s62, 2
    s_add_u32 s63, s62, s34
    s_mul_i32 s64, s34, {WSZ}        ; WB
    s_cmp_ge_u32 s33, 4
    s_cbranch_scc1 {L}_help""")
    so = ["0", "s44", "s45", "s46"]
    def tail_addr(rev, off, ldsb):
        a(f"""    {"v_xor_b32 v13, 7, v4" if rev else "v_mov_b32 v13, v4"}
    v_xor_b32 v13, v13, v3
    v_lshlrev_b32 v13, 4, v13
    v_lshl_add_u32 v13, v3, 9, v13
    v_add_u32 v13, {ldsb}, v13
    v_lshl_add_u32 v14, v2, 4, {ldsb}
    v_lshrrev_b32 v15, 5, v2
    v_xor_b32 v15, v15, v3               ; x0 = (l&7)^(l>>5)
    v_lshlrev_b32 v9, 12, v4             ; (l>>3)*4096
    s_lshl_b32 s47, s24, 19
    s_lshl_b32 s48, s34, 17
    s_add_u32 s47, s47, s48              ; (cb*128+w*32)*4096
    s_lshl_b32 s48, s25, 7""")
        if rev: a(f"    s_sub_u32 s48, {3968 + off}, s48")
        else: a(f"    s_add_u32 s48, s48, {off:#x}")
        a("    s_add_u32 s47, s47, s48")
    def tail_out(R):
        a("    s_waitcnt lgkmcnt(0)")
        for i in range(4): a(f"    ds_read_b128 {vr(R+4*i,4)}, v14 offset:{1024*i}")
        for i in range(4): a(f"    v_xor_b32 v8, {2*i}, v15\n    v_lshl_add_u32 v{R+16+i}, v8, 4, v9")
        for i in range(4):
            a(f"    s_waitcnt lgkmcnt({3-i})\n    buffer_store_dwordx4 {vr(R+4*i,4)}, v{R+16+i}, s[36:39], s47 offen {opt.kvf}\n    s_add_u32 s47, s47, 32768")
    def count_in(word, tag):
        a(f"""    v_mov_b32 v10, {WRD}
    v_mov_b32 v11, 1
    v_mov_b32 v12, 0
    s_mov_b64 exec, 1
    ds_add_rtn_u32 v13, v10, v11 offset:{word}
    s_mov_b64 exec, -1
    s_waitcnt lgkmcnt(0)
    v_readfirstlane_b32 s35, v13
    s_cmp_eq_u32 s35, 3""")
    def spin(word, val, tag, r=13):
        a(f"""{L}_sp{tag}:
    ds_read_b32 v{r}, v10 offset:{word}
    s_waitcnt lgkmcnt(0)
    v_readfirstlane_b32 s35, v{r}
    s_cmp_eq_u32 s35, {val}
    s_cbranch_scc1 {L}_sq{tag}
    s_sleep 1
    s_branch {L}_sp{tag}
{L}_sq{tag}:""")
    def reg_issue():
        a("    buffer_load_dwordx2 v[36:37], v39, s[52:55], 0 offen sc1")
    def reg_check(tag):
        a(f"""    s_getreg_b32 s65, hwreg(HW_REG_XCC_ID)
    s_and_b32 s65, s65, 7
    s_lshl_b32 s65, s65, 3
    s_lshl_b64 s[66:67], 32, s65
{L}_rg{tag}:
    v_sad_u8 v38, v36, 0, 0
    v_sad_u8 v38, v37, 0, v38
    v_cmp_eq_u32 vcc, 32, v38
    s_cmp_eq_u64 vcc, -1
    s_cbranch_scc1 {L}_rk{tag}
    s_sleep 24
    buffer_load_dwordx2 v[36:37], v39, s[52:55], 0 offen sc1
    s_waitcnt vmcnt(0)
    s_branch {L}_rg{tag}
{L}_rk{tag}:
    v_readlane_b32 s68, v36, s24
    v_readlane_b32 s69, v37, s24
    s_cmp_eq_u64 s[68:69], s[66:67]
    s_cselect_b32 s65, 1, 0""")
    def signal_poll(off, tag, poll=True):
        a(f"""{L}_md{tag}:
    ds_read_b32 v13, v10 offset:28
    s_waitcnt lgkmcnt(0)
    v_readfirstlane_b32 s65, v13
    s_cmp_eq_u32 s65, 0
    s_cbranch_scc1 {L}_md{tag}
    s_sub_u32 s65, s65, 1""")
        a(f"""    s_lshl_b32 s27, s62, 5
    s_and_b32 s28, s27, 0xfffff000
    s_add_u32 s27, s27, {off:#x}
    s_add_u32 s28, s28, {off:#x}
    v_and_b32 v14, 31, v2
    v_lshlrev_b32 v14, 7, v14
    s_mov_b64 exec, 1
    s_cmp_eq_u32 s65, {1 if opt.flagl else 7}
    s_cbranch_scc1 {L}_sl{tag}
    {"" if opt.kvf == "sc1" else "buffer_wbl2 sc1"}
    {"" if opt.kvf == "sc1" else "s_waitcnt vmcnt(0)"}
    buffer_store_dword v11, v12, s[36:39], s27 offen sc1
    s_branch {L}_pp{tag}
{L}_sl{tag}:
    buffer_store_dword v11, v12, s[36:39], s27 offen
{L}_pp{tag}:
    s_mov_b64 exec, -1""")
        if not poll:
            a(f"""    s_cmp_lg_u32 s25, 0
    s_cbranch_scc1 {L}_pl{tag}
    s_add_u32 s27, s28, {SF_OFF - XF_OFF:#x}
{L}_sfp:
    buffer_load_dword v15, v14, s[36:39], s27 offen sc1
    s_waitcnt vmcnt(0)
    v_cmp_eq_u32 vcc, 1, v15
    s_cmp_eq_u64 vcc, -1
    s_cbranch_scc0 {L}_sfp
    s_lshl_b32 s27, s24, 12
    s_add_u32 s27, s27, {GF_OFF:#x}
    s_mov_b64 exec, 1
    buffer_store_dword v11, v12, s[36:39], s27 offen sc1
    s_mov_b64 exec, -1""")
        a(f"""{L}_pl{tag}:
    buffer_load_dword v15, v14, s[36:39], s28 offen sc1
    s_waitcnt vmcnt(0)
    v_cmp_eq_u32 vcc, 1, v15
    s_cmp_eq_u64 vcc, -1
    s_cbranch_scc0 {L}_pl{tag}""")
    a(f"""    v_and_b32 v6, 0x1fff, v5
    v_add_u32 v6, s26, v6
    v_subrev_u32 v6, 8192, v6
    s_mov_b32 m0, {KT}
    s_nop 0
    buffer_load_dwordx4 v6, s[12:15], 0 offen nt lds
    s_waitcnt lgkmcnt(0)""")
    KR = 208; VR = 40; WR = 56
    srd(a, 20, 8, 8192)
    a(f"""    s_lshl_b32 s27, s24, 10
    s_lshl_b32 s28, s34, 8
    s_add_u32 s27, s27, s28
    v_lshlrev_b32 v8, 5, v3
    buffer_load_dwordx4 {vr(WR,4)}, v8, s[20:23], s27 offen
    buffer_load_dwordx4 {vr(WR+4,4)}, v8, s[20:23], s27 offen offset:16
    s_lshr_b32 s28, s63, 1
    s_lshl_b32 s28, s28, 2
    s_load_dword s29, s[60:61], s28
    v_mul_u32_u24 v7, {2*IS}, v4
    v_lshl_add_u32 v7, v3, 3, v7
    s_lshl_b32 s27, s34, 6
    s_add_u32 s27, s27, {KT}
    v_add_u32 v7, s27, v7
    v_mov_b32 v10, {WRD}
    v_mov_b32 v16, 0
    v_mov_b32 v17, 0
    v_mov_b32 v18, 0
    v_mov_b32 v19, 0
    ds_write_b128 v10, v[16:19]
    ds_write_b128 v10, v[16:19] offset:16
    ds_write_b128 v10, v[16:19] offset:32
    s_add_u32 s49, s64, {RO}""")
    srd(a, 36, 58, 64 << 20); srd(a, 52, 56, 256)
    a("    v_lshlrev_b32 v39, 5, v3")
    tail_addr(True, KVR_OFF, "s49")
    WF = 64; KF = 80; VF = 124; OF = 156; PK = 190
    stamp(a, 0)
    a(f"""    s_waitcnt lgkmcnt(0)
    s_barrier
    s_cmp_lg_u32 s33, 0
    s_cbranch_scc1 {L}_noreg
    s_getreg_b32 s65, hwreg(HW_REG_XCC_ID)
    s_and_b32 s65, s65, 7
    s_lshl_b32 s65, s65, 3
    s_lshl_b64 s[66:67], 1, s65
    v_mov_b32 v16, s66
    v_mov_b32 v17, s67
    v_mov_b32 v12, 0
    s_lshl_b32 s30, s24, 5
    s_mov_b64 exec, 1
    s_waitcnt vmcnt(7)""")
    stamp(a, 9)
    a(f"""    buffer_atomic_add_x2 v[16:17], v12, s[52:55], s30 offen sc1
    v_mov_b32 v11, 1
    ds_write_b32 v10, v11 offset:44
    s_mov_b64 exec, -1
    s_waitcnt vmcnt(1)
    s_branch {L}_kvl
{L}_noreg:
    s_waitcnt vmcnt(0)
{L}_kvl:""")
    a("""    s_nop 0
    v_mov_b32 v11, 1
    s_mov_b64 exec, 1
    ds_add_u32 v10, v11 offset:32
    s_mov_b64 exec, -1""")
    spin(32, 8, "k", 12)
    if opt.kvprio: a(f"    s_setprio {opt.kvprio}")
    stamp(a, 1)
    kro = lambda jj: ((1 + jj) >> 2) * IS + ((1 + jj) & 3) * 256
    order = [("k", 0), ("k", 1), ("k", 2)] + [x for j in range(8) for x in (("k", 3 + j), ("v", j))]
    def rd(x):
        if x[0] == "k": a(f"    ds_read_b64 {vr(KR + 2*x[1], 2)}, v7 offset:{kro(x[1])}")
        else: a(f"    ds_read_b64 {vr(VR + 2*x[1], 2)}, v7 offset:{17*IS + (x[1] >> 2)*IS + (x[1] & 3)*256}")
    for x in order[:13]: rd(x)
    for c in range(4):
        for j in range(4):
            src = WR + 2 * c + (j >> 1); d = WF + (c >> 1) * 8 + j * 2 + (c & 1)
            a(f"    v_lshlrev_b32 v{d}, 16, v{src}" if j % 2 == 0 else f"    v_and_b32 v{d}, 0xffff0000, v{src}")
    def unp2(dst, src):
        for p in range(2): unpack(a, dst + 2 * p, src + p)
    a("    s_waitcnt lgkmcnt(8)")
    for x in order[13:]: rd(x)
    for r in range(3): unp2(KF + 4 * r, KR + 2 * r)
    for j in range(8):
        if j: a(f"    s_waitcnt lgkmcnt({14 - 2*j})")
        unp2(KF + 4 * (3 + j), KR + 6 + 2 * j); unp2(VF + 4 * j, VR + 2 * j)
        for p in range(2):
            o = OF + 4 * j + 2 * p
            k = lambda r: vr(KF + 4 * r + 2 * p, 2)
            w = lambda t: vr(WF + p * 8 + 2 * t, 2)
            a(f"    v_pk_mul_f32 {vr(o,2)}, {k(j)}, {w(3)}")
            a(f"    v_pk_fma_f32 {vr(o,2)}, {k(j+1)}, {w(2)}, {vr(o,2)}")
            a(f"    v_pk_fma_f32 {vr(o,2)}, {k(j+2)}, {w(1)}, {vr(o,2)}")
            a(f"    v_pk_fma_f32 {vr(o,2)}, {k(j+3)}, {w(0)}, {vr(o,2)}")
            a(f"    v_pk_mul_f32 {vr(o,2)}, {vr(o,2)}, {vr(VF + 4*j + 2*p, 2)}")
    for c in range(4):
        for d in range(4):
            a(f"    v_cvt_pk_bf16_f32 v{PK+4*c+d}, v{OF + 4*(7-2*d) + c}, v{OF + 4*(6-2*d) + c}")
        a(f"    ds_write_b128 v13, {vr(PK+4*c,4)} offset:{128*c}")
    tail_out(16)
    a(f"    s_cmp_lg_u32 s33, 0\n    s_cbranch_scc1 {L}_nr1")
    reg_issue()
    a(f"{L}_nr1:")
    stamp(a, 2)
    ACC = 80; F0 = 112; F1 = 176
    a(f"""    v_lshlrev_b32 v40, 4, v2         ; lane*16
    v_add_u32 v4, s64, v40
    v_mov_b32 v60, 0
    v_mov_b32 v61, 0
    v_mov_b32 v62, 0
    v_mov_b32 v63, 0
    s_mov_b64 exec, 0x3fffffff
    ds_write_b128 v4, v[60:63] offset:{RO + 4096}
    s_mov_b64 exec, -1
    v_and_b32 v5, 15, v2             ; b / a
    v_lshrrev_b32 v6, 4, v2          ; kg
    v_add_u32 v7, 1, v5
    v_and_b32 v8, 3, v7
    v_mul_u32_u24 v8, {CS}, v8
    v_and_b32 v7, 28, v7
    v_lshl_add_u32 v8, v7, 1, v8
    v_lshl_add_u32 v8, v6, 4, v8
    v_add_u32 v8, s64, v8            ; vAT
    v_lshlrev_b32 v9, 5, v5
    v_lshl_add_u32 v41, v6, 3, v9    ; 32a + 8g
    v_sub_u32 v9, {RO + 480}, v9
    v_lshl_add_u32 v9, v6, 4, v9
    v_add_u32 v9, s64, v9            ; vBT
    s_lshl_b32 s26, s63, 12
    s_add_u32 m0, s64, {RO}""")
    for i in range(0, 32, 2): a(f"    v_mov_b64 {vr(ACC+i,2)}, 0")
    a(f"    s_waitcnt vmcnt(0)\n    s_cmp_lg_u32 s33, 0\n    s_cbranch_scc1 {L}_nr2")
    reg_check("a")
    a(f"""    s_add_u32 s65, s65, 1
    v_mov_b32 v38, s65
    ds_write_b32 v10, v38 offset:28
{L}_nr2:""")
    stamp(a, 3)
    count_in(0, "a")
    a(f"    s_cbranch_scc0 {L}_w1")
    signal_poll(KVF_OFF, "a")
    a(f"""    ds_write_b32 v10, v11 offset:4
    s_branch {L}_g1
{L}_w1:""")
    spin(4, 1, "a")
    a(f"{L}_g1:")
    stamp(a, 4)
    for i in range(4): a(f"    buffer_load_dwordx4 v40, s[36:39], s26 offen offset:{1024*i} {opt.ldf} lds")
    spin(8, 4, "b")
    a("    s_waitcnt vmcnt(0)")
    stamp(a, 5)
    def reads(F, woff):
        r = []
        for u in range(8):
            r.append(f"    ds_read_b128 {vr(F+32+4*u,4)}, v9 offset:{3584 - 512*u + woff}")
            r.append(f"    ds_read_b64 {vr(F+4*u,2)}, v8 offset:{512*u + woff}")
            r.append(f"    ds_read_b64 {vr(F+4*u+2,2)}, v8 offset:{512*u + 8 + woff}")
        return r
    def mf(F):
        return [f"    v_mfma_f32_16x16x32_bf16 {vr(ACC+4*(u+v),4)}, {vr(F+4*u,4)}, {vr(F+32+4*v,4)}, {vr(ACC+4*(u+v),4)}" for u in range(8) for v in range(8 - u)]
    def weave(m, f):
        i = 0
        for x in m:
            a(x)
            if i < len(f): a(f[i]); i += 1
        assert i == len(f)
    for l in reads(F0, 0): a(l)
    a(f"    s_mov_b32 s35, 0\n{L}_loop:\n    s_waitcnt lgkmcnt(0)")
    weave(mf(F0), reads(F1, 64) + ["    ds_read_b32 v35, v10 offset:20", "    v_add_u32 v8, 128, v8", "    v_add_u32 v9, 128, v9", "    s_add_u32 s35, s35, 1", "    s_cmp_eq_u32 s35, 4"])
    a(f"    s_waitcnt lgkmcnt(0)\n    s_cbranch_scc1 {L}_last")
    weave(mf(F1), reads(F0, 0))
    a(f"""    s_branch {L}_loop
{L}_again:
    s_sleep 1
    ds_read_b32 v35, v10 offset:20
    s_waitcnt lgkmcnt(0)
{L}_last:
    v_readfirstlane_b32 s35, v35
    s_cmp_eq_u32 s35, 4
    s_cbranch_scc0 {L}_again""")
    KV = F0; MT = F0 + 16; RTB = 44; XR_ = 16
    pre = [f"""    v_sub_u32 v32, {RO + 504}, v41
    v_add_u32 v32, s64, v32""",
           f"""    v_lshlrev_b32 v33, 1, v41
    v_add_u32 v33, {STG}, v33""",
           f"""    s_lshl_b32 s35, s34, 12
    s_add_u32 s35, s35, {XS}""", "    v_add_u32 v34, s35, v41"]
    for n in range(8):
        pre += [f"    ds_read_b64 {vr(KV+2*n,2)}, v32 offset:{512*(7-n)}", f"    ds_read_b64 {vr(XR_+2*n,2)}, v34 offset:{512*n}",
                f"    ds_read_b128 {vr(MT+4*n,4)}, v33 offset:{1024*n}", f"    ds_read_b128 {vr(RTB+4*n,4)}, v33 offset:{8192 + 1024*n}"]
    weave(mf(F1), pre)
    a(f"""    s_lshl_b32 s35, s29, 16
    s_and_b32 s27, s29, 0xffff0000
    s_bitcmp1_b32 s63, 0
    s_cselect_b32 s35, s27, s35          ; D as f32
    s_and_b32 s27, s63, 3
    s_bfe_u32 s28, s63, 0x10003
    s_lshl_b32 s28, s28, 2
    s_or_b32 s27, s27, s28               ; g(d)
    v_and_b32 v11, 7, v5
    v_xor_b32 v11, s27, v11
    v_lshlrev_b32 v11, 5, v11
    v_lshrrev_b32 v12, 3, v5
    v_lshl_add_u32 v11, v12, 18, v11
    v_and_b32 v12, 1, v6
    v_lshl_add_u32 v11, v12, 19, v11
    v_lshrrev_b32 v12, 1, v6
    v_lshl_add_u32 v11, v12, 4, v11
    s_lshl_b32 s34, s63, 8
    s_add_u32 s34, s34, {HT_OFF:#x}""")
    stamp(a, 6)
    OUT = 224
    for n in range(8):
        c = ACC + 4 * n; k = KV + 2 * n; x = XR_ + 2 * n; o = OUT + 2 * n
        lg = 4 * (7 - n)
        if lg <= 12: a(f"    s_waitcnt lgkmcnt({lg})")
        elif n == 0: a("    s_waitcnt lgkmcnt(15)")
        a(f"""    v_and_b32 v12, 0xffff0000, v{k+1}
    v_lshlrev_b32 v13, 16, v{k+1}
    v_and_b32 v14, 0xffff0000, v{k}
    v_lshlrev_b32 v15, 16, v{k}
    v_fmac_f32 v{c}, s35, v12
    v_fmac_f32 v{c+1}, s35, v13
    v_fmac_f32 v{c+2}, s35, v14
    v_fmac_f32 v{c+3}, s35, v15
    v_lshlrev_b32 v12, 16, v{x}
    v_and_b32 v13, 0xffff0000, v{x}
    v_lshlrev_b32 v14, 16, v{x+1}
    v_and_b32 v15, 0xffff0000, v{x+1}
    v_pk_mul_f32 {vr(c,2)}, {vr(c,2)}, {vr(RTB+4*n,2)}
    v_pk_mul_f32 {vr(c+2,2)}, {vr(c+2,2)}, {vr(RTB+4*n+2,2)}
    v_pk_add_f32 {vr(MT+4*n,2)}, v[12:13], {vr(MT+4*n,2)} neg_lo:[0,1] neg_hi:[0,1]
    v_pk_add_f32 {vr(MT+4*n+2,2)}, v[14:15], {vr(MT+4*n+2,2)} neg_lo:[0,1] neg_hi:[0,1]
    v_pk_fma_f32 v[12:13], {vr(MT+4*n,2)}, {vr(c,2)}, v[12:13]
    v_pk_fma_f32 v[14:15], {vr(MT+4*n+2,2)}, {vr(c+2,2)}, v[14:15]
    v_cvt_pk_bf16_f32 v{o}, v12, v13
    v_cvt_pk_bf16_f32 v{o+1}, v14, v15""")
        if n & 1:
            a(f"""    s_nop 0
    v_permlane16_swap_b32 v{o-2}, v{o}
    v_permlane16_swap_b32 v{o-1}, v{o+1}
    buffer_store_dwordx4 {vr(o-2,4)}, v11, s[36:39], s34 offen {opt.htf}
    s_add_u32 s34, s34, 0x100000""")
    stamp(a, 7)
    a(f"    s_branch {L}_done")
    FD = 16; TO = 52; XT_ = 80; XR = 96; XF = 112; PKX = 144
    a(f"""{L}_help:
    v_lshlrev_b32 v6, 4, v2          ; lane*16
    s_lshl_b32 s27, s25, 6
    s_lshl_b32 s28, s24, 3
    s_add_u32 s27, s27, s28
    s_lshl_b32 s28, s34, 1
    s_add_u32 s27, s27, s28
    s_lshl_b32 s28, s27, 11""")
    srd(a, 16, 42, MB4); srd(a, 36, 58, 64 << 20)
    for i in range(4): a(f"    buffer_load_dwordx4 {vr(XR+4*i,4)}, v6, s[16:19], s28 offen offset:{1024*i}")
    a("    s_waitcnt lgkmcnt(0)")
    srd(a, 12, 10, MB4)
    a(f"""    v_add_u32 v5, s26, v5            ; x tile
    s_mov_b32 s45, 0x10000
    s_mov_b32 s46, 0x18000
    s_lshl_b32 s26, s63, 12
    s_load_dwordx2 s[10:11], s[0:1], {ARG['w1']}
    s_lshl_b32 s49, s34, 12
    s_add_u32 s49, s49, {XS}
    s_mov_b32 s70, 0x05040100
    s_mov_b32 s71, 0x07060302
    s_mov_b32 s51, 0x3a800000
    s_mov_b32 s50, 0x3727c5ac
    s_lshl_b32 s27, s27, 2
    s_add_u32 s72, s27, {ST1_OFF:#x}
    s_add_u32 s73, s72, 8192
    v_add_u32 v7, s64, v6
    v_mov_b32 v60, 0
    v_mov_b32 v61, 0
    v_mov_b32 v62, 0
    v_mov_b32 v63, 0
    v_mul_u32_u24 v39, {2*IS}, v4
    v_lshl_add_u32 v39, v3, 3, v39
    s_lshl_b32 s27, s34, 6
    s_add_u32 s27, s27, {STG}
    v_add_u32 v39, s27, v39""")
    a("    s_waitcnt lgkmcnt(0)\n    s_barrier")
    stamp(a, 0)
    if opt.tlb3:
        sh = opt.tlb3
        a(f"""    s_load_dwordx2 s[74:75], s[0:1], {ARG['w2']}
    s_load_dwordx2 s[76:77], s[0:1], {ARG['out']}
    s_lshl_b32 s78, s25, 2
    s_add_u32 s78, s78, s34
    s_lshl_b32 s78, s78, {sh}
    s_waitcnt lgkmcnt(0)""")
        for r, n in (("s[10:11]", 1024 * 7168), ("s[74:75]", 3584 * 2048), ("s[76:77]", MB4), ("s[58:59]", 0x2900000)):
            for j in range((n + (128 << sh) - 1) // (128 << sh)):
                a(f"    s_add_u32 s30, s78, {j * (128 << sh):#x}\n    s_min_u32 s30, s30, {n - 4:#x}\n    s_load_dword s79, {r}, s30")
    if opt.tlb2:
        G = opt.tlb2
        a(f"""    s_cmp_lg_u32 s25, 1
    s_cbranch_scc1 {L}_notlb
    s_load_dwordx2 s[74:75], s[0:1], {ARG['w2']}
    s_load_dwordx2 s[76:77], s[0:1], {ARG['out']}
    s_waitcnt lgkmcnt(0)""")
        regs = [("s[10:11]", 1024 * 7168), ("s[74:75]", 3584 * 2048), ("s[76:77]", MB4), ("s[58:59]", 0x2900000)]
        lst = [(r, o) for r, n in regs for o in range(0, n, G)]
        for w in range(4):
            a(f"    s_cmp_lg_u32 s34, {w}\n    s_cbranch_scc1 {L}_tl{w}")
            for j, (r, o) in enumerate(lst[w::4]):
                a(f"    s_mov_b32 s78, {o:#x}\n    s_load_dword s79, {r}, s78")
                if j % 14 == 13: a("    s_waitcnt lgkmcnt(0)")
            a(f"{L}_tl{w}:")
        a(f"{L}_notlb:")
    S = [180, 181]; T = [182, 183]; M = [184, 186]; PS = [188, 190]
    a(f"""    v_mov_b32 v10, {WRD}
    v_mov_b32 v11, 1
    s_waitcnt vmcnt(4)
    s_mov_b64 exec, 1
    ds_add_u32 v10, v11 offset:32
    s_mov_b64 exec, -1""")
    a(f"    s_waitcnt vmcnt({opt.early2 - 1})\n    s_add_u32 m0, s64, 32\n    s_nop 0")
    for i in range(4): a(f"    buffer_load_dwordx4 v6, s[12:15], s26 offen offset:{1024*i} nt lds")
    def xtile():
        a(f"    s_mul_i32 s35, s34, {IS}")
        for j in range(4): a(f"    s_add_u32 m0, s35, {STG + 4*j*IS}\n    s_nop 0\n    buffer_load_dwordx4 v5, s[16:19], {so[j]} offen lds")
    if opt.xearly: xtile()
    a(f"    s_waitcnt vmcnt({8 if opt.xearly else 4})")
    stamp(a, 1)
    for rho in range(2):
        for i in range(8): unpack(a, XF + 16 * rho + 2 * i, XR + 8 * rho + i)
    src = lambda rho, i: XF + 16 * rho + 2 * i
    for rho in range(2): a(f"    v_pk_add_f32 {vr(PS[rho],2)}, {vr(src(rho,0),2)}, {vr(src(rho,1),2)}")
    for i in range(2, 8):
        for rho in range(2): a(f"    v_pk_add_f32 {vr(PS[rho],2)}, {vr(PS[rho],2)}, {vr(src(rho,i),2)}")
    for rho in range(2): a(f"    v_add_f32 v{S[rho]}, v{PS[rho]}, v{PS[rho]+1}")
    wave_sum(a, S, T)
    for rho in range(2): a(f"    v_mul_f32 v{M[rho]}, s51, v{S[rho]}")
    for i in range(8):
        for rho in range(2):
            a(f"    v_pk_add_f32 {vr(src(rho,i),2)}, {vr(src(rho,i),2)}, {vr(M[rho],2)} op_sel_hi:[1,0] neg_lo:[0,1] neg_hi:[0,1]")
    for rho in range(2): a(f"    v_pk_mul_f32 {vr(PS[rho],2)}, {vr(src(rho,0),2)}, {vr(src(rho,0),2)}")
    for i in range(1, 8):
        for rho in range(2): a(f"    v_pk_fma_f32 {vr(PS[rho],2)}, {vr(src(rho,i),2)}, {vr(src(rho,i),2)}, {vr(PS[rho],2)}")
    for rho in range(2): a(f"    v_add_f32 v{S[rho]}, v{PS[rho]}, v{PS[rho]+1}")
    wave_sum(a, S, T)
    for rho in range(2):
        a(f"    v_mov_b32 v{192+rho}, v{M[rho]}"); rnd(a, 192 + rho)
        a(f"    v_mul_f32 v{194+rho}, s51, v{S[rho]}"); rnd(a, 194 + rho); a(f"    v_add_f32 v{194+rho}, s50, v{194+rho}"); rnd(a, 194 + rho)
    a("    v_sqrt_f32 v194, v194\n    v_sqrt_f32 v195, v195\n    s_nop 0")
    for rho in range(2): rnd(a, 194 + rho)
    a(f"""    v_rcp_f32 v194, v194
    v_rcp_f32 v195, v195
    v_mov_b32 v12, 0
    s_mov_b64 exec, 1
    buffer_store_dwordx2 v[192:193], v12, s[36:39], s72 offen sc1
    buffer_store_dwordx2 v[194:195], v12, s[36:39], s73 offen sc1
    s_mov_b64 exec, -1""")
    if not opt.xearly: xtile()
    stamp(a, 2)
    a(f"    v_mov_b32 v10, {WRD}\n    v_mov_b32 v11, 1\n    s_waitcnt vmcnt({6})")
    for i in range(4):
        a(f"    ds_read_b128 {vr(FD+8*i,4)}, v7 offset:{32 + 1024*i}\n    ds_read_b64 {vr(FD+8*i+4,2)}, v7 offset:{48 + 1024*i}")
    for i in range(4):
        D = FD + 8 * i; t = 64 + 12 * (i & 1) + 132
        a(f"    s_waitcnt lgkmcnt({6 - 2*i})" if i == 0 else f"    s_waitcnt lgkmcnt({min(15, 6 - 2*i + 3*i + (8 if i else 0))})")
        for k in range(4): a(f"    v_alignbit_b32 v{t+k}, v{D+k+1}, v{D+k}, 16")
        a(f"    ds_write_b128 v7, {vr(t,4)} offset:{CS + 32 + 1024*i}")
        for k in range(4): a(f"    v_mov_b32 v{t+4+k}, v{D+k+1}")
        a(f"    ds_write_b128 v7, {vr(t+4,4)} offset:{2*CS + 32 + 1024*i}")
        for k in range(4): a(f"    v_alignbit_b32 v{t+8+k}, v{D+k+2}, v{D+k+1}, 16")
        a(f"    ds_write_b128 v7, {vr(t+8,4)} offset:{3*CS + 32 + 1024*i}")
        if i == 0:
            a(f"""    v_mov_b32 v68, 0
    v_mov_b32 v69, 0
    v_mov_b32 v70, 0
    v_lshlrev_b32 v71, 16, v{D}
    v_mov_b32 v72, 0
    v_mov_b32 v73, 0
    v_mov_b32 v74, 0
    v_mov_b32 v75, v{D}
    v_mov_b32 v76, 0
    v_mov_b32 v77, 0
    v_mov_b32 v78, v71
    v_mov_b32 v79, v{t}
    s_mov_b64 exec, 1
    ds_write_b128 v7, v[60:63]
    ds_write_b128 v7, v[60:63] offset:16
    ds_write_b128 v7, v[60:63] offset:{CS}
    ds_write_b128 v7, v[68:71] offset:{CS+16}
    ds_write_b128 v7, v[60:63] offset:{2*CS}
    ds_write_b128 v7, v[72:75] offset:{2*CS+16}
    ds_write_b128 v7, v[60:63] offset:{3*CS}
    ds_write_b128 v7, v[76:79] offset:{3*CS+16}
    s_mov_b64 exec, -1""")
    a(f"""    s_waitcnt lgkmcnt(0)
    s_mov_b64 exec, 1
    ds_add_u32 v10, v11 offset:8
    s_mov_b64 exec, -1
    s_waitcnt vmcnt({0 if opt.xearly else 4})""")
    count_in(36, "s")
    a(f"    s_cbranch_scc0 {L}_nsf")
    spin(44, 1, "c")
    a(f"""    s_lshl_b32 s27, s62, 5
    s_add_u32 s27, s27, {SF_OFF:#x}
    s_mov_b64 exec, 1
    buffer_store_dword v11, v12, s[36:39], s27 offen sc1
    s_mov_b64 exec, -1
    s_waitcnt vmcnt(1)
    s_branch {L}_nsg
{L}_nsf:
    s_waitcnt vmcnt(0)
{L}_nsg:
    s_mov_b64 exec, 1
    ds_add_u32 v10, v11 offset:40
    s_mov_b64 exec, -1""")
    stamp(a, 7)
    spin(40, 4, "t", 12)
    for j in range(8): a(f"    ds_read_b64 {vr(XT_+2*j,2)}, v39 offset:{(j >> 2)*IS + (j & 3)*256}")
    tail_addr(False, XT_OFF, "s49")
    a("    s_waitcnt lgkmcnt(0)")
    for c in range(4):
        for d in range(4):
            a(f"    v_perm_b32 v{PKX+4*c+d}, v{XT_ + 2*(2*d+1) + (c>>1)}, v{XT_ + 2*(2*d) + (c>>1)}, s{70 + (c&1)}")
        a(f"    ds_write_b128 v13, {vr(PKX+4*c,4)} offset:{128*c}")
    tail_out(160)
    stamp(a, 9)
    a("    s_waitcnt vmcnt(0)")
    stamp(a, 10)
    count_in(12, "x")
    a(f"    s_cbranch_scc0 {L}_w2")
    signal_poll(XF_OFF, "x", poll=False)
    if opt.stamps: a("    s_memtime s[74:75]\n    s_waitcnt lgkmcnt(0)\n    s_sub_u32 s74, s74, s80\n    v_mov_b32 v20, s74\n    ds_write_b32 v10, v20 offset:48")
    a(f"""    ds_write_b32 v10, v11 offset:16
    s_mov_b32 m0, s49
    s_add_u32 s26, s26, {XT_OFF:#x}""")
    for i in range(4): a(f"    buffer_load_dwordx4 v6, s[36:39], s26 offen offset:{1024*i} {opt.ldf} lds")
    a(f"""    v_lshlrev_b32 v14, 12, v3
    s_mov_b32 s28, {GF_OFF:#x}
{L}_p3:
    buffer_load_dword v15, v14, s[36:39], s28 offen sc1
    s_waitcnt vmcnt(0)
    v_cmp_eq_u32 vcc, 1, v15
    s_cmp_eq_u64 vcc, -1
    s_cbranch_scc1 {L}_p3e
    s_sleep {opt.xsleep}
    s_branch {L}_p3
{L}_p3e:
    ds_write_b32 v10, v11 offset:24
    s_branch {L}_g2
{L}_w2:""")
    spin(16, 1, "x")
    a(f"    s_mov_b32 m0, s49\n    s_add_u32 s26, s26, {XT_OFF:#x}")
    for i in range(4): a(f"    buffer_load_dwordx4 v6, s[36:39], s26 offen offset:{1024*i} {opt.ldf} lds")
    spin(24, 1, "y")
    a(f"{L}_g2:")
    stamp(a, 4)
    if opt.stamps: a("    ds_read_b32 v20, v10 offset:48\n    s_waitcnt lgkmcnt(0)\n    v_readfirstlane_b32 s74, v20\n    s_nop 1\n    v_writelane_b32 v250, s74, 11")
    a(f"""    s_lshl_b32 s30, s34, 12
    s_add_u32 m0, s30, {STG}
    s_add_u32 s30, s30, {ST1_OFF:#x}""")
    for i in range(4): a(f"    buffer_load_dwordx4 v6, s[36:39], s30 offen offset:{1024*i} sc1 lds")
    a(f"""    s_lshl_b32 s47, s2, 10
    s_lshl_b32 s48, s34, 8
    s_add_u32 s47, s47, s48
    s_add_u32 s47, s47, {PST_OFF:#x}
    v_lshlrev_b32 v14, 2, v2
    v_mov_b32 v15, -1
    buffer_store_dword v15, v14, s[36:39], s47 offen
    s_mul_i32 s47, s2, 560
    s_mul_i32 s48, s34, 140
    s_add_u32 s47, s47, s48
    s_add_u32 s47, s47, {FLG_OFF:#x}
    v_min_u32 v14, 34, v2
    v_lshlrev_b32 v14, 2, v14
    buffer_store_dword v12, v14, s[36:39], s47 offen
    s_and_b32 s25, s2, 15            ; k slice
    s_lshr_b32 s26, s2, 4
    s_mul_i32 s27, s25, {64*7168}
    s_lshl_b32 s28, s26, 9
    s_lshl_b32 s29, s34, 7
    s_add_u32 s28, s28, s29
    s_add_u32 s27, s27, s28
    v_mul_u32_u24 v5, 7168, v4
    v_lshl_add_u32 v5, v3, 4, v5
    s_cmp_ge_u32 s2, 224
    s_cselect_b32 s27, 0x80000000, s27
    s_waitcnt lgkmcnt(0)""")
    srd(a, 12, 10, 1024 * 7168)
    W = 16; WF = 48
    ld = lambda i: a(f"    buffer_load_dwordx4 {vr(W+4*i,4)}, v5, s[12:15], s27 offen\n    s_add_u32 s27, s27, {8*7168}")
    TH = opt.w1th
    for i in range(TH): ld(i)
    a(f"""    s_waitcnt vmcnt({2 + TH})
    s_mov_b64 exec, 1
    ds_add_u32 v10, v11 offset:20
    s_mov_b64 exec, -1""")
    stamp(a, 5)
    a(f"    s_cmp_ge_u32 s2, 224\n    s_cbranch_scc1 {L}_code")
    for i in range(8):
        a(f"    s_waitcnt vmcnt({min(TH, 8 - i) - 1})")
        if i + TH < 8: ld(i + TH)
        if i == 0:
            for d in range(4): unpack(a, WF + 2 * d, W + d)
        else:
            for d in range(4):
                unpack(a, WF + 8 + 2 * (d & 1), W + 4 * i + d)
                a(f"    v_pk_add_f32 {vr(WF+2*d,2)}, {vr(WF+2*d,2)}, {vr(WF + 8 + 2*(d&1),2)}")
    if opt.c_pf2:
        a(f"    s_load_dwordx2 s[42:43], s[0:1], {ARG['w2']}\n    s_mul_i32 s30, s2, 32768\n    s_lshl_b32 s31, s34, 13\n    s_add_u32 s30, s30, s31\n    v_lshlrev_b32 v7, 7, v2\n    s_waitcnt lgkmcnt(0)")
        srd(a, 20, 42, 3584 * 2048)
        a("    buffer_load_dword v8, v7, s[20:23], s30 offen")
    for d in range(8): a(f"    v_add_f32_dpp v{WF+d}, v{WF+d}, v{WF+d} row_ror:8 row_mask:0xf bank_mask:0xf")
    for sw in ("v_permlane16_swap_b32", "v_permlane32_swap_b32"):
        for d in range(8): a(f"    v_mov_b32 v{WF+8+d}, v{WF+d}")
        for d in range(8): a(f"    {sw} v{WF+8+d}, v{WF+d}")
        for d in range(8): a(f"    v_add_f32 v{WF+d}, v{WF+d}, v{WF+8+d}")
    a(f"""    s_mul_i32 s27, s25, {3584*4}
    s_lshl_b32 s28, s28, 1
    s_add_u32 s27, s27, s28
    s_add_u32 s27, s27, {CS_OFF:#x}
    v_lshlrev_b32 v4, 5, v3
    s_mov_b64 exec, 0xff
    buffer_store_dwordx4 {vr(WF,4)}, v4, s[36:39], s27 offen
    buffer_store_dwordx4 {vr(WF+4,4)}, v4, s[36:39], s27 offen offset:16
    s_mov_b64 exec, -1
    s_branch {L}_done
{L}_code:""")
    if opt.codepf:
        a(f"""    s_cmp_ge_u32 s2, 232
    s_cbranch_scc1 {L}_done
    s_getpc_b64 s[66:67]
{L}_pc:
    v_and_b32 v13, 255, v0
    v_lshlrev_b32 v13, 7, v13
    v_min_u32 v13, TEXT_END - {L}_pc - 4, v13
    global_load_dword v62, v13, s[66:67]""")
    a(f"{L}_done:")
    if opt.stamps: a("    s_waitcnt vmcnt(0)")
    stamp(a, 8)
    stamp_end(a, kidx, 58, 33)
    a(f"{L}_end:\n    s_endpgm")
    return (name, 256, 512, WRD + 64), (name, 256 if opt.stamps else 240, 96)

opt.htf = ""
gen.KGEN["pc"] = gen_pc
```

```python
import sys
from asmlib import *

KVR_OFF = 0x0000000
Y2_OFF  = 0x0400000
H_OFF   = 0x0800000
HN_OFF  = 0x0C00000
H1_OFF  = 0x1000000
H1_SZ   = 16 * 56 * 16384
import os
OVL = int(os.environ.get('OVL', '0'))
XCH_OFF = 0 if OVL else 0x2000000
FLG_OFF = 0x2800000
STP_OFF = 0x3800000
HN2_OFF = 0x2C00000
MB4 = 4 << 20

class Opt:
    stamps = False
    noload = False
    w2pf = True
    rtstamp = False
    single = False
    loopst = False
    codepf = False
    dbg = None
    kidx = 0
    ws_base = 0
    c_pf1 = True
    c_pf2 = False
    rd_per_gap = 2
    g1_bar = 24
    g2_bar = 18
opt = Opt()

def stamp(a, idx, vreg=250):
    if opt.dbg is not None:
        slot = opt.dbg.get((opt.kidx, idx))
        if slot is not None: dbg_write(a, slot)
        return
    if not opt.stamps: return
    a(f"    s_memtime s[84:85]\n    s_memrealtime s[86:87]\n    s_waitcnt lgkmcnt(0)\n    s_sub_u32 s84, s84, s80\n    v_writelane_b32 v{vreg}, s84, {idx}" + ("" if opt.loopst else f"\n    v_writelane_b32 v{vreg}, s86, {32 + idx}"))

_dbgn = [0]
def dbg_write(a, slot):
    _dbgn[0] += 1
    n = _dbgn[0]
    a(f"""    s_cmp_lg_u32 s2, 8
    s_cbranch_scc1 DBG_{n}
    s_cmp_lg_u32 s33, 0
    s_cbranch_scc1 DBG_{n}
    s_memrealtime s[84:85]
    s_waitcnt lgkmcnt(0)
    v_mov_b32 v250, s84
    v_mov_b32 v251, {slot*4}
    buffer_store_dword v250, v251, s[88:91], 0 offen
DBG_{n}:""")

def stamp_loop(a, sreg, base, vreg=250):
    if not (opt.stamps and opt.loopst): return
    a(f"    s_memtime s[84:85]\n    s_add_u32 m0, s{sreg}, {base}\n    s_waitcnt lgkmcnt(0)\n    s_sub_u32 s84, s84, s80\n    v_writelane_b32 v{vreg}, s84, m0")

def stamp_begin(a, vreg=250):
    if opt.dbg is not None:
        a(f"""    s_load_dwordx2 s[86:87], s[0:1], {ARG['dbg']}
    s_memrealtime s[82:83]
    s_waitcnt lgkmcnt(0)
    s_add_u32 s88, s86, {512*(opt.nk - 1 - opt.kidx)}
    s_addc_u32 s89, s87, 0
    s_mov_b32 s90, 256
    s_mov_b32 s91, 0x00020000
    v_mov_b32 v250, s82
    v_mov_b32 v251, {opt.dbg[(opt.kidx, 'b')]*4}
    s_cmp_lg_u32 s2, 8
    s_cbranch_scc1 DBGB_{opt.kidx}
    buffer_store_dword v250, v251, s[88:91], 0 offen
DBGB_{opt.kidx}:""")
        return
    if not opt.stamps: return
    a(f"    s_memtime s[80:81]\n    s_memrealtime s[82:83]\n    s_waitcnt lgkmcnt(0)\n    v_writelane_b32 v{vreg}, s82, 62")

def stamp_end(a, kidx, wsbase, wavereg, vreg=250):
    if opt.dbg is not None:
        a("    s_waitcnt vmcnt(0)")
        dbg_write(a, opt.dbg[(opt.kidx, 'e')])
        return
    if not opt.stamps: return
    a(f"""    s_memrealtime s[82:83]
    s_waitcnt lgkmcnt(0)
    v_writelane_b32 v{vreg}, s82, 63
    s_add_u32 s84, s{wsbase}, {STP_OFF + kidx * 0x80000:#x}
    s_addc_u32 s85, s{wsbase+1}, 0
    s_mov_b32 s86, 0x80000
    s_mov_b32 s87, 0x00020000
    s_lshl_b32 s88, s2, 3
    s_add_u32 s88, s88, s{wavereg}
    s_lshl_b32 s88, s88, 8
    v_mbcnt_lo_u32_b32 v{vreg+1}, -1, 0
    v_mbcnt_hi_u32_b32 v{vreg+1}, -1, v{vreg+1}
    v_lshlrev_b32 v{vreg+1}, 2, v{vreg+1}
    buffer_store_dword v{vreg}, v{vreg+1}, s[84:87], s88 offen""")

def vr(b, n):
    return f"v[{b}:{b+n-1}]" if n > 1 else f"v{b}"

def gemm_consumer_loop(a, L, MI, NI, nk, acc, F0, F1, vA, vB, a_imm, b_imm_kh, b_imm_t, s_slot, s_delta, s_k, stage, ns, tail=None, bar_gap=None, loop_extra=None, slot0=None, a_tr=None, hookA=None, hookB=None):
    def reads(F, kh):
        r = []
        for mi in range(MI):
            reg, imm = vA(mi, kh)
            if a_tr is None:
                r.append(f"    ds_read_b128 {vr(F + 4*mi, 4)}, v{reg} offset:{imm}")
            else:
                for t in range(2): r.append(f"    ds_read_b64_tr_b16 {vr(F + 4*mi + 2*t, 2)}, v{reg} offset:{imm + t*a_tr}")
        for ni in range(NI):
            for t in range(2):
                r.append(f"    ds_read_b64_tr_b16 {vr(F + 4*MI + 4*ni + 2*t, 2)}, v{vB + ni} offset:{kh*b_imm_kh + t*b_imm_t}")
        return r
    def mfmas(F):
        r = []
        for ni in range(NI):
            for mi in range(MI):
                c = acc + 4 * (mi * NI + ni)
                r.append(f"    v_mfma_f32_16x16x32_bf16 {vr(c,4)}, {vr(F + 4*MI + 4*ni, 4)}, {vr(F + 4*mi, 4)}, {vr(c,4)}")
        return r
    def weave(mf, fill):
        i = 0
        for j, m in enumerate(mf):
            a(m)
            if i < len(fill):
                a(fill[i]); i += 1
        while i < len(fill):
            a(fill[i]); i += 1
    addr_regs = sorted(set(vA(mi, kh)[0] for mi in range(MI) for kh in range(2))) + [vB + i for i in range(NI)]
    def place(mf, items, per_gap, start=0, extra=None):
        gaps = [[] for _ in mf]
        g = start
        for j, it in enumerate(items):
            gaps[start + j // per_gap].append(it)
        for k, v in (extra or {}).items(): gaps[k] += v
        for m, gl in zip(mf, gaps):
            a(m)
            for x in gl: a(x)
    n = MI * NI
    nrd = (MI if a_tr is None else 2 * MI) + 2 * NI
    upd = [f"    v_add_u32 v{r}, s{s_delta}, v{r}" for r in addr_regs]
    late = bar_gap >= n
    wrapc = f"{(-(ns-1)*stage) & 0xffffffff:#x}"
    for l in reads(F0, 0): a(l)
    a(f"    s_add_u32 s{s_slot}, {slot0 or 0}, 1")
    a(f"    s_mov_b32 s{s_k}, 0\n    s_mov_b32 s47, {stage}\n    s_mov_b32 s{s_delta}, {stage}")
    a(f"{L}_loop:")
    ex = {}
    upg = 1 if nrd + len(upd) <= n - 1 else 2
    for j, u in enumerate(upd): ex.setdefault(nrd + j // upg, []).append(u)
    if not late:
        a("    s_waitcnt lgkmcnt(0)")
        ex.setdefault(bar_gap - 1, []).append(f"    s_add_u32 s{s_k}, s{s_k}, 1")
        ex.setdefault(bar_gap, []).append("    s_waitcnt lgkmcnt(0)\n    s_barrier")
        ex.setdefault(n - 1, []).append(f"    s_cmp_eq_u32 s{s_k}, {nk}\n    s_cbranch_scc1 {L}_tail")
        if hookA: ex[n - 1].append(hookA)
        place(mfmas(F0), reads(F1, 1), 1, 0, ex)
        ex = {nrd: [f"    s_add_u32 s{s_slot}, s{s_slot}, 1\n    s_cmp_eq_u32 s{s_slot}, {ns}"],
              nrd + 1: [f"    s_cselect_b32 s{s_delta}, {wrapc}, s47\n    s_cselect_b32 s{s_slot}, 0, s{s_slot}"],
              n - 1: [hookB or f"    s_branch {L}_loop"]}
        for k, v in (loop_extra or {}).items(): ex.setdefault(k, []).append(v)
        place(mfmas(F1), reads(F0, 0), 1, 0, ex)
        a(f"{L}_tail:")
    else:
        bg = bar_gap - n
        a(f"    s_waitcnt lgkmcnt({2*(NI-1)})")
        for ni in range(1, NI):
            ex.setdefault(MI * ni - 1, []).append(f"    s_waitcnt lgkmcnt({2*(NI-1-ni) + min(nrd, MI*ni)})")
        ex.setdefault(n - 2, []).append(f"    s_add_u32 s{s_k}, s{s_k}, 1")
        ex.setdefault(n - 1, []).append(f"    s_cmp_eq_u32 s{s_k}, {nk}\n    s_cbranch_scc1 {L}_tail\n    s_waitcnt lgkmcnt({2*(NI-1)})")
        place(mfmas(F0), reads(F1, 1), 1, 0, ex)
        assert bg < MI and bg + 1 + nrd <= n
        ex = {0: [f"    s_add_u32 s{s_slot}, s{s_slot}, 1\n    s_cmp_eq_u32 s{s_slot}, {ns}"],
              1: [f"    s_cselect_b32 s{s_delta}, {wrapc}, s47\n    s_cselect_b32 s{s_slot}, 0, s{s_slot}"],
              n - 1: [f"    s_branch {L}_loop"]}
        ex.setdefault(bg, []).append("    s_waitcnt lgkmcnt(0)\n    s_barrier")
        place(mfmas(F1), reads(F0, 0), 1, bg + 1, ex)
        a(f"{L}_tail:\n    s_waitcnt lgkmcnt(0)\n    s_barrier")
    tail(mfmas(F1))

def gemm_loader_loop(a, L, nk, ns, per, issue, s_k):
    issue(); issue()
    a(f"    s_waitcnt vmcnt({per})\n    s_barrier")
    for s in range(ns - 2): issue()
    a(f"    s_mov_b32 s{s_k}, 0\n{L}_lloop:")
    a(f"    s_waitcnt vmcnt({(ns-2)*per})\n    s_barrier")
    if not opt.noload: issue()
    a(f"    s_add_u32 s{s_k}, s{s_k}, 1\n    s_cmp_lt_u32 s{s_k}, {nk-ns}\n    s_cbranch_scc1 {L}_lloop")
    for k in range(nk - ns, nk):
        left = max(0, nk - 1 - (k + 1))
        if k + 1 < nk: a(f"    s_waitcnt vmcnt({left*per})")
        a("    s_barrier")

def gen_g1(a, kidx):
    name = "g1_kernel"; L = "G1"
    STAGE = 49152; NS = 3; NK = 16
    kernel_head(a, name)
    a(f"""    s_cmp_ge_u32 s2, 256
    s_cbranch_scc1 {L}_end
    s_load_dwordx2 s[4:5], s[0:1], {ARG['ws']}
    s_load_dwordx2 s[6:7], s[0:1], {ARG['w1']}
    s_load_dwordx2 s[8:9], s[0:1], {ARG['b1']}
    s_load_dwordx2 s[10:11], s[0:1], {ARG['w2']}""")
    stamp_begin(a)
    a(f"""    v_lshrrev_b32 v1, 6, v0
    v_and_b32 v2, 63, v0
    s_and_b32 s24, s2, 7
    v_readfirstlane_b32 s33, v1
    s_lshr_b32 s25, s2, 3
    s_lshr_b32 s26, s24, 1
    s_lshl_b32 s26, s26, 2
    s_and_b32 s27, s25, 3
    s_add_u32 s26, s26, s27          ; mt
    s_and_b32 s27, s24, 1
    s_lshl_b32 s27, s27, 3
    s_lshr_b32 s28, s25, 2
    s_add_u32 s27, s27, s28          ; nt
    s_and_b32 s29, s27, 1
    s_cmp_lt_u32 s33, 4
    s_cbranch_scc1 {L}_cons""")
    a(f"""    s_sub_u32 s34, s33, 4            ; lw
    s_lshl_b32 s35, s34, 12          ; lw*4096
    v_lshl_add_u32 v10, v2, 4, s35   ; A voffset
    s_lshl_b32 s30, s26, 18
    s_mul_i32 s31, s27, 448
    s_and_b32 s31, s31, 0xffffff80   ; B soffset
    s_mov_b32 s38, s35
    s_add_u32 s39, s35, {NS*STAGE}
    s_add_u32 s37, s35, 16384
    v_lshrrev_b32 v3, 5, v2          ; hi
    s_lshl_b32 s36, s34, 4
    v_add_u32 v4, s36, v3            ; 16lw+hi
    s_movk_i32 s36, 7168
    v_mul_lo_u32 v4, v4, s36
    v_and_b32 v5, 1, v2
    v_lshl_add_u32 v4, v5, 4, v4     ; t0
    v_bfe_u32 v5, v2, 1, 4
    v_xor_b32 v5, v5, v3             ; x0
    s_waitcnt lgkmcnt(0)""")
    srd(a, 12, 4, MB4, off=HN_OFF); srd(a, 16, 6, 1024 * 7168)
    for ci, c in enumerate((0, 2, 4, 6)):
        a(f"    v_xor_b32 v6, {c}, v5\n    v_lshl_add_u32 v6, v6, 5, v4")
        for i in range(8):
            if 2 * (i & 1) + 4 * (i >> 2) == c:
                a(f"    v_add_u32 v{12+i}, {2*i*7168 - (i&3)*1024}, v6")
    def issue():
        a("    s_mov_b32 m0, s38\n    s_add_u32 s36, s38, s37")
        for i in range(4): a(f"    buffer_load_dwordx4 v10, s[12:15], s30 offen offset:{i*1024} lds")
        a("    s_mov_b32 m0, s36\n    s_add_u32 s30, s30, 16384")
        for i in range(4): a(f"    buffer_load_dwordx4 v{12+i}, s[16:19], s31 offen offset:{i*1024} lds")
        a(f"    s_add_u32 m0, s36, 4096\n    s_add_u32 s38, s38, {STAGE}")
        for i in range(4, 8): a(f"    buffer_load_dwordx4 v{12+i}, s[16:19], s31 offen offset:{(i&3)*1024} lds")
        a(f"    s_add_u32 s31, s31, {64*7168}\n    s_cmp_ge_u32 s38, s39\n    s_cselect_b32 s38, s35, s38")
    stamp(a, 0)
    gemm_loader_loop(a, L, NK, NS, 12, issue, 40)
    stamp(a, 1)
    a(f"    s_branch {L}_epi2")
    ACC = 0; F0 = 112; F1 = 156; VA = 200; VB = 202; VBI = 210
    a(f"""{L}_cons:
    v_mov_b32 v240, v2               ; lane
    s_and_b32 s34, s33, 1            ; wm
    s_lshr_b32 s35, s33, 1           ; wn
    v_and_b32 v241, 15, v240         ; r
    v_lshrrev_b32 v242, 4, v240      ; kg
    s_mul_i32 s36, s27, 224
    s_mul_i32 s37, s35, 112
    s_add_u32 s36, s36, s37
    s_lshl_b32 s36, s36, 1
    v_lshlrev_b32 v243, 3, v242
    s_waitcnt lgkmcnt(0)""")
    srd(a, 16, 8, 7168)
    for ni in range(7):
        a(f"    buffer_load_dwordx2 {vr(VBI + 2*ni, 2)}, v243, s[16:19], s36 offen offset:{32*ni}")
    a(f"""    s_lshl_b32 s36, s34, 13          ; wm*64*128
    v_lshl_add_u32 v244, v241, 7, s36
    v_and_b32 v245, 7, v241          ; r7
    v_xor_b32 v246, v242, v245
    v_lshl_add_u32 v{VA}, v246, 4, v244
    v_xor_b32 v246, 4, v246
    v_lshl_add_u32 v{VA+1}, v246, 4, v244
    v_bfe_u32 v246, v240, 2, 2       ; rr
    v_lshl_add_u32 v247, v242, 3, v246   ; 8kg+rr
    v_lshlrev_b32 v247, 9, v247
    v_and_b32 v248, 3, v240          ; cc
    v_lshl_add_u32 v247, v248, 3, v247
    v_add_u32 v247, 16384, v247
    v_and_b32 v248, 1, v242
    v_lshl_or_b32 v246, v248, 2, v246    ; g
    s_mul_i32 s37, s35, 7
    s_lshl_b32 s38, s29, 1
    s_add_u32 s37, s37, s38          ; f0 = 2p + 7wn""")
    for ni in range(7):
        a(f"    s_add_u32 s38, s37, {ni}\n    v_xor_b32 v248, s38, v246\n    v_lshl_add_u32 v{VB+ni}, v248, 5, v247")
    a("    s_waitcnt vmcnt(0)")
    for ni in range(7):
        for d in range(2):
            c = ACC + 4 * ni + 2 * d
            a(f"    v_lshlrev_b32 v{c}, 16, v{VBI+2*ni+d}\n    v_and_b32 v{c+1}, 0xffff0000, v{VBI+2*ni+d}")
    for mi in range(1, 4):
        for ni in range(7):
            for d in range(2):
                c = ACC + 4 * (mi * 7 + ni) + 2 * d
                a(f"    v_mov_b64 {vr(c,2)}, {vr(ACC + 4*ni + 2*d, 2)}")
    srd(a, 20, 10, 3584 * 2048)
    a(f"""    s_mul_i32 s38, s2, 28672
    s_mul_i32 s39, s33, 7168
    s_add_u32 s38, s38, s39
    v_lshlrev_b32 v248, 7, v240
    {"buffer_load_dword v249, v248, s[20:23], s38 offen" if opt.w2pf else ""}""")
    stamp(a, 0)
    a("    s_barrier")
    stamp(a, 1)
    def g1_tail(mf):
        pre = [f"""    v_lshrrev_b32 v246, 1, v242      ; kg>>1
    v_xor_b32 v246, v246, v245       ; (kg>>1)^r7
    v_and_b32 v247, 1, v242
    v_lshl_add_u32 v247, v247, 3, v244   ; m*128 + half*8"""]
        def addr(ni):
            return f"""    s_add_u32 s38, s37, {ni}
    s_lshr_b32 s39, s38, 2
    s_lshl_b32 s39, s39, 14
    s_and_b32 s38, s38, 3
    s_lshl_b32 s38, s38, 1
    v_xor_b32 v248, s38, v246
    v_lshl_add_u32 v248, v248, 4, v247
    v_add_u32 v{VB+ni}, s39, v248"""
        def act(ni, mi):
            c = ACC + 4 * (mi * 7 + ni)
            r = [f"    v_max_f32 v{c+x}, 0, v{c+x}" for x in range(4)]
            r += [f"    v_pk_mul_f32 {vr(c,2)}, {vr(c,2)}, {vr(c,2)}", f"    v_pk_mul_f32 {vr(c+2,2)}, {vr(c+2,2)}, {vr(c+2,2)}",
                  f"    v_cvt_pk_bf16_f32 v{c}, v{c}, v{c+1}", f"    v_cvt_pk_bf16_f32 v{c+1}, v{c+2}, v{c+3}",
                  f"    ds_write_b64 v{VB+ni}, {vr(c,2)} offset:{mi*2048}"]
            return "\n".join(r)
        a(mf[0]); a(pre[0])
        for j in range(1, 8):
            a(mf[j]); a(addr(j - 1))
        for ni in range(7):
            for mi in range(4):
                j = 4 * (ni + 2) + mi
                if j < 28: a(mf[j])
                a(act(ni, mi))
    gemm_consumer_loop(a, L, 4, 7, NK, ACC, F0, F1, lambda mi, kh: (VA + kh, mi * 2048), VB, None, 16384, 2048, 41, 42, 40, STAGE, NS, tail=g1_tail, bar_gap=opt.g1_bar)
    a("    s_waitcnt lgkmcnt(0)")
    stamp(a, 3)
    a(f"""{L}_epi2:
    s_barrier
    v_mbcnt_lo_u32_b32 v2, -1, 0
    v_mbcnt_hi_u32_b32 v2, -1, v2
    s_lshl_b32 s36, s33, 10
    v_lshl_add_u32 v3, v2, 4, s36
    v_lshrrev_b32 v4, 3, v2
    v_xor_b32 v4, v4, v2
    v_bfe_u32 v4, v4, 2, 1               ; c bit2
    v_cmp_eq_u32 vcc, 1, v4
    s_mul_i32 s36, s27, 7
    s_lshr_b32 s36, s36, 1               ; ks0
    s_mul_i32 s37, s26, 56
    s_add_u32 s36, s36, s37
    s_lshl_b32 s36, s36, 14
    v_mov_b32 v5, 0x80000000
    v_cndmask_b32 v6, v5, v3, vcc
    v_cndmask_b32 v7, v3, v5, vcc
    s_cmp_eq_u32 s29, 1
    s_cselect_b64 vcc, -1, 0""")
    srd(a, 12, 4, H1_SZ, off=H1_OFF)
    a("""    v_cndmask_b32 v6, v3, v6, vcc
    v_cndmask_b32 v7, v7, v3, vcc""")
    for j in range(8): a(f"    ds_read_b128 {vr(16+4*j,4)}, v3 offset:{8192*j}")
    for j in range(8):
        vo = 6 if j < 2 else (7 if j >= 6 else 3)
        a(f"    s_waitcnt lgkmcnt({7-j})\n    buffer_store_dwordx4 {vr(16+4*j,4)}, v{vo}, s[12:15], s36 offen\n    s_add_u32 s36, s36, 8192")
    stamp(a, 4)
    if opt.stamps: a("    s_waitcnt vmcnt(0)")
    stamp(a, 5)
    stamp_end(a, kidx, 4, 33)
    a(f"{L}_end:\n    s_endpgm")
    return (name, 256, 512, NS * STAGE), (name, 256, 96)

def gen_g2(a, kidx):
    name = "g2_kernel"; L = "G2"
    STAGE = 32768; NS = 4; NK = 28
    kernel_head(a, name)
    a(f"""    s_cmp_ge_u32 s2, 256
    s_cbranch_scc1 {L}_end
    s_load_dwordx2 s[4:5], s[0:1], {ARG['ws']}
    s_load_dwordx2 s[6:7], s[0:1], {ARG['w2']}
    s_load_dwordx2 s[8:9], s[0:1], {ARG['b2']}
    s_load_dwordx2 s[10:11], s[0:1], {ARG['out']}""")
    stamp_begin(a)
    a(f"""    v_lshrrev_b32 v1, 6, v0
    v_and_b32 v2, 63, v0
    s_and_b32 s24, s2, 7
    v_readfirstlane_b32 s33, v1
    s_lshr_b32 s25, s2, 3
    s_and_b32 s29, s24, 1            ; kh
    s_lshr_b32 s26, s24, 1
    s_lshl_b32 s26, s26, 2
    s_and_b32 s27, s25, 3
    s_add_u32 s26, s26, s27          ; mt
    s_lshr_b32 s27, s25, 2           ; nt
    s_lshl_b32 s43, s26, 7
    s_lshl_b32 s44, s29, 5
    s_add_u32 s43, s43, s44
    s_lshl_b32 s44, s33, 2
    s_add_u32 s43, s43, s44
    s_lshl_b32 s43, s43, 11          ; row*2048
    s_lshl_b32 s44, s27, 8
    s_add_u32 s43, s43, s44
    v_lshrrev_b32 v230, 4, v2
    v_lshlrev_b32 v230, 11, v230
    v_and_b32 v231, 15, v2
    v_lshl_add_u32 v230, v231, 4, v230
    s_add_u32 s44, s43, {64*2048}
    s_waitcnt lgkmcnt(0)""")
    srd(a, 20, 4, MB4, off=H_OFF)
    a("""    buffer_load_dwordx4 v[232:235], v230, s[20:23], s43 offen
    buffer_load_dwordx4 v[236:239], v230, s[20:23], s44 offen""")
    a(f"""    s_cmp_lt_u32 s33, 4
    s_cbranch_scc1 {L}_cons""")
    a(f"""    s_sub_u32 s34, s33, 4            ; lw
    s_lshl_b32 s35, s34, 12          ; lw*4096
    v_lshl_add_u32 v10, v2, 4, s35   ; A voffset
    s_mul_i32 s30, s26, 56
    s_mul_i32 s36, s29, 28
    s_add_u32 s30, s30, s36
    s_lshl_b32 s30, s30, 14          ; A soffset
    s_mul_i32 s31, s29, {1792*2048}
    s_lshl_b32 s36, s27, 8
    s_add_u32 s31, s31, s36          ; B soffset
    s_mov_b32 s38, s35
    s_add_u32 s39, s35, {NS*STAGE}
    v_lshrrev_b32 v3, 4, v2          ; q4
    s_lshl_b32 s36, s34, 4
    v_add_u32 v4, s36, v3
    v_lshlrev_b32 v4, 11, v4
    v_and_b32 v5, 1, v2
    v_lshl_add_u32 v4, v5, 4, v4     ; t0
    v_bfe_u32 v5, v2, 1, 3
    v_xor_b32 v5, v5, v3             ; x0""")
    srd(a, 12, 4, H1_SZ, off=H1_OFF); srd(a, 16, 6, 3584 * 2048)
    for c in (0, 4):
        a(f"    v_xor_b32 v6, {c}, v5\n    v_lshl_add_u32 v6, v6, 5, v4")
        for i in range(4):
            if 4 * (i >> 1) == c:
                a(f"    v_add_u32 v{12+i}, {4*i*2048 - i*1024}, v6")
    def issue():
        a("    s_mov_b32 m0, s38\n    s_add_u32 s36, s38, 16384")
        for i in range(4): a(f"    buffer_load_dwordx4 v10, s[12:15], s30 offen offset:{i*1024} lds")
        a(f"    s_mov_b32 m0, s36\n    s_add_u32 s30, s30, 16384\n    s_add_u32 s38, s38, {STAGE}")
        for i in range(4): a(f"    buffer_load_dwordx4 v{12+i}, s[16:19], s31 offen offset:{i*1024} lds")
        a(f"    s_add_u32 s31, s31, {64*2048}\n    s_cmp_ge_u32 s38, s39\n    s_cselect_b32 s38, s35, s38")
    stamp(a, 0)
    gemm_loader_loop(a, L, NK, NS, 8, issue, 40)
    stamp(a, 1)
    a(f"    s_branch {L}_epi2")
    ACC = 0; F0 = 64; F1 = 96; VA = 128; VB = 132; VBI = 136
    a(f"""{L}_cons:
    v_mov_b32 v200, v2               ; lane
    s_and_b32 s34, s33, 1            ; wm
    s_lshr_b32 s35, s33, 1           ; wn
    v_and_b32 v201, 15, v200         ; r
    v_lshrrev_b32 v202, 4, v200      ; kg
    s_lshl_b32 s36, s27, 8
    s_lshl_b32 s37, s35, 7
    s_add_u32 s36, s36, s37
    v_lshlrev_b32 v203, 3, v202""")
    srd(a, 16, 8, 2048)
    for ni in range(4):
        a(f"    buffer_load_dwordx2 {vr(VBI + 2*ni, 2)}, v203, s[16:19], s36 offen offset:{32*ni}")
    a(f"""    s_lshl_b32 s36, s34, 13
    s_lshl_b32 s37, s29, 12
    s_add_u32 s36, s36, s37
    v_lshl_add_u32 v204, v201, 7, s36
    v_and_b32 v205, 7, v201              ; r7
    v_xor_b32 v206, v202, v205
    v_lshl_add_u32 v{VA}, v206, 4, v204
    v_xor_b32 v{VA+1}, 64, v{VA}
    v_xor_b32 v{VA+2}, 4096, v{VA}
    v_xor_b32 v{VA+3}, 4096, v{VA+1}
    v_bfe_u32 v206, v200, 2, 2           ; rr
    v_lshl_add_u32 v207, v202, 3, v206
    v_lshlrev_b32 v207, 8, v207
    v_and_b32 v208, 3, v200
    v_lshl_add_u32 v207, v208, 3, v207
    v_add_u32 v207, 16384, v207
    v_and_b32 v208, 1, v202
    v_lshl_or_b32 v206, v208, 2, v206    ; g
    s_lshl_b32 s37, s35, 2""")
    for ni in range(4):
        a(f"    s_add_u32 s38, s37, {ni}\n    v_xor_b32 v208, s38, v206\n    v_lshl_add_u32 v{VB+ni}, v208, 5, v207")
    for i in range(32, 64, 2): a(f"    v_mov_b64 {vr(ACC+i,2)}, 0")
    a("    s_waitcnt vmcnt(0)")
    for ni in range(4):
        for d in range(2):
            c = ACC + 4 * ni + 2 * d
            a(f"    v_lshlrev_b32 v{c}, 16, v{VBI+2*ni+d}\n    v_and_b32 v{c+1}, 0xffff0000, v{VBI+2*ni+d}")
            a(f"    v_mov_b64 {vr(c+16,2)}, {vr(c,2)}")
    stamp(a, 0)
    a("    s_barrier")
    stamp(a, 1)
    def g2_tail(mf):
        send = [m for j, m in enumerate(mf) if (j & 3) >= 2]; keep = [m for j, m in enumerate(mf) if (j & 3) < 2]
        for m in send: a(m)
        srd(a, 12, 4, 256 * 16384, off=XCH_OFF); srd(a, 16, 4, 256 * 512, off=FLG_OFF)
        a(keep[0])
        a(f"""    v_lshlrev_b32 v203, 4, v200
    s_lshl_b32 s36, s2, 14
    s_lshl_b32 s37, s33, 12
    s_add_u32 s36, s36, s37
    s_xor_b32 s45, s36, 0x4000""")
        a(keep[1])
        for q in range(4):
            for h in range(2):
                c = ACC + 32 + 8 * q + 4 * h
                a(f"    v_cvt_pk_bf16_f32 v{F0 + 4*q + 2*h}, v{c}, v{c+1}\n    v_cvt_pk_bf16_f32 v{F0 + 4*q + 2*h + 1}, v{c+2}, v{c+3}")
            a(f"    buffer_store_dwordx4 {vr(F0+4*q,4)}, v203, s[12:15], s36 offen offset:{q*1024} sc1")
            for m in keep[2 + 2*q: 4 + 2*q]: a(m)
    gemm_consumer_loop(a, L, 4, 4, NK, ACC, F0, F1, lambda mi, kh: (VA + 2 * (mi >> 1) + kh, (mi & 1) * 2048), VB, None, 8192, 1024, 41, 42, 40, STAGE, NS, tail=g2_tail, bar_gap=opt.g2_bar)
    stamp(a, 2)
    a(f"""    s_lshl_b32 s36, s2, 9
    s_lshl_b32 s37, s33, 7
    s_add_u32 s36, s36, s37
    s_xor_b32 s37, s36, 0x200
    v_mov_b32 v209, 1
    v_mov_b32 v210, 0
    v_lshrrev_b32 v206, 1, v202
    v_xor_b32 v206, v206, v201           ; (kg>>1) ^ r
    s_lshl_b32 s38, s34, 13              ; 32wm*256
    v_lshl_add_u32 v207, v201, 8, s38
    v_and_b32 v208, 1, v202
    v_lshl_add_u32 v207, v208, 3, v207
    s_lshl_b32 s39, s35, 3""")
    for ni in range(4):
        a(f"    s_add_u32 s38, s39, {2*ni}\n    v_xor_b32 v208, s38, v206\n    v_lshl_add_u32 v{VB+ni}, v208, 4, v207")
    a(f"""    s_mov_b64 exec, 1
    s_waitcnt vmcnt(0)
    buffer_store_dword v209, v210, s[16:19], s36 offen sc1""")
    stamp(a, 3)
    a(f"""{L}_poll:
    buffer_load_dword v211, v210, s[16:19], s37 offen sc1
    s_waitcnt vmcnt(0)
    v_readfirstlane_b32 s38, v211
    s_cmp_eq_u32 s38, 1
    s_cbranch_scc0 {L}_poll
    s_mov_b64 exec, -1""")
    stamp(a, 4)
    for q in range(4):
        a(f"    buffer_load_dwordx4 {vr(F1+4*q,4)}, v203, s[12:15], s45 offen offset:{q*1024} sc1")
    for j in range(8):
        mi, ni = j >> 2, j & 3
        c = ACC + 4 * j; p = F1 + 2 * j
        if j % 2 == 0: a(f"    s_waitcnt vmcnt({3 - j//2})")
        a(f"""    v_lshlrev_b32 v212, 16, v{p}
    v_and_b32 v213, 0xffff0000, v{p}
    v_lshlrev_b32 v214, 16, v{p+1}
    v_and_b32 v215, 0xffff0000, v{p+1}
    v_pk_add_f32 {vr(c,2)}, {vr(c,2)}, v[212:213]
    v_pk_add_f32 {vr(c+2,2)}, {vr(c+2,2)}, v[214:215]
    v_cvt_pk_bf16_f32 v{c}, v{c}, v{c+1}
    v_cvt_pk_bf16_f32 v{c+1}, v{c+2}, v{c+3}
    ds_write_b64 v{VB+ni}, {vr(c,2)} offset:{mi*4096}""")
    a("    s_waitcnt lgkmcnt(0)")
    stamp(a, 5)
    a(f"""{L}_epi2:
    s_barrier                            ; X3
    v_mbcnt_lo_u32_b32 v2, -1, 0
    v_mbcnt_hi_u32_b32 v2, -1, v2
    v_lshrrev_b32 v3, 4, v2
    s_lshl_b32 s36, s33, 2
    v_add_u32 v3, s36, v3                ; lr (j=0)
    v_xor_b32 v4, v3, v2
    v_and_b32 v4, 15, v4
    v_lshlrev_b32 v4, 4, v4
    v_lshl_add_u32 v3, v3, 8, v4
    ds_read_b128 v[16:19], v3
    ds_read_b128 v[20:23], v3 offset:8192""")
    srd(a, 12, 10, MB4)
    a("    s_waitcnt vmcnt(0)")
    for j in range(2):
        a(f"    s_waitcnt lgkmcnt({1-j})")
        for d in range(4):
            o = 16 + 4 * j + d; h = 232 + 4 * j + d
            a(f"""    v_lshlrev_b32 v8, 16, v{o}
    v_and_b32 v9, 0xffff0000, v{o}
    v_lshlrev_b32 v10, 16, v{h}
    v_and_b32 v11, 0xffff0000, v{h}
    v_pk_add_f32 v[8:9], v[8:9], v[10:11]
    v_cvt_pk_bf16_f32 v{o}, v8, v9""")
        a(f"    buffer_store_dwordx4 {vr(16+4*j,4)}, v230, s[12:15], s{43+j} offen")
    stamp(a, 6)
    if opt.stamps: a("    s_waitcnt vmcnt(0)")
    stamp(a, 7)
    stamp_end(a, kidx, 4, 33)
    a(f"{L}_end:\n    s_endpgm")
    return (name, 256, 512, NS * STAGE), (name, 256, 96)


def add_imm(a, dst, src, imm):
    a(f"    v_add_u32 v{dst}, {imm:#x}, v{src}")

def touch(a, srdreg, vtmp, vlane, soff_shift_mul, ninstr, dst):
    pass

def gen_p(a, kidx):
    name = "p_kernel"; L = "P"
    kernel_head(a, name)
    a(f"""    s_cmp_ge_u32 s2, 256
    s_cbranch_scc1 {L}_end
    s_load_dwordx4 s[4:7], s[0:1], {ARG['k']}      ; k, v
    s_load_dwordx4 s[8:11], s[0:1], {ARG['shift']}
    s_load_dwordx2 s[40:41], s[0:1], {ARG['ws']}""")
    stamp_begin(a)
    a(f"""    v_lshrrev_b32 v1, 6, v0
    v_and_b32 v2, 63, v0
    s_and_b32 s24, s2, 7             ; cb
    v_readfirstlane_b32 s33, v1
    s_lshr_b32 s25, s2, 3            ; rb
    v_and_b32 v3, 7, v2              ; cg
    v_lshrrev_b32 v4, 3, v2          ; rg
    s_lshl_b32 s26, s25, 17
    s_lshl_b32 s27, s24, 8
    s_add_u32 s26, s26, s27
    s_lshl_b32 s27, s33, 6
    s_add_u32 s26, s26, s27
    v_lshlrev_b32 v5, 14, v4
    v_lshl_add_u32 v5, v3, 3, v5
    v_add_u32 v5, s26, v5            ; vbase
    v_subrev_u32 v6, 6144, v5
    v_subrev_u32 v7, 2048, v5
    s_movk_i32 s44, 4096
    s_movk_i32 s45, 8192
    s_movk_i32 s46, 12288
    s_lshl_b32 s27, s24, 10
    s_lshl_b32 s28, s33, 8
    s_add_u32 s27, s27, s28
    v_lshlrev_b32 v8, 5, v3
    s_waitcnt lgkmcnt(0)""")
    srd(a, 12, 4, MB4); srd(a, 16, 6, MB4); srd(a, 20, 8, 8192)
    KR = 16; VR = 38; WR = 54
    so = ["0", "s44", "s45", "s46"]
    a(f"    buffer_load_dwordx4 {vr(WR,4)}, v8, s[20:23], s27 offen\n    buffer_load_dwordx4 {vr(WR+4,4)}, v8, s[20:23], s27 offen offset:16")
    a(f"    buffer_load_dwordx2 {vr(KR,2)}, v6, s[12:15], 0 offen nt\n    buffer_load_dwordx2 {vr(KR+2,2)}, v6, s[12:15], 0 offen offset:2048 nt\n    buffer_load_dwordx2 {vr(KR+4,2)}, v7, s[12:15], 0 offen nt")
    for j in range(8):
        a(f"    buffer_load_dwordx2 {vr(KR+6+2*j,2)}, v5, s[12:15], {so[j>>1]} offen offset:{(j&1)*2048} nt")
        a(f"    buffer_load_dwordx2 {vr(VR+2*j,2)}, v5, s[16:19], {so[j>>1]} offen offset:{(j&1)*2048} nt")
    srd(a, 28, 10, MB4); srd(a, 36, 40, 64 << 20)
    a(f"""    s_lshl_b32 s47, s2, 14
    v_lshlrev_b32 v9, 6, v0
    buffer_load_dword v10, v9, s[28:31], s47 offen
    s_mul_i32 s47, s2, 560
    s_add_u32 s47, s47, {FLG_OFF:#x}
    v_min_u32 v11, 139, v0
    v_lshlrev_b32 v11, 2, v11
    v_mov_b32 v12, 0
    buffer_store_dword v12, v11, s[36:39], s47 offen""")
    if opt.codepf:
        a(f"""    s_cmp_ge_u32 s2, 8
    s_cbranch_scc1 {L}_nocode
    s_getpc_b64 s[50:51]
{L}_pc:
    v_lshlrev_b32 v13, 7, v0
    v_min_u32 v13, TEXT_END - {L}_pc - 4, v13
    global_load_dword v62, v13, s[50:51]
{L}_nocode:""")
    a(f"""    v_xor_b32 v13, 7, v4
    v_xor_b32 v13, v13, v3
    v_lshlrev_b32 v13, 4, v13
    v_lshl_add_u32 v13, v3, 9, v13
    s_lshl_b32 s47, s33, 12
    v_add_u32 v13, s47, v13
    v_lshl_add_u32 v14, v2, 4, s47
    v_lshrrev_b32 v15, 5, v2
    v_xor_b32 v15, v15, v3               ; x0 = (l&7)^(l>>5)
    v_lshlrev_b32 v9, 12, v4             ; (l>>3)*4096""")
    WF = 64; KF = 80; VF = 124; OF = 156; PK = 190
    stamp(a, 0)
    a("    s_waitcnt vmcnt(21)")
    for c in range(4):
        for j in range(4):
            src = WR + 2 * c + (j >> 1); d = WF + (c >> 1) * 8 + j * 2 + (c & 1)
            a(f"    v_lshlrev_b32 v{d}, 16, v{src}" if j % 2 == 0 else f"    v_and_b32 v{d}, 0xffff0000, v{src}")
    def unpack(dst, src):
        for p in range(2):
            a(f"    v_lshlrev_b32 v{dst+2*p}, 16, v{src+p}\n    v_and_b32 v{dst+2*p+1}, 0xffff0000, v{src+p}")
    a("    s_waitcnt vmcnt(18)")
    for r in range(3): unpack(KF + 4 * r, KR + 2 * r)
    for j in range(8):
        a(f"    s_waitcnt vmcnt({16 - 2*j})")
        unpack(KF + 4 * (3 + j), KR + 6 + 2 * j); unpack(VF + 4 * j, VR + 2 * j)
        for p in range(2):
            o = OF + 4 * j + 2 * p
            k = lambda r: vr(KF + 4 * r + 2 * p, 2)
            w = lambda t: vr(WF + p * 8 + 2 * t, 2)
            a(f"    v_pk_mul_f32 {vr(o,2)}, {k(j)}, {w(3)}")
            a(f"    v_pk_fma_f32 {vr(o,2)}, {k(j+1)}, {w(2)}, {vr(o,2)}")
            a(f"    v_pk_fma_f32 {vr(o,2)}, {k(j+2)}, {w(1)}, {vr(o,2)}")
            a(f"    v_pk_fma_f32 {vr(o,2)}, {k(j+3)}, {w(0)}, {vr(o,2)}")
            a(f"    v_pk_mul_f32 {vr(o,2)}, {vr(o,2)}, {vr(VF + 4*j + 2*p, 2)}")
    stamp(a, 1)
    for c in range(4):
        for d in range(4):
            a(f"    v_cvt_pk_bf16_f32 v{PK+4*c+d}, v{OF + 4*(7-2*d) + c}, v{OF + 4*(6-2*d) + c}")
        a(f"    ds_write_b128 v13, {vr(PK+4*c,4)} offset:{128*c}")
    a(f"""    s_lshl_b32 s47, s24, 19
    s_lshl_b32 s48, s33, 17
    s_add_u32 s47, s47, s48              ; (cb*128+w*32)*4096
    s_lshl_b32 s48, s25, 7
    s_sub_u32 s48, {3968 + KVR_OFF}, s48
    s_add_u32 s47, s47, s48
    s_waitcnt lgkmcnt(0)""")
    for i in range(4): a(f"    ds_read_b128 {vr(16+4*i,4)}, v14 offset:{1024*i}")
    for i in range(4):
        a(f"    v_xor_b32 v8, {2*i}, v15\n    v_lshl_add_u32 v{32+i}, v8, 4, v9")
    for i in range(4):
        a(f"    s_waitcnt lgkmcnt({3-i})\n    buffer_store_dwordx4 {vr(16+4*i,4)}, v{32+i}, s[36:39], s47 offen\n    s_add_u32 s47, s47, 32768")
    stamp(a, 2)
    if opt.stamps: a("    s_waitcnt vmcnt(0)")
    stamp(a, 3)
    stamp_end(a, kidx, 40, 33)
    a(f"{L}_end:\n    s_endpgm")
    return (name, 256, 256, 16384), (name, 256 if opt.stamps else 208, 96)

def gen_c(a, kidx):
    name = "c_kernel"; L = "C"
    CS = 4160; RO = 4 * CS; WSZ = 21248; STG = 4 * WSZ; SST = 4096 + 32
    kernel_head(a, name)
    a(f"""    s_cmp_ge_u32 s2, 256
    s_cbranch_scc1 {L}_end
    s_load_dwordx4 s[4:7], s[0:1], {ARG['ssmk']}
    s_load_dwordx2 s[40:41], s[0:1], {ARG['ws']}
    s_load_dwordx2 s[8:9], s[0:1], {ARG['q']}
    s_load_dwordx2 s[10:11], s[0:1], {ARG['w1']}
    s_load_dwordx2 s[42:43], s[0:1], {ARG['w2']}""")
    stamp_begin(a)
    a(f"""    v_lshrrev_b32 v1, 6, v0
    v_and_b32 v2, 63, v0
    s_and_b32 s24, s2, 7
    v_readfirstlane_b32 s33, v1
    s_lshl_b32 s24, s24, 5
    s_lshr_b32 s25, s2, 3
    s_add_u32 s24, s24, s25          ; cg
    s_lshl_b32 s25, s24, 2
    s_add_u32 s25, s25, s33          ; ch
    s_lshl_b32 s26, s25, 12          ; ch*4096
    s_mul_i32 s27, s33, {WSZ}        ; WB
    v_lshlrev_b32 v3, 4, v2          ; lane*16
    s_add_u32 m0, s27, {RO}
    s_lshr_b32 s28, s25, 1
    s_lshl_b32 s28, s28, 2
    s_waitcnt lgkmcnt(0)""")
    srd(a, 12, 4, MB4); srd(a, 16, 40, 64 << 20)
    FD = 16; FE = 32; FX = 48; TO = 52
    for i in range(4):
        a(f"    buffer_load_dwordx4 {vr(FD+4*i,4)}, v3, s[12:15], s26 offen offset:{1024*i}")
        a(f"    buffer_load_dwordx4 {vr(FE+4*i,4)}, v3, s[12:15], s26 offen offset:{1024*i+4}")
        a(f"    buffer_load_dword v{FX+i}, v3, s[12:15], s26 offen offset:{1024*i+20}")
    for i in range(4):
        a(f"    buffer_load_dwordx4 v3, s[16:19], s26 offen offset:{1024*i} lds")
    a(f"""    s_load_dword s29, s[6:7], s28
    v_add_u32 v4, s27, v3
    v_mov_b32 v60, 0
    v_mov_b32 v61, 0
    v_mov_b32 v62, 0
    v_mov_b32 v63, 0
    s_mov_b64 exec, 0x3fffffff
    ds_write_b128 v4, v[60:63] offset:{RO + 4096}
    s_mov_b64 exec, -1
    v_and_b32 v5, 15, v2             ; b / a
    v_lshrrev_b32 v6, 4, v2          ; kg
    v_add_u32 v7, 1, v5
    v_and_b32 v8, 3, v7
    v_mul_u32_u24 v8, {CS}, v8
    v_and_b32 v7, 28, v7
    v_lshl_add_u32 v8, v7, 1, v8
    v_lshl_add_u32 v8, v6, 4, v8
    v_add_u32 v8, s27, v8            ; vAT
    v_lshlrev_b32 v9, 5, v5
    v_sub_u32 v9, {RO + 480}, v9
    v_lshl_add_u32 v9, v6, 4, v9
    v_add_u32 v9, s27, v9            ; vBT""")
    stamp(a, 0)
    for i in range(4):
        D = FD + 4 * i; E = FE + 4 * i
        a(f"    s_waitcnt vmcnt({4 + 9 - 3*i})")
        a(f"    ds_write_b128 v4, {vr(D,4)} offset:{32 + 1024*i}")
        a(f"    ds_write_b128 v4, {vr(E,4)} offset:{2*CS + 32 + 1024*i}")
        t = TO + 8 * (i & 1)
        for k in range(4): a(f"    v_alignbit_b32 v{t+k}, v{E+k}, v{D+k}, 16")
        a(f"    ds_write_b128 v4, {vr(t,4)} offset:{CS + 32 + 1024*i}")
        for k in range(4): a(f"    v_alignbit_b32 v{t+4+k}, v{E+k+1 if k < 3 else FX+i}, v{E+k}, 16")
        a(f"    ds_write_b128 v4, {vr(t+4,4)} offset:{3*CS + 32 + 1024*i}")
        if i == 0:
            a(f"""    v_mov_b32 v68, 0
    v_mov_b32 v69, 0
    v_mov_b32 v70, 0
    v_lshlrev_b32 v71, 16, v{D}
    v_mov_b32 v72, 0
    v_mov_b32 v73, 0
    v_mov_b32 v74, 0
    v_mov_b32 v75, v{D}
    v_mov_b32 v76, 0
    v_mov_b32 v77, 0
    v_mov_b32 v78, v71
    v_mov_b32 v79, v{t}
    s_mov_b64 exec, 1
    ds_write_b128 v4, v[60:63]
    ds_write_b128 v4, v[60:63] offset:16
    ds_write_b128 v4, v[60:63] offset:{CS}
    ds_write_b128 v4, v[68:71] offset:{CS+16}
    ds_write_b128 v4, v[60:63] offset:{2*CS}
    ds_write_b128 v4, v[72:75] offset:{2*CS+16}
    ds_write_b128 v4, v[60:63] offset:{3*CS}
    ds_write_b128 v4, v[76:79] offset:{3*CS+16}
    s_mov_b64 exec, -1""")
    ACC = 80; F0 = 112; F1 = 176
    for i in range(0, 32, 2): a(f"    v_mov_b64 {vr(ACC+i,2)}, 0")
    a("    s_waitcnt vmcnt(0) lgkmcnt(0)")
    stamp(a, 1)
    srd(a, 20, 8, MB4); srd(a, 44, 10, 1024 * 7168); srd(a, 48, 42, 3584 * 2048)
    a(f"""    v_lshlrev_b32 v10, 7, v0
    s_lshl_b32 s34, s2, 14
    v_lshlrev_b32 v11, 6, v0
    buffer_load_dword v12, v11, s[20:23], s34 offen
    s_mul_i32 s34, s2, 28672
    v_cmp_gt_u32 vcc, 224, v0
    v_mov_b32 v11, 0x80000000
    s_nop 0
    v_cndmask_b32 v10, v11, v10, vcc
    {"buffer_load_dword v13, v10, s[44:47], s34 offen" if opt.c_pf1 else ""}
    {"buffer_load_dword v14, v10, s[48:51], s34 offen" if opt.c_pf2 else ""}
""")
    def reads(F, woff):
        r = []
        for u in range(8):
            r.append(f"    ds_read_b128 {vr(F+32+4*u,4)}, v9 offset:{3584 - 512*u + woff}")
            r.append(f"    ds_read_b64 {vr(F+4*u,2)}, v8 offset:{512*u + woff}")
            r.append(f"    ds_read_b64 {vr(F+4*u+2,2)}, v8 offset:{512*u + 8 + woff}")
        return r
    def mf(F):
        return [f"    v_mfma_f32_16x16x32_bf16 {vr(ACC+4*(u+v),4)}, {vr(F+4*u,4)}, {vr(F+32+4*v,4)}, {vr(ACC+4*(u+v),4)}" for u in range(8) for v in range(8 - u)]
    def weave(m, f):
        i = 0
        for x in m:
            a(x)
            if i < len(f): a(f[i]); i += 1
    for l in reads(F0, 0): a(l)
    a(f"    s_mov_b32 s35, 0\n{L}_loop:\n    s_waitcnt lgkmcnt(0)")
    weave(mf(F0), reads(F1, 64) + ["    v_add_u32 v8, 128, v8", "    v_add_u32 v9, 128, v9"])
    a("    s_waitcnt lgkmcnt(0)")
    weave(mf(F1), reads(F0, 0))
    a(f"    s_add_u32 s35, s35, 1\n    s_cmp_lt_u32 s35, 4\n    s_cbranch_scc1 {L}_loop\n    s_waitcnt lgkmcnt(0)")
    stamp(a, 2)
    a(f"""    v_lshlrev_b32 v16, 5, v5
    v_lshl_add_u32 v16, v6, 3, v16       ; 32a + 8g
    v_sub_u32 v17, {RO + 504}, v16
    v_add_u32 v17, s27, v17
    s_mul_i32 s34, s33, {SST}
    s_add_u32 s34, s34, {STG}
    v_add_u32 v18, s34, v16
    s_lshl_b32 s35, s29, 16
    s_and_b32 s36, s29, 0xffff0000
    s_bitcmp1_b32 s25, 0
    s_cselect_b32 s35, s36, s35          ; D as f32""")
    for n in range(8): a(f"    ds_read_b64 {vr(F0+2*n,2)}, v17 offset:{512*(7-n)}")
    for n in range(8):
        c = ACC + 4 * n; k = F0 + 2 * n
        a(f"""    s_waitcnt lgkmcnt({7-n})
    v_and_b32 v20, 0xffff0000, v{k+1}
    v_lshlrev_b32 v21, 16, v{k+1}
    v_and_b32 v22, 0xffff0000, v{k}
    v_lshlrev_b32 v23, 16, v{k}
    v_fmac_f32 v{c}, s35, v20
    v_fmac_f32 v{c+1}, s35, v21
    v_fmac_f32 v{c+2}, s35, v22
    v_fmac_f32 v{c+3}, s35, v23
    v_cvt_pk_bf16_f32 v{c}, v{c}, v{c+1}
    v_cvt_pk_bf16_f32 v{c+1}, v{c+2}, v{c+3}""")
    for n in range(8): a(f"    ds_write_b64 v18, {vr(ACC+4*n,2)} offset:{512*n}")
    a(f"""    v_bfe_u32 v19, v2, 2, 2              ; r
    v_mul_u32_u24 v19, {SST}, v19
    v_lshl_add_u32 v19, v6, 5, v19
    v_and_b32 v20, 3, v2
    v_lshl_add_u32 v19, v20, 3, v19
    s_lshl_b32 s34, s33, 10
    s_add_u32 s34, s34, {STG}
    v_add_u32 v19, s34, v19
    s_bfe_u32 s34, s24, 0x30002          ; key
    s_and_b32 s35, s24, 1
    s_lshl_b32 s35, s35, 2
    s_xor_b32 s34, s34, s35              ; kk
    v_bfe_u32 v20, v2, 1, 2
    v_xor_b32 v20, s34, v20
    v_lshlrev_b32 v20, 4, v20
    v_and_b32 v21, 1, v2
    v_lshl_add_u32 v20, v21, 3, v20
    v_lshrrev_b32 v21, 3, v2
    v_lshl_add_u32 v20, v21, 14, v20     ; voffset
    s_lshl_b32 s34, s33, 20              ; 64w*16384
    s_lshr_b32 s35, s24, 1
    s_lshl_b32 s35, s35, 7
    s_add_u32 s34, s34, s35
    s_add_u32 s34, s34, {Y2_OFF:#x}
    s_waitcnt lgkmcnt(0)
    s_barrier""")
    stamp(a, 3)
    for j in range(8): a(f"    ds_read_b64_tr_b16 {vr(F0+2*j,2)}, v19 offset:{128*j}")
    for j in range(8):
        a(f"    s_waitcnt lgkmcnt({7-j})\n    buffer_store_dwordx2 {vr(F0+2*j,2)}, v20, s[16:19], s34 offen\n    s_add_u32 s34, s34, 0x20000")
    stamp(a, 4)
    if opt.stamps: a("    s_waitcnt vmcnt(0)")
    stamp(a, 5)
    stamp_end(a, kidx, 40, 33)
    a(f"{L}_end:\n    s_endpgm")
    return (name, 256, 256, STG + 4 * SST), (name, 256 if opt.stamps else 240, 96)

def wave_sum(a, regs, tmps):
    nop = "    s_nop 0" if len(regs) == 2 else "    ;"
    a("    s_nop 0")
    for ctl in ("quad_perm:[1,0,3,2]", "quad_perm:[2,3,0,1]", "row_half_mirror", "row_mirror"):
        for r in regs: a(f"    v_add_f32_dpp v{r}, v{r}, v{r} {ctl} row_mask:0xf bank_mask:0xf")
        a(nop)
    for sw in ("v_permlane16_swap_b32", "v_permlane32_swap_b32"):
        for r, t in zip(regs, tmps): a(f"    v_mov_b32 v{t}, v{r}")
        a(nop)
        for r, t in zip(regs, tmps): a(f"    {sw} v{t}, v{r}")
        for r, t in zip(regs, tmps): a(f"    v_add_f32 v{r}, v{r}, v{t}")

def r_body(a, XR, YR, XF, XC, YF, HP, xwait, ypre, hstore, hnstore, sInv=35, sEps=36, st0=1, xpost=None):
    def unpack(dst, src): a(f"    v_lshlrev_b32 v{dst}, 16, v{src}\n    v_and_b32 v{dst+1}, 0xffff0000, v{src}")
    def rnd(r): a(f"    v_cvt_pk_bf16_f32 v{r}, v{r}, v{r}\n    v_and_b32 v{r}, 0xffff0000, v{r}")
    S = [8, 9]; T = [10, 11]; M = [12, 14]; DM = [200, 202]; RI = [204, 206]; PS = [208, 210]
    def stats(src):
        for rho in range(2):
            a(f"    v_pk_add_f32 {vr(PS[rho],2)}, {vr(src(rho,0),2)}, {vr(src(rho,1),2)}")
        for i in range(2, 8):
            for rho in range(2): a(f"    v_pk_add_f32 {vr(PS[rho],2)}, {vr(PS[rho],2)}, {vr(src(rho,i),2)}")
        for rho in range(2): a(f"    v_add_f32 v{S[rho]}, v{PS[rho]}, v{PS[rho]+1}")
        wave_sum(a, S, T)
        for rho in range(2): a(f"    v_mul_f32 v{M[rho]}, s{sInv}, v{S[rho]}")
        for i in range(8):
            for rho in range(2):
                a(f"    v_pk_add_f32 {vr(XC + 16*rho + 2*i,2)}, {vr(src(rho,i),2)}, {vr(M[rho],2)} op_sel_hi:[1,0] neg_lo:[0,1] neg_hi:[0,1]")
        for rho in range(2): a(f"    v_pk_mul_f32 {vr(PS[rho],2)}, {vr(XC+16*rho,2)}, {vr(XC+16*rho,2)}")
        for i in range(1, 8):
            for rho in range(2): a(f"    v_pk_fma_f32 {vr(PS[rho],2)}, {vr(XC+16*rho+2*i,2)}, {vr(XC+16*rho+2*i,2)}, {vr(PS[rho],2)}")
        for rho in range(2): a(f"    v_add_f32 v{S[rho]}, v{PS[rho]}, v{PS[rho]+1}")
        wave_sum(a, S, T)
        for rho in range(2):
            a(f"    v_mov_b32 v{DM[rho]}, v{M[rho]}"); rnd(DM[rho]); a(f"    v_sub_f32 v{DM[rho]}, v{M[rho]}, v{DM[rho]}")
            a(f"    v_mul_f32 v{RI[rho]}, s{sInv}, v{S[rho]}"); rnd(RI[rho]); a(f"    v_add_f32 v{RI[rho]}, s{sEps}, v{RI[rho]}"); rnd(RI[rho])
        for rho in range(2): a(f"    v_sqrt_f32 v{RI[rho]}, v{RI[rho]}")
        a("    s_nop 0")
        for rho in range(2): rnd(RI[rho])
        for rho in range(2): a(f"    v_rcp_f32 v{RI[rho]}, v{RI[rho]}")
        for i in range(8):
            for rho in range(2):
                a(f"    v_pk_add_f32 {vr(XC + 16*rho + 2*i,2)}, {vr(XC + 16*rho + 2*i,2)}, {vr(DM[rho],2)} op_sel_hi:[1,0]")
    for rho in range(2):
        a(f"    s_waitcnt vmcnt({xwait(rho)})")
        if rho == 1 and xpost: xpost()
        for i in range(8): unpack(XF + 16 * rho + 2 * i, XR + 8 * rho + i)
    stamp(a, st0)
    stats(lambda rho, i: XF + 16 * rho + 2 * i)
    if ypre: ypre()
    a("    s_waitcnt lgkmcnt(0)")
    for rho in range(2):
        for i in range(8):
            p, d = i >> 2, i & 3
            unpack(YF + 16 * rho + 2 * i, YR + 8 * p + 4 * (d >> 1) + 2 * rho + (d & 1))
    for i in range(8):
        for rho in range(2):
            o = 16 * rho + 2 * i
            a(f"    v_pk_mul_f32 {vr(XC+o,2)}, {vr(XC+o,2)}, {vr(YF+o,2)}")
            a(f"    v_pk_fma_f32 {vr(XF+o,2)}, {vr(XC+o,2)}, {vr(RI[rho],2)}, {vr(XF+o,2)} op_sel_hi:[1,0,1]")
            a(f"    v_cvt_pk_bf16_f32 v{HP + 8*rho + i}, v{XF+o}, v{XF+o+1}")
    for q in range(4): hstore(q)
    for rho in range(2):
        for i in range(8): unpack(XF + 16 * rho + 2 * i, HP + 8 * rho + i)
    stamp(a, st0 + 1)
    stats(lambda rho, i: XF + 16 * rho + 2 * i)
    for rho in range(2):
        for i in range(8):
            o = 16 * rho + 2 * i
            a(f"    v_pk_mul_f32 {vr(XC+o,2)}, {vr(XC+o,2)}, {vr(RI[rho],2)} op_sel_hi:[1,0]")
            a(f"    v_cvt_pk_bf16_f32 v{XR + 8*rho + i}, v{XC+o}, v{XC+o+1}")
        for p in range(2): hnstore(rho, p)

def gen_r(a, kidx):
    name = "r_kernel"; L = "R"
    kernel_head(a, name)
    a(f"""    s_cmp_ge_u32 s2, 256
    s_cbranch_scc1 {L}_end
    s_load_dwordx2 s[4:5], s[0:1], {ARG['q']}
    s_load_dwordx2 s[40:41], s[0:1], {ARG['ws']}""")
    stamp_begin(a)
    a(f"""    v_lshrrev_b32 v1, 6, v0
    v_and_b32 v2, 63, v0
    s_and_b32 s24, s2, 7
    v_readfirstlane_b32 s33, v1
    s_lshl_b32 s24, s24, 5
    s_lshr_b32 s25, s2, 3
    s_add_u32 s24, s24, s25          ; sb
    v_lshlrev_b32 v3, 4, v2
    s_lshl_b32 s26, s24, 14
    s_lshl_b32 s27, s33, 12
    s_add_u32 s26, s26, s27
    s_mov_b32 m0, s27
    s_add_u32 s28, s26, {Y2_OFF:#x}
    s_waitcnt lgkmcnt(0)""")
    srd(a, 12, 4, MB4); srd(a, 16, 40, 64 << 20)
    XR = 16; YR = 32; XF = 48; XC = 80; YF = 112; HP = 144
    for i in range(4): a(f"    buffer_load_dwordx4 v3, s[16:19], s28 offen offset:{1024*i} lds")
    for i in range(4): a(f"    buffer_load_dwordx4 {vr(XR+4*i,4)}, v3, s[12:15], s26 offen offset:{1024*i}")
    a(f"""    v_bfe_u32 v4, v2, 1, 3
    v_xor_b32 v4, s33, v4
    v_lshlrev_b32 v4, 4, v4
    v_lshl_add_u32 v4, v2, 7, v4
    v_xor_b32 v5, 64, v4                 ; e=1
    s_lshl_b32 s29, s33, 1               ; 2w
    v_and_b32 v6, 7, v2
    v_xor_b32 v6, s29, v6
    v_lshrrev_b32 v7, 3, v2
    v_lshlrev_b32 v7, 14, v7
    v_lshl_add_u32 v6, v6, 4, v7         ; rho=0
    v_xor_b32 v7, 16, v6
    v_add_u32 v7, 128, v7
    s_lshr_b32 s30, s24, 4               ; mt
    s_lshl_b32 s30, s30, 18
    s_and_b32 s31, s24, 15
    s_lshl_b32 s31, s31, 10
    s_add_u32 s30, s30, s31
    s_lshl_b32 s31, s33, 8
    s_add_u32 s30, s30, s31
    s_add_u32 s30, s30, {HN_OFF:#x}
    s_add_u32 s31, s30, {8*16384}        ; p=1
    s_add_u32 s34, s26, {H_OFF:#x}       ; h soffset
    s_mov_b32 s35, 0x3a800000            ; 1/1024
    s_mov_b32 s36, 0x3727c5ac            ; 1e-5
    s_waitcnt vmcnt(4)
    s_barrier""")
    for p in range(2):
        for e in range(2): a(f"    ds_read_b128 {vr(YR + 8*p + 4*e, 4)}, v{4+e} offset:{8192*p}")
    stamp(a, 0)
    r_body(a, XR, YR, XF, XC, YF, HP, xwait=lambda rho: 2 - 2 * rho, ypre=None, hstore=lambda q: a(f"    buffer_store_dwordx4 {vr(HP+4*q,4)}, v3, s[16:19], s34 offen offset:{1024*q}"), hnstore=lambda rho, p: a(f"    buffer_store_dwordx4 {vr(XR + 8*rho + 4*p,4)}, v{6+rho}, s[16:19], s{30+p} offen"))
    stamp(a, 3)
    if opt.stamps: a("    s_waitcnt vmcnt(0)")
    stamp(a, 4)
    stamp_end(a, kidx, 40, 33)
    a(f"{L}_end:\n    s_endpgm")
    return (name, 256, 256, 16384), (name, 256 if opt.stamps else 216, 96)

KGEN = {"p": gen_p, "c": gen_c, "r": gen_r, "g1": gen_g1, "g2": gen_g2}

def build(kernels, extra=None):
    body = Asm(); launches = []; descs = []
    for i, k in enumerate(kernels):
        WS["base"] = opt.ws_base; WS["regs"] = (40,) if k in ("p", "c", "r", "pc", "p2", "c2") else (4,)
        opt.kidx = i; opt.nk = len(kernels)
        l, d = KGEN[k](body, i)
        if opt.dbg is not None: d = (d[0], 256, 96)
        launches.append(l); descs.append(d)
    body("TEXT_END:\n    s_endpgm")
    for d in descs: kernel_desc(body, *d)
    if len(launches) == 1 and launches[0][0] == KN + "_kernel" and opt.single:
        k, g, b, lds = launches[0]
        return f"; @launch grid=({g},1,1) block=({b},1,1) lds={lds}\n" + '.amdgcn_target "amdgcn-amd-amdhsa--gfx950"\n' + body.text()
    return file_head(launches) + body.text()

if __name__ == "__main__":
    opt.stamps = "--stamps" in sys.argv
    ks = [x for x in sys.argv[2:] if not x.startswith("--")]
    open(sys.argv[1], "w").write(build(ks))
```

```python
import sys
from asmlib import *
import gen, gen2
from gen import stamp_loop, opt, stamp, stamp_begin, stamp_end, vr, gemm_consumer_loop, wave_sum, MB4, KVR_OFF, H1_OFF, H1_SZ, XCH_OFF, FLG_OFF
from gen2 import GRP_RDY, FLG_SZ

opt.pfk = {12: (0, 56)}
opt.mb2 = True
opt.msleep = 2
opt.cprio = 0
opt.lprio = 0
opt.xy = False
opt.map84 = True
opt.tagx = False
opt.g2sync = True
opt.a2f = 'sc1'
opt.tlbpf = False
opt.lagthr = 7
opt.norot = False
opt.ga_bar = 27
XT_OFF = 0x0400000
HT_OFF = 0x0800000
ST1_OFF = 0x0C00000
CS_OFF = 0x0C10000
PST_OFF = 0x0C80000

def unpack(a, dst, src): a(f"    v_lshlrev_b32 v{dst}, 16, v{src}\n    v_and_b32 v{dst+1}, 0xffff0000, v{src}")
def rnd(a, r): a(f"    v_cvt_pk_bf16_f32 v{r}, v{r}, v{r}\n    v_and_b32 v{r}, 0xffff0000, v{r}")

def gen_p2(a, kidx):
    name = "p_kernel"; L = "P"
    IS = 1056; VT = 17 * IS; XTL = 33 * IS; OST = 51840
    kernel_head(a, name)
    a(f"""    s_cmp_ge_u32 s2, 256
    s_cbranch_scc1 {L}_end
    s_load_dwordx4 s[4:7], s[0:1], {ARG['k']}      ; k, v
    s_load_dwordx4 s[8:11], s[0:1], {ARG['shift']}
    s_load_dwordx2 s[40:41], s[0:1], {ARG['ws']}
    s_load_dwordx2 s[42:43], s[0:1], {ARG['q']}""")
    stamp_begin(a)
    a(f"""    v_lshrrev_b32 v1, 6, v0
    v_and_b32 v2, 63, v0
    s_and_b32 s24, s2, 7             ; cb
    v_readfirstlane_b32 s33, v1
    s_lshr_b32 s25, s2, 3            ; rb
    v_and_b32 v3, 7, v2              ; cg
    v_lshrrev_b32 v4, 3, v2          ; rg
    s_and_b32 s34, s33, 3            ; w
    s_lshl_b32 s26, s25, 17
    s_lshl_b32 s27, s24, 8
    s_add_u32 s26, s26, s27
    v_lshrrev_b32 v5, 4, v2
    v_lshlrev_b32 v5, 11, v5
    v_and_b32 v6, 15, v2
    v_lshl_add_u32 v5, v6, 4, v5
    v_add_u32 v5, s26, v5
    v_subrev_u32 v6, 8192, v5
    s_lshl_b32 s27, s34, 15
    v_add_u32 v5, s27, v5
    s_movk_i32 s44, 8192
    s_movk_i32 s45, 16384
    s_movk_i32 s46, 24576
    s_mul_i32 s35, s34, {4*IS}
    v_mul_u32_u24 v7, {2*IS}, v4
    v_lshl_add_u32 v7, v3, 3, v7
    s_lshl_b32 s27, s34, 6
    v_add_u32 v7, s27, v7
    s_cmp_ge_u32 s33, 4
    s_cbranch_scc1 {L}_x""")
    so = ["0", "s44", "s45", "s46"]
    def tail_addr(rev, ldsbase, off):
        a(f"""    {"v_xor_b32 v13, 7, v4" if rev else "v_mov_b32 v13, v4"}
    v_xor_b32 v13, v13, v3
    v_lshlrev_b32 v13, 4, v13
    v_lshl_add_u32 v13, v3, 9, v13
    s_lshl_b32 s47, s33, 12
    s_add_u32 s47, s47, {OST}
    v_add_u32 v13, s47, v13
    v_lshl_add_u32 v14, v2, 4, s47
    v_lshrrev_b32 v15, 5, v2
    v_xor_b32 v15, v15, v3               ; x0 = (l&7)^(l>>5)
    v_lshlrev_b32 v9, 12, v4             ; (l>>3)*4096
    s_lshl_b32 s47, s24, 19
    s_lshl_b32 s48, s34, 17
    s_add_u32 s47, s47, s48              ; (cb*128+w*32)*4096
    s_lshl_b32 s48, s25, 7""")
        if rev: a(f"    s_sub_u32 s48, {3968 + off}, s48")
        else: a(f"    s_add_u32 s48, s48, {off:#x}")
        a("    s_add_u32 s47, s47, s48")
    def tail_out():
        a("    s_waitcnt lgkmcnt(0)")
        for i in range(4): a(f"    ds_read_b128 {vr(16+4*i,4)}, v14 offset:{1024*i}")
        for i in range(4): a(f"    v_xor_b32 v8, {2*i}, v15\n    v_lshl_add_u32 v{32+i}, v8, 4, v9")
        for i in range(4):
            a(f"    s_waitcnt lgkmcnt({3-i})\n    buffer_store_dwordx4 {vr(16+4*i,4)}, v{32+i}, s[36:39], s47 offen\n    s_add_u32 s47, s47, 32768")
    a(f"""    s_lshl_b32 s27, s24, 10
    s_lshl_b32 s28, s34, 8
    s_add_u32 s27, s27, s28
    v_lshlrev_b32 v8, 5, v3
    s_add_u32 m0, s35, {IS}
    s_waitcnt lgkmcnt(0)""")
    srd(a, 12, 4, MB4); srd(a, 16, 6, MB4); srd(a, 20, 8, 8192)
    KR = 16; VR = 38; WR = 54
    for j in range(4):
        a(f"    buffer_load_dwordx4 v5, s[12:15], {so[j]} offen nt lds\n    s_add_u32 m0, s35, {VT + j*IS}")
        a(f"    s_nop 0\n    buffer_load_dwordx4 v5, s[16:19], {so[j]} offen nt lds\n    s_add_u32 m0, s35, {(j+2)*IS}\n    s_nop 0" if j < 3 else f"    s_nop 0\n    buffer_load_dwordx4 v5, s[16:19], {so[j]} offen nt lds\n    s_mov_b32 m0, 0\n    s_nop 0")
    a("    buffer_load_dwordx4 v6, s[12:15], 0 offen nt lds")
    a(f"    buffer_load_dwordx4 {vr(WR,4)}, v8, s[20:23], s27 offen\n    buffer_load_dwordx4 {vr(WR+4,4)}, v8, s[20:23], s27 offen offset:16")
    srd(a, 28, 10, MB4); srd(a, 36, 40, 64 << 20)
    a(f"""    s_lshl_b32 s47, s2, 14
    v_lshlrev_b32 v9, 6, v0
    buffer_load_dword v10, v9, s[28:31], s47 offen
    s_mul_i32 s47, s2, 560
    s_add_u32 s47, s47, {FLG_OFF:#x}
    v_min_u32 v11, 139, v0
    v_lshlrev_b32 v11, 2, v11
    v_mov_b32 v12, 0
    buffer_store_dword v12, v11, s[36:39], s47 offen""")
    if opt.codepf:
        a(f"""    s_cmp_ge_u32 s2, 8
    s_cbranch_scc1 {L}_nocode
    s_getpc_b64 s[50:51]
{L}_pc:
    v_lshlrev_b32 v13, 7, v0
    v_min_u32 v13, TEXT_END - {L}_pc - 4, v13
    global_load_dword v62, v13, s[50:51]
{L}_nocode:""")
    tail_addr(True, 0, KVR_OFF)
    WF = 64; KF = 80; VF = 124; OF = 156; PK = 190
    stamp(a, 0)
    a("    s_waitcnt vmcnt(2)\n    s_barrier")
    stamp(a, 4)
    kro = lambda jj: ((1 + jj) >> 2) * IS + ((1 + jj) & 3) * 256
    order = [("k", 0), ("k", 1), ("k", 2)] + [x for j in range(8) for x in (("k", 3 + j), ("v", j))]
    def rd(x):
        if x[0] == "k": a(f"    ds_read_b64 {vr(KR + 2*x[1], 2)}, v7 offset:{kro(x[1])}")
        else: a(f"    ds_read_b64 {vr(VR + 2*x[1], 2)}, v7 offset:{VT + (x[1] >> 2)*IS + (x[1] & 3)*256}")
    for x in order[:13]: rd(x)
    for c in range(4):
        for j in range(4):
            src = WR + 2 * c + (j >> 1); d = WF + (c >> 1) * 8 + j * 2 + (c & 1)
            a(f"    v_lshlrev_b32 v{d}, 16, v{src}" if j % 2 == 0 else f"    v_and_b32 v{d}, 0xffff0000, v{src}")
    def unp2(dst, src):
        for p in range(2): unpack(a, dst + 2 * p, src + p)
    a("    s_waitcnt lgkmcnt(8)")
    for x in order[13:]: rd(x)
    for r in range(3): unp2(KF + 4 * r, KR + 2 * r)
    for j in range(8):
        if j: a(f"    s_waitcnt lgkmcnt({14 - 2*j})")
        unp2(KF + 4 * (3 + j), KR + 6 + 2 * j); unp2(VF + 4 * j, VR + 2 * j)
        for p in range(2):
            o = OF + 4 * j + 2 * p
            k = lambda r: vr(KF + 4 * r + 2 * p, 2)
            w = lambda t: vr(WF + p * 8 + 2 * t, 2)
            a(f"    v_pk_mul_f32 {vr(o,2)}, {k(j)}, {w(3)}")
            a(f"    v_pk_fma_f32 {vr(o,2)}, {k(j+1)}, {w(2)}, {vr(o,2)}")
            a(f"    v_pk_fma_f32 {vr(o,2)}, {k(j+2)}, {w(1)}, {vr(o,2)}")
            a(f"    v_pk_fma_f32 {vr(o,2)}, {k(j+3)}, {w(0)}, {vr(o,2)}")
            a(f"    v_pk_mul_f32 {vr(o,2)}, {vr(o,2)}, {vr(VF + 4*j + 2*p, 2)}")
    stamp(a, 1)
    for c in range(4):
        for d in range(4):
            a(f"    v_cvt_pk_bf16_f32 v{PK+4*c+d}, v{OF + 4*(7-2*d) + c}, v{OF + 4*(6-2*d) + c}")
        a(f"    ds_write_b128 v13, {vr(PK+4*c,4)} offset:{128*c}")
    a(f"    s_branch {L}_out")
    XT_ = 40; XR = 56; XF = 80; XC = 112; PKX = 144
    a(f"""{L}_x:
    s_lshl_b32 s27, s25, 6
    s_lshl_b32 s28, s24, 3
    s_add_u32 s27, s27, s28
    s_lshl_b32 s28, s34, 1
    s_add_u32 s27, s27, s28
    s_lshl_b32 s28, s27, 11
    v_lshlrev_b32 v6, 4, v2
    s_waitcnt lgkmcnt(0)""")
    srd(a, 12, 42, MB4)
    for j in range(4): a(f"    s_add_u32 m0, s35, {XTL + j*IS}\n    s_nop 0\n    buffer_load_dwordx4 v5, s[12:15], {so[j]} offen lds")
    for i in range(4): a(f"    buffer_load_dwordx4 {vr(XR+4*i,4)}, v6, s[12:15], s28 offen offset:{1024*i}")
    srd(a, 36, 40, 64 << 20)
    a(f"""    s_lshl_b32 s47, s2, 10
    s_lshl_b32 s48, s34, 8
    s_add_u32 s47, s47, s48
    s_add_u32 s47, s47, {PST_OFF:#x}
    v_lshlrev_b32 v11, 2, v2
    v_mov_b32 v12, -1
    buffer_store_dword v12, v11, s[36:39], s47 offen
    s_mov_b32 s49, 0x05040100
    s_mov_b32 s50, 0x07060302
    s_mov_b32 s51, 0x3a800000
    s_mov_b32 s52, 0x3727c5ac
    s_lshl_b32 s27, s27, 2
    s_add_u32 s27, s27, {ST1_OFF:#x}
    s_add_u32 s28, s27, 8192""")
    tail_addr(False, 0, XT_OFF)
    stamp(a, 0)
    a("    s_waitcnt vmcnt(5)\n    s_barrier")
    stamp(a, 4)
    for j in range(8): a(f"    ds_read_b64 {vr(XT_+2*j,2)}, v7 offset:{XTL + (j >> 2)*IS + (j & 3)*256}")
    a("    s_waitcnt lgkmcnt(0)")
    for c in range(4):
        for d in range(4):
            a(f"    v_perm_b32 v{PKX+4*c+d}, v{XT_ + 2*(2*d+1) + (c>>1)}, v{XT_ + 2*(2*d) + (c>>1)}, s{49 + (c&1)}")
        a(f"    ds_write_b128 v13, {vr(PKX+4*c,4)} offset:{128*c}")
    tail_out()
    S = [8, 9]; T = [10, 11]; M = [12, 14]; PS = [72, 74]
    a("    s_waitcnt vmcnt(5)")
    for rho in range(2):
        for i in range(8): unpack(a, XF + 16 * rho + 2 * i, XR + 8 * rho + i)
    src = lambda rho, i: XF + 16 * rho + 2 * i
    for rho in range(2): a(f"    v_pk_add_f32 {vr(PS[rho],2)}, {vr(src(rho,0),2)}, {vr(src(rho,1),2)}")
    for i in range(2, 8):
        for rho in range(2): a(f"    v_pk_add_f32 {vr(PS[rho],2)}, {vr(PS[rho],2)}, {vr(src(rho,i),2)}")
    for rho in range(2): a(f"    v_add_f32 v{S[rho]}, v{PS[rho]}, v{PS[rho]+1}")
    wave_sum(a, S, T)
    for rho in range(2): a(f"    v_mul_f32 v{M[rho]}, s51, v{S[rho]}")
    for i in range(8):
        for rho in range(2):
            a(f"    v_pk_add_f32 {vr(src(rho,i),2)}, {vr(src(rho,i),2)}, {vr(M[rho],2)} op_sel_hi:[1,0] neg_lo:[0,1] neg_hi:[0,1]")
    for rho in range(2): a(f"    v_pk_mul_f32 {vr(PS[rho],2)}, {vr(src(rho,0),2)}, {vr(src(rho,0),2)}")
    for i in range(1, 8):
        for rho in range(2): a(f"    v_pk_fma_f32 {vr(PS[rho],2)}, {vr(src(rho,i),2)}, {vr(src(rho,i),2)}, {vr(PS[rho],2)}")
    for rho in range(2): a(f"    v_add_f32 v{S[rho]}, v{PS[rho]}, v{PS[rho]+1}")
    wave_sum(a, S, T)
    for rho in range(2):
        a(f"    v_mov_b32 v{76+rho}, v{M[rho]}"); rnd(a, 76 + rho)
        a(f"    v_mul_f32 v{78+rho}, s51, v{S[rho]}"); rnd(a, 78 + rho); a(f"    v_add_f32 v{78+rho}, s52, v{78+rho}"); rnd(a, 78 + rho)
    a("    v_sqrt_f32 v78, v78\n    v_sqrt_f32 v79, v79\n    s_nop 0")
    for rho in range(2): rnd(a, 78 + rho)
    a("""    v_rcp_f32 v78, v78
    v_rcp_f32 v79, v79
    v_mov_b32 v6, 0
    s_mov_b64 exec, 1
    buffer_store_dwordx2 v[76:77], v6, s[36:39], s27 offen
    buffer_store_dwordx2 v[78:79], v6, s[36:39], s28 offen
    s_mov_b64 exec, -1""")
    stamp(a, 1)
    a(f"    s_branch {L}_done\n{L}_out:")
    tail_out()
    a(f"{L}_done:")
    stamp(a, 2)
    if opt.stamps: a("    s_waitcnt vmcnt(0)")
    stamp(a, 3)
    stamp_end(a, kidx, 40, 33)
    a(f"{L}_end:\n    s_endpgm")
    return (name, 256, 512, OST + 32768), (name, 256 if opt.stamps else 208, 96)

def gen_c2(a, kidx):
    name = "c_kernel"; L = "C"
    CS = 4160; RO = 4 * CS; WSZ = 21248; STG = 4 * WSZ
    kernel_head(a, name)
    a(f"""    s_cmp_ge_u32 s2, 256
    s_cbranch_scc1 {L}_end
    s_load_dwordx4 s[4:7], s[0:1], {ARG['ssmk']}
    s_load_dwordx2 s[40:41], s[0:1], {ARG['ws']}
    s_load_dwordx2 s[10:11], s[0:1], {ARG['w1']}
    s_load_dwordx2 s[42:43], s[0:1], {ARG['w2']}""")
    stamp_begin(a)
    a(f"""    v_lshrrev_b32 v1, 6, v0
    v_and_b32 v2, 63, v0
    s_and_b32 s24, s2, 7
    v_readfirstlane_b32 s33, v1
    s_lshl_b32 s24, s24, 5
    s_lshr_b32 s25, s2, 3
    s_add_u32 s24, s24, s25          ; cg
    s_cmp_ge_u32 s33, 4
    s_cbranch_scc1 {L}_help
    s_lshl_b32 s25, s24, 2
    s_add_u32 s25, s25, s33          ; ch
    s_lshl_b32 s26, s25, 12          ; ch*4096
    s_mul_i32 s27, s33, {WSZ}        ; WB
    v_lshlrev_b32 v3, 4, v2          ; lane*16
    s_add_u32 m0, s27, {RO}
    s_lshr_b32 s28, s25, 1
    s_lshl_b32 s28, s28, 2
    s_waitcnt lgkmcnt(0)""")
    srd(a, 12, 4, MB4); srd(a, 16, 40, 64 << 20)
    FD = 16; FE = 32; FX = 48; TO = 52
    for i in range(4):
        a(f"    buffer_load_dwordx4 {vr(FD+4*i,4)}, v3, s[12:15], s26 offen offset:{1024*i}")
        a(f"    buffer_load_dwordx4 {vr(FE+4*i,4)}, v3, s[12:15], s26 offen offset:{1024*i+4}")
        a(f"    buffer_load_dword v{FX+i}, v3, s[12:15], s26 offen offset:{1024*i+20}")
    for i in range(4): a(f"    buffer_load_dwordx4 v3, s[16:19], s26 offen offset:{1024*i} lds")
    a(f"""    s_load_dword s29, s[6:7], s28
    v_add_u32 v4, s27, v3
    v_mov_b32 v60, 0
    v_mov_b32 v61, 0
    v_mov_b32 v62, 0
    v_mov_b32 v63, 0
    s_mov_b64 exec, 0x3fffffff
    ds_write_b128 v4, v[60:63] offset:{RO + 4096}
    s_mov_b64 exec, -1
    v_and_b32 v5, 15, v2             ; b / a
    v_lshrrev_b32 v6, 4, v2          ; kg
    v_add_u32 v7, 1, v5
    v_and_b32 v8, 3, v7
    v_mul_u32_u24 v8, {CS}, v8
    v_and_b32 v7, 28, v7
    v_lshl_add_u32 v8, v7, 1, v8
    v_lshl_add_u32 v8, v6, 4, v8
    v_add_u32 v8, s27, v8            ; vAT
    v_lshlrev_b32 v9, 5, v5
    v_lshl_add_u32 v10, v6, 3, v9    ; 32a + 8g
    v_sub_u32 v9, {RO + 480}, v9
    v_lshl_add_u32 v9, v6, 4, v9
    v_add_u32 v9, s27, v9            ; vBT
    s_add_u32 s34, s26, {XT_OFF:#x}""")
    stamp(a, 0)
    for i in range(4):
        D = FD + 4 * i; E = FE + 4 * i
        a(f"    s_waitcnt vmcnt({4 + 9 - 3*i})")
        a(f"    ds_write_b128 v4, {vr(D,4)} offset:{32 + 1024*i}")
        a(f"    ds_write_b128 v4, {vr(E,4)} offset:{2*CS + 32 + 1024*i}")
        t = TO + 8 * (i & 1)
        for k in range(4): a(f"    v_alignbit_b32 v{t+k}, v{E+k}, v{D+k}, 16")
        a(f"    ds_write_b128 v4, {vr(t,4)} offset:{CS + 32 + 1024*i}")
        for k in range(4): a(f"    v_alignbit_b32 v{t+4+k}, v{E+k+1 if k < 3 else FX+i}, v{E+k}, 16")
        a(f"    ds_write_b128 v4, {vr(t+4,4)} offset:{3*CS + 32 + 1024*i}")
        if i == 0:
            a(f"""    v_mov_b32 v68, 0
    v_mov_b32 v69, 0
    v_mov_b32 v70, 0
    v_lshlrev_b32 v71, 16, v{D}
    v_mov_b32 v72, 0
    v_mov_b32 v73, 0
    v_mov_b32 v74, 0
    v_mov_b32 v75, v{D}
    v_mov_b32 v76, 0
    v_mov_b32 v77, 0
    v_mov_b32 v78, v71
    v_mov_b32 v79, v{t}
    s_mov_b64 exec, 1
    ds_write_b128 v4, v[60:63]
    ds_write_b128 v4, v[60:63] offset:16
    ds_write_b128 v4, v[60:63] offset:{CS}
    ds_write_b128 v4, v[68:71] offset:{CS+16}
    ds_write_b128 v4, v[60:63] offset:{2*CS}
    ds_write_b128 v4, v[72:75] offset:{2*CS+16}
    ds_write_b128 v4, v[60:63] offset:{3*CS}
    ds_write_b128 v4, v[76:79] offset:{3*CS+16}
    s_mov_b64 exec, -1""")
    ACC = 80; F0 = 112; F1 = 176
    for i in range(0, 32, 2): a(f"    v_mov_b64 {vr(ACC+i,2)}, 0")
    a(f"""    v_mov_b32 v34, {STG + 16384}
    v_mov_b32 v35, 0
    ds_write_b32 v34, v35
    s_waitcnt vmcnt(0) lgkmcnt(0)""")
    for n in range(8): a(f"    buffer_load_dwordx2 {vr(FD + 2*n, 2)}, v10, s[16:19], s34 offen offset:{512*n}")
    a("    s_barrier")
    stamp(a, 1)
    def reads(F, woff):
        r = []
        for u in range(8):
            r.append(f"    ds_read_b128 {vr(F+32+4*u,4)}, v9 offset:{3584 - 512*u + woff}")
            r.append(f"    ds_read_b64 {vr(F+4*u,2)}, v8 offset:{512*u + woff}")
            r.append(f"    ds_read_b64 {vr(F+4*u+2,2)}, v8 offset:{512*u + 8 + woff}")
        return r
    def mf(F):
        return [f"    v_mfma_f32_16x16x32_bf16 {vr(ACC+4*(u+v),4)}, {vr(F+4*u,4)}, {vr(F+32+4*v,4)}, {vr(ACC+4*(u+v),4)}" for u in range(8) for v in range(8 - u)]
    def weave(m, f):
        i = 0
        for x in m:
            a(x)
            if i < len(f): a(f[i]); i += 1
    for l in reads(F0, 0): a(l)
    a(f"    s_mov_b32 s35, 0\n{L}_loop:\n    s_waitcnt lgkmcnt(0)")
    weave(mf(F0), reads(F1, 64) + ["    ds_read_b32 v35, v34", "    v_add_u32 v8, 128, v8", "    v_add_u32 v9, 128, v9", "    s_add_u32 s35, s35, 1", "    s_cmp_eq_u32 s35, 4"])
    a(f"    s_waitcnt lgkmcnt(0)\n    s_cbranch_scc1 {L}_last")
    weave(mf(F1), reads(F0, 0))
    a(f"""    s_branch {L}_loop
{L}_again:
    s_sleep 1
    ds_read_b32 v35, v34
    s_waitcnt lgkmcnt(0)
{L}_last:
    v_readfirstlane_b32 s36, v35
    s_cmp_eq_u32 s36, 4
    s_cbranch_scc0 {L}_again""")
    KV = F0; MT = F0 + 16
    pre = [f"""    v_sub_u32 v32, {RO + 504}, v10
    v_add_u32 v32, s27, v32""",
           f"""    v_lshlrev_b32 v33, 1, v10
    v_add_u32 v33, {STG}, v33"""]
    pre += [f"    ds_read_b64 {vr(KV+2*n,2)}, v32 offset:{512*(7-n)}" for n in range(8)]
    pre += [f"    ds_read_b128 {vr(MT+4*n,4)}, v33 offset:{1024*n}" for n in range(8)]
    RTB = 36
    pre += [f"    ds_read_b128 {vr(RTB+4*n,4)}, v33 offset:{8192 + 1024*n}" for n in range(8)]
    pre += [f"""    s_lshl_b32 s35, s29, 16
    s_and_b32 s36, s29, 0xffff0000""", f"""    s_bitcmp1_b32 s25, 0
    s_cselect_b32 s35, s36, s35          ; D as f32""",
            f"""    s_and_b32 s36, s25, 3
    s_bfe_u32 s37, s25, 0x10003""", f"""    s_lshl_b32 s37, s37, 2
    s_or_b32 s36, s36, s37               ; g(d)""",
            f"""    v_and_b32 v11, 7, v5
    v_xor_b32 v11, s36, v11""", f"""    v_lshlrev_b32 v11, 5, v11
    v_lshrrev_b32 v12, 3, v5""", f"""    v_lshl_add_u32 v11, v12, 18, v11
    v_and_b32 v12, 1, v6""", f"""    v_lshl_add_u32 v11, v12, 19, v11
    v_lshrrev_b32 v12, 1, v6""", f"""    v_lshl_add_u32 v11, v12, 4, v11
    s_lshl_b32 s34, s25, 8""", f"""    s_add_u32 s34, s34, {HT_OFF:#x}"""]
    weave(mf(F1), pre)
    stamp(a, 2)
    a("    s_waitcnt vmcnt(0) lgkmcnt(0)")
    OUT = 224
    order = [0, 1, 2, 3, 4, 5, 6, 7]
    for n in order:
        c = ACC + 4 * n; k = KV + 2 * n; x = FD + 2 * n; o = OUT + 2 * n
        a(f"""    v_and_b32 v12, 0xffff0000, v{k+1}
    v_lshlrev_b32 v13, 16, v{k+1}
    v_and_b32 v14, 0xffff0000, v{k}
    v_lshlrev_b32 v15, 16, v{k}
    v_fmac_f32 v{c}, s35, v12
    v_fmac_f32 v{c+1}, s35, v13
    v_fmac_f32 v{c+2}, s35, v14
    v_fmac_f32 v{c+3}, s35, v15
    v_lshlrev_b32 v12, 16, v{x}
    v_and_b32 v13, 0xffff0000, v{x}
    v_lshlrev_b32 v14, 16, v{x+1}
    v_and_b32 v15, 0xffff0000, v{x+1}
    v_pk_mul_f32 {vr(c,2)}, {vr(c,2)}, {vr(RTB+4*n,2)}
    v_pk_mul_f32 {vr(c+2,2)}, {vr(c+2,2)}, {vr(RTB+4*n+2,2)}
    v_pk_add_f32 {vr(MT+4*n,2)}, v[12:13], {vr(MT+4*n,2)} neg_lo:[0,1] neg_hi:[0,1]
    v_pk_add_f32 {vr(MT+4*n+2,2)}, v[14:15], {vr(MT+4*n+2,2)} neg_lo:[0,1] neg_hi:[0,1]
    v_pk_fma_f32 v[12:13], {vr(MT+4*n,2)}, {vr(c,2)}, v[12:13]
    v_pk_fma_f32 v[14:15], {vr(MT+4*n+2,2)}, {vr(c+2,2)}, v[14:15]
    v_cvt_pk_bf16_f32 v{o}, v12, v13
    v_cvt_pk_bf16_f32 v{o+1}, v14, v15""")
        if n & 1:
            a(f"""    s_nop 0
    v_permlane16_swap_b32 v{o-2}, v{o}
    v_permlane16_swap_b32 v{o-1}, v{o+1}
    buffer_store_dwordx4 {vr(o-2,4)}, v11, s[16:19], s34 offen
    s_add_u32 s34, s34, 0x100000""")
    stamp(a, 3)
    a(f"    s_branch {L}_done")
    W = 16; WF = 48
    a(f"""{L}_help:
    s_and_b32 s34, s33, 3
    s_and_b32 s25, s2, 15            ; k slice
    s_lshr_b32 s26, s2, 4
    s_mul_i32 s27, s25, {64*7168}
    s_lshl_b32 s28, s26, 9
    s_lshl_b32 s29, s34, 7
    s_add_u32 s28, s28, s29
    s_add_u32 s27, s27, s28
    v_lshrrev_b32 v3, 3, v2
    v_mul_u32_u24 v3, 7168, v3
    v_and_b32 v4, 7, v2
    v_lshl_add_u32 v3, v4, 4, v3
    s_waitcnt lgkmcnt(0)""")
    srd(a, 12, 10, 1024 * 7168); srd(a, 16, 40, 64 << 20)
    a(f"""    s_lshl_b32 s30, s34, 12
    s_add_u32 m0, s30, {STG}
    s_add_u32 s30, s30, {ST1_OFF:#x}
    v_lshlrev_b32 v5, 4, v2
    v_mov_b32 v8, {STG + 16384}
    v_mov_b32 v9, 1
    s_barrier""")
    for i in range(4): a(f"    buffer_load_dwordx4 v5, s[16:19], s30 offen offset:{1024*i} lds")
    a("""    s_waitcnt vmcnt(0)
    s_mov_b64 exec, 1
    ds_add_u32 v8, v9
    s_mov_b64 exec, -1""")
    if opt.tlbpf:
        srd(a, 20, 42, 3584 * 2048)
        a(f"""    s_lshr_b32 s30, s2, 3
    s_mul_i32 s30, s30, {56*4096}
    v_lshlrev_b32 v5, 12, v2
    s_cmp_eq_u32 s34, 1
    s_cbranch_scc1 {L}_t1
    s_cmp_eq_u32 s34, 0
    s_cbranch_scc0 {L}_t2
    buffer_load_dword v7, v5, s[12:15], s30 offen
    s_branch {L}_t3
{L}_t1:
    buffer_load_dword v7, v5, s[20:23], s30 offen
    s_branch {L}_t3
{L}_t2:
    s_lshl_b32 s30, s30, 1
    s_and_b32 s31, s34, 1
    s_mul_i32 s31, s31, {56*4096}
    s_add_u32 s30, s30, s31
    s_add_u32 s30, s30, {H1_OFF:#x}
    buffer_load_dword v7, v5, s[16:19], s30 offen
{L}_t3:""")
    a(f"""    s_cmp_ge_u32 s2, 224
    s_cbranch_scc1 {L}_done""")
    for i in range(8):
        a(f"    buffer_load_dwordx4 {vr(W+4*i,4)}, v3, s[12:15], s27 offen\n    s_add_u32 s27, s27, {8*7168}")
    if opt.c_pf2:
        srd(a, 20, 42, 3584 * 2048)
        a(f"""    s_mul_i32 s30, s2, 32768
    s_lshl_b32 s31, s34, 13
    s_add_u32 s30, s30, s31
    v_lshlrev_b32 v5, 7, v2
    buffer_load_dword v6, v5, s[20:23], s30 offen""")
    ex = 1 if opt.c_pf2 else 0
    for i in range(8):
        a(f"    s_waitcnt vmcnt({7 - i + ex})")
        if i == 0:
            for d in range(4): unpack(a, WF + 2 * d, W + d)
        else:
            for d in range(4):
                unpack(a, WF + 8 + 2 * (d & 1), W + 4 * i + d)
                a(f"    v_pk_add_f32 {vr(WF+2*d,2)}, {vr(WF+2*d,2)}, {vr(WF + 8 + 2*(d&1),2)}")
    for d in range(8): a(f"    v_add_f32_dpp v{WF+d}, v{WF+d}, v{WF+d} row_ror:8 row_mask:0xf bank_mask:0xf")
    for sw in ("v_permlane16_swap_b32", "v_permlane32_swap_b32"):
        for d in range(8): a(f"    v_mov_b32 v{WF+8+d}, v{WF+d}")
        for d in range(8): a(f"    {sw} v{WF+8+d}, v{WF+d}")
        for d in range(8): a(f"    v_add_f32 v{WF+d}, v{WF+d}, v{WF+8+d}")
    a(f"""    s_mul_i32 s27, s25, {3584*4}
    s_lshl_b32 s28, s28, 1
    s_add_u32 s27, s27, s28
    s_add_u32 s27, s27, {CS_OFF:#x}
    v_lshlrev_b32 v4, 5, v4
    s_mov_b64 exec, 0xff
    buffer_store_dwordx4 {vr(WF,4)}, v4, s[16:19], s27 offen
    buffer_store_dwordx4 {vr(WF+4,4)}, v4, s[16:19], s27 offen offset:16
    s_mov_b64 exec, -1
{L}_done:""")
    stamp(a, 4)
    if opt.stamps: a("    s_waitcnt vmcnt(0)")
    stamp(a, 5)
    stamp_end(a, kidx, 40, 33)
    a(f"{L}_end:\n    s_endpgm")
    return (name, 256, 512, STG + 16384 + 64), (name, 256 if opt.stamps else 240, 96)


def loop_unrolled(a, L, MI, NI, nk, ns, acc, F0, F1, rdA, rdB, s_k, bar, tail, hookA=None, hookB=None, entry=None):
    n = MI * NI
    def reads(F, slot, kh):
        r = rdA(F, slot, kh)
        for ni in range(NI): r += rdB(F, slot, kh, ni)
        return r
    def mfmas(F):
        return [f"    v_mfma_f32_16x16x32_bf16 {vr(acc + 4*(mi*NI+ni),4)}, {vr(F + 4*MI + 4*ni, 4)}, {vr(F + 4*mi, 4)}, {vr(acc + 4*(mi*NI+ni),4)}" for ni in range(NI) for mi in range(MI)]
    def place(mf, items, start, extra):
        gaps = [[] for _ in mf]
        for j, it in enumerate(items): gaps[start + j].append(it)
        for k, v in extra.items(): gaps[k] += v
        for m, gl in zip(mf, gaps):
            a(m)
            for x in gl: a(x)
    nrd = len(reads(F0, 0, 0))
    late = bar >= n
    st = bar - n + 1 if late else 0
    lagB = st + nrd > n - opt.lagthr
    a(f"    s_mov_b32 s{s_k}, 0")
    if entry is None:
        for l in reads(F0, 0, 0): a(l)
    else:
        a(f"    s_cmp_eq_u32 {entry}, 0\n    s_cbranch_scc1 {L}_e0")
        for l in reads(F0, 1, 0): a(l)
        a(f"    s_branch {L}_s1\n{L}_e0:")
        for l in reads(F0, 0, 0): a(l)
    for u in range(ns):
        a(f"{L}_s{u}:")
        ex = {}
        if lagB:
            a(f"    s_waitcnt lgkmcnt({2*(NI-1)})")
            for ni in range(1, NI):
                ex.setdefault(MI * ni - 1, []).append(f"    s_waitcnt lgkmcnt({min(15, 2*(NI-1-ni) + min(nrd, MI*ni))})")
        else:
            a("    s_waitcnt lgkmcnt(0)")
        ex.setdefault(n - 3, []).append(f"    s_add_u32 s{s_k}, s{s_k}, 1")
        ex.setdefault(n - 2, []).append(f"    s_cmp_eq_u32 s{s_k}, {nk}")
        if not late: ex.setdefault(bar, []).append("    s_waitcnt lgkmcnt(0)\n    s_barrier")
        ex.setdefault(n - 1, []).append(f"    s_cbranch_scc1 {L}_tail")
        if late: ex[n - 1].append(f"    s_waitcnt lgkmcnt({2*(NI-1)})")
        if hookA: ex[n - 1].append(hookA(u))
        place(mfmas(F0), reads(F1, u, 1), 0, ex)
        ex = {}
        if late: ex[bar - n] = ["    s_waitcnt lgkmcnt(0)\n    s_barrier"]
        if hookB: ex.setdefault(n - 1, []).append(hookB(u))
        if u == ns - 1: ex.setdefault(n - 1, []).append(f"    s_branch {L}_s0")
        place(mfmas(F1), reads(F0, (u + 1) % ns, 0), st, ex)
    a(f"{L}_tail:")
    if late: a("    s_waitcnt lgkmcnt(0)\n    s_barrier")
    tail(mfmas(F1))

def gen_ga(a, kidx, mega=None):
    name = "g_kernel"; L = "G"
    PX = 4 if opt.map84 else 1
    MAP = """    s_lshr_b32 s26, s24, 1
    s_lshl_b32 s26, s26, 2
    s_and_b32 s27, s25, 3
    s_add_u32 s26, s26, s27          ; mt
    s_and_b32 s54, s24, 1
    s_lshr_b32 s55, s25, 2
    s_lshl_b32 s56, s24, 2
    s_add_u32 s56, s56, s27
    s_lshl_b32 s56, s56, 7           ; group*128
    s_lshl_b32 s27, s54, 3
    s_add_u32 s27, s27, s55          ; nt
""" if not opt.map84 else """    s_and_b32 s26, s24, 1
    s_lshl_b32 s26, s26, 3
    s_and_b32 s27, s25, 7
    s_add_u32 s26, s26, s27          ; mt
    s_lshr_b32 s27, s24, 1
    s_lshl_b32 s27, s27, 2
    s_lshr_b32 s55, s25, 3
    s_add_u32 s27, s27, s55          ; nt
    s_lshr_b32 s54, s27, 3           ; kh
    s_and_b32 s55, s27, 7
    s_lshl_b32 s56, s26, 1
    s_add_u32 s56, s56, s54
    s_lshl_b32 s56, s56, 7           ; group*128
"""
    LA = 224; LB = 216; LB2 = 212
    ST1 = 49152; NS1 = 3; NK1 = 16
    NS2 = 4; NK2 = 28; B2 = 81920
    BR1 = 49152; CNT = 147456; TST = CNT + 256; TRM = TST + 512; TCB = TRM + 1024 + 64; RES = 65536
    if not mega:
        kernel_head(a, name)
        a(f"    s_cmp_ge_u32 s2, 256\n    s_cbranch_scc1 {L}_end")
    a(f"""    s_load_dwordx2 s[4:5], s[0:1], {ARG['ws']}
    s_load_dwordx4 s[8:11], s[0:1], {ARG['w1']}    ; w1, b1
    s_load_dwordx4 s[48:51], s[0:1], {ARG['w2']}   ; w2, b2
    s_load_dwordx2 s[52:53], s[0:1], {ARG['out']}""")
    stamp_begin(a)
    a(f"""    v_lshrrev_b32 v1, 6, v0
    v_and_b32 v2, 63, v0
    s_and_b32 s24, s2, 7
    v_readfirstlane_b32 s33, v1
    s_lshr_b32 s25, s2, 3
{MAP}    s_and_b32 s29, s27, 1            ; p = nt odd
    s_cmp_lt_u32 s33, 4
    s_cbranch_scc1 {L}_cons""")
    def final_addr():
        a(f"""    s_lshl_b32 s43, s26, 7
    s_lshl_b32 s44, s54, 5
    s_add_u32 s43, s43, s44
    s_lshl_b32 s44, s33, 2
    s_add_u32 s43, s43, s44
    s_lshl_b32 s43, s43, 11          ; row*2048
    s_lshl_b32 s44, s55, 8
    s_add_u32 s43, s43, s44
    s_add_u32 s44, s43, {64*2048}""")
    if opt.lprio: a(f"    s_setprio {opt.lprio}")
    a(f"""    s_and_b32 s34, s33, 3            ; lw
    s_lshl_b32 s35, s34, 12          ; lw*4096
    v_lshl_add_u32 v{LA}, v2, 4, s35 ; A voffset
    s_lshl_b32 s68, s26, 18
    s_add_u32 s69, s68, {16 << 14}
    s_and_b32 s36, s27, {0 if opt.norot else 12}
    s_lshl_b32 s30, s36, 14
    s_add_u32 s30, s30, s68
    s_mul_i32 s66, s27, 448
    s_and_b32 s66, s66, 0xffffff80
    s_add_u32 s67, s66, {1024*7168}
    s_mul_i32 s31, s36, {64*7168}
    s_add_u32 s31, s31, s66
    s_mov_b32 s70, s35
    s_add_u32 s39, s35, {NS1*16384}
    s_add_u32 s38, s35, s35
    s_add_u32 s38, s38, {BR1}
    s_mov_b32 s71, s38
    s_add_u32 s37, s38, {NS1*32768}
    s_waitcnt lgkmcnt(0)""")
    srd(a, 12, 4, MB4, off=HT_OFF)
    def issueA1():
        a(f"    s_mov_b32 m0, s70\n    s_add_u32 s70, s70, 16384")
        for i in range(4): a(f"    buffer_load_dwordx4 v{LA}, s[12:15], s30 offen offset:{i*1024} {'sc1' if mega else ''} lds")
        a("""    s_add_u32 s30, s30, 16384
    s_cmp_ge_u32 s70, s39
    s_cselect_b32 s70, s35, s70
    s_cmp_ge_u32 s30, s69
    s_cselect_b32 s30, s68, s30""")
    def issueB1():
        a("    s_mov_b32 m0, s38\n    s_nop 0")
        for i in range(4): a(f"    buffer_load_dwordx4 v{LB+i}, s[16:19], s31 offen offset:{i*1024} lds")
        a(f"    s_add_u32 m0, s38, 4096\n    s_add_u32 s38, s38, 32768")
        for i in range(4, 8): a(f"    buffer_load_dwordx4 v{LB+i}, s[16:19], s31 offen offset:{(i&3)*1024} lds")
        a(f"""    s_add_u32 s31, s31, {64*7168}
    s_cmp_ge_u32 s38, s37
    s_cselect_b32 s38, s71, s38
    s_cmp_ge_u32 s31, s67
    s_cselect_b32 s31, s66, s31""")
    if not mega: issueA1()
    a(f"""    v_lshrrev_b32 v8, 5, v2          ; hi
    s_lshl_b32 s36, s34, 4
    v_add_u32 v9, s36, v8            ; 16lw+hi
    v_mul_u32_u24 v9, 7168, v9
    v_and_b32 v10, 1, v2
    v_lshl_add_u32 v9, v10, 4, v9    ; t0
    v_bfe_u32 v10, v2, 1, 4
    v_xor_b32 v10, v10, v8           ; x0""")
    srd(a, 16, 8, 1024 * 7168)
    for ci, c in enumerate((0, 2, 4, 6)):
        a(f"    v_xor_b32 v11, {c}, v10\n    v_lshl_add_u32 v11, v11, 5, v9")
        for i in range(8):
            if 2 * (i & 1) + 4 * (i >> 2) == c: a(f"    v_add_u32 v{LB+i}, {2*i*7168 - (i&3)*1024}, v11")
    stamp(a, 0)
    if not mega:
        issueB1(); issueA1()
        a("    s_waitcnt vmcnt(4)\n    s_barrier")
        issueB1(); issueA1(); issueB1()
    else:
        srd(a, 20, 4, 0x8000, off=mega["HF"])
        a(f"""    v_mov_b32 v10, {mega["WRD"]}
    v_lshlrev_b32 v11, 7, v2
    v_add_u32 v11, s35, v11
    v_add_u32 v11, s35, v11
{L}_m0:
    ds_read_b32 v13, v10 offset:48
    s_waitcnt lgkmcnt(0)
    v_readfirstlane_b32 s36, v13
    s_cmp_eq_u32 s36, 8
    s_cbranch_scc1 {L}_m1
    s_sleep 1
    s_branch {L}_m0
{L}_m1:""")
        issueB1()
        if opt.mb2: issueB1()
        a(f"""{L}_m2:
    buffer_load_dword v13, v11, s[20:23], 0 offen sc1
    s_waitcnt vmcnt(0)
    v_cmp_eq_u32 vcc, 1, v13
    s_cmp_eq_u64 vcc, -1
    s_cbranch_scc1 {L}_m3
    s_sleep {opt.msleep}
    s_branch {L}_m2
{L}_m3:
    v_mov_b32 v12, 1
    s_mov_b64 exec, 1
    ds_add_u32 v10, v12 offset:52
    s_mov_b64 exec, -1
{L}_m4:
    ds_read_b32 v13, v10 offset:52
    s_waitcnt lgkmcnt(0)
    v_readfirstlane_b32 s36, v13
    s_cmp_eq_u32 s36, 4
    s_cbranch_scc0 {L}_m4""")
        stamp(a, 11)
        issueA1(); issueA1()
        a("    s_waitcnt vmcnt(4)\n    s_barrier")
        if not opt.mb2: issueB1()
        issueA1(); issueB1()
    stamp(a, 12)
    a(f"""    v_lshrrev_b32 v3, 4, v2          ; q4
    s_lshl_b32 s36, s34, 4
    v_add_u32 v4, s36, v3
    v_lshlrev_b32 v4, 11, v4
    v_and_b32 v5, 1, v2
    v_lshl_add_u32 v4, v5, 4, v4     ; t0
    v_bfe_u32 v5, v2, 1, 3
    v_xor_b32 v5, v5, v3             ; x0""")
    for c in (0, 4):
        a(f"    v_xor_b32 v6, {c}, v5\n    v_lshl_add_u32 v6, v6, 5, v4")
        for i in range(4):
            if 4 * (i >> 1) == c: a(f"    v_add_u32 v{LB2+i}, {4*i*2048 - i*1024}, v6")
    a(f"""    v_lshrrev_b32 v3, 3, v2          ; d&7
    v_bfe_u32 v4, v2, 1, 2
    v_lshrrev_b32 v5, 1, v3
    v_xor_b32 v4, v4, v5             ; gs
    v_and_b32 v5, 1, v4
    v_lshrrev_b32 v4, 1, v4
    v_lshl_or_b32 v4, v4, 2, v5
    s_lshl_b32 s36, s54, 1
    v_or_b32 v4, s36, v4             ; cp
    v_and_b32 v5, 3, v3
    v_xor_b32 v4, v4, v5             ; cp ^ (d&3)
    v_lshlrev_b32 v4, 5, v4
    v_and_b32 v5, 1, v2
    v_lshl_add_u32 v4, v5, 4, v4
    v_lshl_add_u32 v208, v3, 8, v4
    v_xor_b32 v209, 128, v208
    v_add_u32 v209, 1024, v209
    v_add_u32 v210, 2048, v208
    v_add_u32 v211, 2048, v209
    v_and_b32 v3, 31, v2
    v_lshrrev_b32 v4, 5, v2
    v_lshlrev_b32 v4, 13, v4
    v_lshl_add_u32 v206, v3, 2, v4
    v_and_b32 v3, 15, v2
    v_min_u32 v3, 13, v3
    v_lshrrev_b32 v4, 4, v2
    v_mul_u32_u24 v207, {3584*4}, v4
    v_lshl_add_u32 v207, v3, 4, v207
    v_lshlrev_b32 v205, 3, v3""")
    if opt.xy:
        a(f"""    s_lshr_b32 s36, s55, 1
    s_mul_i32 s36, s36, 3
    s_lshl_b32 s41, s29, 1
    s_add_u32 s36, s36, s41
    v_subrev_u32 v3, 3, v2               ; q
    v_cmp_le_u32 vcc, s36, v3
    s_lshl_b32 s41, s55, 1
    v_subrev_u32 v5, 14, v2              ; z
    v_addc_co_u32 v3, vcc, 0, v3, vcc    ; c
    v_cmp_le_u32 vcc, s41, v5
    v_mul_u32_u24 v4, 43, v3
    v_lshrrev_b32 v4, 7, v4              ; c/3
    v_cndmask_b32 v6, 0, 2, vcc
    v_add_u32 v5, v5, v6
    v_mul_u32_u24 v6, 3, v4
    v_sub_u32 v3, v3, v6                 ; c%3
    v_min_u32 v6, 1, v3
    v_lshl_add_u32 v3, v6, 1, v3         ; 0,3,4
    v_mad_u32_u24 v3, v4, 7, v3
    v_lshrrev_b32 v4, 2, v5
    v_and_b32 v6, 1, v5
    v_bfe_u32 v5, v5, 1, 1
    v_lshl_add_u32 v5, v5, 2, v6
    v_mad_u32_u24 v5, v4, 7, v5
    v_add_u32 v5, 1, v5
    v_cmp_gt_u32 vcc, 14, v2
    s_mul_i32 s36, s55, 7
    s_add_u32 s36, s36, 1
    v_cndmask_b32 v3, v5, v3, vcc
    s_lshr_b32 s36, s36, 1
    v_cmp_gt_u32 vcc, 3, v2
    v_add_u32 v5, s36, v2
    s_nop 0
    v_cndmask_b32 v72, v3, v5, vcc""")
    srd(a, 20, 4, 64 << 20); srd(a, 72, 10, 7168)
    PSR = 32; CSR = 48; BR = 64
    a(f"""    s_lshl_b32 s41, s26, 14
    s_lshl_b32 s36, s34, 7
    s_add_u32 s41, s41, s36
    s_add_u32 s41, s41, {PST_OFF:#x}
    s_add_u32 s47, s41, 4096
    s_mul_i32 s42, s27, 896
    s_mul_i32 s36, s34, 224
    s_add_u32 s42, s42, s36
    s_lshr_b32 s43, s42, 1
    s_add_u32 s42, s42, {CS_OFF:#x}""")
    KP = 6
    pfk = dict(opt.pfk) if opt.w2pf == "l" else {}
    if pfk:
        srd(a, 60, 48, 3584 * 2048)
        a(f"""    s_mul_i32 s59, s2, 28672
    s_mul_i32 s36, s34, 7168
    s_add_u32 s59, s59, s36
    v_lshlrev_b32 v70, {8 if opt.c_pf2 == 2 else 7}, v2
    {"s_add_u32 s59, s59, 128" if opt.c_pf2 == 2 else ""}""")
    def pf(k):
        if k in pfk:
            lo, hi = pfk[k]
            m = ((1 << hi) - 1) ^ ((1 << lo) - 1)
            a(f"    s_mov_b32 exec_lo, {m & 0xffffffff:#x}\n    s_mov_b32 exec_hi, {m >> 32:#x}\n    buffer_load_dword v71, v70, s[60:63], s59 offen\n    s_mov_b64 exec, -1")
    extra = lambda k: (1 if (k - 1) in pfk else 0) + (1 if (k - 2) in pfk else 0)
    a(f"    s_mov_b32 s40, 0\n{L}_l1:")
    stamp_loop(a, 40, 32)
    a("    s_waitcnt vmcnt(12)")
    stamp_loop(a, 40, 42)
    a("    s_barrier")
    stamp_loop(a, 40, 52)
    if not opt.noload:
        issueA1(); issueB1()
    a(f"    s_add_u32 s40, s40, 1\n    s_cmp_lt_u32 s40, {KP + 1}\n    s_cbranch_scc1 {L}_l1")
    stamp(a, 20)
    def gather_ps():
        for i in range(16): a(f"    buffer_load_dword v{PSR+i}, v206, s[20:23], s{41 if i < 8 else 47} offen offset:{512*(i&7)} sc1")
    gather_ps()
    for i in range(4): a(f"    buffer_load_dwordx4 {vr(CSR+4*i,4)}, v207, s[20:23], s42 offen {'sc1' if mega else ''}\n    s_add_u32 s42, s42, {4*3584*4}")
    a(f"    buffer_load_dwordx2 {vr(BR,2)}, v205, s[72:75], s43 offen")
    for k in (KP + 1, KP + 2):
        stamp(a, 21 + 2 * (k - KP - 1))
        a(f"    s_waitcnt vmcnt({33 + extra(k)})\n    s_barrier          ; b{k}")
        stamp(a, 22 + 2 * (k - KP - 1))
        issueA1(); issueB1(); pf(k)
    t = Asm()
    for i in range(1, 8): t(f"    v_pk_add_f32 {vr(PSR,2)}, {vr(PSR,2)}, {vr(PSR+2*i,2)}")
    for i in range(1, 4):
        t(f"    v_pk_add_f32 {vr(CSR,2)}, {vr(CSR,2)}, {vr(CSR+4*i,2)}\n    v_pk_add_f32 {vr(CSR+2,2)}, {vr(CSR+2,2)}, {vr(CSR+4*i+2,2)}")
    t(f"""    v_add_f32 v3, v{PSR}, v{PSR+1}
    s_mov_b32 s76, 0x3a800000
    v_mov_b32 v4, v3""")
    for sw in ("v_permlane16_swap_b32", "v_permlane32_swap_b32"):
        for d in range(4): t(f"    v_mov_b32 v{CSR+4+d}, v{CSR+d}")
        for d in range(4): t(f"    {sw} v{CSR+4+d}, v{CSR+d}")
        for d in range(4): t(f"    v_add_f32 v{CSR+d}, v{CSR+d}, v{CSR+4+d}")
    t(f"""    v_permlane32_swap_b32 v4, v3
    v_mul_f32 v6, s76, v4                ; mean
    v_mul_f32 v7, s76, v3
    v_fma_f32 v7, -v6, v6, v7
    v_max_f32 v7, 0, v7                  ; variance""")
    rnd(t, 6); rnd(t, 7)
    t("    v_add_f32 v7, 0x3727c5ac, v7"); rnd(t, 7)
    t("    v_sqrt_f32 v7, v7")
    for d in range(4): t(f"    v_cvt_pk_bf16_f32 v{CSR+4+d}, v{CSR+d}, v{CSR+d}")
    rnd(t, 7)
    for d in range(4): t(f"    v_and_b32 v{CSR+4+d}, 0xffff0000, v{CSR+4+d}\n    v_sub_f32 v{CSR+d}, v{CSR+d}, v{CSR+4+d}")
    t("    v_rcp_f32 v9, v7")
    for d in range(4):
        t(f"    v_cvt_pk_bf16_f32 v{CSR+8+2*d}, v{CSR+4+d}, v{CSR+d}")
        t(f"    v_and_b32 v{CSR+9+2*d}, 0xffff, v{BR + (d>>1)}" if d % 2 == 0 else f"    v_lshrrev_b32 v{CSR+9+2*d}, 16, v{BR + (d>>1)}")
    t(f"""    v_mul_f32 v9, v9, v9                 ; r^2
    v_xor_b32 v6, 0x80000000, v6
    v_lshrrev_b32 v4, 16, v6
    v_or_b32 v6, v6, v4                  ; (-m,-m)
    v_lshrrev_b32 v7, 16, v7             ; (den,0)
    v_and_b32 v3, 31, v2
    s_lshl_b32 s77, s34, 7
    s_add_u32 s77, s77, {TST}
    v_lshl_add_u32 v4, v3, 2, s77
    ds_write_b32 v4, v9
    s_lshl_b32 s77, s34, 8
    s_add_u32 s77, s77, {TRM}
    v_lshl_add_u32 v4, v3, 3, s77
    ds_write_b64 v4, v[6:7]
    s_mul_i32 s77, s34, 448
    s_add_u32 s77, s77, {TCB}
    v_lshl_add_u32 v3, v205, 2, s77
    ds_write_b128 v3, {vr(CSR+8,4)}
    ds_write_b128 v3, {vr(CSR+12,4)} offset:16
    v_mov_b32 v10, 0
    v_mov_b32 v11, 0
    v_mov_b32 v12, {TRM + 1024}
    ds_write_b64 v12, v[10:11]
    v_mov_b32 v12, {CNT}
    ds_write_b64 v12, v[10:11]""")
    per = (len(t.lines) - 10 + 3) // 4
    chunks = [t.lines[10 + i*per: 10 + (i+1)*per] for i in range(4)]
    for k in range(KP + 3, NK1 - NS1):
        a(f"    s_waitcnt vmcnt({12 + extra(k)})\n    s_barrier          ; b{k}")
        issueA1(); issueB1(); pf(k)
        if k == KP + 3:
            a(f"{L}_chk:\n    v_max_u32 v3, v{PSR}, v{PSR+1}")
            for i in range(2, 16, 2): a(f"    v_max3_u32 v3, v3, v{PSR+i}, v{PSR+i+1}")
            a(f"""    v_cmp_eq_u32 vcc, -1, v3
    s_cmp_lg_u64 vcc, 0
    s_cbranch_scc1 {L}_retry""")
            for x in t.lines[:10]: a(x)
        else:
            for x in chunks.pop(0): a(x)
    srd(a, 16, 48, 3584 * 2048)
    final_addr()
    a(f"""    s_mul_i32 s58, s55, 7
    s_add_u32 s58, s58, 1
    s_lshr_b32 s58, s58, 1
    s_mul_i32 s66, s54, {1792*2048}
    s_lshl_b32 s36, s55, 8
    s_add_u32 s66, s66, s36
    s_lshl_b32 s31, s58, 17
    s_add_u32 s31, s31, s66          ; G2 B soffset
    s_add_u32 s67, s66, {28 << 17}
    s_mov_b32 s78, {1 if opt.xy else 's31'}
    s_add_u32 s79, s31, {3 << 17}
    s_lshl_b32 s38, s29, 14
    s_add_u32 s38, s38, s35
    s_add_u32 s39, s35, 65536
    s_lshl_b32 s36, s55, 15
    s_lshl_b32 s37, s34, 13
    s_add_u32 s36, s36, s37
    s_add_u32 s42, s36, s68
    s_waitcnt vmcnt({12 + extra(13)})
    s_barrier          ; b13""")
    stamp(a, 13)
    def issueB2(restart=False):
        a(f"    s_add_u32 m0, s38, {B2}\n    s_add_u32 s38, s38, 16384")
        for i in range(4): a(f"    buffer_load_dwordx4 v{LB2+i}, s[16:19], s31 offen offset:{i*1024} lds")
        a(f"""    s_add_u32 s31, s31, {64*2048}
    s_cmp_ge_u32 s38, s39
    s_cselect_b32 s38, s35, s38""")
        if opt.xy: a("    v_readlane_b32 s36, v72, s78\n    s_add_u32 s78, s78, 1\n    s_lshl_b32 s36, s36, 17\n    s_add_u32 s31, s36, s66")
        elif not opt.g2sync: a("    s_cmp_ge_u32 s31, s67\n    s_cselect_b32 s31, s66, s31")
        elif restart: a("    s_cmp_eq_u32 s66, s78\n    s_cselect_b32 s31, s31, s66")
        else: a("    s_cmp_eq_u32 s31, s78\n    s_cselect_b32 s31, s79, s31")
    issueB2()
    for x in chunks.pop(0): a(x)
    stamp(a, 15)
    a(f"    s_waitcnt vmcnt({4 + (1 if 12 in pfk else 0)})\n    s_barrier          ; b14")
    stamp(a, 14)
    assert not chunks
    issueB2()
    a("    s_waitcnt lgkmcnt(0)\n    s_barrier          ; b15")
    issueB2(restart=True); issueB2()
    stamp(a, 1)
    a(f"    s_add_u32 m0, s35, {RES}\n    s_nop 0")
    for i in range(4): a(f"    buffer_load_dwordx4 v{208+i}, s[12:15], s42 offen offset:{i*1024} {'sc1' if mega else ''} lds")
    srd(a, 12, 4, H1_SZ, off=H1_OFF); srd(a, 60, 4, FLG_SZ, off=FLG_OFF)
    a(f"""    s_lshr_b32 s36, s34, 1
    s_lshl_b32 s36, s36, 13
    s_and_b32 s37, s34, 1
    s_lshl_b32 s37, s37, 11              ; + 16*(lw&1)
    s_add_u32 s37, s37, s36
    v_lshl_add_u32 v7, v2, 4, s37
    s_lshl_b32 s36, s29, 14
    v_add_u32 v3, s36, v7
    s_cmp_eq_u32 s29, 1
    s_cselect_b32 s36, 0, 49152
    v_add_u32 v4, s36, v7
    v_lshrrev_b32 v5, 3, v2
    v_xor_b32 v5, v5, v2
    v_bfe_u32 v5, v5, 2, 1               ; c bit2
    v_cmp_eq_u32 vcc, s29, v5
    v_mov_b32 v6, 0x80000000
    s_mul_i32 s36, s27, 7
    s_lshr_b32 s36, s36, 1               ; ks0
    v_cndmask_b32 v5, v6, v4, vcc
    s_mul_i32 s37, s26, 56
    s_add_u32 s36, s36, s37
    s_lshl_b32 s40, s36, 14
    s_add_u32 s41, s40, 16384
    s_add_u32 s42, s40, 32768
    s_mul_i32 s68, s54, 28
    s_add_u32 s68, s68, s37
    s_lshl_b32 s68, s68, 14
    s_add_u32 s69, s68, {28 << 14}
    s_add_u32 s30, s58, 3
    s_lshl_b32 s30, s30, 14
    s_add_u32 s30, s30, s68
    s_mov_b32 s77, s30
    s_sub_u32 s76, s30, {3 << 14}
    {"s_cmp_eq_u32 s68, s76" if opt.g2sync else "s_cmp_ge_u32 s30, s69"}
    {"s_cselect_b32 s30, s30, s68" if opt.g2sync else "s_cselect_b32 s30, s68, s30"}
    s_add_u32 s70, s29, 3
    s_and_b32 s70, s70, 3
    s_lshl_b32 s70, s70, 14
    s_add_u32 s70, s70, s35
    s_lshl_b32 s45, s55, 2
    s_add_u32 s46, s56, {GRP_RDY:#x}
    s_add_u32 s45, s45, s46
    v_and_b32 v8, 7, v2
    v_lshlrev_b32 v8, 2, v8
    v_mov_b32 v10, 1""")
    if opt.xy: a("    v_readlane_b32 s36, v72, 3\n    s_mov_b32 s76, 4\n    s_lshl_b32 s36, s36, 14\n    s_add_u32 s30, s36, s68")
    zst = []
    for half in range(2):
        stamp(a, 16 + 2 * half)
        if half == 1: a(f"    s_waitcnt vmcnt({4 if opt.xy else 8})")
        a(f"    s_barrier                            ; E{half}")
        stamp(a, 17 + 2 * half)
        ho = 4096 * half
        items = [(3, 3, 40, 0, 0), (3, 3, 40, 0, 1), (4, 5, 40, 0, 0), (4, 5, 40, 0, 1), (3, 3, 41, 16384, 0), (3, 3, 41, 16384, 1), (3, 3, 42, 32768, 0), (3, 3, 42, 32768, 1)]
        for i, (vr_, vs_, so, lo, q) in enumerate(items):
            a(f"    ds_read_b128 {vr((80 if opt.xy else 32)+32*half+4*i,4)}, v{vr_} offset:{lo + ho + 1024*q}")
        RB = 80 if opt.xy else 32
        if half == 1 and not opt.xy: a("    s_add_u32 s40, s40, 4096\n    s_add_u32 s41, s41, 4096\n    s_add_u32 s42, s42, 4096")
        if half == 1 and opt.xy: a("    s_add_u32 s40, s40, 4096\n    s_add_u32 s47, s41, 4096\n    s_add_u32 s59, s42, 4096")
        for i, (vr_, vs_, so, lo, q) in enumerate(items):
            if opt.xy and i >= 4:
                if half == 1: so = {41: 47, 42: 59}[so]
                zst.append(f"    buffer_store_dwordx4 {vr(RB+32*half+4*i,4)}, v{vs_}, s[12:15], s{so} offen offset:{1024*q} sc1")
                continue
            a(f"    s_waitcnt lgkmcnt({7-i})\n    buffer_store_dwordx4 {vr(RB+32*half+4*i,4)}, v{vs_}, s[12:15], s{so} offen offset:{1024*q} sc1")
        if opt.xy and half == 1: a("    s_waitcnt lgkmcnt(0)")
    stamp(a, 3)
    a("    s_barrier          ; c0\n    s_barrier          ; c1\n    s_waitcnt vmcnt(0)")
    stamp(a, 4)
    a(f"""    s_mov_b64 exec, 1
    ds_add_rtn_u32 v13, v12, v10
    s_mov_b64 exec, -1
    s_waitcnt lgkmcnt(0)
    v_readfirstlane_b32 s36, v13
    s_cmp_eq_u32 s36, 3
    s_cbranch_scc0 {L}_wait2
    s_mov_b64 exec, 1
    buffer_store_dword v10, v11, s[60:63], s45 offen sc1
    s_mov_b64 exec, 0xff
{L}_poll2:
    buffer_load_dword v9, v8, s[60:63], s46 offen sc1
    s_waitcnt vmcnt(0)
    v_cmp_eq_u32 vcc, 1, v9
    s_cmp_eq_u64 vcc, exec
    s_cbranch_scc1 {L}_seen2
    s_sleep {opt.psleep}
    s_branch {L}_poll2
{L}_seen2:
    ds_write_b32 v12, v10 offset:4
    s_mov_b64 exec, -1""")
    issueB2(); issueB2()
    a(f"    s_branch {L}_go2\n{L}_wait2:")
    issueB2(); issueB2()
    a(f"""{L}_spin2:
    s_sleep 1
    ds_read_b32 v13, v12 offset:4
    s_waitcnt lgkmcnt(0)
    v_readfirstlane_b32 s36, v13
    s_cmp_eq_u32 s36, 1
    s_cbranch_scc0 {L}_spin2
{L}_go2:""")
    stamp(a, 5)
    def issueA2():
        a("    s_mov_b32 m0, s70\n    s_add_u32 s70, s70, 16384")
        for i in range(4): a(f"    buffer_load_dwordx4 v{LA}, s[12:15], s30 offen offset:{i*1024} {opt.a2f} lds")
        a("""    s_add_u32 s30, s30, 16384
    s_cmp_ge_u32 s70, s39
    s_cselect_b32 s70, s35, s70""")
        if opt.xy: a("    v_readlane_b32 s36, v72, s76\n    s_add_u32 s76, s76, 1\n    s_lshl_b32 s36, s36, 14\n    s_add_u32 s30, s36, s68")
        elif not opt.g2sync: a("    s_cmp_ge_u32 s30, s69\n    s_cselect_b32 s30, s68, s30")
        else: a("    s_cmp_eq_u32 s30, s76\n    s_cselect_b32 s30, s77, s30")
    issueA2(); issueA2()
    a("    s_waitcnt vmcnt(4)\n    s_barrier          ; c2")
    issueA2(); issueA2(); issueB2()
    if not opt.xy:
        a("    s_waitcnt vmcnt(12)\n    s_barrier          ; c3")
        issueA2(); issueB2()
        a(f"    s_branch {L}_nochk2\n{L}_chk2:\n{L}_nochk2:")
        k0 = 4
    else:
        for x in zst[:4]: a(x)
        a("    s_waitcnt vmcnt(16)\n    s_barrier          ; c3")
        for x in zst[4:]: a(x)
        issueA2(); issueB2()
        for k, cnt in ((4, 24), (5, 24), (6, 16), (7, 17), (8, 17), (9, 16)):
            a(f"    s_waitcnt vmcnt({cnt})\n    s_barrier          ; c{k}")
            if k == 6: a("    s_mov_b64 exec, 1\n    buffer_store_dword v10, v11, s[60:63], s45 offen offset:32 sc1\n    s_mov_b64 exec, -1")
            if k == 9: a("    buffer_load_dword v9, v8, s[60:63], s46 offen offset:32 sc1")
            issueA2(); issueB2()
        a(f"""    s_waitcnt vmcnt(8)
{L}_chk2:
    v_cmp_eq_u32 vcc, 1, v9
    s_cmp_eq_u64 vcc, -1
    s_cbranch_scc0 {L}_retry2
    s_barrier          ; c10""")
        issueA2(); issueB2()
        k0 = 11
    a(f"    s_mov_b32 s40, {k0}\n{L}_l2:\n    s_waitcnt vmcnt(16)\n    s_barrier")
    issueA2(); issueB2()
    a(f"    s_add_u32 s40, s40, 1\n    s_cmp_lt_u32 s40, {NK2-NS2}\n    s_cbranch_scc1 {L}_l2")
    for k in range(NK2 - NS2, NK2):
        left = max(0, NK2 - 1 - (k + 1))
        if k + 1 < NK2: a(f"    s_waitcnt vmcnt({left*8})")
        a("    s_barrier")
    stamp(a, 6)
    a(f"    s_branch {L}_epi2")
    ACC = 0; F0 = 112; F1 = 156; VA = 200; VB = 204; VBH = 235; SA = 212; ONE = 228
    wad = lambda ni: [213, 214, 215, 217, 218, 219, 221][ni]
    vbh = lambda ni: [235, 236, 237, 238, 239, 211, 232][ni]
    a(f"""{L}_cons:
    {f"s_setprio {opt.cprio}" if opt.cprio else ""}
    v_mov_b32 v240, v2               ; lane
    v_and_b32 v241, 15, v2           ; r
    v_lshrrev_b32 v242, 4, v2        ; kg
    v_lshlrev_b32 v243, 3, v242
    s_and_b32 s34, s33, 1            ; wm
    s_lshr_b32 s35, s33, 1           ; wn
    s_lshl_b32 s36, s34, 13          ; wm*64*128
    v_lshl_add_u32 v244, v241, 7, s36
    v_and_b32 v245, 7, v241          ; r7
    v_bfe_u32 v246, v240, 2, 2       ; rr
    v_lshl_add_u32 v247, v242, 3, v246   ; 8kg+rr
    v_and_b32 v248, 3, v240          ; cc
    v_lshlrev_b32 v248, 3, v248
    v_lshl_add_u32 v249, v247, 8, v248
    v_lshl_add_u32 v247, v247, 9, v248
    v_add_u32 v247, {BR1}, v247
    v_and_b32 v248, 1, v242
    v_lshl_or_b32 v246, v248, 2, v246    ; g
    s_lshl_b32 s37, s34, 2""")
    for mi in range(4):
        a(f"    s_add_u32 s38, s37, {mi}\n    v_xor_b32 v248, s38, v246\n    v_lshl_add_u32 v{VA+mi}, v248, 5, v249")
    a(f"""    s_mul_i32 s37, s35, 7
    s_lshl_b32 s38, s29, 1
    s_add_u32 s37, s37, s38          ; f0 = 2p + 7wn""")
    for ni in range(7):
        a(f"    s_add_u32 s38, s37, {ni}\n    v_xor_b32 v248, s38, v246\n    v_lshl_add_u32 v{VB+ni}, v248, 5, v247")
        a(f"    v_add_u32 v{vbh(ni)}, 0x10000, v{VB+ni}")
    for i in range(0, 112, 2): a(f"    v_mov_b64 {vr(ACC+i,2)}, 0")
    for i in range(4): a(f"    v_mov_b32 v{ONE+i}, 0x3f803f80")
    a(f"""    v_lshrrev_b32 v248, 2, v241
    v_and_b32 v249, 3, v240
    v_cmp_eq_u32 s[70:71], v248, v242
    v_cmp_eq_u32 s[64:65], 1, v249
    v_cmp_eq_u32 s[66:67], 2, v249
    v_cmp_eq_u32 s[68:69], 3, v249
    s_and_b32 s41, s27, 3
    s_add_u32 s41, s41, 1
    s_lshl_b32 s59, s26, 14
    s_xor_b32 s36, s35, 1
    s_lshl_b32 s36, s36, 13
    s_add_u32 s59, s59, s36
    s_lshl_b32 s36, s27, 9
    s_add_u32 s59, s59, s36
    s_lshl_b32 s36, s34, 8
    s_add_u32 s59, s59, s36
    s_mul_i32 s36, s35, 896
    s_add_u32 s36, s36, {TCB}
    v_lshl_add_u32 v233, v241, 3, s36
    s_lshl_b32 s36, s34, 9
    s_add_u32 s36, s36, {TRM}
    v_lshl_add_u32 v247, v241, 3, s36
    v_cmp_eq_u32 vcc, 0, v242
    v_mov_b32 v248, {TRM + 1024}
    v_mov_b32 v249, 128
    v_cndmask_b32 v252, v248, v247, vcc
    v_cndmask_b32 v249, 0, v249, vcc
    v_add_u32 v253, v252, v249
    v_add_u32 v254, v253, v249
    v_add_u32 v255, v254, v249
    v_lshrrev_b32 v246, 1, v242
    v_xor_b32 v246, v246, v245
    v_lshlrev_b32 v246, 4, v246          ; ((kg>>1)^r7)<<4
    v_and_b32 v247, 1, v242
    v_lshl_add_u32 v247, v247, 3, v244   ; m*128 + half*8""")
    for ni in range(7):
        a(f"""    s_add_u32 s38, s37, {ni}
    s_lshr_b32 s39, s38, 2
    s_lshl_b32 s39, s39, 14
    s_and_b32 s38, s38, 3
    s_lshl_b32 s38, s38, 5
    s_or_b32 s{76+ni if ni < 4 else 60+ni-4}, s38, s39""")
    a("    s_waitcnt lgkmcnt(0)")
    srd(a, 72, 4, 256 * 1024, off=PST_OFF)
    if opt.tagx:
        srd(a, 12, 4, 256 * 16384, off=XCH_OFF)
        a(f"""    v_lshlrev_b32 v248, 4, v240
    s_lshl_b32 s46, s2, 14
    s_lshl_b32 s36, s33, 12
    s_add_u32 s46, s46, s36
    s_xor_b32 s45, s46, {PX << 14:#x}""")
        for i in range(4): a(f"    v_mov_b32 v{F1+i}, -1")
        if opt.tagx == 2:
            for q in range(4): a(f"    buffer_store_dwordx4 {vr(F1,4)}, v248, s[12:15], s46 offen offset:{q*1024} sc1")
    stamp(a, 0)
    a("    s_barrier")
    if opt.tagx == 1:
        for q in range(4): a(f"    buffer_store_dwordx4 {vr(F1,4)}, v248, s[12:15], s46 offen offset:{q*1024} sc1")
    stamp(a, 1)
    CT = F0; MTR = F0 + 16
    def g1_tail(mf):
        stamp(a, 13)
        mf = [m for j, m in enumerate(mf) if (j & 3) < 2] + [m for j, m in enumerate(mf) if (j & 3) >= 2]
        fill = [f"    ds_read_b64 {vr(MTR+2*mi,2)}, v{252+mi}" for mi in range(4)]
        fill += [f"    ds_read_b64 {vr(CT+2*ni,2)}, v233 offset:{128*ni}" for ni in range(7)]
        fill += ["\n".join(f"    v_xad_u32 v{wad(ni)}, v246, s{76+ni if ni < 4 else 60+ni-4}, v247" for ni in q) for q in ((0, 1), (2, 3), (4, 5), (6,))]
        fill += [f"""    s_lshl_b32 s36, s55, 8
    s_lshl_b32 s38, s35, 7""", """    s_add_u32 s36, s36, s38
    s_mov_b32 s16, s50""", """    s_mov_b32 s17, s51
    s_mov_b32 s18, 2048""", "    s_mov_b32 s19, 0x00020000"]
        fill += [f"    buffer_load_dwordx2 {vr(232 + 2*ni, 2)}, v243, s[16:19], s36 offen offset:{32*ni}" for ni in range(4)]
        for j, m in enumerate(mf):
            a(m)
            if j < len(fill): a(fill[j])
        def corr(ni, mi):
            c = ACC + 4 * (mi * 7 + ni)
            a(f"    v_mfma_f32_16x16x16_bf16 {vr(c,4)}, {vr(CT+2*ni,2)}, {vr(MTR+2*mi,2)}, {vr(c,4)}")
        def act(ni, mi):
            c = ACC + 4 * (mi * 7 + ni)
            for x in range(4): a(f"    v_max_f32 v{c+x}, 0, v{c+x}")
            a(f"    v_pk_mul_f32 {vr(c,2)}, {vr(c,2)}, {vr(c,2)}\n    v_pk_mul_f32 {vr(c+2,2)}, {vr(c+2,2)}, {vr(c+2,2)}")
            a(f"    v_cvt_pk_bf16_f32 v{c}, v{c}, v{c+1}\n    v_cvt_pk_bf16_f32 v{c+1}, v{c+2}, v{c+3}")
            a(f"    ds_write_b64 v{wad(ni)}, {vr(c,2)} offset:{mi*2048}")
        a("    s_waitcnt lgkmcnt(0)")
        first = [(ni, mi) for ni in range(7) for mi in range(2)]; second = [(ni, mi) for ni in range(7) for mi in range(2, 4)]
        for x in first[:6]: corr(*x)
        a("    s_nop 1")
        rest = first[6:] + second
        for j, x in enumerate(first):
            for y in rest[2*j: 2*j + 2]: corr(*y)
            act(*x)
        stamp(a, 14)
        a("    s_waitcnt lgkmcnt(0)\n    s_barrier                            ; E0")
        stamp(a, 15)
        for x in second: act(*x)
    def rdA1(F, slot, kh):
        return [f"    ds_read_b64_tr_b16 {vr(F + 4*mi + 2*t, 2)}, v{VA+mi} offset:{slot*16384 + kh*8192 + t*1024}" for mi in range(4) for t in range(2)]
    def rdB1(F, slot, kh, ni):
        reg = VB + ni if slot < 2 else vbh(ni)
        return [f"    ds_read_b64_tr_b16 {vr(F + 16 + 4*ni + 2*t, 2)}, v{reg} offset:{(slot&1)*32768 + kh*16384 + t*2048}" for t in range(2)]
    loop_unrolled(a, L + "1", 4, 7, NK1, NS1, ACC, F0, F1, rdA1, rdB1, 40, opt.ga_bar, g1_tail,
                  hookA=lambda u: f"    s_cmp_eq_u32 s40, s41\n    s_cbranch_scc1 {L}_xa{u}\n{L}_xar{u}:",
                  hookB=lambda u: f"    s_cmp_eq_u32 s40, s41\n    s_cbranch_scc1 {L}_xb")
    a("    s_waitcnt lgkmcnt(0)")
    stamp(a, 2)
    a("    s_barrier                            ; E1")
    ACC = 0; G0 = 64; G1_ = 96; VA2 = 128; VB2 = 132; VBI = 232; RSD = 140
    a(f"""    s_lshl_b32 s36, s34, 13
    s_lshl_b32 s37, s54, 12
    s_add_u32 s36, s36, s37
    v_lshl_add_u32 v204, v241, 7, s36
    v_xor_b32 v206, v242, v245
    v_lshl_add_u32 v{VA2}, v206, 4, v204
    v_xor_b32 v{VA2+1}, 64, v{VA2}
    v_xor_b32 v{VA2+2}, 4096, v{VA2}
    v_xor_b32 v{VA2+3}, 4096, v{VA2+1}
    v_bfe_u32 v206, v240, 2, 2           ; rr
    v_lshl_add_u32 v207, v242, 3, v206
    v_lshlrev_b32 v207, 8, v207
    v_and_b32 v208, 3, v240
    v_lshl_add_u32 v207, v208, 3, v207
    v_add_u32 v207, {B2}, v207
    v_and_b32 v208, 1, v242
    v_lshl_or_b32 v206, v208, 2, v206    ; g
    s_lshl_b32 s37, s35, 2""")
    for ni in range(4):
        a(f"    s_add_u32 s38, s37, {ni}\n    v_xor_b32 v208, s38, v206\n    v_lshl_add_u32 v{VB2+ni}, v208, 5, v207")
    for i in range(0, 64, 2): a(f"    v_mov_b64 {vr(ACC+i,2)}, 0")
    stamp(a, 5)
    def g2_tail(mf):
        send = [m for j, m in enumerate(mf) if (j & 3) >= 2]; keep = [m for j, m in enumerate(mf) if (j & 3) < 2]
        for m in send: a(m)
        if opt.tagx:
            a(keep[0]); a("    v_lshlrev_b32 v203, 4, v240\n    s_mov_b32 s36, s46"); a(keep[1]); a("    s_nop 3")
        else:
            srd(a, 12, 4, 256 * 16384, off=XCH_OFF)
            a(keep[0])
            a(f"""    v_lshlrev_b32 v203, 4, v240
    s_lshl_b32 s36, s2, 14
    s_lshl_b32 s37, s33, 12
    s_add_u32 s36, s36, s37
    s_xor_b32 s45, s36, {PX << 14:#x}""")
            a(keep[1])
        for q in range(4):
            for h in range(2):
                c = ACC + 32 + 8 * q + 4 * h
                a(f"    v_cvt_pk_bf16_f32 v{G0 + 4*q + 2*h}, v{c}, v{c+1}\n    v_cvt_pk_bf16_f32 v{G0 + 4*q + 2*h + 1}, v{c+2}, v{c+3}")
            if opt.tagx:
                for d in range(4): a(f"    v_min_u32 v{G0+4*q+d}, -2, v{G0+4*q+d}")
            a(f"    buffer_store_dwordx4 {vr(G0+4*q,4)}, v203, s[12:15], s36 offen offset:{q*1024} sc1")
            for m in keep[2 + 2*q: 4 + 2*q]: a(m)
    def rdA2(F, slot, kh):
        return [f"    ds_read_b128 {vr(F + 4*mi, 4)}, v{VA2 + 2*(mi>>1) + kh} offset:{slot*16384 + (mi&1)*2048}" for mi in range(4)]
    def rdB2(F, slot, kh, ni):
        return [f"    ds_read_b64_tr_b16 {vr(F + 16 + 4*ni + 2*t, 2)}, v{VB2+ni} offset:{slot*16384 + kh*8192 + t*1024}" for t in range(2)]
    loop_unrolled(a, L + "2", 4, 4, NK2, NS2, ACC, G0, G1_, rdA2, rdB2, 40, opt.g2_bar, g2_tail, entry="s29")
    stamp(a, 6)
    srd(a, 60, 4, FLG_SZ, off=FLG_OFF)
    final_addr()
    a(f"""    v_bfe_u32 v206, v240, 2, 2           ; rr
    v_lshl_add_u32 v206, v242, 2, v206
    v_bfe_u32 v207, v206, 1, 2
    s_lshl_b32 s38, s34, 1
    v_xor_b32 v207, s38, v207
    v_lshlrev_b32 v207, 5, v207
    v_lshl_add_u32 v207, v206, 7, v207
    v_and_b32 v208, 3, v240
    v_lshl_add_u32 v207, v208, 3, v207
    s_lshl_b32 s38, s35, 13
    s_add_u32 s38, s38, {RES}
    v_add_u32 v207, s38, v207
    v_xor_b32 v208, 32, v207""")
    for j in range(8): a(f"    ds_read_b64_tr_b16 {vr(RSD+2*j,2)}, v{207 + (j>>2)} offset:{2048*(j&3)}")
    a(f"""    s_lshl_b32 s38, s34, 8
    s_lshl_b32 s39, s54, 7
    s_add_u32 s38, s38, s39
    s_add_u32 s38, s38, {TST}
    v_lshl_add_u32 v206, v241, 2, s38
    ds_read_b32 v192, v206
    ds_read_b32 v194, v206 offset:64""")
    a(f"""    s_lshl_b32 s36, s2, 9
    s_lshl_b32 s37, s33, 7
    s_add_u32 s36, s36, s37
    s_xor_b32 s37, s36, {PX << 9:#x}
    v_mov_b32 v209, 1
    v_mov_b32 v210, 0
    v_lshrrev_b32 v206, 1, v242
    v_xor_b32 v206, v206, v241           ; (kg>>1) ^ r
    s_lshl_b32 s38, s34, 13              ; 32wm*256
    v_lshl_add_u32 v207, v241, 8, s38
    v_and_b32 v208, 1, v242
    v_lshl_add_u32 v207, v208, 3, v207
    s_lshl_b32 s39, s35, 3""")
    for ni in range(4):
        a(f"    s_add_u32 s38, s39, {2*ni}\n    v_xor_b32 v208, s38, v206\n    v_lshl_add_u32 v{VB2+ni}, v208, 4, v207")
    if opt.tagx:
        a("    s_waitcnt vmcnt(4) lgkmcnt(0)")
    else:
        a(f"""    s_mov_b64 exec, 1
    s_waitcnt vmcnt(0)
    buffer_store_dword v209, v210, s[60:63], s36 offen sc1
    buffer_load_dword v211, v210, s[60:63], s37 offen sc1
    s_mov_b64 exec, -1
    s_waitcnt lgkmcnt(0)""")
    for ni in range(4):
        unpack(a, 216 + 4 * ni, VBI + 2 * ni); unpack(a, 218 + 4 * ni, VBI + 2 * ni + 1)
    for j in range(8):
        c = 160 + 4 * j; b = 216 + 4 * (j & 3)
        unpack(a, c, RSD + 2 * j); unpack(a, c + 2, RSD + 2 * j + 1)
        a(f"    v_pk_add_f32 {vr(c,2)}, {vr(c,2)}, {vr(b,2)}\n    v_pk_add_f32 {vr(c+2,2)}, {vr(c+2,2)}, {vr(b+2,2)}")
    if opt.tagx:
        a(f"{L}_poll:")
        for q in range(4): a(f"    buffer_load_dwordx4 {vr(G1_+4*q,4)}, v203, s[12:15], s45 offen offset:{q*1024} sc1")
        a(f"    s_waitcnt vmcnt(0)\n    v_max_u32 v212, v{G1_}, v{G1_+1}")
        for i in range(2, 16, 2): a(f"    v_max3_u32 v212, v212, v{G1_+i}, v{G1_+i+1}")
        a(f"    v_cmp_eq_u32 vcc, -1, v212\n    s_cmp_lg_u64 vcc, 0\n    s_cbranch_scc1 {L}_poll")
        stamp(a, 7)
    else:
        a(f"""    s_mov_b64 exec, 1
{L}_poll:
    s_waitcnt vmcnt(0)
    v_readfirstlane_b32 s38, v211
    s_cmp_eq_u32 s38, 1
    s_cbranch_scc1 {L}_seen
    buffer_load_dword v211, v210, s[60:63], s37 offen sc1
    s_branch {L}_poll
{L}_seen:
    s_mov_b64 exec, -1""")
        stamp(a, 7)
        for q in range(4):
            a(f"    buffer_load_dwordx4 {vr(G1_+4*q,4)}, v203, s[12:15], s45 offen offset:{q*1024} sc1")
    for j in range(8):
        mi, ni = j >> 2, j & 3
        c = ACC + 4 * j; p = G1_ + 2 * j
        if j % 2 == 0 and not opt.tagx: a(f"    s_waitcnt vmcnt({3 - j//2})")
        unpack(a, 212, p); unpack(a, 214, p + 1)
        a(f"""    v_pk_add_f32 {vr(c,2)}, {vr(c,2)}, v[212:213]
    v_pk_add_f32 {vr(c+2,2)}, {vr(c+2,2)}, v[214:215]
    v_pk_fma_f32 {vr(c,2)}, {vr(c,2)}, {vr(192+2*mi,2)}, {vr(160+4*j,2)} op_sel_hi:[1,0,1]
    v_pk_fma_f32 {vr(c+2,2)}, {vr(c+2,2)}, {vr(192+2*mi,2)}, {vr(162+4*j,2)} op_sel_hi:[1,0,1]
    v_cvt_pk_bf16_f32 v{c}, v{c}, v{c+1}
    v_cvt_pk_bf16_f32 v{c+1}, v{c+2}, v{c+3}
    ds_write_b64 v{VB2+ni}, {vr(c,2)} offset:{mi*4096}""")
    a("    s_waitcnt lgkmcnt(0)")
    stamp(a, 8)
    a(f"""{L}_epi2:
    v_mbcnt_lo_u32_b32 v2, -1, 0
    v_mbcnt_hi_u32_b32 v2, -1, v2
    v_lshrrev_b32 v3, 4, v2
    v_and_b32 v5, 15, v2
    v_lshlrev_b32 v6, 11, v3
    v_lshl_add_u32 v6, v5, 4, v6
    s_lshl_b32 s36, s33, 2
    v_add_u32 v3, s36, v3                ; lr (j=0)
    v_xor_b32 v4, v3, v2
    v_and_b32 v4, 15, v4
    v_lshlrev_b32 v4, 4, v4
    v_lshl_add_u32 v3, v3, 8, v4""")
    srd(a, 12, 52, MB4)
    a("""    s_barrier                            ; X3
    ds_read_b128 v[16:19], v3
    ds_read_b128 v[20:23], v3 offset:8192
    s_waitcnt lgkmcnt(1)
    buffer_store_dwordx4 v[16:19], v6, s[12:15], s43 offen
    s_waitcnt lgkmcnt(0)
    buffer_store_dwordx4 v[20:23], v6, s[12:15], s44 offen""")
    stamp(a, 9)
    if opt.stamps: a("    s_waitcnt vmcnt(0)")
    stamp(a, 10)
    stamp_end(a, kidx, 4, 33)
    a(f"{mega['end'] if mega else L + '_end'}:\n    s_endpgm")
    F0 = 112; F1 = 156
    def extra(F, first, tag):
        a(f"    s_cmp_eq_u32 s35, 0\n    s_cbranch_scc0 {L}_x1{tag}")
        for mi in range(4): a(f"    v_mfma_f32_16x16x32_bf16 {vr(SA+4*mi,4)}, {vr(F+4*mi,4)}, {vr(F+4*mi,4)}, {'0' if first else vr(SA+4*mi,4)}")
        a(f"    s_branch {L}_x2{tag}\n{L}_x1{tag}:")
        for mi in range(4): a(f"    v_mfma_f32_16x16x32_bf16 {vr(SA+4*mi,4)}, {vr(ONE,4)}, {vr(F+4*mi,4)}, {'0' if first else vr(SA+4*mi,4)}")
        a(f"{L}_x2{tag}:")
    for u in range(3):
        a(f"{L}_xa{u}:"); extra(F0, True, f"a{u}"); a(f"    s_branch {L}_xar{u}")
    a(f"{L}_xb:"); extra(F1, False, "b")
    a("    s_nop 7")
    for mi in range(4):
        c = SA + 4 * mi
        a(f"""    v_cndmask_b32 v{c}, v{c}, v{c+1}, s[64:65]
    v_cndmask_b32 v{c}, v{c}, v{c+2}, s[66:67]
    v_cndmask_b32 v{c}, v{c}, v{c+3}, s[68:69]
    v_cndmask_b32 v{c}, 0, v{c}, s[70:71]""")
    for sw in ("v_permlane16_swap_b32", "v_permlane32_swap_b32"):
        for mi in range(4): a(f"    v_mov_b32 v{SA+4*mi+1}, v{SA+4*mi}")
        for mi in range(4): a(f"    {sw} v{SA+4*mi+1}, v{SA+4*mi}")
        for mi in range(4): a(f"    v_add_f32 v{SA+4*mi}, v{SA+4*mi}, v{SA+4*mi+1}")
    a(f"""    v_cmp_eq_u32 vcc, 1, v242
    v_cmp_eq_u32 s[64:65], 2, v242
    v_cmp_eq_u32 s[66:67], 3, v242
    v_cndmask_b32 v{SA}, v{SA}, v{SA+4}, vcc
    v_cndmask_b32 v{SA}, v{SA}, v{SA+8}, s[64:65]
    v_cndmask_b32 v{SA}, v{SA}, v{SA+12}, s[66:67]
    v_lshlrev_b32 v{SA+1}, 2, v240
    v_min_u32 v{SA}, -2, v{SA}
    {"s_waitcnt vmcnt(0)" if opt.tagx else ""}
    buffer_store_dword v{SA}, v{SA+1}, s[72:75], s59 offen sc1
    s_cmp_eq_u32 s40, 2
    s_cbranch_scc1 {L}1_s2
    s_cmp_eq_u32 s40, 3
    s_cbranch_scc1 {L}1_s0
    s_branch {L}1_s1
{L}_retry2:
    buffer_load_dword v9, v8, s[60:63], s46 offen offset:32 sc1
    s_waitcnt vmcnt(0)
    s_branch {L}_chk2
{L}_retry:
    s_sleep 2""")
    gather_ps()
    a(f"    s_waitcnt vmcnt(0)\n    s_branch {L}_chk")
    return (name, 256, 512, 163840), (name, 256, 96)

gen.KGEN["ga"] = gen_ga
gen.KGEN["p2"] = gen_p2
gen.KGEN["c2"] = gen_c2
```

```python
import sys
from asmlib import *
import gen, gen2, gen3
from gen import opt, stamp, stamp_begin, stamp_end, vr, wave_sum, MB4, KVR_OFF, FLG_OFF
from gen3 import XT_OFF, HT_OFF, ST1_OFF, CS_OFF, PST_OFF, unpack, rnd

KVF_OFF = 0x0CC0000
XF_OFF = KVF_OFF + 4
SF_OFF = KVF_OFF + 0x8000
GF_OFF = KVF_OFF + 0x10000
HF_OFF = KVF_OFF + 0x18000
opt.ntf = 'nt'
opt.ntf2 = 'nt'
opt.kvprio = 0
opt.xearly = False
opt.tlb3 = 0
opt.tlb2 = 0
opt.flagl = True
opt.kvf = 'sc1'
opt.ldf = 'sc1'
opt.early2 = 1
opt.gate = 4
opt.xsleep = 4
opt.w1th = 4

def gen_pc(a, kidx, mega=False):
    name = KN + "_kernel" if mega else "f_kernel"; L = "F"
    MF = "sc1" if mega else ""
    CS = 4160; RO = 4 * CS; WSZ = 21248
    IS = 1056; KT = 4 * WSZ; VT = KT + 17 * IS; XS = KT + 33 * IS + 96; STG = XS + 16384; WRD = STG + 16 * IS
    assert XS % 16 == 0
    kernel_head(a, name)
    a(f"""    s_load_dwordx4 s[4:7], s[0:1], {ARG['k']}      ; k, v
    s_load_dwordx4 s[56:59], s[0:1], {ARG['dbg']}
    s_load_dwordx2 s[42:43], s[0:1], {ARG['q']}
    s_cmp_ge_u32 s2, 256
    s_cbranch_scc1 {L}_end""")
    stamp_begin(a)
    a(f"""    v_readfirstlane_b32 s33, v0
    s_and_b32 s24, s2, 7
    s_lshr_b32 s25, s2, 3
    v_bfe_u32 v5, v0, 4, 4
    v_and_b32 v6, 15, v0
    v_lshlrev_b32 v5, 11, v5
    v_lshl_add_u32 v5, v6, 4, v5
    s_lshl_b32 s62, s24, 5
    s_add_u32 s62, s62, s25
    v_lshrrev_b32 v4, 3, v0
    v_and_b32 v3, 7, v0              ; cg
    v_lshlrev_b32 v16, 15, v4
    v_lshl_add_u32 v16, v3, 4, v16
    s_lshl_b32 s27, s62, 7
    s_add_u32 s27, s27, {KVF_OFF:#x}
    v_add_u32 v16, s27, v16
    v_mov_b64 v[12:13], 0
    v_mov_b64 v[14:15], 0
    s_lshr_b32 s33, s33, 6           ; wave
    s_and_b32 s34, s33, 3            ; w
    s_lshl_b32 s26, s25, 17
    s_lshl_b32 s27, s24, 8
    s_add_u32 s26, s26, s27
    s_mul_i32 s35, s34, {IS}
    s_mov_b32 s14, 0x400000
    s_mov_b32 s15, 0x00020000
    s_mov_b32 s44, 0x8000
    v_cmp_gt_u32 vcc, {32 if mega else 24}, v0
    s_cmp_ge_u32 s33, 4
    s_cselect_b32 s27, {VT}, s44
    s_cselect_b32 s28, 0, {KT + IS - 0x8000}
    s_add_u32 s27, s27, s28
    s_add_u32 m0, s35, s27
    s_cmp_ge_u32 s33, 4
    s_waitcnt lgkmcnt(0)
    s_cselect_b64 s[12:13], s[6:7], s[4:5]
    s_and_saveexec_b64 s[30:31], vcc
    s_cbranch_execz {L}_nocl
    global_store_dwordx4 v16, v[12:15], s[58:59] sc1
{L}_nocl:
    s_mov_b64 exec, s[30:31]
    s_mov_b32 s27, s26""")
    for j in range(4):
        a(f"    buffer_load_dwordx4 v5, s[12:15], s27 offen {opt.ntf} lds")
        if j < 3: a(f"    s_add_u32 m0, m0, {4*IS}\n    s_add_u32 s27, s27, s44")
    a(f"""    s_load_dwordx4 s[8:11], s[0:1], {ARG['shift']}
    s_load_dwordx2 s[60:61], s[0:1], {ARG['ssmD']}
    v_and_b32 v2, 63, v0
    v_and_b32 v4, 7, v4              ; rg
    s_lshl_b32 s62, s62, 2
    s_add_u32 s63, s62, s34
    s_mul_i32 s64, s34, {WSZ}        ; WB
    s_cmp_ge_u32 s33, 4
    s_cbranch_scc1 {L}_help""")
    so = ["0", "s44", "s45", "s46"]
    def tail_addr(rev, off, ldsb):
        a(f"""    {"v_xor_b32 v13, 7, v4" if rev else "v_mov_b32 v13, v4"}
    v_xor_b32 v13, v13, v3
    v_lshlrev_b32 v13, 4, v13
    v_lshl_add_u32 v13, v3, 9, v13
    v_add_u32 v13, {ldsb}, v13
    v_lshl_add_u32 v14, v2, 4, {ldsb}
    v_lshrrev_b32 v15, 5, v2
    v_xor_b32 v15, v15, v3               ; x0 = (l&7)^(l>>5)
    v_lshlrev_b32 v9, 12, v4             ; (l>>3)*4096
    s_lshl_b32 s47, s24, 19
    s_lshl_b32 s48, s34, 17
    s_add_u32 s47, s47, s48              ; (cb*128+w*32)*4096
    s_lshl_b32 s48, s25, 7""")
        if rev: a(f"    s_sub_u32 s48, {3968 + off}, s48")
        else: a(f"    s_add_u32 s48, s48, {off:#x}")
        a("    s_add_u32 s47, s47, s48")
    def tail_out(R):
        a("    s_waitcnt lgkmcnt(0)")
        for i in range(4): a(f"    ds_read_b128 {vr(R+4*i,4)}, v14 offset:{1024*i}")
        for i in range(4): a(f"    v_xor_b32 v8, {2*i}, v15\n    v_lshl_add_u32 v{R+16+i}, v8, 4, v9")
        for i in range(4):
            a(f"    s_waitcnt lgkmcnt({3-i})\n    buffer_store_dwordx4 {vr(R+4*i,4)}, v{R+16+i}, s[36:39], s47 offen {opt.kvf}\n    s_add_u32 s47, s47, 32768")
    def count_in(word, tag):
        a(f"""    v_mov_b32 v10, {WRD}
    v_mov_b32 v11, 1
    v_mov_b32 v12, 0
    s_mov_b64 exec, 1
    ds_add_rtn_u32 v13, v10, v11 offset:{word}
    s_mov_b64 exec, -1
    s_waitcnt lgkmcnt(0)
    v_readfirstlane_b32 s35, v13
    s_cmp_eq_u32 s35, 3""")
    def spin(word, val, tag, r=13):
        a(f"""{L}_sp{tag}:
    ds_read_b32 v{r}, v10 offset:{word}
    s_waitcnt lgkmcnt(0)
    v_readfirstlane_b32 s35, v{r}
    s_cmp_eq_u32 s35, {val}
    s_cbranch_scc1 {L}_sq{tag}
    s_sleep 1
    s_branch {L}_sp{tag}
{L}_sq{tag}:""")
    def reg_issue():
        a("    buffer_load_dwordx2 v[36:37], v39, s[52:55], 0 offen sc1")
    def reg_check(tag):
        a(f"""    s_getreg_b32 s65, hwreg(HW_REG_XCC_ID)
    s_and_b32 s65, s65, 7
    s_lshl_b32 s65, s65, 3
    s_lshl_b64 s[66:67], 32, s65
{L}_rg{tag}:
    v_sad_u8 v38, v36, 0, 0
    v_sad_u8 v38, v37, 0, v38
    v_cmp_eq_u32 vcc, 32, v38
    s_cmp_eq_u64 vcc, -1
    s_cbranch_scc1 {L}_rk{tag}
    s_sleep 24
    buffer_load_dwordx2 v[36:37], v39, s[52:55], 0 offen sc1
    s_waitcnt vmcnt(0)
    s_branch {L}_rg{tag}
{L}_rk{tag}:
    v_readlane_b32 s68, v36, s24
    v_readlane_b32 s69, v37, s24
    s_cmp_eq_u64 s[68:69], s[66:67]
    s_cselect_b32 s65, 1, 0""")
    def signal_poll(off, tag, poll=True):
        a(f"""{L}_md{tag}:
    ds_read_b32 v13, v10 offset:28
    s_waitcnt lgkmcnt(0)
    v_readfirstlane_b32 s65, v13
    s_cmp_eq_u32 s65, 0
    s_cbranch_scc1 {L}_md{tag}
    s_sub_u32 s65, s65, 1""")
        a(f"""    s_lshl_b32 s27, s62, 5
    s_and_b32 s28, s27, 0xfffff000
    s_add_u32 s27, s27, {off:#x}
    s_add_u32 s28, s28, {off:#x}
    v_and_b32 v14, 31, v2
    v_lshlrev_b32 v14, 7, v14
    s_mov_b64 exec, 1
    s_cmp_eq_u32 s65, {1 if opt.flagl else 7}
    s_cbranch_scc1 {L}_sl{tag}
    {"" if opt.kvf == "sc1" else "buffer_wbl2 sc1"}
    {"" if opt.kvf == "sc1" else "s_waitcnt vmcnt(0)"}
    buffer_store_dword v11, v12, s[36:39], s27 offen sc1
    s_branch {L}_pp{tag}
{L}_sl{tag}:
    buffer_store_dword v11, v12, s[36:39], s27 offen
{L}_pp{tag}:
    s_mov_b64 exec, -1""")
        if not poll:
            a(f"""    s_cmp_lg_u32 s25, 0
    s_cbranch_scc1 {L}_pl{tag}
    s_add_u32 s27, s28, {SF_OFF - XF_OFF:#x}
{L}_sfp:
    buffer_load_dword v15, v14, s[36:39], s27 offen sc1
    s_waitcnt vmcnt(0)
    v_cmp_eq_u32 vcc, 1, v15
    s_cmp_eq_u64 vcc, -1
    s_cbranch_scc0 {L}_sfp
    s_lshl_b32 s27, s24, 12
    s_add_u32 s27, s27, {GF_OFF:#x}
    s_mov_b64 exec, 1
    buffer_store_dword v11, v12, s[36:39], s27 offen sc1
    s_mov_b64 exec, -1""")
        a(f"""{L}_pl{tag}:
    buffer_load_dword v15, v14, s[36:39], s28 offen sc1
    s_waitcnt vmcnt(0)
    v_cmp_eq_u32 vcc, 1, v15
    s_cmp_eq_u64 vcc, -1
    s_cbranch_scc0 {L}_pl{tag}""")
    a(f"""    v_and_b32 v6, 0x1fff, v5
    v_add_u32 v6, s26, v6
    v_subrev_u32 v6, 8192, v6
    s_mov_b32 m0, {KT}
    s_nop 0
    buffer_load_dwordx4 v6, s[12:15], 0 offen {opt.ntf} lds
    s_waitcnt lgkmcnt(0)""")
    KR = 208; VR = 40; WR = 56
    srd(a, 20, 8, 8192)
    a(f"""    s_lshl_b32 s27, s24, 10
    s_lshl_b32 s28, s34, 8
    s_add_u32 s27, s27, s28
    v_lshlrev_b32 v8, 5, v3
    buffer_load_dwordx4 {vr(WR,4)}, v8, s[20:23], s27 offen
    buffer_load_dwordx4 {vr(WR+4,4)}, v8, s[20:23], s27 offen offset:16
    s_lshr_b32 s28, s63, 1
    s_lshl_b32 s28, s28, 2
    s_load_dword s29, s[60:61], s28
    v_mul_u32_u24 v7, {2*IS}, v4
    v_lshl_add_u32 v7, v3, 3, v7
    s_lshl_b32 s27, s34, 6
    s_add_u32 s27, s27, {KT}
    v_add_u32 v7, s27, v7
    v_mov_b32 v10, {WRD}
    v_mov_b32 v16, 0
    v_mov_b32 v17, 0
    v_mov_b32 v18, 0
    v_mov_b32 v19, 0
    ds_write_b128 v10, v[16:19]
    ds_write_b128 v10, v[16:19] offset:16
    ds_write_b128 v10, v[16:19] offset:32
    ds_write_b128 v10, v[16:19] offset:48
    s_add_u32 s49, s64, {RO}""")
    srd(a, 36, 58, 64 << 20); srd(a, 52, 56, 256)
    a("    v_lshlrev_b32 v39, 5, v3")
    tail_addr(True, KVR_OFF, "s49")
    WF = 64; KF = 80; VF = 124; OF = 156; PK = 190
    stamp(a, 0)
    a(f"""    s_waitcnt lgkmcnt(0)
    s_barrier
    s_cmp_lg_u32 s33, 0
    s_cbranch_scc1 {L}_noreg
    s_getreg_b32 s65, hwreg(HW_REG_XCC_ID)
    s_and_b32 s65, s65, 7
    s_lshl_b32 s65, s65, 3
    s_lshl_b64 s[66:67], 1, s65
    v_mov_b32 v16, s66
    v_mov_b32 v17, s67
    v_mov_b32 v12, 0
    s_lshl_b32 s30, s24, 5
    s_mov_b64 exec, 1
    s_waitcnt vmcnt(7)""")
    stamp(a, 9)
    a(f"""    buffer_atomic_add_x2 v[16:17], v12, s[52:55], s30 offen sc1
    v_mov_b32 v11, 1
    ds_write_b32 v10, v11 offset:44
    s_mov_b64 exec, -1
    s_waitcnt vmcnt(1)
    s_branch {L}_kvl
{L}_noreg:
    s_waitcnt vmcnt(0)
{L}_kvl:""")
    a("""    s_nop 0
    v_mov_b32 v11, 1
    s_mov_b64 exec, 1
    ds_add_u32 v10, v11 offset:32
    s_mov_b64 exec, -1""")
    spin(32, 8, "k", 12)
    if opt.kvprio: a(f"    s_setprio {opt.kvprio}")
    stamp(a, 1)
    kro = lambda jj: ((1 + jj) >> 2) * IS + ((1 + jj) & 3) * 256
    order = [("k", 0), ("k", 1), ("k", 2)] + [x for j in range(8) for x in (("k", 3 + j), ("v", j))]
    def rd(x):
        if x[0] == "k": a(f"    ds_read_b64 {vr(KR + 2*x[1], 2)}, v7 offset:{kro(x[1])}")
        else: a(f"    ds_read_b64 {vr(VR + 2*x[1], 2)}, v7 offset:{17*IS + (x[1] >> 2)*IS + (x[1] & 3)*256}")
    for x in order[:13]: rd(x)
    for c in range(4):
        for j in range(4):
            src = WR + 2 * c + (j >> 1); d = WF + (c >> 1) * 8 + j * 2 + (c & 1)
            a(f"    v_lshlrev_b32 v{d}, 16, v{src}" if j % 2 == 0 else f"    v_and_b32 v{d}, 0xffff0000, v{src}")
    def unp2(dst, src):
        for p in range(2): unpack(a, dst + 2 * p, src + p)
    a("    s_waitcnt lgkmcnt(8)")
    for x in order[13:]: rd(x)
    for r in range(3): unp2(KF + 4 * r, KR + 2 * r)
    for j in range(8):
        if j: a(f"    s_waitcnt lgkmcnt({14 - 2*j})")
        unp2(KF + 4 * (3 + j), KR + 6 + 2 * j); unp2(VF + 4 * j, VR + 2 * j)
        for p in range(2):
            o = OF + 4 * j + 2 * p
            k = lambda r: vr(KF + 4 * r + 2 * p, 2)
            w = lambda t: vr(WF + p * 8 + 2 * t, 2)
            a(f"    v_pk_mul_f32 {vr(o,2)}, {k(j)}, {w(3)}")
            a(f"    v_pk_fma_f32 {vr(o,2)}, {k(j+1)}, {w(2)}, {vr(o,2)}")
            a(f"    v_pk_fma_f32 {vr(o,2)}, {k(j+2)}, {w(1)}, {vr(o,2)}")
            a(f"    v_pk_fma_f32 {vr(o,2)}, {k(j+3)}, {w(0)}, {vr(o,2)}")
            a(f"    v_pk_mul_f32 {vr(o,2)}, {vr(o,2)}, {vr(VF + 4*j + 2*p, 2)}")
    for c in range(4):
        for d in range(4):
            a(f"    v_cvt_pk_bf16_f32 v{PK+4*c+d}, v{OF + 4*(7-2*d) + c}, v{OF + 4*(6-2*d) + c}")
        a(f"    ds_write_b128 v13, {vr(PK+4*c,4)} offset:{128*c}")
    tail_out(16)
    a(f"    s_cmp_lg_u32 s33, 0\n    s_cbranch_scc1 {L}_nr1")
    reg_issue()
    a(f"{L}_nr1:")
    stamp(a, 2)
    ACC = 80; F0 = 112; F1 = 176
    a(f"""    v_lshlrev_b32 v40, 4, v2         ; lane*16
    v_add_u32 v4, s64, v40
    v_mov_b32 v60, 0
    v_mov_b32 v61, 0
    v_mov_b32 v62, 0
    v_mov_b32 v63, 0
    s_mov_b64 exec, 0x3fffffff
    ds_write_b128 v4, v[60:63] offset:{RO + 4096}
    s_mov_b64 exec, -1
    v_and_b32 v5, 15, v2             ; b / a
    v_lshrrev_b32 v6, 4, v2          ; kg
    v_add_u32 v7, 1, v5
    v_and_b32 v8, 3, v7
    v_mul_u32_u24 v8, {CS}, v8
    v_and_b32 v7, 28, v7
    v_lshl_add_u32 v8, v7, 1, v8
    v_lshl_add_u32 v8, v6, 4, v8
    v_add_u32 v8, s64, v8            ; vAT
    v_lshlrev_b32 v9, 5, v5
    v_lshl_add_u32 v41, v6, 3, v9    ; 32a + 8g
    v_sub_u32 v9, {RO + 480}, v9
    v_lshl_add_u32 v9, v6, 4, v9
    v_add_u32 v9, s64, v9            ; vBT
    s_lshl_b32 s26, s63, 12
    s_add_u32 m0, s64, {RO}""")
    for i in range(0, 32, 2): a(f"    v_mov_b64 {vr(ACC+i,2)}, 0")
    a(f"    s_waitcnt vmcnt(0)\n    s_cmp_lg_u32 s33, 0\n    s_cbranch_scc1 {L}_nr2")
    reg_check("a")
    a(f"""    s_add_u32 s65, s65, 1
    v_mov_b32 v38, s65
    ds_write_b32 v10, v38 offset:28
{L}_nr2:""")
    stamp(a, 3)
    count_in(0, "a")
    a(f"    s_cbranch_scc0 {L}_w1")
    signal_poll(KVF_OFF, "a")
    a(f"""    ds_write_b32 v10, v11 offset:4
    s_branch {L}_g1
{L}_w1:""")
    spin(4, 1, "a")
    a(f"{L}_g1:")
    stamp(a, 4)
    for i in range(4): a(f"    buffer_load_dwordx4 v40, s[36:39], s26 offen offset:{1024*i} {opt.ldf} lds")
    spin(8, 4, "b")
    a("    s_waitcnt vmcnt(0)")
    stamp(a, 5)
    def reads(F, woff):
        r = []
        for u in range(8):
            r.append(f"    ds_read_b128 {vr(F+32+4*u,4)}, v9 offset:{3584 - 512*u + woff}")
            r.append(f"    ds_read_b64 {vr(F+4*u,2)}, v8 offset:{512*u + woff}")
            r.append(f"    ds_read_b64 {vr(F+4*u+2,2)}, v8 offset:{512*u + 8 + woff}")
        return r
    def mf(F):
        return [f"    v_mfma_f32_16x16x32_bf16 {vr(ACC+4*(u+v),4)}, {vr(F+4*u,4)}, {vr(F+32+4*v,4)}, {vr(ACC+4*(u+v),4)}" for u in range(8) for v in range(8 - u)]
    def weave(m, f):
        i = 0
        for x in m:
            a(x)
            if i < len(f): a(f[i]); i += 1
        assert i == len(f)
    for l in reads(F0, 0): a(l)
    a(f"    s_mov_b32 s35, 0\n{L}_loop:\n    s_waitcnt lgkmcnt(0)")
    weave(mf(F0), reads(F1, 64) + ["    ds_read_b32 v35, v10 offset:20", "    v_add_u32 v8, 128, v8", "    v_add_u32 v9, 128, v9", "    s_add_u32 s35, s35, 1", "    s_cmp_eq_u32 s35, 4"])
    a(f"    s_waitcnt lgkmcnt(0)\n    s_cbranch_scc1 {L}_last")
    weave(mf(F1), reads(F0, 0))
    a(f"""    s_branch {L}_loop
{L}_again:
    s_sleep 1
    ds_read_b32 v35, v10 offset:20
    s_waitcnt lgkmcnt(0)
{L}_last:
    v_readfirstlane_b32 s35, v35
    s_cmp_eq_u32 s35, 4
    s_cbranch_scc0 {L}_again""")
    KV = F0; MT = F0 + 16; RTB = 44; XR_ = 16
    pre = [f"""    v_sub_u32 v32, {RO + 504}, v41
    v_add_u32 v32, s64, v32""",
           f"""    v_lshlrev_b32 v33, 1, v41
    v_add_u32 v33, {STG}, v33""",
           f"""    s_lshl_b32 s35, s34, 12
    s_add_u32 s35, s35, {XS}""", "    v_add_u32 v34, s35, v41"]
    for n in range(8):
        pre += [f"    ds_read_b64 {vr(KV+2*n,2)}, v32 offset:{512*(7-n)}", f"    ds_read_b64 {vr(XR_+2*n,2)}, v34 offset:{512*n}",
                f"    ds_read_b128 {vr(MT+4*n,4)}, v33 offset:{1024*n}", f"    ds_read_b128 {vr(RTB+4*n,4)}, v33 offset:{8192 + 1024*n}"]
    weave(mf(F1), pre)
    a(f"""    s_lshl_b32 s35, s29, 16
    s_and_b32 s27, s29, 0xffff0000
    s_bitcmp1_b32 s63, 0
    s_cselect_b32 s35, s27, s35          ; D as f32
    s_and_b32 s27, s63, 3
    s_bfe_u32 s28, s63, 0x10003
    s_lshl_b32 s28, s28, 2
    s_or_b32 s27, s27, s28               ; g(d)
    v_and_b32 v11, 7, v5
    v_xor_b32 v11, s27, v11
    v_lshlrev_b32 v11, 5, v11
    v_lshrrev_b32 v12, 3, v5
    v_lshl_add_u32 v11, v12, 18, v11
    v_and_b32 v12, 1, v6
    v_lshl_add_u32 v11, v12, 19, v11
    v_lshrrev_b32 v12, 1, v6
    v_lshl_add_u32 v11, v12, 4, v11
    s_lshl_b32 s34, s63, 8
    s_add_u32 s34, s34, {HT_OFF:#x}""")
    stamp(a, 6)
    OUT = 224
    for n in range(8):
        c = ACC + 4 * n; k = KV + 2 * n; x = XR_ + 2 * n; o = OUT + 2 * n
        lg = 4 * (7 - n)
        if lg <= 12: a(f"    s_waitcnt lgkmcnt({lg})")
        elif n == 0: a("    s_waitcnt lgkmcnt(15)")
        a(f"""    v_and_b32 v12, 0xffff0000, v{k+1}
    v_lshlrev_b32 v13, 16, v{k+1}
    v_and_b32 v14, 0xffff0000, v{k}
    v_lshlrev_b32 v15, 16, v{k}
    v_fmac_f32 v{c}, s35, v12
    v_fmac_f32 v{c+1}, s35, v13
    v_fmac_f32 v{c+2}, s35, v14
    v_fmac_f32 v{c+3}, s35, v15
    v_lshlrev_b32 v12, 16, v{x}
    v_and_b32 v13, 0xffff0000, v{x}
    v_lshlrev_b32 v14, 16, v{x+1}
    v_and_b32 v15, 0xffff0000, v{x+1}
    v_pk_mul_f32 {vr(c,2)}, {vr(c,2)}, {vr(RTB+4*n,2)}
    v_pk_mul_f32 {vr(c+2,2)}, {vr(c+2,2)}, {vr(RTB+4*n+2,2)}
    v_pk_add_f32 {vr(MT+4*n,2)}, v[12:13], {vr(MT+4*n,2)} neg_lo:[0,1] neg_hi:[0,1]
    v_pk_add_f32 {vr(MT+4*n+2,2)}, v[14:15], {vr(MT+4*n+2,2)} neg_lo:[0,1] neg_hi:[0,1]
    v_pk_fma_f32 v[12:13], {vr(MT+4*n,2)}, {vr(c,2)}, v[12:13]
    v_pk_fma_f32 v[14:15], {vr(MT+4*n+2,2)}, {vr(c+2,2)}, v[14:15]
    v_cvt_pk_bf16_f32 v{o}, v12, v13
    v_cvt_pk_bf16_f32 v{o+1}, v14, v15""")
        if n & 1:
            a(f"""    s_nop 0
    v_permlane16_swap_b32 v{o-2}, v{o}
    v_permlane16_swap_b32 v{o-1}, v{o+1}
    buffer_store_dwordx4 {vr(o-2,4)}, v11, s[36:39], s34 offen {MF or opt.htf}
    s_add_u32 s34, s34, 0x100000""")
    stamp(a, 7)
    a(f"    s_branch {L}_done")
    FD = 16; TO = 52; XT_ = 80; XR = 96; XF = 112; PKX = 144
    a(f"""{L}_help:
    v_lshlrev_b32 v6, 4, v2          ; lane*16
    s_lshl_b32 s27, s25, 6
    s_lshl_b32 s28, s24, 3
    s_add_u32 s27, s27, s28
    s_lshl_b32 s28, s34, 1
    s_add_u32 s27, s27, s28
    s_lshl_b32 s28, s27, 11""")
    srd(a, 16, 42, MB4); srd(a, 36, 58, 64 << 20)
    for i in range(4): a(f"    buffer_load_dwordx4 {vr(XR+4*i,4)}, v6, s[16:19], s28 offen offset:{1024*i}")
    a("    s_waitcnt lgkmcnt(0)")
    srd(a, 12, 10, MB4)
    a(f"""    v_add_u32 v5, s26, v5            ; x tile
    s_mov_b32 s45, 0x10000
    s_mov_b32 s46, 0x18000
    s_lshl_b32 s26, s63, 12
    s_load_dwordx2 s[10:11], s[0:1], {ARG['w1']}
    s_lshl_b32 s49, s34, 12
    s_add_u32 s49, s49, {XS}
    s_mov_b32 s70, 0x05040100
    s_mov_b32 s71, 0x07060302
    s_mov_b32 s51, 0x3a800000
    s_mov_b32 s50, 0x3727c5ac
    s_lshl_b32 s27, s27, 2
    s_add_u32 s72, s27, {ST1_OFF:#x}
    s_add_u32 s73, s72, 8192
    v_add_u32 v7, s64, v6
    v_mov_b32 v60, 0
    v_mov_b32 v61, 0
    v_mov_b32 v62, 0
    v_mov_b32 v63, 0
    v_mul_u32_u24 v39, {2*IS}, v4
    v_lshl_add_u32 v39, v3, 3, v39
    s_lshl_b32 s27, s34, 6
    s_add_u32 s27, s27, {STG}
    v_add_u32 v39, s27, v39""")
    a("    s_waitcnt lgkmcnt(0)\n    s_barrier")
    stamp(a, 0)
    if opt.tlb3:
        sh = opt.tlb3
        a(f"""    s_load_dwordx2 s[74:75], s[0:1], {ARG['w2']}
    s_load_dwordx2 s[76:77], s[0:1], {ARG['out']}
    s_lshl_b32 s78, s25, 2
    s_add_u32 s78, s78, s34
    s_lshl_b32 s78, s78, {sh}
    s_waitcnt lgkmcnt(0)""")
        for r, n in (("s[10:11]", 1024 * 7168), ("s[74:75]", 3584 * 2048), ("s[76:77]", MB4), ("s[58:59]", 0x2900000)):
            for j in range((n + (128 << sh) - 1) // (128 << sh)):
                a(f"    s_add_u32 s30, s78, {j * (128 << sh):#x}\n    s_min_u32 s30, s30, {n - 4:#x}\n    s_load_dword s79, {r}, s30")
    if opt.tlb2:
        G = opt.tlb2
        a(f"""    s_cmp_lg_u32 s25, 1
    s_cbranch_scc1 {L}_notlb
    s_load_dwordx2 s[74:75], s[0:1], {ARG['w2']}
    s_load_dwordx2 s[76:77], s[0:1], {ARG['out']}
    s_waitcnt lgkmcnt(0)""")
        regs = [("s[10:11]", 1024 * 7168), ("s[74:75]", 3584 * 2048), ("s[76:77]", MB4), ("s[58:59]", 0x2900000)]
        lst = [(r, o) for r, n in regs for o in range(0, n, G)]
        for w in range(4):
            a(f"    s_cmp_lg_u32 s34, {w}\n    s_cbranch_scc1 {L}_tl{w}")
            for j, (r, o) in enumerate(lst[w::4]):
                a(f"    s_mov_b32 s78, {o:#x}\n    s_load_dword s79, {r}, s78")
                if j % 14 == 13: a("    s_waitcnt lgkmcnt(0)")
            a(f"{L}_tl{w}:")
        a(f"{L}_notlb:")
    S = [180, 181]; T = [182, 183]; M = [184, 186]; PS = [188, 190]
    a(f"""    v_mov_b32 v10, {WRD}
    v_mov_b32 v11, 1
    s_waitcnt vmcnt(4)
    s_mov_b64 exec, 1
    ds_add_u32 v10, v11 offset:32
    s_mov_b64 exec, -1""")
    a(f"    s_waitcnt vmcnt({opt.early2 - 1})\n    s_add_u32 m0, s64, 32\n    s_nop 0")
    for i in range(4): a(f"    buffer_load_dwordx4 v6, s[12:15], s26 offen offset:{1024*i} {opt.ntf2} lds")
    def xtile():
        a(f"    s_mul_i32 s35, s34, {IS}")
        for j in range(4): a(f"    s_add_u32 m0, s35, {STG + 4*j*IS}\n    s_nop 0\n    buffer_load_dwordx4 v5, s[16:19], {so[j]} offen lds")
    if opt.xearly: xtile()
    a(f"    s_waitcnt vmcnt({8 if opt.xearly else 4})")
    stamp(a, 1)
    for rho in range(2):
        for i in range(8): unpack(a, XF + 16 * rho + 2 * i, XR + 8 * rho + i)
    src = lambda rho, i: XF + 16 * rho + 2 * i
    for rho in range(2): a(f"    v_pk_add_f32 {vr(PS[rho],2)}, {vr(src(rho,0),2)}, {vr(src(rho,1),2)}")
    for i in range(2, 8):
        for rho in range(2): a(f"    v_pk_add_f32 {vr(PS[rho],2)}, {vr(PS[rho],2)}, {vr(src(rho,i),2)}")
    for rho in range(2): a(f"    v_add_f32 v{S[rho]}, v{PS[rho]}, v{PS[rho]+1}")
    wave_sum(a, S, T)
    for rho in range(2): a(f"    v_mul_f32 v{M[rho]}, s51, v{S[rho]}")
    for i in range(8):
        for rho in range(2):
            a(f"    v_pk_add_f32 {vr(src(rho,i),2)}, {vr(src(rho,i),2)}, {vr(M[rho],2)} op_sel_hi:[1,0] neg_lo:[0,1] neg_hi:[0,1]")
    for rho in range(2): a(f"    v_pk_mul_f32 {vr(PS[rho],2)}, {vr(src(rho,0),2)}, {vr(src(rho,0),2)}")
    for i in range(1, 8):
        for rho in range(2): a(f"    v_pk_fma_f32 {vr(PS[rho],2)}, {vr(src(rho,i),2)}, {vr(src(rho,i),2)}, {vr(PS[rho],2)}")
    for rho in range(2): a(f"    v_add_f32 v{S[rho]}, v{PS[rho]}, v{PS[rho]+1}")
    wave_sum(a, S, T)
    for rho in range(2):
        a(f"    v_mov_b32 v{192+rho}, v{M[rho]}"); rnd(a, 192 + rho)
        a(f"    v_mul_f32 v{194+rho}, s51, v{S[rho]}"); rnd(a, 194 + rho); a(f"    v_add_f32 v{194+rho}, s50, v{194+rho}"); rnd(a, 194 + rho)
    a("    v_sqrt_f32 v194, v194\n    v_sqrt_f32 v195, v195\n    s_nop 0")
    for rho in range(2): rnd(a, 194 + rho)
    a(f"""    v_rcp_f32 v194, v194
    v_rcp_f32 v195, v195
    v_mov_b32 v12, 0
    s_mov_b64 exec, 1
    buffer_store_dwordx2 v[192:193], v12, s[36:39], s72 offen sc1
    buffer_store_dwordx2 v[194:195], v12, s[36:39], s73 offen sc1
    s_mov_b64 exec, -1""")
    if not opt.xearly: xtile()
    stamp(a, 2)
    a(f"    v_mov_b32 v10, {WRD}\n    v_mov_b32 v11, 1\n    s_waitcnt vmcnt({6})")
    for i in range(4):
        a(f"    ds_read_b128 {vr(FD+8*i,4)}, v7 offset:{32 + 1024*i}\n    ds_read_b64 {vr(FD+8*i+4,2)}, v7 offset:{48 + 1024*i}")
    for i in range(4):
        D = FD + 8 * i; t = 64 + 12 * (i & 1) + 132
        a(f"    s_waitcnt lgkmcnt({6 - 2*i})" if i == 0 else f"    s_waitcnt lgkmcnt({min(15, 6 - 2*i + 3*i + (8 if i else 0))})")
        for k in range(4): a(f"    v_alignbit_b32 v{t+k}, v{D+k+1}, v{D+k}, 16")
        a(f"    ds_write_b128 v7, {vr(t,4)} offset:{CS + 32 + 1024*i}")
        for k in range(4): a(f"    v_mov_b32 v{t+4+k}, v{D+k+1}")
        a(f"    ds_write_b128 v7, {vr(t+4,4)} offset:{2*CS + 32 + 1024*i}")
        for k in range(4): a(f"    v_alignbit_b32 v{t+8+k}, v{D+k+2}, v{D+k+1}, 16")
        a(f"    ds_write_b128 v7, {vr(t+8,4)} offset:{3*CS + 32 + 1024*i}")
        if i == 0:
            a(f"""    v_mov_b32 v68, 0
    v_mov_b32 v69, 0
    v_mov_b32 v70, 0
    v_lshlrev_b32 v71, 16, v{D}
    v_mov_b32 v72, 0
    v_mov_b32 v73, 0
    v_mov_b32 v74, 0
    v_mov_b32 v75, v{D}
    v_mov_b32 v76, 0
    v_mov_b32 v77, 0
    v_mov_b32 v78, v71
    v_mov_b32 v79, v{t}
    s_mov_b64 exec, 1
    ds_write_b128 v7, v[60:63]
    ds_write_b128 v7, v[60:63] offset:16
    ds_write_b128 v7, v[60:63] offset:{CS}
    ds_write_b128 v7, v[68:71] offset:{CS+16}
    ds_write_b128 v7, v[60:63] offset:{2*CS}
    ds_write_b128 v7, v[72:75] offset:{2*CS+16}
    ds_write_b128 v7, v[60:63] offset:{3*CS}
    ds_write_b128 v7, v[76:79] offset:{3*CS+16}
    s_mov_b64 exec, -1""")
    a(f"""    s_waitcnt lgkmcnt(0)
    s_mov_b64 exec, 1
    ds_add_u32 v10, v11 offset:8
    s_mov_b64 exec, -1
    s_waitcnt vmcnt({0 if opt.xearly else 4})""")
    count_in(36, "s")
    a(f"    s_cbranch_scc0 {L}_nsf")
    spin(44, 1, "c")
    a(f"""    s_lshl_b32 s27, s62, 5
    s_add_u32 s27, s27, {SF_OFF:#x}
    s_mov_b64 exec, 1
    buffer_store_dword v11, v12, s[36:39], s27 offen sc1
    s_mov_b64 exec, -1
    s_waitcnt vmcnt(1)
    s_branch {L}_nsg
{L}_nsf:
    s_waitcnt vmcnt(0)
{L}_nsg:
    s_mov_b64 exec, 1
    ds_add_u32 v10, v11 offset:40
    s_mov_b64 exec, -1""")
    stamp(a, 7)
    spin(40, 4, "t", 12)
    for j in range(8): a(f"    ds_read_b64 {vr(XT_+2*j,2)}, v39 offset:{(j >> 2)*IS + (j & 3)*256}")
    tail_addr(False, XT_OFF, "s49")
    a("    s_waitcnt lgkmcnt(0)")
    for c in range(4):
        for d in range(4):
            a(f"    v_perm_b32 v{PKX+4*c+d}, v{XT_ + 2*(2*d+1) + (c>>1)}, v{XT_ + 2*(2*d) + (c>>1)}, s{70 + (c&1)}")
        a(f"    ds_write_b128 v13, {vr(PKX+4*c,4)} offset:{128*c}")
    tail_out(160)
    stamp(a, 9)
    a("    s_waitcnt vmcnt(0)")
    stamp(a, 10)
    count_in(12, "x")
    a(f"    s_cbranch_scc0 {L}_w2")
    signal_poll(XF_OFF, "x", poll=False)
    if opt.stamps: a("    s_memtime s[74:75]\n    s_waitcnt lgkmcnt(0)\n    s_sub_u32 s74, s74, s80\n    v_mov_b32 v20, s74\n    ds_write_b32 v10, v20 offset:60")
    a(f"""    ds_write_b32 v10, v11 offset:16
    s_mov_b32 m0, s49
    s_add_u32 s26, s26, {XT_OFF:#x}""")
    for i in range(4): a(f"    buffer_load_dwordx4 v6, s[36:39], s26 offen offset:{1024*i} {opt.ldf} lds")
    a(f"""    v_lshlrev_b32 v14, 12, v3
    s_mov_b32 s28, {GF_OFF:#x}
{L}_p3:
    buffer_load_dword v15, v14, s[36:39], s28 offen sc1
    s_waitcnt vmcnt(0)
    v_cmp_eq_u32 vcc, 1, v15
    s_cmp_eq_u64 vcc, -1
    s_cbranch_scc1 {L}_p3e
    s_sleep {opt.xsleep}
    s_branch {L}_p3
{L}_p3e:
    ds_write_b32 v10, v11 offset:24
    s_branch {L}_g2
{L}_w2:""")
    spin(16, 1, "x")
    a(f"    s_mov_b32 m0, s49\n    s_add_u32 s26, s26, {XT_OFF:#x}")
    for i in range(4): a(f"    buffer_load_dwordx4 v6, s[36:39], s26 offen offset:{1024*i} {opt.ldf} lds")
    spin(24, 1, "y")
    a(f"{L}_g2:")
    stamp(a, 4)
    if opt.stamps: a("    ds_read_b32 v20, v10 offset:60\n    s_waitcnt lgkmcnt(0)\n    v_readfirstlane_b32 s74, v20\n    s_nop 1\n    v_writelane_b32 v250, s74, 11")
    a(f"""    s_lshl_b32 s30, s34, 12
    s_add_u32 m0, s30, {STG}
    s_add_u32 s30, s30, {ST1_OFF:#x}""")
    for i in range(4): a(f"    buffer_load_dwordx4 v6, s[36:39], s30 offen offset:{1024*i} sc1 lds")
    a(f"""    s_lshl_b32 s47, s2, 10
    s_lshl_b32 s48, s34, 8
    s_add_u32 s47, s47, s48
    s_add_u32 s47, s47, {PST_OFF:#x}
    v_lshlrev_b32 v14, 2, v2
    v_mov_b32 v15, -1
    buffer_store_dword v15, v14, s[36:39], s47 offen {MF}
    s_mul_i32 s47, s2, 560
    s_mul_i32 s48, s34, 140
    s_add_u32 s47, s47, s48
    s_add_u32 s47, s47, {FLG_OFF:#x}
    v_min_u32 v14, 34, v2
    v_lshlrev_b32 v14, 2, v14
    buffer_store_dword v12, v14, s[36:39], s47 offen {MF}
    s_and_b32 s25, s2, 15            ; k slice
    s_lshr_b32 s26, s2, 4
    s_mul_i32 s27, s25, {64*7168}
    s_lshl_b32 s28, s26, 9
    s_lshl_b32 s29, s34, 7
    s_add_u32 s28, s28, s29
    s_add_u32 s27, s27, s28
    v_mul_u32_u24 v5, 7168, v4
    v_lshl_add_u32 v5, v3, 4, v5
    s_cmp_ge_u32 s2, 224
    s_cselect_b32 s27, 0x80000000, s27
    s_waitcnt lgkmcnt(0)""")
    srd(a, 12, 10, 1024 * 7168)
    W = 16; WF = 48
    ld = lambda i: a(f"    buffer_load_dwordx4 {vr(W+4*i,4)}, v5, s[12:15], s27 offen\n    s_add_u32 s27, s27, {8*7168}")
    TH = opt.w1th
    for i in range(TH): ld(i)
    a(f"""    s_waitcnt vmcnt({2 + TH})
    s_mov_b64 exec, 1
    ds_add_u32 v10, v11 offset:20
    s_mov_b64 exec, -1""")
    stamp(a, 5)
    a(f"    s_cmp_ge_u32 s2, 224\n    s_cbranch_scc1 {L}_code")
    for i in range(8):
        a(f"    s_waitcnt vmcnt({min(TH, 8 - i) - 1})")
        if i + TH < 8: ld(i + TH)
        if i == 0:
            for d in range(4): unpack(a, WF + 2 * d, W + d)
        else:
            for d in range(4):
                unpack(a, WF + 8 + 2 * (d & 1), W + 4 * i + d)
                a(f"    v_pk_add_f32 {vr(WF+2*d,2)}, {vr(WF+2*d,2)}, {vr(WF + 8 + 2*(d&1),2)}")
    if opt.c_pf2:
        a(f"    s_load_dwordx2 s[42:43], s[0:1], {ARG['w2']}\n    s_mul_i32 s30, s2, 32768\n    s_lshl_b32 s31, s34, 13\n    s_add_u32 s30, s30, s31\n    v_lshlrev_b32 v7, {8 if opt.c_pf2 == 2 else 7}, v2\n    s_waitcnt lgkmcnt(0)")
        srd(a, 20, 42, 3584 * 2048)
        if opt.c_pf2 == 2: a("    s_mov_b32 exec_hi, 0")
        a("    buffer_load_dword v8, v7, s[20:23], s30 offen\n    s_mov_b64 exec, -1")
    for d in range(8): a(f"    v_add_f32_dpp v{WF+d}, v{WF+d}, v{WF+d} row_ror:8 row_mask:0xf bank_mask:0xf")
    for sw in ("v_permlane16_swap_b32", "v_permlane32_swap_b32"):
        for d in range(8): a(f"    v_mov_b32 v{WF+8+d}, v{WF+d}")
        for d in range(8): a(f"    {sw} v{WF+8+d}, v{WF+d}")
        for d in range(8): a(f"    v_add_f32 v{WF+d}, v{WF+d}, v{WF+8+d}")
    a(f"""    s_mul_i32 s27, s25, {3584*4}
    s_lshl_b32 s28, s28, 1
    s_add_u32 s27, s27, s28
    s_add_u32 s27, s27, {CS_OFF:#x}
    v_lshlrev_b32 v4, 5, v3
    s_mov_b64 exec, 0xff
    buffer_store_dwordx4 {vr(WF,4)}, v4, s[36:39], s27 offen {MF}
    buffer_store_dwordx4 {vr(WF+4,4)}, v4, s[36:39], s27 offen offset:16 {MF}
    s_mov_b64 exec, -1
    s_branch {L}_done
{L}_code:""")
    if opt.codepf:
        a(f"""    s_cmp_ge_u32 s2, 232
    s_cbranch_scc1 {L}_done
    s_getpc_b64 s[66:67]
{L}_pc:
    v_and_b32 v13, 255, v0
    v_lshlrev_b32 v13, 7, v13
    v_min_u32 v13, TEXT_END - {L}_pc - 4, v13
    global_load_dword v62, v13, s[66:67]""")
    a(f"{L}_done:")
    if mega:
        a(f"""    s_waitcnt vmcnt(0)
    v_mov_b32 v10, {WRD}
    v_mov_b32 v11, 1
    v_mov_b32 v12, 0
    s_mov_b64 exec, 1
    ds_add_rtn_u32 v13, v10, v11 offset:48
    s_waitcnt lgkmcnt(0)
    v_readfirstlane_b32 s35, v13
    s_cmp_eq_u32 s35, 7
    s_cbranch_scc0 {L}_nohf
    s_lshl_b32 s27, s62, 5
    s_add_u32 s27, s27, {HF_OFF:#x}
    buffer_store_dword v11, v12, s[36:39], s27 offen sc1
{L}_nohf:
    s_mov_b64 exec, -1""")
        stamp(a, 8)
        stamp_end(a, kidx, 58, 33)
        gen3.gen_ga(a, kidx + 1, mega=dict(WRD=WRD, HF=HF_OFF, end=f"{L}_end"))
        return (name, 256, 512, 163840), (name, 256, 96)
    if opt.stamps: a("    s_waitcnt vmcnt(0)")
    stamp(a, 8)
    stamp_end(a, kidx, 58, 33)
    a(f"{L}_end:\n    s_endpgm")
    return (name, 256, 512, WRD + 64), (name, 256 if opt.stamps else 240, 96)

opt.htf = ""
gen.KGEN["pc"] = gen_pc
gen.KGEN["mega"] = lambda a, k: gen_pc(a, k, mega=True)
```

```python
import sys
from asmlib import *
import gen, gen2
from gen import stamp_loop, opt, stamp, stamp_begin, stamp_end, vr, gemm_consumer_loop, wave_sum, MB4, KVR_OFF, H1_OFF, H1_SZ, XCH_OFF, FLG_OFF
from gen2 import GRP_RDY, FLG_SZ

opt.pfk = {12: (0, 56)}
opt.mq = True
opt.dly = None
opt.kp = 6
opt.outf = ''
opt.mpf = False
opt.mb2 = True
opt.msleep = 2
opt.cprio = 0
opt.lprio = 0
opt.xy = False
opt.map84 = True
opt.tagx = False
opt.g2sync = True
opt.a2f = 'sc1'
opt.tlbpf = False
opt.lagthr = 7
opt.norot = False
opt.ga_bar = 27
XT_OFF = 0x0400000
HT_OFF = 0x0800000
ST1_OFF = 0x0C00000
CS_OFF = 0x0C10000
PST_OFF = 0x0C80000

def unpack(a, dst, src): a(f"    v_lshlrev_b32 v{dst}, 16, v{src}\n    v_and_b32 v{dst+1}, 0xffff0000, v{src}")
def rnd(a, r): a(f"    v_cvt_pk_bf16_f32 v{r}, v{r}, v{r}\n    v_and_b32 v{r}, 0xffff0000, v{r}")

def gen_p2(a, kidx):
    name = "p_kernel"; L = "P"
    IS = 1056; VT = 17 * IS; XTL = 33 * IS; OST = 51840
    kernel_head(a, name)
    a(f"""    s_cmp_ge_u32 s2, 256
    s_cbranch_scc1 {L}_end
    s_load_dwordx4 s[4:7], s[0:1], {ARG['k']}      ; k, v
    s_load_dwordx4 s[8:11], s[0:1], {ARG['shift']}
    s_load_dwordx2 s[40:41], s[0:1], {ARG['ws']}
    s_load_dwordx2 s[42:43], s[0:1], {ARG['q']}""")
    stamp_begin(a)
    a(f"""    v_lshrrev_b32 v1, 6, v0
    v_and_b32 v2, 63, v0
    s_and_b32 s24, s2, 7             ; cb
    v_readfirstlane_b32 s33, v1
    s_lshr_b32 s25, s2, 3            ; rb
    v_and_b32 v3, 7, v2              ; cg
    v_lshrrev_b32 v4, 3, v2          ; rg
    s_and_b32 s34, s33, 3            ; w
    s_lshl_b32 s26, s25, 17
    s_lshl_b32 s27, s24, 8
    s_add_u32 s26, s26, s27
    v_lshrrev_b32 v5, 4, v2
    v_lshlrev_b32 v5, 11, v5
    v_and_b32 v6, 15, v2
    v_lshl_add_u32 v5, v6, 4, v5
    v_add_u32 v5, s26, v5
    v_subrev_u32 v6, 8192, v5
    s_lshl_b32 s27, s34, 15
    v_add_u32 v5, s27, v5
    s_movk_i32 s44, 8192
    s_movk_i32 s45, 16384
    s_movk_i32 s46, 24576
    s_mul_i32 s35, s34, {4*IS}
    v_mul_u32_u24 v7, {2*IS}, v4
    v_lshl_add_u32 v7, v3, 3, v7
    s_lshl_b32 s27, s34, 6
    v_add_u32 v7, s27, v7
    s_cmp_ge_u32 s33, 4
    s_cbranch_scc1 {L}_x""")
    so = ["0", "s44", "s45", "s46"]
    def tail_addr(rev, ldsbase, off):
        a(f"""    {"v_xor_b32 v13, 7, v4" if rev else "v_mov_b32 v13, v4"}
    v_xor_b32 v13, v13, v3
    v_lshlrev_b32 v13, 4, v13
    v_lshl_add_u32 v13, v3, 9, v13
    s_lshl_b32 s47, s33, 12
    s_add_u32 s47, s47, {OST}
    v_add_u32 v13, s47, v13
    v_lshl_add_u32 v14, v2, 4, s47
    v_lshrrev_b32 v15, 5, v2
    v_xor_b32 v15, v15, v3               ; x0 = (l&7)^(l>>5)
    v_lshlrev_b32 v9, 12, v4             ; (l>>3)*4096
    s_lshl_b32 s47, s24, 19
    s_lshl_b32 s48, s34, 17
    s_add_u32 s47, s47, s48              ; (cb*128+w*32)*4096
    s_lshl_b32 s48, s25, 7""")
        if rev: a(f"    s_sub_u32 s48, {3968 + off}, s48")
        else: a(f"    s_add_u32 s48, s48, {off:#x}")
        a("    s_add_u32 s47, s47, s48")
    def tail_out():
        a("    s_waitcnt lgkmcnt(0)")
        for i in range(4): a(f"    ds_read_b128 {vr(16+4*i,4)}, v14 offset:{1024*i}")
        for i in range(4): a(f"    v_xor_b32 v8, {2*i}, v15\n    v_lshl_add_u32 v{32+i}, v8, 4, v9")
        for i in range(4):
            a(f"    s_waitcnt lgkmcnt({3-i})\n    buffer_store_dwordx4 {vr(16+4*i,4)}, v{32+i}, s[36:39], s47 offen\n    s_add_u32 s47, s47, 32768")
    a(f"""    s_lshl_b32 s27, s24, 10
    s_lshl_b32 s28, s34, 8
    s_add_u32 s27, s27, s28
    v_lshlrev_b32 v8, 5, v3
    s_add_u32 m0, s35, {IS}
    s_waitcnt lgkmcnt(0)""")
    srd(a, 12, 4, MB4); srd(a, 16, 6, MB4); srd(a, 20, 8, 8192)
    KR = 16; VR = 38; WR = 54
    for j in range(4):
        a(f"    buffer_load_dwordx4 v5, s[12:15], {so[j]} offen nt lds\n    s_add_u32 m0, s35, {VT + j*IS}")
        a(f"    s_nop 0\n    buffer_load_dwordx4 v5, s[16:19], {so[j]} offen nt lds\n    s_add_u32 m0, s35, {(j+2)*IS}\n    s_nop 0" if j < 3 else f"    s_nop 0\n    buffer_load_dwordx4 v5, s[16:19], {so[j]} offen nt lds\n    s_mov_b32 m0, 0\n    s_nop 0")
    a("    buffer_load_dwordx4 v6, s[12:15], 0 offen nt lds")
    a(f"    buffer_load_dwordx4 {vr(WR,4)}, v8, s[20:23], s27 offen\n    buffer_load_dwordx4 {vr(WR+4,4)}, v8, s[20:23], s27 offen offset:16")
    srd(a, 28, 10, MB4); srd(a, 36, 40, 64 << 20)
    a(f"""    s_lshl_b32 s47, s2, 14
    v_lshlrev_b32 v9, 6, v0
    buffer_load_dword v10, v9, s[28:31], s47 offen
    s_mul_i32 s47, s2, 560
    s_add_u32 s47, s47, {FLG_OFF:#x}
    v_min_u32 v11, 139, v0
    v_lshlrev_b32 v11, 2, v11
    v_mov_b32 v12, 0
    buffer_store_dword v12, v11, s[36:39], s47 offen""")
    if opt.codepf:
        a(f"""    s_cmp_ge_u32 s2, 8
    s_cbranch_scc1 {L}_nocode
    s_getpc_b64 s[50:51]
{L}_pc:
    v_lshlrev_b32 v13, 7, v0
    v_min_u32 v13, TEXT_END - {L}_pc - 4, v13
    global_load_dword v62, v13, s[50:51]
{L}_nocode:""")
    tail_addr(True, 0, KVR_OFF)
    WF = 64; KF = 80; VF = 124; OF = 156; PK = 190
    stamp(a, 0)
    a("    s_waitcnt vmcnt(2)\n    s_barrier")
    stamp(a, 4)
    kro = lambda jj: ((1 + jj) >> 2) * IS + ((1 + jj) & 3) * 256
    order = [("k", 0), ("k", 1), ("k", 2)] + [x for j in range(8) for x in (("k", 3 + j), ("v", j))]
    def rd(x):
        if x[0] == "k": a(f"    ds_read_b64 {vr(KR + 2*x[1], 2)}, v7 offset:{kro(x[1])}")
        else: a(f"    ds_read_b64 {vr(VR + 2*x[1], 2)}, v7 offset:{VT + (x[1] >> 2)*IS + (x[1] & 3)*256}")
    for x in order[:13]: rd(x)
    for c in range(4):
        for j in range(4):
            src = WR + 2 * c + (j >> 1); d = WF + (c >> 1) * 8 + j * 2 + (c & 1)
            a(f"    v_lshlrev_b32 v{d}, 16, v{src}" if j % 2 == 0 else f"    v_and_b32 v{d}, 0xffff0000, v{src}")
    def unp2(dst, src):
        for p in range(2): unpack(a, dst + 2 * p, src + p)
    a("    s_waitcnt lgkmcnt(8)")
    for x in order[13:]: rd(x)
    for r in range(3): unp2(KF + 4 * r, KR + 2 * r)
    for j in range(8):
        if j: a(f"    s_waitcnt lgkmcnt({14 - 2*j})")
        unp2(KF + 4 * (3 + j), KR + 6 + 2 * j); unp2(VF + 4 * j, VR + 2 * j)
        for p in range(2):
            o = OF + 4 * j + 2 * p
            k = lambda r: vr(KF + 4 * r + 2 * p, 2)
            w = lambda t: vr(WF + p * 8 + 2 * t, 2)
            a(f"    v_pk_mul_f32 {vr(o,2)}, {k(j)}, {w(3)}")
            a(f"    v_pk_fma_f32 {vr(o,2)}, {k(j+1)}, {w(2)}, {vr(o,2)}")
            a(f"    v_pk_fma_f32 {vr(o,2)}, {k(j+2)}, {w(1)}, {vr(o,2)}")
            a(f"    v_pk_fma_f32 {vr(o,2)}, {k(j+3)}, {w(0)}, {vr(o,2)}")
            a(f"    v_pk_mul_f32 {vr(o,2)}, {vr(o,2)}, {vr(VF + 4*j + 2*p, 2)}")
    stamp(a, 1)
    for c in range(4):
        for d in range(4):
            a(f"    v_cvt_pk_bf16_f32 v{PK+4*c+d}, v{OF + 4*(7-2*d) + c}, v{OF + 4*(6-2*d) + c}")
        a(f"    ds_write_b128 v13, {vr(PK+4*c,4)} offset:{128*c}")
    a(f"    s_branch {L}_out")
    XT_ = 40; XR = 56; XF = 80; XC = 112; PKX = 144
    a(f"""{L}_x:
    s_lshl_b32 s27, s25, 6
    s_lshl_b32 s28, s24, 3
    s_add_u32 s27, s27, s28
    s_lshl_b32 s28, s34, 1
    s_add_u32 s27, s27, s28
    s_lshl_b32 s28, s27, 11
    v_lshlrev_b32 v6, 4, v2
    s_waitcnt lgkmcnt(0)""")
    srd(a, 12, 42, MB4)
    for j in range(4): a(f"    s_add_u32 m0, s35, {XTL + j*IS}\n    s_nop 0\n    buffer_load_dwordx4 v5, s[12:15], {so[j]} offen lds")
    for i in range(4): a(f"    buffer_load_dwordx4 {vr(XR+4*i,4)}, v6, s[12:15], s28 offen offset:{1024*i}")
    srd(a, 36, 40, 64 << 20)
    a(f"""    s_lshl_b32 s47, s2, 10
    s_lshl_b32 s48, s34, 8
    s_add_u32 s47, s47, s48
    s_add_u32 s47, s47, {PST_OFF:#x}
    v_lshlrev_b32 v11, 2, v2
    v_mov_b32 v12, -1
    buffer_store_dword v12, v11, s[36:39], s47 offen
    s_mov_b32 s49, 0x05040100
    s_mov_b32 s50, 0x07060302
    s_mov_b32 s51, 0x3a800000
    s_mov_b32 s52, 0x3727c5ac
    s_lshl_b32 s27, s27, 2
    s_add_u32 s27, s27, {ST1_OFF:#x}
    s_add_u32 s28, s27, 8192""")
    tail_addr(False, 0, XT_OFF)
    stamp(a, 0)
    a("    s_waitcnt vmcnt(5)\n    s_barrier")
    stamp(a, 4)
    for j in range(8): a(f"    ds_read_b64 {vr(XT_+2*j,2)}, v7 offset:{XTL + (j >> 2)*IS + (j & 3)*256}")
    a("    s_waitcnt lgkmcnt(0)")
    for c in range(4):
        for d in range(4):
            a(f"    v_perm_b32 v{PKX+4*c+d}, v{XT_ + 2*(2*d+1) + (c>>1)}, v{XT_ + 2*(2*d) + (c>>1)}, s{49 + (c&1)}")
        a(f"    ds_write_b128 v13, {vr(PKX+4*c,4)} offset:{128*c}")
    tail_out()
    S = [8, 9]; T = [10, 11]; M = [12, 14]; PS = [72, 74]
    a("    s_waitcnt vmcnt(5)")
    for rho in range(2):
        for i in range(8): unpack(a, XF + 16 * rho + 2 * i, XR + 8 * rho + i)
    src = lambda rho, i: XF + 16 * rho + 2 * i
    for rho in range(2): a(f"    v_pk_add_f32 {vr(PS[rho],2)}, {vr(src(rho,0),2)}, {vr(src(rho,1),2)}")
    for i in range(2, 8):
        for rho in range(2): a(f"    v_pk_add_f32 {vr(PS[rho],2)}, {vr(PS[rho],2)}, {vr(src(rho,i),2)}")
    for rho in range(2): a(f"    v_add_f32 v{S[rho]}, v{PS[rho]}, v{PS[rho]+1}")
    wave_sum(a, S, T)
    for rho in range(2): a(f"    v_mul_f32 v{M[rho]}, s51, v{S[rho]}")
    for i in range(8):
        for rho in range(2):
            a(f"    v_pk_add_f32 {vr(src(rho,i),2)}, {vr(src(rho,i),2)}, {vr(M[rho],2)} op_sel_hi:[1,0] neg_lo:[0,1] neg_hi:[0,1]")
    for rho in range(2): a(f"    v_pk_mul_f32 {vr(PS[rho],2)}, {vr(src(rho,0),2)}, {vr(src(rho,0),2)}")
    for i in range(1, 8):
        for rho in range(2): a(f"    v_pk_fma_f32 {vr(PS[rho],2)}, {vr(src(rho,i),2)}, {vr(src(rho,i),2)}, {vr(PS[rho],2)}")
    for rho in range(2): a(f"    v_add_f32 v{S[rho]}, v{PS[rho]}, v{PS[rho]+1}")
    wave_sum(a, S, T)
    for rho in range(2):
        a(f"    v_mov_b32 v{76+rho}, v{M[rho]}"); rnd(a, 76 + rho)
        a(f"    v_mul_f32 v{78+rho}, s51, v{S[rho]}"); rnd(a, 78 + rho); a(f"    v_add_f32 v{78+rho}, s52, v{78+rho}"); rnd(a, 78 + rho)
    a("    v_sqrt_f32 v78, v78\n    v_sqrt_f32 v79, v79\n    s_nop 0")
    for rho in range(2): rnd(a, 78 + rho)
    a("""    v_rcp_f32 v78, v78
    v_rcp_f32 v79, v79
    v_mov_b32 v6, 0
    s_mov_b64 exec, 1
    buffer_store_dwordx2 v[76:77], v6, s[36:39], s27 offen
    buffer_store_dwordx2 v[78:79], v6, s[36:39], s28 offen
    s_mov_b64 exec, -1""")
    stamp(a, 1)
    a(f"    s_branch {L}_done\n{L}_out:")
    tail_out()
    a(f"{L}_done:")
    stamp(a, 2)
    if opt.stamps: a("    s_waitcnt vmcnt(0)")
    stamp(a, 3)
    stamp_end(a, kidx, 40, 33)
    a(f"{L}_end:\n    s_endpgm")
    return (name, 256, 512, OST + 32768), (name, 256 if opt.stamps else 208, 96)

def gen_c2(a, kidx):
    name = "c_kernel"; L = "C"
    CS = 4160; RO = 4 * CS; WSZ = 21248; STG = 4 * WSZ
    kernel_head(a, name)
    a(f"""    s_cmp_ge_u32 s2, 256
    s_cbranch_scc1 {L}_end
    s_load_dwordx4 s[4:7], s[0:1], {ARG['ssmk']}
    s_load_dwordx2 s[40:41], s[0:1], {ARG['ws']}
    s_load_dwordx2 s[10:11], s[0:1], {ARG['w1']}
    s_load_dwordx2 s[42:43], s[0:1], {ARG['w2']}""")
    stamp_begin(a)
    a(f"""    v_lshrrev_b32 v1, 6, v0
    v_and_b32 v2, 63, v0
    s_and_b32 s24, s2, 7
    v_readfirstlane_b32 s33, v1
    s_lshl_b32 s24, s24, 5
    s_lshr_b32 s25, s2, 3
    s_add_u32 s24, s24, s25          ; cg
    s_cmp_ge_u32 s33, 4
    s_cbranch_scc1 {L}_help
    s_lshl_b32 s25, s24, 2
    s_add_u32 s25, s25, s33          ; ch
    s_lshl_b32 s26, s25, 12          ; ch*4096
    s_mul_i32 s27, s33, {WSZ}        ; WB
    v_lshlrev_b32 v3, 4, v2          ; lane*16
    s_add_u32 m0, s27, {RO}
    s_lshr_b32 s28, s25, 1
    s_lshl_b32 s28, s28, 2
    s_waitcnt lgkmcnt(0)""")
    srd(a, 12, 4, MB4); srd(a, 16, 40, 64 << 20)
    FD = 16; FE = 32; FX = 48; TO = 52
    for i in range(4):
        a(f"    buffer_load_dwordx4 {vr(FD+4*i,4)}, v3, s[12:15], s26 offen offset:{1024*i}")
        a(f"    buffer_load_dwordx4 {vr(FE+4*i,4)}, v3, s[12:15], s26 offen offset:{1024*i+4}")
        a(f"    buffer_load_dword v{FX+i}, v3, s[12:15], s26 offen offset:{1024*i+20}")
    for i in range(4): a(f"    buffer_load_dwordx4 v3, s[16:19], s26 offen offset:{1024*i} lds")
    a(f"""    s_load_dword s29, s[6:7], s28
    v_add_u32 v4, s27, v3
    v_mov_b32 v60, 0
    v_mov_b32 v61, 0
    v_mov_b32 v62, 0
    v_mov_b32 v63, 0
    s_mov_b64 exec, 0x3fffffff
    ds_write_b128 v4, v[60:63] offset:{RO + 4096}
    s_mov_b64 exec, -1
    v_and_b32 v5, 15, v2             ; b / a
    v_lshrrev_b32 v6, 4, v2          ; kg
    v_add_u32 v7, 1, v5
    v_and_b32 v8, 3, v7
    v_mul_u32_u24 v8, {CS}, v8
    v_and_b32 v7, 28, v7
    v_lshl_add_u32 v8, v7, 1, v8
    v_lshl_add_u32 v8, v6, 4, v8
    v_add_u32 v8, s27, v8            ; vAT
    v_lshlrev_b32 v9, 5, v5
    v_lshl_add_u32 v10, v6, 3, v9    ; 32a + 8g
    v_sub_u32 v9, {RO + 480}, v9
    v_lshl_add_u32 v9, v6, 4, v9
    v_add_u32 v9, s27, v9            ; vBT
    s_add_u32 s34, s26, {XT_OFF:#x}""")
    stamp(a, 0)
    for i in range(4):
        D = FD + 4 * i; E = FE + 4 * i
        a(f"    s_waitcnt vmcnt({4 + 9 - 3*i})")
        a(f"    ds_write_b128 v4, {vr(D,4)} offset:{32 + 1024*i}")
        a(f"    ds_write_b128 v4, {vr(E,4)} offset:{2*CS + 32 + 1024*i}")
        t = TO + 8 * (i & 1)
        for k in range(4): a(f"    v_alignbit_b32 v{t+k}, v{E+k}, v{D+k}, 16")
        a(f"    ds_write_b128 v4, {vr(t,4)} offset:{CS + 32 + 1024*i}")
        for k in range(4): a(f"    v_alignbit_b32 v{t+4+k}, v{E+k+1 if k < 3 else FX+i}, v{E+k}, 16")
        a(f"    ds_write_b128 v4, {vr(t+4,4)} offset:{3*CS + 32 + 1024*i}")
        if i == 0:
            a(f"""    v_mov_b32 v68, 0
    v_mov_b32 v69, 0
    v_mov_b32 v70, 0
    v_lshlrev_b32 v71, 16, v{D}
    v_mov_b32 v72, 0
    v_mov_b32 v73, 0
    v_mov_b32 v74, 0
    v_mov_b32 v75, v{D}
    v_mov_b32 v76, 0
    v_mov_b32 v77, 0
    v_mov_b32 v78, v71
    v_mov_b32 v79, v{t}
    s_mov_b64 exec, 1
    ds_write_b128 v4, v[60:63]
    ds_write_b128 v4, v[60:63] offset:16
    ds_write_b128 v4, v[60:63] offset:{CS}
    ds_write_b128 v4, v[68:71] offset:{CS+16}
    ds_write_b128 v4, v[60:63] offset:{2*CS}
    ds_write_b128 v4, v[72:75] offset:{2*CS+16}
    ds_write_b128 v4, v[60:63] offset:{3*CS}
    ds_write_b128 v4, v[76:79] offset:{3*CS+16}
    s_mov_b64 exec, -1""")
    ACC = 80; F0 = 112; F1 = 176
    for i in range(0, 32, 2): a(f"    v_mov_b64 {vr(ACC+i,2)}, 0")
    a(f"""    v_mov_b32 v34, {STG + 16384}
    v_mov_b32 v35, 0
    ds_write_b32 v34, v35
    s_waitcnt vmcnt(0) lgkmcnt(0)""")
    for n in range(8): a(f"    buffer_load_dwordx2 {vr(FD + 2*n, 2)}, v10, s[16:19], s34 offen offset:{512*n}")
    a("    s_barrier")
    stamp(a, 1)
    def reads(F, woff):
        r = []
        for u in range(8):
            r.append(f"    ds_read_b128 {vr(F+32+4*u,4)}, v9 offset:{3584 - 512*u + woff}")
            r.append(f"    ds_read_b64 {vr(F+4*u,2)}, v8 offset:{512*u + woff}")
            r.append(f"    ds_read_b64 {vr(F+4*u+2,2)}, v8 offset:{512*u + 8 + woff}")
        return r
    def mf(F):
        return [f"    v_mfma_f32_16x16x32_bf16 {vr(ACC+4*(u+v),4)}, {vr(F+4*u,4)}, {vr(F+32+4*v,4)}, {vr(ACC+4*(u+v),4)}" for u in range(8) for v in range(8 - u)]
    def weave(m, f):
        i = 0
        for x in m:
            a(x)
            if i < len(f): a(f[i]); i += 1
    for l in reads(F0, 0): a(l)
    a(f"    s_mov_b32 s35, 0\n{L}_loop:\n    s_waitcnt lgkmcnt(0)")
    weave(mf(F0), reads(F1, 64) + ["    ds_read_b32 v35, v34", "    v_add_u32 v8, 128, v8", "    v_add_u32 v9, 128, v9", "    s_add_u32 s35, s35, 1", "    s_cmp_eq_u32 s35, 4"])
    a(f"    s_waitcnt lgkmcnt(0)\n    s_cbranch_scc1 {L}_last")
    weave(mf(F1), reads(F0, 0))
    a(f"""    s_branch {L}_loop
{L}_again:
    s_sleep 1
    ds_read_b32 v35, v34
    s_waitcnt lgkmcnt(0)
{L}_last:
    v_readfirstlane_b32 s36, v35
    s_cmp_eq_u32 s36, 4
    s_cbranch_scc0 {L}_again""")
    KV = F0; MT = F0 + 16
    pre = [f"""    v_sub_u32 v32, {RO + 504}, v10
    v_add_u32 v32, s27, v32""",
           f"""    v_lshlrev_b32 v33, 1, v10
    v_add_u32 v33, {STG}, v33"""]
    pre += [f"    ds_read_b64 {vr(KV+2*n,2)}, v32 offset:{512*(7-n)}" for n in range(8)]
    pre += [f"    ds_read_b128 {vr(MT+4*n,4)}, v33 offset:{1024*n}" for n in range(8)]
    RTB = 36
    pre += [f"    ds_read_b128 {vr(RTB+4*n,4)}, v33 offset:{8192 + 1024*n}" for n in range(8)]
    pre += [f"""    s_lshl_b32 s35, s29, 16
    s_and_b32 s36, s29, 0xffff0000""", f"""    s_bitcmp1_b32 s25, 0
    s_cselect_b32 s35, s36, s35          ; D as f32""",
            f"""    s_and_b32 s36, s25, 3
    s_bfe_u32 s37, s25, 0x10003""", f"""    s_lshl_b32 s37, s37, 2
    s_or_b32 s36, s36, s37               ; g(d)""",
            f"""    v_and_b32 v11, 7, v5
    v_xor_b32 v11, s36, v11""", f"""    v_lshlrev_b32 v11, 5, v11
    v_lshrrev_b32 v12, 3, v5""", f"""    v_lshl_add_u32 v11, v12, 18, v11
    v_and_b32 v12, 1, v6""", f"""    v_lshl_add_u32 v11, v12, 19, v11
    v_lshrrev_b32 v12, 1, v6""", f"""    v_lshl_add_u32 v11, v12, 4, v11
    s_lshl_b32 s34, s25, 8""", f"""    s_add_u32 s34, s34, {HT_OFF:#x}"""]
    weave(mf(F1), pre)
    stamp(a, 2)
    a("    s_waitcnt vmcnt(0) lgkmcnt(0)")
    OUT = 224
    order = [0, 1, 2, 3, 4, 5, 6, 7]
    for n in order:
        c = ACC + 4 * n; k = KV + 2 * n; x = FD + 2 * n; o = OUT + 2 * n
        a(f"""    v_and_b32 v12, 0xffff0000, v{k+1}
    v_lshlrev_b32 v13, 16, v{k+1}
    v_and_b32 v14, 0xffff0000, v{k}
    v_lshlrev_b32 v15, 16, v{k}
    v_fmac_f32 v{c}, s35, v12
    v_fmac_f32 v{c+1}, s35, v13
    v_fmac_f32 v{c+2}, s35, v14
    v_fmac_f32 v{c+3}, s35, v15
    v_lshlrev_b32 v12, 16, v{x}
    v_and_b32 v13, 0xffff0000, v{x}
    v_lshlrev_b32 v14, 16, v{x+1}
    v_and_b32 v15, 0xffff0000, v{x+1}
    v_pk_mul_f32 {vr(c,2)}, {vr(c,2)}, {vr(RTB+4*n,2)}
    v_pk_mul_f32 {vr(c+2,2)}, {vr(c+2,2)}, {vr(RTB+4*n+2,2)}
    v_pk_add_f32 {vr(MT+4*n,2)}, v[12:13], {vr(MT+4*n,2)} neg_lo:[0,1] neg_hi:[0,1]
    v_pk_add_f32 {vr(MT+4*n+2,2)}, v[14:15], {vr(MT+4*n+2,2)} neg_lo:[0,1] neg_hi:[0,1]
    v_pk_fma_f32 v[12:13], {vr(MT+4*n,2)}, {vr(c,2)}, v[12:13]
    v_pk_fma_f32 v[14:15], {vr(MT+4*n+2,2)}, {vr(c+2,2)}, v[14:15]
    v_cvt_pk_bf16_f32 v{o}, v12, v13
    v_cvt_pk_bf16_f32 v{o+1}, v14, v15""")
        if n & 1:
            a(f"""    s_nop 0
    v_permlane16_swap_b32 v{o-2}, v{o}
    v_permlane16_swap_b32 v{o-1}, v{o+1}
    buffer_store_dwordx4 {vr(o-2,4)}, v11, s[16:19], s34 offen
    s_add_u32 s34, s34, 0x100000""")
    stamp(a, 3)
    a(f"    s_branch {L}_done")
    W = 16; WF = 48
    a(f"""{L}_help:
    s_and_b32 s34, s33, 3
    s_and_b32 s25, s2, 15            ; k slice
    s_lshr_b32 s26, s2, 4
    s_mul_i32 s27, s25, {64*7168}
    s_lshl_b32 s28, s26, 9
    s_lshl_b32 s29, s34, 7
    s_add_u32 s28, s28, s29
    s_add_u32 s27, s27, s28
    v_lshrrev_b32 v3, 3, v2
    v_mul_u32_u24 v3, 7168, v3
    v_and_b32 v4, 7, v2
    v_lshl_add_u32 v3, v4, 4, v3
    s_waitcnt lgkmcnt(0)""")
    srd(a, 12, 10, 1024 * 7168); srd(a, 16, 40, 64 << 20)
    a(f"""    s_lshl_b32 s30, s34, 12
    s_add_u32 m0, s30, {STG}
    s_add_u32 s30, s30, {ST1_OFF:#x}
    v_lshlrev_b32 v5, 4, v2
    v_mov_b32 v8, {STG + 16384}
    v_mov_b32 v9, 1
    s_barrier""")
    for i in range(4): a(f"    buffer_load_dwordx4 v5, s[16:19], s30 offen offset:{1024*i} lds")
    a("""    s_waitcnt vmcnt(0)
    s_mov_b64 exec, 1
    ds_add_u32 v8, v9
    s_mov_b64 exec, -1""")
    if opt.tlbpf:
        srd(a, 20, 42, 3584 * 2048)
        a(f"""    s_lshr_b32 s30, s2, 3
    s_mul_i32 s30, s30, {56*4096}
    v_lshlrev_b32 v5, 12, v2
    s_cmp_eq_u32 s34, 1
    s_cbranch_scc1 {L}_t1
    s_cmp_eq_u32 s34, 0
    s_cbranch_scc0 {L}_t2
    buffer_load_dword v7, v5, s[12:15], s30 offen
    s_branch {L}_t3
{L}_t1:
    buffer_load_dword v7, v5, s[20:23], s30 offen
    s_branch {L}_t3
{L}_t2:
    s_lshl_b32 s30, s30, 1
    s_and_b32 s31, s34, 1
    s_mul_i32 s31, s31, {56*4096}
    s_add_u32 s30, s30, s31
    s_add_u32 s30, s30, {H1_OFF:#x}
    buffer_load_dword v7, v5, s[16:19], s30 offen
{L}_t3:""")
    a(f"""    s_cmp_ge_u32 s2, 224
    s_cbranch_scc1 {L}_done""")
    for i in range(8):
        a(f"    buffer_load_dwordx4 {vr(W+4*i,4)}, v3, s[12:15], s27 offen\n    s_add_u32 s27, s27, {8*7168}")
    if opt.c_pf2:
        srd(a, 20, 42, 3584 * 2048)
        a(f"""    s_mul_i32 s30, s2, 32768
    s_lshl_b32 s31, s34, 13
    s_add_u32 s30, s30, s31
    v_lshlrev_b32 v5, 7, v2
    buffer_load_dword v6, v5, s[20:23], s30 offen""")
    ex = 1 if opt.c_pf2 else 0
    for i in range(8):
        a(f"    s_waitcnt vmcnt({7 - i + ex})")
        if i == 0:
            for d in range(4): unpack(a, WF + 2 * d, W + d)
        else:
            for d in range(4):
                unpack(a, WF + 8 + 2 * (d & 1), W + 4 * i + d)
                a(f"    v_pk_add_f32 {vr(WF+2*d,2)}, {vr(WF+2*d,2)}, {vr(WF + 8 + 2*(d&1),2)}")
    for d in range(8): a(f"    v_add_f32_dpp v{WF+d}, v{WF+d}, v{WF+d} row_ror:8 row_mask:0xf bank_mask:0xf")
    for sw in ("v_permlane16_swap_b32", "v_permlane32_swap_b32"):
        for d in range(8): a(f"    v_mov_b32 v{WF+8+d}, v{WF+d}")
        for d in range(8): a(f"    {sw} v{WF+8+d}, v{WF+d}")
        for d in range(8): a(f"    v_add_f32 v{WF+d}, v{WF+d}, v{WF+8+d}")
    a(f"""    s_mul_i32 s27, s25, {3584*4}
    s_lshl_b32 s28, s28, 1
    s_add_u32 s27, s27, s28
    s_add_u32 s27, s27, {CS_OFF:#x}
    v_lshlrev_b32 v4, 5, v4
    s_mov_b64 exec, 0xff
    buffer_store_dwordx4 {vr(WF,4)}, v4, s[16:19], s27 offen
    buffer_store_dwordx4 {vr(WF+4,4)}, v4, s[16:19], s27 offen offset:16
    s_mov_b64 exec, -1
{L}_done:""")
    stamp(a, 4)
    if opt.stamps: a("    s_waitcnt vmcnt(0)")
    stamp(a, 5)
    stamp_end(a, kidx, 40, 33)
    a(f"{L}_end:\n    s_endpgm")
    return (name, 256, 512, STG + 16384 + 64), (name, 256 if opt.stamps else 240, 96)


def loop_unrolled(a, L, MI, NI, nk, ns, acc, F0, F1, rdA, rdB, s_k, bar, tail, hookA=None, hookB=None, entry=None):
    n = MI * NI
    def reads(F, slot, kh):
        r = rdA(F, slot, kh)
        for ni in range(NI): r += rdB(F, slot, kh, ni)
        return r
    def mfmas(F):
        return [f"    v_mfma_f32_16x16x32_bf16 {vr(acc + 4*(mi*NI+ni),4)}, {vr(F + 4*MI + 4*ni, 4)}, {vr(F + 4*mi, 4)}, {vr(acc + 4*(mi*NI+ni),4)}" for ni in range(NI) for mi in range(MI)]
    def place(mf, items, start, extra):
        gaps = [[] for _ in mf]
        for j, it in enumerate(items): gaps[start + j].append(it)
        for k, v in extra.items(): gaps[k] += v
        for m, gl in zip(mf, gaps):
            a(m)
            for x in gl: a(x)
    nrd = len(reads(F0, 0, 0))
    late = bar >= n
    st = bar - n + 1 if late else 0
    lagB = st + nrd > n - opt.lagthr
    a(f"    s_mov_b32 s{s_k}, 0")
    if entry is None:
        for l in reads(F0, 0, 0): a(l)
    else:
        a(f"    s_cmp_eq_u32 {entry}, 0\n    s_cbranch_scc1 {L}_e0")
        for l in reads(F0, 1, 0): a(l)
        a(f"    s_branch {L}_s1\n{L}_e0:")
        for l in reads(F0, 0, 0): a(l)
    for u in range(ns):
        a(f"{L}_s{u}:")
        ex = {}
        if lagB:
            a(f"    s_waitcnt lgkmcnt({2*(NI-1)})")
            for ni in range(1, NI):
                ex.setdefault(MI * ni - 1, []).append(f"    s_waitcnt lgkmcnt({min(15, 2*(NI-1-ni) + min(nrd, MI*ni))})")
        else:
            a("    s_waitcnt lgkmcnt(0)")
        ex.setdefault(n - 3, []).append(f"    s_add_u32 s{s_k}, s{s_k}, 1")
        ex.setdefault(n - 2, []).append(f"    s_cmp_eq_u32 s{s_k}, {nk}")
        if not late: ex.setdefault(bar, []).append("    s_waitcnt lgkmcnt(0)\n    s_barrier")
        ex.setdefault(n - 1, []).append(f"    s_cbranch_scc1 {L}_tail")
        if late: ex[n - 1].append(f"    s_waitcnt lgkmcnt({2*(NI-1)})")
        if hookA: ex[n - 1].append(hookA(u))
        place(mfmas(F0), reads(F1, u, 1), 0, ex)
        ex = {}
        if late: ex[bar - n] = ["    s_waitcnt lgkmcnt(0)\n    s_barrier"]
        if hookB: ex.setdefault(n - 1, []).append(hookB(u))
        if u == ns - 1: ex.setdefault(n - 1, []).append(f"    s_branch {L}_s0")
        place(mfmas(F1), reads(F0, (u + 1) % ns, 0), st, ex)
    a(f"{L}_tail:")
    if late: a("    s_waitcnt lgkmcnt(0)\n    s_barrier")
    tail(mfmas(F1))

def gen_ga(a, kidx, mega=None):
    name = "g_kernel"; L = "G"
    PX = 4 if opt.map84 else 1
    MAP = """    s_lshr_b32 s26, s24, 1
    s_lshl_b32 s26, s26, 2
    s_and_b32 s27, s25, 3
    s_add_u32 s26, s26, s27          ; mt
    s_and_b32 s54, s24, 1
    s_lshr_b32 s55, s25, 2
    s_lshl_b32 s56, s24, 2
    s_add_u32 s56, s56, s27
    s_lshl_b32 s56, s56, 7           ; group*128
    s_lshl_b32 s27, s54, 3
    s_add_u32 s27, s27, s55          ; nt
""" if not opt.map84 else ("""    s_and_b32 s26, s24, 1
    s_lshl_b32 s26, s26, 3
    s_and_b32 s27, s25, 7
    s_add_u32 s26, s26, s27          ; mt""" if not (mega and mega["two"]) else """    s_and_b32 s26, s24, 1
    s_lshl_b32 s26, s26, 2
    s_and_b32 s27, s25, 3
    s_add_u32 s26, s26, s27
    s_and_b32 s27, s25, 4
    s_lshl_b32 s27, s27, 1
    s_add_u32 s26, s26, s27          ; mt: four early and four late row tiles per die""") + """
    s_lshr_b32 s27, s24, 1
    s_lshl_b32 s27, s27, 2
    s_lshr_b32 s55, s25, 3
    s_add_u32 s27, s27, s55          ; nt
    s_lshr_b32 s54, s27, 3           ; kh
    s_and_b32 s55, s27, 7            ; nt2 / member index
    s_lshl_b32 s56, s26, 1
    s_add_u32 s56, s56, s54
    s_lshl_b32 s56, s56, 7           ; group*128
"""
    LA = 224; LB = 216; LB2 = 212
    ST1 = 49152; NS1 = 3; NK1 = 16
    NS2 = 4; NK2 = 28; B2 = 81920
    BR1 = 49152; CNT = 147456; TST = CNT + 256; TRM = TST + 512; TCB = TRM + 1024 + 64; RES = 65536
    if not mega:
        kernel_head(a, name)
        a(f"    s_cmp_ge_u32 s2, 256\n    s_cbranch_scc1 {L}_end")
    a(f"""    s_load_dwordx2 s[4:5], s[0:1], {ARG['ws']}
    s_load_dwordx4 s[8:11], s[0:1], {ARG['w1']}    ; w1, b1
    s_load_dwordx4 s[48:51], s[0:1], {ARG['w2']}   ; w2, b2
    s_load_dwordx2 s[52:53], s[0:1], {ARG['out']}""")
    stamp_begin(a)
    a(f"""    v_lshrrev_b32 v1, 6, v0
    v_and_b32 v2, 63, v0
    s_and_b32 s24, s2, 7
    v_readfirstlane_b32 s33, v1
    s_lshr_b32 s25, s2, 3
{MAP}    s_and_b32 s29, s27, 1            ; p = nt odd
    s_cmp_lt_u32 s33, 4
    s_cbranch_scc1 {L}_cons""")
    def final_addr():
        a(f"""    s_lshl_b32 s43, s26, 7
    s_lshl_b32 s44, s54, 5
    s_add_u32 s43, s43, s44
    s_lshl_b32 s44, s33, 2
    s_add_u32 s43, s43, s44
    s_lshl_b32 s43, s43, 11          ; row*2048
    s_lshl_b32 s44, s55, 8
    s_add_u32 s43, s43, s44
    s_add_u32 s44, s43, {64*2048}""")
    if opt.lprio: a(f"    s_setprio {opt.lprio}")
    a(f"""    s_and_b32 s34, s33, 3            ; lw
    s_lshl_b32 s35, s34, 12          ; lw*4096
    v_lshl_add_u32 v{LA}, v2, 4, s35 ; A voffset
    s_lshl_b32 s68, s26, 18
    s_add_u32 s69, s68, {16 << 14}
    s_and_b32 s36, s27, {0 if opt.norot else 12}
    s_lshl_b32 s30, s36, 14
    s_add_u32 s30, s30, s68
    s_mul_i32 s66, s27, 448
    s_and_b32 s66, s66, 0xffffff80
    s_add_u32 s67, s66, {1024*7168}
    s_mul_i32 s31, s36, {64*7168}
    s_add_u32 s31, s31, s66
    s_mov_b32 s70, s35
    s_add_u32 s39, s35, {NS1*16384}
    s_add_u32 s38, s35, s35
    s_add_u32 s38, s38, {BR1}
    s_mov_b32 s71, s38
    s_add_u32 s37, s38, {NS1*32768}
    s_waitcnt lgkmcnt(0)""")
    srd(a, 12, 4, MB4, off=HT_OFF)
    def issueA1():
        a(f"    s_mov_b32 m0, s70\n    s_add_u32 s70, s70, 16384")
        for i in range(4): a(f"    buffer_load_dwordx4 v{LA}, s[12:15], s30 offen offset:{i*1024} {'sc1' if mega else ''} lds")
        a("""    s_add_u32 s30, s30, 16384
    s_cmp_ge_u32 s70, s39
    s_cselect_b32 s70, s35, s70
    s_cmp_ge_u32 s30, s69
    s_cselect_b32 s30, s68, s30""")
    def issueB1():
        a("    s_mov_b32 m0, s38\n    s_nop 0")
        for i in range(4): a(f"    buffer_load_dwordx4 v{LB+i}, s[16:19], s31 offen offset:{i*1024} lds")
        a(f"    s_add_u32 m0, s38, 4096\n    s_add_u32 s38, s38, 32768")
        for i in range(4, 8): a(f"    buffer_load_dwordx4 v{LB+i}, s[16:19], s31 offen offset:{(i&3)*1024} lds")
        a(f"""    s_add_u32 s31, s31, {64*7168}
    s_cmp_ge_u32 s38, s37
    s_cselect_b32 s38, s71, s38
    s_cmp_ge_u32 s31, s67
    s_cselect_b32 s31, s66, s31""")
    if not mega: issueA1()
    a(f"""    v_lshrrev_b32 v8, 5, v2          ; hi
    s_lshl_b32 s36, s34, 4
    v_add_u32 v9, s36, v8            ; 16lw+hi
    v_mul_u32_u24 v9, 7168, v9
    v_and_b32 v10, 1, v2
    v_lshl_add_u32 v9, v10, 4, v9    ; t0
    v_bfe_u32 v10, v2, 1, 4
    v_xor_b32 v10, v10, v8           ; x0""")
    srd(a, 16, 8, 1024 * 7168)
    for ci, c in enumerate((0, 2, 4, 6)):
        a(f"    v_xor_b32 v11, {c}, v10\n    v_lshl_add_u32 v11, v11, 5, v9")
        for i in range(8):
            if 2 * (i & 1) + 4 * (i >> 2) == c: a(f"    v_add_u32 v{LB+i}, {2*i*7168 - (i&3)*1024}, v11")
    stamp(a, 0)
    if not mega:
        issueB1(); issueA1()
        a("    s_waitcnt vmcnt(4)\n    s_barrier")
        issueB1(); issueA1(); issueB1()
    else:
        srd(a, 20, 4, 0x8000, off=mega["HF"])
        if mega["two"]: a("    s_lshr_b32 s36, s26, 3\n    s_lshl_b32 s36, s36, 15\n    s_add_u32 s20, s20, s36\n    s_addc_u32 s21, s21, 0")
        srd(a, 60, 48, 3584 * 2048)
        a(f"""    v_mov_b32 v10, {mega["WRD"]}
    v_lshlrev_b32 v70, 7, v2
    s_and_b32 s41, s27, 12
    s_lshl_b32 s41, s41, 11
    s_mul_i32 s59, s2, 28672
    s_mul_i32 s36, s34, 7168
    s_add_u32 s59, s59, s36
{L}_m0:
    ds_read_b32 v13, v10 offset:48
    s_waitcnt lgkmcnt(0)
    v_readfirstlane_b32 s36, v13
    s_cmp_eq_u32 s36, 8
    s_cbranch_scc1 {L}_m1
    s_sleep 1
    s_branch {L}_m0
{L}_m1:""")
        issueB1()
        if opt.mb2: issueB1()
        if not opt.mq: a("    s_lshl_b32 s41, s35, 1")
        a(f"""{L}_m2:
    buffer_load_dword v13, v70, s[20:23], s41 offen sc1
    s_waitcnt vmcnt(0)
    v_cmp_eq_u32 vcc, 1, v13
    s_cmp_eq_u64 vcc, -1
    s_cbranch_scc1 {L}_m3""")
        if opt.mpf: a("    buffer_load_dword v71, v70, s[60:63], s59 offen\n    s_mov_b32 s59, 0x80000000")
        else: a(f"    s_sleep {opt.msleep}")
        a(f"    s_branch {L}_m2\n{L}_m3:")
        if not opt.mq:
            a(f"""    v_mov_b32 v12, 1
    s_mov_b64 exec, 1
    ds_add_u32 v10, v12 offset:56
    s_mov_b64 exec, -1
{L}_m5:
    ds_read_b32 v13, v10 offset:56
    s_waitcnt lgkmcnt(0)
    v_readfirstlane_b32 s36, v13
    s_cmp_eq_u32 s36, 4
    s_cbranch_scc0 {L}_m5""")
        if opt.dly:
            a(f"    s_and_b32 s36, s26, {opt.dly[0]}\n    s_cmp_eq_u32 s36, 0\n    s_cbranch_scc1 {L}_nodly")
            for i in range(opt.dly[1]): a("    s_sleep 16")
            a(f"{L}_nodly:")
        stamp(a, 11)
        issueA1(); issueA1()
        a("    s_waitcnt vmcnt(4)\n    s_barrier")
        if not opt.mb2: issueB1()
        issueA1(); issueB1()
        if opt.mq:
            a(f"{L}_m4:")
            for q in range(1, 4):
                a(f"    s_add_u32 s36, s41, {q*8192}\n    s_and_b32 s36, s36, 0x7fff\n    buffer_load_dword v{13+q}, v70, s[20:23], s36 offen sc1")
            a(f"""    s_waitcnt vmcnt(0)
    v_and_b32 v13, v14, v15
    v_and_b32 v13, v13, v16
    v_cmp_eq_u32 vcc, 1, v13
    s_cmp_eq_u64 vcc, -1
    s_cbranch_scc0 {L}_m4""")
    stamp(a, 12)
    a(f"""    v_lshrrev_b32 v3, 4, v2          ; q4
    s_lshl_b32 s36, s34, 4
    v_add_u32 v4, s36, v3
    v_lshlrev_b32 v4, 11, v4
    v_and_b32 v5, 1, v2
    v_lshl_add_u32 v4, v5, 4, v4     ; t0
    v_bfe_u32 v5, v2, 1, 3
    v_xor_b32 v5, v5, v3             ; x0""")
    for c in (0, 4):
        a(f"    v_xor_b32 v6, {c}, v5\n    v_lshl_add_u32 v6, v6, 5, v4")
        for i in range(4):
            if 4 * (i >> 1) == c: a(f"    v_add_u32 v{LB2+i}, {4*i*2048 - i*1024}, v6")
    a(f"""    v_lshrrev_b32 v3, 3, v2          ; d&7
    v_bfe_u32 v4, v2, 1, 2
    v_lshrrev_b32 v5, 1, v3
    v_xor_b32 v4, v4, v5             ; gs
    v_and_b32 v5, 1, v4
    v_lshrrev_b32 v4, 1, v4
    v_lshl_or_b32 v4, v4, 2, v5
    s_lshl_b32 s36, s54, 1
    v_or_b32 v4, s36, v4             ; cp
    v_and_b32 v5, 3, v3
    v_xor_b32 v4, v4, v5             ; cp ^ (d&3)
    v_lshlrev_b32 v4, 5, v4
    v_and_b32 v5, 1, v2
    v_lshl_add_u32 v4, v5, 4, v4
    v_lshl_add_u32 v208, v3, 8, v4
    v_xor_b32 v209, 128, v208
    v_add_u32 v209, 1024, v209
    v_add_u32 v210, 2048, v208
    v_add_u32 v211, 2048, v209
    v_and_b32 v3, 31, v2
    v_lshrrev_b32 v4, 5, v2
    v_lshlrev_b32 v4, 13, v4
    v_lshl_add_u32 v206, v3, 2, v4
    v_and_b32 v3, 15, v2
    v_min_u32 v3, 13, v3
    v_lshrrev_b32 v4, 4, v2
    v_mul_u32_u24 v207, {3584*4}, v4
    v_lshl_add_u32 v207, v3, 4, v207
    v_lshlrev_b32 v205, 3, v3""")
    if opt.xy:
        a(f"""    s_lshr_b32 s36, s55, 1
    s_mul_i32 s36, s36, 3
    s_lshl_b32 s41, s29, 1
    s_add_u32 s36, s36, s41
    v_subrev_u32 v3, 3, v2               ; q
    v_cmp_le_u32 vcc, s36, v3
    s_lshl_b32 s41, s55, 1
    v_subrev_u32 v5, 14, v2              ; z
    v_addc_co_u32 v3, vcc, 0, v3, vcc    ; c
    v_cmp_le_u32 vcc, s41, v5
    v_mul_u32_u24 v4, 43, v3
    v_lshrrev_b32 v4, 7, v4              ; c/3
    v_cndmask_b32 v6, 0, 2, vcc
    v_add_u32 v5, v5, v6
    v_mul_u32_u24 v6, 3, v4
    v_sub_u32 v3, v3, v6                 ; c%3
    v_min_u32 v6, 1, v3
    v_lshl_add_u32 v3, v6, 1, v3         ; 0,3,4
    v_mad_u32_u24 v3, v4, 7, v3
    v_lshrrev_b32 v4, 2, v5
    v_and_b32 v6, 1, v5
    v_bfe_u32 v5, v5, 1, 1
    v_lshl_add_u32 v5, v5, 2, v6
    v_mad_u32_u24 v5, v4, 7, v5
    v_add_u32 v5, 1, v5
    v_cmp_gt_u32 vcc, 14, v2
    s_mul_i32 s36, s55, 7
    s_add_u32 s36, s36, 1
    v_cndmask_b32 v3, v5, v3, vcc
    s_lshr_b32 s36, s36, 1
    v_cmp_gt_u32 vcc, 3, v2
    v_add_u32 v5, s36, v2
    s_nop 0
    v_cndmask_b32 v72, v3, v5, vcc""")
    srd(a, 20, 4, 64 << 20); srd(a, 72, 10, 7168)
    PSR = 32; CSR = 48; BR = 64
    a(f"""    s_lshl_b32 s41, s26, 14
    s_lshl_b32 s36, s34, 7
    s_add_u32 s41, s41, s36
    s_add_u32 s41, s41, {PST_OFF:#x}
    s_add_u32 s47, s41, 4096
    s_mul_i32 s42, s27, 896
    s_mul_i32 s36, s34, 224
    s_add_u32 s42, s42, s36
    s_lshr_b32 s43, s42, 1
    s_add_u32 s42, s42, {CS_OFF:#x}""")
    KP = opt.kp
    pfk = dict(opt.pfk) if opt.w2pf == "l" else {}
    if pfk and not mega:
        srd(a, 60, 48, 3584 * 2048)
        a(f"""    s_mul_i32 s59, s2, 28672
    s_mul_i32 s36, s34, 7168
    s_add_u32 s59, s59, s36
    v_lshlrev_b32 v70, {8 if opt.c_pf2 == 2 else 7}, v2
    {"s_add_u32 s59, s59, 128" if opt.c_pf2 == 2 else ""}""")
    def pf(k):
        if k in pfk:
            lo, hi = pfk[k]
            m = ((1 << hi) - 1) ^ ((1 << lo) - 1)
            a(f"    s_mov_b32 exec_lo, {m & 0xffffffff:#x}\n    s_mov_b32 exec_hi, {m >> 32:#x}\n    buffer_load_dword v71, v70, s[60:63], s59 offen\n    s_mov_b64 exec, -1")
    extra = lambda k: (1 if (k - 1) in pfk else 0) + (1 if (k - 2) in pfk else 0)
    a(f"    s_mov_b32 s40, 0\n{L}_l1:")
    stamp_loop(a, 40, 32)
    a("    s_waitcnt vmcnt(12)")
    stamp_loop(a, 40, 42)
    a("    s_barrier")
    stamp_loop(a, 40, 52)
    if not opt.noload:
        issueA1(); issueB1()
    a(f"    s_add_u32 s40, s40, 1\n    s_cmp_lt_u32 s40, {KP + 1}\n    s_cbranch_scc1 {L}_l1")
    stamp(a, 20)
    def gather_ps():
        for i in range(16): a(f"    buffer_load_dword v{PSR+i}, v206, s[20:23], s{41 if i < 8 else 47} offen offset:{512*(i&7)} sc1")
    gather_ps()
    def gather_cs():
        for i in range(4): a(f"    s_add_u32 s36, s42, {i*4*3584*4}\n    buffer_load_dwordx4 {vr(CSR+4*i,4)}, v207, s[20:23], s36 offen {'sc1' if mega else ''}")
    gather_cs()
    a(f"    buffer_load_dwordx2 {vr(BR,2)}, v205, s[72:75], s43 offen")
    for k in (KP + 1, KP + 2):
        stamp(a, 21 + 2 * (k - KP - 1))
        a(f"    s_waitcnt vmcnt({33 + extra(k)})\n    s_barrier          ; b{k}")
        stamp(a, 22 + 2 * (k - KP - 1))
        issueA1(); issueB1(); pf(k)
    t = Asm()
    for i in range(1, 8): t(f"    v_pk_add_f32 {vr(PSR,2)}, {vr(PSR,2)}, {vr(PSR+2*i,2)}")
    for i in range(1, 4):
        t(f"    v_pk_add_f32 {vr(CSR,2)}, {vr(CSR,2)}, {vr(CSR+4*i,2)}\n    v_pk_add_f32 {vr(CSR+2,2)}, {vr(CSR+2,2)}, {vr(CSR+4*i+2,2)}")
    t(f"""    v_add_f32 v3, v{PSR}, v{PSR+1}
    s_mov_b32 s76, 0x3a800000
    v_mov_b32 v4, v3""")
    for sw in ("v_permlane16_swap_b32", "v_permlane32_swap_b32"):
        for d in range(4): t(f"    v_mov_b32 v{CSR+4+d}, v{CSR+d}")
        for d in range(4): t(f"    {sw} v{CSR+4+d}, v{CSR+d}")
        for d in range(4): t(f"    v_add_f32 v{CSR+d}, v{CSR+d}, v{CSR+4+d}")
    t(f"""    v_permlane32_swap_b32 v4, v3
    v_mul_f32 v6, s76, v4                ; mean
    v_mul_f32 v7, s76, v3
    v_fma_f32 v7, -v6, v6, v7
    v_max_f32 v7, 0, v7                  ; variance""")
    rnd(t, 6); rnd(t, 7)
    t("    v_add_f32 v7, 0x3727c5ac, v7"); rnd(t, 7)
    t("    v_sqrt_f32 v7, v7")
    for d in range(4): t(f"    v_cvt_pk_bf16_f32 v{CSR+4+d}, v{CSR+d}, v{CSR+d}")
    rnd(t, 7)
    for d in range(4): t(f"    v_and_b32 v{CSR+4+d}, 0xffff0000, v{CSR+4+d}\n    v_sub_f32 v{CSR+d}, v{CSR+d}, v{CSR+4+d}")
    t("    v_rcp_f32 v9, v7")
    for d in range(4):
        t(f"    v_cvt_pk_bf16_f32 v{CSR+8+2*d}, v{CSR+4+d}, v{CSR+d}")
        t(f"    v_and_b32 v{CSR+9+2*d}, 0xffff, v{BR + (d>>1)}" if d % 2 == 0 else f"    v_lshrrev_b32 v{CSR+9+2*d}, 16, v{BR + (d>>1)}")
    t(f"""    v_mul_f32 v9, v9, v9                 ; r^2
    v_xor_b32 v6, 0x80000000, v6
    v_lshrrev_b32 v4, 16, v6
    v_or_b32 v6, v6, v4                  ; (-m,-m)
    v_lshrrev_b32 v7, 16, v7             ; (den,0)
    v_and_b32 v3, 31, v2
    s_lshl_b32 s77, s34, 7
    s_add_u32 s77, s77, {TST}
    v_lshl_add_u32 v4, v3, 2, s77
    ds_write_b32 v4, v9
    s_lshl_b32 s77, s34, 8
    s_add_u32 s77, s77, {TRM}
    v_lshl_add_u32 v4, v3, 3, s77
    ds_write_b64 v4, v[6:7]
    s_mul_i32 s77, s34, 448
    s_add_u32 s77, s77, {TCB}
    v_lshl_add_u32 v3, v205, 2, s77
    ds_write_b128 v3, {vr(CSR+8,4)}
    ds_write_b128 v3, {vr(CSR+12,4)} offset:16
    v_mov_b32 v10, 0
    v_mov_b32 v11, 0
    v_mov_b32 v12, {TRM + 1024}
    ds_write_b64 v12, v[10:11]
    v_mov_b32 v12, {CNT}
    ds_write_b64 v12, v[10:11]""")
    nchk = NK1 - NS1 - (KP + 3)
    per = (len(t.lines) - 10 + nchk - 1) // nchk
    chunks = [t.lines[10 + i*per: 10 + (i+1)*per] for i in range(nchk)]
    for k in range(KP + 3, NK1 - NS1):
        a(f"    s_waitcnt vmcnt({12 + extra(k)})\n    s_barrier          ; b{k}")
        issueA1(); issueB1(); pf(k)
        if k == KP + 3:
            a(f"{L}_chk:\n    v_max_u32 v3, v{PSR}, v{PSR+1}")
            for i in range(2, 32 if mega else 16, 2): a(f"    v_max3_u32 v3, v3, v{PSR+i}, v{PSR+i+1}")
            a(f"""    v_cmp_eq_u32 vcc, -1, v3
    s_cmp_lg_u64 vcc, 0
    s_cbranch_scc1 {L}_retry""")
            for x in t.lines[:10]: a(x)
        else:
            for x in chunks.pop(0): a(x)
    srd(a, 16, 48, 3584 * 2048)
    final_addr()
    a(f"""    s_mul_i32 s58, s55, 7
    s_add_u32 s58, s58, 1
    s_lshr_b32 s58, s58, 1
    s_mul_i32 s66, s54, {1792*2048}
    s_lshl_b32 s36, s55, 8
    s_add_u32 s66, s66, s36
    s_lshl_b32 s31, s58, 17
    s_add_u32 s31, s31, s66          ; G2 B soffset
    s_add_u32 s67, s66, {28 << 17}
    s_mov_b32 s78, {1 if opt.xy else 's31'}
    s_add_u32 s79, s31, {3 << 17}
    s_lshl_b32 s38, s29, 14
    s_add_u32 s38, s38, s35
    s_add_u32 s39, s35, 65536
    s_lshl_b32 s36, s55, 15
    s_lshl_b32 s37, s34, 13
    s_add_u32 s36, s36, s37
    s_add_u32 s42, s36, s68
    s_waitcnt vmcnt({12 + extra(13)})
    s_barrier          ; b13""")
    stamp(a, 13)
    def issueB2(restart=False):
        a(f"    s_add_u32 m0, s38, {B2}\n    s_add_u32 s38, s38, 16384")
        for i in range(4): a(f"    buffer_load_dwordx4 v{LB2+i}, s[16:19], s31 offen offset:{i*1024} lds")
        a(f"""    s_add_u32 s31, s31, {64*2048}
    s_cmp_ge_u32 s38, s39
    s_cselect_b32 s38, s35, s38""")
        if opt.xy: a("    v_readlane_b32 s36, v72, s78\n    s_add_u32 s78, s78, 1\n    s_lshl_b32 s36, s36, 17\n    s_add_u32 s31, s36, s66")
        elif not opt.g2sync: a("    s_cmp_ge_u32 s31, s67\n    s_cselect_b32 s31, s66, s31")
        elif restart: a("    s_cmp_eq_u32 s66, s78\n    s_cselect_b32 s31, s31, s66")
        else: a("    s_cmp_eq_u32 s31, s78\n    s_cselect_b32 s31, s79, s31")
    issueB2()
    for x in chunks.pop(0): a(x)
    stamp(a, 15)
    a(f"    s_waitcnt vmcnt({4 + (1 if 12 in pfk else 0)})\n    s_barrier          ; b14")
    stamp(a, 14)
    assert not chunks
    issueB2()
    a("    s_waitcnt lgkmcnt(0)\n    s_barrier          ; b15")
    issueB2(restart=True); issueB2()
    stamp(a, 1)
    a(f"    s_add_u32 m0, s35, {RES}\n    s_nop 0")
    for i in range(4): a(f"    buffer_load_dwordx4 v{208+i}, s[12:15], s42 offen offset:{i*1024} {'sc1' if mega else ''} lds")
    srd(a, 12, 4, H1_SZ, off=H1_OFF); srd(a, 60, 4, FLG_SZ, off=FLG_OFF)
    a(f"""    s_lshr_b32 s36, s34, 1
    s_lshl_b32 s36, s36, 13
    s_and_b32 s37, s34, 1
    s_lshl_b32 s37, s37, 11              ; + 16*(lw&1)
    s_add_u32 s37, s37, s36
    v_lshl_add_u32 v7, v2, 4, s37
    s_lshl_b32 s36, s29, 14
    v_add_u32 v3, s36, v7
    s_cmp_eq_u32 s29, 1
    s_cselect_b32 s36, 0, 49152
    v_add_u32 v4, s36, v7
    v_lshrrev_b32 v5, 3, v2
    v_xor_b32 v5, v5, v2
    v_bfe_u32 v5, v5, 2, 1               ; c bit2
    v_cmp_eq_u32 vcc, s29, v5
    v_mov_b32 v6, 0x80000000
    s_mul_i32 s36, s27, 7
    s_lshr_b32 s36, s36, 1               ; ks0
    v_cndmask_b32 v5, v6, v4, vcc
    s_mul_i32 s37, s26, 56
    s_add_u32 s36, s36, s37
    s_lshl_b32 s40, s36, 14
    s_add_u32 s41, s40, 16384
    s_add_u32 s42, s40, 32768
    s_mul_i32 s68, s54, 28
    s_add_u32 s68, s68, s37
    s_lshl_b32 s68, s68, 14
    s_add_u32 s69, s68, {28 << 14}
    s_add_u32 s30, s58, 3
    s_lshl_b32 s30, s30, 14
    s_add_u32 s30, s30, s68
    s_mov_b32 s77, s30
    s_sub_u32 s76, s30, {3 << 14}
    {"s_cmp_eq_u32 s68, s76" if opt.g2sync else "s_cmp_ge_u32 s30, s69"}
    {"s_cselect_b32 s30, s30, s68" if opt.g2sync else "s_cselect_b32 s30, s68, s30"}
    s_add_u32 s70, s29, 3
    s_and_b32 s70, s70, 3
    s_lshl_b32 s70, s70, 14
    s_add_u32 s70, s70, s35
    s_lshl_b32 s45, s55, 2
    s_add_u32 s46, s56, {GRP_RDY:#x}
    s_add_u32 s45, s45, s46
    v_and_b32 v8, 7, v2
    v_lshlrev_b32 v8, 2, v8
    v_mov_b32 v10, 1""")
    if opt.xy: a("    v_readlane_b32 s36, v72, 3\n    s_mov_b32 s76, 4\n    s_lshl_b32 s36, s36, 14\n    s_add_u32 s30, s36, s68")
    zst = []
    for half in range(2):
        stamp(a, 16 + 2 * half)
        if half == 1: a(f"    s_waitcnt vmcnt({4 if opt.xy else 8})")
        a(f"    s_barrier                            ; E{half}")
        stamp(a, 17 + 2 * half)
        ho = 4096 * half
        items = [(3, 3, 40, 0, 0), (3, 3, 40, 0, 1), (4, 5, 40, 0, 0), (4, 5, 40, 0, 1), (3, 3, 41, 16384, 0), (3, 3, 41, 16384, 1), (3, 3, 42, 32768, 0), (3, 3, 42, 32768, 1)]
        for i, (vr_, vs_, so, lo, q) in enumerate(items):
            a(f"    ds_read_b128 {vr((80 if opt.xy else 32)+32*half+4*i,4)}, v{vr_} offset:{lo + ho + 1024*q}")
        RB = 80 if opt.xy else 32
        if half == 1 and not opt.xy: a("    s_add_u32 s40, s40, 4096\n    s_add_u32 s41, s41, 4096\n    s_add_u32 s42, s42, 4096")
        if half == 1 and opt.xy: a("    s_add_u32 s40, s40, 4096\n    s_add_u32 s47, s41, 4096\n    s_add_u32 s59, s42, 4096")
        for i, (vr_, vs_, so, lo, q) in enumerate(items):
            if opt.xy and i >= 4:
                if half == 1: so = {41: 47, 42: 59}[so]
                zst.append(f"    buffer_store_dwordx4 {vr(RB+32*half+4*i,4)}, v{vs_}, s[12:15], s{so} offen offset:{1024*q} sc1")
                continue
            a(f"    s_waitcnt lgkmcnt({7-i})\n    buffer_store_dwordx4 {vr(RB+32*half+4*i,4)}, v{vs_}, s[12:15], s{so} offen offset:{1024*q} sc1")
        if opt.xy and half == 1: a("    s_waitcnt lgkmcnt(0)")
    stamp(a, 3)
    a("    s_barrier          ; c0\n    s_barrier          ; c1\n    s_waitcnt vmcnt(0)")
    stamp(a, 4)
    a(f"""    s_mov_b64 exec, 1
    ds_add_rtn_u32 v13, v12, v10
    s_mov_b64 exec, -1
    s_waitcnt lgkmcnt(0)
    v_readfirstlane_b32 s36, v13
    s_cmp_eq_u32 s36, 3
    s_cbranch_scc0 {L}_wait2
    s_mov_b64 exec, 1
    buffer_store_dword v10, v11, s[60:63], s45 offen sc1
    s_mov_b64 exec, 0xff
{L}_poll2:
    buffer_load_dword v9, v8, s[60:63], s46 offen sc1
    s_waitcnt vmcnt(0)
    v_cmp_eq_u32 vcc, 1, v9
    s_cmp_eq_u64 vcc, exec
    s_cbranch_scc1 {L}_seen2
    s_sleep {opt.psleep}
    s_branch {L}_poll2
{L}_seen2:
    ds_write_b32 v12, v10 offset:4
    s_mov_b64 exec, -1""")
    issueB2(); issueB2()
    a(f"    s_branch {L}_go2\n{L}_wait2:")
    issueB2(); issueB2()
    a(f"""{L}_spin2:
    s_sleep 1
    ds_read_b32 v13, v12 offset:4
    s_waitcnt lgkmcnt(0)
    v_readfirstlane_b32 s36, v13
    s_cmp_eq_u32 s36, 1
    s_cbranch_scc0 {L}_spin2
{L}_go2:""")
    stamp(a, 5)
    def issueA2():
        a("    s_mov_b32 m0, s70\n    s_add_u32 s70, s70, 16384")
        for i in range(4): a(f"    buffer_load_dwordx4 v{LA}, s[12:15], s30 offen offset:{i*1024} {opt.a2f} lds")
        a("""    s_add_u32 s30, s30, 16384
    s_cmp_ge_u32 s70, s39
    s_cselect_b32 s70, s35, s70""")
        if opt.xy: a("    v_readlane_b32 s36, v72, s76\n    s_add_u32 s76, s76, 1\n    s_lshl_b32 s36, s36, 14\n    s_add_u32 s30, s36, s68")
        elif not opt.g2sync: a("    s_cmp_ge_u32 s30, s69\n    s_cselect_b32 s30, s68, s30")
        else: a("    s_cmp_eq_u32 s30, s76\n    s_cselect_b32 s30, s77, s30")
    issueA2(); issueA2()
    a("    s_waitcnt vmcnt(4)\n    s_barrier          ; c2")
    issueA2(); issueA2(); issueB2()
    if not opt.xy:
        a("    s_waitcnt vmcnt(12)\n    s_barrier          ; c3")
        issueA2(); issueB2()
        a(f"    s_branch {L}_nochk2\n{L}_chk2:\n{L}_nochk2:")
        k0 = 4
    else:
        for x in zst[:4]: a(x)
        a("    s_waitcnt vmcnt(16)\n    s_barrier          ; c3")
        for x in zst[4:]: a(x)
        issueA2(); issueB2()
        for k, cnt in ((4, 24), (5, 24), (6, 16), (7, 17), (8, 17), (9, 16)):
            a(f"    s_waitcnt vmcnt({cnt})\n    s_barrier          ; c{k}")
            if k == 6: a("    s_mov_b64 exec, 1\n    buffer_store_dword v10, v11, s[60:63], s45 offen offset:32 sc1\n    s_mov_b64 exec, -1")
            if k == 9: a("    buffer_load_dword v9, v8, s[60:63], s46 offen offset:32 sc1")
            issueA2(); issueB2()
        a(f"""    s_waitcnt vmcnt(8)
{L}_chk2:
    v_cmp_eq_u32 vcc, 1, v9
    s_cmp_eq_u64 vcc, -1
    s_cbranch_scc0 {L}_retry2
    s_barrier          ; c10""")
        issueA2(); issueB2()
        k0 = 11
    a(f"    s_mov_b32 s40, {k0}\n{L}_l2:\n    s_waitcnt vmcnt(16)\n    s_barrier")
    issueA2(); issueB2()
    a(f"    s_add_u32 s40, s40, 1\n    s_cmp_lt_u32 s40, {NK2-NS2}\n    s_cbranch_scc1 {L}_l2")
    for k in range(NK2 - NS2, NK2):
        left = max(0, NK2 - 1 - (k + 1))
        if k + 1 < NK2: a(f"    s_waitcnt vmcnt({left*8})")
        a("    s_barrier")
    stamp(a, 6)
    a(f"    s_branch {L}_epi2")
    ACC = 0; F0 = 112; F1 = 156; VA = 200; VB = 204; VBH = 235; SA = 212; ONE = 228
    wad = lambda ni: [213, 214, 215, 217, 218, 219, 221][ni]
    vbh = lambda ni: [235, 236, 237, 238, 239, 211, 232][ni]
    a(f"""{L}_cons:
    {f"s_setprio {opt.cprio}" if opt.cprio else ""}
    v_mov_b32 v240, v2               ; lane
    v_and_b32 v241, 15, v2           ; r
    v_lshrrev_b32 v242, 4, v2        ; kg
    v_lshlrev_b32 v243, 3, v242
    s_and_b32 s34, s33, 1            ; wm
    s_lshr_b32 s35, s33, 1           ; wn
    s_lshl_b32 s36, s34, 13          ; wm*64*128
    v_lshl_add_u32 v244, v241, 7, s36
    v_and_b32 v245, 7, v241          ; r7
    v_bfe_u32 v246, v240, 2, 2       ; rr
    v_lshl_add_u32 v247, v242, 3, v246   ; 8kg+rr
    v_and_b32 v248, 3, v240          ; cc
    v_lshlrev_b32 v248, 3, v248
    v_lshl_add_u32 v249, v247, 8, v248
    v_lshl_add_u32 v247, v247, 9, v248
    v_add_u32 v247, {BR1}, v247
    v_and_b32 v248, 1, v242
    v_lshl_or_b32 v246, v248, 2, v246    ; g
    s_lshl_b32 s37, s34, 2""")
    for mi in range(4):
        a(f"    s_add_u32 s38, s37, {mi}\n    v_xor_b32 v248, s38, v246\n    v_lshl_add_u32 v{VA+mi}, v248, 5, v249")
    a(f"""    s_mul_i32 s37, s35, 7
    s_lshl_b32 s38, s29, 1
    s_add_u32 s37, s37, s38          ; f0 = 2p + 7wn""")
    for ni in range(7):
        a(f"    s_add_u32 s38, s37, {ni}\n    v_xor_b32 v248, s38, v246\n    v_lshl_add_u32 v{VB+ni}, v248, 5, v247")
        a(f"    v_add_u32 v{vbh(ni)}, 0x10000, v{VB+ni}")
    for i in range(0, 112, 2): a(f"    v_mov_b64 {vr(ACC+i,2)}, 0")
    for i in range(4): a(f"    v_mov_b32 v{ONE+i}, 0x3f803f80")
    a(f"""    v_lshrrev_b32 v248, 2, v241
    v_and_b32 v249, 3, v240
    v_cmp_eq_u32 s[70:71], v248, v242
    v_cmp_eq_u32 s[64:65], 1, v249
    v_cmp_eq_u32 s[66:67], 2, v249
    v_cmp_eq_u32 s[68:69], 3, v249
    s_and_b32 s41, s27, 3
    s_add_u32 s41, s41, 1
    s_lshl_b32 s59, s26, 14
    s_xor_b32 s36, s35, 1
    s_lshl_b32 s36, s36, 13
    s_add_u32 s59, s59, s36
    s_lshl_b32 s36, s27, 9
    s_add_u32 s59, s59, s36
    s_lshl_b32 s36, s34, 8
    s_add_u32 s59, s59, s36
    s_mul_i32 s36, s35, 896
    s_add_u32 s36, s36, {TCB}
    v_lshl_add_u32 v233, v241, 3, s36
    s_lshl_b32 s36, s34, 9
    s_add_u32 s36, s36, {TRM}
    v_lshl_add_u32 v247, v241, 3, s36
    v_cmp_eq_u32 vcc, 0, v242
    v_mov_b32 v248, {TRM + 1024}
    v_mov_b32 v249, 128
    v_cndmask_b32 v252, v248, v247, vcc
    v_cndmask_b32 v249, 0, v249, vcc
    v_add_u32 v253, v252, v249
    v_add_u32 v254, v253, v249
    v_add_u32 v255, v254, v249
    v_lshrrev_b32 v246, 1, v242
    v_xor_b32 v246, v246, v245
    v_lshlrev_b32 v246, 4, v246          ; ((kg>>1)^r7)<<4
    v_and_b32 v247, 1, v242
    v_lshl_add_u32 v247, v247, 3, v244   ; m*128 + half*8""")
    for ni in range(7):
        a(f"""    s_add_u32 s38, s37, {ni}
    s_lshr_b32 s39, s38, 2
    s_lshl_b32 s39, s39, 14
    s_and_b32 s38, s38, 3
    s_lshl_b32 s38, s38, 5
    s_or_b32 s{76+ni if ni < 4 else 60+ni-4}, s38, s39""")
    a("    s_waitcnt lgkmcnt(0)")
    srd(a, 72, 4, 256 * 1024, off=PST_OFF)
    if opt.tagx:
        srd(a, 12, 4, 256 * 16384, off=XCH_OFF)
        a(f"""    v_lshlrev_b32 v248, 4, v240
    s_lshl_b32 s46, s2, 14
    s_lshl_b32 s36, s33, 12
    s_add_u32 s46, s46, s36
    s_xor_b32 s45, s46, {PX << 14:#x}""")
        for i in range(4): a(f"    v_mov_b32 v{F1+i}, -1")
        if opt.tagx == 2:
            for q in range(4): a(f"    buffer_store_dwordx4 {vr(F1,4)}, v248, s[12:15], s46 offen offset:{q*1024} sc1")
    stamp(a, 0)
    a("    s_barrier")
    if opt.tagx == 1:
        for q in range(4): a(f"    buffer_store_dwordx4 {vr(F1,4)}, v248, s[12:15], s46 offen offset:{q*1024} sc1")
    stamp(a, 1)
    CT = F0; MTR = F0 + 16
    def g1_tail(mf):
        stamp(a, 13)
        mf = [m for j, m in enumerate(mf) if (j & 3) < 2] + [m for j, m in enumerate(mf) if (j & 3) >= 2]
        fill = [f"    ds_read_b64 {vr(MTR+2*mi,2)}, v{252+mi}" for mi in range(4)]
        fill += [f"    ds_read_b64 {vr(CT+2*ni,2)}, v233 offset:{128*ni}" for ni in range(7)]
        fill += ["\n".join(f"    v_xad_u32 v{wad(ni)}, v246, s{76+ni if ni < 4 else 60+ni-4}, v247" for ni in q) for q in ((0, 1), (2, 3), (4, 5), (6,))]
        fill += [f"""    s_lshl_b32 s36, s55, 8
    s_lshl_b32 s38, s35, 7""", """    s_add_u32 s36, s36, s38
    s_mov_b32 s16, s50""", """    s_mov_b32 s17, s51
    s_mov_b32 s18, 2048""", "    s_mov_b32 s19, 0x00020000"]
        fill += [f"    buffer_load_dwordx2 {vr(232 + 2*ni, 2)}, v243, s[16:19], s36 offen offset:{32*ni}" for ni in range(4)]
        for j, m in enumerate(mf):
            a(m)
            if j < len(fill): a(fill[j])
        def corr(ni, mi):
            c = ACC + 4 * (mi * 7 + ni)
            a(f"    v_mfma_f32_16x16x16_bf16 {vr(c,4)}, {vr(CT+2*ni,2)}, {vr(MTR+2*mi,2)}, {vr(c,4)}")
        def act(ni, mi):
            c = ACC + 4 * (mi * 7 + ni)
            for x in range(4): a(f"    v_max_f32 v{c+x}, 0, v{c+x}")
            a(f"    v_pk_mul_f32 {vr(c,2)}, {vr(c,2)}, {vr(c,2)}\n    v_pk_mul_f32 {vr(c+2,2)}, {vr(c+2,2)}, {vr(c+2,2)}")
            a(f"    v_cvt_pk_bf16_f32 v{c}, v{c}, v{c+1}\n    v_cvt_pk_bf16_f32 v{c+1}, v{c+2}, v{c+3}")
            a(f"    ds_write_b64 v{wad(ni)}, {vr(c,2)} offset:{mi*2048}")
        a("    s_waitcnt lgkmcnt(0)")
        first = [(ni, mi) for ni in range(7) for mi in range(2)]; second = [(ni, mi) for ni in range(7) for mi in range(2, 4)]
        for x in first[:6]: corr(*x)
        a("    s_nop 1")
        rest = first[6:] + second
        for j, x in enumerate(first):
            for y in rest[2*j: 2*j + 2]: corr(*y)
            act(*x)
        stamp(a, 14)
        a("    s_waitcnt lgkmcnt(0)\n    s_barrier                            ; E0")
        stamp(a, 15)
        for x in second: act(*x)
    def rdA1(F, slot, kh):
        return [f"    ds_read_b64_tr_b16 {vr(F + 4*mi + 2*t, 2)}, v{VA+mi} offset:{slot*16384 + kh*8192 + t*1024}" for mi in range(4) for t in range(2)]
    def rdB1(F, slot, kh, ni):
        reg = VB + ni if slot < 2 else vbh(ni)
        return [f"    ds_read_b64_tr_b16 {vr(F + 16 + 4*ni + 2*t, 2)}, v{reg} offset:{(slot&1)*32768 + kh*16384 + t*2048}" for t in range(2)]
    loop_unrolled(a, L + "1", 4, 7, NK1, NS1, ACC, F0, F1, rdA1, rdB1, 40, opt.ga_bar, g1_tail,
                  hookA=lambda u: f"    s_cmp_eq_u32 s40, s41\n    s_cbranch_scc1 {L}_xa{u}\n{L}_xar{u}:",
                  hookB=lambda u: f"    s_cmp_eq_u32 s40, s41\n    s_cbranch_scc1 {L}_xb")
    a("    s_waitcnt lgkmcnt(0)")
    stamp(a, 2)
    a("    s_barrier                            ; E1")
    ACC = 0; G0 = 64; G1_ = 96; VA2 = 128; VB2 = 132; VBI = 232; RSD = 140
    a(f"""    s_lshl_b32 s36, s34, 13
    s_lshl_b32 s37, s54, 12
    s_add_u32 s36, s36, s37
    v_lshl_add_u32 v204, v241, 7, s36
    v_xor_b32 v206, v242, v245
    v_lshl_add_u32 v{VA2}, v206, 4, v204
    v_xor_b32 v{VA2+1}, 64, v{VA2}
    v_xor_b32 v{VA2+2}, 4096, v{VA2}
    v_xor_b32 v{VA2+3}, 4096, v{VA2+1}
    v_bfe_u32 v206, v240, 2, 2           ; rr
    v_lshl_add_u32 v207, v242, 3, v206
    v_lshlrev_b32 v207, 8, v207
    v_and_b32 v208, 3, v240
    v_lshl_add_u32 v207, v208, 3, v207
    v_add_u32 v207, {B2}, v207
    v_and_b32 v208, 1, v242
    v_lshl_or_b32 v206, v208, 2, v206    ; g
    s_lshl_b32 s37, s35, 2""")
    for ni in range(4):
        a(f"    s_add_u32 s38, s37, {ni}\n    v_xor_b32 v208, s38, v206\n    v_lshl_add_u32 v{VB2+ni}, v208, 5, v207")
    for i in range(0, 64, 2): a(f"    v_mov_b64 {vr(ACC+i,2)}, 0")
    stamp(a, 5)
    def g2_tail(mf):
        send = [m for j, m in enumerate(mf) if (j & 3) >= 2]; keep = [m for j, m in enumerate(mf) if (j & 3) < 2]
        for m in send: a(m)
        if opt.tagx:
            a(keep[0]); a("    v_lshlrev_b32 v203, 4, v240\n    s_mov_b32 s36, s46"); a(keep[1]); a("    s_nop 3")
        else:
            srd(a, 12, 4, 256 * 16384, off=XCH_OFF)
            a(keep[0])
            a(f"""    v_lshlrev_b32 v203, 4, v240
    s_lshl_b32 s36, s2, 14
    s_lshl_b32 s37, s33, 12
    s_add_u32 s36, s36, s37
    s_xor_b32 s45, s36, {PX << 14:#x}""")
            a(keep[1])
        for q in range(4):
            for h in range(2):
                c = ACC + 32 + 8 * q + 4 * h
                a(f"    v_cvt_pk_bf16_f32 v{G0 + 4*q + 2*h}, v{c}, v{c+1}\n    v_cvt_pk_bf16_f32 v{G0 + 4*q + 2*h + 1}, v{c+2}, v{c+3}")
            if opt.tagx:
                for d in range(4): a(f"    v_min_u32 v{G0+4*q+d}, -2, v{G0+4*q+d}")
            a(f"    buffer_store_dwordx4 {vr(G0+4*q,4)}, v203, s[12:15], s36 offen offset:{q*1024} sc1")
            for m in keep[2 + 2*q: 4 + 2*q]: a(m)
    def rdA2(F, slot, kh):
        return [f"    ds_read_b128 {vr(F + 4*mi, 4)}, v{VA2 + 2*(mi>>1) + kh} offset:{slot*16384 + (mi&1)*2048}" for mi in range(4)]
    def rdB2(F, slot, kh, ni):
        return [f"    ds_read_b64_tr_b16 {vr(F + 16 + 4*ni + 2*t, 2)}, v{VB2+ni} offset:{slot*16384 + kh*8192 + t*1024}" for t in range(2)]
    loop_unrolled(a, L + "2", 4, 4, NK2, NS2, ACC, G0, G1_, rdA2, rdB2, 40, opt.g2_bar, g2_tail, entry="s29")
    stamp(a, 6)
    srd(a, 60, 4, FLG_SZ, off=FLG_OFF)
    final_addr()
    a(f"""    v_bfe_u32 v206, v240, 2, 2           ; rr
    v_lshl_add_u32 v206, v242, 2, v206
    v_bfe_u32 v207, v206, 1, 2
    s_lshl_b32 s38, s34, 1
    v_xor_b32 v207, s38, v207
    v_lshlrev_b32 v207, 5, v207
    v_lshl_add_u32 v207, v206, 7, v207
    v_and_b32 v208, 3, v240
    v_lshl_add_u32 v207, v208, 3, v207
    s_lshl_b32 s38, s35, 13
    s_add_u32 s38, s38, {RES}
    v_add_u32 v207, s38, v207
    v_xor_b32 v208, 32, v207""")
    for j in range(8): a(f"    ds_read_b64_tr_b16 {vr(RSD+2*j,2)}, v{207 + (j>>2)} offset:{2048*(j&3)}")
    a(f"""    s_lshl_b32 s38, s34, 8
    s_lshl_b32 s39, s54, 7
    s_add_u32 s38, s38, s39
    s_add_u32 s38, s38, {TST}
    v_lshl_add_u32 v206, v241, 2, s38
    ds_read_b32 v192, v206
    ds_read_b32 v194, v206 offset:64""")
    a(f"""    s_lshl_b32 s36, s2, 9
    s_lshl_b32 s37, s33, 7
    s_add_u32 s36, s36, s37
    s_xor_b32 s37, s36, {PX << 9:#x}
    v_mov_b32 v209, 1
    v_mov_b32 v210, 0
    v_lshrrev_b32 v206, 1, v242
    v_xor_b32 v206, v206, v241           ; (kg>>1) ^ r
    s_lshl_b32 s38, s34, 13              ; 32wm*256
    v_lshl_add_u32 v207, v241, 8, s38
    v_and_b32 v208, 1, v242
    v_lshl_add_u32 v207, v208, 3, v207
    s_lshl_b32 s39, s35, 3""")
    for ni in range(4):
        a(f"    s_add_u32 s38, s39, {2*ni}\n    v_xor_b32 v208, s38, v206\n    v_lshl_add_u32 v{VB2+ni}, v208, 4, v207")
    if opt.tagx:
        a("    s_waitcnt vmcnt(4) lgkmcnt(0)")
    else:
        a(f"""    s_mov_b64 exec, 1
    s_waitcnt vmcnt(0)
    buffer_store_dword v209, v210, s[60:63], s36 offen sc1
    buffer_load_dword v211, v210, s[60:63], s37 offen sc1
    s_mov_b64 exec, -1
    s_waitcnt lgkmcnt(0)""")
    for ni in range(4):
        unpack(a, 216 + 4 * ni, VBI + 2 * ni); unpack(a, 218 + 4 * ni, VBI + 2 * ni + 1)
    for j in range(8):
        c = 160 + 4 * j; b = 216 + 4 * (j & 3)
        unpack(a, c, RSD + 2 * j); unpack(a, c + 2, RSD + 2 * j + 1)
        a(f"    v_pk_add_f32 {vr(c,2)}, {vr(c,2)}, {vr(b,2)}\n    v_pk_add_f32 {vr(c+2,2)}, {vr(c+2,2)}, {vr(b+2,2)}")
    if opt.tagx:
        a(f"{L}_poll:")
        for q in range(4): a(f"    buffer_load_dwordx4 {vr(G1_+4*q,4)}, v203, s[12:15], s45 offen offset:{q*1024} sc1")
        a(f"    s_waitcnt vmcnt(0)\n    v_max_u32 v212, v{G1_}, v{G1_+1}")
        for i in range(2, 16, 2): a(f"    v_max3_u32 v212, v212, v{G1_+i}, v{G1_+i+1}")
        a(f"    v_cmp_eq_u32 vcc, -1, v212\n    s_cmp_lg_u64 vcc, 0\n    s_cbranch_scc1 {L}_poll")
        stamp(a, 7)
    else:
        a(f"""    s_mov_b64 exec, 1
{L}_poll:
    s_waitcnt vmcnt(0)
    v_readfirstlane_b32 s38, v211
    s_cmp_eq_u32 s38, 1
    s_cbranch_scc1 {L}_seen
    buffer_load_dword v211, v210, s[60:63], s37 offen sc1
    s_branch {L}_poll
{L}_seen:
    s_mov_b64 exec, -1""")
        stamp(a, 7)
        for q in range(4):
            a(f"    buffer_load_dwordx4 {vr(G1_+4*q,4)}, v203, s[12:15], s45 offen offset:{q*1024} sc1")
    for j in range(8):
        mi, ni = j >> 2, j & 3
        c = ACC + 4 * j; p = G1_ + 2 * j
        if j % 2 == 0 and not opt.tagx: a(f"    s_waitcnt vmcnt({3 - j//2})")
        unpack(a, 212, p); unpack(a, 214, p + 1)
        a(f"""    v_pk_add_f32 {vr(c,2)}, {vr(c,2)}, v[212:213]
    v_pk_add_f32 {vr(c+2,2)}, {vr(c+2,2)}, v[214:215]
    v_pk_fma_f32 {vr(c,2)}, {vr(c,2)}, {vr(192+2*mi,2)}, {vr(160+4*j,2)} op_sel_hi:[1,0,1]
    v_pk_fma_f32 {vr(c+2,2)}, {vr(c+2,2)}, {vr(192+2*mi,2)}, {vr(162+4*j,2)} op_sel_hi:[1,0,1]
    v_cvt_pk_bf16_f32 v{c}, v{c}, v{c+1}
    v_cvt_pk_bf16_f32 v{c+1}, v{c+2}, v{c+3}
    ds_write_b64 v{VB2+ni}, {vr(c,2)} offset:{mi*4096}""")
    a("    s_waitcnt lgkmcnt(0)")
    stamp(a, 8)
    a(f"""{L}_epi2:
    v_mbcnt_lo_u32_b32 v2, -1, 0
    v_mbcnt_hi_u32_b32 v2, -1, v2
    v_lshrrev_b32 v3, 4, v2
    v_and_b32 v5, 15, v2
    v_lshlrev_b32 v6, 11, v3
    v_lshl_add_u32 v6, v5, 4, v6
    s_lshl_b32 s36, s33, 2
    v_add_u32 v3, s36, v3                ; lr (j=0)
    v_xor_b32 v4, v3, v2
    v_and_b32 v4, 15, v4
    v_lshlrev_b32 v4, 4, v4
    v_lshl_add_u32 v3, v3, 8, v4""")
    srd(a, 12, 52, MB4)
    a(f"""    s_barrier                            ; X3
    ds_read_b128 v[16:19], v3
    ds_read_b128 v[20:23], v3 offset:8192
    s_waitcnt lgkmcnt(1)
    buffer_store_dwordx4 v[16:19], v6, s[12:15], s43 offen {opt.outf}
    s_waitcnt lgkmcnt(0)
    buffer_store_dwordx4 v[20:23], v6, s[12:15], s44 offen {opt.outf}""")
    stamp(a, 9)
    if opt.stamps: a("    s_waitcnt vmcnt(0)")
    stamp(a, 10)
    stamp_end(a, kidx, 4, 33)
    a(f"{mega['end'] if mega else L + '_end'}:\n    s_endpgm")
    F0 = 112; F1 = 156
    def extra(F, first, tag):
        a(f"    s_cmp_eq_u32 s35, 0\n    s_cbranch_scc0 {L}_x1{tag}")
        for mi in range(4): a(f"    v_mfma_f32_16x16x32_bf16 {vr(SA+4*mi,4)}, {vr(F+4*mi,4)}, {vr(F+4*mi,4)}, {'0' if first else vr(SA+4*mi,4)}")
        a(f"    s_branch {L}_x2{tag}\n{L}_x1{tag}:")
        for mi in range(4): a(f"    v_mfma_f32_16x16x32_bf16 {vr(SA+4*mi,4)}, {vr(ONE,4)}, {vr(F+4*mi,4)}, {'0' if first else vr(SA+4*mi,4)}")
        a(f"{L}_x2{tag}:")
    for u in range(3):
        a(f"{L}_xa{u}:"); extra(F0, True, f"a{u}"); a(f"    s_branch {L}_xar{u}")
    a(f"{L}_xb:"); extra(F1, False, "b")
    a("    s_nop 7")
    for mi in range(4):
        c = SA + 4 * mi
        a(f"""    v_cndmask_b32 v{c}, v{c}, v{c+1}, s[64:65]
    v_cndmask_b32 v{c}, v{c}, v{c+2}, s[66:67]
    v_cndmask_b32 v{c}, v{c}, v{c+3}, s[68:69]
    v_cndmask_b32 v{c}, 0, v{c}, s[70:71]""")
    for sw in ("v_permlane16_swap_b32", "v_permlane32_swap_b32"):
        for mi in range(4): a(f"    v_mov_b32 v{SA+4*mi+1}, v{SA+4*mi}")
        for mi in range(4): a(f"    {sw} v{SA+4*mi+1}, v{SA+4*mi}")
        for mi in range(4): a(f"    v_add_f32 v{SA+4*mi}, v{SA+4*mi}, v{SA+4*mi+1}")
    a(f"""    v_cmp_eq_u32 vcc, 1, v242
    v_cmp_eq_u32 s[64:65], 2, v242
    v_cmp_eq_u32 s[66:67], 3, v242
    v_cndmask_b32 v{SA}, v{SA}, v{SA+4}, vcc
    v_cndmask_b32 v{SA}, v{SA}, v{SA+8}, s[64:65]
    v_cndmask_b32 v{SA}, v{SA}, v{SA+12}, s[66:67]
    v_lshlrev_b32 v{SA+1}, 2, v240
    v_min_u32 v{SA}, -2, v{SA}
    {"s_waitcnt vmcnt(0)" if opt.tagx else ""}
    buffer_store_dword v{SA}, v{SA+1}, s[72:75], s59 offen sc1
    s_cmp_eq_u32 s40, 2
    s_cbranch_scc1 {L}1_s2
    s_cmp_eq_u32 s40, 3
    s_cbranch_scc1 {L}1_s0
    s_branch {L}1_s1
{L}_retry2:
    buffer_load_dword v9, v8, s[60:63], s46 offen offset:32 sc1
    s_waitcnt vmcnt(0)
    s_branch {L}_chk2
{L}_retry:
    s_sleep 2""")
    gather_ps()
    if mega: gather_cs()
    a(f"    s_waitcnt vmcnt(0)\n    s_branch {L}_chk")
    return (name, 256, 512, 163840), (name, 256, 96)

gen.KGEN["ga"] = gen_ga
gen.KGEN["p2"] = gen_p2
gen.KGEN["c2"] = gen_c2
```

```python
import sys
from asmlib import *
import gen, gen2, gen3
from gen import opt, stamp, stamp_begin, stamp_end, vr, wave_sum, MB4, KVR_OFF, FLG_OFF
from gen3 import XT_OFF, HT_OFF, ST1_OFF, CS_OFF, PST_OFF, unpack, rnd

KVF_OFF = 0x0CC0000
XF_OFF = KVF_OFF + 4
SF_OFF = KVF_OFF + 0x8000
GF_OFF = KVF_OFF + 0x10000
HF_OFF = KVF_OFF + 0x18000
opt.codepf0 = 0
opt.twopass = False
opt.midit = 2
opt.dot2 = False
opt.fixsig = True
opt.xfirst = False
opt.kvpre = False
opt.csdec = True
opt.ntf = 'nt'
opt.ntf2 = 'nt'
opt.kvprio = 0
opt.xearly = False
opt.tlb3 = 0
opt.tlb2 = 0
opt.flagl = True
opt.kvf = 'sc1'
opt.ldf = 'sc1'
opt.early2 = 1
opt.gate = 4
opt.xsleep = 4
opt.w1th = 4

def gen_pc(a, kidx, mega=False):
    name = KN + "_kernel" if mega else "f_kernel"; L = "F"
    MF = "sc1" if mega else ""
    CS = 4160; RO = 4 * CS; WSZ = 21248
    IS = 1040; KT = 4 * WSZ; VT = KT + 17 * IS; XS = KT + 33 * IS + 112; STG = XS + 16384; WRD = STG + 16 * IS
    assert XS % 16 == 0
    kernel_head(a, name)
    a(f"""    s_load_dwordx4 s[4:7], s[0:1], {ARG['k']}      ; k, v
    s_load_dwordx4 s[56:59], s[0:1], {ARG['dbg']}
    s_load_dwordx2 s[42:43], s[0:1], {ARG['q']}
    s_cmp_ge_u32 s2, 256
    s_cbranch_scc1 {L}_end""")
    stamp_begin(a)
    a(f"""    v_readfirstlane_b32 s33, v0
    s_and_b32 s24, s2, 7
    s_lshr_b32 s25, s2, 3
    v_bfe_u32 v5, v0, 4, 4
    v_and_b32 v6, 15, v0
    v_lshlrev_b32 v5, 11, v5
    v_lshl_add_u32 v5, v6, 4, v5
    s_lshl_b32 s62, s24, 5
    s_add_u32 s62, s62, s25
    v_lshrrev_b32 v4, 3, v0
    v_and_b32 v3, 7, v0              ; cg
    v_lshlrev_b32 v16, 15, v4
    v_lshl_add_u32 v16, v3, 4, v16
    s_lshl_b32 s27, s62, 7
    s_add_u32 s27, s27, {KVF_OFF:#x}
    v_add_u32 v16, s27, v16
    v_mov_b64 v[12:13], 0
    v_mov_b64 v[14:15], 0
    s_lshr_b32 s33, s33, 6           ; wave
    s_and_b32 s34, s33, 3            ; w
    s_lshl_b32 s26, s25, 17
    s_lshl_b32 s27, s24, 8
    s_add_u32 s26, s26, s27
    s_mul_i32 s35, s34, {IS}
    s_mov_b32 s14, 0x400000
    s_mov_b32 s15, 0x00020000
    s_mov_b32 s44, 0x8000
    v_cmp_gt_u32 vcc, {40 if mega else 24}, v0
    s_cmp_ge_u32 s33, 4
    s_cselect_b32 s27, {VT}, s44
    s_cselect_b32 s28, 0, {KT + IS - 0x8000}
    s_add_u32 s27, s27, s28
    s_add_u32 m0, s35, s27
    s_cmp_ge_u32 s33, 4
    s_waitcnt lgkmcnt(0)
    s_cselect_b64 s[12:13], s[6:7], s[4:5]
    s_and_saveexec_b64 s[30:31], vcc
    s_cbranch_execz {L}_nocl
    global_store_dwordx4 v16, v[12:15], s[58:59] sc1
{L}_nocl:
    s_mov_b64 exec, s[30:31]
    s_mov_b32 s27, s26""")
    for j in range(4):
        a(f"    buffer_load_dwordx4 v5, s[12:15], s27 offen {opt.ntf} lds")
        if j < 3: a(f"    s_add_u32 m0, m0, {4*IS}\n    s_add_u32 s27, s27, s44")
    a(f"""    s_load_dwordx4 s[8:11], s[0:1], {ARG['shift']}
    s_load_dwordx2 s[60:61], s[0:1], {ARG['ssmD']}
    v_and_b32 v2, 63, v0
    v_and_b32 v4, 7, v4              ; rg
    s_lshl_b32 s62, s62, 2
    s_add_u32 s63, s62, s34
    s_mul_i32 s64, s34, {WSZ}        ; WB
    s_cmp_ge_u32 s33, 4
    s_cbranch_scc1 {L}_help""")
    so = ["0", "s44", "s45", "s46"]
    def tail_addr(rev, off, ldsb):
        a(f"""    {"v_xor_b32 v13, 7, v3" if rev else "v_mov_b32 v13, v3"}
    v_lshlrev_b32 v13, 4, v13
    v_lshl_add_u32 v13, v4, 14, v13
    s_lshl_b32 s47, s24, 19
    s_lshl_b32 s48, s34, 17
    s_add_u32 s47, s47, s48              ; (cb*128+w*32)*4096
    s_lshl_b32 s48, s25, 7""")
        if rev: a(f"    s_sub_u32 s48, {3968 + off}, s48")
        else: a(f"    s_add_u32 s48, s48, {off:#x}")
        a("    s_add_u32 s47, s47, s48")
    def out_store(R, fl):
        a(f"    buffer_store_dwordx4 {vr(R,4)}, v13, s[36:39], s47 offen {fl}\n    s_add_u32 s47, s47, 4096")
    def count_in(word, tag):
        a(f"""    v_mov_b32 v10, {WRD}
    v_mov_b32 v11, 1
    v_mov_b32 v12, 0
    s_mov_b64 exec, 1
    ds_add_rtn_u32 v13, v10, v11 offset:{word}
    s_mov_b64 exec, -1
    s_waitcnt lgkmcnt(0)
    v_readfirstlane_b32 s35, v13
    s_cmp_eq_u32 s35, 3""")
    def spin(word, val, tag, r=13):
        a(f"""{L}_sp{tag}:
    ds_read_b32 v{r}, v10 offset:{word}
    s_waitcnt lgkmcnt(0)
    v_readfirstlane_b32 s35, v{r}
    s_cmp_eq_u32 s35, {val}
    s_cbranch_scc1 {L}_sq{tag}
    s_sleep 1
    s_branch {L}_sp{tag}
{L}_sq{tag}:""")
    def hf_count(tag, word, off):
        a(f"""    v_mov_b32 v12, 1
    v_mov_b32 v14, 0
    s_mov_b64 exec, 1
    ds_add_rtn_u32 v13, v10, v12 offset:{word}
    s_waitcnt lgkmcnt(0)
    v_readfirstlane_b32 s76, v13
    s_cmp_eq_u32 s76, 7
    s_cbranch_scc0 {L}_nohf{tag}
    s_lshl_b32 s76, s62, 5
    s_add_u32 s76, s76, {off:#x}
    buffer_store_dword v12, v14, s[36:39], s76 offen sc1
{L}_nohf{tag}:
    s_mov_b64 exec, -1""")
    TWO = mega and opt.twopass
    def reg_issue():
        a("    buffer_load_dwordx2 v[36:37], v39, s[52:55], 0 offen sc1")
    def reg_check(tag):
        a(f"""    s_getreg_b32 s65, hwreg(HW_REG_XCC_ID)
    s_and_b32 s65, s65, 7
    s_lshl_b32 s65, s65, 3
    s_lshl_b64 s[66:67], 32, s65
{L}_rg{tag}:
    v_sad_u8 v38, v36, 0, 0
    v_sad_u8 v38, v37, 0, v38
    v_cmp_eq_u32 vcc, 32, v38
    s_cmp_eq_u64 vcc, -1
    s_cbranch_scc1 {L}_rk{tag}
    s_sleep 24
    buffer_load_dwordx2 v[36:37], v39, s[52:55], 0 offen sc1
    s_waitcnt vmcnt(0)
    s_branch {L}_rg{tag}
{L}_rk{tag}:
    v_readlane_b32 s68, v36, s24
    v_readlane_b32 s69, v37, s24
    s_cmp_eq_u64 s[68:69], s[66:67]
    s_cselect_b32 s65, 1, 0""")
    def signal_poll(off, tag, poll=True, known=False):
        if not known: a(f"""{L}_md{tag}:
    ds_read_b32 v13, v10 offset:28
    s_waitcnt lgkmcnt(0)
    v_readfirstlane_b32 s65, v13
    s_cmp_eq_u32 s65, 0
    s_cbranch_scc1 {L}_md{tag}
    s_sub_u32 s65, s65, 1""")
        a(f"""    s_lshl_b32 s27, s62, 5
    s_and_b32 s28, s27, 0xfffff000
    s_add_u32 s27, s27, {off:#x}
    s_add_u32 s28, s28, {off:#x}
    v_and_b32 v14, 31, v2
    v_lshlrev_b32 v14, 7, v14
    s_mov_b64 exec, 1
    s_cmp_eq_u32 s65, {1 if opt.flagl else 7}
    s_cbranch_scc1 {L}_sl{tag}
    {"" if (opt.kvf == "sc1" or tag == "x") else "buffer_wbl2 sc1"}
    {"" if (opt.kvf == "sc1" or tag == "x") else "s_waitcnt vmcnt(0)"}
    buffer_store_dword v11, v12, s[36:39], s27 offen sc1
    s_branch {L}_pp{tag}
{L}_sl{tag}:
    buffer_store_dword v11, v12, s[36:39], s27 offen
{L}_pp{tag}:
    s_mov_b64 exec, -1""")
        if not poll:
            a(f"""    s_cmp_lg_u32 s25, 0
    s_cbranch_scc1 {L}_pl{tag}
    s_add_u32 s27, s28, {SF_OFF - XF_OFF:#x}
{L}_sfp:
    buffer_load_dword v15, v14, s[36:39], s27 offen sc1
    s_waitcnt vmcnt(0)
    v_cmp_eq_u32 vcc, 1, v15
    s_cmp_eq_u64 vcc, -1
    s_cbranch_scc0 {L}_sfp
    s_lshl_b32 s27, s24, 12
    s_add_u32 s27, s27, {GF_OFF:#x}
    s_mov_b64 exec, 1
    buffer_store_dword v11, v12, s[36:39], s27 offen sc1
    s_mov_b64 exec, -1""")
        a(f"""{L}_pl{tag}:
    buffer_load_dword v15, v14, s[36:39], s28 offen sc1
    s_waitcnt vmcnt(0)
    v_cmp_eq_u32 vcc, 1, v15
    s_cmp_eq_u64 vcc, -1
    s_cbranch_scc0 {L}_pl{tag}""")
    a(f"""    v_and_b32 v6, 0x1fff, v5
    v_add_u32 v6, s26, v6
    v_subrev_u32 v6, 8192, v6
    s_mov_b32 m0, {KT}
    s_nop 0
    buffer_load_dwordx4 v6, s[12:15], 0 offen {opt.ntf} lds
    s_waitcnt lgkmcnt(0)""")
    KR = 208; VR = 40; WR = 56
    srd(a, 20, 8, 8192)
    a(f"""    s_lshl_b32 s27, s24, 10
    s_lshl_b32 s28, s34, 8
    s_add_u32 s27, s27, s28
    v_lshlrev_b32 v8, 5, v4
    buffer_load_dwordx4 {vr(WR,4)}, v8, s[20:23], s27 offen
    buffer_load_dwordx4 {vr(WR+4,4)}, v8, s[20:23], s27 offen offset:16
    s_lshr_b32 s28, s63, 1
    s_lshl_b32 s28, s28, 2
    s_load_dword s29, s[60:61], s28
    v_mul_u32_u24 v7, {2*IS}, v3
    v_lshl_add_u32 v7, v4, 3, v7
    s_lshl_b32 s27, s34, 6
    s_add_u32 s27, s27, {KT}
    v_add_u32 v7, s27, v7
    v_mov_b32 v10, {WRD}
    v_mov_b32 v16, 0
    v_mov_b32 v17, 0
    v_mov_b32 v18, 0
    v_mov_b32 v19, 0
    ds_write_b128 v10, v[16:19]
    ds_write_b128 v10, v[16:19] offset:16
    ds_write_b128 v10, v[16:19] offset:32
    ds_write_b128 v10, v[16:19] offset:48
    s_add_u32 s49, s64, {RO}""")
    srd(a, 36, 58, 64 << 20); srd(a, 52, 56, 256)
    a("    v_lshlrev_b32 v39, 5, v3")
    tail_addr(True, KVR_OFF, "s49")
    PRE = 1 if opt.kvpre else 0
    if PRE:
        a("    v_and_b32 v34, 31, v2\n    v_lshlrev_b32 v34, 12, v34\n    buffer_load_dword v35, v34, s[36:39], s47 offen")
    WF = 64; KF = 80; VF = 124; OF = 156; PK = 190
    stamp(a, 0)
    a(f"""    s_waitcnt lgkmcnt(0)
    s_barrier
    s_cmp_lg_u32 s33, 0
    s_cbranch_scc1 {L}_noreg
    s_getreg_b32 s65, hwreg(HW_REG_XCC_ID)
    s_and_b32 s65, s65, 7
    s_lshl_b32 s65, s65, 3
    s_lshl_b64 s[66:67], 1, s65
    v_mov_b32 v16, s66
    v_mov_b32 v17, s67
    v_mov_b32 v12, 0
    s_lshl_b32 s30, s24, 5
    s_mov_b64 exec, 1
    s_waitcnt vmcnt({7 + PRE})""")
    stamp(a, 9)
    a(f"""    buffer_atomic_add_x2 v[16:17], v12, s[52:55], s30 offen sc1
    v_mov_b32 v11, 1
    ds_write_b32 v10, v11 offset:44
    s_mov_b64 exec, -1
    s_waitcnt vmcnt({1 + PRE})
    s_branch {L}_kvl
{L}_noreg:
    s_waitcnt vmcnt({PRE})
{L}_kvl:""")
    a("""    s_nop 0
    v_mov_b32 v11, 1
    s_mov_b64 exec, 1
    ds_add_u32 v10, v11 offset:32
    s_mov_b64 exec, -1""")
    spin(32, 8, "k", 12)
    if opt.kvprio: a(f"    s_setprio {opt.kvprio}")
    stamp(a, 1)
    kro = lambda jj: ((1 + jj) >> 2) * IS + ((1 + jj) & 3) * 256
    order = [("k", 0), ("k", 1), ("k", 2)] + [x for j in range(8) for x in (("k", 3 + j), ("v", j))]
    def rd(x):
        if x[0] == "k": a(f"    ds_read_b64 {vr(KR + 2*x[1], 2)}, v7 offset:{kro(x[1])}")
        else: a(f"    ds_read_b64 {vr(VR + 2*x[1], 2)}, v7 offset:{17*IS + (x[1] >> 2)*IS + (x[1] & 3)*256}")
    for x in order[:13]: rd(x)
    for c in range(4):
        for j in range(4):
            src = WR + 2 * c + (j >> 1); d = WF + (c >> 1) * 8 + j * 2 + (c & 1)
            a(f"    v_lshlrev_b32 v{d}, 16, v{src}" if j % 2 == 0 else f"    v_and_b32 v{d}, 0xffff0000, v{src}")
    def unp2(dst, src):
        for p in range(2): unpack(a, dst + 2 * p, src + p)
    a("    s_waitcnt lgkmcnt(8)")
    for x in order[13:]: rd(x)
    for r in range(3): unp2(KF + 4 * r, KR + 2 * r)
    for j in range(8):
        if j: a(f"    s_waitcnt lgkmcnt({14 - 2*j})")
        unp2(KF + 4 * (3 + j), KR + 6 + 2 * j); unp2(VF + 4 * j, VR + 2 * j)
        for p in range(2):
            o = OF + 4 * j + 2 * p
            k = lambda r: vr(KF + 4 * r + 2 * p, 2)
            w = lambda t: vr(WF + p * 8 + 2 * t, 2)
            a(f"    v_pk_mul_f32 {vr(o,2)}, {k(j)}, {w(3)}")
            a(f"    v_pk_fma_f32 {vr(o,2)}, {k(j+1)}, {w(2)}, {vr(o,2)}")
            a(f"    v_pk_fma_f32 {vr(o,2)}, {k(j+2)}, {w(1)}, {vr(o,2)}")
            a(f"    v_pk_fma_f32 {vr(o,2)}, {k(j+3)}, {w(0)}, {vr(o,2)}")
            a(f"    v_pk_mul_f32 {vr(o,2)}, {vr(o,2)}, {vr(VF + 4*j + 2*p, 2)}")
    for c in range(4):
        for d in range(4):
            a(f"    v_cvt_pk_bf16_f32 v{PK+4*c+d}, v{OF + 4*(7-2*d) + c}, v{OF + 4*(6-2*d) + c}")
        out_store(PK + 4 * c, opt.kvf)
    a(f"    s_cmp_lg_u32 s33, 0\n    s_cbranch_scc1 {L}_nr1")
    reg_issue()
    a(f"{L}_nr1:")
    stamp(a, 2)
    ACC = 80; F0 = 112; F1 = 176
    a(f"""    v_lshlrev_b32 v40, 4, v2         ; lane*16
    v_add_u32 v4, s64, v40
    v_mov_b32 v60, 0
    v_mov_b32 v61, 0
    v_mov_b32 v62, 0
    v_mov_b32 v63, 0
    s_mov_b64 exec, 0x3fffffff
    ds_write_b128 v4, v[60:63] offset:{RO + 4096}
    s_mov_b64 exec, -1
    v_and_b32 v5, 15, v2             ; b / a
    v_lshrrev_b32 v6, 4, v2          ; kg
    v_add_u32 v7, 1, v5
    v_and_b32 v8, 3, v7
    v_mul_u32_u24 v8, {CS}, v8
    v_and_b32 v7, 28, v7
    v_lshl_add_u32 v8, v7, 1, v8
    v_lshl_add_u32 v8, v6, 4, v8
    v_add_u32 v8, s64, v8            ; vAT
    v_lshlrev_b32 v9, 5, v5
    v_lshl_add_u32 v41, v6, 3, v9    ; 32a + 8g
    v_sub_u32 v9, {RO + 480}, v9
    v_lshl_add_u32 v9, v6, 4, v9
    v_add_u32 v9, s64, v9            ; vBT
    s_lshl_b32 s26, s63, 12
    s_add_u32 m0, s64, {RO}""")
    for i in range(0, 32, 2): a(f"    v_mov_b64 {vr(ACC+i,2)}, 0")
    a(f"""    v_sub_u32 v32, {RO + 504}, v41
    v_add_u32 v32, s64, v32
    v_lshlrev_b32 v33, 1, v41
    v_add_u32 v33, {STG}, v33
    s_lshl_b32 s35, s34, 12
    s_add_u32 s35, s35, {XS}
    v_add_u32 v34, s35, v41
    s_lshl_b32 s75, s29, 16
    s_and_b32 s27, s29, 0xffff0000
    s_bitcmp1_b32 s63, 0
    s_cselect_b32 s75, s27, s75          ; D as f32
    s_and_b32 s27, s63, 3
    s_bfe_u32 s28, s63, 0x10003
    s_lshl_b32 s28, s28, 2
    s_or_b32 s27, s27, s28               ; g(d)
    v_and_b32 v42, 7, v5
    v_xor_b32 v42, s27, v42
    v_lshlrev_b32 v42, 5, v42
    v_lshrrev_b32 v12, 3, v5
    v_lshl_add_u32 v42, v12, 18, v42
    v_and_b32 v12, 1, v6
    v_lshl_add_u32 v42, v12, 19, v42
    v_lshrrev_b32 v12, 1, v6
    v_lshl_add_u32 v42, v12, 4, v42
    s_lshl_b32 s34, s63, 8
    s_add_u32 s34, s34, {HT_OFF:#x}""")
    if opt.fixsig:
        a(f"""    v_mov_b32 v12, 0
    s_waitcnt vmcnt(0)
    s_mov_b64 exec, 1
    ds_add_u32 v10, v11 offset:0
    s_mov_b64 exec, -1""")
        stamp(a, 3)
        a(f"    s_cmp_lg_u32 s33, 0\n    s_cbranch_scc1 {L}_w1")
        reg_check("a")
        a(f"""    s_add_u32 s65, s65, 1
    v_mov_b32 v38, s65
    ds_write_b32 v10, v38 offset:28
    s_sub_u32 s65, s65, 1""")
        spin(0, 4, "d")
        signal_poll(KVF_OFF, "a", known=True)
        a(f"""    ds_write_b32 v10, v11 offset:4
    s_branch {L}_g1
{L}_w1:""")
    else:
        a(f"    s_waitcnt vmcnt(0)\n    s_cmp_lg_u32 s33, 0\n    s_cbranch_scc1 {L}_nr2")
        reg_check("a")
        a(f"""    s_add_u32 s65, s65, 1
    v_mov_b32 v38, s65
    ds_write_b32 v10, v38 offset:28
{L}_nr2:""")
        stamp(a, 3)
        count_in(0, "a")
        a(f"    s_cbranch_scc0 {L}_w1")
        signal_poll(KVF_OFF, "a")
        a(f"""    ds_write_b32 v10, v11 offset:4
    s_branch {L}_g1
{L}_w1:""")
    spin(4, 1, "a")
    a(f"{L}_g1:")
    stamp(a, 4)
    for i in range(4): a(f"    buffer_load_dwordx4 v40, s[36:39], s26 offen offset:{1024*i} {opt.ldf} lds")
    spin(8, 4, "b")
    a("    s_waitcnt vmcnt(0)")
    stamp(a, 5)
    def reads(F, woff, nu=8):
        r = []
        for u in range(nu):
            r.append(f"    ds_read_b128 {vr(F+32+4*u,4)}, v9 offset:{3584 - 512*u + woff}")
            r.append(f"    ds_read_b64 {vr(F+4*u,2)}, v8 offset:{512*u + woff}")
            r.append(f"    ds_read_b64 {vr(F+4*u+2,2)}, v8 offset:{512*u + 8 + woff}")
        return r
    def mf(F, lo=0, hi=7):
        return [f"    v_mfma_f32_16x16x32_bf16 {vr(ACC+4*(u+v),4)}, {vr(F+4*u,4)}, {vr(F+32+4*v,4)}, {vr(ACC+4*(u+v),4)}" for u in range(8) for v in range(8 - u) if lo <= u + v <= hi]
    def weave(m, f):
        i = 0
        for x in m:
            a(x)
            if i < len(f): a(f[i]); i += 1
        for x in f[i:]: a(x)
    def epi(ns, KV, XR_, MT, RTB, OUT):
        for j, n in enumerate(ns):
            c = ACC + 4 * n; k = KV + 2 * j; x = XR_ + 2 * j; o = OUT + 2 * j
            lg = 4 * (len(ns) - 1 - j)
            if lg <= 12: a(f"    s_waitcnt lgkmcnt({lg})")
            elif j == 0: a("    s_waitcnt lgkmcnt(15)")
            a(f"""    v_and_b32 v12, 0xffff0000, v{k+1}
    v_lshlrev_b32 v13, 16, v{k+1}
    v_and_b32 v14, 0xffff0000, v{k}
    v_lshlrev_b32 v15, 16, v{k}
    v_fmac_f32 v{c}, s75, v12
    v_fmac_f32 v{c+1}, s75, v13
    v_fmac_f32 v{c+2}, s75, v14
    v_fmac_f32 v{c+3}, s75, v15
    v_lshlrev_b32 v12, 16, v{x}
    v_and_b32 v13, 0xffff0000, v{x}
    v_lshlrev_b32 v14, 16, v{x+1}
    v_and_b32 v15, 0xffff0000, v{x+1}
    v_pk_mul_f32 {vr(c,2)}, {vr(c,2)}, {vr(RTB+4*j,2)}
    v_pk_mul_f32 {vr(c+2,2)}, {vr(c+2,2)}, {vr(RTB+4*j+2,2)}
    v_pk_add_f32 {vr(MT+4*j,2)}, v[12:13], {vr(MT+4*j,2)} neg_lo:[0,1] neg_hi:[0,1]
    v_pk_add_f32 {vr(MT+4*j+2,2)}, v[14:15], {vr(MT+4*j+2,2)} neg_lo:[0,1] neg_hi:[0,1]
    v_pk_fma_f32 v[12:13], {vr(MT+4*j,2)}, {vr(c,2)}, v[12:13]
    v_pk_fma_f32 v[14:15], {vr(MT+4*j+2,2)}, {vr(c+2,2)}, v[14:15]
    v_cvt_pk_bf16_f32 v{o}, v12, v13
    v_cvt_pk_bf16_f32 v{o+1}, v14, v15""")
            if j & 1:
                a(f"""    s_nop 0
    v_permlane16_swap_b32 v{o-2}, v{o}
    v_permlane16_swap_b32 v{o-1}, v{o+1}
    buffer_store_dwordx4 {vr(o-2,4)}, v42, s[36:39], s34 offen {MF or opt.htf}
    s_add_u32 s34, s34, 0x100000""")
    def epi_reads(ns, KV, XR_, MT, RTB):
        r = []
        for j, n in enumerate(ns):
            r += [f"    ds_read_b64 {vr(KV+2*j,2)}, v32 offset:{512*(7-n)}", f"    ds_read_b64 {vr(XR_+2*j,2)}, v34 offset:{512*n}",
                  f"    ds_read_b128 {vr(MT+4*j,4)}, v33 offset:{1024*n}", f"    ds_read_b128 {vr(RTB+4*j,4)}, v33 offset:{8192 + 1024*n}"]
        return r
    def tables_ready(tag):
        a(f"""    s_branch {L}_last{tag}
{L}_again{tag}:
    s_sleep 1
    ds_read_b32 v35, v10 offset:20
    s_waitcnt lgkmcnt(0)
{L}_last{tag}:
    v_readfirstlane_b32 s76, v35
    s_cmp_eq_u32 s76, 4
    s_cbranch_scc0 {L}_again{tag}""")
    step = ["    v_add_u32 v8, 128, v8", "    v_add_u32 v9, 128, v9", "    s_add_u32 s35, s35, 1", "    s_cmp_eq_u32 s35, 4"]
    if not TWO:
        for l in reads(F0, 0): a(l)
        a(f"    s_mov_b32 s35, 0\n{L}_loop:\n    s_waitcnt lgkmcnt(0)")
        weave(mf(F0), reads(F1, 64) + ["    ds_read_b32 v35, v10 offset:20"] + step)
        a(f"    s_waitcnt lgkmcnt(0)\n    s_cbranch_scc1 {L}_fin")
        weave(mf(F1), reads(F0, 0))
        a(f"    s_branch {L}_loop\n{L}_fin:")
        tables_ready("a")
        weave(mf(F1), ["    s_nop 0"] * 2 + epi_reads(range(8), F0, 16, F0 + 16, 44))
        a("    s_nop 7")
        stamp(a, 6)
        epi(range(8), F0, 16, F0 + 16, 44, 224)
    else:
        for l in reads(F0, 0, 4): a(l)
        a(f"    s_mov_b32 s35, 0\n{L}_loop1:\n    s_waitcnt lgkmcnt(0)")
        weave(mf(F0, 0, 3), reads(F1, 64, 4) + step)
        a(f"    s_waitcnt lgkmcnt(0)\n    s_cbranch_scc1 {L}_fin1")
        weave(mf(F1, 0, 3), reads(F0, 0, 4))
        a(f"    s_branch {L}_loop1\n{L}_fin1:\n    v_subrev_u32 v8, 512, v8\n    v_subrev_u32 v9, 512, v9\n    s_mov_b32 s35, 0")
        weave(mf(F1, 0, 3), reads(F0, 0))
        a(f"{L}_loop2:\n    s_waitcnt lgkmcnt(0)")
        weave(mf(F0, 4, 7), reads(F1, 64) + ["    ds_read_b32 v35, v10 offset:20", step[0] + "\n" + step[1], step[2] + "\n" + step[3]])
        a(f"    s_waitcnt lgkmcnt(0)\n    s_cbranch_scc1 {L}_fin2")
        weave(mf(F1, 4, 7), reads(F0, 0))
        a(f"""    s_cmp_eq_u32 s35, {opt.midit}
    s_cbranch_scc1 {L}_mid
    s_cmp_eq_u32 s35, {opt.midit + 1}
    s_cbranch_scc0 {L}_loop2
    s_waitcnt vmcnt(0) lgkmcnt(0)""")
        hf_count("c1", 52, HF_OFF)
        a(f"    s_branch {L}_loop2\n{L}_mid:")
        tables_ready("m")
        stamp(a, 10)
        a("    s_waitcnt lgkmcnt(0)")
        for l in epi_reads(range(4), 24, 16, 44, 60): a(l)
        epi(range(4), 24, 16, 44, 60, 240)
        a(f"    s_branch {L}_loop2\n{L}_fin2:")
        if opt.midit == 3:
            pass
        weave(mf(F1, 4, 7), epi_reads(range(4, 8), 24, 16, 44, 60))
        a("    s_nop 7")
        stamp(a, 6)
        epi(range(4, 8), 24, 16, 44, 60, 240)
    stamp(a, 7)
    a(f"    s_branch {L}_done")
    FD = 16; TO = 52; XT_ = 80; XR = 96; XF = 112; PKX = 144
    a(f"""{L}_help:
    v_lshlrev_b32 v6, 4, v2          ; lane*16
    s_lshl_b32 s27, s25, 6
    s_lshl_b32 s28, s24, 3
    s_add_u32 s27, s27, s28
    s_lshl_b32 s28, s34, 1
    s_add_u32 s27, s27, s28
    s_lshl_b32 s28, s27, 11""")
    srd(a, 16, 42, MB4); srd(a, 36, 58, 64 << 20)
    if opt.codepf0:
        a(f"""    s_cmp_lg_u32 s25, {opt.codepf0}
    s_cbranch_scc1 {L}_nc0
    s_getpc_b64 s[66:67]
{L}_pc0:
    s_sub_u32 s66, s66, {L}_pc0 - {name}
    s_subb_u32 s67, s67, 0
    v_and_b32 v13, 255, v0
    v_lshlrev_b32 v13, 7, v13
    v_min_u32 v13, TEXT_END - {name} - 4, v13
    global_load_dword v199, v13, s[66:67]
{L}_nc0:""")
    for i in range(4): a(f"    buffer_load_dwordx4 {vr(XR+4*i,4)}, v6, s[16:19], s28 offen offset:{1024*i}")
    a("    s_waitcnt lgkmcnt(0)")
    srd(a, 12, 10, MB4)
    a(f"""    v_add_u32 v5, s26, v5            ; x tile
    s_mov_b32 s45, 0x10000
    s_mov_b32 s46, 0x18000
    s_lshl_b32 s26, s63, 12
    s_load_dwordx2 s[10:11], s[0:1], {ARG['w1']}
    s_lshl_b32 s49, s34, 12
    s_add_u32 s49, s49, {XS}
    s_mov_b32 s70, 0x05040100
    s_mov_b32 s71, 0x07060302
    s_mov_b32 s51, 0x3a800000
    s_mov_b32 s50, 0x3727c5ac
    s_lshl_b32 s27, s27, 2
    s_add_u32 s72, s27, {ST1_OFF:#x}
    s_add_u32 s73, s72, 8192
    v_add_u32 v7, s64, v6
    v_mov_b32 v60, 0
    v_mov_b32 v61, 0
    v_mov_b32 v62, 0
    v_mov_b32 v63, 0
    v_mul_u32_u24 v39, {2*IS}, v3
    v_lshl_add_u32 v39, v4, 3, v39
    s_lshl_b32 s27, s34, 6
    s_add_u32 s27, s27, {STG}
    v_add_u32 v39, s27, v39""")
    a("    s_waitcnt lgkmcnt(0)\n    s_barrier")
    stamp(a, 0)
    if opt.tlb3:
        sh = opt.tlb3
        a(f"""    s_load_dwordx2 s[74:75], s[0:1], {ARG['w2']}
    s_load_dwordx2 s[76:77], s[0:1], {ARG['out']}
    s_lshl_b32 s78, s25, 2
    s_add_u32 s78, s78, s34
    s_lshl_b32 s78, s78, {sh}
    s_waitcnt lgkmcnt(0)""")
        for r, n in (("s[10:11]", 1024 * 7168), ("s[74:75]", 3584 * 2048), ("s[76:77]", MB4), ("s[58:59]", 0x2900000)):
            for j in range((n + (128 << sh) - 1) // (128 << sh)):
                a(f"    s_add_u32 s30, s78, {j * (128 << sh):#x}\n    s_min_u32 s30, s30, {n - 4:#x}\n    s_load_dword s79, {r}, s30")
    if opt.tlb2:
        G = opt.tlb2
        a(f"""    s_cmp_lg_u32 s25, 1
    s_cbranch_scc1 {L}_notlb
    s_load_dwordx2 s[74:75], s[0:1], {ARG['w2']}
    s_load_dwordx2 s[76:77], s[0:1], {ARG['out']}
    s_waitcnt lgkmcnt(0)""")
        regs = [("s[10:11]", 1024 * 7168), ("s[74:75]", 3584 * 2048), ("s[76:77]", MB4), ("s[58:59]", 0x2900000)]
        lst = [(r, o) for r, n in regs for o in range(0, n, G)]
        for w in range(4):
            a(f"    s_cmp_lg_u32 s34, {w}\n    s_cbranch_scc1 {L}_tl{w}")
            for j, (r, o) in enumerate(lst[w::4]):
                a(f"    s_mov_b32 s78, {o:#x}\n    s_load_dword s79, {r}, s78")
                if j % 14 == 13: a("    s_waitcnt lgkmcnt(0)")
            a(f"{L}_tl{w}:")
        a(f"{L}_notlb:")
    S = [180, 181]; T = [182, 183]; M = [184, 186]; PS = [188, 190]
    a(f"""    v_mov_b32 v10, {WRD}
    v_mov_b32 v11, 1
    s_waitcnt vmcnt(4)
    s_mov_b64 exec, 1
    ds_add_u32 v10, v11 offset:32
    s_mov_b64 exec, -1""")
    a(f"    s_waitcnt vmcnt({opt.early2 - 1})\n    s_add_u32 m0, s64, 32\n    s_nop 0")
    for i in range(4): a(f"    buffer_load_dwordx4 v6, s[12:15], s26 offen offset:{1024*i} {opt.ntf2} lds")
    def xtile():
        a(f"    s_mul_i32 s35, s34, {IS}")
        for j in range(4): a(f"    s_add_u32 m0, s35, {STG + 4*j*IS}\n    s_nop 0\n    buffer_load_dwordx4 v5, s[16:19], {so[j]} offen lds")
    if opt.xearly: xtile()
    a(f"    s_waitcnt vmcnt({8 if opt.xearly else 4})")
    stamp(a, 1)
    if opt.dot2:
        S = [180, 181, 182, 183]; T = [184, 185, 186, 187]; M = [188, 189]
        a("    s_mov_b32 s74, 0x3f803f80")
        for i in range(8):
            for rho in range(2):
                x = XR + 8 * rho + i
                a(f"    v_dot2_f32_bf16 v{S[rho]}, v{x}, s74, {'0' if i == 0 else 'v%d' % S[rho]}")
                a(f"    v_dot2_f32_bf16 v{S[2+rho]}, v{x}, v{x}, {'0' if i == 0 else 'v%d' % S[2+rho]}")
        a("    s_nop 1")
        wave_sum(a, S, T)
        for rho in range(2): a(f"    v_mul_f32 v{M[rho]}, s51, v{S[rho]}")
        for rho in range(2): a(f"    v_fma_f32 v{S[rho]}, -v{M[rho]}, v{S[rho]}, v{S[2+rho]}")
        for rho in range(2): a(f"    v_max_f32 v{S[rho]}, 0, v{S[rho]}")
    else:
        for rho in range(2):
            for i in range(8): unpack(a, XF + 16 * rho + 2 * i, XR + 8 * rho + i)
        src = lambda rho, i: XF + 16 * rho + 2 * i
        for rho in range(2): a(f"    v_pk_add_f32 {vr(PS[rho],2)}, {vr(src(rho,0),2)}, {vr(src(rho,1),2)}")
        for i in range(2, 8):
            for rho in range(2): a(f"    v_pk_add_f32 {vr(PS[rho],2)}, {vr(PS[rho],2)}, {vr(src(rho,i),2)}")
        for rho in range(2): a(f"    v_add_f32 v{S[rho]}, v{PS[rho]}, v{PS[rho]+1}")
        wave_sum(a, S, T)
        for rho in range(2): a(f"    v_mul_f32 v{M[rho]}, s51, v{S[rho]}")
        for i in range(8):
            for rho in range(2):
                a(f"    v_pk_add_f32 {vr(src(rho,i),2)}, {vr(src(rho,i),2)}, {vr(M[rho],2)} op_sel_hi:[1,0] neg_lo:[0,1] neg_hi:[0,1]")
        for rho in range(2): a(f"    v_pk_mul_f32 {vr(PS[rho],2)}, {vr(src(rho,0),2)}, {vr(src(rho,0),2)}")
        for i in range(1, 8):
            for rho in range(2): a(f"    v_pk_fma_f32 {vr(PS[rho],2)}, {vr(src(rho,i),2)}, {vr(src(rho,i),2)}, {vr(PS[rho],2)}")
        for rho in range(2): a(f"    v_add_f32 v{S[rho]}, v{PS[rho]}, v{PS[rho]+1}")
        wave_sum(a, S, T)
    for rho in range(2):
        a(f"    v_mov_b32 v{192+rho}, v{M[rho]}"); rnd(a, 192 + rho)
        a(f"    v_mul_f32 v{194+rho}, s51, v{S[rho]}"); rnd(a, 194 + rho); a(f"    v_add_f32 v{194+rho}, s50, v{194+rho}"); rnd(a, 194 + rho)
    a("    v_sqrt_f32 v194, v194\n    v_sqrt_f32 v195, v195\n    s_nop 0")
    for rho in range(2): rnd(a, 194 + rho)
    a(f"""    v_rcp_f32 v194, v194
    v_rcp_f32 v195, v195
    v_mov_b32 v12, 0
    s_mov_b64 exec, 1
    buffer_store_dwordx2 v[192:193], v12, s[36:39], s72 offen sc1
    buffer_store_dwordx2 v[194:195], v12, s[36:39], s73 offen sc1
    s_mov_b64 exec, -1""")
    if not opt.xearly: xtile()
    stamp(a, 2)
    def copies(first):
        a(f"    s_waitcnt vmcnt({first})")
        for i in range(4):
            a(f"    ds_read_b128 {vr(FD+8*i,4)}, v7 offset:{32 + 1024*i}\n    ds_read_b64 {vr(FD+8*i+4,2)}, v7 offset:{48 + 1024*i}")
        for i in range(4):
            D = FD + 8 * i; t = 64 + 12 * (i & 1) + 132
            a(f"    s_waitcnt lgkmcnt({6 - 2*i})" if i == 0 else f"    s_waitcnt lgkmcnt({min(15, 6 - 2*i + 3*i + (8 if i else 0))})")
            for k in range(4): a(f"    v_alignbit_b32 v{t+k}, v{D+k+1}, v{D+k}, 16")
            a(f"    ds_write_b128 v7, {vr(t,4)} offset:{CS + 32 + 1024*i}")
            for k in range(4): a(f"    v_mov_b32 v{t+4+k}, v{D+k+1}")
            a(f"    ds_write_b128 v7, {vr(t+4,4)} offset:{2*CS + 32 + 1024*i}")
            for k in range(4): a(f"    v_alignbit_b32 v{t+8+k}, v{D+k+2}, v{D+k+1}, 16")
            a(f"    ds_write_b128 v7, {vr(t+8,4)} offset:{3*CS + 32 + 1024*i}")
            if i == 0:
                a(f"""    v_mov_b32 v68, 0
    v_mov_b32 v69, 0
    v_mov_b32 v70, 0
    v_lshlrev_b32 v71, 16, v{D}
    v_mov_b32 v72, 0
    v_mov_b32 v73, 0
    v_mov_b32 v74, 0
    v_mov_b32 v75, v{D}
    v_mov_b32 v76, 0
    v_mov_b32 v77, 0
    v_mov_b32 v78, v71
    v_mov_b32 v79, v{t}
    s_mov_b64 exec, 1
    ds_write_b128 v7, v[60:63]
    ds_write_b128 v7, v[60:63] offset:16
    ds_write_b128 v7, v[60:63] offset:{CS}
    ds_write_b128 v7, v[68:71] offset:{CS+16}
    ds_write_b128 v7, v[60:63] offset:{2*CS}
    ds_write_b128 v7, v[72:75] offset:{2*CS+16}
    ds_write_b128 v7, v[60:63] offset:{3*CS}
    ds_write_b128 v7, v[76:79] offset:{3*CS+16}
    s_mov_b64 exec, -1""")
        a("""    s_waitcnt lgkmcnt(0)
    s_mov_b64 exec, 1
    ds_add_u32 v10, v11 offset:8
    s_mov_b64 exec, -1""")
    a(f"    v_mov_b32 v10, {WRD}\n    v_mov_b32 v11, 1")
    if not opt.xfirst:
        copies(6)
    a(f"    s_waitcnt vmcnt({0 if opt.xearly else 4})")
    count_in(36, "s")
    a(f"    s_cbranch_scc0 {L}_nsf")
    spin(44, 1, "c")
    a(f"""    s_lshl_b32 s27, s62, 5
    s_add_u32 s27, s27, {SF_OFF:#x}
    s_mov_b64 exec, 1
    buffer_store_dword v11, v12, s[36:39], s27 offen sc1
    s_mov_b64 exec, -1
    s_waitcnt vmcnt(1)
    s_branch {L}_nsg
{L}_nsf:
    s_waitcnt vmcnt(0)
{L}_nsg:
    s_mov_b64 exec, 1
    ds_add_u32 v10, v11 offset:40
    s_mov_b64 exec, -1""")
    stamp(a, 7)
    spin(40, 4, "t", 12)
    for j in range(8): a(f"    ds_read_b64 {vr(XT_+2*j,2)}, v39 offset:{(j >> 2)*IS + (j & 3)*256}")
    tail_addr(False, XT_OFF, "s49")
    a("    s_waitcnt lgkmcnt(0)")
    for c in range(4):
        for d in range(4):
            a(f"    v_perm_b32 v{PKX+4*c+d}, v{XT_ + 2*(2*d+1) + (c>>1)}, v{XT_ + 2*(2*d) + (c>>1)}, s{70 + (c&1)}")
        out_store(PKX + 4 * c, 'sc1')
    if opt.xfirst: copies(4)
    stamp(a, 9)
    a("    s_waitcnt vmcnt(0)")
    stamp(a, 10)
    count_in(12, "x")
    a(f"    s_cbranch_scc0 {L}_w2")
    signal_poll(XF_OFF, "x", poll=False)
    if opt.stamps: a("    s_memtime s[74:75]\n    s_waitcnt lgkmcnt(0)\n    s_sub_u32 s74, s74, s80\n    v_mov_b32 v20, s74\n    ds_write_b32 v10, v20 offset:60")
    a(f"""    ds_write_b32 v10, v11 offset:16
    s_mov_b32 m0, s49
    s_add_u32 s26, s26, {XT_OFF:#x}""")
    for i in range(4): a(f"    buffer_load_dwordx4 v6, s[36:39], s26 offen offset:{1024*i} {opt.ldf} lds")
    a(f"""    v_lshlrev_b32 v14, 12, v3
    s_mov_b32 s28, {GF_OFF:#x}
{L}_p3:
    buffer_load_dword v15, v14, s[36:39], s28 offen sc1
    s_waitcnt vmcnt(0)
    v_cmp_eq_u32 vcc, 1, v15
    s_cmp_eq_u64 vcc, -1
    s_cbranch_scc1 {L}_p3e
    s_sleep {opt.xsleep}
    s_branch {L}_p3
{L}_p3e:
    ds_write_b32 v10, v11 offset:24
    s_branch {L}_g2
{L}_w2:""")
    spin(16, 1, "x")
    a(f"    s_mov_b32 m0, s49\n    s_add_u32 s26, s26, {XT_OFF:#x}")
    for i in range(4): a(f"    buffer_load_dwordx4 v6, s[36:39], s26 offen offset:{1024*i} {opt.ldf} lds")
    spin(24, 1, "y")
    a(f"{L}_g2:")
    stamp(a, 4)
    if opt.stamps: a("    ds_read_b32 v20, v10 offset:60\n    s_waitcnt lgkmcnt(0)\n    v_readfirstlane_b32 s74, v20\n    s_nop 1\n    v_writelane_b32 v250, s74, 11")
    a(f"""    s_lshl_b32 s30, s34, 12
    s_add_u32 m0, s30, {STG}
    s_add_u32 s30, s30, {ST1_OFF:#x}""")
    for i in range(4): a(f"    buffer_load_dwordx4 v6, s[36:39], s30 offen offset:{1024*i} sc1 lds")
    a(f"""    s_lshl_b32 s47, s2, 10
    s_lshl_b32 s48, s34, 8
    s_add_u32 s47, s47, s48
    s_add_u32 s47, s47, {PST_OFF:#x}
    v_lshlrev_b32 v14, 2, v2
    v_mov_b32 v15, -1
    buffer_store_dword v15, v14, s[36:39], s47 offen {MF}
    s_mul_i32 s47, s2, 560
    s_mul_i32 s48, s34, 140
    s_add_u32 s47, s47, s48
    s_add_u32 s47, s47, {FLG_OFF:#x}
    v_min_u32 v14, 34, v2
    v_lshlrev_b32 v14, 2, v14
    buffer_store_dword v12, v14, s[36:39], s47 offen {MF}
    s_and_b32 s25, s2, 15            ; k slice
    s_lshr_b32 s26, s2, 4
    s_mul_i32 s27, s25, {64*7168}
    s_lshl_b32 s28, s26, 9
    s_lshl_b32 s29, s34, 7
    s_add_u32 s28, s28, s29
    s_add_u32 s27, s27, s28
    v_mul_u32_u24 v5, 7168, v4
    v_lshl_add_u32 v5, v3, 4, v5
    s_mul_i32 s30, s25, {3584*4}
    s_lshl_b32 s28, s28, 1
    s_add_u32 s30, s30, s28
    s_add_u32 s30, s30, {CS_OFF:#x}
    s_cmp_ge_u32 s2, 224
    s_cselect_b32 s27, 0x80000000, s27
    s_cselect_b32 s30, 0x80000000, s30
    s_waitcnt lgkmcnt(0)""")
    DEC = mega and opt.csdec
    if DEC: a("    v_lshlrev_b32 v14, 2, v2\n    buffer_store_dword v15, v14, s[36:39], s30 offen sc1")
    srd(a, 12, 10, 1024 * 7168)
    W = 16; WF = 48
    ld = lambda i: a(f"    buffer_load_dwordx4 {vr(W+4*i,4)}, v5, s[12:15], s27 offen\n    s_add_u32 s27, s27, {8*7168}")
    TH = opt.w1th
    for i in range(TH): ld(i)
    a(f"""    s_waitcnt vmcnt({(3 if DEC else 2) + TH})
    s_mov_b64 exec, 1
    ds_add_u32 v10, v11 offset:20
    s_mov_b64 exec, -1""")
    stamp(a, 5)
    if DEC:
        assert TH == 8
        a("    s_waitcnt vmcnt(8)")
        hf_count("h", 48, HF_OFF + (0x8000 if TWO else 0))
        if TWO: hf_count("h1", 52, HF_OFF)
    a(f"    s_cmp_ge_u32 s2, 224\n    s_cbranch_scc1 {L}_code")
    for i in range(8):
        a(f"    s_waitcnt vmcnt({min(TH, 8 - i) - 1})")
        if i + TH < 8: ld(i + TH)
        if i == 0:
            for d in range(4): unpack(a, WF + 2 * d, W + d)
        else:
            for d in range(4):
                unpack(a, WF + 8 + 2 * (d & 1), W + 4 * i + d)
                a(f"    v_pk_add_f32 {vr(WF+2*d,2)}, {vr(WF+2*d,2)}, {vr(WF + 8 + 2*(d&1),2)}")
    if opt.c_pf2:
        a(f"    s_load_dwordx2 s[42:43], s[0:1], {ARG['w2']}\n    s_mul_i32 s29, s2, 32768\n    s_lshl_b32 s31, s34, 13\n    s_add_u32 s29, s29, s31\n    v_lshlrev_b32 v7, {8 if opt.c_pf2 == 2 else 7}, v2\n    s_waitcnt lgkmcnt(0)")
        srd(a, 20, 42, 3584 * 2048)
        if opt.c_pf2 == 2: a("    s_mov_b32 exec_hi, 0")
        a("    buffer_load_dword v8, v7, s[20:23], s29 offen\n    s_mov_b64 exec, -1")
    for d in range(8): a(f"    v_add_f32_dpp v{WF+d}, v{WF+d}, v{WF+d} row_ror:8 row_mask:0xf bank_mask:0xf")
    for sw in ("v_permlane16_swap_b32", "v_permlane32_swap_b32"):
        for d in range(8): a(f"    v_mov_b32 v{WF+8+d}, v{WF+d}")
        for d in range(8): a(f"    {sw} v{WF+8+d}, v{WF+d}")
        for d in range(8): a(f"    v_add_f32 v{WF+d}, v{WF+d}, v{WF+8+d}")
    if DEC:
        for d in range(8): a(f"    v_min_u32 v{WF+d}, -2, v{WF+d}")
    HD = f"{L}_done2" if DEC else f"{L}_done"
    a(f"""    s_mov_b32 s27, s30
    v_lshlrev_b32 v4, 5, v3
    s_mov_b64 exec, 0xff
    buffer_store_dwordx4 {vr(WF,4)}, v4, s[36:39], s27 offen {MF}
    buffer_store_dwordx4 {vr(WF+4,4)}, v4, s[36:39], s27 offen offset:16 {MF}
    s_mov_b64 exec, -1
    s_branch {HD}
{L}_code:""")
    if opt.codepf:
        a(f"""    s_cmp_ge_u32 s2, 232
    s_cbranch_scc1 {HD}
    s_getpc_b64 s[66:67]
{L}_pc:
    v_and_b32 v13, 255, v0
    v_lshlrev_b32 v13, 7, v13
    v_min_u32 v13, TEXT_END - {L}_pc - 4, v13
    global_load_dword v62, v13, s[66:67]""")
    if DEC: a(f"    s_branch {HD}")
    a(f"{L}_done:")
    if mega:
        a("    s_waitcnt vmcnt(0)")
        hf_count("c", 48, HF_OFF + (0x8000 if TWO else 0))
        if DEC: a(f"{HD}:")
        stamp(a, 8)
        stamp_end(a, kidx, 58, 33)
        gen3.gen_ga(a, kidx + 1, mega=dict(WRD=WRD, HF=HF_OFF, two=TWO, end=f"{L}_end"))
        return (name, 256, 512, 163840), (name, 256, 96)
    if opt.stamps: a("    s_waitcnt vmcnt(0)")
    stamp(a, 8)
    stamp_end(a, kidx, 58, 33)
    a(f"{L}_end:\n    s_endpgm")
    return (name, 256, 512, WRD + 64), (name, 256, 96)

opt.htf = ""
gen.KGEN["pc"] = gen_pc
gen.KGEN["mega"] = lambda a, k: gen_pc(a, k, mega=True)
```

```python
import sys
from asmlib import *
import gen, gen2
from gen import stamp_loop, opt, stamp, stamp_begin, stamp_end, vr, gemm_consumer_loop, wave_sum, MB4, KVR_OFF, H1_OFF, H1_SZ, XCH_OFF, FLG_OFF
from gen2 import GRP_RDY, FLG_SZ

opt.pfk = {12: (0, 56)}
opt.pp = 0
opt.pgap = 4
opt.mq = False
opt.dly = None
opt.kp = 6
opt.outf = ''
opt.mpf = False
opt.mb2 = True
opt.msleep = 2
opt.cprio = 0
opt.lprio = 0
opt.xy = False
opt.map84 = True
opt.tagx = False
opt.g2sync = True
opt.a2f = 'sc1'
opt.tlbpf = False
opt.lagthr = 7
opt.norot = False
opt.ga_bar = 27
XT_OFF = 0x0400000
HT_OFF = 0x0800000
ST1_OFF = 0x0C00000
CS_OFF = 0x0C10000
PST_OFF = 0x0C80000

def unpack(a, dst, src): a(f"    v_lshlrev_b32 v{dst}, 16, v{src}\n    v_and_b32 v{dst+1}, 0xffff0000, v{src}")
def rnd(a, r): a(f"    v_cvt_pk_bf16_f32 v{r}, v{r}, v{r}\n    v_and_b32 v{r}, 0xffff0000, v{r}")

def gen_p2(a, kidx):
    name = "p_kernel"; L = "P"
    IS = 1056; VT = 17 * IS; XTL = 33 * IS; OST = 51840
    kernel_head(a, name)
    a(f"""    s_cmp_ge_u32 s2, 256
    s_cbranch_scc1 {L}_end
    s_load_dwordx4 s[4:7], s[0:1], {ARG['k']}      ; k, v
    s_load_dwordx4 s[8:11], s[0:1], {ARG['shift']}
    s_load_dwordx2 s[40:41], s[0:1], {ARG['ws']}
    s_load_dwordx2 s[42:43], s[0:1], {ARG['q']}""")
    stamp_begin(a)
    a(f"""    v_lshrrev_b32 v1, 6, v0
    v_and_b32 v2, 63, v0
    s_and_b32 s24, s2, 7             ; cb
    v_readfirstlane_b32 s33, v1
    s_lshr_b32 s25, s2, 3            ; rb
    v_and_b32 v3, 7, v2              ; cg
    v_lshrrev_b32 v4, 3, v2          ; rg
    s_and_b32 s34, s33, 3            ; w
    s_lshl_b32 s26, s25, 17
    s_lshl_b32 s27, s24, 8
    s_add_u32 s26, s26, s27
    v_lshrrev_b32 v5, 4, v2
    v_lshlrev_b32 v5, 11, v5
    v_and_b32 v6, 15, v2
    v_lshl_add_u32 v5, v6, 4, v5
    v_add_u32 v5, s26, v5
    v_subrev_u32 v6, 8192, v5
    s_lshl_b32 s27, s34, 15
    v_add_u32 v5, s27, v5
    s_movk_i32 s44, 8192
    s_movk_i32 s45, 16384
    s_movk_i32 s46, 24576
    s_mul_i32 s35, s34, {4*IS}
    v_mul_u32_u24 v7, {2*IS}, v4
    v_lshl_add_u32 v7, v3, 3, v7
    s_lshl_b32 s27, s34, 6
    v_add_u32 v7, s27, v7
    s_cmp_ge_u32 s33, 4
    s_cbranch_scc1 {L}_x""")
    so = ["0", "s44", "s45", "s46"]
    def tail_addr(rev, ldsbase, off):
        a(f"""    {"v_xor_b32 v13, 7, v4" if rev else "v_mov_b32 v13, v4"}
    v_xor_b32 v13, v13, v3
    v_lshlrev_b32 v13, 4, v13
    v_lshl_add_u32 v13, v3, 9, v13
    s_lshl_b32 s47, s33, 12
    s_add_u32 s47, s47, {OST}
    v_add_u32 v13, s47, v13
    v_lshl_add_u32 v14, v2, 4, s47
    v_lshrrev_b32 v15, 5, v2
    v_xor_b32 v15, v15, v3               ; x0 = (l&7)^(l>>5)
    v_lshlrev_b32 v9, 12, v4             ; (l>>3)*4096
    s_lshl_b32 s47, s24, 19
    s_lshl_b32 s48, s34, 17
    s_add_u32 s47, s47, s48              ; (cb*128+w*32)*4096
    s_lshl_b32 s48, s25, 7""")
        if rev: a(f"    s_sub_u32 s48, {3968 + off}, s48")
        else: a(f"    s_add_u32 s48, s48, {off:#x}")
        a("    s_add_u32 s47, s47, s48")
    def tail_out():
        a("    s_waitcnt lgkmcnt(0)")
        for i in range(4): a(f"    ds_read_b128 {vr(16+4*i,4)}, v14 offset:{1024*i}")
        for i in range(4): a(f"    v_xor_b32 v8, {2*i}, v15\n    v_lshl_add_u32 v{32+i}, v8, 4, v9")
        for i in range(4):
            a(f"    s_waitcnt lgkmcnt({3-i})\n    buffer_store_dwordx4 {vr(16+4*i,4)}, v{32+i}, s[36:39], s47 offen\n    s_add_u32 s47, s47, 32768")
    a(f"""    s_lshl_b32 s27, s24, 10
    s_lshl_b32 s28, s34, 8
    s_add_u32 s27, s27, s28
    v_lshlrev_b32 v8, 5, v3
    s_add_u32 m0, s35, {IS}
    s_waitcnt lgkmcnt(0)""")
    srd(a, 12, 4, MB4); srd(a, 16, 6, MB4); srd(a, 20, 8, 8192)
    KR = 16; VR = 38; WR = 54
    for j in range(4):
        a(f"    buffer_load_dwordx4 v5, s[12:15], {so[j]} offen nt lds\n    s_add_u32 m0, s35, {VT + j*IS}")
        a(f"    s_nop 0\n    buffer_load_dwordx4 v5, s[16:19], {so[j]} offen nt lds\n    s_add_u32 m0, s35, {(j+2)*IS}\n    s_nop 0" if j < 3 else f"    s_nop 0\n    buffer_load_dwordx4 v5, s[16:19], {so[j]} offen nt lds\n    s_mov_b32 m0, 0\n    s_nop 0")
    a("    buffer_load_dwordx4 v6, s[12:15], 0 offen nt lds")
    a(f"    buffer_load_dwordx4 {vr(WR,4)}, v8, s[20:23], s27 offen\n    buffer_load_dwordx4 {vr(WR+4,4)}, v8, s[20:23], s27 offen offset:16")
    srd(a, 28, 10, MB4); srd(a, 36, 40, 64 << 20)
    a(f"""    s_lshl_b32 s47, s2, 14
    v_lshlrev_b32 v9, 6, v0
    buffer_load_dword v10, v9, s[28:31], s47 offen
    s_mul_i32 s47, s2, 560
    s_add_u32 s47, s47, {FLG_OFF:#x}
    v_min_u32 v11, 139, v0
    v_lshlrev_b32 v11, 2, v11
    v_mov_b32 v12, 0
    buffer_store_dword v12, v11, s[36:39], s47 offen""")
    if opt.codepf:
        a(f"""    s_cmp_ge_u32 s2, 8
    s_cbranch_scc1 {L}_nocode
    s_getpc_b64 s[50:51]
{L}_pc:
    v_lshlrev_b32 v13, 7, v0
    v_min_u32 v13, TEXT_END - {L}_pc - 4, v13
    global_load_dword v62, v13, s[50:51]
{L}_nocode:""")
    tail_addr(True, 0, KVR_OFF)
    WF = 64; KF = 80; VF = 124; OF = 156; PK = 190
    stamp(a, 0)
    a("    s_waitcnt vmcnt(2)\n    s_barrier")
    stamp(a, 4)
    kro = lambda jj: ((1 + jj) >> 2) * IS + ((1 + jj) & 3) * 256
    order = [("k", 0), ("k", 1), ("k", 2)] + [x for j in range(8) for x in (("k", 3 + j), ("v", j))]
    def rd(x):
        if x[0] == "k": a(f"    ds_read_b64 {vr(KR + 2*x[1], 2)}, v7 offset:{kro(x[1])}")
        else: a(f"    ds_read_b64 {vr(VR + 2*x[1], 2)}, v7 offset:{VT + (x[1] >> 2)*IS + (x[1] & 3)*256}")
    for x in order[:13]: rd(x)
    for c in range(4):
        for j in range(4):
            src = WR + 2 * c + (j >> 1); d = WF + (c >> 1) * 8 + j * 2 + (c & 1)
            a(f"    v_lshlrev_b32 v{d}, 16, v{src}" if j % 2 == 0 else f"    v_and_b32 v{d}, 0xffff0000, v{src}")
    def unp2(dst, src):
        for p in range(2): unpack(a, dst + 2 * p, src + p)
    a("    s_waitcnt lgkmcnt(8)")
    for x in order[13:]: rd(x)
    for r in range(3): unp2(KF + 4 * r, KR + 2 * r)
    for j in range(8):
        if j: a(f"    s_waitcnt lgkmcnt({14 - 2*j})")
        unp2(KF + 4 * (3 + j), KR + 6 + 2 * j); unp2(VF + 4 * j, VR + 2 * j)
        for p in range(2):
            o = OF + 4 * j + 2 * p
            k = lambda r: vr(KF + 4 * r + 2 * p, 2)
            w = lambda t: vr(WF + p * 8 + 2 * t, 2)
            a(f"    v_pk_mul_f32 {vr(o,2)}, {k(j)}, {w(3)}")
            a(f"    v_pk_fma_f32 {vr(o,2)}, {k(j+1)}, {w(2)}, {vr(o,2)}")
            a(f"    v_pk_fma_f32 {vr(o,2)}, {k(j+2)}, {w(1)}, {vr(o,2)}")
            a(f"    v_pk_fma_f32 {vr(o,2)}, {k(j+3)}, {w(0)}, {vr(o,2)}")
            a(f"    v_pk_mul_f32 {vr(o,2)}, {vr(o,2)}, {vr(VF + 4*j + 2*p, 2)}")
    stamp(a, 1)
    for c in range(4):
        for d in range(4):
            a(f"    v_cvt_pk_bf16_f32 v{PK+4*c+d}, v{OF + 4*(7-2*d) + c}, v{OF + 4*(6-2*d) + c}")
        a(f"    ds_write_b128 v13, {vr(PK+4*c,4)} offset:{128*c}")
    a(f"    s_branch {L}_out")
    XT_ = 40; XR = 56; XF = 80; XC = 112; PKX = 144
    a(f"""{L}_x:
    s_lshl_b32 s27, s25, 6
    s_lshl_b32 s28, s24, 3
    s_add_u32 s27, s27, s28
    s_lshl_b32 s28, s34, 1
    s_add_u32 s27, s27, s28
    s_lshl_b32 s28, s27, 11
    v_lshlrev_b32 v6, 4, v2
    s_waitcnt lgkmcnt(0)""")
    srd(a, 12, 42, MB4)
    for j in range(4): a(f"    s_add_u32 m0, s35, {XTL + j*IS}\n    s_nop 0\n    buffer_load_dwordx4 v5, s[12:15], {so[j]} offen lds")
    for i in range(4): a(f"    buffer_load_dwordx4 {vr(XR+4*i,4)}, v6, s[12:15], s28 offen offset:{1024*i}")
    srd(a, 36, 40, 64 << 20)
    a(f"""    s_lshl_b32 s47, s2, 10
    s_lshl_b32 s48, s34, 8
    s_add_u32 s47, s47, s48
    s_add_u32 s47, s47, {PST_OFF:#x}
    v_lshlrev_b32 v11, 2, v2
    v_mov_b32 v12, -1
    buffer_store_dword v12, v11, s[36:39], s47 offen
    s_mov_b32 s49, 0x05040100
    s_mov_b32 s50, 0x07060302
    s_mov_b32 s51, 0x3a800000
    s_mov_b32 s52, 0x3727c5ac
    s_lshl_b32 s27, s27, 2
    s_add_u32 s27, s27, {ST1_OFF:#x}
    s_add_u32 s28, s27, 8192""")
    tail_addr(False, 0, XT_OFF)
    stamp(a, 0)
    a("    s_waitcnt vmcnt(5)\n    s_barrier")
    stamp(a, 4)
    for j in range(8): a(f"    ds_read_b64 {vr(XT_+2*j,2)}, v7 offset:{XTL + (j >> 2)*IS + (j & 3)*256}")
    a("    s_waitcnt lgkmcnt(0)")
    for c in range(4):
        for d in range(4):
            a(f"    v_perm_b32 v{PKX+4*c+d}, v{XT_ + 2*(2*d+1) + (c>>1)}, v{XT_ + 2*(2*d) + (c>>1)}, s{49 + (c&1)}")
        a(f"    ds_write_b128 v13, {vr(PKX+4*c,4)} offset:{128*c}")
    tail_out()
    S = [8, 9]; T = [10, 11]; M = [12, 14]; PS = [72, 74]
    a("    s_waitcnt vmcnt(5)")
    for rho in range(2):
        for i in range(8): unpack(a, XF + 16 * rho + 2 * i, XR + 8 * rho + i)
    src = lambda rho, i: XF + 16 * rho + 2 * i
    for rho in range(2): a(f"    v_pk_add_f32 {vr(PS[rho],2)}, {vr(src(rho,0),2)}, {vr(src(rho,1),2)}")
    for i in range(2, 8):
        for rho in range(2): a(f"    v_pk_add_f32 {vr(PS[rho],2)}, {vr(PS[rho],2)}, {vr(src(rho,i),2)}")
    for rho in range(2): a(f"    v_add_f32 v{S[rho]}, v{PS[rho]}, v{PS[rho]+1}")
    wave_sum(a, S, T)
    for rho in range(2): a(f"    v_mul_f32 v{M[rho]}, s51, v{S[rho]}")
    for i in range(8):
        for rho in range(2):
            a(f"    v_pk_add_f32 {vr(src(rho,i),2)}, {vr(src(rho,i),2)}, {vr(M[rho],2)} op_sel_hi:[1,0] neg_lo:[0,1] neg_hi:[0,1]")
    for rho in range(2): a(f"    v_pk_mul_f32 {vr(PS[rho],2)}, {vr(src(rho,0),2)}, {vr(src(rho,0),2)}")
    for i in range(1, 8):
        for rho in range(2): a(f"    v_pk_fma_f32 {vr(PS[rho],2)}, {vr(src(rho,i),2)}, {vr(src(rho,i),2)}, {vr(PS[rho],2)}")
    for rho in range(2): a(f"    v_add_f32 v{S[rho]}, v{PS[rho]}, v{PS[rho]+1}")
    wave_sum(a, S, T)
    for rho in range(2):
        a(f"    v_mov_b32 v{76+rho}, v{M[rho]}"); rnd(a, 76 + rho)
        a(f"    v_mul_f32 v{78+rho}, s51, v{S[rho]}"); rnd(a, 78 + rho); a(f"    v_add_f32 v{78+rho}, s52, v{78+rho}"); rnd(a, 78 + rho)
    a("    v_sqrt_f32 v78, v78\n    v_sqrt_f32 v79, v79\n    s_nop 0")
    for rho in range(2): rnd(a, 78 + rho)
    a("""    v_rcp_f32 v78, v78
    v_rcp_f32 v79, v79
    v_mov_b32 v6, 0
    s_mov_b64 exec, 1
    buffer_store_dwordx2 v[76:77], v6, s[36:39], s27 offen
    buffer_store_dwordx2 v[78:79], v6, s[36:39], s28 offen
    s_mov_b64 exec, -1""")
    stamp(a, 1)
    a(f"    s_branch {L}_done\n{L}_out:")
    tail_out()
    a(f"{L}_done:")
    stamp(a, 2)
    if opt.stamps: a("    s_waitcnt vmcnt(0)")
    stamp(a, 3)
    stamp_end(a, kidx, 40, 33)
    a(f"{L}_end:\n    s_endpgm")
    return (name, 256, 512, OST + 32768), (name, 256 if opt.stamps else 208, 96)

def gen_c2(a, kidx):
    name = "c_kernel"; L = "C"
    CS = 4160; RO = 4 * CS; WSZ = 21248; STG = 4 * WSZ
    kernel_head(a, name)
    a(f"""    s_cmp_ge_u32 s2, 256
    s_cbranch_scc1 {L}_end
    s_load_dwordx4 s[4:7], s[0:1], {ARG['ssmk']}
    s_load_dwordx2 s[40:41], s[0:1], {ARG['ws']}
    s_load_dwordx2 s[10:11], s[0:1], {ARG['w1']}
    s_load_dwordx2 s[42:43], s[0:1], {ARG['w2']}""")
    stamp_begin(a)
    a(f"""    v_lshrrev_b32 v1, 6, v0
    v_and_b32 v2, 63, v0
    s_and_b32 s24, s2, 7
    v_readfirstlane_b32 s33, v1
    s_lshl_b32 s24, s24, 5
    s_lshr_b32 s25, s2, 3
    s_add_u32 s24, s24, s25          ; cg
    s_cmp_ge_u32 s33, 4
    s_cbranch_scc1 {L}_help
    s_lshl_b32 s25, s24, 2
    s_add_u32 s25, s25, s33          ; ch
    s_lshl_b32 s26, s25, 12          ; ch*4096
    s_mul_i32 s27, s33, {WSZ}        ; WB
    v_lshlrev_b32 v3, 4, v2          ; lane*16
    s_add_u32 m0, s27, {RO}
    s_lshr_b32 s28, s25, 1
    s_lshl_b32 s28, s28, 2
    s_waitcnt lgkmcnt(0)""")
    srd(a, 12, 4, MB4); srd(a, 16, 40, 64 << 20)
    FD = 16; FE = 32; FX = 48; TO = 52
    for i in range(4):
        a(f"    buffer_load_dwordx4 {vr(FD+4*i,4)}, v3, s[12:15], s26 offen offset:{1024*i}")
        a(f"    buffer_load_dwordx4 {vr(FE+4*i,4)}, v3, s[12:15], s26 offen offset:{1024*i+4}")
        a(f"    buffer_load_dword v{FX+i}, v3, s[12:15], s26 offen offset:{1024*i+20}")
    for i in range(4): a(f"    buffer_load_dwordx4 v3, s[16:19], s26 offen offset:{1024*i} lds")
    a(f"""    s_load_dword s29, s[6:7], s28
    v_add_u32 v4, s27, v3
    v_mov_b32 v60, 0
    v_mov_b32 v61, 0
    v_mov_b32 v62, 0
    v_mov_b32 v63, 0
    s_mov_b64 exec, 0x3fffffff
    ds_write_b128 v4, v[60:63] offset:{RO + 4096}
    s_mov_b64 exec, -1
    v_and_b32 v5, 15, v2             ; b / a
    v_lshrrev_b32 v6, 4, v2          ; kg
    v_add_u32 v7, 1, v5
    v_and_b32 v8, 3, v7
    v_mul_u32_u24 v8, {CS}, v8
    v_and_b32 v7, 28, v7
    v_lshl_add_u32 v8, v7, 1, v8
    v_lshl_add_u32 v8, v6, 4, v8
    v_add_u32 v8, s27, v8            ; vAT
    v_lshlrev_b32 v9, 5, v5
    v_lshl_add_u32 v10, v6, 3, v9    ; 32a + 8g
    v_sub_u32 v9, {RO + 480}, v9
    v_lshl_add_u32 v9, v6, 4, v9
    v_add_u32 v9, s27, v9            ; vBT
    s_add_u32 s34, s26, {XT_OFF:#x}""")
    stamp(a, 0)
    for i in range(4):
        D = FD + 4 * i; E = FE + 4 * i
        a(f"    s_waitcnt vmcnt({4 + 9 - 3*i})")
        a(f"    ds_write_b128 v4, {vr(D,4)} offset:{32 + 1024*i}")
        a(f"    ds_write_b128 v4, {vr(E,4)} offset:{2*CS + 32 + 1024*i}")
        t = TO + 8 * (i & 1)
        for k in range(4): a(f"    v_alignbit_b32 v{t+k}, v{E+k}, v{D+k}, 16")
        a(f"    ds_write_b128 v4, {vr(t,4)} offset:{CS + 32 + 1024*i}")
        for k in range(4): a(f"    v_alignbit_b32 v{t+4+k}, v{E+k+1 if k < 3 else FX+i}, v{E+k}, 16")
        a(f"    ds_write_b128 v4, {vr(t+4,4)} offset:{3*CS + 32 + 1024*i}")
        if i == 0:
            a(f"""    v_mov_b32 v68, 0
    v_mov_b32 v69, 0
    v_mov_b32 v70, 0
    v_lshlrev_b32 v71, 16, v{D}
    v_mov_b32 v72, 0
    v_mov_b32 v73, 0
    v_mov_b32 v74, 0
    v_mov_b32 v75, v{D}
    v_mov_b32 v76, 0
    v_mov_b32 v77, 0
    v_mov_b32 v78, v71
    v_mov_b32 v79, v{t}
    s_mov_b64 exec, 1
    ds_write_b128 v4, v[60:63]
    ds_write_b128 v4, v[60:63] offset:16
    ds_write_b128 v4, v[60:63] offset:{CS}
    ds_write_b128 v4, v[68:71] offset:{CS+16}
    ds_write_b128 v4, v[60:63] offset:{2*CS}
    ds_write_b128 v4, v[72:75] offset:{2*CS+16}
    ds_write_b128 v4, v[60:63] offset:{3*CS}
    ds_write_b128 v4, v[76:79] offset:{3*CS+16}
    s_mov_b64 exec, -1""")
    ACC = 80; F0 = 112; F1 = 176
    for i in range(0, 32, 2): a(f"    v_mov_b64 {vr(ACC+i,2)}, 0")
    a(f"""    v_mov_b32 v34, {STG + 16384}
    v_mov_b32 v35, 0
    ds_write_b32 v34, v35
    s_waitcnt vmcnt(0) lgkmcnt(0)""")
    for n in range(8): a(f"    buffer_load_dwordx2 {vr(FD + 2*n, 2)}, v10, s[16:19], s34 offen offset:{512*n}")
    a("    s_barrier")
    stamp(a, 1)
    def reads(F, woff):
        r = []
        for u in range(8):
            r.append(f"    ds_read_b128 {vr(F+32+4*u,4)}, v9 offset:{3584 - 512*u + woff}")
            r.append(f"    ds_read_b64 {vr(F+4*u,2)}, v8 offset:{512*u + woff}")
            r.append(f"    ds_read_b64 {vr(F+4*u+2,2)}, v8 offset:{512*u + 8 + woff}")
        return r
    def mf(F):
        return [f"    v_mfma_f32_16x16x32_bf16 {vr(ACC+4*(u+v),4)}, {vr(F+4*u,4)}, {vr(F+32+4*v,4)}, {vr(ACC+4*(u+v),4)}" for u in range(8) for v in range(8 - u)]
    def weave(m, f):
        i = 0
        for x in m:
            a(x)
            if i < len(f): a(f[i]); i += 1
    for l in reads(F0, 0): a(l)
    a(f"    s_mov_b32 s35, 0\n{L}_loop:\n    s_waitcnt lgkmcnt(0)")
    weave(mf(F0), reads(F1, 64) + ["    ds_read_b32 v35, v34", "    v_add_u32 v8, 128, v8", "    v_add_u32 v9, 128, v9", "    s_add_u32 s35, s35, 1", "    s_cmp_eq_u32 s35, 4"])
    a(f"    s_waitcnt lgkmcnt(0)\n    s_cbranch_scc1 {L}_last")
    weave(mf(F1), reads(F0, 0))
    a(f"""    s_branch {L}_loop
{L}_again:
    s_sleep 1
    ds_read_b32 v35, v34
    s_waitcnt lgkmcnt(0)
{L}_last:
    v_readfirstlane_b32 s36, v35
    s_cmp_eq_u32 s36, 4
    s_cbranch_scc0 {L}_again""")
    KV = F0; MT = F0 + 16
    pre = [f"""    v_sub_u32 v32, {RO + 504}, v10
    v_add_u32 v32, s27, v32""",
           f"""    v_lshlrev_b32 v33, 1, v10
    v_add_u32 v33, {STG}, v33"""]
    pre += [f"    ds_read_b64 {vr(KV+2*n,2)}, v32 offset:{512*(7-n)}" for n in range(8)]
    pre += [f"    ds_read_b128 {vr(MT+4*n,4)}, v33 offset:{1024*n}" for n in range(8)]
    RTB = 36
    pre += [f"    ds_read_b128 {vr(RTB+4*n,4)}, v33 offset:{8192 + 1024*n}" for n in range(8)]
    pre += [f"""    s_lshl_b32 s35, s29, 16
    s_and_b32 s36, s29, 0xffff0000""", f"""    s_bitcmp1_b32 s25, 0
    s_cselect_b32 s35, s36, s35          ; D as f32""",
            f"""    s_and_b32 s36, s25, 3
    s_bfe_u32 s37, s25, 0x10003""", f"""    s_lshl_b32 s37, s37, 2
    s_or_b32 s36, s36, s37               ; g(d)""",
            f"""    v_and_b32 v11, 7, v5
    v_xor_b32 v11, s36, v11""", f"""    v_lshlrev_b32 v11, 5, v11
    v_lshrrev_b32 v12, 3, v5""", f"""    v_lshl_add_u32 v11, v12, 18, v11
    v_and_b32 v12, 1, v6""", f"""    v_lshl_add_u32 v11, v12, 19, v11
    v_lshrrev_b32 v12, 1, v6""", f"""    v_lshl_add_u32 v11, v12, 4, v11
    s_lshl_b32 s34, s25, 8""", f"""    s_add_u32 s34, s34, {HT_OFF:#x}"""]
    weave(mf(F1), pre)
    stamp(a, 2)
    a("    s_waitcnt vmcnt(0) lgkmcnt(0)")
    OUT = 224
    order = [0, 1, 2, 3, 4, 5, 6, 7]
    for n in order:
        c = ACC + 4 * n; k = KV + 2 * n; x = FD + 2 * n; o = OUT + 2 * n
        a(f"""    v_and_b32 v12, 0xffff0000, v{k+1}
    v_lshlrev_b32 v13, 16, v{k+1}
    v_and_b32 v14, 0xffff0000, v{k}
    v_lshlrev_b32 v15, 16, v{k}
    v_fmac_f32 v{c}, s35, v12
    v_fmac_f32 v{c+1}, s35, v13
    v_fmac_f32 v{c+2}, s35, v14
    v_fmac_f32 v{c+3}, s35, v15
    v_lshlrev_b32 v12, 16, v{x}
    v_and_b32 v13, 0xffff0000, v{x}
    v_lshlrev_b32 v14, 16, v{x+1}
    v_and_b32 v15, 0xffff0000, v{x+1}
    v_pk_mul_f32 {vr(c,2)}, {vr(c,2)}, {vr(RTB+4*n,2)}
    v_pk_mul_f32 {vr(c+2,2)}, {vr(c+2,2)}, {vr(RTB+4*n+2,2)}
    v_pk_add_f32 {vr(MT+4*n,2)}, v[12:13], {vr(MT+4*n,2)} neg_lo:[0,1] neg_hi:[0,1]
    v_pk_add_f32 {vr(MT+4*n+2,2)}, v[14:15], {vr(MT+4*n+2,2)} neg_lo:[0,1] neg_hi:[0,1]
    v_pk_fma_f32 v[12:13], {vr(MT+4*n,2)}, {vr(c,2)}, v[12:13]
    v_pk_fma_f32 v[14:15], {vr(MT+4*n+2,2)}, {vr(c+2,2)}, v[14:15]
    v_cvt_pk_bf16_f32 v{o}, v12, v13
    v_cvt_pk_bf16_f32 v{o+1}, v14, v15""")
        if n & 1:
            a(f"""    s_nop 0
    v_permlane16_swap_b32 v{o-2}, v{o}
    v_permlane16_swap_b32 v{o-1}, v{o+1}
    buffer_store_dwordx4 {vr(o-2,4)}, v11, s[16:19], s34 offen
    s_add_u32 s34, s34, 0x100000""")
    stamp(a, 3)
    a(f"    s_branch {L}_done")
    W = 16; WF = 48
    a(f"""{L}_help:
    s_and_b32 s34, s33, 3
    s_and_b32 s25, s2, 15            ; k slice
    s_lshr_b32 s26, s2, 4
    s_mul_i32 s27, s25, {64*7168}
    s_lshl_b32 s28, s26, 9
    s_lshl_b32 s29, s34, 7
    s_add_u32 s28, s28, s29
    s_add_u32 s27, s27, s28
    v_lshrrev_b32 v3, 3, v2
    v_mul_u32_u24 v3, 7168, v3
    v_and_b32 v4, 7, v2
    v_lshl_add_u32 v3, v4, 4, v3
    s_waitcnt lgkmcnt(0)""")
    srd(a, 12, 10, 1024 * 7168); srd(a, 16, 40, 64 << 20)
    a(f"""    s_lshl_b32 s30, s34, 12
    s_add_u32 m0, s30, {STG}
    s_add_u32 s30, s30, {ST1_OFF:#x}
    v_lshlrev_b32 v5, 4, v2
    v_mov_b32 v8, {STG + 16384}
    v_mov_b32 v9, 1
    s_barrier""")
    for i in range(4): a(f"    buffer_load_dwordx4 v5, s[16:19], s30 offen offset:{1024*i} lds")
    a("""    s_waitcnt vmcnt(0)
    s_mov_b64 exec, 1
    ds_add_u32 v8, v9
    s_mov_b64 exec, -1""")
    if opt.tlbpf:
        srd(a, 20, 42, 3584 * 2048)
        a(f"""    s_lshr_b32 s30, s2, 3
    s_mul_i32 s30, s30, {56*4096}
    v_lshlrev_b32 v5, 12, v2
    s_cmp_eq_u32 s34, 1
    s_cbranch_scc1 {L}_t1
    s_cmp_eq_u32 s34, 0
    s_cbranch_scc0 {L}_t2
    buffer_load_dword v7, v5, s[12:15], s30 offen
    s_branch {L}_t3
{L}_t1:
    buffer_load_dword v7, v5, s[20:23], s30 offen
    s_branch {L}_t3
{L}_t2:
    s_lshl_b32 s30, s30, 1
    s_and_b32 s31, s34, 1
    s_mul_i32 s31, s31, {56*4096}
    s_add_u32 s30, s30, s31
    s_add_u32 s30, s30, {H1_OFF:#x}
    buffer_load_dword v7, v5, s[16:19], s30 offen
{L}_t3:""")
    a(f"""    s_cmp_ge_u32 s2, 224
    s_cbranch_scc1 {L}_done""")
    for i in range(8):
        a(f"    buffer_load_dwordx4 {vr(W+4*i,4)}, v3, s[12:15], s27 offen\n    s_add_u32 s27, s27, {8*7168}")
    if opt.c_pf2:
        srd(a, 20, 42, 3584 * 2048)
        a(f"""    s_mul_i32 s30, s2, 32768
    s_lshl_b32 s31, s34, 13
    s_add_u32 s30, s30, s31
    v_lshlrev_b32 v5, 7, v2
    buffer_load_dword v6, v5, s[20:23], s30 offen""")
    ex = 1 if opt.c_pf2 else 0
    for i in range(8):
        a(f"    s_waitcnt vmcnt({7 - i + ex})")
        if i == 0:
            for d in range(4): unpack(a, WF + 2 * d, W + d)
        else:
            for d in range(4):
                unpack(a, WF + 8 + 2 * (d & 1), W + 4 * i + d)
                a(f"    v_pk_add_f32 {vr(WF+2*d,2)}, {vr(WF+2*d,2)}, {vr(WF + 8 + 2*(d&1),2)}")
    for d in range(8): a(f"    v_add_f32_dpp v{WF+d}, v{WF+d}, v{WF+d} row_ror:8 row_mask:0xf bank_mask:0xf")
    for sw in ("v_permlane16_swap_b32", "v_permlane32_swap_b32"):
        for d in range(8): a(f"    v_mov_b32 v{WF+8+d}, v{WF+d}")
        for d in range(8): a(f"    {sw} v{WF+8+d}, v{WF+d}")
        for d in range(8): a(f"    v_add_f32 v{WF+d}, v{WF+d}, v{WF+8+d}")
    a(f"""    s_mul_i32 s27, s25, {3584*4}
    s_lshl_b32 s28, s28, 1
    s_add_u32 s27, s27, s28
    s_add_u32 s27, s27, {CS_OFF:#x}
    v_lshlrev_b32 v4, 5, v4
    s_mov_b64 exec, 0xff
    buffer_store_dwordx4 {vr(WF,4)}, v4, s[16:19], s27 offen
    buffer_store_dwordx4 {vr(WF+4,4)}, v4, s[16:19], s27 offen offset:16
    s_mov_b64 exec, -1
{L}_done:""")
    stamp(a, 4)
    if opt.stamps: a("    s_waitcnt vmcnt(0)")
    stamp(a, 5)
    stamp_end(a, kidx, 40, 33)
    a(f"{L}_end:\n    s_endpgm")
    return (name, 256, 512, STG + 16384 + 64), (name, 256 if opt.stamps else 240, 96)


def ppoll(a, tag, load, cmpl, regs, first_issued=False):
    for i, r in enumerate(regs):
        if i or not first_issued: a(load(r))
        if i < 2: a(f"    s_sleep {opt.pgap}")
    a(f"{tag}_l:")
    for r in regs:
        a(f"    s_waitcnt vmcnt(2)\n    v_cmp_eq_u32 vcc, 1, v{r}\n    {cmpl}\n    s_cbranch_scc1 {tag}_e")
        a(load(r))
    a(f"    s_branch {tag}_l\n{tag}_e:")

def loop_unrolled(a, L, MI, NI, nk, ns, acc, F0, F1, rdA, rdB, s_k, bar, tail, hookA=None, hookB=None, entry=None):
    n = MI * NI
    def reads(F, slot, kh):
        r = rdA(F, slot, kh)
        for ni in range(NI): r += rdB(F, slot, kh, ni)
        return r
    def mfmas(F):
        return [f"    v_mfma_f32_16x16x32_bf16 {vr(acc + 4*(mi*NI+ni),4)}, {vr(F + 4*MI + 4*ni, 4)}, {vr(F + 4*mi, 4)}, {vr(acc + 4*(mi*NI+ni),4)}" for ni in range(NI) for mi in range(MI)]
    def place(mf, items, start, extra):
        gaps = [[] for _ in mf]
        for j, it in enumerate(items): gaps[start + j].append(it)
        for k, v in extra.items(): gaps[k] += v
        for m, gl in zip(mf, gaps):
            a(m)
            for x in gl: a(x)
    nrd = len(reads(F0, 0, 0))
    late = bar >= n
    st = bar - n + 1 if late else 0
    lagB = st + nrd > n - opt.lagthr
    a(f"    s_mov_b32 s{s_k}, 0")
    if entry is None:
        for l in reads(F0, 0, 0): a(l)
    else:
        a(f"    s_cmp_eq_u32 {entry}, 0\n    s_cbranch_scc1 {L}_e0")
        for l in reads(F0, 1, 0): a(l)
        a(f"    s_branch {L}_s1\n{L}_e0:")
        for l in reads(F0, 0, 0): a(l)
    for u in range(ns):
        a(f"{L}_s{u}:")
        ex = {}
        if lagB:
            a(f"    s_waitcnt lgkmcnt({2*(NI-1)})")
            for ni in range(1, NI):
                ex.setdefault(MI * ni - 1, []).append(f"    s_waitcnt lgkmcnt({min(15, 2*(NI-1-ni) + min(nrd, MI*ni))})")
        else:
            a("    s_waitcnt lgkmcnt(0)")
        ex.setdefault(n - 3, []).append(f"    s_add_u32 s{s_k}, s{s_k}, 1")
        ex.setdefault(n - 2, []).append(f"    s_cmp_eq_u32 s{s_k}, {nk}")
        if not late: ex.setdefault(bar, []).append("    s_waitcnt lgkmcnt(0)\n    s_barrier")
        ex.setdefault(n - 1, []).append(f"    s_cbranch_scc1 {L}_tail")
        if late: ex[n - 1].append(f"    s_waitcnt lgkmcnt({2*(NI-1)})")
        if hookA: ex[n - 1].append(hookA(u))
        place(mfmas(F0), reads(F1, u, 1), 0, ex)
        ex = {}
        if late: ex[bar - n] = ["    s_waitcnt lgkmcnt(0)\n    s_barrier"]
        if hookB: ex.setdefault(n - 1, []).append(hookB(u))
        if u == ns - 1: ex.setdefault(n - 1, []).append(f"    s_branch {L}_s0")
        place(mfmas(F1), reads(F0, (u + 1) % ns, 0), st, ex)
    a(f"{L}_tail:")
    if late: a("    s_waitcnt lgkmcnt(0)\n    s_barrier")
    tail(mfmas(F1))

def gen_ga(a, kidx, mega=None):
    name = "g_kernel"; L = "G"
    PX = 4 if opt.map84 else 1
    MAP = """    s_lshr_b32 s26, s24, 1
    s_lshl_b32 s26, s26, 2
    s_and_b32 s27, s25, 3
    s_add_u32 s26, s26, s27          ; mt
    s_and_b32 s54, s24, 1
    s_lshr_b32 s55, s25, 2
    s_lshl_b32 s56, s24, 2
    s_add_u32 s56, s56, s27
    s_lshl_b32 s56, s56, 7           ; group*128
    s_lshl_b32 s27, s54, 3
    s_add_u32 s27, s27, s55          ; nt
""" if not opt.map84 else ("""    s_and_b32 s26, s24, 1
    s_lshl_b32 s26, s26, 3
    s_and_b32 s27, s25, 7
    s_add_u32 s26, s26, s27          ; mt""" if not (mega and mega["two"]) else """    s_and_b32 s26, s24, 1
    s_lshl_b32 s26, s26, 2
    s_and_b32 s27, s25, 3
    s_add_u32 s26, s26, s27
    s_and_b32 s27, s25, 4
    s_lshl_b32 s27, s27, 1
    s_add_u32 s26, s26, s27          ; mt: four early and four late row tiles per die""") + """
    s_lshr_b32 s27, s24, 1
    s_lshl_b32 s27, s27, 2
    s_lshr_b32 s55, s25, 3
    s_add_u32 s27, s27, s55          ; nt
    s_lshr_b32 s54, s27, 3           ; kh
    s_and_b32 s55, s27, 7            ; nt2 / member index
    s_lshl_b32 s56, s26, 1
    s_add_u32 s56, s56, s54
    s_lshl_b32 s56, s56, 7           ; group*128
"""
    LA = 224; LB = 216; LB2 = 212
    ST1 = 49152; NS1 = 3; NK1 = 16
    NS2 = 4; NK2 = 28; B2 = 81920
    BR1 = 49152; CNT = 147456; TST = CNT + 256; TRM = TST + 512; TCB = TRM + 1024 + 64; RES = 65536
    if not mega:
        kernel_head(a, name)
        a(f"    s_cmp_ge_u32 s2, 256\n    s_cbranch_scc1 {L}_end")
    a(f"""    s_load_dwordx2 s[4:5], s[0:1], {ARG['ws']}
    s_load_dwordx4 s[8:11], s[0:1], {ARG['w1']}    ; w1, b1
    s_load_dwordx4 s[48:51], s[0:1], {ARG['w2']}   ; w2, b2
    s_load_dwordx2 s[52:53], s[0:1], {ARG['out']}""")
    stamp_begin(a)
    a(f"""    v_lshrrev_b32 v1, 6, v0
    v_and_b32 v2, 63, v0
    s_and_b32 s24, s2, 7
    v_readfirstlane_b32 s33, v1
    s_lshr_b32 s25, s2, 3
{MAP}    s_and_b32 s29, s27, 1            ; p = nt odd
    s_cmp_lt_u32 s33, 4
    s_cbranch_scc1 {L}_cons""")
    def final_addr():
        a(f"""    s_lshl_b32 s43, s26, 7
    s_lshl_b32 s44, s54, 5
    s_add_u32 s43, s43, s44
    s_lshl_b32 s44, s33, 2
    s_add_u32 s43, s43, s44
    s_lshl_b32 s43, s43, 11          ; row*2048
    s_lshl_b32 s44, s55, 8
    s_add_u32 s43, s43, s44
    s_add_u32 s44, s43, {64*2048}""")
    if opt.lprio: a(f"    s_setprio {opt.lprio}")
    a(f"""    s_and_b32 s34, s33, 3            ; lw
    s_lshl_b32 s35, s34, 12          ; lw*4096
    v_lshl_add_u32 v{LA}, v2, 4, s35 ; A voffset
    s_lshl_b32 s68, s26, 18
    s_add_u32 s69, s68, {16 << 14}
    s_and_b32 s36, s27, {0 if opt.norot else 12}
    s_lshl_b32 s30, s36, 14
    s_add_u32 s30, s30, s68
    s_mul_i32 s66, s27, 448
    s_and_b32 s66, s66, 0xffffff80
    s_add_u32 s67, s66, {1024*7168}
    s_mul_i32 s31, s36, {64*7168}
    s_add_u32 s31, s31, s66
    s_mov_b32 s70, s35
    s_add_u32 s39, s35, {NS1*16384}
    s_add_u32 s38, s35, s35
    s_add_u32 s38, s38, {BR1}
    s_mov_b32 s71, s38
    s_add_u32 s37, s38, {NS1*32768}
    s_waitcnt lgkmcnt(0)""")
    srd(a, 12, 4, MB4, off=HT_OFF)
    def issueA1():
        a(f"    s_mov_b32 m0, s70\n    s_add_u32 s70, s70, 16384")
        for i in range(4): a(f"    buffer_load_dwordx4 v{LA}, s[12:15], s30 offen offset:{i*1024} {'sc1' if mega else ''} lds")
        a("""    s_add_u32 s30, s30, 16384
    s_cmp_ge_u32 s70, s39
    s_cselect_b32 s70, s35, s70
    s_cmp_ge_u32 s30, s69
    s_cselect_b32 s30, s68, s30""")
    def issueB1():
        a("    s_mov_b32 m0, s38\n    s_nop 0")
        for i in range(4): a(f"    buffer_load_dwordx4 v{LB+i}, s[16:19], s31 offen offset:{i*1024} lds")
        a(f"    s_add_u32 m0, s38, 4096\n    s_add_u32 s38, s38, 32768")
        for i in range(4, 8): a(f"    buffer_load_dwordx4 v{LB+i}, s[16:19], s31 offen offset:{(i&3)*1024} lds")
        a(f"""    s_add_u32 s31, s31, {64*7168}
    s_cmp_ge_u32 s38, s37
    s_cselect_b32 s38, s71, s38
    s_cmp_ge_u32 s31, s67
    s_cselect_b32 s31, s66, s31""")
    if not mega: issueA1()
    a(f"""    v_lshrrev_b32 v8, 5, v2          ; hi
    s_lshl_b32 s36, s34, 4
    v_add_u32 v9, s36, v8            ; 16lw+hi
    v_mul_u32_u24 v9, 7168, v9
    v_and_b32 v10, 1, v2
    v_lshl_add_u32 v9, v10, 4, v9    ; t0
    v_bfe_u32 v10, v2, 1, 4
    v_xor_b32 v10, v10, v8           ; x0""")
    srd(a, 16, 8, 1024 * 7168)
    for ci, c in enumerate((0, 2, 4, 6)):
        a(f"    v_xor_b32 v11, {c}, v10\n    v_lshl_add_u32 v11, v11, 5, v9")
        for i in range(8):
            if 2 * (i & 1) + 4 * (i >> 2) == c: a(f"    v_add_u32 v{LB+i}, {2*i*7168 - (i&3)*1024}, v11")
    stamp(a, 0)
    if not mega:
        issueB1(); issueA1()
        a("    s_waitcnt vmcnt(4)\n    s_barrier")
        issueB1(); issueA1(); issueB1()
    else:
        srd(a, 20, 4, 0x8000, off=mega["HF"])
        if mega["two"]: a("    s_lshr_b32 s36, s26, 3\n    s_lshl_b32 s36, s36, 15\n    s_add_u32 s20, s20, s36\n    s_addc_u32 s21, s21, 0")
        srd(a, 60, 48, 3584 * 2048)
        a(f"""    v_mov_b32 v10, {mega["WRD"]}
    v_lshlrev_b32 v70, 7, v2
    s_and_b32 s41, s27, 12
    s_lshl_b32 s41, s41, 11
    s_mul_i32 s59, s2, 28672
    s_mul_i32 s36, s34, 7168
    s_add_u32 s59, s59, s36
{L}_m0:
    ds_read_b32 v13, v10 offset:48
    s_waitcnt lgkmcnt(0)
    v_readfirstlane_b32 s36, v13
    s_cmp_eq_u32 s36, 8
    s_cbranch_scc1 {L}_m1
    s_sleep 1
    s_branch {L}_m0
{L}_m1:""")
        issueB1()
        if opt.mb2: issueB1()
        if not opt.mq: a("    s_lshl_b32 s41, s35, 1")
        if opt.pp & 1:
            ppoll(a, f"{L}_hp", lambda r: f"    buffer_load_dword v{r}, v70, s[20:23], s41 offen sc1", "s_cmp_eq_u64 vcc, -1", (73, 74, 75))
        else:
            a(f"""{L}_m2:
    buffer_load_dword v13, v70, s[20:23], s41 offen sc1
    s_waitcnt vmcnt(0)
    v_cmp_eq_u32 vcc, 1, v13
    s_cmp_eq_u64 vcc, -1
    s_cbranch_scc1 {L}_m3""")
            if opt.mpf: a("    buffer_load_dword v71, v70, s[60:63], s59 offen\n    s_mov_b32 s59, 0x80000000")
            else: a(f"    s_sleep {opt.msleep}")
            a(f"    s_branch {L}_m2\n{L}_m3:")
        if not opt.mq:
            a(f"""    v_mov_b32 v12, 1
    s_mov_b64 exec, 1
    ds_add_u32 v10, v12 offset:56
    s_mov_b64 exec, -1
{L}_m5:
    ds_read_b32 v13, v10 offset:56
    s_waitcnt lgkmcnt(0)
    v_readfirstlane_b32 s36, v13
    s_cmp_eq_u32 s36, 4
    s_cbranch_scc0 {L}_m5""")
        if opt.dly:
            a(f"    s_and_b32 s36, s26, {opt.dly[0]}\n    s_cmp_eq_u32 s36, 0\n    s_cbranch_scc1 {L}_nodly")
            for i in range(opt.dly[1]): a("    s_sleep 16")
            a(f"{L}_nodly:")
        stamp(a, 11)
        issueA1(); issueA1()
        a("    s_waitcnt vmcnt(4)\n    s_barrier")
        if not opt.mb2: issueB1()
        issueA1(); issueB1()
        if opt.mq:
            a(f"{L}_m4:")
            for q in range(1, 4):
                a(f"    s_add_u32 s36, s41, {q*8192}\n    s_and_b32 s36, s36, 0x7fff\n    buffer_load_dword v{13+q}, v70, s[20:23], s36 offen sc1")
            a(f"""    s_waitcnt vmcnt(0)
    v_and_b32 v13, v14, v15
    v_and_b32 v13, v13, v16
    v_cmp_eq_u32 vcc, 1, v13
    s_cmp_eq_u64 vcc, -1
    s_cbranch_scc0 {L}_m4""")
    stamp(a, 12)
    a(f"""    v_lshrrev_b32 v3, 4, v2          ; q4
    s_lshl_b32 s36, s34, 4
    v_add_u32 v4, s36, v3
    v_lshlrev_b32 v4, 11, v4
    v_and_b32 v5, 1, v2
    v_lshl_add_u32 v4, v5, 4, v4     ; t0
    v_bfe_u32 v5, v2, 1, 3
    v_xor_b32 v5, v5, v3             ; x0""")
    for c in (0, 4):
        a(f"    v_xor_b32 v6, {c}, v5\n    v_lshl_add_u32 v6, v6, 5, v4")
        for i in range(4):
            if 4 * (i >> 1) == c: a(f"    v_add_u32 v{LB2+i}, {4*i*2048 - i*1024}, v6")
    a(f"""    v_lshrrev_b32 v3, 3, v2          ; d&7
    v_bfe_u32 v4, v2, 1, 2
    v_lshrrev_b32 v5, 1, v3
    v_xor_b32 v4, v4, v5             ; gs
    v_and_b32 v5, 1, v4
    v_lshrrev_b32 v4, 1, v4
    v_lshl_or_b32 v4, v4, 2, v5
    s_lshl_b32 s36, s54, 1
    v_or_b32 v4, s36, v4             ; cp
    v_and_b32 v5, 3, v3
    v_xor_b32 v4, v4, v5             ; cp ^ (d&3)
    v_lshlrev_b32 v4, 5, v4
    v_and_b32 v5, 1, v2
    v_lshl_add_u32 v4, v5, 4, v4
    v_lshl_add_u32 v208, v3, 8, v4
    v_xor_b32 v209, 128, v208
    v_add_u32 v209, 1024, v209
    v_add_u32 v210, 2048, v208
    v_add_u32 v211, 2048, v209
    v_and_b32 v3, 31, v2
    v_lshrrev_b32 v4, 5, v2
    v_lshlrev_b32 v4, 13, v4
    v_lshl_add_u32 v206, v3, 2, v4
    v_and_b32 v3, 15, v2
    v_min_u32 v3, 13, v3
    v_lshrrev_b32 v4, 4, v2
    v_mul_u32_u24 v207, {3584*4}, v4
    v_lshl_add_u32 v207, v3, 4, v207
    v_lshlrev_b32 v205, 3, v3""")
    if opt.xy:
        a(f"""    s_lshr_b32 s36, s55, 1
    s_mul_i32 s36, s36, 3
    s_lshl_b32 s41, s29, 1
    s_add_u32 s36, s36, s41
    v_subrev_u32 v3, 3, v2               ; q
    v_cmp_le_u32 vcc, s36, v3
    s_lshl_b32 s41, s55, 1
    v_subrev_u32 v5, 14, v2              ; z
    v_addc_co_u32 v3, vcc, 0, v3, vcc    ; c
    v_cmp_le_u32 vcc, s41, v5
    v_mul_u32_u24 v4, 43, v3
    v_lshrrev_b32 v4, 7, v4              ; c/3
    v_cndmask_b32 v6, 0, 2, vcc
    v_add_u32 v5, v5, v6
    v_mul_u32_u24 v6, 3, v4
    v_sub_u32 v3, v3, v6                 ; c%3
    v_min_u32 v6, 1, v3
    v_lshl_add_u32 v3, v6, 1, v3         ; 0,3,4
    v_mad_u32_u24 v3, v4, 7, v3
    v_lshrrev_b32 v4, 2, v5
    v_and_b32 v6, 1, v5
    v_bfe_u32 v5, v5, 1, 1
    v_lshl_add_u32 v5, v5, 2, v6
    v_mad_u32_u24 v5, v4, 7, v5
    v_add_u32 v5, 1, v5
    v_cmp_gt_u32 vcc, 14, v2
    s_mul_i32 s36, s55, 7
    s_add_u32 s36, s36, 1
    v_cndmask_b32 v3, v5, v3, vcc
    s_lshr_b32 s36, s36, 1
    v_cmp_gt_u32 vcc, 3, v2
    v_add_u32 v5, s36, v2
    s_nop 0
    v_cndmask_b32 v72, v3, v5, vcc""")
    srd(a, 20, 4, 64 << 20); srd(a, 72, 10, 7168)
    PSR = 32; CSR = 48; BR = 64
    a(f"""    s_lshl_b32 s41, s26, 14
    s_lshl_b32 s36, s34, 7
    s_add_u32 s41, s41, s36
    s_add_u32 s41, s41, {PST_OFF:#x}
    s_add_u32 s47, s41, 4096
    s_mul_i32 s42, s27, 896
    s_mul_i32 s36, s34, 224
    s_add_u32 s42, s42, s36
    s_lshr_b32 s43, s42, 1
    s_add_u32 s42, s42, {CS_OFF:#x}""")
    KP = opt.kp
    pfk = dict(opt.pfk) if opt.w2pf == "l" else {}
    if pfk and not mega:
        srd(a, 60, 48, 3584 * 2048)
        a(f"""    s_mul_i32 s59, s2, 28672
    s_mul_i32 s36, s34, 7168
    s_add_u32 s59, s59, s36
    v_lshlrev_b32 v70, {8 if opt.c_pf2 == 2 else 7}, v2
    {"s_add_u32 s59, s59, 128" if opt.c_pf2 == 2 else ""}""")
    def pf(k):
        if k in pfk:
            lo, hi = pfk[k]
            m = ((1 << hi) - 1) ^ ((1 << lo) - 1)
            a(f"    s_mov_b32 exec_lo, {m & 0xffffffff:#x}\n    s_mov_b32 exec_hi, {m >> 32:#x}\n    buffer_load_dword v71, v70, s[60:63], s59 offen\n    s_mov_b64 exec, -1")
    extra = lambda k: (1 if (k - 1) in pfk else 0) + (1 if (k - 2) in pfk else 0)
    a(f"    s_mov_b32 s40, 0\n{L}_l1:")
    stamp_loop(a, 40, 32)
    a("    s_waitcnt vmcnt(12)")
    stamp_loop(a, 40, 42)
    a("    s_barrier")
    stamp_loop(a, 40, 52)
    if not opt.noload:
        issueA1(); issueB1()
    a(f"    s_add_u32 s40, s40, 1\n    s_cmp_lt_u32 s40, {KP + 1}\n    s_cbranch_scc1 {L}_l1")
    stamp(a, 20)
    def gather_ps():
        for i in range(16): a(f"    buffer_load_dword v{PSR+i}, v206, s[20:23], s{41 if i < 8 else 47} offen offset:{512*(i&7)} sc1")
    gather_ps()
    def gather_cs():
        for i in range(4): a(f"    s_add_u32 s36, s42, {i*4*3584*4}\n    buffer_load_dwordx4 {vr(CSR+4*i,4)}, v207, s[20:23], s36 offen {'sc1' if mega else ''}")
    gather_cs()
    a(f"    buffer_load_dwordx2 {vr(BR,2)}, v205, s[72:75], s43 offen")
    for k in (KP + 1, KP + 2):
        stamp(a, 21 + 2 * (k - KP - 1))
        a(f"    s_waitcnt vmcnt({33 + extra(k)})\n    s_barrier          ; b{k}")
        stamp(a, 22 + 2 * (k - KP - 1))
        issueA1(); issueB1(); pf(k)
    t = Asm()
    for i in range(1, 8): t(f"    v_pk_add_f32 {vr(PSR,2)}, {vr(PSR,2)}, {vr(PSR+2*i,2)}")
    for i in range(1, 4):
        t(f"    v_pk_add_f32 {vr(CSR,2)}, {vr(CSR,2)}, {vr(CSR+4*i,2)}\n    v_pk_add_f32 {vr(CSR+2,2)}, {vr(CSR+2,2)}, {vr(CSR+4*i+2,2)}")
    t(f"""    v_add_f32 v3, v{PSR}, v{PSR+1}
    s_mov_b32 s76, 0x3a800000
    v_mov_b32 v4, v3""")
    for sw in ("v_permlane16_swap_b32", "v_permlane32_swap_b32"):
        for d in range(4): t(f"    v_mov_b32 v{CSR+4+d}, v{CSR+d}")
        for d in range(4): t(f"    {sw} v{CSR+4+d}, v{CSR+d}")
        for d in range(4): t(f"    v_add_f32 v{CSR+d}, v{CSR+d}, v{CSR+4+d}")
    t(f"""    v_permlane32_swap_b32 v4, v3
    v_mul_f32 v6, s76, v4                ; mean
    v_mul_f32 v7, s76, v3
    v_fma_f32 v7, -v6, v6, v7
    v_max_f32 v7, 0, v7                  ; variance""")
    rnd(t, 6); rnd(t, 7)
    t("    v_add_f32 v7, 0x3727c5ac, v7"); rnd(t, 7)
    t("    v_sqrt_f32 v7, v7")
    for d in range(4): t(f"    v_cvt_pk_bf16_f32 v{CSR+4+d}, v{CSR+d}, v{CSR+d}")
    rnd(t, 7)
    for d in range(4): t(f"    v_and_b32 v{CSR+4+d}, 0xffff0000, v{CSR+4+d}\n    v_sub_f32 v{CSR+d}, v{CSR+d}, v{CSR+4+d}")
    t("    v_rcp_f32 v9, v7")
    for d in range(4):
        t(f"    v_cvt_pk_bf16_f32 v{CSR+8+2*d}, v{CSR+4+d}, v{CSR+d}")
        t(f"    v_and_b32 v{CSR+9+2*d}, 0xffff, v{BR + (d>>1)}" if d % 2 == 0 else f"    v_lshrrev_b32 v{CSR+9+2*d}, 16, v{BR + (d>>1)}")
    t(f"""    v_mul_f32 v9, v9, v9                 ; r^2
    v_xor_b32 v6, 0x80000000, v6
    v_lshrrev_b32 v4, 16, v6
    v_or_b32 v6, v6, v4                  ; (-m,-m)
    v_lshrrev_b32 v7, 16, v7             ; (den,0)
    v_and_b32 v3, 31, v2
    s_lshl_b32 s77, s34, 7
    s_add_u32 s77, s77, {TST}
    v_lshl_add_u32 v4, v3, 2, s77
    ds_write_b32 v4, v9
    s_lshl_b32 s77, s34, 8
    s_add_u32 s77, s77, {TRM}
    v_lshl_add_u32 v4, v3, 3, s77
    ds_write_b64 v4, v[6:7]
    s_mul_i32 s77, s34, 448
    s_add_u32 s77, s77, {TCB}
    v_lshl_add_u32 v3, v205, 2, s77
    ds_write_b128 v3, {vr(CSR+8,4)}
    ds_write_b128 v3, {vr(CSR+12,4)} offset:16
    v_mov_b32 v10, 0
    v_mov_b32 v11, 0
    v_mov_b32 v12, {TRM + 1024}
    ds_write_b64 v12, v[10:11]
    v_mov_b32 v12, {CNT}
    ds_write_b64 v12, v[10:11]""")
    nchk = NK1 - NS1 - (KP + 3)
    per = (len(t.lines) - 10 + nchk - 1) // nchk
    chunks = [t.lines[10 + i*per: 10 + (i+1)*per] for i in range(nchk)]
    for k in range(KP + 3, NK1 - NS1):
        a(f"    s_waitcnt vmcnt({12 + extra(k)})\n    s_barrier          ; b{k}")
        issueA1(); issueB1(); pf(k)
        if k == KP + 3:
            a(f"{L}_chk:\n    v_max_u32 v3, v{PSR}, v{PSR+1}")
            for i in range(2, 32 if mega else 16, 2): a(f"    v_max3_u32 v3, v3, v{PSR+i}, v{PSR+i+1}")
            a(f"""    v_cmp_eq_u32 vcc, -1, v3
    s_cmp_lg_u64 vcc, 0
    s_cbranch_scc1 {L}_retry""")
            for x in t.lines[:10]: a(x)
        else:
            for x in chunks.pop(0): a(x)
    srd(a, 16, 48, 3584 * 2048)
    final_addr()
    a(f"""    s_mul_i32 s58, s55, 7
    s_add_u32 s58, s58, 1
    s_lshr_b32 s58, s58, 1
    s_mul_i32 s66, s54, {1792*2048}
    s_lshl_b32 s36, s55, 8
    s_add_u32 s66, s66, s36
    s_lshl_b32 s31, s58, 17
    s_add_u32 s31, s31, s66          ; G2 B soffset
    s_add_u32 s67, s66, {28 << 17}
    s_mov_b32 s78, {1 if opt.xy else 's31'}
    s_add_u32 s79, s31, {3 << 17}
    s_lshl_b32 s38, s29, 14
    s_add_u32 s38, s38, s35
    s_add_u32 s39, s35, 65536
    s_lshl_b32 s36, s55, 15
    s_lshl_b32 s37, s34, 13
    s_add_u32 s36, s36, s37
    s_add_u32 s42, s36, s68
    s_waitcnt vmcnt({12 + extra(13)})
    s_barrier          ; b13""")
    stamp(a, 13)
    def issueB2(restart=False):
        a(f"    s_add_u32 m0, s38, {B2}\n    s_add_u32 s38, s38, 16384")
        for i in range(4): a(f"    buffer_load_dwordx4 v{LB2+i}, s[16:19], s31 offen offset:{i*1024} lds")
        a(f"""    s_add_u32 s31, s31, {64*2048}
    s_cmp_ge_u32 s38, s39
    s_cselect_b32 s38, s35, s38""")
        if opt.xy: a("    v_readlane_b32 s36, v72, s78\n    s_add_u32 s78, s78, 1\n    s_lshl_b32 s36, s36, 17\n    s_add_u32 s31, s36, s66")
        elif not opt.g2sync: a("    s_cmp_ge_u32 s31, s67\n    s_cselect_b32 s31, s66, s31")
        elif restart: a("    s_cmp_eq_u32 s66, s78\n    s_cselect_b32 s31, s31, s66")
        else: a("    s_cmp_eq_u32 s31, s78\n    s_cselect_b32 s31, s79, s31")
    issueB2()
    for x in chunks.pop(0): a(x)
    stamp(a, 15)
    a(f"    s_waitcnt vmcnt({4 + (1 if 12 in pfk else 0)})\n    s_barrier          ; b14")
    stamp(a, 14)
    assert not chunks
    issueB2()
    a("    s_waitcnt lgkmcnt(0)\n    s_barrier          ; b15")
    issueB2(restart=True); issueB2()
    stamp(a, 1)
    a(f"    s_add_u32 m0, s35, {RES}\n    s_nop 0")
    for i in range(4): a(f"    buffer_load_dwordx4 v{208+i}, s[12:15], s42 offen offset:{i*1024} {'sc1' if mega else ''} lds")
    srd(a, 12, 4, H1_SZ, off=H1_OFF); srd(a, 60, 4, FLG_SZ, off=FLG_OFF)
    a(f"""    s_lshr_b32 s36, s34, 1
    s_lshl_b32 s36, s36, 13
    s_and_b32 s37, s34, 1
    s_lshl_b32 s37, s37, 11              ; + 16*(lw&1)
    s_add_u32 s37, s37, s36
    v_lshl_add_u32 v7, v2, 4, s37
    s_lshl_b32 s36, s29, 14
    v_add_u32 v3, s36, v7
    s_cmp_eq_u32 s29, 1
    s_cselect_b32 s36, 0, 49152
    v_add_u32 v4, s36, v7
    v_lshrrev_b32 v5, 3, v2
    v_xor_b32 v5, v5, v2
    v_bfe_u32 v5, v5, 2, 1               ; c bit2
    v_cmp_eq_u32 vcc, s29, v5
    v_mov_b32 v6, 0x80000000
    s_mul_i32 s36, s27, 7
    s_lshr_b32 s36, s36, 1               ; ks0
    v_cndmask_b32 v5, v6, v4, vcc
    s_mul_i32 s37, s26, 56
    s_add_u32 s36, s36, s37
    s_lshl_b32 s40, s36, 14
    s_add_u32 s41, s40, 16384
    s_add_u32 s42, s40, 32768
    s_mul_i32 s68, s54, 28
    s_add_u32 s68, s68, s37
    s_lshl_b32 s68, s68, 14
    s_add_u32 s69, s68, {28 << 14}
    s_add_u32 s30, s58, 3
    s_lshl_b32 s30, s30, 14
    s_add_u32 s30, s30, s68
    s_mov_b32 s77, s30
    s_sub_u32 s76, s30, {3 << 14}
    {"s_cmp_eq_u32 s68, s76" if opt.g2sync else "s_cmp_ge_u32 s30, s69"}
    {"s_cselect_b32 s30, s30, s68" if opt.g2sync else "s_cselect_b32 s30, s68, s30"}
    s_add_u32 s70, s29, 3
    s_and_b32 s70, s70, 3
    s_lshl_b32 s70, s70, 14
    s_add_u32 s70, s70, s35
    s_lshl_b32 s45, s55, 2
    s_add_u32 s46, s56, {GRP_RDY:#x}
    s_add_u32 s45, s45, s46
    v_and_b32 v8, 7, v2
    v_lshlrev_b32 v8, 2, v8
    v_mov_b32 v10, 1""")
    if opt.xy: a("    v_readlane_b32 s36, v72, 3\n    s_mov_b32 s76, 4\n    s_lshl_b32 s36, s36, 14\n    s_add_u32 s30, s36, s68")
    zst = []
    for half in range(2):
        stamp(a, 16 + 2 * half)
        if half == 1: a(f"    s_waitcnt vmcnt({4 if opt.xy else 8})")
        a(f"    s_barrier                            ; E{half}")
        stamp(a, 17 + 2 * half)
        ho = 4096 * half
        items = [(3, 3, 40, 0, 0), (3, 3, 40, 0, 1), (4, 5, 40, 0, 0), (4, 5, 40, 0, 1), (3, 3, 41, 16384, 0), (3, 3, 41, 16384, 1), (3, 3, 42, 32768, 0), (3, 3, 42, 32768, 1)]
        for i, (vr_, vs_, so, lo, q) in enumerate(items):
            a(f"    ds_read_b128 {vr((80 if opt.xy else 32)+32*half+4*i,4)}, v{vr_} offset:{lo + ho + 1024*q}")
        RB = 80 if opt.xy else 32
        if half == 1 and not opt.xy: a("    s_add_u32 s40, s40, 4096\n    s_add_u32 s41, s41, 4096\n    s_add_u32 s42, s42, 4096")
        if half == 1 and opt.xy: a("    s_add_u32 s40, s40, 4096\n    s_add_u32 s47, s41, 4096\n    s_add_u32 s59, s42, 4096")
        for i, (vr_, vs_, so, lo, q) in enumerate(items):
            if opt.xy and i >= 4:
                if half == 1: so = {41: 47, 42: 59}[so]
                zst.append(f"    buffer_store_dwordx4 {vr(RB+32*half+4*i,4)}, v{vs_}, s[12:15], s{so} offen offset:{1024*q} sc1")
                continue
            a(f"    s_waitcnt lgkmcnt({7-i})\n    buffer_store_dwordx4 {vr(RB+32*half+4*i,4)}, v{vs_}, s[12:15], s{so} offen offset:{1024*q} sc1")
        if opt.xy and half == 1: a("    s_waitcnt lgkmcnt(0)")
    stamp(a, 3)
    a("    s_barrier          ; c0\n    s_barrier          ; c1\n    s_waitcnt vmcnt(0)")
    stamp(a, 4)
    a(f"""    s_mov_b64 exec, 1
    ds_add_rtn_u32 v13, v12, v10
    s_mov_b64 exec, -1
    s_waitcnt lgkmcnt(0)
    v_readfirstlane_b32 s36, v13
    s_cmp_eq_u32 s36, 3
    s_cbranch_scc0 {L}_wait2
    s_mov_b64 exec, 1
    buffer_store_dword v10, v11, s[60:63], s45 offen sc1
    s_mov_b64 exec, 0xff""")
    if opt.pp & 2:
        ppoll(a, f"{L}_rp", lambda r: f"    buffer_load_dword v{r}, v8, s[60:63], s46 offen sc1", "s_cmp_eq_u64 vcc, exec", (73, 74, 75))
    else:
        a(f"""{L}_poll2:
    buffer_load_dword v9, v8, s[60:63], s46 offen sc1
    s_waitcnt vmcnt(0)
    v_cmp_eq_u32 vcc, 1, v9
    s_cmp_eq_u64 vcc, exec
    s_cbranch_scc1 {L}_seen2
    s_sleep {opt.psleep}
    s_branch {L}_poll2
{L}_seen2:""")
    a(f"""    ds_write_b32 v12, v10 offset:4
    s_mov_b64 exec, -1""")
    issueB2(); issueB2()
    a(f"    s_branch {L}_go2\n{L}_wait2:")
    issueB2(); issueB2()
    a(f"""{L}_spin2:
    s_sleep 1
    ds_read_b32 v13, v12 offset:4
    s_waitcnt lgkmcnt(0)
    v_readfirstlane_b32 s36, v13
    s_cmp_eq_u32 s36, 1
    s_cbranch_scc0 {L}_spin2
{L}_go2:""")
    stamp(a, 5)
    def issueA2():
        a("    s_mov_b32 m0, s70\n    s_add_u32 s70, s70, 16384")
        for i in range(4): a(f"    buffer_load_dwordx4 v{LA}, s[12:15], s30 offen offset:{i*1024} {opt.a2f} lds")
        a("""    s_add_u32 s30, s30, 16384
    s_cmp_ge_u32 s70, s39
    s_cselect_b32 s70, s35, s70""")
        if opt.xy: a("    v_readlane_b32 s36, v72, s76\n    s_add_u32 s76, s76, 1\n    s_lshl_b32 s36, s36, 14\n    s_add_u32 s30, s36, s68")
        elif not opt.g2sync: a("    s_cmp_ge_u32 s30, s69\n    s_cselect_b32 s30, s68, s30")
        else: a("    s_cmp_eq_u32 s30, s76\n    s_cselect_b32 s30, s77, s30")
    issueA2(); issueA2()
    a("    s_waitcnt vmcnt(4)\n    s_barrier          ; c2")
    issueA2(); issueA2(); issueB2()
    if not opt.xy:
        a("    s_waitcnt vmcnt(12)\n    s_barrier          ; c3")
        issueA2(); issueB2()
        a(f"    s_branch {L}_nochk2\n{L}_chk2:\n{L}_nochk2:")
        k0 = 4
    else:
        for x in zst[:4]: a(x)
        a("    s_waitcnt vmcnt(16)\n    s_barrier          ; c3")
        for x in zst[4:]: a(x)
        issueA2(); issueB2()
        for k, cnt in ((4, 24), (5, 24), (6, 16), (7, 17), (8, 17), (9, 16)):
            a(f"    s_waitcnt vmcnt({cnt})\n    s_barrier          ; c{k}")
            if k == 6: a("    s_mov_b64 exec, 1\n    buffer_store_dword v10, v11, s[60:63], s45 offen offset:32 sc1\n    s_mov_b64 exec, -1")
            if k == 9: a("    buffer_load_dword v9, v8, s[60:63], s46 offen offset:32 sc1")
            issueA2(); issueB2()
        a(f"""    s_waitcnt vmcnt(8)
{L}_chk2:
    v_cmp_eq_u32 vcc, 1, v9
    s_cmp_eq_u64 vcc, -1
    s_cbranch_scc0 {L}_retry2
    s_barrier          ; c10""")
        issueA2(); issueB2()
        k0 = 11
    a(f"    s_mov_b32 s40, {k0}\n{L}_l2:\n    s_waitcnt vmcnt(16)\n    s_barrier")
    issueA2(); issueB2()
    a(f"    s_add_u32 s40, s40, 1\n    s_cmp_lt_u32 s40, {NK2-NS2}\n    s_cbranch_scc1 {L}_l2")
    for k in range(NK2 - NS2, NK2):
        left = max(0, NK2 - 1 - (k + 1))
        if k + 1 < NK2: a(f"    s_waitcnt vmcnt({left*8})")
        a("    s_barrier")
    stamp(a, 6)
    a(f"    s_branch {L}_epi2")
    ACC = 0; F0 = 112; F1 = 156; VA = 200; VB = 204; VBH = 235; SA = 212; ONE = 228
    wad = lambda ni: [213, 214, 215, 217, 218, 219, 221][ni]
    vbh = lambda ni: [235, 236, 237, 238, 239, 211, 232][ni]
    a(f"""{L}_cons:
    {f"s_setprio {opt.cprio}" if opt.cprio else ""}
    v_mov_b32 v240, v2               ; lane
    v_and_b32 v241, 15, v2           ; r
    v_lshrrev_b32 v242, 4, v2        ; kg
    v_lshlrev_b32 v243, 3, v242
    s_and_b32 s34, s33, 1            ; wm
    s_lshr_b32 s35, s33, 1           ; wn
    s_lshl_b32 s36, s34, 13          ; wm*64*128
    v_lshl_add_u32 v244, v241, 7, s36
    v_and_b32 v245, 7, v241          ; r7
    v_bfe_u32 v246, v240, 2, 2       ; rr
    v_lshl_add_u32 v247, v242, 3, v246   ; 8kg+rr
    v_and_b32 v248, 3, v240          ; cc
    v_lshlrev_b32 v248, 3, v248
    v_lshl_add_u32 v249, v247, 8, v248
    v_lshl_add_u32 v247, v247, 9, v248
    v_add_u32 v247, {BR1}, v247
    v_and_b32 v248, 1, v242
    v_lshl_or_b32 v246, v248, 2, v246    ; g
    s_lshl_b32 s37, s34, 2""")
    for mi in range(4):
        a(f"    s_add_u32 s38, s37, {mi}\n    v_xor_b32 v248, s38, v246\n    v_lshl_add_u32 v{VA+mi}, v248, 5, v249")
    a(f"""    s_mul_i32 s37, s35, 7
    s_lshl_b32 s38, s29, 1
    s_add_u32 s37, s37, s38          ; f0 = 2p + 7wn""")
    for ni in range(7):
        a(f"    s_add_u32 s38, s37, {ni}\n    v_xor_b32 v248, s38, v246\n    v_lshl_add_u32 v{VB+ni}, v248, 5, v247")
        a(f"    v_add_u32 v{vbh(ni)}, 0x10000, v{VB+ni}")
    for i in range(0, 112, 2): a(f"    v_mov_b64 {vr(ACC+i,2)}, 0")
    for i in range(4): a(f"    v_mov_b32 v{ONE+i}, 0x3f803f80")
    a(f"""    v_lshrrev_b32 v248, 2, v241
    v_and_b32 v249, 3, v240
    v_cmp_eq_u32 s[70:71], v248, v242
    v_cmp_eq_u32 s[64:65], 1, v249
    v_cmp_eq_u32 s[66:67], 2, v249
    v_cmp_eq_u32 s[68:69], 3, v249
    s_and_b32 s41, s27, 3
    s_add_u32 s41, s41, 1
    s_lshl_b32 s59, s26, 14
    s_xor_b32 s36, s35, 1
    s_lshl_b32 s36, s36, 13
    s_add_u32 s59, s59, s36
    s_lshl_b32 s36, s27, 9
    s_add_u32 s59, s59, s36
    s_lshl_b32 s36, s34, 8
    s_add_u32 s59, s59, s36
    s_mul_i32 s36, s35, 896
    s_add_u32 s36, s36, {TCB}
    v_lshl_add_u32 v233, v241, 3, s36
    s_lshl_b32 s36, s34, 9
    s_add_u32 s36, s36, {TRM}
    v_lshl_add_u32 v247, v241, 3, s36
    v_cmp_eq_u32 vcc, 0, v242
    v_mov_b32 v248, {TRM + 1024}
    v_mov_b32 v249, 128
    v_cndmask_b32 v252, v248, v247, vcc
    v_cndmask_b32 v249, 0, v249, vcc
    v_add_u32 v253, v252, v249
    v_add_u32 v254, v253, v249
    v_add_u32 v255, v254, v249
    v_lshrrev_b32 v246, 1, v242
    v_xor_b32 v246, v246, v245
    v_lshlrev_b32 v246, 4, v246          ; ((kg>>1)^r7)<<4
    v_and_b32 v247, 1, v242
    v_lshl_add_u32 v247, v247, 3, v244   ; m*128 + half*8""")
    for ni in range(7):
        a(f"""    s_add_u32 s38, s37, {ni}
    s_lshr_b32 s39, s38, 2
    s_lshl_b32 s39, s39, 14
    s_and_b32 s38, s38, 3
    s_lshl_b32 s38, s38, 5
    s_or_b32 s{76+ni if ni < 4 else 60+ni-4}, s38, s39""")
    a("    s_waitcnt lgkmcnt(0)")
    srd(a, 72, 4, 256 * 1024, off=PST_OFF)
    if opt.tagx:
        srd(a, 12, 4, 256 * 16384, off=XCH_OFF)
        a(f"""    v_lshlrev_b32 v248, 4, v240
    s_lshl_b32 s46, s2, 14
    s_lshl_b32 s36, s33, 12
    s_add_u32 s46, s46, s36
    s_xor_b32 s45, s46, {PX << 14:#x}""")
        for i in range(4): a(f"    v_mov_b32 v{F1+i}, -1")
        if opt.tagx == 2:
            for q in range(4): a(f"    buffer_store_dwordx4 {vr(F1,4)}, v248, s[12:15], s46 offen offset:{q*1024} sc1")
    stamp(a, 0)
    a("    s_barrier")
    if opt.tagx == 1:
        for q in range(4): a(f"    buffer_store_dwordx4 {vr(F1,4)}, v248, s[12:15], s46 offen offset:{q*1024} sc1")
    stamp(a, 1)
    CT = F0; MTR = F0 + 16
    def g1_tail(mf):
        stamp(a, 13)
        mf = [m for j, m in enumerate(mf) if (j & 3) < 2] + [m for j, m in enumerate(mf) if (j & 3) >= 2]
        fill = [f"    ds_read_b64 {vr(MTR+2*mi,2)}, v{252+mi}" for mi in range(4)]
        fill += [f"    ds_read_b64 {vr(CT+2*ni,2)}, v233 offset:{128*ni}" for ni in range(7)]
        fill += ["\n".join(f"    v_xad_u32 v{wad(ni)}, v246, s{76+ni if ni < 4 else 60+ni-4}, v247" for ni in q) for q in ((0, 1), (2, 3), (4, 5), (6,))]
        fill += [f"""    s_lshl_b32 s36, s55, 8
    s_lshl_b32 s38, s35, 7""", """    s_add_u32 s36, s36, s38
    s_mov_b32 s16, s50""", """    s_mov_b32 s17, s51
    s_mov_b32 s18, 2048""", "    s_mov_b32 s19, 0x00020000"]
        fill += [f"    buffer_load_dwordx2 {vr(232 + 2*ni, 2)}, v243, s[16:19], s36 offen offset:{32*ni}" for ni in range(4)]
        for j, m in enumerate(mf):
            a(m)
            if j < len(fill): a(fill[j])
        def corr(ni, mi):
            c = ACC + 4 * (mi * 7 + ni)
            a(f"    v_mfma_f32_16x16x16_bf16 {vr(c,4)}, {vr(CT+2*ni,2)}, {vr(MTR+2*mi,2)}, {vr(c,4)}")
        def act(ni, mi):
            c = ACC + 4 * (mi * 7 + ni)
            for x in range(4): a(f"    v_max_f32 v{c+x}, 0, v{c+x}")
            a(f"    v_pk_mul_f32 {vr(c,2)}, {vr(c,2)}, {vr(c,2)}\n    v_pk_mul_f32 {vr(c+2,2)}, {vr(c+2,2)}, {vr(c+2,2)}")
            a(f"    v_cvt_pk_bf16_f32 v{c}, v{c}, v{c+1}\n    v_cvt_pk_bf16_f32 v{c+1}, v{c+2}, v{c+3}")
            a(f"    ds_write_b64 v{wad(ni)}, {vr(c,2)} offset:{mi*2048}")
        a("    s_waitcnt lgkmcnt(0)")
        first = [(ni, mi) for ni in range(7) for mi in range(2)]; second = [(ni, mi) for ni in range(7) for mi in range(2, 4)]
        for x in first[:6]: corr(*x)
        a("    s_nop 1")
        rest = first[6:] + second
        for j, x in enumerate(first):
            for y in rest[2*j: 2*j + 2]: corr(*y)
            act(*x)
        stamp(a, 14)
        a("    s_waitcnt lgkmcnt(0)\n    s_barrier                            ; E0")
        stamp(a, 15)
        for x in second: act(*x)
    def rdA1(F, slot, kh):
        return [f"    ds_read_b64_tr_b16 {vr(F + 4*mi + 2*t, 2)}, v{VA+mi} offset:{slot*16384 + kh*8192 + t*1024}" for mi in range(4) for t in range(2)]
    def rdB1(F, slot, kh, ni):
        reg = VB + ni if slot < 2 else vbh(ni)
        return [f"    ds_read_b64_tr_b16 {vr(F + 16 + 4*ni + 2*t, 2)}, v{reg} offset:{(slot&1)*32768 + kh*16384 + t*2048}" for t in range(2)]
    loop_unrolled(a, L + "1", 4, 7, NK1, NS1, ACC, F0, F1, rdA1, rdB1, 40, opt.ga_bar, g1_tail,
                  hookA=lambda u: f"    s_cmp_eq_u32 s40, s41\n    s_cbranch_scc1 {L}_xa{u}\n{L}_xar{u}:",
                  hookB=lambda u: f"    s_cmp_eq_u32 s40, s41\n    s_cbranch_scc1 {L}_xb")
    a("    s_waitcnt lgkmcnt(0)")
    stamp(a, 2)
    a("    s_barrier                            ; E1")
    ACC = 0; G0 = 64; G1_ = 96; VA2 = 128; VB2 = 132; VBI = 232; RSD = 140
    a(f"""    s_lshl_b32 s36, s34, 13
    s_lshl_b32 s37, s54, 12
    s_add_u32 s36, s36, s37
    v_lshl_add_u32 v204, v241, 7, s36
    v_xor_b32 v206, v242, v245
    v_lshl_add_u32 v{VA2}, v206, 4, v204
    v_xor_b32 v{VA2+1}, 64, v{VA2}
    v_xor_b32 v{VA2+2}, 4096, v{VA2}
    v_xor_b32 v{VA2+3}, 4096, v{VA2+1}
    v_bfe_u32 v206, v240, 2, 2           ; rr
    v_lshl_add_u32 v207, v242, 3, v206
    v_lshlrev_b32 v207, 8, v207
    v_and_b32 v208, 3, v240
    v_lshl_add_u32 v207, v208, 3, v207
    v_add_u32 v207, {B2}, v207
    v_and_b32 v208, 1, v242
    v_lshl_or_b32 v206, v208, 2, v206    ; g
    s_lshl_b32 s37, s35, 2""")
    for ni in range(4):
        a(f"    s_add_u32 s38, s37, {ni}\n    v_xor_b32 v208, s38, v206\n    v_lshl_add_u32 v{VB2+ni}, v208, 5, v207")
    for i in range(0, 64, 2): a(f"    v_mov_b64 {vr(ACC+i,2)}, 0")
    stamp(a, 5)
    def g2_tail(mf):
        send = [m for j, m in enumerate(mf) if (j & 3) >= 2]; keep = [m for j, m in enumerate(mf) if (j & 3) < 2]
        for m in send: a(m)
        if opt.tagx:
            a(keep[0]); a("    v_lshlrev_b32 v203, 4, v240\n    s_mov_b32 s36, s46"); a(keep[1]); a("    s_nop 3")
        else:
            srd(a, 12, 4, 256 * 16384, off=XCH_OFF)
            a(keep[0])
            a(f"""    v_lshlrev_b32 v203, 4, v240
    s_lshl_b32 s36, s2, 14
    s_lshl_b32 s37, s33, 12
    s_add_u32 s36, s36, s37
    s_xor_b32 s45, s36, {PX << 14:#x}""")
            a(keep[1])
        for q in range(4):
            for h in range(2):
                c = ACC + 32 + 8 * q + 4 * h
                a(f"    v_cvt_pk_bf16_f32 v{G0 + 4*q + 2*h}, v{c}, v{c+1}\n    v_cvt_pk_bf16_f32 v{G0 + 4*q + 2*h + 1}, v{c+2}, v{c+3}")
            if opt.tagx:
                for d in range(4): a(f"    v_min_u32 v{G0+4*q+d}, -2, v{G0+4*q+d}")
            a(f"    buffer_store_dwordx4 {vr(G0+4*q,4)}, v203, s[12:15], s36 offen offset:{q*1024} sc1")
            for m in keep[2 + 2*q: 4 + 2*q]: a(m)
    def rdA2(F, slot, kh):
        return [f"    ds_read_b128 {vr(F + 4*mi, 4)}, v{VA2 + 2*(mi>>1) + kh} offset:{slot*16384 + (mi&1)*2048}" for mi in range(4)]
    def rdB2(F, slot, kh, ni):
        return [f"    ds_read_b64_tr_b16 {vr(F + 16 + 4*ni + 2*t, 2)}, v{VB2+ni} offset:{slot*16384 + kh*8192 + t*1024}" for t in range(2)]
    loop_unrolled(a, L + "2", 4, 4, NK2, NS2, ACC, G0, G1_, rdA2, rdB2, 40, opt.g2_bar, g2_tail, entry="s29")
    stamp(a, 6)
    srd(a, 60, 4, FLG_SZ, off=FLG_OFF)
    final_addr()
    a(f"""    v_bfe_u32 v206, v240, 2, 2           ; rr
    v_lshl_add_u32 v206, v242, 2, v206
    v_bfe_u32 v207, v206, 1, 2
    s_lshl_b32 s38, s34, 1
    v_xor_b32 v207, s38, v207
    v_lshlrev_b32 v207, 5, v207
    v_lshl_add_u32 v207, v206, 7, v207
    v_and_b32 v208, 3, v240
    v_lshl_add_u32 v207, v208, 3, v207
    s_lshl_b32 s38, s35, 13
    s_add_u32 s38, s38, {RES}
    v_add_u32 v207, s38, v207
    v_xor_b32 v208, 32, v207""")
    for j in range(8): a(f"    ds_read_b64_tr_b16 {vr(RSD+2*j,2)}, v{207 + (j>>2)} offset:{2048*(j&3)}")
    a(f"""    s_lshl_b32 s38, s34, 8
    s_lshl_b32 s39, s54, 7
    s_add_u32 s38, s38, s39
    s_add_u32 s38, s38, {TST}
    v_lshl_add_u32 v206, v241, 2, s38
    ds_read_b32 v192, v206
    ds_read_b32 v194, v206 offset:64""")
    a(f"""    s_lshl_b32 s36, s2, 9
    s_lshl_b32 s37, s33, 7
    s_add_u32 s36, s36, s37
    s_xor_b32 s37, s36, {PX << 9:#x}
    v_mov_b32 v209, 1
    v_mov_b32 v210, 0
    v_lshrrev_b32 v206, 1, v242
    v_xor_b32 v206, v206, v241           ; (kg>>1) ^ r
    s_lshl_b32 s38, s34, 13              ; 32wm*256
    v_lshl_add_u32 v207, v241, 8, s38
    v_and_b32 v208, 1, v242
    v_lshl_add_u32 v207, v208, 3, v207
    s_lshl_b32 s39, s35, 3""")
    for ni in range(4):
        a(f"    s_add_u32 s38, s39, {2*ni}\n    v_xor_b32 v208, s38, v206\n    v_lshl_add_u32 v{VB2+ni}, v208, 4, v207")
    if opt.tagx:
        a("    s_waitcnt vmcnt(4) lgkmcnt(0)")
    else:
        a(f"""    s_mov_b64 exec, 1
    s_waitcnt vmcnt(0)
    buffer_store_dword v209, v210, s[60:63], s36 offen sc1
    buffer_load_dword v211, v210, s[60:63], s37 offen sc1
    s_mov_b64 exec, -1
    s_waitcnt lgkmcnt(0)""")
    for ni in range(4):
        unpack(a, 216 + 4 * ni, VBI + 2 * ni); unpack(a, 218 + 4 * ni, VBI + 2 * ni + 1)
    for j in range(8):
        c = 160 + 4 * j; b = 216 + 4 * (j & 3)
        unpack(a, c, RSD + 2 * j); unpack(a, c + 2, RSD + 2 * j + 1)
        a(f"    v_pk_add_f32 {vr(c,2)}, {vr(c,2)}, {vr(b,2)}\n    v_pk_add_f32 {vr(c+2,2)}, {vr(c+2,2)}, {vr(b+2,2)}")
    if opt.tagx:
        a(f"{L}_poll:")
        for q in range(4): a(f"    buffer_load_dwordx4 {vr(G1_+4*q,4)}, v203, s[12:15], s45 offen offset:{q*1024} sc1")
        a(f"    s_waitcnt vmcnt(0)\n    v_max_u32 v212, v{G1_}, v{G1_+1}")
        for i in range(2, 16, 2): a(f"    v_max3_u32 v212, v212, v{G1_+i}, v{G1_+i+1}")
        a(f"    v_cmp_eq_u32 vcc, -1, v212\n    s_cmp_lg_u64 vcc, 0\n    s_cbranch_scc1 {L}_poll")
        stamp(a, 7)
    elif opt.pp & 4:
        a("    s_mov_b64 exec, 1")
        ppoll(a, f"{L}_xp", lambda r: f"    buffer_load_dword v{r}, v210, s[60:63], s37 offen sc1", "s_cmp_eq_u64 vcc, exec", (211, 196, 197), first_issued=True)
        a("    s_mov_b64 exec, -1")
        stamp(a, 7)
        for q in range(4):
            a(f"    buffer_load_dwordx4 {vr(G1_+4*q,4)}, v203, s[12:15], s45 offen offset:{q*1024} sc1")
    else:
        a(f"""    s_mov_b64 exec, 1
{L}_poll:
    s_waitcnt vmcnt(0)
    v_readfirstlane_b32 s38, v211
    s_cmp_eq_u32 s38, 1
    s_cbranch_scc1 {L}_seen
    buffer_load_dword v211, v210, s[60:63], s37 offen sc1
    s_branch {L}_poll
{L}_seen:
    s_mov_b64 exec, -1""")
        stamp(a, 7)
        for q in range(4):
            a(f"    buffer_load_dwordx4 {vr(G1_+4*q,4)}, v203, s[12:15], s45 offen offset:{q*1024} sc1")
    for j in range(8):
        mi, ni = j >> 2, j & 3
        c = ACC + 4 * j; p = G1_ + 2 * j
        if j % 2 == 0 and not opt.tagx: a(f"    s_waitcnt vmcnt({3 - j//2})")
        unpack(a, 212, p); unpack(a, 214, p + 1)
        a(f"""    v_pk_add_f32 {vr(c,2)}, {vr(c,2)}, v[212:213]
    v_pk_add_f32 {vr(c+2,2)}, {vr(c+2,2)}, v[214:215]
    v_pk_fma_f32 {vr(c,2)}, {vr(c,2)}, {vr(192+2*mi,2)}, {vr(160+4*j,2)} op_sel_hi:[1,0,1]
    v_pk_fma_f32 {vr(c+2,2)}, {vr(c+2,2)}, {vr(192+2*mi,2)}, {vr(162+4*j,2)} op_sel_hi:[1,0,1]
    v_cvt_pk_bf16_f32 v{c}, v{c}, v{c+1}
    v_cvt_pk_bf16_f32 v{c+1}, v{c+2}, v{c+3}
    ds_write_b64 v{VB2+ni}, {vr(c,2)} offset:{mi*4096}""")
    a("    s_waitcnt lgkmcnt(0)")
    stamp(a, 8)
    a(f"""{L}_epi2:
    v_mbcnt_lo_u32_b32 v2, -1, 0
    v_mbcnt_hi_u32_b32 v2, -1, v2
    v_lshrrev_b32 v3, 4, v2
    v_and_b32 v5, 15, v2
    v_lshlrev_b32 v6, 11, v3
    v_lshl_add_u32 v6, v5, 4, v6
    s_lshl_b32 s36, s33, 2
    v_add_u32 v3, s36, v3                ; lr (j=0)
    v_xor_b32 v4, v3, v2
    v_and_b32 v4, 15, v4
    v_lshlrev_b32 v4, 4, v4
    v_lshl_add_u32 v3, v3, 8, v4""")
    srd(a, 12, 52, MB4)
    a(f"""    s_barrier                            ; X3
    ds_read_b128 v[16:19], v3
    ds_read_b128 v[20:23], v3 offset:8192
    s_waitcnt lgkmcnt(1)
    buffer_store_dwordx4 v[16:19], v6, s[12:15], s43 offen {opt.outf}
    s_waitcnt lgkmcnt(0)
    buffer_store_dwordx4 v[20:23], v6, s[12:15], s44 offen {opt.outf}""")
    stamp(a, 9)
    if opt.stamps: a("    s_waitcnt vmcnt(0)")
    stamp(a, 10)
    stamp_end(a, kidx, 4, 33)
    a(f"{mega['end'] if mega else L + '_end'}:\n    s_endpgm")
    F0 = 112; F1 = 156
    def extra(F, first, tag):
        a(f"    s_cmp_eq_u32 s35, 0\n    s_cbranch_scc0 {L}_x1{tag}")
        for mi in range(4): a(f"    v_mfma_f32_16x16x32_bf16 {vr(SA+4*mi,4)}, {vr(F+4*mi,4)}, {vr(F+4*mi,4)}, {'0' if first else vr(SA+4*mi,4)}")
        a(f"    s_branch {L}_x2{tag}\n{L}_x1{tag}:")
        for mi in range(4): a(f"    v_mfma_f32_16x16x32_bf16 {vr(SA+4*mi,4)}, {vr(ONE,4)}, {vr(F+4*mi,4)}, {'0' if first else vr(SA+4*mi,4)}")
        a(f"{L}_x2{tag}:")
    for u in range(3):
        a(f"{L}_xa{u}:"); extra(F0, True, f"a{u}"); a(f"    s_branch {L}_xar{u}")
    a(f"{L}_xb:"); extra(F1, False, "b")
    a("    s_nop 7")
    for mi in range(4):
        c = SA + 4 * mi
        a(f"""    v_cndmask_b32 v{c}, v{c}, v{c+1}, s[64:65]
    v_cndmask_b32 v{c}, v{c}, v{c+2}, s[66:67]
    v_cndmask_b32 v{c}, v{c}, v{c+3}, s[68:69]
    v_cndmask_b32 v{c}, 0, v{c}, s[70:71]""")
    for sw in ("v_permlane16_swap_b32", "v_permlane32_swap_b32"):
        for mi in range(4): a(f"    v_mov_b32 v{SA+4*mi+1}, v{SA+4*mi}")
        for mi in range(4): a(f"    {sw} v{SA+4*mi+1}, v{SA+4*mi}")
        for mi in range(4): a(f"    v_add_f32 v{SA+4*mi}, v{SA+4*mi}, v{SA+4*mi+1}")
    a(f"""    v_cmp_eq_u32 vcc, 1, v242
    v_cmp_eq_u32 s[64:65], 2, v242
    v_cmp_eq_u32 s[66:67], 3, v242
    v_cndmask_b32 v{SA}, v{SA}, v{SA+4}, vcc
    v_cndmask_b32 v{SA}, v{SA}, v{SA+8}, s[64:65]
    v_cndmask_b32 v{SA}, v{SA}, v{SA+12}, s[66:67]
    v_lshlrev_b32 v{SA+1}, 2, v240
    v_min_u32 v{SA}, -2, v{SA}
    {"s_waitcnt vmcnt(0)" if opt.tagx else ""}
    buffer_store_dword v{SA}, v{SA+1}, s[72:75], s59 offen sc1
    s_cmp_eq_u32 s40, 2
    s_cbranch_scc1 {L}1_s2
    s_cmp_eq_u32 s40, 3
    s_cbranch_scc1 {L}1_s0
    s_branch {L}1_s1
{L}_retry2:
    buffer_load_dword v9, v8, s[60:63], s46 offen offset:32 sc1
    s_waitcnt vmcnt(0)
    s_branch {L}_chk2
{L}_retry:
    s_sleep 2""")
    gather_ps()
    if mega: gather_cs()
    a(f"    s_waitcnt vmcnt(0)\n    s_branch {L}_chk")
    return (name, 256, 512, 163840), (name, 256, 96)

gen.KGEN["ga"] = gen_ga
gen.KGEN["p2"] = gen_p2
gen.KGEN["c2"] = gen_c2
```

```python
import sys
from asmlib import *
import gen, gen2
from gen import stamp_loop, opt, stamp, stamp_begin, stamp_end, vr, gemm_consumer_loop, wave_sum, MB4, KVR_OFF, H1_OFF, H1_SZ, XCH_OFF, FLG_OFF
from gen2 import GRP_RDY, FLG_SZ

opt.pfk = {12: (0, 56)}
opt.b2tail = False
opt.tail2 = True
opt.pp = 0
opt.pgap = 4
opt.mq = False
opt.dly = None
opt.kp = 6
opt.outf = ''
opt.mpf = False
opt.mb2 = True
opt.msleep = 2
opt.cprio = 0
opt.lprio = 0
opt.xy = False
opt.map84 = True
opt.tagx = False
opt.g2sync = True
opt.a2f = 'sc1'
opt.tlbpf = False
opt.lagthr = 7
opt.norot = False
opt.ga_bar = 27
XT_OFF = 0x0400000
HT_OFF = 0x0800000
ST1_OFF = 0x0C00000
CS_OFF = 0x0C10000
PST_OFF = 0x0C80000

def unpack(a, dst, src): a(f"    v_lshlrev_b32 v{dst}, 16, v{src}\n    v_and_b32 v{dst+1}, 0xffff0000, v{src}")
def rnd(a, r): a(f"    v_cvt_pk_bf16_f32 v{r}, v{r}, v{r}\n    v_and_b32 v{r}, 0xffff0000, v{r}")

def gen_p2(a, kidx):
    name = "p_kernel"; L = "P"
    IS = 1056; VT = 17 * IS; XTL = 33 * IS; OST = 51840
    kernel_head(a, name)
    a(f"""    s_cmp_ge_u32 s2, 256
    s_cbranch_scc1 {L}_end
    s_load_dwordx4 s[4:7], s[0:1], {ARG['k']}      ; k, v
    s_load_dwordx4 s[8:11], s[0:1], {ARG['shift']}
    s_load_dwordx2 s[40:41], s[0:1], {ARG['ws']}
    s_load_dwordx2 s[42:43], s[0:1], {ARG['q']}""")
    stamp_begin(a)
    a(f"""    v_lshrrev_b32 v1, 6, v0
    v_and_b32 v2, 63, v0
    s_and_b32 s24, s2, 7             ; cb
    v_readfirstlane_b32 s33, v1
    s_lshr_b32 s25, s2, 3            ; rb
    v_and_b32 v3, 7, v2              ; cg
    v_lshrrev_b32 v4, 3, v2          ; rg
    s_and_b32 s34, s33, 3            ; w
    s_lshl_b32 s26, s25, 17
    s_lshl_b32 s27, s24, 8
    s_add_u32 s26, s26, s27
    v_lshrrev_b32 v5, 4, v2
    v_lshlrev_b32 v5, 11, v5
    v_and_b32 v6, 15, v2
    v_lshl_add_u32 v5, v6, 4, v5
    v_add_u32 v5, s26, v5
    v_subrev_u32 v6, 8192, v5
    s_lshl_b32 s27, s34, 15
    v_add_u32 v5, s27, v5
    s_movk_i32 s44, 8192
    s_movk_i32 s45, 16384
    s_movk_i32 s46, 24576
    s_mul_i32 s35, s34, {4*IS}
    v_mul_u32_u24 v7, {2*IS}, v4
    v_lshl_add_u32 v7, v3, 3, v7
    s_lshl_b32 s27, s34, 6
    v_add_u32 v7, s27, v7
    s_cmp_ge_u32 s33, 4
    s_cbranch_scc1 {L}_x""")
    so = ["0", "s44", "s45", "s46"]
    def tail_addr(rev, ldsbase, off):
        a(f"""    {"v_xor_b32 v13, 7, v4" if rev else "v_mov_b32 v13, v4"}
    v_xor_b32 v13, v13, v3
    v_lshlrev_b32 v13, 4, v13
    v_lshl_add_u32 v13, v3, 9, v13
    s_lshl_b32 s47, s33, 12
    s_add_u32 s47, s47, {OST}
    v_add_u32 v13, s47, v13
    v_lshl_add_u32 v14, v2, 4, s47
    v_lshrrev_b32 v15, 5, v2
    v_xor_b32 v15, v15, v3               ; x0 = (l&7)^(l>>5)
    v_lshlrev_b32 v9, 12, v4             ; (l>>3)*4096
    s_lshl_b32 s47, s24, 19
    s_lshl_b32 s48, s34, 17
    s_add_u32 s47, s47, s48              ; (cb*128+w*32)*4096
    s_lshl_b32 s48, s25, 7""")
        if rev: a(f"    s_sub_u32 s48, {3968 + off}, s48")
        else: a(f"    s_add_u32 s48, s48, {off:#x}")
        a("    s_add_u32 s47, s47, s48")
    def tail_out():
        a("    s_waitcnt lgkmcnt(0)")
        for i in range(4): a(f"    ds_read_b128 {vr(16+4*i,4)}, v14 offset:{1024*i}")
        for i in range(4): a(f"    v_xor_b32 v8, {2*i}, v15\n    v_lshl_add_u32 v{32+i}, v8, 4, v9")
        for i in range(4):
            a(f"    s_waitcnt lgkmcnt({3-i})\n    buffer_store_dwordx4 {vr(16+4*i,4)}, v{32+i}, s[36:39], s47 offen\n    s_add_u32 s47, s47, 32768")
    a(f"""    s_lshl_b32 s27, s24, 10
    s_lshl_b32 s28, s34, 8
    s_add_u32 s27, s27, s28
    v_lshlrev_b32 v8, 5, v3
    s_add_u32 m0, s35, {IS}
    s_waitcnt lgkmcnt(0)""")
    srd(a, 12, 4, MB4); srd(a, 16, 6, MB4); srd(a, 20, 8, 8192)
    KR = 16; VR = 38; WR = 54
    for j in range(4):
        a(f"    buffer_load_dwordx4 v5, s[12:15], {so[j]} offen nt lds\n    s_add_u32 m0, s35, {VT + j*IS}")
        a(f"    s_nop 0\n    buffer_load_dwordx4 v5, s[16:19], {so[j]} offen nt lds\n    s_add_u32 m0, s35, {(j+2)*IS}\n    s_nop 0" if j < 3 else f"    s_nop 0\n    buffer_load_dwordx4 v5, s[16:19], {so[j]} offen nt lds\n    s_mov_b32 m0, 0\n    s_nop 0")
    a("    buffer_load_dwordx4 v6, s[12:15], 0 offen nt lds")
    a(f"    buffer_load_dwordx4 {vr(WR,4)}, v8, s[20:23], s27 offen\n    buffer_load_dwordx4 {vr(WR+4,4)}, v8, s[20:23], s27 offen offset:16")
    srd(a, 28, 10, MB4); srd(a, 36, 40, 64 << 20)
    a(f"""    s_lshl_b32 s47, s2, 14
    v_lshlrev_b32 v9, 6, v0
    buffer_load_dword v10, v9, s[28:31], s47 offen
    s_mul_i32 s47, s2, 560
    s_add_u32 s47, s47, {FLG_OFF:#x}
    v_min_u32 v11, 139, v0
    v_lshlrev_b32 v11, 2, v11
    v_mov_b32 v12, 0
    buffer_store_dword v12, v11, s[36:39], s47 offen""")
    if opt.codepf:
        a(f"""    s_cmp_ge_u32 s2, 8
    s_cbranch_scc1 {L}_nocode
    s_getpc_b64 s[50:51]
{L}_pc:
    v_lshlrev_b32 v13, 7, v0
    v_min_u32 v13, TEXT_END - {L}_pc - 4, v13
    global_load_dword v62, v13, s[50:51]
{L}_nocode:""")
    tail_addr(True, 0, KVR_OFF)
    WF = 64; KF = 80; VF = 124; OF = 156; PK = 190
    stamp(a, 0)
    a("    s_waitcnt vmcnt(2)\n    s_barrier")
    stamp(a, 4)
    kro = lambda jj: ((1 + jj) >> 2) * IS + ((1 + jj) & 3) * 256
    order = [("k", 0), ("k", 1), ("k", 2)] + [x for j in range(8) for x in (("k", 3 + j), ("v", j))]
    def rd(x):
        if x[0] == "k": a(f"    ds_read_b64 {vr(KR + 2*x[1], 2)}, v7 offset:{kro(x[1])}")
        else: a(f"    ds_read_b64 {vr(VR + 2*x[1], 2)}, v7 offset:{VT + (x[1] >> 2)*IS + (x[1] & 3)*256}")
    for x in order[:13]: rd(x)
    for c in range(4):
        for j in range(4):
            src = WR + 2 * c + (j >> 1); d = WF + (c >> 1) * 8 + j * 2 + (c & 1)
            a(f"    v_lshlrev_b32 v{d}, 16, v{src}" if j % 2 == 0 else f"    v_and_b32 v{d}, 0xffff0000, v{src}")
    def unp2(dst, src):
        for p in range(2): unpack(a, dst + 2 * p, src + p)
    a("    s_waitcnt lgkmcnt(8)")
    for x in order[13:]: rd(x)
    for r in range(3): unp2(KF + 4 * r, KR + 2 * r)
    for j in range(8):
        if j: a(f"    s_waitcnt lgkmcnt({14 - 2*j})")
        unp2(KF + 4 * (3 + j), KR + 6 + 2 * j); unp2(VF + 4 * j, VR + 2 * j)
        for p in range(2):
            o = OF + 4 * j + 2 * p
            k = lambda r: vr(KF + 4 * r + 2 * p, 2)
            w = lambda t: vr(WF + p * 8 + 2 * t, 2)
            a(f"    v_pk_mul_f32 {vr(o,2)}, {k(j)}, {w(3)}")
            a(f"    v_pk_fma_f32 {vr(o,2)}, {k(j+1)}, {w(2)}, {vr(o,2)}")
            a(f"    v_pk_fma_f32 {vr(o,2)}, {k(j+2)}, {w(1)}, {vr(o,2)}")
            a(f"    v_pk_fma_f32 {vr(o,2)}, {k(j+3)}, {w(0)}, {vr(o,2)}")
            a(f"    v_pk_mul_f32 {vr(o,2)}, {vr(o,2)}, {vr(VF + 4*j + 2*p, 2)}")
    stamp(a, 1)
    for c in range(4):
        for d in range(4):
            a(f"    v_cvt_pk_bf16_f32 v{PK+4*c+d}, v{OF + 4*(7-2*d) + c}, v{OF + 4*(6-2*d) + c}")
        a(f"    ds_write_b128 v13, {vr(PK+4*c,4)} offset:{128*c}")
    a(f"    s_branch {L}_out")
    XT_ = 40; XR = 56; XF = 80; XC = 112; PKX = 144
    a(f"""{L}_x:
    s_lshl_b32 s27, s25, 6
    s_lshl_b32 s28, s24, 3
    s_add_u32 s27, s27, s28
    s_lshl_b32 s28, s34, 1
    s_add_u32 s27, s27, s28
    s_lshl_b32 s28, s27, 11
    v_lshlrev_b32 v6, 4, v2
    s_waitcnt lgkmcnt(0)""")
    srd(a, 12, 42, MB4)
    for j in range(4): a(f"    s_add_u32 m0, s35, {XTL + j*IS}\n    s_nop 0\n    buffer_load_dwordx4 v5, s[12:15], {so[j]} offen lds")
    for i in range(4): a(f"    buffer_load_dwordx4 {vr(XR+4*i,4)}, v6, s[12:15], s28 offen offset:{1024*i}")
    srd(a, 36, 40, 64 << 20)
    a(f"""    s_lshl_b32 s47, s2, 10
    s_lshl_b32 s48, s34, 8
    s_add_u32 s47, s47, s48
    s_add_u32 s47, s47, {PST_OFF:#x}
    v_lshlrev_b32 v11, 2, v2
    v_mov_b32 v12, -1
    buffer_store_dword v12, v11, s[36:39], s47 offen
    s_mov_b32 s49, 0x05040100
    s_mov_b32 s50, 0x07060302
    s_mov_b32 s51, 0x3a800000
    s_mov_b32 s52, 0x3727c5ac
    s_lshl_b32 s27, s27, 2
    s_add_u32 s27, s27, {ST1_OFF:#x}
    s_add_u32 s28, s27, 8192""")
    tail_addr(False, 0, XT_OFF)
    stamp(a, 0)
    a("    s_waitcnt vmcnt(5)\n    s_barrier")
    stamp(a, 4)
    for j in range(8): a(f"    ds_read_b64 {vr(XT_+2*j,2)}, v7 offset:{XTL + (j >> 2)*IS + (j & 3)*256}")
    a("    s_waitcnt lgkmcnt(0)")
    for c in range(4):
        for d in range(4):
            a(f"    v_perm_b32 v{PKX+4*c+d}, v{XT_ + 2*(2*d+1) + (c>>1)}, v{XT_ + 2*(2*d) + (c>>1)}, s{49 + (c&1)}")
        a(f"    ds_write_b128 v13, {vr(PKX+4*c,4)} offset:{128*c}")
    tail_out()
    S = [8, 9]; T = [10, 11]; M = [12, 14]; PS = [72, 74]
    a("    s_waitcnt vmcnt(5)")
    for rho in range(2):
        for i in range(8): unpack(a, XF + 16 * rho + 2 * i, XR + 8 * rho + i)
    src = lambda rho, i: XF + 16 * rho + 2 * i
    for rho in range(2): a(f"    v_pk_add_f32 {vr(PS[rho],2)}, {vr(src(rho,0),2)}, {vr(src(rho,1),2)}")
    for i in range(2, 8):
        for rho in range(2): a(f"    v_pk_add_f32 {vr(PS[rho],2)}, {vr(PS[rho],2)}, {vr(src(rho,i),2)}")
    for rho in range(2): a(f"    v_add_f32 v{S[rho]}, v{PS[rho]}, v{PS[rho]+1}")
    wave_sum(a, S, T)
    for rho in range(2): a(f"    v_mul_f32 v{M[rho]}, s51, v{S[rho]}")
    for i in range(8):
        for rho in range(2):
            a(f"    v_pk_add_f32 {vr(src(rho,i),2)}, {vr(src(rho,i),2)}, {vr(M[rho],2)} op_sel_hi:[1,0] neg_lo:[0,1] neg_hi:[0,1]")
    for rho in range(2): a(f"    v_pk_mul_f32 {vr(PS[rho],2)}, {vr(src(rho,0),2)}, {vr(src(rho,0),2)}")
    for i in range(1, 8):
        for rho in range(2): a(f"    v_pk_fma_f32 {vr(PS[rho],2)}, {vr(src(rho,i),2)}, {vr(src(rho,i),2)}, {vr(PS[rho],2)}")
    for rho in range(2): a(f"    v_add_f32 v{S[rho]}, v{PS[rho]}, v{PS[rho]+1}")
    wave_sum(a, S, T)
    for rho in range(2):
        a(f"    v_mov_b32 v{76+rho}, v{M[rho]}"); rnd(a, 76 + rho)
        a(f"    v_mul_f32 v{78+rho}, s51, v{S[rho]}"); rnd(a, 78 + rho); a(f"    v_add_f32 v{78+rho}, s52, v{78+rho}"); rnd(a, 78 + rho)
    a("    v_sqrt_f32 v78, v78\n    v_sqrt_f32 v79, v79\n    s_nop 0")
    for rho in range(2): rnd(a, 78 + rho)
    a("""    v_rcp_f32 v78, v78
    v_rcp_f32 v79, v79
    v_mov_b32 v6, 0
    s_mov_b64 exec, 1
    buffer_store_dwordx2 v[76:77], v6, s[36:39], s27 offen
    buffer_store_dwordx2 v[78:79], v6, s[36:39], s28 offen
    s_mov_b64 exec, -1""")
    stamp(a, 1)
    a(f"    s_branch {L}_done\n{L}_out:")
    tail_out()
    a(f"{L}_done:")
    stamp(a, 2)
    if opt.stamps: a("    s_waitcnt vmcnt(0)")
    stamp(a, 3)
    stamp_end(a, kidx, 40, 33)
    a(f"{L}_end:\n    s_endpgm")
    return (name, 256, 512, OST + 32768), (name, 256 if opt.stamps else 208, 96)

def gen_c2(a, kidx):
    name = "c_kernel"; L = "C"
    CS = 4160; RO = 4 * CS; WSZ = 21248; STG = 4 * WSZ
    kernel_head(a, name)
    a(f"""    s_cmp_ge_u32 s2, 256
    s_cbranch_scc1 {L}_end
    s_load_dwordx4 s[4:7], s[0:1], {ARG['ssmk']}
    s_load_dwordx2 s[40:41], s[0:1], {ARG['ws']}
    s_load_dwordx2 s[10:11], s[0:1], {ARG['w1']}
    s_load_dwordx2 s[42:43], s[0:1], {ARG['w2']}""")
    stamp_begin(a)
    a(f"""    v_lshrrev_b32 v1, 6, v0
    v_and_b32 v2, 63, v0
    s_and_b32 s24, s2, 7
    v_readfirstlane_b32 s33, v1
    s_lshl_b32 s24, s24, 5
    s_lshr_b32 s25, s2, 3
    s_add_u32 s24, s24, s25          ; cg
    s_cmp_ge_u32 s33, 4
    s_cbranch_scc1 {L}_help
    s_lshl_b32 s25, s24, 2
    s_add_u32 s25, s25, s33          ; ch
    s_lshl_b32 s26, s25, 12          ; ch*4096
    s_mul_i32 s27, s33, {WSZ}        ; WB
    v_lshlrev_b32 v3, 4, v2          ; lane*16
    s_add_u32 m0, s27, {RO}
    s_lshr_b32 s28, s25, 1
    s_lshl_b32 s28, s28, 2
    s_waitcnt lgkmcnt(0)""")
    srd(a, 12, 4, MB4); srd(a, 16, 40, 64 << 20)
    FD = 16; FE = 32; FX = 48; TO = 52
    for i in range(4):
        a(f"    buffer_load_dwordx4 {vr(FD+4*i,4)}, v3, s[12:15], s26 offen offset:{1024*i}")
        a(f"    buffer_load_dwordx4 {vr(FE+4*i,4)}, v3, s[12:15], s26 offen offset:{1024*i+4}")
        a(f"    buffer_load_dword v{FX+i}, v3, s[12:15], s26 offen offset:{1024*i+20}")
    for i in range(4): a(f"    buffer_load_dwordx4 v3, s[16:19], s26 offen offset:{1024*i} lds")
    a(f"""    s_load_dword s29, s[6:7], s28
    v_add_u32 v4, s27, v3
    v_mov_b32 v60, 0
    v_mov_b32 v61, 0
    v_mov_b32 v62, 0
    v_mov_b32 v63, 0
    s_mov_b64 exec, 0x3fffffff
    ds_write_b128 v4, v[60:63] offset:{RO + 4096}
    s_mov_b64 exec, -1
    v_and_b32 v5, 15, v2             ; b / a
    v_lshrrev_b32 v6, 4, v2          ; kg
    v_add_u32 v7, 1, v5
    v_and_b32 v8, 3, v7
    v_mul_u32_u24 v8, {CS}, v8
    v_and_b32 v7, 28, v7
    v_lshl_add_u32 v8, v7, 1, v8
    v_lshl_add_u32 v8, v6, 4, v8
    v_add_u32 v8, s27, v8            ; vAT
    v_lshlrev_b32 v9, 5, v5
    v_lshl_add_u32 v10, v6, 3, v9    ; 32a + 8g
    v_sub_u32 v9, {RO + 480}, v9
    v_lshl_add_u32 v9, v6, 4, v9
    v_add_u32 v9, s27, v9            ; vBT
    s_add_u32 s34, s26, {XT_OFF:#x}""")
    stamp(a, 0)
    for i in range(4):
        D = FD + 4 * i; E = FE + 4 * i
        a(f"    s_waitcnt vmcnt({4 + 9 - 3*i})")
        a(f"    ds_write_b128 v4, {vr(D,4)} offset:{32 + 1024*i}")
        a(f"    ds_write_b128 v4, {vr(E,4)} offset:{2*CS + 32 + 1024*i}")
        t = TO + 8 * (i & 1)
        for k in range(4): a(f"    v_alignbit_b32 v{t+k}, v{E+k}, v{D+k}, 16")
        a(f"    ds_write_b128 v4, {vr(t,4)} offset:{CS + 32 + 1024*i}")
        for k in range(4): a(f"    v_alignbit_b32 v{t+4+k}, v{E+k+1 if k < 3 else FX+i}, v{E+k}, 16")
        a(f"    ds_write_b128 v4, {vr(t+4,4)} offset:{3*CS + 32 + 1024*i}")
        if i == 0:
            a(f"""    v_mov_b32 v68, 0
    v_mov_b32 v69, 0
    v_mov_b32 v70, 0
    v_lshlrev_b32 v71, 16, v{D}
    v_mov_b32 v72, 0
    v_mov_b32 v73, 0
    v_mov_b32 v74, 0
    v_mov_b32 v75, v{D}
    v_mov_b32 v76, 0
    v_mov_b32 v77, 0
    v_mov_b32 v78, v71
    v_mov_b32 v79, v{t}
    s_mov_b64 exec, 1
    ds_write_b128 v4, v[60:63]
    ds_write_b128 v4, v[60:63] offset:16
    ds_write_b128 v4, v[60:63] offset:{CS}
    ds_write_b128 v4, v[68:71] offset:{CS+16}
    ds_write_b128 v4, v[60:63] offset:{2*CS}
    ds_write_b128 v4, v[72:75] offset:{2*CS+16}
    ds_write_b128 v4, v[60:63] offset:{3*CS}
    ds_write_b128 v4, v[76:79] offset:{3*CS+16}
    s_mov_b64 exec, -1""")
    ACC = 80; F0 = 112; F1 = 176
    for i in range(0, 32, 2): a(f"    v_mov_b64 {vr(ACC+i,2)}, 0")
    a(f"""    v_mov_b32 v34, {STG + 16384}
    v_mov_b32 v35, 0
    ds_write_b32 v34, v35
    s_waitcnt vmcnt(0) lgkmcnt(0)""")
    for n in range(8): a(f"    buffer_load_dwordx2 {vr(FD + 2*n, 2)}, v10, s[16:19], s34 offen offset:{512*n}")
    a("    s_barrier")
    stamp(a, 1)
    def reads(F, woff):
        r = []
        for u in range(8):
            r.append(f"    ds_read_b128 {vr(F+32+4*u,4)}, v9 offset:{3584 - 512*u + woff}")
            r.append(f"    ds_read_b64 {vr(F+4*u,2)}, v8 offset:{512*u + woff}")
            r.append(f"    ds_read_b64 {vr(F+4*u+2,2)}, v8 offset:{512*u + 8 + woff}")
        return r
    def mf(F):
        return [f"    v_mfma_f32_16x16x32_bf16 {vr(ACC+4*(u+v),4)}, {vr(F+4*u,4)}, {vr(F+32+4*v,4)}, {vr(ACC+4*(u+v),4)}" for u in range(8) for v in range(8 - u)]
    def weave(m, f):
        i = 0
        for x in m:
            a(x)
            if i < len(f): a(f[i]); i += 1
    for l in reads(F0, 0): a(l)
    a(f"    s_mov_b32 s35, 0\n{L}_loop:\n    s_waitcnt lgkmcnt(0)")
    weave(mf(F0), reads(F1, 64) + ["    ds_read_b32 v35, v34", "    v_add_u32 v8, 128, v8", "    v_add_u32 v9, 128, v9", "    s_add_u32 s35, s35, 1", "    s_cmp_eq_u32 s35, 4"])
    a(f"    s_waitcnt lgkmcnt(0)\n    s_cbranch_scc1 {L}_last")
    weave(mf(F1), reads(F0, 0))
    a(f"""    s_branch {L}_loop
{L}_again:
    s_sleep 1
    ds_read_b32 v35, v34
    s_waitcnt lgkmcnt(0)
{L}_last:
    v_readfirstlane_b32 s36, v35
    s_cmp_eq_u32 s36, 4
    s_cbranch_scc0 {L}_again""")
    KV = F0; MT = F0 + 16
    pre = [f"""    v_sub_u32 v32, {RO + 504}, v10
    v_add_u32 v32, s27, v32""",
           f"""    v_lshlrev_b32 v33, 1, v10
    v_add_u32 v33, {STG}, v33"""]
    pre += [f"    ds_read_b64 {vr(KV+2*n,2)}, v32 offset:{512*(7-n)}" for n in range(8)]
    pre += [f"    ds_read_b128 {vr(MT+4*n,4)}, v33 offset:{1024*n}" for n in range(8)]
    RTB = 36
    pre += [f"    ds_read_b128 {vr(RTB+4*n,4)}, v33 offset:{8192 + 1024*n}" for n in range(8)]
    pre += [f"""    s_lshl_b32 s35, s29, 16
    s_and_b32 s36, s29, 0xffff0000""", f"""    s_bitcmp1_b32 s25, 0
    s_cselect_b32 s35, s36, s35          ; D as f32""",
            f"""    s_and_b32 s36, s25, 3
    s_bfe_u32 s37, s25, 0x10003""", f"""    s_lshl_b32 s37, s37, 2
    s_or_b32 s36, s36, s37               ; g(d)""",
            f"""    v_and_b32 v11, 7, v5
    v_xor_b32 v11, s36, v11""", f"""    v_lshlrev_b32 v11, 5, v11
    v_lshrrev_b32 v12, 3, v5""", f"""    v_lshl_add_u32 v11, v12, 18, v11
    v_and_b32 v12, 1, v6""", f"""    v_lshl_add_u32 v11, v12, 19, v11
    v_lshrrev_b32 v12, 1, v6""", f"""    v_lshl_add_u32 v11, v12, 4, v11
    s_lshl_b32 s34, s25, 8""", f"""    s_add_u32 s34, s34, {HT_OFF:#x}"""]
    weave(mf(F1), pre)
    stamp(a, 2)
    a("    s_waitcnt vmcnt(0) lgkmcnt(0)")
    OUT = 224
    order = [0, 1, 2, 3, 4, 5, 6, 7]
    for n in order:
        c = ACC + 4 * n; k = KV + 2 * n; x = FD + 2 * n; o = OUT + 2 * n
        a(f"""    v_and_b32 v12, 0xffff0000, v{k+1}
    v_lshlrev_b32 v13, 16, v{k+1}
    v_and_b32 v14, 0xffff0000, v{k}
    v_lshlrev_b32 v15, 16, v{k}
    v_fmac_f32 v{c}, s35, v12
    v_fmac_f32 v{c+1}, s35, v13
    v_fmac_f32 v{c+2}, s35, v14
    v_fmac_f32 v{c+3}, s35, v15
    v_lshlrev_b32 v12, 16, v{x}
    v_and_b32 v13, 0xffff0000, v{x}
    v_lshlrev_b32 v14, 16, v{x+1}
    v_and_b32 v15, 0xffff0000, v{x+1}
    v_pk_mul_f32 {vr(c,2)}, {vr(c,2)}, {vr(RTB+4*n,2)}
    v_pk_mul_f32 {vr(c+2,2)}, {vr(c+2,2)}, {vr(RTB+4*n+2,2)}
    v_pk_add_f32 {vr(MT+4*n,2)}, v[12:13], {vr(MT+4*n,2)} neg_lo:[0,1] neg_hi:[0,1]
    v_pk_add_f32 {vr(MT+4*n+2,2)}, v[14:15], {vr(MT+4*n+2,2)} neg_lo:[0,1] neg_hi:[0,1]
    v_pk_fma_f32 v[12:13], {vr(MT+4*n,2)}, {vr(c,2)}, v[12:13]
    v_pk_fma_f32 v[14:15], {vr(MT+4*n+2,2)}, {vr(c+2,2)}, v[14:15]
    v_cvt_pk_bf16_f32 v{o}, v12, v13
    v_cvt_pk_bf16_f32 v{o+1}, v14, v15""")
        if n & 1:
            a(f"""    s_nop 0
    v_permlane16_swap_b32 v{o-2}, v{o}
    v_permlane16_swap_b32 v{o-1}, v{o+1}
    buffer_store_dwordx4 {vr(o-2,4)}, v11, s[16:19], s34 offen
    s_add_u32 s34, s34, 0x100000""")
    stamp(a, 3)
    a(f"    s_branch {L}_done")
    W = 16; WF = 48
    a(f"""{L}_help:
    s_and_b32 s34, s33, 3
    s_and_b32 s25, s2, 15            ; k slice
    s_lshr_b32 s26, s2, 4
    s_mul_i32 s27, s25, {64*7168}
    s_lshl_b32 s28, s26, 9
    s_lshl_b32 s29, s34, 7
    s_add_u32 s28, s28, s29
    s_add_u32 s27, s27, s28
    v_lshrrev_b32 v3, 3, v2
    v_mul_u32_u24 v3, 7168, v3
    v_and_b32 v4, 7, v2
    v_lshl_add_u32 v3, v4, 4, v3
    s_waitcnt lgkmcnt(0)""")
    srd(a, 12, 10, 1024 * 7168); srd(a, 16, 40, 64 << 20)
    a(f"""    s_lshl_b32 s30, s34, 12
    s_add_u32 m0, s30, {STG}
    s_add_u32 s30, s30, {ST1_OFF:#x}
    v_lshlrev_b32 v5, 4, v2
    v_mov_b32 v8, {STG + 16384}
    v_mov_b32 v9, 1
    s_barrier""")
    for i in range(4): a(f"    buffer_load_dwordx4 v5, s[16:19], s30 offen offset:{1024*i} lds")
    a("""    s_waitcnt vmcnt(0)
    s_mov_b64 exec, 1
    ds_add_u32 v8, v9
    s_mov_b64 exec, -1""")
    if opt.tlbpf:
        srd(a, 20, 42, 3584 * 2048)
        a(f"""    s_lshr_b32 s30, s2, 3
    s_mul_i32 s30, s30, {56*4096}
    v_lshlrev_b32 v5, 12, v2
    s_cmp_eq_u32 s34, 1
    s_cbranch_scc1 {L}_t1
    s_cmp_eq_u32 s34, 0
    s_cbranch_scc0 {L}_t2
    buffer_load_dword v7, v5, s[12:15], s30 offen
    s_branch {L}_t3
{L}_t1:
    buffer_load_dword v7, v5, s[20:23], s30 offen
    s_branch {L}_t3
{L}_t2:
    s_lshl_b32 s30, s30, 1
    s_and_b32 s31, s34, 1
    s_mul_i32 s31, s31, {56*4096}
    s_add_u32 s30, s30, s31
    s_add_u32 s30, s30, {H1_OFF:#x}
    buffer_load_dword v7, v5, s[16:19], s30 offen
{L}_t3:""")
    a(f"""    s_cmp_ge_u32 s2, 224
    s_cbranch_scc1 {L}_done""")
    for i in range(8):
        a(f"    buffer_load_dwordx4 {vr(W+4*i,4)}, v3, s[12:15], s27 offen\n    s_add_u32 s27, s27, {8*7168}")
    if opt.c_pf2:
        srd(a, 20, 42, 3584 * 2048)
        a(f"""    s_mul_i32 s30, s2, 32768
    s_lshl_b32 s31, s34, 13
    s_add_u32 s30, s30, s31
    v_lshlrev_b32 v5, 7, v2
    buffer_load_dword v6, v5, s[20:23], s30 offen""")
    ex = 1 if opt.c_pf2 else 0
    for i in range(8):
        a(f"    s_waitcnt vmcnt({7 - i + ex})")
        if i == 0:
            for d in range(4): unpack(a, WF + 2 * d, W + d)
        else:
            for d in range(4):
                unpack(a, WF + 8 + 2 * (d & 1), W + 4 * i + d)
                a(f"    v_pk_add_f32 {vr(WF+2*d,2)}, {vr(WF+2*d,2)}, {vr(WF + 8 + 2*(d&1),2)}")
    for d in range(8): a(f"    v_add_f32_dpp v{WF+d}, v{WF+d}, v{WF+d} row_ror:8 row_mask:0xf bank_mask:0xf")
    for sw in ("v_permlane16_swap_b32", "v_permlane32_swap_b32"):
        for d in range(8): a(f"    v_mov_b32 v{WF+8+d}, v{WF+d}")
        for d in range(8): a(f"    {sw} v{WF+8+d}, v{WF+d}")
        for d in range(8): a(f"    v_add_f32 v{WF+d}, v{WF+d}, v{WF+8+d}")
    a(f"""    s_mul_i32 s27, s25, {3584*4}
    s_lshl_b32 s28, s28, 1
    s_add_u32 s27, s27, s28
    s_add_u32 s27, s27, {CS_OFF:#x}
    v_lshlrev_b32 v4, 5, v4
    s_mov_b64 exec, 0xff
    buffer_store_dwordx4 {vr(WF,4)}, v4, s[16:19], s27 offen
    buffer_store_dwordx4 {vr(WF+4,4)}, v4, s[16:19], s27 offen offset:16
    s_mov_b64 exec, -1
{L}_done:""")
    stamp(a, 4)
    if opt.stamps: a("    s_waitcnt vmcnt(0)")
    stamp(a, 5)
    stamp_end(a, kidx, 40, 33)
    a(f"{L}_end:\n    s_endpgm")
    return (name, 256, 512, STG + 16384 + 64), (name, 256 if opt.stamps else 240, 96)


def ppoll(a, tag, load, cmpl, regs, first_issued=False):
    for i, r in enumerate(regs):
        if i or not first_issued: a(load(r))
        if i < 2: a(f"    s_sleep {opt.pgap}")
    a(f"{tag}_l:")
    for r in regs:
        a(f"    s_waitcnt vmcnt(2)\n    v_cmp_eq_u32 vcc, 1, v{r}\n    {cmpl}\n    s_cbranch_scc1 {tag}_e")
        a(load(r))
    a(f"    s_branch {tag}_l\n{tag}_e:")

def loop_unrolled(a, L, MI, NI, nk, ns, acc, F0, F1, rdA, rdB, s_k, bar, tail, hookA=None, hookB=None, entry=None):
    n = MI * NI
    def reads(F, slot, kh):
        r = rdA(F, slot, kh)
        for ni in range(NI): r += rdB(F, slot, kh, ni)
        return r
    def mfmas(F):
        return [f"    v_mfma_f32_16x16x32_bf16 {vr(acc + 4*(mi*NI+ni),4)}, {vr(F + 4*MI + 4*ni, 4)}, {vr(F + 4*mi, 4)}, {vr(acc + 4*(mi*NI+ni),4)}" for ni in range(NI) for mi in range(MI)]
    def place(mf, items, start, extra):
        gaps = [[] for _ in mf]
        for j, it in enumerate(items): gaps[start + j].append(it)
        for k, v in extra.items(): gaps[k] += v
        for m, gl in zip(mf, gaps):
            a(m)
            for x in gl: a(x)
    nrd = len(reads(F0, 0, 0))
    late = bar >= n
    st = bar - n + 1 if late else 0
    lagB = st + nrd > n - opt.lagthr
    a(f"    s_mov_b32 s{s_k}, 0")
    if entry is None:
        for l in reads(F0, 0, 0): a(l)
    else:
        a(f"    s_cmp_eq_u32 {entry}, 0\n    s_cbranch_scc1 {L}_e0")
        for l in reads(F0, 1, 0): a(l)
        a(f"    s_branch {L}_s1\n{L}_e0:")
        for l in reads(F0, 0, 0): a(l)
    for u in range(ns):
        a(f"{L}_s{u}:")
        ex = {}
        if lagB:
            a(f"    s_waitcnt lgkmcnt({2*(NI-1)})")
            for ni in range(1, NI):
                ex.setdefault(MI * ni - 1, []).append(f"    s_waitcnt lgkmcnt({min(15, 2*(NI-1-ni) + min(nrd, MI*ni))})")
        else:
            a("    s_waitcnt lgkmcnt(0)")
        ex.setdefault(n - 3, []).append(f"    s_add_u32 s{s_k}, s{s_k}, 1")
        ex.setdefault(n - 2, []).append(f"    s_cmp_eq_u32 s{s_k}, {nk}")
        if not late: ex.setdefault(bar, []).append("    s_waitcnt lgkmcnt(0)\n    s_barrier")
        ex.setdefault(n - 1, []).append(f"    s_cbranch_scc1 {L}_tail")
        if late: ex[n - 1].append(f"    s_waitcnt lgkmcnt({2*(NI-1)})")
        if hookA: ex[n - 1].append(hookA(u))
        place(mfmas(F0), reads(F1, u, 1), 0, ex)
        ex = {}
        if late: ex[bar - n] = ["    s_waitcnt lgkmcnt(0)\n    s_barrier"]
        if hookB: ex.setdefault(n - 1, []).append(hookB(u))
        if u == ns - 1: ex.setdefault(n - 1, []).append(f"    s_branch {L}_s0")
        place(mfmas(F1), reads(F0, (u + 1) % ns, 0), st, ex)
    a(f"{L}_tail:")
    if late: a("    s_waitcnt lgkmcnt(0)\n    s_barrier")
    tail(mfmas(F1))

def gen_ga(a, kidx, mega=None):
    name = "g_kernel"; L = "G"
    PX = 4 if opt.map84 else 1
    MAP = """    s_lshr_b32 s26, s24, 1
    s_lshl_b32 s26, s26, 2
    s_and_b32 s27, s25, 3
    s_add_u32 s26, s26, s27          ; mt
    s_and_b32 s54, s24, 1
    s_lshr_b32 s55, s25, 2
    s_lshl_b32 s56, s24, 2
    s_add_u32 s56, s56, s27
    s_lshl_b32 s56, s56, 7           ; group*128
    s_lshl_b32 s27, s54, 3
    s_add_u32 s27, s27, s55          ; nt
""" if not opt.map84 else ("""    s_and_b32 s26, s24, 1
    s_lshl_b32 s26, s26, 3
    s_and_b32 s27, s25, 7
    s_add_u32 s26, s26, s27          ; mt""" if not (mega and mega["two"]) else """    s_and_b32 s26, s24, 1
    s_lshl_b32 s26, s26, 2
    s_and_b32 s27, s25, 3
    s_add_u32 s26, s26, s27
    s_and_b32 s27, s25, 4
    s_lshl_b32 s27, s27, 1
    s_add_u32 s26, s26, s27          ; mt: four early and four late row tiles per die""") + """
    s_lshr_b32 s27, s24, 1
    s_lshl_b32 s27, s27, 2
    s_lshr_b32 s55, s25, 3
    s_add_u32 s27, s27, s55          ; nt
    s_lshr_b32 s54, s27, 3           ; kh
    s_and_b32 s55, s27, 7            ; nt2 / member index
    s_lshl_b32 s56, s26, 1
    s_add_u32 s56, s56, s54
    s_lshl_b32 s56, s56, 7           ; group*128
"""
    LA = 224; LB = 216; LB2 = 212
    ST1 = 49152; NS1 = 3; NK1 = 16
    NS2 = 4; NK2 = 28; B2 = 81920
    BR1 = 49152; CNT = 147456; TST = CNT + 256; TRM = TST + 512; TCB = TRM + 1024 + 64; RES = 65536
    if not mega:
        kernel_head(a, name)
        a(f"    s_cmp_ge_u32 s2, 256\n    s_cbranch_scc1 {L}_end")
    a(f"""    s_load_dwordx2 s[4:5], s[0:1], {ARG['ws']}
    s_load_dwordx4 s[8:11], s[0:1], {ARG['w1']}    ; w1, b1
    s_load_dwordx4 s[48:51], s[0:1], {ARG['w2']}   ; w2, b2
    s_load_dwordx2 s[52:53], s[0:1], {ARG['out']}""")
    stamp_begin(a)
    a(f"""    v_lshrrev_b32 v1, 6, v0
    v_and_b32 v2, 63, v0
    s_and_b32 s24, s2, 7
    v_readfirstlane_b32 s33, v1
    s_lshr_b32 s25, s2, 3
{MAP}    s_and_b32 s29, s27, 1            ; p = nt odd
    s_cmp_lt_u32 s33, 4
    s_cbranch_scc1 {L}_cons""")
    def final_addr():
        a(f"""    s_lshl_b32 s43, s26, 7
    s_lshl_b32 s44, s54, 5
    s_add_u32 s43, s43, s44
    s_lshl_b32 s44, s33, 2
    s_add_u32 s43, s43, s44
    s_lshl_b32 s43, s43, 11          ; row*2048
    s_lshl_b32 s44, s55, 8
    s_add_u32 s43, s43, s44
    s_add_u32 s44, s43, {64*2048}""")
    if opt.lprio: a(f"    s_setprio {opt.lprio}")
    a(f"""    s_and_b32 s34, s33, 3            ; lw
    s_lshl_b32 s35, s34, 12          ; lw*4096
    v_lshl_add_u32 v{LA}, v2, 4, s35 ; A voffset
    s_lshl_b32 s68, s26, 18
    s_add_u32 s69, s68, {16 << 14}
    s_and_b32 s36, s27, {0 if opt.norot else 12}
    s_lshl_b32 s30, s36, 14
    s_add_u32 s30, s30, s68
    s_mul_i32 s66, s27, 448
    s_and_b32 s66, s66, 0xffffff80
    s_add_u32 s67, s66, {1024*7168}
    s_mul_i32 s31, s36, {64*7168}
    s_add_u32 s31, s31, s66
    s_mov_b32 s70, s35
    s_add_u32 s39, s35, {NS1*16384}
    s_add_u32 s38, s35, s35
    s_add_u32 s38, s38, {BR1}
    s_mov_b32 s71, s38
    s_add_u32 s37, s38, {NS1*32768}
    s_waitcnt lgkmcnt(0)""")
    srd(a, 12, 4, MB4, off=HT_OFF)
    def issueA1():
        a(f"    s_mov_b32 m0, s70\n    s_add_u32 s70, s70, 16384")
        for i in range(4): a(f"    buffer_load_dwordx4 v{LA}, s[12:15], s30 offen offset:{i*1024} {'sc1' if mega else ''} lds")
        a("""    s_add_u32 s30, s30, 16384
    s_cmp_ge_u32 s70, s39
    s_cselect_b32 s70, s35, s70
    s_cmp_ge_u32 s30, s69
    s_cselect_b32 s30, s68, s30""")
    def issueB1():
        a("    s_mov_b32 m0, s38\n    s_nop 0")
        for i in range(4): a(f"    buffer_load_dwordx4 v{LB+i}, s[16:19], s31 offen offset:{i*1024} lds")
        a(f"    s_add_u32 m0, s38, 4096\n    s_add_u32 s38, s38, 32768")
        for i in range(4, 8): a(f"    buffer_load_dwordx4 v{LB+i}, s[16:19], s31 offen offset:{(i&3)*1024} lds")
        a(f"""    s_add_u32 s31, s31, {64*7168}
    s_cmp_ge_u32 s38, s37
    s_cselect_b32 s38, s71, s38
    s_cmp_ge_u32 s31, s67
    s_cselect_b32 s31, s66, s31""")
    if not mega: issueA1()
    a(f"""    v_lshrrev_b32 v8, 5, v2          ; hi
    s_lshl_b32 s36, s34, 4
    v_add_u32 v9, s36, v8            ; 16lw+hi
    v_mul_u32_u24 v9, 7168, v9
    v_and_b32 v10, 1, v2
    v_lshl_add_u32 v9, v10, 4, v9    ; t0
    v_bfe_u32 v10, v2, 1, 4
    v_xor_b32 v10, v10, v8           ; x0""")
    srd(a, 16, 8, 1024 * 7168)
    for ci, c in enumerate((0, 2, 4, 6)):
        a(f"    v_xor_b32 v11, {c}, v10\n    v_lshl_add_u32 v11, v11, 5, v9")
        for i in range(8):
            if 2 * (i & 1) + 4 * (i >> 2) == c: a(f"    v_add_u32 v{LB+i}, {2*i*7168 - (i&3)*1024}, v11")
    stamp(a, 0)
    if not mega:
        issueB1(); issueA1()
        a("    s_waitcnt vmcnt(4)\n    s_barrier")
        issueB1(); issueA1(); issueB1()
    else:
        srd(a, 20, 4, 0x8000, off=mega["HF"])
        if mega["two"]: a("    s_lshr_b32 s36, s26, 3\n    s_lshl_b32 s36, s36, 15\n    s_add_u32 s20, s20, s36\n    s_addc_u32 s21, s21, 0")
        srd(a, 60, 48, 3584 * 2048)
        a(f"""    v_mov_b32 v10, {mega["WRD"]}
    v_lshlrev_b32 v70, 7, v2
    s_and_b32 s41, s27, 12
    s_lshl_b32 s41, s41, 11
    s_mul_i32 s59, s2, 28672
    s_mul_i32 s36, s34, 7168
    s_add_u32 s59, s59, s36
{L}_m0:
    ds_read_b32 v13, v10 offset:48
    s_waitcnt lgkmcnt(0)
    v_readfirstlane_b32 s36, v13
    s_cmp_eq_u32 s36, 8
    s_cbranch_scc1 {L}_m1
    s_sleep 1
    s_branch {L}_m0
{L}_m1:""")
        issueB1()
        if opt.mb2: issueB1()
        if not opt.mq: a("    s_lshl_b32 s41, s35, 1")
        if opt.pp & 1:
            ppoll(a, f"{L}_hp", lambda r: f"    buffer_load_dword v{r}, v70, s[20:23], s41 offen sc1", "s_cmp_eq_u64 vcc, -1", (73, 74, 75))
        else:
            a(f"""{L}_m2:
    buffer_load_dword v13, v70, s[20:23], s41 offen sc1
    s_waitcnt vmcnt(0)
    v_cmp_eq_u32 vcc, 1, v13
    s_cmp_eq_u64 vcc, -1
    s_cbranch_scc1 {L}_m3""")
            if opt.mpf: a("    buffer_load_dword v71, v70, s[60:63], s59 offen\n    s_mov_b32 s59, 0x80000000")
            else: a(f"    s_sleep {opt.msleep}")
            a(f"    s_branch {L}_m2\n{L}_m3:")
        if not opt.mq:
            a(f"""    v_mov_b32 v12, 1
    s_mov_b64 exec, 1
    ds_add_u32 v10, v12 offset:56
    s_mov_b64 exec, -1
{L}_m5:
    ds_read_b32 v13, v10 offset:56
    s_waitcnt lgkmcnt(0)
    v_readfirstlane_b32 s36, v13
    s_cmp_eq_u32 s36, 4
    s_cbranch_scc0 {L}_m5""")
        if opt.dly:
            a(f"    s_and_b32 s36, s26, {opt.dly[0]}\n    s_cmp_eq_u32 s36, 0\n    s_cbranch_scc1 {L}_nodly")
            for i in range(opt.dly[1]): a("    s_sleep 16")
            a(f"{L}_nodly:")
        stamp(a, 11)
        issueA1(); issueA1()
        a("    s_waitcnt vmcnt(4)\n    s_barrier")
        if not opt.mb2: issueB1()
        issueA1(); issueB1()
        if opt.mq:
            a(f"{L}_m4:")
            for q in range(1, 4):
                a(f"    s_add_u32 s36, s41, {q*8192}\n    s_and_b32 s36, s36, 0x7fff\n    buffer_load_dword v{13+q}, v70, s[20:23], s36 offen sc1")
            a(f"""    s_waitcnt vmcnt(0)
    v_and_b32 v13, v14, v15
    v_and_b32 v13, v13, v16
    v_cmp_eq_u32 vcc, 1, v13
    s_cmp_eq_u64 vcc, -1
    s_cbranch_scc0 {L}_m4""")
    stamp(a, 12)
    a(f"""    v_lshrrev_b32 v3, 4, v2          ; q4
    s_lshl_b32 s36, s34, 4
    v_add_u32 v4, s36, v3
    v_lshlrev_b32 v4, 11, v4
    v_and_b32 v5, 1, v2
    v_lshl_add_u32 v4, v5, 4, v4     ; t0
    v_bfe_u32 v5, v2, 1, 3
    v_xor_b32 v5, v5, v3             ; x0""")
    for c in (0, 4):
        a(f"    v_xor_b32 v6, {c}, v5\n    v_lshl_add_u32 v6, v6, 5, v4")
        for i in range(4):
            if 4 * (i >> 1) == c: a(f"    v_add_u32 v{LB2+i}, {4*i*2048 - i*1024}, v6")
    a(f"""    v_lshrrev_b32 v3, 3, v2          ; d&7
    v_bfe_u32 v4, v2, 1, 2
    v_lshrrev_b32 v5, 1, v3
    v_xor_b32 v4, v4, v5             ; gs
    v_and_b32 v5, 1, v4
    v_lshrrev_b32 v4, 1, v4
    v_lshl_or_b32 v4, v4, 2, v5
    s_lshl_b32 s36, s54, 1
    v_or_b32 v4, s36, v4             ; cp
    v_and_b32 v5, 3, v3
    v_xor_b32 v4, v4, v5             ; cp ^ (d&3)
    v_lshlrev_b32 v4, 5, v4
    v_and_b32 v5, 1, v2
    v_lshl_add_u32 v4, v5, 4, v4
    v_lshl_add_u32 v208, v3, 8, v4
    v_xor_b32 v209, 128, v208
    v_add_u32 v209, 1024, v209
    v_add_u32 v210, 2048, v208
    v_add_u32 v211, 2048, v209
    v_and_b32 v3, 31, v2
    v_lshrrev_b32 v4, 5, v2
    v_lshlrev_b32 v4, 13, v4
    v_lshl_add_u32 v206, v3, 2, v4
    v_and_b32 v3, 15, v2
    v_min_u32 v3, 13, v3
    v_lshrrev_b32 v4, 4, v2
    v_mul_u32_u24 v207, {3584*4}, v4
    v_lshl_add_u32 v207, v3, 4, v207
    v_lshlrev_b32 v205, 3, v3""")
    if opt.xy:
        a(f"""    s_lshr_b32 s36, s55, 1
    s_mul_i32 s36, s36, 3
    s_lshl_b32 s41, s29, 1
    s_add_u32 s36, s36, s41
    v_subrev_u32 v3, 3, v2               ; q
    v_cmp_le_u32 vcc, s36, v3
    s_lshl_b32 s41, s55, 1
    v_subrev_u32 v5, 14, v2              ; z
    v_addc_co_u32 v3, vcc, 0, v3, vcc    ; c
    v_cmp_le_u32 vcc, s41, v5
    v_mul_u32_u24 v4, 43, v3
    v_lshrrev_b32 v4, 7, v4              ; c/3
    v_cndmask_b32 v6, 0, 2, vcc
    v_add_u32 v5, v5, v6
    v_mul_u32_u24 v6, 3, v4
    v_sub_u32 v3, v3, v6                 ; c%3
    v_min_u32 v6, 1, v3
    v_lshl_add_u32 v3, v6, 1, v3         ; 0,3,4
    v_mad_u32_u24 v3, v4, 7, v3
    v_lshrrev_b32 v4, 2, v5
    v_and_b32 v6, 1, v5
    v_bfe_u32 v5, v5, 1, 1
    v_lshl_add_u32 v5, v5, 2, v6
    v_mad_u32_u24 v5, v4, 7, v5
    v_add_u32 v5, 1, v5
    v_cmp_gt_u32 vcc, 14, v2
    s_mul_i32 s36, s55, 7
    s_add_u32 s36, s36, 1
    v_cndmask_b32 v3, v5, v3, vcc
    s_lshr_b32 s36, s36, 1
    v_cmp_gt_u32 vcc, 3, v2
    v_add_u32 v5, s36, v2
    s_nop 0
    v_cndmask_b32 v72, v3, v5, vcc""")
    srd(a, 20, 4, 64 << 20); srd(a, 72, 10, 7168)
    PSR = 32; CSR = 48; BR = 64
    a(f"""    s_lshl_b32 s41, s26, 14
    s_lshl_b32 s36, s34, 7
    s_add_u32 s41, s41, s36
    s_add_u32 s41, s41, {PST_OFF:#x}
    s_add_u32 s47, s41, 4096
    s_mul_i32 s42, s27, 896
    s_mul_i32 s36, s34, 224
    s_add_u32 s42, s42, s36
    s_lshr_b32 s43, s42, 1
    s_add_u32 s42, s42, {CS_OFF:#x}""")
    KP = opt.kp
    pfk = dict(opt.pfk) if opt.w2pf == "l" else {}
    if pfk and not mega:
        srd(a, 60, 48, 3584 * 2048)
        a(f"""    s_mul_i32 s59, s2, 28672
    s_mul_i32 s36, s34, 7168
    s_add_u32 s59, s59, s36
    v_lshlrev_b32 v70, {8 if opt.c_pf2 == 2 else 7}, v2
    {"s_add_u32 s59, s59, 128" if opt.c_pf2 == 2 else ""}""")
    def pf(k):
        if k in pfk:
            lo, hi = pfk[k]
            m = ((1 << hi) - 1) ^ ((1 << lo) - 1)
            a(f"    s_mov_b32 exec_lo, {m & 0xffffffff:#x}\n    s_mov_b32 exec_hi, {m >> 32:#x}\n    buffer_load_dword v71, v70, s[60:63], s59 offen\n    s_mov_b64 exec, -1")
    extra = lambda k: (1 if (k - 1) in pfk else 0) + (1 if (k - 2) in pfk else 0)
    a(f"    s_mov_b32 s40, 0\n{L}_l1:")
    stamp_loop(a, 40, 32)
    a("    s_waitcnt vmcnt(12)")
    stamp_loop(a, 40, 42)
    a("    s_barrier")
    stamp_loop(a, 40, 52)
    if not opt.noload:
        issueA1(); issueB1()
    a(f"    s_add_u32 s40, s40, 1\n    s_cmp_lt_u32 s40, {KP + 1}\n    s_cbranch_scc1 {L}_l1")
    stamp(a, 20)
    def gather_ps():
        for i in range(16): a(f"    buffer_load_dword v{PSR+i}, v206, s[20:23], s{41 if i < 8 else 47} offen offset:{512*(i&7)} sc1")
    gather_ps()
    def gather_cs():
        for i in range(4): a(f"    s_add_u32 s36, s42, {i*4*3584*4}\n    buffer_load_dwordx4 {vr(CSR+4*i,4)}, v207, s[20:23], s36 offen {'sc1' if mega else ''}")
    gather_cs()
    a(f"    buffer_load_dwordx2 {vr(BR,2)}, v205, s[72:75], s43 offen")
    for k in (KP + 1, KP + 2):
        stamp(a, 21 + 2 * (k - KP - 1))
        a(f"    s_waitcnt vmcnt({33 + extra(k)})\n    s_barrier          ; b{k}")
        stamp(a, 22 + 2 * (k - KP - 1))
        issueA1(); issueB1(); pf(k)
    t = Asm()
    for i in range(1, 8): t(f"    v_pk_add_f32 {vr(PSR,2)}, {vr(PSR,2)}, {vr(PSR+2*i,2)}")
    for i in range(1, 4):
        t(f"    v_pk_add_f32 {vr(CSR,2)}, {vr(CSR,2)}, {vr(CSR+4*i,2)}\n    v_pk_add_f32 {vr(CSR+2,2)}, {vr(CSR+2,2)}, {vr(CSR+4*i+2,2)}")
    t(f"""    v_add_f32 v3, v{PSR}, v{PSR+1}
    s_mov_b32 s76, 0x3a800000
    v_mov_b32 v4, v3""")
    for sw in ("v_permlane16_swap_b32", "v_permlane32_swap_b32"):
        for d in range(4): t(f"    v_mov_b32 v{CSR+4+d}, v{CSR+d}")
        for d in range(4): t(f"    {sw} v{CSR+4+d}, v{CSR+d}")
        for d in range(4): t(f"    v_add_f32 v{CSR+d}, v{CSR+d}, v{CSR+4+d}")
    t(f"""    v_permlane32_swap_b32 v4, v3
    v_mul_f32 v6, s76, v4                ; mean
    v_mul_f32 v7, s76, v3
    v_fma_f32 v7, -v6, v6, v7
    v_max_f32 v7, 0, v7                  ; variance""")
    rnd(t, 6); rnd(t, 7)
    t("    v_add_f32 v7, 0x3727c5ac, v7"); rnd(t, 7)
    t("    v_sqrt_f32 v7, v7")
    for d in range(4): t(f"    v_cvt_pk_bf16_f32 v{CSR+4+d}, v{CSR+d}, v{CSR+d}")
    rnd(t, 7)
    for d in range(4): t(f"    v_and_b32 v{CSR+4+d}, 0xffff0000, v{CSR+4+d}\n    v_sub_f32 v{CSR+d}, v{CSR+d}, v{CSR+4+d}")
    t("    v_rcp_f32 v9, v7")
    for d in range(4):
        t(f"    v_cvt_pk_bf16_f32 v{CSR+8+2*d}, v{CSR+4+d}, v{CSR+d}")
        t(f"    v_and_b32 v{CSR+9+2*d}, 0xffff, v{BR + (d>>1)}" if d % 2 == 0 else f"    v_lshrrev_b32 v{CSR+9+2*d}, 16, v{BR + (d>>1)}")
    t(f"""    v_mul_f32 v9, v9, v9                 ; r^2
    v_xor_b32 v6, 0x80000000, v6
    v_lshrrev_b32 v4, 16, v6
    v_or_b32 v6, v6, v4                  ; (-m,-m)
    v_lshrrev_b32 v7, 16, v7             ; (den,0)
    v_and_b32 v3, 31, v2
    s_lshl_b32 s77, s34, 7
    s_add_u32 s77, s77, {TST}
    v_lshl_add_u32 v4, v3, 2, s77
    ds_write_b32 v4, v9
    s_lshl_b32 s77, s34, 8
    s_add_u32 s77, s77, {TRM}
    v_lshl_add_u32 v4, v3, 3, s77
    ds_write_b64 v4, v[6:7]
    s_mul_i32 s77, s34, 448
    s_add_u32 s77, s77, {TCB}
    v_lshl_add_u32 v3, v205, 2, s77
    ds_write_b128 v3, {vr(CSR+8,4)}
    ds_write_b128 v3, {vr(CSR+12,4)} offset:16
    v_mov_b32 v10, 0
    v_mov_b32 v11, 0
    v_mov_b32 v12, {TRM + 1024}
    ds_write_b64 v12, v[10:11]
    v_mov_b32 v12, {CNT}
    ds_write_b64 v12, v[10:11]""")
    nchk = NK1 - NS1 - (KP + 3)
    per = (len(t.lines) - 10 + nchk - 1) // nchk
    chunks = [t.lines[10 + i*per: 10 + (i+1)*per] for i in range(nchk)]
    for k in range(KP + 3, NK1 - NS1):
        a(f"    s_waitcnt vmcnt({12 + extra(k)})\n    s_barrier          ; b{k}")
        issueA1(); issueB1(); pf(k)
        if k == KP + 3:
            a(f"{L}_chk:\n    v_max_u32 v3, v{PSR}, v{PSR+1}")
            for i in range(2, 32 if mega else 16, 2): a(f"    v_max3_u32 v3, v3, v{PSR+i}, v{PSR+i+1}")
            a(f"""    v_cmp_eq_u32 vcc, -1, v3
    s_cmp_lg_u64 vcc, 0
    s_cbranch_scc1 {L}_retry""")
            for x in t.lines[:10]: a(x)
        else:
            for x in chunks.pop(0): a(x)
    srd(a, 16, 48, 3584 * 2048)
    final_addr()
    a(f"""    s_mul_i32 s58, s55, 7
    s_add_u32 s58, s58, 1
    s_lshr_b32 s58, s58, 1
    s_mul_i32 s66, s54, {1792*2048}
    s_lshl_b32 s36, s55, 8
    s_add_u32 s66, s66, s36
    s_lshl_b32 s31, s58, 17
    s_add_u32 s31, s31, s66          ; G2 B soffset
    s_add_u32 s67, s66, {28 << 17}
    s_mov_b32 s78, {1 if opt.xy else 's31'}
    s_add_u32 s79, s31, {3 << 17}
    s_lshl_b32 s38, s29, 14
    s_add_u32 s38, s38, s35
    s_add_u32 s39, s35, 65536
    s_lshl_b32 s36, s55, 15
    s_lshl_b32 s37, s34, 13
    s_add_u32 s36, s36, s37
    s_add_u32 s42, s36, s68
    s_waitcnt vmcnt({12 + extra(13)})
    s_barrier          ; b13""")
    stamp(a, 13)
    def issueB2(restart=False):
        a(f"    s_add_u32 m0, s38, {B2}\n    s_add_u32 s38, s38, 16384")
        for i in range(4): a(f"    buffer_load_dwordx4 v{LB2+i}, s[16:19], s31 offen offset:{i*1024} lds")
        a(f"""    s_add_u32 s31, s31, {64*2048}
    s_cmp_ge_u32 s38, s39
    s_cselect_b32 s38, s35, s38""")
        if opt.xy: a("    v_readlane_b32 s36, v72, s78\n    s_add_u32 s78, s78, 1\n    s_lshl_b32 s36, s36, 17\n    s_add_u32 s31, s36, s66")
        elif not opt.g2sync: a("    s_cmp_ge_u32 s31, s67\n    s_cselect_b32 s31, s66, s31")
        elif restart: a("    s_cmp_eq_u32 s66, s78\n    s_cselect_b32 s31, s31, s66")
        else: a("    s_cmp_eq_u32 s31, s78\n    s_cselect_b32 s31, s79, s31")
    issueB2()
    for x in chunks.pop(0): a(x)
    stamp(a, 15)
    a(f"    s_waitcnt vmcnt({4 + (1 if 12 in pfk else 0)})\n    s_barrier          ; b14")
    stamp(a, 14)
    assert not chunks
    issueB2()
    a("    s_waitcnt lgkmcnt(0)\n    s_barrier          ; b15")
    issueB2(restart=True); issueB2()
    stamp(a, 1)
    a(f"    s_add_u32 m0, s35, {RES}\n    s_nop 0")
    for i in range(4): a(f"    buffer_load_dwordx4 v{208+i}, s[12:15], s42 offen offset:{i*1024} {'sc1' if mega else ''} lds")
    srd(a, 12, 4, H1_SZ, off=H1_OFF); srd(a, 60, 4, FLG_SZ, off=FLG_OFF)
    a(f"""    s_lshr_b32 s36, s34, 1
    s_lshl_b32 s36, s36, 13
    s_and_b32 s37, s34, 1
    s_lshl_b32 s37, s37, 11              ; + 16*(lw&1)
    s_add_u32 s37, s37, s36
    v_lshl_add_u32 v7, v2, 4, s37
    s_lshl_b32 s36, s29, 14
    v_add_u32 v3, s36, v7
    s_cmp_eq_u32 s29, 1
    s_cselect_b32 s36, 0, 49152
    v_add_u32 v4, s36, v7
    v_lshrrev_b32 v5, 3, v2
    v_xor_b32 v5, v5, v2
    v_bfe_u32 v5, v5, 2, 1               ; c bit2
    v_cmp_eq_u32 vcc, s29, v5
    v_mov_b32 v6, 0x80000000
    s_mul_i32 s36, s27, 7
    s_lshr_b32 s36, s36, 1               ; ks0
    v_cndmask_b32 v5, v6, v4, vcc
    s_mul_i32 s37, s26, 56
    s_add_u32 s36, s36, s37
    s_lshl_b32 s40, s36, 14
    s_add_u32 s41, s40, 16384
    s_add_u32 s42, s40, 32768
    s_mul_i32 s68, s54, 28
    s_add_u32 s68, s68, s37
    s_lshl_b32 s68, s68, 14
    s_add_u32 s69, s68, {28 << 14}
    s_add_u32 s30, s58, 3
    s_lshl_b32 s30, s30, 14
    s_add_u32 s30, s30, s68
    s_mov_b32 s77, s30
    s_sub_u32 s76, s30, {3 << 14}
    {"s_cmp_eq_u32 s68, s76" if opt.g2sync else "s_cmp_ge_u32 s30, s69"}
    {"s_cselect_b32 s30, s30, s68" if opt.g2sync else "s_cselect_b32 s30, s68, s30"}
    s_add_u32 s70, s29, 3
    s_and_b32 s70, s70, 3
    s_lshl_b32 s70, s70, 14
    s_add_u32 s70, s70, s35
    s_lshl_b32 s45, s55, 2
    s_add_u32 s46, s56, {GRP_RDY:#x}
    s_add_u32 s45, s45, s46
    v_and_b32 v8, 7, v2
    v_lshlrev_b32 v8, 2, v8
    v_mov_b32 v10, 1""")
    if opt.xy: a("    v_readlane_b32 s36, v72, 3\n    s_mov_b32 s76, 4\n    s_lshl_b32 s36, s36, 14\n    s_add_u32 s30, s36, s68")
    zst = []
    for half in range(2):
        stamp(a, 16 + 2 * half)
        if half == 1: a(f"    s_waitcnt vmcnt({4 if opt.xy else 8})")
        a(f"    s_barrier                            ; E{half}")
        stamp(a, 17 + 2 * half)
        ho = 4096 * half
        items = [(3, 3, 40, 0, 0), (3, 3, 40, 0, 1), (4, 5, 40, 0, 0), (4, 5, 40, 0, 1), (3, 3, 41, 16384, 0), (3, 3, 41, 16384, 1), (3, 3, 42, 32768, 0), (3, 3, 42, 32768, 1)]
        for i, (vr_, vs_, so, lo, q) in enumerate(items):
            a(f"    ds_read_b128 {vr((80 if opt.xy else 32)+32*half+4*i,4)}, v{vr_} offset:{lo + ho + 1024*q}")
        RB = 80 if opt.xy else 32
        if half == 1 and not opt.xy: a("    s_add_u32 s40, s40, 4096\n    s_add_u32 s41, s41, 4096\n    s_add_u32 s42, s42, 4096")
        if half == 1 and opt.xy: a("    s_add_u32 s40, s40, 4096\n    s_add_u32 s47, s41, 4096\n    s_add_u32 s59, s42, 4096")
        for i, (vr_, vs_, so, lo, q) in enumerate(items):
            if opt.xy and i >= 4:
                if half == 1: so = {41: 47, 42: 59}[so]
                zst.append(f"    buffer_store_dwordx4 {vr(RB+32*half+4*i,4)}, v{vs_}, s[12:15], s{so} offen offset:{1024*q} sc1")
                continue
            a(f"    s_waitcnt lgkmcnt({7-i})\n    buffer_store_dwordx4 {vr(RB+32*half+4*i,4)}, v{vs_}, s[12:15], s{so} offen offset:{1024*q} sc1")
        if opt.xy and half == 1: a("    s_waitcnt lgkmcnt(0)")
    stamp(a, 3)
    a("    s_barrier          ; c0\n    s_barrier          ; c1\n    s_waitcnt vmcnt(0)")
    stamp(a, 4)
    a(f"""    s_mov_b64 exec, 1
    ds_add_rtn_u32 v13, v12, v10
    s_mov_b64 exec, -1
    s_waitcnt lgkmcnt(0)
    v_readfirstlane_b32 s36, v13
    s_cmp_eq_u32 s36, 3
    s_cbranch_scc0 {L}_wait2
    s_mov_b64 exec, 1
    buffer_store_dword v10, v11, s[60:63], s45 offen sc1
    s_mov_b64 exec, 0xff""")
    if opt.pp & 2:
        ppoll(a, f"{L}_rp", lambda r: f"    buffer_load_dword v{r}, v8, s[60:63], s46 offen sc1", "s_cmp_eq_u64 vcc, exec", (73, 74, 75))
    else:
        a(f"""{L}_poll2:
    buffer_load_dword v9, v8, s[60:63], s46 offen sc1
    s_waitcnt vmcnt(0)
    v_cmp_eq_u32 vcc, 1, v9
    s_cmp_eq_u64 vcc, exec
    s_cbranch_scc1 {L}_seen2
    s_sleep {opt.psleep}
    s_branch {L}_poll2
{L}_seen2:""")
    a(f"""    ds_write_b32 v12, v10 offset:4
    s_mov_b64 exec, -1""")
    issueB2(); issueB2()
    a(f"    s_branch {L}_go2\n{L}_wait2:")
    issueB2(); issueB2()
    a(f"""{L}_spin2:
    s_sleep 1
    ds_read_b32 v13, v12 offset:4
    s_waitcnt lgkmcnt(0)
    v_readfirstlane_b32 s36, v13
    s_cmp_eq_u32 s36, 1
    s_cbranch_scc0 {L}_spin2
{L}_go2:""")
    stamp(a, 5)
    def issueA2():
        a("    s_mov_b32 m0, s70\n    s_add_u32 s70, s70, 16384")
        for i in range(4): a(f"    buffer_load_dwordx4 v{LA}, s[12:15], s30 offen offset:{i*1024} {opt.a2f} lds")
        a("""    s_add_u32 s30, s30, 16384
    s_cmp_ge_u32 s70, s39
    s_cselect_b32 s70, s35, s70""")
        if opt.xy: a("    v_readlane_b32 s36, v72, s76\n    s_add_u32 s76, s76, 1\n    s_lshl_b32 s36, s36, 14\n    s_add_u32 s30, s36, s68")
        elif not opt.g2sync: a("    s_cmp_ge_u32 s30, s69\n    s_cselect_b32 s30, s68, s30")
        else: a("    s_cmp_eq_u32 s30, s76\n    s_cselect_b32 s30, s77, s30")
    issueA2(); issueA2()
    a("    s_waitcnt vmcnt(4)\n    s_barrier          ; c2")
    issueA2(); issueA2(); issueB2()
    if not opt.xy:
        a("    s_waitcnt vmcnt(12)\n    s_barrier          ; c3")
        issueA2(); issueB2()
        a(f"    s_branch {L}_nochk2\n{L}_chk2:\n{L}_nochk2:")
        k0 = 4
    else:
        for x in zst[:4]: a(x)
        a("    s_waitcnt vmcnt(16)\n    s_barrier          ; c3")
        for x in zst[4:]: a(x)
        issueA2(); issueB2()
        for k, cnt in ((4, 24), (5, 24), (6, 16), (7, 17), (8, 17), (9, 16)):
            a(f"    s_waitcnt vmcnt({cnt})\n    s_barrier          ; c{k}")
            if k == 6: a("    s_mov_b64 exec, 1\n    buffer_store_dword v10, v11, s[60:63], s45 offen offset:32 sc1\n    s_mov_b64 exec, -1")
            if k == 9: a("    buffer_load_dword v9, v8, s[60:63], s46 offen offset:32 sc1")
            issueA2(); issueB2()
        a(f"""    s_waitcnt vmcnt(8)
{L}_chk2:
    v_cmp_eq_u32 vcc, 1, v9
    s_cmp_eq_u64 vcc, -1
    s_cbranch_scc0 {L}_retry2
    s_barrier          ; c10""")
        issueA2(); issueB2()
        k0 = 11
    a(f"    s_mov_b32 s40, {k0}\n{L}_l2:\n    s_waitcnt vmcnt(16)\n    s_barrier")
    issueA2(); issueB2()
    a(f"    s_add_u32 s40, s40, 1\n    s_cmp_lt_u32 s40, {NK2-NS2}\n    s_cbranch_scc1 {L}_l2")
    for k in range(NK2 - NS2, NK2):
        left = max(0, NK2 - 1 - (k + 1))
        if k + 1 < NK2: a(f"    s_waitcnt vmcnt({left*8})")
        a("    s_barrier")
    stamp(a, 6)
    a(f"    s_branch {L}_epi2")
    ACC = 0; F0 = 112; F1 = 156; VA = 200; VB = 204; VBH = 235; SA = 212; ONE = 228
    wad = lambda ni: [213, 214, 215, 217, 218, 219, 221][ni]
    vbh = lambda ni: [235, 236, 237, 238, 239, 211, 232][ni]
    a(f"""{L}_cons:
    {f"s_setprio {opt.cprio}" if opt.cprio else ""}
    v_mov_b32 v240, v2               ; lane
    v_and_b32 v241, 15, v2           ; r
    v_lshrrev_b32 v242, 4, v2        ; kg
    v_lshlrev_b32 v243, 3, v242
    s_and_b32 s34, s33, 1            ; wm
    s_lshr_b32 s35, s33, 1           ; wn
    s_lshl_b32 s36, s34, 13          ; wm*64*128
    v_lshl_add_u32 v244, v241, 7, s36
    v_and_b32 v245, 7, v241          ; r7
    v_bfe_u32 v246, v240, 2, 2       ; rr
    v_lshl_add_u32 v247, v242, 3, v246   ; 8kg+rr
    v_and_b32 v248, 3, v240          ; cc
    v_lshlrev_b32 v248, 3, v248
    v_lshl_add_u32 v249, v247, 8, v248
    v_lshl_add_u32 v247, v247, 9, v248
    v_add_u32 v247, {BR1}, v247
    v_and_b32 v248, 1, v242
    v_lshl_or_b32 v246, v248, 2, v246    ; g
    s_lshl_b32 s37, s34, 2""")
    for mi in range(4):
        a(f"    s_add_u32 s38, s37, {mi}\n    v_xor_b32 v248, s38, v246\n    v_lshl_add_u32 v{VA+mi}, v248, 5, v249")
    a(f"""    s_mul_i32 s37, s35, 7
    s_lshl_b32 s38, s29, 1
    s_add_u32 s37, s37, s38          ; f0 = 2p + 7wn""")
    for ni in range(7):
        a(f"    s_add_u32 s38, s37, {ni}\n    v_xor_b32 v248, s38, v246\n    v_lshl_add_u32 v{VB+ni}, v248, 5, v247")
        a(f"    v_add_u32 v{vbh(ni)}, 0x10000, v{VB+ni}")
    for i in range(0, 112, 2): a(f"    v_mov_b64 {vr(ACC+i,2)}, 0")
    for i in range(4): a(f"    v_mov_b32 v{ONE+i}, 0x3f803f80")
    a(f"""    v_lshrrev_b32 v248, 2, v241
    v_and_b32 v249, 3, v240
    v_cmp_eq_u32 s[70:71], v248, v242
    v_cmp_eq_u32 s[64:65], 1, v249
    v_cmp_eq_u32 s[66:67], 2, v249
    v_cmp_eq_u32 s[68:69], 3, v249
    s_and_b32 s41, s27, 3
    s_add_u32 s41, s41, 1
    s_lshl_b32 s59, s26, 14
    s_xor_b32 s36, s35, 1
    s_lshl_b32 s36, s36, 13
    s_add_u32 s59, s59, s36
    s_lshl_b32 s36, s27, 9
    s_add_u32 s59, s59, s36
    s_lshl_b32 s36, s34, 8
    s_add_u32 s59, s59, s36
    s_mul_i32 s36, s35, 896
    s_add_u32 s36, s36, {TCB}
    v_lshl_add_u32 v233, v241, 3, s36
    s_lshl_b32 s36, s34, 9
    s_add_u32 s36, s36, {TRM}
    v_lshl_add_u32 v247, v241, 3, s36
    v_cmp_eq_u32 vcc, 0, v242
    v_mov_b32 v248, {TRM + 1024}
    v_mov_b32 v249, 128
    v_cndmask_b32 v252, v248, v247, vcc
    v_cndmask_b32 v249, 0, v249, vcc
    v_add_u32 v253, v252, v249
    v_add_u32 v254, v253, v249
    v_add_u32 v255, v254, v249
    v_lshrrev_b32 v246, 1, v242
    v_xor_b32 v246, v246, v245
    v_lshlrev_b32 v246, 4, v246          ; ((kg>>1)^r7)<<4
    v_and_b32 v247, 1, v242
    v_lshl_add_u32 v247, v247, 3, v244   ; m*128 + half*8""")
    for ni in range(7):
        a(f"""    s_add_u32 s38, s37, {ni}
    s_lshr_b32 s39, s38, 2
    s_lshl_b32 s39, s39, 14
    s_and_b32 s38, s38, 3
    s_lshl_b32 s38, s38, 5
    s_or_b32 s{76+ni if ni < 4 else 60+ni-4}, s38, s39""")
    a("    s_waitcnt lgkmcnt(0)")
    srd(a, 72, 4, 256 * 1024, off=PST_OFF)
    if opt.tagx:
        srd(a, 12, 4, 256 * 16384, off=XCH_OFF)
        a(f"""    v_lshlrev_b32 v248, 4, v240
    s_lshl_b32 s46, s2, 14
    s_lshl_b32 s36, s33, 12
    s_add_u32 s46, s46, s36
    s_xor_b32 s45, s46, {PX << 14:#x}""")
        for i in range(4): a(f"    v_mov_b32 v{F1+i}, -1")
        if opt.tagx == 2:
            for q in range(4): a(f"    buffer_store_dwordx4 {vr(F1,4)}, v248, s[12:15], s46 offen offset:{q*1024} sc1")
    stamp(a, 0)
    a("    s_barrier")
    if opt.tagx == 1:
        for q in range(4): a(f"    buffer_store_dwordx4 {vr(F1,4)}, v248, s[12:15], s46 offen offset:{q*1024} sc1")
    stamp(a, 1)
    CT = F0; MTR = F0 + 16
    def g1_tail(mf):
        stamp(a, 13)
        mf = [m for j, m in enumerate(mf) if (j & 3) < 2] + [m for j, m in enumerate(mf) if (j & 3) >= 2]
        fill = [f"    ds_read_b64 {vr(MTR+2*mi,2)}, v{252+mi}" for mi in range(4)]
        fill += [f"    ds_read_b64 {vr(CT+2*ni,2)}, v233 offset:{128*ni}" for ni in range(7)]
        fill += ["\n".join(f"    v_xad_u32 v{wad(ni)}, v246, s{76+ni if ni < 4 else 60+ni-4}, v247" for ni in q) for q in ((0, 1), (2, 3), (4, 5), (6,))]
        if opt.b2tail:
            fill += [f"""    s_lshl_b32 s36, s55, 8
    s_lshl_b32 s38, s35, 7
    s_add_u32 s36, s36, s38
    s_mov_b32 s16, s50
    s_mov_b32 s17, s51
    s_mov_b32 s18, 2048
    s_mov_b32 s19, 0x00020000
""" + "\n".join(f"    buffer_load_dwordx2 {vr(232 + 2*ni, 2)}, v243, s[16:19], s36 offen offset:{32*ni}" for ni in range(4))]
        if not opt.tail2:
            for j, m in enumerate(mf):
                a(m)
                if j < len(fill): a(fill[j])
        def corr(ni, mi):
            c = ACC + 4 * (mi * 7 + ni)
            a(f"    v_mfma_f32_16x16x16_bf16 {vr(c,4)}, {vr(CT+2*ni,2)}, {vr(MTR+2*mi,2)}, {vr(c,4)}")
        def act(ni, mi):
            c = ACC + 4 * (mi * 7 + ni)
            for x in range(4): a(f"    v_max_f32 v{c+x}, 0, v{c+x}")
            a(f"    v_pk_mul_f32 {vr(c,2)}, {vr(c,2)}, {vr(c,2)}\n    v_pk_mul_f32 {vr(c+2,2)}, {vr(c+2,2)}, {vr(c+2,2)}")
            a(f"    v_cvt_pk_bf16_f32 v{c}, v{c}, v{c+1}\n    v_cvt_pk_bf16_f32 v{c+1}, v{c+2}, v{c+3}")
            a(f"    ds_write_b64 v{wad(ni)}, {vr(c,2)} offset:{mi*2048}")
        first = [(ni, mi) for ni in range(7) for mi in range(2)]; second = [(ni, mi) for ni in range(7) for mi in range(2, 4)]
        if opt.tail2:
            for j, m in enumerate(mf[:16]):
                a(m)
                if j < len(fill): a(fill[j])
            a("    s_waitcnt lgkmcnt(0)")
            for x in first[:4]: corr(*x)
            u = Asm(); save = a.lines; a.lines = u.lines
            for x in first[4:]: corr(*x)
            for m in mf[16:]: a(m)
            for x in second: corr(*x)
            a.lines = save
            rest = u.lines
            for m in rest[:4]: a(m)
            rest = rest[4:]
            for j, x in enumerate(first):
                n = 2 if j < 10 else 3
                for y in rest[:n]: a(y)
                rest = rest[n:]
                act(*x)
            assert not rest
        else:
            a("    s_waitcnt lgkmcnt(0)")
            for x in first[:6]: corr(*x)
            a("    s_nop 1")
            rest = first[6:] + second
            for j, x in enumerate(first):
                for y in rest[2*j: 2*j + 2]: corr(*y)
                act(*x)
        stamp(a, 14)
        a("    s_waitcnt lgkmcnt(0)\n    s_barrier                            ; E0")
        stamp(a, 15)
        for x in second: act(*x)
    def rdA1(F, slot, kh):
        return [f"    ds_read_b64_tr_b16 {vr(F + 4*mi + 2*t, 2)}, v{VA+mi} offset:{slot*16384 + kh*8192 + t*1024}" for mi in range(4) for t in range(2)]
    def rdB1(F, slot, kh, ni):
        reg = VB + ni if slot < 2 else vbh(ni)
        return [f"    ds_read_b64_tr_b16 {vr(F + 16 + 4*ni + 2*t, 2)}, v{reg} offset:{(slot&1)*32768 + kh*16384 + t*2048}" for t in range(2)]
    loop_unrolled(a, L + "1", 4, 7, NK1, NS1, ACC, F0, F1, rdA1, rdB1, 40, opt.ga_bar, g1_tail,
                  hookA=lambda u: f"    s_cmp_eq_u32 s40, s41\n    s_cbranch_scc1 {L}_xa{u}\n{L}_xar{u}:",
                  hookB=lambda u: f"    s_cmp_eq_u32 s40, s41\n    s_cbranch_scc1 {L}_xb")
    a("    s_waitcnt lgkmcnt(0)")
    stamp(a, 2)
    a("    s_barrier                            ; E1")
    if not opt.b2tail:
        a(f"""    s_lshl_b32 s36, s55, 8
    s_lshl_b32 s38, s35, 7
    s_add_u32 s36, s36, s38""")
        srd(a, 16, 50, 2048)
        for ni in range(4): a(f"    buffer_load_dwordx2 {vr(232 + 2*ni, 2)}, v243, s[16:19], s36 offen offset:{32*ni}")
    ACC = 0; G0 = 64; G1_ = 96; VA2 = 128; VB2 = 132; VBI = 232; RSD = 140
    a(f"""    s_lshl_b32 s36, s34, 13
    s_lshl_b32 s37, s54, 12
    s_add_u32 s36, s36, s37
    v_lshl_add_u32 v204, v241, 7, s36
    v_xor_b32 v206, v242, v245
    v_lshl_add_u32 v{VA2}, v206, 4, v204
    v_xor_b32 v{VA2+1}, 64, v{VA2}
    v_xor_b32 v{VA2+2}, 4096, v{VA2}
    v_xor_b32 v{VA2+3}, 4096, v{VA2+1}
    v_bfe_u32 v206, v240, 2, 2           ; rr
    v_lshl_add_u32 v207, v242, 3, v206
    v_lshlrev_b32 v207, 8, v207
    v_and_b32 v208, 3, v240
    v_lshl_add_u32 v207, v208, 3, v207
    v_add_u32 v207, {B2}, v207
    v_and_b32 v208, 1, v242
    v_lshl_or_b32 v206, v208, 2, v206    ; g
    s_lshl_b32 s37, s35, 2""")
    for ni in range(4):
        a(f"    s_add_u32 s38, s37, {ni}\n    v_xor_b32 v208, s38, v206\n    v_lshl_add_u32 v{VB2+ni}, v208, 5, v207")
    for i in range(0, 64, 2): a(f"    v_mov_b64 {vr(ACC+i,2)}, 0")
    stamp(a, 5)
    def g2_tail(mf):
        send = [m for j, m in enumerate(mf) if (j & 3) >= 2]; keep = [m for j, m in enumerate(mf) if (j & 3) < 2]
        for m in send: a(m)
        if opt.tagx:
            a(keep[0]); a("    v_lshlrev_b32 v203, 4, v240\n    s_mov_b32 s36, s46"); a(keep[1]); a("    s_nop 3")
        else:
            srd(a, 12, 4, 256 * 16384, off=XCH_OFF)
            a(keep[0])
            a(f"""    v_lshlrev_b32 v203, 4, v240
    s_lshl_b32 s36, s2, 14
    s_lshl_b32 s37, s33, 12
    s_add_u32 s36, s36, s37
    s_xor_b32 s45, s36, {PX << 14:#x}""")
            a(keep[1])
        for q in range(4):
            for h in range(2):
                c = ACC + 32 + 8 * q + 4 * h
                a(f"    v_cvt_pk_bf16_f32 v{G0 + 4*q + 2*h}, v{c}, v{c+1}\n    v_cvt_pk_bf16_f32 v{G0 + 4*q + 2*h + 1}, v{c+2}, v{c+3}")
            if opt.tagx:
                for d in range(4): a(f"    v_min_u32 v{G0+4*q+d}, -2, v{G0+4*q+d}")
            a(f"    buffer_store_dwordx4 {vr(G0+4*q,4)}, v203, s[12:15], s36 offen offset:{q*1024} sc1")
            for m in keep[2 + 2*q: 4 + 2*q]: a(m)
    def rdA2(F, slot, kh):
        return [f"    ds_read_b128 {vr(F + 4*mi, 4)}, v{VA2 + 2*(mi>>1) + kh} offset:{slot*16384 + (mi&1)*2048}" for mi in range(4)]
    def rdB2(F, slot, kh, ni):
        return [f"    ds_read_b64_tr_b16 {vr(F + 16 + 4*ni + 2*t, 2)}, v{VB2+ni} offset:{slot*16384 + kh*8192 + t*1024}" for t in range(2)]
    loop_unrolled(a, L + "2", 4, 4, NK2, NS2, ACC, G0, G1_, rdA2, rdB2, 40, opt.g2_bar, g2_tail, entry="s29")
    stamp(a, 6)
    srd(a, 60, 4, FLG_SZ, off=FLG_OFF)
    final_addr()
    a(f"""    v_bfe_u32 v206, v240, 2, 2           ; rr
    v_lshl_add_u32 v206, v242, 2, v206
    v_bfe_u32 v207, v206, 1, 2
    s_lshl_b32 s38, s34, 1
    v_xor_b32 v207, s38, v207
    v_lshlrev_b32 v207, 5, v207
    v_lshl_add_u32 v207, v206, 7, v207
    v_and_b32 v208, 3, v240
    v_lshl_add_u32 v207, v208, 3, v207
    s_lshl_b32 s38, s35, 13
    s_add_u32 s38, s38, {RES}
    v_add_u32 v207, s38, v207
    v_xor_b32 v208, 32, v207""")
    for j in range(8): a(f"    ds_read_b64_tr_b16 {vr(RSD+2*j,2)}, v{207 + (j>>2)} offset:{2048*(j&3)}")
    a(f"""    s_lshl_b32 s38, s34, 8
    s_lshl_b32 s39, s54, 7
    s_add_u32 s38, s38, s39
    s_add_u32 s38, s38, {TST}
    v_lshl_add_u32 v206, v241, 2, s38
    ds_read_b32 v192, v206
    ds_read_b32 v194, v206 offset:64""")
    a(f"""    s_lshl_b32 s36, s2, 9
    s_lshl_b32 s37, s33, 7
    s_add_u32 s36, s36, s37
    s_xor_b32 s37, s36, {PX << 9:#x}
    v_mov_b32 v209, 1
    v_mov_b32 v210, 0
    v_lshrrev_b32 v206, 1, v242
    v_xor_b32 v206, v206, v241           ; (kg>>1) ^ r
    s_lshl_b32 s38, s34, 13              ; 32wm*256
    v_lshl_add_u32 v207, v241, 8, s38
    v_and_b32 v208, 1, v242
    v_lshl_add_u32 v207, v208, 3, v207
    s_lshl_b32 s39, s35, 3""")
    for ni in range(4):
        a(f"    s_add_u32 s38, s39, {2*ni}\n    v_xor_b32 v208, s38, v206\n    v_lshl_add_u32 v{VB2+ni}, v208, 4, v207")
    if opt.tagx:
        a("    s_waitcnt vmcnt(4) lgkmcnt(0)")
    else:
        a(f"""    s_mov_b64 exec, 1
    s_waitcnt vmcnt(0)
    buffer_store_dword v209, v210, s[60:63], s36 offen sc1
    buffer_load_dword v211, v210, s[60:63], s37 offen sc1
    s_mov_b64 exec, -1
    s_waitcnt lgkmcnt(0)""")
    for ni in range(4):
        unpack(a, 216 + 4 * ni, VBI + 2 * ni); unpack(a, 218 + 4 * ni, VBI + 2 * ni + 1)
    for j in range(8):
        c = 160 + 4 * j; b = 216 + 4 * (j & 3)
        unpack(a, c, RSD + 2 * j); unpack(a, c + 2, RSD + 2 * j + 1)
        a(f"    v_pk_add_f32 {vr(c,2)}, {vr(c,2)}, {vr(b,2)}\n    v_pk_add_f32 {vr(c+2,2)}, {vr(c+2,2)}, {vr(b+2,2)}")
    if opt.tagx:
        a(f"{L}_poll:")
        for q in range(4): a(f"    buffer_load_dwordx4 {vr(G1_+4*q,4)}, v203, s[12:15], s45 offen offset:{q*1024} sc1")
        a(f"    s_waitcnt vmcnt(0)\n    v_max_u32 v212, v{G1_}, v{G1_+1}")
        for i in range(2, 16, 2): a(f"    v_max3_u32 v212, v212, v{G1_+i}, v{G1_+i+1}")
        a(f"    v_cmp_eq_u32 vcc, -1, v212\n    s_cmp_lg_u64 vcc, 0\n    s_cbranch_scc1 {L}_poll")
        stamp(a, 7)
    elif opt.pp & 4:
        a("    s_mov_b64 exec, 1")
        ppoll(a, f"{L}_xp", lambda r: f"    buffer_load_dword v{r}, v210, s[60:63], s37 offen sc1", "s_cmp_eq_u64 vcc, exec", (211, 196, 197), first_issued=True)
        a("    s_mov_b64 exec, -1")
        stamp(a, 7)
        for q in range(4):
            a(f"    buffer_load_dwordx4 {vr(G1_+4*q,4)}, v203, s[12:15], s45 offen offset:{q*1024} sc1")
    else:
        a(f"""    s_mov_b64 exec, 1
{L}_poll:
    s_waitcnt vmcnt(0)
    v_readfirstlane_b32 s38, v211
    s_cmp_eq_u32 s38, 1
    s_cbranch_scc1 {L}_seen
    buffer_load_dword v211, v210, s[60:63], s37 offen sc1
    s_branch {L}_poll
{L}_seen:
    s_mov_b64 exec, -1""")
        stamp(a, 7)
        for q in range(4):
            a(f"    buffer_load_dwordx4 {vr(G1_+4*q,4)}, v203, s[12:15], s45 offen offset:{q*1024} sc1")
    for j in range(8):
        mi, ni = j >> 2, j & 3
        c = ACC + 4 * j; p = G1_ + 2 * j
        if j % 2 == 0 and not opt.tagx: a(f"    s_waitcnt vmcnt({3 - j//2})")
        unpack(a, 212, p); unpack(a, 214, p + 1)
        a(f"""    v_pk_add_f32 {vr(c,2)}, {vr(c,2)}, v[212:213]
    v_pk_add_f32 {vr(c+2,2)}, {vr(c+2,2)}, v[214:215]
    v_pk_fma_f32 {vr(c,2)}, {vr(c,2)}, {vr(192+2*mi,2)}, {vr(160+4*j,2)} op_sel_hi:[1,0,1]
    v_pk_fma_f32 {vr(c+2,2)}, {vr(c+2,2)}, {vr(192+2*mi,2)}, {vr(162+4*j,2)} op_sel_hi:[1,0,1]
    v_cvt_pk_bf16_f32 v{c}, v{c}, v{c+1}
    v_cvt_pk_bf16_f32 v{c+1}, v{c+2}, v{c+3}
    ds_write_b64 v{VB2+ni}, {vr(c,2)} offset:{mi*4096}""")
    a("    s_waitcnt lgkmcnt(0)")
    stamp(a, 8)
    a(f"""{L}_epi2:
    v_mbcnt_lo_u32_b32 v2, -1, 0
    v_mbcnt_hi_u32_b32 v2, -1, v2
    v_lshrrev_b32 v3, 4, v2
    v_and_b32 v5, 15, v2
    v_lshlrev_b32 v6, 11, v3
    v_lshl_add_u32 v6, v5, 4, v6
    s_lshl_b32 s36, s33, 2
    v_add_u32 v3, s36, v3                ; lr (j=0)
    v_xor_b32 v4, v3, v2
    v_and_b32 v4, 15, v4
    v_lshlrev_b32 v4, 4, v4
    v_lshl_add_u32 v3, v3, 8, v4""")
    srd(a, 12, 52, MB4)
    a(f"""    s_barrier                            ; X3
    ds_read_b128 v[16:19], v3
    ds_read_b128 v[20:23], v3 offset:8192
    s_waitcnt lgkmcnt(1)
    buffer_store_dwordx4 v[16:19], v6, s[12:15], s43 offen {opt.outf}
    s_waitcnt lgkmcnt(0)
    buffer_store_dwordx4 v[20:23], v6, s[12:15], s44 offen {opt.outf}""")
    stamp(a, 9)
    if opt.stamps: a("    s_waitcnt vmcnt(0)")
    stamp(a, 10)
    stamp_end(a, kidx, 4, 33)
    a(f"{mega['end'] if mega else L + '_end'}:\n    s_endpgm")
    F0 = 112; F1 = 156
    def extra(F, first, tag):
        a(f"    s_cmp_eq_u32 s35, 0\n    s_cbranch_scc0 {L}_x1{tag}")
        for mi in range(4): a(f"    v_mfma_f32_16x16x32_bf16 {vr(SA+4*mi,4)}, {vr(F+4*mi,4)}, {vr(F+4*mi,4)}, {'0' if first else vr(SA+4*mi,4)}")
        a(f"    s_branch {L}_x2{tag}\n{L}_x1{tag}:")
        for mi in range(4): a(f"    v_mfma_f32_16x16x32_bf16 {vr(SA+4*mi,4)}, {vr(ONE,4)}, {vr(F+4*mi,4)}, {'0' if first else vr(SA+4*mi,4)}")
        a(f"{L}_x2{tag}:")
    for u in range(3):
        a(f"{L}_xa{u}:"); extra(F0, True, f"a{u}"); a(f"    s_branch {L}_xar{u}")
    a(f"{L}_xb:"); extra(F1, False, "b")
    a("    s_nop 7")
    for mi in range(4):
        c = SA + 4 * mi
        a(f"""    v_cndmask_b32 v{c}, v{c}, v{c+1}, s[64:65]
    v_cndmask_b32 v{c}, v{c}, v{c+2}, s[66:67]
    v_cndmask_b32 v{c}, v{c}, v{c+3}, s[68:69]
    v_cndmask_b32 v{c}, 0, v{c}, s[70:71]""")
    for sw in ("v_permlane16_swap_b32", "v_permlane32_swap_b32"):
        for mi in range(4): a(f"    v_mov_b32 v{SA+4*mi+1}, v{SA+4*mi}")
        for mi in range(4): a(f"    {sw} v{SA+4*mi+1}, v{SA+4*mi}")
        for mi in range(4): a(f"    v_add_f32 v{SA+4*mi}, v{SA+4*mi}, v{SA+4*mi+1}")
    a(f"""    v_cmp_eq_u32 vcc, 1, v242
    v_cmp_eq_u32 s[64:65], 2, v242
    v_cmp_eq_u32 s[66:67], 3, v242
    v_cndmask_b32 v{SA}, v{SA}, v{SA+4}, vcc
    v_cndmask_b32 v{SA}, v{SA}, v{SA+8}, s[64:65]
    v_cndmask_b32 v{SA}, v{SA}, v{SA+12}, s[66:67]
    v_lshlrev_b32 v{SA+1}, 2, v240
    v_min_u32 v{SA}, -2, v{SA}
    {"s_waitcnt vmcnt(0)" if opt.tagx else ""}
    buffer_store_dword v{SA}, v{SA+1}, s[72:75], s59 offen sc1
    s_cmp_eq_u32 s40, 2
    s_cbranch_scc1 {L}1_s2
    s_cmp_eq_u32 s40, 3
    s_cbranch_scc1 {L}1_s0
    s_branch {L}1_s1
{L}_retry2:
    buffer_load_dword v9, v8, s[60:63], s46 offen offset:32 sc1
    s_waitcnt vmcnt(0)
    s_branch {L}_chk2
{L}_retry:
    s_sleep 2""")
    gather_ps()
    if mega: gather_cs()
    a(f"    s_waitcnt vmcnt(0)\n    s_branch {L}_chk")
    return (name, 256, 512, 163840), (name, 256, 96)

gen.KGEN["ga"] = gen_ga
gen.KGEN["p2"] = gen_p2
gen.KGEN["c2"] = gen_c2
```

```python
import sys
from asmlib import *
import gen, gen2, gen3
from gen import opt, stamp, stamp_begin, stamp_end, vr, wave_sum, MB4, KVR_OFF, FLG_OFF
from gen3 import XT_OFF, HT_OFF, ST1_OFF, CS_OFF, PST_OFF, unpack, rnd

KVF_OFF = 0x0CC0000
XF_OFF = KVF_OFF + 4
SF_OFF = KVF_OFF + 0x8000
GF_OFF = KVF_OFF + 0x10000
HF_OFF = KVF_OFF + 0x18000
opt.biaspf = True
opt.slate = 0
opt.codepf0 = 0
opt.twopass = False
opt.midit = 2
opt.dot2 = False
opt.fixsig = True
opt.xfirst = False
opt.kvpre = False
opt.csdec = True
opt.ntf = 'nt'
opt.ntf2 = 'nt'
opt.kvprio = 0
opt.xearly = False
opt.tlb3 = 0
opt.tlb2 = 0
opt.flagl = True
opt.kvf = 'sc1'
opt.ldf = 'sc1'
opt.early2 = 1
opt.gate = 4
opt.xsleep = 4
opt.w1th = 4

def gen_pc(a, kidx, mega=False):
    name = KN + "_kernel" if mega else "f_kernel"; L = "F"
    MF = "sc1" if mega else ""
    CS = 4160; RO = 4 * CS; WSZ = 21248
    IS = 1040; KT = 4 * WSZ; VT = KT + 17 * IS; XS = KT + 33 * IS + 112; STG = XS + 16384; WRD = STG + 16 * IS
    assert XS % 16 == 0
    kernel_head(a, name)
    a(f"""    s_load_dwordx4 s[4:7], s[0:1], {ARG['k']}      ; k, v
    s_load_dwordx4 s[56:59], s[0:1], {ARG['dbg']}
    s_load_dwordx2 s[42:43], s[0:1], {ARG['q']}
    s_cmp_ge_u32 s2, 256
    s_cbranch_scc1 {L}_end""")
    stamp_begin(a)
    a(f"""    v_readfirstlane_b32 s33, v0
    s_and_b32 s24, s2, 7
    s_lshr_b32 s25, s2, 3
    v_bfe_u32 v5, v0, 4, 4
    v_and_b32 v6, 15, v0
    v_lshlrev_b32 v5, 11, v5
    v_lshl_add_u32 v5, v6, 4, v5
    s_lshl_b32 s62, s24, 5
    s_add_u32 s62, s62, s25
    v_lshrrev_b32 v4, 3, v0
    v_and_b32 v3, 7, v0              ; cg
    v_lshlrev_b32 v16, 15, v4
    v_lshl_add_u32 v16, v3, 4, v16
    s_lshl_b32 s27, s62, 7
    s_add_u32 s27, s27, {KVF_OFF:#x}
    v_add_u32 v16, s27, v16
    v_mov_b64 v[12:13], 0
    v_mov_b64 v[14:15], 0
    s_lshr_b32 s33, s33, 6           ; wave
    s_and_b32 s34, s33, 3            ; w
    s_lshl_b32 s26, s25, 17
    s_lshl_b32 s27, s24, 8
    s_add_u32 s26, s26, s27
    s_mul_i32 s35, s34, {IS}
    s_mov_b32 s14, 0x400000
    s_mov_b32 s15, 0x00020000
    s_mov_b32 s44, 0x8000
    v_cmp_gt_u32 vcc, {40 if mega else 24}, v0
    s_cmp_ge_u32 s33, 4
    s_cselect_b32 s27, {VT}, s44
    s_cselect_b32 s28, 0, {KT + IS - 0x8000}
    s_add_u32 s27, s27, s28
    s_add_u32 m0, s35, s27
    s_cmp_ge_u32 s33, 4
    s_waitcnt lgkmcnt(0)
    s_cselect_b64 s[12:13], s[6:7], s[4:5]
    s_and_saveexec_b64 s[30:31], vcc
    s_cbranch_execz {L}_nocl
    global_store_dwordx4 v16, v[12:15], s[58:59] sc1
{L}_nocl:
    s_mov_b64 exec, s[30:31]
    s_mov_b32 s27, s26""")
    for j in range(4):
        a(f"    buffer_load_dwordx4 v5, s[12:15], s27 offen {opt.ntf} lds")
        if j < 3: a(f"    s_add_u32 m0, m0, {4*IS}\n    s_add_u32 s27, s27, s44")
    a(f"""    s_load_dwordx4 s[8:11], s[0:1], {ARG['shift']}
    s_load_dwordx2 s[60:61], s[0:1], {ARG['ssmD']}
    v_and_b32 v2, 63, v0
    v_and_b32 v4, 7, v4              ; rg
    s_lshl_b32 s62, s62, 2
    s_add_u32 s63, s62, s34
    s_mul_i32 s64, s34, {WSZ}        ; WB
    s_cmp_ge_u32 s33, 4
    s_cbranch_scc1 {L}_help""")
    so = ["0", "s44", "s45", "s46"]
    def tail_addr(rev, off, ldsb):
        a(f"""    {"v_xor_b32 v13, 7, v3" if rev else "v_mov_b32 v13, v3"}
    v_lshlrev_b32 v13, 4, v13
    v_lshl_add_u32 v13, v4, 14, v13
    s_lshl_b32 s47, s24, 19
    s_lshl_b32 s48, s34, 17
    s_add_u32 s47, s47, s48              ; (cb*128+w*32)*4096
    s_lshl_b32 s48, s25, 7""")
        if rev: a(f"    s_sub_u32 s48, {3968 + off}, s48")
        else: a(f"    s_add_u32 s48, s48, {off:#x}")
        a("    s_add_u32 s47, s47, s48")
    def out_store(R, fl):
        a(f"    buffer_store_dwordx4 {vr(R,4)}, v13, s[36:39], s47 offen {fl}\n    s_add_u32 s47, s47, 4096")
    def count_in(word, tag):
        a(f"""    v_mov_b32 v10, {WRD}
    v_mov_b32 v11, 1
    v_mov_b32 v12, 0
    s_mov_b64 exec, 1
    ds_add_rtn_u32 v13, v10, v11 offset:{word}
    s_mov_b64 exec, -1
    s_waitcnt lgkmcnt(0)
    v_readfirstlane_b32 s35, v13
    s_cmp_eq_u32 s35, 3""")
    def spin(word, val, tag, r=13):
        a(f"""{L}_sp{tag}:
    ds_read_b32 v{r}, v10 offset:{word}
    s_waitcnt lgkmcnt(0)
    v_readfirstlane_b32 s35, v{r}
    s_cmp_eq_u32 s35, {val}
    s_cbranch_scc1 {L}_sq{tag}
    s_sleep 1
    s_branch {L}_sp{tag}
{L}_sq{tag}:""")
    def hf_count(tag, word, off):
        a(f"""    v_mov_b32 v12, 1
    v_mov_b32 v14, 0
    s_mov_b64 exec, 1
    ds_add_rtn_u32 v13, v10, v12 offset:{word}
    s_waitcnt lgkmcnt(0)
    v_readfirstlane_b32 s76, v13
    s_cmp_eq_u32 s76, 7
    s_cbranch_scc0 {L}_nohf{tag}
    s_lshl_b32 s77, s62, 5
    s_add_u32 s77, s77, {off:#x}
    buffer_store_dword v12, v14, s[36:39], s77 offen sc1
{L}_nohf{tag}:
    s_mov_b64 exec, -1""")
    TWO = mega and opt.twopass
    def reg_issue():
        a("    buffer_load_dwordx2 v[36:37], v39, s[52:55], 0 offen sc1")
    def reg_check(tag):
        a(f"""    s_getreg_b32 s65, hwreg(HW_REG_XCC_ID)
    s_and_b32 s65, s65, 7
    s_lshl_b32 s65, s65, 3
    s_lshl_b64 s[66:67], 32, s65
{L}_rg{tag}:
    v_sad_u8 v38, v36, 0, 0
    v_sad_u8 v38, v37, 0, v38
    v_cmp_eq_u32 vcc, 32, v38
    s_cmp_eq_u64 vcc, -1
    s_cbranch_scc1 {L}_rk{tag}
    s_sleep 24
    buffer_load_dwordx2 v[36:37], v39, s[52:55], 0 offen sc1
    s_waitcnt vmcnt(0)
    s_branch {L}_rg{tag}
{L}_rk{tag}:
    v_readlane_b32 s68, v36, s24
    v_readlane_b32 s69, v37, s24
    s_cmp_eq_u64 s[68:69], s[66:67]
    s_cselect_b32 s65, 1, 0""")
    def signal_poll(off, tag, poll=True, known=False):
        if not known: a(f"""{L}_md{tag}:
    ds_read_b32 v13, v10 offset:28
    s_waitcnt lgkmcnt(0)
    v_readfirstlane_b32 s65, v13
    s_cmp_eq_u32 s65, 0
    s_cbranch_scc1 {L}_md{tag}
    s_sub_u32 s65, s65, 1""")
        a(f"""    s_lshl_b32 s27, s62, 5
    s_and_b32 s28, s27, 0xfffff000
    s_add_u32 s27, s27, {off:#x}
    s_add_u32 s28, s28, {off:#x}
    v_and_b32 v14, 31, v2
    v_lshlrev_b32 v14, 7, v14
    s_mov_b64 exec, 1
    s_cmp_eq_u32 s65, {1 if opt.flagl else 7}
    s_cbranch_scc1 {L}_sl{tag}
    {"" if (opt.kvf == "sc1" or tag == "x") else "buffer_wbl2 sc1"}
    {"" if (opt.kvf == "sc1" or tag == "x") else "s_waitcnt vmcnt(0)"}
    buffer_store_dword v11, v12, s[36:39], s27 offen sc1
    s_branch {L}_pp{tag}
{L}_sl{tag}:
    buffer_store_dword v11, v12, s[36:39], s27 offen
{L}_pp{tag}:
    s_mov_b64 exec, -1""")
        if not poll:
            a(f"""    s_cmp_lg_u32 s25, 0
    s_cbranch_scc1 {L}_pl{tag}
    s_add_u32 s27, s28, {SF_OFF - XF_OFF:#x}
{L}_sfp:
    buffer_load_dword v15, v14, s[36:39], s27 offen sc1
    s_waitcnt vmcnt(0)
    v_cmp_eq_u32 vcc, 1, v15
    s_cmp_eq_u64 vcc, -1
    s_cbranch_scc0 {L}_sfp
    s_lshl_b32 s27, s24, 12
    s_add_u32 s27, s27, {GF_OFF:#x}
    s_mov_b64 exec, 1
    buffer_store_dword v11, v12, s[36:39], s27 offen sc1
    s_mov_b64 exec, -1""")
        a(f"""{L}_pl{tag}:
    buffer_load_dword v15, v14, s[36:39], s28 offen sc1
    s_waitcnt vmcnt(0)
    v_cmp_eq_u32 vcc, 1, v15
    s_cmp_eq_u64 vcc, -1
    s_cbranch_scc0 {L}_pl{tag}""")
    a(f"""    v_and_b32 v6, 0x1fff, v5
    v_add_u32 v6, s26, v6
    v_subrev_u32 v6, 8192, v6
    s_mov_b32 m0, {KT}
    s_nop 0
    buffer_load_dwordx4 v6, s[12:15], 0 offen {opt.ntf} lds
    s_waitcnt lgkmcnt(0)""")
    KR = 208; VR = 40; WR = 56
    srd(a, 20, 8, 8192)
    a(f"""    s_lshl_b32 s27, s24, 10
    s_lshl_b32 s28, s34, 8
    s_add_u32 s27, s27, s28
    v_lshlrev_b32 v8, 5, v4
    buffer_load_dwordx4 {vr(WR,4)}, v8, s[20:23], s27 offen
    buffer_load_dwordx4 {vr(WR+4,4)}, v8, s[20:23], s27 offen offset:16
    s_lshr_b32 s28, s63, 1
    s_lshl_b32 s28, s28, 2
    s_load_dword s29, s[60:61], s28
    v_mul_u32_u24 v7, {2*IS}, v3
    v_lshl_add_u32 v7, v4, 3, v7
    s_lshl_b32 s27, s34, 6
    s_add_u32 s27, s27, {KT}
    v_add_u32 v7, s27, v7
    v_mov_b32 v10, {WRD}
    v_mov_b32 v16, 0
    v_mov_b32 v17, 0
    v_mov_b32 v18, 0
    v_mov_b32 v19, 0
    ds_write_b128 v10, v[16:19]
    ds_write_b128 v10, v[16:19] offset:16
    ds_write_b128 v10, v[16:19] offset:32
    ds_write_b128 v10, v[16:19] offset:48
    s_add_u32 s49, s64, {RO}""")
    srd(a, 36, 58, 64 << 20); srd(a, 52, 56, 256)
    a("    v_lshlrev_b32 v39, 5, v3")
    tail_addr(True, KVR_OFF, "s49")
    PRE = 1 if opt.kvpre else 0
    if PRE:
        a("    v_and_b32 v34, 31, v2\n    v_lshlrev_b32 v34, 12, v34\n    buffer_load_dword v35, v34, s[36:39], s47 offen")
    WF = 64; KF = 80; VF = 124; OF = 156; PK = 190
    stamp(a, 0)
    a(f"""    s_waitcnt lgkmcnt(0)
    s_barrier
    s_cmp_lg_u32 s33, 0
    s_cbranch_scc1 {L}_noreg
    s_getreg_b32 s65, hwreg(HW_REG_XCC_ID)
    s_and_b32 s65, s65, 7
    s_lshl_b32 s65, s65, 3
    s_lshl_b64 s[66:67], 1, s65
    v_mov_b32 v16, s66
    v_mov_b32 v17, s67
    v_mov_b32 v12, 0
    s_lshl_b32 s30, s24, 5
    s_mov_b64 exec, 1
    s_waitcnt vmcnt({7 + PRE})""")
    stamp(a, 9)
    a(f"""    buffer_atomic_add_x2 v[16:17], v12, s[52:55], s30 offen sc1
    v_mov_b32 v11, 1
    ds_write_b32 v10, v11 offset:44
    s_mov_b64 exec, -1
    s_waitcnt vmcnt({1 + PRE})
    s_branch {L}_kvl
{L}_noreg:
    s_waitcnt vmcnt({PRE})
{L}_kvl:""")
    a("""    s_nop 0
    v_mov_b32 v11, 1
    s_mov_b64 exec, 1
    ds_add_u32 v10, v11 offset:32
    s_mov_b64 exec, -1""")
    spin(32, 8, "k", 12)
    if opt.kvprio: a(f"    s_setprio {opt.kvprio}")
    stamp(a, 1)
    kro = lambda jj: ((1 + jj) >> 2) * IS + ((1 + jj) & 3) * 256
    order = [("k", 0), ("k", 1), ("k", 2)] + [x for j in range(8) for x in (("k", 3 + j), ("v", j))]
    def rd(x):
        if x[0] == "k": a(f"    ds_read_b64 {vr(KR + 2*x[1], 2)}, v7 offset:{kro(x[1])}")
        else: a(f"    ds_read_b64 {vr(VR + 2*x[1], 2)}, v7 offset:{17*IS + (x[1] >> 2)*IS + (x[1] & 3)*256}")
    for x in order[:13]: rd(x)
    for c in range(4):
        for j in range(4):
            src = WR + 2 * c + (j >> 1); d = WF + (c >> 1) * 8 + j * 2 + (c & 1)
            a(f"    v_lshlrev_b32 v{d}, 16, v{src}" if j % 2 == 0 else f"    v_and_b32 v{d}, 0xffff0000, v{src}")
    def unp2(dst, src):
        for p in range(2): unpack(a, dst + 2 * p, src + p)
    a("    s_waitcnt lgkmcnt(8)")
    for x in order[13:]: rd(x)
    for r in range(3): unp2(KF + 4 * r, KR + 2 * r)
    for j in range(8):
        if j: a(f"    s_waitcnt lgkmcnt({14 - 2*j})")
        unp2(KF + 4 * (3 + j), KR + 6 + 2 * j); unp2(VF + 4 * j, VR + 2 * j)
        for p in range(2):
            o = OF + 4 * j + 2 * p
            k = lambda r: vr(KF + 4 * r + 2 * p, 2)
            w = lambda t: vr(WF + p * 8 + 2 * t, 2)
            a(f"    v_pk_mul_f32 {vr(o,2)}, {k(j)}, {w(3)}")
            a(f"    v_pk_fma_f32 {vr(o,2)}, {k(j+1)}, {w(2)}, {vr(o,2)}")
            a(f"    v_pk_fma_f32 {vr(o,2)}, {k(j+2)}, {w(1)}, {vr(o,2)}")
            a(f"    v_pk_fma_f32 {vr(o,2)}, {k(j+3)}, {w(0)}, {vr(o,2)}")
            a(f"    v_pk_mul_f32 {vr(o,2)}, {vr(o,2)}, {vr(VF + 4*j + 2*p, 2)}")
    for c in range(4):
        for d in range(4):
            a(f"    v_cvt_pk_bf16_f32 v{PK+4*c+d}, v{OF + 4*(7-2*d) + c}, v{OF + 4*(6-2*d) + c}")
        out_store(PK + 4 * c, opt.kvf)
    a(f"    s_cmp_lg_u32 s33, 0\n    s_cbranch_scc1 {L}_nr1")
    reg_issue()
    a(f"{L}_nr1:")
    stamp(a, 2)
    ACC = 80; F0 = 112; F1 = 176
    a(f"""    v_lshlrev_b32 v40, 4, v2         ; lane*16
    v_add_u32 v4, s64, v40
    v_mov_b32 v60, 0
    v_mov_b32 v61, 0
    v_mov_b32 v62, 0
    v_mov_b32 v63, 0
    s_mov_b64 exec, 0x3fffffff
    ds_write_b128 v4, v[60:63] offset:{RO + 4096}
    s_mov_b64 exec, -1
    v_and_b32 v5, 15, v2             ; b / a
    v_lshrrev_b32 v6, 4, v2          ; kg
    v_add_u32 v7, 1, v5
    v_and_b32 v8, 3, v7
    v_mul_u32_u24 v8, {CS}, v8
    v_and_b32 v7, 28, v7
    v_lshl_add_u32 v8, v7, 1, v8
    v_lshl_add_u32 v8, v6, 4, v8
    v_add_u32 v8, s64, v8            ; vAT
    v_lshlrev_b32 v9, 5, v5
    v_lshl_add_u32 v41, v6, 3, v9    ; 32a + 8g
    v_sub_u32 v9, {RO + 480}, v9
    v_lshl_add_u32 v9, v6, 4, v9
    v_add_u32 v9, s64, v9            ; vBT
    s_lshl_b32 s26, s63, 12
    s_add_u32 m0, s64, {RO}""")
    for i in range(0, 32, 2): a(f"    v_mov_b64 {vr(ACC+i,2)}, 0")
    a(f"""    v_sub_u32 v32, {RO + 504}, v41
    v_add_u32 v32, s64, v32
    v_lshlrev_b32 v33, 1, v41
    v_add_u32 v33, {STG}, v33
    s_lshl_b32 s35, s34, 12
    s_add_u32 s35, s35, {XS}
    v_add_u32 v34, s35, v41
    s_lshl_b32 s75, s29, 16
    s_and_b32 s27, s29, 0xffff0000
    s_bitcmp1_b32 s63, 0
    s_cselect_b32 s75, s27, s75          ; D as f32
    s_and_b32 s27, s63, 3
    s_bfe_u32 s28, s63, 0x10003
    s_lshl_b32 s28, s28, 2
    s_or_b32 s27, s27, s28               ; g(d)
    v_and_b32 v42, 7, v5
    v_xor_b32 v42, s27, v42
    v_lshlrev_b32 v42, 5, v42
    v_lshrrev_b32 v12, 3, v5
    v_lshl_add_u32 v42, v12, 18, v42
    v_and_b32 v12, 1, v6
    v_lshl_add_u32 v42, v12, 19, v42
    v_lshrrev_b32 v12, 1, v6
    v_lshl_add_u32 v42, v12, 4, v42
    s_lshl_b32 s34, s63, 8
    s_add_u32 s34, s34, {HT_OFF:#x}""")
    if opt.fixsig:
        a(f"""    v_mov_b32 v12, 0
    s_waitcnt vmcnt(0)
    s_mov_b64 exec, 1
    ds_add_u32 v10, v11 offset:0
    s_mov_b64 exec, -1""")
        stamp(a, 3)
        a(f"    s_cmp_lg_u32 s33, 0\n    s_cbranch_scc1 {L}_w1")
        reg_check("a")
        a(f"""    s_add_u32 s65, s65, 1
    v_mov_b32 v38, s65
    ds_write_b32 v10, v38 offset:28
    s_sub_u32 s65, s65, 1""")
        spin(0, 4, "d")
        signal_poll(KVF_OFF, "a", known=True)
        a(f"""    ds_write_b32 v10, v11 offset:4
    s_branch {L}_g1
{L}_w1:""")
    else:
        a(f"    s_waitcnt vmcnt(0)\n    s_cmp_lg_u32 s33, 0\n    s_cbranch_scc1 {L}_nr2")
        reg_check("a")
        a(f"""    s_add_u32 s65, s65, 1
    v_mov_b32 v38, s65
    ds_write_b32 v10, v38 offset:28
{L}_nr2:""")
        stamp(a, 3)
        count_in(0, "a")
        a(f"    s_cbranch_scc0 {L}_w1")
        signal_poll(KVF_OFF, "a")
        a(f"""    ds_write_b32 v10, v11 offset:4
    s_branch {L}_g1
{L}_w1:""")
    spin(4, 1, "a")
    a(f"{L}_g1:")
    stamp(a, 4)
    for i in range(4): a(f"    buffer_load_dwordx4 v40, s[36:39], s26 offen offset:{1024*i} {opt.ldf} lds")
    spin(8, 4, "b")
    a("    s_waitcnt vmcnt(0)")
    stamp(a, 5)
    def reads(F, woff, nu=8):
        r = []
        for u in range(nu):
            r.append(f"    ds_read_b128 {vr(F+32+4*u,4)}, v9 offset:{3584 - 512*u + woff}")
            r.append(f"    ds_read_b64 {vr(F+4*u,2)}, v8 offset:{512*u + woff}")
            r.append(f"    ds_read_b64 {vr(F+4*u+2,2)}, v8 offset:{512*u + 8 + woff}")
        return r
    def mf(F, lo=0, hi=7):
        return [f"    v_mfma_f32_16x16x32_bf16 {vr(ACC+4*(u+v),4)}, {vr(F+4*u,4)}, {vr(F+32+4*v,4)}, {vr(ACC+4*(u+v),4)}" for u in range(8) for v in range(8 - u) if lo <= u + v <= hi]
    def weave(m, f):
        i = 0
        for x in m:
            a(x)
            if i < len(f): a(f[i]); i += 1
        for x in f[i:]: a(x)
    def epi(ns, KV, XR_, MT, RTB, OUT):
        for j, n in enumerate(ns):
            c = ACC + 4 * n; k = KV + 2 * j; x = XR_ + 2 * j; o = OUT + 2 * j
            lg = 4 * (len(ns) - 1 - j)
            if lg <= 12: a(f"    s_waitcnt lgkmcnt({lg})")
            elif j == 0: a("    s_waitcnt lgkmcnt(15)")
            a(f"""    v_and_b32 v12, 0xffff0000, v{k+1}
    v_lshlrev_b32 v13, 16, v{k+1}
    v_and_b32 v14, 0xffff0000, v{k}
    v_lshlrev_b32 v15, 16, v{k}
    v_fmac_f32 v{c}, s75, v12
    v_fmac_f32 v{c+1}, s75, v13
    v_fmac_f32 v{c+2}, s75, v14
    v_fmac_f32 v{c+3}, s75, v15
    v_lshlrev_b32 v12, 16, v{x}
    v_and_b32 v13, 0xffff0000, v{x}
    v_lshlrev_b32 v14, 16, v{x+1}
    v_and_b32 v15, 0xffff0000, v{x+1}
    v_pk_mul_f32 {vr(c,2)}, {vr(c,2)}, {vr(RTB+4*j,2)}
    v_pk_mul_f32 {vr(c+2,2)}, {vr(c+2,2)}, {vr(RTB+4*j+2,2)}
    v_pk_add_f32 {vr(MT+4*j,2)}, v[12:13], {vr(MT+4*j,2)} neg_lo:[0,1] neg_hi:[0,1]
    v_pk_add_f32 {vr(MT+4*j+2,2)}, v[14:15], {vr(MT+4*j+2,2)} neg_lo:[0,1] neg_hi:[0,1]
    v_pk_fma_f32 v[12:13], {vr(MT+4*j,2)}, {vr(c,2)}, v[12:13]
    v_pk_fma_f32 v[14:15], {vr(MT+4*j+2,2)}, {vr(c+2,2)}, v[14:15]
    v_cvt_pk_bf16_f32 v{o}, v12, v13
    v_cvt_pk_bf16_f32 v{o+1}, v14, v15""")
            if j & 1:
                a(f"""    s_nop 0
    v_permlane16_swap_b32 v{o-2}, v{o}
    v_permlane16_swap_b32 v{o-1}, v{o+1}
    buffer_store_dwordx4 {vr(o-2,4)}, v42, s[36:39], s34 offen {MF or opt.htf}
    s_add_u32 s34, s34, 0x100000""")
    def epi_reads(ns, KV, XR_, MT, RTB):
        r = []
        for j, n in enumerate(ns):
            r += [f"    ds_read_b64 {vr(KV+2*j,2)}, v32 offset:{512*(7-n)}", f"    ds_read_b64 {vr(XR_+2*j,2)}, v34 offset:{512*n}",
                  f"    ds_read_b128 {vr(MT+4*j,4)}, v33 offset:{1024*n}", f"    ds_read_b128 {vr(RTB+4*j,4)}, v33 offset:{8192 + 1024*n}"]
        return r
    def tables_ready(tag):
        a(f"""    s_branch {L}_last{tag}
{L}_again{tag}:
    s_sleep 1
    ds_read_b32 v35, v10 offset:20
    s_waitcnt lgkmcnt(0)
{L}_last{tag}:
    v_readfirstlane_b32 s76, v35
    s_cmp_eq_u32 s76, 4
    s_cbranch_scc0 {L}_again{tag}""")
    step = ["    v_add_u32 v8, 128, v8", "    v_add_u32 v9, 128, v9", "    s_add_u32 s35, s35, 1", "    s_cmp_eq_u32 s35, 4"]
    if not TWO:
        for l in reads(F0, 0): a(l)
        a(f"    s_mov_b32 s35, 0\n{L}_loop:\n    s_waitcnt lgkmcnt(0)")
        weave(mf(F0), reads(F1, 64) + ["    ds_read_b32 v35, v10 offset:20"] + step)
        a(f"    s_waitcnt lgkmcnt(0)\n    s_cbranch_scc1 {L}_fin")
        weave(mf(F1), reads(F0, 0))
        a(f"    s_branch {L}_loop\n{L}_fin:")
        tables_ready("a")
        weave(mf(F1), ["    s_nop 0"] * 2 + epi_reads(range(8), F0, 16, F0 + 16, 44))
        a("    s_nop 7")
        stamp(a, 6)
        epi(range(8), F0, 16, F0 + 16, 44, 224)
    else:
        for l in reads(F0, 0, 4): a(l)
        a(f"    s_mov_b32 s35, 0\n{L}_loop1:\n    s_waitcnt lgkmcnt(0)")
        weave(mf(F0, 0, 3), reads(F1, 64, 4) + step)
        a(f"    s_waitcnt lgkmcnt(0)\n    s_cbranch_scc1 {L}_fin1")
        weave(mf(F1, 0, 3), reads(F0, 0, 4))
        a(f"    s_branch {L}_loop1\n{L}_fin1:\n    v_subrev_u32 v8, 512, v8\n    v_subrev_u32 v9, 512, v9\n    s_mov_b32 s35, 0")
        weave(mf(F1, 0, 3), reads(F0, 0))
        a(f"{L}_loop2:\n    s_waitcnt lgkmcnt(0)")
        weave(mf(F0, 4, 7), reads(F1, 64) + ["    ds_read_b32 v35, v10 offset:20", step[0] + "\n" + step[1], step[2] + "\n" + step[3]])
        a(f"    s_waitcnt lgkmcnt(0)\n    s_cbranch_scc1 {L}_fin2")
        weave(mf(F1, 4, 7), reads(F0, 0))
        a(f"""    s_cmp_eq_u32 s35, {opt.midit}
    s_cbranch_scc1 {L}_mid
    s_cmp_eq_u32 s35, {opt.midit + 1}
    s_cbranch_scc0 {L}_loop2
    s_waitcnt vmcnt(0) lgkmcnt(0)""")
        hf_count("c1", 52, HF_OFF)
        a(f"    s_branch {L}_loop2\n{L}_mid:")
        tables_ready("m")
        stamp(a, 10)
        a("    s_waitcnt lgkmcnt(0)")
        for l in epi_reads(range(4), 24, 16, 44, 60): a(l)
        epi(range(4), 24, 16, 44, 60, 240)
        a(f"    s_branch {L}_loop2\n{L}_fin2:")
        if opt.midit == 3:
            pass
        weave(mf(F1, 4, 7), epi_reads(range(4, 8), 24, 16, 44, 60))
        a("    s_nop 7")
        stamp(a, 6)
        epi(range(4, 8), 24, 16, 44, 60, 240)
    stamp(a, 7)
    a(f"    s_branch {L}_done")
    FD = 16; TO = 52; XT_ = 80; XR = 96; XF = 112; PKX = 144
    a(f"""{L}_help:
    v_lshlrev_b32 v6, 4, v2          ; lane*16
    s_lshl_b32 s27, s25, 6
    s_lshl_b32 s28, s24, 3
    s_add_u32 s27, s27, s28
    s_lshl_b32 s28, s34, 1
    s_add_u32 s27, s27, s28
    s_lshl_b32 s28, s27, 11""")
    srd(a, 16, 42, MB4); srd(a, 36, 58, 64 << 20)
    if opt.codepf0:
        a(f"""    s_cmp_lg_u32 s25, {opt.codepf0}
    s_cbranch_scc1 {L}_nc0
    s_getpc_b64 s[66:67]
{L}_pc0:
    s_sub_u32 s66, s66, {L}_pc0 - {name}
    s_subb_u32 s67, s67, 0
    v_and_b32 v13, 255, v0
    v_lshlrev_b32 v13, 7, v13
    v_min_u32 v13, TEXT_END - {name} - 4, v13
    global_load_dword v199, v13, s[66:67]
{L}_nc0:""")
    def statrows():
        for i in range(4): a(f"    buffer_load_dwordx4 {vr(XR+4*i,4)}, v6, s[16:19], s28 offen offset:{1024*i}")
    if not opt.slate: statrows()
    a("    s_waitcnt lgkmcnt(0)")
    srd(a, 12, 10, MB4)
    a(f"""    v_add_u32 v5, s26, v5            ; x tile
    s_mov_b32 s45, 0x10000
    s_mov_b32 s46, 0x18000
    s_lshl_b32 s26, s63, 12
    s_load_dwordx2 s[10:11], s[0:1], {ARG['w1']}
    s_lshl_b32 s49, s34, 12
    s_add_u32 s49, s49, {XS}
    s_mov_b32 s70, 0x05040100
    s_mov_b32 s71, 0x07060302
    s_mov_b32 s51, 0x3a800000
    s_mov_b32 s50, 0x3727c5ac
    s_lshl_b32 s27, s27, 2
    s_add_u32 s72, s27, {ST1_OFF:#x}
    s_add_u32 s73, s72, 8192
    v_add_u32 v7, s64, v6
    v_mov_b32 v60, 0
    v_mov_b32 v61, 0
    v_mov_b32 v62, 0
    v_mov_b32 v63, 0
    v_mul_u32_u24 v39, {2*IS}, v3
    v_lshl_add_u32 v39, v4, 3, v39
    s_lshl_b32 s27, s34, 6
    s_add_u32 s27, s27, {STG}
    v_add_u32 v39, s27, v39""")
    a("    s_waitcnt lgkmcnt(0)\n    s_barrier")
    stamp(a, 0)
    if opt.tlb3:
        sh = opt.tlb3
        a(f"""    s_load_dwordx2 s[74:75], s[0:1], {ARG['w2']}
    s_load_dwordx2 s[76:77], s[0:1], {ARG['out']}
    s_lshl_b32 s78, s25, 2
    s_add_u32 s78, s78, s34
    s_lshl_b32 s78, s78, {sh}
    s_waitcnt lgkmcnt(0)""")
        for r, n in (("s[10:11]", 1024 * 7168), ("s[74:75]", 3584 * 2048), ("s[76:77]", MB4), ("s[58:59]", 0x2900000)):
            for j in range((n + (128 << sh) - 1) // (128 << sh)):
                a(f"    s_add_u32 s30, s78, {j * (128 << sh):#x}\n    s_min_u32 s30, s30, {n - 4:#x}\n    s_load_dword s79, {r}, s30")
    if opt.tlb2:
        G = opt.tlb2
        a(f"""    s_cmp_lg_u32 s25, 1
    s_cbranch_scc1 {L}_notlb
    s_load_dwordx2 s[74:75], s[0:1], {ARG['w2']}
    s_load_dwordx2 s[76:77], s[0:1], {ARG['out']}
    s_waitcnt lgkmcnt(0)""")
        regs = [("s[10:11]", 1024 * 7168), ("s[74:75]", 3584 * 2048), ("s[76:77]", MB4), ("s[58:59]", 0x2900000)]
        lst = [(r, o) for r, n in regs for o in range(0, n, G)]
        for w in range(4):
            a(f"    s_cmp_lg_u32 s34, {w}\n    s_cbranch_scc1 {L}_tl{w}")
            for j, (r, o) in enumerate(lst[w::4]):
                a(f"    s_mov_b32 s78, {o:#x}\n    s_load_dword s79, {r}, s78")
                if j % 14 == 13: a("    s_waitcnt lgkmcnt(0)")
            a(f"{L}_tl{w}:")
        a(f"{L}_notlb:")
    S = [180, 181]; T = [182, 183]; M = [184, 186]; PS = [188, 190]
    a(f"""    v_mov_b32 v10, {WRD}
    v_mov_b32 v11, 1""")
    if opt.slate:
        a(f"    s_waitcnt vmcnt({opt.slate - 1})")
        statrows()
    a(f"""    s_waitcnt vmcnt(4)
    s_mov_b64 exec, 1
    ds_add_u32 v10, v11 offset:32
    s_mov_b64 exec, -1""")
    a(f"    s_waitcnt vmcnt({opt.early2 - 1})\n    s_add_u32 m0, s64, 32\n    s_nop 0")
    for i in range(4): a(f"    buffer_load_dwordx4 v6, s[12:15], s26 offen offset:{1024*i} {opt.ntf2} lds")
    def xtile():
        a(f"    s_mul_i32 s35, s34, {IS}")
        for j in range(4): a(f"    s_add_u32 m0, s35, {STG + 4*j*IS}\n    s_nop 0\n    buffer_load_dwordx4 v5, s[16:19], {so[j]} offen lds")
    if opt.xearly: xtile()
    a(f"    s_waitcnt vmcnt({8 if opt.xearly else 4})")
    stamp(a, 1)
    if opt.dot2:
        S = [180, 181, 182, 183]; T = [184, 185, 186, 187]; M = [188, 189]
        a("    s_mov_b32 s74, 0x3f803f80")
        for i in range(8):
            for rho in range(2):
                x = XR + 8 * rho + i
                a(f"    v_dot2_f32_bf16 v{S[rho]}, v{x}, s74, {'0' if i == 0 else 'v%d' % S[rho]}")
                a(f"    v_dot2_f32_bf16 v{S[2+rho]}, v{x}, v{x}, {'0' if i == 0 else 'v%d' % S[2+rho]}")
        a("    s_nop 1")
        wave_sum(a, S, T)
        for rho in range(2): a(f"    v_mul_f32 v{M[rho]}, s51, v{S[rho]}")
        for rho in range(2): a(f"    v_fma_f32 v{S[rho]}, -v{M[rho]}, v{S[rho]}, v{S[2+rho]}")
        for rho in range(2): a(f"    v_max_f32 v{S[rho]}, 0, v{S[rho]}")
    else:
        for rho in range(2):
            for i in range(8): unpack(a, XF + 16 * rho + 2 * i, XR + 8 * rho + i)
        src = lambda rho, i: XF + 16 * rho + 2 * i
        for rho in range(2): a(f"    v_pk_add_f32 {vr(PS[rho],2)}, {vr(src(rho,0),2)}, {vr(src(rho,1),2)}")
        for i in range(2, 8):
            for rho in range(2): a(f"    v_pk_add_f32 {vr(PS[rho],2)}, {vr(PS[rho],2)}, {vr(src(rho,i),2)}")
        for rho in range(2): a(f"    v_add_f32 v{S[rho]}, v{PS[rho]}, v{PS[rho]+1}")
        wave_sum(a, S, T)
        for rho in range(2): a(f"    v_mul_f32 v{M[rho]}, s51, v{S[rho]}")
        for i in range(8):
            for rho in range(2):
                a(f"    v_pk_add_f32 {vr(src(rho,i),2)}, {vr(src(rho,i),2)}, {vr(M[rho],2)} op_sel_hi:[1,0] neg_lo:[0,1] neg_hi:[0,1]")
        for rho in range(2): a(f"    v_pk_mul_f32 {vr(PS[rho],2)}, {vr(src(rho,0),2)}, {vr(src(rho,0),2)}")
        for i in range(1, 8):
            for rho in range(2): a(f"    v_pk_fma_f32 {vr(PS[rho],2)}, {vr(src(rho,i),2)}, {vr(src(rho,i),2)}, {vr(PS[rho],2)}")
        for rho in range(2): a(f"    v_add_f32 v{S[rho]}, v{PS[rho]}, v{PS[rho]+1}")
        wave_sum(a, S, T)
    for rho in range(2):
        a(f"    v_mov_b32 v{192+rho}, v{M[rho]}"); rnd(a, 192 + rho)
        a(f"    v_mul_f32 v{194+rho}, s51, v{S[rho]}"); rnd(a, 194 + rho); a(f"    v_add_f32 v{194+rho}, s50, v{194+rho}"); rnd(a, 194 + rho)
    a("    v_sqrt_f32 v194, v194\n    v_sqrt_f32 v195, v195\n    s_nop 0")
    for rho in range(2): rnd(a, 194 + rho)
    a(f"""    v_rcp_f32 v194, v194
    v_rcp_f32 v195, v195
    v_mov_b32 v12, 0
    s_mov_b64 exec, 1
    buffer_store_dwordx2 v[192:193], v12, s[36:39], s72 offen sc1
    buffer_store_dwordx2 v[194:195], v12, s[36:39], s73 offen sc1
    s_mov_b64 exec, -1""")
    if not opt.xearly: xtile()
    stamp(a, 2)
    def copies(first):
        a(f"    s_waitcnt vmcnt({first})")
        for i in range(4):
            a(f"    ds_read_b128 {vr(FD+8*i,4)}, v7 offset:{32 + 1024*i}\n    ds_read_b64 {vr(FD+8*i+4,2)}, v7 offset:{48 + 1024*i}")
        for i in range(4):
            D = FD + 8 * i; t = 64 + 12 * (i & 1) + 132
            a(f"    s_waitcnt lgkmcnt({6 - 2*i})" if i == 0 else f"    s_waitcnt lgkmcnt({min(15, 6 - 2*i + 3*i + (8 if i else 0))})")
            for k in range(4): a(f"    v_alignbit_b32 v{t+k}, v{D+k+1}, v{D+k}, 16")
            a(f"    ds_write_b128 v7, {vr(t,4)} offset:{CS + 32 + 1024*i}")
            for k in range(4): a(f"    v_mov_b32 v{t+4+k}, v{D+k+1}")
            a(f"    ds_write_b128 v7, {vr(t+4,4)} offset:{2*CS + 32 + 1024*i}")
            for k in range(4): a(f"    v_alignbit_b32 v{t+8+k}, v{D+k+2}, v{D+k+1}, 16")
            a(f"    ds_write_b128 v7, {vr(t+8,4)} offset:{3*CS + 32 + 1024*i}")
            if i == 0:
                a(f"""    v_mov_b32 v68, 0
    v_mov_b32 v69, 0
    v_mov_b32 v70, 0
    v_lshlrev_b32 v71, 16, v{D}
    v_mov_b32 v72, 0
    v_mov_b32 v73, 0
    v_mov_b32 v74, 0
    v_mov_b32 v75, v{D}
    v_mov_b32 v76, 0
    v_mov_b32 v77, 0
    v_mov_b32 v78, v71
    v_mov_b32 v79, v{t}
    s_mov_b64 exec, 1
    ds_write_b128 v7, v[60:63]
    ds_write_b128 v7, v[60:63] offset:16
    ds_write_b128 v7, v[60:63] offset:{CS}
    ds_write_b128 v7, v[68:71] offset:{CS+16}
    ds_write_b128 v7, v[60:63] offset:{2*CS}
    ds_write_b128 v7, v[72:75] offset:{2*CS+16}
    ds_write_b128 v7, v[60:63] offset:{3*CS}
    ds_write_b128 v7, v[76:79] offset:{3*CS+16}
    s_mov_b64 exec, -1""")
        a("""    s_waitcnt lgkmcnt(0)
    s_mov_b64 exec, 1
    ds_add_u32 v10, v11 offset:8
    s_mov_b64 exec, -1""")
    a(f"    v_mov_b32 v10, {WRD}\n    v_mov_b32 v11, 1")
    if not opt.xfirst:
        copies(6)
    a(f"    s_waitcnt vmcnt({0 if opt.xearly else 4})")
    count_in(36, "s")
    a(f"    s_cbranch_scc0 {L}_nsf")
    spin(44, 1, "c")
    a(f"""    s_lshl_b32 s27, s62, 5
    s_add_u32 s27, s27, {SF_OFF:#x}
    s_mov_b64 exec, 1
    buffer_store_dword v11, v12, s[36:39], s27 offen sc1
    s_mov_b64 exec, -1
    s_waitcnt vmcnt(1)
    s_branch {L}_nsg
{L}_nsf:
    s_waitcnt vmcnt(0)
{L}_nsg:
    s_mov_b64 exec, 1
    ds_add_u32 v10, v11 offset:40
    s_mov_b64 exec, -1""")
    stamp(a, 7)
    spin(40, 4, "t", 12)
    for j in range(8): a(f"    ds_read_b64 {vr(XT_+2*j,2)}, v39 offset:{(j >> 2)*IS + (j & 3)*256}")
    tail_addr(False, XT_OFF, "s49")
    a("    s_waitcnt lgkmcnt(0)")
    for c in range(4):
        for d in range(4):
            a(f"    v_perm_b32 v{PKX+4*c+d}, v{XT_ + 2*(2*d+1) + (c>>1)}, v{XT_ + 2*(2*d) + (c>>1)}, s{70 + (c&1)}")
        out_store(PKX + 4 * c, 'sc1')
    if opt.xfirst: copies(4)
    stamp(a, 9)
    a("    s_waitcnt vmcnt(0)")
    stamp(a, 10)
    count_in(12, "x")
    a(f"    s_cbranch_scc0 {L}_w2")
    signal_poll(XF_OFF, "x", poll=False)
    if opt.stamps: a("    s_memtime s[74:75]\n    s_waitcnt lgkmcnt(0)\n    s_sub_u32 s74, s74, s80\n    v_mov_b32 v20, s74\n    ds_write_b32 v10, v20 offset:60")
    a(f"""    ds_write_b32 v10, v11 offset:16
    s_mov_b32 m0, s49
    s_add_u32 s26, s26, {XT_OFF:#x}""")
    for i in range(4): a(f"    buffer_load_dwordx4 v6, s[36:39], s26 offen offset:{1024*i} {opt.ldf} lds")
    a(f"""    v_lshlrev_b32 v14, 12, v3
    s_mov_b32 s28, {GF_OFF:#x}
{L}_p3:
    buffer_load_dword v15, v14, s[36:39], s28 offen sc1
    s_waitcnt vmcnt(0)
    v_cmp_eq_u32 vcc, 1, v15
    s_cmp_eq_u64 vcc, -1
    s_cbranch_scc1 {L}_p3e
    s_sleep {opt.xsleep}
    s_branch {L}_p3
{L}_p3e:
    ds_write_b32 v10, v11 offset:24
    s_branch {L}_g2
{L}_w2:""")
    spin(16, 1, "x")
    a(f"    s_mov_b32 m0, s49\n    s_add_u32 s26, s26, {XT_OFF:#x}")
    for i in range(4): a(f"    buffer_load_dwordx4 v6, s[36:39], s26 offen offset:{1024*i} {opt.ldf} lds")
    spin(24, 1, "y")
    a(f"{L}_g2:")
    stamp(a, 4)
    if opt.stamps: a("    ds_read_b32 v20, v10 offset:60\n    s_waitcnt lgkmcnt(0)\n    v_readfirstlane_b32 s74, v20\n    s_nop 1\n    v_writelane_b32 v250, s74, 11")
    a(f"""    s_lshl_b32 s30, s34, 12
    s_add_u32 m0, s30, {STG}
    s_add_u32 s30, s30, {ST1_OFF:#x}""")
    for i in range(4): a(f"    buffer_load_dwordx4 v6, s[36:39], s30 offen offset:{1024*i} sc1 lds")
    a(f"""    s_lshl_b32 s47, s2, 10
    s_lshl_b32 s48, s34, 8
    s_add_u32 s47, s47, s48
    s_add_u32 s47, s47, {PST_OFF:#x}
    v_lshlrev_b32 v14, 2, v2
    v_mov_b32 v15, -1
    buffer_store_dword v15, v14, s[36:39], s47 offen {MF}
    s_mul_i32 s47, s2, 560
    s_mul_i32 s48, s34, 140
    s_add_u32 s47, s47, s48
    s_add_u32 s47, s47, {FLG_OFF:#x}
    v_min_u32 v14, 34, v2
    v_lshlrev_b32 v14, 2, v14
    buffer_store_dword v12, v14, s[36:39], s47 offen {MF}
    s_and_b32 s25, s2, 15            ; k slice
    s_lshr_b32 s26, s2, 4
    s_mul_i32 s27, s25, {64*7168}
    s_lshl_b32 s28, s26, 9
    s_lshl_b32 s29, s34, 7
    s_add_u32 s28, s28, s29
    s_add_u32 s27, s27, s28
    v_mul_u32_u24 v5, 7168, v4
    v_lshl_add_u32 v5, v3, 4, v5
    s_mul_i32 s30, s25, {3584*4}
    s_lshl_b32 s28, s28, 1
    s_add_u32 s30, s30, s28
    s_add_u32 s30, s30, {CS_OFF:#x}
    s_cmp_ge_u32 s2, 224
    s_cselect_b32 s27, 0x80000000, s27
    s_cselect_b32 s30, 0x80000000, s30
    s_waitcnt lgkmcnt(0)""")
    DEC = mega and opt.csdec
    if DEC: a("    v_lshlrev_b32 v14, 2, v2\n    buffer_store_dword v15, v14, s[36:39], s30 offen sc1")
    srd(a, 12, 10, 1024 * 7168)
    W = 16; WF = 48
    ld = lambda i: a(f"    buffer_load_dwordx4 {vr(W+4*i,4)}, v5, s[12:15], s27 offen\n    s_add_u32 s27, s27, {8*7168}")
    TH = opt.w1th
    for i in range(TH): ld(i)
    a(f"""    s_waitcnt vmcnt({(3 if DEC else 2) + TH})
    s_mov_b64 exec, 1
    ds_add_u32 v10, v11 offset:20
    s_mov_b64 exec, -1""")
    stamp(a, 5)
    if DEC:
        assert TH == 8
        a("    s_waitcnt vmcnt(8)")
        hf_count("h", 48, HF_OFF + (0x8000 if TWO else 0))
        if TWO: hf_count("h1", 52, HF_OFF)
    a(f"    s_cmp_ge_u32 s2, 224\n    s_cbranch_scc1 {L}_code")
    for i in range(8):
        a(f"    s_waitcnt vmcnt({min(TH, 8 - i) - 1})")
        if i + TH < 8: ld(i + TH)
        if i == 0:
            for d in range(4): unpack(a, WF + 2 * d, W + d)
        else:
            for d in range(4):
                unpack(a, WF + 8 + 2 * (d & 1), W + 4 * i + d)
                a(f"    v_pk_add_f32 {vr(WF+2*d,2)}, {vr(WF+2*d,2)}, {vr(WF + 8 + 2*(d&1),2)}")
    if opt.c_pf2:
        a(f"    s_load_dwordx2 s[42:43], s[0:1], {ARG['w2']}\n    s_mul_i32 s29, s2, 32768\n    s_lshl_b32 s31, s34, 13\n    s_add_u32 s29, s29, s31\n    v_lshlrev_b32 v7, {8 if opt.c_pf2 == 2 else 7}, v2\n    s_waitcnt lgkmcnt(0)")
        srd(a, 20, 42, 3584 * 2048)
        if opt.c_pf2 == 2: a("    s_mov_b32 exec_hi, 0")
        a("    buffer_load_dword v8, v7, s[20:23], s29 offen\n    s_mov_b64 exec, -1")
    for d in range(8): a(f"    v_add_f32_dpp v{WF+d}, v{WF+d}, v{WF+d} row_ror:8 row_mask:0xf bank_mask:0xf")
    for sw in ("v_permlane16_swap_b32", "v_permlane32_swap_b32"):
        for d in range(8): a(f"    v_mov_b32 v{WF+8+d}, v{WF+d}")
        for d in range(8): a(f"    {sw} v{WF+8+d}, v{WF+d}")
        for d in range(8): a(f"    v_add_f32 v{WF+d}, v{WF+d}, v{WF+8+d}")
    if DEC:
        for d in range(8): a(f"    v_min_u32 v{WF+d}, -2, v{WF+d}")
    HD = f"{L}_done2" if DEC else f"{L}_done"
    a(f"""    s_mov_b32 s27, s30
    v_lshlrev_b32 v4, 5, v3
    s_mov_b64 exec, 0xff
    buffer_store_dwordx4 {vr(WF,4)}, v4, s[36:39], s27 offen {MF}
    buffer_store_dwordx4 {vr(WF+4,4)}, v4, s[36:39], s27 offen offset:16 {MF}
    s_mov_b64 exec, -1
    s_branch {HD}
{L}_code:""")
    if opt.biaspf:
        a(f"""    s_load_dwordx2 s[66:67], s[0:1], {ARG['b1']}
    s_load_dwordx2 s[68:69], s[0:1], {ARG['b2']}
    v_lshlrev_b32 v13, 7, v2
    v_min_u32 v14, 2044, v13
    v_min_u32 v13, 7164, v13
    s_waitcnt lgkmcnt(0)
    global_load_dword v63, v13, s[66:67]
    global_load_dword v61, v14, s[68:69]""")
    if opt.codepf:
        a(f"""    s_cmp_ge_u32 s2, 232
    s_cbranch_scc1 {HD}
    s_getpc_b64 s[66:67]
{L}_pc:
    v_and_b32 v13, 255, v0
    v_lshlrev_b32 v13, 7, v13
    v_min_u32 v13, TEXT_END - {L}_pc - 4, v13
    global_load_dword v62, v13, s[66:67]""")
    if DEC: a(f"    s_branch {HD}")
    a(f"{L}_done:")
    if mega:
        a("    s_waitcnt vmcnt(0)")
        hf_count("c", 48, HF_OFF + (0x8000 if TWO else 0))
        if DEC: a(f"{HD}:")
        stamp(a, 8)
        stamp_end(a, kidx, 58, 33)
        gen3.gen_ga(a, kidx + 1, mega=dict(WRD=WRD, HF=HF_OFF, two=TWO, end=f"{L}_end"))
        return (name, 256, 512, 163840), (name, 256, 96)
    if opt.stamps: a("    s_waitcnt vmcnt(0)")
    stamp(a, 8)
    stamp_end(a, kidx, 58, 33)
    a(f"{L}_end:\n    s_endpgm")
    return (name, 256, 512, WRD + 64), (name, 256, 96)

opt.htf = ""
gen.KGEN["pc"] = gen_pc
gen.KGEN["mega"] = lambda a, k: gen_pc(a, k, mega=True)
```

```python
import gen, gen2, gen3, gen4, sys
for k, v in dict(psleep=4, codepf=True, w1th=8, w2pf="l", g2_bar=17, single=True).items(): setattr(gen.opt, k, v)
for kv in sys.argv[2:]:
    k, v = kv.split("="); setattr(gen.opt, k, eval(v))
body = gen.build(["mega"])
hdr = open("sequential_preLN__ssm_conv_h3__dense_activation_squared_relu__prompt.s.ref").read().split("; Override launch")[0]
doc = """; One persistent launch, 256 workgroups x 8 waves, one workgroup per CU (all co-resident):
"""
lines = body.split("\n")
out = hdr + doc + "\n".join(l for l in lines if l.strip() not in ("", ";"))+ "\n"
open(sys.argv[1], "w").write(out)
```

```python
import sys
from asmlib import *
import gen, gen2, gen3
from gen import opt, stamp, stamp_begin, stamp_end, vr, wave_sum, MB4, KVR_OFF, FLG_OFF
from gen3 import XT_OFF, HT_OFF, ST1_OFF, CS_OFF, PST_OFF, unpack, rnd

KVF_OFF = 0x0CC0000
XF_OFF = KVF_OFF + 4
SF_OFF = KVF_OFF + 0x8000
GF_OFF = KVF_OFF + 0x10000
HF_OFF = KVF_OFF + 0x18000
opt.scode = 0
opt.biaspf = True
opt.slate = 0
opt.codepf0 = 0
opt.twopass = False
opt.midit = 2
opt.dot2 = False
opt.fixsig = True
opt.xfirst = False
opt.kvpre = False
opt.csdec = True
opt.ntf = 'nt'
opt.ntf2 = 'nt'
opt.kvprio = 0
opt.xearly = False
opt.tlb3 = 0
opt.tlb2 = 0
opt.flagl = True
opt.kvf = 'sc1'
opt.ldf = 'sc1'
opt.early2 = 1
opt.gate = 4
opt.xsleep = 4
opt.w1th = 4

def gen_pc(a, kidx, mega=False):
    name = KN + "_kernel" if mega else "f_kernel"; L = "F"
    MF = "sc1" if mega else ""
    CS = 4160; RO = 4 * CS; WSZ = 21248
    IS = 1040; KT = 4 * WSZ; VT = KT + 17 * IS; XS = KT + 33 * IS + 112; STG = XS + 16384; WRD = STG + 16 * IS
    assert XS % 16 == 0
    kernel_head(a, name)
    a(f"""    s_load_dwordx4 s[4:7], s[0:1], {ARG['k']}      ; k, v
    s_load_dwordx4 s[56:59], s[0:1], {ARG['dbg']}
    s_load_dwordx2 s[42:43], s[0:1], {ARG['q']}
    s_cmp_ge_u32 s2, 256
    s_cbranch_scc1 {L}_end""")
    stamp_begin(a)
    a(f"""    v_readfirstlane_b32 s33, v0
    s_and_b32 s24, s2, 7
    s_lshr_b32 s25, s2, 3
    v_bfe_u32 v5, v0, 4, 4
    v_and_b32 v6, 15, v0
    v_lshlrev_b32 v5, 11, v5
    v_lshl_add_u32 v5, v6, 4, v5
    s_lshl_b32 s62, s24, 5
    s_add_u32 s62, s62, s25
    v_lshrrev_b32 v4, 3, v0
    v_and_b32 v3, 7, v0              ; cg
    v_lshlrev_b32 v16, 15, v4
    v_lshl_add_u32 v16, v3, 4, v16
    s_lshl_b32 s27, s62, 7
    s_add_u32 s27, s27, {KVF_OFF:#x}
    v_add_u32 v16, s27, v16
    v_mov_b64 v[12:13], 0
    v_mov_b64 v[14:15], 0
    s_lshr_b32 s33, s33, 6           ; wave
    s_and_b32 s34, s33, 3            ; w
    s_lshl_b32 s26, s25, 17
    s_lshl_b32 s27, s24, 8
    s_add_u32 s26, s26, s27
    s_mul_i32 s35, s34, {IS}
    s_mov_b32 s14, 0x400000
    s_mov_b32 s15, 0x00020000
    s_mov_b32 s44, 0x8000
    v_cmp_gt_u32 vcc, {40 if mega else 24}, v0
    s_cmp_ge_u32 s33, 4
    s_cselect_b32 s27, {VT}, s44
    s_cselect_b32 s28, 0, {KT + IS - 0x8000}
    s_add_u32 s27, s27, s28
    s_add_u32 m0, s35, s27
    s_cmp_ge_u32 s33, 4
    s_waitcnt lgkmcnt(0)
    s_cselect_b64 s[12:13], s[6:7], s[4:5]
    s_and_saveexec_b64 s[30:31], vcc
    s_cbranch_execz {L}_nocl
    global_store_dwordx4 v16, v[12:15], s[58:59] sc1
{L}_nocl:
    s_mov_b64 exec, s[30:31]
    s_mov_b32 s27, s26""")
    for j in range(4):
        a(f"    buffer_load_dwordx4 v5, s[12:15], s27 offen {opt.ntf} lds")
        if j < 3: a(f"    s_add_u32 m0, m0, {4*IS}\n    s_add_u32 s27, s27, s44")
    a(f"""    s_load_dwordx4 s[8:11], s[0:1], {ARG['shift']}
    s_load_dwordx2 s[60:61], s[0:1], {ARG['ssmD']}
    v_and_b32 v2, 63, v0
    v_and_b32 v4, 7, v4              ; rg
    s_lshl_b32 s62, s62, 2
    s_add_u32 s63, s62, s34
    s_mul_i32 s64, s34, {WSZ}        ; WB
    s_cmp_ge_u32 s33, 4
    s_cbranch_scc1 {L}_help""")
    so = ["0", "s44", "s45", "s46"]
    def tail_addr(rev, off, ldsb):
        a(f"""    {"v_xor_b32 v13, 7, v3" if rev else "v_mov_b32 v13, v3"}
    v_lshlrev_b32 v13, 4, v13
    v_lshl_add_u32 v13, v4, 14, v13
    s_lshl_b32 s47, s24, 19
    s_lshl_b32 s48, s34, 17
    s_add_u32 s47, s47, s48              ; (cb*128+w*32)*4096
    s_lshl_b32 s48, s25, 7""")
        if rev: a(f"    s_sub_u32 s48, {3968 + off}, s48")
        else: a(f"    s_add_u32 s48, s48, {off:#x}")
        a("    s_add_u32 s47, s47, s48")
    def out_store(R, fl):
        a(f"    buffer_store_dwordx4 {vr(R,4)}, v13, s[36:39], s47 offen {fl}\n    s_add_u32 s47, s47, 4096")
    def count_in(word, tag):
        a(f"""    v_mov_b32 v10, {WRD}
    v_mov_b32 v11, 1
    v_mov_b32 v12, 0
    s_mov_b64 exec, 1
    ds_add_rtn_u32 v13, v10, v11 offset:{word}
    s_mov_b64 exec, -1
    s_waitcnt lgkmcnt(0)
    v_readfirstlane_b32 s35, v13
    s_cmp_eq_u32 s35, 3""")
    def spin(word, val, tag, r=13):
        a(f"""{L}_sp{tag}:
    ds_read_b32 v{r}, v10 offset:{word}
    s_waitcnt lgkmcnt(0)
    v_readfirstlane_b32 s35, v{r}
    s_cmp_eq_u32 s35, {val}
    s_cbranch_scc1 {L}_sq{tag}
    s_sleep 1
    s_branch {L}_sp{tag}
{L}_sq{tag}:""")
    def hf_count(tag, word, off):
        a(f"""    v_mov_b32 v12, 1
    v_mov_b32 v14, 0
    s_mov_b64 exec, 1
    ds_add_rtn_u32 v13, v10, v12 offset:{word}
    s_waitcnt lgkmcnt(0)
    v_readfirstlane_b32 s76, v13
    s_cmp_eq_u32 s76, 7
    s_cbranch_scc0 {L}_nohf{tag}
    s_lshl_b32 s77, s62, 5
    s_add_u32 s77, s77, {off:#x}
    buffer_store_dword v12, v14, s[36:39], s77 offen sc1
{L}_nohf{tag}:
    s_mov_b64 exec, -1""")
    TWO = mega and opt.twopass
    def reg_issue():
        a("    buffer_load_dwordx2 v[36:37], v39, s[52:55], 0 offen sc1")
    def reg_check(tag):
        a(f"""    s_getreg_b32 s65, hwreg(HW_REG_XCC_ID)
    s_and_b32 s65, s65, 7
    s_lshl_b32 s65, s65, 3
    s_lshl_b64 s[66:67], 32, s65
{L}_rg{tag}:
    v_sad_u8 v38, v36, 0, 0
    v_sad_u8 v38, v37, 0, v38
    v_cmp_eq_u32 vcc, 32, v38
    s_cmp_eq_u64 vcc, -1
    s_cbranch_scc1 {L}_rk{tag}
    s_sleep 24
    buffer_load_dwordx2 v[36:37], v39, s[52:55], 0 offen sc1
    s_waitcnt vmcnt(0)
    s_branch {L}_rg{tag}
{L}_rk{tag}:
    v_readlane_b32 s68, v36, s24
    v_readlane_b32 s69, v37, s24
    s_cmp_eq_u64 s[68:69], s[66:67]
    s_cselect_b32 s65, 1, 0""")
    def signal_poll(off, tag, poll=True, known=False):
        if not known: a(f"""{L}_md{tag}:
    ds_read_b32 v13, v10 offset:28
    s_waitcnt lgkmcnt(0)
    v_readfirstlane_b32 s65, v13
    s_cmp_eq_u32 s65, 0
    s_cbranch_scc1 {L}_md{tag}
    s_sub_u32 s65, s65, 1""")
        a(f"""    s_lshl_b32 s27, s62, 5
    s_and_b32 s28, s27, 0xfffff000
    s_add_u32 s27, s27, {off:#x}
    s_add_u32 s28, s28, {off:#x}
    v_and_b32 v14, 31, v2
    v_lshlrev_b32 v14, 7, v14
    s_mov_b64 exec, 1
    s_cmp_eq_u32 s65, {1 if opt.flagl else 7}
    s_cbranch_scc1 {L}_sl{tag}
    {"" if (opt.kvf == "sc1" or tag == "x") else "buffer_wbl2 sc1"}
    {"" if (opt.kvf == "sc1" or tag == "x") else "s_waitcnt vmcnt(0)"}
    buffer_store_dword v11, v12, s[36:39], s27 offen sc1
    s_branch {L}_pp{tag}
{L}_sl{tag}:
    buffer_store_dword v11, v12, s[36:39], s27 offen
{L}_pp{tag}:
    s_mov_b64 exec, -1""")
        if not poll:
            a(f"""    s_cmp_lg_u32 s25, 0
    s_cbranch_scc1 {L}_pl{tag}
    s_add_u32 s27, s28, {SF_OFF - XF_OFF:#x}
{L}_sfp:
    buffer_load_dword v15, v14, s[36:39], s27 offen sc1
    s_waitcnt vmcnt(0)
    v_cmp_eq_u32 vcc, 1, v15
    s_cmp_eq_u64 vcc, -1
    s_cbranch_scc0 {L}_sfp
    s_lshl_b32 s27, s24, 12
    s_add_u32 s27, s27, {GF_OFF:#x}
    s_mov_b64 exec, 1
    buffer_store_dword v11, v12, s[36:39], s27 offen sc1
    s_mov_b64 exec, -1""")
        a(f"""{L}_pl{tag}:
    buffer_load_dword v15, v14, s[36:39], s28 offen sc1
    s_waitcnt vmcnt(0)
    v_cmp_eq_u32 vcc, 1, v15
    s_cmp_eq_u64 vcc, -1
    s_cbranch_scc0 {L}_pl{tag}""")
    a(f"""    v_and_b32 v6, 0x1fff, v5
    v_add_u32 v6, s26, v6
    v_subrev_u32 v6, 8192, v6
    s_mov_b32 m0, {KT}
    s_nop 0
    buffer_load_dwordx4 v6, s[12:15], 0 offen {opt.ntf} lds
    s_waitcnt lgkmcnt(0)""")
    KR = 208; VR = 40; WR = 56
    srd(a, 20, 8, 8192)
    a(f"""    s_lshl_b32 s27, s24, 10
    s_lshl_b32 s28, s34, 8
    s_add_u32 s27, s27, s28
    v_lshlrev_b32 v8, 5, v4
    buffer_load_dwordx4 {vr(WR,4)}, v8, s[20:23], s27 offen
    buffer_load_dwordx4 {vr(WR+4,4)}, v8, s[20:23], s27 offen offset:16
    s_lshr_b32 s28, s63, 1
    s_lshl_b32 s28, s28, 2
    s_load_dword s29, s[60:61], s28
    v_mul_u32_u24 v7, {2*IS}, v3
    v_lshl_add_u32 v7, v4, 3, v7
    s_lshl_b32 s27, s34, 6
    s_add_u32 s27, s27, {KT}
    v_add_u32 v7, s27, v7
    v_mov_b32 v10, {WRD}
    v_mov_b32 v16, 0
    v_mov_b32 v17, 0
    v_mov_b32 v18, 0
    v_mov_b32 v19, 0
    ds_write_b128 v10, v[16:19]
    ds_write_b128 v10, v[16:19] offset:16
    ds_write_b128 v10, v[16:19] offset:32
    ds_write_b128 v10, v[16:19] offset:48
    s_add_u32 s49, s64, {RO}""")
    srd(a, 36, 58, 64 << 20); srd(a, 52, 56, 256)
    a("    v_lshlrev_b32 v39, 5, v3")
    tail_addr(True, KVR_OFF, "s49")
    PRE = 1 if opt.kvpre else 0
    if PRE:
        a("    v_and_b32 v34, 31, v2\n    v_lshlrev_b32 v34, 12, v34\n    buffer_load_dword v35, v34, s[36:39], s47 offen")
    WF = 64; KF = 80; VF = 124; OF = 156; PK = 190
    stamp(a, 0)
    a(f"""    s_waitcnt lgkmcnt(0)
    s_barrier""")
    if opt.scode:
        a(f"""    s_getpc_b64 s[66:67]
{L}_pc1:
    s_lshl_b32 s30, s25, 2
    s_add_u32 s30, s30, s34
    s_lshl_b32 s30, s30, 6""")
        for j in range(opt.scode): a(f"    s_add_u32 s31, s30, {8192*j}\n    s_min_u32 s31, s31, TEXT_END - {L}_pc1 - 4\n    s_load_dword s79, s[66:67], s31")
    a(f"""    s_cmp_lg_u32 s33, 0
    s_cbranch_scc1 {L}_noreg
    s_getreg_b32 s65, hwreg(HW_REG_XCC_ID)
    s_and_b32 s65, s65, 7
    s_lshl_b32 s65, s65, 3
    s_lshl_b64 s[66:67], 1, s65
    v_mov_b32 v16, s66
    v_mov_b32 v17, s67
    v_mov_b32 v12, 0
    s_lshl_b32 s30, s24, 5
    s_mov_b64 exec, 1
    s_waitcnt vmcnt({7 + PRE})""")
    stamp(a, 9)
    a(f"""    buffer_atomic_add_x2 v[16:17], v12, s[52:55], s30 offen sc1
    v_mov_b32 v11, 1
    ds_write_b32 v10, v11 offset:44
    s_mov_b64 exec, -1
    s_waitcnt vmcnt({1 + PRE})
    s_branch {L}_kvl
{L}_noreg:
    s_waitcnt vmcnt({PRE})
{L}_kvl:""")
    a("""    s_nop 0
    v_mov_b32 v11, 1
    s_mov_b64 exec, 1
    ds_add_u32 v10, v11 offset:32
    s_mov_b64 exec, -1""")
    spin(32, 8, "k", 12)
    if opt.kvprio: a(f"    s_setprio {opt.kvprio}")
    stamp(a, 1)
    kro = lambda jj: ((1 + jj) >> 2) * IS + ((1 + jj) & 3) * 256
    order = [("k", 0), ("k", 1), ("k", 2)] + [x for j in range(8) for x in (("k", 3 + j), ("v", j))]
    def rd(x):
        if x[0] == "k": a(f"    ds_read_b64 {vr(KR + 2*x[1], 2)}, v7 offset:{kro(x[1])}")
        else: a(f"    ds_read_b64 {vr(VR + 2*x[1], 2)}, v7 offset:{17*IS + (x[1] >> 2)*IS + (x[1] & 3)*256}")
    for x in order[:13]: rd(x)
    for c in range(4):
        for j in range(4):
            src = WR + 2 * c + (j >> 1); d = WF + (c >> 1) * 8 + j * 2 + (c & 1)
            a(f"    v_lshlrev_b32 v{d}, 16, v{src}" if j % 2 == 0 else f"    v_and_b32 v{d}, 0xffff0000, v{src}")
    def unp2(dst, src):
        for p in range(2): unpack(a, dst + 2 * p, src + p)
    a("    s_waitcnt lgkmcnt(8)")
    for x in order[13:]: rd(x)
    for r in range(3): unp2(KF + 4 * r, KR + 2 * r)
    for j in range(8):
        if j: a(f"    s_waitcnt lgkmcnt({14 - 2*j})")
        unp2(KF + 4 * (3 + j), KR + 6 + 2 * j); unp2(VF + 4 * j, VR + 2 * j)
        for p in range(2):
            o = OF + 4 * j + 2 * p
            k = lambda r: vr(KF + 4 * r + 2 * p, 2)
            w = lambda t: vr(WF + p * 8 + 2 * t, 2)
            a(f"    v_pk_mul_f32 {vr(o,2)}, {k(j)}, {w(3)}")
            a(f"    v_pk_fma_f32 {vr(o,2)}, {k(j+1)}, {w(2)}, {vr(o,2)}")
            a(f"    v_pk_fma_f32 {vr(o,2)}, {k(j+2)}, {w(1)}, {vr(o,2)}")
            a(f"    v_pk_fma_f32 {vr(o,2)}, {k(j+3)}, {w(0)}, {vr(o,2)}")
            a(f"    v_pk_mul_f32 {vr(o,2)}, {vr(o,2)}, {vr(VF + 4*j + 2*p, 2)}")
    for c in range(4):
        for d in range(4):
            a(f"    v_cvt_pk_bf16_f32 v{PK+4*c+d}, v{OF + 4*(7-2*d) + c}, v{OF + 4*(6-2*d) + c}")
        out_store(PK + 4 * c, opt.kvf)
    a(f"    s_cmp_lg_u32 s33, 0\n    s_cbranch_scc1 {L}_nr1")
    reg_issue()
    a(f"{L}_nr1:")
    stamp(a, 2)
    ACC = 80; F0 = 112; F1 = 176
    a(f"""    v_lshlrev_b32 v40, 4, v2         ; lane*16
    v_add_u32 v4, s64, v40
    v_mov_b32 v60, 0
    v_mov_b32 v61, 0
    v_mov_b32 v62, 0
    v_mov_b32 v63, 0
    s_mov_b64 exec, 0x3fffffff
    ds_write_b128 v4, v[60:63] offset:{RO + 4096}
    s_mov_b64 exec, -1
    v_and_b32 v5, 15, v2             ; b / a
    v_lshrrev_b32 v6, 4, v2          ; kg
    v_add_u32 v7, 1, v5
    v_and_b32 v8, 3, v7
    v_mul_u32_u24 v8, {CS}, v8
    v_and_b32 v7, 28, v7
    v_lshl_add_u32 v8, v7, 1, v8
    v_lshl_add_u32 v8, v6, 4, v8
    v_add_u32 v8, s64, v8            ; vAT
    v_lshlrev_b32 v9, 5, v5
    v_lshl_add_u32 v41, v6, 3, v9    ; 32a + 8g
    v_sub_u32 v9, {RO + 480}, v9
    v_lshl_add_u32 v9, v6, 4, v9
    v_add_u32 v9, s64, v9            ; vBT
    s_lshl_b32 s26, s63, 12
    s_add_u32 m0, s64, {RO}""")
    for i in range(0, 32, 2): a(f"    v_mov_b64 {vr(ACC+i,2)}, 0")
    a(f"""    v_sub_u32 v32, {RO + 504}, v41
    v_add_u32 v32, s64, v32
    v_lshlrev_b32 v33, 1, v41
    v_add_u32 v33, {STG}, v33
    s_lshl_b32 s35, s34, 12
    s_add_u32 s35, s35, {XS}
    v_add_u32 v34, s35, v41
    s_lshl_b32 s75, s29, 16
    s_and_b32 s27, s29, 0xffff0000
    s_bitcmp1_b32 s63, 0
    s_cselect_b32 s75, s27, s75          ; D as f32
    s_and_b32 s27, s63, 3
    s_bfe_u32 s28, s63, 0x10003
    s_lshl_b32 s28, s28, 2
    s_or_b32 s27, s27, s28               ; g(d)
    v_and_b32 v42, 7, v5
    v_xor_b32 v42, s27, v42
    v_lshlrev_b32 v42, 5, v42
    v_lshrrev_b32 v12, 3, v5
    v_lshl_add_u32 v42, v12, 18, v42
    v_and_b32 v12, 1, v6
    v_lshl_add_u32 v42, v12, 19, v42
    v_lshrrev_b32 v12, 1, v6
    v_lshl_add_u32 v42, v12, 4, v42
    s_lshl_b32 s34, s63, 8
    s_add_u32 s34, s34, {HT_OFF:#x}""")
    if opt.fixsig:
        a(f"""    v_mov_b32 v12, 0
    s_waitcnt vmcnt(0)
    s_mov_b64 exec, 1
    ds_add_u32 v10, v11 offset:0
    s_mov_b64 exec, -1""")
        stamp(a, 3)
        a(f"    s_cmp_lg_u32 s33, 0\n    s_cbranch_scc1 {L}_w1")
        reg_check("a")
        a(f"""    s_add_u32 s65, s65, 1
    v_mov_b32 v38, s65
    ds_write_b32 v10, v38 offset:28
    s_sub_u32 s65, s65, 1""")
        spin(0, 4, "d")
        signal_poll(KVF_OFF, "a", known=True)
        a(f"""    ds_write_b32 v10, v11 offset:4
    s_branch {L}_g1
{L}_w1:""")
    else:
        a(f"    s_waitcnt vmcnt(0)\n    s_cmp_lg_u32 s33, 0\n    s_cbranch_scc1 {L}_nr2")
        reg_check("a")
        a(f"""    s_add_u32 s65, s65, 1
    v_mov_b32 v38, s65
    ds_write_b32 v10, v38 offset:28
{L}_nr2:""")
        stamp(a, 3)
        count_in(0, "a")
        a(f"    s_cbranch_scc0 {L}_w1")
        signal_poll(KVF_OFF, "a")
        a(f"""    ds_write_b32 v10, v11 offset:4
    s_branch {L}_g1
{L}_w1:""")
    spin(4, 1, "a")
    a(f"{L}_g1:")
    stamp(a, 4)
    for i in range(4): a(f"    buffer_load_dwordx4 v40, s[36:39], s26 offen offset:{1024*i} {opt.ldf} lds")
    spin(8, 4, "b")
    a("    s_waitcnt vmcnt(0)")
    stamp(a, 5)
    def reads(F, woff, nu=8):
        r = []
        for u in range(nu):
            r.append(f"    ds_read_b128 {vr(F+32+4*u,4)}, v9 offset:{3584 - 512*u + woff}")
            r.append(f"    ds_read_b64 {vr(F+4*u,2)}, v8 offset:{512*u + woff}")
            r.append(f"    ds_read_b64 {vr(F+4*u+2,2)}, v8 offset:{512*u + 8 + woff}")
        return r
    def mf(F, lo=0, hi=7):
        return [f"    v_mfma_f32_16x16x32_bf16 {vr(ACC+4*(u+v),4)}, {vr(F+4*u,4)}, {vr(F+32+4*v,4)}, {vr(ACC+4*(u+v),4)}" for u in range(8) for v in range(8 - u) if lo <= u + v <= hi]
    def weave(m, f):
        i = 0
        for x in m:
            a(x)
            if i < len(f): a(f[i]); i += 1
        for x in f[i:]: a(x)
    def epi(ns, KV, XR_, MT, RTB, OUT):
        for j, n in enumerate(ns):
            c = ACC + 4 * n; k = KV + 2 * j; x = XR_ + 2 * j; o = OUT + 2 * j
            lg = 4 * (len(ns) - 1 - j)
            if lg <= 12: a(f"    s_waitcnt lgkmcnt({lg})")
            elif j == 0: a("    s_waitcnt lgkmcnt(15)")
            a(f"""    v_and_b32 v12, 0xffff0000, v{k+1}
    v_lshlrev_b32 v13, 16, v{k+1}
    v_and_b32 v14, 0xffff0000, v{k}
    v_lshlrev_b32 v15, 16, v{k}
    v_fmac_f32 v{c}, s75, v12
    v_fmac_f32 v{c+1}, s75, v13
    v_fmac_f32 v{c+2}, s75, v14
    v_fmac_f32 v{c+3}, s75, v15
    v_lshlrev_b32 v12, 16, v{x}
    v_and_b32 v13, 0xffff0000, v{x}
    v_lshlrev_b32 v14, 16, v{x+1}
    v_and_b32 v15, 0xffff0000, v{x+1}
    v_pk_mul_f32 {vr(c,2)}, {vr(c,2)}, {vr(RTB+4*j,2)}
    v_pk_mul_f32 {vr(c+2,2)}, {vr(c+2,2)}, {vr(RTB+4*j+2,2)}
    v_pk_add_f32 {vr(MT+4*j,2)}, v[12:13], {vr(MT+4*j,2)} neg_lo:[0,1] neg_hi:[0,1]
    v_pk_add_f32 {vr(MT+4*j+2,2)}, v[14:15], {vr(MT+4*j+2,2)} neg_lo:[0,1] neg_hi:[0,1]
    v_pk_fma_f32 v[12:13], {vr(MT+4*j,2)}, {vr(c,2)}, v[12:13]
    v_pk_fma_f32 v[14:15], {vr(MT+4*j+2,2)}, {vr(c+2,2)}, v[14:15]
    v_cvt_pk_bf16_f32 v{o}, v12, v13
    v_cvt_pk_bf16_f32 v{o+1}, v14, v15""")
            if j & 1:
                a(f"""    s_nop 0
    v_permlane16_swap_b32 v{o-2}, v{o}
    v_permlane16_swap_b32 v{o-1}, v{o+1}
    buffer_store_dwordx4 {vr(o-2,4)}, v42, s[36:39], s34 offen {MF or opt.htf}
    s_add_u32 s34, s34, 0x100000""")
    def epi_reads(ns, KV, XR_, MT, RTB):
        r = []
        for j, n in enumerate(ns):
            r += [f"    ds_read_b64 {vr(KV+2*j,2)}, v32 offset:{512*(7-n)}", f"    ds_read_b64 {vr(XR_+2*j,2)}, v34 offset:{512*n}",
                  f"    ds_read_b128 {vr(MT+4*j,4)}, v33 offset:{1024*n}", f"    ds_read_b128 {vr(RTB+4*j,4)}, v33 offset:{8192 + 1024*n}"]
        return r
    def tables_ready(tag):
        a(f"""    s_branch {L}_last{tag}
{L}_again{tag}:
    s_sleep 1
    ds_read_b32 v35, v10 offset:20
    s_waitcnt lgkmcnt(0)
{L}_last{tag}:
    v_readfirstlane_b32 s76, v35
    s_cmp_eq_u32 s76, 4
    s_cbranch_scc0 {L}_again{tag}""")
    step = ["    v_add_u32 v8, 128, v8", "    v_add_u32 v9, 128, v9", "    s_add_u32 s35, s35, 1", "    s_cmp_eq_u32 s35, 4"]
    if not TWO:
        for l in reads(F0, 0): a(l)
        a(f"    s_mov_b32 s35, 0\n{L}_loop:\n    s_waitcnt lgkmcnt(0)")
        weave(mf(F0), reads(F1, 64) + ["    ds_read_b32 v35, v10 offset:20"] + step)
        a(f"    s_waitcnt lgkmcnt(0)\n    s_cbranch_scc1 {L}_fin")
        weave(mf(F1), reads(F0, 0))
        a(f"    s_branch {L}_loop\n{L}_fin:")
        tables_ready("a")
        weave(mf(F1), ["    s_nop 0"] * 2 + epi_reads(range(8), F0, 16, F0 + 16, 44))
        a("    s_nop 7")
        stamp(a, 6)
        epi(range(8), F0, 16, F0 + 16, 44, 224)
    else:
        for l in reads(F0, 0, 4): a(l)
        a(f"    s_mov_b32 s35, 0\n{L}_loop1:\n    s_waitcnt lgkmcnt(0)")
        weave(mf(F0, 0, 3), reads(F1, 64, 4) + step)
        a(f"    s_waitcnt lgkmcnt(0)\n    s_cbranch_scc1 {L}_fin1")
        weave(mf(F1, 0, 3), reads(F0, 0, 4))
        a(f"    s_branch {L}_loop1\n{L}_fin1:\n    v_subrev_u32 v8, 512, v8\n    v_subrev_u32 v9, 512, v9\n    s_mov_b32 s35, 0")
        weave(mf(F1, 0, 3), reads(F0, 0))
        a(f"{L}_loop2:\n    s_waitcnt lgkmcnt(0)")
        weave(mf(F0, 4, 7), reads(F1, 64) + ["    ds_read_b32 v35, v10 offset:20", step[0] + "\n" + step[1], step[2] + "\n" + step[3]])
        a(f"    s_waitcnt lgkmcnt(0)\n    s_cbranch_scc1 {L}_fin2")
        weave(mf(F1, 4, 7), reads(F0, 0))
        a(f"""    s_cmp_eq_u32 s35, {opt.midit}
    s_cbranch_scc1 {L}_mid
    s_cmp_eq_u32 s35, {opt.midit + 1}
    s_cbranch_scc0 {L}_loop2
    s_waitcnt vmcnt(0) lgkmcnt(0)""")
        hf_count("c1", 52, HF_OFF)
        a(f"    s_branch {L}_loop2\n{L}_mid:")
        tables_ready("m")
        stamp(a, 10)
        a("    s_waitcnt lgkmcnt(0)")
        for l in epi_reads(range(4), 24, 16, 44, 60): a(l)
        epi(range(4), 24, 16, 44, 60, 240)
        a(f"    s_branch {L}_loop2\n{L}_fin2:")
        if opt.midit == 3:
            pass
        weave(mf(F1, 4, 7), epi_reads(range(4, 8), 24, 16, 44, 60))
        a("    s_nop 7")
        stamp(a, 6)
        epi(range(4, 8), 24, 16, 44, 60, 240)
    stamp(a, 7)
    a(f"    s_branch {L}_done")
    FD = 16; TO = 52; XT_ = 80; XR = 96; XF = 112; PKX = 144
    a(f"""{L}_help:
    v_lshlrev_b32 v6, 4, v2          ; lane*16
    s_lshl_b32 s27, s25, 6
    s_lshl_b32 s28, s24, 3
    s_add_u32 s27, s27, s28
    s_lshl_b32 s28, s34, 1
    s_add_u32 s27, s27, s28
    s_lshl_b32 s28, s27, 11""")
    srd(a, 16, 42, MB4); srd(a, 36, 58, 64 << 20)
    if opt.codepf0:
        a(f"""    s_cmp_lg_u32 s25, {opt.codepf0}
    s_cbranch_scc1 {L}_nc0
    s_getpc_b64 s[66:67]
{L}_pc0:
    s_sub_u32 s66, s66, {L}_pc0 - {name}
    s_subb_u32 s67, s67, 0
    v_and_b32 v13, 255, v0
    v_lshlrev_b32 v13, 7, v13
    v_min_u32 v13, TEXT_END - {name} - 4, v13
    global_load_dword v199, v13, s[66:67]
{L}_nc0:""")
    def statrows():
        for i in range(4): a(f"    buffer_load_dwordx4 {vr(XR+4*i,4)}, v6, s[16:19], s28 offen offset:{1024*i}")
    if not opt.slate: statrows()
    a("    s_waitcnt lgkmcnt(0)")
    srd(a, 12, 10, MB4)
    a(f"""    v_add_u32 v5, s26, v5            ; x tile
    s_mov_b32 s45, 0x10000
    s_mov_b32 s46, 0x18000
    s_lshl_b32 s26, s63, 12
    s_load_dwordx2 s[10:11], s[0:1], {ARG['w1']}
    s_lshl_b32 s49, s34, 12
    s_add_u32 s49, s49, {XS}
    s_mov_b32 s70, 0x05040100
    s_mov_b32 s71, 0x07060302
    s_mov_b32 s51, 0x3a800000
    s_mov_b32 s50, 0x3727c5ac
    s_lshl_b32 s27, s27, 2
    s_add_u32 s72, s27, {ST1_OFF:#x}
    s_add_u32 s73, s72, 8192
    v_add_u32 v7, s64, v6
    v_mov_b32 v60, 0
    v_mov_b32 v61, 0
    v_mov_b32 v62, 0
    v_mov_b32 v63, 0
    v_mul_u32_u24 v39, {2*IS}, v3
    v_lshl_add_u32 v39, v4, 3, v39
    s_lshl_b32 s27, s34, 6
    s_add_u32 s27, s27, {STG}
    v_add_u32 v39, s27, v39""")
    a("    s_waitcnt lgkmcnt(0)\n    s_barrier")
    stamp(a, 0)
    if opt.tlb3:
        sh = opt.tlb3
        a(f"""    s_load_dwordx2 s[74:75], s[0:1], {ARG['w2']}
    s_load_dwordx2 s[76:77], s[0:1], {ARG['out']}
    s_lshl_b32 s78, s25, 2
    s_add_u32 s78, s78, s34
    s_lshl_b32 s78, s78, {sh}
    s_waitcnt lgkmcnt(0)""")
        for r, n in (("s[10:11]", 1024 * 7168), ("s[74:75]", 3584 * 2048), ("s[76:77]", MB4), ("s[58:59]", 0x2900000)):
            for j in range((n + (128 << sh) - 1) // (128 << sh)):
                a(f"    s_add_u32 s30, s78, {j * (128 << sh):#x}\n    s_min_u32 s30, s30, {n - 4:#x}\n    s_load_dword s79, {r}, s30")
    if opt.tlb2:
        G = opt.tlb2
        a(f"""    s_cmp_lg_u32 s25, 1
    s_cbranch_scc1 {L}_notlb
    s_load_dwordx2 s[74:75], s[0:1], {ARG['w2']}
    s_load_dwordx2 s[76:77], s[0:1], {ARG['out']}
    s_waitcnt lgkmcnt(0)""")
        regs = [("s[10:11]", 1024 * 7168), ("s[74:75]", 3584 * 2048), ("s[76:77]", MB4), ("s[58:59]", 0x2900000)]
        lst = [(r, o) for r, n in regs for o in range(0, n, G)]
        for w in range(4):
            a(f"    s_cmp_lg_u32 s34, {w}\n    s_cbranch_scc1 {L}_tl{w}")
            for j, (r, o) in enumerate(lst[w::4]):
                a(f"    s_mov_b32 s78, {o:#x}\n    s_load_dword s79, {r}, s78")
                if j % 14 == 13: a("    s_waitcnt lgkmcnt(0)")
            a(f"{L}_tl{w}:")
        a(f"{L}_notlb:")
    S = [180, 181]; T = [182, 183]; M = [184, 186]; PS = [188, 190]
    a(f"""    v_mov_b32 v10, {WRD}
    v_mov_b32 v11, 1""")
    if opt.slate:
        a(f"    s_waitcnt vmcnt({opt.slate - 1})")
        statrows()
    a(f"""    s_waitcnt vmcnt(4)
    s_mov_b64 exec, 1
    ds_add_u32 v10, v11 offset:32
    s_mov_b64 exec, -1""")
    a(f"    s_waitcnt vmcnt({opt.early2 - 1})\n    s_add_u32 m0, s64, 32\n    s_nop 0")
    for i in range(4): a(f"    buffer_load_dwordx4 v6, s[12:15], s26 offen offset:{1024*i} {opt.ntf2} lds")
    def xtile():
        a(f"    s_mul_i32 s35, s34, {IS}")
        for j in range(4): a(f"    s_add_u32 m0, s35, {STG + 4*j*IS}\n    s_nop 0\n    buffer_load_dwordx4 v5, s[16:19], {so[j]} offen lds")
    if opt.xearly: xtile()
    a(f"    s_waitcnt vmcnt({8 if opt.xearly else 4})")
    stamp(a, 1)
    if opt.dot2:
        S = [180, 181, 182, 183]; T = [184, 185, 186, 187]; M = [188, 189]
        a("    s_mov_b32 s74, 0x3f803f80")
        for i in range(8):
            for rho in range(2):
                x = XR + 8 * rho + i
                a(f"    v_dot2_f32_bf16 v{S[rho]}, v{x}, s74, {'0' if i == 0 else 'v%d' % S[rho]}")
                a(f"    v_dot2_f32_bf16 v{S[2+rho]}, v{x}, v{x}, {'0' if i == 0 else 'v%d' % S[2+rho]}")
        a("    s_nop 1")
        wave_sum(a, S, T)
        for rho in range(2): a(f"    v_mul_f32 v{M[rho]}, s51, v{S[rho]}")
        for rho in range(2): a(f"    v_fma_f32 v{S[rho]}, -v{M[rho]}, v{S[rho]}, v{S[2+rho]}")
        for rho in range(2): a(f"    v_max_f32 v{S[rho]}, 0, v{S[rho]}")
    else:
        for rho in range(2):
            for i in range(8): unpack(a, XF + 16 * rho + 2 * i, XR + 8 * rho + i)
        src = lambda rho, i: XF + 16 * rho + 2 * i
        for rho in range(2): a(f"    v_pk_add_f32 {vr(PS[rho],2)}, {vr(src(rho,0),2)}, {vr(src(rho,1),2)}")
        for i in range(2, 8):
            for rho in range(2): a(f"    v_pk_add_f32 {vr(PS[rho],2)}, {vr(PS[rho],2)}, {vr(src(rho,i),2)}")
        for rho in range(2): a(f"    v_add_f32 v{S[rho]}, v{PS[rho]}, v{PS[rho]+1}")
        wave_sum(a, S, T)
        for rho in range(2): a(f"    v_mul_f32 v{M[rho]}, s51, v{S[rho]}")
        for i in range(8):
            for rho in range(2):
                a(f"    v_pk_add_f32 {vr(src(rho,i),2)}, {vr(src(rho,i),2)}, {vr(M[rho],2)} op_sel_hi:[1,0] neg_lo:[0,1] neg_hi:[0,1]")
        for rho in range(2): a(f"    v_pk_mul_f32 {vr(PS[rho],2)}, {vr(src(rho,0),2)}, {vr(src(rho,0),2)}")
        for i in range(1, 8):
            for rho in range(2): a(f"    v_pk_fma_f32 {vr(PS[rho],2)}, {vr(src(rho,i),2)}, {vr(src(rho,i),2)}, {vr(PS[rho],2)}")
        for rho in range(2): a(f"    v_add_f32 v{S[rho]}, v{PS[rho]}, v{PS[rho]+1}")
        wave_sum(a, S, T)
    for rho in range(2):
        a(f"    v_mov_b32 v{192+rho}, v{M[rho]}"); rnd(a, 192 + rho)
        a(f"    v_mul_f32 v{194+rho}, s51, v{S[rho]}"); rnd(a, 194 + rho); a(f"    v_add_f32 v{194+rho}, s50, v{194+rho}"); rnd(a, 194 + rho)
    a("    v_sqrt_f32 v194, v194\n    v_sqrt_f32 v195, v195\n    s_nop 0")
    for rho in range(2): rnd(a, 194 + rho)
    a(f"""    v_rcp_f32 v194, v194
    v_rcp_f32 v195, v195
    v_mov_b32 v12, 0
    s_mov_b64 exec, 1
    buffer_store_dwordx2 v[192:193], v12, s[36:39], s72 offen sc1
    buffer_store_dwordx2 v[194:195], v12, s[36:39], s73 offen sc1
    s_mov_b64 exec, -1""")
    if not opt.xearly: xtile()
    stamp(a, 2)
    def copies(first):
        a(f"    s_waitcnt vmcnt({first})")
        for i in range(4):
            a(f"    ds_read_b128 {vr(FD+8*i,4)}, v7 offset:{32 + 1024*i}\n    ds_read_b64 {vr(FD+8*i+4,2)}, v7 offset:{48 + 1024*i}")
        for i in range(4):
            D = FD + 8 * i; t = 64 + 12 * (i & 1) + 132
            a(f"    s_waitcnt lgkmcnt({6 - 2*i})" if i == 0 else f"    s_waitcnt lgkmcnt({min(15, 6 - 2*i + 3*i + (8 if i else 0))})")
            for k in range(4): a(f"    v_alignbit_b32 v{t+k}, v{D+k+1}, v{D+k}, 16")
            a(f"    ds_write_b128 v7, {vr(t,4)} offset:{CS + 32 + 1024*i}")
            for k in range(4): a(f"    v_mov_b32 v{t+4+k}, v{D+k+1}")
            a(f"    ds_write_b128 v7, {vr(t+4,4)} offset:{2*CS + 32 + 1024*i}")
            for k in range(4): a(f"    v_alignbit_b32 v{t+8+k}, v{D+k+2}, v{D+k+1}, 16")
            a(f"    ds_write_b128 v7, {vr(t+8,4)} offset:{3*CS + 32 + 1024*i}")
            if i == 0:
                a(f"""    v_mov_b32 v68, 0
    v_mov_b32 v69, 0
    v_mov_b32 v70, 0
    v_lshlrev_b32 v71, 16, v{D}
    v_mov_b32 v72, 0
    v_mov_b32 v73, 0
    v_mov_b32 v74, 0
    v_mov_b32 v75, v{D}
    v_mov_b32 v76, 0
    v_mov_b32 v77, 0
    v_mov_b32 v78, v71
    v_mov_b32 v79, v{t}
    s_mov_b64 exec, 1
    ds_write_b128 v7, v[60:63]
    ds_write_b128 v7, v[60:63] offset:16
    ds_write_b128 v7, v[60:63] offset:{CS}
    ds_write_b128 v7, v[68:71] offset:{CS+16}
    ds_write_b128 v7, v[60:63] offset:{2*CS}
    ds_write_b128 v7, v[72:75] offset:{2*CS+16}
    ds_write_b128 v7, v[60:63] offset:{3*CS}
    ds_write_b128 v7, v[76:79] offset:{3*CS+16}
    s_mov_b64 exec, -1""")
        a("""    s_waitcnt lgkmcnt(0)
    s_mov_b64 exec, 1
    ds_add_u32 v10, v11 offset:8
    s_mov_b64 exec, -1""")
    a(f"    v_mov_b32 v10, {WRD}\n    v_mov_b32 v11, 1")
    if not opt.xfirst:
        copies(6)
    a(f"    s_waitcnt vmcnt({0 if opt.xearly else 4})")
    count_in(36, "s")
    a(f"    s_cbranch_scc0 {L}_nsf")
    spin(44, 1, "c")
    a(f"""    s_lshl_b32 s27, s62, 5
    s_add_u32 s27, s27, {SF_OFF:#x}
    s_mov_b64 exec, 1
    buffer_store_dword v11, v12, s[36:39], s27 offen sc1
    s_mov_b64 exec, -1
    s_waitcnt vmcnt(1)
    s_branch {L}_nsg
{L}_nsf:
    s_waitcnt vmcnt(0)
{L}_nsg:
    s_mov_b64 exec, 1
    ds_add_u32 v10, v11 offset:40
    s_mov_b64 exec, -1""")
    stamp(a, 7)
    spin(40, 4, "t", 12)
    for j in range(8): a(f"    ds_read_b64 {vr(XT_+2*j,2)}, v39 offset:{(j >> 2)*IS + (j & 3)*256}")
    tail_addr(False, XT_OFF, "s49")
    a("    s_waitcnt lgkmcnt(0)")
    for c in range(4):
        for d in range(4):
            a(f"    v_perm_b32 v{PKX+4*c+d}, v{XT_ + 2*(2*d+1) + (c>>1)}, v{XT_ + 2*(2*d) + (c>>1)}, s{70 + (c&1)}")
        out_store(PKX + 4 * c, 'sc1')
    if opt.xfirst: copies(4)
    stamp(a, 9)
    a("    s_waitcnt vmcnt(0)")
    stamp(a, 10)
    count_in(12, "x")
    a(f"    s_cbranch_scc0 {L}_w2")
    signal_poll(XF_OFF, "x", poll=False)
    if opt.stamps: a("    s_memtime s[74:75]\n    s_waitcnt lgkmcnt(0)\n    s_sub_u32 s74, s74, s80\n    v_mov_b32 v20, s74\n    ds_write_b32 v10, v20 offset:60")
    a(f"""    ds_write_b32 v10, v11 offset:16
    s_mov_b32 m0, s49
    s_add_u32 s26, s26, {XT_OFF:#x}""")
    for i in range(4): a(f"    buffer_load_dwordx4 v6, s[36:39], s26 offen offset:{1024*i} {opt.ldf} lds")
    a(f"""    v_lshlrev_b32 v14, 12, v3
    s_mov_b32 s28, {GF_OFF:#x}
{L}_p3:
    buffer_load_dword v15, v14, s[36:39], s28 offen sc1
    s_waitcnt vmcnt(0)
    v_cmp_eq_u32 vcc, 1, v15
    s_cmp_eq_u64 vcc, -1
    s_cbranch_scc1 {L}_p3e
    s_sleep {opt.xsleep}
    s_branch {L}_p3
{L}_p3e:
    ds_write_b32 v10, v11 offset:24
    s_branch {L}_g2
{L}_w2:""")
    spin(16, 1, "x")
    a(f"    s_mov_b32 m0, s49\n    s_add_u32 s26, s26, {XT_OFF:#x}")
    for i in range(4): a(f"    buffer_load_dwordx4 v6, s[36:39], s26 offen offset:{1024*i} {opt.ldf} lds")
    spin(24, 1, "y")
    a(f"{L}_g2:")
    stamp(a, 4)
    if opt.stamps: a("    ds_read_b32 v20, v10 offset:60\n    s_waitcnt lgkmcnt(0)\n    v_readfirstlane_b32 s74, v20\n    s_nop 1\n    v_writelane_b32 v250, s74, 11")
    a(f"""    s_lshl_b32 s30, s34, 12
    s_add_u32 m0, s30, {STG}
    s_add_u32 s30, s30, {ST1_OFF:#x}""")
    for i in range(4): a(f"    buffer_load_dwordx4 v6, s[36:39], s30 offen offset:{1024*i} sc1 lds")
    a(f"""    s_lshl_b32 s47, s2, 10
    s_lshl_b32 s48, s34, 8
    s_add_u32 s47, s47, s48
    s_add_u32 s47, s47, {PST_OFF:#x}
    v_lshlrev_b32 v14, 2, v2
    v_mov_b32 v15, -1
    buffer_store_dword v15, v14, s[36:39], s47 offen {MF}
    s_mul_i32 s47, s2, 560
    s_mul_i32 s48, s34, 140
    s_add_u32 s47, s47, s48
    s_add_u32 s47, s47, {FLG_OFF:#x}
    v_min_u32 v14, 34, v2
    v_lshlrev_b32 v14, 2, v14
    buffer_store_dword v12, v14, s[36:39], s47 offen {MF}
    s_and_b32 s25, s2, 15            ; k slice
    s_lshr_b32 s26, s2, 4
    s_mul_i32 s27, s25, {64*7168}
    s_lshl_b32 s28, s26, 9
    s_lshl_b32 s29, s34, 7
    s_add_u32 s28, s28, s29
    s_add_u32 s27, s27, s28
    v_mul_u32_u24 v5, 7168, v4
    v_lshl_add_u32 v5, v3, 4, v5
    s_mul_i32 s30, s25, {3584*4}
    s_lshl_b32 s28, s28, 1
    s_add_u32 s30, s30, s28
    s_add_u32 s30, s30, {CS_OFF:#x}
    s_cmp_ge_u32 s2, 224
    s_cselect_b32 s27, 0x80000000, s27
    s_cselect_b32 s30, 0x80000000, s30
    s_waitcnt lgkmcnt(0)""")
    DEC = mega and opt.csdec
    if DEC: a("    v_lshlrev_b32 v14, 2, v2\n    buffer_store_dword v15, v14, s[36:39], s30 offen sc1")
    srd(a, 12, 10, 1024 * 7168)
    W = 16; WF = 48
    ld = lambda i: a(f"    buffer_load_dwordx4 {vr(W+4*i,4)}, v5, s[12:15], s27 offen\n    s_add_u32 s27, s27, {8*7168}")
    TH = opt.w1th
    for i in range(TH): ld(i)
    a(f"""    s_waitcnt vmcnt({(3 if DEC else 2) + TH})
    s_mov_b64 exec, 1
    ds_add_u32 v10, v11 offset:20
    s_mov_b64 exec, -1""")
    stamp(a, 5)
    if DEC:
        assert TH == 8
        a("    s_waitcnt vmcnt(8)")
        hf_count("h", 48, HF_OFF + (0x8000 if TWO else 0))
        if TWO: hf_count("h1", 52, HF_OFF)
    a(f"    s_cmp_ge_u32 s2, 224\n    s_cbranch_scc1 {L}_code")
    for i in range(8):
        a(f"    s_waitcnt vmcnt({min(TH, 8 - i) - 1})")
        if i + TH < 8: ld(i + TH)
        if i == 0:
            for d in range(4): unpack(a, WF + 2 * d, W + d)
        else:
            for d in range(4):
                unpack(a, WF + 8 + 2 * (d & 1), W + 4 * i + d)
                a(f"    v_pk_add_f32 {vr(WF+2*d,2)}, {vr(WF+2*d,2)}, {vr(WF + 8 + 2*(d&1),2)}")
    if opt.c_pf2:
        a(f"    s_load_dwordx2 s[42:43], s[0:1], {ARG['w2']}\n    s_mul_i32 s29, s2, 32768\n    s_lshl_b32 s31, s34, 13\n    s_add_u32 s29, s29, s31\n    v_lshlrev_b32 v7, {8 if opt.c_pf2 == 2 else 7}, v2\n    s_waitcnt lgkmcnt(0)")
        srd(a, 20, 42, 3584 * 2048)
        if opt.c_pf2 == 2: a("    s_mov_b32 exec_hi, 0")
        a("    buffer_load_dword v8, v7, s[20:23], s29 offen\n    s_mov_b64 exec, -1")
    for d in range(8): a(f"    v_add_f32_dpp v{WF+d}, v{WF+d}, v{WF+d} row_ror:8 row_mask:0xf bank_mask:0xf")
    for sw in ("v_permlane16_swap_b32", "v_permlane32_swap_b32"):
        for d in range(8): a(f"    v_mov_b32 v{WF+8+d}, v{WF+d}")
        for d in range(8): a(f"    {sw} v{WF+8+d}, v{WF+d}")
        for d in range(8): a(f"    v_add_f32 v{WF+d}, v{WF+d}, v{WF+8+d}")
    if DEC:
        for d in range(8): a(f"    v_min_u32 v{WF+d}, -2, v{WF+d}")
    HD = f"{L}_done2" if DEC else f"{L}_done"
    a(f"""    s_mov_b32 s27, s30
    v_lshlrev_b32 v4, 5, v3
    s_mov_b64 exec, 0xff
    buffer_store_dwordx4 {vr(WF,4)}, v4, s[36:39], s27 offen {MF}
    buffer_store_dwordx4 {vr(WF+4,4)}, v4, s[36:39], s27 offen offset:16 {MF}
    s_mov_b64 exec, -1
    s_branch {HD}
{L}_code:""")
    if opt.biaspf:
        a(f"""    s_load_dwordx2 s[66:67], s[0:1], {ARG['b1']}
    s_load_dwordx2 s[68:69], s[0:1], {ARG['b2']}
    v_lshlrev_b32 v13, 7, v2
    v_min_u32 v14, 2044, v13
    v_min_u32 v13, 7164, v13
    s_waitcnt lgkmcnt(0)
    global_load_dword v63, v13, s[66:67]
    global_load_dword v61, v14, s[68:69]""")
    if opt.codepf:
        a(f"""    s_cmp_ge_u32 s2, 232
    s_cbranch_scc1 {HD}
    s_getpc_b64 s[66:67]
{L}_pc:
    v_and_b32 v13, 255, v0
    v_lshlrev_b32 v13, 7, v13
    v_min_u32 v13, TEXT_END - {L}_pc - 4, v13
    global_load_dword v62, v13, s[66:67]""")
    if DEC: a(f"    s_branch {HD}")
    a(f"{L}_done:")
    if mega:
        a("    s_waitcnt vmcnt(0)")
        hf_count("c", 48, HF_OFF + (0x8000 if TWO else 0))
        if DEC: a(f"{HD}:")
        stamp(a, 8)
        stamp_end(a, kidx, 58, 33)
        gen3.gen_ga(a, kidx + 1, mega=dict(WRD=WRD, HF=HF_OFF, two=TWO, end=f"{L}_end"))
        return (name, 256, 512, 163840), (name, 256, 96)
    if opt.stamps: a("    s_waitcnt vmcnt(0)")
    stamp(a, 8)
    stamp_end(a, kidx, 58, 33)
    a(f"{L}_end:\n    s_endpgm")
    return (name, 256, 512, WRD + 64), (name, 256, 96)

opt.htf = ""
gen.KGEN["pc"] = gen_pc
gen.KGEN["mega"] = lambda a, k: gen_pc(a, k, mega=True)
```

```python
import sys
from asmlib import *
import gen, gen2
from gen import stamp_loop, opt, stamp, stamp_begin, stamp_end, vr, gemm_consumer_loop, wave_sum, MB4, KVR_OFF, H1_OFF, H1_SZ, XCH_OFF, FLG_OFF
from gen2 import GRP_RDY, FLG_SZ

opt.pfk = {12: (0, 56)}
opt.b2tail = False
opt.tail2 = True
opt.pp = 0
opt.pgap = 4
opt.mq = False
opt.dly = None
opt.kp = 6
opt.outf = ''
opt.mpf = False
opt.mb2 = True
opt.msleep = 2
opt.cprio = 0
opt.lprio = 0
opt.xy = False
opt.map84 = True
opt.tagx = False
opt.g2sync = True
opt.a2f = 'sc1'
opt.tlbpf = False
opt.lagthr = 7
opt.norot = False
opt.ga_bar = 27
XT_OFF = 0x1000000 if gen.OVL else 0x0400000
HT_OFF = 0x0800000
ST1_OFF = 0x0C00000
CS_OFF = 0x0C10000
PST_OFF = 0x0C80000

def unpack(a, dst, src): a(f"    v_lshlrev_b32 v{dst}, 16, v{src}\n    v_and_b32 v{dst+1}, 0xffff0000, v{src}")
def rnd(a, r): a(f"    v_cvt_pk_bf16_f32 v{r}, v{r}, v{r}\n    v_and_b32 v{r}, 0xffff0000, v{r}")

def gen_p2(a, kidx):
    name = "p_kernel"; L = "P"
    IS = 1056; VT = 17 * IS; XTL = 33 * IS; OST = 51840
    kernel_head(a, name)
    a(f"""    s_cmp_ge_u32 s2, 256
    s_cbranch_scc1 {L}_end
    s_load_dwordx4 s[4:7], s[0:1], {ARG['k']}      ; k, v
    s_load_dwordx4 s[8:11], s[0:1], {ARG['shift']}
    s_load_dwordx2 s[40:41], s[0:1], {ARG['ws']}
    s_load_dwordx2 s[42:43], s[0:1], {ARG['q']}""")
    stamp_begin(a)
    a(f"""    v_lshrrev_b32 v1, 6, v0
    v_and_b32 v2, 63, v0
    s_and_b32 s24, s2, 7             ; cb
    v_readfirstlane_b32 s33, v1
    s_lshr_b32 s25, s2, 3            ; rb
    v_and_b32 v3, 7, v2              ; cg
    v_lshrrev_b32 v4, 3, v2          ; rg
    s_and_b32 s34, s33, 3            ; w
    s_lshl_b32 s26, s25, 17
    s_lshl_b32 s27, s24, 8
    s_add_u32 s26, s26, s27
    v_lshrrev_b32 v5, 4, v2
    v_lshlrev_b32 v5, 11, v5
    v_and_b32 v6, 15, v2
    v_lshl_add_u32 v5, v6, 4, v5
    v_add_u32 v5, s26, v5
    v_subrev_u32 v6, 8192, v5
    s_lshl_b32 s27, s34, 15
    v_add_u32 v5, s27, v5
    s_movk_i32 s44, 8192
    s_movk_i32 s45, 16384
    s_movk_i32 s46, 24576
    s_mul_i32 s35, s34, {4*IS}
    v_mul_u32_u24 v7, {2*IS}, v4
    v_lshl_add_u32 v7, v3, 3, v7
    s_lshl_b32 s27, s34, 6
    v_add_u32 v7, s27, v7
    s_cmp_ge_u32 s33, 4
    s_cbranch_scc1 {L}_x""")
    so = ["0", "s44", "s45", "s46"]
    def tail_addr(rev, ldsbase, off):
        a(f"""    {"v_xor_b32 v13, 7, v4" if rev else "v_mov_b32 v13, v4"}
    v_xor_b32 v13, v13, v3
    v_lshlrev_b32 v13, 4, v13
    v_lshl_add_u32 v13, v3, 9, v13
    s_lshl_b32 s47, s33, 12
    s_add_u32 s47, s47, {OST}
    v_add_u32 v13, s47, v13
    v_lshl_add_u32 v14, v2, 4, s47
    v_lshrrev_b32 v15, 5, v2
    v_xor_b32 v15, v15, v3               ; x0 = (l&7)^(l>>5)
    v_lshlrev_b32 v9, 12, v4             ; (l>>3)*4096
    s_lshl_b32 s47, s24, 19
    s_lshl_b32 s48, s34, 17
    s_add_u32 s47, s47, s48              ; (cb*128+w*32)*4096
    s_lshl_b32 s48, s25, 7""")
        if rev: a(f"    s_sub_u32 s48, {3968 + off}, s48")
        else: a(f"    s_add_u32 s48, s48, {off:#x}")
        a("    s_add_u32 s47, s47, s48")
    def tail_out():
        a("    s_waitcnt lgkmcnt(0)")
        for i in range(4): a(f"    ds_read_b128 {vr(16+4*i,4)}, v14 offset:{1024*i}")
        for i in range(4): a(f"    v_xor_b32 v8, {2*i}, v15\n    v_lshl_add_u32 v{32+i}, v8, 4, v9")
        for i in range(4):
            a(f"    s_waitcnt lgkmcnt({3-i})\n    buffer_store_dwordx4 {vr(16+4*i,4)}, v{32+i}, s[36:39], s47 offen\n    s_add_u32 s47, s47, 32768")
    a(f"""    s_lshl_b32 s27, s24, 10
    s_lshl_b32 s28, s34, 8
    s_add_u32 s27, s27, s28
    v_lshlrev_b32 v8, 5, v3
    s_add_u32 m0, s35, {IS}
    s_waitcnt lgkmcnt(0)""")
    srd(a, 12, 4, MB4); srd(a, 16, 6, MB4); srd(a, 20, 8, 8192)
    KR = 16; VR = 38; WR = 54
    for j in range(4):
        a(f"    buffer_load_dwordx4 v5, s[12:15], {so[j]} offen nt lds\n    s_add_u32 m0, s35, {VT + j*IS}")
        a(f"    s_nop 0\n    buffer_load_dwordx4 v5, s[16:19], {so[j]} offen nt lds\n    s_add_u32 m0, s35, {(j+2)*IS}\n    s_nop 0" if j < 3 else f"    s_nop 0\n    buffer_load_dwordx4 v5, s[16:19], {so[j]} offen nt lds\n    s_mov_b32 m0, 0\n    s_nop 0")
    a("    buffer_load_dwordx4 v6, s[12:15], 0 offen nt lds")
    a(f"    buffer_load_dwordx4 {vr(WR,4)}, v8, s[20:23], s27 offen\n    buffer_load_dwordx4 {vr(WR+4,4)}, v8, s[20:23], s27 offen offset:16")
    srd(a, 28, 10, MB4); srd(a, 36, 40, 64 << 20)
    a(f"""    s_lshl_b32 s47, s2, 14
    v_lshlrev_b32 v9, 6, v0
    buffer_load_dword v10, v9, s[28:31], s47 offen
    s_mul_i32 s47, s2, 560
    s_add_u32 s47, s47, {FLG_OFF:#x}
    v_min_u32 v11, 139, v0
    v_lshlrev_b32 v11, 2, v11
    v_mov_b32 v12, 0
    buffer_store_dword v12, v11, s[36:39], s47 offen""")
    if opt.codepf:
        a(f"""    s_cmp_ge_u32 s2, 8
    s_cbranch_scc1 {L}_nocode
    s_getpc_b64 s[50:51]
{L}_pc:
    v_lshlrev_b32 v13, 7, v0
    v_min_u32 v13, TEXT_END - {L}_pc - 4, v13
    global_load_dword v62, v13, s[50:51]
{L}_nocode:""")
    tail_addr(True, 0, KVR_OFF)
    WF = 64; KF = 80; VF = 124; OF = 156; PK = 190
    stamp(a, 0)
    a("    s_waitcnt vmcnt(2)\n    s_barrier")
    stamp(a, 4)
    kro = lambda jj: ((1 + jj) >> 2) * IS + ((1 + jj) & 3) * 256
    order = [("k", 0), ("k", 1), ("k", 2)] + [x for j in range(8) for x in (("k", 3 + j), ("v", j))]
    def rd(x):
        if x[0] == "k": a(f"    ds_read_b64 {vr(KR + 2*x[1], 2)}, v7 offset:{kro(x[1])}")
        else: a(f"    ds_read_b64 {vr(VR + 2*x[1], 2)}, v7 offset:{VT + (x[1] >> 2)*IS + (x[1] & 3)*256}")
    for x in order[:13]: rd(x)
    for c in range(4):
        for j in range(4):
            src = WR + 2 * c + (j >> 1); d = WF + (c >> 1) * 8 + j * 2 + (c & 1)
            a(f"    v_lshlrev_b32 v{d}, 16, v{src}" if j % 2 == 0 else f"    v_and_b32 v{d}, 0xffff0000, v{src}")
    def unp2(dst, src):
        for p in range(2): unpack(a, dst + 2 * p, src + p)
    a("    s_waitcnt lgkmcnt(8)")
    for x in order[13:]: rd(x)
    for r in range(3): unp2(KF + 4 * r, KR + 2 * r)
    for j in range(8):
        if j: a(f"    s_waitcnt lgkmcnt({14 - 2*j})")
        unp2(KF + 4 * (3 + j), KR + 6 + 2 * j); unp2(VF + 4 * j, VR + 2 * j)
        for p in range(2):
            o = OF + 4 * j + 2 * p
            k = lambda r: vr(KF + 4 * r + 2 * p, 2)
            w = lambda t: vr(WF + p * 8 + 2 * t, 2)
            a(f"    v_pk_mul_f32 {vr(o,2)}, {k(j)}, {w(3)}")
            a(f"    v_pk_fma_f32 {vr(o,2)}, {k(j+1)}, {w(2)}, {vr(o,2)}")
            a(f"    v_pk_fma_f32 {vr(o,2)}, {k(j+2)}, {w(1)}, {vr(o,2)}")
            a(f"    v_pk_fma_f32 {vr(o,2)}, {k(j+3)}, {w(0)}, {vr(o,2)}")
            a(f"    v_pk_mul_f32 {vr(o,2)}, {vr(o,2)}, {vr(VF + 4*j + 2*p, 2)}")
    stamp(a, 1)
    for c in range(4):
        for d in range(4):
            a(f"    v_cvt_pk_bf16_f32 v{PK+4*c+d}, v{OF + 4*(7-2*d) + c}, v{OF + 4*(6-2*d) + c}")
        a(f"    ds_write_b128 v13, {vr(PK+4*c,4)} offset:{128*c}")
    a(f"    s_branch {L}_out")
    XT_ = 40; XR = 56; XF = 80; XC = 112; PKX = 144
    a(f"""{L}_x:
    s_lshl_b32 s27, s25, 6
    s_lshl_b32 s28, s24, 3
    s_add_u32 s27, s27, s28
    s_lshl_b32 s28, s34, 1
    s_add_u32 s27, s27, s28
    s_lshl_b32 s28, s27, 11
    v_lshlrev_b32 v6, 4, v2
    s_waitcnt lgkmcnt(0)""")
    srd(a, 12, 42, MB4)
    for j in range(4): a(f"    s_add_u32 m0, s35, {XTL + j*IS}\n    s_nop 0\n    buffer_load_dwordx4 v5, s[12:15], {so[j]} offen lds")
    for i in range(4): a(f"    buffer_load_dwordx4 {vr(XR+4*i,4)}, v6, s[12:15], s28 offen offset:{1024*i}")
    srd(a, 36, 40, 64 << 20)
    a(f"""    s_lshl_b32 s47, s2, 10
    s_lshl_b32 s48, s34, 8
    s_add_u32 s47, s47, s48
    s_add_u32 s47, s47, {PST_OFF:#x}
    v_lshlrev_b32 v11, 2, v2
    v_mov_b32 v12, -1
    buffer_store_dword v12, v11, s[36:39], s47 offen
    s_mov_b32 s49, 0x05040100
    s_mov_b32 s50, 0x07060302
    s_mov_b32 s51, 0x3a800000
    s_mov_b32 s52, 0x3727c5ac
    s_lshl_b32 s27, s27, 2
    s_add_u32 s27, s27, {ST1_OFF:#x}
    s_add_u32 s28, s27, 8192""")
    tail_addr(False, 0, XT_OFF)
    stamp(a, 0)
    a("    s_waitcnt vmcnt(5)\n    s_barrier")
    stamp(a, 4)
    for j in range(8): a(f"    ds_read_b64 {vr(XT_+2*j,2)}, v7 offset:{XTL + (j >> 2)*IS + (j & 3)*256}")
    a("    s_waitcnt lgkmcnt(0)")
    for c in range(4):
        for d in range(4):
            a(f"    v_perm_b32 v{PKX+4*c+d}, v{XT_ + 2*(2*d+1) + (c>>1)}, v{XT_ + 2*(2*d) + (c>>1)}, s{49 + (c&1)}")
        a(f"    ds_write_b128 v13, {vr(PKX+4*c,4)} offset:{128*c}")
    tail_out()
    S = [8, 9]; T = [10, 11]; M = [12, 14]; PS = [72, 74]
    a("    s_waitcnt vmcnt(5)")
    for rho in range(2):
        for i in range(8): unpack(a, XF + 16 * rho + 2 * i, XR + 8 * rho + i)
    src = lambda rho, i: XF + 16 * rho + 2 * i
    for rho in range(2): a(f"    v_pk_add_f32 {vr(PS[rho],2)}, {vr(src(rho,0),2)}, {vr(src(rho,1),2)}")
    for i in range(2, 8):
        for rho in range(2): a(f"    v_pk_add_f32 {vr(PS[rho],2)}, {vr(PS[rho],2)}, {vr(src(rho,i),2)}")
    for rho in range(2): a(f"    v_add_f32 v{S[rho]}, v{PS[rho]}, v{PS[rho]+1}")
    wave_sum(a, S, T)
    for rho in range(2): a(f"    v_mul_f32 v{M[rho]}, s51, v{S[rho]}")
    for i in range(8):
        for rho in range(2):
            a(f"    v_pk_add_f32 {vr(src(rho,i),2)}, {vr(src(rho,i),2)}, {vr(M[rho],2)} op_sel_hi:[1,0] neg_lo:[0,1] neg_hi:[0,1]")
    for rho in range(2): a(f"    v_pk_mul_f32 {vr(PS[rho],2)}, {vr(src(rho,0),2)}, {vr(src(rho,0),2)}")
    for i in range(1, 8):
        for rho in range(2): a(f"    v_pk_fma_f32 {vr(PS[rho],2)}, {vr(src(rho,i),2)}, {vr(src(rho,i),2)}, {vr(PS[rho],2)}")
    for rho in range(2): a(f"    v_add_f32 v{S[rho]}, v{PS[rho]}, v{PS[rho]+1}")
    wave_sum(a, S, T)
    for rho in range(2):
        a(f"    v_mov_b32 v{76+rho}, v{M[rho]}"); rnd(a, 76 + rho)
        a(f"    v_mul_f32 v{78+rho}, s51, v{S[rho]}"); rnd(a, 78 + rho); a(f"    v_add_f32 v{78+rho}, s52, v{78+rho}"); rnd(a, 78 + rho)
    a("    v_sqrt_f32 v78, v78\n    v_sqrt_f32 v79, v79\n    s_nop 0")
    for rho in range(2): rnd(a, 78 + rho)
    a("""    v_rcp_f32 v78, v78
    v_rcp_f32 v79, v79
    v_mov_b32 v6, 0
    s_mov_b64 exec, 1
    buffer_store_dwordx2 v[76:77], v6, s[36:39], s27 offen
    buffer_store_dwordx2 v[78:79], v6, s[36:39], s28 offen
    s_mov_b64 exec, -1""")
    stamp(a, 1)
    a(f"    s_branch {L}_done\n{L}_out:")
    tail_out()
    a(f"{L}_done:")
    stamp(a, 2)
    if opt.stamps: a("    s_waitcnt vmcnt(0)")
    stamp(a, 3)
    stamp_end(a, kidx, 40, 33)
    a(f"{L}_end:\n    s_endpgm")
    return (name, 256, 512, OST + 32768), (name, 256 if opt.stamps else 208, 96)

def gen_c2(a, kidx):
    name = "c_kernel"; L = "C"
    CS = 4160; RO = 4 * CS; WSZ = 21248; STG = 4 * WSZ
    kernel_head(a, name)
    a(f"""    s_cmp_ge_u32 s2, 256
    s_cbranch_scc1 {L}_end
    s_load_dwordx4 s[4:7], s[0:1], {ARG['ssmk']}
    s_load_dwordx2 s[40:41], s[0:1], {ARG['ws']}
    s_load_dwordx2 s[10:11], s[0:1], {ARG['w1']}
    s_load_dwordx2 s[42:43], s[0:1], {ARG['w2']}""")
    stamp_begin(a)
    a(f"""    v_lshrrev_b32 v1, 6, v0
    v_and_b32 v2, 63, v0
    s_and_b32 s24, s2, 7
    v_readfirstlane_b32 s33, v1
    s_lshl_b32 s24, s24, 5
    s_lshr_b32 s25, s2, 3
    s_add_u32 s24, s24, s25          ; cg
    s_cmp_ge_u32 s33, 4
    s_cbranch_scc1 {L}_help
    s_lshl_b32 s25, s24, 2
    s_add_u32 s25, s25, s33          ; ch
    s_lshl_b32 s26, s25, 12          ; ch*4096
    s_mul_i32 s27, s33, {WSZ}        ; WB
    v_lshlrev_b32 v3, 4, v2          ; lane*16
    s_add_u32 m0, s27, {RO}
    s_lshr_b32 s28, s25, 1
    s_lshl_b32 s28, s28, 2
    s_waitcnt lgkmcnt(0)""")
    srd(a, 12, 4, MB4); srd(a, 16, 40, 64 << 20)
    FD = 16; FE = 32; FX = 48; TO = 52
    for i in range(4):
        a(f"    buffer_load_dwordx4 {vr(FD+4*i,4)}, v3, s[12:15], s26 offen offset:{1024*i}")
        a(f"    buffer_load_dwordx4 {vr(FE+4*i,4)}, v3, s[12:15], s26 offen offset:{1024*i+4}")
        a(f"    buffer_load_dword v{FX+i}, v3, s[12:15], s26 offen offset:{1024*i+20}")
    for i in range(4): a(f"    buffer_load_dwordx4 v3, s[16:19], s26 offen offset:{1024*i} lds")
    a(f"""    s_load_dword s29, s[6:7], s28
    v_add_u32 v4, s27, v3
    v_mov_b32 v60, 0
    v_mov_b32 v61, 0
    v_mov_b32 v62, 0
    v_mov_b32 v63, 0
    s_mov_b64 exec, 0x3fffffff
    ds_write_b128 v4, v[60:63] offset:{RO + 4096}
    s_mov_b64 exec, -1
    v_and_b32 v5, 15, v2             ; b / a
    v_lshrrev_b32 v6, 4, v2          ; kg
    v_add_u32 v7, 1, v5
    v_and_b32 v8, 3, v7
    v_mul_u32_u24 v8, {CS}, v8
    v_and_b32 v7, 28, v7
    v_lshl_add_u32 v8, v7, 1, v8
    v_lshl_add_u32 v8, v6, 4, v8
    v_add_u32 v8, s27, v8            ; vAT
    v_lshlrev_b32 v9, 5, v5
    v_lshl_add_u32 v10, v6, 3, v9    ; 32a + 8g
    v_sub_u32 v9, {RO + 480}, v9
    v_lshl_add_u32 v9, v6, 4, v9
    v_add_u32 v9, s27, v9            ; vBT
    s_add_u32 s34, s26, {XT_OFF:#x}""")
    stamp(a, 0)
    for i in range(4):
        D = FD + 4 * i; E = FE + 4 * i
        a(f"    s_waitcnt vmcnt({4 + 9 - 3*i})")
        a(f"    ds_write_b128 v4, {vr(D,4)} offset:{32 + 1024*i}")
        a(f"    ds_write_b128 v4, {vr(E,4)} offset:{2*CS + 32 + 1024*i}")
        t = TO + 8 * (i & 1)
        for k in range(4): a(f"    v_alignbit_b32 v{t+k}, v{E+k}, v{D+k}, 16")
        a(f"    ds_write_b128 v4, {vr(t,4)} offset:{CS + 32 + 1024*i}")
        for k in range(4): a(f"    v_alignbit_b32 v{t+4+k}, v{E+k+1 if k < 3 else FX+i}, v{E+k}, 16")
        a(f"    ds_write_b128 v4, {vr(t+4,4)} offset:{3*CS + 32 + 1024*i}")
        if i == 0:
            a(f"""    v_mov_b32 v68, 0
    v_mov_b32 v69, 0
    v_mov_b32 v70, 0
    v_lshlrev_b32 v71, 16, v{D}
    v_mov_b32 v72, 0
    v_mov_b32 v73, 0
    v_mov_b32 v74, 0
    v_mov_b32 v75, v{D}
    v_mov_b32 v76, 0
    v_mov_b32 v77, 0
    v_mov_b32 v78, v71
    v_mov_b32 v79, v{t}
    s_mov_b64 exec, 1
    ds_write_b128 v4, v[60:63]
    ds_write_b128 v4, v[60:63] offset:16
    ds_write_b128 v4, v[60:63] offset:{CS}
    ds_write_b128 v4, v[68:71] offset:{CS+16}
    ds_write_b128 v4, v[60:63] offset:{2*CS}
    ds_write_b128 v4, v[72:75] offset:{2*CS+16}
    ds_write_b128 v4, v[60:63] offset:{3*CS}
    ds_write_b128 v4, v[76:79] offset:{3*CS+16}
    s_mov_b64 exec, -1""")
    ACC = 80; F0 = 112; F1 = 176
    for i in range(0, 32, 2): a(f"    v_mov_b64 {vr(ACC+i,2)}, 0")
    a(f"""    v_mov_b32 v34, {STG + 16384}
    v_mov_b32 v35, 0
    ds_write_b32 v34, v35
    s_waitcnt vmcnt(0) lgkmcnt(0)""")
    for n in range(8): a(f"    buffer_load_dwordx2 {vr(FD + 2*n, 2)}, v10, s[16:19], s34 offen offset:{512*n}")
    a("    s_barrier")
    stamp(a, 1)
    def reads(F, woff):
        r = []
        for u in range(8):
            r.append(f"    ds_read_b128 {vr(F+32+4*u,4)}, v9 offset:{3584 - 512*u + woff}")
            r.append(f"    ds_read_b64 {vr(F+4*u,2)}, v8 offset:{512*u + woff}")
            r.append(f"    ds_read_b64 {vr(F+4*u+2,2)}, v8 offset:{512*u + 8 + woff}")
        return r
    def mf(F):
        return [f"    v_mfma_f32_16x16x32_bf16 {vr(ACC+4*(u+v),4)}, {vr(F+4*u,4)}, {vr(F+32+4*v,4)}, {vr(ACC+4*(u+v),4)}" for u in range(8) for v in range(8 - u)]
    def weave(m, f):
        i = 0
        for x in m:
            a(x)
            if i < len(f): a(f[i]); i += 1
    for l in reads(F0, 0): a(l)
    a(f"    s_mov_b32 s35, 0\n{L}_loop:\n    s_waitcnt lgkmcnt(0)")
    weave(mf(F0), reads(F1, 64) + ["    ds_read_b32 v35, v34", "    v_add_u32 v8, 128, v8", "    v_add_u32 v9, 128, v9", "    s_add_u32 s35, s35, 1", "    s_cmp_eq_u32 s35, 4"])
    a(f"    s_waitcnt lgkmcnt(0)\n    s_cbranch_scc1 {L}_last")
    weave(mf(F1), reads(F0, 0))
    a(f"""    s_branch {L}_loop
{L}_again:
    s_sleep 1
    ds_read_b32 v35, v34
    s_waitcnt lgkmcnt(0)
{L}_last:
    v_readfirstlane_b32 s36, v35
    s_cmp_eq_u32 s36, 4
    s_cbranch_scc0 {L}_again""")
    KV = F0; MT = F0 + 16
    pre = [f"""    v_sub_u32 v32, {RO + 504}, v10
    v_add_u32 v32, s27, v32""",
           f"""    v_lshlrev_b32 v33, 1, v10
    v_add_u32 v33, {STG}, v33"""]
    pre += [f"    ds_read_b64 {vr(KV+2*n,2)}, v32 offset:{512*(7-n)}" for n in range(8)]
    pre += [f"    ds_read_b128 {vr(MT+4*n,4)}, v33 offset:{1024*n}" for n in range(8)]
    RTB = 36
    pre += [f"    ds_read_b128 {vr(RTB+4*n,4)}, v33 offset:{8192 + 1024*n}" for n in range(8)]
    pre += [f"""    s_lshl_b32 s35, s29, 16
    s_and_b32 s36, s29, 0xffff0000""", f"""    s_bitcmp1_b32 s25, 0
    s_cselect_b32 s35, s36, s35          ; D as f32""",
            f"""    s_and_b32 s36, s25, 3
    s_bfe_u32 s37, s25, 0x10003""", f"""    s_lshl_b32 s37, s37, 2
    s_or_b32 s36, s36, s37               ; g(d)""",
            f"""    v_and_b32 v11, 7, v5
    v_xor_b32 v11, s36, v11""", f"""    v_lshlrev_b32 v11, 5, v11
    v_lshrrev_b32 v12, 3, v5""", f"""    v_lshl_add_u32 v11, v12, 18, v11
    v_and_b32 v12, 1, v6""", f"""    v_lshl_add_u32 v11, v12, 19, v11
    v_lshrrev_b32 v12, 1, v6""", f"""    v_lshl_add_u32 v11, v12, 4, v11
    s_lshl_b32 s34, s25, 8""", f"""    s_add_u32 s34, s34, {HT_OFF:#x}"""]
    weave(mf(F1), pre)
    stamp(a, 2)
    a("    s_waitcnt vmcnt(0) lgkmcnt(0)")
    OUT = 224
    order = [0, 1, 2, 3, 4, 5, 6, 7]
    for n in order:
        c = ACC + 4 * n; k = KV + 2 * n; x = FD + 2 * n; o = OUT + 2 * n
        a(f"""    v_and_b32 v12, 0xffff0000, v{k+1}
    v_lshlrev_b32 v13, 16, v{k+1}
    v_and_b32 v14, 0xffff0000, v{k}
    v_lshlrev_b32 v15, 16, v{k}
    v_fmac_f32 v{c}, s35, v12
    v_fmac_f32 v{c+1}, s35, v13
    v_fmac_f32 v{c+2}, s35, v14
    v_fmac_f32 v{c+3}, s35, v15
    v_lshlrev_b32 v12, 16, v{x}
    v_and_b32 v13, 0xffff0000, v{x}
    v_lshlrev_b32 v14, 16, v{x+1}
    v_and_b32 v15, 0xffff0000, v{x+1}
    v_pk_mul_f32 {vr(c,2)}, {vr(c,2)}, {vr(RTB+4*n,2)}
    v_pk_mul_f32 {vr(c+2,2)}, {vr(c+2,2)}, {vr(RTB+4*n+2,2)}
    v_pk_add_f32 {vr(MT+4*n,2)}, v[12:13], {vr(MT+4*n,2)} neg_lo:[0,1] neg_hi:[0,1]
    v_pk_add_f32 {vr(MT+4*n+2,2)}, v[14:15], {vr(MT+4*n+2,2)} neg_lo:[0,1] neg_hi:[0,1]
    v_pk_fma_f32 v[12:13], {vr(MT+4*n,2)}, {vr(c,2)}, v[12:13]
    v_pk_fma_f32 v[14:15], {vr(MT+4*n+2,2)}, {vr(c+2,2)}, v[14:15]
    v_cvt_pk_bf16_f32 v{o}, v12, v13
    v_cvt_pk_bf16_f32 v{o+1}, v14, v15""")
        if n & 1:
            a(f"""    s_nop 0
    v_permlane16_swap_b32 v{o-2}, v{o}
    v_permlane16_swap_b32 v{o-1}, v{o+1}
    buffer_store_dwordx4 {vr(o-2,4)}, v11, s[16:19], s34 offen
    s_add_u32 s34, s34, 0x100000""")
    stamp(a, 3)
    a(f"    s_branch {L}_done")
    W = 16; WF = 48
    a(f"""{L}_help:
    s_and_b32 s34, s33, 3
    s_and_b32 s25, s2, 15            ; k slice
    s_lshr_b32 s26, s2, 4
    s_mul_i32 s27, s25, {64*7168}
    s_lshl_b32 s28, s26, 9
    s_lshl_b32 s29, s34, 7
    s_add_u32 s28, s28, s29
    s_add_u32 s27, s27, s28
    v_lshrrev_b32 v3, 3, v2
    v_mul_u32_u24 v3, 7168, v3
    v_and_b32 v4, 7, v2
    v_lshl_add_u32 v3, v4, 4, v3
    s_waitcnt lgkmcnt(0)""")
    srd(a, 12, 10, 1024 * 7168); srd(a, 16, 40, 64 << 20)
    a(f"""    s_lshl_b32 s30, s34, 12
    s_add_u32 m0, s30, {STG}
    s_add_u32 s30, s30, {ST1_OFF:#x}
    v_lshlrev_b32 v5, 4, v2
    v_mov_b32 v8, {STG + 16384}
    v_mov_b32 v9, 1
    s_barrier""")
    for i in range(4): a(f"    buffer_load_dwordx4 v5, s[16:19], s30 offen offset:{1024*i} lds")
    a("""    s_waitcnt vmcnt(0)
    s_mov_b64 exec, 1
    ds_add_u32 v8, v9
    s_mov_b64 exec, -1""")
    if opt.tlbpf:
        srd(a, 20, 42, 3584 * 2048)
        a(f"""    s_lshr_b32 s30, s2, 3
    s_mul_i32 s30, s30, {56*4096}
    v_lshlrev_b32 v5, 12, v2
    s_cmp_eq_u32 s34, 1
    s_cbranch_scc1 {L}_t1
    s_cmp_eq_u32 s34, 0
    s_cbranch_scc0 {L}_t2
    buffer_load_dword v7, v5, s[12:15], s30 offen
    s_branch {L}_t3
{L}_t1:
    buffer_load_dword v7, v5, s[20:23], s30 offen
    s_branch {L}_t3
{L}_t2:
    s_lshl_b32 s30, s30, 1
    s_and_b32 s31, s34, 1
    s_mul_i32 s31, s31, {56*4096}
    s_add_u32 s30, s30, s31
    s_add_u32 s30, s30, {H1_OFF:#x}
    buffer_load_dword v7, v5, s[16:19], s30 offen
{L}_t3:""")
    a(f"""    s_cmp_ge_u32 s2, 224
    s_cbranch_scc1 {L}_done""")
    for i in range(8):
        a(f"    buffer_load_dwordx4 {vr(W+4*i,4)}, v3, s[12:15], s27 offen\n    s_add_u32 s27, s27, {8*7168}")
    if opt.c_pf2:
        srd(a, 20, 42, 3584 * 2048)
        a(f"""    s_mul_i32 s30, s2, 32768
    s_lshl_b32 s31, s34, 13
    s_add_u32 s30, s30, s31
    v_lshlrev_b32 v5, 7, v2
    buffer_load_dword v6, v5, s[20:23], s30 offen""")
    ex = 1 if opt.c_pf2 else 0
    for i in range(8):
        a(f"    s_waitcnt vmcnt({7 - i + ex})")
        if i == 0:
            for d in range(4): unpack(a, WF + 2 * d, W + d)
        else:
            for d in range(4):
                unpack(a, WF + 8 + 2 * (d & 1), W + 4 * i + d)
                a(f"    v_pk_add_f32 {vr(WF+2*d,2)}, {vr(WF+2*d,2)}, {vr(WF + 8 + 2*(d&1),2)}")
    for d in range(8): a(f"    v_add_f32_dpp v{WF+d}, v{WF+d}, v{WF+d} row_ror:8 row_mask:0xf bank_mask:0xf")
    for sw in ("v_permlane16_swap_b32", "v_permlane32_swap_b32"):
        for d in range(8): a(f"    v_mov_b32 v{WF+8+d}, v{WF+d}")
        for d in range(8): a(f"    {sw} v{WF+8+d}, v{WF+d}")
        for d in range(8): a(f"    v_add_f32 v{WF+d}, v{WF+d}, v{WF+8+d}")
    a(f"""    s_mul_i32 s27, s25, {3584*4}
    s_lshl_b32 s28, s28, 1
    s_add_u32 s27, s27, s28
    s_add_u32 s27, s27, {CS_OFF:#x}
    v_lshlrev_b32 v4, 5, v4
    s_mov_b64 exec, 0xff
    buffer_store_dwordx4 {vr(WF,4)}, v4, s[16:19], s27 offen
    buffer_store_dwordx4 {vr(WF+4,4)}, v4, s[16:19], s27 offen offset:16
    s_mov_b64 exec, -1
{L}_done:""")
    stamp(a, 4)
    if opt.stamps: a("    s_waitcnt vmcnt(0)")
    stamp(a, 5)
    stamp_end(a, kidx, 40, 33)
    a(f"{L}_end:\n    s_endpgm")
    return (name, 256, 512, STG + 16384 + 64), (name, 256 if opt.stamps else 240, 96)


def ppoll(a, tag, load, cmpl, regs, first_issued=False):
    for i, r in enumerate(regs):
        if i or not first_issued: a(load(r))
        if i < 2: a(f"    s_sleep {opt.pgap}")
    a(f"{tag}_l:")
    for r in regs:
        a(f"    s_waitcnt vmcnt(2)\n    v_cmp_eq_u32 vcc, 1, v{r}\n    {cmpl}\n    s_cbranch_scc1 {tag}_e")
        a(load(r))
    a(f"    s_branch {tag}_l\n{tag}_e:")

def loop_unrolled(a, L, MI, NI, nk, ns, acc, F0, F1, rdA, rdB, s_k, bar, tail, hookA=None, hookB=None, entry=None, start=0):
    n = MI * NI
    def reads(F, slot, kh):
        r = rdA(F, slot, kh)
        for ni in range(NI): r += rdB(F, slot, kh, ni)
        return r
    def mfmas(F):
        return [f"    v_mfma_f32_16x16x32_bf16 {vr(acc + 4*(mi*NI+ni),4)}, {vr(F + 4*MI + 4*ni, 4)}, {vr(F + 4*mi, 4)}, {vr(acc + 4*(mi*NI+ni),4)}" for ni in range(NI) for mi in range(MI)]
    def place(mf, items, start, extra):
        gaps = [[] for _ in mf]
        for j, it in enumerate(items): gaps[start + j].append(it)
        for k, v in extra.items(): gaps[k] += v
        for m, gl in zip(mf, gaps):
            a(m)
            for x in gl: a(x)
    nrd = len(reads(F0, 0, 0))
    late = bar >= n
    st = bar - n + 1 if late else 0
    lagB = st + nrd > n - opt.lagthr
    a(f"    s_mov_b32 s{s_k}, 0")
    if entry is None:
        for l in reads(F0, start, 0): a(l)
        if start: a(f"    s_branch {L}_s{start}")
    else:
        a(f"    s_cmp_eq_u32 {entry}, 0\n    s_cbranch_scc1 {L}_e0")
        for l in reads(F0, 1, 0): a(l)
        a(f"    s_branch {L}_s1\n{L}_e0:")
        for l in reads(F0, 0, 0): a(l)
    for u in range(ns):
        a(f"{L}_s{u}:")
        ex = {}
        if lagB:
            a(f"    s_waitcnt lgkmcnt({2*(NI-1)})")
            for ni in range(1, NI):
                ex.setdefault(MI * ni - 1, []).append(f"    s_waitcnt lgkmcnt({min(15, 2*(NI-1-ni) + min(nrd, MI*ni))})")
        else:
            a("    s_waitcnt lgkmcnt(0)")
        ex.setdefault(n - 3, []).append(f"    s_add_u32 s{s_k}, s{s_k}, 1")
        ex.setdefault(n - 2, []).append(f"    s_cmp_eq_u32 s{s_k}, {nk}")
        if not late: ex.setdefault(bar, []).append("    s_waitcnt lgkmcnt(0)\n    s_barrier")
        ex.setdefault(n - 1, []).append(f"    s_cbranch_scc1 {L}_tail")
        if late: ex[n - 1].append(f"    s_waitcnt lgkmcnt({2*(NI-1)})")
        if hookA: ex[n - 1].append(hookA(u))
        place(mfmas(F0), reads(F1, u, 1), 0, ex)
        ex = {}
        if late: ex[bar - n] = ["    s_waitcnt lgkmcnt(0)\n    s_barrier"]
        if hookB: ex.setdefault(n - 1, []).append(hookB(u))
        if u == ns - 1: ex.setdefault(n - 1, []).append(f"    s_branch {L}_s0")
        place(mfmas(F1), reads(F0, (u + 1) % ns, 0), st, ex)
    a(f"{L}_tail:")
    if late: a("    s_waitcnt lgkmcnt(0)\n    s_barrier")
    tail(mfmas(F1))

def gen_ga(a, kidx, mega=None):
    name = "g_kernel"; L = "G"
    PX = 4 if opt.map84 else 1
    MAP = """    s_lshr_b32 s26, s24, 1
    s_lshl_b32 s26, s26, 2
    s_and_b32 s27, s25, 3
    s_add_u32 s26, s26, s27          ; mt
    s_and_b32 s54, s24, 1
    s_lshr_b32 s55, s25, 2
    s_lshl_b32 s56, s24, 2
    s_add_u32 s56, s56, s27
    s_lshl_b32 s56, s56, 7           ; group*128
    s_lshl_b32 s27, s54, 3
    s_add_u32 s27, s27, s55          ; nt
""" if not opt.map84 else ("""    s_and_b32 s26, s24, 1
    s_lshl_b32 s26, s26, 3
    s_and_b32 s27, s25, 7
    s_add_u32 s26, s26, s27          ; mt""" if not (mega and mega["two"]) else """    s_and_b32 s26, s24, 1
    s_lshl_b32 s26, s26, 2
    s_and_b32 s27, s25, 3
    s_add_u32 s26, s26, s27
    s_and_b32 s27, s25, 4
    s_lshl_b32 s27, s27, 1
    s_add_u32 s26, s26, s27          ; mt: four early and four late row tiles per die""") + """
    s_lshr_b32 s27, s24, 1
    s_lshl_b32 s27, s27, 2
    s_lshr_b32 s55, s25, 3
    s_add_u32 s27, s27, s55          ; nt
    s_lshr_b32 s54, s27, 3           ; kh
    s_and_b32 s55, s27, 7            ; nt2 / member index
    s_lshl_b32 s56, s26, 1
    s_add_u32 s56, s56, s54
    s_lshl_b32 s56, s56, 7           ; group*128
"""
    LA = 224; LB = 216; LB2 = 212
    ST1 = 49152; NS1 = 3; NK1 = 16
    NS2 = 4; NK2 = 28; B2 = 81920
    BR1 = 49152; CNT = 147456; TST = CNT + 256; TRM = TST + 512; TCB = TRM + 1024 + 64; RES = 65536
    if not mega:
        kernel_head(a, name)
        a(f"    s_cmp_ge_u32 s2, 256\n    s_cbranch_scc1 {L}_end")
    a(f"""    s_load_dwordx2 s[4:5], s[0:1], {ARG['ws']}
    s_load_dwordx4 s[8:11], s[0:1], {ARG['w1']}    ; w1, b1
    s_load_dwordx4 s[48:51], s[0:1], {ARG['w2']}   ; w2, b2
    s_load_dwordx2 s[52:53], s[0:1], {ARG['out']}""")
    stamp_begin(a)
    a(f"""    v_lshrrev_b32 v1, 6, v0
    v_and_b32 v2, 63, v0
    s_and_b32 s24, s2, 7
    v_readfirstlane_b32 s33, v1
    s_lshr_b32 s25, s2, 3
{MAP}    s_and_b32 s29, s27, 1            ; p = nt odd
    s_cmp_lt_u32 s33, 4
    s_cbranch_scc1 {L}_cons""")
    def final_addr():
        a(f"""    s_lshl_b32 s43, s26, 7
    s_lshl_b32 s44, s54, 5
    s_add_u32 s43, s43, s44
    s_lshl_b32 s44, s33, 2
    s_add_u32 s43, s43, s44
    s_lshl_b32 s43, s43, 11          ; row*2048
    s_lshl_b32 s44, s55, 8
    s_add_u32 s43, s43, s44
    s_add_u32 s44, s43, {64*2048}""")
    if opt.lprio: a(f"    s_setprio {opt.lprio}")
    a(f"""    s_and_b32 s34, s33, 3            ; lw
    s_lshl_b32 s35, s34, 12          ; lw*4096
    v_lshl_add_u32 v{LA}, v2, 4, s35 ; A voffset
    s_lshl_b32 s68, s26, 18
    s_add_u32 s69, s68, {16 << 14}
    s_and_b32 s36, s27, {0 if opt.norot else 12}
    s_lshl_b32 s30, s36, 14
    s_add_u32 s30, s30, s68
    s_mul_i32 s66, s27, 448
    s_and_b32 s66, s66, 0xffffff80
    s_add_u32 s67, s66, {1024*7168}
    s_mul_i32 s31, s36, {64*7168}
    s_add_u32 s31, s31, s66
    s_mov_b32 s70, s35
    s_add_u32 s39, s35, {NS1*16384}
    s_add_u32 s38, s35, s35
    s_add_u32 s38, s38, {BR1}
    s_mov_b32 s71, s38
    s_add_u32 s37, s38, {NS1*32768}
    s_waitcnt lgkmcnt(0)""")
    srd(a, 12, 4, MB4, off=HT_OFF)
    def issueA1():
        a(f"    s_mov_b32 m0, s70\n    s_add_u32 s70, s70, 16384")
        for i in range(4): a(f"    buffer_load_dwordx4 v{LA}, s[12:15], s30 offen offset:{i*1024} {'sc1' if mega else ''} lds")
        a("""    s_add_u32 s30, s30, 16384
    s_cmp_ge_u32 s70, s39
    s_cselect_b32 s70, s35, s70
    s_cmp_ge_u32 s30, s69
    s_cselect_b32 s30, s68, s30""")
    def issueB1():
        a("    s_mov_b32 m0, s38\n    s_nop 0")
        for i in range(4): a(f"    buffer_load_dwordx4 v{LB+i}, s[16:19], s31 offen offset:{i*1024} lds")
        a(f"    s_add_u32 m0, s38, 4096\n    s_add_u32 s38, s38, 32768")
        for i in range(4, 8): a(f"    buffer_load_dwordx4 v{LB+i}, s[16:19], s31 offen offset:{(i&3)*1024} lds")
        a(f"""    s_add_u32 s31, s31, {64*7168}
    s_cmp_ge_u32 s38, s37
    s_cselect_b32 s38, s71, s38
    s_cmp_ge_u32 s31, s67
    s_cselect_b32 s31, s66, s31""")
    if not mega: issueA1()
    a(f"""    v_lshrrev_b32 v8, 5, v2          ; hi
    s_lshl_b32 s36, s34, 4
    v_add_u32 v9, s36, v8            ; 16lw+hi
    v_mul_u32_u24 v9, 7168, v9
    v_and_b32 v10, 1, v2
    v_lshl_add_u32 v9, v10, 4, v9    ; t0
    v_bfe_u32 v10, v2, 1, 4
    v_xor_b32 v10, v10, v8           ; x0""")
    srd(a, 16, 8, 1024 * 7168)
    for ci, c in enumerate((0, 2, 4, 6)):
        a(f"    v_xor_b32 v11, {c}, v10\n    v_lshl_add_u32 v11, v11, 5, v9")
        for i in range(8):
            if 2 * (i & 1) + 4 * (i >> 2) == c: a(f"    v_add_u32 v{LB+i}, {2*i*7168 - (i&3)*1024}, v11")
    stamp(a, 0)
    if not mega:
        issueB1(); issueA1()
        a("    s_waitcnt vmcnt(4)\n    s_barrier")
        issueB1(); issueA1(); issueB1()
    else:
        srd(a, 20, 4, 0x8000, off=mega["HF"])
        if mega["two"]: a("    s_lshr_b32 s36, s26, 3\n    s_lshl_b32 s36, s36, 15\n    s_add_u32 s20, s20, s36\n    s_addc_u32 s21, s21, 0")
        srd(a, 60, 48, 3584 * 2048)
        a(f"""    v_mov_b32 v10, {mega["WRD"]}
    v_lshlrev_b32 v70, 7, v2
    s_and_b32 s41, s27, 12
    s_lshl_b32 s41, s41, 11
    s_mul_i32 s59, s2, 28672
    s_mul_i32 s36, s34, 7168
    s_add_u32 s59, s59, s36
{L}_m0:
    ds_read_b32 v13, v10 offset:48
    s_waitcnt lgkmcnt(0)
    v_readfirstlane_b32 s36, v13
    s_cmp_eq_u32 s36, 8
    s_cbranch_scc1 {L}_m1
    s_sleep 1
    s_branch {L}_m0
{L}_m1:""")
        issueB1()
        if opt.mb2: issueB1()
        if not opt.mq: a("    s_lshl_b32 s41, s35, 1")
        if opt.pp & 1:
            ppoll(a, f"{L}_hp", lambda r: f"    buffer_load_dword v{r}, v70, s[20:23], s41 offen sc1", "s_cmp_eq_u64 vcc, -1", (73, 74, 75))
        else:
            a(f"""{L}_m2:
    buffer_load_dword v13, v70, s[20:23], s41 offen sc1
    s_waitcnt vmcnt(0)
    v_cmp_eq_u32 vcc, 1, v13
    s_cmp_eq_u64 vcc, -1
    s_cbranch_scc1 {L}_m3""")
            if opt.mpf: a("    buffer_load_dword v71, v70, s[60:63], s59 offen\n    s_mov_b32 s59, 0x80000000")
            else: a(f"    s_sleep {opt.msleep}")
            a(f"    s_branch {L}_m2\n{L}_m3:")
        if not opt.mq:
            a(f"""    v_mov_b32 v12, 1
    s_mov_b64 exec, 1
    ds_add_u32 v10, v12 offset:56
    s_mov_b64 exec, -1
{L}_m5:
    ds_read_b32 v13, v10 offset:56
    s_waitcnt lgkmcnt(0)
    v_readfirstlane_b32 s36, v13
    s_cmp_eq_u32 s36, 4
    s_cbranch_scc0 {L}_m5""")
        if opt.dly:
            a(f"    s_and_b32 s36, s26, {opt.dly[0]}\n    s_cmp_eq_u32 s36, 0\n    s_cbranch_scc1 {L}_nodly")
            for i in range(opt.dly[1]): a("    s_sleep 16")
            a(f"{L}_nodly:")
        stamp(a, 11)
        issueA1(); issueA1()
        a("    s_waitcnt vmcnt(4)\n    s_barrier")
        if not opt.mb2: issueB1()
        issueA1(); issueB1()
        if opt.mq:
            a(f"{L}_m4:")
            for q in range(1, 4):
                a(f"    s_add_u32 s36, s41, {q*8192}\n    s_and_b32 s36, s36, 0x7fff\n    buffer_load_dword v{13+q}, v70, s[20:23], s36 offen sc1")
            a(f"""    s_waitcnt vmcnt(0)
    v_and_b32 v13, v14, v15
    v_and_b32 v13, v13, v16
    v_cmp_eq_u32 vcc, 1, v13
    s_cmp_eq_u64 vcc, -1
    s_cbranch_scc0 {L}_m4""")
    stamp(a, 12)
    a(f"""    v_lshrrev_b32 v3, 4, v2          ; q4
    s_lshl_b32 s36, s34, 4
    v_add_u32 v4, s36, v3
    v_lshlrev_b32 v4, 11, v4
    v_and_b32 v5, 1, v2
    v_lshl_add_u32 v4, v5, 4, v4     ; t0
    v_bfe_u32 v5, v2, 1, 3
    v_xor_b32 v5, v5, v3             ; x0""")
    for c in (0, 4):
        a(f"    v_xor_b32 v6, {c}, v5\n    v_lshl_add_u32 v6, v6, 5, v4")
        for i in range(4):
            if 4 * (i >> 1) == c: a(f"    v_add_u32 v{LB2+i}, {4*i*2048 - i*1024}, v6")
    a(f"""    v_lshrrev_b32 v3, 3, v2          ; d&7
    v_bfe_u32 v4, v2, 1, 2
    v_lshrrev_b32 v5, 1, v3
    v_xor_b32 v4, v4, v5             ; gs
    v_and_b32 v5, 1, v4
    v_lshrrev_b32 v4, 1, v4
    v_lshl_or_b32 v4, v4, 2, v5
    s_lshl_b32 s36, s54, 1
    v_or_b32 v4, s36, v4             ; cp
    v_and_b32 v5, 3, v3
    v_xor_b32 v4, v4, v5             ; cp ^ (d&3)
    v_lshlrev_b32 v4, 5, v4
    v_and_b32 v5, 1, v2
    v_lshl_add_u32 v4, v5, 4, v4
    v_lshl_add_u32 v208, v3, 8, v4
    v_xor_b32 v209, 128, v208
    v_add_u32 v209, 1024, v209
    v_add_u32 v210, 2048, v208
    v_add_u32 v211, 2048, v209
    v_and_b32 v3, 31, v2
    v_lshrrev_b32 v4, 5, v2
    v_lshlrev_b32 v4, 13, v4
    v_lshl_add_u32 v206, v3, 2, v4
    v_and_b32 v3, 15, v2
    v_min_u32 v3, 13, v3
    v_lshrrev_b32 v4, 4, v2
    v_mul_u32_u24 v207, {3584*4}, v4
    v_lshl_add_u32 v207, v3, 4, v207
    v_lshlrev_b32 v205, 3, v3""")
    if opt.xy:
        a(f"""    s_lshr_b32 s36, s55, 1
    s_mul_i32 s36, s36, 3
    s_lshl_b32 s41, s29, 1
    s_add_u32 s36, s36, s41
    v_subrev_u32 v3, 3, v2               ; q
    v_cmp_le_u32 vcc, s36, v3
    s_lshl_b32 s41, s55, 1
    v_subrev_u32 v5, 14, v2              ; z
    v_addc_co_u32 v3, vcc, 0, v3, vcc    ; c
    v_cmp_le_u32 vcc, s41, v5
    v_mul_u32_u24 v4, 43, v3
    v_lshrrev_b32 v4, 7, v4              ; c/3
    v_cndmask_b32 v6, 0, 2, vcc
    v_add_u32 v5, v5, v6
    v_mul_u32_u24 v6, 3, v4
    v_sub_u32 v3, v3, v6                 ; c%3
    v_min_u32 v6, 1, v3
    v_lshl_add_u32 v3, v6, 1, v3         ; 0,3,4
    v_mad_u32_u24 v3, v4, 7, v3
    v_lshrrev_b32 v4, 2, v5
    v_and_b32 v6, 1, v5
    v_bfe_u32 v5, v5, 1, 1
    v_lshl_add_u32 v5, v5, 2, v6
    v_mad_u32_u24 v5, v4, 7, v5
    v_add_u32 v5, 1, v5
    v_cmp_gt_u32 vcc, 14, v2
    s_mul_i32 s36, s55, 7
    s_add_u32 s36, s36, 1
    v_cndmask_b32 v3, v5, v3, vcc
    s_lshr_b32 s36, s36, 1
    v_cmp_gt_u32 vcc, 3, v2
    v_add_u32 v5, s36, v2
    s_nop 0
    v_cndmask_b32 v72, v3, v5, vcc""")
    srd(a, 20, 4, 64 << 20); srd(a, 72, 10, 7168)
    PSR = 32; CSR = 48; BR = 64
    a(f"""    s_lshl_b32 s41, s26, 14
    s_lshl_b32 s36, s34, 7
    s_add_u32 s41, s41, s36
    s_add_u32 s41, s41, {PST_OFF:#x}
    s_add_u32 s47, s41, 4096
    s_mul_i32 s42, s27, 896
    s_mul_i32 s36, s34, 224
    s_add_u32 s42, s42, s36
    s_lshr_b32 s43, s42, 1
    s_add_u32 s42, s42, {CS_OFF:#x}""")
    KP = opt.kp
    pfk = dict(opt.pfk) if opt.w2pf == "l" else {}
    if pfk and not mega:
        srd(a, 60, 48, 3584 * 2048)
        a(f"""    s_mul_i32 s59, s2, 28672
    s_mul_i32 s36, s34, 7168
    s_add_u32 s59, s59, s36
    v_lshlrev_b32 v70, {8 if opt.c_pf2 == 2 else 7}, v2
    {"s_add_u32 s59, s59, 128" if opt.c_pf2 == 2 else ""}""")
    def pf(k):
        if k in pfk:
            lo, hi = pfk[k]
            m = ((1 << hi) - 1) ^ ((1 << lo) - 1)
            a(f"    s_mov_b32 exec_lo, {m & 0xffffffff:#x}\n    s_mov_b32 exec_hi, {m >> 32:#x}\n    buffer_load_dword v71, v70, s[60:63], s59 offen\n    s_mov_b64 exec, -1")
    extra = lambda k: (1 if (k - 1) in pfk else 0) + (1 if (k - 2) in pfk else 0)
    a(f"    s_mov_b32 s40, 0\n{L}_l1:")
    stamp_loop(a, 40, 32)
    a("    s_waitcnt vmcnt(12)")
    stamp_loop(a, 40, 42)
    a("    s_barrier")
    stamp_loop(a, 40, 52)
    if not opt.noload:
        issueA1(); issueB1()
    a(f"    s_add_u32 s40, s40, 1\n    s_cmp_lt_u32 s40, {KP + 1}\n    s_cbranch_scc1 {L}_l1")
    stamp(a, 20)
    def gather_ps():
        for i in range(16): a(f"    buffer_load_dword v{PSR+i}, v206, s[20:23], s{41 if i < 8 else 47} offen offset:{512*(i&7)} sc1")
    gather_ps()
    def gather_cs():
        for i in range(4): a(f"    s_add_u32 s36, s42, {i*4*3584*4}\n    buffer_load_dwordx4 {vr(CSR+4*i,4)}, v207, s[20:23], s36 offen {'sc1' if mega else ''}")
    gather_cs()
    a(f"    buffer_load_dwordx2 {vr(BR,2)}, v205, s[72:75], s43 offen")
    for k in (KP + 1, KP + 2):
        stamp(a, 21 + 2 * (k - KP - 1))
        a(f"    s_waitcnt vmcnt({33 + extra(k)})\n    s_barrier          ; b{k}")
        stamp(a, 22 + 2 * (k - KP - 1))
        issueA1(); issueB1(); pf(k)
    t = Asm()
    for i in range(1, 8): t(f"    v_pk_add_f32 {vr(PSR,2)}, {vr(PSR,2)}, {vr(PSR+2*i,2)}")
    for i in range(1, 4):
        t(f"    v_pk_add_f32 {vr(CSR,2)}, {vr(CSR,2)}, {vr(CSR+4*i,2)}\n    v_pk_add_f32 {vr(CSR+2,2)}, {vr(CSR+2,2)}, {vr(CSR+4*i+2,2)}")
    t(f"""    v_add_f32 v3, v{PSR}, v{PSR+1}
    s_mov_b32 s76, 0x3a800000
    v_mov_b32 v4, v3""")
    for sw in ("v_permlane16_swap_b32", "v_permlane32_swap_b32"):
        for d in range(4): t(f"    v_mov_b32 v{CSR+4+d}, v{CSR+d}")
        for d in range(4): t(f"    {sw} v{CSR+4+d}, v{CSR+d}")
        for d in range(4): t(f"    v_add_f32 v{CSR+d}, v{CSR+d}, v{CSR+4+d}")
    t(f"""    v_permlane32_swap_b32 v4, v3
    v_mul_f32 v6, s76, v4                ; mean
    v_mul_f32 v7, s76, v3
    v_fma_f32 v7, -v6, v6, v7
    v_max_f32 v7, 0, v7                  ; variance""")
    rnd(t, 6); rnd(t, 7)
    t("    v_add_f32 v7, 0x3727c5ac, v7"); rnd(t, 7)
    t("    v_sqrt_f32 v7, v7")
    for d in range(4): t(f"    v_cvt_pk_bf16_f32 v{CSR+4+d}, v{CSR+d}, v{CSR+d}")
    rnd(t, 7)
    for d in range(4): t(f"    v_and_b32 v{CSR+4+d}, 0xffff0000, v{CSR+4+d}\n    v_sub_f32 v{CSR+d}, v{CSR+d}, v{CSR+4+d}")
    t("    v_rcp_f32 v9, v7")
    for d in range(4):
        t(f"    v_cvt_pk_bf16_f32 v{CSR+8+2*d}, v{CSR+4+d}, v{CSR+d}")
        t(f"    v_and_b32 v{CSR+9+2*d}, 0xffff, v{BR + (d>>1)}" if d % 2 == 0 else f"    v_lshrrev_b32 v{CSR+9+2*d}, 16, v{BR + (d>>1)}")
    t(f"""    v_mul_f32 v9, v9, v9                 ; r^2
    v_xor_b32 v6, 0x80000000, v6
    v_lshrrev_b32 v4, 16, v6
    v_or_b32 v6, v6, v4                  ; (-m,-m)
    v_lshrrev_b32 v7, 16, v7             ; (den,0)
    v_and_b32 v3, 31, v2
    s_lshl_b32 s77, s34, 7
    s_add_u32 s77, s77, {TST}
    v_lshl_add_u32 v4, v3, 2, s77
    ds_write_b32 v4, v9
    s_lshl_b32 s77, s34, 8
    s_add_u32 s77, s77, {TRM}
    v_lshl_add_u32 v4, v3, 3, s77
    ds_write_b64 v4, v[6:7]
    s_mul_i32 s77, s34, 448
    s_add_u32 s77, s77, {TCB}
    v_lshl_add_u32 v3, v205, 2, s77
    ds_write_b128 v3, {vr(CSR+8,4)}
    ds_write_b128 v3, {vr(CSR+12,4)} offset:16
    v_mov_b32 v10, 0
    v_mov_b32 v11, 0
    v_mov_b32 v12, {TRM + 1024}
    ds_write_b64 v12, v[10:11]
    v_mov_b32 v12, {CNT}
    ds_write_b64 v12, v[10:11]""")
    nchk = NK1 - NS1 - (KP + 3)
    per = (len(t.lines) - 10 + nchk - 1) // nchk
    chunks = [t.lines[10 + i*per: 10 + (i+1)*per] for i in range(nchk)]
    for k in range(KP + 3, NK1 - NS1):
        a(f"    s_waitcnt vmcnt({12 + extra(k)})\n    s_barrier          ; b{k}")
        issueA1(); issueB1(); pf(k)
        if k == KP + 3:
            a(f"{L}_chk:\n    v_max_u32 v3, v{PSR}, v{PSR+1}")
            for i in range(2, 32 if mega else 16, 2): a(f"    v_max3_u32 v3, v3, v{PSR+i}, v{PSR+i+1}")
            a(f"""    v_cmp_eq_u32 vcc, -1, v3
    s_cmp_lg_u64 vcc, 0
    s_cbranch_scc1 {L}_retry""")
            for x in t.lines[:10]: a(x)
        else:
            for x in chunks.pop(0): a(x)
    srd(a, 16, 48, 3584 * 2048)
    final_addr()
    a(f"""    s_mul_i32 s58, s55, 7
    s_add_u32 s58, s58, 1
    s_lshr_b32 s58, s58, 1
    s_mul_i32 s66, s54, {1792*2048}
    s_lshl_b32 s36, s55, 8
    s_add_u32 s66, s66, s36
    s_lshl_b32 s31, s58, 17
    s_add_u32 s31, s31, s66          ; G2 B soffset
    s_add_u32 s67, s66, {28 << 17}
    s_mov_b32 s78, {1 if opt.xy else 's31'}
    s_add_u32 s79, s31, {3 << 17}
    s_lshl_b32 s38, s29, 14
    s_add_u32 s38, s38, s35
    s_add_u32 s39, s35, 65536
    s_lshl_b32 s36, s55, 15
    s_lshl_b32 s37, s34, 13
    s_add_u32 s36, s36, s37
    s_add_u32 s42, s36, s68
    s_waitcnt vmcnt({12 + extra(13)})
    s_barrier          ; b13""")
    stamp(a, 13)
    def issueB2(restart=False):
        a(f"    s_add_u32 m0, s38, {B2}\n    s_add_u32 s38, s38, 16384")
        for i in range(4): a(f"    buffer_load_dwordx4 v{LB2+i}, s[16:19], s31 offen offset:{i*1024} lds")
        a(f"""    s_add_u32 s31, s31, {64*2048}
    s_cmp_ge_u32 s38, s39
    s_cselect_b32 s38, s35, s38""")
        if opt.xy: a("    v_readlane_b32 s36, v72, s78\n    s_add_u32 s78, s78, 1\n    s_lshl_b32 s36, s36, 17\n    s_add_u32 s31, s36, s66")
        elif not opt.g2sync: a("    s_cmp_ge_u32 s31, s67\n    s_cselect_b32 s31, s66, s31")
        elif restart: a("    s_cmp_eq_u32 s66, s78\n    s_cselect_b32 s31, s31, s66")
        else: a("    s_cmp_eq_u32 s31, s78\n    s_cselect_b32 s31, s79, s31")
    issueB2()
    for x in chunks.pop(0): a(x)
    stamp(a, 15)
    a(f"    s_waitcnt vmcnt({4 + (1 if 12 in pfk else 0)})\n    s_barrier          ; b14")
    stamp(a, 14)
    assert not chunks
    issueB2()
    a("    s_waitcnt lgkmcnt(0)\n    s_barrier          ; b15")
    issueB2(restart=True); issueB2()
    stamp(a, 1)
    a(f"    s_add_u32 m0, s35, {RES}\n    s_nop 0")
    for i in range(4): a(f"    buffer_load_dwordx4 v{208+i}, s[12:15], s42 offen offset:{i*1024} {'sc1' if mega else ''} lds")
    srd(a, 12, 4, H1_SZ, off=H1_OFF); srd(a, 60, 4, FLG_SZ, off=FLG_OFF)
    a(f"""    s_lshr_b32 s36, s34, 1
    s_lshl_b32 s36, s36, 13
    s_and_b32 s37, s34, 1
    s_lshl_b32 s37, s37, 11              ; + 16*(lw&1)
    s_add_u32 s37, s37, s36
    v_lshl_add_u32 v7, v2, 4, s37
    s_lshl_b32 s36, s29, 14
    v_add_u32 v3, s36, v7
    s_cmp_eq_u32 s29, 1
    s_cselect_b32 s36, 0, 49152
    v_add_u32 v4, s36, v7
    v_lshrrev_b32 v5, 3, v2
    v_xor_b32 v5, v5, v2
    v_bfe_u32 v5, v5, 2, 1               ; c bit2
    v_cmp_eq_u32 vcc, s29, v5
    v_mov_b32 v6, 0x80000000
    s_mul_i32 s36, s27, 7
    s_lshr_b32 s36, s36, 1               ; ks0
    v_cndmask_b32 v5, v6, v4, vcc
    s_mul_i32 s37, s26, 56
    s_add_u32 s36, s36, s37
    s_lshl_b32 s40, s36, 14
    s_add_u32 s41, s40, 16384
    s_add_u32 s42, s40, 32768
    s_mul_i32 s68, s54, 28
    s_add_u32 s68, s68, s37
    s_lshl_b32 s68, s68, 14
    s_add_u32 s69, s68, {28 << 14}
    s_add_u32 s30, s58, 3
    s_lshl_b32 s30, s30, 14
    s_add_u32 s30, s30, s68
    s_mov_b32 s77, s30
    s_sub_u32 s76, s30, {3 << 14}
    {"s_cmp_eq_u32 s68, s76" if opt.g2sync else "s_cmp_ge_u32 s30, s69"}
    {"s_cselect_b32 s30, s30, s68" if opt.g2sync else "s_cselect_b32 s30, s68, s30"}
    s_add_u32 s70, s29, 3
    s_and_b32 s70, s70, 3
    s_lshl_b32 s70, s70, 14
    s_add_u32 s70, s70, s35
    s_lshl_b32 s45, s55, 2
    s_add_u32 s46, s56, {GRP_RDY:#x}
    s_add_u32 s45, s45, s46
    v_and_b32 v8, 7, v2
    v_lshlrev_b32 v8, 2, v8
    v_mov_b32 v10, 1""")
    if opt.xy: a("    v_readlane_b32 s36, v72, 3\n    s_mov_b32 s76, 4\n    s_lshl_b32 s36, s36, 14\n    s_add_u32 s30, s36, s68")
    zst = []
    for half in range(2):
        stamp(a, 16 + 2 * half)
        if half == 1: a(f"    s_waitcnt vmcnt({4 if opt.xy else 8})")
        a(f"    s_barrier                            ; E{half}")
        stamp(a, 17 + 2 * half)
        ho = 4096 * half
        items = [(3, 3, 40, 0, 0), (3, 3, 40, 0, 1), (4, 5, 40, 0, 0), (4, 5, 40, 0, 1), (3, 3, 41, 16384, 0), (3, 3, 41, 16384, 1), (3, 3, 42, 32768, 0), (3, 3, 42, 32768, 1)]
        for i, (vr_, vs_, so, lo, q) in enumerate(items):
            a(f"    ds_read_b128 {vr((80 if opt.xy else 32)+32*half+4*i,4)}, v{vr_} offset:{lo + ho + 1024*q}")
        RB = 80 if opt.xy else 32
        if half == 1 and not opt.xy: a("    s_add_u32 s40, s40, 4096\n    s_add_u32 s41, s41, 4096\n    s_add_u32 s42, s42, 4096")
        if half == 1 and opt.xy: a("    s_add_u32 s40, s40, 4096\n    s_add_u32 s47, s41, 4096\n    s_add_u32 s59, s42, 4096")
        for i, (vr_, vs_, so, lo, q) in enumerate(items):
            if opt.xy and i >= 4:
                if half == 1: so = {41: 47, 42: 59}[so]
                zst.append(f"    buffer_store_dwordx4 {vr(RB+32*half+4*i,4)}, v{vs_}, s[12:15], s{so} offen offset:{1024*q} sc1")
                continue
            a(f"    s_waitcnt lgkmcnt({7-i})\n    buffer_store_dwordx4 {vr(RB+32*half+4*i,4)}, v{vs_}, s[12:15], s{so} offen offset:{1024*q} sc1")
        if opt.xy and half == 1: a("    s_waitcnt lgkmcnt(0)")
    stamp(a, 3)
    a("    s_barrier          ; c0\n    s_barrier          ; c1\n    s_waitcnt vmcnt(0)")
    stamp(a, 4)
    a(f"""    s_mov_b64 exec, 1
    ds_add_rtn_u32 v13, v12, v10
    s_mov_b64 exec, -1
    s_waitcnt lgkmcnt(0)
    v_readfirstlane_b32 s36, v13
    s_cmp_eq_u32 s36, 3
    s_cbranch_scc0 {L}_wait2
    s_mov_b64 exec, 1
    buffer_store_dword v10, v11, s[60:63], s45 offen sc1
    s_mov_b64 exec, 0xff""")
    if opt.pp & 2:
        ppoll(a, f"{L}_rp", lambda r: f"    buffer_load_dword v{r}, v8, s[60:63], s46 offen sc1", "s_cmp_eq_u64 vcc, exec", (73, 74, 75))
    else:
        a(f"""{L}_poll2:
    buffer_load_dword v9, v8, s[60:63], s46 offen sc1
    s_waitcnt vmcnt(0)
    v_cmp_eq_u32 vcc, 1, v9
    s_cmp_eq_u64 vcc, exec
    s_cbranch_scc1 {L}_seen2
    s_sleep {opt.psleep}
    s_branch {L}_poll2
{L}_seen2:""")
    a(f"""    ds_write_b32 v12, v10 offset:4
    s_mov_b64 exec, -1""")
    issueB2(); issueB2()
    a(f"    s_branch {L}_go2\n{L}_wait2:")
    issueB2(); issueB2()
    a(f"""{L}_spin2:
    s_sleep 1
    ds_read_b32 v13, v12 offset:4
    s_waitcnt lgkmcnt(0)
    v_readfirstlane_b32 s36, v13
    s_cmp_eq_u32 s36, 1
    s_cbranch_scc0 {L}_spin2
{L}_go2:""")
    stamp(a, 5)
    def issueA2():
        a("    s_mov_b32 m0, s70\n    s_add_u32 s70, s70, 16384")
        for i in range(4): a(f"    buffer_load_dwordx4 v{LA}, s[12:15], s30 offen offset:{i*1024} {opt.a2f} lds")
        a("""    s_add_u32 s30, s30, 16384
    s_cmp_ge_u32 s70, s39
    s_cselect_b32 s70, s35, s70""")
        if opt.xy: a("    v_readlane_b32 s36, v72, s76\n    s_add_u32 s76, s76, 1\n    s_lshl_b32 s36, s36, 14\n    s_add_u32 s30, s36, s68")
        elif not opt.g2sync: a("    s_cmp_ge_u32 s30, s69\n    s_cselect_b32 s30, s68, s30")
        else: a("    s_cmp_eq_u32 s30, s76\n    s_cselect_b32 s30, s77, s30")
    issueA2(); issueA2()
    a("    s_waitcnt vmcnt(4)\n    s_barrier          ; c2")
    issueA2(); issueA2(); issueB2()
    if not opt.xy:
        a("    s_waitcnt vmcnt(12)\n    s_barrier          ; c3")
        issueA2(); issueB2()
        a(f"    s_branch {L}_nochk2\n{L}_chk2:\n{L}_nochk2:")
        k0 = 4
    else:
        for x in zst[:4]: a(x)
        a("    s_waitcnt vmcnt(16)\n    s_barrier          ; c3")
        for x in zst[4:]: a(x)
        issueA2(); issueB2()
        for k, cnt in ((4, 24), (5, 24), (6, 16), (7, 17), (8, 17), (9, 16)):
            a(f"    s_waitcnt vmcnt({cnt})\n    s_barrier          ; c{k}")
            if k == 6: a("    s_mov_b64 exec, 1\n    buffer_store_dword v10, v11, s[60:63], s45 offen offset:32 sc1\n    s_mov_b64 exec, -1")
            if k == 9: a("    buffer_load_dword v9, v8, s[60:63], s46 offen offset:32 sc1")
            issueA2(); issueB2()
        a(f"""    s_waitcnt vmcnt(8)
{L}_chk2:
    v_cmp_eq_u32 vcc, 1, v9
    s_cmp_eq_u64 vcc, -1
    s_cbranch_scc0 {L}_retry2
    s_barrier          ; c10""")
        issueA2(); issueB2()
        k0 = 11
    a(f"    s_mov_b32 s40, {k0}\n{L}_l2:\n    s_waitcnt vmcnt(16)\n    s_barrier")
    issueA2(); issueB2()
    a(f"    s_add_u32 s40, s40, 1\n    s_cmp_lt_u32 s40, {NK2-NS2}\n    s_cbranch_scc1 {L}_l2")
    for k in range(NK2 - NS2, NK2):
        left = max(0, NK2 - 1 - (k + 1))
        if k + 1 < NK2: a(f"    s_waitcnt vmcnt({left*8})")
        a("    s_barrier")
    stamp(a, 6)
    a(f"    s_branch {L}_epi2")
    ACC = 0; F0 = 112; F1 = 156; VA = 200; VB = 204; VBH = 235; SA = 212; ONE = 228
    wad = lambda ni: [213, 214, 215, 217, 218, 219, 221][ni]
    vbh = lambda ni: [235, 236, 237, 238, 239, 211, 232][ni]
    a(f"""{L}_cons:
    {f"s_setprio {opt.cprio}" if opt.cprio else ""}
    v_mov_b32 v240, v2               ; lane
    v_and_b32 v241, 15, v2           ; r
    v_lshrrev_b32 v242, 4, v2        ; kg
    v_lshlrev_b32 v243, 3, v242
    s_and_b32 s34, s33, 1            ; wm
    s_lshr_b32 s35, s33, 1           ; wn
    s_lshl_b32 s36, s34, 13          ; wm*64*128
    v_lshl_add_u32 v244, v241, 7, s36
    v_and_b32 v245, 7, v241          ; r7
    v_bfe_u32 v246, v240, 2, 2       ; rr
    v_lshl_add_u32 v247, v242, 3, v246   ; 8kg+rr
    v_and_b32 v248, 3, v240          ; cc
    v_lshlrev_b32 v248, 3, v248
    v_lshl_add_u32 v249, v247, 8, v248
    v_lshl_add_u32 v247, v247, 9, v248
    v_add_u32 v247, {BR1}, v247
    v_and_b32 v248, 1, v242
    v_lshl_or_b32 v246, v248, 2, v246    ; g
    s_lshl_b32 s37, s34, 2""")
    for mi in range(4):
        a(f"    s_add_u32 s38, s37, {mi}\n    v_xor_b32 v248, s38, v246\n    v_lshl_add_u32 v{VA+mi}, v248, 5, v249")
    a(f"""    s_mul_i32 s37, s35, 7
    s_lshl_b32 s38, s29, 1
    s_add_u32 s37, s37, s38          ; f0 = 2p + 7wn""")
    for ni in range(7):
        a(f"    s_add_u32 s38, s37, {ni}\n    v_xor_b32 v248, s38, v246\n    v_lshl_add_u32 v{VB+ni}, v248, 5, v247")
        a(f"    v_add_u32 v{vbh(ni)}, 0x10000, v{VB+ni}")
    for i in range(0, 112, 2): a(f"    v_mov_b64 {vr(ACC+i,2)}, 0")
    for i in range(4): a(f"    v_mov_b32 v{ONE+i}, 0x3f803f80")
    a(f"""    v_lshrrev_b32 v248, 2, v241
    v_and_b32 v249, 3, v240
    v_cmp_eq_u32 s[70:71], v248, v242
    v_cmp_eq_u32 s[64:65], 1, v249
    v_cmp_eq_u32 s[66:67], 2, v249
    v_cmp_eq_u32 s[68:69], 3, v249
    s_and_b32 s41, s27, 3
    s_add_u32 s41, s41, 1
    s_lshl_b32 s59, s26, 14
    s_xor_b32 s36, s35, 1
    s_lshl_b32 s36, s36, 13
    s_add_u32 s59, s59, s36
    s_lshl_b32 s36, s27, 9
    s_add_u32 s59, s59, s36
    s_lshl_b32 s36, s34, 8
    s_add_u32 s59, s59, s36
    s_mul_i32 s36, s35, 896
    s_add_u32 s36, s36, {TCB}
    v_lshl_add_u32 v233, v241, 3, s36
    s_lshl_b32 s36, s34, 9
    s_add_u32 s36, s36, {TRM}
    v_lshl_add_u32 v247, v241, 3, s36
    v_cmp_eq_u32 vcc, 0, v242
    v_mov_b32 v248, {TRM + 1024}
    v_mov_b32 v249, 128
    v_cndmask_b32 v252, v248, v247, vcc
    v_cndmask_b32 v249, 0, v249, vcc
    v_add_u32 v253, v252, v249
    v_add_u32 v254, v253, v249
    v_add_u32 v255, v254, v249
    v_lshrrev_b32 v246, 1, v242
    v_xor_b32 v246, v246, v245
    v_lshlrev_b32 v246, 4, v246          ; ((kg>>1)^r7)<<4
    v_and_b32 v247, 1, v242
    v_lshl_add_u32 v247, v247, 3, v244   ; m*128 + half*8""")
    for ni in range(7):
        a(f"""    s_add_u32 s38, s37, {ni}
    s_lshr_b32 s39, s38, 2
    s_lshl_b32 s39, s39, 14
    s_and_b32 s38, s38, 3
    s_lshl_b32 s38, s38, 5
    s_or_b32 s{76+ni if ni < 4 else 60+ni-4}, s38, s39""")
    a("    s_waitcnt lgkmcnt(0)")
    srd(a, 72, 4, 256 * 1024, off=PST_OFF)
    if opt.tagx:
        srd(a, 12, 4, 256 * 16384, off=XCH_OFF)
        a(f"""    v_lshlrev_b32 v248, 4, v240
    s_lshl_b32 s46, s2, 14
    s_lshl_b32 s36, s33, 12
    s_add_u32 s46, s46, s36
    s_xor_b32 s45, s46, {PX << 14:#x}""")
        for i in range(4): a(f"    v_mov_b32 v{F1+i}, -1")
        if opt.tagx == 2:
            for q in range(4): a(f"    buffer_store_dwordx4 {vr(F1,4)}, v248, s[12:15], s46 offen offset:{q*1024} sc1")
    stamp(a, 0)
    a("    s_barrier")
    if opt.tagx == 1:
        for q in range(4): a(f"    buffer_store_dwordx4 {vr(F1,4)}, v248, s[12:15], s46 offen offset:{q*1024} sc1")
    stamp(a, 1)
    CT = F0; MTR = F0 + 16
    def g1_tail(mf):
        stamp(a, 13)
        mf = [m for j, m in enumerate(mf) if (j & 3) < 2] + [m for j, m in enumerate(mf) if (j & 3) >= 2]
        fill = [f"    ds_read_b64 {vr(MTR+2*mi,2)}, v{252+mi}" for mi in range(4)]
        fill += [f"    ds_read_b64 {vr(CT+2*ni,2)}, v233 offset:{128*ni}" for ni in range(7)]
        fill += ["\n".join(f"    v_xad_u32 v{wad(ni)}, v246, s{76+ni if ni < 4 else 60+ni-4}, v247" for ni in q) for q in ((0, 1), (2, 3), (4, 5), (6,))]
        if opt.b2tail:
            fill += [f"""    s_lshl_b32 s36, s55, 8
    s_lshl_b32 s38, s35, 7
    s_add_u32 s36, s36, s38
    s_mov_b32 s16, s50
    s_mov_b32 s17, s51
    s_mov_b32 s18, 2048
    s_mov_b32 s19, 0x00020000
""" + "\n".join(f"    buffer_load_dwordx2 {vr(232 + 2*ni, 2)}, v243, s[16:19], s36 offen offset:{32*ni}" for ni in range(4))]
        if not opt.tail2:
            for j, m in enumerate(mf):
                a(m)
                if j < len(fill): a(fill[j])
        def corr(ni, mi):
            c = ACC + 4 * (mi * 7 + ni)
            a(f"    v_mfma_f32_16x16x16_bf16 {vr(c,4)}, {vr(CT+2*ni,2)}, {vr(MTR+2*mi,2)}, {vr(c,4)}")
        def act(ni, mi):
            c = ACC + 4 * (mi * 7 + ni)
            for x in range(4): a(f"    v_max_f32 v{c+x}, 0, v{c+x}")
            a(f"    v_pk_mul_f32 {vr(c,2)}, {vr(c,2)}, {vr(c,2)}\n    v_pk_mul_f32 {vr(c+2,2)}, {vr(c+2,2)}, {vr(c+2,2)}")
            a(f"    v_cvt_pk_bf16_f32 v{c}, v{c}, v{c+1}\n    v_cvt_pk_bf16_f32 v{c+1}, v{c+2}, v{c+3}")
            a(f"    ds_write_b64 v{wad(ni)}, {vr(c,2)} offset:{mi*2048}")
        first = [(ni, mi) for ni in range(7) for mi in range(2)]; second = [(ni, mi) for ni in range(7) for mi in range(2, 4)]
        if opt.tail2:
            for j, m in enumerate(mf[:16]):
                a(m)
                if j < len(fill): a(fill[j])
            a("    s_waitcnt lgkmcnt(0)")
            for x in first[:4]: corr(*x)
            u = Asm(); save = a.lines; a.lines = u.lines
            for x in first[4:]: corr(*x)
            for m in mf[16:]: a(m)
            for x in second: corr(*x)
            a.lines = save
            rest = u.lines
            for m in rest[:4]: a(m)
            rest = rest[4:]
            for j, x in enumerate(first):
                n = 2 if j < 10 else 3
                for y in rest[:n]: a(y)
                rest = rest[n:]
                act(*x)
            assert not rest
        else:
            a("    s_waitcnt lgkmcnt(0)")
            for x in first[:6]: corr(*x)
            a("    s_nop 1")
            rest = first[6:] + second
            for j, x in enumerate(first):
                for y in rest[2*j: 2*j + 2]: corr(*y)
                act(*x)
        stamp(a, 14)
        a("    s_waitcnt lgkmcnt(0)\n    s_barrier                            ; E0")
        stamp(a, 15)
        for x in second: act(*x)
    def rdA1(F, slot, kh):
        return [f"    ds_read_b64_tr_b16 {vr(F + 4*mi + 2*t, 2)}, v{VA+mi} offset:{slot*16384 + kh*8192 + t*1024}" for mi in range(4) for t in range(2)]
    def rdB1(F, slot, kh, ni):
        reg = VB + ni if slot < 2 else vbh(ni)
        return [f"    ds_read_b64_tr_b16 {vr(F + 16 + 4*ni + 2*t, 2)}, v{reg} offset:{(slot&1)*32768 + kh*16384 + t*2048}" for t in range(2)]
    loop_unrolled(a, L + "1", 4, 7, NK1, NS1, ACC, F0, F1, rdA1, rdB1, 40, opt.ga_bar, g1_tail,
                  hookA=lambda u: f"    s_cmp_eq_u32 s40, s41\n    s_cbranch_scc1 {L}_xa{u}\n{L}_xar{u}:",
                  hookB=lambda u: f"    s_cmp_eq_u32 s40, s41\n    s_cbranch_scc1 {L}_xb")
    a("    s_waitcnt lgkmcnt(0)")
    stamp(a, 2)
    a("    s_barrier                            ; E1")
    if not opt.b2tail:
        a(f"""    s_lshl_b32 s36, s55, 8
    s_lshl_b32 s38, s35, 7
    s_add_u32 s36, s36, s38""")
        srd(a, 16, 50, 2048)
        for ni in range(4): a(f"    buffer_load_dwordx2 {vr(232 + 2*ni, 2)}, v243, s[16:19], s36 offen offset:{32*ni}")
    ACC = 0; G0 = 64; G1_ = 96; VA2 = 128; VB2 = 132; VBI = 232; RSD = 140
    a(f"""    s_lshl_b32 s36, s34, 13
    s_lshl_b32 s37, s54, 12
    s_add_u32 s36, s36, s37
    v_lshl_add_u32 v204, v241, 7, s36
    v_xor_b32 v206, v242, v245
    v_lshl_add_u32 v{VA2}, v206, 4, v204
    v_xor_b32 v{VA2+1}, 64, v{VA2}
    v_xor_b32 v{VA2+2}, 4096, v{VA2}
    v_xor_b32 v{VA2+3}, 4096, v{VA2+1}
    v_bfe_u32 v206, v240, 2, 2           ; rr
    v_lshl_add_u32 v207, v242, 3, v206
    v_lshlrev_b32 v207, 8, v207
    v_and_b32 v208, 3, v240
    v_lshl_add_u32 v207, v208, 3, v207
    v_add_u32 v207, {B2}, v207
    v_and_b32 v208, 1, v242
    v_lshl_or_b32 v206, v208, 2, v206    ; g
    s_lshl_b32 s37, s35, 2""")
    for ni in range(4):
        a(f"    s_add_u32 s38, s37, {ni}\n    v_xor_b32 v208, s38, v206\n    v_lshl_add_u32 v{VB2+ni}, v208, 5, v207")
    for i in range(0, 64, 2): a(f"    v_mov_b64 {vr(ACC+i,2)}, 0")
    stamp(a, 5)
    def g2_tail(mf):
        send = [m for j, m in enumerate(mf) if (j & 3) >= 2]; keep = [m for j, m in enumerate(mf) if (j & 3) < 2]
        for m in send: a(m)
        if opt.tagx:
            a(keep[0]); a("    v_lshlrev_b32 v203, 4, v240\n    s_mov_b32 s36, s46"); a(keep[1]); a("    s_nop 3")
        else:
            srd(a, 12, 4, 256 * 16384, off=XCH_OFF)
            a(keep[0])
            a(f"""    v_lshlrev_b32 v203, 4, v240
    s_lshl_b32 s36, s2, 14
    s_lshl_b32 s37, s33, 12
    s_add_u32 s36, s36, s37
    s_xor_b32 s45, s36, {PX << 14:#x}""")
            a(keep[1])
        for q in range(4):
            for h in range(2):
                c = ACC + 32 + 8 * q + 4 * h
                a(f"    v_cvt_pk_bf16_f32 v{G0 + 4*q + 2*h}, v{c}, v{c+1}\n    v_cvt_pk_bf16_f32 v{G0 + 4*q + 2*h + 1}, v{c+2}, v{c+3}")
            if opt.tagx:
                for d in range(4): a(f"    v_min_u32 v{G0+4*q+d}, -2, v{G0+4*q+d}")
            a(f"    buffer_store_dwordx4 {vr(G0+4*q,4)}, v203, s[12:15], s36 offen offset:{q*1024} sc1")
            for m in keep[2 + 2*q: 4 + 2*q]: a(m)
    def rdA2(F, slot, kh):
        return [f"    ds_read_b128 {vr(F + 4*mi, 4)}, v{VA2 + 2*(mi>>1) + kh} offset:{slot*16384 + (mi&1)*2048}" for mi in range(4)]
    def rdB2(F, slot, kh, ni):
        return [f"    ds_read_b64_tr_b16 {vr(F + 16 + 4*ni + 2*t, 2)}, v{VB2+ni} offset:{slot*16384 + kh*8192 + t*1024}" for t in range(2)]
    loop_unrolled(a, L + "2", 4, 4, NK2, NS2, ACC, G0, G1_, rdA2, rdB2, 40, opt.g2_bar, g2_tail, entry="s29")
    stamp(a, 6)
    srd(a, 60, 4, FLG_SZ, off=FLG_OFF)
    final_addr()
    a(f"""    v_bfe_u32 v206, v240, 2, 2           ; rr
    v_lshl_add_u32 v206, v242, 2, v206
    v_bfe_u32 v207, v206, 1, 2
    s_lshl_b32 s38, s34, 1
    v_xor_b32 v207, s38, v207
    v_lshlrev_b32 v207, 5, v207
    v_lshl_add_u32 v207, v206, 7, v207
    v_and_b32 v208, 3, v240
    v_lshl_add_u32 v207, v208, 3, v207
    s_lshl_b32 s38, s35, 13
    s_add_u32 s38, s38, {RES}
    v_add_u32 v207, s38, v207
    v_xor_b32 v208, 32, v207""")
    for j in range(8): a(f"    ds_read_b64_tr_b16 {vr(RSD+2*j,2)}, v{207 + (j>>2)} offset:{2048*(j&3)}")
    a(f"""    s_lshl_b32 s38, s34, 8
    s_lshl_b32 s39, s54, 7
    s_add_u32 s38, s38, s39
    s_add_u32 s38, s38, {TST}
    v_lshl_add_u32 v206, v241, 2, s38
    ds_read_b32 v192, v206
    ds_read_b32 v194, v206 offset:64""")
    a(f"""    s_lshl_b32 s36, s2, 9
    s_lshl_b32 s37, s33, 7
    s_add_u32 s36, s36, s37
    s_xor_b32 s37, s36, {PX << 9:#x}
    v_mov_b32 v209, 1
    v_mov_b32 v210, 0
    v_lshrrev_b32 v206, 1, v242
    v_xor_b32 v206, v206, v241           ; (kg>>1) ^ r
    s_lshl_b32 s38, s34, 13              ; 32wm*256
    v_lshl_add_u32 v207, v241, 8, s38
    v_and_b32 v208, 1, v242
    v_lshl_add_u32 v207, v208, 3, v207
    s_lshl_b32 s39, s35, 3""")
    for ni in range(4):
        a(f"    s_add_u32 s38, s39, {2*ni}\n    v_xor_b32 v208, s38, v206\n    v_lshl_add_u32 v{VB2+ni}, v208, 4, v207")
    if opt.tagx:
        a("    s_waitcnt vmcnt(4) lgkmcnt(0)")
    else:
        a(f"""    s_mov_b64 exec, 1
    s_waitcnt vmcnt(0)
    buffer_store_dword v209, v210, s[60:63], s36 offen sc1
    buffer_load_dword v211, v210, s[60:63], s37 offen sc1
    s_mov_b64 exec, -1
    s_waitcnt lgkmcnt(0)""")
    for ni in range(4):
        unpack(a, 216 + 4 * ni, VBI + 2 * ni); unpack(a, 218 + 4 * ni, VBI + 2 * ni + 1)
    for j in range(8):
        c = 160 + 4 * j; b = 216 + 4 * (j & 3)
        unpack(a, c, RSD + 2 * j); unpack(a, c + 2, RSD + 2 * j + 1)
        a(f"    v_pk_add_f32 {vr(c,2)}, {vr(c,2)}, {vr(b,2)}\n    v_pk_add_f32 {vr(c+2,2)}, {vr(c+2,2)}, {vr(b+2,2)}")
    if opt.tagx:
        a(f"{L}_poll:")
        for q in range(4): a(f"    buffer_load_dwordx4 {vr(G1_+4*q,4)}, v203, s[12:15], s45 offen offset:{q*1024} sc1")
        a(f"    s_waitcnt vmcnt(0)\n    v_max_u32 v212, v{G1_}, v{G1_+1}")
        for i in range(2, 16, 2): a(f"    v_max3_u32 v212, v212, v{G1_+i}, v{G1_+i+1}")
        a(f"    v_cmp_eq_u32 vcc, -1, v212\n    s_cmp_lg_u64 vcc, 0\n    s_cbranch_scc1 {L}_poll")
        stamp(a, 7)
    elif opt.pp & 4:
        a("    s_mov_b64 exec, 1")
        ppoll(a, f"{L}_xp", lambda r: f"    buffer_load_dword v{r}, v210, s[60:63], s37 offen sc1", "s_cmp_eq_u64 vcc, exec", (211, 196, 197), first_issued=True)
        a("    s_mov_b64 exec, -1")
        stamp(a, 7)
        for q in range(4):
            a(f"    buffer_load_dwordx4 {vr(G1_+4*q,4)}, v203, s[12:15], s45 offen offset:{q*1024} sc1")
    else:
        a(f"""    s_mov_b64 exec, 1
{L}_poll:
    s_waitcnt vmcnt(0)
    v_readfirstlane_b32 s38, v211
    s_cmp_eq_u32 s38, 1
    s_cbranch_scc1 {L}_seen
    buffer_load_dword v211, v210, s[60:63], s37 offen sc1
    s_branch {L}_poll
{L}_seen:
    s_mov_b64 exec, -1""")
        stamp(a, 7)
        for q in range(4):
            a(f"    buffer_load_dwordx4 {vr(G1_+4*q,4)}, v203, s[12:15], s45 offen offset:{q*1024} sc1")
    for j in range(8):
        mi, ni = j >> 2, j & 3
        c = ACC + 4 * j; p = G1_ + 2 * j
        if j % 2 == 0 and not opt.tagx: a(f"    s_waitcnt vmcnt({3 - j//2})")
        unpack(a, 212, p); unpack(a, 214, p + 1)
        a(f"""    v_pk_add_f32 {vr(c,2)}, {vr(c,2)}, v[212:213]
    v_pk_add_f32 {vr(c+2,2)}, {vr(c+2,2)}, v[214:215]
    v_pk_fma_f32 {vr(c,2)}, {vr(c,2)}, {vr(192+2*mi,2)}, {vr(160+4*j,2)} op_sel_hi:[1,0,1]
    v_pk_fma_f32 {vr(c+2,2)}, {vr(c+2,2)}, {vr(192+2*mi,2)}, {vr(162+4*j,2)} op_sel_hi:[1,0,1]
    v_cvt_pk_bf16_f32 v{c}, v{c}, v{c+1}
    v_cvt_pk_bf16_f32 v{c+1}, v{c+2}, v{c+3}
    ds_write_b64 v{VB2+ni}, {vr(c,2)} offset:{mi*4096}""")
    a("    s_waitcnt lgkmcnt(0)")
    stamp(a, 8)
    a(f"""{L}_epi2:
    v_mbcnt_lo_u32_b32 v2, -1, 0
    v_mbcnt_hi_u32_b32 v2, -1, v2
    v_lshrrev_b32 v3, 4, v2
    v_and_b32 v5, 15, v2
    v_lshlrev_b32 v6, 11, v3
    v_lshl_add_u32 v6, v5, 4, v6
    s_lshl_b32 s36, s33, 2
    v_add_u32 v3, s36, v3                ; lr (j=0)
    v_xor_b32 v4, v3, v2
    v_and_b32 v4, 15, v4
    v_lshlrev_b32 v4, 4, v4
    v_lshl_add_u32 v3, v3, 8, v4""")
    srd(a, 12, 52, MB4)
    a(f"""    s_barrier                            ; X3
    ds_read_b128 v[16:19], v3
    ds_read_b128 v[20:23], v3 offset:8192
    s_waitcnt lgkmcnt(1)
    buffer_store_dwordx4 v[16:19], v6, s[12:15], s43 offen {opt.outf}
    s_waitcnt lgkmcnt(0)
    buffer_store_dwordx4 v[20:23], v6, s[12:15], s44 offen {opt.outf}""")
    stamp(a, 9)
    if opt.stamps: a("    s_waitcnt vmcnt(0)")
    stamp(a, 10)
    stamp_end(a, kidx, 4, 33)
    a(f"{mega['end'] if mega else L + '_end'}:\n    s_endpgm")
    F0 = 112; F1 = 156
    def extra(F, first, tag):
        a(f"    s_cmp_eq_u32 s35, 0\n    s_cbranch_scc0 {L}_x1{tag}")
        for mi in range(4): a(f"    v_mfma_f32_16x16x32_bf16 {vr(SA+4*mi,4)}, {vr(F+4*mi,4)}, {vr(F+4*mi,4)}, {'0' if first else vr(SA+4*mi,4)}")
        a(f"    s_branch {L}_x2{tag}\n{L}_x1{tag}:")
        for mi in range(4): a(f"    v_mfma_f32_16x16x32_bf16 {vr(SA+4*mi,4)}, {vr(ONE,4)}, {vr(F+4*mi,4)}, {'0' if first else vr(SA+4*mi,4)}")
        a(f"{L}_x2{tag}:")
    for u in range(3):
        a(f"{L}_xa{u}:"); extra(F0, True, f"a{u}"); a(f"    s_branch {L}_xar{u}")
    a(f"{L}_xb:"); extra(F1, False, "b")
    a("    s_nop 7")
    for mi in range(4):
        c = SA + 4 * mi
        a(f"""    v_cndmask_b32 v{c}, v{c}, v{c+1}, s[64:65]
    v_cndmask_b32 v{c}, v{c}, v{c+2}, s[66:67]
    v_cndmask_b32 v{c}, v{c}, v{c+3}, s[68:69]
    v_cndmask_b32 v{c}, 0, v{c}, s[70:71]""")
    for sw in ("v_permlane16_swap_b32", "v_permlane32_swap_b32"):
        for mi in range(4): a(f"    v_mov_b32 v{SA+4*mi+1}, v{SA+4*mi}")
        for mi in range(4): a(f"    {sw} v{SA+4*mi+1}, v{SA+4*mi}")
        for mi in range(4): a(f"    v_add_f32 v{SA+4*mi}, v{SA+4*mi}, v{SA+4*mi+1}")
    a(f"""    v_cmp_eq_u32 vcc, 1, v242
    v_cmp_eq_u32 s[64:65], 2, v242
    v_cmp_eq_u32 s[66:67], 3, v242
    v_cndmask_b32 v{SA}, v{SA}, v{SA+4}, vcc
    v_cndmask_b32 v{SA}, v{SA}, v{SA+8}, s[64:65]
    v_cndmask_b32 v{SA}, v{SA}, v{SA+12}, s[66:67]
    v_lshlrev_b32 v{SA+1}, 2, v240
    v_min_u32 v{SA}, -2, v{SA}
    {"s_waitcnt vmcnt(0)" if opt.tagx in (1, 2) else ""}
    buffer_store_dword v{SA}, v{SA+1}, s[72:75], s59 offen sc1
    s_cmp_eq_u32 s40, 2
    s_cbranch_scc1 {L}1_s2
    s_cmp_eq_u32 s40, 3
    s_cbranch_scc1 {L}1_s0
    s_branch {L}1_s1
{L}_retry2:
    buffer_load_dword v9, v8, s[60:63], s46 offen offset:32 sc1
    s_waitcnt vmcnt(0)
    s_branch {L}_chk2
{L}_retry:
    s_sleep 2""")
    gather_ps()
    if mega: gather_cs()
    a(f"    s_waitcnt vmcnt(0)\n    s_branch {L}_chk")
    return (name, 256, 512, 163840), (name, 256, 96)

gen.KGEN["ga"] = gen_ga
gen.KGEN["p2"] = gen_p2
gen.KGEN["c2"] = gen_c2
```

```python
import sys
from asmlib import *
import gen, gen2, gen3, gen5
from gen import opt, stamp, stamp_begin, stamp_end, vr, wave_sum, MB4, KVR_OFF, FLG_OFF, XCH_OFF
from gen3 import XT_OFF, HT_OFF, ST1_OFF, CS_OFF, PST_OFF, unpack, rnd

KVF_OFF = 0x0CC0000
XF_OFF = KVF_OFF + 4
SF_OFF = KVF_OFF + 0x8000
GF_OFF = KVF_OFF + 0x10000
HF_OFF = KVF_OFF + 0x18000
opt.xwait = None
opt.gb = False
opt.flate = False
opt.scode = 0
opt.biaspf = True
opt.slate = 0
opt.codepf0 = 0
opt.twopass = False
opt.midit = 2
opt.dot2 = False
opt.fixsig = True
opt.xfirst = False
opt.kvpre = False
opt.csdec = True
opt.ntf = 'nt'
opt.ntf2 = 'nt'
opt.kvprio = 0
opt.xearly = False
opt.tlb3 = 0
opt.tlb2 = 0
opt.flagl = True
opt.kvf = 'sc1'
opt.ldf = 'sc1'
opt.early2 = 1
opt.gate = 4
opt.xsleep = 4
opt.w1th = 4

def gen_pc(a, kidx, mega=False):
    name = KN + "_kernel" if mega else "f_kernel"; L = "F"
    MF = "sc1" if mega else ""
    CS = 4160; RO = 4 * CS; WSZ = 21248
    IS = 1040; KT = 4 * WSZ; VT = KT + 17 * IS; XS = KT + 33 * IS + 112; STG = XS + 16384; WRD = STG + 16 * IS
    assert XS % 16 == 0
    kernel_head(a, name)
    a(f"""    s_load_dwordx4 s[4:7], s[0:1], {ARG['k']}      ; k, v
    s_load_dwordx4 s[56:59], s[0:1], {ARG['dbg']}
    s_load_dwordx2 s[42:43], s[0:1], {ARG['q']}
    s_cmp_ge_u32 s2, 256
    s_cbranch_scc1 {L}_end""")
    stamp_begin(a)
    a(f"""    v_readfirstlane_b32 s33, v0
    s_and_b32 s24, s2, 7
    s_lshr_b32 s25, s2, 3
    v_bfe_u32 v5, v0, 4, 4
    v_and_b32 v6, 15, v0
    v_lshlrev_b32 v5, 11, v5
    v_lshl_add_u32 v5, v6, 4, v5
    s_lshl_b32 s62, s24, 5
    s_add_u32 s62, s62, s25
    v_lshrrev_b32 v4, 3, v0
    v_and_b32 v3, 7, v0              ; cg
    v_lshlrev_b32 v16, 15, v4
    v_lshl_add_u32 v16, v3, 4, v16
    s_lshl_b32 s27, s62, 7
    s_add_u32 s27, s27, {KVF_OFF:#x}
    v_add_u32 v16, s27, v16
    v_mov_b64 v[12:13], 0
    v_mov_b64 v[14:15], 0
    s_lshr_b32 s33, s33, 6           ; wave
    s_and_b32 s34, s33, 3            ; w
    s_lshl_b32 s26, s25, 17
    s_lshl_b32 s27, s24, 8
    s_add_u32 s26, s26, s27
    s_mul_i32 s35, s34, {IS}
    s_mov_b32 s14, 0x400000
    s_mov_b32 s15, 0x00020000
    s_mov_b32 s44, 0x8000
    v_cmp_gt_u32 vcc, {40 if mega else 24}, v0
    s_cmp_ge_u32 s33, 4
    s_cselect_b32 s27, {VT}, s44
    s_cselect_b32 s28, 0, {KT + IS - 0x8000}
    s_add_u32 s27, s27, s28
    s_add_u32 m0, s35, s27
    s_cmp_ge_u32 s33, 4
    s_waitcnt lgkmcnt(0)
    s_cselect_b64 s[12:13], s[6:7], s[4:5]
    s_and_saveexec_b64 s[30:31], vcc
    s_cbranch_execz {L}_nocl
    global_store_dwordx4 v16, v[12:15], s[58:59] sc1
{L}_nocl:
    s_mov_b64 exec, s[30:31]
    s_mov_b32 s27, s26""")
    for j in range(4):
        a(f"    buffer_load_dwordx4 v5, s[12:15], s27 offen {opt.ntf} lds")
        if j < 3: a(f"    s_add_u32 m0, m0, {4*IS}\n    s_add_u32 s27, s27, s44")
    a(f"""    s_load_dwordx4 s[8:11], s[0:1], {ARG['shift']}
    s_load_dwordx2 s[60:61], s[0:1], {ARG['ssmD']}
    v_and_b32 v2, 63, v0
    v_and_b32 v4, 7, v4              ; rg
    s_lshl_b32 s62, s62, 2
    s_add_u32 s63, s62, s34
    s_mul_i32 s64, s34, {WSZ}        ; WB
    s_cmp_ge_u32 s33, 4
    s_cbranch_scc1 {L}_help""")
    so = ["0", "s44", "s45", "s46"]
    def tail_addr(rev, off, ldsb):
        a(f"""    {"v_xor_b32 v13, 7, v3" if rev else "v_mov_b32 v13, v3"}
    v_lshlrev_b32 v13, 4, v13
    v_lshl_add_u32 v13, v4, 14, v13
    s_lshl_b32 s47, s24, 19
    s_lshl_b32 s48, s34, 17
    s_add_u32 s47, s47, s48              ; (cb*128+w*32)*4096
    s_lshl_b32 s48, s25, 7""")
        if rev: a(f"    s_sub_u32 s48, {3968 + off}, s48")
        else: a(f"    s_add_u32 s48, s48, {off:#x}")
        a("    s_add_u32 s47, s47, s48")
    def out_store(R, fl):
        a(f"    buffer_store_dwordx4 {vr(R,4)}, v13, s[36:39], s47 offen {fl}\n    s_add_u32 s47, s47, 4096")
    def count_in(word, tag):
        a(f"""    v_mov_b32 v10, {WRD}
    v_mov_b32 v11, 1
    v_mov_b32 v12, 0
    s_mov_b64 exec, 1
    ds_add_rtn_u32 v13, v10, v11 offset:{word}
    s_mov_b64 exec, -1
    s_waitcnt lgkmcnt(0)
    v_readfirstlane_b32 s35, v13
    s_cmp_eq_u32 s35, 3""")
    def spin(word, val, tag, r=13):
        a(f"""{L}_sp{tag}:
    ds_read_b32 v{r}, v10 offset:{word}
    s_waitcnt lgkmcnt(0)
    v_readfirstlane_b32 s35, v{r}
    s_cmp_eq_u32 s35, {val}
    s_cbranch_scc1 {L}_sq{tag}
    s_sleep 1
    s_branch {L}_sp{tag}
{L}_sq{tag}:""")
    def hf_count(tag, word, off):
        a(f"""    v_mov_b32 v12, 1
    v_mov_b32 v14, 0
    s_mov_b64 exec, 1
    ds_add_rtn_u32 v13, v10, v12 offset:{word}
    s_waitcnt lgkmcnt(0)
    v_readfirstlane_b32 s76, v13
    s_cmp_eq_u32 s76, 7
    s_cbranch_scc0 {L}_nohf{tag}
    s_lshl_b32 s77, s62, 5
    s_add_u32 s77, s77, {off:#x}
    buffer_store_dword v12, v14, s[36:39], s77 offen sc1
{L}_nohf{tag}:
    s_mov_b64 exec, -1""")
    TWO = mega and opt.twopass
    def reg_issue():
        a("    buffer_load_dwordx2 v[36:37], v39, s[52:55], 0 offen sc1")
    def reg_check(tag):
        a(f"""    s_getreg_b32 s65, hwreg(HW_REG_XCC_ID)
    s_and_b32 s65, s65, 7
    s_lshl_b32 s65, s65, 3
    s_lshl_b64 s[66:67], 32, s65
{L}_rg{tag}:
    v_sad_u8 v38, v36, 0, 0
    v_sad_u8 v38, v37, 0, v38
    v_cmp_eq_u32 vcc, 32, v38
    s_cmp_eq_u64 vcc, -1
    s_cbranch_scc1 {L}_rk{tag}
    s_sleep 24
    buffer_load_dwordx2 v[36:37], v39, s[52:55], 0 offen sc1
    s_waitcnt vmcnt(0)
    s_branch {L}_rg{tag}
{L}_rk{tag}:
    v_readlane_b32 s68, v36, s24
    v_readlane_b32 s69, v37, s24
    s_cmp_eq_u64 s[68:69], s[66:67]
    s_cselect_b32 s65, 1, 0""")
    def signal_poll(off, tag, poll=True, known=False):
        if not known: a(f"""{L}_md{tag}:
    ds_read_b32 v13, v10 offset:28
    s_waitcnt lgkmcnt(0)
    v_readfirstlane_b32 s65, v13
    s_cmp_eq_u32 s65, 0
    s_cbranch_scc1 {L}_md{tag}
    s_sub_u32 s65, s65, 1""")
        a(f"""    s_lshl_b32 s27, s62, 5
    s_and_b32 s28, s27, 0xfffff000
    s_add_u32 s27, s27, {off:#x}
    s_add_u32 s28, s28, {off:#x}
    v_and_b32 v14, 31, v2
    v_lshlrev_b32 v14, 7, v14
    s_mov_b64 exec, 1
    s_cmp_eq_u32 s65, {1 if opt.flagl else 7}
    s_cbranch_scc1 {L}_sl{tag}
    {"" if (opt.kvf == "sc1" or tag == "x") else "buffer_wbl2 sc1"}
    {"" if (opt.kvf == "sc1" or tag == "x") else "s_waitcnt vmcnt(0)"}
    buffer_store_dword v11, v12, s[36:39], s27 offen sc1
    s_branch {L}_pp{tag}
{L}_sl{tag}:
    buffer_store_dword v11, v12, s[36:39], s27 offen
{L}_pp{tag}:
    s_mov_b64 exec, -1""")
        if not poll:
            a(f"""    s_cmp_lg_u32 s25, 0
    s_cbranch_scc1 {L}_pl{tag}
    s_add_u32 s27, s28, {SF_OFF - XF_OFF:#x}
{L}_sfp:
    buffer_load_dword v15, v14, s[36:39], s27 offen sc1
    s_waitcnt vmcnt(0)
    v_cmp_eq_u32 vcc, 1, v15
    s_cmp_eq_u64 vcc, -1
    s_cbranch_scc0 {L}_sfp
    s_lshl_b32 s27, s24, 12
    s_add_u32 s27, s27, {GF_OFF:#x}
    s_mov_b64 exec, 1
    buffer_store_dword v11, v12, s[36:39], s27 offen sc1
    s_mov_b64 exec, -1""")
        a(f"""{L}_pl{tag}:
    buffer_load_dword v15, v14, s[36:39], s28 offen sc1
    s_waitcnt vmcnt(0)
    v_cmp_eq_u32 vcc, 1, v15
    s_cmp_eq_u64 vcc, -1
    s_cbranch_scc0 {L}_pl{tag}""")
    a(f"""    v_and_b32 v6, 0x1fff, v5
    v_add_u32 v6, s26, v6
    v_subrev_u32 v6, 8192, v6
    s_mov_b32 m0, {KT}
    s_nop 0
    buffer_load_dwordx4 v6, s[12:15], 0 offen {opt.ntf} lds
    s_waitcnt lgkmcnt(0)""")
    KR = 208; VR = 40; WR = 56
    srd(a, 20, 8, 8192)
    a(f"""    s_lshl_b32 s27, s24, 10
    s_lshl_b32 s28, s34, 8
    s_add_u32 s27, s27, s28
    v_lshlrev_b32 v8, 5, v4
    buffer_load_dwordx4 {vr(WR,4)}, v8, s[20:23], s27 offen
    buffer_load_dwordx4 {vr(WR+4,4)}, v8, s[20:23], s27 offen offset:16
    s_lshr_b32 s28, s63, 1
    s_lshl_b32 s28, s28, 2
    s_load_dword s29, s[60:61], s28
    v_mul_u32_u24 v7, {2*IS}, v3
    v_lshl_add_u32 v7, v4, 3, v7
    s_lshl_b32 s27, s34, 6
    s_add_u32 s27, s27, {KT}
    v_add_u32 v7, s27, v7
    v_mov_b32 v10, {WRD}
    v_mov_b32 v16, 0
    v_mov_b32 v17, 0
    v_mov_b32 v18, 0
    v_mov_b32 v19, 0
    ds_write_b128 v10, v[16:19]
    ds_write_b128 v10, v[16:19] offset:16
    ds_write_b128 v10, v[16:19] offset:32
    ds_write_b128 v10, v[16:19] offset:48
    s_add_u32 s49, s64, {RO}""")
    srd(a, 36, 58, 64 << 20); srd(a, 52, 56, 256)
    a("    v_lshlrev_b32 v39, 5, v3")
    tail_addr(True, KVR_OFF, "s49")
    PRE = 1 if opt.kvpre else 0
    if PRE:
        a("    v_and_b32 v34, 31, v2\n    v_lshlrev_b32 v34, 12, v34\n    buffer_load_dword v35, v34, s[36:39], s47 offen")
    WF = 64; KF = 80; VF = 124; OF = 156; PK = 190
    stamp(a, 0)
    a(f"""    s_waitcnt lgkmcnt(0)
    s_barrier""")
    if opt.scode:
        a(f"""    s_getpc_b64 s[66:67]
{L}_pc1:
    s_lshl_b32 s30, s25, 2
    s_add_u32 s30, s30, s34
    s_lshl_b32 s30, s30, 6""")
        for j in range(opt.scode): a(f"    s_add_u32 s31, s30, {8192*j}\n    s_min_u32 s31, s31, TEXT_END - {L}_pc1 - 4\n    s_load_dword s79, s[66:67], s31")
    a(f"""    s_cmp_lg_u32 s33, 0
    s_cbranch_scc1 {L}_noreg
    s_getreg_b32 s65, hwreg(HW_REG_XCC_ID)
    s_and_b32 s65, s65, 7
    s_lshl_b32 s65, s65, 3
    s_lshl_b64 s[66:67], 1, s65
    v_mov_b32 v16, s66
    v_mov_b32 v17, s67
    v_mov_b32 v12, 0
    s_lshl_b32 s30, s24, 5
    s_mov_b64 exec, 1
    s_waitcnt vmcnt({7 + PRE})""")
    stamp(a, 9)
    a(f"""    buffer_atomic_add_x2 v[16:17], v12, s[52:55], s30 offen sc1
    v_mov_b32 v11, 1
    ds_write_b32 v10, v11 offset:44
    s_mov_b64 exec, -1
    s_waitcnt vmcnt({1 + PRE})
    s_branch {L}_kvl
{L}_noreg:
    s_waitcnt vmcnt({PRE})
{L}_kvl:""")
    a("""    s_nop 0
    v_mov_b32 v11, 1
    s_mov_b64 exec, 1
    ds_add_u32 v10, v11 offset:32
    s_mov_b64 exec, -1""")
    spin(32, 8, "k", 12)
    if opt.kvprio: a(f"    s_setprio {opt.kvprio}")
    stamp(a, 1)
    kro = lambda jj: ((1 + jj) >> 2) * IS + ((1 + jj) & 3) * 256
    order = [("k", 0), ("k", 1), ("k", 2)] + [x for j in range(8) for x in (("k", 3 + j), ("v", j))]
    def rd(x):
        if x[0] == "k": a(f"    ds_read_b64 {vr(KR + 2*x[1], 2)}, v7 offset:{kro(x[1])}")
        else: a(f"    ds_read_b64 {vr(VR + 2*x[1], 2)}, v7 offset:{17*IS + (x[1] >> 2)*IS + (x[1] & 3)*256}")
    for x in order[:13]: rd(x)
    for c in range(4):
        for j in range(4):
            src = WR + 2 * c + (j >> 1); d = WF + (c >> 1) * 8 + j * 2 + (c & 1)
            a(f"    v_lshlrev_b32 v{d}, 16, v{src}" if j % 2 == 0 else f"    v_and_b32 v{d}, 0xffff0000, v{src}")
    def unp2(dst, src):
        for p in range(2): unpack(a, dst + 2 * p, src + p)
    a("    s_waitcnt lgkmcnt(8)")
    for x in order[13:]: rd(x)
    for r in range(3): unp2(KF + 4 * r, KR + 2 * r)
    for j in range(8):
        if j: a(f"    s_waitcnt lgkmcnt({14 - 2*j})")
        unp2(KF + 4 * (3 + j), KR + 6 + 2 * j); unp2(VF + 4 * j, VR + 2 * j)
        for p in range(2):
            o = OF + 4 * j + 2 * p
            k = lambda r: vr(KF + 4 * r + 2 * p, 2)
            w = lambda t: vr(WF + p * 8 + 2 * t, 2)
            a(f"    v_pk_mul_f32 {vr(o,2)}, {k(j)}, {w(3)}")
            a(f"    v_pk_fma_f32 {vr(o,2)}, {k(j+1)}, {w(2)}, {vr(o,2)}")
            a(f"    v_pk_fma_f32 {vr(o,2)}, {k(j+2)}, {w(1)}, {vr(o,2)}")
            a(f"    v_pk_fma_f32 {vr(o,2)}, {k(j+3)}, {w(0)}, {vr(o,2)}")
            a(f"    v_pk_mul_f32 {vr(o,2)}, {vr(o,2)}, {vr(VF + 4*j + 2*p, 2)}")
    for c in range(4):
        for d in range(4):
            a(f"    v_cvt_pk_bf16_f32 v{PK+4*c+d}, v{OF + 4*(7-2*d) + c}, v{OF + 4*(6-2*d) + c}")
        out_store(PK + 4 * c, opt.kvf)
    a(f"    s_cmp_lg_u32 s33, 0\n    s_cbranch_scc1 {L}_nr1")
    reg_issue()
    a(f"{L}_nr1:")
    stamp(a, 2)
    ACC = 80; F0 = 112; F1 = 176
    a(f"""    v_lshlrev_b32 v40, 4, v2         ; lane*16
    v_add_u32 v4, s64, v40
    v_mov_b32 v60, 0
    v_mov_b32 v61, 0
    v_mov_b32 v62, 0
    v_mov_b32 v63, 0
    s_mov_b64 exec, 0x3fffffff
    ds_write_b128 v4, v[60:63] offset:{RO + 4096}
    s_mov_b64 exec, -1
    v_and_b32 v5, 15, v2             ; b / a
    v_lshrrev_b32 v6, 4, v2          ; kg
    v_add_u32 v7, 1, v5
    v_and_b32 v8, 3, v7
    v_mul_u32_u24 v8, {CS}, v8
    v_and_b32 v7, 28, v7
    v_lshl_add_u32 v8, v7, 1, v8
    v_lshl_add_u32 v8, v6, 4, v8
    v_add_u32 v8, s64, v8            ; vAT
    v_lshlrev_b32 v9, 5, v5
    v_lshl_add_u32 v41, v6, 3, v9    ; 32a + 8g
    v_sub_u32 v9, {RO + 480}, v9
    v_lshl_add_u32 v9, v6, 4, v9
    v_add_u32 v9, s64, v9            ; vBT
    s_lshl_b32 s26, s63, 12
    s_add_u32 m0, s64, {RO}""")
    for i in range(0, 32, 2): a(f"    v_mov_b64 {vr(ACC+i,2)}, 0")
    a(f"""    v_sub_u32 v32, {RO + 504}, v41
    v_add_u32 v32, s64, v32
    v_lshlrev_b32 v33, 1, v41
    v_add_u32 v33, {STG}, v33
    s_lshl_b32 s35, s34, 12
    s_add_u32 s35, s35, {XS}
    v_add_u32 v34, s35, v41
    s_lshl_b32 s75, s29, 16
    s_and_b32 s27, s29, 0xffff0000
    s_bitcmp1_b32 s63, 0
    s_cselect_b32 s75, s27, s75          ; D as f32
    s_and_b32 s27, s63, 3
    s_bfe_u32 s28, s63, 0x10003
    s_lshl_b32 s28, s28, 2
    s_or_b32 s27, s27, s28               ; g(d)
    v_and_b32 v42, 7, v5
    v_xor_b32 v42, s27, v42
    v_lshlrev_b32 v42, 5, v42
    v_lshrrev_b32 v12, 3, v5
    v_lshl_add_u32 v42, v12, 18, v42
    v_and_b32 v12, 1, v6
    v_lshl_add_u32 v42, v12, 19, v42
    v_lshrrev_b32 v12, 1, v6
    v_lshl_add_u32 v42, v12, 4, v42
    s_lshl_b32 s34, s63, 8
    s_add_u32 s34, s34, {HT_OFF:#x}""")
    if opt.fixsig:
        a(f"""    v_mov_b32 v12, 0
    s_waitcnt vmcnt(0)
    s_mov_b64 exec, 1
    ds_add_u32 v10, v11 offset:0
    s_mov_b64 exec, -1""")
        stamp(a, 3)
        a(f"    s_cmp_lg_u32 s33, 0\n    s_cbranch_scc1 {L}_w1")
        reg_check("a")
        a(f"""    s_add_u32 s65, s65, 1
    v_mov_b32 v38, s65
    ds_write_b32 v10, v38 offset:28
    s_sub_u32 s65, s65, 1""")
        spin(0, 4, "d")
        signal_poll(KVF_OFF, "a", known=True)
        a(f"""    ds_write_b32 v10, v11 offset:4
    s_branch {L}_g1
{L}_w1:""")
    else:
        a(f"    s_waitcnt vmcnt(0)\n    s_cmp_lg_u32 s33, 0\n    s_cbranch_scc1 {L}_nr2")
        reg_check("a")
        a(f"""    s_add_u32 s65, s65, 1
    v_mov_b32 v38, s65
    ds_write_b32 v10, v38 offset:28
{L}_nr2:""")
        stamp(a, 3)
        count_in(0, "a")
        a(f"    s_cbranch_scc0 {L}_w1")
        signal_poll(KVF_OFF, "a")
        a(f"""    ds_write_b32 v10, v11 offset:4
    s_branch {L}_g1
{L}_w1:""")
    spin(4, 1, "a")
    a(f"{L}_g1:")
    stamp(a, 4)
    for i in range(4): a(f"    buffer_load_dwordx4 v40, s[36:39], s26 offen offset:{1024*i} {opt.ldf} lds")
    spin(8, 4, "b")
    a("    s_waitcnt vmcnt(0)")
    stamp(a, 5)
    def reads(F, woff, nu=8):
        r = []
        for u in range(nu):
            r.append(f"    ds_read_b128 {vr(F+32+4*u,4)}, v9 offset:{3584 - 512*u + woff}")
            r.append(f"    ds_read_b64 {vr(F+4*u,2)}, v8 offset:{512*u + woff}")
            r.append(f"    ds_read_b64 {vr(F+4*u+2,2)}, v8 offset:{512*u + 8 + woff}")
        return r
    def mf(F, lo=0, hi=7):
        return [f"    v_mfma_f32_16x16x32_bf16 {vr(ACC+4*(u+v),4)}, {vr(F+4*u,4)}, {vr(F+32+4*v,4)}, {vr(ACC+4*(u+v),4)}" for u in range(8) for v in range(8 - u) if lo <= u + v <= hi]
    def weave(m, f):
        i = 0
        for x in m:
            a(x)
            if i < len(f): a(f[i]); i += 1
        for x in f[i:]: a(x)
    def epi(ns, KV, XR_, MT, RTB, OUT):
        for j, n in enumerate(ns):
            c = ACC + 4 * n; k = KV + 2 * j; x = XR_ + 2 * j; o = OUT + 2 * j
            lg = 4 * (len(ns) - 1 - j)
            if lg <= 12: a(f"    s_waitcnt lgkmcnt({lg})")
            elif j == 0: a("    s_waitcnt lgkmcnt(15)")
            a(f"""    v_and_b32 v12, 0xffff0000, v{k+1}
    v_lshlrev_b32 v13, 16, v{k+1}
    v_and_b32 v14, 0xffff0000, v{k}
    v_lshlrev_b32 v15, 16, v{k}
    v_fmac_f32 v{c}, s75, v12
    v_fmac_f32 v{c+1}, s75, v13
    v_fmac_f32 v{c+2}, s75, v14
    v_fmac_f32 v{c+3}, s75, v15
    v_lshlrev_b32 v12, 16, v{x}
    v_and_b32 v13, 0xffff0000, v{x}
    v_lshlrev_b32 v14, 16, v{x+1}
    v_and_b32 v15, 0xffff0000, v{x+1}
    v_pk_mul_f32 {vr(c,2)}, {vr(c,2)}, {vr(RTB+4*j,2)}
    v_pk_mul_f32 {vr(c+2,2)}, {vr(c+2,2)}, {vr(RTB+4*j+2,2)}
    v_pk_add_f32 {vr(MT+4*j,2)}, v[12:13], {vr(MT+4*j,2)} neg_lo:[0,1] neg_hi:[0,1]
    v_pk_add_f32 {vr(MT+4*j+2,2)}, v[14:15], {vr(MT+4*j+2,2)} neg_lo:[0,1] neg_hi:[0,1]
    v_pk_fma_f32 v[12:13], {vr(MT+4*j,2)}, {vr(c,2)}, v[12:13]
    v_pk_fma_f32 v[14:15], {vr(MT+4*j+2,2)}, {vr(c+2,2)}, v[14:15]
    v_cvt_pk_bf16_f32 v{o}, v12, v13
    v_cvt_pk_bf16_f32 v{o+1}, v14, v15""")
            if j & 1:
                a(f"""    s_nop 0
    v_permlane16_swap_b32 v{o-2}, v{o}
    v_permlane16_swap_b32 v{o-1}, v{o+1}
    buffer_store_dwordx4 {vr(o-2,4)}, v42, s[36:39], s34 offen {MF or opt.htf}
    s_add_u32 s34, s34, 0x100000""")
    def epi_reads(ns, KV, XR_, MT, RTB):
        r = []
        for j, n in enumerate(ns):
            r += [f"    ds_read_b64 {vr(KV+2*j,2)}, v32 offset:{512*(7-n)}", f"    ds_read_b64 {vr(XR_+2*j,2)}, v34 offset:{512*n}",
                  f"    ds_read_b128 {vr(MT+4*j,4)}, v33 offset:{1024*n}", f"    ds_read_b128 {vr(RTB+4*j,4)}, v33 offset:{8192 + 1024*n}"]
        return r
    def tables_ready(tag):
        a(f"""    s_branch {L}_last{tag}
{L}_again{tag}:
    s_sleep 1
    ds_read_b32 v35, v10 offset:20
    s_waitcnt lgkmcnt(0)
{L}_last{tag}:
    v_readfirstlane_b32 s76, v35
    s_cmp_eq_u32 s76, 4
    s_cbranch_scc0 {L}_again{tag}""")
    step = ["    v_add_u32 v8, 128, v8", "    v_add_u32 v9, 128, v9", "    s_add_u32 s35, s35, 1", "    s_cmp_eq_u32 s35, 4"]
    if not TWO:
        for l in reads(F0, 0): a(l)
        a(f"    s_mov_b32 s35, 0\n{L}_loop:\n    s_waitcnt lgkmcnt(0)")
        weave(mf(F0), reads(F1, 64) + ["    ds_read_b32 v35, v10 offset:20"] + step)
        a(f"    s_waitcnt lgkmcnt(0)\n    s_cbranch_scc1 {L}_fin")
        weave(mf(F1), reads(F0, 0))
        a(f"    s_branch {L}_loop\n{L}_fin:")
        tables_ready("a")
        weave(mf(F1), ["    s_nop 0"] * 2 + epi_reads(range(8), F0, 16, F0 + 16, 44))
        a("    s_nop 7")
        stamp(a, 6)
        epi(range(8), F0, 16, F0 + 16, 44, 224)
    else:
        for l in reads(F0, 0, 4): a(l)
        a(f"    s_mov_b32 s35, 0\n{L}_loop1:\n    s_waitcnt lgkmcnt(0)")
        weave(mf(F0, 0, 3), reads(F1, 64, 4) + step)
        a(f"    s_waitcnt lgkmcnt(0)\n    s_cbranch_scc1 {L}_fin1")
        weave(mf(F1, 0, 3), reads(F0, 0, 4))
        a(f"    s_branch {L}_loop1\n{L}_fin1:\n    v_subrev_u32 v8, 512, v8\n    v_subrev_u32 v9, 512, v9\n    s_mov_b32 s35, 0")
        weave(mf(F1, 0, 3), reads(F0, 0))
        a(f"{L}_loop2:\n    s_waitcnt lgkmcnt(0)")
        weave(mf(F0, 4, 7), reads(F1, 64) + ["    ds_read_b32 v35, v10 offset:20", step[0] + "\n" + step[1], step[2] + "\n" + step[3]])
        a(f"    s_waitcnt lgkmcnt(0)\n    s_cbranch_scc1 {L}_fin2")
        weave(mf(F1, 4, 7), reads(F0, 0))
        a(f"""    s_cmp_eq_u32 s35, {opt.midit}
    s_cbranch_scc1 {L}_mid
    s_cmp_eq_u32 s35, {opt.midit + 1}
    s_cbranch_scc0 {L}_loop2
    s_waitcnt vmcnt(0) lgkmcnt(0)""")
        hf_count("c1", 52, HF_OFF)
        a(f"    s_branch {L}_loop2\n{L}_mid:")
        tables_ready("m")
        stamp(a, 10)
        a("    s_waitcnt lgkmcnt(0)")
        for l in epi_reads(range(4), 24, 16, 44, 60): a(l)
        epi(range(4), 24, 16, 44, 60, 240)
        a(f"    s_branch {L}_loop2\n{L}_fin2:")
        if opt.midit == 3:
            pass
        weave(mf(F1, 4, 7), epi_reads(range(4, 8), 24, 16, 44, 60))
        a("    s_nop 7")
        stamp(a, 6)
        epi(range(4, 8), 24, 16, 44, 60, 240)
    stamp(a, 7)
    a(f"    s_branch {L}_done")
    FD = 16; TO = 52; XT_ = 80; XR = 96; XF = 112; PKX = 144
    a(f"""{L}_help:
    v_lshlrev_b32 v6, 4, v2          ; lane*16
    s_lshl_b32 s27, s25, 6
    s_lshl_b32 s28, s24, 3
    s_add_u32 s27, s27, s28
    s_lshl_b32 s28, s34, 1
    s_add_u32 s27, s27, s28
    s_lshl_b32 s28, s27, 11""")
    srd(a, 16, 42, MB4); srd(a, 36, 58, 64 << 20)
    if opt.codepf0:
        a(f"""    s_cmp_lg_u32 s25, {opt.codepf0}
    s_cbranch_scc1 {L}_nc0
    s_getpc_b64 s[66:67]
{L}_pc0:
    s_sub_u32 s66, s66, {L}_pc0 - {name}
    s_subb_u32 s67, s67, 0
    v_and_b32 v13, 255, v0
    v_lshlrev_b32 v13, 7, v13
    v_min_u32 v13, TEXT_END - {name} - 4, v13
    global_load_dword v199, v13, s[66:67]
{L}_nc0:""")
    def statrows():
        for i in range(4): a(f"    buffer_load_dwordx4 {vr(XR+4*i,4)}, v6, s[16:19], s28 offen offset:{1024*i}")
    if not opt.slate: statrows()
    a("    s_waitcnt lgkmcnt(0)")
    srd(a, 12, 10, MB4)
    a(f"""    v_add_u32 v5, s26, v5            ; x tile
    s_mov_b32 s45, 0x10000
    s_mov_b32 s46, 0x18000
    s_lshl_b32 s26, s63, 12
    s_load_dwordx2 s[10:11], s[0:1], {ARG['w1']}
    s_lshl_b32 s49, s34, 12
    s_add_u32 s49, s49, {XS}
    s_mov_b32 s70, 0x05040100
    s_mov_b32 s71, 0x07060302
    s_mov_b32 s51, 0x3a800000
    s_mov_b32 s50, 0x3727c5ac
    s_lshl_b32 s27, s27, 2
    s_add_u32 s72, s27, {ST1_OFF:#x}
    s_add_u32 s73, s72, 8192
    v_add_u32 v7, s64, v6
    v_mov_b32 v60, 0
    v_mov_b32 v61, 0
    v_mov_b32 v62, 0
    v_mov_b32 v63, 0
    v_mul_u32_u24 v39, {2*IS}, v3
    v_lshl_add_u32 v39, v4, 3, v39
    s_lshl_b32 s27, s34, 6
    s_add_u32 s27, s27, {STG}
    v_add_u32 v39, s27, v39""")
    a("    s_waitcnt lgkmcnt(0)\n    s_barrier")
    stamp(a, 0)
    if opt.tlb3:
        sh = opt.tlb3
        a(f"""    s_load_dwordx2 s[74:75], s[0:1], {ARG['w2']}
    s_load_dwordx2 s[76:77], s[0:1], {ARG['out']}
    s_lshl_b32 s78, s25, 2
    s_add_u32 s78, s78, s34
    s_lshl_b32 s78, s78, {sh}
    s_waitcnt lgkmcnt(0)""")
        for r, n in (("s[10:11]", 1024 * 7168), ("s[74:75]", 3584 * 2048), ("s[76:77]", MB4), ("s[58:59]", 0x2900000)):
            for j in range((n + (128 << sh) - 1) // (128 << sh)):
                a(f"    s_add_u32 s30, s78, {j * (128 << sh):#x}\n    s_min_u32 s30, s30, {n - 4:#x}\n    s_load_dword s79, {r}, s30")
    if opt.tlb2:
        G = opt.tlb2
        a(f"""    s_cmp_lg_u32 s25, 1
    s_cbranch_scc1 {L}_notlb
    s_load_dwordx2 s[74:75], s[0:1], {ARG['w2']}
    s_load_dwordx2 s[76:77], s[0:1], {ARG['out']}
    s_waitcnt lgkmcnt(0)""")
        regs = [("s[10:11]", 1024 * 7168), ("s[74:75]", 3584 * 2048), ("s[76:77]", MB4), ("s[58:59]", 0x2900000)]
        lst = [(r, o) for r, n in regs for o in range(0, n, G)]
        for w in range(4):
            a(f"    s_cmp_lg_u32 s34, {w}\n    s_cbranch_scc1 {L}_tl{w}")
            for j, (r, o) in enumerate(lst[w::4]):
                a(f"    s_mov_b32 s78, {o:#x}\n    s_load_dword s79, {r}, s78")
                if j % 14 == 13: a("    s_waitcnt lgkmcnt(0)")
            a(f"{L}_tl{w}:")
        a(f"{L}_notlb:")
    S = [180, 181]; T = [182, 183]; M = [184, 186]; PS = [188, 190]
    a(f"""    v_mov_b32 v10, {WRD}
    v_mov_b32 v11, 1""")
    if opt.slate:
        a(f"    s_waitcnt vmcnt({opt.slate - 1})")
        statrows()
    a(f"""    s_waitcnt vmcnt(4)
    s_mov_b64 exec, 1
    ds_add_u32 v10, v11 offset:32
    s_mov_b64 exec, -1""")
    def fload():
        a("    s_add_u32 m0, s64, 32\n    s_nop 0")
        for i in range(4): a(f"    buffer_load_dwordx4 v6, s[12:15], s26 offen offset:{1024*i} {opt.ntf2} lds")
    if not opt.flate:
        a(f"    s_waitcnt vmcnt({opt.early2 - 1})")
        fload()
    def xtile():
        a(f"    s_mul_i32 s35, s34, {IS}")
        for j in range(4): a(f"    s_add_u32 m0, s35, {STG + 4*j*IS}\n    s_nop 0\n    buffer_load_dwordx4 v5, s[16:19], {so[j]} offen lds")
    if opt.xearly: xtile()
    a(f"    s_waitcnt vmcnt({(8 if opt.xearly else 4) - (4 if opt.flate else 0)})")
    stamp(a, 1)
    if opt.dot2:
        S = [180, 181, 182, 183]; T = [184, 185, 186, 187]; M = [188, 189]
        a("    s_mov_b32 s74, 0x3f803f80")
        for i in range(8):
            for rho in range(2):
                x = XR + 8 * rho + i
                a(f"    v_dot2_f32_bf16 v{S[rho]}, v{x}, s74, {'0' if i == 0 else 'v%d' % S[rho]}")
                a(f"    v_dot2_f32_bf16 v{S[2+rho]}, v{x}, v{x}, {'0' if i == 0 else 'v%d' % S[2+rho]}")
        a("    s_nop 1")
        wave_sum(a, S, T)
        for rho in range(2): a(f"    v_mul_f32 v{M[rho]}, s51, v{S[rho]}")
        for rho in range(2): a(f"    v_fma_f32 v{S[rho]}, -v{M[rho]}, v{S[rho]}, v{S[2+rho]}")
        for rho in range(2): a(f"    v_max_f32 v{S[rho]}, 0, v{S[rho]}")
    else:
        for rho in range(2):
            for i in range(8): unpack(a, XF + 16 * rho + 2 * i, XR + 8 * rho + i)
        src = lambda rho, i: XF + 16 * rho + 2 * i
        for rho in range(2): a(f"    v_pk_add_f32 {vr(PS[rho],2)}, {vr(src(rho,0),2)}, {vr(src(rho,1),2)}")
        for i in range(2, 8):
            for rho in range(2): a(f"    v_pk_add_f32 {vr(PS[rho],2)}, {vr(PS[rho],2)}, {vr(src(rho,i),2)}")
        for rho in range(2): a(f"    v_add_f32 v{S[rho]}, v{PS[rho]}, v{PS[rho]+1}")
        wave_sum(a, S, T)
        for rho in range(2): a(f"    v_mul_f32 v{M[rho]}, s51, v{S[rho]}")
        for i in range(8):
            for rho in range(2):
                a(f"    v_pk_add_f32 {vr(src(rho,i),2)}, {vr(src(rho,i),2)}, {vr(M[rho],2)} op_sel_hi:[1,0] neg_lo:[0,1] neg_hi:[0,1]")
        for rho in range(2): a(f"    v_pk_mul_f32 {vr(PS[rho],2)}, {vr(src(rho,0),2)}, {vr(src(rho,0),2)}")
        for i in range(1, 8):
            for rho in range(2): a(f"    v_pk_fma_f32 {vr(PS[rho],2)}, {vr(src(rho,i),2)}, {vr(src(rho,i),2)}, {vr(PS[rho],2)}")
        for rho in range(2): a(f"    v_add_f32 v{S[rho]}, v{PS[rho]}, v{PS[rho]+1}")
        wave_sum(a, S, T)
    for rho in range(2):
        a(f"    v_mov_b32 v{192+rho}, v{M[rho]}"); rnd(a, 192 + rho)
        a(f"    v_mul_f32 v{194+rho}, s51, v{S[rho]}"); rnd(a, 194 + rho); a(f"    v_add_f32 v{194+rho}, s50, v{194+rho}"); rnd(a, 194 + rho)
    a("    v_sqrt_f32 v194, v194\n    v_sqrt_f32 v195, v195\n    s_nop 0")
    for rho in range(2): rnd(a, 194 + rho)
    a(f"""    v_rcp_f32 v194, v194
    v_rcp_f32 v195, v195
    v_mov_b32 v12, 0
    s_mov_b64 exec, 1
    buffer_store_dwordx2 v[192:193], v12, s[36:39], s72 offen sc1
    buffer_store_dwordx2 v[194:195], v12, s[36:39], s73 offen sc1
    s_mov_b64 exec, -1""")
    if opt.flate: fload()
    if not opt.xearly: xtile()
    stamp(a, 2)
    def copies(first):
        a(f"    s_waitcnt vmcnt({first})")
        for i in range(4):
            a(f"    ds_read_b128 {vr(FD+8*i,4)}, v7 offset:{32 + 1024*i}\n    ds_read_b64 {vr(FD+8*i+4,2)}, v7 offset:{48 + 1024*i}")
        for i in range(4):
            D = FD + 8 * i; t = 64 + 12 * (i & 1) + 132
            a(f"    s_waitcnt lgkmcnt({6 - 2*i})" if i == 0 else f"    s_waitcnt lgkmcnt({min(15, 6 - 2*i + 3*i + (8 if i else 0))})")
            for k in range(4): a(f"    v_alignbit_b32 v{t+k}, v{D+k+1}, v{D+k}, 16")
            a(f"    ds_write_b128 v7, {vr(t,4)} offset:{CS + 32 + 1024*i}")
            for k in range(4): a(f"    v_mov_b32 v{t+4+k}, v{D+k+1}")
            a(f"    ds_write_b128 v7, {vr(t+4,4)} offset:{2*CS + 32 + 1024*i}")
            for k in range(4): a(f"    v_alignbit_b32 v{t+8+k}, v{D+k+2}, v{D+k+1}, 16")
            a(f"    ds_write_b128 v7, {vr(t+8,4)} offset:{3*CS + 32 + 1024*i}")
            if i == 0:
                a(f"""    v_mov_b32 v68, 0
    v_mov_b32 v69, 0
    v_mov_b32 v70, 0
    v_lshlrev_b32 v71, 16, v{D}
    v_mov_b32 v72, 0
    v_mov_b32 v73, 0
    v_mov_b32 v74, 0
    v_mov_b32 v75, v{D}
    v_mov_b32 v76, 0
    v_mov_b32 v77, 0
    v_mov_b32 v78, v71
    v_mov_b32 v79, v{t}
    s_mov_b64 exec, 1
    ds_write_b128 v7, v[60:63]
    ds_write_b128 v7, v[60:63] offset:16
    ds_write_b128 v7, v[60:63] offset:{CS}
    ds_write_b128 v7, v[68:71] offset:{CS+16}
    ds_write_b128 v7, v[60:63] offset:{2*CS}
    ds_write_b128 v7, v[72:75] offset:{2*CS+16}
    ds_write_b128 v7, v[60:63] offset:{3*CS}
    ds_write_b128 v7, v[76:79] offset:{3*CS+16}
    s_mov_b64 exec, -1""")
        a("""    s_waitcnt lgkmcnt(0)
    s_mov_b64 exec, 1
    ds_add_u32 v10, v11 offset:8
    s_mov_b64 exec, -1""")
    a(f"    v_mov_b32 v10, {WRD}\n    v_mov_b32 v11, 1")
    if not opt.xfirst:
        copies(4 if opt.flate else 6)
    a(f"    s_waitcnt vmcnt({0 if opt.xearly else 4})")
    count_in(36, "s")
    a(f"    s_cbranch_scc0 {L}_nsf")
    spin(44, 1, "c")
    a(f"""    s_lshl_b32 s27, s62, 5
    s_add_u32 s27, s27, {SF_OFF:#x}
    s_mov_b64 exec, 1
    buffer_store_dword v11, v12, s[36:39], s27 offen sc1
    s_mov_b64 exec, -1
    s_waitcnt vmcnt(1)
    s_branch {L}_nsg
{L}_nsf:
    s_waitcnt vmcnt(0)
{L}_nsg:
    s_mov_b64 exec, 1
    ds_add_u32 v10, v11 offset:40
    s_mov_b64 exec, -1""")
    stamp(a, 7)
    spin(40, 4, "t", 12)
    for j in range(8): a(f"    ds_read_b64 {vr(XT_+2*j,2)}, v39 offset:{(j >> 2)*IS + (j & 3)*256}")
    if opt.xwait: spin(*opt.xwait, "g", 12)
    tail_addr(False, XT_OFF, "s49")
    a("    s_waitcnt lgkmcnt(0)")
    for c in range(4):
        for d in range(4):
            a(f"    v_perm_b32 v{PKX+4*c+d}, v{XT_ + 2*(2*d+1) + (c>>1)}, v{XT_ + 2*(2*d) + (c>>1)}, s{70 + (c&1)}")
        out_store(PKX + 4 * c, 'sc1')
    if opt.xfirst: copies(4)
    stamp(a, 9)
    a("    s_waitcnt vmcnt(0)")
    stamp(a, 10)
    count_in(12, "x")
    a(f"    s_cbranch_scc0 {L}_w2")
    signal_poll(XF_OFF, "x", poll=False)
    if opt.stamps: a("    s_memtime s[74:75]\n    s_waitcnt lgkmcnt(0)\n    s_sub_u32 s74, s74, s80\n    v_mov_b32 v20, s74\n    ds_write_b32 v10, v20 offset:60")
    a(f"""    ds_write_b32 v10, v11 offset:16
    s_mov_b32 m0, s49
    s_add_u32 s26, s26, {XT_OFF:#x}""")
    for i in range(4): a(f"    buffer_load_dwordx4 v6, s[36:39], s26 offen offset:{1024*i} {opt.ldf} lds")
    a(f"""    v_lshlrev_b32 v14, 12, v3
    s_mov_b32 s28, {GF_OFF:#x}
{L}_p3:
    buffer_load_dword v15, v14, s[36:39], s28 offen sc1
    s_waitcnt vmcnt(0)
    v_cmp_eq_u32 vcc, 1, v15
    s_cmp_eq_u64 vcc, -1
    s_cbranch_scc1 {L}_p3e
    s_sleep {opt.xsleep}
    s_branch {L}_p3
{L}_p3e:
    ds_write_b32 v10, v11 offset:24
    s_branch {L}_g2
{L}_w2:""")
    spin(16, 1, "x")
    a(f"    s_mov_b32 m0, s49\n    s_add_u32 s26, s26, {XT_OFF:#x}")
    for i in range(4): a(f"    buffer_load_dwordx4 v6, s[36:39], s26 offen offset:{1024*i} {opt.ldf} lds")
    spin(24, 1, "y")
    a(f"{L}_g2:")
    stamp(a, 4)
    if opt.stamps: a("    ds_read_b32 v20, v10 offset:60\n    s_waitcnt lgkmcnt(0)\n    v_readfirstlane_b32 s74, v20\n    s_nop 1\n    v_writelane_b32 v250, s74, 11")
    a(f"""    s_lshl_b32 s30, s34, 12
    s_add_u32 m0, s30, {STG}
    s_add_u32 s30, s30, {ST1_OFF:#x}""")
    for i in range(4): a(f"    buffer_load_dwordx4 v6, s[36:39], s30 offen offset:{1024*i} sc1 lds")
    a(f"""    s_lshl_b32 s47, s2, 10
    s_lshl_b32 s48, s34, 8
    s_add_u32 s47, s47, s48
    s_add_u32 s47, s47, {PST_OFF:#x}
    v_lshlrev_b32 v14, 2, v2
    v_mov_b32 v15, -1
    buffer_store_dword v15, v14, s[36:39], s47 offen {MF}
    s_mul_i32 s47, s2, 560
    s_mul_i32 s48, s34, 140
    s_add_u32 s47, s47, s48
    s_add_u32 s47, s47, {FLG_OFF:#x}
    v_min_u32 v14, 34, v2
    v_lshlrev_b32 v14, 2, v14
    buffer_store_dword v12, v14, s[36:39], s47 offen {MF}
    s_and_b32 s25, s2, 15            ; k slice
    s_lshr_b32 s26, s2, 4
    s_mul_i32 s27, s25, {64*7168}
    s_lshl_b32 s28, s26, 9
    s_lshl_b32 s29, s34, 7
    s_add_u32 s28, s28, s29
    s_add_u32 s27, s27, s28
    v_mul_u32_u24 v5, 7168, v4
    v_lshl_add_u32 v5, v3, 4, v5
    s_mul_i32 s30, s25, {3584*4}
    s_lshl_b32 s28, s28, 1
    s_add_u32 s30, s30, s28
    s_add_u32 s30, s30, {CS_OFF:#x}
    s_cmp_ge_u32 s2, 224
    s_cselect_b32 s27, 0x80000000, s27
    s_cselect_b32 s30, 0x80000000, s30
    s_waitcnt lgkmcnt(0)""")
    DEC = mega and opt.csdec
    if DEC: a("    v_lshlrev_b32 v14, 2, v2\n    buffer_store_dword v15, v14, s[36:39], s30 offen sc1")
    XF4 = 4 if (mega and opt.tagx == 3) else 0
    if XF4:
        a(f"""    s_lshl_b32 s47, s2, 14
    s_lshl_b32 s48, s34, 12
    s_add_u32 s47, s47, s48
    s_add_u32 s47, s47, {XCH_OFF:#x}
    v_mov_b64 v[64:65], -1
    v_mov_b64 v[66:67], -1""")
        for q in range(4): a(f"    buffer_store_dwordx4 v[64:67], v6, s[36:39], s47 offen offset:{1024*q} sc1")
    srd(a, 12, 10, 1024 * 7168)
    W = 16; WF = 48
    ld = lambda i: a(f"    buffer_load_dwordx4 {vr(W+4*i,4)}, v5, s[12:15], s27 offen\n    s_add_u32 s27, s27, {8*7168}")
    TH = opt.w1th
    for i in range(TH): ld(i)
    a(f"""    s_waitcnt vmcnt({(3 if DEC else 2) + XF4 + TH})
    s_mov_b64 exec, 1
    ds_add_u32 v10, v11 offset:20
    s_mov_b64 exec, -1""")
    stamp(a, 5)
    if DEC:
        assert TH == 8
        a("    s_waitcnt vmcnt(8)")
        hf_count("h", 48, HF_OFF + (0x8000 if TWO else 0))
        if TWO: hf_count("h1", 52, HF_OFF)
    a(f"    s_cmp_ge_u32 s2, 224\n    s_cbranch_scc1 {L}_code")
    for i in range(8):
        a(f"    s_waitcnt vmcnt({min(TH, 8 - i) - 1})")
        if i + TH < 8: ld(i + TH)
        if i == 0:
            for d in range(4): unpack(a, WF + 2 * d, W + d)
        else:
            for d in range(4):
                unpack(a, WF + 8 + 2 * (d & 1), W + 4 * i + d)
                a(f"    v_pk_add_f32 {vr(WF+2*d,2)}, {vr(WF+2*d,2)}, {vr(WF + 8 + 2*(d&1),2)}")
    if opt.c_pf2:
        a(f"    s_load_dwordx2 s[42:43], s[0:1], {ARG['w2']}\n    s_mul_i32 s29, s2, 32768\n    s_lshl_b32 s31, s34, 13\n    s_add_u32 s29, s29, s31\n    v_lshlrev_b32 v7, {8 if opt.c_pf2 == 2 else 7}, v2\n    s_waitcnt lgkmcnt(0)")
        srd(a, 20, 42, 3584 * 2048)
        if opt.c_pf2 == 2: a("    s_mov_b32 exec_hi, 0")
        a("    buffer_load_dword v8, v7, s[20:23], s29 offen\n    s_mov_b64 exec, -1")
    for d in range(8): a(f"    v_add_f32_dpp v{WF+d}, v{WF+d}, v{WF+d} row_ror:8 row_mask:0xf bank_mask:0xf")
    for sw in ("v_permlane16_swap_b32", "v_permlane32_swap_b32"):
        for d in range(8): a(f"    v_mov_b32 v{WF+8+d}, v{WF+d}")
        for d in range(8): a(f"    {sw} v{WF+8+d}, v{WF+d}")
        for d in range(8): a(f"    v_add_f32 v{WF+d}, v{WF+d}, v{WF+8+d}")
    if DEC:
        for d in range(8): a(f"    v_min_u32 v{WF+d}, -2, v{WF+d}")
    HD = f"{L}_done2" if DEC else f"{L}_done"
    a(f"""    s_mov_b32 s27, s30
    v_lshlrev_b32 v4, 5, v3
    s_mov_b64 exec, 0xff
    buffer_store_dwordx4 {vr(WF,4)}, v4, s[36:39], s27 offen {MF}
    buffer_store_dwordx4 {vr(WF+4,4)}, v4, s[36:39], s27 offen offset:16 {MF}
    s_mov_b64 exec, -1
    s_branch {HD}
{L}_code:""")
    if opt.biaspf:
        a(f"""    s_load_dwordx2 s[66:67], s[0:1], {ARG['b1']}
    s_load_dwordx2 s[68:69], s[0:1], {ARG['b2']}
    v_lshlrev_b32 v13, 7, v2
    v_min_u32 v14, 2044, v13
    v_min_u32 v13, 7164, v13
    s_waitcnt lgkmcnt(0)
    global_load_dword v63, v13, s[66:67]
    global_load_dword v61, v14, s[68:69]""")
    if opt.codepf:
        a(f"""    s_cmp_ge_u32 s2, 232
    s_cbranch_scc1 {HD}
    s_getpc_b64 s[66:67]
{L}_pc:
    v_and_b32 v13, 255, v0
    v_lshlrev_b32 v13, 7, v13
    v_min_u32 v13, TEXT_END - {L}_pc - 4, v13
    global_load_dword v62, v13, s[66:67]""")
    if DEC: a(f"    s_branch {HD}")
    a(f"{L}_done:")
    if mega:
        a("    s_waitcnt vmcnt(0)")
        hf_count("c", 48, HF_OFF + (0x8000 if TWO else 0))
        if DEC: a(f"{HD}:")
        stamp(a, 8)
        stamp_end(a, kidx, 58, 33)
        (gen5.gen_gb if opt.gb else gen3.gen_ga)(a, kidx + 1, mega=dict(WRD=WRD, HF=HF_OFF, two=TWO, end=f"{L}_end"))
        return (name, 256, 512, 163840), (name, 256, 96)
    if opt.stamps: a("    s_waitcnt vmcnt(0)")
    stamp(a, 8)
    stamp_end(a, kidx, 58, 33)
    a(f"{L}_end:\n    s_endpgm")
    return (name, 256, 512, WRD + 64), (name, 256, 96)

opt.htf = ""
gen.KGEN["pc"] = gen_pc
gen.KGEN["mega"] = lambda a, k: gen_pc(a, k, mega=True)
```

```python
from asmlib import *
import gen, gen2, gen3
from gen import stamp_loop, opt, stamp, stamp_begin, stamp_end, vr, MB4, H1_OFF, H1_SZ, FLG_OFF
from gen2 import FLG_SZ
from gen3 import unpack, rnd, ppoll, loop_unrolled, HT_OFF, CS_OFF, PST_OFF
opt.gb_bar = 27
def gen_gb(a, kidx, mega=None):
    assert mega and opt.map84 and not mega['two']
    name = "g_kernel"; L = "G"
    PX = 4 if opt.map84 else 1
    MAP = """    s_lshr_b32 s26, s24, 1
    s_lshl_b32 s26, s26, 2
    s_and_b32 s27, s25, 3
    s_add_u32 s26, s26, s27          ; mt
    s_and_b32 s54, s24, 1
    s_lshr_b32 s55, s25, 2
    s_lshl_b32 s56, s24, 2
    s_add_u32 s56, s56, s27
    s_lshl_b32 s56, s56, 7           ; group*128
    s_lshl_b32 s27, s54, 3
    s_add_u32 s27, s27, s55          ; nt
""" if not opt.map84 else ("""    s_and_b32 s26, s24, 1
    s_lshl_b32 s26, s26, 3
    s_and_b32 s27, s25, 7
    s_add_u32 s26, s26, s27          ; mt""" if not (mega and mega["two"]) else """    s_and_b32 s26, s24, 1
    s_lshl_b32 s26, s26, 2
    s_and_b32 s27, s25, 3
    s_add_u32 s26, s26, s27
    s_and_b32 s27, s25, 4
    s_lshl_b32 s27, s27, 1
    s_add_u32 s26, s26, s27          ; mt: four early and four late row tiles per die""") + """
    s_lshr_b32 s27, s24, 1
    s_lshl_b32 s27, s27, 2
    s_lshr_b32 s55, s25, 3
    s_add_u32 s27, s27, s55          ; nt
    s_lshr_b32 s54, s27, 2           ; kq: quarter of the second contraction
    s_and_b32 s55, s27, 3            ; column tile of the second GEMM / member index
    s_lshl_b32 s56, s26, 2
    s_add_u32 s56, s56, s54
    s_lshl_b32 s56, s56, 7           ; group*128
"""
    LA = 224; LB = 216; LB2 = 196; RDY = 0x20000; XC2 = 0x4000000
    ST1 = 49152; NS1 = 3; NK1 = 16
    NS2 = 3; NK2 = 14
    BR1 = 49152; CNT = 147456; TST = CNT + 256; TRM = TST + 512; TCB = TRM + 1024 + 64; RES = 16384
    if not mega:
        kernel_head(a, name)
        a(f"    s_cmp_ge_u32 s2, 256\n    s_cbranch_scc1 {L}_end")
    a(f"""    s_load_dwordx2 s[4:5], s[0:1], {ARG['ws']}
    s_load_dwordx4 s[8:11], s[0:1], {ARG['w1']}    ; w1, b1
    s_load_dwordx4 s[48:51], s[0:1], {ARG['w2']}   ; w2, b2
    s_load_dwordx2 s[52:53], s[0:1], {ARG['out']}""")
    stamp_begin(a)
    a(f"""    v_lshrrev_b32 v1, 6, v0
    v_and_b32 v2, 63, v0
    s_and_b32 s24, s2, 7
    v_readfirstlane_b32 s33, v1
    s_lshr_b32 s25, s2, 3
{MAP}    s_and_b32 s29, s27, 1            ; p = nt odd
    s_cmp_lt_u32 s33, 4
    s_cbranch_scc1 {L}_cons""")
    def final_addr():
        a(f"""    s_lshl_b32 s43, s26, 7
    s_lshr_b32 s44, s33, 2
    s_lshl_b32 s44, s44, 6
    s_add_u32 s43, s43, s44
    s_lshl_b32 s44, s54, 4
    s_add_u32 s43, s43, s44
    s_and_b32 s44, s33, 3
    s_lshl_b32 s44, s44, 2
    s_add_u32 s43, s43, s44
    s_lshl_b32 s43, s43, 11          ; row*2048
    s_lshl_b32 s44, s55, 9
    s_add_u32 s43, s43, s44
    s_add_u32 s44, s43, 4096""")
    if opt.lprio: a(f"    s_setprio {opt.lprio}")
    a(f"""    s_and_b32 s34, s33, 3            ; lw
    s_lshl_b32 s35, s34, 12          ; lw*4096
    v_lshl_add_u32 v{LA}, v2, 4, s35 ; A voffset
    s_lshl_b32 s68, s26, 18
    s_add_u32 s69, s68, {16 << 14}
    s_and_b32 s36, s27, {0 if opt.norot else 12}
    s_lshl_b32 s30, s36, 14
    s_add_u32 s30, s30, s68
    s_mul_i32 s66, s27, 448
    s_and_b32 s66, s66, 0xffffff80
    s_add_u32 s67, s66, {1024*7168}
    s_mul_i32 s31, s36, {64*7168}
    s_add_u32 s31, s31, s66
    s_mov_b32 s70, s35
    s_add_u32 s39, s35, {NS1*16384}
    s_add_u32 s38, s35, s35
    s_add_u32 s38, s38, {BR1}
    s_mov_b32 s71, s38
    s_add_u32 s37, s38, {NS1*32768}
    s_waitcnt lgkmcnt(0)""")
    srd(a, 12, 4, MB4, off=HT_OFF)
    def issueA1():
        a(f"    s_mov_b32 m0, s70\n    s_add_u32 s70, s70, 16384")
        for i in range(4): a(f"    buffer_load_dwordx4 v{LA}, s[12:15], s30 offen offset:{i*1024} {'sc1' if mega else ''} lds")
        a("""    s_add_u32 s30, s30, 16384
    s_cmp_ge_u32 s70, s39
    s_cselect_b32 s70, s35, s70
    s_cmp_ge_u32 s30, s69
    s_cselect_b32 s30, s68, s30""")
    def issueB1():
        a("    s_mov_b32 m0, s38\n    s_nop 0")
        for i in range(4): a(f"    buffer_load_dwordx4 v{LB+i}, s[16:19], s31 offen offset:{i*1024} lds")
        a(f"    s_add_u32 m0, s38, 4096\n    s_add_u32 s38, s38, 32768")
        for i in range(4, 8): a(f"    buffer_load_dwordx4 v{LB+i}, s[16:19], s31 offen offset:{(i&3)*1024} lds")
        a(f"""    s_add_u32 s31, s31, {64*7168}
    s_cmp_ge_u32 s38, s37
    s_cselect_b32 s38, s71, s38
    s_cmp_ge_u32 s31, s67
    s_cselect_b32 s31, s66, s31""")
    if not mega: issueA1()
    a(f"""    v_lshrrev_b32 v8, 5, v2          ; hi
    s_lshl_b32 s36, s34, 4
    v_add_u32 v9, s36, v8            ; 16lw+hi
    v_mul_u32_u24 v9, 7168, v9
    v_and_b32 v10, 1, v2
    v_lshl_add_u32 v9, v10, 4, v9    ; t0
    v_bfe_u32 v10, v2, 1, 4
    v_xor_b32 v10, v10, v8           ; x0""")
    srd(a, 16, 8, 1024 * 7168)
    for ci, c in enumerate((0, 2, 4, 6)):
        a(f"    v_xor_b32 v11, {c}, v10\n    v_lshl_add_u32 v11, v11, 5, v9")
        for i in range(8):
            if 2 * (i & 1) + 4 * (i >> 2) == c: a(f"    v_add_u32 v{LB+i}, {2*i*7168 - (i&3)*1024}, v11")
    stamp(a, 0)
    if not mega:
        issueB1(); issueA1()
        a("    s_waitcnt vmcnt(4)\n    s_barrier")
        issueB1(); issueA1(); issueB1()
    else:
        srd(a, 20, 4, 0x8000, off=mega["HF"])
        if mega["two"]: a("    s_lshr_b32 s36, s26, 3\n    s_lshl_b32 s36, s36, 15\n    s_add_u32 s20, s20, s36\n    s_addc_u32 s21, s21, 0")
        srd(a, 60, 48, 3584 * 2048)
        a(f"""    v_mov_b32 v10, {mega["WRD"]}
    v_lshlrev_b32 v70, 7, v2
    s_and_b32 s41, s27, 12
    s_lshl_b32 s41, s41, 11
    s_mul_i32 s59, s2, 28672
    s_mul_i32 s36, s34, 7168
    s_add_u32 s59, s59, s36
{L}_m0:
    ds_read_b32 v13, v10 offset:48
    s_waitcnt lgkmcnt(0)
    v_readfirstlane_b32 s36, v13
    s_cmp_eq_u32 s36, 8
    s_cbranch_scc1 {L}_m1
    s_sleep 1
    s_branch {L}_m0
{L}_m1:""")
        issueB1()
        if opt.mb2: issueB1()
        if not opt.mq: a("    s_lshl_b32 s41, s35, 1")
        if opt.pp & 1:
            ppoll(a, f"{L}_hp", lambda r: f"    buffer_load_dword v{r}, v70, s[20:23], s41 offen sc1", "s_cmp_eq_u64 vcc, -1", (73, 74, 75))
        else:
            a(f"""{L}_m2:
    buffer_load_dword v13, v70, s[20:23], s41 offen sc1
    s_waitcnt vmcnt(0)
    v_cmp_eq_u32 vcc, 1, v13
    s_cmp_eq_u64 vcc, -1
    s_cbranch_scc1 {L}_m3""")
            if opt.mpf: a("    buffer_load_dword v71, v70, s[60:63], s59 offen\n    s_mov_b32 s59, 0x80000000")
            else: a(f"    s_sleep {opt.msleep}")
            a(f"    s_branch {L}_m2\n{L}_m3:")
        if not opt.mq:
            a(f"""    v_mov_b32 v12, 1
    s_mov_b64 exec, 1
    ds_add_u32 v10, v12 offset:56
    s_mov_b64 exec, -1
{L}_m5:
    ds_read_b32 v13, v10 offset:56
    s_waitcnt lgkmcnt(0)
    v_readfirstlane_b32 s36, v13
    s_cmp_eq_u32 s36, 4
    s_cbranch_scc0 {L}_m5""")
        if opt.dly:
            a(f"    s_and_b32 s36, s26, {opt.dly[0]}\n    s_cmp_eq_u32 s36, 0\n    s_cbranch_scc1 {L}_nodly")
            for i in range(opt.dly[1]): a("    s_sleep 16")
            a(f"{L}_nodly:")
        stamp(a, 11)
        issueA1(); issueA1()
        a("    s_waitcnt vmcnt(4)\n    s_barrier")
        if not opt.mb2: issueB1()
        issueA1(); issueB1()
        if opt.mq:
            a(f"{L}_m4:")
            for q in range(1, 4):
                a(f"    s_add_u32 s36, s41, {q*8192}\n    s_and_b32 s36, s36, 0x7fff\n    buffer_load_dword v{13+q}, v70, s[20:23], s36 offen sc1")
            a(f"""    s_waitcnt vmcnt(0)
    v_and_b32 v13, v14, v15
    v_and_b32 v13, v13, v16
    v_cmp_eq_u32 vcc, 1, v13
    s_cmp_eq_u64 vcc, -1
    s_cbranch_scc0 {L}_m4""")
    stamp(a, 12)
    a(f"""    v_lshrrev_b32 v8, 5, v2          ; hi
    s_lshl_b32 s36, s34, 4
    v_add_u32 v9, s36, v8
    v_lshlrev_b32 v9, 11, v9
    v_and_b32 v10, 1, v2
    v_lshl_add_u32 v9, v10, 4, v9    ; t0
    v_bfe_u32 v10, v2, 1, 4
    v_xor_b32 v10, v10, v8           ; x0""")
    for ci, c in enumerate((0, 2, 4, 6)):
        a(f"    v_xor_b32 v11, {c}, v10\n    v_lshl_add_u32 v11, v11, 5, v9")
        for i in range(8):
            if 2 * (i & 1) + 4 * (i >> 2) == c: a(f"    v_add_u32 v{LB2+i}, {2*i*2048 - (i&3)*1024}, v11")
    a(f"""    v_lshrrev_b32 v3, 2, v2          ; d&15
    v_bfe_u32 v4, v2, 1, 1
    v_bfe_u32 v5, v3, 2, 1
    v_xor_b32 v4, v4, v5             ; gs
    v_bfe_u32 v5, v3, 3, 1
    v_xor_b32 v4, v4, v5
    v_lshlrev_b32 v4, 2, v4
    v_and_b32 v5, 3, v3
    v_xor_b32 v5, s54, v5
    v_or_b32 v4, v4, v5
    v_lshlrev_b32 v4, 5, v4
    v_and_b32 v5, 1, v2
    v_lshl_add_u32 v4, v5, 4, v4
    v_lshl_add_u32 v208, v3, 8, v4
    v_and_b32 v3, 31, v2
    v_lshrrev_b32 v4, 5, v2
    v_lshlrev_b32 v4, 13, v4
    v_lshl_add_u32 v206, v3, 2, v4
    v_and_b32 v3, 15, v2
    v_min_u32 v3, 13, v3
    v_lshrrev_b32 v4, 4, v2
    v_mul_u32_u24 v207, {3584*4}, v4
    v_lshl_add_u32 v207, v3, 4, v207
    v_lshlrev_b32 v205, 3, v3""")
    srd(a, 20, 4, 64 << 20); srd(a, 72, 10, 7168)
    PSR = 32; CSR = 48; BR = 64
    a(f"""    s_lshl_b32 s41, s26, 14
    s_lshl_b32 s36, s34, 7
    s_add_u32 s41, s41, s36
    s_add_u32 s41, s41, {PST_OFF:#x}
    s_add_u32 s47, s41, 4096
    s_mul_i32 s42, s27, 896
    s_mul_i32 s36, s34, 224
    s_add_u32 s42, s42, s36
    s_lshr_b32 s43, s42, 1
    s_add_u32 s42, s42, {CS_OFF:#x}""")
    KP = opt.kp
    pfk = dict(opt.pfk) if opt.w2pf == "l" else {}
    if pfk and not mega:
        srd(a, 60, 48, 3584 * 2048)
        a(f"""    s_mul_i32 s59, s2, 28672
    s_mul_i32 s36, s34, 7168
    s_add_u32 s59, s59, s36
    v_lshlrev_b32 v70, {8 if opt.c_pf2 == 2 else 7}, v2
    {"s_add_u32 s59, s59, 128" if opt.c_pf2 == 2 else ""}""")
    def pf(k):
        if k in pfk:
            lo, hi = pfk[k]
            m = ((1 << hi) - 1) ^ ((1 << lo) - 1)
            a(f"    s_mov_b32 exec_lo, {m & 0xffffffff:#x}\n    s_mov_b32 exec_hi, {m >> 32:#x}\n    buffer_load_dword v71, v70, s[60:63], s59 offen\n    s_mov_b64 exec, -1")
    extra = lambda k: (1 if (k - 1) in pfk else 0) + (1 if (k - 2) in pfk else 0)
    a(f"    s_mov_b32 s40, 0\n{L}_l1:")
    if opt.loopst != 2: stamp_loop(a, 40, 32)
    a("    s_waitcnt vmcnt(12)")
    if opt.loopst != 2: stamp_loop(a, 40, 42)
    a("    s_barrier")
    if opt.loopst != 2: stamp_loop(a, 40, 52)
    if not opt.noload:
        issueA1(); issueB1()
    a(f"    s_add_u32 s40, s40, 1\n    s_cmp_lt_u32 s40, {KP + 1}\n    s_cbranch_scc1 {L}_l1")
    stamp(a, 20)
    def gather_ps():
        for i in range(16): a(f"    buffer_load_dword v{PSR+i}, v206, s[20:23], s{41 if i < 8 else 47} offen offset:{512*(i&7)} sc1")
    gather_ps()
    def gather_cs():
        for i in range(4): a(f"    s_add_u32 s36, s42, {i*4*3584*4}\n    buffer_load_dwordx4 {vr(CSR+4*i,4)}, v207, s[20:23], s36 offen {'sc1' if mega else ''}")
    gather_cs()
    a(f"    buffer_load_dwordx2 {vr(BR,2)}, v205, s[72:75], s43 offen")
    for k in (KP + 1, KP + 2):
        stamp(a, 21 + 2 * (k - KP - 1))
        a(f"    s_waitcnt vmcnt({33 + extra(k)})\n    s_barrier          ; b{k}")
        stamp(a, 22 + 2 * (k - KP - 1))
        issueA1(); issueB1(); pf(k)
    t = Asm()
    for i in range(1, 8): t(f"    v_pk_add_f32 {vr(PSR,2)}, {vr(PSR,2)}, {vr(PSR+2*i,2)}")
    for i in range(1, 4):
        t(f"    v_pk_add_f32 {vr(CSR,2)}, {vr(CSR,2)}, {vr(CSR+4*i,2)}\n    v_pk_add_f32 {vr(CSR+2,2)}, {vr(CSR+2,2)}, {vr(CSR+4*i+2,2)}")
    t(f"""    v_add_f32 v3, v{PSR}, v{PSR+1}
    s_mov_b32 s76, 0x3a800000
    v_mov_b32 v4, v3""")
    for sw in ("v_permlane16_swap_b32", "v_permlane32_swap_b32"):
        for d in range(4): t(f"    v_mov_b32 v{CSR+4+d}, v{CSR+d}")
        for d in range(4): t(f"    {sw} v{CSR+4+d}, v{CSR+d}")
        for d in range(4): t(f"    v_add_f32 v{CSR+d}, v{CSR+d}, v{CSR+4+d}")
    t(f"""    v_permlane32_swap_b32 v4, v3
    v_mul_f32 v6, s76, v4                ; mean
    v_mul_f32 v7, s76, v3
    v_fma_f32 v7, -v6, v6, v7
    v_max_f32 v7, 0, v7                  ; variance""")
    rnd(t, 6); rnd(t, 7)
    t("    v_add_f32 v7, 0x3727c5ac, v7"); rnd(t, 7)
    t("    v_sqrt_f32 v7, v7")
    for d in range(4): t(f"    v_cvt_pk_bf16_f32 v{CSR+4+d}, v{CSR+d}, v{CSR+d}")
    rnd(t, 7)
    for d in range(4): t(f"    v_and_b32 v{CSR+4+d}, 0xffff0000, v{CSR+4+d}\n    v_sub_f32 v{CSR+d}, v{CSR+d}, v{CSR+4+d}")
    t("    v_rcp_f32 v9, v7")
    for d in range(4):
        t(f"    v_cvt_pk_bf16_f32 v{CSR+8+2*d}, v{CSR+4+d}, v{CSR+d}")
        t(f"    v_and_b32 v{CSR+9+2*d}, 0xffff, v{BR + (d>>1)}" if d % 2 == 0 else f"    v_lshrrev_b32 v{CSR+9+2*d}, 16, v{BR + (d>>1)}")
    t(f"""    v_mul_f32 v9, v9, v9                 ; r^2
    v_xor_b32 v6, 0x80000000, v6
    v_lshrrev_b32 v4, 16, v6
    v_or_b32 v6, v6, v4                  ; (-m,-m)
    v_lshrrev_b32 v7, 16, v7             ; (den,0)
    v_and_b32 v3, 31, v2
    s_lshl_b32 s77, s34, 7
    s_add_u32 s77, s77, {TST}
    v_lshl_add_u32 v4, v3, 2, s77
    ds_write_b32 v4, v9
    s_lshl_b32 s77, s34, 8
    s_add_u32 s77, s77, {TRM}
    v_lshl_add_u32 v4, v3, 3, s77
    ds_write_b64 v4, v[6:7]
    s_mul_i32 s77, s34, 448
    s_add_u32 s77, s77, {TCB}
    v_lshl_add_u32 v3, v205, 2, s77
    ds_write_b128 v3, {vr(CSR+8,4)}
    ds_write_b128 v3, {vr(CSR+12,4)} offset:16
    v_mov_b32 v10, 0
    v_mov_b32 v11, 0
    v_mov_b32 v12, {TRM + 1024}
    ds_write_b64 v12, v[10:11]
    v_mov_b32 v12, {CNT}
    ds_write_b64 v12, v[10:11]""")
    nchk = NK1 - NS1 - (KP + 3)
    per = (len(t.lines) - 10 + nchk - 1) // nchk
    chunks = [t.lines[10 + i*per: 10 + (i+1)*per] for i in range(nchk)]
    for k in range(KP + 3, NK1 - NS1):
        a(f"    s_waitcnt vmcnt({12 + extra(k)})\n    s_barrier          ; b{k}")
        issueA1(); issueB1(); pf(k)
        if k == KP + 3:
            a(f"{L}_chk:\n    v_max_u32 v3, v{PSR}, v{PSR+1}")
            for i in range(2, 32 if mega else 16, 2): a(f"    v_max3_u32 v3, v3, v{PSR+i}, v{PSR+i+1}")
            a(f"""    v_cmp_eq_u32 vcc, -1, v3
    s_cmp_lg_u64 vcc, 0
    s_cbranch_scc1 {L}_retry""")
            for x in t.lines[:10]: a(x)
        else:
            for x in chunks.pop(0): a(x)
    srd(a, 16, 48, 3584 * 2048)
    final_addr()
    a(f"""    s_mul_i32 s58, s55, 7
    s_add_u32 s58, s58, 1
    s_lshr_b32 s58, s58, 1
    s_mul_i32 s66, s54, {896*2048}
    s_lshl_b32 s36, s55, 9
    s_add_u32 s66, s66, s36
    s_lshl_b32 s31, s58, 17
    s_add_u32 s31, s31, s66          ; G2 B soffset
    s_mov_b32 s78, s31
    s_add_u32 s79, s31, {3 << 17}
    s_lshl_b32 s36, s55, 16
    s_lshl_b32 s59, s34, 14
    s_add_u32 s36, s36, s59
    s_add_u32 s59, s36, s68
    s_add_u32 s59, s59, {HT_OFF:#x}
    s_waitcnt vmcnt({12 + extra(13)})
    s_barrier          ; b13""")
    stamp(a, 13)
    def issueB2(restart=False):
        a("    s_mov_b32 m0, s38\n    s_nop 0")
        for i in range(4): a(f"    buffer_load_dwordx4 v{LB2+i}, s[16:19], s31 offen offset:{i*1024} lds")
        a(f"    s_add_u32 m0, s38, 4096\n    s_add_u32 s38, s38, 32768")
        for i in range(4, 8): a(f"    buffer_load_dwordx4 v{LB2+i}, s[16:19], s31 offen offset:{(i&3)*1024} lds")
        a(f"""    s_add_u32 s31, s31, {64*2048}
    s_cmp_ge_u32 s38, s37
    s_cselect_b32 s38, s71, s38""")
        if restart: a("    s_cmp_eq_u32 s66, s78\n    s_cselect_b32 s31, s31, s66")
        else: a("    s_cmp_eq_u32 s31, s78\n    s_cselect_b32 s31, s79, s31")
    issueB2()
    for x in chunks.pop(0): a(x)
    stamp(a, 15)
    a(f"    s_waitcnt vmcnt({8 + (1 if 12 in pfk else 0)})\n    s_barrier          ; b14")
    stamp(a, 14)
    assert not chunks
    issueB2()
    srd(a, 12, 4, H1_SZ, off=H1_OFF); srd(a, 60, 4, FLG_SZ, off=FLG_OFF)
    a(f"""    s_lshr_b32 s36, s34, 1
    s_lshl_b32 s36, s36, 13
    s_and_b32 s45, s34, 1
    s_lshl_b32 s46, s45, 11              ; + 16*(lw&1)
    s_add_u32 s36, s36, s46
    v_lshl_add_u32 v3, v2, 4, s36
    s_lshl_b32 s36, s35, 1
    s_add_u32 s36, s36, 49152
    v_lshl_add_u32 v4, v2, 4, s36
    v_lshrrev_b32 v5, 3, v2
    v_xor_b32 v5, v5, v2
    v_bfe_u32 v5, v5, 2, 1               ; c bit2
    v_cmp_eq_u32 vcc, s29, v5
    v_mov_b32 v6, 0x80000000
    s_mul_i32 s36, s27, 7
    s_lshr_b32 s36, s36, 1               ; ks0
    v_cndmask_b32 v5, v6, v{LA}, vcc
    s_cmp_eq_u32 s45, 0
    s_cselect_b64 vcc, -1, 0
    s_mul_i32 s46, s26, 56
    v_cndmask_b32 v7, v5, v6, vcc
    v_cndmask_b32 v5, v6, v5, vcc
    s_add_u32 s36, s36, s46
    s_add_u32 s40, s36, s29
    s_lshl_b32 s40, s40, 14
    s_add_u32 s41, s40, 16384
    s_add_u32 s42, s40, 32768
    s_cmp_eq_u32 s29, 1
    s_cselect_b32 s47, 0, 3
    s_add_u32 s47, s47, s36
    s_lshl_b32 s47, s47, 14
    s_mul_i32 s68, s54, 14
    s_add_u32 s68, s68, s46
    s_lshl_b32 s68, s68, 14
    s_add_u32 s30, s58, 3
    s_lshl_b32 s30, s30, 14
    s_add_u32 s30, s30, s68
    s_mov_b32 s77, s30
    s_sub_u32 s76, s30, {3 << 14}
    s_cmp_eq_u32 s68, s76
    s_cselect_b32 s30, s30, s68
    s_lshl_b32 s45, s55, 2
    s_add_u32 s46, s56, {RDY:#x}
    s_add_u32 s45, s45, s46
    v_and_b32 v8, 3, v2
    v_lshlrev_b32 v8, 2, v8
    v_mov_b32 v10, 1
    s_waitcnt lgkmcnt(0)
    s_barrier          ; b15""")
    stamp(a, 1)
    for half in range(2):
        stamp(a, 16 + 2 * half)
        if half == 1: a("    s_waitcnt vmcnt(10)")
        a(f"    s_barrier                            ; E{half}")
        stamp(a, 17 + 2 * half)
        ho = 4096 * half
        items = [(4, 5 + 2 * half, 47, 1024 * q, q) for q in range(4)] + [(3, 3, 40 + b, (16384, 32768, 0)[b] + ho + 1024 * q, q) for b in range(3) for q in range(2)]
        for i, (vr_, vs_, so, lo, q) in enumerate(items):
            a(f"    ds_read_b128 {vr(32+40*half+4*i,4)}, v{vr_} offset:{lo}")
        if half == 1:
            a("    s_add_u32 s40, s40, 4096\n    s_add_u32 s41, s41, 4096\n    s_add_u32 s42, s42, 4096\n    s_waitcnt lgkmcnt(6)")
            issueB2(restart=True)
        for i, (vr_, vs_, so, lo, q) in enumerate(items):
            a(f"    s_waitcnt lgkmcnt({9-i})\n    buffer_store_dwordx4 {vr(32+40*half+4*i,4)}, v{vs_}, s[12:15], s{so} offen offset:{1024*q} sc1")
    stamp(a, 3)
    a("    s_barrier          ; c0")
    issueB2()
    a("    s_waitcnt vmcnt(18)\n    s_barrier          ; c1\n    s_waitcnt vmcnt(8)")
    stamp(a, 4)
    a(f"""    s_mov_b64 exec, 1
    ds_add_rtn_u32 v13, v12, v10
    s_mov_b64 exec, -1
    s_waitcnt lgkmcnt(0)
    v_readfirstlane_b32 s36, v13
    s_cmp_eq_u32 s36, 3
    s_cbranch_scc0 {L}_wait2
    s_mov_b64 exec, 1
    buffer_store_dword v10, v11, s[60:63], s45 offen sc1
    s_mov_b64 exec, 15
{L}_poll2:
    buffer_load_dword v9, v8, s[60:63], s46 offen sc1
    s_waitcnt vmcnt(0)
    v_cmp_eq_u32 vcc, 1, v9
    s_cmp_eq_u64 vcc, exec
    s_cbranch_scc1 {L}_seen2
    s_sleep {opt.psleep}
    s_branch {L}_poll2
{L}_seen2:
    ds_write_b32 v12, v10 offset:4
    s_mov_b64 exec, -1
    s_branch {L}_go2
{L}_wait2:
    s_sleep 1
    ds_read_b32 v13, v12 offset:4
    s_waitcnt lgkmcnt(0)
    v_readfirstlane_b32 s36, v13
    s_cmp_eq_u32 s36, 1
    s_cbranch_scc0 {L}_wait2
{L}_go2:""")
    stamp(a, 5)
    def issueA2():
        a("    s_mov_b32 m0, s70\n    s_add_u32 s70, s70, 16384")
        for i in range(4): a(f"    buffer_load_dwordx4 v{LA}, s[12:15], s30 offen offset:{i*1024} sc1 lds")
        a("""    s_add_u32 s30, s30, 16384
    s_cmp_ge_u32 s70, s39
    s_cselect_b32 s70, s35, s70
    s_cmp_eq_u32 s30, s76
    s_cselect_b32 s30, s77, s30""")
    issueA2(); issueA2(); issueB2()
    a("    s_waitcnt vmcnt(12)\n    s_barrier          ; c2")
    issueA2(); issueB2()
    a(f"    s_mov_b32 s40, 3\n{L}_l2:")
    if opt.loopst == 2: stamp_loop(a, 40, 29)
    a("    s_waitcnt vmcnt(12)")
    if opt.loopst == 2: stamp_loop(a, 40, 39)
    a("    s_barrier")
    if opt.loopst == 2: stamp_loop(a, 40, 49)
    issueA2(); issueB2()
    a(f"""    s_add_u32 s40, s40, 1
    s_cmp_lt_u32 s40, {NK2-NS2}
    s_cbranch_scc1 {L}_l2
    s_waitcnt vmcnt(12)
    s_barrier          ; c11
    s_waitcnt vmcnt(0)
    s_barrier          ; c12
    s_add_u32 m0, s35, {RES}
    s_barrier          ; c13""")
    stamp(a, 6)
    for i in range(4): a(f"    buffer_load_dwordx4 v208, s[20:23], s59 offen offset:{i*1024} sc1 lds\n    s_add_u32 s59, s59, 3072")
    a(f"    s_waitcnt vmcnt(0)\n    s_barrier          ; X2\n    s_branch {L}_epi2")
    ACC = 0; F0 = 112; F1 = 156; VA = 200; VB = 204; VBH = 235; SA = 212; ONE = 228
    wad = lambda ni: [213, 214, 215, 217, 218, 219, 221][ni]
    vbh = lambda ni: [235, 236, 237, 238, 239, 211, 232][ni]
    a(f"""{L}_cons:
    {f"s_setprio {opt.cprio}" if opt.cprio else ""}
    v_mov_b32 v240, v2               ; lane
    v_and_b32 v241, 15, v2           ; r
    v_lshrrev_b32 v242, 4, v2        ; kg
    v_lshlrev_b32 v243, 3, v242
    s_and_b32 s34, s33, 1            ; wm
    s_lshr_b32 s35, s33, 1           ; wn
    s_lshl_b32 s36, s34, 13          ; wm*64*128
    v_lshl_add_u32 v244, v241, 7, s36
    v_and_b32 v245, 7, v241          ; r7
    v_bfe_u32 v246, v240, 2, 2       ; rr
    v_lshl_add_u32 v247, v242, 3, v246   ; 8kg+rr
    v_and_b32 v248, 3, v240          ; cc
    v_lshlrev_b32 v248, 3, v248
    v_lshl_add_u32 v249, v247, 8, v248
    v_lshl_add_u32 v247, v247, 9, v248
    v_add_u32 v247, {BR1}, v247
    v_and_b32 v248, 1, v242
    v_lshl_or_b32 v246, v248, 2, v246    ; g
    s_lshl_b32 s37, s34, 2""")
    for mi in range(4):
        a(f"    s_add_u32 s38, s37, {mi}\n    v_xor_b32 v248, s38, v246\n    v_lshl_add_u32 v{VA+mi}, v248, 5, v249")
    a(f"""    s_mul_i32 s37, s35, 7
    s_lshl_b32 s38, s29, 1
    s_add_u32 s37, s37, s38          ; f0 = 2p + 7wn""")
    for ni in range(7):
        a(f"    s_add_u32 s38, s37, {ni}\n    v_xor_b32 v248, s38, v246\n    v_lshl_add_u32 v{VB+ni}, v248, 5, v247")
        a(f"    v_add_u32 v{vbh(ni)}, 0x10000, v{VB+ni}")
    for i in range(0, 112, 2): a(f"    v_mov_b64 {vr(ACC+i,2)}, 0")
    for i in range(4): a(f"    v_mov_b32 v{ONE+i}, 0x3f803f80")
    a(f"""    v_lshrrev_b32 v248, 2, v241
    v_and_b32 v249, 3, v240
    v_cmp_eq_u32 s[70:71], v248, v242
    v_cmp_eq_u32 s[64:65], 1, v249
    v_cmp_eq_u32 s[66:67], 2, v249
    v_cmp_eq_u32 s[68:69], 3, v249
    s_and_b32 s41, s27, 3
    s_add_u32 s41, s41, 1
    s_lshl_b32 s59, s26, 14
    s_xor_b32 s36, s35, 1
    s_lshl_b32 s36, s36, 13
    s_add_u32 s59, s59, s36
    s_lshl_b32 s36, s27, 9
    s_add_u32 s59, s59, s36
    s_lshl_b32 s36, s34, 8
    s_add_u32 s59, s59, s36
    s_mul_i32 s36, s35, 896
    s_add_u32 s36, s36, {TCB}
    v_lshl_add_u32 v233, v241, 3, s36
    s_lshl_b32 s36, s34, 9
    s_add_u32 s36, s36, {TRM}
    v_lshl_add_u32 v247, v241, 3, s36
    v_cmp_eq_u32 vcc, 0, v242
    v_mov_b32 v248, {TRM + 1024}
    v_mov_b32 v249, 128
    v_cndmask_b32 v252, v248, v247, vcc
    v_cndmask_b32 v249, 0, v249, vcc
    v_add_u32 v253, v252, v249
    v_add_u32 v254, v253, v249
    v_add_u32 v255, v254, v249
    v_lshrrev_b32 v246, 1, v242
    v_xor_b32 v246, v246, v245
    v_lshlrev_b32 v246, 4, v246          ; ((kg>>1)^r7)<<4
    v_and_b32 v247, 1, v242
    v_lshl_add_u32 v247, v247, 3, v244   ; m*128 + half*8""")
    a("    s_lshl_b32 s36, s34, 13\n    s_add_u32 s36, s36, 49152")
    for ni in range(7):
        c0 = 76 + ni if ni < 4 else 60 + ni - 4
        a(f"""    s_add_u32 s38, s37, {ni}
    s_lshr_b32 s39, s38, 2
    s_sub_u32 s39, s39, s29
    s_and_b32 s39, s39, 3
    s_add_u32 s40, s39, 1
    s_lshl_b32 s40, s40, 14
    s_cmp_eq_u32 s39, 2
    s_cselect_b32 s40, 0, s40
    s_cmp_eq_u32 s39, 3
    s_cselect_b32 s40, s36, s40
    s_cselect_b32 s39, 4096, 0
    s_and_b32 s38, s38, 3
    s_lshl_b32 s38, s38, 5
    s_or_b32 s{c0}, s38, s40
    s_add_u32 s{89+ni}, s{c0}, s39""")
    a("    s_waitcnt lgkmcnt(0)")
    srd(a, 72, 4, 256 * 1024, off=PST_OFF)
    stamp(a, 0)
    a("    s_barrier")
    stamp(a, 1)
    CT = F0; MTR = F0 + 16
    def g1_tail(mf):
        stamp(a, 13)
        mf = [m for j, m in enumerate(mf) if (j & 3) < 2] + [m for j, m in enumerate(mf) if (j & 3) >= 2]
        fill = [f"    ds_read_b64 {vr(MTR+2*mi,2)}, v{252+mi}" for mi in range(4)]
        fill += [f"    ds_read_b64 {vr(CT+2*ni,2)}, v233 offset:{128*ni}" for ni in range(7)]
        fill += ["\n".join(f"    v_xad_u32 v{wad(ni)}, v246, s{76+ni if ni < 4 else 60+ni-4}, v247" for ni in q) for q in ((0, 1), (2, 3), (4, 5), (6,))]
        if opt.b2tail:
            fill += [f"""    s_lshl_b32 s36, s55, 8
    s_lshl_b32 s38, s35, 7
    s_add_u32 s36, s36, s38
    s_mov_b32 s16, s50
    s_mov_b32 s17, s51
    s_mov_b32 s18, 2048
    s_mov_b32 s19, 0x00020000
""" + "\n".join(f"    buffer_load_dwordx2 {vr(232 + 2*ni, 2)}, v243, s[16:19], s36 offen offset:{32*ni}" for ni in range(4))]
        if not opt.tail2:
            for j, m in enumerate(mf):
                a(m)
                if j < len(fill): a(fill[j])
        def corr(ni, mi):
            c = ACC + 4 * (mi * 7 + ni)
            a(f"    v_mfma_f32_16x16x16_bf16 {vr(c,4)}, {vr(CT+2*ni,2)}, {vr(MTR+2*mi,2)}, {vr(c,4)}")
        def act(ni, mi):
            c = ACC + 4 * (mi * 7 + ni)
            for x in range(4): a(f"    v_max_f32 v{c+x}, 0, v{c+x}")
            a(f"    v_pk_mul_f32 {vr(c,2)}, {vr(c,2)}, {vr(c,2)}\n    v_pk_mul_f32 {vr(c+2,2)}, {vr(c+2,2)}, {vr(c+2,2)}")
            a(f"    v_cvt_pk_bf16_f32 v{c}, v{c}, v{c+1}\n    v_cvt_pk_bf16_f32 v{c+1}, v{c+2}, v{c+3}")
            a(f"    ds_write_b64 v{wad(ni)}, {vr(c,2)} offset:{mi*2048}")
        first = [(ni, mi) for ni in range(7) for mi in range(2)]; second = [(ni, mi) for ni in range(7) for mi in range(2, 4)]
        if opt.tail2:
            for j, m in enumerate(mf[:16]):
                a(m)
                if j < len(fill): a(fill[j])
            a("    s_waitcnt lgkmcnt(0)")
            for x in first[:4]: corr(*x)
            u = Asm(); save = a.lines; a.lines = u.lines
            for x in first[4:]: corr(*x)
            for m in mf[16:]: a(m)
            for x in second: corr(*x)
            a.lines = save
            rest = u.lines
            for m in rest[:4]: a(m)
            rest = rest[4:]
            for j, x in enumerate(first):
                n = 2 if j < 10 else 3
                for y in rest[:n]: a(y)
                rest = rest[n:]
                act(*x)
            assert not rest
        else:
            a("    s_waitcnt lgkmcnt(0)")
            for x in first[:6]: corr(*x)
            a("    s_nop 1")
            rest = first[6:] + second
            for j, x in enumerate(first):
                for y in rest[2*j: 2*j + 2]: corr(*y)
                act(*x)
        stamp(a, 14)
        a("    s_waitcnt lgkmcnt(0)\n    s_barrier                            ; E0")
        stamp(a, 15)
        for ni in range(7): a(f"    v_xad_u32 v{wad(ni)}, v246, s{89+ni}, v247")
        for x in second: act(*x)
    def rdA1(F, slot, kh):
        return [f"    ds_read_b64_tr_b16 {vr(F + 4*mi + 2*t, 2)}, v{VA+mi} offset:{slot*16384 + kh*8192 + t*1024}" for mi in range(4) for t in range(2)]
    def rdB1(F, slot, kh, ni):
        reg = VB + ni if slot < 2 else vbh(ni)
        return [f"    ds_read_b64_tr_b16 {vr(F + 16 + 4*ni + 2*t, 2)}, v{reg} offset:{(slot&1)*32768 + kh*16384 + t*2048}" for t in range(2)]
    loop_unrolled(a, L + "1", 4, 7, NK1, NS1, ACC, F0, F1, rdA1, rdB1, 40, opt.ga_bar, g1_tail,
                  hookA=lambda u: f"    s_cmp_eq_u32 s40, s41\n    s_cbranch_scc1 {L}_xa{u}\n{L}_xar{u}:",
                  hookB=lambda u: f"    s_cmp_eq_u32 s40, s41\n    s_cbranch_scc1 {L}_xb")
    a("    s_waitcnt lgkmcnt(0)")
    stamp(a, 2)
    a("    s_barrier                            ; E1")
    ACC = 0; G0 = 128; G1_ = 176; VA2 = 224; VB2 = 232
    vb2h = lambda ni: [246, 247, 248, 249, 252, 253, 254, 255][ni]
    a(f"""    s_lshl_b32 s36, s54, 11
    v_add_u32 v204, s36, v244
    v_xor_b32 v206, v242, v245
    v_lshl_add_u32 v{VA2}, v206, 4, v204""")
    for i in range(1, 8): a(f"    v_xor_b32 v{VA2+i}, {((i >> 1) << 11) | ((i & 1) << 6)}, v{VA2}")
    a(f"""    v_bfe_u32 v206, v240, 2, 2           ; rr
    v_lshl_add_u32 v207, v242, 3, v206
    v_lshlrev_b32 v207, 9, v207
    v_and_b32 v208, 3, v240
    v_lshl_add_u32 v207, v208, 3, v207
    v_add_u32 v207, {BR1}, v207
    v_and_b32 v208, 1, v242
    v_lshl_or_b32 v206, v208, 2, v206    ; g
    s_lshl_b32 s37, s35, 8
    v_add_u32 v207, s37, v207""")
    for ni in range(8):
        a(f"    v_xor_b32 v208, {ni}, v206\n    v_lshl_add_u32 v{VB2+ni}, v208, 5, v207\n    v_add_u32 v{vb2h(ni)}, 0x10000, v{VB2+ni}")
    for i in range(0, 128, 2): a(f"    v_mov_b64 {vr(ACC+i,2)}, 0")
    stamp(a, 5)
    def g2_tail(mf):
        M = [[m for j, m in enumerate(mf) if (j & 3) == mi] for mi in range(4)]
        pre = Asm(); save = a.lines; a.lines = pre.lines
        srd(a, 12, 4, 256 << 16, off=XC2)
        a(f"""    v_lshlrev_b32 v{VA2}, 4, v240
    s_lshl_b32 s36, s2, 16
    s_lshl_b32 s37, s33, 12
    s_add_u32 s36, s36, s37""")
        a.lines = save
        for j, m in enumerate(M[1]):
            a(m); a(pre.lines[j])
        for mi, nxt in ((1, M[2]), (2, M[3]), (3, M[0])):
            for q in range(4):
                a(nxt[2 * q]); a(nxt[2 * q + 1])
                o = G0 + 16 * (mi - 1) + 4 * q
                for h in range(2):
                    c = ACC + 4 * (8 * mi + 2 * q + h)
                    a(f"    v_cvt_pk_bf16_f32 v{o + 2*h}, v{c}, v{c+1}\n    v_cvt_pk_bf16_f32 v{o + 2*h + 1}, v{c+2}, v{c+3}")
                a(f"    buffer_store_dwordx4 {vr(o,4)}, v{VA2}, s[12:15], s36 offen offset:{q*1024} sc1")
            a("    s_add_u32 s36, s36, 16384")
    def rdA2(F, slot, kh):
        return [f"    ds_read_b128 {vr(F + 4*mi, 4)}, v{VA2 + 2*mi + kh} offset:{slot*16384}" for mi in range(4)]
    def rdB2(F, slot, kh, ni):
        reg = VB2 + ni if slot < 2 else vb2h(ni)
        return [f"    ds_read_b64_tr_b16 {vr(F + 16 + 4*ni + 2*t, 2)}, v{reg} offset:{(slot&1)*32768 + kh*16384 + t*2048}" for t in range(2)]
    loop_unrolled(a, L + "2", 4, 8, NK2, NS2, ACC, G0, G1_, rdA2, rdB2, 40, opt.gb_bar, g2_tail, start=1)
    stamp(a, 6)
    VBI = 226; RSD = 32; RB = 48; BF = 80; WA = 112
    srd(a, 16, 50, 2048); srd(a, 60, 4, FLG_SZ, off=FLG_OFF)
    a(f"""    s_lshl_b32 s36, s55, 9
    s_lshl_b32 s38, s35, 8
    s_add_u32 s36, s36, s38""")
    for ni in range(8): a(f"    buffer_load_dwordx2 {vr(RB + 2*ni, 2)}, v243, s[16:19], s36 offen offset:{32*ni}")
    final_addr()
    a(f"""    v_bfe_u32 v120, v240, 2, 2           ; rr
    v_lshl_add_u32 v120, v242, 2, v120
    v_and_b32 v121, 1, v242
    v_xor_b32 v121, s34, v121
    v_lshlrev_b32 v121, 5, v121
    v_lshl_add_u32 v121, v120, 6, v121
    v_and_b32 v120, 3, v240
    v_lshl_add_u32 v121, v120, 3, v121
    s_lshl_b32 s38, s35, 13
    s_add_u32 s38, s38, {RES}
    v_add_u32 v121, s38, v121
    s_lshl_b32 s38, s34, 8
    s_lshl_b32 s39, s54, 6
    s_add_u32 s38, s38, s39
    s_add_u32 s38, s38, {TST}
    v_lshl_add_u32 v120, v241, 2, s38
    ds_read_b32 v122, v120               ; r^2
    s_lshl_b32 s36, s2, 9
    s_lshl_b32 s37, s33, 7
    s_add_u32 s36, s36, s37
    v_add_u32 v124, 1, v240
    v_lshlrev_b32 v124, 10, v124
    v_xor_b32 v124, s36, v124
    v_mov_b32 v125, 1
    v_mov_b32 v126, 0
    v_lshrrev_b32 v120, 1, v242
    v_xor_b32 v120, v120, v241           ; (kg>>1) ^ r
    v_lshlrev_b32 v120, 4, v120
    s_lshl_b32 s38, s34, 13
    s_lshl_b32 s39, s35, 8
    s_add_u32 s38, s38, s39
    v_lshl_add_u32 v123, v241, 9, s38
    v_and_b32 v127, 1, v242
    v_lshl_add_u32 v123, v127, 3, v123""")
    for ni in range(8): a(f"    v_xad_u32 v{WA+ni}, v120, {32*ni if ni < 3 else 's38'}, v123" if ni < 3 else f"    s_movk_i32 s38, {32*ni}\n    v_xad_u32 v{WA+ni}, v120, s38, v123")
    for m in range(1, 4):
        a(f"""    s_xor_b32 s{44+m}, s2, {m << 1}
    s_lshl_b32 s{44+m}, s{44+m}, 16
    s_add_u32 s{44+m}, s{44+m}, s37""" .replace("s37", "s39") if False else f"""    s_xor_b32 s{44+m}, s2, {m << 1}
    s_lshl_b32 s{44+m}, s{44+m}, 16
    s_lshl_b32 s38, s33, 12
    s_add_u32 s38, s38, {(m-1)*16384}
    s_add_u32 s{44+m}, s{44+m}, s38""")
    a(f"""    s_mov_b64 exec, 1
    s_waitcnt vmcnt(0)
    buffer_store_dword v125, v126, s[60:63], s36 offen sc1
    s_mov_b64 exec, 7
    buffer_load_dword v127, v124, s[60:63], 0 offen sc1
    s_mov_b64 exec, -1
    s_barrier                            ; X2""")
    for ni in range(8): a(f"    ds_read_b64_tr_b16 {vr(RSD+2*ni,2)}, v121 offset:{1024*ni}")
    for ni in range(8):
        unpack(a, BF + 4 * ni, RB + 2 * ni); unpack(a, BF + 4 * ni + 2, RB + 2 * ni + 1)
    a("    s_waitcnt lgkmcnt(0)")
    for ni in range(8):
        c = RB + 4 * ni
        unpack(a, c, RSD + 2 * ni); unpack(a, c + 2, RSD + 2 * ni + 1)
        a(f"    v_pk_add_f32 {vr(c,2)}, {vr(c,2)}, {vr(BF+4*ni,2)}\n    v_pk_add_f32 {vr(c+2,2)}, {vr(c+2,2)}, {vr(BF+4*ni+2,2)}")
    a(f"""    s_mov_b64 exec, 7
{L}_poll:
    s_waitcnt vmcnt(0)
    v_cmp_eq_u32 vcc, 1, v127
    s_cmp_eq_u64 vcc, exec
    s_cbranch_scc1 {L}_seen
    buffer_load_dword v127, v124, s[60:63], 0 offen sc1
    s_branch {L}_poll
{L}_seen:
    s_mov_b64 exec, -1""")
    stamp(a, 7)
    for q in range(4):
        for m in range(3):
            a(f"    buffer_load_dwordx4 {vr(G1_ + 16*m + 4*q, 4)}, v{VA2}, s[12:15], s{45+m} offen offset:{q*1024} sc1")
    for ni in range(8):
        c = ACC + 4 * ni
        if ni % 2 == 0: a(f"    s_waitcnt vmcnt({9 - 3*(ni//2)})")
        for m in range(3):
            p = G1_ + 16 * m + 2 * ni; t2 = BF + 4 * m
            unpack(a, t2, p); unpack(a, t2 + 2, p + 1)
            a(f"    v_pk_add_f32 {vr(c,2)}, {vr(c,2)}, {vr(t2,2)}\n    v_pk_add_f32 {vr(c+2,2)}, {vr(c+2,2)}, {vr(t2+2,2)}")
        a(f"""    v_pk_fma_f32 {vr(c,2)}, {vr(c,2)}, v[122:123], {vr(RB+4*ni,2)} op_sel_hi:[1,0,1]
    v_pk_fma_f32 {vr(c+2,2)}, {vr(c+2,2)}, v[122:123], {vr(RB+4*ni+2,2)} op_sel_hi:[1,0,1]
    v_cvt_pk_bf16_f32 v{c}, v{c}, v{c+1}
    v_cvt_pk_bf16_f32 v{c+1}, v{c+2}, v{c+3}
    ds_write_b64 v{WA+ni}, {vr(c,2)}""")
    a("    s_waitcnt lgkmcnt(0)")
    stamp(a, 8)
    a(f"""{L}_epi2:
    v_mbcnt_lo_u32_b32 v2, -1, 0
    v_mbcnt_hi_u32_b32 v2, -1, v2
    v_lshrrev_b32 v3, 5, v2
    v_and_b32 v5, 31, v2
    v_lshlrev_b32 v6, 11, v3
    v_lshl_add_u32 v6, v5, 4, v6
    s_lshl_b32 s36, s33, 2
    v_add_u32 v3, s36, v3
    v_and_b32 v4, 15, v3
    v_xor_b32 v4, v4, v5
    v_lshlrev_b32 v4, 4, v4
    v_lshl_add_u32 v3, v3, 9, v4
    v_xor_b32 v4, 32, v3""")
    srd(a, 12, 52, MB4)
    a(f"""    s_barrier                            ; X3
    ds_read_b128 v[16:19], v3
    ds_read_b128 v[20:23], v4 offset:1024
    s_waitcnt lgkmcnt(1)
    buffer_store_dwordx4 v[16:19], v6, s[12:15], s43 offen {opt.outf}
    s_waitcnt lgkmcnt(0)
    buffer_store_dwordx4 v[20:23], v6, s[12:15], s44 offen {opt.outf}""")
    stamp(a, 9)
    if opt.stamps: a("    s_waitcnt vmcnt(0)")
    stamp(a, 10)
    stamp_end(a, kidx, 4, 33)
    a(f"{mega['end'] if mega else L + '_end'}:\n    s_endpgm")
    F0 = 112; F1 = 156
    def extra(F, first, tag):
        a(f"    s_cmp_eq_u32 s35, 0\n    s_cbranch_scc0 {L}_x1{tag}")
        for mi in range(4): a(f"    v_mfma_f32_16x16x32_bf16 {vr(SA+4*mi,4)}, {vr(F+4*mi,4)}, {vr(F+4*mi,4)}, {'0' if first else vr(SA+4*mi,4)}")
        a(f"    s_branch {L}_x2{tag}\n{L}_x1{tag}:")
        for mi in range(4): a(f"    v_mfma_f32_16x16x32_bf16 {vr(SA+4*mi,4)}, {vr(ONE,4)}, {vr(F+4*mi,4)}, {'0' if first else vr(SA+4*mi,4)}")
        a(f"{L}_x2{tag}:")
    for u in range(3):
        a(f"{L}_xa{u}:"); extra(F0, True, f"a{u}"); a(f"    s_branch {L}_xar{u}")
    a(f"{L}_xb:"); extra(F1, False, "b")
    a("    s_nop 7")
    for mi in range(4):
        c = SA + 4 * mi
        a(f"""    v_cndmask_b32 v{c}, v{c}, v{c+1}, s[64:65]
    v_cndmask_b32 v{c}, v{c}, v{c+2}, s[66:67]
    v_cndmask_b32 v{c}, v{c}, v{c+3}, s[68:69]
    v_cndmask_b32 v{c}, 0, v{c}, s[70:71]""")
    for sw in ("v_permlane16_swap_b32", "v_permlane32_swap_b32"):
        for mi in range(4): a(f"    v_mov_b32 v{SA+4*mi+1}, v{SA+4*mi}")
        for mi in range(4): a(f"    {sw} v{SA+4*mi+1}, v{SA+4*mi}")
        for mi in range(4): a(f"    v_add_f32 v{SA+4*mi}, v{SA+4*mi}, v{SA+4*mi+1}")
    a(f"""    v_cmp_eq_u32 vcc, 1, v242
    v_cmp_eq_u32 s[64:65], 2, v242
    v_cmp_eq_u32 s[66:67], 3, v242
    v_cndmask_b32 v{SA}, v{SA}, v{SA+4}, vcc
    v_cndmask_b32 v{SA}, v{SA}, v{SA+8}, s[64:65]
    v_cndmask_b32 v{SA}, v{SA}, v{SA+12}, s[66:67]
    v_lshlrev_b32 v{SA+1}, 2, v240
    v_min_u32 v{SA}, -2, v{SA}
    
    buffer_store_dword v{SA}, v{SA+1}, s[72:75], s59 offen sc1
    s_cmp_eq_u32 s40, 2
    s_cbranch_scc1 {L}1_s2
    s_cmp_eq_u32 s40, 3
    s_cbranch_scc1 {L}1_s0
    s_branch {L}1_s1
{L}_retry:
    s_sleep 2""")
    gather_ps()
    if mega: gather_cs()
    a(f"    s_waitcnt vmcnt(0)\n    s_branch {L}_chk")
    return (name, 256, 512, 163840), (name, 256, 96)
```
